```python
import torch

def _softmax(x, axis=-1):
    return torch.softmax(x, dim=axis)

def _gelu(x):
    return torch.nn.functional.gelu(x, approximate='tanh')

def _silu(x):
    return torch.nn.functional.silu(x)

def _sigmoid(x):
    return torch.sigmoid(x)

def _layernorm(x, axis=-1, eps=1e-05):
    m = x.mean(dim=axis, keepdim=True)
    v = x.var(dim=axis, keepdim=True, unbiased=False)
    return (x - m) / torch.sqrt(v + eps)

def _scatter_add(tgt, idx, src, axis=0):
    return tgt.clone().index_add_(axis, idx, src)

def _segment_sum(src, seg, n):
    out = torch.zeros((n,) + src.shape[1:], dtype=src.dtype)
    return out.index_add_(0, seg, src)

def _pad(x, pw):
    flat = tuple((v for pair in reversed(pw) for v in pair))
    return torch.nn.functional.pad(x, flat)
kernel_name = 'gated_mix__memory_aug_recurrent_mem_tr__dense_activation_silu__prompt'

def setup_inputs():

    _w = lambda a: (lambda t: t.to(torch.bfloat16) if t.is_floating_point() else t)(torch.as_tensor(a))

    def _A_setup():
        B, S, Dm = (1, 2048, 512)
        H, Dh = (32, 128)
        M, seg = (8, 32)
        seg = min(seg, S)
        S = S // seg * seg
        return {'x': _w((lambda *s: torch.randn(*s, dtype=torch.bfloat16) * 0.05)(B, S, Dm)), 'mem0': _w((lambda *s: torch.randn(*s, dtype=torch.bfloat16) * 0.4)(B, M, Dm)), 'Wq': _w((lambda *s: torch.randn(*s, dtype=torch.bfloat16) * 6.4)(Dm, H, Dh) * Dm ** (-0.5)), 'Wk': _w((lambda *s: torch.randn(*s, dtype=torch.bfloat16) * 6.4)(Dm, H, Dh) * Dm ** (-0.5)), 'Wv': _w((lambda *s: torch.randn(*s, dtype=torch.bfloat16) * 0.4)(Dm, H, Dh) * Dm ** (-0.5)), 'Wo': _w((lambda *s: torch.randn(*s, dtype=torch.bfloat16) * 0.4)(H, Dh, Dm) * (H * Dh) ** (-0.5)), 'seg_len': seg}
    _A_in = _A_setup()

    def _B_setup():
        B, S, D, F = (1, 2048, 512, 1376)
        return {'x': _w((lambda *s: torch.randn(*s, dtype=torch.bfloat16) * 0.05)(B, S, D)), 'w1': _w((lambda *s: torch.randn(*s, dtype=torch.bfloat16) * 3.2)(D, F) * D ** (-0.5)), 'w2': _w((lambda *s: torch.randn(*s, dtype=torch.bfloat16) * 0.2)(F, D) * F ** (-0.5))}
    _B_in = _B_setup()
    return {'A_x': _A_in['x'], 'A_mem0': _A_in['mem0'], 'A_Wq': _A_in['Wq'], 'A_Wk': _A_in['Wk'], 'A_Wv': _A_in['Wv'], 'A_Wo': _A_in['Wo'], 'A_seg_len': _A_in['seg_len'], 'B_x': _B_in['x'], 'B_w1': _B_in['w1'], 'B_w2': _B_in['w2'], 'gate_w': _w((lambda *s: torch.randn(*s, dtype=torch.bfloat16) * 0.05)(512) * 16.0)}

def reference(A_x, A_mem0, A_Wq, A_Wk, A_Wv, A_Wo, A_seg_len, B_x, B_w1, B_w2, gate_w):

    def _A_ref(x, mem0, Wq, Wk, Wv, Wo, seg_len):
        B, S, Dm = x.shape
        H, Dh = (Wq.shape[1], Wq.shape[2])
        M = mem0.shape[1]
        scale = Dh ** (-0.5)
        n_seg = S // seg_len
        L = M + seg_len
        idx = torch.arange(L)
        mask = (idx[:, None] < M) | (idx[:, None] >= idx[None, :])
        mem = mem0
        outs = []
        for s in range(n_seg):
            xs = x[:, s * seg_len:(s + 1) * seg_len, :].clone()
            h = torch.concatenate([mem, xs], axis=1)
            q = torch.einsum('btd,dhe->bhte', h, Wq)
            k = torch.einsum('btd,dhe->bhte', h, Wk)
            v = torch.einsum('btd,dhe->bhte', h, Wv)
            scores = torch.einsum('bhqe,bhke->bhqk', q, k) * scale
            scores = torch.where(mask[None, None], scores, -1000000000.0)
            p = _softmax(scores, axis=-1)
            o = torch.einsum('bhqk,bhke->bhqe', p, v)
            o = torch.einsum('bhte,hed->btd', o, Wo)
            mem = o[:, :M, :].clone()
            outs.append(o[:, M:, :])
        return torch.concatenate(outs, axis=1)

    def _B_ref(x, w1, w2):
        h = torch.einsum('bsd,df->bsf', x, w1)
        h = _silu(h)
        out = torch.einsum('bsf,fd->bsd', h, w2)
        return out
    x = A_x
    g = _sigmoid((x * gate_w).sum(-1, keepdims=True))
    a = _A_ref(x, A_mem0, A_Wq, A_Wk, A_Wv, A_Wo, A_seg_len)
    b = _B_ref(x, B_w1, B_w2)
    return g * a + (1 - g) * b
```

```python
class Asm:
    def __init__(self):
        self.L = []
        self.uid = 0

    def __call__(self, s):
        for line in s.split("\n"):
            line = line.strip()
            if line:
                self.L.append("    " + line)

    def label(self, n):
        self.L.append(n + ":")

    def new_label(self, stem):
        self.uid += 1
        return "L_%s_%d" % (stem, self.uid)

    def comment(self, s):
        self.L.append("    ; " + s)

    def nop(self, states):
        while states > 0:
            k = min(states, 16)
            self.L.append("    s_nop %d" % (k - 1))
            states -= k

    def text(self):
        return "\n".join(self.L) + "\n"


def v(a, n=1):
    return "v%d" % a if n == 1 else "v[%d:%d]" % (a, a + n - 1)


def a(a_, n=1):
    return "a%d" % a_ if n == 1 else "a[%d:%d]" % (a_, a_ + n - 1)


def s(a_, n=1):
    return "s%d" % a_ if n == 1 else "s[%d:%d]" % (a_, a_ + n - 1)


def reg(spec, n):
    k, i = spec
    return (v if k == 'v' else a)(i, n)


def off(spec, d):
    return (spec[0], spec[1] + d)
```

```python
from dsl import *
import gen as G
from gen import *

QK_OFF, O_OFF, MEM_OFF, KX_OFF, VX_OFF, WO_OFF = 0, 4096, 8192, 16384, 24576, 32768

vL16, vAm, vIdx, vQKw, vQKr, vOw, vMw, vWo, vPst, vRed, vMst, vPf, vFlag, vJunk = range(14)
vT0, vT1 = 14, 15
vSEL = 16
vHO = 20
vBM = 26
vS0, vS1 = 30, 31
X = 32
Y = 64
PA = 96
ACC = 112
sH, sS, sSlotP, sSlotM, sKM, sKX, sFo, sFs, sC, sNC, sRet, sPo, sPs = 44, 45, 46, 47, 48, 49, 50, 51, 52, 53, 54, 55, 56
sMLo, sMHi, sM8, sM16 = 58, 60, 92 - 92 + 76, 78
sFastF = 57
RED_LIMIT = 1 << 16

LOG2E = 1.4426950408889634
SCALE_C = (128 ** -0.5) * LOG2E


def f32_hex(x):
    import struct
    return struct.unpack("<I", struct.pack("<f", x))[0]


def kv_offsets(A, s_seg, s_off, s_sh):
    A(f"s_lshr_b32 {s(s_off)}, {s(s_seg)}, 2")
    A(f"s_lshl_b32 {s(s_off)}, {s(s_off)}, 2")
    A(f"s_add_u32 {s(s_off)}, {s(s_off)}, {D_KV*4}")
    A(f"s_and_b32 {s(s_sh)}, {s(s_seg)}, 3")
    A(f"s_lshl_b32 {s(s_sh)}, {s(s_sh)}, 3")


def dma_kv(A, s_seg):
    A(f"s_lshl_b32 {s(sT0)}, {s(s_seg)}, 5")
    A(f"s_add_u32 {s(sT0)}, {s(sT0)}, {s(sH)}")
    A(f"s_lshl_b32 {s(sT0)}, {s(sT0)}, 13")
    A(f"s_lshl_b32 {s(sT1)}, {s(sWAVE)}, 11")
    A(f"s_add_u32 {s(sT0)}, {s(sT0)}, {s(sT1)}")
    A(f"s_add_u32 {s(sT2)}, {s(sT0)}, {WS_KX:#x}")
    A(f"s_add_u32 m0, {s(sT1)}, {KX_OFF}")
    A(f"s_add_u32 {s(sT0)}, {s(sT0)}, {WS_VX:#x}")
    A(f"buffer_load_dwordx4 {v(vL16)}, {s(S_WS,4)}, {s(sT2)} offen lds")
    A(f"buffer_load_dwordx4 {v(vL16)}, {s(S_WS,4)}, {s(sT2)} offen offset:1024 lds")
    A(f"s_add_u32 m0, {s(sT1)}, {VX_OFF}")
    A(f"s_nop 0")
    A(f"buffer_load_dwordx4 {v(vL16)}, {s(S_WS,4)}, {s(sT0)} offen lds")
    A(f"buffer_load_dwordx4 {v(vL16)}, {s(S_WS,4)}, {s(sT0)} offen offset:1024 lds")


def signal_prog(A):
    A(f"v_mov_b32 {v(vT0)}, {s(sPs)}")
    A(f"v_mov_b32 {v(vT1)}, 0")
    A(f"s_mov_b64 exec, 1")
    A(f"buffer_atomic_add {v(vT0)}, {v(vT1)}, {s(S_DBG,4)}, {s(sPo)} offen sc1")
    A(f"s_mov_b64 exec, -1")


def lstamp(A, i):
    L = A.new_label("ls")
    A(f"s_cmp_lg_u32 {s(sS)}, {39 if i < 8 else 40}")
    A(f"s_cbranch_scc1 {L}")
    A(f"s_memtime s[{16+2*(i-1)}:{17+2*(i-1)}]")
    A.label(L)


def gen_step(A, fast, opts):
    st = "" if fast else " sc1"
    tag = "f" if fast else "s"
    Lstep = f"L_step_{tag}"
    Llast = f"L_last_{tag}"
    lq = Q(A, "lgkmcnt", 15)
    A.label(Lstep)
    if opts.get('cprof'):
        lstamp(A, 1)
    Lns = A.new_label("nosig")
    A(f"s_cmp_eq_u32 {s(sS)}, 0")
    A(f"s_cbranch_scc1 {Lns}")
    A(f"s_cmp_lg_u32 {s(sWAVE)}, 3")
    A(f"s_cbranch_scc1 {Lns}")
    signal_prog(A)
    A.label(Lns)
    def rdA(ks, buf):
        lq.issue(('A', ks), f"ds_read_b128 {v(PA+4*buf,4)}, {v(vAm)} offset:{MEM_OFF + (ks % 16)*512}")
    for ks in range(4):
        rdA(ks, ks)
    A(f"s_add_u32 {s(sT3)}, {s(sS)}, 2")
    A(f"s_min_u32 {s(sT3)}, {s(sT3)}, 63")
    kv_offsets(A, sT3, sFo, sFs)
    A(f"v_mov_b32 {v(vT1)}, 0")
    A(f"buffer_load_dword {v(vFlag)}, {v(vT1)}, {s(S_DBG,4)}, {s(sFo)} offen sc1")
    A(f"s_add_u32 {s(sT3)}, {s(sS)}, 1")
    A(f"s_min_u32 {s(sT3)}, {s(sT3)}, 63")
    A(f"s_lshl_b32 {s(sT3)}, {s(sT3)}, 18")
    A(f"buffer_load_dword {v(vJunk)}, {v(vPf)}, {s(S_WS,4)}, {s(sT3)} offen")
    A(f"s_lshl_b32 {s(sKM)}, {s(sS)}, 5")
    A(f"s_add_u32 {s(sKM)}, {s(sKM)}, {s(sH)}")
    A(f"s_lshl_b32 {s(sKM)}, {s(sKM)}, 12")
    A(f"s_add_u32 {s(sKM)}, {s(sKM)}, {WS_KM:#x}")
    aq, ak, av = ACC, ACC + 4, ACC + 8
    for ks in range(16):
        lq.wait(('A', ks))
        buf = ks % 4
        A(f"v_smfmac_f32_16x16x64_bf16 {v(aq,4)}, {v(PA+4*buf,4)}, {a(8*ks,8)}, {v(vIdx)}")
        A(f"v_smfmac_f32_16x16x64_bf16 {v(ak,4)}, {v(PA+4*buf,4)}, {a(128+8*ks,8)}, {v(vIdx)}")
        rdA(ks + 4, buf)
        if 2 <= ks < 10:
            j = ks - 2
            lq.issue(('KX', j), f"ds_read_b128 {v(X+4*j,4)}, {v(vL16)} offset:{KX_OFF + j*1024}")
    if opts.get('cprof'):
        lstamp(A, 2)
    def Vstep(k):
        lq.wait(('A', 16 + k))
        A(f"v_smfmac_f32_16x16x64_bf16 {v(av,4)}, {v(PA+4*(k%4),4)}, {v(128+8*k,8)}, {v(vIdx)}")
        if k + 4 < 16:
            rdA(16 + k + 4, k % 4)
    for k in range(3):
        Vstep(k)
    A(f"v_cvt_pk_bf16_f32 {v(Y+0)}, {v(aq)}, {v(aq+1)}")
    A(f"v_cvt_pk_bf16_f32 {v(Y+1)}, {v(aq+2)}, {v(aq+3)}")
    A(f"v_cvt_pk_bf16_f32 {v(Y+2)}, {v(ak)}, {v(ak+1)}")
    A(f"v_cvt_pk_bf16_f32 {v(Y+3)}, {v(ak+2)}, {v(ak+3)}")
    lq.issue('wq', f"ds_write_b64 {v(vQKw)}, {v(Y,2)} offset:{QK_OFF}")
    lq.issue('wk', f"ds_write_b64 {v(vQKw)}, {v(Y+2,2)} offset:{QK_OFF+2048}")
    A(f"buffer_store_dwordx2 {v(Y+2,2)}, {v(vQKw)}, {s(S_WS,4)}, {s(sKM)} offen sc1")
    for k in range(3, 7):
        Vstep(k)
    lq.wait('wk')
    A(f"s_barrier")
    trs = []
    for ks in range(4):
        for hf in range(2):
            trs.append((('q', ks), Y + 4 * ks + 2 * hf, QK_OFF + (32 * ks + 8 * hf) * 16))
    for ks in range(4):
        for hf in range(2):
            trs.append((('k', ks), Y + 16 + 4 * ks + 2 * hf, QK_OFF + 2048 + (32 * ks + 8 * hf) * 16))
    ti = 0
    def tr(n):
        nonlocal ti
        for _ in range(n):
            if ti < len(trs):
                tg, dst, o = trs[ti]
                lq.issue(tg, f"ds_read_b64_tr_b16 {v(dst,2)}, {v(vQKr)} offset:{o}")
                ti += 1
    tr(4)
    for k in range(7, 16):
        Vstep(k)
        tr(2)
    tr(16)
    if opts.get('cprof'):
        lstamp(A, 3)
    T0, T1, TM = PA, PA + 4, PA + 8
    for ks in range(4):
        lq.wait(('q', ks))
        c0 = "0" if ks == 0 else v(T0, 4)
        c1 = "0" if ks == 0 else v(T1, 4)
        A(f"v_mfma_f32_16x16x32_bf16 {v(T0,4)}, {v(X+4*ks,4)}, {v(Y+4*ks,4)}, {c0}")
        A(f"v_mfma_f32_16x16x32_bf16 {v(T1,4)}, {v(X+16+4*ks,4)}, {v(Y+4*ks,4)}, {c1}")
        if ks == 1:
            A(f"v_cvt_pk_bf16_f32 {v(vS0)}, {v(av)}, {v(av+1)}")
            A(f"v_cvt_pk_bf16_f32 {v(vS1)}, {v(av+2)}, {v(av+3)}")
            A(f"buffer_store_dwordx2 {v(vS0,2)}, {v(vQKw)}, {s(S_WS,4)}, {s(sKM)} offen offset:2048 sc1")
    A(f"s_cmp_eq_u32 {s(sS)}, 63")
    A(f"s_cbranch_scc1 {Llast}")
    for ks in range(4):
        lq.wait(('k', ks))
        cm = "0" if ks == 0 else v(TM, 4)
        A(f"v_mfma_f32_16x16x32_bf16 {v(TM,4)}, {v(Y+16+4*ks,4)}, {v(Y+4*ks,4)}, {cm}")
    wo_ops = [(cg, ks) for cg in range(4) for ks in range(4)]
    bufs = [X, X + 8, X + 16, X + 24, Y, Y + 8, Y + 16, Y + 24]
    def rdWo(i, buf):
        cg, ks = wo_ops[i]
        o = (cg * 4 + ks) * 2048
        lq.issue(('W', i), f"ds_read_b128 {v(buf,4)}, {v(vWo)} offset:{o}")
        lq.issue(('W', i), f"ds_read_b128 {v(buf+4,4)}, {v(vWo)} offset:{o+1024}")
    m, t_ = vT0, vT1
    A(f"v_max3_f32 {v(m)}, {v(T0)}, {v(T0+1)}, {v(T0+2)}")
    A(f"v_max3_f32 {v(t_)}, {v(T0+3)}, {v(T1)}, {v(T1+1)}")
    A(f"v_max3_f32 {v(m)}, {v(m)}, {v(T1+2)}, {v(T1+3)}")
    A(f"v_max_f32 {v(m)}, {v(m)}, {v(t_)}")
    lq.issue('vx', f"ds_read_b128 {v(Y+16,4)}, {v(vMw)} offset:{VX_OFF - MEM_OFF}")
    lq.issue('vx', f"ds_read_b128 {v(Y+20,4)}, {v(vMw)} offset:{VX_OFF - MEM_OFF + 1024}")
    A(f"v_cndmask_b32 {v(Y+24)}, 0, {v(vS0)}, {s(sMLo,2)}")
    A(f"v_cndmask_b32 {v(Y+25)}, 0, {v(vS1)}, {s(sMLo,2)}")
    A(f"v_cndmask_b32 {v(Y+28)}, 0, {v(vS0)}, {s(sMHi,2)}")
    A(f"v_cndmask_b32 {v(Y+29)}, 0, {v(vS1)}, {s(sMHi,2)}")
    for i in range(4):
        rdWo(i, bufs[i])
    A.nop(2)
    A(f"v_max3_f32 {v(t_)}, {v(TM)}, {v(TM+1)}, {v(TM+2)}")
    A(f"v_max3_f32 {v(vS0)}, {v(m)}, {v(t_)}, {v(TM+3)}")
    A(f"v_max3_f32 {v(vS1)}, {v(m)}, {v(t_)}, {v(TM+3)}")
    rdWo(4, bufs[4])
    A(f"v_permlane16_swap_b32 {v(vS0)}, {v(vS1)}")
    A(f"v_max_f32 {v(m)}, {v(vS0)}, {v(vS1)}")
    A(f"v_max_f32 {v(t_)}, {v(vS0)}, {v(vS1)}")
    rdWo(5, bufs[5])
    A(f"v_permlane32_swap_b32 {v(m)}, {v(t_)}")
    A(f"v_max_f32 {v(m)}, {v(m)}, {v(t_)}")
    A(f"v_mul_f32 {v(m)}, {s(sNC)}, {v(m)}")
    BX = ACC + 12
    seq = [T0, T0 + 1, T0 + 2, T0 + 3, T1, T1 + 1, T1 + 2, T1 + 3, TM, TM + 1, TM + 2, TM + 3]
    for r in seq:
        A(f"v_fma_f32 {v(r)}, {v(r)}, {s(sC)}, {v(m)}")
    for r in seq:
        A(f"v_exp_f32 {v(r)}, {v(r)}")
    A(f"v_cvt_pk_bf16_f32 {v(BX)}, {v(T0)}, {v(T0+1)}")
    A(f"v_cvt_pk_bf16_f32 {v(BX+1)}, {v(T0+2)}, {v(T0+3)}")
    A(f"v_cvt_pk_bf16_f32 {v(BX+2)}, {v(T1)}, {v(T1+1)}")
    A(f"v_cvt_pk_bf16_f32 {v(BX+3)}, {v(T1+2)}, {v(T1+3)}")
    A(f"v_cvt_pk_bf16_f32 {v(vBM)}, {v(TM)}, {v(TM+1)}")
    A(f"v_cvt_pk_bf16_f32 {v(vBM+1)}, {v(TM+2)}, {v(TM+3)}")
    if opts.get('cprof'):
        lstamp(A, 4)
    O0, O1, LS = ACC, ACC + 4, ACC + 8
    lq.wait('vx')
    A(f"v_mfma_f32_16x16x32_bf16 {v(LS,4)}, {v(vHO+2,4)}, {v(BX,4)}, 0")
    A(f"v_mfma_f32_16x16x32_bf16 {v(O0,4)}, {v(Y+16,4)}, {v(BX,4)}, 0")
    A(f"v_mfma_f32_16x16x32_bf16 {v(O1,4)}, {v(Y+20,4)}, {v(BX,4)}, 0")
    A(f"v_mfma_f32_16x16x32_bf16 {v(LS,4)}, {v(vHO,4)}, {v(vBM,4)}, {v(LS,4)}")
    A(f"v_mfma_f32_16x16x32_bf16 {v(O0,4)}, {v(Y+24,4)}, {v(vBM,4)}, {v(O0,4)}")
    A(f"v_mfma_f32_16x16x32_bf16 {v(O1,4)}, {v(Y+28,4)}, {v(vBM,4)}, {v(O1,4)}")
    A(f"s_waitcnt vmcnt(0)")
    A(f"v_readfirstlane_b32 {s(sT0)}, {v(vFlag)}")
    A(f"s_lshr_b32 {s(sT0)}, {s(sT0)}, {s(sFs)}")
    A(f"s_and_b32 {s(sT0)}, {s(sT0)}, 0xff")
    A(f"s_cmp_ge_u32 {s(sT0)}, 32")
    Lfok = A.new_label("fok")
    A(f"s_cbranch_scc1 {Lfok}")
    A(f"v_mov_b32 {v(vT1)}, 0")
    wait_byte(A, vFlag, vT1, sFo, sFs, 32, "kv", sleep=1)
    A.label(Lfok)
    A(f"v_rcp_f32 {v(m)}, {v(LS)}")
    rdWo(6, bufs[6])
    A(f"v_mul_f32 {v(O0)}, {v(O0)}, {v(m)}")
    A(f"v_mul_f32 {v(O0+1)}, {v(O0+1)}, {v(m)}")
    A(f"v_mul_f32 {v(O0+2)}, {v(O0+2)}, {v(m)}")
    A(f"v_mul_f32 {v(O0+3)}, {v(O0+3)}, {v(m)}")
    A(f"v_mul_f32 {v(O1)}, {v(O1)}, {v(m)}")
    A(f"v_mul_f32 {v(O1+1)}, {v(O1+1)}, {v(m)}")
    A(f"v_mul_f32 {v(O1+2)}, {v(O1+2)}, {v(m)}")
    A(f"v_mul_f32 {v(O1+3)}, {v(O1+3)}, {v(m)}")
    A(f"v_cvt_pk_bf16_f32 {v(PA)}, {v(O0)}, {v(O0+1)}")
    A(f"v_cvt_pk_bf16_f32 {v(PA+1)}, {v(O0+2)}, {v(O0+3)}")
    A(f"v_cvt_pk_bf16_f32 {v(PA+2)}, {v(O1)}, {v(O1+1)}")
    A(f"v_cvt_pk_bf16_f32 {v(PA+3)}, {v(O1+2)}, {v(O1+3)}")
    lq.issue('wo_', f"ds_write_b128 {v(vOw)}, {v(PA,4)} offset:0")
    rdWo(7, bufs[7])
    for i in range(16):
        A(f"v_mov_b32 {v(ACC+i)}, 0")
    lq.wait('wo_')
    A(f"s_barrier")
    if opts.get('cprof'):
        lstamp(A, 5)
    for ks in range(4):
        lq.issue(('Ao', ks), f"ds_read_b128 {v(PA+4*ks,4)}, {v(vAm)} offset:{O_OFF + ks*512}")
    A(f"s_add_u32 {s(sT3)}, {s(sS)}, 1")
    dma_kv(A, sT3)
    A(f"s_and_b32 {s(sT4)}, {s(sS)}, 3")
    A(f"s_lshl_b32 {s(sSlotP)}, {s(sT4)}, 18")
    A(f"s_lshl_b32 {s(sSlotM)}, {s(sT4)}, 13")
    A(f"s_add_u32 {s(sSlotM)}, {s(sSlotM)}, {WS_M:#x}")
    A(f"s_add_u32 {s(sT5)}, {s(sSlotP)}, 32768")
    for i, (cg, ks) in enumerate(wo_ops):
        lq.wait(('W', i))
        lq.wait(('Ao', ks))
        buf = bufs[i % 8]
        A(f"v_smfmac_f32_16x16x64_bf16 {v(ACC+4*cg,4)}, {v(PA+4*ks,4)}, {v(buf,8)}, {v(vIdx)}")
        if i + 8 < 16:
            rdWo(i + 8, buf)
    A.nop(8)
    for p in range(2):
        for cgl in range(2):
            cg = 2 * p + cgl
            A(f"v_cvt_pk_bf16_f32 {v(PA+4*p+2*cgl)}, {v(ACC+4*cg)}, {v(ACC+4*cg+1)}")
            A(f"v_cvt_pk_bf16_f32 {v(PA+4*p+2*cgl+1)}, {v(ACC+4*cg+2)}, {v(ACC+4*cg+3)}")
        A(f"buffer_store_dwordx4 {v(PA+4*p,4)}, {v(vPst)}, {s(S_WS,4)}, {s(sSlotP if p == 0 else sT5)} offen{st}")
    if opts.get('cprof'):
        lstamp(A, 6)
    for i in range(12):
        A(f"v_mov_b32 {v(ACC+i)}, 0")
    Lnr = A.new_label("notred")
    Lar = A.new_label("afterred")
    A(f"s_cmp_lg_u32 {s(sWAVE)}, 0")
    A(f"s_cbranch_scc1 {Lnr}")
    Lred = A.new_label("red")
    Lredok = A.new_label("redok")
    A(f"s_mov_b32 {s(sRet)}, 0")
    A(f"s_add_u32 {s(sT4)}, {s(sSlotP)}, 4096")
    A.label(Lred)
    for i in range(8):
        A(f"buffer_load_dwordx4 {v(X+4*i,4)}, {v(vRed)}, {s(S_WS,4)}, {s(sSlotP if i < 4 else sT4)} offen offset:{(i%4)*1024} sc1")
    RA = Y
    for i in range(8):
        A(f"s_waitcnt vmcnt({7-i})")
        c = "0" if i < 2 else v(RA + 4 * (i & 1), 4)
        A(f"v_mfma_f32_16x16x32_bf16 {v(RA+4*(i&1),4)}, {v(X+4*i,4)}, {v(vSEL,4)}, {c}")
    A.nop(8)
    for r in range(4):
        A(f"v_add_f32 {v(RA+r)}, {v(RA+r)}, {v(RA+4+r)}")
    A(f"v_add_f32 {v(RA+4)}, {v(RA)}, {v(RA+1)}")
    A(f"v_add_f32 {v(RA+5)}, {v(RA+2)}, {v(RA+3)}")
    A(f"v_add_f32 {v(RA+4)}, {v(RA+4)}, {v(RA+5)}")
    A(f"v_cmp_u_f32 vcc, {v(RA+4)}, {v(RA+4)}")
    A(f"v_cvt_pk_bf16_f32 {v(RA+6)}, {v(RA)}, {v(RA+1)}")
    A(f"v_cvt_pk_bf16_f32 {v(RA+7)}, {v(RA+2)}, {v(RA+3)}")
    A(f"s_cbranch_vccz {Lredok}")
    A(f"s_add_u32 {s(sRet)}, {s(sRet)}, 1")
    A(f"s_cmp_lg_u32 {s(sDEAD)}, 0")
    A(f"s_cbranch_scc1 {Lredok}")
    A(f"s_cmp_lt_u32 {s(sRet)}, {RED_LIMIT}")
    A(f"s_cbranch_scc1 {Lred}")
    A(f"s_mov_b32 {s(sDEAD)}, 1")
    A.label(Lredok)
    A(f"s_mov_b64 exec, {s(sM8,2)}")
    A(f"buffer_store_dwordx2 {v(RA+6,2)}, {v(vMst)}, {s(S_WS,4)}, {s(sSlotM)} offen{st}")
    A(f"s_mov_b64 exec, -1")
    A(f"s_branch {Lar}")
    A.label(Lnr)
    A(f"s_add_u32 {s(sT4)}, {s(sS)}, 2")
    A(f"s_and_b32 {s(sT4)}, {s(sT4)}, 3")
    A(f"s_lshl_b32 {s(sT0)}, {s(sT4)}, 18")
    A(f"s_sub_u32 {s(sT1)}, {s(sWAVE)}, 1")
    A(f"s_lshl_b32 {s(sT1)}, {s(sT1)}, 10")
    A(f"s_add_u32 {s(sT0)}, {s(sT0)}, {s(sT1)}")
    A(f"buffer_store_dwordx4 {v(vSEL,4)}, {v(vRed)}, {s(S_WS,4)}, {s(sT0)} offen{st}")
    A(f"buffer_store_dwordx4 {v(vSEL,4)}, {v(vRed)}, {s(S_WS,4)}, {s(sT0)} offen offset:3072{st}")
    A(f"s_add_u32 {s(sT0)}, {s(sT0)}, 6144")
    Larm = A.new_label("armm")
    A(f"s_cmp_eq_u32 {s(sWAVE)}, 3")
    A(f"s_cbranch_scc1 {Larm}")
    A(f"buffer_store_dwordx4 {v(vSEL,4)}, {v(vRed)}, {s(S_WS,4)}, {s(sT0)} offen{st}")
    A(f"s_branch {Lar}")
    A.label(Larm)
    A(f"s_lshl_b32 {s(sT0)}, {s(sT4)}, 13")
    A(f"s_add_u32 {s(sT0)}, {s(sT0)}, {WS_M:#x}")
    A(f"s_mov_b64 exec, {s(sM16,2)}")
    A(f"buffer_store_dwordx4 {v(vSEL,4)}, {v(vMst)}, {s(S_WS,4)}, {s(sT0)} offen{st}")
    A(f"s_mov_b64 exec, -1")
    A.label(Lar)
    if opts.get('cprof'):
        lstamp(A, 7)
    Lcon = A.new_label("con")
    Lconok = A.new_label("conok")
    A(f"s_lshl_b32 {s(sT1)}, {s(sWAVE)}, 11")
    A(f"s_add_u32 {s(sT1)}, {s(sT1)}, {s(sSlotM)}")
    A(f"s_mov_b32 {s(sRet)}, 0")
    A.label(Lcon)
    A(f"buffer_load_dwordx4 {v(X,4)}, {v(vL16)}, {s(S_WS,4)}, {s(sT1)} offen sc1")
    A(f"buffer_load_dwordx4 {v(X+4,4)}, {v(vL16)}, {s(S_WS,4)}, {s(sT1)} offen offset:1024 sc1")
    A(f"s_waitcnt vmcnt(0)")
    A(f"v_max3_u32 {v(X+8)}, {v(X)}, {v(X+1)}, {v(X+2)}")
    A(f"v_max3_u32 {v(X+9)}, {v(X+3)}, {v(X+4)}, {v(X+5)}")
    A(f"v_max3_u32 {v(X+8)}, {v(X+8)}, {v(X+6)}, {v(X+7)}")
    A(f"v_max_u32 {v(X+8)}, {v(X+8)}, {v(X+9)}")
    A(f"v_cmp_eq_u32 vcc, -1, {v(X+8)}")
    A(f"s_add_u32 {s(sRet)}, {s(sRet)}, 1")
    A(f"s_nop 0")
    A(f"s_cbranch_vccz {Lconok}")
    A(f"s_cmp_lg_u32 {s(sDEAD)}, 0")
    A(f"s_cbranch_scc1 {Lconok}")
    A(f"s_cmp_lt_u32 {s(sRet)}, {RED_LIMIT}")
    A(f"s_cbranch_scc1 {Lcon}")
    A(f"s_mov_b32 {s(sDEAD)}, 1")
    A.label(Lconok)
    A(f"ds_write_b128 {v(vMw)}, {v(X,4)}")
    A(f"ds_write_b128 {v(vMw)}, {v(X+4,4)} offset:1024")
    A(f"s_add_u32 {s(sS)}, {s(sS)}, 1")
    A(f"s_waitcnt lgkmcnt(0)")
    A(f"s_barrier")
    if opts.get('cprof'):
        lstamp(A, 8)
    A(f"s_branch {Lstep}")
    A.label(Llast)
    A(f"s_waitcnt vmcnt(0) lgkmcnt(0)")
    A(f"s_barrier")
    Le = A.new_label("cend")
    A(f"s_cmp_lg_u32 {s(sWAVE)}, 3")
    A(f"s_cbranch_scc1 {Le}")
    signal_prog(A)
    A.label(Le)
    if opts.get('cprof'):
        A("s_waitcnt lgkmcnt(0)")
        for i in range(1, 9):
            A(f"s_mov_b32 s{92+i}, s{16+2*(i-1)}")
    A(f"s_branch L_role_end")


def gen_chain(A, opts):
    A.comment("==== role CHAIN ====")
    vL = 13
    A(f"s_mov_b32 {s(sH)}, {s(sIDX)}")
    A(f"v_and_b32 {v(vL)}, 63, v0")
    mk_srd(A, S_A, P_WQ, 512 * 8192)
    mk_srd(A, S_B, P_WK, 512 * 8192)
    mk_srd(A, S_C, P_WV, 512 * 8192)
    mk_srd(A, S_D, P_WO, 4096 * 1024)
    A(f"v_lshlrev_b32 {v(vL16)}, 4, {v(vL)}")
    for i in range(4):
        A(f"v_mov_b32 {v(vSEL+i)}, -1")
    A(f"s_lshl_b32 {s(sT0)}, {s(sH)}, 13")
    A(f"s_lshl_b32 {s(sT1)}, {s(sWAVE)}, 11")
    A(f"s_add_u32 {s(sT0)}, {s(sT0)}, {s(sT1)}")
    for sl in range(4):
        A(f"s_add_u32 {s(sT1)}, {s(sT0)}, {sl*262144}")
        A(f"buffer_store_dwordx4 {v(vSEL,4)}, {v(vL16)}, {s(S_WS,4)}, {s(sT1)} offen sc1")
        A(f"buffer_store_dwordx4 {v(vSEL,4)}, {v(vL16)}, {s(S_WS,4)}, {s(sT1)} offen offset:1024 sc1")
    A(f"s_and_b32 {s(sT0)}, {s(sH)}, 28")
    A(f"s_lshl_b32 {s(sT0)}, {s(sT0)}, 1")
    A(f"s_and_b32 {s(sT1)}, {s(sH)}, 3")
    A(f"s_add_u32 {s(sT0)}, {s(sT0)}, {s(sT1)}")
    A(f"s_lshl_b32 {s(sT2)}, {s(sT0)}, 7")
    lane_expr(A, vT0, vL, [(3, 1, 512), (0, 3, 16)], sregs=[sT2])
    A(f"s_mov_b64 {s(sM16,2)}, 0xffff")
    A(f"s_mov_b64 exec, {s(sM16,2)}")
    for sl in range(4):
        A(f"s_mov_b32 {s(sT1)}, {WS_M + sl*8192:#x}")
        A(f"buffer_store_dwordx4 {v(vSEL,4)}, {v(vT0)}, {s(S_WS,4)}, {s(sT1)} offen sc1")
    A(f"s_mov_b64 exec, -1")
    lane_expr(A, vMst, vL, [(2, 1, 512), (5, 1, 64), (0, 2, 16), (4, 1, 8)], sregs=[sT2])
    A(f"s_cmp_eq_u32 {s(sWAVE)}, 0")
    Lw0 = A.new_label("w0")
    A(f"s_cbranch_scc1 {Lw0}")
    A(f"v_mov_b32 {v(vMst)}, {v(vT0)}")
    A.label(Lw0)
    A(f"s_getreg_b32 {s(sT0)}, hwreg(HW_REG_XCC_ID, 0, 4)")
    A(f"s_lshl_b32 {s(sT0)}, 1, {s(sT0)}")
    A(f"v_mov_b32 {v(vT0)}, {s(sT0)}")
    A(f"v_mov_b32 {v(vT1)}, 0")
    A(f"s_waitcnt vmcnt(0)")
    A(f"s_barrier")
    Lci = A.new_label("ci")
    A(f"s_cmp_lg_u32 {s(sWAVE)}, 0")
    A(f"s_cbranch_scc1 {Lci}")
    A(f"s_mov_b64 exec, 1")
    A(f"buffer_atomic_or {v(vT0)}, {v(vT1)}, {s(S_DBG,4)}, 0 offen offset:{D_XCCMASK*4} sc1")
    A(f"s_waitcnt vmcnt(0)")
    A(f"v_mov_b32 {v(vT0)}, 1")
    A(f"buffer_atomic_add {v(vT0)}, {v(vT1)}, {s(S_DBG,4)}, 0 offen offset:{D_CHECKIN*4} sc1")
    A(f"s_mov_b64 exec, -1")
    A.label(Lci)
    lane_expr(A, vAm, vL, [(4, 2, 128), (0, 3, 16)])
    A(f"v_mov_b32 {v(vIdx)}, 0x4444")
    A(f"v_mov_b32 {v(vT0)}, 0xeeee")
    A(f"v_and_b32 {v(vT1)}, 8, {v(vL)}")
    A(f"v_cmp_ne_u32 vcc, 0, {v(vT1)}")
    A.nop(2)
    A(f"v_cndmask_b32 {v(vIdx)}, {v(vIdx)}, {v(vT0)}, vcc")
    A(f"s_lshl_b32 {s(sT0)}, {s(sWAVE)}, 9")
    lane_expr(A, vQKw, vL, [(5, 1, 256), (0, 4, 16), (4, 1, 8)], sregs=[sT0])
    lane_expr(A, vQKr, vL, [(5, 1, 256), (4, 1, 64), (2, 2, 16), (0, 1, 8)])
    A(f"s_lshl_b32 {s(sT0)}, {s(sWAVE)}, 9")
    lane_expr(A, vOw, vL, [(4, 2, 128), (0, 3, 16)], const=O_OFF, sregs=[sT0])
    A(f"s_lshl_b32 {s(sT0)}, {s(sWAVE)}, 11")
    A(f"s_add_u32 {s(sT0)}, {s(sT0)}, {MEM_OFF}")
    A(f"v_add_u32 {v(vMw)}, {s(sT0)}, {v(vL16)}")
    A(f"s_lshl_b32 {s(sT0)}, {s(sWAVE)}, 15")
    A(f"s_add_u32 {s(sT0)}, {s(sT0)}, {WO_OFF}")
    A(f"v_add_u32 {v(vWo)}, {s(sT0)}, {v(vL16)}")
    A(f"s_lshl_b32 {s(sT0)}, {s(sWAVE)}, 16")
    A(f"s_lshl_b32 {s(sT1)}, {s(sH)}, 8")
    lane_expr(A, vPst, vL, [(5, 1, 2 * 8192), (3, 1, 8192), (4, 1, 128), (0, 3, 16)], sregs=[sT0, sT1])
    A(f"s_lshl_b32 {s(sT0)}, {s(sH)}, 13")
    A(f"v_add_u32 {v(vRed)}, {s(sT0)}, {v(vL16)}")
    A(f"s_and_b32 {s(sT1)}, {s(sWAVE)}, 1")
    A(f"s_mul_i32 {s(sT1)}, {s(sT1)}, {WS_VX - WS_KX:#x}")
    A(f"s_add_u32 {s(sT1)}, {s(sT1)}, {WS_KX:#x}")
    A(f"s_add_u32 {s(sT0)}, {s(sT0)}, {s(sT1)}")
    A(f"v_lshlrev_b32 {v(vPf)}, 7, {v(vL)}")
    A(f"v_add_u32 {v(vPf)}, {s(sT0)}, {v(vPf)}")
    A(f"s_mov_b32 {s(sMLo)}, -1")
    A(f"s_mov_b32 {s(sMLo+1)}, 0")
    A(f"s_mov_b32 {s(sMHi)}, 0")
    A(f"s_mov_b32 {s(sMHi+1)}, -1")
    A(f"s_mov_b32 {s(sM8)}, 0x00ff00ff")
    A(f"s_mov_b32 {s(sM8+1)}, 0x00ff00ff")
    A(f"s_mov_b32 {s(sC)}, {f32_hex(SCALE_C):#x}")
    A(f"s_mov_b32 {s(sNC)}, {f32_hex(-SCALE_C):#x}")
    A(f"s_lshr_b32 {s(sPo)}, {s(sH)}, 2")
    A(f"s_lshl_b32 {s(sPo)}, {s(sPo)}, 2")
    A(f"s_add_u32 {s(sPo)}, {s(sPo)}, {D_PROG*4}")
    A(f"s_and_b32 {s(sPs)}, {s(sH)}, 3")
    A(f"s_lshl_b32 {s(sPs)}, {s(sPs)}, 3")
    A(f"s_lshl_b32 {s(sPs)}, 1, {s(sPs)}")
    A(f"v_mov_b32 {v(vHO)}, 0x3f003f00")
    A(f"v_mov_b32 {v(vHO+1)}, 0x3f003f00")
    for i in range(2, 6):
        A(f"v_mov_b32 {v(vHO+i)}, 0x3f803f80")
    A(f"v_mov_b32 {v(vBM+2)}, 0")
    A(f"v_mov_b32 {v(vBM+3)}, 0")
    Lsel = A.new_label("sel")
    A(f"s_cmp_lg_u32 {s(sWAVE)}, 0")
    A(f"s_cbranch_scc1 {Lsel}")
    A(f"v_and_b32 {v(vT0)}, 15, {v(vL)}")
    A(f"v_mov_b32 {v(vS0)}, 0x3f80")
    A(f"v_mov_b32 {v(vS1)}, 0x3f800000")
    A(f"v_and_b32 {v(vT1)}, 1, {v(vT0)}")
    A(f"v_cmp_eq_u32 vcc, 1, {v(vT1)}")
    A.nop(2)
    A(f"v_cndmask_b32 {v(vS0)}, {v(vS0)}, {v(vS1)}, vcc")
    A(f"v_lshrrev_b32 {v(vT0)}, 1, {v(vT0)}")
    for i in range(4):
        A(f"v_cmp_eq_u32 vcc, {i}, {v(vT0)}")
        A.nop(2)
        A(f"v_cndmask_b32 {v(vSEL+i)}, 0, {v(vS0)}, vcc")
    A.label(Lsel)

    vWG, vWGo, vST, vTRq, vTRo, vWoW = X, X + 1, X + 2, X + 3, X + 4, X + 5
    raw_lane_off(A, vWG, vL, vT0, 8192)
    A(f"s_lshl_b32 {s(sT0)}, {s(sH)}, 8")
    A(f"s_lshl_b32 {s(sT1)}, {s(sWAVE)}, 6")
    A(f"s_add_u32 {s(sT0)}, {s(sT0)}, {s(sT1)}")
    A(f"v_add_u32 {v(vWG)}, {s(sT0)}, {v(vWG)}")
    raw_lane_off(A, vWGo, vL, vT0, 1024)
    A(f"s_lshl_b32 {s(sT0)}, {s(sH)}, 17")
    A(f"s_lshl_b32 {s(sT1)}, {s(sWAVE)}, 8")
    A(f"s_add_u32 {s(sT0)}, {s(sT0)}, {s(sT1)}")
    A(f"v_add_u32 {v(vWGo)}, {s(sT0)}, {v(vWGo)}")
    A(f"s_mul_i32 {s(sT2)}, {s(sWAVE)}, {2*STG_BUF}")
    stage_lane_addr(A, vST, vL, vT0, sT2)
    G_tr(A, vTRq, vL, 'chain_qkv', sT2)
    G_tr(A, vTRo, vL, 'chain_wo', sT2)
    A(f"v_mov_b32 {v(vWoW)}, {v(vWo)}")
    blocks = []
    pool = [X + 8 + 8 * i for i in range(11)]
    def post_wo(cg, ks, rg):
        def f(A):
            A(f"s_waitcnt lgkmcnt(0)")
            o = (cg * 4 + ks) * 2048
            A(f"ds_write_b128 {v(vWoW)}, {v(rg,4)} offset:{o}")
            A(f"ds_write_b128 {v(vWoW)}, {v(rg+4,4)} offset:{o+1024}")
        return f
    wo_blocks = []
    for cg in range(4):
        for ks in range(4):
            rg = pool[len(wo_blocks) % len(pool)]
            wo_blocks.append(dict(srd=S_D, voff=vWGo, soff=[(32 * ks) * 1024 + cg * 64, (32 * ks + 16) * 1024 + cg * 64], raw=('v', rg), dst=('v', rg),
                                  vtr=vTRo, imm=TR_IMM['chain_wo'], post=post_wo(cg, ks, rg)))
    qkv = []
    for (srd, dst) in ((S_A, ('a', 0)), (S_B, ('a', 128)), (S_C, ('v', 128))):
        for b in range(16):
            qkv.append(dict(srd=srd, voff=vWG, soff=[(32 * b) * 8192, (32 * b + 16) * 8192], raw=off(dst, 8 * b), dst=off(dst, 8 * b),
                            vtr=vTRq, imm=TR_IMM['chain_qkv']))
    blocks = wo_blocks[:11] + qkv + wo_blocks[11:]
    stamp(A, 1) if not opts.get('cprof') else None
    load_blocks(A, blocks, vST, window=31)
    stamp(A, 2) if not opts.get('cprof') else None
    A(f"s_barrier")
    mk_srd(A, S_A, P_MEM0, 8192)
    A(f"s_lshl_b32 {s(sT0)}, {s(sWAVE)}, 7")
    lane_expr(A, vT0, vL, [(0, 3, 1024), (3, 3, 16)], sregs=[sT0])
    A(f"buffer_load_dwordx4 {v(X,4)}, {v(vT0)}, {s(S_A,4)}, 0 offen")
    A(f"buffer_load_dwordx4 {v(X+4,4)}, {v(vT0)}, {s(S_A,4)}, 0 offen offset:512")
    A(f"s_lshl_b32 {s(sT0)}, {s(sWAVE)}, 10")
    A(f"s_add_u32 {s(sT0)}, {s(sT0)}, {MEM_OFF}")
    A(f"v_add_u32 {v(vT0)}, {s(sT0)}, {v(vL16)}")
    A(f"s_waitcnt vmcnt(0)")
    A(f"ds_write_b128 {v(vT0)}, {v(X,4)}")
    A(f"ds_write_b128 {v(vT0)}, {v(X+4,4)} offset:4096")
    for i in range(12):
        A(f"v_mov_b32 {v(ACC+i)}, 0")
    A(f"v_mov_b32 {v(vT1)}, 0")
    A(f"s_mov_b32 {s(sFo)}, {D_CHECKIN*4}")
    A(f"s_mov_b32 {s(sFs)}, 0")
    wait_byte(A, vFlag, vT1, sFo, sFs, 32, "ci", sleep=1)
    A(f"buffer_load_dword {v(vFlag)}, {v(vT1)}, {s(S_DBG,4)}, 0 offen offset:{D_XCCMASK*4} sc1")
    A(f"s_waitcnt vmcnt(0)")
    A(f"v_readfirstlane_b32 {s(sT0)}, {v(vFlag)}")
    A(f"s_bcnt1_i32_b32 {s(sFastF)}, {s(sT0)}")
    A(f"s_mov_b32 {s(sFo)}, {D_KV*4}")
    A(f"s_mov_b32 {s(sFs)}, 0")
    wait_byte(A, vFlag, vT1, sFo, sFs, 32, "kv0", sleep=1)
    A(f"s_mov_b32 {s(sS)}, 0")
    dma_kv(A, sS)
    A(f"s_mov_b32 {s(sFs)}, 8")
    wait_byte(A, vFlag, vT1, sFo, sFs, 32, "kv1", sleep=1)
    A(f"s_waitcnt vmcnt(0) lgkmcnt(0)")
    A(f"s_barrier")
    stamp(A, 3) if not opts.get('cprof') else None
    A(f"s_cmp_eq_u32 {s(sFastF)}, 1")
    if opts.get('forceslow'):
        A(f"s_branch L_step_s")
    A(f"s_cbranch_scc0 L_step_s")
    gen_step(A, True, opts)
    gen_step(A, False, opts)


def G_tr(A, vD, vL, kind, base_sreg):
    tr_lane_addr(A, vD, vL, vT0, vS0, kind, base_sreg=base_sreg)
```

```python
from dsl import *
import gen as G
from gen import *
from gen_chain import f32_hex, LOG2E


def gen_out(A, opts):
    A.comment("==== role OUT ====")
    sPar, sSh, sC_, sSeg, sNext, sDelta, sOff, sShf, sBlk, sCnt, sSO = 44, 45, 46, 47, 48, 49, 50, 51, 52, 53, 54
    vWG, vST, vTR, vHst = 5, 6, 7, 8
    ACC = 64
    EP = 112
    xg = XG(A, sDelta)
    vL, vL16, vZero, vTmp, vT1, vT2 = xg.vL, xg.vL16, xg.vZero, xg.vTmp, xg.vT1, xg.vT2
    A(f"s_sub_u32 {s(sPar)}, {s(sXCD)}, 1")
    A(f"s_lshr_b32 {s(sSh)}, {s(sIDX)}, 4")
    A(f"s_and_b32 {s(sC_)}, {s(sIDX)}, 15")
    xg.setup()
    STG = 80 * 1024
    A(f"s_mul_i32 {s(sT2)}, {s(sWAVE)}, {2*STG_BUF}")
    A(f"s_add_u32 {s(sT2)}, {s(sT2)}, {STG}")
    stage_lane_addr(A, vST, vL, vT1, sT2)
    Lph2 = A.new_label("out_ph2")
    A(f"s_cmp_gt_u32 {s(sC_)}, 10")
    A(f"s_cbranch_scc1 {Lph2}")
    mk_srd(A, S_A, P_W1, 512 * 2752)
    mk_srd(A, S_B, P_GATE, 1024)
    A(f"s_lshl_b32 {s(sBlk)}, {s(sC_)}, 2")
    A(f"s_add_u32 {s(sBlk)}, {s(sBlk)}, {s(sWAVE)}")
    A(f"s_lshl_b32 {s(sSeg)}, {s(sSh)}, 1")
    A(f"s_add_u32 {s(sSeg)}, {s(sSeg)}, {s(sPar)}")
    xg.issue_x(sSeg)
    A(f"s_waitcnt vmcnt(0)")
    xg.write_x()
    tr_lane_addr(A, vTR, vL, vT1, vT2, 'k16', base_sreg=sT2)
    Lgate = A.new_label("gatew")
    Lwdone = A.new_label("wdone")
    A(f"s_cmp_eq_u32 {s(sBlk)}, 43")
    A(f"s_cbranch_scc1 {Lgate}")
    raw_lane_off(A, vWG, vL, vT1, 2752)
    A(f"s_lshl_b32 {s(sT0)}, {s(sBlk)}, 6")
    A(f"v_add_u32 {v(vWG)}, {s(sT0)}, {v(vWG)}")
    blocks = []
    for b in range(16):
        blocks.append(dict(srd=S_A, voff=vWG, soff=[(32 * b) * 2752, (32 * b + 16) * 2752], raw=('a', 8 * b), dst=('a', 8 * b),
                           vtr=vTR, imm=TR_IMM['k16']))
    load_blocks(A, blocks, vST, window=16)
    A(f"s_branch {Lwdone}")
    A.label(Lgate)
    A(f"v_lshrrev_b32 {v(vWG)}, 5, {v(vL)}")
    A(f"v_lshlrev_b32 {v(vWG)}, 4, {v(vWG)}")
    A(f"v_and_b32 {v(vT1)}, 31, {v(vL)}")
    A(f"v_lshlrev_b32 {v(vT1)}, 12, {v(vT1)}")
    A(f"v_add_u32 {v(vWG)}, {v(vWG)}, {v(vT1)}")
    for kk in range(32):
        A(f"buffer_load_dwordx4 {a(4*kk,4)}, {v(vWG)}, {s(S_B,4)}, 0 offen offset:{kk*32}")
    A(f"s_waitcnt vmcnt(0)")
    A.label(Lwdone)
    xg.after_weights()
    A(f"s_lshl_b32 {s(sT0)}, {s(sBlk)}, 10")
    lane_expr(A, vHst, vL, [(4, 1, 43 * 1024), (5, 1, 256), (0, 4, 16)], sregs=[sT0])
    Lloop = A.new_label("ffn_loop")
    A.label(Lloop)
    A(f"s_add_u32 {s(sNext)}, {s(sSeg)}, 4")
    xg.issue_x(sNext)

    def mf(kk, f):
        c = "0" if kk == 0 else v(ACC, 16)
        A(f"v_mfma_f32_32x32x16_bf16 {v(ACC,16)}, {a(4*kk,4)}, {f}, {c}")
    xg.body(mf)
    A.nop(12)
    Lge = A.new_label("gate_ep")
    Lepd = A.new_label("ep_done")
    A(f"s_cmp_eq_u32 {s(sBlk)}, 43")
    A(f"s_cbranch_scc1 {Lge}")
    A(f"s_mov_b32 {s(sT0)}, {f32_hex(-LOG2E):#x}")
    T = 80
    for i in range(16):
        A(f"v_mul_f32 {v(T+i)}, {s(sT0)}, {v(ACC+i)}")
    for i in range(16):
        A(f"v_exp_f32 {v(T+i)}, {v(T+i)}")
    for i in range(16):
        A(f"v_add_f32 {v(T+i)}, 1.0, {v(T+i)}")
    for i in range(16):
        A(f"v_rcp_f32 {v(T+i)}, {v(T+i)}")
    for i in range(16):
        A(f"v_mul_f32 {v(ACC+i)}, {v(ACC+i)}, {v(T+i)}")
    for i in range(8):
        A(f"v_cvt_pk_bf16_f32 {v(EP+i)}, {v(ACC+2*i)}, {v(ACC+2*i+1)}")
    A(f"s_mul_i32 {s(sT0)}, {s(sSeg)}, {HX_STRIDE}")
    A(f"s_add_u32 {s(sT0)}, {s(sT0)}, {WS_HX:#x}")
    for c in range(2):
        A(f"buffer_store_dwordx4 {v(EP+4*c,4)}, {v(vHst)}, {s(S_WS,4)}, {s(sT0)} offen offset:{c*512} sc1")
    A(f"s_branch {Lepd}")
    A.label(Lge)
    A(f"s_mov_b32 {s(sT0)}, {f32_hex(-LOG2E):#x}")
    A(f"v_mul_f32 {v(vT1)}, {s(sT0)}, {v(ACC)}")
    A(f"v_exp_f32 {v(vT1)}, {v(vT1)}")
    A.nop(1)
    A(f"v_add_f32 {v(vT1)}, 1.0, {v(vT1)}")
    A(f"v_rcp_f32 {v(vT1)}, {v(vT1)}")
    A(f"v_lshlrev_b32 {v(vT2)}, 2, {v(vL)}")
    A(f"s_lshl_b32 {s(sT0)}, {s(sSeg)}, 7")
    A(f"s_add_u32 {s(sT0)}, {s(sT0)}, {WS_G:#x}")
    A(f"s_mov_b64 exec, 0xffffffff")
    A(f"buffer_store_dword {v(vT1)}, {v(vT2)}, {s(S_WS,4)}, {s(sT0)} offen sc1")
    A(f"s_mov_b64 exec, -1")
    A.label(Lepd)
    xg.toggle()
    A(f"s_waitcnt lgkmcnt(0)")
    A(f"s_barrier")
    A(f"s_mov_b32 {s(sSeg)}, {s(sNext)}")
    A(f"s_cmp_lt_u32 {s(sSeg)}, 64")
    A(f"s_cbranch_scc1 {Lloop}")
    A(f"s_waitcnt vmcnt(0)")
    A(f"s_barrier")
    Lnf = A.new_label("ffn_nf")
    A(f"s_cmp_lg_u32 {s(sWAVE)}, 0")
    A(f"s_cbranch_scc1 {Lnf}")
    A(f"s_lshl_b32 {s(sOff)}, {s(sPar)}, 2")
    A(f"s_add_u32 {s(sOff)}, {s(sOff)}, {D_FFN*4}")
    A(f"s_mov_b32 {s(sShf)}, 0")
    signal_byte(A, None, vZero, sOff, sShf, vTmp)
    A.label(Lnf)
    A.label(Lph2)
    stamp(A, 1)
    mk_srd(A, S_A, P_WO, 4096 * 1024)
    mk_srd(A, S_B, P_W2, 1376 * 1024)
    mk_srd(A, S_C, P_OUT, 2048 * 1024)
    vWG2, vTR2 = 8, 9
    raw_lane_off(A, vWG, vL, vT1, 1024)
    A(f"s_lshl_b32 {s(sT0)}, {s(sC_)}, 6")
    A(f"v_add_u32 {v(vWG)}, {s(sT0)}, {v(vWG)}")
    A(f"s_mul_i32 {s(sT0)}, {s(sWAVE)}, {11*32*1024}")
    A(f"v_add_u32 {v(vWG2)}, {s(sT0)}, {v(vWG)}")
    A(f"s_lshl_b32 {s(sT0)}, {s(sWAVE)}, 20")
    A(f"v_add_u32 {v(vWG)}, {s(sT0)}, {v(vWG)}")
    A(f"s_mul_i32 {s(sT2)}, {s(sWAVE)}, {2*STG_BUF}")
    A(f"s_add_u32 {s(sT2)}, {s(sT2)}, {STG}")
    tr_lane_addr(A, vTR, vL, vT1, vT2, 'out_wo', base_sreg=sT2)
    tr_lane_addr(A, vTR2, vL, vT1, vT2, 'out_w2', base_sreg=sT2)
    blocks = []
    for b in range(11):
        blocks.append(dict(srd=S_B, voff=vWG2, soff=[(32 * b) * 1024, (32 * b + 16) * 1024], raw=('v', 128 + 8 * b), dst=('v', 128 + 8 * b),
                           vtr=vTR2, imm=TR_IMM['out_w2']))
    for b in range(32):
        blocks.append(dict(srd=S_A, voff=vWG, soff=[(32 * b) * 1024, (32 * b + 16) * 1024], raw=('a', 8 * b), dst=('a', 8 * b),
                           vtr=vTR, imm=TR_IMM['out_wo']))
    load_blocks(A, blocks, vST, window=31)
    stamp(A, 2)
    A(f"s_lshl_b32 {s(sOff)}, {s(sPar)}, 2")
    A(f"s_add_u32 {s(sOff)}, {s(sOff)}, {D_FFN*4}")
    A(f"s_mov_b32 {s(sShf)}, 0")
    wait_byte(A, vTmp, vZero, sOff, sShf, 22, "ffn", sleep=4)
    A(f"s_barrier")
    stamp(A, 3)
    aA, aB = 16, 24
    bufs = [32 + 4 * i for i in range(24)] + [216 + 4 * i for i in range(10)]
    vRw, vRr, vOut, vG = 5, 6, 7, 8
    RED = 0
    A(f"s_lshl_b32 {s(sT0)}, {s(sWAVE)}, 12")
    A(f"v_add_u32 {v(vRw)}, {s(sT0)}, {v(vL16)}")
    A(f"s_and_b32 {s(sT0)}, {s(sWAVE)}, 1")
    A(f"s_lshl_b32 {s(sT0)}, {s(sT0)}, 10")
    A(f"v_add_u32 {v(vRr)}, {s(sT0)}, {v(vL16)}")
    A(f"s_lshl_b32 {s(sT0)}, {s(sSh)}, 14")
    A(f"s_lshl_b32 {s(sT1)}, {s(sC_)}, 6")
    A(f"s_add_u32 {s(sT0)}, {s(sT0)}, {s(sT1)}")
    A(f"s_and_b32 {s(sT1)}, {s(sWAVE)}, 1")
    A(f"s_lshl_b32 {s(sT1)}, {s(sT1)}, 5")
    A(f"s_add_u32 {s(sT0)}, {s(sT0)}, {s(sT1)}")
    lane_expr(A, vOut, vL, [(0, 4, 1024), (4, 2, 8)], sregs=[sT0])
    A(f"s_lshl_b32 {s(sT0)}, {s(sSh)}, 6")
    lane_expr(A, vG, vL, [(0, 4, 4)], sregs=[sT0])
    A(f"s_mov_b32 {s(sSeg)}, {s(sPar)}")
    Lm = A.new_label("out_loop")
    A.label(Lm)
    A(f"s_mul_i32 {s(sT2)}, {s(sSeg)}, {HX_STRIDE}")
    A(f"s_mul_i32 {s(sT3)}, {s(sSh)}, {43*1024}")
    A(f"s_add_u32 {s(sT2)}, {s(sT2)}, {s(sT3)}")
    A(f"s_mul_i32 {s(sT3)}, {s(sWAVE)}, {11*1024}")
    A(f"s_add_u32 {s(sT2)}, {s(sT2)}, {s(sT3)}")
    A(f"s_add_u32 {s(sT2)}, {s(sT2)}, {WS_HX:#x}")
    vq = Q(A, "vmcnt", 63)
    for b in range(11):
        if b in (4, 8):
            A(f"s_add_u32 {s(sT2)}, {s(sT2)}, 4096")
        if b == 10:
            A(f"s_cmp_eq_u32 {s(sWAVE)}, 3")
            A(f"s_cselect_b32 {s(sT3)}, 1024, 0")
            A(f"s_sub_u32 {s(sT2)}, {s(sT2)}, {s(sT3)}")
        vq.issue(('H', b), f"buffer_load_dwordx4 {v(bufs[b],4)}, {v(vL16)}, {s(S_WS,4)}, {s(sT2)} offen offset:{(b%4)*1024}")
    A(f"s_lshl_b32 {s(sT2)}, {s(sSeg)}, 7")
    A(f"s_add_u32 {s(sT2)}, {s(sT2)}, {WS_G:#x}")
    vq.issue('g', f"buffer_load_dword v9, {v(vG)}, {s(S_WS,4)}, {s(sT2)} offen")
    A(f"s_lshr_b32 {s(sOff)}, {s(sSeg)}, 2")
    A(f"s_lshl_b32 {s(sOff)}, {s(sOff)}, 2")
    A(f"s_add_u32 {s(sOff)}, {s(sOff)}, {D_O*4}")
    A(f"s_and_b32 {s(sShf)}, {s(sSeg)}, 3")
    A(f"s_lshl_b32 {s(sShf)}, {s(sShf)}, 3")
    Lw = A.new_label("ow")
    A(f"s_cmp_lg_u32 {s(sWAVE)}, 0")
    A(f"s_cbranch_scc1 {Lw}")
    wait_byte(A, vTmp, vZero, sOff, sShf, 32, "o", sleep=4)
    A.label(Lw)
    A(f"s_barrier")
    A(f"s_lshl_b32 {s(sSO)}, {s(sSeg)}, 5")
    A(f"s_lshl_b32 {s(sT3)}, {s(sWAVE)}, 3")
    A(f"s_add_u32 {s(sSO)}, {s(sSO)}, {s(sT3)}")
    A(f"s_lshl_b32 {s(sSO)}, {s(sSO)}, 13")
    A(f"s_lshl_b32 {s(sT3)}, {s(sSh)}, 12")
    A(f"s_add_u32 {s(sSO)}, {s(sSO)}, {s(sT3)}")
    A(f"s_add_u32 {s(sSO)}, {s(sSO)}, {WS_OX:#x}")

    obuf = {}
    def issue_o(b, buf):
        A(f"s_add_u32 {s(sT3)}, {s(sSO)}, {(b>>2)*8192}")
        vq.issue(('O', b), f"buffer_load_dwordx4 {v(buf,4)}, {v(vL16)}, {s(S_WS,4)}, {s(sT3)} offen offset:{(b&3)*1024}")
        obuf[b] = buf
    nfree = len(bufs) - 11
    for b in range(nfree):
        issue_o(b, bufs[11 + b])
    nxt = nfree
    for b in range(11):
        vq.wait(('H', b))
        for ct in range(2):
            c = "0" if b == 0 else v(aB + 4 * ct, 4)
            A(f"v_mfma_f32_16x16x32_bf16 {v(aB+4*ct,4)}, {v(128+8*b+4*ct,4)}, {v(bufs[b],4)}, {c}")
        if nxt < 32:
            issue_o(nxt, bufs[b])
            nxt += 1
    for b in range(32):
        vq.wait(('O', b))
        for ct in range(2):
            c = "0" if b == 0 else v(aA + 4 * ct, 4)
            A(f"v_mfma_f32_16x16x32_bf16 {v(aA+4*ct,4)}, {a(8*b+4*ct,4)}, {v(obuf[b],4)}, {c}")
    A.nop(8)
    A(f"ds_write_b128 {v(vRw)}, {v(aA,4)} offset:0")
    A(f"ds_write_b128 {v(vRw)}, {v(aA+4,4)} offset:1024")
    A(f"ds_write_b128 {v(vRw)}, {v(aB,4)} offset:2048")
    A(f"ds_write_b128 {v(vRw)}, {v(aB+4,4)} offset:3072")
    A(f"s_waitcnt lgkmcnt(0)")
    A(f"s_barrier")
    Lsk = A.new_label("osk")
    A(f"s_cmp_gt_u32 {s(sWAVE)}, 1")
    A(f"s_cbranch_scc1 {Lsk}")
    R = 32
    for w in range(4):
        A(f"ds_read_b128 {v(R+8*w,4)}, {v(vRr)} offset:{w*4096}")
        A(f"ds_read_b128 {v(R+8*w+4,4)}, {v(vRr)} offset:{w*4096+2048}")
    A(f"s_waitcnt lgkmcnt(0)")
    for r in range(4):
        A(f"v_add_f32 {v(R+r)}, {v(R+r)}, {v(R+8+r)}")
        A(f"v_add_f32 {v(R+16+r)}, {v(R+16+r)}, {v(R+24+r)}")
        A(f"v_add_f32 {v(R+4+r)}, {v(R+4+r)}, {v(R+12+r)}")
        A(f"v_add_f32 {v(R+20+r)}, {v(R+20+r)}, {v(R+28+r)}")
    for r in range(4):
        A(f"v_add_f32 {v(R+r)}, {v(R+r)}, {v(R+16+r)}")
        A(f"v_add_f32 {v(R+4+r)}, {v(R+4+r)}, {v(R+20+r)}")
    for r in range(4):
        A(f"v_sub_f32 {v(R+r)}, {v(R+r)}, {v(R+4+r)}")
    for r in range(4):
        A(f"v_fma_f32 {v(R+r)}, {v(R+r)}, v9, {v(R+4+r)}")
    A(f"v_cvt_pk_bf16_f32 {v(R+8)}, {v(R)}, {v(R+1)}")
    A(f"v_cvt_pk_bf16_f32 {v(R+9)}, {v(R+2)}, {v(R+3)}")
    A(f"s_lshl_b32 {s(sT2)}, {s(sSeg)}, 15")
    A(f"buffer_store_dwordx2 {v(R+8,2)}, {v(vOut)}, {s(S_C,4)}, {s(sT2)} offen")
    A.label(Lsk)
    A(f"s_add_u32 {s(sSeg)}, {s(sSeg)}, 2")
    A(f"s_cmp_lt_u32 {s(sSeg)}, 64")
    A(f"s_cbranch_scc1 {Lm}")
    A(f"s_waitcnt vmcnt(0)")
```

```python
from dsl import *
import gen as G
from gen import *
from gen_chain import f32_hex, SCALE_C

KML = 73728
vKr, vKw, vVm, vOst = 14, 116, 117, 118
vKw, vVm, vOst = 5, 6, 7
vOnes = 120
sMask = 16
sLo = 54
sC, sNC = 56, 57
sPo, sPs = 58, 59
RK, RQ, RV, RKM, RVM = 16, 48, 64, 80, 96
TS = 108
ONES = 120
BM = 124


def xatt_setup(A, xg, sH):
    vL = xg.vL
    vT1, vT2 = xg.vT1, xg.vT2
    A(f"s_lshl_b32 {s(sT0)}, {s(sWAVE)}, 11")
    A(f"s_add_u32 {s(sT0)}, {s(sT0)}, {KML}")
    lane_expr(A, vKr, vL, [(5, 1, 256), (4, 1, 64), (2, 2, 16), (0, 1, 8)], sregs=[sT0])
    A(f"v_add_u32 {v(vKw)}, {s(sT0)}, {v(xg.vL16)}")
    A(f"s_lshr_b32 {s(sT0)}, {s(sWAVE)}, 1")
    A(f"s_lshl_b32 {s(sT0)}, {s(sT0)}, 10")
    lane_expr(A, vVm, vL, [(0, 4, 16), (4, 1, 8)], const=2048, sregs=[sT0])
    A(f"s_and_b32 {s(sT1)}, {s(sWAVE)}, 1")
    A(f"s_lshl_b32 {s(sT1)}, {s(sT1)}, 12")
    A(f"s_lshl_b32 {s(sT0)}, {s(sT0)}, 1")
    A(f"s_add_u32 {s(sT0)}, {s(sT0)}, {s(sT1)}")
    A(f"v_add_u32 {v(vOst)}, {s(sT0)}, {v(xg.vL16)}")
    A(f"s_and_b32 {s(sT1)}, {s(sWAVE)}, 1")
    A(f"s_lshl_b32 {s(sT1)}, {s(sT1)}, 4")
    A(f"v_and_b32 {v(vT1)}, 15, {v(vL)}")
    A(f"v_lshrrev_b32 {v(vT2)}, 4, {v(vL)}")
    A(f"v_lshlrev_b32 {v(vT2)}, 2, {v(vT2)}")
    A(f"v_sub_u32 {v(vT1)}, {v(vT1)}, {v(vT2)}")
    A(f"v_add_u32 {v(vT1)}, {s(sT1)}, {v(vT1)}")
    for t in range(2):
        for r in range(4):
            A(f"v_cmp_le_i32 {s(sMask + 2*(4*t+r), 2)}, {16*t+r}, {v(vT1)}")
    A(f"s_mov_b32 {s(sLo)}, -1")
    A(f"s_mov_b32 {s(sLo+1)}, 0")
    A(f"s_mov_b32 {s(sC)}, {f32_hex(SCALE_C):#x}")
    A(f"s_mov_b32 {s(sNC)}, {f32_hex(-SCALE_C):#x}")
    A(f"s_lshr_b32 {s(sPo)}, {s(sH)}, 2")
    A(f"s_lshl_b32 {s(sPo)}, {s(sPo)}, 2")
    A(f"s_add_u32 {s(sPo)}, {s(sPo)}, {D_PROG*4}")
    A(f"s_and_b32 {s(sPs)}, {s(sH)}, 3")
    A(f"s_lshl_b32 {s(sPs)}, {s(sPs)}, 3")


def xatt_task(A, xg, sH, sSegX, sOff, sSh):
    vL16, vZero, vTmp, vT1, vT2 = xg.vL16, xg.vZero, xg.vTmp, xg.vT1, xg.vT2
    sB = sT2
    A(f"s_lshl_b32 {s(sT2)}, {s(sSegX)}, 5")
    A(f"s_add_u32 {s(sT2)}, {s(sT2)}, {s(sH)}")
    A(f"s_lshl_b32 {s(sT3)}, {s(sT2)}, 13")
    A(f"s_add_u32 {s(sT4)}, {s(sT3)}, {WS_KX:#x}")
    for j in range(8):
        if j == 4:
            A(f"s_add_u32 {s(sT4)}, {s(sT4)}, 4096")
        A(f"buffer_load_dwordx4 {v(RK+4*j,4)}, {v(vL16)}, {s(S_WS,4)}, {s(sT4)} offen offset:{(j%4)*1024}")
    A(f"s_and_b32 {s(sT4)}, {s(sWAVE)}, 1")
    A(f"s_lshl_b32 {s(sT4)}, {s(sT4)}, 12")
    A(f"s_add_u32 {s(sT4)}, {s(sT4)}, {s(sT3)}")
    A(f"s_add_u32 {s(sT4)}, {s(sT4)}, {WS_QX:#x}")
    for ks in range(4):
        A(f"buffer_load_dwordx4 {v(RQ+4*ks,4)}, {v(vL16)}, {s(S_WS,4)}, {s(sT4)} offen offset:{ks*1024}")
    A(f"s_lshr_b32 {s(sT4)}, {s(sWAVE)}, 1")
    A(f"s_lshl_b32 {s(sT4)}, {s(sT4)}, 12")
    A(f"s_add_u32 {s(sT4)}, {s(sT4)}, {s(sT3)}")
    A(f"s_add_u32 {s(sT4)}, {s(sT4)}, {WS_VX:#x}")
    for p in range(4):
        A(f"buffer_load_dwordx4 {v(RV+4*p,4)}, {v(vL16)}, {s(S_WS,4)}, {s(sT4)} offen offset:{p*1024}")
    for i in range(4):
        A(f"v_mov_b32 {v(ONES+i)}, 0x3f803f80")
    A(f"v_mov_b32 {v(BM+2)}, 0")
    A(f"v_mov_b32 {v(BM+3)}, 0")
    A(f"v_mov_b32 {v(RVM+8)}, 0")
    A(f"v_mov_b32 {v(RVM+9)}, 0")
    Lw = A.new_label("xw")
    A(f"s_cmp_lg_u32 {s(sWAVE)}, 0")
    A(f"s_cbranch_scc1 {Lw}")
    A(f"s_add_u32 {s(sT5)}, {s(sSegX)}, 1")
    wait_byte(A, vTmp, vZero, sPo, sPs, sT5, "prog", target_is_sreg=True, sleep=4)
    A.label(Lw)
    A(f"s_barrier")
    A(f"s_lshl_b32 {s(sT4)}, {s(sT2)}, 12")
    A(f"s_add_u32 {s(sT4)}, {s(sT4)}, {WS_KM:#x}")
    A(f"buffer_load_dwordx4 {v(RKM,4)}, {v(vL16)}, {s(S_WS,4)}, {s(sT4)} offen sc1")
    A(f"buffer_load_dwordx4 {v(RKM+4,4)}, {v(vL16)}, {s(S_WS,4)}, {s(sT4)} offen offset:1024 sc1")
    for p in range(4):
        A(f"buffer_load_dwordx2 {v(RVM+2*p,2)}, {v(vVm)}, {s(S_WS,4)}, {s(sT4)} offen offset:{p*256} sc1")
    A(f"s_waitcnt vmcnt(4)")
    A(f"ds_write_b128 {v(vKw)}, {v(RKM,4)}")
    A(f"ds_write_b128 {v(vKw)}, {v(RKM+4,4)} offset:1024")
    for ks in range(4):
        for hf in range(2):
            A(f"ds_read_b64_tr_b16 {v(RKM+4*ks+2*hf,2)}, {v(vKr)} offset:{(32*ks+8*hf)*16}")
    T0, T1, TM = TS, TS + 4, TS + 8
    for ks in range(4):
        c0 = "0" if ks == 0 else v(T0, 4)
        c1 = "0" if ks == 0 else v(T1, 4)
        A(f"v_mfma_f32_16x16x32_bf16 {v(T0,4)}, {v(RK+4*ks,4)}, {v(RQ+4*ks,4)}, {c0}")
        A(f"v_mfma_f32_16x16x32_bf16 {v(T1,4)}, {v(RK+16+4*ks,4)}, {v(RQ+4*ks,4)}, {c1}")
    A(f"s_waitcnt lgkmcnt(0)")
    for ks in range(4):
        cm = "0" if ks == 0 else v(TM, 4)
        A(f"v_mfma_f32_16x16x32_bf16 {v(TM,4)}, {v(RKM+4*ks,4)}, {v(RQ+4*ks,4)}, {cm}")
    A(f"v_mov_b32 {v(vT2)}, 0xff800000")
    A.nop(2)
    for t in range(2):
        for r in range(4):
            A(f"v_cndmask_b32 {v(TS+4*t+r)}, {v(vT2)}, {v(TS+4*t+r)}, {s(sMask+2*(4*t+r),2)}")
    m, t_ = vT1, vT2
    x0, x1 = RK, RK + 1
    A(f"v_max3_f32 {v(m)}, {v(T0)}, {v(T0+1)}, {v(T0+2)}")
    A(f"v_max3_f32 {v(t_)}, {v(T0+3)}, {v(T1)}, {v(T1+1)}")
    A(f"v_max3_f32 {v(m)}, {v(m)}, {v(T1+2)}, {v(T1+3)}")
    A(f"v_max3_f32 {v(m)}, {v(m)}, {v(t_)}, {v(TM)}")
    A(f"v_max3_f32 {v(t_)}, {v(TM+1)}, {v(TM+2)}, {v(TM+3)}")
    A(f"v_max_f32 {v(x0)}, {v(m)}, {v(t_)}")
    A(f"v_max_f32 {v(x1)}, {v(m)}, {v(t_)}")
    A.nop(2)
    A(f"v_permlane16_swap_b32 {v(x0)}, {v(x1)}")
    A(f"v_max_f32 {v(m)}, {v(x0)}, {v(x1)}")
    A(f"v_max_f32 {v(t_)}, {v(x0)}, {v(x1)}")
    A.nop(2)
    A(f"v_permlane32_swap_b32 {v(m)}, {v(t_)}")
    A(f"v_max_f32 {v(m)}, {v(m)}, {v(t_)}")
    A(f"v_mul_f32 {v(m)}, {s(sNC)}, {v(m)}")
    for i in range(12):
        A(f"v_fma_f32 {v(TS+i)}, {v(TS+i)}, {s(sC)}, {v(m)}")
    for i in range(12):
        A(f"v_exp_f32 {v(TS+i)}, {v(TS+i)}")
    BX = RK + 4
    A.nop(1)
    A(f"v_cvt_pk_bf16_f32 {v(BX)}, {v(T0)}, {v(T0+1)}")
    A(f"v_cvt_pk_bf16_f32 {v(BX+1)}, {v(T0+2)}, {v(T0+3)}")
    A(f"v_cvt_pk_bf16_f32 {v(BX+2)}, {v(T1)}, {v(T1+1)}")
    A(f"v_cvt_pk_bf16_f32 {v(BX+3)}, {v(T1+2)}, {v(T1+3)}")
    A(f"v_cvt_pk_bf16_f32 {v(BM)}, {v(TM)}, {v(TM+1)}")
    A(f"v_cvt_pk_bf16_f32 {v(BM+1)}, {v(TM+2)}, {v(TM+3)}")
    A(f"v_cndmask_b32 {v(BM)}, 0, {v(BM)}, {s(sLo,2)}")
    A(f"v_cndmask_b32 {v(BM+1)}, 0, {v(BM+1)}, {s(sLo,2)}")
    O = RK + 8
    LS = RK + 24
    A(f"s_waitcnt vmcnt(0)")
    A.nop(2)
    A(f"v_mfma_f32_16x16x32_bf16 {v(LS,4)}, {v(ONES,4)}, {v(BX,4)}, 0")
    for p in range(4):
        A(f"v_mfma_f32_16x16x32_bf16 {v(O+4*p,4)}, {v(RV+4*p,4)}, {v(BX,4)}, 0")
    A(f"v_mfma_f32_16x16x32_bf16 {v(LS,4)}, {v(ONES,4)}, {v(BM,4)}, {v(LS,4)}")
    for p in range(4):
        A(f"v_mfma_f32_16x16x32_bf16 {v(O+4*p,4)}, {v(RVM+2*p,4)}, {v(BM,4)}, {v(O+4*p,4)}")
    A.nop(8)
    A(f"v_rcp_f32 {v(m)}, {v(LS)}")
    A.nop(1)
    for i in range(16):
        A(f"v_mul_f32 {v(O+i)}, {v(O+i)}, {v(m)}")
    PKO = RQ
    for i in range(8):
        A(f"v_cvt_pk_bf16_f32 {v(PKO+i)}, {v(O+2*i)}, {v(O+2*i+1)}")
    A(f"s_add_u32 {s(sT4)}, {s(sT3)}, {WS_OX:#x}")
    A(f"buffer_store_dwordx4 {v(PKO,4)}, {v(vOst)}, {s(S_WS,4)}, {s(sT4)} offen sc1")
    A(f"buffer_store_dwordx4 {v(PKO+4,4)}, {v(vOst)}, {s(S_WS,4)}, {s(sT4)} offen offset:1024 sc1")
    A(f"s_waitcnt vmcnt(0)")
    A(f"s_barrier")
    Lf = A.new_label("xf")
    A(f"s_cmp_lg_u32 {s(sWAVE)}, 0")
    A(f"s_cbranch_scc1 {Lf}")
    kv_flag(A, sSegX, vZero, vTmp, sOff, sSh, base=D_O)
    A.label(Lf)
```

```python
import sys
from dsl import *

KNAME = "gated_mix__memory_aug_recurrent_mem_tr__dense_activation_silu__prompt_kernel"

WS_P = 0
WS_M = 0x100000
WS_KM = 0x200000
WS_KX = 0x1000000
WS_VX = 0x2000000
WS_QX = 0x3000000
WS_OX = 0x4000000
WS_HX = 0x5000000
HX_STRIDE = 2 * 43 * 1024
WS_G = 0x5800000
WS_T = 0x5810000
WS_SIZE = 0x5820000

D_CHECKIN = 0
D_XCCMASK = 1
D_FFN = 2
D_ERR = 4
D_KV = 8
D_O = 24
D_PROG = 40

S_WS, S_DBG, S_X, S_A, S_B, S_C, S_D = 4, 8, 12, 16, 20, 24, 28
sWAVE, sIDX, sXCD = 32, 33, 34
sT0, sT1, sT2, sT3, sT4, sT5 = 35, 36, 37, 38, 39, 40
sDEAD = 41
sEX = 42
P_X, P_MEM0, P_WQ, P_WK, P_WV, P_WO, P_W1, P_W2, P_GATE, P_OUT, P_DBG, P_WS = 64, 66, 68, 70, 72, 74, 80, 82, 84, 86, 88, 90
SPIN_LIMIT = 1 << 17

LDS_BYTES = 160 * 1024


def mk_srd(A, d, p, size):
    A(f"s_mov_b32 {s(d)}, {s(p)}")
    A(f"s_mov_b32 {s(d+1)}, {s(p+1)}")
    A(f"s_mov_b32 {s(d+2)}, {size:#x}")
    A(f"s_mov_b32 {s(d+3)}, 0x00020000")


def wait_byte(A, vT, vZero, s_off, s_shift, target, tag, s_tmp=sT0, s_cnt=sT1, target_is_sreg=False, sleep=2):
    L = A.new_label("w" + tag)
    Ld = A.new_label("wd" + tag)
    A(f"s_mov_b32 {s(s_cnt)}, 0")
    A(f"s_cmp_lg_u32 {s(sDEAD)}, 0")
    A(f"s_cbranch_scc1 {Ld}")
    A.label(L)
    A(f"buffer_load_dword {v(vT)}, {v(vZero)}, {s(S_DBG,4)}, {s(s_off)} offen sc1")
    A(f"s_waitcnt vmcnt(0)")
    A(f"v_readfirstlane_b32 {s(s_tmp)}, {v(vT)}")
    A(f"s_lshr_b32 {s(s_tmp)}, {s(s_tmp)}, {s(s_shift)}")
    A(f"s_and_b32 {s(s_tmp)}, {s(s_tmp)}, 0xff")
    A(f"s_cmp_ge_u32 {s(s_tmp)}, {s(target) if target_is_sreg else target}")
    A(f"s_cbranch_scc1 {Ld}")
    if sleep:
        A(f"s_sleep {sleep}")
    A(f"s_add_u32 {s(s_cnt)}, {s(s_cnt)}, 1")
    A(f"s_cmp_lt_u32 {s(s_cnt)}, {SPIN_LIMIT}")
    A(f"s_cbranch_scc1 {L}")
    A(f"s_mov_b32 {s(sDEAD)}, 1")
    A.label(Ld)


def signal_byte(A, vOne, vZero, s_off, s_shift, vTmp):
    A(f"s_lshl_b32 {s(sT0)}, 1, {s(s_shift)}")
    A(f"v_mov_b32 {v(vTmp)}, {s(sT0)}")
    A(f"s_mov_b64 {s(sEX,2)}, exec")
    A(f"s_mov_b64 exec, 1")
    A(f"buffer_atomic_add {v(vTmp)}, {v(vZero)}, {s(S_DBG,4)}, {s(s_off)} offen sc1")
    A(f"s_mov_b64 exec, {s(sEX,2)}")


PROF = False
sSTAMP = 92


def stamp(A, i):
    if not PROF:
        return
    A(f"s_memrealtime s[62:63]")
    A(f"s_waitcnt lgkmcnt(0)")
    A(f"s_mov_b32 {s(sSTAMP+i)}, s62")


def stamp_clk(A, i):
    if not PROF:
        return
    A(f"s_memtime s[62:63]")
    A(f"s_waitcnt lgkmcnt(0)")
    A(f"s_mov_b32 {s(sSTAMP+i)}, s62")


def stamp_if_lt(A, i, sreg, limit, clk=False):
    if not PROF:
        return
    L = A.new_label("st")
    A(f"s_cmp_lt_u32 {s(sreg)}, {limit}")
    A(f"s_cbranch_scc0 {L}")
    (stamp_clk if clk else stamp)(A, i)
    A.label(L)


def stamp_flush(A):
    if not PROF:
        return
    A(f"s_lshl_b32 s62, s2, 2")
    A(f"s_add_u32 s62, s62, {s(sWAVE)}")
    A(f"s_lshl_b32 s62, s62, 6")
    A(f"s_add_u32 s62, s62, {WS_T:#x}")
    A(f"v_mov_b32 v1, 0")
    A(f"s_mov_b64 exec, 1")
    for i in range(10):
        A(f"v_mov_b32 v2, {s(sSTAMP+i)}")
        A(f"buffer_store_dword v2, v1, {s(S_WS,4)}, s62 offen offset:{4*i}")
    A(f"s_waitcnt vmcnt(0)")


STG_BUF = 3072


def stage_addr(row):
    return 64 * row + 128 * (row >> 2)


def load_blocks(A, blocks, vST, window, after_first_issue=None):
    n = len(blocks)

    def issue(b):
        blk = blocks[b]
        for k in range(2):
            so = blk['soff'][k]
            A(f"s_mov_b32 {s(sT0)}, {so:#x}")
            if blk.get('sbase') is not None:
                A(f"s_add_u32 {s(sT0)}, {s(sT0)}, {s(blk['sbase'])}")
            A(f"buffer_load_dwordx4 {reg(off(blk['raw'], 4*k), 4)}, {v(blk['voff'])}, {s(blk['srd'],4)}, {s(sT0)} offen")

    issued = 0
    def can_issue(b, done):
        r = blocks[b]['raw']
        for p in range(b):
            if blocks[p]['raw'] == r or blocks[p].get('dst') == r:
                if p >= done:
                    return False
        return True

    while issued < n and issued < window and can_issue(issued, 0):
        issue(issued)
        issued += 1
    if after_first_issue:
        after_first_issue(2 * issued)
    for b in range(n):
        blk = blocks[b]
        assert issued > b, "window deadlock"
        A(f"s_waitcnt vmcnt({2*(issued-b-1)})")
        buf = (b & 1) * STG_BUF
        A(f"ds_write_b128 {v(vST)}, {reg(blk['raw'],4)} offset:{buf}")
        A(f"ds_write_b128 {v(vST)}, {reg(off(blk['raw'],4),4)} offset:{buf + stage_addr(16)}")
        for i in range(4):
            A(f"ds_read_b64_tr_b16 {reg(off(blk['dst'],2*i),2)}, {v(blk['vtr'])} offset:{buf + blk['imm'][i]}")
        if blk.get('post'):
            blk['post'](A)
        while issued < n and issued - b - 1 < window and can_issue(issued, b + 1):
            issue(issued)
            issued += 1
    A("s_waitcnt lgkmcnt(0)")


def tr_lane_addr(A, vD, vL, vT1, vT2, kind, base_sreg=None, base_imm=0):
    A(f"v_lshrrev_b32 {v(vT1)}, 4, {v(vL)}")
    A(f"v_bfe_u32 {v(vT2)}, {v(vL)}, 2, 2")
    A(f"v_and_b32 {v(vD)}, 3, {v(vL)}")
    A(f"v_lshlrev_b32 {v(vD)}, 3, {v(vD)}")

    def add_term(expr_src, mask_shift, mul):
        sh, bits = mask_shift
        A(f"v_bfe_u32 v{TMPX}, {v(expr_src)}, {sh}, {bits}")
        A(f"v_mul_u32_u24 v{TMPX}, {mul}, v{TMPX}")
        A(f"v_add_u32 {v(vD)}, {v(vD)}, v{TMPX}")

    G, r = vT1, vT2
    def sa(row):
        return stage_addr(row)
    if kind == 'chain_qkv':
        add_term(G, (1, 1), sa(8)); add_term(G, (0, 1), sa(4)); add_term(r, (0, 1), sa(1)); add_term(r, (1, 1), 32)
    elif kind == 'chain_wo':
        add_term(G, (0, 1), sa(16)); add_term(G, (1, 1), sa(4)); add_term(r, (0, 1), sa(1)); add_term(r, (1, 1), 32)
    elif kind == 'k16':
        add_term(G, (1, 1), sa(8)); add_term(r, (0, 2), sa(1)); add_term(G, (0, 1), 32)
    elif kind == 'out_wo':
        add_term(G, (0, 2), sa(4)); add_term(r, (0, 2), sa(1))
    elif kind == 'out_w2':
        add_term(G, (1, 1), sa(16)); add_term(G, (0, 1), sa(4)); add_term(r, (0, 2), sa(1))
    else:
        raise ValueError(kind)
    if base_sreg is not None:
        A(f"v_add_u32 {v(vD)}, {s(base_sreg)}, {v(vD)}")
    if base_imm:
        A(f"v_add_u32 {v(vD)}, {base_imm}, {v(vD)}")


TR_IMM = {
    'chain_qkv': [stage_addr(16 * hi + 2 * qq) for hi in range(2) for qq in range(2)],
    'chain_wo': [stage_addr(8 * hi + 2 * qq) for hi in range(2) for qq in range(2)],
    'k16': [stage_addr(16 * kk + 4 * hf) for kk in range(2) for hf in range(2)],
    'out_wo': [stage_addr(16 * hf) + 32 * ct for ct in range(2) for hf in range(2)],
    'out_w2': [stage_addr(8 * hf) + 32 * ct for ct in range(2) for hf in range(2)],
}
TMPX = 15


def stage_lane_addr(A, vD, vL, vT, base_sreg):
    A(f"v_lshrrev_b32 {v(vD)}, 2, {v(vL)}")
    A(f"v_lshlrev_b32 {v(vD)}, 6, {v(vD)}")
    A(f"v_lshrrev_b32 {v(vT)}, 4, {v(vL)}")
    A(f"v_lshlrev_b32 {v(vT)}, 7, {v(vT)}")
    A(f"v_add_u32 {v(vD)}, {v(vD)}, {v(vT)}")
    A(f"v_and_b32 {v(vT)}, 3, {v(vL)}")
    A(f"v_lshlrev_b32 {v(vT)}, 4, {v(vT)}")
    A(f"v_add_u32 {v(vD)}, {v(vD)}, {v(vT)}")
    A(f"v_add_u32 {v(vD)}, {s(base_sreg)}, {v(vD)}")


def raw_lane_off(A, vD, vL, vT, pitch):
    A(f"v_lshrrev_b32 {v(vD)}, 2, {v(vL)}")
    A(f"v_mul_u32_u24 {v(vD)}, {pitch}, {v(vD)}")
    A(f"v_and_b32 {v(vT)}, 3, {v(vL)}")
    A(f"v_lshlrev_b32 {v(vT)}, 4, {v(vT)}")
    A(f"v_add_u32 {v(vD)}, {v(vD)}, {v(vT)}")


def lane_expr(A, vD, vL, terms, const=0, sregs=(), tmp=None):
    tmp = TMPX if tmp is None else tmp
    first = True
    for (sh, bits, mul) in terms:
        dst = vD if first else tmp
        A(f"v_bfe_u32 {v(dst)}, {v(vL)}, {sh}, {bits}")
        if mul != 1:
            A(f"v_mul_u32_u24 {v(dst)}, {mul}, {v(dst)}")
        if not first:
            A(f"v_add_u32 {v(vD)}, {v(vD)}, {v(tmp)}")
        first = False
    if first:
        A(f"v_mov_b32 {v(vD)}, 0")
    if const:
        A(f"v_add_u32 {v(vD)}, {const:#x}, {v(vD)}")
    for sr in sregs:
        A(f"v_add_u32 {v(vD)}, {s(sr)}, {v(vD)}")


class Q:
    def __init__(self, A, name, cap):
        self.A, self.name, self.cap = A, name, cap
        self.ops = []

    def issue(self, tag, text):
        self.A(text)
        self.ops.append(tag)

    def wait(self, tag):
        if tag not in self.ops:
            return
        i = max(j for j, t in enumerate(self.ops) if t == tag)
        n = len(self.ops) - 1 - i
        self.A(f"s_waitcnt {self.name}({min(n, self.cap)})")
        if n <= self.cap:
            self.ops = self.ops[i + 1:]
        else:
            self.ops = self.ops[len(self.ops) - self.cap:]

    def wait_all(self):
        self.A(f"s_waitcnt {self.name}(0)")
        self.ops = []


XBUF = 64 * 528
XB1 = 36864


class XG:
    vL, vL16, vXW, vXR, vZero, vTmp, vT1, vT2 = 1, 2, 3, 4, 10, 11, 12, 13
    XP, XF = 16, 48
    NF = 4

    def __init__(self, A, sDelta):
        self.A, self.sDelta = A, sDelta

    def setup(self):
        A = self.A
        vL, vL16, vXW, vXR, vZero, vT1 = self.vL, self.vL16, self.vXW, self.vXR, self.vZero, self.vT1
        A(f"v_and_b32 {v(vL)}, 63, v0")
        A(f"v_lshlrev_b32 {v(vL16)}, 4, {v(vL)}")
        A(f"v_mov_b32 {v(vZero)}, 0")
        A(f"v_mul_u32_u24 {v(vXW)}, 528, {v(vL)}")
        A(f"s_lshl_b32 {s(sT0)}, {s(sWAVE)}, 7")
        A(f"v_add_u32 {v(vXW)}, {s(sT0)}, {v(vXW)}")
        A(f"v_lshrrev_b32 {v(vXR)}, 5, {v(vL)}")
        A(f"v_mul_u32_u24 {v(vXR)}, 528, {v(vXR)}")
        A(f"v_and_b32 {v(vT1)}, 31, {v(vL)}")
        A(f"v_lshlrev_b32 {v(vT1)}, 4, {v(vT1)}")
        A(f"v_add_u32 {v(vXR)}, {v(vXR)}, {v(vT1)}")

    def issue_x(self, seg_sreg):
        A = self.A
        A(f"s_lshl_b32 {s(sT0)}, {s(seg_sreg)}, 15")
        A(f"s_lshl_b32 {s(sT1)}, {s(sWAVE)}, 13")
        A(f"s_add_u32 {s(sT0)}, {s(sT0)}, {s(sT1)}")
        for i in range(8):
            if i == 4:
                A(f"s_add_u32 {s(sT0)}, {s(sT0)}, 4096")
            A(f"buffer_load_dwordx4 {v(self.XP+4*i,4)}, {v(self.vL16)}, {s(S_X,4)}, {s(sT0)} offen offset:{(i%4)*1024}")

    def write_x(self):
        for i in range(8):
            self.A(f"ds_write_b128 {v(self.vXW)}, {v(self.XP+4*i,4)} offset:{i*16}")

    def after_weights(self):
        A = self.A
        A(f"s_waitcnt lgkmcnt(0)")
        A(f"s_barrier")
        A(f"s_mov_b32 {s(self.sDelta)}, {XB1}")
        A(f"v_add_u32 {v(self.vXW)}, {s(self.sDelta)}, {v(self.vXW)}")

    def body(self, mfmas, wpos=9):
        A, NF, XF = self.A, self.NF, self.XF

        def rd(kk):
            A(f"ds_read_b128 {v(XF + 4*(kk % NF), 4)}, {v(self.vXR)} offset:{kk*1056}")
        for kk in range(NF - 1):
            rd(kk)
        for kk in range(32):
            if kk + NF - 1 < 32:
                rd(kk + NF - 1)
                A(f"s_waitcnt lgkmcnt({NF-1})")
            else:
                A(f"s_waitcnt lgkmcnt({31-kk})")
            mfmas(kk, v(XF + 4 * (kk % NF), 4))
            if kk == wpos:
                A(f"s_waitcnt vmcnt(0)")
                self.write_x()
                A(f"s_waitcnt lgkmcnt(0)")

    def toggle(self):
        A = self.A
        A(f"v_add_u32 {v(self.vXR)}, {s(self.sDelta)}, {v(self.vXR)}")
        A(f"s_sub_u32 {s(self.sDelta)}, 0, {s(self.sDelta)}")
        A(f"v_add_u32 {v(self.vXW)}, {s(self.sDelta)}, {v(self.vXW)}")


def gen_hq(A, opts):
    vWG, vST, vTR, vKst, vVst = 5, 6, 7, 8, 9
    ACC = 64
    EP = 112
    sH, sJ, sSeg, sNext, sDelta, sSegOff, sKVoff, sKVsh, sXa = 44, 45, 46, 47, 48, 49, 50, 51, 52
    xg = XG(A, sDelta)
    vL, vL16, vZero, vTmp, vT1, vT2, XF = xg.vL, xg.vL16, xg.vZero, xg.vTmp, xg.vT1, xg.vT2, xg.XF
    A(f"s_sub_u32 {s(sT0)}, {s(sXCD)}, 3")
    A(f"s_lshl_b32 {s(sT0)}, {s(sT0)}, 5")
    A(f"s_add_u32 {s(sT0)}, {s(sT0)}, {s(sIDX)}")
    A(f"s_mul_i32 {s(sH)}, {s(sT0)}, 205")
    A(f"s_lshr_b32 {s(sH)}, {s(sH)}, 10")
    A(f"s_mul_i32 {s(sT1)}, {s(sH)}, 5")
    A(f"s_sub_u32 {s(sJ)}, {s(sT0)}, {s(sT1)}")
    mk_srd(A, S_A, P_WQ, 512 * 8192)
    mk_srd(A, S_B, P_WK, 512 * 8192)
    mk_srd(A, S_C, P_WV, 512 * 8192)
    xg.setup()
    A(f"s_mov_b32 {s(sSeg)}, {s(sJ)}")
    xg.issue_x(sSeg)
    raw_lane_off(A, vWG, vL, vT1, 8192)
    A(f"s_lshl_b32 {s(sT0)}, {s(sH)}, 8")
    A(f"s_lshl_b32 {s(sT1)}, {s(sWAVE)}, 6")
    A(f"s_add_u32 {s(sT0)}, {s(sT0)}, {s(sT1)}")
    A(f"v_add_u32 {v(vWG)}, {s(sT0)}, {v(vWG)}")
    STG = 80 * 1024
    A(f"s_mul_i32 {s(sT2)}, {s(sWAVE)}, {2*STG_BUF}")
    A(f"s_add_u32 {s(sT2)}, {s(sT2)}, {STG}")
    stage_lane_addr(A, vST, vL, vT1, sT2)
    tr_lane_addr(A, vTR, vL, vT1, vT2, 'k16', base_sreg=sT2)
    A(f"s_lshl_b32 {s(sT0)}, {s(sWAVE)}, 10")
    lane_expr(A, vKst, vL, [(4, 1, 4096), (5, 1, 256), (0, 4, 16)], sregs=[sT0])
    A(f"s_lshl_b32 {s(sT0)}, {s(sWAVE)}, 11")
    lane_expr(A, vVst, vL, [(4, 1, 1024), (5, 1, 256), (0, 4, 16)], sregs=[sT0])

    def first_x(nyounger):
        A(f"s_waitcnt vmcnt({nyounger})")
        xg.write_x()
    blocks = []
    for (srd, dst) in ((S_B, ('a', 128)), (S_C, ('v', 128)), (S_A, ('a', 0))):
        for b in range(16):
            blocks.append(dict(srd=srd, voff=vWG, soff=[(32 * b) * 8192, (32 * b + 16) * 8192], raw=off(dst, 8 * b), dst=off(dst, 8 * b),
                               vtr=vTR, imm=TR_IMM['k16']))
    stamp(A, 1)
    load_blocks(A, blocks, vST, window=27, after_first_issue=first_x)
    stamp(A, 2)
    xg.after_weights()
    if opts.get('xatt'):
        from gen_xatt import xatt_setup, xatt_task
        xatt_setup(A, xg, sH)
    A(f"s_mov_b32 {s(sXa)}, -1")

    Lloop = A.new_label("hq_loop")
    Lnoq = A.new_label("hq_noq")
    Lnox = A.new_label("hq_nox")
    Lnoflag = A.new_label("hq_noflag")
    A.label(Lloop)
    A(f"s_add_u32 {s(sNext)}, {s(sSeg)}, 5")
    A(f"s_cmp_ge_u32 {s(sSeg)}, 64")
    A(f"s_cbranch_scc1 {Lnoq}")
    xg.issue_x(sNext)

    def mf(kk, f):
        c = lambda base: "0" if kk == 0 else v(base, 16)
        A(f"v_mfma_f32_32x32x16_bf16 {v(ACC+16,16)}, {a(128+4*kk,4)}, {f}, {c(ACC+16)}")
        A(f"v_mfma_f32_32x32x16_bf16 {v(ACC+32,16)}, {f}, {v(128+4*kk,4)}, {c(ACC+32)}")
        A(f"v_mfma_f32_32x32x16_bf16 {v(ACC,16)}, {a(4*kk,4)}, {f}, {c(ACC)}")
    xg.body(mf)
    A.nop(12)
    A(f"s_lshl_b32 {s(sSegOff)}, {s(sSeg)}, 5")
    A(f"s_add_u32 {s(sSegOff)}, {s(sSegOff)}, {s(sH)}")
    A(f"s_lshl_b32 {s(sSegOff)}, {s(sSegOff)}, 13")

    def store_ct(acc, region, ep):
        for c in range(2):
            for q in range(4):
                A(f"v_cvt_pk_bf16_f32 {v(ep+4*c+q)}, {v(acc+8*c+2*q)}, {v(acc+8*c+2*q+1)}")
        A(f"s_add_u32 {s(sT0)}, {s(sSegOff)}, {region:#x}")
        for c in range(2):
            A(f"buffer_store_dwordx4 {v(ep+4*c,4)}, {v(vKst)}, {s(S_WS,4)}, {s(sT0)} offen offset:{c*512} sc1")
    store_ct(ACC + 16, WS_KX, EP)
    acc = ACC + 32
    for c in range(2):
        for hf in range(2):
            u = c + 2 * hf
            for q in range(2):
                A(f"v_cvt_pk_bf16_f32 {v(EP+8+4*c+2*hf+q)}, {v(acc+4*u+2*q)}, {v(acc+4*u+2*q+1)}")
    A(f"s_add_u32 {s(sT0)}, {s(sSegOff)}, {WS_VX:#x}")
    for c in range(2):
        A(f"buffer_store_dwordx4 {v(EP+8+4*c,4)}, {v(vVst)}, {s(S_WS,4)}, {s(sT0)} offen offset:{c*512} sc1")
    store_ct(ACC, WS_QX, XF)
    xg.toggle()
    A(f"s_waitcnt vmcnt(0) lgkmcnt(0)")
    A(f"s_barrier")
    A(f"s_cmp_lg_u32 {s(sWAVE)}, 0")
    A(f"s_cbranch_scc1 {Lnoflag}")
    kv_flag(A, sSeg, vZero, vTmp, sKVoff, sKVsh)
    A.label(Lnoflag)
    if PROF:
        Lp = A.new_label("pf")
        A(f"s_cmp_lt_i32 {s(sXa)}, 0")
        A(f"s_cbranch_scc0 {Lp}")
        stamp(A, 3)
        A.label(Lp)
    A.label(Lnoq)
    if opts.get('xatt'):
        A(f"s_cmp_lt_i32 {s(sXa)}, 0")
        A(f"s_cbranch_scc1 {Lnox}")
        xatt_task(A, xg, sH, sXa, sKVoff, sKVsh)
        A.label(Lnox)
    A(f"s_mov_b32 {s(sXa)}, {s(sSeg)}")
    A(f"s_mov_b32 {s(sSeg)}, {s(sNext)}")
    A(f"s_cmp_lt_u32 {s(sXa)}, 64")
    A(f"s_cbranch_scc1 {Lloop}")
    stamp(A, 4)


def kv_flag(A, sSegR, vZero, vTmp, sOff, sSh, base=D_KV):
    A(f"s_lshr_b32 {s(sOff)}, {s(sSegR)}, 2")
    A(f"s_lshl_b32 {s(sOff)}, {s(sOff)}, 2")
    A(f"s_add_u32 {s(sOff)}, {s(sOff)}, {base*4}")
    A(f"s_and_b32 {s(sSh)}, {s(sSegR)}, 3")
    A(f"s_lshl_b32 {s(sSh)}, {s(sSh)}, 3")
    signal_byte(A, None, vZero, sOff, sSh, vTmp)


def gen(opts):
    global PROF
    PROF = bool(opts.get('prof'))
    A = Asm()
    A.L.append(open("header.txt").read().rstrip("\n"))
    A.L.append(f"; @launch grid=(256,1,1) block=(256,1,1) lds={LDS_BYTES}")
    A.L.append('.amdgcn_target "amdgcn-amd-amdhsa--gfx950"')
    A.L.append(".text")
    A.L.append(f".globl {KNAME}")
    A.L.append(".p2align 8")
    A.L.append(f".type {KNAME},@function")
    A.label(KNAME)
    A(f"s_cmp_ge_u32 s2, 256")
    A(f"s_cbranch_scc1 L_exit")
    A(f"s_load_dwordx16 s[64:79], s[0:1], 0")
    A(f"s_load_dwordx8 s[80:87], s[0:1], 64")
    A(f"s_load_dwordx4 s[88:91], s[0:1], 96")
    A(f"s_and_b32 {s(sXCD)}, s2, 7")
    A(f"s_lshr_b32 {s(sIDX)}, s2, 3")
    A(f"v_lshrrev_b32 v1, 6, v0")
    A(f"s_mov_b32 {s(sDEAD)}, 0")
    A(f"v_readfirstlane_b32 {s(sWAVE)}, v1")
    A(f"s_waitcnt lgkmcnt(0)")
    mk_srd(A, S_WS, P_WS, WS_SIZE)
    mk_srd(A, S_DBG, P_DBG, 256)
    mk_srd(A, S_X, P_X, 2048 * 1024)
    if PROF:
        for i in range(10):
            A(f"s_mov_b32 {s(sSTAMP+i)}, 0")
    stamp(A, 0)
    A(f"s_cmp_eq_u32 {s(sXCD)}, 0")
    A(f"s_cbranch_scc1 L_chain")
    A(f"s_cmp_lt_u32 {s(sXCD)}, 3")
    A(f"s_cbranch_scc1 L_out")
    if opts.get('hq', True):
        gen_hq(A, opts)
    A(f"s_branch L_role_end")
    A.label("L_chain")
    if opts.get('clkprobe'):
        A("s_memrealtime s[44:45]")
        A("s_waitcnt lgkmcnt(0)")
        for i in range(1, 9):
            L = A.new_label("cp")
            A(f"s_add_u32 s46, s44, {i*500}")
            A.label(L)
            A("s_memrealtime s[48:49]")
            A("s_waitcnt lgkmcnt(0)")
            A("s_sub_u32 s50, s48, s46")
            A("s_cmp_lt_i32 s50, 0")
            A(f"s_cbranch_scc1 {L}")
            stamp_clk(A, i)
    if opts.get('chain'):
        from gen_chain import gen_chain
        gen_chain(A, opts)
    A(f"s_branch L_role_end")
    A.label("L_out")
    if opts.get('out'):
        from gen_out import gen_out
        gen_out(A, opts)
    A.label("L_role_end")
    stamp(A, 9)
    stamp_flush(A)
    A.label("L_exit")
    A("s_endpgm")
    A.L.append(f""".section .rodata,"a"
.p2align 6
.amdhsa_kernel {KNAME}
  .amdhsa_next_free_vgpr 512
  .amdhsa_next_free_sgpr 102
  .amdhsa_accum_offset 256
  .amdhsa_group_segment_fixed_size 0
  .amdhsa_kernarg_size 112
  .amdhsa_user_sgpr_count 2
  .amdhsa_user_sgpr_kernarg_segment_ptr 1
  .amdhsa_system_sgpr_workgroup_id_x 1
.end_amdhsa_kernel""")
    return A.text()


def main():
    opts = {}
    outp = sys.argv[1]
    for o in sys.argv[2:]:
        if "=" in o:
            k, val = o.split("=")
            opts[k] = int(val)
        else:
            opts[o] = True
    open(outp, "w").write(gen(opts))


if __name__ == "__main__":
    import gen as _g
    _g.main()
```

```python
from dsl import *
import gen as G
from gen import *

QK_OFF, O_OFF, MEM_OFF, KX_OFF, VX_OFF, WO_OFF = 0, 4096, 8192, 16384, 24576, 32768

vL16, vAm, vIdx, vQKw, vQKr, vOw, vMw, vWo, vPst, vRed, vMst, vPf, vFlag, vJunk = range(14)
vT0, vT1 = 14, 15
vSEL = 16
vHO = 20
vBM = 26
vS0, vS1 = 30, 31
X = 32
Y = 64
PA = 96
ACC = 112
sH, sS, sSlotP, sSlotP1, sSlotP4, sSlotM, sKM, sKV, sC, sNC, sRet = range(44, 55)
sRa0, sRa2, sFastF = 55, 56, 57
sMLo, sMHi = 58, 60
sU = 76
sFo, sNeed, sJ4, sCn, sPf, sGat, sKn, sM0K, sM0V = 78, 79, 80, 81, 84, 85, 86, 87, 88
sW1k, sRaM, sRaA, sFb, sPfb, sW2k = 64, 65, 66, 67, 68, 69
sPc2, sPc3 = 70, 71
sPc = [sSlotP, sSlotP1, sPc2, sPc3]
sCP0, sCP1 = 82, 83
OOB = 0x40000000
RED_LIMIT = 1 << 16

LOG2E = 1.4426950408889634
SCALE_C = (128 ** -0.5) * LOG2E


def f32_hex(x):
    import struct
    return struct.unpack("<I", struct.pack("<f", x))[0]


RT = False
LATE = [False]


def lstamp(A, i, late=None):
    L = A.new_label("ls")
    if late is None:
        late = i >= 8
    A(f"s_cmp_lg_u32 {s(sS)}, {40 if late else 39}")
    A(f"s_cbranch_scc1 {L}")
    r = 16 + 2 * (i - 1) if i < 9 else 62
    A(f"{'s_memrealtime' if RT else 's_memtime'} s[{r}:{r+1}]")
    A.label(L)


def gen_step(A, fast, opts):
    st = "" if fast else " sc1"
    tag = "f" if fast else "s"
    Lstep = f"L_step_{tag}"
    Llast = f"L_last_{tag}"
    lq = Q(A, "lgkmcnt", 15)
    cp = opts.get('cprof')
    rp = opts.get('rprof')
    aq, ak, av = ACC, ACC + 4, ACC + 8
    CK, CQ = ACC + 12, ACC + 14
    AR = [PA + 4 * i for i in range(4)] + [Y + 4 * i for i in range(8)] + [X + 4 * i for i in range(4)]
    KXR = {0: X + 16, 4: X + 20, 1: X + 24, 5: X + 28, 2: X, 6: X + 4, 3: X + 8, 7: X + 12}
    H0, H1 = X + 16, X + 24

    def rdA(ks):
        lq.issue(('A', ks), f"ds_read_b128 {v(AR[ks],4)}, {v(vAm)} offset:{MEM_OFF + ks*512}")

    def rdKX(j):
        lq.issue(('KX', j), f"ds_read_b128 {v(KXR[j],4)}, {v(vL16)} offset:{KX_OFF + j*1024}")

    def smf(acc, ks, b):
        A(f"v_smfmac_f32_16x16x64_bf16 {v(acc,4)}, {v(AR[ks],4)}, {b}, {v(vIdx)}")

    A.label(Lstep)
    if cp:
        lstamp(A, 1)
    for ks in range(10):
        rdA(ks)
    salu = [
        f"s_and_b32 {s(sT4)}, {s(sS)}, 3",
        f"s_lshl_b32 {s(sSlotP)}, {s(sT4)}, 18",
        f"s_lshl_b32 {s(sSlotM)}, {s(sT4)}, 13",
        f"s_add_u32 {s(sSlotM)}, {s(sSlotM)}, {WS_M:#x}",
        f"s_add_u32 {s(sSlotP1)}, {s(sSlotP)}, 16384",
        f"s_add_u32 {s(sPc2)}, {s(sSlotP)}, 32768",
        f"s_add_u32 {s(sPc3)}, {s(sSlotP)}, 49152",
        f"s_add_u32 {s(sSlotP4)}, {s(sSlotP)}, 4096",
        f"s_add_u32 {s(sGat)}, {s(sSlotM)}, {s(sW2k)}",
        f"s_xor_b32 {s(sT4)}, {s(sT4)}, 2",
        f"s_lshl_b32 {s(sRa0)}, {s(sT4)}, 18",
        f"s_add_u32 {s(sRa0)}, {s(sRa0)}, {s(sW1k)}",
        f"s_mul_i32 {s(sRa2)}, {s(sT4)}, {s(sRaM)}",
        f"s_add_u32 {s(sRa2)}, {s(sRa2)}, {s(sRaA)}",
    ]
    def su(n):
        for _ in range(n):
            if salu:
                A(salu.pop(0))
    for ks in range(16):
        lq.wait(('A', ks))
        smf(ak, ks, a(128 + 8 * ks, 8))
        if ks < 6:
            rdA(10 + ks)
        elif ks == 6:
            A(f"s_mov_b32 m0, {s(sM0V)}")
            A(f"s_add_u32 {s(sT3)}, {s(sKV)}, 8192")
        elif ks == 7:
            A(f"buffer_load_dwordx4 {v(vL16)}, {s(S_WS,4)}, {s(sT3)} offen lds")
        elif ks == 10:
            A(f"buffer_load_dwordx4 {v(vL16)}, {s(S_WS,4)}, {s(sT3)} offen offset:1024 lds")
        elif ks == 13:
            A(f"buffer_load_dword {v(vFlag)}, off, {s(S_WS,4)}, {s(sFo)} sc1")
        else:
            su(2)
    if cp and not rp:
        lstamp(A, 2)
    for ks in range(16):
        smf(aq, ks, a(8 * ks, 8))
        if ks == 0:
            A(f"buffer_load_dword {v(vJunk)}, {v(vPf)}, {s(S_WS,4)}, {s(sPf)} offen")
        elif ks == 1:
            su(2)
            A(f"v_cvt_pk_bf16_f32 {v(CK)}, {v(ak)}, {v(ak+1)}")
        elif ks == 2:
            su(2)
            A(f"v_cvt_pk_bf16_f32 {v(CK+1)}, {v(ak+2)}, {v(ak+3)}")
        elif ks == 3:
            lq.issue('wk', f"ds_write_b64 {v(vQKw)}, {v(CK,2)} offset:{QK_OFF+2048}")
        elif ks == 4:
            A(f"buffer_store_dwordx2 {v(CK,2)}, {v(vQKw)}, {s(S_WS,4)}, {s(sKM)} offen sc1")
            su(1)
        elif ks == 5:
            A(f"s_add_u32 {s(sT3)}, {s(sPf)}, 4096")
            A(f"buffer_load_dword {v(vJunk)}, {v(vPf)}, {s(S_WS,4)}, {s(sT3)} offen")
        elif ks == 6:
            A(f"s_waitcnt vmcnt(6)")
        elif 7 <= ks <= 10:
            rdKX((0, 4, 1, 5)[ks - 7])
        elif ks == 11:
            A(f"buffer_store_dwordx4 {v(vSEL,4)}, {v(vRed)}, {s(S_WS,4)}, {s(sRa0)} offen{st}")
            su(1)
        elif ks == 13:
            A(f"buffer_store_dwordx4 {v(vSEL,4)}, {v(vRed)}, {s(S_WS,4)}, {s(sRa0)} offen offset:3072{st}")
            su(1)
        elif ks == 15:
            A(f"buffer_store_dwordx4 {v(vSEL,4)}, {v(vMst)}, {s(S_WS,4)}, {s(sRa2)} offen{st}")
            su(1)
        else:
            su(3)
    assert not salu
    if cp and not rp:
        lstamp(A, 3)
    vorder = [12, 13, 14, 15, 4, 5, 6, 7, 8, 9, 10, 11, 0, 1, 2, 3]
    QR, KR = Y, Y + 16
    def trq(i):
        ks, hf = i >> 1, i & 1
        lq.issue(('q', ks), f"ds_read_b64_tr_b16 {v(QR+4*ks+2*hf,2)}, {v(vQKr)} offset:{QK_OFF + (32*ks+8*hf)*16}")
    def trk(i):
        ks, hf = i >> 1, i & 1
        lq.issue(('k', ks), f"ds_read_b64_tr_b16 {v(KR+4*ks+2*hf,2)}, {v(vQKr)} offset:{QK_OFF + 2048 + (32*ks+8*hf)*16}")
    for g, ks in enumerate(vorder):
        smf(av, ks, v(128 + 8 * ks, 8))
        if g == 0:
            rdKX(2)
        elif g == 1:
            rdKX(6)
            A(f"v_cvt_pk_bf16_f32 {v(CQ)}, {v(aq)}, {v(aq+1)}")
        elif g == 2:
            rdKX(3)
            A(f"v_cvt_pk_bf16_f32 {v(CQ+1)}, {v(aq+2)}, {v(aq+3)}")
        elif g == 3:
            lq.issue('wq', f"ds_write_b64 {v(vQKw)}, {v(CQ,2)} offset:{QK_OFF}")
        elif g == 4:
            rdKX(7)
        elif g == 6:
            lq.wait('wq')
            A(f"s_barrier")
        elif 7 <= g <= 14:
            trq(g - 7)
        elif g == 15:
            trk(0)
    if cp and not rp:
        lstamp(A, 4)
    T0, T1, TM = PA, PA + 4, PA + 8
    m, t_ = vT0, vT1
    wo_ops = [(cg, ks) for cg in range(4) for ks in range(4)]
    bufs = [X + 16, X + 24, X, X + 8, Y, Y + 8, Y + 16, Y + 24]
    def rdW(i, half):
        cg, ks = wo_ops[i]
        o = (cg * 4 + ks) * 2048 + 1024 * half
        lq.issue(('W', i), f"ds_read_b128 {v(bufs[i % 8] + 4*half, 4)}, {v(vWo)} offset:{o}")
    for i in range(8):
        ks, t = i >> 1, i & 1
        if i in (0, 4):
            lq.wait(('q', ks + 1))
        T = (T0, T1)[t]
        c = "0" if ks == 0 else v(T, 4)
        A(f"v_mfma_f32_16x16x32_bf16 {v(T,4)}, {v(KXR[4*t+ks],4)}, {v(QR+4*ks,4)}, {c}")
        if i < 7:
            trk(i + 1)
        if i == 1:
            A(f"v_cvt_pk_bf16_f32 {v(vS0)}, {v(av)}, {v(av+1)}")
        elif i == 2:
            A(f"v_cvt_pk_bf16_f32 {v(vS1)}, {v(av+2)}, {v(av+3)}")
        elif 3 <= i <= 6:
            A(f"v_mov_b64 {v(ACC+2*(i-3),2)}, 0")
        elif i == 7:
            A(f"buffer_store_dwordx2 {v(vS0,2)}, {v(vQKw)}, {s(S_WS,4)}, {s(sKM)} offen offset:2048 sc1")
            A(f"s_cmp_eq_u32 {s(sS)}, 63")
            A(f"s_cbranch_scc1 {Llast}")
    for ks in range(4):
        if ks in (0, 2):
            lq.wait(('k', ks + 1))
        cm = "0" if ks == 0 else v(TM, 4)
        A(f"v_mfma_f32_16x16x32_bf16 {v(TM,4)}, {v(KR+4*ks,4)}, {v(QR+4*ks,4)}, {cm}")
        rdW(ks >> 1, ks & 1)
        if ks == 0:
            A(f"v_mov_b64 {v(ACC+8,2)}, 0")
        if ks == 1:
            A(f"v_max3_f32 {v(m)}, {v(T0)}, {v(T0+1)}, {v(T0+2)}")
        elif ks == 2:
            A(f"v_max3_f32 {v(t_)}, {v(T0+3)}, {v(T1)}, {v(T1+1)}")
        elif ks == 3:
            A(f"v_max3_f32 {v(m)}, {v(m)}, {v(T1+2)}, {v(T1+3)}")
    VX0, VM0 = Y + 16, Y + 24
    A(f"v_max_f32 {v(m)}, {v(m)}, {v(t_)}")
    A(f"s_waitcnt vmcnt(8)")
    lq.issue('vx', f"ds_read_b128 {v(VX0,4)}, {v(vMw)} offset:{VX_OFF - MEM_OFF}")
    lq.issue('vx', f"ds_read_b128 {v(VX0+4,4)}, {v(vMw)} offset:{VX_OFF - MEM_OFF + 1024}")
    A(f"v_cndmask_b32 {v(VM0)}, 0, {v(vS0)}, {s(sMLo,2)}")
    A(f"v_cndmask_b32 {v(VM0+1)}, 0, {v(vS1)}, {s(sMLo,2)}")
    A(f"v_cndmask_b32 {v(VM0+4)}, 0, {v(vS0)}, {s(sMHi,2)}")
    A(f"v_cndmask_b32 {v(VM0+5)}, 0, {v(vS1)}, {s(sMHi,2)}")
    A(f"v_max3_f32 {v(t_)}, {v(TM)}, {v(TM+1)}, {v(TM+2)}")
    A(f"v_max3_f32 {v(vS0)}, {v(m)}, {v(t_)}, {v(TM+3)}")
    A(f"v_max3_f32 {v(vS1)}, {v(m)}, {v(t_)}, {v(TM+3)}")
    rdW(2, 0)
    A(f"s_nop 0")
    A(f"v_permlane16_swap_b32 {v(vS0)}, {v(vS1)}")
    A(f"v_max_f32 {v(m)}, {v(vS0)}, {v(vS1)}")
    A(f"v_max_f32 {v(t_)}, {v(vS0)}, {v(vS1)}")
    rdW(2, 1)
    A(f"s_nop 0")
    A(f"v_permlane32_swap_b32 {v(m)}, {v(t_)}")
    A(f"v_max_f32 {v(m)}, {v(m)}, {v(t_)}")
    A(f"v_mul_f32 {v(m)}, {s(sNC)}, {v(m)}")
    BX = ACC + 12
    xs = [T0, T0 + 1, T0 + 2, T0 + 3, T1, T1 + 1, T1 + 2, T1 + 3]
    ms = [TM, TM + 1, TM + 2, TM + 3]
    for r in xs[:2]:
        A(f"v_fma_f32 {v(r)}, {v(r)}, {s(sC)}, {v(m)}")
    for j in range(8):
        A(f"v_exp_f32 {v(xs[j])}, {v(xs[j])}")
        nx = (xs + ms)[j + 2]
        A(f"v_fma_f32 {v(nx)}, {v(nx)}, {s(sC)}, {v(m)}")
        if j >= 2 and j % 2 == 0:
            q = (j - 2) // 2
            A(f"v_cvt_pk_bf16_f32 {v(BX+q)}, {v(xs[2*q])}, {v(xs[2*q+1])}")
    A(f"v_fma_f32 {v(ms[2])}, {v(ms[2])}, {s(sC)}, {v(m)}")
    A(f"v_cvt_pk_bf16_f32 {v(BX+3)}, {v(xs[6])}, {v(xs[7])}")
    A(f"v_fma_f32 {v(ms[3])}, {v(ms[3])}, {s(sC)}, {v(m)}")
    A(f"v_exp_f32 {v(ms[0])}, {v(ms[0])}")
    A(f"v_exp_f32 {v(ms[1])}, {v(ms[1])}")
    if cp and not rp:
        lstamp(A, 5)
    O0, O1, LS, PKO = PA, PA + 4, PA + 12, PA + 8
    lq.wait('vx')
    A(f"v_mfma_f32_16x16x32_bf16 {v(LS,4)}, {v(vHO+2,4)}, {v(BX,4)}, 0")
    A(f"v_exp_f32 {v(ms[2])}, {v(ms[2])}")
    A(f"v_mfma_f32_16x16x32_bf16 {v(O0,4)}, {v(VX0,4)}, {v(BX,4)}, 0")
    A(f"v_exp_f32 {v(ms[3])}, {v(ms[3])}")
    A(f"v_mfma_f32_16x16x32_bf16 {v(O1,4)}, {v(VX0+4,4)}, {v(BX,4)}, 0")
    A(f"v_cvt_pk_bf16_f32 {v(vBM)}, {v(ms[0])}, {v(ms[1])}")
    A(f"v_cvt_pk_bf16_f32 {v(vBM+1)}, {v(ms[2])}, {v(ms[3])}")
    rdW(3, 0)
    A(f"s_nop 0")
    A(f"v_mfma_f32_16x16x32_bf16 {v(LS,4)}, {v(vHO,4)}, {v(vBM,4)}, {v(LS,4)}")
    rdW(3, 1)
    A(f"v_mov_b64 {v(ACC+10,2)}, 0")
    A(f"v_mfma_f32_16x16x32_bf16 {v(O0,4)}, {v(VM0,4)}, {v(vBM,4)}, {v(O0,4)}")
    rdW(4, 0)
    A(f"v_mov_b64 {v(ACC+12,2)}, 0")
    A(f"v_mfma_f32_16x16x32_bf16 {v(O1,4)}, {v(VM0+4,4)}, {v(vBM,4)}, {v(O1,4)}")
    rdW(4, 1)
    A(f"v_rcp_f32 {v(m)}, {v(LS)}")
    rdW(5, 0)
    A(f"v_mov_b64 {v(ACC+14,2)}, 0")
    for r in range(4):
        A(f"v_mul_f32 {v(O0+r)}, {v(O0+r)}, {v(m)}")
    A(f"v_cvt_pk_bf16_f32 {v(PKO)}, {v(O0)}, {v(O0+1)}")
    A(f"v_cvt_pk_bf16_f32 {v(PKO+1)}, {v(O0+2)}, {v(O0+3)}")
    for r in range(4):
        A(f"v_mul_f32 {v(O1+r)}, {v(O1+r)}, {v(m)}")
    A(f"v_cvt_pk_bf16_f32 {v(PKO+2)}, {v(O1)}, {v(O1+1)}")
    A(f"v_cvt_pk_bf16_f32 {v(PKO+3)}, {v(O1+2)}, {v(O1+3)}")
    lq.issue('wo_', f"ds_write_b128 {v(vOw)}, {v(PKO,4)} offset:0")
    rdW(5, 1)
    rdW(6, 0)
    rdW(6, 1)
    lq.wait('wo_')
    A(f"s_barrier")
    if cp and not rp:
        lstamp(A, 6)
    for ks in range(4):
        lq.issue(('Ao', ks), f"ds_read_b128 {v(PA+4*ks,4)}, {v(vAm)} offset:{O_OFF + ks*512}")
    rdW(7, 0)
    rdW(7, 1)
    def pack(cg, k):
        A(f"v_cvt_pk_bf16_f32 {v(ACC+4*cg+k)}, {v(ACC+4*cg+2*k)}, {v(ACC+4*cg+2*k+1)}")

    def pstore(cg):
        A(f"buffer_store_dwordx2 {v(ACC+4*cg,2)}, {v(vPst)}, {s(S_WS,4)}, {s(sPc[cg])} offen{st}")
    for i, (cg, ks) in enumerate(wo_ops):
        lq.wait(('Ao', ks))
        lq.wait(('W', i))
        A(f"v_smfmac_f32_16x16x64_bf16 {v(ACC+4*cg,4)}, {v(PA+4*ks,4)}, {v(bufs[i % 8],8)}, {v(vIdx)}")
        if i < 8:
            rdW(i + 8, 0)
            rdW(i + 8, 1)
        if i == 5:
            pack(0, 0)
        elif i == 6:
            pack(0, 1)
            pstore(0)
        elif i in (8, 12):
            A(f"s_nop {2 if i == 8 else 3}")
            pack(i // 4 - 1, 0)
            pack(i // 4 - 1, 1)
            pstore(i // 4 - 1)
    A(f"s_nop 7")
    pack(3, 0)
    pack(3, 1)
    pstore(3)
    if cp:
        lstamp(A, 7)
    Lnr = A.new_label("notred")
    Lar = A.new_label("afterred")

    def bookkeeping():
        A(f"s_add_u32 {s(sS)}, {s(sS)}, 1")
        A(f"s_add_u32 {s(sKM)}, {s(sKM)}, 0x20000")
        A(f"s_add_u32 {s(sKV)}, {s(sKV)}, 0x80000")
        A(f"s_add_u32 {s(sPf)}, {s(sPf)}, 0x80000")
        A(f"s_add_u32 {s(sJ4)}, {s(sJ4)}, 4")
        A(f"s_cmp_eq_u32 {s(sJ4)}, 20")
        A(f"s_cselect_b32 {s(sJ4)}, 0, {s(sJ4)}")
        A(f"s_addc_u32 {s(sCn)}, {s(sCn)}, 0")

    def bookkeeping2():
        A(f"s_add_u32 {s(sFo)}, {s(sFb)}, {s(sJ4)}")
        A(f"s_cmp_lt_u32 {s(sS)}, 62")
        A(f"s_cselect_b32 {s(sNeed)}, {s(sCn)}, 0")

    if opts.get('rbar', 1):
        A(f"s_barrier")
    A(f"s_cmp_lg_u32 {s(sWAVE)}, 0")
    A(f"s_cbranch_scc1 {Lnr}")
    Lred = A.new_label("red")
    Lredok = A.new_label("redok")
    RA = PA
    two = opts.get('rtwo', 0)

    def once(i, ret=None):
        L = A.new_label("on")
        want = ret if ret is not None else (0 if i == 2 else 1)
        A(f"s_cmp_lg_u32 {s(sRet)}, {want}")
        A(f"s_cbranch_scc1 {L}")
        lstamp(A, i, True)
        A.label(L)

    def red_load(R, i):
        A(f"buffer_load_dwordx4 {v(R+4*i,4)}, {v(vRed)}, {s(S_WS,4)}, {s(sSlotP if i < 4 else sSlotP4)} offen offset:{(i%4)*1024} sc1")

    def red_issue(R):
        for i in range(8):
            red_load(R, i)

    def red_check(R, younger):
        for i in range(8):
            A(f"s_waitcnt vmcnt({younger + 7 - i})")
            if rp and i == 0:
                once(2 if R == X else 4)
            c = "0" if i == 0 else v(RA, 4)
            A(f"v_mfma_f32_16x16x32_bf16 {v(RA,4)}, {v(R+4*i,4)}, {v(vSEL,4)}, {c}")
        A(f"s_add_u32 {s(sRet)}, {s(sRet)}, 1")
        if rp:
            once(3 if R == X else 5, 1 if R == X else 2)
        A(f"s_nop 7")
        A(f"v_cmp_u_f32 vcc, {v(RA)}, {v(RA+1)}")
        A(f"v_cmp_u_f32 {s(sU,2)}, {v(RA+2)}, {v(RA+3)}")
        A(f"v_cvt_pk_bf16_f32 {v(RA+4)}, {v(RA)}, {v(RA+1)}")
        A(f"v_cvt_pk_bf16_f32 {v(RA+5)}, {v(RA+2)}, {v(RA+3)}")
        A(f"s_or_b64 vcc, vcc, {s(sU,2)}")
        A(f"s_cbranch_scc0 {Lredok}")
    for i in range(6):
        A(f"v_mov_b64 {v(ACC+2*i,2)}, 0")
    bookkeeping()
    bookkeeping2()
    A(f"s_mov_b32 {s(sRet)}, 0")
    for _ in range(opts.get('rdelay', 0)):
        A(f"s_sleep 1")
    red_issue(X)
    if two:
        red_issue(Y)
        A.label(Lred)
        red_check(X, 8)
        red_issue(X)
        red_check(Y, 8)
        red_issue(Y)
    else:
        A.label(Lred)
        red_check(X, 0)
        red_issue(X)
    A(f"s_cmp_lg_u32 {s(sDEAD)}, 0")
    A(f"s_cbranch_scc1 {Lredok}")
    A(f"s_cmp_lt_u32 {s(sRet)}, {RED_LIMIT}")
    A(f"s_cbranch_scc1 {Lred}")
    A(f"s_mov_b32 {s(sDEAD)}, 1")
    A.label(Lredok)
    A(f"buffer_store_dwordx2 {v(RA+4,2)}, {v(vMst)}, {s(S_WS,4)}, {s(sSlotM)} offen{st}")
    if rp:
        lstamp(A, 6, True)
    if cp:
        A(f"s_add_u32 {s(sCP0)}, {s(sCP0)}, {s(sRet)}")
    A(f"s_branch {Lar}")
    A.label(Lnr)
    Lfok = A.new_label("fok")
    Lfsp = A.new_label("fsp")
    A(f"s_mov_b32 m0, {s(sM0K)}")
    A(f"s_add_u32 {s(sKn)}, {s(sKn)}, 0x80000")
    for i in range(3):
        A(f"buffer_load_dwordx4 {v(vL16)}, {s(S_WS,4)}, {s(sKn)} offen offset:{1024*i} lds")
    if rp:
        A(f"s_waitcnt vmcnt(1)")
        lstamp(A, 2)
        A(f"s_waitcnt vmcnt(0)")
        lstamp(A, 3)
    A(f"s_mov_b32 {s(sRet)}, 0")
    A(f"s_waitcnt vmcnt(14)")
    A(f"v_readfirstlane_b32 {s(sT0)}, {v(vFlag)}")
    for i in range(6):
        A(f"v_mov_b64 {v(ACC+2*i,2)}, 0")
    A(f"s_cmp_ge_u32 {s(sT0)}, {s(sNeed)}")
    A(f"s_cbranch_scc1 {Lfok}")
    A(f"s_cmp_lg_u32 {s(sDEAD)}, 0")
    A(f"s_cbranch_scc1 {Lfok}")
    A(f"s_mov_b32 {s(sRet)}, 0")
    A.label(Lfsp)
    A(f"buffer_load_dword {v(vFlag)}, off, {s(S_WS,4)}, {s(sFo)} sc1")
    A(f"s_waitcnt vmcnt(0)")
    A(f"v_readfirstlane_b32 {s(sT0)}, {v(vFlag)}")
    A(f"s_cmp_ge_u32 {s(sT0)}, {s(sNeed)}")
    A(f"s_cbranch_scc1 {Lfok}")
    A(f"s_sleep 1")
    A(f"s_add_u32 {s(sRet)}, {s(sRet)}, 1")
    A(f"s_cmp_lt_u32 {s(sRet)}, {SPIN_LIMIT}")
    A(f"s_cbranch_scc1 {Lfsp}")
    A(f"s_mov_b32 {s(sDEAD)}, 1")
    A.label(Lfok)
    if opts.get('steplog'):
        Lsl = A.new_label("sl")
        A(f"s_cmp_lg_u32 {s(sWAVE)}, 1")
        A(f"s_cbranch_scc1 {Lsl}")
        A(f"s_memrealtime s[62:63]")
        A(f"s_lshl_b32 {s(sT0)}, {s(sH)}, 6")
        A(f"s_add_u32 {s(sT0)}, {s(sT0)}, {s(sS)}")
        A(f"s_lshl_b32 {s(sT0)}, {s(sT0)}, 3")
        A(f"s_add_u32 {s(sT0)}, {s(sT0)}, {WS_T + 0x8000:#x}")
        A(f"s_waitcnt lgkmcnt(0)")
        A(f"v_mov_b32 {v(vT0)}, s62")
        A(f"v_mov_b32 {v(vT1)}, {s(sRet)}")
        A(f"s_mov_b64 exec, 1")
        A(f"buffer_store_dwordx2 {v(vT0,2)}, off, {s(S_WS,4)}, {s(sT0)}")
        A(f"s_mov_b64 exec, -1")
        A.label(Lsl)
    bookkeeping()
    bookkeeping2()
    A.label(Lar)
    A(f"s_barrier")
    if cp:
        lstamp(A, 8)
    Lcon = A.new_label("con")
    Lconok = A.new_label("conok")
    gtwo = opts.get('gtwo', 1)

    def con_issue(R):
        A(f"buffer_load_dwordx4 {v(R,4)}, {v(vL16)}, {s(S_WS,4)}, {s(sGat)} offen sc1")
        A(f"buffer_load_dwordx4 {v(R+4,4)}, {v(vL16)}, {s(S_WS,4)}, {s(sGat)} offen offset:1024 sc1")

    def con_check(R, younger):
        A(f"s_waitcnt vmcnt({younger})")
        A(f"ds_write_b128 {v(vMw)}, {v(R,4)}")
        A(f"v_max3_u32 {v(vT0)}, {v(R)}, {v(R+1)}, {v(R+2)}")
        A(f"v_max3_u32 {v(vT1)}, {v(R+3)}, {v(R+4)}, {v(R+5)}")
        A(f"ds_write_b128 {v(vMw)}, {v(R+4,4)} offset:1024")
        A(f"v_max3_u32 {v(vT0)}, {v(vT0)}, {v(R+6)}, {v(R+7)}")
        A(f"v_max_u32 {v(vT0)}, {v(vT0)}, {v(vT1)}")
        A(f"v_cmp_eq_u32 vcc, -1, {v(vT0)}")
        A(f"s_add_u32 {s(sRet)}, {s(sRet)}, 1")
        A(f"s_cbranch_vccz {Lconok}")
    A(f"s_mov_b32 {s(sRet)}, 0")
    for _ in range(opts.get('gdelay', 0)):
        A(f"s_sleep 1")
    con_issue(H0)
    if gtwo:
        for _ in range(opts.get('gspace', 1)):
            A(f"s_sleep 1")
        con_issue(H1)
        A.label(Lcon)
        con_check(H0, 2)
        con_issue(H0)
        con_check(H1, 2)
        con_issue(H1)
    else:
        A.label(Lcon)
        con_check(H0, 0)
        con_issue(H0)
    A(f"s_cmp_lg_u32 {s(sDEAD)}, 0")
    A(f"s_cbranch_scc1 {Lconok}")
    A(f"s_cmp_lt_u32 {s(sRet)}, {RED_LIMIT}")
    A(f"s_cbranch_scc1 {Lcon}")
    A(f"s_mov_b32 {s(sDEAD)}, 1")
    A.label(Lconok)
    if cp:
        A(f"s_add_u32 {s(sCP1)}, {s(sCP1)}, {s(sRet)}")
    A(f"s_waitcnt lgkmcnt(0)")
    A(f"s_barrier")
    if cp:
        lstamp(A, 9)
    A(f"s_branch {Lstep}")
    A.label(Llast)
    A(f"s_waitcnt vmcnt(0) lgkmcnt(0)")
    if cp:
        for i in range(1, 10):
            A(f"s_mov_b32 s{92+i}, s{16+2*(i-1) if i < 9 else 62}")
        A(f"s_lshl_b32 {s(sCP1)}, {s(sCP1)}, 16")
        A(f"s_or_b32 s92, {s(sCP0)}, {s(sCP1)}")
        A("s_branch L_flush")
    A(f"s_branch L_role_end")


def gen_chain(A, opts):
    global RT
    RT = bool(opts.get('rt'))
    vL = 13
    A(f"s_mov_b32 {s(sH)}, {s(sIDX)}")
    A(f"v_and_b32 {v(vL)}, 63, v0")
    mk_srd(A, S_A, P_WQ, 512 * 8192)
    mk_srd(A, S_B, P_WK, 512 * 8192)
    mk_srd(A, S_C, P_WV, 512 * 8192)
    mk_srd(A, S_D, P_WO, 4096 * 1024)
    A(f"v_lshlrev_b32 {v(vL16)}, 4, {v(vL)}")
    for i in range(4):
        A(f"v_mov_b32 {v(vSEL+i)}, -1")
    A(f"s_lshl_b32 {s(sT0)}, {s(sH)}, 13")
    A(f"s_lshl_b32 {s(sT1)}, {s(sWAVE)}, 11")
    A(f"s_add_u32 {s(sT0)}, {s(sT0)}, {s(sT1)}")
    for sl in range(4):
        A(f"s_add_u32 {s(sT1)}, {s(sT0)}, {sl*262144}")
        A(f"buffer_store_dwordx4 {v(vSEL,4)}, {v(vL16)}, {s(S_WS,4)}, {s(sT1)} offen sc1")
        A(f"buffer_store_dwordx4 {v(vSEL,4)}, {v(vL16)}, {s(S_WS,4)}, {s(sT1)} offen offset:1024 sc1")
    A(f"s_lshl_b32 {s(sT2)}, {s(sH)}, 8")
    A(f"v_add_u32 {v(vT0)}, {s(sT2)}, {v(vL16)}")
    A(f"v_cmp_gt_u32 vcc, 16, {v(vL)}")
    A(f"v_mov_b32 {v(vT1)}, {OOB:#x}")
    A.nop(1)
    A(f"v_cndmask_b32 {v(vT0)}, {v(vT1)}, {v(vT0)}, vcc")
    for sl in range(4):
        A(f"s_mov_b32 {s(sT1)}, {WS_M + sl*8192:#x}")
        A(f"buffer_store_dwordx4 {v(vSEL,4)}, {v(vT0)}, {s(S_WS,4)}, {s(sT1)} offen sc1")
    for i in range(4):
        A(f"v_mov_b32 {v(X+i)}, 0")
    A(f"v_cmp_gt_u32 vcc, 16, {v(vL)}")
    A(f"v_mov_b32 {v(X+5)}, {OOB:#x}")
    A.nop(1)
    A(f"v_cndmask_b32 {v(X+4)}, {v(X+5)}, {v(vL16)}, vcc")
    A(f"s_lshl_b32 {s(sT1)}, {s(sH)}, 8")
    A(f"s_add_u32 {s(sT1)}, {s(sT1)}, {WS_OF:#x}")
    A(f"buffer_store_dwordx4 {v(X,4)}, {v(X+4)}, {s(S_WS,4)}, {s(sT1)} offen sc1")
    A(f"v_cmp_gt_u32 vcc, 8, {v(vL)}")
    A.nop(2)
    A(f"v_cndmask_b32 {v(X+4)}, {v(X+5)}, {v(vL16)}, vcc")
    A(f"s_lshl_b32 {s(sT1)}, {s(sH)}, 7")
    A(f"s_add_u32 {s(sT1)}, {s(sT1)}, {WS_KVF:#x}")
    A(f"buffer_store_dwordx4 {v(X,4)}, {v(X+4)}, {s(S_WS,4)}, {s(sT1)} offen sc1")
    lane_expr(A, vMst, vL, [(5, 1, 128), (0, 3, 16), (4, 1, 8)], sregs=[sT2])
    A(f"v_and_b32 {v(vT1)}, 8, {v(vL)}")
    A(f"v_lshlrev_b32 {v(vT1)}, 27, {v(vT1)}")
    A(f"v_add_u32 {v(vMst)}, {v(vMst)}, {v(vT1)}")
    A(f"s_cmp_eq_u32 {s(sWAVE)}, 0")
    Lw0 = A.new_label("w0")
    A(f"s_cbranch_scc1 {Lw0}")
    A(f"v_mov_b32 {v(vMst)}, {v(vT0)}")
    A(f"s_cmp_eq_u32 {s(sWAVE)}, 3")
    A(f"s_cbranch_scc1 {Lw0}")
    A(f"s_lshl_b32 {s(sT0)}, {s(sH)}, 13")
    A(f"v_add_u32 {v(vMst)}, {s(sT0)}, {v(vL16)}")
    A.label(Lw0)
    A(f"s_getreg_b32 {s(sT0)}, hwreg(HW_REG_XCC_ID, 0, 4)")
    A(f"s_lshl_b32 {s(sT0)}, 1, {s(sT0)}")
    A(f"v_mov_b32 {v(vT0)}, {s(sT0)}")
    A(f"v_mov_b32 {v(vT1)}, 0")
    A(f"s_waitcnt vmcnt(0)")
    A(f"s_barrier")
    Lci = A.new_label("ci")
    A(f"s_cmp_lg_u32 {s(sWAVE)}, 0")
    A(f"s_cbranch_scc1 {Lci}")
    A(f"s_mov_b64 exec, 1")
    A(f"buffer_atomic_or {v(vT0)}, {v(vT1)}, {s(S_DBG,4)}, 0 offen offset:{D_XCCMASK*4} sc1")
    A(f"s_waitcnt vmcnt(0)")
    A(f"v_mov_b32 {v(vT0)}, 1")
    A(f"buffer_atomic_add {v(vT0)}, {v(vT1)}, {s(S_DBG,4)}, 0 offen offset:{D_CHECKIN*4} sc1")
    A(f"s_mov_b64 exec, -1")
    A.label(Lci)
    lane_expr(A, vAm, vL, [(4, 2, 128), (0, 3, 16)])
    A(f"v_mov_b32 {v(vIdx)}, 0x4444")
    A(f"v_mov_b32 {v(vT0)}, 0xeeee")
    A(f"v_and_b32 {v(vT1)}, 8, {v(vL)}")
    A(f"v_cmp_ne_u32 vcc, 0, {v(vT1)}")
    A.nop(2)
    A(f"v_cndmask_b32 {v(vIdx)}, {v(vIdx)}, {v(vT0)}, vcc")
    A(f"s_lshl_b32 {s(sT0)}, {s(sWAVE)}, 9")
    lane_expr(A, vQKw, vL, [(5, 1, 256), (0, 4, 16), (4, 1, 8)], sregs=[sT0])
    lane_expr(A, vQKr, vL, [(5, 1, 256), (4, 1, 64), (2, 2, 16), (0, 1, 8)])
    A(f"s_lshl_b32 {s(sT0)}, {s(sWAVE)}, 9")
    lane_expr(A, vOw, vL, [(4, 2, 128), (0, 3, 16)], const=O_OFF, sregs=[sT0])
    A(f"s_lshl_b32 {s(sT0)}, {s(sWAVE)}, 11")
    A(f"s_add_u32 {s(sT0)}, {s(sT0)}, {MEM_OFF}")
    A(f"v_add_u32 {v(vMw)}, {s(sT0)}, {v(vL16)}")
    A(f"s_lshl_b32 {s(sT0)}, {s(sWAVE)}, 15")
    A(f"s_add_u32 {s(sT0)}, {s(sT0)}, {WO_OFF}")
    A(f"v_add_u32 {v(vWo)}, {s(sT0)}, {v(vL16)}")
    A(f"s_lshl_b32 {s(sT0)}, {s(sWAVE)}, 16")
    A(f"s_lshl_b32 {s(sT1)}, {s(sH)}, 8")
    lane_expr(A, vPst, vL, [(5, 1, 8192), (0, 4, 16), (4, 1, 8)], sregs=[sT0, sT1])
    A(f"s_lshl_b32 {s(sT0)}, {s(sH)}, 13")
    A(f"v_add_u32 {v(vRed)}, {s(sT0)}, {v(vL16)}")
    A(f"s_and_b32 {s(sT1)}, {s(sWAVE)}, 1")
    A(f"s_lshl_b32 {s(sT1)}, {s(sT1)}, 13")
    A(f"s_lshl_b32 {s(sT0)}, {s(sH)}, 14")
    A(f"s_add_u32 {s(sT0)}, {s(sT0)}, {s(sT1)}")
    A(f"v_lshlrev_b32 {v(vPf)}, 6, {v(vL)}")
    A(f"v_add_u32 {v(vPf)}, {s(sT0)}, {v(vPf)}")
    A(f"s_mov_b32 {s(sMLo)}, -1")
    A(f"s_mov_b32 {s(sMLo+1)}, 0")
    A(f"s_mov_b32 {s(sMHi)}, 0")
    A(f"s_mov_b32 {s(sMHi+1)}, -1")
    A(f"s_mov_b32 {s(sC)}, {f32_hex(SCALE_C):#x}")
    A(f"s_mov_b32 {s(sNC)}, {f32_hex(-SCALE_C):#x}")
    A(f"v_mov_b32 {v(vHO)}, 0x3f003f00")
    A(f"v_mov_b32 {v(vHO+1)}, 0x3f003f00")
    for i in range(2, 6):
        A(f"v_mov_b32 {v(vHO+i)}, 0x3f803f80")
    A(f"v_mov_b32 {v(vBM+2)}, 0")
    A(f"v_mov_b32 {v(vBM+3)}, 0")
    Lsel = A.new_label("sel")
    A(f"s_cmp_lg_u32 {s(sWAVE)}, 0")
    A(f"s_cbranch_scc1 {Lsel}")
    A(f"v_and_b32 {v(vT0)}, 15, {v(vL)}")
    A(f"v_mov_b32 {v(vS0)}, 0x3f80")
    A(f"v_mov_b32 {v(vS1)}, 0x3f800000")
    A(f"v_and_b32 {v(vT1)}, 1, {v(vT0)}")
    A(f"v_cmp_eq_u32 vcc, 1, {v(vT1)}")
    A.nop(2)
    A(f"v_cndmask_b32 {v(vS0)}, {v(vS0)}, {v(vS1)}, vcc")
    A(f"v_lshrrev_b32 {v(vT0)}, 1, {v(vT0)}")
    for i in range(4):
        A(f"v_cmp_eq_u32 vcc, {i}, {v(vT0)}")
        A.nop(2)
        A(f"v_cndmask_b32 {v(vSEL+i)}, 0, {v(vS0)}, vcc")
    A.label(Lsel)

    vWG, vWGo, vST, vTRq, vTRo, vWoW = X, X + 1, X + 2, X + 3, X + 4, X + 5
    raw_lane_off(A, vWG, vL, vT0, 8192)
    A(f"s_lshl_b32 {s(sT0)}, {s(sH)}, 8")
    A(f"s_lshl_b32 {s(sT1)}, {s(sWAVE)}, 6")
    A(f"s_add_u32 {s(sT0)}, {s(sT0)}, {s(sT1)}")
    A(f"v_add_u32 {v(vWG)}, {s(sT0)}, {v(vWG)}")
    raw_lane_off(A, vWGo, vL, vT0, 1024)
    A(f"s_lshl_b32 {s(sT0)}, {s(sH)}, 17")
    A(f"s_lshl_b32 {s(sT1)}, {s(sWAVE)}, 8")
    A(f"s_add_u32 {s(sT0)}, {s(sT0)}, {s(sT1)}")
    A(f"v_add_u32 {v(vWGo)}, {s(sT0)}, {v(vWGo)}")
    A(f"s_mul_i32 {s(sT2)}, {s(sWAVE)}, {2*STG_BUF}")
    stage_lane_addr(A, vST, vL, vT0, sT2)
    G_tr(A, vTRq, vL, 'chain_qkv', sT2)
    G_tr(A, vTRo, vL, 'chain_wo', sT2)
    A(f"v_mov_b32 {v(vWoW)}, {v(vWo)}")
    blocks = []
    pool = [X + 8 + 8 * i for i in range(11)]
    def post_wo(cg, ks, rg):
        def f(A):
            A(f"s_waitcnt lgkmcnt(0)")
            o = (cg * 4 + ks) * 2048
            A(f"ds_write_b128 {v(vWoW)}, {v(rg,4)} offset:{o}")
            A(f"ds_write_b128 {v(vWoW)}, {v(rg+4,4)} offset:{o+1024}")
        return f
    wo_blocks = []
    for cg in range(4):
        for ks in range(4):
            rg = pool[len(wo_blocks) % len(pool)]
            wo_blocks.append(dict(srd=S_D, voff=vWGo, soff=[(32 * ks) * 1024 + cg * 64, (32 * ks + 16) * 1024 + cg * 64], raw=('v', rg), dst=('v', rg),
                                  vtr=vTRo, imm=TR_IMM['chain_wo'], post=post_wo(cg, ks, rg)))
    qkv = []
    for (srd, dst) in ((S_A, ('a', 0)), (S_B, ('a', 128)), (S_C, ('v', 128))):
        for b in range(16):
            qkv.append(dict(srd=srd, voff=vWG, soff=[(32 * b) * 8192, (32 * b + 16) * 8192], raw=off(dst, 8 * b), dst=off(dst, 8 * b),
                            vtr=vTRq, imm=TR_IMM['chain_qkv']))
    blocks = wo_blocks[:11] + qkv + wo_blocks[11:]
    stamp(A, 1) if not opts.get('cprof') else None
    load_blocks(A, blocks, vST, window=31)
    stamp(A, 2) if not opts.get('cprof') else None
    A(f"s_barrier")
    mk_srd(A, S_A, P_MEM0, 8192)
    A(f"s_lshl_b32 {s(sT0)}, {s(sWAVE)}, 7")
    lane_expr(A, vT0, vL, [(0, 3, 1024), (3, 3, 16)], sregs=[sT0])
    A(f"buffer_load_dwordx4 {v(X,4)}, {v(vT0)}, {s(S_A,4)}, 0 offen")
    A(f"buffer_load_dwordx4 {v(X+4,4)}, {v(vT0)}, {s(S_A,4)}, 0 offen offset:512")
    A(f"s_lshl_b32 {s(sT0)}, {s(sWAVE)}, 10")
    A(f"s_add_u32 {s(sT0)}, {s(sT0)}, {MEM_OFF}")
    A(f"v_add_u32 {v(vT0)}, {s(sT0)}, {v(vL16)}")
    A(f"s_waitcnt vmcnt(0)")
    A(f"ds_write_b128 {v(vT0)}, {v(X,4)}")
    A(f"ds_write_b128 {v(vT0)}, {v(X+4,4)} offset:4096")
    for i in range(12):
        A(f"v_mov_b32 {v(ACC+i)}, 0")
    A(f"s_lshl_b32 {s(sW2k)}, {s(sWAVE)}, 11")
    A(f"s_sub_u32 {s(sT0)}, {s(sWAVE)}, 1")
    A(f"s_lshl_b32 {s(sT0)}, {s(sT0)}, 10")
    A(f"s_cmp_eq_u32 {s(sWAVE)}, 0")
    A(f"s_cselect_b32 {s(sW1k)}, {OOB:#x}, {s(sT0)}")
    A(f"s_add_u32 {s(sRaA)}, {s(sW1k)}, 6144")
    A(f"s_mov_b32 {s(sRaM)}, 262144")
    A(f"s_cmp_eq_u32 {s(sWAVE)}, 3")
    A(f"s_cselect_b32 {s(sRaA)}, {WS_M:#x}, {s(sRaA)}")
    A(f"s_cselect_b32 {s(sRaM)}, 8192, {s(sRaM)}")
    A(f"s_lshl_b32 {s(sFb)}, {s(sH)}, 7")
    A(f"s_add_u32 {s(sFb)}, {s(sFb)}, {WS_KVF:#x}")
    A(f"s_mov_b32 {s(sT5)}, {s(sFb)}")
    A(f"s_cmp_eq_u32 {s(sWAVE)}, 0")
    A(f"s_cselect_b32 {s(sFb)}, {OOB:#x}, {s(sFb)}")
    A(f"s_cmp_ge_u32 {s(sWAVE)}, 2")
    A(f"s_mov_b32 {s(sT0)}, {OOB:#x}")
    A(f"s_mov_b32 {s(sPf)}, {WS_KX + 0x80000:#x}")
    A(f"s_cselect_b32 {s(sPf)}, {s(sPf)}, {s(sT0)}")
    A(f"s_sub_u32 {s(sT0)}, {s(sWAVE)}, 1")
    A(f"s_mul_i32 {s(sT0)}, {s(sT0)}, 3072")
    A(f"s_add_u32 {s(sM0K)}, {s(sT0)}, {KX_OFF}")
    A(f"s_lshl_b32 {s(sKn)}, {s(sH)}, 14")
    A(f"s_add_u32 {s(sKn)}, {s(sKn)}, {s(sT0)}")
    A(f"s_add_u32 {s(sKn)}, {s(sKn)}, {WS_KX:#x}")
    A(f"s_add_u32 {s(sM0V)}, {s(sW2k)}, {VX_OFF}")
    A(f"s_lshl_b32 {s(sKV)}, {s(sH)}, 14")
    A(f"s_add_u32 {s(sKV)}, {s(sKV)}, {s(sW2k)}")
    A(f"s_add_u32 {s(sKV)}, {s(sKV)}, {WS_KX:#x}")
    A(f"s_lshl_b32 {s(sKM)}, {s(sH)}, 12")
    A(f"s_add_u32 {s(sKM)}, {s(sKM)}, {WS_KM:#x}")
    A(f"s_mov_b32 {s(sJ4)}, 8")
    A(f"s_mov_b32 {s(sCn)}, 1")
    A(f"s_mov_b32 {s(sNeed)}, 1")
    A(f"s_add_u32 {s(sFo)}, {s(sFb)}, 8")
    A(f"v_mov_b32 {v(vT1)}, 0")
    A(f"s_mov_b32 {s(sT2)}, {D_CHECKIN*4}")
    A(f"s_mov_b32 {s(sT3)}, 0")
    wait_byte(A, vFlag, vT1, sT2, sT3, 32, "ci", sleep=1)
    A(f"buffer_load_dword {v(vFlag)}, {v(vT1)}, {s(S_DBG,4)}, 0 offen offset:{D_XCCMASK*4} sc1")
    A(f"s_waitcnt vmcnt(0)")
    A(f"v_readfirstlane_b32 {s(sT0)}, {v(vFlag)}")
    A(f"s_bcnt1_i32_b32 {s(sFastF)}, {s(sT0)}")
    for j in range(2):
        Lp = A.new_label("kvp")
        Ld = A.new_label("kvd")
        A(f"s_mov_b32 {s(sRet)}, 0")
        A(f"s_cmp_lg_u32 {s(sDEAD)}, 0")
        A(f"s_cbranch_scc1 {Ld}")
        A.label(Lp)
        A(f"buffer_load_dword {v(vFlag)}, off, {s(S_WS,4)}, {s(sT5)} offset:{4*j} sc1")
        A(f"s_waitcnt vmcnt(0)")
        A(f"v_readfirstlane_b32 {s(sT0)}, {v(vFlag)}")
        A(f"s_cmp_ge_u32 {s(sT0)}, 1")
        A(f"s_cbranch_scc1 {Ld}")
        A(f"s_sleep 1")
        A(f"s_add_u32 {s(sRet)}, {s(sRet)}, 1")
        A(f"s_cmp_lt_u32 {s(sRet)}, {SPIN_LIMIT}")
        A(f"s_cbranch_scc1 {Lp}")
        A(f"s_mov_b32 {s(sDEAD)}, 1")
        A.label(Ld)
    Lk0 = A.new_label("k0")
    A(f"s_cmp_eq_u32 {s(sWAVE)}, 0")
    A(f"s_cbranch_scc1 {Lk0}")
    A(f"s_mov_b32 m0, {s(sM0K)}")
    A(f"s_nop 0")
    for i in range(3):
        A(f"buffer_load_dwordx4 {v(vL16)}, {s(S_WS,4)}, {s(sKn)} offen offset:{1024*i} lds")
    A.label(Lk0)
    A(f"s_mov_b32 {s(sS)}, 0")
    A(f"s_waitcnt vmcnt(0) lgkmcnt(0)")
    A(f"s_barrier")
    stamp(A, 3) if not opts.get('cprof') else None
    if opts.get('cprof'):
        A(f"s_mov_b32 {s(sCP0)}, 0")
        A(f"s_mov_b32 {s(sCP1)}, 0")
    A(f"s_cmp_eq_u32 {s(sFastF)}, 1")
    if opts.get('forceslow'):
        A(f"s_branch L_step_s")
    A(f"s_cbranch_scc0 L_step_s")
    gen_step(A, True, opts)
    gen_step(A, False, opts)


def G_tr(A, vD, vL, kind, base_sreg):
    tr_lane_addr(A, vD, vL, vT0, vS0, kind, base_sreg=base_sreg)
```

```python
from dsl import *
import gen as G
from gen import *
from gen_chain2 import f32_hex, LOG2E


def gen_out(A, opts):
    A.comment("==== role OUT ====")
    sPar, sSh, sC_, sSeg, sNext, sDelta, sOff, sShf, sBlk, sCnt, sSO = 44, 45, 46, 47, 48, 49, 50, 51, 52, 53, 54
    vWG, vST, vTR, vHst = 5, 6, 7, 8
    ACC = 64
    EP = 112
    xg = XG(A, sDelta)
    vL, vL16, vZero, vTmp, vT1, vT2 = xg.vL, xg.vL16, xg.vZero, xg.vTmp, xg.vT1, xg.vT2
    A(f"s_sub_u32 {s(sPar)}, {s(sXCD)}, 1")
    A(f"s_lshr_b32 {s(sSh)}, {s(sIDX)}, 4")
    A(f"s_and_b32 {s(sC_)}, {s(sIDX)}, 15")
    xg.setup()
    STG = 80 * 1024
    A(f"s_mul_i32 {s(sT2)}, {s(sWAVE)}, {2*STG_BUF}")
    A(f"s_add_u32 {s(sT2)}, {s(sT2)}, {STG}")
    stage_lane_addr(A, vST, vL, vT1, sT2)
    Lph2 = A.new_label("out_ph2")
    A(f"s_cmp_gt_u32 {s(sC_)}, 10")
    A(f"s_cbranch_scc1 {Lph2}")
    mk_srd(A, S_A, P_W1, 512 * 2752)
    mk_srd(A, S_B, P_GATE, 1024)
    A(f"s_lshl_b32 {s(sBlk)}, {s(sC_)}, 2")
    A(f"s_add_u32 {s(sBlk)}, {s(sBlk)}, {s(sWAVE)}")
    A(f"s_lshl_b32 {s(sSeg)}, {s(sSh)}, 1")
    A(f"s_add_u32 {s(sSeg)}, {s(sSeg)}, {s(sPar)}")
    xg.issue_x(sSeg)
    A(f"s_waitcnt vmcnt(0)")
    xg.write_x()
    tr_lane_addr(A, vTR, vL, vT1, vT2, 'k16', base_sreg=sT2)
    Lgate = A.new_label("gatew")
    Lwdone = A.new_label("wdone")
    A(f"s_cmp_eq_u32 {s(sBlk)}, 43")
    A(f"s_cbranch_scc1 {Lgate}")
    raw_lane_off(A, vWG, vL, vT1, 2752)
    A(f"s_lshl_b32 {s(sT0)}, {s(sBlk)}, 6")
    A(f"v_add_u32 {v(vWG)}, {s(sT0)}, {v(vWG)}")
    blocks = []
    for b in range(16):
        blocks.append(dict(srd=S_A, voff=vWG, soff=[(32 * b) * 2752, (32 * b + 16) * 2752], raw=('a', 8 * b), dst=('a', 8 * b),
                           vtr=vTR, imm=TR_IMM['k16']))
    load_blocks(A, blocks, vST, window=16)
    A(f"s_branch {Lwdone}")
    A.label(Lgate)
    A(f"v_lshrrev_b32 {v(vWG)}, 5, {v(vL)}")
    A(f"v_lshlrev_b32 {v(vWG)}, 4, {v(vWG)}")
    A(f"v_and_b32 {v(vT1)}, 31, {v(vL)}")
    A(f"v_lshlrev_b32 {v(vT1)}, 12, {v(vT1)}")
    A(f"v_add_u32 {v(vWG)}, {v(vWG)}, {v(vT1)}")
    for kk in range(32):
        A(f"buffer_load_dwordx4 {a(4*kk,4)}, {v(vWG)}, {s(S_B,4)}, 0 offen offset:{kk*32}")
    A(f"s_waitcnt vmcnt(0)")
    A.label(Lwdone)
    xg.after_weights()
    A(f"s_lshl_b32 {s(sT0)}, {s(sBlk)}, 10")
    lane_expr(A, vHst, vL, [(4, 1, 43 * 1024), (5, 1, 256), (0, 4, 16)], sregs=[sT0])
    Lloop = A.new_label("ffn_loop")
    A.label(Lloop)
    A(f"s_add_u32 {s(sNext)}, {s(sSeg)}, 4")
    xg.issue_x(sNext)

    def mf(kk, f):
        c = "0" if kk == 0 else v(ACC, 16)
        A(f"v_mfma_f32_32x32x16_bf16 {v(ACC,16)}, {a(4*kk,4)}, {f}, {c}")
    xg.body(mf)
    A.nop(12)
    Lge = A.new_label("gate_ep")
    Lepd = A.new_label("ep_done")
    A(f"s_cmp_eq_u32 {s(sBlk)}, 43")
    A(f"s_cbranch_scc1 {Lge}")
    A(f"s_mov_b32 {s(sT0)}, {f32_hex(-LOG2E):#x}")
    T = 80
    for i in range(16):
        A(f"v_mul_f32 {v(T+i)}, {s(sT0)}, {v(ACC+i)}")
    for i in range(16):
        A(f"v_exp_f32 {v(T+i)}, {v(T+i)}")
    for i in range(16):
        A(f"v_add_f32 {v(T+i)}, 1.0, {v(T+i)}")
    for i in range(16):
        A(f"v_rcp_f32 {v(T+i)}, {v(T+i)}")
    for i in range(16):
        A(f"v_mul_f32 {v(ACC+i)}, {v(ACC+i)}, {v(T+i)}")
    for i in range(8):
        A(f"v_cvt_pk_bf16_f32 {v(EP+i)}, {v(ACC+2*i)}, {v(ACC+2*i+1)}")
    A(f"s_mul_i32 {s(sT0)}, {s(sSeg)}, {HX_STRIDE}")
    A(f"s_add_u32 {s(sT0)}, {s(sT0)}, {WS_HX:#x}")
    for c in range(2):
        A(f"buffer_store_dwordx4 {v(EP+4*c,4)}, {v(vHst)}, {s(S_WS,4)}, {s(sT0)} offen offset:{c*512} sc1")
    A(f"s_branch {Lepd}")
    A.label(Lge)
    A(f"s_mov_b32 {s(sT0)}, {f32_hex(-LOG2E):#x}")
    A(f"v_mul_f32 {v(vT1)}, {s(sT0)}, {v(ACC)}")
    A(f"v_exp_f32 {v(vT1)}, {v(vT1)}")
    A.nop(1)
    A(f"v_add_f32 {v(vT1)}, 1.0, {v(vT1)}")
    A(f"v_rcp_f32 {v(vT1)}, {v(vT1)}")
    A(f"v_lshlrev_b32 {v(vT2)}, 2, {v(vL)}")
    A(f"s_lshl_b32 {s(sT0)}, {s(sSeg)}, 7")
    A(f"s_add_u32 {s(sT0)}, {s(sT0)}, {WS_G:#x}")
    A(f"s_mov_b64 exec, 0xffffffff")
    A(f"buffer_store_dword {v(vT1)}, {v(vT2)}, {s(S_WS,4)}, {s(sT0)} offen sc1")
    A(f"s_mov_b64 exec, -1")
    A.label(Lepd)
    xg.toggle()
    A(f"s_waitcnt lgkmcnt(0)")
    A(f"s_barrier")
    A(f"s_mov_b32 {s(sSeg)}, {s(sNext)}")
    A(f"s_cmp_lt_u32 {s(sSeg)}, 64")
    A(f"s_cbranch_scc1 {Lloop}")
    A(f"s_waitcnt vmcnt(0)")
    A(f"s_barrier")
    Lnf = A.new_label("ffn_nf")
    A(f"s_cmp_lg_u32 {s(sWAVE)}, 0")
    A(f"s_cbranch_scc1 {Lnf}")
    A(f"s_lshl_b32 {s(sOff)}, {s(sPar)}, 2")
    A(f"s_add_u32 {s(sOff)}, {s(sOff)}, {D_FFN*4}")
    A(f"s_mov_b32 {s(sShf)}, 0")
    signal_byte(A, None, vZero, sOff, sShf, vTmp)
    A.label(Lnf)
    A.label(Lph2)
    stamp(A, 1)
    mk_srd(A, S_A, P_WO, 4096 * 1024)
    mk_srd(A, S_B, P_W2, 1376 * 1024)
    mk_srd(A, S_C, P_OUT, 2048 * 1024)
    vWG2, vTR2 = 8, 9
    raw_lane_off(A, vWG, vL, vT1, 1024)
    A(f"s_lshl_b32 {s(sT0)}, {s(sC_)}, 6")
    A(f"v_add_u32 {v(vWG)}, {s(sT0)}, {v(vWG)}")
    A(f"s_mul_i32 {s(sT0)}, {s(sWAVE)}, {11*32*1024}")
    A(f"v_add_u32 {v(vWG2)}, {s(sT0)}, {v(vWG)}")
    A(f"s_lshl_b32 {s(sT0)}, {s(sWAVE)}, 20")
    A(f"v_add_u32 {v(vWG)}, {s(sT0)}, {v(vWG)}")
    A(f"s_mul_i32 {s(sT2)}, {s(sWAVE)}, {2*STG_BUF}")
    A(f"s_add_u32 {s(sT2)}, {s(sT2)}, {STG}")
    tr_lane_addr(A, vTR, vL, vT1, vT2, 'out_wo', base_sreg=sT2)
    tr_lane_addr(A, vTR2, vL, vT1, vT2, 'out_w2', base_sreg=sT2)
    blocks = []
    for b in range(11):
        blocks.append(dict(srd=S_B, voff=vWG2, soff=[(32 * b) * 1024, (32 * b + 16) * 1024], raw=('v', 128 + 8 * b), dst=('v', 128 + 8 * b),
                           vtr=vTR2, imm=TR_IMM['out_w2']))
    for b in range(32):
        blocks.append(dict(srd=S_A, voff=vWG, soff=[(32 * b) * 1024, (32 * b + 16) * 1024], raw=('a', 8 * b), dst=('a', 8 * b),
                           vtr=vTR, imm=TR_IMM['out_wo']))
    load_blocks(A, blocks, vST, window=31)
    stamp(A, 2)
    A(f"s_lshl_b32 {s(sOff)}, {s(sPar)}, 2")
    A(f"s_add_u32 {s(sOff)}, {s(sOff)}, {D_FFN*4}")
    A(f"s_mov_b32 {s(sShf)}, 0")
    wait_byte(A, vTmp, vZero, sOff, sShf, 22, "ffn", sleep=4)
    A(f"s_mov_b32 {s(sOff)}, {D_CHECKIN*4}")
    wait_byte(A, vTmp, vZero, sOff, sShf, 32, "oci", sleep=4)
    A(f"s_barrier")
    vOF = 11
    A(f"v_and_b32 {v(vOF)}, 31, {v(vL)}")
    A(f"v_lshlrev_b32 {v(vOF)}, 2, {v(vOF)}")
    stamp(A, 3)
    aA, aB = 16, 24
    bufs = [32 + 4 * i for i in range(24)] + [216 + 4 * i for i in range(10)]
    vRw, vRr, vOut, vG = 5, 6, 7, 8
    RED = 0
    A(f"s_lshl_b32 {s(sT0)}, {s(sWAVE)}, 12")
    A(f"v_add_u32 {v(vRw)}, {s(sT0)}, {v(vL16)}")
    A(f"s_and_b32 {s(sT0)}, {s(sWAVE)}, 1")
    A(f"s_lshl_b32 {s(sT0)}, {s(sT0)}, 10")
    A(f"v_add_u32 {v(vRr)}, {s(sT0)}, {v(vL16)}")
    A(f"s_lshl_b32 {s(sT0)}, {s(sSh)}, 14")
    A(f"s_lshl_b32 {s(sT1)}, {s(sC_)}, 6")
    A(f"s_add_u32 {s(sT0)}, {s(sT0)}, {s(sT1)}")
    A(f"s_and_b32 {s(sT1)}, {s(sWAVE)}, 1")
    A(f"s_lshl_b32 {s(sT1)}, {s(sT1)}, 5")
    A(f"s_add_u32 {s(sT0)}, {s(sT0)}, {s(sT1)}")
    lane_expr(A, vOut, vL, [(0, 4, 1024), (4, 2, 8)], sregs=[sT0])
    A(f"s_lshl_b32 {s(sT0)}, {s(sSh)}, 6")
    lane_expr(A, vG, vL, [(0, 4, 4)], sregs=[sT0])
    A(f"s_mov_b32 {s(sSeg)}, {s(sPar)}")
    Lm = A.new_label("out_loop")
    A.label(Lm)
    A(f"s_mul_i32 {s(sT2)}, {s(sSeg)}, {HX_STRIDE}")
    A(f"s_mul_i32 {s(sT3)}, {s(sSh)}, {43*1024}")
    A(f"s_add_u32 {s(sT2)}, {s(sT2)}, {s(sT3)}")
    A(f"s_mul_i32 {s(sT3)}, {s(sWAVE)}, {11*1024}")
    A(f"s_add_u32 {s(sT2)}, {s(sT2)}, {s(sT3)}")
    A(f"s_add_u32 {s(sT2)}, {s(sT2)}, {WS_HX:#x}")
    vq = Q(A, "vmcnt", 63)
    for b in range(11):
        if b in (4, 8):
            A(f"s_add_u32 {s(sT2)}, {s(sT2)}, 4096")
        if b == 10:
            A(f"s_cmp_eq_u32 {s(sWAVE)}, 3")
            A(f"s_cselect_b32 {s(sT3)}, 1024, 0")
            A(f"s_sub_u32 {s(sT2)}, {s(sT2)}, {s(sT3)}")
        vq.issue(('H', b), f"buffer_load_dwordx4 {v(bufs[b],4)}, {v(vL16)}, {s(S_WS,4)}, {s(sT2)} offen offset:{(b%4)*1024}")
    A(f"s_lshl_b32 {s(sT2)}, {s(sSeg)}, 7")
    A(f"s_add_u32 {s(sT2)}, {s(sT2)}, {WS_G:#x}")
    vq.issue('g', f"buffer_load_dword v9, {v(vG)}, {s(S_WS,4)}, {s(sT2)} offen")
    A(f"s_lshl_b32 {s(sOff)}, {s(sSeg)}, 7")
    A(f"s_add_u32 {s(sOff)}, {s(sOff)}, {WS_OF:#x}")
    Lw = A.new_label("ow")
    Lp = A.new_label("op")
    A(f"s_cmp_lg_u32 {s(sWAVE)}, 0")
    A(f"s_cbranch_scc1 {Lw}")
    A(f"s_cmp_lg_u32 {s(sDEAD)}, 0")
    A(f"s_cbranch_scc1 {Lw}")
    A(f"s_mov_b32 {s(sShf)}, 0")
    A.label(Lp)
    A(f"buffer_load_dword v10, {v(vOF)}, {s(S_WS,4)}, {s(sOff)} offen sc1")
    A(f"s_waitcnt vmcnt(0)")
    A(f"v_cmp_ne_u32 vcc, 0, v10")
    A(f"s_add_u32 {s(sShf)}, {s(sShf)}, 1")
    A(f"s_nop 0")
    A(f"s_cmp_eq_u64 vcc, -1")
    A(f"s_cbranch_scc1 {Lw}")
    A(f"s_sleep 4")
    A(f"s_cmp_lt_u32 {s(sShf)}, {SPIN_LIMIT}")
    A(f"s_cbranch_scc1 {Lp}")
    A(f"s_mov_b32 {s(sDEAD)}, 1")
    A.label(Lw)
    A(f"s_barrier")
    A(f"s_lshl_b32 {s(sSO)}, {s(sSeg)}, 5")
    A(f"s_lshl_b32 {s(sT3)}, {s(sWAVE)}, 3")
    A(f"s_add_u32 {s(sSO)}, {s(sSO)}, {s(sT3)}")
    A(f"s_lshl_b32 {s(sSO)}, {s(sSO)}, 13")
    A(f"s_lshl_b32 {s(sT3)}, {s(sSh)}, 12")
    A(f"s_add_u32 {s(sSO)}, {s(sSO)}, {s(sT3)}")
    A(f"s_add_u32 {s(sSO)}, {s(sSO)}, {WS_OX:#x}")

    obuf = {}
    def issue_o(b, buf):
        A(f"s_add_u32 {s(sT3)}, {s(sSO)}, {(b>>2)*8192}")
        vq.issue(('O', b), f"buffer_load_dwordx4 {v(buf,4)}, {v(vL16)}, {s(S_WS,4)}, {s(sT3)} offen offset:{(b&3)*1024}")
        obuf[b] = buf
    nfree = len(bufs) - 11
    for b in range(nfree):
        issue_o(b, bufs[11 + b])
    nxt = nfree
    for b in range(11):
        vq.wait(('H', b))
        for ct in range(2):
            c = "0" if b == 0 else v(aB + 4 * ct, 4)
            A(f"v_mfma_f32_16x16x32_bf16 {v(aB+4*ct,4)}, {v(128+8*b+4*ct,4)}, {v(bufs[b],4)}, {c}")
        if nxt < 32:
            issue_o(nxt, bufs[b])
            nxt += 1
    for b in range(32):
        vq.wait(('O', b))
        for ct in range(2):
            c = "0" if b == 0 else v(aA + 4 * ct, 4)
            A(f"v_mfma_f32_16x16x32_bf16 {v(aA+4*ct,4)}, {a(8*b+4*ct,4)}, {v(obuf[b],4)}, {c}")
    A.nop(8)
    A(f"ds_write_b128 {v(vRw)}, {v(aA,4)} offset:0")
    A(f"ds_write_b128 {v(vRw)}, {v(aA+4,4)} offset:1024")
    A(f"ds_write_b128 {v(vRw)}, {v(aB,4)} offset:2048")
    A(f"ds_write_b128 {v(vRw)}, {v(aB+4,4)} offset:3072")
    A(f"s_waitcnt lgkmcnt(0)")
    A(f"s_barrier")
    Lsk = A.new_label("osk")
    A(f"s_cmp_gt_u32 {s(sWAVE)}, 1")
    A(f"s_cbranch_scc1 {Lsk}")
    R = 32
    for w in range(4):
        A(f"ds_read_b128 {v(R+8*w,4)}, {v(vRr)} offset:{w*4096}")
        A(f"ds_read_b128 {v(R+8*w+4,4)}, {v(vRr)} offset:{w*4096+2048}")
    A(f"s_waitcnt lgkmcnt(0)")
    for r in range(4):
        A(f"v_add_f32 {v(R+r)}, {v(R+r)}, {v(R+8+r)}")
        A(f"v_add_f32 {v(R+16+r)}, {v(R+16+r)}, {v(R+24+r)}")
        A(f"v_add_f32 {v(R+4+r)}, {v(R+4+r)}, {v(R+12+r)}")
        A(f"v_add_f32 {v(R+20+r)}, {v(R+20+r)}, {v(R+28+r)}")
    for r in range(4):
        A(f"v_add_f32 {v(R+r)}, {v(R+r)}, {v(R+16+r)}")
        A(f"v_add_f32 {v(R+4+r)}, {v(R+4+r)}, {v(R+20+r)}")
    for r in range(4):
        A(f"v_sub_f32 {v(R+r)}, {v(R+r)}, {v(R+4+r)}")
    for r in range(4):
        A(f"v_fma_f32 {v(R+r)}, {v(R+r)}, v9, {v(R+4+r)}")
    A(f"v_cvt_pk_bf16_f32 {v(R+8)}, {v(R)}, {v(R+1)}")
    A(f"v_cvt_pk_bf16_f32 {v(R+9)}, {v(R+2)}, {v(R+3)}")
    A(f"s_lshl_b32 {s(sT2)}, {s(sSeg)}, 15")
    A(f"buffer_store_dwordx2 {v(R+8,2)}, {v(vOut)}, {s(S_C,4)}, {s(sT2)} offen")
    A.label(Lsk)
    A(f"s_add_u32 {s(sSeg)}, {s(sSeg)}, 2")
    A(f"s_cmp_lt_u32 {s(sSeg)}, 64")
    A(f"s_cbranch_scc1 {Lm}")
    A(f"s_waitcnt vmcnt(0)")
```

```python
from dsl import *
import gen as G
from gen import *
from gen_chain2 import f32_hex, SCALE_C

KML = 73728
vKr, vKw, vVm, vOst = 14, 116, 117, 118
vKw, vVm, vOst = 5, 6, 7
vOnes = 120
sMask = 16
sLo = 54
sC, sNC = 56, 57
sPo, sPs = 58, 59
RK, RQ, RV, RKM, RVM = 16, 48, 64, 80, 96
TS = 108
ONES = 120
BM = 124


def xatt_setup(A, xg, sH):
    vL = xg.vL
    vT1, vT2 = xg.vT1, xg.vT2
    A(f"s_lshl_b32 {s(sT0)}, {s(sWAVE)}, 11")
    A(f"s_add_u32 {s(sT0)}, {s(sT0)}, {KML}")
    lane_expr(A, vKr, vL, [(5, 1, 256), (4, 1, 64), (2, 2, 16), (0, 1, 8)], sregs=[sT0])
    A(f"v_add_u32 {v(vKw)}, {s(sT0)}, {v(xg.vL16)}")
    A(f"s_lshr_b32 {s(sT0)}, {s(sWAVE)}, 1")
    A(f"s_lshl_b32 {s(sT0)}, {s(sT0)}, 10")
    lane_expr(A, vVm, vL, [(0, 4, 16), (4, 1, 8)], const=2048, sregs=[sT0])
    A(f"s_and_b32 {s(sT1)}, {s(sWAVE)}, 1")
    A(f"s_lshl_b32 {s(sT1)}, {s(sT1)}, 12")
    A(f"s_lshl_b32 {s(sT0)}, {s(sT0)}, 1")
    A(f"s_add_u32 {s(sT0)}, {s(sT0)}, {s(sT1)}")
    A(f"v_add_u32 {v(vOst)}, {s(sT0)}, {v(xg.vL16)}")
    A(f"s_and_b32 {s(sT1)}, {s(sWAVE)}, 1")
    A(f"s_lshl_b32 {s(sT1)}, {s(sT1)}, 4")
    A(f"v_and_b32 {v(vT1)}, 15, {v(vL)}")
    A(f"v_lshrrev_b32 {v(vT2)}, 4, {v(vL)}")
    A(f"v_lshlrev_b32 {v(vT2)}, 2, {v(vT2)}")
    A(f"v_sub_u32 {v(vT1)}, {v(vT1)}, {v(vT2)}")
    A(f"v_add_u32 {v(vT1)}, {s(sT1)}, {v(vT1)}")
    for t in range(2):
        for r in range(4):
            A(f"v_cmp_le_i32 {s(sMask + 2*(4*t+r), 2)}, {16*t+r}, {v(vT1)}")
    A(f"s_mov_b32 {s(sLo)}, -1")
    A(f"s_mov_b32 {s(sLo+1)}, 0")
    A(f"s_mov_b32 {s(sC)}, {f32_hex(SCALE_C):#x}")
    A(f"s_mov_b32 {s(sNC)}, {f32_hex(-SCALE_C):#x}")


def xatt_task(A, xg, sH, sSegX):
    vL16, vZero, vTmp, vT1, vT2 = xg.vL16, xg.vZero, xg.vTmp, xg.vT1, xg.vT2
    sB = sT2
    A(f"s_lshl_b32 {s(sT2)}, {s(sSegX)}, 5")
    A(f"s_add_u32 {s(sT2)}, {s(sT2)}, {s(sH)}")
    A(f"s_lshl_b32 {s(sT3)}, {s(sT2)}, 13")
    A(f"s_lshl_b32 {s(sT5)}, {s(sT2)}, 14")
    A(f"s_add_u32 {s(sT4)}, {s(sT5)}, {WS_KX:#x}")
    for j in range(8):
        if j == 4:
            A(f"s_add_u32 {s(sT4)}, {s(sT4)}, 4096")
        A(f"buffer_load_dwordx4 {v(RK+4*j,4)}, {v(vL16)}, {s(S_WS,4)}, {s(sT4)} offen offset:{(j%4)*1024}")
    A(f"s_and_b32 {s(sT4)}, {s(sWAVE)}, 1")
    A(f"s_lshl_b32 {s(sT4)}, {s(sT4)}, 12")
    A(f"s_add_u32 {s(sT4)}, {s(sT4)}, {s(sT3)}")
    A(f"s_add_u32 {s(sT4)}, {s(sT4)}, {WS_QX:#x}")
    for ks in range(4):
        A(f"buffer_load_dwordx4 {v(RQ+4*ks,4)}, {v(vL16)}, {s(S_WS,4)}, {s(sT4)} offen offset:{ks*1024}")
    A(f"s_lshr_b32 {s(sT4)}, {s(sWAVE)}, 1")
    A(f"s_lshl_b32 {s(sT4)}, {s(sT4)}, 12")
    A(f"s_add_u32 {s(sT4)}, {s(sT4)}, {s(sT5)}")
    A(f"s_add_u32 {s(sT4)}, {s(sT4)}, {WS_KX + 8192:#x}")
    for p in range(4):
        A(f"buffer_load_dwordx4 {v(RV+4*p,4)}, {v(vL16)}, {s(S_WS,4)}, {s(sT4)} offen offset:{p*1024}")
    for i in range(4):
        A(f"v_mov_b32 {v(ONES+i)}, 0x3f803f80")
    A(f"v_mov_b32 {v(BM+2)}, 0")
    A(f"v_mov_b32 {v(BM+3)}, 0")
    A(f"v_mov_b32 {v(RVM+8)}, 0")
    A(f"v_mov_b32 {v(RVM+9)}, 0")
    A(f"s_lshl_b32 {s(sPo)}, {s(sT2)}, 12")
    A(f"s_add_u32 {s(sPo)}, {s(sPo)}, {WS_KM:#x}")
    Lw = A.new_label("xw")
    Lp = A.new_label("xp")
    A(f"s_cmp_lg_u32 {s(sWAVE)}, 0")
    A(f"s_cbranch_scc1 {Lw}")
    A(f"s_cmp_lg_u32 {s(sDEAD)}, 0")
    A(f"s_cbranch_scc1 {Lw}")
    A(f"s_mov_b32 {s(sPs)}, 0")
    A(f"s_add_u32 {s(sT4)}, {s(sPo)}, 4092")
    A.label(Lp)
    A(f"buffer_load_dword {v(vTmp)}, off, {s(S_WS,4)}, {s(sT4)} sc1")
    A(f"s_waitcnt vmcnt(0)")
    A(f"v_readfirstlane_b32 {s(sT0)}, {v(vTmp)}")
    A(f"s_cmp_lg_u32 {s(sT0)}, -1")
    A(f"s_cbranch_scc1 {Lw}")
    A(f"s_sleep 4")
    A(f"s_add_u32 {s(sPs)}, {s(sPs)}, 1")
    A(f"s_cmp_lt_u32 {s(sPs)}, {SPIN_LIMIT}")
    A(f"s_cbranch_scc1 {Lp}")
    A(f"s_mov_b32 {s(sDEAD)}, 1")
    A.label(Lw)
    A(f"s_barrier")
    Lr = A.new_label("xr")
    Lk = A.new_label("xk")
    A(f"s_mov_b32 {s(sPs)}, 0")
    A.label(Lr)
    A(f"buffer_load_dwordx4 {v(RKM,4)}, {v(vL16)}, {s(S_WS,4)}, {s(sPo)} offen sc1")
    A(f"buffer_load_dwordx4 {v(RKM+4,4)}, {v(vL16)}, {s(S_WS,4)}, {s(sPo)} offen offset:1024 sc1")
    for p in range(4):
        A(f"buffer_load_dwordx2 {v(RVM+2*p,2)}, {v(vVm)}, {s(S_WS,4)}, {s(sPo)} offen offset:{p*256} sc1")
    A(f"s_waitcnt vmcnt(4)")
    A(f"v_max3_u32 {v(RKM+8)}, {v(RKM)}, {v(RKM+1)}, {v(RKM+2)}")
    A(f"v_max3_u32 {v(RKM+9)}, {v(RKM+3)}, {v(RKM+4)}, {v(RKM+5)}")
    A(f"v_max3_u32 {v(RKM+8)}, {v(RKM+8)}, {v(RKM+6)}, {v(RKM+7)}")
    A(f"s_waitcnt vmcnt(0)")
    A(f"v_max3_u32 {v(RKM+10)}, {v(RVM)}, {v(RVM+1)}, {v(RVM+2)}")
    A(f"v_max3_u32 {v(RKM+11)}, {v(RVM+3)}, {v(RVM+4)}, {v(RVM+5)}")
    A(f"v_max3_u32 {v(RKM+10)}, {v(RKM+10)}, {v(RVM+6)}, {v(RVM+7)}")
    A(f"v_max3_u32 {v(RKM+8)}, {v(RKM+8)}, {v(RKM+9)}, {v(RKM+10)}")
    A(f"v_max_u32 {v(RKM+8)}, {v(RKM+8)}, {v(RKM+11)}")
    A(f"v_cmp_eq_u32 vcc, -1, {v(RKM+8)}")
    A(f"s_add_u32 {s(sPs)}, {s(sPs)}, 1")
    A(f"s_nop 0")
    A(f"s_cbranch_vccz {Lk}")
    A(f"s_cmp_lg_u32 {s(sDEAD)}, 0")
    A(f"s_cbranch_scc1 {Lk}")
    A(f"s_sleep 2")
    A(f"s_cmp_lt_u32 {s(sPs)}, {SPIN_LIMIT}")
    A(f"s_cbranch_scc1 {Lr}")
    A(f"s_mov_b32 {s(sDEAD)}, 1")
    A.label(Lk)
    A(f"ds_write_b128 {v(vKw)}, {v(RKM,4)}")
    A(f"ds_write_b128 {v(vKw)}, {v(RKM+4,4)} offset:1024")
    for ks in range(4):
        for hf in range(2):
            A(f"ds_read_b64_tr_b16 {v(RKM+4*ks+2*hf,2)}, {v(vKr)} offset:{(32*ks+8*hf)*16}")
    T0, T1, TM = TS, TS + 4, TS + 8
    for ks in range(4):
        c0 = "0" if ks == 0 else v(T0, 4)
        c1 = "0" if ks == 0 else v(T1, 4)
        A(f"v_mfma_f32_16x16x32_bf16 {v(T0,4)}, {v(RK+4*ks,4)}, {v(RQ+4*ks,4)}, {c0}")
        A(f"v_mfma_f32_16x16x32_bf16 {v(T1,4)}, {v(RK+16+4*ks,4)}, {v(RQ+4*ks,4)}, {c1}")
    A(f"s_waitcnt lgkmcnt(0)")
    for ks in range(4):
        cm = "0" if ks == 0 else v(TM, 4)
        A(f"v_mfma_f32_16x16x32_bf16 {v(TM,4)}, {v(RKM+4*ks,4)}, {v(RQ+4*ks,4)}, {cm}")
    A(f"v_mov_b32 {v(vT2)}, 0xff800000")
    A.nop(2)
    for t in range(2):
        for r in range(4):
            A(f"v_cndmask_b32 {v(TS+4*t+r)}, {v(vT2)}, {v(TS+4*t+r)}, {s(sMask+2*(4*t+r),2)}")
    m, t_ = vT1, vT2
    x0, x1 = RK, RK + 1
    A(f"v_max3_f32 {v(m)}, {v(T0)}, {v(T0+1)}, {v(T0+2)}")
    A(f"v_max3_f32 {v(t_)}, {v(T0+3)}, {v(T1)}, {v(T1+1)}")
    A(f"v_max3_f32 {v(m)}, {v(m)}, {v(T1+2)}, {v(T1+3)}")
    A(f"v_max3_f32 {v(m)}, {v(m)}, {v(t_)}, {v(TM)}")
    A(f"v_max3_f32 {v(t_)}, {v(TM+1)}, {v(TM+2)}, {v(TM+3)}")
    A(f"v_max_f32 {v(x0)}, {v(m)}, {v(t_)}")
    A(f"v_max_f32 {v(x1)}, {v(m)}, {v(t_)}")
    A.nop(2)
    A(f"v_permlane16_swap_b32 {v(x0)}, {v(x1)}")
    A(f"v_max_f32 {v(m)}, {v(x0)}, {v(x1)}")
    A(f"v_max_f32 {v(t_)}, {v(x0)}, {v(x1)}")
    A.nop(2)
    A(f"v_permlane32_swap_b32 {v(m)}, {v(t_)}")
    A(f"v_max_f32 {v(m)}, {v(m)}, {v(t_)}")
    A(f"v_mul_f32 {v(m)}, {s(sNC)}, {v(m)}")
    for i in range(12):
        A(f"v_fma_f32 {v(TS+i)}, {v(TS+i)}, {s(sC)}, {v(m)}")
    for i in range(12):
        A(f"v_exp_f32 {v(TS+i)}, {v(TS+i)}")
    BX = RK + 4
    A.nop(1)
    A(f"v_cvt_pk_bf16_f32 {v(BX)}, {v(T0)}, {v(T0+1)}")
    A(f"v_cvt_pk_bf16_f32 {v(BX+1)}, {v(T0+2)}, {v(T0+3)}")
    A(f"v_cvt_pk_bf16_f32 {v(BX+2)}, {v(T1)}, {v(T1+1)}")
    A(f"v_cvt_pk_bf16_f32 {v(BX+3)}, {v(T1+2)}, {v(T1+3)}")
    A(f"v_cvt_pk_bf16_f32 {v(BM)}, {v(TM)}, {v(TM+1)}")
    A(f"v_cvt_pk_bf16_f32 {v(BM+1)}, {v(TM+2)}, {v(TM+3)}")
    A(f"v_cndmask_b32 {v(BM)}, 0, {v(BM)}, {s(sLo,2)}")
    A(f"v_cndmask_b32 {v(BM+1)}, 0, {v(BM+1)}, {s(sLo,2)}")
    O = RK + 8
    LS = RK + 24
    A(f"s_waitcnt vmcnt(0)")
    A.nop(2)
    A(f"v_mfma_f32_16x16x32_bf16 {v(LS,4)}, {v(ONES,4)}, {v(BX,4)}, 0")
    for p in range(4):
        A(f"v_mfma_f32_16x16x32_bf16 {v(O+4*p,4)}, {v(RV+4*p,4)}, {v(BX,4)}, 0")
    A(f"v_mfma_f32_16x16x32_bf16 {v(LS,4)}, {v(ONES,4)}, {v(BM,4)}, {v(LS,4)}")
    for p in range(4):
        A(f"v_mfma_f32_16x16x32_bf16 {v(O+4*p,4)}, {v(RVM+2*p,4)}, {v(BM,4)}, {v(O+4*p,4)}")
    A.nop(8)
    A(f"v_rcp_f32 {v(m)}, {v(LS)}")
    A.nop(1)
    for i in range(16):
        A(f"v_mul_f32 {v(O+i)}, {v(O+i)}, {v(m)}")
    PKO = RQ
    for i in range(8):
        A(f"v_cvt_pk_bf16_f32 {v(PKO+i)}, {v(O+2*i)}, {v(O+2*i+1)}")
    A(f"s_add_u32 {s(sT4)}, {s(sT3)}, {WS_OX:#x}")
    A(f"buffer_store_dwordx4 {v(PKO,4)}, {v(vOst)}, {s(S_WS,4)}, {s(sT4)} offen sc1")
    A(f"buffer_store_dwordx4 {v(PKO+4,4)}, {v(vOst)}, {s(S_WS,4)}, {s(sT4)} offen offset:1024 sc1")
    A(f"s_waitcnt vmcnt(0)")
    A(f"s_barrier")
    Lf = A.new_label("xf")
    A(f"s_cmp_lg_u32 {s(sWAVE)}, 0")
    A(f"s_cbranch_scc1 {Lf}")
    A(f"s_lshl_b32 {s(sT0)}, {s(sSegX)}, 7")
    A(f"s_lshl_b32 {s(sT1)}, {s(sH)}, 2")
    A(f"s_add_u32 {s(sT0)}, {s(sT0)}, {s(sT1)}")
    A(f"s_add_u32 {s(sT0)}, {s(sT0)}, {WS_OF:#x}")
    A(f"v_mov_b32 {v(vTmp)}, 1")
    A(f"s_mov_b64 exec, 1")
    A(f"buffer_store_dword {v(vTmp)}, off, {s(S_WS,4)}, {s(sT0)} sc1")
    A(f"s_mov_b64 exec, -1")
    A.label(Lf)
```

```python
import sys
from dsl import *

KNAME = "gated_mix__memory_aug_recurrent_mem_tr__dense_activation_silu__prompt_kernel"

WS_P = 0
WS_M = 0x100000
WS_KVF = 0x110000
WS_OF = 0x120000
WS_KM = 0x200000
WS_KX = 0x1000000
KVSTR = 16384
WS_QX = 0x3000000
WS_OX = 0x4000000
WS_HX = 0x5000000
HX_STRIDE = 2 * 43 * 1024
WS_G = 0x5800000
WS_T = 0x5810000
WS_SIZE = 0x5840000

D_CHECKIN = 0
D_XCCMASK = 1
D_FFN = 2
D_ERR = 4
D_KV = 8
D_O = 24
D_PROG = 40

S_WS, S_DBG, S_X, S_A, S_B, S_C, S_D = 4, 8, 12, 16, 20, 24, 28
sWAVE, sIDX, sXCD = 32, 33, 34
sT0, sT1, sT2, sT3, sT4, sT5 = 35, 36, 37, 38, 39, 40
sDEAD = 41
sEX = 42
P_X, P_MEM0, P_WQ, P_WK, P_WV, P_WO, P_W1, P_W2, P_GATE, P_OUT, P_DBG, P_WS = 64, 66, 68, 70, 72, 74, 80, 82, 84, 86, 88, 90
SPIN_LIMIT = 1 << 17

LDS_BYTES = 160 * 1024


def mk_srd(A, d, p, size):
    A(f"s_mov_b32 {s(d)}, {s(p)}")
    A(f"s_mov_b32 {s(d+1)}, {s(p+1)}")
    A(f"s_mov_b32 {s(d+2)}, {size:#x}")
    A(f"s_mov_b32 {s(d+3)}, 0x00020000")


def wait_byte(A, vT, vZero, s_off, s_shift, target, tag, s_tmp=sT0, s_cnt=sT1, target_is_sreg=False, sleep=2):
    L = A.new_label("w" + tag)
    Ld = A.new_label("wd" + tag)
    A(f"s_mov_b32 {s(s_cnt)}, 0")
    A(f"s_cmp_lg_u32 {s(sDEAD)}, 0")
    A(f"s_cbranch_scc1 {Ld}")
    A.label(L)
    A(f"buffer_load_dword {v(vT)}, {v(vZero)}, {s(S_DBG,4)}, {s(s_off)} offen sc1")
    A(f"s_waitcnt vmcnt(0)")
    A(f"v_readfirstlane_b32 {s(s_tmp)}, {v(vT)}")
    A(f"s_lshr_b32 {s(s_tmp)}, {s(s_tmp)}, {s(s_shift)}")
    A(f"s_and_b32 {s(s_tmp)}, {s(s_tmp)}, 0xff")
    A(f"s_cmp_ge_u32 {s(s_tmp)}, {s(target) if target_is_sreg else target}")
    A(f"s_cbranch_scc1 {Ld}")
    if sleep:
        A(f"s_sleep {sleep}")
    A(f"s_add_u32 {s(s_cnt)}, {s(s_cnt)}, 1")
    A(f"s_cmp_lt_u32 {s(s_cnt)}, {SPIN_LIMIT}")
    A(f"s_cbranch_scc1 {L}")
    A(f"s_mov_b32 {s(sDEAD)}, 1")
    A.label(Ld)


def signal_byte(A, vOne, vZero, s_off, s_shift, vTmp):
    A(f"s_lshl_b32 {s(sT0)}, 1, {s(s_shift)}")
    A(f"v_mov_b32 {v(vTmp)}, {s(sT0)}")
    A(f"s_mov_b64 {s(sEX,2)}, exec")
    A(f"s_mov_b64 exec, 1")
    A(f"buffer_atomic_add {v(vTmp)}, {v(vZero)}, {s(S_DBG,4)}, {s(s_off)} offen sc1")
    A(f"s_mov_b64 exec, {s(sEX,2)}")


PROF = False
sSTAMP = 92


def stamp(A, i):
    if not PROF:
        return
    A(f"s_memrealtime s[62:63]")
    A(f"s_waitcnt lgkmcnt(0)")
    A(f"s_mov_b32 {s(sSTAMP+i)}, s62")


def stamp_clk(A, i):
    if not PROF:
        return
    A(f"s_memtime s[62:63]")
    A(f"s_waitcnt lgkmcnt(0)")
    A(f"s_mov_b32 {s(sSTAMP+i)}, s62")


def stamp_if_lt(A, i, sreg, limit, clk=False):
    if not PROF:
        return
    L = A.new_label("st")
    A(f"s_cmp_lt_u32 {s(sreg)}, {limit}")
    A(f"s_cbranch_scc0 {L}")
    (stamp_clk if clk else stamp)(A, i)
    A.label(L)


def stamp_flush(A):
    if not PROF:
        return
    A(f"s_lshl_b32 s62, s2, 2")
    A(f"s_add_u32 s62, s62, {s(sWAVE)}")
    A(f"s_lshl_b32 s62, s62, 6")
    A(f"s_add_u32 s62, s62, {WS_T:#x}")
    A(f"v_mov_b32 v1, 0")
    A(f"s_mov_b64 exec, 1")
    for i in range(10):
        A(f"v_mov_b32 v2, {s(sSTAMP+i)}")
        A(f"buffer_store_dword v2, v1, {s(S_WS,4)}, s62 offen offset:{4*i}")
    A(f"s_waitcnt vmcnt(0)")


STG_BUF = 3072


def stage_addr(row):
    return 64 * row + 128 * (row >> 2)


def load_blocks(A, blocks, vST, window, after_first_issue=None):
    n = len(blocks)

    def issue(b):
        blk = blocks[b]
        for k in range(2):
            so = blk['soff'][k]
            A(f"s_mov_b32 {s(sT0)}, {so:#x}")
            if blk.get('sbase') is not None:
                A(f"s_add_u32 {s(sT0)}, {s(sT0)}, {s(blk['sbase'])}")
            A(f"buffer_load_dwordx4 {reg(off(blk['raw'], 4*k), 4)}, {v(blk['voff'])}, {s(blk['srd'],4)}, {s(sT0)} offen")

    issued = 0
    def can_issue(b, done):
        r = blocks[b]['raw']
        for p in range(b):
            if blocks[p]['raw'] == r or blocks[p].get('dst') == r:
                if p >= done:
                    return False
        return True

    while issued < n and issued < window and can_issue(issued, 0):
        issue(issued)
        issued += 1
    if after_first_issue:
        after_first_issue(2 * issued)
    for b in range(n):
        blk = blocks[b]
        assert issued > b, "window deadlock"
        A(f"s_waitcnt vmcnt({2*(issued-b-1)})")
        buf = (b & 1) * STG_BUF
        A(f"ds_write_b128 {v(vST)}, {reg(blk['raw'],4)} offset:{buf}")
        A(f"ds_write_b128 {v(vST)}, {reg(off(blk['raw'],4),4)} offset:{buf + stage_addr(16)}")
        for i in range(4):
            A(f"ds_read_b64_tr_b16 {reg(off(blk['dst'],2*i),2)}, {v(blk['vtr'])} offset:{buf + blk['imm'][i]}")
        if blk.get('post'):
            blk['post'](A)
        while issued < n and issued - b - 1 < window and can_issue(issued, b + 1):
            issue(issued)
            issued += 1
    A("s_waitcnt lgkmcnt(0)")


def tr_lane_addr(A, vD, vL, vT1, vT2, kind, base_sreg=None, base_imm=0):
    A(f"v_lshrrev_b32 {v(vT1)}, 4, {v(vL)}")
    A(f"v_bfe_u32 {v(vT2)}, {v(vL)}, 2, 2")
    A(f"v_and_b32 {v(vD)}, 3, {v(vL)}")
    A(f"v_lshlrev_b32 {v(vD)}, 3, {v(vD)}")

    def add_term(expr_src, mask_shift, mul):
        sh, bits = mask_shift
        A(f"v_bfe_u32 v{TMPX}, {v(expr_src)}, {sh}, {bits}")
        A(f"v_mul_u32_u24 v{TMPX}, {mul}, v{TMPX}")
        A(f"v_add_u32 {v(vD)}, {v(vD)}, v{TMPX}")

    G, r = vT1, vT2
    def sa(row):
        return stage_addr(row)
    if kind == 'chain_qkv':
        add_term(G, (1, 1), sa(8)); add_term(G, (0, 1), sa(4)); add_term(r, (0, 1), sa(1)); add_term(r, (1, 1), 32)
    elif kind == 'chain_wo':
        add_term(G, (0, 1), sa(16)); add_term(G, (1, 1), sa(4)); add_term(r, (0, 1), sa(1)); add_term(r, (1, 1), 32)
    elif kind == 'k16':
        add_term(G, (1, 1), sa(8)); add_term(r, (0, 2), sa(1)); add_term(G, (0, 1), 32)
    elif kind == 'out_wo':
        add_term(G, (0, 2), sa(4)); add_term(r, (0, 2), sa(1))
    elif kind == 'out_w2':
        add_term(G, (1, 1), sa(16)); add_term(G, (0, 1), sa(4)); add_term(r, (0, 2), sa(1))
    else:
        raise ValueError(kind)
    if base_sreg is not None:
        A(f"v_add_u32 {v(vD)}, {s(base_sreg)}, {v(vD)}")
    if base_imm:
        A(f"v_add_u32 {v(vD)}, {base_imm}, {v(vD)}")


TR_IMM = {
    'chain_qkv': [stage_addr(16 * hi + 2 * qq) for hi in range(2) for qq in range(2)],
    'chain_wo': [stage_addr(8 * hi + 2 * qq) for hi in range(2) for qq in range(2)],
    'k16': [stage_addr(16 * kk + 4 * hf) for kk in range(2) for hf in range(2)],
    'out_wo': [stage_addr(16 * hf) + 32 * ct for ct in range(2) for hf in range(2)],
    'out_w2': [stage_addr(8 * hf) + 32 * ct for ct in range(2) for hf in range(2)],
}
TMPX = 15


def stage_lane_addr(A, vD, vL, vT, base_sreg):
    A(f"v_lshrrev_b32 {v(vD)}, 2, {v(vL)}")
    A(f"v_lshlrev_b32 {v(vD)}, 6, {v(vD)}")
    A(f"v_lshrrev_b32 {v(vT)}, 4, {v(vL)}")
    A(f"v_lshlrev_b32 {v(vT)}, 7, {v(vT)}")
    A(f"v_add_u32 {v(vD)}, {v(vD)}, {v(vT)}")
    A(f"v_and_b32 {v(vT)}, 3, {v(vL)}")
    A(f"v_lshlrev_b32 {v(vT)}, 4, {v(vT)}")
    A(f"v_add_u32 {v(vD)}, {v(vD)}, {v(vT)}")
    A(f"v_add_u32 {v(vD)}, {s(base_sreg)}, {v(vD)}")


def raw_lane_off(A, vD, vL, vT, pitch):
    A(f"v_lshrrev_b32 {v(vD)}, 2, {v(vL)}")
    A(f"v_mul_u32_u24 {v(vD)}, {pitch}, {v(vD)}")
    A(f"v_and_b32 {v(vT)}, 3, {v(vL)}")
    A(f"v_lshlrev_b32 {v(vT)}, 4, {v(vT)}")
    A(f"v_add_u32 {v(vD)}, {v(vD)}, {v(vT)}")


def lane_expr(A, vD, vL, terms, const=0, sregs=(), tmp=None):
    tmp = TMPX if tmp is None else tmp
    first = True
    for (sh, bits, mul) in terms:
        dst = vD if first else tmp
        A(f"v_bfe_u32 {v(dst)}, {v(vL)}, {sh}, {bits}")
        if mul != 1:
            A(f"v_mul_u32_u24 {v(dst)}, {mul}, {v(dst)}")
        if not first:
            A(f"v_add_u32 {v(vD)}, {v(vD)}, {v(tmp)}")
        first = False
    if first:
        A(f"v_mov_b32 {v(vD)}, 0")
    if const:
        A(f"v_add_u32 {v(vD)}, {const:#x}, {v(vD)}")
    for sr in sregs:
        A(f"v_add_u32 {v(vD)}, {s(sr)}, {v(vD)}")


class Q:
    def __init__(self, A, name, cap):
        self.A, self.name, self.cap = A, name, cap
        self.ops = []

    def issue(self, tag, text):
        self.A(text)
        self.ops.append(tag)

    def wait(self, tag):
        if tag not in self.ops:
            return
        i = max(j for j, t in enumerate(self.ops) if t == tag)
        n = len(self.ops) - 1 - i
        self.A(f"s_waitcnt {self.name}({min(n, self.cap)})")
        if n <= self.cap:
            self.ops = self.ops[i + 1:]
        else:
            self.ops = self.ops[len(self.ops) - self.cap:]

    def wait_all(self):
        self.A(f"s_waitcnt {self.name}(0)")
        self.ops = []


XBUF = 64 * 528
XB1 = 36864


class XG:
    vL, vL16, vXW, vXR, vZero, vTmp, vT1, vT2 = 1, 2, 3, 4, 10, 11, 12, 13
    XP, XF = 16, 48
    NF = 4

    def __init__(self, A, sDelta):
        self.A, self.sDelta = A, sDelta

    def setup(self):
        A = self.A
        vL, vL16, vXW, vXR, vZero, vT1 = self.vL, self.vL16, self.vXW, self.vXR, self.vZero, self.vT1
        A(f"v_and_b32 {v(vL)}, 63, v0")
        A(f"v_lshlrev_b32 {v(vL16)}, 4, {v(vL)}")
        A(f"v_mov_b32 {v(vZero)}, 0")
        A(f"v_mul_u32_u24 {v(vXW)}, 528, {v(vL)}")
        A(f"s_lshl_b32 {s(sT0)}, {s(sWAVE)}, 7")
        A(f"v_add_u32 {v(vXW)}, {s(sT0)}, {v(vXW)}")
        A(f"v_lshrrev_b32 {v(vXR)}, 5, {v(vL)}")
        A(f"v_mul_u32_u24 {v(vXR)}, 528, {v(vXR)}")
        A(f"v_and_b32 {v(vT1)}, 31, {v(vL)}")
        A(f"v_lshlrev_b32 {v(vT1)}, 4, {v(vT1)}")
        A(f"v_add_u32 {v(vXR)}, {v(vXR)}, {v(vT1)}")

    def issue_x(self, seg_sreg):
        A = self.A
        A(f"s_lshl_b32 {s(sT0)}, {s(seg_sreg)}, 15")
        A(f"s_lshl_b32 {s(sT1)}, {s(sWAVE)}, 13")
        A(f"s_add_u32 {s(sT0)}, {s(sT0)}, {s(sT1)}")
        for i in range(8):
            if i == 4:
                A(f"s_add_u32 {s(sT0)}, {s(sT0)}, 4096")
            A(f"buffer_load_dwordx4 {v(self.XP+4*i,4)}, {v(self.vL16)}, {s(S_X,4)}, {s(sT0)} offen offset:{(i%4)*1024}")

    def write_x(self):
        for i in range(8):
            self.A(f"ds_write_b128 {v(self.vXW)}, {v(self.XP+4*i,4)} offset:{i*16}")

    def after_weights(self):
        A = self.A
        A(f"s_waitcnt lgkmcnt(0)")
        A(f"s_barrier")
        A(f"s_mov_b32 {s(self.sDelta)}, {XB1}")
        A(f"v_add_u32 {v(self.vXW)}, {s(self.sDelta)}, {v(self.vXW)}")

    def body(self, mfmas, wpos=9):
        A, NF, XF = self.A, self.NF, self.XF

        def rd(kk):
            A(f"ds_read_b128 {v(XF + 4*(kk % NF), 4)}, {v(self.vXR)} offset:{kk*1056}")
        for kk in range(NF - 1):
            rd(kk)
        for kk in range(32):
            if kk + NF - 1 < 32:
                rd(kk + NF - 1)
                A(f"s_waitcnt lgkmcnt({NF-1})")
            else:
                A(f"s_waitcnt lgkmcnt({31-kk})")
            mfmas(kk, v(XF + 4 * (kk % NF), 4))
            if kk == wpos:
                A(f"s_waitcnt vmcnt(0)")
                self.write_x()
                A(f"s_waitcnt lgkmcnt(0)")

    def toggle(self):
        A = self.A
        A(f"v_add_u32 {v(self.vXR)}, {s(self.sDelta)}, {v(self.vXR)}")
        A(f"s_sub_u32 {s(self.sDelta)}, 0, {s(self.sDelta)}")
        A(f"v_add_u32 {v(self.vXW)}, {s(self.sDelta)}, {v(self.vXW)}")


def gen_hq(A, opts):
    vWG, vST, vTR, vKst, vVst = 5, 6, 7, 8, 9
    ACC = 64
    EP = 112
    sH, sJ, sSeg, sNext, sDelta, sSegOff, sKVoff, sKVsh, sXa = 44, 45, 46, 47, 48, 49, 50, 51, 52
    sCnt, sKVF = 53, 60
    xg = XG(A, sDelta)
    vL, vL16, vZero, vTmp, vT1, vT2, XF = xg.vL, xg.vL16, xg.vZero, xg.vTmp, xg.vT1, xg.vT2, xg.XF
    A(f"s_sub_u32 {s(sT0)}, {s(sXCD)}, 3")
    A(f"s_lshl_b32 {s(sT0)}, {s(sT0)}, 5")
    A(f"s_add_u32 {s(sT0)}, {s(sT0)}, {s(sIDX)}")
    A(f"s_mul_i32 {s(sH)}, {s(sT0)}, 205")
    A(f"s_lshr_b32 {s(sH)}, {s(sH)}, 10")
    A(f"s_mul_i32 {s(sT1)}, {s(sH)}, 5")
    A(f"s_sub_u32 {s(sJ)}, {s(sT0)}, {s(sT1)}")
    mk_srd(A, S_A, P_WQ, 512 * 8192)
    mk_srd(A, S_B, P_WK, 512 * 8192)
    mk_srd(A, S_C, P_WV, 512 * 8192)
    xg.setup()
    A(f"s_mov_b32 {s(sSeg)}, {s(sJ)}")
    xg.issue_x(sSeg)
    raw_lane_off(A, vWG, vL, vT1, 8192)
    A(f"s_lshl_b32 {s(sT0)}, {s(sH)}, 8")
    A(f"s_lshl_b32 {s(sT1)}, {s(sWAVE)}, 6")
    A(f"s_add_u32 {s(sT0)}, {s(sT0)}, {s(sT1)}")
    A(f"v_add_u32 {v(vWG)}, {s(sT0)}, {v(vWG)}")
    STG = 80 * 1024
    A(f"s_mul_i32 {s(sT2)}, {s(sWAVE)}, {2*STG_BUF}")
    A(f"s_add_u32 {s(sT2)}, {s(sT2)}, {STG}")
    stage_lane_addr(A, vST, vL, vT1, sT2)
    tr_lane_addr(A, vTR, vL, vT1, vT2, 'k16', base_sreg=sT2)
    A(f"s_lshl_b32 {s(sT0)}, {s(sWAVE)}, 10")
    lane_expr(A, vKst, vL, [(4, 1, 4096), (5, 1, 256), (0, 4, 16)], sregs=[sT0])
    A(f"s_lshl_b32 {s(sT0)}, {s(sWAVE)}, 11")
    lane_expr(A, vVst, vL, [(4, 1, 1024), (5, 1, 256), (0, 4, 16)], sregs=[sT0])

    def first_x(nyounger):
        A(f"s_waitcnt vmcnt({nyounger})")
        xg.write_x()
    blocks = []
    for (srd, dst) in ((S_B, ('a', 128)), (S_C, ('v', 128)), (S_A, ('a', 0))):
        for b in range(16):
            blocks.append(dict(srd=srd, voff=vWG, soff=[(32 * b) * 8192, (32 * b + 16) * 8192], raw=off(dst, 8 * b), dst=off(dst, 8 * b),
                               vtr=vTR, imm=TR_IMM['k16']))
    stamp(A, 1)
    load_blocks(A, blocks, vST, window=27, after_first_issue=first_x)
    stamp(A, 2)
    xg.after_weights()
    if opts.get('xatt'):
        from gen_xatt import xatt_setup, xatt_task
        xatt_setup(A, xg, sH)
    A(f"s_mov_b32 {s(sXa)}, -1")
    A(f"s_mov_b32 {s(sCnt)}, 0")
    A(f"s_lshl_b32 {s(sKVF)}, {s(sH)}, 7")
    A(f"s_lshl_b32 {s(sT0)}, {s(sJ)}, 2")
    A(f"s_add_u32 {s(sKVF)}, {s(sKVF)}, {s(sT0)}")
    A(f"s_add_u32 {s(sKVF)}, {s(sKVF)}, {WS_KVF:#x}")
    A(f"buffer_load_dword v15, {v(vZero)}, {s(S_DBG,4)}, 0 offen offset:{D_CHECKIN*4} sc1")

    Lloop = A.new_label("hq_loop")
    Lnoq = A.new_label("hq_noq")
    Lnox = A.new_label("hq_nox")
    Lnoflag = A.new_label("hq_noflag")
    A.label(Lloop)
    A(f"s_add_u32 {s(sNext)}, {s(sSeg)}, 5")
    A(f"s_cmp_ge_u32 {s(sSeg)}, 64")
    A(f"s_cbranch_scc1 {Lnoq}")
    xg.issue_x(sNext)

    def mf(kk, f):
        c = lambda base: "0" if kk == 0 else v(base, 16)
        A(f"v_mfma_f32_32x32x16_bf16 {v(ACC+16,16)}, {a(128+4*kk,4)}, {f}, {c(ACC+16)}")
        A(f"v_mfma_f32_32x32x16_bf16 {v(ACC+32,16)}, {f}, {v(128+4*kk,4)}, {c(ACC+32)}")
        A(f"v_mfma_f32_32x32x16_bf16 {v(ACC,16)}, {a(4*kk,4)}, {f}, {c(ACC)}")
    xg.body(mf)
    A.nop(12)
    A(f"s_lshl_b32 {s(sSegOff)}, {s(sSeg)}, 5")
    A(f"s_add_u32 {s(sSegOff)}, {s(sSegOff)}, {s(sH)}")
    A(f"s_lshl_b32 {s(sKVoff)}, {s(sSegOff)}, 14")
    A(f"s_lshl_b32 {s(sKVsh)}, {s(sSegOff)}, 12")
    A(f"s_lshl_b32 {s(sSegOff)}, {s(sSegOff)}, 13")

    def store_ct(acc, sbase, region, ep):
        for c in range(2):
            for q in range(4):
                A(f"v_cvt_pk_bf16_f32 {v(ep+4*c+q)}, {v(acc+8*c+2*q)}, {v(acc+8*c+2*q+1)}")
        A(f"s_add_u32 {s(sT0)}, {s(sbase)}, {region:#x}")
        for c in range(2):
            A(f"buffer_store_dwordx4 {v(ep+4*c,4)}, {v(vKst)}, {s(S_WS,4)}, {s(sT0)} offen offset:{c*512} sc1")
    store_ct(ACC + 16, sKVoff, WS_KX, EP)
    acc = ACC + 32
    for c in range(2):
        for hf in range(2):
            u = c + 2 * hf
            for q in range(2):
                A(f"v_cvt_pk_bf16_f32 {v(EP+8+4*c+2*hf+q)}, {v(acc+4*u+2*q)}, {v(acc+4*u+2*q+1)}")
    A(f"s_add_u32 {s(sT0)}, {s(sKVoff)}, {WS_KX + 8192:#x}")
    for c in range(2):
        A(f"buffer_store_dwordx4 {v(EP+8+4*c,4)}, {v(vVst)}, {s(S_WS,4)}, {s(sT0)} offen offset:{c*512} sc1")
    store_ct(ACC, sSegOff, WS_QX, XF)
    for i in range(4):
        A(f"v_mov_b32 {v(XF+8+i)}, -1")
    A(f"s_lshl_b32 {s(sT1)}, {s(sWAVE)}, 10")
    A(f"s_add_u32 {s(sT0)}, {s(sKVsh)}, {s(sT1)}")
    A(f"s_add_u32 {s(sT0)}, {s(sT0)}, {WS_KM:#x}")
    A(f"buffer_store_dwordx4 {v(XF+8,4)}, {v(vL16)}, {s(S_WS,4)}, {s(sT0)} offen sc1")
    xg.toggle()
    A(f"s_waitcnt vmcnt(0) lgkmcnt(0)")
    A(f"s_barrier")
    A(f"s_add_u32 {s(sCnt)}, {s(sCnt)}, 1")
    A(f"s_cmp_lg_u32 {s(sWAVE)}, 0")
    A(f"s_cbranch_scc1 {Lnoflag}")
    Lci = A.new_label("hq_ci")
    A(f"s_cmp_lg_u32 {s(sCnt)}, 1")
    A(f"s_cbranch_scc1 {Lci}")
    A(f"v_readfirstlane_b32 {s(sT0)}, v15")
    A(f"s_and_b32 {s(sT0)}, {s(sT0)}, 0xff")
    A(f"s_cmp_ge_u32 {s(sT0)}, 32")
    A(f"s_cbranch_scc1 {Lci}")
    A(f"s_mov_b32 {s(sT2)}, {D_CHECKIN*4}")
    A(f"s_mov_b32 {s(sT3)}, 0")
    wait_byte(A, vTmp, vZero, sT2, sT3, 32, "hqci", sleep=4)
    A.label(Lci)
    A(f"v_mov_b32 {v(vTmp)}, {s(sCnt)}")
    A(f"s_mov_b64 exec, 1")
    A(f"buffer_store_dword {v(vTmp)}, off, {s(S_WS,4)}, {s(sKVF)} sc1")
    A(f"s_mov_b64 exec, -1")
    A.label(Lnoflag)
    if PROF:
        Lp = A.new_label("pf")
        A(f"s_cmp_lt_i32 {s(sXa)}, 0")
        A(f"s_cbranch_scc0 {Lp}")
        stamp(A, 3)
        A.label(Lp)
    A.label(Lnoq)
    if opts.get('xatt'):
        A(f"s_cmp_lt_i32 {s(sXa)}, 0")
        A(f"s_cbranch_scc1 {Lnox}")
        xatt_task(A, xg, sH, sXa)
        A.label(Lnox)
    A(f"s_mov_b32 {s(sXa)}, {s(sSeg)}")
    A(f"s_mov_b32 {s(sSeg)}, {s(sNext)}")
    A(f"s_cmp_lt_u32 {s(sXa)}, 64")
    A(f"s_cbranch_scc1 {Lloop}")
    stamp(A, 4)


def gen(opts):
    global PROF
    PROF = bool(opts.get('prof'))
    A = Asm()
    A.L.append(open("header.txt").read().rstrip("\n"))
    A.L.append(f"; @launch grid=(256,1,1) block=(256,1,1) lds={LDS_BYTES}")
    A.L.append('.amdgcn_target "amdgcn-amd-amdhsa--gfx950"')
    A.L.append(".text")
    A.L.append(f".globl {KNAME}")
    A.L.append(".p2align 8")
    A.L.append(f".type {KNAME},@function")
    A.label(KNAME)
    A(f"s_cmp_ge_u32 s2, 256")
    A(f"s_cbranch_scc1 L_exit")
    A(f"s_load_dwordx16 s[64:79], s[0:1], 0")
    A(f"s_load_dwordx8 s[80:87], s[0:1], 64")
    A(f"s_load_dwordx4 s[88:91], s[0:1], 96")
    A(f"s_and_b32 {s(sXCD)}, s2, 7")
    A(f"s_lshr_b32 {s(sIDX)}, s2, 3")
    A(f"v_lshrrev_b32 v1, 6, v0")
    A(f"s_mov_b32 {s(sDEAD)}, 0")
    A(f"v_readfirstlane_b32 {s(sWAVE)}, v1")
    A(f"s_waitcnt lgkmcnt(0)")
    mk_srd(A, S_WS, P_WS, WS_SIZE)
    mk_srd(A, S_DBG, P_DBG, 256)
    mk_srd(A, S_X, P_X, 2048 * 1024)
    if PROF:
        for i in range(10):
            A(f"s_mov_b32 {s(sSTAMP+i)}, 0")
    stamp(A, 0)
    A(f"s_cmp_eq_u32 {s(sXCD)}, 0")
    A(f"s_cbranch_scc1 L_chain")
    A(f"s_cmp_lt_u32 {s(sXCD)}, 3")
    A(f"s_cbranch_scc1 L_out")
    if opts.get('hq', True):
        gen_hq(A, opts)
    A(f"s_branch L_role_end")
    A.label("L_chain")
    if opts.get('clkprobe'):
        A("s_memrealtime s[44:45]")
        A("s_waitcnt lgkmcnt(0)")
        for i in range(1, 9):
            L = A.new_label("cp")
            A(f"s_add_u32 s46, s44, {i*500}")
            A.label(L)
            A("s_memrealtime s[48:49]")
            A("s_waitcnt lgkmcnt(0)")
            A("s_sub_u32 s50, s48, s46")
            A("s_cmp_lt_i32 s50, 0")
            A(f"s_cbranch_scc1 {L}")
            stamp_clk(A, i)
    if opts.get('chain'):
        from gen_chain3 import gen_chain
        gen_chain(A, opts)
    A(f"s_branch L_role_end")
    A.label("L_out")
    if opts.get('out'):
        from gen_out import gen_out
        gen_out(A, opts)
    A.label("L_role_end")
    stamp(A, 9)
    A.label("L_flush")
    stamp_flush(A)
    A.label("L_exit")
    A("s_endpgm")
    A.L.append(f""".section .rodata,"a"
.p2align 6
.amdhsa_kernel {KNAME}
  .amdhsa_next_free_vgpr 512
  .amdhsa_next_free_sgpr 102
  .amdhsa_accum_offset 256
  .amdhsa_group_segment_fixed_size 0
  .amdhsa_kernarg_size 112
  .amdhsa_user_sgpr_count 2
  .amdhsa_user_sgpr_kernarg_segment_ptr 1
  .amdhsa_system_sgpr_workgroup_id_x 1
.end_amdhsa_kernel""")
    return A.text()


def main():
    opts = {}
    outp = sys.argv[1]
    for o in sys.argv[2:]:
        if "=" in o:
            k, val = o.split("=")
            opts[k] = int(val)
        else:
            opts[o] = True
    open(outp, "w").write(gen(opts))


if __name__ == "__main__":
    import gen as _g
    _g.main()
```

```python
from dsl import *
import gen as G
from gen import *

QK_OFF, O_OFF, MEM_OFF, KX_OFF, VX_OFF, WO_OFF = 0, 4096, 8192, 16384, 24576, 32768

vL16, vKw, vIdx, vQKw, vQKr, vOw, vMw, vWo, vPst, vRed, vMst, vPf, vFlag, vJunk = range(14)
vT0, vT1 = 14, 15
vSEL = 16
vVM1, vKr, vONE = 20, 21, 22
vBM = 26
vS0, vIdxW = 30, 31
KIMG = [2048, 3072, 6144, 7168]
X = 32
Y = 64
PA = 96
ACC = 112
sH, sS, sSlotP, sSlotP1, sSlotP4, sSlotM, sKM, sKV, sC, sNC, sRet = range(44, 55)
sRa0, sRa2, sFastF = 55, 56, 57
sMLo, sMHi = 58, 60
sU = 76
sFo, sNeed, sJ4, sCn, sPf, sGat, sKn, sM0K, sM0V = 78, 79, 80, 81, 84, 85, 86, 87, 88
sW1k, sRaM, sRaA, sFb, sPfb, sW2k = 64, 65, 66, 67, 68, 69
sPc2, sPc3 = 70, 71
sRo, sRm = 72, 89
sPc = [sSlotP, sSlotP1, sPc2, sPc3]
sCP0, sCP1 = 82, 83
OOB = 0x40000000
RED_LIMIT = 1 << 16

LOG2E = 1.4426950408889634
SCALE_C = (128 ** -0.5) * LOG2E


def f32_hex(x):
    import struct
    return struct.unpack("<I", struct.pack("<f", x))[0]


RT = False
LATE = [False]


def lstamp(A, i, late=None):
    L = A.new_label("ls")
    if late is None:
        late = i >= 8
    A(f"s_cmp_lg_u32 {s(sS)}, {40 if late else 39}")
    A(f"s_cbranch_scc1 {L}")
    r = 16 + 2 * (i - 1) if i < 9 else 62
    A(f"{'s_memrealtime' if RT else 's_memtime'} s[{r}:{r+1}]")
    A.label(L)


def gen_step(A, fast, opts):
    st = "" if fast else " sc1"
    tag = "f" if fast else "s"
    Lown = [f"L_own0_{tag}", f"L_own1_{tag}"]
    Lcommon = f"L_common_{tag}"
    Llast = f"L_last_{tag}"
    lq = Q(A, "lgkmcnt", 15)
    cp = opts.get('cprof')
    rp = opts.get('rprof')
    AQ, AV, AK = ACC, ACC + 8, Y + 24
    CQ, CK = AQ + 2, AK + 2
    H0, H1 = X + 16, X + 24
    AO = Y
    KXR = {0: X + 16, 4: X + 20, 1: X + 24, 5: X + 28, 2: X, 6: X + 4, 3: X + 8, 7: X + 12}
    WB = {'q': lambda o: a(o, 8), 'k': lambda o: a(128 + o, 8), 'v': lambda o: v(128 + o, 8)}
    AC = {'q': AQ, 'k': AK, 'v': AV}
    vA = [None, vT0, vT1, vS0]

    def smf(m, jj, t, areg):
        A(f"v_smfmac_f32_16x16x64_bf16 {v(AC[m] + 4*t, 4)}, {v(areg, 4)}, {WB[m](16*jj + 8*t)}, {v(vIdx)}")

    def rdKX(j):
        lq.issue(('KX', j), f"ds_read_b128 {v(KXR[j],4)}, {v(vL16)} offset:{KX_OFF + j*1024}")

    salu = [
        f"s_and_b32 {s(sT4)}, {s(sS)}, 3",
        f"s_lshl_b32 {s(sSlotP)}, {s(sT4)}, 18",
        f"s_lshl_b32 {s(sSlotM)}, {s(sT4)}, 13",
        f"s_add_u32 {s(sSlotM)}, {s(sSlotM)}, {WS_M:#x}",
        f"s_add_u32 {s(sSlotP1)}, {s(sSlotP)}, 16384",
        f"s_add_u32 {s(sPc2)}, {s(sSlotP)}, 32768",
        f"s_add_u32 {s(sPc3)}, {s(sSlotP)}, 49152",
        f"s_add_u32 {s(sSlotP4)}, {s(sSlotP)}, 4096",
        f"s_add_u32 {s(sGat)}, {s(sSlotM)}, {s(sW2k)}",
        f"s_xor_b32 {s(sT4)}, {s(sT4)}, 2",
        f"s_lshl_b32 {s(sRa0)}, {s(sT4)}, 18",
        f"s_add_u32 {s(sRa0)}, {s(sRa0)}, {s(sW1k)}",
        f"s_mul_i32 {s(sRa2)}, {s(sT4)}, {s(sRaM)}",
        f"s_add_u32 {s(sRa2)}, {s(sRa2)}, {s(sRaA)}",
    ]

    def su(n):
        for _ in range(n):
            if salu:
                A(salu.pop(0))

    for var, H in enumerate((H0, H1)):
        A.label(Lown[var])
        if cp:
            lstamp(A, 9)
            lstamp(A, 1)
        lq.ops = []
        n = 0
        for m in 'qkv':
            for jj in range(2):
                for t in range(2):
                    n += 1
                    smf(m, jj, t, H + 4 * jj)
                    if n <= 3:
                        A(f"v_xor_b32 {v(vA[n])}, {n << 11:#x}, {v(vMw)}")
                    elif n == 4:
                        A(f"s_waitcnt lgkmcnt(0)")
                        A(f"s_barrier")
                    elif 5 <= n <= 10:
                        j2 = n - 5 + 2
                        lq.issue(('A', j2), f"ds_read_b128 {v(AO + 4*(j2-2), 4)}, {v(vA[j2 >> 1])} offset:{(j2 & 1) * 1024}")
                    elif n == 11:
                        A(f"s_mov_b32 m0, {s(sM0V)}")
                        A(f"s_add_u32 {s(sT3)}, {s(sKV)}, 8192")
                    elif n == 12:
                        A(f"buffer_load_dwordx4 {v(vL16)}, {s(S_WS,4)}, {s(sT3)} offen lds")
        if var == 0:
            A(f"s_branch {Lcommon}")
    A.label(Lcommon)
    n = 12
    for jj in range(2, 8):
        for t in range(2):
            n += 1
            if t == 0:
                lq.wait(('A', jj))
            smf('q', jj, t, AO + 4 * (jj - 2))
            if n == 13:
                A(f"buffer_load_dwordx4 {v(vL16)}, {s(S_WS,4)}, {s(sT3)} offen offset:1024 lds")
                rdKX(2)
            elif n == 14:
                A(f"buffer_load_dword {v(vFlag)}, off, {s(S_WS,4)}, {s(sFo)} sc1")
                rdKX(6)
            elif n == 15:
                if not opts.get('nopf'):
                    A(f"buffer_load_dword {v(vJunk)}, {v(vPf)}, {s(S_WS,4)}, {s(sPf)} offen")
                rdKX(3)
            elif n == 16:
                A(f"s_add_u32 {s(sT3)}, {s(sPf)}, 4096")
                rdKX(7)
            elif n == 17:
                if not opts.get('nopf'):
                    A(f"buffer_load_dword {v(vJunk)}, {v(vPf)}, {s(S_WS,4)}, {s(sT3)} offen")
                su(2)
            elif n == 18:
                A(f"s_waitcnt vmcnt(5)")
                su(2)
            elif 19 <= n <= 22:
                rdKX((0, 4, 1, 5)[n - 19])
                su(1)
            else:
                su(3)
    if cp and not rp:
        lstamp(A, 2)

    def post(m, step):
        t, k = step // 3, step % 3
        T = AC[m] + 4 * t
        if k < 2:
            A(f"v_add_f32 {v(T + k)}, {v(T + k)}, {v(T + k + 2)}")
        else:
            d = {'q': CQ + t, 'k': CK + t, 'v': (vS0, vVM1)[t]}[m]
            A(f"v_cvt_pk_bf16_f32 {v(d)}, {v(T)}, {v(T + 1)}")
    for jj in range(2, 8):
        for t in range(2):
            n += 1
            smf('k', jj, t, AO + 4 * (jj - 2))
            if n == 31:
                lq.issue('wq', f"ds_write2st64_b32 {v(vQKw)}, {v(CQ)}, {v(CQ+1)} offset0:0 offset1:1")
            elif n == 33:
                A(f"s_mov_b32 m0, {s(sM0K)}")
                A(f"s_add_u32 {s(sKn)}, {s(sKn)}, 0x80000")
            elif n == 35:
                lq.wait('wq')
                A(f"s_barrier")
            elif n == 36:
                A(f"buffer_load_dwordx4 {v(vL16)}, {s(S_WS,4)}, {s(sKn)} offen lds")
            if 25 <= n <= 30:
                post('q', n - 25)
            elif n >= 33:
                A(f"v_mov_b64 {v(ACC + 2*(n - 33), 2)}, 0")
    assert not salu
    if cp and not rp:
        lstamp(A, 3)
    QR, KR = Y, Y + 16

    def trq(i):
        ks, hf = i >> 1, i & 1
        lq.issue(('q', ks), f"ds_read_b64_tr_b16 {v(QR+4*ks+2*hf,2)}, {v(vQKr)} offset:{QK_OFF + (32*ks+8*hf)*16}")

    def trk(i):
        ks, hf = i >> 1, i & 1
        lq.issue(('k', ks), f"ds_read_b64_tr_b16 {v(KR+4*ks+2*hf,2)}, {v(vKr)} offset:{KIMG[ks] + hf*256}")
    trq_at = {38: 0, 39: 1, 40: 2, 41: 3, 42: 4, 44: 5, 45: 6, 46: 7}
    for jj in range(2, 8):
        for t in range(2):
            n += 1
            smf('v', jj, t, AO + 4 * (jj - 2))
            if n in trq_at:
                trq(trq_at[n])
            if n == 38:
                A(f"buffer_load_dwordx4 {v(vL16)}, {s(S_WS,4)}, {s(sKn)} offen offset:1024 lds")
            if n == 43:
                lq.issue('wk', f"ds_write2st64_b32 {v(vKw)}, {v(CK)}, {v(CK+1)} offset0:0 offset1:2")
            elif n == 44:
                A(f"buffer_store_dword {v(CK)}, {v(vQKw)}, {s(S_WS,4)}, {s(sKM)} offen sc1")
            elif n == 45:
                A(f"buffer_store_dword {v(CK+1)}, {v(vQKw)}, {s(S_WS,4)}, {s(sKM)} offen offset:256 sc1")
            elif n == 47:
                lq.wait('wk')
                A(f"s_barrier")
                trk(0)
            elif n == 48:
                trk(1)
            if 37 <= n <= 42:
                post('k', n - 37)
    if cp and not rp:
        lstamp(A, 4)
    T0, T1, TM = PA, PA + 4, PA + 8
    m, t_ = vT0, vT1
    wo_ops = [(cg, 0) for cg in range(4)] + [(cg, ks) for cg in range(4) for ks in range(1, 4)]
    bufs = [X + 16, X + 24, X, X + 8, Y, Y + 8, Y + 16, Y + 24]

    def rdW(i, half):
        cg, ks = wo_ops[i]
        o = (cg * 4 + ks) * 2048 + 1024 * half
        lq.issue(('W', i), f"ds_read_b128 {v(bufs[i % 8] + 4*half, 4)}, {v(vWo)} offset:{o}")
    for i in range(8):
        ks, t = i >> 1, i & 1
        if i in (0, 4):
            lq.wait(('q', ks + 1))
        T = (T0, T1)[t]
        c = "0" if ks == 0 else v(T, 4)
        A(f"v_mfma_f32_16x16x32_bf16 {v(T,4)}, {v(KXR[4*t+ks],4)}, {v(QR+4*ks,4)}, {c}")
        if i <= 5:
            trk(i + 2)
            post('v', i)
        elif i == 6:
            A(f"buffer_store_dword {v(vS0)}, {v(vQKw)}, {s(S_WS,4)}, {s(sKM)} offen offset:2048 sc1")
            A(f"buffer_store_dword {v(vVM1)}, {v(vQKw)}, {s(S_WS,4)}, {s(sKM)} offen offset:2304 sc1")
            A(f"v_mov_b64 {v(ACC+8,2)}, 0")
    A(f"s_cmp_eq_u32 {s(sS)}, 63")
    A(f"s_cbranch_scc1 {Llast}")
    for ks in range(4):
        if ks in (0, 2):
            lq.wait(('k', ks + 1))
        cm = "0" if ks == 0 else v(TM, 4)
        A(f"v_mfma_f32_16x16x32_bf16 {v(TM,4)}, {v(KR+4*ks,4)}, {v(QR+4*ks,4)}, {cm}")
        rdW(ks >> 1, ks & 1)
        if ks == 1:
            A(f"v_max3_f32 {v(m)}, {v(T0)}, {v(T0+1)}, {v(T0+2)}")
        elif ks == 2:
            A(f"v_max3_f32 {v(t_)}, {v(T0+3)}, {v(T1)}, {v(T1+1)}")
        elif ks == 3:
            A(f"v_max3_f32 {v(m)}, {v(m)}, {v(T1+2)}, {v(T1+3)}")
    def rearm(k):
        if opts.get('norearm'):
            A("s_nop 0")
        elif k < 2:
            A(f"buffer_store_dwordx4 {v(vSEL,4)}, {v(vRed)}, {s(S_WS,4)}, {s(sRa0)} offen offset:{3072*k}{st}")
        else:
            A(f"buffer_store_dwordx4 {v(vSEL,4)}, {v(vMst)}, {s(S_WS,4)}, {s(sRa2)} offen{st}")
    VX0 = Y + 16
    u0, u1 = TM + 2, TM + 3
    A(f"s_waitcnt vmcnt(9)")
    lq.issue('vx', f"ds_read_b128 {v(VX0,4)}, {v(vMw)} offset:{VX_OFF - MEM_OFF}")
    lq.issue('vx', f"ds_read_b128 {v(VX0+4,4)}, {v(vMw)} offset:{VX_OFF - MEM_OFF + 1024}")
    rdW(2, 0)
    rdW(2, 1)
    A(f"v_mov_b64 {v(ACC+10,2)}, 0")
    A(f"v_max3_f32 {v(m)}, {v(m)}, {v(t_)}, {v(TM)}")
    A(f"v_max_f32 {v(u0)}, {v(m)}, {v(TM+1)}")
    A(f"v_max_f32 {v(u1)}, {v(m)}, {v(TM+1)}")
    rdW(3, 0)
    rearm(0)
    A(f"v_permlane16_swap_b32 {v(u0)}, {v(u1)}")
    A(f"v_max_f32 {v(m)}, {v(u0)}, {v(u1)}")
    A(f"v_max_f32 {v(t_)}, {v(u0)}, {v(u1)}")
    rdW(3, 1)
    A(f"s_nop 0")
    A(f"v_permlane32_swap_b32 {v(m)}, {v(t_)}")
    A(f"v_max_f32 {v(m)}, {v(m)}, {v(t_)}")
    A(f"v_mul_f32 {v(m)}, {s(sNC)}, {v(m)}")
    BX = ACC + 12
    xs = [T0, T0 + 1, T0 + 2, T0 + 3, T1, T1 + 1, T1 + 2, T1 + 3]
    ms = [TM, TM + 1]
    for r in xs[:2]:
        A(f"v_fma_f32 {v(r)}, {v(r)}, {s(sC)}, {v(m)}")
    for j in range(8):
        A(f"v_exp_f32 {v(xs[j])}, {v(xs[j])}")
        nx = (xs + ms)[j + 2]
        A(f"v_fma_f32 {v(nx)}, {v(nx)}, {s(sC)}, {v(m)}")
        if j >= 2 and j % 2 == 0:
            q = (j - 2) // 2
            A(f"v_cvt_pk_bf16_f32 {v(BX+q)}, {v(xs[2*q])}, {v(xs[2*q+1])}")
        if j == 3:
            rearm(1)
    A(f"v_exp_f32 {v(ms[0])}, {v(ms[0])}")
    A(f"v_cvt_pk_bf16_f32 {v(BX+3)}, {v(xs[6])}, {v(xs[7])}")
    A(f"v_exp_f32 {v(ms[1])}, {v(ms[1])}")
    if cp and not rp:
        lstamp(A, 5)
    O0, O1, LS, PKO = PA, PA + 4, PA + 12, PA + 8
    lq.wait('vx')
    A(f"v_mfma_f32_16x16x32_bf16 {v(LS,4)}, {v(vONE,4)}, {v(BX,4)}, 0")
    A(f"v_cvt_pk_bf16_f32 {v(vBM)}, {v(ms[0])}, {v(ms[1])}")
    A(f"v_mfma_f32_16x16x32_bf16 {v(O0,4)}, {v(VX0,4)}, {v(BX,4)}, 0")
    rdW(4, 0)
    A(f"v_mfma_f32_16x16x32_bf16 {v(O1,4)}, {v(VX0+4,4)}, {v(BX,4)}, 0")
    rearm(2)
    A(f"v_mfma_f32_16x16x32_bf16 {v(LS,4)}, {v(vONE,4)}, {v(vBM,4)}, {v(LS,4)}")
    A(f"v_mfma_f32_16x16x32_bf16 {v(O0,4)}, {v(vS0,4)}, {v(vBM,4)}, {v(O0,4)}")
    A(f"v_mov_b64 {v(ACC+12,2)}, 0")
    A(f"v_mfma_f32_16x16x32_bf16 {v(O1,4)}, {v(vVM1,4)}, {v(vBM,4)}, {v(O1,4)}")
    rdW(4, 1)
    A(f"v_rcp_f32 {v(m)}, {v(LS)}")
    rdW(5, 0)
    A(f"v_mov_b64 {v(ACC+14,2)}, 0")
    for r in range(4):
        A(f"v_mul_f32 {v(O0+r)}, {v(O0+r)}, {v(m)}")
    A(f"v_cvt_pk_bf16_f32 {v(PKO)}, {v(O0)}, {v(O0+1)}")
    A(f"v_cvt_pk_bf16_f32 {v(PKO+1)}, {v(O0+2)}, {v(O0+3)}")
    for r in range(4):
        A(f"v_mul_f32 {v(O1+r)}, {v(O1+r)}, {v(m)}")
    A(f"v_cvt_pk_bf16_f32 {v(PKO+2)}, {v(O1)}, {v(O1+1)}")
    A(f"v_cvt_pk_bf16_f32 {v(PKO+3)}, {v(O1+2)}, {v(O1+3)}")
    lq.issue('wo_', f"ds_write_b128 {v(vOw)}, {v(PKO,4)} offset:0")
    AOr = [PKO, PA, PA + 4, PA + 12]
    vAo = [None, vT0, vT1, vS0]
    for k in range(1, 4):
        A(f"v_xor_b32 {v(vAo[k])}, {k << 9:#x}, {v(vOw)}")
    rdW(5, 1)
    rdW(6, 0)
    rdW(6, 1)
    if cp and not rp:
        lstamp(A, 6)

    def pack(cg, k):
        A(f"v_cvt_pk_bf16_f32 {v(ACC+4*cg+k)}, {v(ACC+4*cg+2*k)}, {v(ACC+4*cg+2*k+1)}")

    def pstore(cg):
        A(f"buffer_store_dwordx2 {v(ACC+4*cg,2)}, {v(vPst)}, {s(S_WS,4)}, {s(sPc[cg])} offen{st}")
    for i, (cg, ks) in enumerate(wo_ops):
        if ks:
            lq.wait(('Ao', ks))
        lq.wait(('W', i))
        A(f"v_smfmac_f32_16x16x64_bf16 {v(ACC+4*cg,4)}, {v(AOr[ks],4)}, {v(bufs[i % 8],8)}, {v(vIdxW)}")
        if i == 0:
            rdW(7, 0)
            rdW(7, 1)
        elif i == 1:
            lq.wait('wo_')
            A(f"s_barrier")
            for k in range(1, 4):
                lq.issue(('Ao', k), f"ds_read_b128 {v(AOr[k],4)}, {v(vAo[k])}")
        if 1 <= i < 9:
            rdW(i + 7, 0)
            rdW(i + 7, 1)
        if i in (8, 11, 14):
            pack((i - 8) // 3, 0)
        elif i in (9, 12, 15):
            pack((i - 9) // 3, 1)
            pstore((i - 9) // 3)
    A(f"s_nop 5")
    pack(3, 0)
    pack(3, 1)
    pstore(3)
    if cp:
        lstamp(A, 7)
    Lnr = A.new_label("notred")
    Lar = A.new_label("afterred")

    def bookkeeping():
        A(f"s_add_u32 {s(sS)}, {s(sS)}, 1")
        A(f"s_add_u32 {s(sKM)}, {s(sKM)}, 0x20000")
        A(f"s_add_u32 {s(sKV)}, {s(sKV)}, 0x80000")
        A(f"s_add_u32 {s(sPf)}, {s(sPf)}, 0x80000")
        A(f"s_add_u32 {s(sJ4)}, {s(sJ4)}, 4")
        A(f"s_cmp_eq_u32 {s(sJ4)}, 20")
        A(f"s_cselect_b32 {s(sJ4)}, 0, {s(sJ4)}")
        A(f"s_addc_u32 {s(sCn)}, {s(sCn)}, 0")

    def bookkeeping2():
        A(f"s_add_u32 {s(sFo)}, {s(sFb)}, {s(sJ4)}")
        A(f"s_cmp_lt_u32 {s(sS)}, 62")
        A(f"s_cselect_b32 {s(sNeed)}, {s(sCn)}, 0")

    def zero_acc():
        for i in range(8):
            A(f"v_mov_b64 {v(ACC+2*i,2)}, 0")
        for i in range(4):
            A(f"v_mov_b64 {v(AK+2*i,2)}, 0")

    if opts.get('rbar', 1):
        A(f"s_barrier")
    A(f"s_cmp_lg_u32 {s(sWAVE)}, 0")
    A(f"s_cbranch_scc1 {Lnr}")
    Lred = A.new_label("red")
    Lredok = A.new_label("redok")
    RA = PA
    two = opts.get('rtwo', 0)

    def once(i, ret=None):
        L = A.new_label("on")
        want = ret if ret is not None else (0 if i == 2 else 1)
        A(f"s_cmp_lg_u32 {s(sRet)}, {want}")
        A(f"s_cbranch_scc1 {L}")
        lstamp(A, i, True)
        A.label(L)

    def red_load(R, i):
        A(f"buffer_load_dwordx4 {v(R+4*i,4)}, {v(vRed)}, {s(S_WS,4)}, {s(sSlotP if i < 4 else sSlotP4)} offen offset:{(i%4)*1024} sc1")

    def red_issue(R):
        for i in range(8):
            red_load(R, i)

    def red_check(R, younger):
        for i in range(8):
            A(f"s_waitcnt vmcnt({younger + 7 - i})")
            if rp and i == 0:
                once(2 if R == X else 4)
            c = "0" if i == 0 else v(RA, 4)
            A(f"v_mfma_f32_16x16x32_bf16 {v(RA,4)}, {v(R+4*i,4)}, {v(vSEL,4)}, {c}")
        A(f"s_add_u32 {s(sRet)}, {s(sRet)}, 1")
        if rp:
            once(3 if R == X else 5, 1 if R == X else 2)
        A(f"s_nop 7")
        A(f"v_cmp_u_f32 vcc, {v(RA)}, {v(RA+1)}")
        A(f"v_cmp_u_f32 {s(sU,2)}, {v(RA+2)}, {v(RA+3)}")
        A(f"v_cvt_pk_bf16_f32 {v(RA+4)}, {v(RA)}, {v(RA+1)}")
        A(f"v_cvt_pk_bf16_f32 {v(RA+5)}, {v(RA+2)}, {v(RA+3)}")
        A(f"s_or_b64 vcc, vcc, {s(sU,2)}")
        A(f"s_cbranch_scc0 {Lredok}")
    zero_acc()
    bookkeeping()
    bookkeeping2()
    A(f"s_mov_b32 {s(sRet)}, 0")
    if opts.get('rroll', 0):
        sO = [sRo, sRo + 1, sRo + 2, sRo + 3]
        Lfin = A.new_label("rfin")
        A(f"s_mov_b32 {s(sO[0])}, {s(sSlotP)}")
        A(f"s_mov_b32 {s(sO[1])}, {s(sSlotP)}")
        A(f"s_mov_b32 {s(sO[2])}, {s(sSlotP4)}")
        A(f"s_mov_b32 {s(sO[3])}, {s(sSlotP4)}")
        A(f"s_mov_b32 {s(sRm)}, 15")
        A(f"v_mov_b64 {v(RA,2)}, 0")
        A(f"v_mov_b64 {v(RA+2,2)}, 0")
        for _ in range(opts.get('rdelay', 0)):
            A(f"s_sleep 1")

        def pair_issue(p):
            for i in (2 * p, 2 * p + 1):
                A(f"buffer_load_dwordx4 {v(X+4*i,4)}, {v(vRed)}, {s(S_WS,4)}, {s(sO[p])} offen offset:{(i%4)*1024} sc1")
        for p in range(4):
            pair_issue(p)
        A.label(Lred)
        for p in range(4):
            Lre = A.new_label("rre")
            R = X + 8 * p
            A(f"s_waitcnt vmcnt(6)")
            if rp and p == 0:
                once(2, 0)
            if rp and p == 3:
                once(3, 0)
            A(f"s_bitcmp1_b32 {s(sRm)}, {p}")
            A(f"s_cbranch_scc0 {Lre}")
            A(f"v_max3_u32 {v(vT0)}, {v(R)}, {v(R+1)}, {v(R+2)}")
            A(f"v_max3_u32 {v(vT1)}, {v(R+3)}, {v(R+4)}, {v(R+5)}")
            A(f"v_max3_u32 {v(vT0)}, {v(vT0)}, {v(R+6)}, {v(R+7)}")
            A(f"v_max_u32 {v(vT0)}, {v(vT0)}, {v(vT1)}")
            A(f"v_cmp_eq_u32 vcc, -1, {v(vT0)}")
            A(f"s_cbranch_vccnz {Lre}")
            A(f"v_mfma_f32_16x16x32_bf16 {v(RA,4)}, {v(R,4)}, {v(vSEL,4)}, {v(RA,4)}")
            A(f"s_bitset0_b32 {s(sRm)}, {p}")
            A(f"s_mov_b32 {s(sO[p])}, {OOB:#x}")
            A(f"v_mfma_f32_16x16x32_bf16 {v(RA,4)}, {v(R+4,4)}, {v(vSEL,4)}, {v(RA,4)}")
            A(f"s_cmp_eq_u32 {s(sRm)}, 0")
            A(f"s_cbranch_scc1 {Lfin}")
            A.label(Lre)
            pair_issue(p)
        A(f"s_add_u32 {s(sRet)}, {s(sRet)}, 1")
        A(f"s_cmp_lg_u32 {s(sDEAD)}, 0")
        A(f"s_cbranch_scc1 {Lfin}")
        A(f"s_cmp_lt_u32 {s(sRet)}, {RED_LIMIT}")
        A(f"s_cbranch_scc1 {Lred}")
        A(f"s_mov_b32 {s(sDEAD)}, 1")
        A.label(Lfin)
        A(f"s_nop 5")
        A(f"v_cvt_pk_bf16_f32 {v(RA+4)}, {v(RA)}, {v(RA+1)}")
        A(f"v_cvt_pk_bf16_f32 {v(RA+5)}, {v(RA+2)}, {v(RA+3)}")
    else:
        RS = [[X + 4 * i for i in range(8)], [Y + 4 * i for i in range(6)] + [PA + 8, PA + 12]]
        mode = opts.get('rmode', 1)

        def ld(R, i):
            A(f"buffer_load_dwordx4 {v(R[i],4)}, {v(vRed)}, {s(S_WS,4)}, {s(sSlotP if i < 4 else sSlotP4)} offen offset:{(i%4)*1024} sc1")

        def chk(R, other, cnt):
            for i in range(8):
                A(f"s_waitcnt vmcnt({cnt(i)})")
                if rp and i == 0:
                    once(2 if R is RS[0] else 4, 0)
                c = "0" if i == 0 else v(RA, 4)
                A(f"v_mfma_f32_16x16x32_bf16 {v(RA,4)}, {v(R[i],4)}, {v(vSEL,4)}, {c}")
                if other is not None:
                    ld(other, i)
            if rp:
                once(3 if R is RS[0] else 5, 0)
            if cp:
                A(f"s_add_u32 {s(sCP0)}, {s(sCP0)}, 1")
            A(f"s_nop {6 if other is not None else 7}")
            A(f"v_cmp_u_f32 vcc, {v(RA)}, {v(RA+1)}")
            A(f"v_cmp_u_f32 {s(sU,2)}, {v(RA+2)}, {v(RA+3)}")
            A(f"v_cvt_pk_bf16_f32 {v(RA+4)}, {v(RA)}, {v(RA+1)}")
            A(f"v_cvt_pk_bf16_f32 {v(RA+5)}, {v(RA+2)}, {v(RA+3)}")
            A(f"s_or_b64 vcc, vcc, {s(sU,2)}")
            A(f"s_cbranch_scc0 {Lredok}")
        for _ in range(opts.get('rdelay', 0)):
            A(f"s_sleep 1")
        for _ in range(opts.get('rnop', 0)):
            A(f"s_nop 3")
        for i in range(8):
            ld(RS[0], i)
        if mode == 2:
            for _ in range(opts.get('rspace', 0)):
                A(f"s_sleep 1")
            for i in range(8):
                ld(RS[1], i)
        A.label(Lred)
        if mode == 0:
            chk(RS[0], None, lambda i: 7 - i)
            for i in range(8):
                ld(RS[0], i)
        elif mode == 1:
            chk(RS[0], RS[1], lambda i: 7)
            chk(RS[1], RS[0], lambda i: 7)
        else:
            chk(RS[0], None, lambda i: 15 - i)
            for i in range(8):
                ld(RS[0], i)
            chk(RS[1], None, lambda i: 15 - i)
            for i in range(8):
                ld(RS[1], i)
        A(f"s_add_u32 {s(sRet)}, {s(sRet)}, 1")
        A(f"s_cmp_lg_u32 {s(sDEAD)}, 0")
        A(f"s_cbranch_scc1 {Lredok}")
        A(f"s_cmp_lt_u32 {s(sRet)}, {RED_LIMIT}")
        A(f"s_cbranch_scc1 {Lred}")
        A(f"s_mov_b32 {s(sDEAD)}, 1")
    A.label(Lredok)
    A(f"buffer_store_dwordx2 {v(RA+4,2)}, {v(vMst)}, {s(S_WS,4)}, {s(sSlotM)} offen{st}")
    if rp:
        lstamp(A, 6, True)
    A(f"s_branch {Lar}")
    A.label(Lnr)
    Lfok = A.new_label("fok")
    Lfsp = A.new_label("fsp")
    if rp:
        for (cnt, st_) in ((7, 2), (4, 3), (2, 4), (0, 5)):
            A(f"s_waitcnt vmcnt({cnt})")
            lstamp(A, st_)
    A(f"s_mov_b32 {s(sRet)}, 0")
    A(f"s_waitcnt vmcnt(15)")
    A(f"v_readfirstlane_b32 {s(sT0)}, {v(vFlag)}")
    zero_acc()
    A(f"s_cmp_ge_u32 {s(sT0)}, {s(sNeed)}")
    A(f"s_cbranch_scc1 {Lfok}")
    A(f"s_cmp_lg_u32 {s(sDEAD)}, 0")
    A(f"s_cbranch_scc1 {Lfok}")
    A(f"s_mov_b32 {s(sRet)}, 0")
    A.label(Lfsp)
    A(f"buffer_load_dword {v(vFlag)}, off, {s(S_WS,4)}, {s(sFo)} sc1")
    A(f"s_waitcnt vmcnt(0)")
    A(f"v_readfirstlane_b32 {s(sT0)}, {v(vFlag)}")
    A(f"s_cmp_ge_u32 {s(sT0)}, {s(sNeed)}")
    A(f"s_cbranch_scc1 {Lfok}")
    A(f"s_sleep 1")
    A(f"s_add_u32 {s(sRet)}, {s(sRet)}, 1")
    A(f"s_cmp_lt_u32 {s(sRet)}, {SPIN_LIMIT}")
    A(f"s_cbranch_scc1 {Lfsp}")
    A(f"s_mov_b32 {s(sDEAD)}, 1")
    A.label(Lfok)
    if opts.get('steplog'):
        Lsl = A.new_label("sl")
        A(f"s_cmp_lg_u32 {s(sWAVE)}, 1")
        A(f"s_cbranch_scc1 {Lsl}")
        A(f"s_memrealtime s[62:63]")
        A(f"s_lshl_b32 {s(sT0)}, {s(sH)}, 6")
        A(f"s_add_u32 {s(sT0)}, {s(sT0)}, {s(sS)}")
        A(f"s_lshl_b32 {s(sT0)}, {s(sT0)}, 3")
        A(f"s_add_u32 {s(sT0)}, {s(sT0)}, {WS_T + 0x8000:#x}")
        A(f"s_waitcnt lgkmcnt(0)")
        A(f"v_mov_b32 {v(vT0)}, s62")
        A(f"v_mov_b32 {v(vT1)}, {s(sRet)}")
        A(f"s_mov_b64 exec, 1")
        A(f"buffer_store_dwordx2 {v(vT0,2)}, off, {s(S_WS,4)}, {s(sT0)}")
        A(f"s_mov_b64 exec, -1")
        A.label(Lsl)
    bookkeeping()
    bookkeeping2()
    A.label(Lar)
    A(f"s_barrier")
    if cp:
        lstamp(A, 8)
    Lcon = A.new_label("con")
    Lconok = A.new_label("conok")
    gtwo = opts.get('gtwo', 1)

    def con_issue(R):
        A(f"buffer_load_dwordx4 {v(R,4)}, {v(vL16)}, {s(S_WS,4)}, {s(sGat)} offen sc1")
        A(f"buffer_load_dwordx4 {v(R+4,4)}, {v(vL16)}, {s(S_WS,4)}, {s(sGat)} offen offset:1024 sc1")

    def con_check(R, younger, ok):
        A(f"s_waitcnt vmcnt({younger})")
        A(f"ds_write_b128 {v(vMw)}, {v(R,4)}")
        A(f"v_max3_u32 {v(vT0)}, {v(R)}, {v(R+1)}, {v(R+2)}")
        A(f"v_max3_u32 {v(vT1)}, {v(R+3)}, {v(R+4)}, {v(R+5)}")
        A(f"ds_write_b128 {v(vMw)}, {v(R+4,4)} offset:1024")
        A(f"v_max3_u32 {v(vT0)}, {v(vT0)}, {v(R+6)}, {v(R+7)}")
        A(f"v_max_u32 {v(vT0)}, {v(vT0)}, {v(vT1)}")
        A(f"v_cmp_eq_u32 vcc, -1, {v(vT0)}")
        A(f"s_add_u32 {s(sRet)}, {s(sRet)}, 1")
        if cp:
            A(f"s_add_u32 {s(sCP1)}, {s(sCP1)}, 1")
        A(f"s_cbranch_vccz {ok}")
    A(f"s_mov_b32 {s(sRet)}, 0")
    for _ in range(opts.get('gdelay', 0)):
        A(f"s_sleep 1")
    con_issue(H0)
    if gtwo:
        for _ in range(opts.get('gspace', 1)):
            A(f"s_sleep 1")
        con_issue(H1)
        A.label(Lcon)
        con_check(H0, 2, Lown[0])
        con_issue(H0)
        con_check(H1, 2, Lown[1])
        con_issue(H1)
    else:
        A.label(Lcon)
        con_check(H0, 0, Lown[0])
        con_issue(H0)
    A(f"s_cmp_lg_u32 {s(sDEAD)}, 0")
    A(f"s_cbranch_scc1 {Lown[0]}")
    A(f"s_cmp_lt_u32 {s(sRet)}, {RED_LIMIT}")
    A(f"s_cbranch_scc1 {Lcon}")
    A(f"s_mov_b32 {s(sDEAD)}, 1")
    A(f"s_branch {Lown[0]}")
    A.label(Llast)
    A(f"s_waitcnt vmcnt(0) lgkmcnt(0)")
    if cp:
        for i in range(1, 10):
            A(f"s_mov_b32 s{92+i}, s{16+2*(i-1) if i < 9 else 62}")
        A(f"s_lshl_b32 {s(sCP1)}, {s(sCP1)}, 16")
        A(f"s_or_b32 s92, {s(sCP0)}, {s(sCP1)}")
        A("s_branch L_flush")
    A(f"s_branch L_role_end")


def gen_chain(A, opts):
    global RT
    RT = bool(opts.get('rt'))
    vL = 13
    A(f"s_mov_b32 {s(sH)}, {s(sIDX)}")
    A(f"v_and_b32 {v(vL)}, 63, v0")
    mk_srd(A, S_A, P_WQ, 512 * 8192)
    mk_srd(A, S_B, P_WK, 512 * 8192)
    mk_srd(A, S_C, P_WV, 512 * 8192)
    mk_srd(A, S_D, P_WO, 4096 * 1024)
    A(f"v_lshlrev_b32 {v(vL16)}, 4, {v(vL)}")
    for i in range(4):
        A(f"v_mov_b32 {v(vSEL+i)}, -1")
    A(f"s_lshl_b32 {s(sT0)}, {s(sH)}, 13")
    A(f"s_lshl_b32 {s(sT1)}, {s(sWAVE)}, 11")
    A(f"s_add_u32 {s(sT0)}, {s(sT0)}, {s(sT1)}")
    for sl in range(4):
        A(f"s_add_u32 {s(sT1)}, {s(sT0)}, {sl*262144}")
        A(f"buffer_store_dwordx4 {v(vSEL,4)}, {v(vL16)}, {s(S_WS,4)}, {s(sT1)} offen sc1")
        A(f"buffer_store_dwordx4 {v(vSEL,4)}, {v(vL16)}, {s(S_WS,4)}, {s(sT1)} offen offset:1024 sc1")
    A(f"s_lshl_b32 {s(sT2)}, {s(sH)}, 8")
    A(f"v_add_u32 {v(vT0)}, {s(sT2)}, {v(vL16)}")
    A(f"v_cmp_gt_u32 vcc, 16, {v(vL)}")
    A(f"v_mov_b32 {v(vT1)}, {OOB:#x}")
    A.nop(1)
    A(f"v_cndmask_b32 {v(vT0)}, {v(vT1)}, {v(vT0)}, vcc")
    for sl in range(4):
        A(f"s_mov_b32 {s(sT1)}, {WS_M + sl*8192:#x}")
        A(f"buffer_store_dwordx4 {v(vSEL,4)}, {v(vT0)}, {s(S_WS,4)}, {s(sT1)} offen sc1")
    for i in range(4):
        A(f"v_mov_b32 {v(X+i)}, 0")
    A(f"v_cmp_gt_u32 vcc, 16, {v(vL)}")
    A(f"v_mov_b32 {v(X+5)}, {OOB:#x}")
    A.nop(1)
    A(f"v_cndmask_b32 {v(X+4)}, {v(X+5)}, {v(vL16)}, vcc")
    A(f"s_lshl_b32 {s(sT1)}, {s(sH)}, 8")
    A(f"s_add_u32 {s(sT1)}, {s(sT1)}, {WS_OF:#x}")
    A(f"buffer_store_dwordx4 {v(X,4)}, {v(X+4)}, {s(S_WS,4)}, {s(sT1)} offen sc1")
    A(f"v_cmp_gt_u32 vcc, 8, {v(vL)}")
    A.nop(2)
    A(f"v_cndmask_b32 {v(X+4)}, {v(X+5)}, {v(vL16)}, vcc")
    A(f"s_lshl_b32 {s(sT1)}, {s(sH)}, 7")
    A(f"s_add_u32 {s(sT1)}, {s(sT1)}, {WS_KVF:#x}")
    A(f"buffer_store_dwordx4 {v(X,4)}, {v(X+4)}, {s(S_WS,4)}, {s(sT1)} offen sc1")
    A(f"s_lshr_b32 {s(sT3)}, {s(sH)}, 2")
    A(f"s_lshl_b32 {s(sT3)}, {s(sT3)}, 10")
    A(f"s_and_b32 {s(sT4)}, {s(sH)}, 1")
    A(f"s_lshl_b32 {s(sT4)}, {s(sT4)}, 9")
    A(f"s_add_u32 {s(sT3)}, {s(sT3)}, {s(sT4)}")
    A(f"s_and_b32 {s(sT4)}, {s(sH)}, 2")
    A(f"s_lshl_b32 {s(sT4)}, {s(sT4)}, 4")
    A(f"s_add_u32 {s(sT3)}, {s(sT3)}, {s(sT4)}")
    lane_expr(A, vMst, vL, [(5, 1, 256), (1, 2, 64), (0, 1, 16), (4, 1, 8)], sregs=[sT3])
    A(f"v_and_b32 {v(vT1)}, 8, {v(vL)}")
    A(f"v_lshlrev_b32 {v(vT1)}, 27, {v(vT1)}")
    A(f"v_add_u32 {v(vMst)}, {v(vMst)}, {v(vT1)}")
    A(f"s_cmp_eq_u32 {s(sWAVE)}, 0")
    Lw0 = A.new_label("w0")
    A(f"s_cbranch_scc1 {Lw0}")
    A(f"v_mov_b32 {v(vMst)}, {v(vT0)}")
    A(f"s_cmp_eq_u32 {s(sWAVE)}, 3")
    A(f"s_cbranch_scc1 {Lw0}")
    A(f"s_lshl_b32 {s(sT0)}, {s(sH)}, 13")
    A(f"v_add_u32 {v(vMst)}, {s(sT0)}, {v(vL16)}")
    A.label(Lw0)
    A(f"s_getreg_b32 {s(sT0)}, hwreg(HW_REG_XCC_ID, 0, 4)")
    A(f"s_lshl_b32 {s(sT0)}, 1, {s(sT0)}")
    A(f"v_mov_b32 {v(vT0)}, {s(sT0)}")
    A(f"v_mov_b32 {v(vT1)}, 0")
    A(f"s_waitcnt vmcnt(0)")
    A(f"s_barrier")
    Lci = A.new_label("ci")
    A(f"s_cmp_lg_u32 {s(sWAVE)}, 0")
    A(f"s_cbranch_scc1 {Lci}")
    A(f"s_mov_b64 exec, 1")
    A(f"buffer_atomic_or {v(vT0)}, {v(vT1)}, {s(S_DBG,4)}, 0 offen offset:{D_XCCMASK*4} sc1")
    A(f"s_waitcnt vmcnt(0)")
    A(f"v_mov_b32 {v(vT0)}, 1")
    A(f"buffer_atomic_add {v(vT0)}, {v(vT1)}, {s(S_DBG,4)}, 0 offen offset:{D_CHECKIN*4} sc1")
    A(f"s_mov_b64 exec, -1")
    A.label(Lci)
    for (dst, bit) in ((vIdx, 2), (vIdxW, 8)):
        A(f"v_mov_b32 {v(dst)}, 0x4444")
        A(f"v_mov_b32 {v(vT0)}, 0xeeee")
        A(f"v_and_b32 {v(vT1)}, {bit}, {v(vL)}")
        A(f"v_cmp_ne_u32 vcc, 0, {v(vT1)}")
        A.nop(2)
        A(f"v_cndmask_b32 {v(dst)}, {v(dst)}, {v(vT0)}, vcc")
    A(f"s_lshl_b32 {s(sT0)}, {s(sWAVE)}, 9")
    lane_expr(A, vQKw, vL, [(0, 4, 16), (4, 2, 4)], sregs=[sT0])
    A(f"s_lshl_b32 {s(sT0)}, {s(sWAVE)}, 10")
    A(f"s_lshr_b32 {s(sT1)}, {s(sWAVE)}, 1")
    A(f"s_lshl_b32 {s(sT1)}, {s(sT1)}, 11")
    A(f"s_add_u32 {s(sT0)}, {s(sT0)}, {s(sT1)}")
    lane_expr(A, vKw, vL, [(0, 4, 32), (4, 2, 8)], const=2048, sregs=[sT0])
    lane_expr(A, vKr, vL, [(5, 1, 512), (4, 1, 128), (2, 2, 32), (0, 2, 8)])
    lane_expr(A, vQKr, vL, [(5, 1, 256), (4, 1, 64), (2, 2, 16), (0, 1, 8)])
    A(f"s_lshl_b32 {s(sT0)}, {s(sWAVE)}, 9")
    lane_expr(A, vOw, vL, [(4, 2, 128), (0, 3, 16)], const=O_OFF, sregs=[sT0])
    A(f"s_lshl_b32 {s(sT0)}, {s(sWAVE)}, 11")
    A(f"s_add_u32 {s(sT0)}, {s(sT0)}, {MEM_OFF}")
    A(f"v_add_u32 {v(vMw)}, {s(sT0)}, {v(vL16)}")
    A(f"s_lshl_b32 {s(sT0)}, {s(sWAVE)}, 15")
    A(f"s_add_u32 {s(sT0)}, {s(sT0)}, {WO_OFF}")
    A(f"v_add_u32 {v(vWo)}, {s(sT0)}, {v(vL16)}")
    A(f"s_lshl_b32 {s(sT0)}, {s(sWAVE)}, 16")
    A(f"s_lshl_b32 {s(sT1)}, {s(sH)}, 8")
    lane_expr(A, vPst, vL, [(5, 1, 8192), (0, 4, 16), (4, 1, 8)], sregs=[sT0, sT1])
    A(f"s_lshl_b32 {s(sT0)}, {s(sH)}, 13")
    A(f"v_add_u32 {v(vRed)}, {s(sT0)}, {v(vL16)}")
    A(f"s_and_b32 {s(sT1)}, {s(sWAVE)}, 1")
    A(f"s_lshl_b32 {s(sT1)}, {s(sT1)}, 13")
    A(f"s_lshl_b32 {s(sT0)}, {s(sH)}, 14")
    A(f"s_add_u32 {s(sT0)}, {s(sT0)}, {s(sT1)}")
    A(f"v_lshlrev_b32 {v(vPf)}, 6, {v(vL)}")
    A(f"v_add_u32 {v(vPf)}, {s(sT0)}, {v(vPf)}")
    A(f"s_mov_b32 {s(sMLo)}, -1")
    A(f"s_mov_b32 {s(sMLo+1)}, 0")
    A(f"s_mov_b32 {s(sMHi)}, 0")
    A(f"s_mov_b32 {s(sMHi+1)}, -1")
    A(f"s_mov_b32 {s(sC)}, {f32_hex(SCALE_C):#x}")
    A(f"s_mov_b32 {s(sNC)}, {f32_hex(-SCALE_C):#x}")
    for i in range(4):
        A(f"v_mov_b32 {v(vONE+i)}, 0x3f803f80")
    for i in range(1, 4):
        A(f"v_mov_b32 {v(vBM+i)}, 0")
    Lsel = A.new_label("sel")
    A(f"s_cmp_lg_u32 {s(sWAVE)}, 0")
    A(f"s_cbranch_scc1 {Lsel}")
    A(f"v_and_b32 {v(vT0)}, 15, {v(vL)}")
    A(f"v_mov_b32 {v(vS0)}, 0x3f80")
    A(f"v_mov_b32 {v(X+30)}, 0x3f800000")
    A(f"v_and_b32 {v(vT1)}, 1, {v(vT0)}")
    A(f"v_cmp_eq_u32 vcc, 1, {v(vT1)}")
    A.nop(2)
    A(f"v_cndmask_b32 {v(vS0)}, {v(vS0)}, {v(X+30)}, vcc")
    A(f"v_lshrrev_b32 {v(vT0)}, 1, {v(vT0)}")
    for i in range(4):
        A(f"v_cmp_eq_u32 vcc, {i}, {v(vT0)}")
        A.nop(2)
        A(f"v_cndmask_b32 {v(vSEL+i)}, 0, {v(vS0)}, vcc")
    A.label(Lsel)

    vWG, vWGo, vST, vTRq, vTRo, vWoW = X, X + 1, X + 2, X + 3, X + 4, X + 5
    raw_lane_off(A, vWG, vL, vT0, 8192)
    A(f"s_lshl_b32 {s(sT0)}, {s(sH)}, 8")
    A(f"s_lshl_b32 {s(sT1)}, {s(sWAVE)}, 6")
    A(f"s_add_u32 {s(sT0)}, {s(sT0)}, {s(sT1)}")
    A(f"v_add_u32 {v(vWG)}, {s(sT0)}, {v(vWG)}")
    raw_lane_off(A, vWGo, vL, vT0, 1024)
    A(f"s_lshl_b32 {s(sT0)}, {s(sH)}, 17")
    A(f"s_lshl_b32 {s(sT1)}, {s(sWAVE)}, 8")
    A(f"s_add_u32 {s(sT0)}, {s(sT0)}, {s(sT1)}")
    A(f"v_add_u32 {v(vWGo)}, {s(sT0)}, {v(vWGo)}")
    SB = 6144
    A(f"s_mul_i32 {s(sT2)}, {s(sWAVE)}, {SB}")
    stage_lane_addr(A, vST, vL, vT0, sT2)
    A(f"v_and_b32 {v(vTRq)}, 3, {v(vL)}")
    A(f"v_lshlrev_b32 {v(vTRq)}, 3, {v(vTRq)}")
    for (sh, mul) in ((5, stage_addr(8)), (4, stage_addr(4)), (2, stage_addr(1)), (3, stage_addr(32))):
        A(f"v_bfe_u32 {v(vT0)}, {v(vL)}, {sh}, 1")
        A(f"v_mul_u32_u24 {v(vT0)}, {mul}, {v(vT0)}")
        A(f"v_add_u32 {v(vTRq)}, {v(vTRq)}, {v(vT0)}")
    A(f"v_add_u32 {v(vTRq)}, {s(sT2)}, {v(vTRq)}")
    G_tr(A, vTRo, vL, 'chain_wo', sT2)
    A(f"v_mov_b32 {v(vWoW)}, {v(vWo)}")
    sXq, sXo = sRo, sRo + 1
    A(f"s_lshl_b32 {s(sXq)}, {s(sWAVE)}, 20")
    A(f"s_lshl_b32 {s(sXo)}, {s(sWAVE)}, 15")
    pool = [X + 8 + 8 * i for i in range(11)]
    blocks = []
    wo_blocks = []
    for cg in range(4):
        for ks in range(4):
            rg = pool[len(wo_blocks) % len(pool)]
            o = (cg * 4 + ks) * 2048
            wo_blocks.append(dict(srd=S_D, voff=vWGo, sx=sXo, soff=[(32 * ks + 16 * k) * 1024 + cg * 64 for k in range(2)],
                                  regs=('v', rg), tr=[(2 * i, vTRo, TR_IMM['chain_wo'][i]) for i in range(4)], post=o))
    qkv = []
    for (srd, dst) in ((S_A, ('a', 0)), (S_B, ('a', 128)), (S_C, ('v', 128))):
        for jj in range(8):
            qkv.append(dict(srd=srd, voff=vWG, sx=sXq, soff=[(64 * jj + 16 * k) * 8192 for k in range(4)], regs=off(dst, 16 * jj),
                            tr=[(8 * t + 2 * q, vTRq, stage_addr(16 * (q >> 1) + 2 * (q & 1)) + 32 * t) for t in range(2) for q in range(4)],
                            post=None))
    blocks = wo_blocks[:11] + qkv + wo_blocks[11:]
    stamp(A, 1) if not opts.get('cprof') else None
    WINDOW = 62
    issued, inflight = 0, []
    nb = len(blocks)

    def regs_free(b, done):
        for p_ in range(b):
            if blocks[p_]['regs'] == blocks[b]['regs'] and p_ >= done:
                return False
        return True

    def issue(b):
        blk = blocks[b]
        for k, so in enumerate(blk['soff']):
            A(f"s_xor_b32 {s(sT0)}, {so:#x}, {s(blk['sx'])}")
            A(f"buffer_load_dwordx4 {reg(off(blk['regs'], 4*k), 4)}, {v(blk['voff'])}, {s(blk['srd'],4)}, {s(sT0)} offen")

    def pending(frm):
        return sum(len(blocks[i]['soff']) for i in range(frm, issued))
    while issued < nb and pending(0) + len(blocks[issued]['soff']) <= WINDOW and regs_free(issued, 0):
        issue(issued)
        issued += 1
    for b in range(nb):
        blk = blocks[b]
        assert issued > b
        A(f"s_waitcnt vmcnt({pending(b + 1)})")
        for k in range(len(blk['soff'])):
            A(f"ds_write_b128 {v(vST)}, {reg(off(blk['regs'], 4*k), 4)} offset:{stage_addr(16*k)}")
        for (d, vtr, imm) in blk['tr']:
            A(f"ds_read_b64_tr_b16 {reg(off(blk['regs'], d), 2)}, {v(vtr)} offset:{imm}")
        if blk['post'] is not None:
            rg = blk['regs'][1]
            A(f"s_waitcnt lgkmcnt(0)")
            A(f"ds_write_b128 {v(vWoW)}, {v(rg,4)} offset:{blk['post']}")
            A(f"ds_write_b128 {v(vWoW)}, {v(rg+4,4)} offset:{blk['post']+1024}")
        while issued < nb and pending(b + 1) + len(blocks[issued]['soff']) <= WINDOW and regs_free(issued, b + 1):
            issue(issued)
            issued += 1
    A("s_waitcnt lgkmcnt(0)")
    stamp(A, 2) if not opts.get('cprof') else None
    A(f"s_barrier")
    mk_srd(A, S_A, P_MEM0, 8192)
    A(f"s_lshl_b32 {s(sT0)}, {s(sWAVE)}, 8")
    lane_expr(A, vT0, vL, [(2, 2, 2048), (0, 1, 1024), (1, 1, 64), (4, 2, 16)], sregs=[sT0])
    A(f"buffer_load_dwordx4 {v(X+16,4)}, {v(vT0)}, {s(S_A,4)}, 0 offen")
    A(f"buffer_load_dwordx4 {v(X+20,4)}, {v(vT0)}, {s(S_A,4)}, 0 offen offset:128")
    A(f"s_waitcnt vmcnt(0)")
    A(f"ds_write_b128 {v(vMw)}, {v(X+16,4)}")
    A(f"ds_write_b128 {v(vMw)}, {v(X+20,4)} offset:1024")
    for i in range(16):
        A(f"v_mov_b32 {v(ACC+i)}, 0")
    for i in range(8):
        A(f"v_mov_b32 {v(Y+24+i)}, 0")
    A(f"s_lshl_b32 {s(sW2k)}, {s(sWAVE)}, 11")
    A(f"s_sub_u32 {s(sT0)}, {s(sWAVE)}, 1")
    A(f"s_lshl_b32 {s(sT0)}, {s(sT0)}, 10")
    A(f"s_cmp_eq_u32 {s(sWAVE)}, 0")
    A(f"s_cselect_b32 {s(sW1k)}, {OOB:#x}, {s(sT0)}")
    A(f"s_add_u32 {s(sRaA)}, {s(sW1k)}, 6144")
    A(f"s_mov_b32 {s(sRaM)}, 262144")
    A(f"s_cmp_eq_u32 {s(sWAVE)}, 3")
    A(f"s_cselect_b32 {s(sRaA)}, {WS_M:#x}, {s(sRaA)}")
    A(f"s_cselect_b32 {s(sRaM)}, 8192, {s(sRaM)}")
    A(f"s_lshl_b32 {s(sFb)}, {s(sH)}, 7")
    A(f"s_add_u32 {s(sFb)}, {s(sFb)}, {WS_KVF:#x}")
    A(f"s_mov_b32 {s(sT5)}, {s(sFb)}")
    A(f"s_cmp_eq_u32 {s(sWAVE)}, 0")
    A(f"s_cselect_b32 {s(sFb)}, {OOB:#x}, {s(sFb)}")
    A(f"s_cmp_ge_u32 {s(sWAVE)}, 2")
    A(f"s_mov_b32 {s(sT0)}, {OOB:#x}")
    A(f"s_mov_b32 {s(sPf)}, {WS_KX + 0x80000:#x}")
    A(f"s_cselect_b32 {s(sPf)}, {s(sPf)}, {s(sT0)}")
    A(f"s_add_u32 {s(sM0K)}, {s(sW2k)}, {KX_OFF}")
    A(f"s_lshl_b32 {s(sKn)}, {s(sH)}, 14")
    A(f"s_add_u32 {s(sKn)}, {s(sKn)}, {s(sW2k)}")
    A(f"s_add_u32 {s(sKn)}, {s(sKn)}, {WS_KX:#x}")
    A(f"s_add_u32 {s(sM0V)}, {s(sW2k)}, {VX_OFF}")
    A(f"s_lshl_b32 {s(sKV)}, {s(sH)}, 14")
    A(f"s_add_u32 {s(sKV)}, {s(sKV)}, {s(sW2k)}")
    A(f"s_add_u32 {s(sKV)}, {s(sKV)}, {WS_KX:#x}")
    A(f"s_lshl_b32 {s(sKM)}, {s(sH)}, 12")
    A(f"s_add_u32 {s(sKM)}, {s(sKM)}, {WS_KM:#x}")
    A(f"s_mov_b32 {s(sJ4)}, 8")
    A(f"s_mov_b32 {s(sCn)}, 1")
    A(f"s_mov_b32 {s(sNeed)}, 1")
    A(f"s_add_u32 {s(sFo)}, {s(sFb)}, 8")
    A(f"v_mov_b32 {v(vT1)}, 0")
    A(f"s_mov_b32 {s(sT2)}, {D_CHECKIN*4}")
    A(f"s_mov_b32 {s(sT3)}, 0")
    wait_byte(A, vFlag, vT1, sT2, sT3, 32, "ci", sleep=1)
    A(f"buffer_load_dword {v(vFlag)}, {v(vT1)}, {s(S_DBG,4)}, 0 offen offset:{D_XCCMASK*4} sc1")
    A(f"s_waitcnt vmcnt(0)")
    A(f"v_readfirstlane_b32 {s(sT0)}, {v(vFlag)}")
    A(f"s_bcnt1_i32_b32 {s(sFastF)}, {s(sT0)}")
    for j in range(2):
        Lp = A.new_label("kvp")
        Ld = A.new_label("kvd")
        A(f"s_mov_b32 {s(sRet)}, 0")
        A(f"s_cmp_lg_u32 {s(sDEAD)}, 0")
        A(f"s_cbranch_scc1 {Ld}")
        A.label(Lp)
        A(f"buffer_load_dword {v(vFlag)}, off, {s(S_WS,4)}, {s(sT5)} offset:{4*j} sc1")
        A(f"s_waitcnt vmcnt(0)")
        A(f"v_readfirstlane_b32 {s(sT0)}, {v(vFlag)}")
        A(f"s_cmp_ge_u32 {s(sT0)}, 1")
        A(f"s_cbranch_scc1 {Ld}")
        A(f"s_sleep 1")
        A(f"s_add_u32 {s(sRet)}, {s(sRet)}, 1")
        A(f"s_cmp_lt_u32 {s(sRet)}, {SPIN_LIMIT}")
        A(f"s_cbranch_scc1 {Lp}")
        A(f"s_mov_b32 {s(sDEAD)}, 1")
        A.label(Ld)
    A(f"s_mov_b32 m0, {s(sM0K)}")
    A(f"s_nop 0")
    for i in range(2):
        A(f"buffer_load_dwordx4 {v(vL16)}, {s(S_WS,4)}, {s(sKn)} offen offset:{1024*i} lds")
    A(f"s_mov_b32 {s(sS)}, 0")
    A(f"s_waitcnt vmcnt(0) lgkmcnt(0)")
    A(f"s_barrier")
    stamp(A, 3) if not opts.get('cprof') else None
    if opts.get('cprof'):
        A(f"s_mov_b32 {s(sCP0)}, 0")
        A(f"s_mov_b32 {s(sCP1)}, 0")
    A(f"s_cmp_eq_u32 {s(sFastF)}, 1")
    if opts.get('forceslow'):
        A(f"s_branch L_own0_s")
    A(f"s_cbranch_scc0 L_own0_s")
    gen_step(A, True, opts)
    gen_step(A, False, opts)


def G_tr(A, vD, vL, kind, base_sreg):
    tr_lane_addr(A, vD, vL, vT0, vS0, kind, base_sreg=base_sreg)
```

```python
from dsl import *
import gen as G
from gen import *

QK_OFF, O_OFF, MEM_OFF, KX_OFF, VX_OFF, WO_OFF = 0, 4096, 8192, 16384, 24576, 32768

vL16, vKw, vIdx, vQKw, vQKr, vOw, vMw, vWo, vPst, vRed, vMst, vPf, vFlag, vJunk = range(14)
vT0, vT1 = 14, 15
vSEL = 16
vVM1, vKr, vONE = 20, 21, 22
vBM = 26
vS0, vIdxW = 30, 31
KIMG = [2048, 3072, 6144, 7168]
X = 32
Y = 64
PA = 96
ACC = 112
sH, sS, sSlotP, sSlotP1, sSlotP4, sSlotM, sKM, sKV, sC, sNC, sRet = range(44, 55)
sRa0, sRa2, sFastF = 55, 56, 57
sMLo, sMHi = 58, 60
sU = 76
sFo, sNeed, sJ4, sCn, sPf, sGat, sKn, sM0K, sM0V = 78, 79, 80, 81, 84, 85, 86, 87, 88
sW1k, sRaM, sRaA, sFb, sPfb, sW2k = 64, 65, 66, 67, 68, 69
sPc2, sPc3 = 70, 71
sRo, sRm = 72, 89
sPc = [sSlotP, sSlotP1, sPc2, sPc3]
sCP0, sCP1 = 82, 83
OOB = 0x40000000
RED_LIMIT = 1 << 16

LOG2E = 1.4426950408889634
SCALE_C = (128 ** -0.5) * LOG2E


def f32_hex(x):
    import struct
    return struct.unpack("<I", struct.pack("<f", x))[0]


RT = False
LATE = [False]
CSTEP = [39]


def lstamp(A, i, late=None):
    L = A.new_label("ls")
    if late is None:
        late = i >= 8
    A(f"s_cmp_lg_u32 {s(sS)}, {CSTEP[0] + 1 if late else CSTEP[0]}")
    A(f"s_cbranch_scc1 {L}")
    r = 16 + 2 * (i - 1) if i < 9 else 62
    A(f"{'s_memrealtime' if RT else 's_memtime'} s[{r}:{r+1}]")
    A.label(L)


def gen_step(A, fast, opts):
    st = "" if fast else " sc1"
    tag = "f" if fast else "s"
    Lown = [f"L_own0_{tag}", f"L_own1_{tag}"]
    Lcommon = f"L_common_{tag}"
    Llast = f"L_last_{tag}"
    lq = Q(A, "lgkmcnt", 15)
    cp = opts.get('cprof')
    rp = opts.get('rprof')
    AQ, AV, AK = ACC, ACC + 8, Y + 24
    CQ, CK = AQ + 2, AK + 2
    H0, H1 = X + 16, X + 24
    AO = Y
    KXR = {0: X + 16, 4: X + 20, 1: X + 24, 5: X + 28, 2: X, 6: X + 4, 3: X + 8, 7: X + 12}
    WB = {'q': lambda o: a(o, 8), 'k': lambda o: a(128 + o, 8), 'v': lambda o: v(128 + o, 8)}
    AC = {'q': AQ, 'k': AK, 'v': AV}
    vA = [None, vT0, vT1, vS0]

    def smf(m, jj, t, areg):
        A(f"v_smfmac_f32_16x16x64_bf16 {v(AC[m] + 4*t, 4)}, {v(areg, 4)}, {WB[m](16*jj + 8*t)}, {v(vIdx)}")

    def rdKX(j):
        lq.issue(('KX', j), f"ds_read_b128 {v(KXR[j],4)}, {v(vL16)} offset:{KX_OFF + j*1024}")

    salu = [
        f"s_and_b32 {s(sT4)}, {s(sS)}, 3",
        f"s_lshl_b32 {s(sSlotP)}, {s(sT4)}, 18",
        f"s_lshl_b32 {s(sSlotM)}, {s(sT4)}, 13",
        f"s_add_u32 {s(sSlotM)}, {s(sSlotM)}, {WS_M:#x}",
        f"s_add_u32 {s(sSlotP1)}, {s(sSlotP)}, 16384",
        f"s_add_u32 {s(sPc2)}, {s(sSlotP)}, 32768",
        f"s_add_u32 {s(sPc3)}, {s(sSlotP)}, 49152",
        f"s_add_u32 {s(sSlotP4)}, {s(sSlotP)}, 4096",
        f"s_add_u32 {s(sGat)}, {s(sSlotM)}, {s(sW2k)}",
        f"s_xor_b32 {s(sT4)}, {s(sT4)}, 2",
        f"s_lshl_b32 {s(sRa0)}, {s(sT4)}, 18",
        f"s_add_u32 {s(sRa0)}, {s(sRa0)}, {s(sW1k)}",
        f"s_mul_i32 {s(sRa2)}, {s(sT4)}, {s(sRaM)}",
        f"s_add_u32 {s(sRa2)}, {s(sRa2)}, {s(sRaA)}",
    ]

    def su(n):
        for _ in range(n):
            if salu:
                A(salu.pop(0))

    for var, H in enumerate((H0, H1)):
        A.label(Lown[var])
        if cp:
            lstamp(A, 9)
            lstamp(A, 1)
        lq.ops = []
        n = 0
        for m in 'qkv':
            for jj in range(2):
                for t in range(2):
                    n += 1
                    smf(m, jj, t, H + 4 * jj)
                    if n <= 3:
                        A(f"v_xor_b32 {v(vA[n])}, {n << 11:#x}, {v(vMw)}")
                    elif n == 4:
                        A(f"s_waitcnt lgkmcnt(0)")
                        A(f"s_barrier")
                    elif 5 <= n <= 10:
                        j2 = n - 5 + 2
                        lq.issue(('A', j2), f"ds_read_b128 {v(AO + 4*(j2-2), 4)}, {v(vA[j2 >> 1])} offset:{(j2 & 1) * 1024}")
                    elif n == 11:
                        A(f"s_mov_b32 m0, {s(sM0V)}")
                        A(f"s_add_u32 {s(sT3)}, {s(sKV)}, 8192")
                    elif n == 12:
                        A(f"buffer_load_dwordx4 {v(vL16)}, {s(S_WS,4)}, {s(sT3)} offen lds")
        if var == 0:
            A(f"s_branch {Lcommon}")
    A.label(Lcommon)
    n = 12
    for jj in range(2, 8):
        for t in range(2):
            n += 1
            if t == 0:
                lq.wait(('A', jj))
            smf('q', jj, t, AO + 4 * (jj - 2))
            if n == 13:
                A(f"buffer_load_dwordx4 {v(vL16)}, {s(S_WS,4)}, {s(sT3)} offen offset:1024 lds")
                rdKX(2)
            elif n == 14:
                A(f"buffer_load_dword {v(vFlag)}, off, {s(S_WS,4)}, {s(sFo)} sc1")
                rdKX(6)
            elif n == 15:
                if not opts.get('nopf'):
                    A(f"buffer_load_dword {v(vJunk)}, {v(vPf)}, {s(S_WS,4)}, {s(sPf)} offen")
                rdKX(3)
            elif n == 16:
                A(f"s_add_u32 {s(sT3)}, {s(sPf)}, 4096")
                rdKX(7)
            elif n == 17:
                if not opts.get('nopf'):
                    A(f"buffer_load_dword {v(vJunk)}, {v(vPf)}, {s(S_WS,4)}, {s(sT3)} offen")
                su(2)
            elif n == 18:
                A(f"s_waitcnt vmcnt(5)")
                su(2)
            elif 19 <= n <= 22:
                rdKX((0, 4, 1, 5)[n - 19])
                su(1)
            else:
                su(3)
    if cp and not rp:
        lstamp(A, 2)

    def post(m, step):
        t, k = step // 3, step % 3
        T = AC[m] + 4 * t
        if k < 2:
            A(f"v_add_f32 {v(T + k)}, {v(T + k)}, {v(T + k + 2)}")
        else:
            d = {'q': CQ + t, 'k': CK + t, 'v': (vS0, vVM1)[t]}[m]
            A(f"v_cvt_pk_bf16_f32 {v(d)}, {v(T)}, {v(T + 1)}")
    for jj in range(2, 8):
        for t in range(2):
            n += 1
            smf('k', jj, t, AO + 4 * (jj - 2))
            if n == 31:
                lq.issue('wq', f"ds_write2st64_b32 {v(vQKw)}, {v(CQ)}, {v(CQ+1)} offset0:0 offset1:1")
            elif n == 33:
                A(f"s_mov_b32 m0, {s(sM0K)}")
                A(f"s_add_u32 {s(sKn)}, {s(sKn)}, 0x80000")
            elif n == 35:
                lq.wait('wq')
                A(f"s_barrier")
            elif n == 36:
                A(f"buffer_load_dwordx4 {v(vL16)}, {s(S_WS,4)}, {s(sKn)} offen lds")
            if 25 <= n <= 30:
                post('q', n - 25)
            elif n >= 33:
                A(f"v_mov_b64 {v(ACC + 2*(n - 33), 2)}, 0")
    assert not salu
    if cp and not rp:
        lstamp(A, 3)
    QR, KR = Y, Y + 16

    def trq(i):
        ks, hf = i >> 1, i & 1
        lq.issue(('q', ks), f"ds_read_b64_tr_b16 {v(QR+4*ks+2*hf,2)}, {v(vQKr)} offset:{QK_OFF + (32*ks+8*hf)*16}")

    def trk(i):
        ks, hf = i >> 1, i & 1
        lq.issue(('k', ks), f"ds_read_b64_tr_b16 {v(KR+4*ks+2*hf,2)}, {v(vKr)} offset:{KIMG[ks] + hf*256}")
    trq_at = {38: 0, 39: 1, 40: 2, 41: 3, 42: 4, 44: 5, 45: 6, 46: 7}
    for jj in range(2, 8):
        for t in range(2):
            n += 1
            smf('v', jj, t, AO + 4 * (jj - 2))
            if n in trq_at:
                trq(trq_at[n])
            if n == 38:
                A(f"buffer_load_dwordx4 {v(vL16)}, {s(S_WS,4)}, {s(sKn)} offen offset:1024 lds")
            if n == 43:
                lq.issue('wk', f"ds_write2st64_b32 {v(vKw)}, {v(CK)}, {v(CK+1)} offset0:0 offset1:2")
            elif n == 44:
                A(f"buffer_store_dword {v(CK)}, {v(vQKw)}, {s(S_WS,4)}, {s(sKM)} offen sc1")
            elif n == 45:
                A(f"buffer_store_dword {v(CK+1)}, {v(vQKw)}, {s(S_WS,4)}, {s(sKM)} offen offset:256 sc1")
            elif n == 47:
                lq.wait('wk')
                A(f"s_barrier")
                trk(0)
            elif n == 48:
                trk(1)
            if 37 <= n <= 42:
                post('k', n - 37)
    if cp and not rp:
        lstamp(A, 4)
    T0, T1, TM = PA, PA + 4, PA + 8
    m, t_ = vT0, vT1
    wo_ops = [(cg, 0) for cg in range(4)] + [(cg, ks) for cg in range(4) for ks in range(1, 4)]
    bufs = [X + 16, X + 24, X, X + 8, Y, Y + 8, Y + 16, Y + 24]

    def rdW(i, half):
        cg, ks = wo_ops[i]
        o = (cg * 4 + ks) * 2048 + 1024 * half
        lq.issue(('W', i), f"ds_read_b128 {v(bufs[i % 8] + 4*half, 4)}, {v(vWo)} offset:{o}")
    for i in range(8):
        ks, t = i >> 1, i & 1
        if i in (0, 4):
            lq.wait(('q', ks + 1))
        T = (T0, T1)[t]
        c = "0" if ks == 0 else v(T, 4)
        A(f"v_mfma_f32_16x16x32_bf16 {v(T,4)}, {v(KXR[4*t+ks],4)}, {v(QR+4*ks,4)}, {c}")
        if i <= 5:
            trk(i + 2)
            post('v', i)
        elif i == 6:
            A(f"buffer_store_dword {v(vS0)}, {v(vQKw)}, {s(S_WS,4)}, {s(sKM)} offen offset:2048 sc1")
            A(f"buffer_store_dword {v(vVM1)}, {v(vQKw)}, {s(S_WS,4)}, {s(sKM)} offen offset:2304 sc1")
            A(f"v_mov_b64 {v(ACC+8,2)}, 0")
    A(f"s_cmp_eq_u32 {s(sS)}, 63")
    A(f"s_cbranch_scc1 {Llast}")
    for ks in range(4):
        if ks in (0, 2):
            lq.wait(('k', ks + 1))
        cm = "0" if ks == 0 else v(TM, 4)
        A(f"v_mfma_f32_16x16x32_bf16 {v(TM,4)}, {v(KR+4*ks,4)}, {v(QR+4*ks,4)}, {cm}")
        rdW(ks >> 1, ks & 1)
        if ks == 1:
            A(f"v_max3_f32 {v(m)}, {v(T0)}, {v(T0+1)}, {v(T0+2)}")
        elif ks == 2:
            A(f"v_max3_f32 {v(t_)}, {v(T0+3)}, {v(T1)}, {v(T1+1)}")
        elif ks == 3:
            A(f"v_max3_f32 {v(m)}, {v(m)}, {v(T1+2)}, {v(T1+3)}")
    def rearm(k):
        if opts.get('norearm'):
            A("s_nop 0")
        elif k < 2:
            A(f"buffer_store_dwordx4 {v(vSEL,4)}, {v(vRed)}, {s(S_WS,4)}, {s(sRa0)} offen offset:{3072*k}{st}")
        else:
            A(f"buffer_store_dwordx4 {v(vSEL,4)}, {v(vMst)}, {s(S_WS,4)}, {s(sRa2)} offen{st}")
    VX0 = Y + 16
    u0, u1 = TM + 2, TM + 3
    A(f"s_waitcnt vmcnt(9)")
    lq.issue('vx', f"ds_read_b128 {v(VX0,4)}, {v(vMw)} offset:{VX_OFF - MEM_OFF}")
    lq.issue('vx', f"ds_read_b128 {v(VX0+4,4)}, {v(vMw)} offset:{VX_OFF - MEM_OFF + 1024}")
    rdW(2, 0)
    rdW(2, 1)
    A(f"v_mov_b64 {v(ACC+10,2)}, 0")
    A(f"v_max3_f32 {v(m)}, {v(m)}, {v(t_)}, {v(TM)}")
    A(f"v_max_f32 {v(u0)}, {v(m)}, {v(TM+1)}")
    A(f"v_max_f32 {v(u1)}, {v(m)}, {v(TM+1)}")
    rdW(3, 0)
    rearm(0)
    A(f"v_permlane16_swap_b32 {v(u0)}, {v(u1)}")
    A(f"v_max_f32 {v(m)}, {v(u0)}, {v(u1)}")
    A(f"v_max_f32 {v(t_)}, {v(u0)}, {v(u1)}")
    rdW(3, 1)
    A(f"s_nop 0")
    A(f"v_permlane32_swap_b32 {v(m)}, {v(t_)}")
    A(f"v_max_f32 {v(m)}, {v(m)}, {v(t_)}")
    A(f"v_mul_f32 {v(m)}, {s(sNC)}, {v(m)}")
    BX = ACC + 12
    xs = [T0, T0 + 1, T0 + 2, T0 + 3, T1, T1 + 1, T1 + 2, T1 + 3]
    ms = [TM, TM + 1]
    for r in xs[:2]:
        A(f"v_fma_f32 {v(r)}, {v(r)}, {s(sC)}, {v(m)}")
    for j in range(8):
        A(f"v_exp_f32 {v(xs[j])}, {v(xs[j])}")
        nx = (xs + ms)[j + 2]
        A(f"v_fma_f32 {v(nx)}, {v(nx)}, {s(sC)}, {v(m)}")
        if j >= 2 and j % 2 == 0:
            q = (j - 2) // 2
            A(f"v_cvt_pk_bf16_f32 {v(BX+q)}, {v(xs[2*q])}, {v(xs[2*q+1])}")
        if j == 3:
            rearm(1)
    A(f"v_exp_f32 {v(ms[0])}, {v(ms[0])}")
    A(f"v_cvt_pk_bf16_f32 {v(BX+3)}, {v(xs[6])}, {v(xs[7])}")
    A(f"v_exp_f32 {v(ms[1])}, {v(ms[1])}")
    if cp and not rp:
        lstamp(A, 5)
    O0, O1, LS, PKO = PA, PA + 4, PA + 12, PA + 8
    lq.wait('vx')
    A(f"v_mfma_f32_16x16x32_bf16 {v(LS,4)}, {v(vONE,4)}, {v(BX,4)}, 0")
    A(f"v_cvt_pk_bf16_f32 {v(vBM)}, {v(ms[0])}, {v(ms[1])}")
    A(f"v_mfma_f32_16x16x32_bf16 {v(O0,4)}, {v(VX0,4)}, {v(BX,4)}, 0")
    rdW(4, 0)
    A(f"v_mfma_f32_16x16x32_bf16 {v(O1,4)}, {v(VX0+4,4)}, {v(BX,4)}, 0")
    rearm(2)
    A(f"v_mfma_f32_16x16x32_bf16 {v(LS,4)}, {v(vONE,4)}, {v(vBM,4)}, {v(LS,4)}")
    A(f"v_mfma_f32_16x16x32_bf16 {v(O0,4)}, {v(vS0,4)}, {v(vBM,4)}, {v(O0,4)}")
    A(f"v_mov_b64 {v(ACC+12,2)}, 0")
    A(f"v_mfma_f32_16x16x32_bf16 {v(O1,4)}, {v(vVM1,4)}, {v(vBM,4)}, {v(O1,4)}")
    rdW(4, 1)
    A(f"v_rcp_f32 {v(m)}, {v(LS)}")
    rdW(5, 0)
    A(f"v_mov_b64 {v(ACC+14,2)}, 0")
    for r in range(4):
        A(f"v_mul_f32 {v(O0+r)}, {v(O0+r)}, {v(m)}")
    A(f"v_cvt_pk_bf16_f32 {v(PKO)}, {v(O0)}, {v(O0+1)}")
    A(f"v_cvt_pk_bf16_f32 {v(PKO+1)}, {v(O0+2)}, {v(O0+3)}")
    for r in range(4):
        A(f"v_mul_f32 {v(O1+r)}, {v(O1+r)}, {v(m)}")
    A(f"v_cvt_pk_bf16_f32 {v(PKO+2)}, {v(O1)}, {v(O1+1)}")
    A(f"v_cvt_pk_bf16_f32 {v(PKO+3)}, {v(O1+2)}, {v(O1+3)}")
    lq.issue('wo_', f"ds_write_b128 {v(vOw)}, {v(PKO,4)} offset:0")
    AOr = [PKO, PA, PA + 4, PA + 12]
    vAo = [None, vT0, vT1, vS0]
    for k in range(1, 4):
        A(f"v_xor_b32 {v(vAo[k])}, {k << 9:#x}, {v(vOw)}")
    rdW(5, 1)
    rdW(6, 0)
    rdW(6, 1)
    if cp and not rp:
        lstamp(A, 6)

    def pack(cg, k):
        A(f"v_cvt_pk_bf16_f32 {v(ACC+4*cg+k)}, {v(ACC+4*cg+2*k)}, {v(ACC+4*cg+2*k+1)}")

    def pstore(cg):
        A(f"buffer_store_dwordx2 {v(ACC+4*cg,2)}, {v(vPst)}, {s(S_WS,4)}, {s(sPc[cg])} offen{st}")
    for i, (cg, ks) in enumerate(wo_ops):
        if ks:
            lq.wait(('Ao', ks))
        lq.wait(('W', i))
        A(f"v_smfmac_f32_16x16x64_bf16 {v(ACC+4*cg,4)}, {v(AOr[ks],4)}, {v(bufs[i % 8],8)}, {v(vIdxW)}")
        if i == 0:
            rdW(7, 0)
            rdW(7, 1)
        elif i == 1:
            lq.wait('wo_')
            A(f"s_barrier")
            for k in range(1, 4):
                lq.issue(('Ao', k), f"ds_read_b128 {v(AOr[k],4)}, {v(vAo[k])}")
        if 1 <= i < 9:
            rdW(i + 7, 0)
            rdW(i + 7, 1)
        if i in (8, 11, 14):
            pack((i - 8) // 3, 0)
        elif i in (9, 12, 15):
            pack((i - 9) // 3, 1)
            pstore((i - 9) // 3)
    A(f"s_nop 5")
    pack(3, 0)
    pack(3, 1)
    pstore(3)
    if cp:
        lstamp(A, 7)
    Lnr = A.new_label("notred")
    Lar = A.new_label("afterred")

    def bookkeeping():
        A(f"s_add_u32 {s(sS)}, {s(sS)}, 1")
        A(f"s_add_u32 {s(sKM)}, {s(sKM)}, 0x20000")
        A(f"s_add_u32 {s(sKV)}, {s(sKV)}, 0x80000")
        A(f"s_add_u32 {s(sPf)}, {s(sPf)}, 0x80000")
        A(f"s_add_u32 {s(sJ4)}, {s(sJ4)}, 4")
        A(f"s_cmp_eq_u32 {s(sJ4)}, 20")
        A(f"s_cselect_b32 {s(sJ4)}, 0, {s(sJ4)}")
        A(f"s_addc_u32 {s(sCn)}, {s(sCn)}, 0")

    def bookkeeping2():
        A(f"s_add_u32 {s(sFo)}, {s(sFb)}, {s(sJ4)}")
        A(f"s_cmp_lt_u32 {s(sS)}, 62")
        A(f"s_cselect_b32 {s(sNeed)}, {s(sCn)}, 0")

    def zero_acc():
        for i in range(8):
            A(f"v_mov_b64 {v(ACC+2*i,2)}, 0")
        for i in range(4):
            A(f"v_mov_b64 {v(AK+2*i,2)}, 0")

    if opts.get('rbar', 1):
        A(f"s_barrier")
    A(f"s_cmp_lg_u32 {s(sWAVE)}, 0")
    A(f"s_cbranch_scc1 {Lnr}")
    Lred = A.new_label("red")
    Lredok = A.new_label("redok")
    RA = PA
    two = opts.get('rtwo', 0)

    def once(i, ret=None):
        L = A.new_label("on")
        want = ret if ret is not None else (0 if i == 2 else 1)
        A(f"s_cmp_lg_u32 {s(sRet)}, {want}")
        A(f"s_cbranch_scc1 {L}")
        lstamp(A, i, True)
        A.label(L)

    def red_load(R, i):
        A(f"buffer_load_dwordx4 {v(R+4*i,4)}, {v(vRed)}, {s(S_WS,4)}, {s(sSlotP if i < 4 else sSlotP4)} offen offset:{(i%4)*1024} sc1")

    def red_issue(R):
        for i in range(8):
            red_load(R, i)

    def red_check(R, younger):
        for i in range(8):
            A(f"s_waitcnt vmcnt({younger + 7 - i})")
            if rp and i == 0:
                once(2 if R == X else 4)
            c = "0" if i == 0 else v(RA, 4)
            A(f"v_mfma_f32_16x16x32_bf16 {v(RA,4)}, {v(R+4*i,4)}, {v(vSEL,4)}, {c}")
        A(f"s_add_u32 {s(sRet)}, {s(sRet)}, 1")
        if rp:
            once(3 if R == X else 5, 1 if R == X else 2)
        A(f"s_nop 7")
        A(f"v_cmp_u_f32 vcc, {v(RA)}, {v(RA+1)}")
        A(f"v_cmp_u_f32 {s(sU,2)}, {v(RA+2)}, {v(RA+3)}")
        A(f"v_cvt_pk_bf16_f32 {v(RA+4)}, {v(RA)}, {v(RA+1)}")
        A(f"v_cvt_pk_bf16_f32 {v(RA+5)}, {v(RA+2)}, {v(RA+3)}")
        A(f"s_or_b64 vcc, vcc, {s(sU,2)}")
        A(f"s_cbranch_scc0 {Lredok}")
    zero_acc()
    bookkeeping()
    bookkeeping2()
    A(f"s_mov_b32 {s(sRet)}, 0")
    if opts.get('rroll', 0):
        sO = [sRo, sRo + 1, sRo + 2, sRo + 3]
        Lfin = A.new_label("rfin")
        A(f"s_mov_b32 {s(sO[0])}, {s(sSlotP)}")
        A(f"s_mov_b32 {s(sO[1])}, {s(sSlotP)}")
        A(f"s_mov_b32 {s(sO[2])}, {s(sSlotP4)}")
        A(f"s_mov_b32 {s(sO[3])}, {s(sSlotP4)}")
        A(f"s_mov_b32 {s(sRm)}, 15")
        A(f"v_mov_b64 {v(RA,2)}, 0")
        A(f"v_mov_b64 {v(RA+2,2)}, 0")
        for _ in range(opts.get('rdelay', 0)):
            A(f"s_sleep 1")

        def pair_issue(p):
            for i in (2 * p, 2 * p + 1):
                A(f"buffer_load_dwordx4 {v(X+4*i,4)}, {v(vRed)}, {s(S_WS,4)}, {s(sO[p])} offen offset:{(i%4)*1024} sc1")
        for p in range(4):
            pair_issue(p)
        A.label(Lred)
        for p in range(4):
            Lre = A.new_label("rre")
            R = X + 8 * p
            A(f"s_waitcnt vmcnt(6)")
            if rp and p == 0:
                once(2, 0)
            if rp and p == 3:
                once(3, 0)
            A(f"s_bitcmp1_b32 {s(sRm)}, {p}")
            A(f"s_cbranch_scc0 {Lre}")
            A(f"v_max3_u32 {v(vT0)}, {v(R)}, {v(R+1)}, {v(R+2)}")
            A(f"v_max3_u32 {v(vT1)}, {v(R+3)}, {v(R+4)}, {v(R+5)}")
            A(f"v_max3_u32 {v(vT0)}, {v(vT0)}, {v(R+6)}, {v(R+7)}")
            A(f"v_max_u32 {v(vT0)}, {v(vT0)}, {v(vT1)}")
            A(f"v_cmp_eq_u32 vcc, -1, {v(vT0)}")
            A(f"s_cbranch_vccnz {Lre}")
            A(f"v_mfma_f32_16x16x32_bf16 {v(RA,4)}, {v(R,4)}, {v(vSEL,4)}, {v(RA,4)}")
            A(f"s_bitset0_b32 {s(sRm)}, {p}")
            A(f"s_mov_b32 {s(sO[p])}, {OOB:#x}")
            A(f"v_mfma_f32_16x16x32_bf16 {v(RA,4)}, {v(R+4,4)}, {v(vSEL,4)}, {v(RA,4)}")
            A(f"s_cmp_eq_u32 {s(sRm)}, 0")
            A(f"s_cbranch_scc1 {Lfin}")
            A.label(Lre)
            pair_issue(p)
        A(f"s_add_u32 {s(sRet)}, {s(sRet)}, 1")
        A(f"s_cmp_lg_u32 {s(sDEAD)}, 0")
        A(f"s_cbranch_scc1 {Lfin}")
        A(f"s_cmp_lt_u32 {s(sRet)}, {RED_LIMIT}")
        A(f"s_cbranch_scc1 {Lred}")
        A(f"s_mov_b32 {s(sDEAD)}, 1")
        A.label(Lfin)
        A(f"s_nop 5")
        A(f"v_cvt_pk_bf16_f32 {v(RA+4)}, {v(RA)}, {v(RA+1)}")
        A(f"v_cvt_pk_bf16_f32 {v(RA+5)}, {v(RA+2)}, {v(RA+3)}")
    else:
        RS = [[X + 4 * i for i in range(8)], [Y + 4 * i for i in range(6)] + [PA + 8, PA + 12]]
        mode = opts.get('rmode', 1)

        def ld(R, i):
            A(f"buffer_load_dwordx4 {v(R[i],4)}, {v(vRed)}, {s(S_WS,4)}, {s(sSlotP if i < 4 else sSlotP4)} offen offset:{(i%4)*1024} sc1")

        def chk(R, other, cnt):
            for i in range(8):
                A(f"s_waitcnt vmcnt({cnt(i)})")
                if rp and i == 0:
                    once(2 if R is RS[0] else 4, 0)
                c = "0" if i == 0 else v(RA, 4)
                A(f"v_mfma_f32_16x16x32_bf16 {v(RA,4)}, {v(R[i],4)}, {v(vSEL,4)}, {c}")
                if other is not None:
                    ld(other, i)
            if rp:
                once(3 if R is RS[0] else 5, 0)
            if cp:
                A(f"s_add_u32 {s(sCP0)}, {s(sCP0)}, 1")
            A(f"s_nop {6 if other is not None else 7}")
            A(f"v_cmp_u_f32 vcc, {v(RA)}, {v(RA+1)}")
            A(f"v_cmp_u_f32 {s(sU,2)}, {v(RA+2)}, {v(RA+3)}")
            A(f"v_cvt_pk_bf16_f32 {v(RA+4)}, {v(RA)}, {v(RA+1)}")
            A(f"v_cvt_pk_bf16_f32 {v(RA+5)}, {v(RA+2)}, {v(RA+3)}")
            A(f"s_or_b64 vcc, vcc, {s(sU,2)}")
            A(f"s_cbranch_scc0 {Lredok}")
        for _ in range(opts.get('rdelay', 0)):
            A(f"s_sleep 1")
        for _ in range(opts.get('rnop', 0)):
            A(f"s_nop 3")
        for i in range(8):
            ld(RS[0], i)
        if mode == 2:
            for _ in range(opts.get('rspace', 0)):
                A(f"s_sleep 1")
            for i in range(8):
                ld(RS[1], i)
        A.label(Lred)
        if mode == 0:
            chk(RS[0], None, lambda i: 7 - i)
            for i in range(8):
                ld(RS[0], i)
        elif mode == 1:
            chk(RS[0], RS[1], lambda i: 7)
            chk(RS[1], RS[0], lambda i: 7)
        else:
            chk(RS[0], None, lambda i: 15 - i)
            for i in range(8):
                ld(RS[0], i)
            chk(RS[1], None, lambda i: 15 - i)
            for i in range(8):
                ld(RS[1], i)
        A(f"s_add_u32 {s(sRet)}, {s(sRet)}, 1")
        A(f"s_cmp_lg_u32 {s(sDEAD)}, 0")
        A(f"s_cbranch_scc1 {Lredok}")
        A(f"s_cmp_lt_u32 {s(sRet)}, {RED_LIMIT}")
        A(f"s_cbranch_scc1 {Lred}")
        A(f"s_mov_b32 {s(sDEAD)}, 1")
    A.label(Lredok)
    A(f"buffer_store_dwordx2 {v(RA+4,2)}, {v(vMst)}, {s(S_WS,4)}, {s(sSlotM)} offen{st}")
    if rp:
        lstamp(A, 6, True)
    A(f"s_branch {Lar}")
    A.label(Lnr)
    Lfok = A.new_label("fok")
    Lfsp = A.new_label("fsp")
    if rp:
        for (cnt, st_) in ((7, 2), (4, 3), (2, 4), (0, 5)):
            A(f"s_waitcnt vmcnt({cnt})")
            lstamp(A, st_)
    A(f"s_mov_b32 {s(sRet)}, 0")
    A(f"s_waitcnt vmcnt(15)")
    A(f"v_readfirstlane_b32 {s(sT0)}, {v(vFlag)}")
    zero_acc()
    A(f"s_cmp_ge_u32 {s(sT0)}, {s(sNeed)}")
    A(f"s_cbranch_scc1 {Lfok}")
    A(f"s_cmp_lg_u32 {s(sDEAD)}, 0")
    A(f"s_cbranch_scc1 {Lfok}")
    A(f"s_mov_b32 {s(sRet)}, 0")
    A.label(Lfsp)
    A(f"buffer_load_dword {v(vFlag)}, off, {s(S_WS,4)}, {s(sFo)} sc1")
    A(f"s_waitcnt vmcnt(0)")
    A(f"v_readfirstlane_b32 {s(sT0)}, {v(vFlag)}")
    A(f"s_cmp_ge_u32 {s(sT0)}, {s(sNeed)}")
    A(f"s_cbranch_scc1 {Lfok}")
    A(f"s_sleep 1")
    A(f"s_add_u32 {s(sRet)}, {s(sRet)}, 1")
    A(f"s_cmp_lt_u32 {s(sRet)}, {SPIN_LIMIT}")
    A(f"s_cbranch_scc1 {Lfsp}")
    A(f"s_mov_b32 {s(sDEAD)}, 1")
    A.label(Lfok)
    if opts.get('steplog'):
        Lsl = A.new_label("sl")
        A(f"s_cmp_lg_u32 {s(sWAVE)}, 1")
        A(f"s_cbranch_scc1 {Lsl}")
        A(f"s_memrealtime s[62:63]")
        A(f"s_lshl_b32 {s(sT0)}, {s(sH)}, 6")
        A(f"s_add_u32 {s(sT0)}, {s(sT0)}, {s(sS)}")
        A(f"s_lshl_b32 {s(sT0)}, {s(sT0)}, 3")
        A(f"s_add_u32 {s(sT0)}, {s(sT0)}, {WS_T + 0x8000:#x}")
        A(f"s_waitcnt lgkmcnt(0)")
        A(f"v_mov_b32 {v(vT0)}, s62")
        A(f"v_mov_b32 {v(vT1)}, {s(sRet)}")
        A(f"s_mov_b64 exec, 1")
        A(f"buffer_store_dwordx2 {v(vT0,2)}, off, {s(S_WS,4)}, {s(sT0)}")
        A(f"s_mov_b64 exec, -1")
        A.label(Lsl)
    bookkeeping()
    bookkeeping2()
    A.label(Lar)
    A(f"s_barrier")
    if cp:
        lstamp(A, 8)
    Lcon = A.new_label("con")
    Lconok = A.new_label("conok")
    gtwo = opts.get('gtwo', 1)

    def con_issue(R):
        A(f"buffer_load_dwordx4 {v(R,4)}, {v(vL16)}, {s(S_WS,4)}, {s(sGat)} offen sc1")
        A(f"buffer_load_dwordx4 {v(R+4,4)}, {v(vL16)}, {s(S_WS,4)}, {s(sGat)} offen offset:1024 sc1")

    def con_check(R, younger, ok):
        A(f"s_waitcnt vmcnt({younger})")
        A(f"ds_write_b128 {v(vMw)}, {v(R,4)}")
        A(f"v_max3_u32 {v(vT0)}, {v(R)}, {v(R+1)}, {v(R+2)}")
        A(f"v_max3_u32 {v(vT1)}, {v(R+3)}, {v(R+4)}, {v(R+5)}")
        A(f"ds_write_b128 {v(vMw)}, {v(R+4,4)} offset:1024")
        A(f"v_max3_u32 {v(vT0)}, {v(vT0)}, {v(R+6)}, {v(R+7)}")
        A(f"v_max_u32 {v(vT0)}, {v(vT0)}, {v(vT1)}")
        A(f"v_cmp_eq_u32 vcc, -1, {v(vT0)}")
        A(f"s_add_u32 {s(sRet)}, {s(sRet)}, 1")
        if cp:
            A(f"s_add_u32 {s(sCP1)}, {s(sCP1)}, 1")
        A(f"s_cbranch_vccz {ok}")
    A(f"s_mov_b32 {s(sRet)}, 0")
    for _ in range(opts.get('gdelay', 0)):
        A(f"s_sleep 1")
    con_issue(H0)
    if gtwo:
        for _ in range(opts.get('gspace', 1)):
            A(f"s_sleep 1")
        con_issue(H1)
        A.label(Lcon)
        con_check(H0, 2, Lown[0])
        con_issue(H0)
        con_check(H1, 2, Lown[1])
        con_issue(H1)
    else:
        A.label(Lcon)
        con_check(H0, 0, Lown[0])
        con_issue(H0)
    A(f"s_cmp_lg_u32 {s(sDEAD)}, 0")
    A(f"s_cbranch_scc1 {Lown[0]}")
    A(f"s_cmp_lt_u32 {s(sRet)}, {RED_LIMIT}")
    A(f"s_cbranch_scc1 {Lcon}")
    A(f"s_mov_b32 {s(sDEAD)}, 1")
    A(f"s_branch {Lown[0]}")
    A.label(Llast)
    A(f"s_waitcnt vmcnt(0) lgkmcnt(0)")
    if cp:
        for i in range(1, 10):
            A(f"s_mov_b32 s{92+i}, s{16+2*(i-1) if i < 9 else 62}")
        A(f"s_lshl_b32 {s(sCP1)}, {s(sCP1)}, 16")
        A(f"s_or_b32 s92, {s(sCP0)}, {s(sCP1)}")
        A("s_branch L_flush")
    A(f"s_branch L_role_end")


def gen_chain(A, opts):
    global RT
    RT = bool(opts.get('rt'))
    CSTEP[0] = opts.get('cstep', 39)
    vL = 13
    A(f"s_mov_b32 {s(sH)}, {s(sIDX)}")
    A(f"v_and_b32 {v(vL)}, 63, v0")
    mk_srd(A, S_A, P_WQ, 512 * 8192)
    mk_srd(A, S_B, P_WK, 512 * 8192)
    mk_srd(A, S_C, P_WV, 512 * 8192)
    mk_srd(A, S_D, P_WO, 4096 * 1024)
    A(f"v_lshlrev_b32 {v(vL16)}, 4, {v(vL)}")
    for i in range(4):
        A(f"v_mov_b32 {v(vSEL+i)}, -1")
    A(f"s_lshl_b32 {s(sT0)}, {s(sH)}, 13")
    A(f"s_lshl_b32 {s(sT1)}, {s(sWAVE)}, 11")
    A(f"s_add_u32 {s(sT0)}, {s(sT0)}, {s(sT1)}")
    for sl in range(4):
        A(f"s_add_u32 {s(sT1)}, {s(sT0)}, {sl*262144}")
        A(f"buffer_store_dwordx4 {v(vSEL,4)}, {v(vL16)}, {s(S_WS,4)}, {s(sT1)} offen sc1")
        A(f"buffer_store_dwordx4 {v(vSEL,4)}, {v(vL16)}, {s(S_WS,4)}, {s(sT1)} offen offset:1024 sc1")
    A(f"s_lshl_b32 {s(sT2)}, {s(sH)}, 8")
    A(f"v_add_u32 {v(vT0)}, {s(sT2)}, {v(vL16)}")
    A(f"v_cmp_gt_u32 vcc, 16, {v(vL)}")
    A(f"v_mov_b32 {v(vT1)}, {OOB:#x}")
    A.nop(1)
    A(f"v_cndmask_b32 {v(vT0)}, {v(vT1)}, {v(vT0)}, vcc")
    for sl in range(4):
        A(f"s_mov_b32 {s(sT1)}, {WS_M + sl*8192:#x}")
        A(f"buffer_store_dwordx4 {v(vSEL,4)}, {v(vT0)}, {s(S_WS,4)}, {s(sT1)} offen sc1")
    for i in range(4):
        A(f"v_mov_b32 {v(X+i)}, 0")
    A(f"v_cmp_gt_u32 vcc, 16, {v(vL)}")
    A(f"v_mov_b32 {v(X+5)}, {OOB:#x}")
    A.nop(1)
    A(f"v_cndmask_b32 {v(X+4)}, {v(X+5)}, {v(vL16)}, vcc")
    A(f"s_lshl_b32 {s(sT1)}, {s(sH)}, 8")
    A(f"s_add_u32 {s(sT1)}, {s(sT1)}, {WS_OF:#x}")
    A(f"buffer_store_dwordx4 {v(X,4)}, {v(X+4)}, {s(S_WS,4)}, {s(sT1)} offen sc1")
    A(f"v_cmp_gt_u32 vcc, 8, {v(vL)}")
    A.nop(2)
    A(f"v_cndmask_b32 {v(X+4)}, {v(X+5)}, {v(vL16)}, vcc")
    A(f"s_lshl_b32 {s(sT1)}, {s(sH)}, 7")
    A(f"s_add_u32 {s(sT1)}, {s(sT1)}, {WS_KVF:#x}")
    A(f"buffer_store_dwordx4 {v(X,4)}, {v(X+4)}, {s(S_WS,4)}, {s(sT1)} offen sc1")
    A(f"s_lshr_b32 {s(sT3)}, {s(sH)}, 2")
    A(f"s_lshl_b32 {s(sT3)}, {s(sT3)}, 10")
    A(f"s_and_b32 {s(sT4)}, {s(sH)}, 1")
    A(f"s_lshl_b32 {s(sT4)}, {s(sT4)}, 9")
    A(f"s_add_u32 {s(sT3)}, {s(sT3)}, {s(sT4)}")
    A(f"s_and_b32 {s(sT4)}, {s(sH)}, 2")
    A(f"s_lshl_b32 {s(sT4)}, {s(sT4)}, 4")
    A(f"s_add_u32 {s(sT3)}, {s(sT3)}, {s(sT4)}")
    lane_expr(A, vMst, vL, [(5, 1, 256), (1, 2, 64), (0, 1, 16), (4, 1, 8)], sregs=[sT3])
    A(f"v_and_b32 {v(vT1)}, 8, {v(vL)}")
    A(f"v_lshlrev_b32 {v(vT1)}, 27, {v(vT1)}")
    A(f"v_add_u32 {v(vMst)}, {v(vMst)}, {v(vT1)}")
    A(f"s_cmp_eq_u32 {s(sWAVE)}, 0")
    Lw0 = A.new_label("w0")
    A(f"s_cbranch_scc1 {Lw0}")
    A(f"v_mov_b32 {v(vMst)}, {v(vT0)}")
    A(f"s_cmp_eq_u32 {s(sWAVE)}, 3")
    A(f"s_cbranch_scc1 {Lw0}")
    A(f"s_lshl_b32 {s(sT0)}, {s(sH)}, 13")
    A(f"v_add_u32 {v(vMst)}, {s(sT0)}, {v(vL16)}")
    A.label(Lw0)
    A(f"s_getreg_b32 {s(sT0)}, hwreg(HW_REG_XCC_ID, 0, 4)")
    A(f"s_lshl_b32 {s(sT0)}, 1, {s(sT0)}")
    A(f"v_mov_b32 {v(vT0)}, {s(sT0)}")
    A(f"v_mov_b32 {v(vT1)}, 0")
    A(f"s_waitcnt vmcnt(0)")
    A(f"s_barrier")
    Lci = A.new_label("ci")
    A(f"s_cmp_lg_u32 {s(sWAVE)}, 0")
    A(f"s_cbranch_scc1 {Lci}")
    A(f"s_mov_b64 exec, 1")
    A(f"buffer_atomic_or {v(vT0)}, {v(vT1)}, {s(S_DBG,4)}, 0 offen offset:{D_XCCMASK*4} sc1")
    A(f"s_waitcnt vmcnt(0)")
    A(f"v_mov_b32 {v(vT0)}, 1")
    A(f"buffer_atomic_add {v(vT0)}, {v(vT1)}, {s(S_DBG,4)}, 0 offen offset:{D_CHECKIN*4} sc1")
    A(f"s_mov_b64 exec, -1")
    A.label(Lci)
    for (dst, bit) in ((vIdx, 2), (vIdxW, 8)):
        A(f"v_mov_b32 {v(dst)}, 0x4444")
        A(f"v_mov_b32 {v(vT0)}, 0xeeee")
        A(f"v_and_b32 {v(vT1)}, {bit}, {v(vL)}")
        A(f"v_cmp_ne_u32 vcc, 0, {v(vT1)}")
        A.nop(2)
        A(f"v_cndmask_b32 {v(dst)}, {v(dst)}, {v(vT0)}, vcc")
    A(f"s_lshl_b32 {s(sT0)}, {s(sWAVE)}, 9")
    lane_expr(A, vQKw, vL, [(0, 4, 16), (4, 2, 4)], sregs=[sT0])
    A(f"s_lshl_b32 {s(sT0)}, {s(sWAVE)}, 10")
    A(f"s_lshr_b32 {s(sT1)}, {s(sWAVE)}, 1")
    A(f"s_lshl_b32 {s(sT1)}, {s(sT1)}, 11")
    A(f"s_add_u32 {s(sT0)}, {s(sT0)}, {s(sT1)}")
    lane_expr(A, vKw, vL, [(0, 4, 32), (4, 2, 8)], const=2048, sregs=[sT0])
    lane_expr(A, vKr, vL, [(5, 1, 512), (4, 1, 128), (2, 2, 32), (0, 2, 8)])
    lane_expr(A, vQKr, vL, [(5, 1, 256), (4, 1, 64), (2, 2, 16), (0, 1, 8)])
    A(f"s_lshl_b32 {s(sT0)}, {s(sWAVE)}, 9")
    lane_expr(A, vOw, vL, [(4, 2, 128), (0, 3, 16)], const=O_OFF, sregs=[sT0])
    A(f"s_lshl_b32 {s(sT0)}, {s(sWAVE)}, 11")
    A(f"s_add_u32 {s(sT0)}, {s(sT0)}, {MEM_OFF}")
    A(f"v_add_u32 {v(vMw)}, {s(sT0)}, {v(vL16)}")
    A(f"s_lshl_b32 {s(sT0)}, {s(sWAVE)}, 15")
    A(f"s_add_u32 {s(sT0)}, {s(sT0)}, {WO_OFF}")
    A(f"v_add_u32 {v(vWo)}, {s(sT0)}, {v(vL16)}")
    A(f"s_lshl_b32 {s(sT0)}, {s(sWAVE)}, 16")
    A(f"s_lshl_b32 {s(sT1)}, {s(sH)}, 8")
    lane_expr(A, vPst, vL, [(5, 1, 8192), (0, 4, 16), (4, 1, 8)], sregs=[sT0, sT1])
    A(f"s_lshl_b32 {s(sT0)}, {s(sH)}, 13")
    A(f"v_add_u32 {v(vRed)}, {s(sT0)}, {v(vL16)}")
    A(f"s_and_b32 {s(sT1)}, {s(sWAVE)}, 1")
    A(f"s_lshl_b32 {s(sT1)}, {s(sT1)}, 13")
    A(f"s_lshl_b32 {s(sT0)}, {s(sH)}, 14")
    A(f"s_add_u32 {s(sT0)}, {s(sT0)}, {s(sT1)}")
    A(f"v_lshlrev_b32 {v(vPf)}, 6, {v(vL)}")
    A(f"v_add_u32 {v(vPf)}, {s(sT0)}, {v(vPf)}")
    A(f"s_mov_b32 {s(sMLo)}, -1")
    A(f"s_mov_b32 {s(sMLo+1)}, 0")
    A(f"s_mov_b32 {s(sMHi)}, 0")
    A(f"s_mov_b32 {s(sMHi+1)}, -1")
    A(f"s_mov_b32 {s(sC)}, {f32_hex(SCALE_C):#x}")
    A(f"s_mov_b32 {s(sNC)}, {f32_hex(-SCALE_C):#x}")
    for i in range(4):
        A(f"v_mov_b32 {v(vONE+i)}, 0x3f803f80")
    for i in range(1, 4):
        A(f"v_mov_b32 {v(vBM+i)}, 0")
    Lsel = A.new_label("sel")
    A(f"s_cmp_lg_u32 {s(sWAVE)}, 0")
    A(f"s_cbranch_scc1 {Lsel}")
    A(f"v_and_b32 {v(vT0)}, 15, {v(vL)}")
    A(f"v_mov_b32 {v(vS0)}, 0x3f80")
    A(f"v_mov_b32 {v(X+30)}, 0x3f800000")
    A(f"v_and_b32 {v(vT1)}, 1, {v(vT0)}")
    A(f"v_cmp_eq_u32 vcc, 1, {v(vT1)}")
    A.nop(2)
    A(f"v_cndmask_b32 {v(vS0)}, {v(vS0)}, {v(X+30)}, vcc")
    A(f"v_lshrrev_b32 {v(vT0)}, 1, {v(vT0)}")
    for i in range(4):
        A(f"v_cmp_eq_u32 vcc, {i}, {v(vT0)}")
        A.nop(2)
        A(f"v_cndmask_b32 {v(vSEL+i)}, 0, {v(vS0)}, vcc")
    A.label(Lsel)

    vWG, vWGo, vST, vTRq, vTRo, vWoW = X, X + 1, X + 2, X + 3, X + 4, X + 5
    raw_lane_off(A, vWG, vL, vT0, 8192)
    A(f"s_lshl_b32 {s(sT0)}, {s(sH)}, 8")
    A(f"s_lshl_b32 {s(sT1)}, {s(sWAVE)}, 6")
    A(f"s_add_u32 {s(sT0)}, {s(sT0)}, {s(sT1)}")
    A(f"v_add_u32 {v(vWG)}, {s(sT0)}, {v(vWG)}")
    raw_lane_off(A, vWGo, vL, vT0, 1024)
    A(f"s_lshl_b32 {s(sT0)}, {s(sH)}, 17")
    A(f"s_lshl_b32 {s(sT1)}, {s(sWAVE)}, 8")
    A(f"s_add_u32 {s(sT0)}, {s(sT0)}, {s(sT1)}")
    A(f"v_add_u32 {v(vWGo)}, {s(sT0)}, {v(vWGo)}")
    SB = 6144
    A(f"s_mul_i32 {s(sT2)}, {s(sWAVE)}, {SB}")
    stage_lane_addr(A, vST, vL, vT0, sT2)
    A(f"v_and_b32 {v(vTRq)}, 3, {v(vL)}")
    A(f"v_lshlrev_b32 {v(vTRq)}, 3, {v(vTRq)}")
    for (sh, mul) in ((5, stage_addr(8)), (4, stage_addr(4)), (2, stage_addr(1)), (3, stage_addr(32))):
        A(f"v_bfe_u32 {v(vT0)}, {v(vL)}, {sh}, 1")
        A(f"v_mul_u32_u24 {v(vT0)}, {mul}, {v(vT0)}")
        A(f"v_add_u32 {v(vTRq)}, {v(vTRq)}, {v(vT0)}")
    A(f"v_add_u32 {v(vTRq)}, {s(sT2)}, {v(vTRq)}")
    G_tr(A, vTRo, vL, 'chain_wo', sT2)
    A(f"v_mov_b32 {v(vWoW)}, {v(vWo)}")
    sXq, sXo = sRo, sRo + 1
    A(f"s_lshl_b32 {s(sXq)}, {s(sWAVE)}, 20")
    A(f"s_lshl_b32 {s(sXo)}, {s(sWAVE)}, 15")
    pool = [X + 8 + 8 * i for i in range(11)]
    blocks = []
    wo_blocks = []
    for cg in range(4):
        for ks in range(4):
            rg = pool[len(wo_blocks) % len(pool)]
            o = (cg * 4 + ks) * 2048
            wo_blocks.append(dict(srd=S_D, voff=vWGo, sx=sXo, soff=[(32 * ks + 16 * k) * 1024 + cg * 64 for k in range(2)],
                                  regs=('v', rg), tr=[(2 * i, vTRo, TR_IMM['chain_wo'][i]) for i in range(4)], post=o))
    qkv = []
    for (srd, dst) in ((S_A, ('a', 0)), (S_B, ('a', 128)), (S_C, ('v', 128))):
        for jj in range(8):
            qkv.append(dict(srd=srd, voff=vWG, sx=sXq, soff=[(64 * jj + 16 * k) * 8192 for k in range(4)], regs=off(dst, 16 * jj),
                            tr=[(8 * t + 2 * q, vTRq, stage_addr(16 * (q >> 1) + 2 * (q & 1)) + 32 * t) for t in range(2) for q in range(4)],
                            post=None))
    blocks = wo_blocks[:11] + qkv + wo_blocks[11:]
    stamp(A, 1) if not opts.get('cprof') else None
    WINDOW = 62
    issued, inflight = 0, []
    nb = len(blocks)

    def regs_free(b, done):
        for p_ in range(b):
            if blocks[p_]['regs'] == blocks[b]['regs'] and p_ >= done:
                return False
        return True

    def issue(b):
        blk = blocks[b]
        for k, so in enumerate(blk['soff']):
            A(f"s_xor_b32 {s(sT0)}, {so:#x}, {s(blk['sx'])}")
            A(f"buffer_load_dwordx4 {reg(off(blk['regs'], 4*k), 4)}, {v(blk['voff'])}, {s(blk['srd'],4)}, {s(sT0)} offen")

    def pending(frm):
        return sum(len(blocks[i]['soff']) for i in range(frm, issued))
    while issued < nb and pending(0) + len(blocks[issued]['soff']) <= WINDOW and regs_free(issued, 0):
        issue(issued)
        issued += 1
    for b in range(nb):
        blk = blocks[b]
        assert issued > b
        A(f"s_waitcnt vmcnt({pending(b + 1)})")
        for k in range(len(blk['soff'])):
            A(f"ds_write_b128 {v(vST)}, {reg(off(blk['regs'], 4*k), 4)} offset:{stage_addr(16*k)}")
        for (d, vtr, imm) in blk['tr']:
            A(f"ds_read_b64_tr_b16 {reg(off(blk['regs'], d), 2)}, {v(vtr)} offset:{imm}")
        if blk['post'] is not None:
            rg = blk['regs'][1]
            A(f"s_waitcnt lgkmcnt(0)")
            A(f"ds_write_b128 {v(vWoW)}, {v(rg,4)} offset:{blk['post']}")
            A(f"ds_write_b128 {v(vWoW)}, {v(rg+4,4)} offset:{blk['post']+1024}")
        if opts.get('prof') and not opts.get('cprof') and b in (0, 10, 18, 26, 34):
            stamp(A, {0: 4, 10: 5, 18: 6, 26: 7, 34: 8}[b])
        while issued < nb and pending(b + 1) + len(blocks[issued]['soff']) <= WINDOW and regs_free(issued, b + 1):
            issue(issued)
            issued += 1
    A("s_waitcnt lgkmcnt(0)")
    stamp(A, 2) if not opts.get('cprof') else None
    A(f"s_barrier")
    if opts.get('odelay'):
        Lwd = A.new_label("wdone")
        A(f"s_cmp_lg_u32 {s(sWAVE)}, 0")
        A(f"s_cbranch_scc1 {Lwd}")
        A(f"v_mov_b32 {v(vT0)}, 1")
        A(f"v_mov_b32 {v(vT1)}, 0")
        A(f"s_mov_b64 exec, 1")
        A(f"buffer_atomic_add {v(vT0)}, {v(vT1)}, {s(S_DBG,4)}, 0 offen offset:{D_WDONE*4} sc1")
        A(f"s_mov_b64 exec, -1")
        A.label(Lwd)
    mk_srd(A, S_A, P_MEM0, 8192)
    A(f"s_lshl_b32 {s(sT0)}, {s(sWAVE)}, 8")
    lane_expr(A, vT0, vL, [(2, 2, 2048), (0, 1, 1024), (1, 1, 64), (4, 2, 16)], sregs=[sT0])
    A(f"buffer_load_dwordx4 {v(X+16,4)}, {v(vT0)}, {s(S_A,4)}, 0 offen")
    A(f"buffer_load_dwordx4 {v(X+20,4)}, {v(vT0)}, {s(S_A,4)}, 0 offen offset:128")
    A(f"s_waitcnt vmcnt(0)")
    A(f"ds_write_b128 {v(vMw)}, {v(X+16,4)}")
    A(f"ds_write_b128 {v(vMw)}, {v(X+20,4)} offset:1024")
    for i in range(16):
        A(f"v_mov_b32 {v(ACC+i)}, 0")
    for i in range(8):
        A(f"v_mov_b32 {v(Y+24+i)}, 0")
    A(f"s_lshl_b32 {s(sW2k)}, {s(sWAVE)}, 11")
    A(f"s_sub_u32 {s(sT0)}, {s(sWAVE)}, 1")
    A(f"s_lshl_b32 {s(sT0)}, {s(sT0)}, 10")
    A(f"s_cmp_eq_u32 {s(sWAVE)}, 0")
    A(f"s_cselect_b32 {s(sW1k)}, {OOB:#x}, {s(sT0)}")
    A(f"s_add_u32 {s(sRaA)}, {s(sW1k)}, 6144")
    A(f"s_mov_b32 {s(sRaM)}, 262144")
    A(f"s_cmp_eq_u32 {s(sWAVE)}, 3")
    A(f"s_cselect_b32 {s(sRaA)}, {WS_M:#x}, {s(sRaA)}")
    A(f"s_cselect_b32 {s(sRaM)}, 8192, {s(sRaM)}")
    A(f"s_lshl_b32 {s(sFb)}, {s(sH)}, 7")
    A(f"s_add_u32 {s(sFb)}, {s(sFb)}, {WS_KVF:#x}")
    A(f"s_mov_b32 {s(sT5)}, {s(sFb)}")
    A(f"s_cmp_eq_u32 {s(sWAVE)}, 0")
    A(f"s_cselect_b32 {s(sFb)}, {OOB:#x}, {s(sFb)}")
    A(f"s_cmp_ge_u32 {s(sWAVE)}, 2")
    A(f"s_mov_b32 {s(sT0)}, {OOB:#x}")
    A(f"s_mov_b32 {s(sPf)}, {WS_KX + 0x80000:#x}")
    A(f"s_cselect_b32 {s(sPf)}, {s(sPf)}, {s(sT0)}")
    A(f"s_add_u32 {s(sM0K)}, {s(sW2k)}, {KX_OFF}")
    A(f"s_lshl_b32 {s(sKn)}, {s(sH)}, 14")
    A(f"s_add_u32 {s(sKn)}, {s(sKn)}, {s(sW2k)}")
    A(f"s_add_u32 {s(sKn)}, {s(sKn)}, {WS_KX:#x}")
    A(f"s_add_u32 {s(sM0V)}, {s(sW2k)}, {VX_OFF}")
    A(f"s_lshl_b32 {s(sKV)}, {s(sH)}, 14")
    A(f"s_add_u32 {s(sKV)}, {s(sKV)}, {s(sW2k)}")
    A(f"s_add_u32 {s(sKV)}, {s(sKV)}, {WS_KX:#x}")
    A(f"s_lshl_b32 {s(sKM)}, {s(sH)}, 12")
    A(f"s_add_u32 {s(sKM)}, {s(sKM)}, {WS_KM:#x}")
    A(f"s_mov_b32 {s(sJ4)}, 8")
    A(f"s_mov_b32 {s(sCn)}, 1")
    A(f"s_mov_b32 {s(sNeed)}, 1")
    A(f"s_add_u32 {s(sFo)}, {s(sFb)}, 8")
    A(f"v_mov_b32 {v(vT1)}, 0")
    A(f"s_mov_b32 {s(sT2)}, {D_CHECKIN*4}")
    A(f"s_mov_b32 {s(sT3)}, 0")
    wait_byte(A, vFlag, vT1, sT2, sT3, 32, "ci", sleep=1)
    A(f"buffer_load_dword {v(vFlag)}, {v(vT1)}, {s(S_DBG,4)}, 0 offen offset:{D_XCCMASK*4} sc1")
    A(f"s_waitcnt vmcnt(0)")
    A(f"v_readfirstlane_b32 {s(sT0)}, {v(vFlag)}")
    A(f"s_bcnt1_i32_b32 {s(sFastF)}, {s(sT0)}")
    for j in range(2):
        Lp = A.new_label("kvp")
        Ld = A.new_label("kvd")
        A(f"s_mov_b32 {s(sRet)}, 0")
        A(f"s_cmp_lg_u32 {s(sDEAD)}, 0")
        A(f"s_cbranch_scc1 {Ld}")
        A.label(Lp)
        A(f"buffer_load_dword {v(vFlag)}, off, {s(S_WS,4)}, {s(sT5)} offset:{4*j} sc1")
        A(f"s_waitcnt vmcnt(0)")
        A(f"v_readfirstlane_b32 {s(sT0)}, {v(vFlag)}")
        A(f"s_cmp_ge_u32 {s(sT0)}, 1")
        A(f"s_cbranch_scc1 {Ld}")
        A(f"s_sleep 1")
        A(f"s_add_u32 {s(sRet)}, {s(sRet)}, 1")
        A(f"s_cmp_lt_u32 {s(sRet)}, {SPIN_LIMIT}")
        A(f"s_cbranch_scc1 {Lp}")
        A(f"s_mov_b32 {s(sDEAD)}, 1")
        A.label(Ld)
    A(f"s_mov_b32 m0, {s(sM0K)}")
    A(f"s_nop 0")
    for i in range(2):
        A(f"buffer_load_dwordx4 {v(vL16)}, {s(S_WS,4)}, {s(sKn)} offen offset:{1024*i} lds")
    A(f"s_mov_b32 {s(sS)}, 0")
    A(f"s_waitcnt vmcnt(0) lgkmcnt(0)")
    A(f"s_barrier")
    stamp(A, 3) if not opts.get('cprof') else None
    if opts.get('cprof'):
        A(f"s_mov_b32 {s(sCP0)}, 0")
        A(f"s_mov_b32 {s(sCP1)}, 0")
    A(f"s_cmp_eq_u32 {s(sFastF)}, 1")
    if opts.get('forceslow'):
        A(f"s_branch L_own0_s")
    A(f"s_cbranch_scc0 L_own0_s")
    gen_step(A, True, opts)
    gen_step(A, False, opts)


def G_tr(A, vD, vL, kind, base_sreg):
    tr_lane_addr(A, vD, vL, vT0, vS0, kind, base_sreg=base_sreg)
```

```python
from dsl import *
import gen as G
from gen import *

QK_OFF, O_OFF, MEM_OFF, KX_OFF, VX_OFF, WO_OFF = 0, 4096, 8192, 16384, 24576, 32768

vL16, vKw, vIdx, vQKw, vQKr, vOw, vMw, vWo, vPst, vRed, vMst, vPf, vFlag, vJunk = range(14)
vT0, vT1 = 14, 15
vSEL = 16
vVM1, vKr, vONE = 20, 21, 22
vBM = 26
vS0, vIdxW = 30, 31
KIMG = [2048, 3072, 6144, 7168]
X = 32
Y = 64
PA = 96
ACC = 112
sH, sS, sSlotP, sSlotP1, sSlotP4, sSlotM, sKM, sKV, sC, sNC, sRet = range(44, 55)
sRa0, sRa2, sFastF = 55, 56, 57
sMLo, sMHi = 58, 60
sU = 76
sFo, sNeed, sJ4, sCn, sPf, sGat, sKn, sM0K, sM0V = 78, 79, 80, 81, 84, 85, 86, 87, 88
sW1k, sRaM, sRaA, sFb, sPfb, sW2k = 64, 65, 66, 67, 68, 69
sPc2, sPc3 = 70, 71
sRo, sRm = 72, 89
sPc = [sSlotP, sSlotP1, sPc2, sPc3]
sCP0, sCP1 = 82, 83
OOB = 0x40000000
RED_LIMIT = 1 << 16

LOG2E = 1.4426950408889634
SCALE_C = (128 ** -0.5) * LOG2E


def f32_hex(x):
    import struct
    return struct.unpack("<I", struct.pack("<f", x))[0]


RT = False
LATE = [False]
CSTEP = [39]


TRACE = [False]


def lstamp(A, i, late=None):
    if TRACE[0]:
        if i <= 8:
            A(f"s_memtime s[{16 + 2 * (i - 1)}:{17 + 2 * (i - 1)}]")
        return
    L = A.new_label("ls")
    if late is None:
        late = i >= 8
    A(f"s_cmp_lg_u32 {s(sS)}, {CSTEP[0] + 1 if late else CSTEP[0]}")
    A(f"s_cbranch_scc1 {L}")
    r = 16 + 2 * (i - 1) if i < 9 else 62
    A(f"{'s_memrealtime' if RT else 's_memtime'} s[{r}:{r+1}]")
    A.label(L)


import re as _re


def _regs(tok):
    tok = tok.strip().rstrip(',')
    m = _re.match(r'^([va])\[(\d+):(\d+)\]$', tok)
    if m:
        return {(m.group(1), i) for i in range(int(m.group(2)), int(m.group(3)) + 1)}
    m = _re.match(r'^([va])(\d+)$', tok)
    if m:
        return {(m.group(1), int(m.group(2)))}
    return set()


def _all_regs(line):
    r = set()
    for tok in _re.findall(r'[va]\[\d+:\d+\]|\b[va]\d+\b', line):
        r |= _regs(tok)
    return r


def gap_reorder(lines, report=False):
    out = []
    i = 0
    n = len(lines)
    issm = lambda x: x.strip().startswith('v_smfmac')
    while i < n:
        out.append(lines[i])
        if issm(lines[i]):
            j = i + 1
            gap = []
            while j < n and not issm(lines[j]) and not lines[j].endswith(':') and not lines[j].strip().startswith(('s_cbranch', 's_branch', 'v_mfma', 's_nop', 's_memtime', 's_memrealtime', 's_cmp')):
                gap.append(lines[j])
                j += 1
            if j < n and issm(lines[j]):
                changed = True
                while changed:
                    changed = False
                    for k in range(len(gap) - 1):
                        a_, b_ = gap[k].strip(), gap[k + 1].strip()
                        if a_.startswith('v_') and not b_.startswith('v_') and 'vcc' not in a_ and 'exec' not in b_:
                            if not (_all_regs(a_) & _all_regs(b_)):
                                gap[k], gap[k + 1] = gap[k + 1], gap[k]
                                changed = True
                nv = sum(1 for g in gap if g.strip().startswith('v_'))
                no = len(gap) - nv
                lastv = all(not gap[k].strip().startswith('v_') or gap[k + 1].strip().startswith('v_') for k in range(len(gap) - 1))
                if report and (nv > 1 or (nv and no > 2) or no > 3 or not lastv):
                    print("gap over budget:", [g.strip()[:40] for g in gap])
            out.extend(gap)
            i = j
            continue
        i += 1
    return out


def gen_step(A, fast, opts):
    i0 = len(A.L)
    gen_step_raw(A, fast, opts)
    if opts.get('reord', 1):
        A.L[i0:] = gap_reorder(A.L[i0:], report=fast and opts.get('report'))


def gen_step_raw(A, fast, opts):
    st = "" if fast else " sc1"
    tag = "f" if fast else "s"
    Lown = [f"L_own0_{tag}", f"L_own1_{tag}"]
    Lcommon = f"L_common_{tag}"
    Llast = f"L_last_{tag}"
    lq = Q(A, "lgkmcnt", 15)
    cp = opts.get('cprof') or opts.get('trace')
    rp = opts.get('rprof')
    AQ, AV, AK = ACC, ACC + 8, Y + 24
    CQ, CK = AQ + 2, AK + 2
    H0, H1 = X + 16, X + 24
    AO = Y
    KXR = {0: X + 16, 4: X + 20, 1: X + 24, 5: X + 28, 2: X, 6: X + 4, 3: X + 8, 7: X + 12}
    RB = [X, X + 8, PA, PA + 8]
    RIDX = {0: 0, 1: 1, 4: 2, 5: 3, 6: 4, 7: 5}

    def WB(m, jj, t):
        if m == 'q':
            return a(16 * jj + 8 * t, 8)
        if jj in (2, 3):
            return v(RB[2 * (jj - 2) + t], 8)
        return (a if m == 'k' else v)(128 + 16 * RIDX[jj] + 8 * t, 8)

    def rdR(m, b, half):
        fi = (0 if m == 'k' else 4) + b
        lq.issue(('R', m, b), f"ds_read_b128 {v(RB[b] + 4*half, 4)}, {v(vWo)} offset:{fi * 2048 + 1024 * half}")
    AC = {'q': AQ, 'k': AK, 'v': AV}
    vA = [None, vT0, vT1, vS0]

    def smf(m, jj, t, areg):
        if m != 'q' and jj in (2, 3):
            lq.wait(('R', m, 2 * (jj - 2) + t))
        A(f"v_smfmac_f32_16x16x64_bf16 {v(AC[m] + 4*t, 4)}, {v(areg, 4)}, {WB(m, jj, t)}, {v(vIdx)}")

    def rdKX(j):
        lq.issue(('KX', j), f"ds_read_b128 {v(KXR[j],4)}, {v(vL16)} offset:{KX_OFF + j*1024}")

    salu = [
        f"s_and_b32 {s(sT4)}, {s(sS)}, 3",
        f"s_lshl_b32 {s(sSlotP)}, {s(sT4)}, 18",
        f"s_lshl_b32 {s(sSlotM)}, {s(sT4)}, 13",
        f"s_add_u32 {s(sSlotM)}, {s(sSlotM)}, {WS_M:#x}",
        f"s_add_u32 {s(sSlotP1)}, {s(sSlotP)}, 16384",
        f"s_add_u32 {s(sPc2)}, {s(sSlotP)}, 32768",
        f"s_add_u32 {s(sPc3)}, {s(sSlotP)}, 49152",
        f"s_add_u32 {s(sSlotP4)}, {s(sSlotP)}, 4096",
        f"s_add_u32 {s(sGat)}, {s(sSlotM)}, {s(sW2k)}",
        f"s_xor_b32 {s(sT4)}, {s(sT4)}, 2",
        f"s_lshl_b32 {s(sRa0)}, {s(sT4)}, 18",
        f"s_add_u32 {s(sRa0)}, {s(sRa0)}, {s(sW1k)}",
        f"s_mul_i32 {s(sRa2)}, {s(sT4)}, {s(sRaM)}",
        f"s_add_u32 {s(sRa2)}, {s(sRa2)}, {s(sRaA)}",
    ]

    def su(n):
        for _ in range(n):
            if salu:
                A(salu.pop(0))

    for var, H in enumerate((H0, H1)):
        A.label(Lown[var])
        if cp:
            lstamp(A, 9)
            lstamp(A, 1)
        lq.ops = []
        n = 0
        for m in 'qkv':
            for jj in range(2):
                for t in range(2):
                    n += 1
                    smf(m, jj, t, H + 4 * jj)
                    if n <= 3:
                        A(f"v_xor_b32 {v(vA[n])}, {n << 11:#x}, {v(vMw)}")
                    elif n == 4:
                        A(f"s_waitcnt lgkmcnt(0)")
                        A(f"s_barrier")
                    elif 5 <= n <= 10:
                        j2 = n - 5 + 2
                        lq.issue(('A', j2), f"ds_read_b128 {v(AO + 4*(j2-2), 4)}, {v(vA[j2 >> 1])} offset:{(j2 & 1) * 1024}")
                    elif n == 11:
                        A(f"s_mov_b32 m0, {s(sM0V)}")
                        A(f"s_add_u32 {s(sT3)}, {s(sKV)}, 8192")
                        rdR('k', 0, 0)
                    elif n == 12:
                        A(f"buffer_load_dwordx4 {v(vL16)}, {s(S_WS,4)}, {s(sT3)} offen lds")
                        rdR('k', 0, 1)
        if var == 0:
            A(f"s_branch {Lcommon}")
    A.label(Lcommon)
    n = 12
    for jj in range(2, 8):
        for t in range(2):
            n += 1
            if t == 0:
                lq.wait(('A', jj))
            smf('q', jj, t, AO + 4 * (jj - 2))
            if n == 13:
                A(f"buffer_load_dwordx4 {v(vL16)}, {s(S_WS,4)}, {s(sT3)} offen offset:1024 lds")
                rdR('k', 1, 0)
            elif n == 14:
                A(f"buffer_load_dword {v(vFlag)}, off, {s(S_WS,4)}, {s(sFo)} sc1")
                rdR('k', 1, 1)
            elif n == 15:
                if not opts.get('nopf'):
                    A(f"buffer_load_dword {v(vJunk)}, {v(vPf)}, {s(S_WS,4)}, {s(sPf)} offen")
                rdR('k', 2, 0)
            elif n == 16:
                A(f"s_add_u32 {s(sT3)}, {s(sPf)}, 4096")
                rdR('k', 2, 1)
            elif n == 17:
                if not opts.get('nopf'):
                    A(f"buffer_load_dword {v(vJunk)}, {v(vPf)}, {s(S_WS,4)}, {s(sT3)} offen")
                rdR('k', 3, 0)
                su(1)
            elif n == 18:
                A(f"s_waitcnt vmcnt(5)")
                rdR('k', 3, 1)
                su(1)
            elif 19 <= n <= 22:
                rdKX((0, 4, 1, 5)[n - 19])
                su(1)
            else:
                su(3)
    if cp and not rp:
        lstamp(A, 2)

    def post(m, step):
        t, k = step // 3, step % 3
        T = AC[m] + 4 * t
        if k < 2:
            A(f"v_add_f32 {v(T + k)}, {v(T + k)}, {v(T + k + 2)}")
        else:
            d = {'q': CQ + t, 'k': CK + t, 'v': (vS0, vVM1)[t]}[m]
            A(f"v_cvt_pk_bf16_f32 {v(d)}, {v(T)}, {v(T + 1)}")
    for jj in range(2, 8):
        for t in range(2):
            n += 1
            smf('k', jj, t, AO + 4 * (jj - 2))
            if n == 31:
                lq.issue('wq', f"ds_write2st64_b32 {v(vQKw)}, {v(CQ)}, {v(CQ+1)} offset0:0 offset1:1")
            elif n == 33:
                A(f"s_mov_b32 m0, {s(sM0K)}")
                A(f"s_add_u32 {s(sKn)}, {s(sKn)}, 0x80000")
            elif n == 35:
                lq.wait('wq')
                A(f"s_barrier")
            if 26 <= n <= 30:
                rdR('v', (n - 26) >> 1, (n - 26) & 1)
            elif n in (32, 33, 34):
                rdR('v', (n - 27) >> 1, (n - 27) & 1)
            if n in (31, 32):
                su(1)
            if 25 <= n <= 30:
                post('q', n - 25)
            elif n >= 33:
                A(f"v_mov_b64 {v(ACC + 2*(n - 33), 2)}, 0")
    assert not salu
    if cp and not rp:
        lstamp(A, 3)
    QR, KR = Y, Y + 16

    def trq(i):
        ks, hf = i >> 1, i & 1
        lq.issue(('q', ks), f"ds_read_b64_tr_b16 {v(QR+4*ks+2*hf,2)}, {v(vQKr)} offset:{QK_OFF + (32*ks+8*hf)*16}")

    def trk(i):
        ks, hf = i >> 1, i & 1
        lq.issue(('k', ks), f"ds_read_b64_tr_b16 {v(KR+4*ks+2*hf,2)}, {v(vKr)} offset:{KIMG[ks] + hf*256}")
    trq_at = {38: 0, 39: 1, 40: 2, 41: 3, 42: 4, 44: 5, 45: 6, 46: 7}
    for jj in range(2, 8):
        for t in range(2):
            n += 1
            smf('v', jj, t, AO + 4 * (jj - 2))
            if n in trq_at:
                trq(trq_at[n])
            if 39 <= n <= 42:
                rdKX((2, 6, 3, 7)[n - 39])
            if n == 43:
                lq.issue('wk', f"ds_write2st64_b32 {v(vKw)}, {v(CK)}, {v(CK+1)} offset0:0 offset1:2")
            elif n == 44:
                A(f"buffer_store_dword {v(CK)}, {v(vQKw)}, {s(S_WS,4)}, {s(sKM)} offen sc1")
            elif n == 45:
                A(f"buffer_store_dword {v(CK+1)}, {v(vQKw)}, {s(S_WS,4)}, {s(sKM)} offen offset:256 sc1")
            elif n == 47:
                lq.wait('wk')
                A(f"s_barrier")
                trk(0)
            elif n == 48:
                trk(1)
                A(f"buffer_load_dwordx4 {v(vL16)}, {s(S_WS,4)}, {s(sKn)} offen lds")
            if 37 <= n <= 42:
                post('k', n - 37)
    if cp and not rp:
        lstamp(A, 4)
    T0, T1, TM = PA, PA + 4, PA + 8
    m, t_ = vT0, vT1
    wo_ops = [(cg, 0) for cg in range(4)] + [(cg, ks) for cg in range(4) for ks in range(1, 4)]
    bufs = [X + 16, X + 24, X, X + 8, Y, Y + 8, Y + 16, Y + 24]

    WOR = [a(224, 8), a(232, 8), a(240, 8), a(248, 8), v(224, 8), v(232, 8), v(240, 8), v(248, 8)]

    def rdW(i, half):
        o = (8 + i) * 2048 + 1024 * half
        lq.issue(('W', i), f"ds_read_b128 {v(bufs[i] + 4*half, 4)}, {v(vWo)} offset:{o}")
    for i in range(8):
        ks, t = i >> 1, i & 1
        if i in (0, 4):
            lq.wait(('q', ks + 1))
        T = (T0, T1)[t]
        c = "0" if ks == 0 else v(T, 4)
        A(f"v_mfma_f32_16x16x32_bf16 {v(T,4)}, {v(KXR[4*t+ks],4)}, {v(QR+4*ks,4)}, {c}")
        if i == 0:
            A(f"buffer_load_dwordx4 {v(vL16)}, {s(S_WS,4)}, {s(sKn)} offen offset:1024 lds")
        if i <= 5:
            trk(i + 2)
            post('v', i)
        elif i == 6:
            A(f"buffer_store_dword {v(vS0)}, {v(vQKw)}, {s(S_WS,4)}, {s(sKM)} offen offset:2048 sc1")
            A(f"buffer_store_dword {v(vVM1)}, {v(vQKw)}, {s(S_WS,4)}, {s(sKM)} offen offset:2304 sc1")
            A(f"v_mov_b64 {v(ACC+8,2)}, 0")
    A(f"s_cmp_eq_u32 {s(sS)}, 63")
    A(f"s_cbranch_scc1 {Llast}")
    for ks in range(4):
        if ks in (0, 2):
            lq.wait(('k', ks + 1))
        cm = "0" if ks == 0 else v(TM, 4)
        A(f"v_mfma_f32_16x16x32_bf16 {v(TM,4)}, {v(KR+4*ks,4)}, {v(QR+4*ks,4)}, {cm}")
        rdW(ks >> 1, ks & 1)
        if ks == 1:
            A(f"v_max3_f32 {v(m)}, {v(T0)}, {v(T0+1)}, {v(T0+2)}")
        elif ks == 2:
            A(f"v_max3_f32 {v(t_)}, {v(T0+3)}, {v(T1)}, {v(T1+1)}")
        elif ks == 3:
            A(f"v_max3_f32 {v(m)}, {v(m)}, {v(T1+2)}, {v(T1+3)}")
    ralate = opts.get('ralate', 1)

    def rearm(k, now=False):
        if ralate and not now:
            return
        if opts.get('norearm'):
            A("s_nop 0")
        elif k < 2:
            A(f"buffer_store_dwordx4 {v(vSEL,4)}, {v(vRed)}, {s(S_WS,4)}, {s(sRa0)} offen offset:{3072*k}{st}")
        else:
            A(f"buffer_store_dwordx4 {v(vSEL,4)}, {v(vMst)}, {s(S_WS,4)}, {s(sRa2)} offen{st}")
    VX0 = Y + 16
    u0, u1 = TM + 2, TM + 3
    A(f"s_waitcnt vmcnt(9)")
    lq.issue('vx', f"ds_read_b128 {v(VX0,4)}, {v(vMw)} offset:{VX_OFF - MEM_OFF}")
    lq.issue('vx', f"ds_read_b128 {v(VX0+4,4)}, {v(vMw)} offset:{VX_OFF - MEM_OFF + 1024}")
    rdW(2, 0)
    rdW(2, 1)
    A(f"v_mov_b64 {v(ACC+10,2)}, 0")
    A(f"v_max3_f32 {v(m)}, {v(m)}, {v(t_)}, {v(TM)}")
    A(f"v_max_f32 {v(u0)}, {v(m)}, {v(TM+1)}")
    A(f"v_max_f32 {v(u1)}, {v(m)}, {v(TM+1)}")
    rdW(3, 0)
    rearm(0)
    A(f"v_permlane16_swap_b32 {v(u0)}, {v(u1)}")
    A(f"v_max_f32 {v(m)}, {v(u0)}, {v(u1)}")
    A(f"v_max_f32 {v(t_)}, {v(u0)}, {v(u1)}")
    rdW(3, 1)
    A(f"s_nop 0")
    A(f"v_permlane32_swap_b32 {v(m)}, {v(t_)}")
    A(f"v_max_f32 {v(m)}, {v(m)}, {v(t_)}")
    A(f"v_mul_f32 {v(m)}, {s(sNC)}, {v(m)}")
    BX = ACC + 12
    xs = [T0, T0 + 1, T0 + 2, T0 + 3, T1, T1 + 1, T1 + 2, T1 + 3]
    ms = [TM, TM + 1]
    for r in xs[:2]:
        A(f"v_fma_f32 {v(r)}, {v(r)}, {s(sC)}, {v(m)}")
    for j in range(8):
        A(f"v_exp_f32 {v(xs[j])}, {v(xs[j])}")
        nx = (xs + ms)[j + 2]
        A(f"v_fma_f32 {v(nx)}, {v(nx)}, {s(sC)}, {v(m)}")
        if j >= 2 and j % 2 == 0:
            q = (j - 2) // 2
            A(f"v_cvt_pk_bf16_f32 {v(BX+q)}, {v(xs[2*q])}, {v(xs[2*q+1])}")
        if j == 3:
            rearm(1)
    A(f"v_exp_f32 {v(ms[0])}, {v(ms[0])}")
    A(f"v_cvt_pk_bf16_f32 {v(BX+3)}, {v(xs[6])}, {v(xs[7])}")
    A(f"v_exp_f32 {v(ms[1])}, {v(ms[1])}")
    if cp and not rp:
        lstamp(A, 5)
    O0, O1, LS, PKO = PA, PA + 4, PA + 12, PA + 8
    lq.wait('vx')
    A(f"v_mfma_f32_16x16x32_bf16 {v(LS,4)}, {v(vONE,4)}, {v(BX,4)}, 0")
    A(f"v_cvt_pk_bf16_f32 {v(vBM)}, {v(ms[0])}, {v(ms[1])}")
    A(f"v_mfma_f32_16x16x32_bf16 {v(O0,4)}, {v(VX0,4)}, {v(BX,4)}, 0")
    rdW(4, 0)
    A(f"v_mfma_f32_16x16x32_bf16 {v(O1,4)}, {v(VX0+4,4)}, {v(BX,4)}, 0")
    rearm(2)
    A(f"v_mfma_f32_16x16x32_bf16 {v(LS,4)}, {v(vONE,4)}, {v(vBM,4)}, {v(LS,4)}")
    A(f"v_mfma_f32_16x16x32_bf16 {v(O0,4)}, {v(vS0,4)}, {v(vBM,4)}, {v(O0,4)}")
    A(f"v_mov_b64 {v(ACC+12,2)}, 0")
    A(f"v_mfma_f32_16x16x32_bf16 {v(O1,4)}, {v(vVM1,4)}, {v(vBM,4)}, {v(O1,4)}")
    rdW(4, 1)
    A(f"v_rcp_f32 {v(m)}, {v(LS)}")
    rdW(5, 0)
    A(f"v_mov_b64 {v(ACC+14,2)}, 0")
    for r in range(4):
        A(f"v_mul_f32 {v(O0+r)}, {v(O0+r)}, {v(m)}")
    A(f"v_cvt_pk_bf16_f32 {v(PKO)}, {v(O0)}, {v(O0+1)}")
    A(f"v_cvt_pk_bf16_f32 {v(PKO+1)}, {v(O0+2)}, {v(O0+3)}")
    for r in range(4):
        A(f"v_mul_f32 {v(O1+r)}, {v(O1+r)}, {v(m)}")
    A(f"v_cvt_pk_bf16_f32 {v(PKO+2)}, {v(O1)}, {v(O1+1)}")
    A(f"v_cvt_pk_bf16_f32 {v(PKO+3)}, {v(O1+2)}, {v(O1+3)}")
    lq.issue('wo_', f"ds_write_b128 {v(vOw)}, {v(PKO,4)} offset:0")
    AOr = [PKO, PA, PA + 4, PA + 12]
    vAo = [None, vT0, vT1, vS0]
    for k in range(1, 4):
        A(f"v_xor_b32 {v(vAo[k])}, {k << 9:#x}, {v(vOw)}")
    if cp and not rp:
        lstamp(A, 6)

    def pack(cg, k):
        A(f"v_cvt_pk_bf16_f32 {v(ACC+4*cg+k)}, {v(ACC+4*cg+2*k)}, {v(ACC+4*cg+2*k+1)}")

    def pstore(cg):
        A(f"buffer_store_dwordx2 {v(ACC+4*cg,2)}, {v(vPst)}, {s(S_WS,4)}, {s(sPc[cg])} offen{st}")
    for i, (cg, ks) in enumerate(wo_ops):
        if ks:
            lq.wait(('Ao', ks))
        if i >= 8:
            lq.wait(('W', i - 8))
        A(f"v_smfmac_f32_16x16x64_bf16 {v(ACC+4*cg,4)}, {v(AOr[ks],4)}, {WOR[i] if i < 8 else v(bufs[i - 8],8)}, {v(vIdxW)}")
        if i == opts.get('obar', 1):
            if ralate == 2:
                rearm(0, True)
            lq.wait('wo_')
            A(f"s_barrier")
            for k in range(1, 4):
                lq.issue(('Ao', k), f"ds_read_b128 {v(AOr[k],4)}, {v(vAo[k])}")
        if ralate == 2 and i in (2, 3):
            rearm(i - 1, True)
        if i == 2:
            rdW(5, 1)
            rdW(6, 0)
        elif i == 3:
            rdW(6, 1)
            rdW(7, 0)
        elif i == 4:
            rdW(7, 1)
        if opts.get('pst', 1) == 0:
            if i in (8, 11, 14):
                pack((i - 8) // 3, 0)
            elif i in (9, 12, 15):
                pack((i - 9) // 3, 1)
                pstore((i - 9) // 3)
        else:
            if i in (8, 11):
                pack((i - 8) // 3, 0)
            elif i in (9, 12):
                pack((i - 9) // 3, 1)
            elif i in (10, 13):
                pstore((i - 10) // 3)
            elif i == 14:
                pack(2, 0)
                pack(2, 1)
            elif i == 15:
                pstore(2)
    if opts.get('pst', 1) == 0:
        A(f"s_nop 5")
    else:
        A(f"s_nop 6")
    pack(3, 0)
    pack(3, 1)
    pstore(3)
    if cp:
        lstamp(A, 7)
    Lnr = A.new_label("notred")
    Lar = A.new_label("afterred")

    def bookkeeping():
        A(f"s_add_u32 {s(sS)}, {s(sS)}, 1")
        A(f"s_add_u32 {s(sKM)}, {s(sKM)}, 0x20000")
        A(f"s_add_u32 {s(sKV)}, {s(sKV)}, 0x80000")
        A(f"s_add_u32 {s(sPf)}, {s(sPf)}, 0x80000")
        A(f"s_add_u32 {s(sJ4)}, {s(sJ4)}, 4")
        A(f"s_cmp_eq_u32 {s(sJ4)}, 20")
        A(f"s_cselect_b32 {s(sJ4)}, 0, {s(sJ4)}")
        A(f"s_addc_u32 {s(sCn)}, {s(sCn)}, 0")

    def bookkeeping2():
        A(f"s_add_u32 {s(sFo)}, {s(sFb)}, {s(sJ4)}")
        A(f"s_cmp_lt_u32 {s(sS)}, 62")
        A(f"s_cselect_b32 {s(sNeed)}, {s(sCn)}, 0")

    def zero_acc():
        for i in range(8):
            A(f"v_mov_b64 {v(ACC+2*i,2)}, 0")
        for i in range(4):
            A(f"v_mov_b64 {v(AK+2*i,2)}, 0")

    if opts.get('rbar', 1):
        A(f"s_barrier")
    A(f"s_cmp_lg_u32 {s(sWAVE)}, 0")
    A(f"s_cbranch_scc1 {Lnr}")
    Lred = A.new_label("red")
    Lredok = A.new_label("redok")
    RA = PA
    two = opts.get('rtwo', 0)

    def once(i, ret=None):
        L = A.new_label("on")
        want = ret if ret is not None else (0 if i == 2 else 1)
        A(f"s_cmp_lg_u32 {s(sRet)}, {want}")
        A(f"s_cbranch_scc1 {L}")
        lstamp(A, i, True)
        A.label(L)

    def red_load(R, i):
        A(f"buffer_load_dwordx4 {v(R+4*i,4)}, {v(vRed)}, {s(S_WS,4)}, {s(sSlotP if i < 4 else sSlotP4)} offen offset:{(i%4)*1024} sc1")

    def red_issue(R):
        for i in range(8):
            red_load(R, i)

    def red_check(R, younger):
        for i in range(8):
            A(f"s_waitcnt vmcnt({younger + 7 - i})")
            if rp and i == 0:
                once(2 if R == X else 4)
            c = "0" if i == 0 else v(RA, 4)
            A(f"v_mfma_f32_16x16x32_bf16 {v(RA,4)}, {v(R+4*i,4)}, {v(vSEL,4)}, {c}")
        A(f"s_add_u32 {s(sRet)}, {s(sRet)}, 1")
        if rp:
            once(3 if R == X else 5, 1 if R == X else 2)
        A(f"s_nop 7")
        A(f"v_cmp_u_f32 vcc, {v(RA)}, {v(RA+1)}")
        A(f"v_cmp_u_f32 {s(sU,2)}, {v(RA+2)}, {v(RA+3)}")
        A(f"v_cvt_pk_bf16_f32 {v(RA+4)}, {v(RA)}, {v(RA+1)}")
        A(f"v_cvt_pk_bf16_f32 {v(RA+5)}, {v(RA+2)}, {v(RA+3)}")
        A(f"s_or_b64 vcc, vcc, {s(sU,2)}")
        A(f"s_cbranch_scc0 {Lredok}")
    zero_acc()
    bookkeeping()
    bookkeeping2()
    A(f"s_mov_b32 {s(sRet)}, 0")
    if opts.get('rroll', 0):
        sO = [sRo, sRo + 1, sRo + 2, sRo + 3]
        Lfin = A.new_label("rfin")
        A(f"s_mov_b32 {s(sO[0])}, {s(sSlotP)}")
        A(f"s_mov_b32 {s(sO[1])}, {s(sSlotP)}")
        A(f"s_mov_b32 {s(sO[2])}, {s(sSlotP4)}")
        A(f"s_mov_b32 {s(sO[3])}, {s(sSlotP4)}")
        A(f"s_mov_b32 {s(sRm)}, 15")
        A(f"v_mov_b64 {v(RA,2)}, 0")
        A(f"v_mov_b64 {v(RA+2,2)}, 0")
        for _ in range(opts.get('rdelay', 0)):
            A(f"s_sleep 1")

        def pair_issue(p):
            for i in (2 * p, 2 * p + 1):
                A(f"buffer_load_dwordx4 {v(X+4*i,4)}, {v(vRed)}, {s(S_WS,4)}, {s(sO[p])} offen offset:{(i%4)*1024} sc1")
        for p in range(4):
            pair_issue(p)
        A.label(Lred)
        for p in range(4):
            Lre = A.new_label("rre")
            R = X + 8 * p
            A(f"s_waitcnt vmcnt(6)")
            if rp and p == 0:
                once(2, 0)
            if rp and p == 3:
                once(3, 0)
            A(f"s_bitcmp1_b32 {s(sRm)}, {p}")
            A(f"s_cbranch_scc0 {Lre}")
            A(f"v_max3_u32 {v(vT0)}, {v(R)}, {v(R+1)}, {v(R+2)}")
            A(f"v_max3_u32 {v(vT1)}, {v(R+3)}, {v(R+4)}, {v(R+5)}")
            A(f"v_max3_u32 {v(vT0)}, {v(vT0)}, {v(R+6)}, {v(R+7)}")
            A(f"v_max_u32 {v(vT0)}, {v(vT0)}, {v(vT1)}")
            A(f"v_cmp_eq_u32 vcc, -1, {v(vT0)}")
            A(f"s_cbranch_vccnz {Lre}")
            A(f"v_mfma_f32_16x16x32_bf16 {v(RA,4)}, {v(R,4)}, {v(vSEL,4)}, {v(RA,4)}")
            A(f"s_bitset0_b32 {s(sRm)}, {p}")
            A(f"s_mov_b32 {s(sO[p])}, {OOB:#x}")
            A(f"v_mfma_f32_16x16x32_bf16 {v(RA,4)}, {v(R+4,4)}, {v(vSEL,4)}, {v(RA,4)}")
            A(f"s_cmp_eq_u32 {s(sRm)}, 0")
            A(f"s_cbranch_scc1 {Lfin}")
            A.label(Lre)
            pair_issue(p)
        A(f"s_add_u32 {s(sRet)}, {s(sRet)}, 1")
        A(f"s_cmp_lg_u32 {s(sDEAD)}, 0")
        A(f"s_cbranch_scc1 {Lfin}")
        A(f"s_cmp_lt_u32 {s(sRet)}, {RED_LIMIT}")
        A(f"s_cbranch_scc1 {Lred}")
        A(f"s_mov_b32 {s(sDEAD)}, 1")
        A.label(Lfin)
        A(f"s_nop 5")
        A(f"v_cvt_pk_bf16_f32 {v(RA+4)}, {v(RA)}, {v(RA+1)}")
        A(f"v_cvt_pk_bf16_f32 {v(RA+5)}, {v(RA+2)}, {v(RA+3)}")
    else:
        RS = [[X + 4 * i for i in range(8)], [Y + 4 * i for i in range(6)] + [PA + 8, PA + 12]]
        mode = opts.get('rmode', 1)

        def ld(R, i):
            A(f"buffer_load_dwordx4 {v(R[i],4)}, {v(vRed)}, {s(S_WS,4)}, {s(sSlotP if i < 4 else sSlotP4)} offen offset:{(i%4)*1024} sc1")

        def chk(R, other, cnt):
            for i in range(8):
                A(f"s_waitcnt vmcnt({cnt(i)})")
                if rp and i == 0:
                    once(2 if R is RS[0] else 4, 0)
                c = "0" if i == 0 else v(RA, 4)
                A(f"v_mfma_f32_16x16x32_bf16 {v(RA,4)}, {v(R[i],4)}, {v(vSEL,4)}, {c}")
                if other is not None:
                    ld(other, i)
            if rp:
                once(3 if R is RS[0] else 5, 0)
            if cp and not TRACE[0]:
                A(f"s_add_u32 {s(sCP0)}, {s(sCP0)}, 1")
            A(f"s_nop {6 if other is not None else 7}")
            A(f"v_cmp_u_f32 vcc, {v(RA)}, {v(RA+1)}")
            A(f"v_cmp_u_f32 {s(sU,2)}, {v(RA+2)}, {v(RA+3)}")
            A(f"v_cvt_pk_bf16_f32 {v(RA+4)}, {v(RA)}, {v(RA+1)}")
            A(f"v_cvt_pk_bf16_f32 {v(RA+5)}, {v(RA+2)}, {v(RA+3)}")
            A(f"s_or_b64 vcc, vcc, {s(sU,2)}")
            A(f"s_cbranch_scc0 {Lredok}")
        for _ in range(opts.get('rdelay', 0)):
            A(f"s_sleep 1")
        for _ in range(opts.get('rnop', 0)):
            A(f"s_nop 3")
        for i in range(8):
            ld(RS[0], i)
        if mode == 2:
            for _ in range(opts.get('rspace', 0)):
                A(f"s_sleep 1")
            for i in range(8):
                ld(RS[1], i)
        A.label(Lred)
        if mode == 0:
            chk(RS[0], None, lambda i: 7 - i)
            for i in range(8):
                ld(RS[0], i)
        elif mode == 1:
            chk(RS[0], RS[1], lambda i: 7)
            chk(RS[1], RS[0], lambda i: 7)
        else:
            chk(RS[0], None, lambda i: 15 - i)
            for i in range(8):
                ld(RS[0], i)
            chk(RS[1], None, lambda i: 15 - i)
            for i in range(8):
                ld(RS[1], i)
        A(f"s_add_u32 {s(sRet)}, {s(sRet)}, 1")
        A(f"s_cmp_lg_u32 {s(sDEAD)}, 0")
        A(f"s_cbranch_scc1 {Lredok}")
        A(f"s_cmp_lt_u32 {s(sRet)}, {RED_LIMIT}")
        A(f"s_cbranch_scc1 {Lred}")
        A(f"s_mov_b32 {s(sDEAD)}, 1")
    A.label(Lredok)
    A(f"buffer_store_dwordx2 {v(RA+4,2)}, {v(vMst)}, {s(S_WS,4)}, {s(sSlotM)} offen{st}")
    if rp:
        lstamp(A, 6, True)
    A(f"s_branch {Lar}")
    A.label(Lnr)
    Lfok = A.new_label("fok")
    Lfsp = A.new_label("fsp")
    if rp:
        for (cnt, st_) in ((7, 2), (4, 3), (2, 4), (0, 5)):
            A(f"s_waitcnt vmcnt({cnt})")
            lstamp(A, st_)
    A(f"s_mov_b32 {s(sRet)}, 0")
    A(f"s_waitcnt vmcnt({12 if ralate in (1, 3) else 15})")
    A(f"v_readfirstlane_b32 {s(sT0)}, {v(vFlag)}")
    zero_acc()
    A(f"s_cmp_ge_u32 {s(sT0)}, {s(sNeed)}")
    A(f"s_cbranch_scc1 {Lfok}")
    A(f"s_cmp_lg_u32 {s(sDEAD)}, 0")
    A(f"s_cbranch_scc1 {Lfok}")
    A(f"s_mov_b32 {s(sRet)}, 0")
    A.label(Lfsp)
    A(f"buffer_load_dword {v(vFlag)}, off, {s(S_WS,4)}, {s(sFo)} sc1")
    A(f"s_waitcnt vmcnt(0)")
    A(f"v_readfirstlane_b32 {s(sT0)}, {v(vFlag)}")
    A(f"s_cmp_ge_u32 {s(sT0)}, {s(sNeed)}")
    A(f"s_cbranch_scc1 {Lfok}")
    A(f"s_sleep 1")
    A(f"s_add_u32 {s(sRet)}, {s(sRet)}, 1")
    A(f"s_cmp_lt_u32 {s(sRet)}, {SPIN_LIMIT}")
    A(f"s_cbranch_scc1 {Lfsp}")
    A(f"s_mov_b32 {s(sDEAD)}, 1")
    A.label(Lfok)
    if TRACE[0]:
        Lsl = A.new_label("tr")
        A(f"s_cmp_lg_u32 {s(sWAVE)}, {opts.get('tw', 1)}")
        A(f"s_cbranch_scc1 {Lsl}")
        A(f"s_lshl_b32 {s(sT0)}, {s(sH)}, 6")
        A(f"s_add_u32 {s(sT0)}, {s(sT0)}, {s(sS)}")
        A(f"s_lshl_b32 {s(sT0)}, {s(sT0)}, 5")
        A(f"s_add_u32 {s(sT0)}, {s(sT0)}, {WS_T + 0x10000:#x}")
        A(f"s_waitcnt lgkmcnt(0)")
        A(f"v_mov_b32 {v(vT0)}, s16")
        for k in range(1, 8):
            A(f"v_writelane_b32 {v(vT0)}, s{16 + 2*k}, {k}")
        A(f"v_lshrrev_b32 {v(vT1)}, 2, {v(vL16)}")
        A(f"s_mov_b64 exec, 0xff")
        A(f"buffer_store_dword {v(vT0)}, {v(vT1)}, {s(S_WS,4)}, {s(sT0)} offen")
        A(f"s_mov_b64 exec, -1")
        A.label(Lsl)
    if opts.get('steplog'):
        Lsl = A.new_label("sl")
        A(f"s_cmp_lg_u32 {s(sWAVE)}, 1")
        A(f"s_cbranch_scc1 {Lsl}")
        A(f"s_memrealtime s[62:63]")
        A(f"s_lshl_b32 {s(sT0)}, {s(sH)}, 6")
        A(f"s_add_u32 {s(sT0)}, {s(sT0)}, {s(sS)}")
        A(f"s_lshl_b32 {s(sT0)}, {s(sT0)}, 3")
        A(f"s_add_u32 {s(sT0)}, {s(sT0)}, {WS_T + 0x8000:#x}")
        A(f"s_waitcnt lgkmcnt(0)")
        A(f"v_mov_b32 {v(vT0)}, s62")
        A(f"v_mov_b32 {v(vT1)}, {s(sRet)}")
        A(f"s_mov_b64 exec, 1")
        A(f"buffer_store_dwordx2 {v(vT0,2)}, off, {s(S_WS,4)}, {s(sT0)}")
        A(f"s_mov_b64 exec, -1")
        A.label(Lsl)
    bookkeeping()
    bookkeeping2()
    if ralate == 1:
        for _ in range(opts.get('radelay', 2)):
            A(f"s_sleep 1")
        for k in range(3):
            rearm(k, True)
    A.label(Lar)
    A(f"s_barrier")
    if cp:
        lstamp(A, 8)
    Lcon = A.new_label("con")
    Lconok = A.new_label("conok")
    gtwo = opts.get('gtwo', 1)

    def con_issue(R):
        A(f"buffer_load_dwordx4 {v(R,4)}, {v(vL16)}, {s(S_WS,4)}, {s(sGat)} offen sc1")
        A(f"buffer_load_dwordx4 {v(R+4,4)}, {v(vL16)}, {s(S_WS,4)}, {s(sGat)} offen offset:1024 sc1")

    def con_check(R, younger, ok):
        A(f"s_waitcnt vmcnt({younger})")
        A(f"ds_write_b128 {v(vMw)}, {v(R,4)}")
        A(f"v_max3_u32 {v(vT0)}, {v(R)}, {v(R+1)}, {v(R+2)}")
        A(f"v_max3_u32 {v(vT1)}, {v(R+3)}, {v(R+4)}, {v(R+5)}")
        A(f"ds_write_b128 {v(vMw)}, {v(R+4,4)} offset:1024")
        A(f"v_max3_u32 {v(vT0)}, {v(vT0)}, {v(R+6)}, {v(R+7)}")
        A(f"v_max_u32 {v(vT0)}, {v(vT0)}, {v(vT1)}")
        A(f"v_cmp_eq_u32 vcc, -1, {v(vT0)}")
        A(f"s_add_u32 {s(sRet)}, {s(sRet)}, 1")
        if cp and not TRACE[0]:
            A(f"s_add_u32 {s(sCP1)}, {s(sCP1)}, 1")
        A(f"s_cbranch_vccz {ok}")
    A(f"s_mov_b32 {s(sRet)}, 0")
    for _ in range(opts.get('gdelay', 0)):
        A(f"s_sleep 1")
    con_issue(H0)
    if gtwo:
        for _ in range(opts.get('gspace', 1)):
            A(f"s_sleep 1")
        con_issue(H1)
        if ralate == 3:
            for k in range(3):
                rearm(k, True)
            con_check(H0, 5, Lown[0])
            con_issue(H0)
            con_check(H1, 5, Lown[1])
            con_issue(H1)
        A.label(Lcon)
        con_check(H0, 2, Lown[0])
        con_issue(H0)
        con_check(H1, 2, Lown[1])
        con_issue(H1)
    else:
        A.label(Lcon)
        con_check(H0, 0, Lown[0])
        con_issue(H0)
    A(f"s_cmp_lg_u32 {s(sDEAD)}, 0")
    A(f"s_cbranch_scc1 {Lown[0]}")
    A(f"s_cmp_lt_u32 {s(sRet)}, {RED_LIMIT}")
    A(f"s_cbranch_scc1 {Lcon}")
    A(f"s_mov_b32 {s(sDEAD)}, 1")
    A(f"s_branch {Lown[0]}")
    A.label(Llast)
    A(f"s_waitcnt vmcnt(0) lgkmcnt(0)")
    if cp and not TRACE[0]:
        for i in range(1, 10):
            A(f"s_mov_b32 s{92+i}, s{16+2*(i-1) if i < 9 else 62}")
        A(f"s_lshl_b32 {s(sCP1)}, {s(sCP1)}, 16")
        A(f"s_or_b32 s92, {s(sCP0)}, {s(sCP1)}")
        A("s_branch L_flush")
    A(f"s_branch L_role_end")


def gen_chain(A, opts):
    global RT
    RT = bool(opts.get('rt'))
    CSTEP[0] = opts.get('cstep', 39)
    TRACE[0] = bool(opts.get('trace'))
    vL = 13
    A(f"s_mov_b32 {s(sH)}, {s(sIDX)}")
    A(f"v_and_b32 {v(vL)}, 63, v0")
    mk_srd(A, S_A, P_WQ, 512 * 8192)
    mk_srd(A, S_B, P_WK, 512 * 8192)
    mk_srd(A, S_C, P_WV, 512 * 8192)
    mk_srd(A, S_D, P_WO, 4096 * 1024)
    A(f"v_lshlrev_b32 {v(vL16)}, 4, {v(vL)}")
    for i in range(4):
        A(f"v_mov_b32 {v(vSEL+i)}, -1")
    A(f"s_lshl_b32 {s(sT0)}, {s(sH)}, 13")
    A(f"s_lshl_b32 {s(sT1)}, {s(sWAVE)}, 11")
    A(f"s_add_u32 {s(sT0)}, {s(sT0)}, {s(sT1)}")
    nst = 0
    for sl in range(4):
        A(f"s_add_u32 {s(sT1)}, {s(sT0)}, {sl*262144}")
        A(f"buffer_store_dwordx4 {v(vSEL,4)}, {v(vL16)}, {s(S_WS,4)}, {s(sT1)} offen sc1")
        A(f"buffer_store_dwordx4 {v(vSEL,4)}, {v(vL16)}, {s(S_WS,4)}, {s(sT1)} offen offset:1024 sc1")
        nst += 2
    vMre = 2
    A(f"s_lshl_b32 {s(sT2)}, {s(sH)}, 8")
    A(f"v_add_u32 {v(vT0)}, {s(sT2)}, {v(vL16)}")
    A(f"v_cmp_gt_u32 vcc, 16, {v(vL)}")
    A(f"v_mov_b32 {v(vT1)}, {OOB:#x}")
    A.nop(1)
    A(f"v_cndmask_b32 {v(vMre)}, {v(vT1)}, {v(vT0)}, vcc")
    for sl in range(4):
        A(f"s_mov_b32 {s(sT1)}, {WS_M + sl*8192:#x}")
        A(f"buffer_store_dwordx4 {v(vSEL,4)}, {v(vMre)}, {s(S_WS,4)}, {s(sT1)} offen sc1")
        nst += 1
    Z = 20
    for i in range(4):
        A(f"v_mov_b32 {v(Z+i)}, 0")
    A(f"v_cndmask_b32 {v(Z+4)}, {v(vT1)}, {v(vL16)}, vcc")
    A(f"s_lshl_b32 {s(sT1)}, {s(sH)}, 8")
    A(f"s_add_u32 {s(sT1)}, {s(sT1)}, {WS_OF:#x}")
    A(f"buffer_store_dwordx4 {v(Z,4)}, {v(Z+4)}, {s(S_WS,4)}, {s(sT1)} offen sc1")
    A(f"v_cmp_gt_u32 vcc, 8, {v(vL)}")
    A.nop(2)
    A(f"v_cndmask_b32 {v(Z+5)}, {v(vT1)}, {v(vL16)}, vcc")
    A(f"s_lshl_b32 {s(sT1)}, {s(sH)}, 7")
    A(f"s_add_u32 {s(sT1)}, {s(sT1)}, {WS_KVF:#x}")
    A(f"buffer_store_dwordx4 {v(Z,4)}, {v(Z+5)}, {s(S_WS,4)}, {s(sT1)} offen sc1")
    nst += 2

    vG, vGo, vSW, vSWo, vTRb, vTRo, vTA = 116, 117, 118, 122, 124, 125, 126
    POOL = [40, 72]
    TEMPS = [104, 32]
    sXo = sRo + 1
    A(f"s_lshl_b32 {s(sT0)}, {s(sH)}, 8")
    A(f"s_lshl_b32 {s(sT1)}, {s(sWAVE)}, 20")
    A(f"s_add_u32 {s(sT0)}, {s(sT0)}, {s(sT1)}")
    lane_expr(A, vG, vL, [(4, 2, 8192), (0, 4, 16)], sregs=[sT0])
    A(f"s_lshl_b32 {s(sT0)}, {s(sH)}, 17")
    A(f"s_lshl_b32 {s(sT1)}, {s(sWAVE)}, 8")
    A(f"s_add_u32 {s(sT0)}, {s(sT0)}, {s(sT1)}")
    lane_expr(A, vGo, vL, [(4, 2, 1024), (0, 4, 16)], sregs=[sT0])
    A(f"s_lshl_b32 {s(sXo)}, {s(sWAVE)}, 15")

    RIDX = {0: 0, 1: 1, 4: 2, 5: 3, 6: 4, 7: 5}
    wo_ops = [(cg, 0) for cg in range(4)] + [(cg, ks) for cg in range(4) for ks in range(1, 4)]
    WORR = [('a', 224), ('a', 232), ('a', 240), ('a', 248), ('v', 224), ('v', 232), ('v', 240), ('v', 248)]

    def qkv_unit(m, hp, x):
        u = dict(kind='qkv', m=m, hp=hp, x=x, srd={'q': S_A, 'k': S_B, 'v': S_C}[m], needs_temp=(m != 'q'))
        u['soff'] = [(64 * hp + 16 * x + 4 * (k & 3) + 32 * (k >> 2)) * 8192 for k in range(8)]
        return u

    def bind(u, temp):
        if u['kind'] == 'qkv':
            m, hp, x = u['m'], u['hp'], u['x']
            res = []
            for i in range(4):
                sl = hp + 2 * i
                for t_ in range(2):
                    if m == 'q':
                        res.append((('a', 16 * sl + 8 * t_ + 4 * x), None))
                    elif sl in (2, 3):
                        fi = (0 if m == 'k' else 4) + 2 * (sl - 2) + t_
                        res.append((('v', temp + 4 * t_), fi * 2048 + 1024 * x))
                    else:
                        res.append(((('a' if m == 'k' else 'v'), 128 + 16 * RIDX[sl] + 8 * t_ + 4 * x), None))
            u['raw'] = [r[0] for r in res]
            u['res'] = res
        else:
            u['raw'] = [('v', temp + 4 * k) for k in range(8)]

    def wo_unit(ks):
        return dict(kind='wo', ks=ks, srd=S_D, soff=[(32 * ks + 4 * k) * 1024 for k in range(8)])
    U = {f"O{k}": wo_unit(k) for k in range(4)}
    for m in 'qkv':
        for hp in range(2):
            for x in range(2):
                U[f"{m.upper()}{hp}{x}"] = qkv_unit(m, hp, x)
    order = {0: "O0 O1 Q00 Q01 Q10 Q11 O2 O3 K00 K01 K10 K11 V00 V01 V10 V11",
             1: "Q00 Q01 Q10 Q11 O0 O1 K00 K01 O2 O3 K10 K11 V00 V01 V10 V11",
             2: "K00 K01 Q00 Q01 Q10 Q11 O0 O1 K10 K11 O2 O3 V00 V01 V10 V11",
             3: "O0 O1 Q00 Q01 Q10 Q11 O2 O3 V00 V01 V10 V11 K00 K01 K10 K11"}[opts.get('word', 0)].split()
    units = [U[n] for n in order]
    vq = Q(A, "vmcnt", 63)
    vq.ops = ['st'] * nst
    free_pool = list(POOL)
    free_temp = list(TEMPS)
    wo_left = [4]
    held = {}
    WIN = opts.get('cwin', 56)
    st_ = dict(issued=0)

    def inflight():
        return len(vq.ops)

    def try_issue():
        while st_['issued'] < len(units):
            u = units[st_['issued']]
            limit = min(WIN + (nst if 'st' in vq.ops else 0), 62)
            if inflight() + 8 > limit:
                return
            if u['kind'] == 'wo':
                if not free_pool:
                    return
                tmp = free_pool.pop(0)
                held[id(u)] = ('pool', tmp)
            elif u['needs_temp']:
                if not free_temp:
                    return
                tmp = free_temp.pop(0)
                held[id(u)] = ('temp', tmp)
            else:
                tmp = None
            bind(u, tmp)
            for k in range(8):
                if u['kind'] == 'wo':
                    A(f"s_xor_b32 {s(sT0)}, {u['soff'][k]:#x}, {s(sXo)}")
                    vq.issue(id(u), f"buffer_load_dwordx4 {reg(u['raw'][k], 4)}, {v(vGo)}, {s(u['srd'],4)}, {s(sT0)} offen")
                else:
                    A(f"s_mov_b32 {s(sT0)}, {u['soff'][k]:#x}")
                    vq.issue(id(u), f"buffer_load_dwordx4 {reg(u['raw'][k], 4)}, {v(vG)}, {s(u['srd'],4)}, {s(sT0)} offen")
            st_['issued'] += 1
    stamp(A, 1) if not opts.get('cprof') else None
    try_issue()
    A(f"s_lshl_b32 {s(sT2)}, {s(sWAVE)}, 13")
    lane_expr(A, vSW, vL, [(4, 2, 256), (1, 3, 32), (0, 1, 16)], sregs=[sT2])
    A(f"v_mov_b32 {v(vSWo)}, {v(vSW)}")
    A(f"v_bfe_u32 {v(vTA)}, {v(vL)}, 4, 1")
    A(f"v_lshlrev_b32 {v(vT0)}, 5, {v(vTA)}")
    A(f"v_xor_b32 {v(vSW)}, {v(vSW)}, {v(vT0)}")
    A(f"v_lshlrev_b32 {v(vT0)}, 6, {v(vTA)}")
    A(f"v_xor_b32 {v(vSWo)}, {v(vSWo)}, {v(vT0)}")
    A(f"v_xor_b32 {v(vSW+1)}, 64, {v(vSW)}")
    A(f"v_xor_b32 {v(vSW+2)}, 0x80, {v(vSW)}")
    A(f"v_xor_b32 {v(vSW+3)}, 0xc0, {v(vSW)}")
    A(f"v_xor_b32 {v(vSWo+1)}, 0x80, {v(vSWo)}")
    A(f"s_lshl_b32 {s(sT3)}, {s(sWAVE)}, 6")
    lane_expr(A, vTRb, vL, [(2, 1, 256 + 32), (4, 1, 1024 + 64), (5, 1, 2048), (3, 1, 4096 + 128), (0, 2, 8)])
    A(f"v_xor_b32 {v(vTRb)}, {s(sT3)}, {v(vTRb)}")
    A(f"v_add_u32 {v(vTRb)}, {s(sT2)}, {v(vTRb)}")
    lane_expr(A, vTRo, vL, [(2, 1, 256 + 64), (4, 1, 4096 + 128), (5, 1, 1024), (3, 1, 32), (0, 2, 8)], sregs=[sT2])
    A(f"s_lshl_b32 {s(sT0)}, {s(sWAVE)}, 15")
    A(f"s_add_u32 {s(sT0)}, {s(sT0)}, {WO_OFF}")
    A(f"v_add_u32 {v(vWo)}, {s(sT0)}, {v(vL16)}")
    vq.wait('st')
    A(f"s_barrier")
    Lci = A.new_label("ci")
    A(f"s_cmp_lg_u32 {s(sWAVE)}, 0")
    A(f"s_cbranch_scc1 {Lci}")
    A(f"s_getreg_b32 {s(sT0)}, hwreg(HW_REG_XCC_ID, 0, 4)")
    A(f"s_mul_i32 {s(sT1)}, {s(sT0)}, {s(sT0)}")
    A(f"s_lshl_b32 {s(sT1)}, {s(sT1)}, 17")
    A(f"s_lshl_b32 {s(sT0)}, {s(sT0)}, 8")
    A(f"s_add_u32 {s(sT0)}, {s(sT0)}, {s(sT1)}")
    A(f"s_add_u32 {s(sT0)}, {s(sT0)}, 1")
    A(f"v_mov_b32 {v(vT0)}, {s(sT0)}")
    A(f"v_mov_b32 {v(vT1)}, 0")
    A(f"s_mov_b64 exec, 1")
    A(f"buffer_atomic_add {v(vT0)}, {v(vT1)}, {s(S_DBG,4)}, 0 offen offset:{D_CHECKIN*4} sc1")
    A(f"s_mov_b64 exec, -1")
    A.label(Lci)
    try_issue()
    A(f"s_lshr_b32 {s(sT3)}, {s(sH)}, 2")
    A(f"s_lshl_b32 {s(sT3)}, {s(sT3)}, 10")
    A(f"s_and_b32 {s(sT4)}, {s(sH)}, 1")
    A(f"s_lshl_b32 {s(sT4)}, {s(sT4)}, 9")
    A(f"s_add_u32 {s(sT3)}, {s(sT3)}, {s(sT4)}")
    A(f"s_and_b32 {s(sT4)}, {s(sH)}, 2")
    A(f"s_lshl_b32 {s(sT4)}, {s(sT4)}, 4")
    A(f"s_add_u32 {s(sT3)}, {s(sT3)}, {s(sT4)}")
    lane_expr(A, vMst, vL, [(5, 1, 256), (1, 2, 64), (0, 1, 16), (4, 1, 8)], sregs=[sT3])
    A(f"v_and_b32 {v(vT1)}, 8, {v(vL)}")
    A(f"v_lshlrev_b32 {v(vT1)}, 27, {v(vT1)}")
    A(f"v_add_u32 {v(vMst)}, {v(vMst)}, {v(vT1)}")
    A(f"s_cmp_eq_u32 {s(sWAVE)}, 0")
    Lw0 = A.new_label("w0")
    A(f"s_cbranch_scc1 {Lw0}")
    A(f"v_mov_b32 {v(vMst)}, {v(vMre)}")
    A(f"s_cmp_eq_u32 {s(sWAVE)}, 3")
    A(f"s_cbranch_scc1 {Lw0}")
    A(f"s_lshl_b32 {s(sT0)}, {s(sH)}, 13")
    A(f"v_add_u32 {v(vMst)}, {s(sT0)}, {v(vL16)}")
    A.label(Lw0)
    for (dst, bit) in ((vIdx, 2), (vIdxW, 8)):
        A(f"v_mov_b32 {v(dst)}, 0x4444")
        A(f"v_mov_b32 {v(vT0)}, 0xeeee")
        A(f"v_and_b32 {v(vT1)}, {bit}, {v(vL)}")
        A(f"v_cmp_ne_u32 vcc, 0, {v(vT1)}")
        A.nop(2)
        A(f"v_cndmask_b32 {v(dst)}, {v(dst)}, {v(vT0)}, vcc")
    A(f"s_lshl_b32 {s(sT0)}, {s(sWAVE)}, 9")
    lane_expr(A, vQKw, vL, [(0, 4, 16), (4, 2, 4)], sregs=[sT0])
    A(f"s_lshl_b32 {s(sT0)}, {s(sWAVE)}, 10")
    A(f"s_lshr_b32 {s(sT1)}, {s(sWAVE)}, 1")
    A(f"s_lshl_b32 {s(sT1)}, {s(sT1)}, 11")
    A(f"s_add_u32 {s(sT0)}, {s(sT0)}, {s(sT1)}")
    lane_expr(A, vKw, vL, [(0, 4, 32), (4, 2, 8)], const=2048, sregs=[sT0])
    lane_expr(A, vKr, vL, [(5, 1, 512), (4, 1, 128), (2, 2, 32), (0, 2, 8)])
    lane_expr(A, vQKr, vL, [(5, 1, 256), (4, 1, 64), (2, 2, 16), (0, 1, 8)])
    A(f"s_lshl_b32 {s(sT0)}, {s(sWAVE)}, 9")
    lane_expr(A, vOw, vL, [(4, 2, 128), (0, 3, 16)], const=O_OFF, sregs=[sT0])
    A(f"s_lshl_b32 {s(sT0)}, {s(sWAVE)}, 11")
    A(f"s_add_u32 {s(sT0)}, {s(sT0)}, {MEM_OFF}")
    A(f"v_add_u32 {v(vMw)}, {s(sT0)}, {v(vL16)}")
    A(f"s_lshl_b32 {s(sT0)}, {s(sWAVE)}, 16")
    A(f"s_lshl_b32 {s(sT1)}, {s(sH)}, 8")
    lane_expr(A, vPst, vL, [(5, 1, 8192), (0, 4, 16), (4, 1, 8)], sregs=[sT0, sT1])
    A(f"s_lshl_b32 {s(sT0)}, {s(sH)}, 13")
    A(f"v_add_u32 {v(vRed)}, {s(sT0)}, {v(vL16)}")
    A(f"s_and_b32 {s(sT1)}, {s(sWAVE)}, 1")
    A(f"s_lshl_b32 {s(sT1)}, {s(sT1)}, 13")
    A(f"s_lshl_b32 {s(sT0)}, {s(sH)}, 14")
    A(f"s_add_u32 {s(sT0)}, {s(sT0)}, {s(sT1)}")
    A(f"v_lshlrev_b32 {v(vPf)}, 6, {v(vL)}")
    A(f"v_add_u32 {v(vPf)}, {s(sT0)}, {v(vPf)}")
    A(f"s_mov_b32 {s(sMLo)}, -1")
    A(f"s_mov_b32 {s(sMLo+1)}, 0")
    A(f"s_mov_b32 {s(sMHi)}, 0")
    A(f"s_mov_b32 {s(sMHi+1)}, -1")
    A(f"s_mov_b32 {s(sC)}, {f32_hex(SCALE_C):#x}")
    A(f"s_mov_b32 {s(sNC)}, {f32_hex(-SCALE_C):#x}")
    Lsel = A.new_label("sel")
    A(f"s_cmp_lg_u32 {s(sWAVE)}, 0")
    A(f"s_cbranch_scc1 {Lsel}")
    A(f"v_and_b32 {v(vT0)}, 15, {v(vL)}")
    A(f"v_mov_b32 {v(vS0)}, 0x3f80")
    A(f"v_mov_b32 {v(vT1)}, 0x3f800000")
    A(f"v_and_b32 v112, 1, {v(vT0)}")
    A(f"v_cmp_eq_u32 vcc, 1, v112")
    A.nop(2)
    A(f"v_cndmask_b32 {v(vS0)}, {v(vS0)}, {v(vT1)}, vcc")
    A(f"v_lshrrev_b32 {v(vT0)}, 1, {v(vT0)}")
    for i in range(4):
        A(f"v_cmp_eq_u32 vcc, {i}, {v(vT0)}")
        A.nop(2)
        A(f"v_cndmask_b32 {v(vSEL+i)}, 0, {v(vS0)}, vcc")
    A.label(Lsel)
    for i in range(4):
        A(f"v_mov_b32 {v(vONE+i)}, 0x3f803f80")
    for i in range(1, 4):
        A(f"v_mov_b32 {v(vBM+i)}, 0")

    for b, u in enumerate(units):
        assert st_['issued'] > b, "loader deadlock"
        vq.wait(id(u))
        A(f"s_barrier")
        if u['kind'] == 'qkv':
            for k in range(8):
                A(f"ds_write_b128 {v(vSW + (k & 1) + 2 * (k >> 2))}, {reg(u['raw'][k], 4)} offset:{k * 1024}")
            A(f"s_waitcnt lgkmcnt(0)")
            A(f"s_barrier")
            x = u['x']
            for i in range(4):
                for t_ in range(2):
                    r_, fin = u['res'][2 * i + t_]
                    A(f"v_xor_b32 {v(vTA + (t_ & 1))}, {(i << 13) | (t_ << 5):#x}, {v(vTRb)}")
                    for q0 in range(2):
                        A(f"ds_read_b64_tr_b16 {reg(off(r_, 2 * q0), 2)}, {v(vTA + (t_ & 1))} offset:{512 * q0}")
            A(f"s_waitcnt lgkmcnt(0)")
            for (r_, fin) in u['res']:
                if fin is not None:
                    A(f"ds_write_b128 {v(vWo)}, {reg(r_, 4)} offset:{fin}")
        else:
            ks = u['ks']
            for k in range(8):
                A(f"ds_write_b128 {v(vSWo + (k >> 2))}, {reg(u['raw'][k], 4)} offset:{k * 1024}")
            base = u['raw'][0][1]
            fins = []
            for cg in range(4):
                io = wo_ops.index((cg, ks))
                dst = WORR[io] if io < 8 else ('v', base + 8 * cg)
                A(f"v_xor_b32 {v(vTA + (cg & 1))}, {cg << 6:#x}, {v(vTRo)}")
                for i in range(4):
                    A(f"ds_read_b64_tr_b16 {reg(off(dst, 2 * i), 2)}, {v(vTA + (cg & 1))} offset:{(8 * (i >> 1) + 2 * (i & 1)) * 256}")
                if io >= 8:
                    fins.append((dst, io * 2048))
            A(f"s_waitcnt lgkmcnt(0)")
            for (dst, o) in fins:
                A(f"ds_write_b128 {v(vWo)}, {reg(dst, 4)} offset:{o}")
                A(f"ds_write_b128 {v(vWo)}, {reg(off(dst, 4), 4)} offset:{o + 1024}")
        if id(u) in held:
            kind, tmp = held[id(u)]
            A(f"s_waitcnt lgkmcnt(0)")
            if kind == 'pool':
                wo_left[0] -= 1
                if wo_left[0] >= 2:
                    free_pool.append(tmp)
                else:
                    free_temp.extend([tmp + 8 * j for j in range(4)])
            else:
                free_temp.append(tmp)
        if opts.get('prof') and not opts.get('cprof') and b in (0, 3, 7, 11):
            stamp(A, {0: 4, 3: 5, 7: 6, 11: 7}[b])
        try_issue()
    A("s_waitcnt lgkmcnt(0)")
    stamp(A, 2) if not opts.get('cprof') else None
    A(f"s_barrier")
    mk_srd(A, S_A, P_MEM0, 8192)
    A(f"s_lshl_b32 {s(sT0)}, {s(sWAVE)}, 8")
    lane_expr(A, vT0, vL, [(2, 2, 2048), (0, 1, 1024), (1, 1, 64), (4, 2, 16)], sregs=[sT0])
    A(f"buffer_load_dwordx4 {v(X+16,4)}, {v(vT0)}, {s(S_A,4)}, 0 offen")
    A(f"buffer_load_dwordx4 {v(X+20,4)}, {v(vT0)}, {s(S_A,4)}, 0 offen offset:128")
    A(f"s_waitcnt vmcnt(0)")
    A(f"ds_write_b128 {v(vMw)}, {v(X+16,4)}")
    A(f"ds_write_b128 {v(vMw)}, {v(X+20,4)} offset:1024")
    for i in range(16):
        A(f"v_mov_b32 {v(ACC+i)}, 0")
    for i in range(8):
        A(f"v_mov_b32 {v(Y+24+i)}, 0")
    A(f"s_lshl_b32 {s(sW2k)}, {s(sWAVE)}, 11")
    A(f"s_sub_u32 {s(sT0)}, {s(sWAVE)}, 1")
    A(f"s_lshl_b32 {s(sT0)}, {s(sT0)}, 10")
    A(f"s_cmp_eq_u32 {s(sWAVE)}, 0")
    A(f"s_cselect_b32 {s(sW1k)}, {OOB:#x}, {s(sT0)}")
    A(f"s_add_u32 {s(sRaA)}, {s(sW1k)}, 6144")
    A(f"s_mov_b32 {s(sRaM)}, 262144")
    A(f"s_cmp_eq_u32 {s(sWAVE)}, 3")
    A(f"s_cselect_b32 {s(sRaA)}, {WS_M:#x}, {s(sRaA)}")
    A(f"s_cselect_b32 {s(sRaM)}, 8192, {s(sRaM)}")
    A(f"s_lshl_b32 {s(sFb)}, {s(sH)}, 7")
    A(f"s_add_u32 {s(sFb)}, {s(sFb)}, {WS_KVF:#x}")
    A(f"s_mov_b32 {s(sT5)}, {s(sFb)}")
    A(f"s_cmp_eq_u32 {s(sWAVE)}, 0")
    A(f"s_cselect_b32 {s(sFb)}, {OOB:#x}, {s(sFb)}")
    A(f"s_cmp_ge_u32 {s(sWAVE)}, 2")
    A(f"s_mov_b32 {s(sT0)}, {OOB:#x}")
    A(f"s_mov_b32 {s(sPf)}, {WS_KX + 0x80000:#x}")
    A(f"s_cselect_b32 {s(sPf)}, {s(sPf)}, {s(sT0)}")
    A(f"s_add_u32 {s(sM0K)}, {s(sW2k)}, {KX_OFF}")
    A(f"s_lshl_b32 {s(sKn)}, {s(sH)}, 14")
    A(f"s_add_u32 {s(sKn)}, {s(sKn)}, {s(sW2k)}")
    A(f"s_add_u32 {s(sKn)}, {s(sKn)}, {WS_KX:#x}")
    A(f"s_add_u32 {s(sM0V)}, {s(sW2k)}, {VX_OFF}")
    A(f"s_lshl_b32 {s(sKV)}, {s(sH)}, 14")
    A(f"s_add_u32 {s(sKV)}, {s(sKV)}, {s(sW2k)}")
    A(f"s_add_u32 {s(sKV)}, {s(sKV)}, {WS_KX:#x}")
    A(f"s_lshl_b32 {s(sKM)}, {s(sH)}, 12")
    A(f"s_add_u32 {s(sKM)}, {s(sKM)}, {WS_KM:#x}")
    A(f"s_mov_b32 {s(sJ4)}, 8")
    A(f"s_mov_b32 {s(sCn)}, 1")
    A(f"s_mov_b32 {s(sNeed)}, 1")
    A(f"s_add_u32 {s(sFo)}, {s(sFb)}, 8")
    A(f"v_mov_b32 {v(vT1)}, 0")
    A(f"s_mov_b32 {s(sT2)}, {D_CHECKIN*4}")
    A(f"s_mov_b32 {s(sT3)}, 0")
    wait_byte(A, vFlag, vT1, sT2, sT3, 32, "ci", sleep=1)
    A(f"buffer_load_dword {v(vFlag)}, {v(vT1)}, {s(S_DBG,4)}, 0 offen offset:{D_CHECKIN*4} sc1")
    A(f"s_getreg_b32 {s(sT0)}, hwreg(HW_REG_XCC_ID, 0, 4)")
    A(f"s_mul_i32 {s(sT1)}, {s(sT0)}, {s(sT0)}")
    A(f"s_lshl_b32 {s(sT1)}, {s(sT1)}, 22")
    A(f"s_lshl_b32 {s(sT0)}, {s(sT0)}, 13")
    A(f"s_add_u32 {s(sT0)}, {s(sT0)}, {s(sT1)}")
    A(f"s_add_u32 {s(sT0)}, {s(sT0)}, 32")
    A(f"s_waitcnt vmcnt(0)")
    A(f"v_readfirstlane_b32 {s(sT1)}, {v(vFlag)}")
    A(f"s_cmp_eq_u32 {s(sT0)}, {s(sT1)}")
    A(f"s_cselect_b32 {s(sFastF)}, 1, 0")
    for j in range(2):
        Lp = A.new_label("kvp")
        Ld = A.new_label("kvd")
        A(f"s_mov_b32 {s(sRet)}, 0")
        A(f"s_cmp_lg_u32 {s(sDEAD)}, 0")
        A(f"s_cbranch_scc1 {Ld}")
        A.label(Lp)
        A(f"buffer_load_dword {v(vFlag)}, off, {s(S_WS,4)}, {s(sT5)} offset:{4*j} sc1")
        A(f"s_waitcnt vmcnt(0)")
        A(f"v_readfirstlane_b32 {s(sT0)}, {v(vFlag)}")
        A(f"s_cmp_ge_u32 {s(sT0)}, 1")
        A(f"s_cbranch_scc1 {Ld}")
        A(f"s_sleep 1")
        A(f"s_add_u32 {s(sRet)}, {s(sRet)}, 1")
        A(f"s_cmp_lt_u32 {s(sRet)}, {SPIN_LIMIT}")
        A(f"s_cbranch_scc1 {Lp}")
        A(f"s_mov_b32 {s(sDEAD)}, 1")
        A.label(Ld)
    A(f"s_mov_b32 m0, {s(sM0K)}")
    A(f"s_nop 0")
    for i in range(2):
        A(f"buffer_load_dwordx4 {v(vL16)}, {s(S_WS,4)}, {s(sKn)} offen offset:{1024*i} lds")
    A(f"s_mov_b32 {s(sS)}, 0")
    A(f"s_waitcnt vmcnt(0) lgkmcnt(0)")
    A(f"s_barrier")
    stamp(A, 3) if not opts.get('cprof') else None
    if opts.get('cprof'):
        A(f"s_mov_b32 {s(sCP0)}, 0")
        A(f"s_mov_b32 {s(sCP1)}, 0")
    A(f"s_cmp_eq_u32 {s(sFastF)}, 1")
    if opts.get('forceslow'):
        A(f"s_branch L_own0_s")
    A(f"s_cbranch_scc0 L_own0_s")
    gen_step(A, True, opts)
    gen_step(A, False, opts)


def G_tr(A, vD, vL, kind, base_sreg):
    tr_lane_addr(A, vD, vL, vT0, vS0, kind, base_sreg=base_sreg)
```

```python
from dsl import *
import gen as G
from gen import *
from gen_chain2 import f32_hex, LOG2E


def gen_out(A, opts):
    A.comment("==== role OUT ====")
    sPar, sSh, sC_, sSeg, sNext, sDelta, sOff, sShf, sBlk, sCnt, sSO = 44, 45, 46, 47, 48, 49, 50, 51, 52, 53, 54
    vWG, vST, vTR, vHst = 5, 6, 7, 8
    ACC = 64
    EP = 112
    xg = XG(A, sDelta)
    vL, vL16, vZero, vTmp, vT1, vT2 = xg.vL, xg.vL16, xg.vZero, xg.vTmp, xg.vT1, xg.vT2
    A(f"s_sub_u32 {s(sPar)}, {s(sXCD)}, 1")
    A(f"s_lshr_b32 {s(sSh)}, {s(sIDX)}, 4")
    A(f"s_and_b32 {s(sC_)}, {s(sIDX)}, 15")
    xg.setup()
    STG = 80 * 1024
    A(f"s_mul_i32 {s(sT2)}, {s(sWAVE)}, {2*STG_BUF}")
    A(f"s_add_u32 {s(sT2)}, {s(sT2)}, {STG}")
    stage_lane_addr(A, vST, vL, vT1, sT2)
    Lph2 = A.new_label("out_ph2")

    def wait_wdone(tag):
        L = A.new_label("wd" + tag)
        A(f"s_cmp_lg_u32 {s(sWAVE)}, 0")
        A(f"s_cbranch_scc1 {L}")
        A(f"s_mov_b32 {s(sOff)}, {D_WDONE*4}")
        A(f"s_mov_b32 {s(sShf)}, 0")
        wait_byte(A, vTmp, vZero, sOff, sShf, opts.get('wdn', 32), "wd" + tag, sleep=8)
        A.label(L)
        A(f"s_barrier")
    if opts.get('odelay') == 1:
        wait_wdone("a")
    A(f"s_cmp_gt_u32 {s(sC_)}, 10")
    A(f"s_cbranch_scc1 {Lph2}")
    mk_srd(A, S_A, P_W1, 512 * 2752)
    mk_srd(A, S_B, P_GATE, 1024)
    A(f"s_lshl_b32 {s(sBlk)}, {s(sC_)}, 2")
    A(f"s_add_u32 {s(sBlk)}, {s(sBlk)}, {s(sWAVE)}")
    A(f"s_lshl_b32 {s(sSeg)}, {s(sSh)}, 1")
    A(f"s_add_u32 {s(sSeg)}, {s(sSeg)}, {s(sPar)}")
    xg.issue_x(sSeg)
    A(f"s_waitcnt vmcnt(0)")
    xg.write_x()
    tr_lane_addr(A, vTR, vL, vT1, vT2, 'k16', base_sreg=sT2)
    Lgate = A.new_label("gatew")
    Lwdone = A.new_label("wdone")
    A(f"s_cmp_eq_u32 {s(sBlk)}, 43")
    A(f"s_cbranch_scc1 {Lgate}")
    raw_lane_off(A, vWG, vL, vT1, 2752)
    A(f"s_lshl_b32 {s(sT0)}, {s(sBlk)}, 6")
    A(f"v_add_u32 {v(vWG)}, {s(sT0)}, {v(vWG)}")
    blocks = []
    for b in range(16):
        blocks.append(dict(srd=S_A, voff=vWG, soff=[(32 * b) * 2752, (32 * b + 16) * 2752], raw=('a', 8 * b), dst=('a', 8 * b),
                           vtr=vTR, imm=TR_IMM['k16']))
    load_blocks(A, blocks, vST, window=16)
    A(f"s_branch {Lwdone}")
    A.label(Lgate)
    A(f"v_lshrrev_b32 {v(vWG)}, 5, {v(vL)}")
    A(f"v_lshlrev_b32 {v(vWG)}, 4, {v(vWG)}")
    A(f"v_and_b32 {v(vT1)}, 31, {v(vL)}")
    A(f"v_lshlrev_b32 {v(vT1)}, 12, {v(vT1)}")
    A(f"v_add_u32 {v(vWG)}, {v(vWG)}, {v(vT1)}")
    for kk in range(32):
        A(f"buffer_load_dwordx4 {a(4*kk,4)}, {v(vWG)}, {s(S_B,4)}, 0 offen offset:{kk*32}")
    A(f"s_waitcnt vmcnt(0)")
    A.label(Lwdone)
    xg.after_weights()
    A(f"s_lshl_b32 {s(sT0)}, {s(sBlk)}, 10")
    lane_expr(A, vHst, vL, [(4, 1, 43 * 1024), (5, 1, 256), (0, 4, 16)], sregs=[sT0])
    Lloop = A.new_label("ffn_loop")
    A.label(Lloop)
    A(f"s_add_u32 {s(sNext)}, {s(sSeg)}, 4")
    xg.issue_x(sNext)

    def mf(kk, f):
        c = "0" if kk == 0 else v(ACC, 16)
        A(f"v_mfma_f32_32x32x16_bf16 {v(ACC,16)}, {a(4*kk,4)}, {f}, {c}")
    xg.body(mf, wpos=opts.get('fwpos', 9))
    A.nop(12)
    Lge = A.new_label("gate_ep")
    Lepd = A.new_label("ep_done")
    A(f"s_cmp_eq_u32 {s(sBlk)}, 43")
    A(f"s_cbranch_scc1 {Lge}")
    A(f"s_mov_b32 {s(sT0)}, {f32_hex(-LOG2E):#x}")
    T = 80
    for i in range(16):
        A(f"v_mul_f32 {v(T+i)}, {s(sT0)}, {v(ACC+i)}")
    for i in range(16):
        A(f"v_exp_f32 {v(T+i)}, {v(T+i)}")
    for i in range(16):
        A(f"v_add_f32 {v(T+i)}, 1.0, {v(T+i)}")
    for i in range(16):
        A(f"v_rcp_f32 {v(T+i)}, {v(T+i)}")
    for i in range(16):
        A(f"v_mul_f32 {v(ACC+i)}, {v(ACC+i)}, {v(T+i)}")
    for i in range(8):
        A(f"v_cvt_pk_bf16_f32 {v(EP+i)}, {v(ACC+2*i)}, {v(ACC+2*i+1)}")
    A(f"s_mul_i32 {s(sT0)}, {s(sSeg)}, {HX_STRIDE}")
    A(f"s_add_u32 {s(sT0)}, {s(sT0)}, {WS_HX:#x}")
    for c in range(2):
        A(f"buffer_store_dwordx4 {v(EP+4*c,4)}, {v(vHst)}, {s(S_WS,4)}, {s(sT0)} offen offset:{c*512} sc1")
    A(f"s_branch {Lepd}")
    A.label(Lge)
    A(f"s_mov_b32 {s(sT0)}, {f32_hex(-LOG2E):#x}")
    A(f"v_mul_f32 {v(vT1)}, {s(sT0)}, {v(ACC)}")
    A(f"v_exp_f32 {v(vT1)}, {v(vT1)}")
    A.nop(1)
    A(f"v_add_f32 {v(vT1)}, 1.0, {v(vT1)}")
    A(f"v_rcp_f32 {v(vT1)}, {v(vT1)}")
    A(f"v_lshlrev_b32 {v(vT2)}, 2, {v(vL)}")
    A(f"s_lshl_b32 {s(sT0)}, {s(sSeg)}, 7")
    A(f"s_add_u32 {s(sT0)}, {s(sT0)}, {WS_G:#x}")
    A(f"s_mov_b64 exec, 0xffffffff")
    A(f"buffer_store_dword {v(vT1)}, {v(vT2)}, {s(S_WS,4)}, {s(sT0)} offen sc1")
    A(f"s_mov_b64 exec, -1")
    A.label(Lepd)
    xg.toggle()
    A(f"s_waitcnt lgkmcnt(0)")
    A(f"s_barrier")
    A(f"s_mov_b32 {s(sSeg)}, {s(sNext)}")
    A(f"s_cmp_lt_u32 {s(sSeg)}, 64")
    A(f"s_cbranch_scc1 {Lloop}")
    A(f"s_waitcnt vmcnt(0)")
    A(f"s_barrier")
    Lnf = A.new_label("ffn_nf")
    A(f"s_cmp_lg_u32 {s(sWAVE)}, 0")
    A(f"s_cbranch_scc1 {Lnf}")
    A(f"s_lshl_b32 {s(sOff)}, {s(sPar)}, 2")
    A(f"s_add_u32 {s(sOff)}, {s(sOff)}, {D_FFN*4}")
    A(f"s_mov_b32 {s(sShf)}, 0")
    signal_byte(A, None, vZero, sOff, sShf, vTmp)
    A.label(Lnf)
    A.label(Lph2)
    if opts.get('odelay') == 2:
        wait_wdone("b")
    stamp(A, 1)
    mk_srd(A, S_A, P_WO, 4096 * 1024)
    mk_srd(A, S_B, P_W2, 1376 * 1024)
    mk_srd(A, S_C, P_OUT, 2048 * 1024)
    vWG2, vTR2 = 8, 9
    raw_lane_off(A, vWG, vL, vT1, 1024)
    A(f"s_lshl_b32 {s(sT0)}, {s(sC_)}, 6")
    A(f"v_add_u32 {v(vWG)}, {s(sT0)}, {v(vWG)}")
    A(f"s_mul_i32 {s(sT0)}, {s(sWAVE)}, {11*32*1024}")
    A(f"v_add_u32 {v(vWG2)}, {s(sT0)}, {v(vWG)}")
    A(f"s_lshl_b32 {s(sT0)}, {s(sWAVE)}, 20")
    A(f"v_add_u32 {v(vWG)}, {s(sT0)}, {v(vWG)}")
    A(f"s_mul_i32 {s(sT2)}, {s(sWAVE)}, {2*STG_BUF}")
    A(f"s_add_u32 {s(sT2)}, {s(sT2)}, {STG}")
    tr_lane_addr(A, vTR, vL, vT1, vT2, 'out_wo', base_sreg=sT2)
    tr_lane_addr(A, vTR2, vL, vT1, vT2, 'out_w2', base_sreg=sT2)
    blocks = []
    for b in range(11):
        blocks.append(dict(srd=S_B, voff=vWG2, soff=[(32 * b) * 1024, (32 * b + 16) * 1024], raw=('v', 128 + 8 * b), dst=('v', 128 + 8 * b),
                           vtr=vTR2, imm=TR_IMM['out_w2']))
    for b in range(32):
        blocks.append(dict(srd=S_A, voff=vWG, soff=[(32 * b) * 1024, (32 * b + 16) * 1024], raw=('a', 8 * b), dst=('a', 8 * b),
                           vtr=vTR, imm=TR_IMM['out_wo']))
    load_blocks(A, blocks, vST, window=31)
    stamp(A, 2)
    A(f"s_lshl_b32 {s(sOff)}, {s(sPar)}, 2")
    A(f"s_add_u32 {s(sOff)}, {s(sOff)}, {D_FFN*4}")
    A(f"s_mov_b32 {s(sShf)}, 0")
    wait_byte(A, vTmp, vZero, sOff, sShf, 22, "ffn", sleep=4)
    A(f"s_mov_b32 {s(sOff)}, {D_CHECKIN*4}")
    wait_byte(A, vTmp, vZero, sOff, sShf, 32, "oci", sleep=4)
    A(f"s_barrier")
    vOF = 11
    A(f"v_and_b32 {v(vOF)}, 31, {v(vL)}")
    A(f"v_lshlrev_b32 {v(vOF)}, 2, {v(vOF)}")
    stamp(A, 3)
    aA, aB = 16, 24
    bufs = [32 + 4 * i for i in range(24)] + [216 + 4 * i for i in range(10)]
    vRw, vRr, vOut, vG = 5, 6, 7, 8
    RED = 0
    A(f"s_lshl_b32 {s(sT0)}, {s(sWAVE)}, 12")
    A(f"v_add_u32 {v(vRw)}, {s(sT0)}, {v(vL16)}")
    A(f"s_and_b32 {s(sT0)}, {s(sWAVE)}, 1")
    A(f"s_lshl_b32 {s(sT0)}, {s(sT0)}, 10")
    A(f"v_add_u32 {v(vRr)}, {s(sT0)}, {v(vL16)}")
    A(f"s_lshl_b32 {s(sT0)}, {s(sSh)}, 14")
    A(f"s_lshl_b32 {s(sT1)}, {s(sC_)}, 6")
    A(f"s_add_u32 {s(sT0)}, {s(sT0)}, {s(sT1)}")
    A(f"s_and_b32 {s(sT1)}, {s(sWAVE)}, 1")
    A(f"s_lshl_b32 {s(sT1)}, {s(sT1)}, 5")
    A(f"s_add_u32 {s(sT0)}, {s(sT0)}, {s(sT1)}")
    lane_expr(A, vOut, vL, [(0, 4, 1024), (4, 2, 8)], sregs=[sT0])
    A(f"s_lshl_b32 {s(sT0)}, {s(sSh)}, 6")
    lane_expr(A, vG, vL, [(0, 4, 4)], sregs=[sT0])
    A(f"s_mov_b32 {s(sSeg)}, {s(sPar)}")
    Lm = A.new_label("out_loop")
    A.label(Lm)
    A(f"s_mul_i32 {s(sT2)}, {s(sSeg)}, {HX_STRIDE}")
    A(f"s_mul_i32 {s(sT3)}, {s(sSh)}, {43*1024}")
    A(f"s_add_u32 {s(sT2)}, {s(sT2)}, {s(sT3)}")
    A(f"s_mul_i32 {s(sT3)}, {s(sWAVE)}, {11*1024}")
    A(f"s_add_u32 {s(sT2)}, {s(sT2)}, {s(sT3)}")
    A(f"s_add_u32 {s(sT2)}, {s(sT2)}, {WS_HX:#x}")
    vq = Q(A, "vmcnt", 63)
    for b in range(11):
        if b in (4, 8):
            A(f"s_add_u32 {s(sT2)}, {s(sT2)}, 4096")
        if b == 10:
            A(f"s_cmp_eq_u32 {s(sWAVE)}, 3")
            A(f"s_cselect_b32 {s(sT3)}, 1024, 0")
            A(f"s_sub_u32 {s(sT2)}, {s(sT2)}, {s(sT3)}")
        vq.issue(('H', b), f"buffer_load_dwordx4 {v(bufs[b],4)}, {v(vL16)}, {s(S_WS,4)}, {s(sT2)} offen offset:{(b%4)*1024}")
    A(f"s_lshl_b32 {s(sT2)}, {s(sSeg)}, 7")
    A(f"s_add_u32 {s(sT2)}, {s(sT2)}, {WS_G:#x}")
    vq.issue('g', f"buffer_load_dword v9, {v(vG)}, {s(S_WS,4)}, {s(sT2)} offen")
    A(f"s_lshl_b32 {s(sOff)}, {s(sSeg)}, 7")
    A(f"s_add_u32 {s(sOff)}, {s(sOff)}, {WS_OF:#x}")
    Lw = A.new_label("ow")
    Lp = A.new_label("op")
    A(f"s_cmp_lg_u32 {s(sWAVE)}, 0")
    A(f"s_cbranch_scc1 {Lw}")
    A(f"s_cmp_lg_u32 {s(sDEAD)}, 0")
    A(f"s_cbranch_scc1 {Lw}")
    A(f"s_mov_b32 {s(sShf)}, 0")
    A.label(Lp)
    A(f"buffer_load_dword v10, {v(vOF)}, {s(S_WS,4)}, {s(sOff)} offen sc1")
    A(f"s_waitcnt vmcnt(0)")
    A(f"v_cmp_ne_u32 vcc, 0, v10")
    A(f"s_add_u32 {s(sShf)}, {s(sShf)}, 1")
    A(f"s_nop 0")
    A(f"s_cmp_eq_u64 vcc, -1")
    A(f"s_cbranch_scc1 {Lw}")
    A(f"s_sleep 4")
    A(f"s_cmp_lt_u32 {s(sShf)}, {SPIN_LIMIT}")
    A(f"s_cbranch_scc1 {Lp}")
    A(f"s_mov_b32 {s(sDEAD)}, 1")
    A.label(Lw)
    A(f"s_barrier")
    A(f"s_lshl_b32 {s(sSO)}, {s(sSeg)}, 5")
    A(f"s_lshl_b32 {s(sT3)}, {s(sWAVE)}, 3")
    A(f"s_add_u32 {s(sSO)}, {s(sSO)}, {s(sT3)}")
    A(f"s_lshl_b32 {s(sSO)}, {s(sSO)}, 13")
    A(f"s_lshl_b32 {s(sT3)}, {s(sSh)}, 12")
    A(f"s_add_u32 {s(sSO)}, {s(sSO)}, {s(sT3)}")
    A(f"s_add_u32 {s(sSO)}, {s(sSO)}, {WS_OX:#x}")

    obuf = {}
    def issue_o(b, buf):
        A(f"s_add_u32 {s(sT3)}, {s(sSO)}, {(b>>2)*8192}")
        vq.issue(('O', b), f"buffer_load_dwordx4 {v(buf,4)}, {v(vL16)}, {s(S_WS,4)}, {s(sT3)} offen offset:{(b&3)*1024}")
        obuf[b] = buf
    nfree = len(bufs) - 11
    for b in range(nfree):
        issue_o(b, bufs[11 + b])
    nxt = nfree
    for b in range(11):
        vq.wait(('H', b))
        for ct in range(2):
            c = "0" if b == 0 else v(aB + 4 * ct, 4)
            A(f"v_mfma_f32_16x16x32_bf16 {v(aB+4*ct,4)}, {v(128+8*b+4*ct,4)}, {v(bufs[b],4)}, {c}")
        if nxt < 32:
            issue_o(nxt, bufs[b])
            nxt += 1
    for b in range(32):
        vq.wait(('O', b))
        for ct in range(2):
            c = "0" if b == 0 else v(aA + 4 * ct, 4)
            A(f"v_mfma_f32_16x16x32_bf16 {v(aA+4*ct,4)}, {a(8*b+4*ct,4)}, {v(obuf[b],4)}, {c}")
    A.nop(8)
    A(f"ds_write_b128 {v(vRw)}, {v(aA,4)} offset:0")
    A(f"ds_write_b128 {v(vRw)}, {v(aA+4,4)} offset:1024")
    A(f"ds_write_b128 {v(vRw)}, {v(aB,4)} offset:2048")
    A(f"ds_write_b128 {v(vRw)}, {v(aB+4,4)} offset:3072")
    A(f"s_waitcnt lgkmcnt(0)")
    A(f"s_barrier")
    Lsk = A.new_label("osk")
    A(f"s_cmp_gt_u32 {s(sWAVE)}, 1")
    A(f"s_cbranch_scc1 {Lsk}")
    R = 32
    for w in range(4):
        A(f"ds_read_b128 {v(R+8*w,4)}, {v(vRr)} offset:{w*4096}")
        A(f"ds_read_b128 {v(R+8*w+4,4)}, {v(vRr)} offset:{w*4096+2048}")
    A(f"s_waitcnt lgkmcnt(0)")
    for r in range(4):
        A(f"v_add_f32 {v(R+r)}, {v(R+r)}, {v(R+8+r)}")
        A(f"v_add_f32 {v(R+16+r)}, {v(R+16+r)}, {v(R+24+r)}")
        A(f"v_add_f32 {v(R+4+r)}, {v(R+4+r)}, {v(R+12+r)}")
        A(f"v_add_f32 {v(R+20+r)}, {v(R+20+r)}, {v(R+28+r)}")
    for r in range(4):
        A(f"v_add_f32 {v(R+r)}, {v(R+r)}, {v(R+16+r)}")
        A(f"v_add_f32 {v(R+4+r)}, {v(R+4+r)}, {v(R+20+r)}")
    for r in range(4):
        A(f"v_sub_f32 {v(R+r)}, {v(R+r)}, {v(R+4+r)}")
    for r in range(4):
        A(f"v_fma_f32 {v(R+r)}, {v(R+r)}, v9, {v(R+4+r)}")
    A(f"v_cvt_pk_bf16_f32 {v(R+8)}, {v(R)}, {v(R+1)}")
    A(f"v_cvt_pk_bf16_f32 {v(R+9)}, {v(R+2)}, {v(R+3)}")
    A(f"s_lshl_b32 {s(sT2)}, {s(sSeg)}, 15")
    A(f"buffer_store_dwordx2 {v(R+8,2)}, {v(vOut)}, {s(S_C,4)}, {s(sT2)} offen" + ["", " sc1", " sc0 sc1", " nt", " sc1 nt"][opts.get('opol', 0)])
    A.label(Lsk)
    A(f"s_add_u32 {s(sSeg)}, {s(sSeg)}, 2")
    A(f"s_cmp_lt_u32 {s(sSeg)}, 64")
    A(f"s_cbranch_scc1 {Lm}")
    A(f"s_waitcnt vmcnt(0)")
```

```python
import sys
from dsl import *

KNAME = "gated_mix__memory_aug_recurrent_mem_tr__dense_activation_silu__prompt_kernel"

WS_P = 0
WS_M = 0x100000
WS_KVF = 0x110000
WS_OF = 0x120000
WS_KM = 0x200000
WS_KX = 0x1000000
KVSTR = 16384
WS_QX = 0x3000000
WS_OX = 0x4000000
WS_HX = 0x5000000
HX_STRIDE = 2 * 43 * 1024
WS_G = 0x5800000
WS_T = 0x5810000
WS_SIZE = 0x5860000

D_CHECKIN = 0
D_XCCMASK = 1
D_FFN = 2
D_ERR = 4
D_WDONE = 5
D_KV = 8
D_O = 24
D_PROG = 40

S_WS, S_DBG, S_X, S_A, S_B, S_C, S_D = 4, 8, 12, 16, 20, 24, 28
sWAVE, sIDX, sXCD = 32, 33, 34
sT0, sT1, sT2, sT3, sT4, sT5 = 35, 36, 37, 38, 39, 40
sDEAD = 41
sEX = 42
P_X, P_MEM0, P_WQ, P_WK, P_WV, P_WO, P_W1, P_W2, P_GATE, P_OUT, P_DBG, P_WS = 64, 66, 68, 70, 72, 74, 80, 82, 84, 86, 88, 90
SPIN_LIMIT = 1 << 17

LDS_BYTES = 160 * 1024


def mk_srd(A, d, p, size):
    A(f"s_mov_b32 {s(d)}, {s(p)}")
    A(f"s_mov_b32 {s(d+1)}, {s(p+1)}")
    A(f"s_mov_b32 {s(d+2)}, {size:#x}")
    A(f"s_mov_b32 {s(d+3)}, 0x00020000")


def wait_byte(A, vT, vZero, s_off, s_shift, target, tag, s_tmp=sT0, s_cnt=sT1, target_is_sreg=False, sleep=2):
    L = A.new_label("w" + tag)
    Ld = A.new_label("wd" + tag)
    A(f"s_mov_b32 {s(s_cnt)}, 0")
    A(f"s_cmp_lg_u32 {s(sDEAD)}, 0")
    A(f"s_cbranch_scc1 {Ld}")
    A.label(L)
    A(f"buffer_load_dword {v(vT)}, {v(vZero)}, {s(S_DBG,4)}, {s(s_off)} offen sc1")
    A(f"s_waitcnt vmcnt(0)")
    A(f"v_readfirstlane_b32 {s(s_tmp)}, {v(vT)}")
    A(f"s_lshr_b32 {s(s_tmp)}, {s(s_tmp)}, {s(s_shift)}")
    A(f"s_and_b32 {s(s_tmp)}, {s(s_tmp)}, 0xff")
    A(f"s_cmp_ge_u32 {s(s_tmp)}, {s(target) if target_is_sreg else target}")
    A(f"s_cbranch_scc1 {Ld}")
    if sleep:
        A(f"s_sleep {sleep}")
    A(f"s_add_u32 {s(s_cnt)}, {s(s_cnt)}, 1")
    A(f"s_cmp_lt_u32 {s(s_cnt)}, {SPIN_LIMIT}")
    A(f"s_cbranch_scc1 {L}")
    A(f"s_mov_b32 {s(sDEAD)}, 1")
    A.label(Ld)


def signal_byte(A, vOne, vZero, s_off, s_shift, vTmp):
    A(f"s_lshl_b32 {s(sT0)}, 1, {s(s_shift)}")
    A(f"v_mov_b32 {v(vTmp)}, {s(sT0)}")
    A(f"s_mov_b64 {s(sEX,2)}, exec")
    A(f"s_mov_b64 exec, 1")
    A(f"buffer_atomic_add {v(vTmp)}, {v(vZero)}, {s(S_DBG,4)}, {s(s_off)} offen sc1")
    A(f"s_mov_b64 exec, {s(sEX,2)}")


PROF = False
sSTAMP = 92


def stamp(A, i):
    if not PROF:
        return
    A(f"s_memrealtime s[62:63]")
    A(f"s_waitcnt lgkmcnt(0)")
    A(f"s_mov_b32 {s(sSTAMP+i)}, s62")


def stamp_clk(A, i):
    if not PROF:
        return
    A(f"s_memtime s[62:63]")
    A(f"s_waitcnt lgkmcnt(0)")
    A(f"s_mov_b32 {s(sSTAMP+i)}, s62")


def stamp_if_lt(A, i, sreg, limit, clk=False):
    if not PROF:
        return
    L = A.new_label("st")
    A(f"s_cmp_lt_u32 {s(sreg)}, {limit}")
    A(f"s_cbranch_scc0 {L}")
    (stamp_clk if clk else stamp)(A, i)
    A.label(L)


def stamp_flush(A):
    if not PROF:
        return
    A(f"s_lshl_b32 s62, s2, 2")
    A(f"s_add_u32 s62, s62, {s(sWAVE)}")
    A(f"s_lshl_b32 s62, s62, 6")
    A(f"s_add_u32 s62, s62, {WS_T:#x}")
    A(f"v_mov_b32 v1, 0")
    A(f"s_mov_b64 exec, 1")
    for i in range(10):
        A(f"v_mov_b32 v2, {s(sSTAMP+i)}")
        A(f"buffer_store_dword v2, v1, {s(S_WS,4)}, s62 offen offset:{4*i}")
    A(f"s_waitcnt vmcnt(0)")


STG_BUF = 3072


def stage_addr(row):
    return 64 * row + 128 * (row >> 2)


def load_blocks(A, blocks, vST, window, after_first_issue=None, nolds=False):
    n = len(blocks)

    def issue(b):
        blk = blocks[b]
        for k in range(2):
            so = blk['soff'][k]
            A(f"s_mov_b32 {s(sT0)}, {so:#x}")
            if blk.get('sbase') is not None:
                A(f"s_add_u32 {s(sT0)}, {s(sT0)}, {s(blk['sbase'])}")
            A(f"buffer_load_dwordx4 {reg(off(blk['raw'], 4*k), 4)}, {v(blk['voff'])}, {s(blk['srd'],4)}, {s(sT0)} offen")

    issued = 0
    def can_issue(b, done):
        r = blocks[b]['raw']
        for p in range(b):
            if blocks[p]['raw'] == r or blocks[p].get('dst') == r:
                if p >= done:
                    return False
        return True

    while issued < n and issued < window and can_issue(issued, 0):
        issue(issued)
        issued += 1
    if after_first_issue:
        after_first_issue(2 * issued)
    for b in range(n):
        blk = blocks[b]
        assert issued > b, "window deadlock"
        A(f"s_waitcnt vmcnt({2*(issued-b-1)})")
        buf = (b & 1) * STG_BUF
        if not nolds:
            A(f"ds_write_b128 {v(vST)}, {reg(blk['raw'],4)} offset:{buf}")
            A(f"ds_write_b128 {v(vST)}, {reg(off(blk['raw'],4),4)} offset:{buf + stage_addr(16)}")
            for i in range(4):
                A(f"ds_read_b64_tr_b16 {reg(off(blk['dst'],2*i),2)}, {v(blk['vtr'])} offset:{buf + blk['imm'][i]}")
        if blk.get('post'):
            blk['post'](A)
        while issued < n and issued - b - 1 < window and can_issue(issued, b + 1):
            issue(issued)
            issued += 1
    A("s_waitcnt lgkmcnt(0)")


def load_blocks2(A, blocks, vST, window, extra=None, nolds=False, vq=None, upto=None):
    n = len(blocks)
    vq = vq or Q(A, "vmcnt", 63)
    state = dict(issued=0, xi=False, xc=False)

    def issue(b):
        blk = blocks[b]
        for k in range(2):
            A(f"s_mov_b32 {s(sT0)}, {blk['soff'][k]:#x}")
            vq.issue(('B', id(blk)), f"buffer_load_dwordx4 {reg(off(blk['raw'], 4*k), 4)}, {v(blk['voff'])}, {s(blk['srd'],4)}, {s(sT0)} offen")
        state['issued'] += 1
        if extra and b == extra[0]:
            extra[1](vq)
            state['xi'] = True
    while state['issued'] < n and state['issued'] < window:
        issue(state['issued'])
    for b in range(n):
        blk = blocks[b]
        vq.wait(('B', id(blk)))
        if extra and state['xi'] and not state['xc'] and b > extra[0]:
            extra[2](vq)
            state['xc'] = True
        buf = (b & 1) * STG_BUF
        if not nolds:
            A(f"ds_write_b128 {v(vST)}, {reg(blk['raw'],4)} offset:{buf}")
            A(f"ds_write_b128 {v(vST)}, {reg(off(blk['raw'],4),4)} offset:{buf + stage_addr(16)}")
            for i in range(4):
                A(f"ds_read_b64_tr_b16 {reg(off(blk['dst'],2*i),2)}, {v(blk['vtr'])} offset:{buf + blk['imm'][i]}")
        if blk.get('post'):
            blk['post'](A)
        while state['issued'] < n and state['issued'] - b - 1 < window:
            issue(state['issued'])
    if extra and not state['xc']:
        extra[2](vq)
    A("s_waitcnt lgkmcnt(0)")


def tr_lane_addr(A, vD, vL, vT1, vT2, kind, base_sreg=None, base_imm=0):
    A(f"v_lshrrev_b32 {v(vT1)}, 4, {v(vL)}")
    A(f"v_bfe_u32 {v(vT2)}, {v(vL)}, 2, 2")
    A(f"v_and_b32 {v(vD)}, 3, {v(vL)}")
    A(f"v_lshlrev_b32 {v(vD)}, 3, {v(vD)}")

    def add_term(expr_src, mask_shift, mul):
        sh, bits = mask_shift
        A(f"v_bfe_u32 v{TMPX}, {v(expr_src)}, {sh}, {bits}")
        A(f"v_mul_u32_u24 v{TMPX}, {mul}, v{TMPX}")
        A(f"v_add_u32 {v(vD)}, {v(vD)}, v{TMPX}")

    G, r = vT1, vT2
    def sa(row):
        return stage_addr(row)
    if kind == 'chain_qkv':
        add_term(G, (1, 1), sa(8)); add_term(G, (0, 1), sa(4)); add_term(r, (0, 1), sa(1)); add_term(r, (1, 1), 32)
    elif kind == 'chain_wo':
        add_term(G, (0, 1), sa(16)); add_term(G, (1, 1), sa(4)); add_term(r, (0, 1), sa(1)); add_term(r, (1, 1), 32)
    elif kind == 'k16':
        add_term(G, (1, 1), sa(8)); add_term(r, (0, 2), sa(1)); add_term(G, (0, 1), 32)
    elif kind == 'out_wo':
        add_term(G, (0, 2), sa(4)); add_term(r, (0, 2), sa(1))
    elif kind == 'out_w2':
        add_term(G, (1, 1), sa(16)); add_term(G, (0, 1), sa(4)); add_term(r, (0, 2), sa(1))
    else:
        raise ValueError(kind)
    if base_sreg is not None:
        A(f"v_add_u32 {v(vD)}, {s(base_sreg)}, {v(vD)}")
    if base_imm:
        A(f"v_add_u32 {v(vD)}, {base_imm}, {v(vD)}")


TR_IMM = {
    'chain_qkv': [stage_addr(16 * hi + 2 * qq) for hi in range(2) for qq in range(2)],
    'chain_wo': [stage_addr(8 * hi + 2 * qq) for hi in range(2) for qq in range(2)],
    'k16': [stage_addr(16 * kk + 4 * hf) for kk in range(2) for hf in range(2)],
    'out_wo': [stage_addr(16 * hf) + 32 * ct for ct in range(2) for hf in range(2)],
    'out_w2': [stage_addr(8 * hf) + 32 * ct for ct in range(2) for hf in range(2)],
}
TMPX = 15


def stage_lane_addr(A, vD, vL, vT, base_sreg):
    A(f"v_lshrrev_b32 {v(vD)}, 2, {v(vL)}")
    A(f"v_lshlrev_b32 {v(vD)}, 6, {v(vD)}")
    A(f"v_lshrrev_b32 {v(vT)}, 4, {v(vL)}")
    A(f"v_lshlrev_b32 {v(vT)}, 7, {v(vT)}")
    A(f"v_add_u32 {v(vD)}, {v(vD)}, {v(vT)}")
    A(f"v_and_b32 {v(vT)}, 3, {v(vL)}")
    A(f"v_lshlrev_b32 {v(vT)}, 4, {v(vT)}")
    A(f"v_add_u32 {v(vD)}, {v(vD)}, {v(vT)}")
    A(f"v_add_u32 {v(vD)}, {s(base_sreg)}, {v(vD)}")


def raw_lane_off(A, vD, vL, vT, pitch):
    A(f"v_lshrrev_b32 {v(vD)}, 2, {v(vL)}")
    A(f"v_mul_u32_u24 {v(vD)}, {pitch}, {v(vD)}")
    A(f"v_and_b32 {v(vT)}, 3, {v(vL)}")
    A(f"v_lshlrev_b32 {v(vT)}, 4, {v(vT)}")
    A(f"v_add_u32 {v(vD)}, {v(vD)}, {v(vT)}")


def lane_expr(A, vD, vL, terms, const=0, sregs=(), tmp=None):
    tmp = TMPX if tmp is None else tmp
    first = True
    for (sh, bits, mul) in terms:
        dst = vD if first else tmp
        A(f"v_bfe_u32 {v(dst)}, {v(vL)}, {sh}, {bits}")
        if mul != 1:
            A(f"v_mul_u32_u24 {v(dst)}, {mul}, {v(dst)}")
        if not first:
            A(f"v_add_u32 {v(vD)}, {v(vD)}, {v(tmp)}")
        first = False
    if first:
        A(f"v_mov_b32 {v(vD)}, 0")
    if const:
        A(f"v_add_u32 {v(vD)}, {const:#x}, {v(vD)}")
    for sr in sregs:
        A(f"v_add_u32 {v(vD)}, {s(sr)}, {v(vD)}")


class Q:
    def __init__(self, A, name, cap):
        self.A, self.name, self.cap = A, name, cap
        self.ops = []

    def issue(self, tag, text):
        self.A(text)
        self.ops.append(tag)

    def wait(self, tag):
        if tag not in self.ops:
            return
        i = max(j for j, t in enumerate(self.ops) if t == tag)
        n = len(self.ops) - 1 - i
        self.A(f"s_waitcnt {self.name}({min(n, self.cap)})")
        if n <= self.cap:
            self.ops = self.ops[i + 1:]
        else:
            self.ops = self.ops[len(self.ops) - self.cap:]

    def wait_all(self):
        self.A(f"s_waitcnt {self.name}(0)")
        self.ops = []


XBUF = 64 * 528
XB1 = 36864


class XG:
    vL, vL16, vXW, vXR, vZero, vTmp, vT1, vT2 = 1, 2, 3, 4, 10, 11, 12, 13
    XP, XF = 16, 48
    NF = 4

    def __init__(self, A, sDelta):
        self.A, self.sDelta = A, sDelta

    def setup(self):
        A = self.A
        vL, vL16, vXW, vXR, vZero, vT1 = self.vL, self.vL16, self.vXW, self.vXR, self.vZero, self.vT1
        A(f"v_and_b32 {v(vL)}, 63, v0")
        A(f"v_lshlrev_b32 {v(vL16)}, 4, {v(vL)}")
        A(f"v_mov_b32 {v(vZero)}, 0")
        A(f"v_mul_u32_u24 {v(vXW)}, 528, {v(vL)}")
        A(f"s_lshl_b32 {s(sT0)}, {s(sWAVE)}, 7")
        A(f"v_add_u32 {v(vXW)}, {s(sT0)}, {v(vXW)}")
        A(f"v_lshrrev_b32 {v(vXR)}, 5, {v(vL)}")
        A(f"v_mul_u32_u24 {v(vXR)}, 528, {v(vXR)}")
        A(f"v_and_b32 {v(vT1)}, 31, {v(vL)}")
        A(f"v_lshlrev_b32 {v(vT1)}, 4, {v(vT1)}")
        A(f"v_add_u32 {v(vXR)}, {v(vXR)}, {v(vT1)}")

    def issue_x(self, seg_sreg, vq=None):
        A = self.A
        if vq is not None:
            A = lambda x_: (vq.issue('x', x_) if x_.startswith('buffer_load') else self.A(x_))
        A(f"s_lshl_b32 {s(sT0)}, {s(seg_sreg)}, 15")
        A(f"s_lshl_b32 {s(sT1)}, {s(sWAVE)}, 13")
        A(f"s_add_u32 {s(sT0)}, {s(sT0)}, {s(sT1)}")
        for i in range(8):
            if i == 4:
                A(f"s_add_u32 {s(sT0)}, {s(sT0)}, 4096")
            A(f"buffer_load_dwordx4 {v(self.XP+4*i,4)}, {v(self.vL16)}, {s(S_X,4)}, {s(sT0)} offen offset:{(i%4)*1024}")

    def write_x(self):
        for i in range(8):
            self.A(f"ds_write_b128 {v(self.vXW)}, {v(self.XP+4*i,4)} offset:{i*16}")

    def after_weights(self):
        A = self.A
        A(f"s_waitcnt lgkmcnt(0)")
        A(f"s_barrier")
        A(f"s_mov_b32 {s(self.sDelta)}, {XB1}")
        A(f"v_add_u32 {v(self.vXW)}, {s(self.sDelta)}, {v(self.vXW)}")

    def body(self, mfmas, wpos=9):
        A, NF, XF = self.A, self.NF, self.XF

        def rd(kk):
            A(f"ds_read_b128 {v(XF + 4*(kk % NF), 4)}, {v(self.vXR)} offset:{kk*1056}")
        for kk in range(NF - 1):
            rd(kk)
        for kk in range(32):
            if kk + NF - 1 < 32:
                rd(kk + NF - 1)
                A(f"s_waitcnt lgkmcnt({NF-1})")
            else:
                A(f"s_waitcnt lgkmcnt({31-kk})")
            mfmas(kk, v(XF + 4 * (kk % NF), 4))
            if wpos is not None and kk == wpos:
                A(f"s_waitcnt vmcnt(0)")
                self.write_x()
                A(f"s_waitcnt lgkmcnt(0)")

    def toggle(self):
        A = self.A
        A(f"v_add_u32 {v(self.vXR)}, {s(self.sDelta)}, {v(self.vXR)}")
        A(f"s_sub_u32 {s(self.sDelta)}, 0, {s(self.sDelta)}")
        A(f"v_add_u32 {v(self.vXW)}, {s(self.sDelta)}, {v(self.vXW)}")


def gen_hq(A, opts):
    vWG, vST, vTR, vKst, vVst = 5, 6, 7, 8, 9
    ACC = 64
    EP = 112
    sH, sJ, sSeg, sNext, sDelta, sSegOff, sKVoff, sKVsh, sXa = 44, 45, 46, 47, 48, 49, 50, 51, 52
    sCnt, sKVF = 53, 60
    xg = XG(A, sDelta)
    vL, vL16, vZero, vTmp, vT1, vT2, XF = xg.vL, xg.vL16, xg.vZero, xg.vTmp, xg.vT1, xg.vT2, xg.XF
    A(f"s_sub_u32 {s(sT0)}, {s(sXCD)}, 3")
    A(f"s_lshl_b32 {s(sT0)}, {s(sT0)}, 5")
    A(f"s_add_u32 {s(sT0)}, {s(sT0)}, {s(sIDX)}")
    A(f"s_mul_i32 {s(sH)}, {s(sT0)}, 205")
    A(f"s_lshr_b32 {s(sH)}, {s(sH)}, 10")
    A(f"s_mul_i32 {s(sT1)}, {s(sH)}, 5")
    A(f"s_sub_u32 {s(sJ)}, {s(sT0)}, {s(sT1)}")
    mk_srd(A, S_A, P_WQ, 512 * 8192)
    mk_srd(A, S_B, P_WK, 512 * 8192)
    mk_srd(A, S_C, P_WV, 512 * 8192)
    xg.setup()
    A(f"s_mov_b32 {s(sSeg)}, {s(sJ)}")
    raw_lane_off(A, vWG, vL, vT1, 8192)
    A(f"s_lshl_b32 {s(sT0)}, {s(sH)}, 8")
    A(f"s_lshl_b32 {s(sT1)}, {s(sWAVE)}, 6")
    A(f"s_add_u32 {s(sT0)}, {s(sT0)}, {s(sT1)}")
    A(f"v_add_u32 {v(vWG)}, {s(sT0)}, {v(vWG)}")
    STG = 80 * 1024
    A(f"s_mul_i32 {s(sT2)}, {s(sWAVE)}, {2*STG_BUF}")
    A(f"s_add_u32 {s(sT2)}, {s(sT2)}, {STG}")
    stage_lane_addr(A, vST, vL, vT1, sT2)
    tr_lane_addr(A, vTR, vL, vT1, vT2, 'k16', base_sreg=sT2)
    A(f"s_lshl_b32 {s(sT0)}, {s(sWAVE)}, 10")
    lane_expr(A, vKst, vL, [(4, 1, 4096), (5, 1, 256), (0, 4, 16)], sregs=[sT0])
    A(f"s_lshl_b32 {s(sT0)}, {s(sWAVE)}, 11")
    lane_expr(A, vVst, vL, [(4, 1, 1024), (5, 1, 256), (0, 4, 16)], sregs=[sT0])

    def wblocks(srd, dst):
        return [dict(srd=srd, voff=vWG, soff=[(32 * b) * 8192, (32 * b + 16) * 8192], raw=off(dst, 8 * b), dst=off(dst, 8 * b),
                     vtr=vTR, imm=TR_IMM['k16']) for b in range(16)]
    kvb = wblocks(S_B, ('a', 128)) + wblocks(S_C, ('v', 128))
    qb = wblocks(S_A, ('a', 0))
    stamp(A, 1)
    if PROF:
        kvb[15]['post'] = lambda A_: stamp(A_, 6)
        kvb[0]['post'] = lambda A_: stamp(A_, 8)

    def x_issue(vq):
        xg.issue_x(sSeg, vq)

    def x_consume(vq):
        vq.wait('x')
        xg.write_x()
        stamp(A, 5)
    hw = opts.get('hqwin', 10)
    load_blocks2(A, kvb, vST, window=hw, extra=(opts.get('hqxpos', 16), x_issue, x_consume))
    stamp(A, 7)
    xg.after_weights()
    A(f"s_mov_b32 {s(sXa)}, -1")
    A(f"s_mov_b32 {s(sCnt)}, 1")
    A(f"s_lshl_b32 {s(sKVF)}, {s(sH)}, 7")
    A(f"s_lshl_b32 {s(sT0)}, {s(sJ)}, 2")
    A(f"s_add_u32 {s(sKVF)}, {s(sKVF)}, {s(sT0)}")
    A(f"s_add_u32 {s(sKVF)}, {s(sKVF)}, {WS_KVF:#x}")
    A(f"buffer_load_dword v15, {v(vZero)}, {s(S_DBG,4)}, 0 offen offset:{D_CHECKIN*4} sc1")

    def mf_k(kk, f):
        c = lambda base: "0" if kk == 0 else v(base, 16)
        A(f"v_mfma_f32_32x32x16_bf16 {v(ACC+16,16)}, {a(128+4*kk,4)}, {f}, {c(ACC+16)}")

    def mf_v(kk, f):
        c = lambda base: "0" if kk == 0 else v(base, 16)
        A(f"v_mfma_f32_32x32x16_bf16 {v(ACC+32,16)}, {f}, {v(128+4*kk,4)}, {c(ACC+32)}")

    def mf_q(kk, f):
        c = lambda base: "0" if kk == 0 else v(base, 16)
        A(f"v_mfma_f32_32x32x16_bf16 {v(ACC,16)}, {a(4*kk,4)}, {f}, {c(ACC)}")

    def seg_offsets():
        A(f"s_lshl_b32 {s(sSegOff)}, {s(sSeg)}, 5")
        A(f"s_add_u32 {s(sSegOff)}, {s(sSegOff)}, {s(sH)}")
        A(f"s_lshl_b32 {s(sKVoff)}, {s(sSegOff)}, 14")
        A(f"s_lshl_b32 {s(sKVsh)}, {s(sSegOff)}, 12")
        A(f"s_lshl_b32 {s(sSegOff)}, {s(sSegOff)}, 13")

    def store_ct(acc, sbase, region, ep):
        for c in range(2):
            for q in range(4):
                A(f"v_cvt_pk_bf16_f32 {v(ep+4*c+q)}, {v(acc+8*c+2*q)}, {v(acc+8*c+2*q+1)}")
        A(f"s_add_u32 {s(sT0)}, {s(sbase)}, {region:#x}")
        for c in range(2):
            A(f"buffer_store_dwordx4 {v(ep+4*c,4)}, {v(vKst)}, {s(S_WS,4)}, {s(sT0)} offen offset:{c*512} sc1")

    def store_kv():
        store_ct(ACC + 16, sKVoff, WS_KX, EP)
        acc = ACC + 32
        for c in range(2):
            for hf in range(2):
                u = c + 2 * hf
                for q in range(2):
                    A(f"v_cvt_pk_bf16_f32 {v(EP+8+4*c+2*hf+q)}, {v(acc+4*u+2*q)}, {v(acc+4*u+2*q+1)}")
        A(f"s_add_u32 {s(sT0)}, {s(sKVoff)}, {WS_KX + 8192:#x}")
        for c in range(2):
            A(f"buffer_store_dwordx4 {v(EP+8+4*c,4)}, {v(vVst)}, {s(S_WS,4)}, {s(sT0)} offen offset:{c*512} sc1")

    def arm_km():
        for i in range(4):
            A(f"v_mov_b32 {v(XF+8+i)}, -1")
        A(f"s_lshl_b32 {s(sT1)}, {s(sWAVE)}, 10")
        A(f"s_add_u32 {s(sT0)}, {s(sKVsh)}, {s(sT1)}")
        A(f"s_add_u32 {s(sT0)}, {s(sT0)}, {WS_KM:#x}")
        A(f"buffer_store_dwordx4 {v(XF+8,4)}, {v(vL16)}, {s(S_WS,4)}, {s(sT0)} offen sc1")

    def flag_store():
        A(f"v_mov_b32 {v(vTmp)}, {s(sCnt)}")
        A(f"s_mov_b64 exec, 1")
        A(f"buffer_store_dword {v(vTmp)}, off, {s(S_WS,4)}, {s(sKVF)} sc1")
        A(f"s_mov_b64 exec, -1")
    xg.body(lambda kk, f: (mf_k(kk, f), mf_v(kk, f)), wpos=None)
    A.nop(12)
    seg_offsets()
    store_kv()
    arm_km()
    vq = Q(A, "vmcnt", 63)
    qn = [0]

    def q_first(vq_):
        pass
    nq0 = opts.get('hqq0', 8)
    for b in range(nq0):
        blk = qb[b]
        for k in range(2):
            A(f"s_mov_b32 {s(sT0)}, {blk['soff'][k]:#x}")
            vq.issue(('B', id(blk)), f"buffer_load_dwordx4 {reg(off(blk['raw'], 4*k), 4)}, {v(blk['voff'])}, {s(blk['srd'],4)}, {s(sT0)} offen")
    A(f"s_waitcnt vmcnt({2*nq0})")
    A(f"s_barrier")
    Lnf1 = A.new_label("hq_nf1")
    Lci = A.new_label("hq_ci")
    A(f"s_cmp_lg_u32 {s(sWAVE)}, 0")
    A(f"s_cbranch_scc1 {Lnf1}")
    A(f"v_readfirstlane_b32 {s(sT0)}, v15")
    A(f"s_and_b32 {s(sT0)}, {s(sT0)}, 0xff")
    A(f"s_cmp_ge_u32 {s(sT0)}, 32")
    A(f"s_cbranch_scc1 {Lci}")
    A(f"s_mov_b32 {s(sT2)}, {D_CHECKIN*4}")
    A(f"s_mov_b32 {s(sT3)}, 0")
    wait_byte(A, vTmp, vZero, sT2, sT3, 32, "hqci", sleep=4)
    A.label(Lci)
    flag_store()
    A.label(Lnf1)
    stamp(A, 3)
    for b in range(16):
        blk = qb[b]
        if b == 0:
            pass
        if b + nq0 < 16:
            nb_ = qb[b + nq0]
        vq.wait(('B', id(blk)))
        buf = (b & 1) * STG_BUF
        A(f"ds_write_b128 {v(vST)}, {reg(blk['raw'],4)} offset:{buf}")
        A(f"ds_write_b128 {v(vST)}, {reg(off(blk['raw'],4),4)} offset:{buf + stage_addr(16)}")
        for i in range(4):
            A(f"ds_read_b64_tr_b16 {reg(off(blk['dst'],2*i),2)}, {v(blk['vtr'])} offset:{buf + blk['imm'][i]}")
        if b + nq0 < 16:
            for k in range(2):
                A(f"s_mov_b32 {s(sT0)}, {nb_['soff'][k]:#x}")
                vq.issue(('B', id(nb_)), f"buffer_load_dwordx4 {reg(off(nb_['raw'], 4*k), 4)}, {v(nb_['voff'])}, {s(nb_['srd'],4)}, {s(sT0)} offen")
    A("s_waitcnt lgkmcnt(0)")
    stamp(A, 2)
    if opts.get('xatt'):
        from gen_xatt import xatt_setup, xatt_task
        xatt_setup(A, xg, sH)
    A(f"s_add_u32 {s(sNext)}, {s(sSeg)}, 5")
    xg.issue_x(sNext)
    xg.body(mf_q, wpos=opts.get('wpos', 9))
    A.nop(12)
    store_ct(ACC, sSegOff, WS_QX, XF)
    xg.toggle()
    A(f"s_waitcnt vmcnt(0) lgkmcnt(0)")
    A(f"s_barrier")
    A(f"s_mov_b32 {s(sXa)}, {s(sSeg)}")
    A(f"s_mov_b32 {s(sSeg)}, {s(sNext)}")

    Lloop = A.new_label("hq_loop")
    Lnoq = A.new_label("hq_noq")
    Lnoflag = A.new_label("hq_noflag")
    A.label(Lloop)
    A(f"s_add_u32 {s(sNext)}, {s(sSeg)}, 5")
    A(f"s_cmp_ge_u32 {s(sSeg)}, 64")
    A(f"s_cbranch_scc1 {Lnoq}")
    xg.issue_x(sNext)
    xg.body(lambda kk, f: (mf_k(kk, f), mf_v(kk, f), mf_q(kk, f)), wpos=opts.get('wpos', 9))
    A.nop(12)
    seg_offsets()
    store_kv()
    store_ct(ACC, sSegOff, WS_QX, XF)
    arm_km()
    xg.toggle()
    A(f"s_waitcnt vmcnt(0) lgkmcnt(0)")
    A(f"s_barrier")
    A(f"s_add_u32 {s(sCnt)}, {s(sCnt)}, 1")
    A(f"s_cmp_lg_u32 {s(sWAVE)}, 0")
    A(f"s_cbranch_scc1 {Lnoflag}")
    flag_store()
    A.label(Lnoflag)
    A.label(Lnoq)
    if opts.get('xatt'):
        xatt_task(A, xg, sH, sXa)
    A(f"s_mov_b32 {s(sXa)}, {s(sSeg)}")
    A(f"s_mov_b32 {s(sSeg)}, {s(sNext)}")
    A(f"s_cmp_lt_u32 {s(sXa)}, 64")
    A(f"s_cbranch_scc1 {Lloop}")
    stamp(A, 4)


def gen(opts):
    global PROF
    PROF = bool(opts.get('prof'))
    A = Asm()
    A.L.append(open("header.txt").read().rstrip("\n"))
    A.L.append(f"; @launch grid=(256,1,1) block=(256,1,1) lds={LDS_BYTES}")
    A.L.append('.amdgcn_target "amdgcn-amd-amdhsa--gfx950"')
    A.L.append(".text")
    A.L.append(f".globl {KNAME}")
    A.L.append(".p2align 8")
    A.L.append(f".type {KNAME},@function")
    A.label(KNAME)
    A(f"s_cmp_ge_u32 s2, 256")
    A(f"s_cbranch_scc1 L_exit")
    A(f"s_load_dwordx16 s[64:79], s[0:1], 0")
    A(f"s_load_dwordx8 s[80:87], s[0:1], 64")
    A(f"s_load_dwordx4 s[88:91], s[0:1], 96")
    A(f"s_and_b32 {s(sXCD)}, s2, 7")
    A(f"s_lshr_b32 {s(sIDX)}, s2, 3")
    A(f"v_lshrrev_b32 v1, 6, v0")
    A(f"s_mov_b32 {s(sDEAD)}, 0")
    A(f"v_readfirstlane_b32 {s(sWAVE)}, v1")
    A(f"s_waitcnt lgkmcnt(0)")
    mk_srd(A, S_WS, P_WS, WS_SIZE)
    mk_srd(A, S_DBG, P_DBG, 256)
    mk_srd(A, S_X, P_X, 2048 * 1024)
    if PROF:
        for i in range(10):
            A(f"s_mov_b32 {s(sSTAMP+i)}, 0")
    stamp(A, 0)
    A(f"s_cmp_eq_u32 {s(sXCD)}, 0")
    A(f"s_cbranch_scc1 L_chain")
    A(f"s_cmp_lt_u32 {s(sXCD)}, 3")
    A(f"s_cbranch_scc1 L_out")
    if opts.get('hq', True):
        gen_hq(A, opts)
    A(f"s_branch L_role_end")
    A.label("L_chain")
    if opts.get('clkprobe'):
        A("s_memrealtime s[44:45]")
        A("s_waitcnt lgkmcnt(0)")
        for i in range(1, 9):
            L = A.new_label("cp")
            A(f"s_add_u32 s46, s44, {i*500}")
            A.label(L)
            A("s_memrealtime s[48:49]")
            A("s_waitcnt lgkmcnt(0)")
            A("s_sub_u32 s50, s48, s46")
            A("s_cmp_lt_i32 s50, 0")
            A(f"s_cbranch_scc1 {L}")
            stamp_clk(A, i)
    if opts.get('chain'):
        from gen_chain4 import gen_chain
        gen_chain(A, opts)
    A(f"s_branch L_role_end")
    A.label("L_out")
    if opts.get('out'):
        from gen_out import gen_out
        gen_out(A, opts)
    A.label("L_role_end")
    stamp(A, 9)
    A.label("L_flush")
    stamp_flush(A)
    A.label("L_exit")
    A("s_endpgm")
    A.L.append(f""".section .rodata,"a"
.p2align 6
.amdhsa_kernel {KNAME}
  .amdhsa_next_free_vgpr 512
  .amdhsa_next_free_sgpr 102
  .amdhsa_accum_offset 256
  .amdhsa_group_segment_fixed_size 0
  .amdhsa_kernarg_size 112
  .amdhsa_user_sgpr_count 2
  .amdhsa_user_sgpr_kernarg_segment_ptr 1
  .amdhsa_system_sgpr_workgroup_id_x 1
.end_amdhsa_kernel""")
    return A.text()


def main():
    opts = {}
    outp = sys.argv[1]
    for o in sys.argv[2:]:
        if "=" in o:
            k, val = o.split("=")
            opts[k] = int(val)
        else:
            opts[o] = True
    open(outp, "w").write(gen(opts))


if __name__ == "__main__":
    import gen as _g
    _g.main()
```

```python
from dsl import *
import gen as G
from gen import *

QK_OFF, O_OFF, MEM_OFF, KX_OFF, VX_OFF, WO_OFF = 0, 4096, 8192, 16384, 24576, 32768

vL16, vKw, vIdx, vQKw, vQKr, vOw, vMw, vWo, vPst, vRed, vMst, vPf, vFlag, vJunk = range(14)
vT0, vT1 = 14, 15
vSEL = 16
vVM1, vKr, vONE = 20, 21, 22
vBM = 26
vS0, vIdxW = 30, 31
KIMG = [2048, 3072, 6144, 7168]
X = 32
Y = 64
PA = 96
ACC = 112
sH, sS, sSlotP, sSlotP1, sSlotP4, sSlotM, sKM, sKV, sC, sNC, sRet = range(44, 55)
sRa0, sRa2, sFastF = 55, 56, 57
sMLo, sMHi = 58, 60
sU = 76
sFo, sNeed, sJ4, sCn, sPf, sGat, sKn, sM0K, sM0V = 78, 79, 80, 81, 84, 85, 86, 87, 88
sW1k, sRaM, sRaA, sFb, sPfb, sW2k = 64, 65, 66, 67, 68, 69
sPc2, sPc3 = 70, 71
sRo, sRm = 72, 89
sPc = [sSlotP, sSlotP1, sPc2, sPc3]
sTag = 55
vTagE = vPf
sCP0, sCP1 = 82, 83
OOB = 0x40000000
RED_LIMIT = 1 << 16

LOG2E = 1.4426950408889634
SCALE_C = (128 ** -0.5) * LOG2E


def f32_hex(x):
    import struct
    return struct.unpack("<I", struct.pack("<f", x))[0]


RT = False
LATE = [False]
CSTEP = [39]


TRACE = [False]


def lstamp(A, i, late=None):
    if TRACE[0]:
        if i <= 8:
            A(f"s_memtime s[{16 + 2 * (i - 1)}:{17 + 2 * (i - 1)}]")
        return
    L = A.new_label("ls")
    if late is None:
        late = i >= 8
    A(f"s_cmp_lg_u32 {s(sS)}, {CSTEP[0] + 1 if late else CSTEP[0]}")
    A(f"s_cbranch_scc1 {L}")
    r = 16 + 2 * (i - 1) if i < 9 else 62
    A(f"{'s_memrealtime' if RT else 's_memtime'} s[{r}:{r+1}]")
    A.label(L)


import re as _re


def _regs(tok):
    tok = tok.strip().rstrip(',')
    m = _re.match(r'^([va])\[(\d+):(\d+)\]$', tok)
    if m:
        return {(m.group(1), i) for i in range(int(m.group(2)), int(m.group(3)) + 1)}
    m = _re.match(r'^([va])(\d+)$', tok)
    if m:
        return {(m.group(1), int(m.group(2)))}
    return set()


def _all_regs(line):
    r = set()
    for tok in _re.findall(r'[va]\[\d+:\d+\]|\b[va]\d+\b', line):
        r |= _regs(tok)
    return r


def gap_reorder(lines, report=False):
    out = []
    i = 0
    n = len(lines)
    issm = lambda x: x.strip().startswith('v_smfmac')
    while i < n:
        out.append(lines[i])
        if issm(lines[i]):
            j = i + 1
            gap = []
            while j < n and not issm(lines[j]) and not lines[j].endswith(':') and not lines[j].strip().startswith(('s_cbranch', 's_branch', 'v_mfma', 's_nop', 's_memtime', 's_memrealtime', 's_cmp')):
                gap.append(lines[j])
                j += 1
            if j < n and issm(lines[j]):
                changed = True
                while changed:
                    changed = False
                    for k in range(len(gap) - 1):
                        a_, b_ = gap[k].strip(), gap[k + 1].strip()
                        if a_.startswith('v_') and not b_.startswith('v_') and 'vcc' not in a_ and 'exec' not in b_:
                            if not (_all_regs(a_) & _all_regs(b_)):
                                gap[k], gap[k + 1] = gap[k + 1], gap[k]
                                changed = True
                nv = sum(1 for g in gap if g.strip().startswith('v_'))
                no = len(gap) - nv
                lastv = all(not gap[k].strip().startswith('v_') or gap[k + 1].strip().startswith('v_') for k in range(len(gap) - 1))
                if report and (nv > 1 or (nv and no > 2) or no > 3 or not lastv):
                    print("gap over budget:", [g.strip()[:40] for g in gap])
            out.extend(gap)
            i = j
            continue
        i += 1
    return out


def gen_step(A, fast, opts):
    i0 = len(A.L)
    gen_step_raw(A, fast, opts)
    if opts.get('reord', 1):
        A.L[i0:] = gap_reorder(A.L[i0:], report=fast and opts.get('report'))


def gen_step_raw(A, fast, opts):
    st = "" if fast else " sc1"
    tag = "f" if fast else "s"
    Lown = [f"L_own0_{tag}", f"L_own1_{tag}"]
    Lcommon = f"L_common_{tag}"
    Llast = f"L_last_{tag}"
    lq = Q(A, "lgkmcnt", 15)
    cp = opts.get('cprof') or opts.get('trace')
    rp = opts.get('rprof')
    AQ, AV, AK = ACC, ACC + 8, Y + 24
    CQ, CK = AQ + 2, AK + 2
    H0, H1 = X + 16, X + 24
    AO = Y
    KXR = {0: X + 16, 4: X + 20, 1: X + 24, 5: X + 28, 2: X, 6: X + 4, 3: X + 8, 7: X + 12}
    RB = [X, X + 8, PA, PA + 8]
    RIDX = {0: 0, 1: 1, 4: 2, 5: 3, 6: 4, 7: 5}

    def WB(m, jj, t):
        if m == 'q':
            return a(16 * jj + 8 * t, 8)
        if jj in (2, 3):
            return v(RB[2 * (jj - 2) + t], 8)
        return (a if m == 'k' else v)(128 + 16 * RIDX[jj] + 8 * t, 8)

    def rdR(m, b, half):
        fi = (0 if m == 'k' else 4) + b
        lq.issue(('R', m, b), f"ds_read_b128 {v(RB[b] + 4*half, 4)}, {v(vWo)} offset:{fi * 2048 + 1024 * half}")
    AC = {'q': AQ, 'k': AK, 'v': AV}
    vA = [None, vT0, vT1, vS0]

    def smf(m, jj, t, areg):
        if m != 'q' and jj in (2, 3):
            lq.wait(('R', m, 2 * (jj - 2) + t))
        A(f"v_smfmac_f32_16x16x64_bf16 {v(AC[m] + 4*t, 4)}, {v(areg, 4)}, {WB(m, jj, t)}, {v(vIdx)}")

    def rdKX(j):
        lq.issue(('KX', j), f"ds_read_b128 {v(KXR[j],4)}, {v(vL16)} offset:{KX_OFF + j*1024}")

    salu = [
        f"s_and_b32 {s(sT4)}, {s(sS)}, 3",
        f"s_lshl_b32 {s(sSlotM)}, {s(sT4)}, 13",
        f"s_add_u32 {s(sSlotM)}, {s(sSlotM)}, {WS_M:#x}",
        f"s_add_u32 {s(sGat)}, {s(sSlotM)}, {s(sW2k)}",
        f"s_xor_b32 {s(sRa2)}, {s(sSlotM)}, 0x4000",
        f"s_xor_b32 {s(sTag)}, {s(sTag)}, 1",
    ]

    def su(n):
        for _ in range(n):
            if salu:
                A(salu.pop(0))

    for var, H in enumerate((H0, H1)):
        A.label(Lown[var])
        if cp:
            lstamp(A, 9)
            lstamp(A, 1)
        if opts.get('rtrace'):
            A("s_memtime s[30:31]")
        lq.ops = []
        n = 0
        for m in 'qkv':
            for jj in range(2):
                for t in range(2):
                    n += 1
                    smf(m, jj, t, H + 4 * jj)
                    if n <= 3:
                        A(f"v_xor_b32 {v(vA[n])}, {n << 11:#x}, {v(vMw)}")
                    elif n == 4:
                        A(f"s_waitcnt lgkmcnt(0)")
                        A(f"s_barrier")
                    elif 5 <= n <= 10:
                        j2 = n - 5 + 2
                        lq.issue(('A', j2), f"ds_read_b128 {v(AO + 4*(j2-2), 4)}, {v(vA[j2 >> 1])} offset:{(j2 & 1) * 1024}")
                    elif n == 11:
                        A(f"s_mov_b32 m0, {s(sM0V)}")
                        A(f"s_add_u32 {s(sT3)}, {s(sKV)}, 8192")
                        rdR('k', 0, 0)
                    elif n == 12:
                        A(f"buffer_load_dwordx4 {v(vL16)}, {s(S_WS,4)}, {s(sT3)} offen lds")
                        rdR('k', 0, 1)
        if var == 0:
            A(f"s_branch {Lcommon}")
    A.label(Lcommon)
    n = 12
    for jj in range(2, 8):
        for t in range(2):
            n += 1
            if t == 0:
                lq.wait(('A', jj))
            smf('q', jj, t, AO + 4 * (jj - 2))
            if n == 13:
                A(f"buffer_load_dwordx4 {v(vL16)}, {s(S_WS,4)}, {s(sT3)} offen offset:1024 lds")
                rdR('k', 1, 0)
            elif n == 14:
                A(f"buffer_load_dword {v(vFlag)}, off, {s(S_WS,4)}, {s(sFo)} sc1")
                rdR('k', 1, 1)
            elif n == 15:
                if not opts.get('nopf'):
                    A(f"buffer_load_dword {v(vJunk)}, {v(vPf)}, {s(S_WS,4)}, {s(sPf)} offen")
                rdR('k', 2, 0)
            elif n == 16:
                A(f"s_add_u32 {s(sT3)}, {s(sPf)}, 4096")
                rdR('k', 2, 1)
            elif n == 17:
                if not opts.get('nopf'):
                    A(f"buffer_load_dword {v(vJunk)}, {v(vPf)}, {s(S_WS,4)}, {s(sT3)} offen")
                rdR('k', 3, 0)
                su(1)
            elif n == 18:
                A(f"s_waitcnt vmcnt(5)")
                rdR('k', 3, 1)
                su(1)
            elif 19 <= n <= 22:
                rdKX((0, 4, 1, 5)[n - 19])
                su(1)
            else:
                su(3)
    if cp and not rp:
        lstamp(A, 2)

    def post(m, step):
        t, k = step // 3, step % 3
        T = AC[m] + 4 * t
        if k < 2:
            A(f"v_add_f32 {v(T + k)}, {v(T + k)}, {v(T + k + 2)}")
        else:
            d = {'q': CQ + t, 'k': CK + t, 'v': (vS0, vVM1)[t]}[m]
            A(f"v_cvt_pk_bf16_f32 {v(d)}, {v(T)}, {v(T + 1)}")
    for jj in range(2, 8):
        for t in range(2):
            n += 1
            smf('k', jj, t, AO + 4 * (jj - 2))
            if n == 31:
                lq.issue('wq', f"ds_write2st64_b32 {v(vQKw)}, {v(CQ)}, {v(CQ+1)} offset0:0 offset1:1")
            elif n == 33:
                A(f"s_mov_b32 m0, {s(sM0K)}")
                A(f"s_add_u32 {s(sKn)}, {s(sKn)}, 0x80000")
            elif n == 35:
                lq.wait('wq')
                A(f"s_barrier")
            if 26 <= n <= 30:
                rdR('v', (n - 26) >> 1, (n - 26) & 1)
            elif n in (32, 33, 34):
                rdR('v', (n - 27) >> 1, (n - 27) & 1)
            if n in (31, 32):
                su(1)
            if 25 <= n <= 30:
                post('q', n - 25)
            elif n >= 33:
                A(f"v_mov_b64 {v(ACC + 2*(n - 33), 2)}, 0")
    assert not salu
    if cp and not rp:
        lstamp(A, 3)
    QR, KR = Y, Y + 16

    def trq(i):
        ks, hf = i >> 1, i & 1
        lq.issue(('q', ks), f"ds_read_b64_tr_b16 {v(QR+4*ks+2*hf,2)}, {v(vQKr)} offset:{QK_OFF + (32*ks+8*hf)*16}")

    def trk(i):
        ks, hf = i >> 1, i & 1
        lq.issue(('k', ks), f"ds_read_b64_tr_b16 {v(KR+4*ks+2*hf,2)}, {v(vKr)} offset:{KIMG[ks] + hf*256}")
    trq_at = {38: 0, 39: 1, 40: 2, 41: 3, 42: 4, 44: 5, 45: 6, 46: 7}
    for jj in range(2, 8):
        for t in range(2):
            n += 1
            smf('v', jj, t, AO + 4 * (jj - 2))
            if n in trq_at:
                trq(trq_at[n])
            if 39 <= n <= 42:
                rdKX((2, 6, 3, 7)[n - 39])
            if n == 43:
                lq.issue('wk', f"ds_write2st64_b32 {v(vKw)}, {v(CK)}, {v(CK+1)} offset0:0 offset1:2")
            elif n == 44:
                A(f"buffer_store_dword {v(CK)}, {v(vQKw)}, {s(S_WS,4)}, {s(sKM)} offen sc1")
            elif n == 45:
                A(f"buffer_store_dword {v(CK+1)}, {v(vQKw)}, {s(S_WS,4)}, {s(sKM)} offen offset:256 sc1")
            elif n == 47:
                lq.wait('wk')
                A(f"s_barrier")
                trk(0)
            elif n == 48:
                trk(1)
                A(f"buffer_load_dwordx4 {v(vL16)}, {s(S_WS,4)}, {s(sKn)} offen lds")
            if 37 <= n <= 42:
                post('k', n - 37)
    if cp and not rp:
        lstamp(A, 4)
    T0, T1, TM = PA, PA + 4, PA + 8
    m, t_ = vT0, vT1
    wo_ops = [(cg, 0) for cg in range(4)] + [(cg, ks) for cg in range(4) for ks in range(1, 4)]
    bufs = [X + 16, X + 24, X, X + 8, Y, Y + 8, Y + 16, Y + 24]

    WOR = [a(224, 8), a(232, 8), a(240, 8), a(248, 8), v(224, 8), v(232, 8), v(240, 8), v(248, 8)]

    def rdW(i, half):
        o = (8 + i) * 2048 + 1024 * half
        lq.issue(('W', i), f"ds_read_b128 {v(bufs[i] + 4*half, 4)}, {v(vWo)} offset:{o}")
    for i in range(8):
        ks, t = i >> 1, i & 1
        if i in (0, 4):
            lq.wait(('q', ks + 1))
        T = (T0, T1)[t]
        c = "0" if ks == 0 else v(T, 4)
        A(f"v_mfma_f32_16x16x32_bf16 {v(T,4)}, {v(KXR[4*t+ks],4)}, {v(QR+4*ks,4)}, {c}")
        if i == 0:
            A(f"buffer_load_dwordx4 {v(vL16)}, {s(S_WS,4)}, {s(sKn)} offen offset:1024 lds")
        if i <= 5:
            trk(i + 2)
            post('v', i)
        elif i == 6:
            A(f"buffer_store_dword {v(vS0)}, {v(vQKw)}, {s(S_WS,4)}, {s(sKM)} offen offset:2048 sc1")
            A(f"buffer_store_dword {v(vVM1)}, {v(vQKw)}, {s(S_WS,4)}, {s(sKM)} offen offset:2304 sc1")
    A(f"s_cmp_eq_u32 {s(sS)}, 63")
    A(f"s_cbranch_scc1 {Llast}")
    for ks in range(4):
        if ks in (0, 2):
            lq.wait(('k', ks + 1))
        cm = "0" if ks == 0 else v(TM, 4)
        A(f"v_mfma_f32_16x16x32_bf16 {v(TM,4)}, {v(KR+4*ks,4)}, {v(QR+4*ks,4)}, {cm}")
        rdW(ks >> 1, ks & 1)
        if ks == 1:
            A(f"v_max3_f32 {v(m)}, {v(T0)}, {v(T0+1)}, {v(T0+2)}")
        elif ks == 2:
            A(f"v_max3_f32 {v(t_)}, {v(T0+3)}, {v(T1)}, {v(T1+1)}")
        elif ks == 3:
            A(f"v_max3_f32 {v(m)}, {v(m)}, {v(T1+2)}, {v(T1+3)}")
    ralate = 1

    def rearm(k, now=False):
        if now and k == 2:
            A(f"buffer_store_dwordx4 {v(vSEL,4)}, {v(vMst)}, {s(S_WS,4)}, {s(sRa2)} offen{st}")
    VX0 = Y + 16
    u0, u1 = TM + 2, TM + 3
    A(f"s_waitcnt vmcnt(9)")
    lq.issue('vx', f"ds_read_b128 {v(VX0,4)}, {v(vMw)} offset:{VX_OFF - MEM_OFF}")
    lq.issue('vx', f"ds_read_b128 {v(VX0+4,4)}, {v(vMw)} offset:{VX_OFF - MEM_OFF + 1024}")
    rdW(2, 0)
    rdW(2, 1)
    A(f"v_mov_b64 {v(ACC+10,2)}, 0")
    A(f"v_max3_f32 {v(m)}, {v(m)}, {v(t_)}, {v(TM)}")
    A(f"v_max_f32 {v(u0)}, {v(m)}, {v(TM+1)}")
    A(f"v_max_f32 {v(u1)}, {v(m)}, {v(TM+1)}")
    rdW(3, 0)
    A(f"v_mov_b64 {v(ACC+8,2)}, 0")
    A(f"v_permlane16_swap_b32 {v(u0)}, {v(u1)}")
    A(f"v_max_f32 {v(m)}, {v(u0)}, {v(u1)}")
    A(f"v_max_f32 {v(t_)}, {v(u0)}, {v(u1)}")
    rdW(3, 1)
    A(f"s_nop 0")
    A(f"v_permlane32_swap_b32 {v(m)}, {v(t_)}")
    A(f"v_max_f32 {v(m)}, {v(m)}, {v(t_)}")
    A(f"v_mul_f32 {v(m)}, {s(sNC)}, {v(m)}")
    BX = ACC + 12
    xs = [T0, T0 + 1, T0 + 2, T0 + 3, T1, T1 + 1, T1 + 2, T1 + 3]
    ms = [TM, TM + 1]
    for r in xs[:2]:
        A(f"v_fma_f32 {v(r)}, {v(r)}, {s(sC)}, {v(m)}")
    for j in range(8):
        A(f"v_exp_f32 {v(xs[j])}, {v(xs[j])}")
        nx = (xs + ms)[j + 2]
        A(f"v_fma_f32 {v(nx)}, {v(nx)}, {s(sC)}, {v(m)}")
        if j >= 2 and j % 2 == 0:
            q = (j - 2) // 2
            A(f"v_cvt_pk_bf16_f32 {v(BX+q)}, {v(xs[2*q])}, {v(xs[2*q+1])}")
    A(f"v_exp_f32 {v(ms[0])}, {v(ms[0])}")
    A(f"v_cvt_pk_bf16_f32 {v(BX+3)}, {v(xs[6])}, {v(xs[7])}")
    A(f"v_exp_f32 {v(ms[1])}, {v(ms[1])}")
    if cp and not rp:
        lstamp(A, 5)
    O0, O1, LS, PKO = PA, PA + 4, PA + 12, PA + 8
    lq.wait('vx')
    A(f"v_mfma_f32_16x16x32_bf16 {v(LS,4)}, {v(vONE,4)}, {v(BX,4)}, 0")
    A(f"v_cvt_pk_bf16_f32 {v(vBM)}, {v(ms[0])}, {v(ms[1])}")
    A(f"v_mfma_f32_16x16x32_bf16 {v(O0,4)}, {v(VX0,4)}, {v(BX,4)}, 0")
    rdW(4, 0)
    A(f"v_mfma_f32_16x16x32_bf16 {v(O1,4)}, {v(VX0+4,4)}, {v(BX,4)}, 0")
    A(f"v_mfma_f32_16x16x32_bf16 {v(LS,4)}, {v(vONE,4)}, {v(vBM,4)}, {v(LS,4)}")
    A(f"v_mfma_f32_16x16x32_bf16 {v(O0,4)}, {v(vS0,4)}, {v(vBM,4)}, {v(O0,4)}")
    A(f"v_mov_b64 {v(ACC+12,2)}, 0")
    A(f"v_mfma_f32_16x16x32_bf16 {v(O1,4)}, {v(vVM1,4)}, {v(vBM,4)}, {v(O1,4)}")
    rdW(4, 1)
    A(f"v_rcp_f32 {v(m)}, {v(LS)}")
    rdW(5, 0)
    A(f"v_mov_b64 {v(ACC+14,2)}, 0")
    for r in range(4):
        A(f"v_mul_f32 {v(O0+r)}, {v(O0+r)}, {v(m)}")
    A(f"v_cvt_pk_bf16_f32 {v(PKO)}, {v(O0)}, {v(O0+1)}")
    A(f"v_cvt_pk_bf16_f32 {v(PKO+1)}, {v(O0+2)}, {v(O0+3)}")
    for r in range(4):
        A(f"v_mul_f32 {v(O1+r)}, {v(O1+r)}, {v(m)}")
    A(f"v_cvt_pk_bf16_f32 {v(PKO+2)}, {v(O1)}, {v(O1+1)}")
    A(f"v_cvt_pk_bf16_f32 {v(PKO+3)}, {v(O1+2)}, {v(O1+3)}")
    lq.issue('wo_', f"ds_write_b128 {v(vOw)}, {v(PKO,4)} offset:0")
    AOr = [PKO, PA, PA + 4, PA + 12]
    vAo = [None, vT0, vT1, vS0]
    for k in range(1, 4):
        A(f"v_xor_b32 {v(vAo[k])}, {k << 9:#x}, {v(vOw)}")
    if cp and not rp:
        lstamp(A, 6)

    def pack(cg, k):
        A(f"v_cvt_pk_bf16_f32 {v(ACC+4*cg+k)}, {v(ACC+4*cg+2*k)}, {v(ACC+4*cg+2*k+1)}")

    def tagp(cg):
        A(f"v_and_or_b32 {v(ACC+4*cg)}, {v(ACC+4*cg)}, -2, {s(sTag)}")

    def pstore(cg):
        A(f"buffer_store_dwordx2 {v(ACC+4*cg,2)}, {v(vPst)}, {s(S_WS,4)}, {s(sPc[cg]) if cg else 0} offen{st}")
    for i, (cg, ks) in enumerate(wo_ops):
        if ks:
            lq.wait(('Ao', ks))
        if i >= 8:
            lq.wait(('W', i - 8))
        A(f"v_smfmac_f32_16x16x64_bf16 {v(ACC+4*cg,4)}, {v(AOr[ks],4)}, {WOR[i] if i < 8 else v(bufs[i - 8],8)}, {v(vIdxW)}")
        if i == opts.get('obar', 1):
            lq.wait('wo_')
            A(f"s_barrier")
            for k in range(1, 4):
                lq.issue(('Ao', k), f"ds_read_b128 {v(AOr[k],4)}, {v(vAo[k])}")
        if i == 2:
            rdW(5, 1)
            rdW(6, 0)
        elif i == 3:
            rdW(6, 1)
            rdW(7, 0)
        elif i == 4:
            rdW(7, 1)
        pst = opts.get('pst', 1)
        if pst == 1:
            if i in (11, 14):
                pstore((i - 11) // 3)
            if i in (8, 11, 14):
                pack((i - 8) // 3, 0)
            elif i in (9, 12, 15):
                pack((i - 9) // 3, 1)
            elif i in (10, 13):
                tagp((i - 10) // 3)
        elif pst == 2:
            if i in (8, 11, 14):
                pack((i - 8) // 3, 0)
                pack((i - 8) // 3, 1)
            elif i in (9, 12, 15):
                tagp((i - 9) // 3)
            elif i in (10, 13):
                pstore((i - 10) // 3)
        elif pst == 3:
            if i in (8, 11, 14):
                pack((i - 8) // 3, 0)
            elif i in (9, 12, 15):
                pack((i - 9) // 3, 1)
                tagp((i - 9) // 3)
            elif i in (10, 13):
                pstore((i - 10) // 3)
    if pst == 1:
        tagp(2)
        pstore(2)
        A(f"s_nop 5")
    else:
        pstore(2)
        A(f"s_nop 6")
    pack(3, 0)
    pack(3, 1)
    tagp(3)
    pstore(3)
    if cp:
        lstamp(A, 7)
    Lnr = A.new_label("notred")
    Lar = A.new_label("afterred")

    def bookkeeping():
        A(f"s_add_u32 {s(sS)}, {s(sS)}, 1")
        A(f"s_add_u32 {s(sKM)}, {s(sKM)}, 0x20000")
        A(f"s_add_u32 {s(sKV)}, {s(sKV)}, 0x80000")
        A(f"s_add_u32 {s(sPf)}, {s(sPf)}, 0x80000")
        A(f"s_add_u32 {s(sJ4)}, {s(sJ4)}, 4")
        A(f"s_cmp_eq_u32 {s(sJ4)}, 20")
        A(f"s_cselect_b32 {s(sJ4)}, 0, {s(sJ4)}")
        A(f"s_addc_u32 {s(sCn)}, {s(sCn)}, 0")

    def bookkeeping2():
        A(f"s_add_u32 {s(sFo)}, {s(sFb)}, {s(sJ4)}")
        A(f"s_cmp_lt_u32 {s(sS)}, 62")
        A(f"s_cselect_b32 {s(sNeed)}, {s(sCn)}, 0")

    def zero_acc():
        for i in range(8):
            A(f"v_mov_b64 {v(ACC+2*i,2)}, 0")
        for i in range(4):
            A(f"v_mov_b64 {v(AK+2*i,2)}, 0")

    if opts.get('rbar', 1):
        A(f"s_barrier")
    A(f"s_cmp_lg_u32 {s(sWAVE)}, 0")
    A(f"s_cbranch_scc1 {Lnr}")
    Lred = A.new_label("red")
    Lredok = A.new_label("redok")
    RA = PA
    two = opts.get('rtwo', 0)

    rt = opts.get('rtrace')

    def rstamp(k):
        if rt:
            A(f"s_memtime s[{16 + 2*k}:{17 + 2*k}]")
    if rt:
        A(f"s_memtime s[62:63]")
        A(f"s_lshl_b32 {s(sT0)}, {s(sH)}, 6")
        A(f"s_add_u32 {s(sT0)}, {s(sT0)}, {s(sS)}")
        A(f"s_lshl_b32 {s(sT0)}, {s(sT0)}, 6")
        A(f"s_add_u32 {s(sT0)}, {s(sT0)}, {WS_T + 0x10000:#x}")
        A(f"s_waitcnt lgkmcnt(0)")
        A(f"v_mov_b32 {v(vT0)}, s16")
        for k in range(1, 8):
            A(f"v_writelane_b32 {v(vT0)}, s{16 + 2*k}, {k}")
        A(f"v_writelane_b32 {v(vT0)}, s{sCP0}, 8")
        A(f"v_writelane_b32 {v(vT0)}, s{sRet}, 9")
        A(f"v_lshrrev_b32 {v(vT1)}, 2, {v(vL16)}")
        A(f"s_mov_b64 exec, 0x3ff")
        A(f"buffer_store_dword {v(vT0)}, {v(vT1)}, {s(S_WS,4)}, {s(sT0)} offen")
        A(f"s_mov_b64 exec, -1")
        A(f"s_mov_b32 s16, s62")
        A(f"s_mov_b32 {s(sCP0)}, 0")
    zero_acc()
    A(f"v_xor_b32 {v(vTagE)}, 1, {v(vTagE)}")
    bookkeeping()
    bookkeeping2()
    A(f"s_mov_b32 {s(sRet)}, 0")
    RS = [[X + 4 * i for i in range(8)], [Y + 4 * i for i in range(6)] + [PA + 8, PA + 12]]
    mode = opts.get('rmode', 1)

    def ld(R, i):
        A(f"buffer_load_dwordx4 {v(R[i],4)}, {v(vRed)}, {s(S_WS,4)}, {0 if i < 4 else s(sSlotP4)} offen offset:{(i%4)*1024} sc1")

    def chk(R, other, cnt, first=False):
        ys = [vT0, vT1, vS0, vT1, vS0, vT1, vS0, vT1]
        if rt:
            A(f"s_add_u32 {s(sCP0)}, {s(sCP0)}, 1")
        for i in range(8):
            A(f"s_waitcnt vmcnt({cnt(i)})")
            if first and i == 0:
                rstamp(2)
            if first and i == 7:
                rstamp(3)
            c = "0" if i == 0 else v(RA, 4)
            A(f"v_mfma_f32_16x16x32_bf16 {v(RA,4)}, {v(R[i],4)}, {v(vSEL,4)}, {c}")
            if other is not None:
                ld(other, i)
            A(f"v_bitop3_b32 {v(ys[i])}, {v(R[i])}, {v(R[i]+2)}, {v(vTagE)} bitop3:0x7e")
            if i in (2, 4, 6):
                A(f"v_or3_b32 {v(vT0)}, {v(vT0)}, {v(vT1)}, {v(vS0)}")
        A(f"v_bitop3_b32 {v(vT0)}, {v(vT0)}, {v(vT1)}, 1 bitop3:0xa8")
        A(f"v_cmp_ne_u32 vcc, 0, {v(vT0)}")
        A(f"s_cbranch_vccz {Lredok}")
    for _ in range(opts.get('rdelay', 0)):
        A(f"s_sleep 1")
    for _ in range(opts.get('rnop', 0)):
        A(f"s_nop 3")
    rstamp(1)
    for i in range(8):
        ld(RS[0], i)
    if rt:
        chk(RS[0], RS[1], lambda i: 7, True)
        chk(RS[1], RS[0], lambda i: 7)
    A.label(Lred)
    if mode == 0:
        chk(RS[0], None, lambda i: 7 - i)
        for i in range(8):
            ld(RS[0], i)
    else:
        chk(RS[0], RS[1], lambda i: 7)
        chk(RS[1], RS[0], lambda i: 7)
    A(f"s_add_u32 {s(sRet)}, {s(sRet)}, 1")
    A(f"s_cmp_lg_u32 {s(sDEAD)}, 0")
    A(f"s_cbranch_scc1 {Lredok}")
    A(f"s_cmp_lt_u32 {s(sRet)}, {RED_LIMIT}")
    A(f"s_cbranch_scc1 {Lred}")
    A(f"s_mov_b32 {s(sDEAD)}, 1")
    A.label(Lredok)
    rstamp(4)
    A(f"s_nop 3")
    A(f"v_cvt_pk_bf16_f32 {v(RA+4)}, {v(RA)}, {v(RA+1)}")
    A(f"v_cvt_pk_bf16_f32 {v(RA+5)}, {v(RA+2)}, {v(RA+3)}")
    A(f"buffer_store_dwordx2 {v(RA+4,2)}, {v(vMst)}, {s(S_WS,4)}, {s(sSlotM)} offen{st}")
    A(f"s_branch {Lar}")
    A.label(Lnr)
    Lfok = A.new_label("fok")
    Lfsp = A.new_label("fsp")
    A(f"s_mov_b32 {s(sRet)}, 0")
    A(f"s_waitcnt vmcnt(12)")
    A(f"v_readfirstlane_b32 {s(sT0)}, {v(vFlag)}")
    zero_acc()
    A(f"s_cmp_ge_u32 {s(sT0)}, {s(sNeed)}")
    A(f"s_cbranch_scc1 {Lfok}")
    A(f"s_cmp_lg_u32 {s(sDEAD)}, 0")
    A(f"s_cbranch_scc1 {Lfok}")
    A(f"s_mov_b32 {s(sRet)}, 0")
    A.label(Lfsp)
    A(f"buffer_load_dword {v(vFlag)}, off, {s(S_WS,4)}, {s(sFo)} sc1")
    A(f"s_waitcnt vmcnt(0)")
    A(f"v_readfirstlane_b32 {s(sT0)}, {v(vFlag)}")
    A(f"s_cmp_ge_u32 {s(sT0)}, {s(sNeed)}")
    A(f"s_cbranch_scc1 {Lfok}")
    A(f"s_sleep 1")
    A(f"s_add_u32 {s(sRet)}, {s(sRet)}, 1")
    A(f"s_cmp_lt_u32 {s(sRet)}, {SPIN_LIMIT}")
    A(f"s_cbranch_scc1 {Lfsp}")
    A(f"s_mov_b32 {s(sDEAD)}, 1")
    A.label(Lfok)
    if TRACE[0]:
        Lsl = A.new_label("tr")
        A(f"s_cmp_lg_u32 {s(sWAVE)}, {opts.get('tw', 1)}")
        A(f"s_cbranch_scc1 {Lsl}")
        A(f"s_lshl_b32 {s(sT0)}, {s(sH)}, 6")
        A(f"s_add_u32 {s(sT0)}, {s(sT0)}, {s(sS)}")
        A(f"s_lshl_b32 {s(sT0)}, {s(sT0)}, 5")
        A(f"s_add_u32 {s(sT0)}, {s(sT0)}, {WS_T + 0x10000:#x}")
        A(f"s_waitcnt lgkmcnt(0)")
        A(f"v_mov_b32 {v(vT0)}, s16")
        for k in range(1, 8):
            A(f"v_writelane_b32 {v(vT0)}, s{16 + 2*k}, {k}")
        A(f"v_lshrrev_b32 {v(vT1)}, 2, {v(vL16)}")
        A(f"s_mov_b64 exec, 0xff")
        A(f"buffer_store_dword {v(vT0)}, {v(vT1)}, {s(S_WS,4)}, {s(sT0)} offen")
        A(f"s_mov_b64 exec, -1")
        A.label(Lsl)
    if opts.get('steplog'):
        Lsl = A.new_label("sl")
        A(f"s_cmp_lg_u32 {s(sWAVE)}, 1")
        A(f"s_cbranch_scc1 {Lsl}")
        A(f"s_memrealtime s[62:63]")
        A(f"s_memtime s[16:17]")
        A(f"s_lshl_b32 {s(sT0)}, {s(sH)}, 6")
        A(f"s_add_u32 {s(sT0)}, {s(sT0)}, {s(sS)}")
        A(f"s_lshl_b32 {s(sT0)}, {s(sT0)}, 3")
        A(f"s_add_u32 {s(sT0)}, {s(sT0)}, {WS_T + 0x8000:#x}")
        A(f"s_waitcnt lgkmcnt(0)")
        A(f"v_mov_b32 {v(vT0)}, s62")
        A(f"v_mov_b32 {v(vT1)}, s16")
        A(f"s_mov_b64 exec, 1")
        A(f"buffer_store_dwordx2 {v(vT0,2)}, off, {s(S_WS,4)}, {s(sT0)}")
        A(f"s_mov_b64 exec, -1")
        A.label(Lsl)
    bookkeeping()
    bookkeeping2()
    rearm(2, True)
    A.label(Lar)
    A(f"s_barrier")
    rstamp(5)
    if cp:
        lstamp(A, 8)
    Lcon = A.new_label("con")
    Lconok = A.new_label("conok")
    gtwo = opts.get('gtwo', 1)

    def con_issue(R):
        A(f"buffer_load_dwordx4 {v(R,4)}, {v(vL16)}, {s(S_WS,4)}, {s(sGat)} offen sc1")
        A(f"buffer_load_dwordx4 {v(R+4,4)}, {v(vL16)}, {s(S_WS,4)}, {s(sGat)} offen offset:1024 sc1")

    def con_check(R, younger, ok):
        A(f"s_waitcnt vmcnt({younger})")
        A(f"ds_write_b128 {v(vMw)}, {v(R,4)}")
        A(f"v_max3_u32 {v(vT0)}, {v(R)}, {v(R+1)}, {v(R+2)}")
        A(f"v_max3_u32 {v(vT1)}, {v(R+3)}, {v(R+4)}, {v(R+5)}")
        A(f"ds_write_b128 {v(vMw)}, {v(R+4,4)} offset:1024")
        A(f"v_max3_u32 {v(vT0)}, {v(vT0)}, {v(R+6)}, {v(R+7)}")
        A(f"v_max_u32 {v(vT0)}, {v(vT0)}, {v(vT1)}")
        A(f"v_cmp_eq_u32 vcc, -1, {v(vT0)}")
        A(f"s_add_u32 {s(sRet)}, {s(sRet)}, 1")
        if cp and not TRACE[0]:
            A(f"s_add_u32 {s(sCP1)}, {s(sCP1)}, 1")
        A(f"s_cbranch_vccz {ok}")
    A(f"s_mov_b32 {s(sRet)}, 0")
    for _ in range(opts.get('gdelay', 0)):
        A(f"s_sleep 1")
    con_issue(H0)
    if gtwo:
        for _ in range(opts.get('gspace', 1)):
            A(f"s_sleep 1")
        con_issue(H1)
        if rt:
            A(f"s_waitcnt vmcnt(2)")
            rstamp(6)
        A.label(Lcon)
        con_check(H0, 2, Lown[0])
        con_issue(H0)
        con_check(H1, 2, Lown[1])
        con_issue(H1)
    else:
        A.label(Lcon)
        con_check(H0, 0, Lown[0])
        con_issue(H0)
    A(f"s_cmp_lg_u32 {s(sDEAD)}, 0")
    A(f"s_cbranch_scc1 {Lown[0]}")
    A(f"s_cmp_lt_u32 {s(sRet)}, {RED_LIMIT}")
    A(f"s_cbranch_scc1 {Lcon}")
    A(f"s_mov_b32 {s(sDEAD)}, 1")
    A(f"s_branch {Lown[0]}")
    A.label(Llast)
    A(f"s_waitcnt vmcnt(0) lgkmcnt(0)")
    if cp and not TRACE[0]:
        for i in range(1, 10):
            A(f"s_mov_b32 s{92+i}, s{16+2*(i-1) if i < 9 else 62}")
        A(f"s_lshl_b32 {s(sCP1)}, {s(sCP1)}, 16")
        A(f"s_or_b32 s92, {s(sCP0)}, {s(sCP1)}")
        A("s_branch L_flush")
    A(f"s_branch L_role_end")


def gen_chain(A, opts):
    global RT
    RT = bool(opts.get('rt'))
    CSTEP[0] = opts.get('cstep', 39)
    TRACE[0] = bool(opts.get('trace'))
    vL = 13
    A(f"s_mov_b32 {s(sH)}, {s(sIDX)}")
    A(f"v_and_b32 {v(vL)}, 63, v0")
    mk_srd(A, S_A, P_WQ, 512 * 8192)
    mk_srd(A, S_B, P_WK, 512 * 8192)
    mk_srd(A, S_C, P_WV, 512 * 8192)
    mk_srd(A, S_D, P_WO, 4096 * 1024)
    A(f"v_lshlrev_b32 {v(vL16)}, 4, {v(vL)}")
    for i in range(4):
        A(f"v_mov_b32 {v(vSEL+i)}, -1")
    A(f"s_lshl_b32 {s(sT0)}, {s(sH)}, 13")
    A(f"s_lshl_b32 {s(sT1)}, {s(sWAVE)}, 11")
    A(f"s_add_u32 {s(sT0)}, {s(sT0)}, {s(sT1)}")
    nst = 0
    A(f"v_bfe_u32 {v(vT0)}, {v(vL)}, 4, 1")
    for i in range(4):
        A(f"v_xor_b32 {v(ACC+i)}, -1, {v(vT0)}")
    A(f"buffer_store_dwordx4 {v(ACC,4)}, {v(vL16)}, {s(S_WS,4)}, {s(sT0)} offen sc1")
    A(f"buffer_store_dwordx4 {v(ACC,4)}, {v(vL16)}, {s(S_WS,4)}, {s(sT0)} offen offset:1024 sc1")
    nst += 2
    vMre = 2
    A(f"s_lshl_b32 {s(sT2)}, {s(sH)}, 8")
    A(f"v_add_u32 {v(vT0)}, {s(sT2)}, {v(vL16)}")
    A(f"v_cmp_gt_u32 vcc, 16, {v(vL)}")
    A(f"v_mov_b32 {v(vT1)}, {OOB:#x}")
    A.nop(1)
    A(f"v_cndmask_b32 {v(vMre)}, {v(vT1)}, {v(vT0)}, vcc")
    for sl in range(4):
        A(f"s_mov_b32 {s(sT1)}, {WS_M + sl*8192:#x}")
        A(f"buffer_store_dwordx4 {v(vSEL,4)}, {v(vMre)}, {s(S_WS,4)}, {s(sT1)} offen sc1")
        nst += 1
    Z = 20
    for i in range(4):
        A(f"v_mov_b32 {v(Z+i)}, 0")
    A(f"v_cndmask_b32 {v(Z+4)}, {v(vT1)}, {v(vL16)}, vcc")
    A(f"s_lshl_b32 {s(sT1)}, {s(sH)}, 8")
    A(f"s_add_u32 {s(sT1)}, {s(sT1)}, {WS_OF:#x}")
    A(f"buffer_store_dwordx4 {v(Z,4)}, {v(Z+4)}, {s(S_WS,4)}, {s(sT1)} offen sc1")
    A(f"v_cmp_gt_u32 vcc, 8, {v(vL)}")
    A.nop(2)
    A(f"v_cndmask_b32 {v(Z+5)}, {v(vT1)}, {v(vL16)}, vcc")
    A(f"s_lshl_b32 {s(sT1)}, {s(sH)}, 7")
    A(f"s_add_u32 {s(sT1)}, {s(sT1)}, {WS_KVF:#x}")
    A(f"buffer_store_dwordx4 {v(Z,4)}, {v(Z+5)}, {s(S_WS,4)}, {s(sT1)} offen sc1")
    nst += 2

    vG, vGo, vSW, vSWo, vTRb, vTRo, vTA = 116, 117, 118, 122, 124, 125, 126
    POOL = [40, 72]
    TEMPS = [104, 32]
    sXo = sRo + 1
    A(f"s_lshl_b32 {s(sT0)}, {s(sH)}, 8")
    A(f"s_lshl_b32 {s(sT1)}, {s(sWAVE)}, 20")
    A(f"s_add_u32 {s(sT0)}, {s(sT0)}, {s(sT1)}")
    lane_expr(A, vG, vL, [(4, 2, 8192), (0, 4, 16)], sregs=[sT0])
    A(f"s_lshl_b32 {s(sT0)}, {s(sH)}, 17")
    A(f"s_lshl_b32 {s(sT1)}, {s(sWAVE)}, 8")
    A(f"s_add_u32 {s(sT0)}, {s(sT0)}, {s(sT1)}")
    lane_expr(A, vGo, vL, [(4, 2, 1024), (0, 4, 16)], sregs=[sT0])
    A(f"s_lshl_b32 {s(sXo)}, {s(sWAVE)}, 15")

    RIDX = {0: 0, 1: 1, 4: 2, 5: 3, 6: 4, 7: 5}
    wo_ops = [(cg, 0) for cg in range(4)] + [(cg, ks) for cg in range(4) for ks in range(1, 4)]
    WORR = [('a', 224), ('a', 232), ('a', 240), ('a', 248), ('v', 224), ('v', 232), ('v', 240), ('v', 248)]

    def qkv_unit(m, hp, x):
        u = dict(kind='qkv', m=m, hp=hp, x=x, srd={'q': S_A, 'k': S_B, 'v': S_C}[m], needs_temp=(m != 'q'))
        u['soff'] = [(64 * hp + 16 * x + 4 * (k & 3) + 32 * (k >> 2)) * 8192 for k in range(8)]
        return u

    def bind(u, temp):
        if u['kind'] == 'qkv':
            m, hp, x = u['m'], u['hp'], u['x']
            res = []
            for i in range(4):
                sl = hp + 2 * i
                for t_ in range(2):
                    if m == 'q':
                        res.append((('a', 16 * sl + 8 * t_ + 4 * x), None))
                    elif sl in (2, 3):
                        fi = (0 if m == 'k' else 4) + 2 * (sl - 2) + t_
                        res.append((('v', temp + 4 * t_), fi * 2048 + 1024 * x))
                    else:
                        res.append(((('a' if m == 'k' else 'v'), 128 + 16 * RIDX[sl] + 8 * t_ + 4 * x), None))
            u['raw'] = [r[0] for r in res]
            u['res'] = res
        else:
            u['raw'] = [('v', temp + 4 * k) for k in range(8)]

    def wo_unit(ks):
        return dict(kind='wo', ks=ks, srd=S_D, soff=[(32 * ks + 4 * k) * 1024 for k in range(8)])
    U = {f"O{k}": wo_unit(k) for k in range(4)}
    for m in 'qkv':
        for hp in range(2):
            for x in range(2):
                U[f"{m.upper()}{hp}{x}"] = qkv_unit(m, hp, x)
    order = {0: "O0 O1 Q00 Q01 Q10 Q11 O2 O3 K00 K01 K10 K11 V00 V01 V10 V11",
             1: "Q00 Q01 Q10 Q11 O0 O1 K00 K01 O2 O3 K10 K11 V00 V01 V10 V11",
             2: "K00 K01 Q00 Q01 Q10 Q11 O0 O1 K10 K11 O2 O3 V00 V01 V10 V11",
             3: "O0 O1 Q00 Q01 Q10 Q11 O2 O3 V00 V01 V10 V11 K00 K01 K10 K11"}[opts.get('word', 0)].split()
    units = [U[n] for n in order]
    vq = Q(A, "vmcnt", 63)
    vq.ops = ['st'] * nst
    free_pool = list(POOL)
    free_temp = list(TEMPS)
    wo_left = [4]
    held = {}
    WIN = opts.get('cwin', 56)
    st_ = dict(issued=0)

    def inflight():
        return len(vq.ops)

    def try_issue():
        while st_['issued'] < len(units):
            u = units[st_['issued']]
            limit = min(WIN + (nst if 'st' in vq.ops else 0), 62)
            if inflight() + 8 > limit:
                return
            if u['kind'] == 'wo':
                if not free_pool:
                    return
                tmp = free_pool.pop(0)
                held[id(u)] = ('pool', tmp)
            elif u['needs_temp']:
                if not free_temp:
                    return
                tmp = free_temp.pop(0)
                held[id(u)] = ('temp', tmp)
            else:
                tmp = None
            bind(u, tmp)
            for k in range(8):
                if u['kind'] == 'wo':
                    A(f"s_xor_b32 {s(sT0)}, {u['soff'][k]:#x}, {s(sXo)}")
                    vq.issue(id(u), f"buffer_load_dwordx4 {reg(u['raw'][k], 4)}, {v(vGo)}, {s(u['srd'],4)}, {s(sT0)} offen")
                else:
                    A(f"s_mov_b32 {s(sT0)}, {u['soff'][k]:#x}")
                    vq.issue(id(u), f"buffer_load_dwordx4 {reg(u['raw'][k], 4)}, {v(vG)}, {s(u['srd'],4)}, {s(sT0)} offen")
            st_['issued'] += 1
    stamp(A, 1) if not opts.get('cprof') else None
    try_issue()
    A(f"s_lshl_b32 {s(sT2)}, {s(sWAVE)}, 13")
    lane_expr(A, vSW, vL, [(4, 2, 256), (1, 3, 32), (0, 1, 16)], sregs=[sT2])
    A(f"v_mov_b32 {v(vSWo)}, {v(vSW)}")
    A(f"v_bfe_u32 {v(vTA)}, {v(vL)}, 4, 1")
    A(f"v_lshlrev_b32 {v(vT0)}, 5, {v(vTA)}")
    A(f"v_xor_b32 {v(vSW)}, {v(vSW)}, {v(vT0)}")
    A(f"v_lshlrev_b32 {v(vT0)}, 6, {v(vTA)}")
    A(f"v_xor_b32 {v(vSWo)}, {v(vSWo)}, {v(vT0)}")
    A(f"v_xor_b32 {v(vSW+1)}, 64, {v(vSW)}")
    A(f"v_xor_b32 {v(vSW+2)}, 0x80, {v(vSW)}")
    A(f"v_xor_b32 {v(vSW+3)}, 0xc0, {v(vSW)}")
    A(f"v_xor_b32 {v(vSWo+1)}, 0x80, {v(vSWo)}")
    A(f"s_lshl_b32 {s(sT3)}, {s(sWAVE)}, 6")
    lane_expr(A, vTRb, vL, [(2, 1, 256 + 32), (4, 1, 1024 + 64), (5, 1, 2048), (3, 1, 4096 + 128), (0, 2, 8)])
    A(f"v_xor_b32 {v(vTRb)}, {s(sT3)}, {v(vTRb)}")
    A(f"v_add_u32 {v(vTRb)}, {s(sT2)}, {v(vTRb)}")
    lane_expr(A, vTRo, vL, [(2, 1, 256 + 64), (4, 1, 4096 + 128), (5, 1, 1024), (3, 1, 32), (0, 2, 8)], sregs=[sT2])
    A(f"s_lshl_b32 {s(sT0)}, {s(sWAVE)}, 15")
    A(f"s_add_u32 {s(sT0)}, {s(sT0)}, {WO_OFF}")
    A(f"v_add_u32 {v(vWo)}, {s(sT0)}, {v(vL16)}")
    vq.wait('st')
    A(f"s_barrier")
    Lci = A.new_label("ci")
    A(f"s_cmp_lg_u32 {s(sWAVE)}, 0")
    A(f"s_cbranch_scc1 {Lci}")
    A(f"s_getreg_b32 {s(sT0)}, hwreg(HW_REG_XCC_ID, 0, 4)")
    A(f"s_mul_i32 {s(sT1)}, {s(sT0)}, {s(sT0)}")
    A(f"s_lshl_b32 {s(sT1)}, {s(sT1)}, 17")
    A(f"s_lshl_b32 {s(sT0)}, {s(sT0)}, 8")
    A(f"s_add_u32 {s(sT0)}, {s(sT0)}, {s(sT1)}")
    A(f"s_add_u32 {s(sT0)}, {s(sT0)}, 1")
    A(f"v_mov_b32 {v(vT0)}, {s(sT0)}")
    A(f"v_mov_b32 {v(vT1)}, 0")
    A(f"s_mov_b64 exec, 1")
    A(f"buffer_atomic_add {v(vT0)}, {v(vT1)}, {s(S_DBG,4)}, 0 offen offset:{D_CHECKIN*4} sc1")
    A(f"s_mov_b64 exec, -1")
    A.label(Lci)
    try_issue()
    A(f"s_lshr_b32 {s(sT3)}, {s(sH)}, 2")
    A(f"s_lshl_b32 {s(sT3)}, {s(sT3)}, 10")
    A(f"s_and_b32 {s(sT4)}, {s(sH)}, 1")
    A(f"s_lshl_b32 {s(sT4)}, {s(sT4)}, 9")
    A(f"s_add_u32 {s(sT3)}, {s(sT3)}, {s(sT4)}")
    A(f"s_and_b32 {s(sT4)}, {s(sH)}, 2")
    A(f"s_lshl_b32 {s(sT4)}, {s(sT4)}, 4")
    A(f"s_add_u32 {s(sT3)}, {s(sT3)}, {s(sT4)}")
    lane_expr(A, vMst, vL, [(5, 1, 256), (1, 2, 64), (0, 1, 16), (4, 1, 8)], sregs=[sT3])
    A(f"v_and_b32 {v(vT1)}, 8, {v(vL)}")
    A(f"v_lshlrev_b32 {v(vT1)}, 27, {v(vT1)}")
    A(f"v_add_u32 {v(vMst)}, {v(vMst)}, {v(vT1)}")
    A(f"s_cmp_eq_u32 {s(sWAVE)}, 0")
    Lw0 = A.new_label("w0")
    A(f"s_cbranch_scc1 {Lw0}")
    A(f"v_mov_b32 {v(vMst)}, {v(vMre)}")
    A(f"s_cmp_eq_u32 {s(sWAVE)}, 3")
    A(f"s_cbranch_scc1 {Lw0}")
    A(f"v_mov_b32 {v(vMst)}, {OOB:#x}")
    A.label(Lw0)
    for (dst, bit) in ((vIdx, 2), (vIdxW, 8)):
        A(f"v_mov_b32 {v(dst)}, 0x4444")
        A(f"v_mov_b32 {v(vT0)}, 0xeeee")
        A(f"v_and_b32 {v(vT1)}, {bit}, {v(vL)}")
        A(f"v_cmp_ne_u32 vcc, 0, {v(vT1)}")
        A.nop(2)
        A(f"v_cndmask_b32 {v(dst)}, {v(dst)}, {v(vT0)}, vcc")
    A(f"s_lshl_b32 {s(sT0)}, {s(sWAVE)}, 9")
    lane_expr(A, vQKw, vL, [(0, 4, 16), (4, 2, 4)], sregs=[sT0])
    A(f"s_lshl_b32 {s(sT0)}, {s(sWAVE)}, 10")
    A(f"s_lshr_b32 {s(sT1)}, {s(sWAVE)}, 1")
    A(f"s_lshl_b32 {s(sT1)}, {s(sT1)}, 11")
    A(f"s_add_u32 {s(sT0)}, {s(sT0)}, {s(sT1)}")
    lane_expr(A, vKw, vL, [(0, 4, 32), (4, 2, 8)], const=2048, sregs=[sT0])
    lane_expr(A, vKr, vL, [(5, 1, 512), (4, 1, 128), (2, 2, 32), (0, 2, 8)])
    lane_expr(A, vQKr, vL, [(5, 1, 256), (4, 1, 64), (2, 2, 16), (0, 1, 8)])
    A(f"s_lshl_b32 {s(sT0)}, {s(sWAVE)}, 9")
    lane_expr(A, vOw, vL, [(4, 2, 128), (0, 3, 16)], const=O_OFF, sregs=[sT0])
    A(f"s_lshl_b32 {s(sT0)}, {s(sWAVE)}, 11")
    A(f"s_add_u32 {s(sT0)}, {s(sT0)}, {MEM_OFF}")
    A(f"v_add_u32 {v(vMw)}, {s(sT0)}, {v(vL16)}")
    A(f"s_lshl_b32 {s(sT0)}, {s(sWAVE)}, 16")
    A(f"s_lshl_b32 {s(sT1)}, {s(sH)}, 8")
    lane_expr(A, vPst, vL, [(5, 1, 8192), (0, 4, 16), (4, 1, 8)], sregs=[sT0, sT1])
    A(f"s_lshl_b32 {s(sT0)}, {s(sH)}, 13")
    A(f"v_add_u32 {v(vRed)}, {s(sT0)}, {v(vL16)}")
    A(f"s_and_b32 {s(sT1)}, {s(sWAVE)}, 1")
    A(f"s_lshl_b32 {s(sT1)}, {s(sT1)}, 13")
    A(f"s_lshl_b32 {s(sT0)}, {s(sH)}, 14")
    A(f"s_add_u32 {s(sT0)}, {s(sT0)}, {s(sT1)}")
    A(f"v_lshlrev_b32 {v(vPf)}, 6, {v(vL)}")
    A(f"v_add_u32 {v(vPf)}, {s(sT0)}, {v(vPf)}")
    A(f"s_mov_b32 {s(sMLo)}, -1")
    A(f"s_mov_b32 {s(sMLo+1)}, 0")
    A(f"s_mov_b32 {s(sMHi)}, 0")
    A(f"s_mov_b32 {s(sMHi+1)}, -1")
    A(f"s_mov_b32 {s(sC)}, {f32_hex(SCALE_C):#x}")
    A(f"s_mov_b32 {s(sNC)}, {f32_hex(-SCALE_C):#x}")
    Lsel = A.new_label("sel")
    A(f"s_cmp_lg_u32 {s(sWAVE)}, 0")
    A(f"s_cbranch_scc1 {Lsel}")
    A(f"v_and_b32 {v(vT0)}, 15, {v(vL)}")
    A(f"v_mov_b32 {v(vS0)}, 0x3f80")
    A(f"v_mov_b32 {v(vT1)}, 0x3f800000")
    A(f"v_and_b32 v112, 1, {v(vT0)}")
    A(f"v_cmp_eq_u32 vcc, 1, v112")
    A.nop(2)
    A(f"v_cndmask_b32 {v(vS0)}, {v(vS0)}, {v(vT1)}, vcc")
    A(f"v_lshrrev_b32 {v(vT0)}, 1, {v(vT0)}")
    for i in range(4):
        A(f"v_cmp_eq_u32 vcc, {i}, {v(vT0)}")
        A.nop(2)
        A(f"v_cndmask_b32 {v(vSEL+i)}, 0, {v(vS0)}, vcc")
    A(f"v_bfe_u32 {v(vTagE)}, {v(vL)}, 4, 1")
    A(f"v_xor_b32 {v(vTagE)}, 1, {v(vTagE)}")
    A.label(Lsel)
    for i in range(4):
        A(f"v_mov_b32 {v(vONE+i)}, 0x3f803f80")
    for i in range(1, 4):
        A(f"v_mov_b32 {v(vBM+i)}, 0")

    for b, u in enumerate(units):
        assert st_['issued'] > b, "loader deadlock"
        vq.wait(id(u))
        A(f"s_barrier")
        if u['kind'] == 'qkv':
            for k in range(8):
                A(f"ds_write_b128 {v(vSW + (k & 1) + 2 * (k >> 2))}, {reg(u['raw'][k], 4)} offset:{k * 1024}")
            A(f"s_waitcnt lgkmcnt(0)")
            A(f"s_barrier")
            x = u['x']
            for i in range(4):
                for t_ in range(2):
                    r_, fin = u['res'][2 * i + t_]
                    A(f"v_xor_b32 {v(vTA + (t_ & 1))}, {(i << 13) | (t_ << 5):#x}, {v(vTRb)}")
                    for q0 in range(2):
                        A(f"ds_read_b64_tr_b16 {reg(off(r_, 2 * q0), 2)}, {v(vTA + (t_ & 1))} offset:{512 * q0}")
            A(f"s_waitcnt lgkmcnt(0)")
            for (r_, fin) in u['res']:
                if fin is not None:
                    A(f"ds_write_b128 {v(vWo)}, {reg(r_, 4)} offset:{fin}")
        else:
            ks = u['ks']
            for k in range(8):
                A(f"ds_write_b128 {v(vSWo + (k >> 2))}, {reg(u['raw'][k], 4)} offset:{k * 1024}")
            base = u['raw'][0][1]
            fins = []
            for cg in range(4):
                io = wo_ops.index((cg, ks))
                dst = WORR[io] if io < 8 else ('v', base + 8 * cg)
                A(f"v_xor_b32 {v(vTA + (cg & 1))}, {cg << 6:#x}, {v(vTRo)}")
                for i in range(4):
                    A(f"ds_read_b64_tr_b16 {reg(off(dst, 2 * i), 2)}, {v(vTA + (cg & 1))} offset:{(8 * (i >> 1) + 2 * (i & 1)) * 256}")
                if io >= 8:
                    fins.append((dst, io * 2048))
            A(f"s_waitcnt lgkmcnt(0)")
            for (dst, o) in fins:
                A(f"ds_write_b128 {v(vWo)}, {reg(dst, 4)} offset:{o}")
                A(f"ds_write_b128 {v(vWo)}, {reg(off(dst, 4), 4)} offset:{o + 1024}")
        if id(u) in held:
            kind, tmp = held[id(u)]
            A(f"s_waitcnt lgkmcnt(0)")
            if kind == 'pool':
                wo_left[0] -= 1
                if wo_left[0] >= 2:
                    free_pool.append(tmp)
                else:
                    free_temp.extend([tmp + 8 * j for j in range(4)])
            else:
                free_temp.append(tmp)
        if opts.get('prof') and not opts.get('cprof') and b in (0, 3, 7, 11):
            stamp(A, {0: 4, 3: 5, 7: 6, 11: 7}[b])
        try_issue()
    A("s_waitcnt lgkmcnt(0)")
    stamp(A, 2) if not opts.get('cprof') else None
    A(f"s_barrier")
    mk_srd(A, S_A, P_MEM0, 8192)
    A(f"s_lshl_b32 {s(sT0)}, {s(sWAVE)}, 8")
    lane_expr(A, vT0, vL, [(2, 2, 2048), (0, 1, 1024), (1, 1, 64), (4, 2, 16)], sregs=[sT0])
    A(f"buffer_load_dwordx4 {v(X+16,4)}, {v(vT0)}, {s(S_A,4)}, 0 offen")
    A(f"buffer_load_dwordx4 {v(X+20,4)}, {v(vT0)}, {s(S_A,4)}, 0 offen offset:128")
    A(f"s_waitcnt vmcnt(0)")
    A(f"ds_write_b128 {v(vMw)}, {v(X+16,4)}")
    A(f"ds_write_b128 {v(vMw)}, {v(X+20,4)} offset:1024")
    for i in range(16):
        A(f"v_mov_b32 {v(ACC+i)}, 0")
    for i in range(8):
        A(f"v_mov_b32 {v(Y+24+i)}, 0")
    A(f"s_lshl_b32 {s(sW2k)}, {s(sWAVE)}, 11")
    A(f"s_mov_b32 {s(sSlotP1)}, {WS_P + 16384}")
    A(f"s_mov_b32 {s(sPc2)}, {WS_P + 32768}")
    A(f"s_mov_b32 {s(sPc3)}, {WS_P + 49152}")
    A(f"s_mov_b32 {s(sSlotP4)}, {WS_P + 4096}")
    A(f"s_and_b32 {s(sTag)}, {s(sH)}, 1")
    A(f"s_xor_b32 {s(sTag)}, {s(sTag)}, 1")
    A(f"s_lshl_b32 {s(sFb)}, {s(sH)}, 7")
    A(f"s_add_u32 {s(sFb)}, {s(sFb)}, {WS_KVF:#x}")
    A(f"s_mov_b32 {s(sT5)}, {s(sFb)}")
    A(f"s_cmp_eq_u32 {s(sWAVE)}, 0")
    A(f"s_cselect_b32 {s(sFb)}, {OOB:#x}, {s(sFb)}")
    A(f"s_cmp_ge_u32 {s(sWAVE)}, 2")
    A(f"s_mov_b32 {s(sT0)}, {OOB:#x}")
    A(f"s_mov_b32 {s(sPf)}, {WS_KX + 0x80000:#x}")
    A(f"s_cselect_b32 {s(sPf)}, {s(sPf)}, {s(sT0)}")
    A(f"s_add_u32 {s(sM0K)}, {s(sW2k)}, {KX_OFF}")
    A(f"s_lshl_b32 {s(sKn)}, {s(sH)}, 14")
    A(f"s_add_u32 {s(sKn)}, {s(sKn)}, {s(sW2k)}")
    A(f"s_add_u32 {s(sKn)}, {s(sKn)}, {WS_KX:#x}")
    A(f"s_add_u32 {s(sM0V)}, {s(sW2k)}, {VX_OFF}")
    A(f"s_lshl_b32 {s(sKV)}, {s(sH)}, 14")
    A(f"s_add_u32 {s(sKV)}, {s(sKV)}, {s(sW2k)}")
    A(f"s_add_u32 {s(sKV)}, {s(sKV)}, {WS_KX:#x}")
    A(f"s_lshl_b32 {s(sKM)}, {s(sH)}, 12")
    A(f"s_add_u32 {s(sKM)}, {s(sKM)}, {WS_KM:#x}")
    A(f"s_mov_b32 {s(sJ4)}, 8")
    A(f"s_mov_b32 {s(sCn)}, 1")
    A(f"s_mov_b32 {s(sNeed)}, 1")
    A(f"s_add_u32 {s(sFo)}, {s(sFb)}, 8")
    A(f"v_mov_b32 {v(vT1)}, 0")
    A(f"s_mov_b32 {s(sT2)}, {D_CHECKIN*4}")
    A(f"s_mov_b32 {s(sT3)}, 0")
    wait_byte(A, vFlag, vT1, sT2, sT3, 32, "ci", sleep=1)
    A(f"buffer_load_dword {v(vFlag)}, {v(vT1)}, {s(S_DBG,4)}, 0 offen offset:{D_CHECKIN*4} sc1")
    A(f"s_getreg_b32 {s(sT0)}, hwreg(HW_REG_XCC_ID, 0, 4)")
    A(f"s_mul_i32 {s(sT1)}, {s(sT0)}, {s(sT0)}")
    A(f"s_lshl_b32 {s(sT1)}, {s(sT1)}, 22")
    A(f"s_lshl_b32 {s(sT0)}, {s(sT0)}, 13")
    A(f"s_add_u32 {s(sT0)}, {s(sT0)}, {s(sT1)}")
    A(f"s_add_u32 {s(sT0)}, {s(sT0)}, 32")
    A(f"s_waitcnt vmcnt(0)")
    A(f"v_readfirstlane_b32 {s(sT1)}, {v(vFlag)}")
    A(f"s_cmp_eq_u32 {s(sT0)}, {s(sT1)}")
    A(f"s_cselect_b32 {s(sFastF)}, 1, 0")
    for j in range(2):
        Lp = A.new_label("kvp")
        Ld = A.new_label("kvd")
        A(f"s_mov_b32 {s(sRet)}, 0")
        A(f"s_cmp_lg_u32 {s(sDEAD)}, 0")
        A(f"s_cbranch_scc1 {Ld}")
        A.label(Lp)
        A(f"buffer_load_dword {v(vFlag)}, off, {s(S_WS,4)}, {s(sT5)} offset:{4*j} sc1")
        A(f"s_waitcnt vmcnt(0)")
        A(f"v_readfirstlane_b32 {s(sT0)}, {v(vFlag)}")
        A(f"s_cmp_ge_u32 {s(sT0)}, 1")
        A(f"s_cbranch_scc1 {Ld}")
        A(f"s_sleep 1")
        A(f"s_add_u32 {s(sRet)}, {s(sRet)}, 1")
        A(f"s_cmp_lt_u32 {s(sRet)}, {SPIN_LIMIT}")
        A(f"s_cbranch_scc1 {Lp}")
        A(f"s_mov_b32 {s(sDEAD)}, 1")
        A.label(Ld)
    A(f"s_mov_b32 m0, {s(sM0K)}")
    A(f"s_nop 0")
    for i in range(2):
        A(f"buffer_load_dwordx4 {v(vL16)}, {s(S_WS,4)}, {s(sKn)} offen offset:{1024*i} lds")
    A(f"s_mov_b32 {s(sS)}, 0")
    A(f"s_waitcnt vmcnt(0) lgkmcnt(0)")
    A(f"s_barrier")
    stamp(A, 3) if not opts.get('cprof') else None
    if opts.get('cprof'):
        A(f"s_mov_b32 {s(sCP0)}, 0")
        A(f"s_mov_b32 {s(sCP1)}, 0")
    A(f"s_cmp_eq_u32 {s(sFastF)}, 1")
    if opts.get('forceslow'):
        A(f"s_branch L_own0_s")
    A(f"s_cbranch_scc0 L_own0_s")
    gen_step(A, True, opts)
    gen_step(A, False, opts)


def G_tr(A, vD, vL, kind, base_sreg):
    tr_lane_addr(A, vD, vL, vT0, vS0, kind, base_sreg=base_sreg)
```

```python
import sys
from dsl import *

KNAME = "gated_mix__memory_aug_recurrent_mem_tr__dense_activation_silu__prompt_kernel"

WS_P = 0
WS_M = 0x100000
WS_KVF = 0x110000
WS_OF = 0x120000
WS_KM = 0x200000
WS_KX = 0x1000000
KVSTR = 16384
WS_QX = 0x3000000
WS_OX = 0x4000000
WS_HX = 0x5000000
HX_STRIDE = 2 * 43 * 1024
WS_G = 0x5800000
WS_T = 0x5810000
WS_SIZE = 0x5860000

D_CHECKIN = 0
D_XCCMASK = 1
D_FFN = 2
D_ERR = 4
D_WDONE = 5
D_KV = 8
D_O = 24
D_PROG = 40

S_WS, S_DBG, S_X, S_A, S_B, S_C, S_D = 4, 8, 12, 16, 20, 24, 28
sWAVE, sIDX, sXCD = 32, 33, 34
sT0, sT1, sT2, sT3, sT4, sT5 = 35, 36, 37, 38, 39, 40
sDEAD = 41
sEX = 42
P_X, P_MEM0, P_WQ, P_WK, P_WV, P_WO, P_W1, P_W2, P_GATE, P_OUT, P_DBG, P_WS = 64, 66, 68, 70, 72, 74, 80, 82, 84, 86, 88, 90
SPIN_LIMIT = 1 << 17

LDS_BYTES = 160 * 1024


def mk_srd(A, d, p, size):
    A(f"s_mov_b32 {s(d)}, {s(p)}")
    A(f"s_mov_b32 {s(d+1)}, {s(p+1)}")
    A(f"s_mov_b32 {s(d+2)}, {size:#x}")
    A(f"s_mov_b32 {s(d+3)}, 0x00020000")


def wait_byte(A, vT, vZero, s_off, s_shift, target, tag, s_tmp=sT0, s_cnt=sT1, target_is_sreg=False, sleep=2):
    L = A.new_label("w" + tag)
    Ld = A.new_label("wd" + tag)
    A(f"s_mov_b32 {s(s_cnt)}, 0")
    A(f"s_cmp_lg_u32 {s(sDEAD)}, 0")
    A(f"s_cbranch_scc1 {Ld}")
    A.label(L)
    A(f"buffer_load_dword {v(vT)}, {v(vZero)}, {s(S_DBG,4)}, {s(s_off)} offen sc1")
    A(f"s_waitcnt vmcnt(0)")
    A(f"v_readfirstlane_b32 {s(s_tmp)}, {v(vT)}")
    A(f"s_lshr_b32 {s(s_tmp)}, {s(s_tmp)}, {s(s_shift)}")
    A(f"s_and_b32 {s(s_tmp)}, {s(s_tmp)}, 0xff")
    A(f"s_cmp_ge_u32 {s(s_tmp)}, {s(target) if target_is_sreg else target}")
    A(f"s_cbranch_scc1 {Ld}")
    if sleep:
        A(f"s_sleep {sleep}")
    A(f"s_add_u32 {s(s_cnt)}, {s(s_cnt)}, 1")
    A(f"s_cmp_lt_u32 {s(s_cnt)}, {SPIN_LIMIT}")
    A(f"s_cbranch_scc1 {L}")
    A(f"s_mov_b32 {s(sDEAD)}, 1")
    A.label(Ld)


def signal_byte(A, vOne, vZero, s_off, s_shift, vTmp):
    A(f"s_lshl_b32 {s(sT0)}, 1, {s(s_shift)}")
    A(f"v_mov_b32 {v(vTmp)}, {s(sT0)}")
    A(f"s_mov_b64 {s(sEX,2)}, exec")
    A(f"s_mov_b64 exec, 1")
    A(f"buffer_atomic_add {v(vTmp)}, {v(vZero)}, {s(S_DBG,4)}, {s(s_off)} offen sc1")
    A(f"s_mov_b64 exec, {s(sEX,2)}")


PROF = False
sSTAMP = 92


def stamp(A, i):
    if not PROF:
        return
    A(f"s_memrealtime s[62:63]")
    A(f"s_waitcnt lgkmcnt(0)")
    A(f"s_mov_b32 {s(sSTAMP+i)}, s62")


def stamp_clk(A, i):
    if not PROF:
        return
    A(f"s_memtime s[62:63]")
    A(f"s_waitcnt lgkmcnt(0)")
    A(f"s_mov_b32 {s(sSTAMP+i)}, s62")


def stamp_if_lt(A, i, sreg, limit, clk=False):
    if not PROF:
        return
    L = A.new_label("st")
    A(f"s_cmp_lt_u32 {s(sreg)}, {limit}")
    A(f"s_cbranch_scc0 {L}")
    (stamp_clk if clk else stamp)(A, i)
    A.label(L)


def stamp_flush(A):
    if not PROF:
        return
    A(f"s_lshl_b32 s62, s2, 2")
    A(f"s_add_u32 s62, s62, {s(sWAVE)}")
    A(f"s_lshl_b32 s62, s62, 6")
    A(f"s_add_u32 s62, s62, {WS_T:#x}")
    A(f"v_mov_b32 v1, 0")
    A(f"s_mov_b64 exec, 1")
    for i in range(10):
        A(f"v_mov_b32 v2, {s(sSTAMP+i)}")
        A(f"buffer_store_dword v2, v1, {s(S_WS,4)}, s62 offen offset:{4*i}")
    A(f"s_waitcnt vmcnt(0)")


STG_BUF = 3072


def stage_addr(row):
    return 64 * row + 128 * (row >> 2)


def load_blocks(A, blocks, vST, window, after_first_issue=None, nolds=False):
    n = len(blocks)

    def issue(b):
        blk = blocks[b]
        for k in range(2):
            so = blk['soff'][k]
            A(f"s_mov_b32 {s(sT0)}, {so:#x}")
            if blk.get('sbase') is not None:
                A(f"s_add_u32 {s(sT0)}, {s(sT0)}, {s(blk['sbase'])}")
            A(f"buffer_load_dwordx4 {reg(off(blk['raw'], 4*k), 4)}, {v(blk['voff'])}, {s(blk['srd'],4)}, {s(sT0)} offen")

    issued = 0
    def can_issue(b, done):
        r = blocks[b]['raw']
        for p in range(b):
            if blocks[p]['raw'] == r or blocks[p].get('dst') == r:
                if p >= done:
                    return False
        return True

    while issued < n and issued < window and can_issue(issued, 0):
        issue(issued)
        issued += 1
    if after_first_issue:
        after_first_issue(2 * issued)
    for b in range(n):
        blk = blocks[b]
        assert issued > b, "window deadlock"
        A(f"s_waitcnt vmcnt({2*(issued-b-1)})")
        buf = (b & 1) * STG_BUF
        if not nolds:
            A(f"ds_write_b128 {v(vST)}, {reg(blk['raw'],4)} offset:{buf}")
            A(f"ds_write_b128 {v(vST)}, {reg(off(blk['raw'],4),4)} offset:{buf + stage_addr(16)}")
            for i in range(4):
                A(f"ds_read_b64_tr_b16 {reg(off(blk['dst'],2*i),2)}, {v(blk['vtr'])} offset:{buf + blk['imm'][i]}")
        if blk.get('post'):
            blk['post'](A)
        while issued < n and issued - b - 1 < window and can_issue(issued, b + 1):
            issue(issued)
            issued += 1
    A("s_waitcnt lgkmcnt(0)")


def load_blocks2(A, blocks, vST, window, extra=None, nolds=False, vq=None, upto=None):
    n = len(blocks)
    vq = vq or Q(A, "vmcnt", 63)
    state = dict(issued=0, xi=False, xc=False)

    def issue(b):
        blk = blocks[b]
        for k in range(2):
            A(f"s_mov_b32 {s(sT0)}, {blk['soff'][k]:#x}")
            vq.issue(('B', id(blk)), f"buffer_load_dwordx4 {reg(off(blk['raw'], 4*k), 4)}, {v(blk['voff'])}, {s(blk['srd'],4)}, {s(sT0)} offen")
        state['issued'] += 1
        if extra and b == extra[0]:
            extra[1](vq)
            state['xi'] = True
    while state['issued'] < n and state['issued'] < window:
        issue(state['issued'])
    for b in range(n):
        blk = blocks[b]
        vq.wait(('B', id(blk)))
        if extra and state['xi'] and not state['xc'] and b > extra[0]:
            extra[2](vq)
            state['xc'] = True
        buf = (b & 1) * STG_BUF
        if not nolds:
            A(f"ds_write_b128 {v(vST)}, {reg(blk['raw'],4)} offset:{buf}")
            A(f"ds_write_b128 {v(vST)}, {reg(off(blk['raw'],4),4)} offset:{buf + stage_addr(16)}")
            for i in range(4):
                A(f"ds_read_b64_tr_b16 {reg(off(blk['dst'],2*i),2)}, {v(blk['vtr'])} offset:{buf + blk['imm'][i]}")
        if blk.get('post'):
            blk['post'](A)
        while state['issued'] < n and state['issued'] - b - 1 < window:
            issue(state['issued'])
    if extra and not state['xc']:
        extra[2](vq)
    A("s_waitcnt lgkmcnt(0)")


def tr_lane_addr(A, vD, vL, vT1, vT2, kind, base_sreg=None, base_imm=0):
    A(f"v_lshrrev_b32 {v(vT1)}, 4, {v(vL)}")
    A(f"v_bfe_u32 {v(vT2)}, {v(vL)}, 2, 2")
    A(f"v_and_b32 {v(vD)}, 3, {v(vL)}")
    A(f"v_lshlrev_b32 {v(vD)}, 3, {v(vD)}")

    def add_term(expr_src, mask_shift, mul):
        sh, bits = mask_shift
        A(f"v_bfe_u32 v{TMPX}, {v(expr_src)}, {sh}, {bits}")
        A(f"v_mul_u32_u24 v{TMPX}, {mul}, v{TMPX}")
        A(f"v_add_u32 {v(vD)}, {v(vD)}, v{TMPX}")

    G, r = vT1, vT2
    def sa(row):
        return stage_addr(row)
    if kind == 'chain_qkv':
        add_term(G, (1, 1), sa(8)); add_term(G, (0, 1), sa(4)); add_term(r, (0, 1), sa(1)); add_term(r, (1, 1), 32)
    elif kind == 'chain_wo':
        add_term(G, (0, 1), sa(16)); add_term(G, (1, 1), sa(4)); add_term(r, (0, 1), sa(1)); add_term(r, (1, 1), 32)
    elif kind == 'k16':
        add_term(G, (1, 1), sa(8)); add_term(r, (0, 2), sa(1)); add_term(G, (0, 1), 32)
    elif kind == 'out_wo':
        add_term(G, (0, 2), sa(4)); add_term(r, (0, 2), sa(1))
    elif kind == 'out_w2':
        add_term(G, (1, 1), sa(16)); add_term(G, (0, 1), sa(4)); add_term(r, (0, 2), sa(1))
    else:
        raise ValueError(kind)
    if base_sreg is not None:
        A(f"v_add_u32 {v(vD)}, {s(base_sreg)}, {v(vD)}")
    if base_imm:
        A(f"v_add_u32 {v(vD)}, {base_imm}, {v(vD)}")


TR_IMM = {
    'chain_qkv': [stage_addr(16 * hi + 2 * qq) for hi in range(2) for qq in range(2)],
    'chain_wo': [stage_addr(8 * hi + 2 * qq) for hi in range(2) for qq in range(2)],
    'k16': [stage_addr(16 * kk + 4 * hf) for kk in range(2) for hf in range(2)],
    'out_wo': [stage_addr(16 * hf) + 32 * ct for ct in range(2) for hf in range(2)],
    'out_w2': [stage_addr(8 * hf) + 32 * ct for ct in range(2) for hf in range(2)],
}
TMPX = 15


def stage_lane_addr(A, vD, vL, vT, base_sreg):
    A(f"v_lshrrev_b32 {v(vD)}, 2, {v(vL)}")
    A(f"v_lshlrev_b32 {v(vD)}, 6, {v(vD)}")
    A(f"v_lshrrev_b32 {v(vT)}, 4, {v(vL)}")
    A(f"v_lshlrev_b32 {v(vT)}, 7, {v(vT)}")
    A(f"v_add_u32 {v(vD)}, {v(vD)}, {v(vT)}")
    A(f"v_and_b32 {v(vT)}, 3, {v(vL)}")
    A(f"v_lshlrev_b32 {v(vT)}, 4, {v(vT)}")
    A(f"v_add_u32 {v(vD)}, {v(vD)}, {v(vT)}")
    A(f"v_add_u32 {v(vD)}, {s(base_sreg)}, {v(vD)}")


def raw_lane_off(A, vD, vL, vT, pitch):
    A(f"v_lshrrev_b32 {v(vD)}, 2, {v(vL)}")
    A(f"v_mul_u32_u24 {v(vD)}, {pitch}, {v(vD)}")
    A(f"v_and_b32 {v(vT)}, 3, {v(vL)}")
    A(f"v_lshlrev_b32 {v(vT)}, 4, {v(vT)}")
    A(f"v_add_u32 {v(vD)}, {v(vD)}, {v(vT)}")


def lane_expr(A, vD, vL, terms, const=0, sregs=(), tmp=None):
    tmp = TMPX if tmp is None else tmp
    first = True
    for (sh, bits, mul) in terms:
        dst = vD if first else tmp
        A(f"v_bfe_u32 {v(dst)}, {v(vL)}, {sh}, {bits}")
        if mul != 1:
            A(f"v_mul_u32_u24 {v(dst)}, {mul}, {v(dst)}")
        if not first:
            A(f"v_add_u32 {v(vD)}, {v(vD)}, {v(tmp)}")
        first = False
    if first:
        A(f"v_mov_b32 {v(vD)}, 0")
    if const:
        A(f"v_add_u32 {v(vD)}, {const:#x}, {v(vD)}")
    for sr in sregs:
        A(f"v_add_u32 {v(vD)}, {s(sr)}, {v(vD)}")


class Q:
    def __init__(self, A, name, cap):
        self.A, self.name, self.cap = A, name, cap
        self.ops = []

    def issue(self, tag, text):
        self.A(text)
        self.ops.append(tag)

    def wait(self, tag):
        if tag not in self.ops:
            return
        i = max(j for j, t in enumerate(self.ops) if t == tag)
        n = len(self.ops) - 1 - i
        self.A(f"s_waitcnt {self.name}({min(n, self.cap)})")
        if n <= self.cap:
            self.ops = self.ops[i + 1:]
        else:
            self.ops = self.ops[len(self.ops) - self.cap:]

    def wait_all(self):
        self.A(f"s_waitcnt {self.name}(0)")
        self.ops = []


XBUF = 64 * 528
XB1 = 36864


class XG:
    vL, vL16, vXW, vXR, vZero, vTmp, vT1, vT2 = 1, 2, 3, 4, 10, 11, 12, 13
    XP, XF = 16, 48
    NF = 4

    def __init__(self, A, sDelta):
        self.A, self.sDelta = A, sDelta

    def setup(self):
        A = self.A
        vL, vL16, vXW, vXR, vZero, vT1 = self.vL, self.vL16, self.vXW, self.vXR, self.vZero, self.vT1
        A(f"v_and_b32 {v(vL)}, 63, v0")
        A(f"v_lshlrev_b32 {v(vL16)}, 4, {v(vL)}")
        A(f"v_mov_b32 {v(vZero)}, 0")
        A(f"v_mul_u32_u24 {v(vXW)}, 528, {v(vL)}")
        A(f"s_lshl_b32 {s(sT0)}, {s(sWAVE)}, 7")
        A(f"v_add_u32 {v(vXW)}, {s(sT0)}, {v(vXW)}")
        A(f"v_lshrrev_b32 {v(vXR)}, 5, {v(vL)}")
        A(f"v_mul_u32_u24 {v(vXR)}, 528, {v(vXR)}")
        A(f"v_and_b32 {v(vT1)}, 31, {v(vL)}")
        A(f"v_lshlrev_b32 {v(vT1)}, 4, {v(vT1)}")
        A(f"v_add_u32 {v(vXR)}, {v(vXR)}, {v(vT1)}")

    def issue_x(self, seg_sreg, vq=None):
        A = self.A
        if vq is not None:
            A = lambda x_: (vq.issue('x', x_) if x_.startswith('buffer_load') else self.A(x_))
        A(f"s_lshl_b32 {s(sT0)}, {s(seg_sreg)}, 15")
        A(f"s_lshl_b32 {s(sT1)}, {s(sWAVE)}, 13")
        A(f"s_add_u32 {s(sT0)}, {s(sT0)}, {s(sT1)}")
        for i in range(8):
            if i == 4:
                A(f"s_add_u32 {s(sT0)}, {s(sT0)}, 4096")
            A(f"buffer_load_dwordx4 {v(self.XP+4*i,4)}, {v(self.vL16)}, {s(S_X,4)}, {s(sT0)} offen offset:{(i%4)*1024}")

    def write_x(self):
        for i in range(8):
            self.A(f"ds_write_b128 {v(self.vXW)}, {v(self.XP+4*i,4)} offset:{i*16}")

    def after_weights(self):
        A = self.A
        A(f"s_waitcnt lgkmcnt(0)")
        A(f"s_barrier")
        A(f"s_mov_b32 {s(self.sDelta)}, {XB1}")
        A(f"v_add_u32 {v(self.vXW)}, {s(self.sDelta)}, {v(self.vXW)}")

    def body(self, mfmas, wpos=9):
        A, NF, XF = self.A, self.NF, self.XF

        def rd(kk):
            A(f"ds_read_b128 {v(XF + 4*(kk % NF), 4)}, {v(self.vXR)} offset:{kk*1056}")
        for kk in range(NF - 1):
            rd(kk)
        for kk in range(32):
            if kk + NF - 1 < 32:
                rd(kk + NF - 1)
                A(f"s_waitcnt lgkmcnt({NF-1})")
            else:
                A(f"s_waitcnt lgkmcnt({31-kk})")
            mfmas(kk, v(XF + 4 * (kk % NF), 4))
            if wpos is not None and kk == wpos:
                A(f"s_waitcnt vmcnt(0)")
                self.write_x()
                A(f"s_waitcnt lgkmcnt(0)")

    def toggle(self):
        A = self.A
        A(f"v_add_u32 {v(self.vXR)}, {s(self.sDelta)}, {v(self.vXR)}")
        A(f"s_sub_u32 {s(self.sDelta)}, 0, {s(self.sDelta)}")
        A(f"v_add_u32 {v(self.vXW)}, {s(self.sDelta)}, {v(self.vXW)}")


def gen_hq(A, opts):
    vWG, vST, vTR, vKst, vVst = 5, 6, 7, 8, 9
    ACC = 64
    EP = 112
    sH, sJ, sSeg, sNext, sDelta, sSegOff, sKVoff, sKVsh, sXa = 44, 45, 46, 47, 48, 49, 50, 51, 52
    sCnt, sKVF = 53, 60
    xg = XG(A, sDelta)
    vL, vL16, vZero, vTmp, vT1, vT2, XF = xg.vL, xg.vL16, xg.vZero, xg.vTmp, xg.vT1, xg.vT2, xg.XF
    A(f"s_sub_u32 {s(sT0)}, {s(sXCD)}, 3")
    A(f"s_lshl_b32 {s(sT0)}, {s(sT0)}, 5")
    A(f"s_add_u32 {s(sT0)}, {s(sT0)}, {s(sIDX)}")
    A(f"s_mul_i32 {s(sH)}, {s(sT0)}, 205")
    A(f"s_lshr_b32 {s(sH)}, {s(sH)}, 10")
    A(f"s_mul_i32 {s(sT1)}, {s(sH)}, 5")
    A(f"s_sub_u32 {s(sJ)}, {s(sT0)}, {s(sT1)}")
    mk_srd(A, S_A, P_WQ, 512 * 8192)
    mk_srd(A, S_B, P_WK, 512 * 8192)
    mk_srd(A, S_C, P_WV, 512 * 8192)
    xg.setup()
    A(f"s_mov_b32 {s(sSeg)}, {s(sJ)}")
    raw_lane_off(A, vWG, vL, vT1, 8192)
    A(f"s_lshl_b32 {s(sT0)}, {s(sH)}, 8")
    A(f"s_lshl_b32 {s(sT1)}, {s(sWAVE)}, 6")
    A(f"s_add_u32 {s(sT0)}, {s(sT0)}, {s(sT1)}")
    A(f"v_add_u32 {v(vWG)}, {s(sT0)}, {v(vWG)}")
    STG = 80 * 1024
    A(f"s_mul_i32 {s(sT2)}, {s(sWAVE)}, {2*STG_BUF}")
    A(f"s_add_u32 {s(sT2)}, {s(sT2)}, {STG}")
    stage_lane_addr(A, vST, vL, vT1, sT2)
    tr_lane_addr(A, vTR, vL, vT1, vT2, 'k16', base_sreg=sT2)
    A(f"s_lshl_b32 {s(sT0)}, {s(sWAVE)}, 10")
    lane_expr(A, vKst, vL, [(4, 1, 4096), (5, 1, 256), (0, 4, 16)], sregs=[sT0])
    A(f"s_lshl_b32 {s(sT0)}, {s(sWAVE)}, 11")
    lane_expr(A, vVst, vL, [(4, 1, 1024), (5, 1, 256), (0, 4, 16)], sregs=[sT0])

    def wblocks(srd, dst):
        return [dict(srd=srd, voff=vWG, soff=[(32 * b) * 8192, (32 * b + 16) * 8192], raw=off(dst, 8 * b), dst=off(dst, 8 * b),
                     vtr=vTR, imm=TR_IMM['k16']) for b in range(16)]
    kvb = wblocks(S_B, ('a', 128)) + wblocks(S_C, ('v', 128))
    qb = wblocks(S_A, ('a', 0))
    stamp(A, 1)
    if PROF:
        kvb[15]['post'] = lambda A_: stamp(A_, 6)
        kvb[0]['post'] = lambda A_: stamp(A_, 8)

    def x_issue(vq):
        xg.issue_x(sSeg, vq)

    def x_consume(vq):
        vq.wait('x')
        xg.write_x()
        stamp(A, 5)
    hw = opts.get('hqwin', 10)
    load_blocks2(A, kvb, vST, window=hw, extra=(opts.get('hqxpos', 16), x_issue, x_consume))
    stamp(A, 7)
    xg.after_weights()
    A(f"s_mov_b32 {s(sXa)}, -1")
    A(f"s_mov_b32 {s(sCnt)}, 1")
    A(f"s_lshl_b32 {s(sKVF)}, {s(sH)}, 7")
    A(f"s_lshl_b32 {s(sT0)}, {s(sJ)}, 2")
    A(f"s_add_u32 {s(sKVF)}, {s(sKVF)}, {s(sT0)}")
    A(f"s_add_u32 {s(sKVF)}, {s(sKVF)}, {WS_KVF:#x}")
    A(f"buffer_load_dword v15, {v(vZero)}, {s(S_DBG,4)}, 0 offen offset:{D_CHECKIN*4} sc1")

    def mf_k(kk, f):
        c = lambda base: "0" if kk == 0 else v(base, 16)
        A(f"v_mfma_f32_32x32x16_bf16 {v(ACC+16,16)}, {a(128+4*kk,4)}, {f}, {c(ACC+16)}")

    def mf_v(kk, f):
        c = lambda base: "0" if kk == 0 else v(base, 16)
        A(f"v_mfma_f32_32x32x16_bf16 {v(ACC+32,16)}, {f}, {v(128+4*kk,4)}, {c(ACC+32)}")

    def mf_q(kk, f):
        c = lambda base: "0" if kk == 0 else v(base, 16)
        A(f"v_mfma_f32_32x32x16_bf16 {v(ACC,16)}, {a(4*kk,4)}, {f}, {c(ACC)}")

    def seg_offsets():
        A(f"s_lshl_b32 {s(sSegOff)}, {s(sSeg)}, 5")
        A(f"s_add_u32 {s(sSegOff)}, {s(sSegOff)}, {s(sH)}")
        A(f"s_lshl_b32 {s(sKVoff)}, {s(sSegOff)}, 14")
        A(f"s_lshl_b32 {s(sKVsh)}, {s(sSegOff)}, 12")
        A(f"s_lshl_b32 {s(sSegOff)}, {s(sSegOff)}, 13")

    def store_ct(acc, sbase, region, ep):
        for c in range(2):
            for q in range(4):
                A(f"v_cvt_pk_bf16_f32 {v(ep+4*c+q)}, {v(acc+8*c+2*q)}, {v(acc+8*c+2*q+1)}")
        A(f"s_add_u32 {s(sT0)}, {s(sbase)}, {region:#x}")
        for c in range(2):
            A(f"buffer_store_dwordx4 {v(ep+4*c,4)}, {v(vKst)}, {s(S_WS,4)}, {s(sT0)} offen offset:{c*512} sc1")

    def store_kv():
        store_ct(ACC + 16, sKVoff, WS_KX, EP)
        acc = ACC + 32
        for c in range(2):
            for hf in range(2):
                u = c + 2 * hf
                for q in range(2):
                    A(f"v_cvt_pk_bf16_f32 {v(EP+8+4*c+2*hf+q)}, {v(acc+4*u+2*q)}, {v(acc+4*u+2*q+1)}")
        A(f"s_add_u32 {s(sT0)}, {s(sKVoff)}, {WS_KX + 8192:#x}")
        for c in range(2):
            A(f"buffer_store_dwordx4 {v(EP+8+4*c,4)}, {v(vVst)}, {s(S_WS,4)}, {s(sT0)} offen offset:{c*512} sc1")

    def arm_km():
        for i in range(4):
            A(f"v_mov_b32 {v(XF+8+i)}, -1")
        A(f"s_lshl_b32 {s(sT1)}, {s(sWAVE)}, 10")
        A(f"s_add_u32 {s(sT0)}, {s(sKVsh)}, {s(sT1)}")
        A(f"s_add_u32 {s(sT0)}, {s(sT0)}, {WS_KM:#x}")
        A(f"buffer_store_dwordx4 {v(XF+8,4)}, {v(vL16)}, {s(S_WS,4)}, {s(sT0)} offen sc1")

    def flag_store():
        A(f"v_mov_b32 {v(vTmp)}, {s(sCnt)}")
        A(f"s_mov_b64 exec, 1")
        A(f"buffer_store_dword {v(vTmp)}, off, {s(S_WS,4)}, {s(sKVF)} sc1")
        A(f"s_mov_b64 exec, -1")
    xg.body(lambda kk, f: (mf_k(kk, f), mf_v(kk, f)), wpos=None)
    A.nop(12)
    seg_offsets()
    store_kv()
    arm_km()
    vq = Q(A, "vmcnt", 63)
    qn = [0]

    def q_first(vq_):
        pass
    nq0 = opts.get('hqq0', 8)
    for b in range(nq0):
        blk = qb[b]
        for k in range(2):
            A(f"s_mov_b32 {s(sT0)}, {blk['soff'][k]:#x}")
            vq.issue(('B', id(blk)), f"buffer_load_dwordx4 {reg(off(blk['raw'], 4*k), 4)}, {v(blk['voff'])}, {s(blk['srd'],4)}, {s(sT0)} offen")
    A(f"s_waitcnt vmcnt({2*nq0})")
    A(f"s_barrier")
    Lnf1 = A.new_label("hq_nf1")
    Lci = A.new_label("hq_ci")
    A(f"s_cmp_lg_u32 {s(sWAVE)}, 0")
    A(f"s_cbranch_scc1 {Lnf1}")
    A(f"v_readfirstlane_b32 {s(sT0)}, v15")
    A(f"s_and_b32 {s(sT0)}, {s(sT0)}, 0xff")
    A(f"s_cmp_ge_u32 {s(sT0)}, 32")
    A(f"s_cbranch_scc1 {Lci}")
    A(f"s_mov_b32 {s(sT2)}, {D_CHECKIN*4}")
    A(f"s_mov_b32 {s(sT3)}, 0")
    wait_byte(A, vTmp, vZero, sT2, sT3, 32, "hqci", sleep=4)
    A.label(Lci)
    flag_store()
    A.label(Lnf1)
    stamp(A, 3)
    for b in range(16):
        blk = qb[b]
        if b == 0:
            pass
        if b + nq0 < 16:
            nb_ = qb[b + nq0]
        vq.wait(('B', id(blk)))
        buf = (b & 1) * STG_BUF
        A(f"ds_write_b128 {v(vST)}, {reg(blk['raw'],4)} offset:{buf}")
        A(f"ds_write_b128 {v(vST)}, {reg(off(blk['raw'],4),4)} offset:{buf + stage_addr(16)}")
        for i in range(4):
            A(f"ds_read_b64_tr_b16 {reg(off(blk['dst'],2*i),2)}, {v(blk['vtr'])} offset:{buf + blk['imm'][i]}")
        if b + nq0 < 16:
            for k in range(2):
                A(f"s_mov_b32 {s(sT0)}, {nb_['soff'][k]:#x}")
                vq.issue(('B', id(nb_)), f"buffer_load_dwordx4 {reg(off(nb_['raw'], 4*k), 4)}, {v(nb_['voff'])}, {s(nb_['srd'],4)}, {s(sT0)} offen")
    A("s_waitcnt lgkmcnt(0)")
    stamp(A, 2)
    if opts.get('xatt'):
        from gen_xatt import xatt_setup, xatt_task
        xatt_setup(A, xg, sH)
    A(f"s_add_u32 {s(sNext)}, {s(sSeg)}, 5")
    xg.issue_x(sNext)
    xg.body(mf_q, wpos=opts.get('wpos', 9))
    A.nop(12)
    store_ct(ACC, sSegOff, WS_QX, XF)
    xg.toggle()
    A(f"s_waitcnt vmcnt(0) lgkmcnt(0)")
    A(f"s_barrier")
    A(f"s_mov_b32 {s(sXa)}, {s(sSeg)}")
    A(f"s_mov_b32 {s(sSeg)}, {s(sNext)}")

    Lloop = A.new_label("hq_loop")
    Lnoq = A.new_label("hq_noq")
    Lnoflag = A.new_label("hq_noflag")
    A.label(Lloop)
    A(f"s_add_u32 {s(sNext)}, {s(sSeg)}, 5")
    A(f"s_cmp_ge_u32 {s(sSeg)}, 64")
    A(f"s_cbranch_scc1 {Lnoq}")
    xg.issue_x(sNext)
    xg.body(lambda kk, f: (mf_k(kk, f), mf_v(kk, f), mf_q(kk, f)), wpos=opts.get('wpos', 9))
    A.nop(12)
    seg_offsets()
    store_kv()
    store_ct(ACC, sSegOff, WS_QX, XF)
    arm_km()
    xg.toggle()
    A(f"s_waitcnt vmcnt(0) lgkmcnt(0)")
    A(f"s_barrier")
    A(f"s_add_u32 {s(sCnt)}, {s(sCnt)}, 1")
    A(f"s_cmp_lg_u32 {s(sWAVE)}, 0")
    A(f"s_cbranch_scc1 {Lnoflag}")
    flag_store()
    A.label(Lnoflag)
    A.label(Lnoq)
    if opts.get('xatt'):
        xatt_task(A, xg, sH, sXa)
    A(f"s_mov_b32 {s(sXa)}, {s(sSeg)}")
    A(f"s_mov_b32 {s(sSeg)}, {s(sNext)}")
    A(f"s_cmp_lt_u32 {s(sXa)}, 64")
    A(f"s_cbranch_scc1 {Lloop}")
    stamp(A, 4)


def gen(opts):
    global PROF
    PROF = bool(opts.get('prof'))
    A = Asm()
    A.L.append(open("header.txt").read().rstrip("\n"))
    A.L.append(f"; @launch grid=(256,1,1) block=(256,1,1) lds={LDS_BYTES}")
    A.L.append('.amdgcn_target "amdgcn-amd-amdhsa--gfx950"')
    A.L.append(".text")
    A.L.append(f".globl {KNAME}")
    A.L.append(".p2align 8")
    A.L.append(f".type {KNAME},@function")
    A.label(KNAME)
    A(f"s_cmp_ge_u32 s2, 256")
    A(f"s_cbranch_scc1 L_exit")
    A(f"s_load_dwordx16 s[64:79], s[0:1], 0")
    A(f"s_load_dwordx8 s[80:87], s[0:1], 64")
    A(f"s_load_dwordx4 s[88:91], s[0:1], 96")
    A(f"s_and_b32 {s(sXCD)}, s2, 7")
    A(f"s_lshr_b32 {s(sIDX)}, s2, 3")
    A(f"v_lshrrev_b32 v1, 6, v0")
    A(f"s_mov_b32 {s(sDEAD)}, 0")
    A(f"v_readfirstlane_b32 {s(sWAVE)}, v1")
    A(f"s_waitcnt lgkmcnt(0)")
    mk_srd(A, S_WS, P_WS, WS_SIZE)
    mk_srd(A, S_DBG, P_DBG, 256)
    mk_srd(A, S_X, P_X, 2048 * 1024)
    if PROF:
        for i in range(10):
            A(f"s_mov_b32 {s(sSTAMP+i)}, 0")
    stamp(A, 0)
    A(f"s_cmp_eq_u32 {s(sXCD)}, 0")
    A(f"s_cbranch_scc1 L_chain")
    A(f"s_cmp_lt_u32 {s(sXCD)}, 3")
    A(f"s_cbranch_scc1 L_out")
    if opts.get('hq', True):
        gen_hq(A, opts)
    A(f"s_branch L_role_end")
    A.label("L_chain")
    if opts.get('clkprobe'):
        A("s_memrealtime s[44:45]")
        A("s_waitcnt lgkmcnt(0)")
        for i in range(1, 9):
            L = A.new_label("cp")
            A(f"s_add_u32 s46, s44, {i*500}")
            A.label(L)
            A("s_memrealtime s[48:49]")
            A("s_waitcnt lgkmcnt(0)")
            A("s_sub_u32 s50, s48, s46")
            A("s_cmp_lt_i32 s50, 0")
            A(f"s_cbranch_scc1 {L}")
            stamp_clk(A, i)
    if opts.get('chain'):
        if opts.get('cv', 5) == 4:
            from gen_chain4 import gen_chain
        else:
            from gen_chain5 import gen_chain
        gen_chain(A, opts)
    A(f"s_branch L_role_end")
    A.label("L_out")
    if opts.get('out'):
        from gen_out import gen_out
        gen_out(A, opts)
    A.label("L_role_end")
    stamp(A, 9)
    A.label("L_flush")
    stamp_flush(A)
    A.label("L_exit")
    A("s_endpgm")
    A.L.append(f""".section .rodata,"a"
.p2align 6
.amdhsa_kernel {KNAME}
  .amdhsa_next_free_vgpr 512
  .amdhsa_next_free_sgpr 102
  .amdhsa_accum_offset 256
  .amdhsa_group_segment_fixed_size 0
  .amdhsa_kernarg_size 112
  .amdhsa_user_sgpr_count 2
  .amdhsa_user_sgpr_kernarg_segment_ptr 1
  .amdhsa_system_sgpr_workgroup_id_x 1
.end_amdhsa_kernel""")
    return A.text()


def main():
    opts = {}
    outp = sys.argv[1]
    for o in sys.argv[2:]:
        if "=" in o:
            k, val = o.split("=")
            opts[k] = int(val)
        else:
            opts[o] = True
    open(outp, "w").write(gen(opts))


if __name__ == "__main__":
    import gen as _g
    _g.main()
```

```python
from dsl import *
import gen as G
from gen import *

QK_OFF, O_OFF, MEM_OFF, KX_OFF, VX_OFF, WO_OFF = 0, 4096, 8192, 16384, 24576, 32768

vL16, vKw, vIdx, vQKw, vQKr, vOw, vMw, vWo, vPst, vRed, vMst, vPf, vFlag, vJunk = range(14)
vT0, vT1 = 14, 15
vSEL = 16
vVM1, vKr, vONE = 20, 21, 22
vBM = 26
vS0, vIdxW = 30, 31
KIMG = [2048, 3072, 6144, 7168]
X = 32
Y = 64
PA = 96
ACC = 112
sH, sS, sSlotP, sSlotP1, sSlotP4, sSlotM, sKM, sKV, sC, sNC, sRet = range(44, 55)
sRa0, sRa2, sFastF = 55, 56, 57
sMLo, sMHi = 58, 60
sU = 76
sFo, sNeed, sJ4, sCn, sPf, sGat, sKn, sM0K, sM0V = 78, 79, 80, 81, 84, 85, 86, 87, 88
sW1k, sRaM, sRaA, sFb, sPfb, sW2k = 64, 65, 66, 67, 68, 69
sPc2, sPc3 = 70, 71
sRo, sRm = 72, 89
sPc = [sSlotP, sSlotP1, sPc2, sPc3]
sTag = 55
vTagE = vPf
sCP0, sCP1 = 82, 83
OOB = 0x40000000
RED_LIMIT = 1 << 16

LOG2E = 1.4426950408889634
WPOL = ["", " nt", " sc1", " sc0 sc1", " sc1 nt", " sc0", " sc0 nt", " sc0 sc1 nt"]
SCALE_C = (128 ** -0.5) * LOG2E


def f32_hex(x):
    import struct
    return struct.unpack("<I", struct.pack("<f", x))[0]


RT = False
LATE = [False]
CSTEP = [39]


TRACE = [False]


def lstamp(A, i, late=None):
    if TRACE[0]:
        if i <= 8:
            A(f"s_memtime s[{16 + 2 * (i - 1)}:{17 + 2 * (i - 1)}]")
        return
    L = A.new_label("ls")
    if late is None:
        late = i >= 8
    A(f"s_cmp_lg_u32 {s(sS)}, {CSTEP[0] + 1 if late else CSTEP[0]}")
    A(f"s_cbranch_scc1 {L}")
    r = 16 + 2 * (i - 1) if i < 9 else 62
    A(f"{'s_memrealtime' if RT else 's_memtime'} s[{r}:{r+1}]")
    A.label(L)


import re as _re


def _regs(tok):
    tok = tok.strip().rstrip(',')
    m = _re.match(r'^([va])\[(\d+):(\d+)\]$', tok)
    if m:
        return {(m.group(1), i) for i in range(int(m.group(2)), int(m.group(3)) + 1)}
    m = _re.match(r'^([va])(\d+)$', tok)
    if m:
        return {(m.group(1), int(m.group(2)))}
    return set()


def _all_regs(line):
    r = set()
    for tok in _re.findall(r'[va]\[\d+:\d+\]|\b[va]\d+\b', line):
        r |= _regs(tok)
    return r


def gap_reorder(lines, report=False):
    out = []
    i = 0
    n = len(lines)
    issm = lambda x: x.strip().startswith('v_smfmac')
    while i < n:
        out.append(lines[i])
        if issm(lines[i]):
            j = i + 1
            gap = []
            while j < n and not issm(lines[j]) and not lines[j].endswith(':') and not lines[j].strip().startswith(('s_cbranch', 's_branch', 'v_mfma', 's_nop', 's_memtime', 's_memrealtime', 's_cmp')):
                gap.append(lines[j])
                j += 1
            if j < n and issm(lines[j]):
                changed = True
                while changed:
                    changed = False
                    for k in range(len(gap) - 1):
                        a_, b_ = gap[k].strip(), gap[k + 1].strip()
                        if a_.startswith('v_') and not b_.startswith('v_') and 'vcc' not in a_ and 'exec' not in b_:
                            if not (_all_regs(a_) & _all_regs(b_)):
                                gap[k], gap[k + 1] = gap[k + 1], gap[k]
                                changed = True
                nv = sum(1 for g in gap if g.strip().startswith('v_'))
                no = len(gap) - nv
                lastv = all(not gap[k].strip().startswith('v_') or gap[k + 1].strip().startswith('v_') for k in range(len(gap) - 1))
                if report and (nv > 1 or (nv and no > 2) or no > 3 or not lastv):
                    print("gap over budget:", [g.strip()[:40] for g in gap])
            out.extend(gap)
            i = j
            continue
        i += 1
    return out


def gen_step(A, fast, opts):
    i0 = len(A.L)
    gen_step_raw(A, fast, opts)
    if opts.get('reord', 1):
        A.L[i0:] = gap_reorder(A.L[i0:], report=fast and opts.get('report'))


def gen_step_raw(A, fast, opts):
    st = "" if fast else " sc1"
    tag = "f" if fast else "s"
    Lown = [f"L_own0_{tag}", f"L_own1_{tag}"]
    Lcommon = f"L_common_{tag}"
    Llast = f"L_last_{tag}"
    lq = Q(A, "lgkmcnt", 15)
    cp = opts.get('cprof') or opts.get('trace')
    rp = opts.get('rprof')
    AQ, AV, AK = ACC, ACC + 8, Y + 24
    CQ, CK = AQ + 2, AK + 2
    H0, H1 = X + 16, X + 24
    AO = Y
    KXR = {0: X + 16, 4: X + 20, 1: X + 24, 5: X + 28, 2: X, 6: X + 4, 3: X + 8, 7: X + 12}
    RB = [X, X + 8, PA, PA + 8]
    RIDX = {0: 0, 1: 1, 4: 2, 5: 3, 6: 4, 7: 5}

    def WB(m, jj, t):
        if m == 'q':
            return a(16 * jj + 8 * t, 8)
        if jj in (2, 3):
            return v(RB[2 * (jj - 2) + t], 8)
        return (a if m == 'k' else v)(128 + 16 * RIDX[jj] + 8 * t, 8)

    def rdR(m, b, half):
        fi = (0 if m == 'k' else 4) + b
        lq.issue(('R', m, b), f"ds_read_b128 {v(RB[b] + 4*half, 4)}, {v(vWo)} offset:{fi * 2048 + 1024 * half}")
    AC = {'q': AQ, 'k': AK, 'v': AV}
    vA = [None, vT0, vT1, vS0]

    def smf(m, jj, t, areg):
        if m != 'q' and jj in (2, 3):
            lq.wait(('R', m, 2 * (jj - 2) + t))
        A(f"v_smfmac_f32_16x16x64_bf16 {v(AC[m] + 4*t, 4)}, {v(areg, 4)}, {WB(m, jj, t)}, {v(vIdx)}")

    def rdKX(j):
        lq.issue(('KX', j), f"ds_read_b128 {v(KXR[j],4)}, {v(vL16)} offset:{KX_OFF + j*1024}")

    salu = [
        f"s_and_b32 {s(sT4)}, {s(sS)}, 3",
        f"s_lshl_b32 {s(sSlotM)}, {s(sT4)}, 13",
        f"s_add_u32 {s(sSlotM)}, {s(sSlotM)}, {WS_M:#x}",
        f"s_add_u32 {s(sGat)}, {s(sSlotM)}, {s(sW2k)}",
        f"s_xor_b32 {s(sRa2)}, {s(sSlotM)}, 0x4000",
        f"s_xor_b32 {s(sTag)}, {s(sTag)}, 1",
    ]

    def su(n):
        for _ in range(n):
            if salu:
                A(salu.pop(0))

    Lar = f"L_top_{tag}"
    Lspec = f"L_spec_{tag}"
    Lretry0 = f"L_retry0_{tag}"
    rt = opts.get('rtrace')

    def rstamp(k):
        if rt:
            A(f"s_memtime s[{16 + 2*k}:{17 + 2*k}]")

    def con_issue(R):
        A(f"buffer_load_dwordx4 {v(R,4)}, {v(vL16)}, {s(S_WS,4)}, {s(sGat)} offen sc1")
        A(f"buffer_load_dwordx4 {v(R+4,4)}, {v(vL16)}, {s(S_WS,4)}, {s(sGat)} offen offset:1024 sc1")

    def own(H, spec):
        lq.ops = []
        n = 0
        c0 = Y
        for m in 'qkv':
            for jj in range(2):
                for t in range(2):
                    n += 1
                    smf(m, jj, t, H + 4 * jj)
                    if spec and n == 1:
                        A(f"v_max3_u32 {v(c0)}, {v(H)}, {v(H+2)}, {v(H+4)}")
                    elif spec and n == 2:
                        A(f"v_max_u32 {v(c0)}, {v(c0)}, {v(H+6)}")
                    elif spec and n == 3:
                        A(f"v_cmp_eq_u32 vcc, -1, {v(c0)}")
                        A(f"s_add_u32 {s(sRet)}, {s(sRet)}, 1")
                        A(f"s_cbranch_vccnz {Lretry0}")
                    elif n == 4:
                        A(f"s_waitcnt lgkmcnt(0)")
                        A(f"s_barrier")
                    elif 5 <= n <= 10:
                        j2 = n - 5 + 2
                        lq.issue(('A', j2), f"ds_read_b128 {v(AO + 4*(j2-2), 4)}, {v(vA[j2 >> 1])} offset:{(j2 & 1) * 1024}")
                    elif n == 11:
                        A(f"s_mov_b32 m0, {s(sM0V)}")
                        A(f"s_add_u32 {s(sT3)}, {s(sKV)}, 8192")
                        rdR('k', 0, 0)
                    elif n == 12:
                        A(f"buffer_load_dwordx4 {v(vL16)}, {s(S_WS,4)}, {s(sT3)} offen lds")
                        rdR('k', 0, 1)
    A.label(Lar)
    A(f"s_barrier")
    if cp:
        lstamp(A, 8)
    rstamp(5)
    for k in range(1, 4):
        A(f"v_xor_b32 {v(vA[k])}, {k << 11:#x}, {v(vMw)}")
    A(f"s_mov_b32 {s(sRet)}, 0")
    for _ in range(opts.get('gdelay', 0)):
        A(f"s_sleep 1")
    con_issue(H0)
    for _ in range(opts.get('gspace', 1)):
        A(f"s_sleep 1")
    con_issue(H1)
    A.label(Lspec)
    A(f"s_waitcnt vmcnt(2)")
    if rt:
        rstamp(6)
    A(f"ds_write_b128 {v(vMw)}, {v(H0,4)}")
    A(f"ds_write_b128 {v(vMw)}, {v(H0+4,4)} offset:1024")
    if cp:
        lstamp(A, 9)
        lstamp(A, 1)
    if rt:
        A("s_memtime s[30:31]")
    own(H0, True)
    A.label(Lcommon)
    n = 12
    for jj in range(2, 8):
        for t in range(2):
            n += 1
            if t == 0:
                lq.wait(('A', jj))
            smf('q', jj, t, AO + 4 * (jj - 2))
            if n == 13:
                A(f"buffer_load_dwordx4 {v(vL16)}, {s(S_WS,4)}, {s(sT3)} offen offset:1024 lds")
                rdR('k', 1, 0)
            elif n == 14:
                A(f"buffer_load_dword {v(vFlag)}, off, {s(S_WS,4)}, {s(sFo)} sc1")
                rdR('k', 1, 1)
            elif n == 15:
                if not opts.get('nopf'):
                    A(f"buffer_load_dword {v(vJunk)}, {v(vPf)}, {s(S_WS,4)}, {s(sPf)} offen")
                rdR('k', 2, 0)
            elif n == 16:
                A(f"s_add_u32 {s(sT3)}, {s(sPf)}, 4096")
                rdR('k', 2, 1)
            elif n == 17:
                if not opts.get('nopf'):
                    A(f"buffer_load_dword {v(vJunk)}, {v(vPf)}, {s(S_WS,4)}, {s(sT3)} offen")
                rdR('k', 3, 0)
                su(1)
            elif n == 18:
                A(f"s_waitcnt vmcnt(5)")
                rdR('k', 3, 1)
                su(1)
            elif 19 <= n <= 22:
                rdKX((0, 4, 1, 5)[n - 19])
                su(1)
            else:
                su(3)
    if cp and not rp:
        lstamp(A, 2)

    def post(m, step):
        t, k = step // 3, step % 3
        T = AC[m] + 4 * t
        if k < 2:
            A(f"v_add_f32 {v(T + k)}, {v(T + k)}, {v(T + k + 2)}")
        else:
            d = {'q': CQ + t, 'k': CK + t, 'v': (vS0, vVM1)[t]}[m]
            A(f"v_cvt_pk_bf16_f32 {v(d)}, {v(T)}, {v(T + 1)}")
    for jj in range(2, 8):
        for t in range(2):
            n += 1
            smf('k', jj, t, AO + 4 * (jj - 2))
            if n == 31:
                lq.issue('wq', f"ds_write2st64_b32 {v(vQKw)}, {v(CQ)}, {v(CQ+1)} offset0:0 offset1:1")
            elif n == 33:
                A(f"s_mov_b32 m0, {s(sM0K)}")
                A(f"s_add_u32 {s(sKn)}, {s(sKn)}, 0x80000")
            elif n == 35:
                lq.wait('wq')
                A(f"s_barrier")
            if 26 <= n <= 30:
                rdR('v', (n - 26) >> 1, (n - 26) & 1)
            elif n in (32, 33, 34):
                rdR('v', (n - 27) >> 1, (n - 27) & 1)
            if n in (31, 32):
                su(1)
            if 25 <= n <= 30:
                post('q', n - 25)
            elif n >= 33:
                A(f"v_mov_b64 {v(ACC + 2*(n - 33), 2)}, 0")
    assert not salu
    if cp and not rp:
        lstamp(A, 3)
    QR, KR = Y, Y + 16

    def trq(i):
        ks, hf = i >> 1, i & 1
        lq.issue(('q', ks), f"ds_read_b64_tr_b16 {v(QR+4*ks+2*hf,2)}, {v(vQKr)} offset:{QK_OFF + (32*ks+8*hf)*16}")

    def trk(i):
        ks, hf = i >> 1, i & 1
        lq.issue(('k', ks), f"ds_read_b64_tr_b16 {v(KR+4*ks+2*hf,2)}, {v(vKr)} offset:{KIMG[ks] + hf*256}")
    trq_at = {38: 0, 39: 1, 40: 2, 41: 3, 42: 4, 44: 5, 45: 6, 46: 7}
    for jj in range(2, 8):
        for t in range(2):
            n += 1
            smf('v', jj, t, AO + 4 * (jj - 2))
            if n in trq_at:
                trq(trq_at[n])
            if 39 <= n <= 42:
                rdKX((2, 6, 3, 7)[n - 39])
            if n == 43:
                lq.issue('wk', f"ds_write2st64_b32 {v(vKw)}, {v(CK)}, {v(CK+1)} offset0:0 offset1:2")
            elif n == 44:
                A(f"buffer_store_dword {v(CK)}, {v(vQKw)}, {s(S_WS,4)}, {s(sKM)} offen sc1")
            elif n == 45:
                A(f"buffer_store_dword {v(CK+1)}, {v(vQKw)}, {s(S_WS,4)}, {s(sKM)} offen offset:256 sc1")
            elif n == 47:
                lq.wait('wk')
                A(f"s_barrier")
                trk(0)
            elif n == 48:
                trk(1)
                A(f"buffer_load_dwordx4 {v(vL16)}, {s(S_WS,4)}, {s(sKn)} offen lds")
            if 37 <= n <= 42:
                post('k', n - 37)
    if cp and not rp:
        lstamp(A, 4)
    T0, T1, TM = PA, PA + 4, PA + 8
    m, t_ = vT0, vT1
    wo_ops = [(cg, 0) for cg in range(4)] + [(cg, ks) for cg in range(4) for ks in range(1, 4)]
    bufs = [X + 16, X + 24, X, X + 8, Y, Y + 8, Y + 16, Y + 24]

    WOR = [a(224, 8), a(232, 8), a(240, 8), a(248, 8), v(224, 8), v(232, 8), v(240, 8), v(248, 8)]

    def rdW(i, half):
        o = (8 + i) * 2048 + 1024 * half
        lq.issue(('W', i), f"ds_read_b128 {v(bufs[i] + 4*half, 4)}, {v(vWo)} offset:{o}")
    for i in range(8):
        ks, t = i >> 1, i & 1
        if i in (0, 4):
            lq.wait(('q', ks + 1))
        T = (T0, T1)[t]
        c = "0" if ks == 0 else v(T, 4)
        A(f"v_mfma_f32_16x16x32_bf16 {v(T,4)}, {v(KXR[4*t+ks],4)}, {v(QR+4*ks,4)}, {c}")
        if i == 0:
            A(f"buffer_load_dwordx4 {v(vL16)}, {s(S_WS,4)}, {s(sKn)} offen offset:1024 lds")
        if i <= 5:
            trk(i + 2)
            post('v', i)
        elif i == 6:
            A(f"buffer_store_dword {v(vS0)}, {v(vQKw)}, {s(S_WS,4)}, {s(sKM)} offen offset:2048 sc1")
            A(f"buffer_store_dword {v(vVM1)}, {v(vQKw)}, {s(S_WS,4)}, {s(sKM)} offen offset:2304 sc1")
    A(f"s_cmp_eq_u32 {s(sS)}, 63")
    A(f"s_cbranch_scc1 {Llast}")
    for ks in range(4):
        if ks in (0, 2):
            lq.wait(('k', ks + 1))
        cm = "0" if ks == 0 else v(TM, 4)
        A(f"v_mfma_f32_16x16x32_bf16 {v(TM,4)}, {v(KR+4*ks,4)}, {v(QR+4*ks,4)}, {cm}")
        rdW(ks >> 1, ks & 1)
        if ks == 1:
            A(f"v_max3_f32 {v(m)}, {v(T0)}, {v(T0+1)}, {v(T0+2)}")
        elif ks == 2:
            A(f"v_max3_f32 {v(t_)}, {v(T0+3)}, {v(T1)}, {v(T1+1)}")
        elif ks == 3:
            A(f"v_max3_f32 {v(m)}, {v(m)}, {v(T1+2)}, {v(T1+3)}")
    ralate = 1

    def rearm(k, now=False):
        if now and k == 2:
            A(f"buffer_store_dwordx4 {v(vSEL,4)}, {v(vMst)}, {s(S_WS,4)}, {s(sRa2)} offen{st}")
    VX0 = Y + 16
    u0, u1 = TM + 2, TM + 3
    A(f"s_waitcnt vmcnt(9)")
    lq.issue('vx', f"ds_read_b128 {v(VX0,4)}, {v(vMw)} offset:{VX_OFF - MEM_OFF}")
    lq.issue('vx', f"ds_read_b128 {v(VX0+4,4)}, {v(vMw)} offset:{VX_OFF - MEM_OFF + 1024}")
    rdW(2, 0)
    rdW(2, 1)
    A(f"v_mov_b64 {v(ACC+10,2)}, 0")
    A(f"v_max3_f32 {v(m)}, {v(m)}, {v(t_)}, {v(TM)}")
    A(f"v_max_f32 {v(u0)}, {v(m)}, {v(TM+1)}")
    A(f"v_max_f32 {v(u1)}, {v(m)}, {v(TM+1)}")
    rdW(3, 0)
    A(f"v_mov_b64 {v(ACC+8,2)}, 0")
    A(f"v_permlane16_swap_b32 {v(u0)}, {v(u1)}")
    A(f"v_max_f32 {v(m)}, {v(u0)}, {v(u1)}")
    A(f"v_max_f32 {v(t_)}, {v(u0)}, {v(u1)}")
    rdW(3, 1)
    A(f"s_nop 0")
    A(f"v_permlane32_swap_b32 {v(m)}, {v(t_)}")
    A(f"v_max_f32 {v(m)}, {v(m)}, {v(t_)}")
    A(f"v_mul_f32 {v(m)}, {s(sNC)}, {v(m)}")
    BX = ACC + 12
    xs = [T0, T0 + 1, T0 + 2, T0 + 3, T1, T1 + 1, T1 + 2, T1 + 3]
    ms = [TM, TM + 1]
    if opts.get('pk', 1):
        def pkf(r):
            A(f"v_pk_fma_f32 {v(r,2)}, {v(r,2)}, {s(sC,2)}, {v(m,2)} op_sel_hi:[1,0,0]")
        pkf(T0)
        pkf(T0 + 2)
        for j in range(8):
            A(f"v_exp_f32 {v(xs[j])}, {v(xs[j])}")
            if j == 1:
                pkf(T1)
            elif j == 3:
                pkf(T1 + 2)
            elif j == 5:
                pkf(TM)
            if j >= 2 and j % 2 == 0:
                q = (j - 2) // 2
                A(f"v_cvt_pk_bf16_f32 {v(BX+q)}, {v(xs[2*q])}, {v(xs[2*q+1])}")
    else:
        for r in xs[:2]:
            A(f"v_fma_f32 {v(r)}, {v(r)}, {s(sC)}, {v(m)}")
        for j in range(8):
            A(f"v_exp_f32 {v(xs[j])}, {v(xs[j])}")
            nx = (xs + ms)[j + 2]
            A(f"v_fma_f32 {v(nx)}, {v(nx)}, {s(sC)}, {v(m)}")
            if j >= 2 and j % 2 == 0:
                q = (j - 2) // 2
                A(f"v_cvt_pk_bf16_f32 {v(BX+q)}, {v(xs[2*q])}, {v(xs[2*q+1])}")
    A(f"v_exp_f32 {v(ms[0])}, {v(ms[0])}")
    A(f"v_cvt_pk_bf16_f32 {v(BX+3)}, {v(xs[6])}, {v(xs[7])}")
    A(f"v_exp_f32 {v(ms[1])}, {v(ms[1])}")
    if cp and not rp:
        lstamp(A, 5)
    O0, O1, LS, PKO = PA, PA + 4, PA + 12, PA + 8
    lq.wait('vx')
    A(f"v_mfma_f32_16x16x32_bf16 {v(LS,4)}, {v(vONE,4)}, {v(BX,4)}, 0")
    A(f"v_cvt_pk_bf16_f32 {v(vBM)}, {v(ms[0])}, {v(ms[1])}")
    A(f"v_mfma_f32_16x16x32_bf16 {v(O0,4)}, {v(VX0,4)}, {v(BX,4)}, 0")
    rdW(4, 0)
    A(f"v_mfma_f32_16x16x32_bf16 {v(O1,4)}, {v(VX0+4,4)}, {v(BX,4)}, 0")
    A(f"v_mfma_f32_16x16x32_bf16 {v(LS,4)}, {v(vONE,4)}, {v(vBM,4)}, {v(LS,4)}")
    A(f"v_mfma_f32_16x16x32_bf16 {v(O0,4)}, {v(vS0,4)}, {v(vBM,4)}, {v(O0,4)}")
    A(f"v_mov_b64 {v(ACC+12,2)}, 0")
    A(f"v_mfma_f32_16x16x32_bf16 {v(O1,4)}, {v(vVM1,4)}, {v(vBM,4)}, {v(O1,4)}")
    rdW(4, 1)
    A(f"v_rcp_f32 {v(m)}, {v(LS)}")
    rdW(5, 0)
    A(f"v_mov_b64 {v(ACC+14,2)}, 0")
    if opts.get('pk', 1):
        def pkm(r):
            A(f"v_pk_mul_f32 {v(r,2)}, {v(r,2)}, {v(m,2)} op_sel_hi:[1,0]")
        pkm(O0)
        pkm(O0 + 2)
        pkm(O1)
        A(f"v_cvt_pk_bf16_f32 {v(PKO)}, {v(O0)}, {v(O0+1)}")
        pkm(O1 + 2)
        A(f"v_cvt_pk_bf16_f32 {v(PKO+1)}, {v(O0+2)}, {v(O0+3)}")
    else:
        for r in range(4):
            A(f"v_mul_f32 {v(O0+r)}, {v(O0+r)}, {v(m)}")
        A(f"v_cvt_pk_bf16_f32 {v(PKO)}, {v(O0)}, {v(O0+1)}")
        A(f"v_cvt_pk_bf16_f32 {v(PKO+1)}, {v(O0+2)}, {v(O0+3)}")
        for r in range(4):
            A(f"v_mul_f32 {v(O1+r)}, {v(O1+r)}, {v(m)}")
    A(f"v_cvt_pk_bf16_f32 {v(PKO+2)}, {v(O1)}, {v(O1+1)}")
    A(f"v_cvt_pk_bf16_f32 {v(PKO+3)}, {v(O1+2)}, {v(O1+3)}")
    lq.issue('wo_', f"ds_write_b128 {v(vOw)}, {v(PKO,4)} offset:0")
    AOr = [PKO, PA, PA + 4, PA + 12]
    vAo = [None, vT0, vT1, vS0]
    for k in range(1, 4):
        A(f"v_xor_b32 {v(vAo[k])}, {k << 9:#x}, {v(vOw)}")
    if cp and not rp:
        lstamp(A, 6)

    def pack(cg, k):
        A(f"v_cvt_pk_bf16_f32 {v(ACC+4*cg+k)}, {v(ACC+4*cg+2*k)}, {v(ACC+4*cg+2*k+1)}")

    def tagp(cg):
        A(f"v_and_or_b32 {v(ACC+4*cg)}, {v(ACC+4*cg)}, -2, {s(sTag)}")

    def pstore(cg):
        A(f"buffer_store_dwordx2 {v(ACC+4*cg,2)}, {v(vPst)}, {s(S_WS,4)}, {s(sPc[cg]) if cg else 0} offen{st}")
    for i, (cg, ks) in enumerate(wo_ops):
        if ks:
            lq.wait(('Ao', ks))
        if i >= 8:
            lq.wait(('W', i - 8))
        A(f"v_smfmac_f32_16x16x64_bf16 {v(ACC+4*cg,4)}, {v(AOr[ks],4)}, {WOR[i] if i < 8 else v(bufs[i - 8],8)}, {v(vIdxW)}")
        if i == opts.get('obar', 1):
            lq.wait('wo_')
            A(f"s_barrier")
            for k in range(1, 4):
                lq.issue(('Ao', k), f"ds_read_b128 {v(AOr[k],4)}, {v(vAo[k])}")
        if i == 2:
            rdW(5, 1)
            rdW(6, 0)
        elif i == 3:
            rdW(6, 1)
            rdW(7, 0)
        elif i == 4:
            rdW(7, 1)
        pst = opts.get('pst', 1)
        if pst == 1:
            if i in (11, 14):
                pstore((i - 11) // 3)
            if i in (8, 11, 14):
                pack((i - 8) // 3, 0)
            elif i in (9, 12, 15):
                pack((i - 9) // 3, 1)
            elif i in (10, 13):
                tagp((i - 10) // 3)
        elif pst == 2:
            if i in (8, 11, 14):
                pack((i - 8) // 3, 0)
                pack((i - 8) // 3, 1)
            elif i in (9, 12, 15):
                tagp((i - 9) // 3)
            elif i in (10, 13):
                pstore((i - 10) // 3)
        elif pst == 3:
            if i in (8, 11, 14):
                pack((i - 8) // 3, 0)
            elif i in (9, 12, 15):
                pack((i - 9) // 3, 1)
                tagp((i - 9) // 3)
            elif i in (10, 13):
                pstore((i - 10) // 3)
    if pst == 1:
        tagp(2)
        pstore(2)
        A(f"s_nop 5")
    else:
        pstore(2)
        A(f"s_nop 6")
    pack(3, 0)
    pack(3, 1)
    tagp(3)
    pstore(3)
    if cp:
        lstamp(A, 7)
    Lnr = A.new_label("notred")

    def bookkeeping():
        A(f"s_add_u32 {s(sS)}, {s(sS)}, 1")
        A(f"s_add_u32 {s(sKM)}, {s(sKM)}, 0x20000")
        A(f"s_add_u32 {s(sKV)}, {s(sKV)}, 0x80000")
        A(f"s_add_u32 {s(sPf)}, {s(sPf)}, 0x80000")
        A(f"s_add_u32 {s(sJ4)}, {s(sJ4)}, 4")
        A(f"s_cmp_eq_u32 {s(sJ4)}, 20")
        A(f"s_cselect_b32 {s(sJ4)}, 0, {s(sJ4)}")
        A(f"s_addc_u32 {s(sCn)}, {s(sCn)}, 0")

    def bookkeeping2():
        A(f"s_add_u32 {s(sFo)}, {s(sFb)}, {s(sJ4)}")
        A(f"s_cmp_lt_u32 {s(sS)}, 62")
        A(f"s_cselect_b32 {s(sNeed)}, {s(sCn)}, 0")

    def zero_acc():
        for i in range(8):
            A(f"v_mov_b64 {v(ACC+2*i,2)}, 0")
        for i in range(4):
            A(f"v_mov_b64 {v(AK+2*i,2)}, 0")

    if opts.get('rbar', 1):
        A(f"s_barrier")
    A(f"s_cmp_lg_u32 {s(sWAVE)}, 0")
    A(f"s_cbranch_scc1 {Lnr}")
    Lred = A.new_label("red")
    Lredok = A.new_label("redok")
    RA = PA
    two = opts.get('rtwo', 0)

    if rt:
        A(f"s_memtime s[62:63]")
        A(f"s_lshl_b32 {s(sT0)}, {s(sH)}, 6")
        A(f"s_add_u32 {s(sT0)}, {s(sT0)}, {s(sS)}")
        A(f"s_lshl_b32 {s(sT0)}, {s(sT0)}, 6")
        A(f"s_add_u32 {s(sT0)}, {s(sT0)}, {WS_T + 0x10000:#x}")
        A(f"s_waitcnt lgkmcnt(0)")
        A(f"v_mov_b32 {v(vT0)}, s16")
        for k in range(1, 8):
            A(f"v_writelane_b32 {v(vT0)}, s{16 + 2*k}, {k}")
        A(f"v_writelane_b32 {v(vT0)}, s{sCP0}, 8")
        A(f"v_writelane_b32 {v(vT0)}, s{sRet}, 9")
        A(f"v_lshrrev_b32 {v(vT1)}, 2, {v(vL16)}")
        A(f"s_mov_b64 exec, 0x3ff")
        A(f"buffer_store_dword {v(vT0)}, {v(vT1)}, {s(S_WS,4)}, {s(sT0)} offen")
        A(f"s_mov_b64 exec, -1")
        A(f"s_mov_b32 s16, s62")
        A(f"s_mov_b32 {s(sCP0)}, 0")
    zero_acc()
    A(f"v_xor_b32 {v(vTagE)}, 1, {v(vTagE)}")
    bookkeeping()
    bookkeeping2()
    A(f"s_mov_b32 {s(sRet)}, 0")
    RS = [[X + 4 * i for i in range(8)], [Y + 4 * i for i in range(6)] + [PA + 8, PA + 12]]
    mode = opts.get('rmode', 1)

    def ld(R, i):
        A(f"buffer_load_dwordx4 {v(R[i],4)}, {v(vRed)}, {s(S_WS,4)}, {0 if i < 4 else s(sSlotP4)} offen offset:{(i%4)*1024} sc1")

    def chk(R, other, cnt, first=False):
        ys = [vT0, vT1, vS0, vT1, vS0, vT1, vS0, vT1]
        if rt:
            A(f"s_add_u32 {s(sCP0)}, {s(sCP0)}, 1")
        for i in range(8):
            A(f"s_waitcnt vmcnt({cnt(i)})")
            if first and i == 0:
                rstamp(2)
            if first and i == 7:
                rstamp(3)
            c = "0" if i == 0 else v(RA, 4)
            A(f"v_mfma_f32_16x16x32_bf16 {v(RA,4)}, {v(R[i],4)}, {v(vSEL,4)}, {c}")
            if other is not None:
                ld(other, i)
            A(f"v_bitop3_b32 {v(ys[i])}, {v(R[i])}, {v(R[i]+2)}, {v(vTagE)} bitop3:0x7e")
            if i in (2, 4, 6):
                A(f"v_or3_b32 {v(vT0)}, {v(vT0)}, {v(vT1)}, {v(vS0)}")
        A(f"v_bitop3_b32 {v(vT0)}, {v(vT0)}, {v(vT1)}, 1 bitop3:0xa8")
        A(f"v_cmp_ne_u32 vcc, 0, {v(vT0)}")
    for _ in range(opts.get('rdelay', 0)):
        A(f"s_sleep 1")
    rstamp(1)
    for i in range(8):
        ld(RS[0], i)
    Lrfail = A.new_label("rfail")
    if mode == 2:
        for _ in range(opts.get('rspace', 1)):
            A(f"s_sleep 1")
        for i in range(8):
            ld(RS[1], i)
        chk(RS[0], None, lambda i: 15 - i, True)
    elif mode == 1:
        chk(RS[0], RS[1], lambda i: 7, True)
    else:
        chk(RS[0], None, lambda i: 7 - i, True)
    A(f"s_cbranch_vccnz {Lrfail}")
    A.label(Lredok)
    rstamp(4)
    A(f"s_nop {3 if mode == 1 else 4}")
    A(f"v_cvt_pk_bf16_f32 {v(RA+4)}, {v(RA)}, {v(RA+1)}")
    A(f"v_cvt_pk_bf16_f32 {v(RA+5)}, {v(RA+2)}, {v(RA+3)}")
    A(f"buffer_store_dwordx2 {v(RA+4,2)}, {v(vMst)}, {s(S_WS,4)}, {s(sSlotM)} offen{st}")
    A(f"s_branch {Lar}")
    A.label(Lrfail)
    if mode == 0:
        for i in range(8):
            ld(RS[1], i)
    A.label(Lred)
    chk(RS[1], RS[0], lambda i: 7)
    A(f"s_cbranch_vccz {Lredok}")
    chk(RS[0], RS[1], lambda i: 7)
    A(f"s_cbranch_vccz {Lredok}")
    A(f"s_add_u32 {s(sRet)}, {s(sRet)}, 1")
    A(f"s_cmp_lg_u32 {s(sDEAD)}, 0")
    A(f"s_cbranch_scc1 {Lredok}")
    A(f"s_cmp_lt_u32 {s(sRet)}, {RED_LIMIT}")
    A(f"s_cbranch_scc1 {Lred}")
    A(f"s_mov_b32 {s(sDEAD)}, 1")
    A(f"s_branch {Lredok}")
    A.label(Lnr)
    Lfok = A.new_label("fok")
    Lfsp = A.new_label("fsp")
    A(f"s_mov_b32 {s(sRet)}, 0")
    A(f"s_waitcnt vmcnt(12)")
    A(f"v_readfirstlane_b32 {s(sT0)}, {v(vFlag)}")
    zero_acc()
    A(f"s_cmp_ge_u32 {s(sT0)}, {s(sNeed)}")
    A(f"s_cbranch_scc1 {Lfok}")
    A(f"s_cmp_lg_u32 {s(sDEAD)}, 0")
    A(f"s_cbranch_scc1 {Lfok}")
    A(f"s_mov_b32 {s(sRet)}, 0")
    A.label(Lfsp)
    A(f"buffer_load_dword {v(vFlag)}, off, {s(S_WS,4)}, {s(sFo)} sc1")
    A(f"s_waitcnt vmcnt(0)")
    A(f"v_readfirstlane_b32 {s(sT0)}, {v(vFlag)}")
    A(f"s_cmp_ge_u32 {s(sT0)}, {s(sNeed)}")
    A(f"s_cbranch_scc1 {Lfok}")
    A(f"s_sleep 1")
    A(f"s_add_u32 {s(sRet)}, {s(sRet)}, 1")
    A(f"s_cmp_lt_u32 {s(sRet)}, {SPIN_LIMIT}")
    A(f"s_cbranch_scc1 {Lfsp}")
    A(f"s_mov_b32 {s(sDEAD)}, 1")
    A.label(Lfok)
    if TRACE[0]:
        Lsl = A.new_label("tr")
        A(f"s_cmp_lg_u32 {s(sWAVE)}, {opts.get('tw', 1)}")
        A(f"s_cbranch_scc1 {Lsl}")
        A(f"s_lshl_b32 {s(sT0)}, {s(sH)}, 6")
        A(f"s_add_u32 {s(sT0)}, {s(sT0)}, {s(sS)}")
        A(f"s_lshl_b32 {s(sT0)}, {s(sT0)}, 5")
        A(f"s_add_u32 {s(sT0)}, {s(sT0)}, {WS_T + 0x10000:#x}")
        A(f"s_waitcnt lgkmcnt(0)")
        A(f"v_mov_b32 {v(vT0)}, s16")
        for k in range(1, 8):
            A(f"v_writelane_b32 {v(vT0)}, s{16 + 2*k}, {k}")
        A(f"v_lshrrev_b32 {v(vT1)}, 2, {v(vL16)}")
        A(f"s_mov_b64 exec, 0xff")
        A(f"buffer_store_dword {v(vT0)}, {v(vT1)}, {s(S_WS,4)}, {s(sT0)} offen")
        A(f"s_mov_b64 exec, -1")
        A.label(Lsl)
    if opts.get('steplog'):
        Lsl = A.new_label("sl")
        A(f"s_cmp_lg_u32 {s(sWAVE)}, 1")
        A(f"s_cbranch_scc1 {Lsl}")
        A(f"s_memrealtime s[62:63]")
        A(f"s_memtime s[16:17]")
        A(f"s_lshl_b32 {s(sT0)}, {s(sH)}, 6")
        A(f"s_add_u32 {s(sT0)}, {s(sT0)}, {s(sS)}")
        A(f"s_lshl_b32 {s(sT0)}, {s(sT0)}, 3")
        A(f"s_add_u32 {s(sT0)}, {s(sT0)}, {WS_T + 0x8000:#x}")
        A(f"s_waitcnt lgkmcnt(0)")
        A(f"v_mov_b32 {v(vT0)}, s62")
        A(f"v_mov_b32 {v(vT1)}, s16")
        A(f"s_mov_b64 exec, 1")
        A(f"buffer_store_dwordx2 {v(vT0,2)}, off, {s(S_WS,4)}, {s(sT0)}")
        A(f"s_mov_b64 exec, -1")
        A.label(Lsl)
    bookkeeping()
    bookkeeping2()
    rearm(2, True)
    A(f"s_branch {Lar}")
    A.label(Lretry0)
    A(f"s_nop 7")
    for i in range(4):
        A(f"v_mov_b64 {v(AQ+2*i,2)}, 0")
    con_issue(H0)
    A(f"s_waitcnt vmcnt(2)")
    A(f"ds_write_b128 {v(vMw)}, {v(H1,4)}")
    A(f"v_max3_u32 {v(Y)}, {v(H1)}, {v(H1+2)}, {v(H1+4)}")
    A(f"ds_write_b128 {v(vMw)}, {v(H1+4,4)} offset:1024")
    A(f"v_max_u32 {v(Y)}, {v(Y)}, {v(H1+6)}")
    A(f"v_cmp_eq_u32 vcc, -1, {v(Y)}")
    A(f"s_add_u32 {s(sRet)}, {s(sRet)}, 1")
    A(f"s_cbranch_vccz {Lown[1]}")
    con_issue(H1)
    A(f"s_cmp_lg_u32 {s(sDEAD)}, 0")
    A(f"s_cbranch_scc1 {Lown[1]}")
    A(f"s_cmp_lt_u32 {s(sRet)}, {RED_LIMIT}")
    A(f"s_cbranch_scc1 {Lspec}")
    A(f"s_mov_b32 {s(sDEAD)}, 1")
    A.label(Lown[1])
    own(H1, False)
    A(f"s_branch {Lcommon}")
    A.label(Llast)
    A(f"s_waitcnt vmcnt(0) lgkmcnt(0)")
    if cp and not TRACE[0]:
        for i in range(1, 10):
            A(f"s_mov_b32 s{92+i}, s{16+2*(i-1) if i < 9 else 62}")
        A(f"s_lshl_b32 {s(sCP1)}, {s(sCP1)}, 16")
        A(f"s_or_b32 s92, {s(sCP0)}, {s(sCP1)}")
        A("s_branch L_flush")
    A(f"s_branch L_role_end")


def gen_chain(A, opts):
    global RT
    RT = bool(opts.get('rt'))
    CSTEP[0] = opts.get('cstep', 39)
    TRACE[0] = bool(opts.get('trace'))
    vL = 13
    A(f"s_mov_b32 {s(sH)}, {s(sIDX)}")
    A(f"v_and_b32 {v(vL)}, 63, v0")
    mk_srd(A, S_A, P_WQ, 512 * 8192)
    mk_srd(A, S_B, P_WK, 512 * 8192)
    mk_srd(A, S_C, P_WV, 512 * 8192)
    mk_srd(A, S_D, P_WO, 4096 * 1024)
    A(f"v_lshlrev_b32 {v(vL16)}, 4, {v(vL)}")
    for i in range(4):
        A(f"v_mov_b32 {v(vSEL+i)}, -1")
    A(f"s_lshl_b32 {s(sT0)}, {s(sH)}, 13")
    A(f"s_lshl_b32 {s(sT1)}, {s(sWAVE)}, 11")
    A(f"s_add_u32 {s(sT0)}, {s(sT0)}, {s(sT1)}")
    nst = 0
    A(f"v_bfe_u32 {v(vT0)}, {v(vL)}, 4, 1")
    for i in range(4):
        A(f"v_xor_b32 {v(ACC+i)}, -1, {v(vT0)}")
    A(f"buffer_store_dwordx4 {v(ACC,4)}, {v(vL16)}, {s(S_WS,4)}, {s(sT0)} offen sc1")
    A(f"buffer_store_dwordx4 {v(ACC,4)}, {v(vL16)}, {s(S_WS,4)}, {s(sT0)} offen offset:1024 sc1")
    nst += 2
    vMre = 2
    A(f"s_lshl_b32 {s(sT2)}, {s(sH)}, 8")
    A(f"v_add_u32 {v(vT0)}, {s(sT2)}, {v(vL16)}")
    A(f"v_cmp_gt_u32 vcc, 16, {v(vL)}")
    A(f"v_mov_b32 {v(vT1)}, {OOB:#x}")
    A.nop(1)
    A(f"v_cndmask_b32 {v(vMre)}, {v(vT1)}, {v(vT0)}, vcc")
    for sl in range(4):
        A(f"s_mov_b32 {s(sT1)}, {WS_M + sl*8192:#x}")
        A(f"buffer_store_dwordx4 {v(vSEL,4)}, {v(vMre)}, {s(S_WS,4)}, {s(sT1)} offen sc1")
        nst += 1
    Z = 20
    for i in range(4):
        A(f"v_mov_b32 {v(Z+i)}, 0")
    A(f"v_cndmask_b32 {v(Z+4)}, {v(vT1)}, {v(vL16)}, vcc")
    A(f"s_lshl_b32 {s(sT1)}, {s(sH)}, 8")
    A(f"s_add_u32 {s(sT1)}, {s(sT1)}, {WS_OF:#x}")
    A(f"buffer_store_dwordx4 {v(Z,4)}, {v(Z+4)}, {s(S_WS,4)}, {s(sT1)} offen sc1")
    A(f"v_cmp_gt_u32 vcc, 8, {v(vL)}")
    A.nop(2)
    A(f"v_cndmask_b32 {v(Z+5)}, {v(vT1)}, {v(vL16)}, vcc")
    A(f"s_lshl_b32 {s(sT1)}, {s(sH)}, 7")
    A(f"s_add_u32 {s(sT1)}, {s(sT1)}, {WS_KVF:#x}")
    A(f"buffer_store_dwordx4 {v(Z,4)}, {v(Z+5)}, {s(S_WS,4)}, {s(sT1)} offen sc1")
    nst += 2

    vG, vGo, vSW, vSWo, vTRb, vTRo, vTA = 116, 117, 118, 122, 124, 125, 126
    POOL = [40, 72]
    TEMPS = [104, 32]
    sXo = sRo + 1
    A(f"s_lshl_b32 {s(sT0)}, {s(sH)}, 8")
    A(f"s_lshl_b32 {s(sT1)}, {s(sWAVE)}, 20")
    A(f"s_add_u32 {s(sT0)}, {s(sT0)}, {s(sT1)}")
    lane_expr(A, vG, vL, [(4, 2, 8192), (0, 4, 16)], sregs=[sT0])
    A(f"s_lshl_b32 {s(sT0)}, {s(sH)}, 17")
    A(f"s_lshl_b32 {s(sT1)}, {s(sWAVE)}, 8")
    A(f"s_add_u32 {s(sT0)}, {s(sT0)}, {s(sT1)}")
    lane_expr(A, vGo, vL, [(4, 2, 1024), (0, 4, 16)], sregs=[sT0])
    A(f"s_lshl_b32 {s(sXo)}, {s(sWAVE)}, 15")

    RIDX = {0: 0, 1: 1, 4: 2, 5: 3, 6: 4, 7: 5}
    wo_ops = [(cg, 0) for cg in range(4)] + [(cg, ks) for cg in range(4) for ks in range(1, 4)]
    WORR = [('a', 224), ('a', 232), ('a', 240), ('a', 248), ('v', 224), ('v', 232), ('v', 240), ('v', 248)]

    def qkv_unit(m, hp, x):
        u = dict(kind='qkv', m=m, hp=hp, x=x, srd={'q': S_A, 'k': S_B, 'v': S_C}[m], needs_temp=(m != 'q'))
        u['soff'] = [(64 * hp + 16 * x + 4 * (k & 3) + 32 * (k >> 2)) * 8192 for k in range(8)]
        return u

    def bind(u, temp):
        if u['kind'] == 'qkv':
            m, hp, x = u['m'], u['hp'], u['x']
            res = []
            for i in range(4):
                sl = hp + 2 * i
                for t_ in range(2):
                    if m == 'q':
                        res.append((('a', 16 * sl + 8 * t_ + 4 * x), None))
                    elif sl in (2, 3):
                        fi = (0 if m == 'k' else 4) + 2 * (sl - 2) + t_
                        res.append((('v', temp + 4 * t_), fi * 2048 + 1024 * x))
                    else:
                        res.append(((('a' if m == 'k' else 'v'), 128 + 16 * RIDX[sl] + 8 * t_ + 4 * x), None))
            u['raw'] = [r[0] for r in res]
            u['res'] = res
        else:
            u['raw'] = [('v', temp + 4 * k) for k in range(8)]

    def wo_unit(ks):
        return dict(kind='wo', ks=ks, srd=S_D, soff=[(32 * ks + 4 * k) * 1024 for k in range(8)])
    U = {f"O{k}": wo_unit(k) for k in range(4)}
    for m in 'qkv':
        for hp in range(2):
            for x in range(2):
                U[f"{m.upper()}{hp}{x}"] = qkv_unit(m, hp, x)
    order = {0: "O0 O1 Q00 Q01 Q10 Q11 O2 O3 K00 K01 K10 K11 V00 V01 V10 V11",
             1: "Q00 Q01 Q10 Q11 O0 O1 K00 K01 O2 O3 K10 K11 V00 V01 V10 V11",
             2: "K00 K01 Q00 Q01 Q10 Q11 O0 O1 K10 K11 O2 O3 V00 V01 V10 V11",
             3: "O0 O1 Q00 Q01 Q10 Q11 O2 O3 V00 V01 V10 V11 K00 K01 K10 K11"}[opts.get('word', 0)].split()
    units = [U[n] for n in order]
    vq = Q(A, "vmcnt", 63)
    vq.ops = ['st'] * nst
    free_pool = list(POOL)
    free_temp = list(TEMPS)
    wo_left = [4]
    held = {}
    WIN = opts.get('cwin', 56)
    st_ = dict(issued=0)

    def inflight():
        return len(vq.ops)

    def try_issue():
        while st_['issued'] < len(units):
            u = units[st_['issued']]
            limit = min(WIN + (nst if 'st' in vq.ops else 0), 62)
            if inflight() + 8 > limit:
                return
            if u['kind'] == 'wo':
                if not free_pool:
                    return
                tmp = free_pool.pop(0)
                held[id(u)] = ('pool', tmp)
            elif u['needs_temp']:
                if not free_temp:
                    return
                tmp = free_temp.pop(0)
                held[id(u)] = ('temp', tmp)
            else:
                tmp = None
            bind(u, tmp)
            for k in range(8):
                if u['kind'] == 'wo':
                    A(f"s_xor_b32 {s(sT0)}, {u['soff'][k]:#x}, {s(sXo)}")
                    vq.issue(id(u), f"buffer_load_dwordx4 {reg(u['raw'][k], 4)}, {v(vGo)}, {s(u['srd'],4)}, {s(sT0)} offen" + WPOL[opts.get('wnto', 0)])
                else:
                    A(f"s_mov_b32 {s(sT0)}, {u['soff'][k]:#x}")
                    vq.issue(id(u), f"buffer_load_dwordx4 {reg(u['raw'][k], 4)}, {v(vG)}, {s(u['srd'],4)}, {s(sT0)} offen" + WPOL[opts.get('wnt', 0)])
            st_['issued'] += 1
    stamp(A, 1) if not opts.get('cprof') else None
    try_issue()
    A(f"s_lshl_b32 {s(sT2)}, {s(sWAVE)}, 13")
    lane_expr(A, vSW, vL, [(4, 2, 256), (1, 3, 32), (0, 1, 16)], sregs=[sT2])
    A(f"v_mov_b32 {v(vSWo)}, {v(vSW)}")
    A(f"v_bfe_u32 {v(vTA)}, {v(vL)}, 4, 1")
    A(f"v_lshlrev_b32 {v(vT0)}, 5, {v(vTA)}")
    A(f"v_xor_b32 {v(vSW)}, {v(vSW)}, {v(vT0)}")
    A(f"v_lshlrev_b32 {v(vT0)}, 6, {v(vTA)}")
    A(f"v_xor_b32 {v(vSWo)}, {v(vSWo)}, {v(vT0)}")
    A(f"v_xor_b32 {v(vSW+1)}, 64, {v(vSW)}")
    A(f"v_xor_b32 {v(vSW+2)}, 0x80, {v(vSW)}")
    A(f"v_xor_b32 {v(vSW+3)}, 0xc0, {v(vSW)}")
    A(f"v_xor_b32 {v(vSWo+1)}, 0x80, {v(vSWo)}")
    A(f"s_lshl_b32 {s(sT3)}, {s(sWAVE)}, 6")
    lane_expr(A, vTRb, vL, [(2, 1, 256 + 32), (4, 1, 1024 + 64), (5, 1, 2048), (3, 1, 4096 + 128), (0, 2, 8)])
    A(f"v_xor_b32 {v(vTRb)}, {s(sT3)}, {v(vTRb)}")
    A(f"v_add_u32 {v(vTRb)}, {s(sT2)}, {v(vTRb)}")
    lane_expr(A, vTRo, vL, [(2, 1, 256 + 64), (4, 1, 4096 + 128), (5, 1, 1024), (3, 1, 32), (0, 2, 8)], sregs=[sT2])
    A(f"s_lshl_b32 {s(sT0)}, {s(sWAVE)}, 15")
    A(f"s_add_u32 {s(sT0)}, {s(sT0)}, {WO_OFF}")
    A(f"v_add_u32 {v(vWo)}, {s(sT0)}, {v(vL16)}")
    vq.wait('st')
    A(f"s_barrier")
    Lci = A.new_label("ci")
    A(f"s_cmp_lg_u32 {s(sWAVE)}, 0")
    A(f"s_cbranch_scc1 {Lci}")
    A(f"s_getreg_b32 {s(sT0)}, hwreg(HW_REG_XCC_ID, 0, 4)")
    A(f"s_mul_i32 {s(sT1)}, {s(sT0)}, {s(sT0)}")
    A(f"s_lshl_b32 {s(sT1)}, {s(sT1)}, 17")
    A(f"s_lshl_b32 {s(sT0)}, {s(sT0)}, 8")
    A(f"s_add_u32 {s(sT0)}, {s(sT0)}, {s(sT1)}")
    A(f"s_add_u32 {s(sT0)}, {s(sT0)}, 1")
    A(f"v_mov_b32 {v(vT0)}, {s(sT0)}")
    A(f"v_mov_b32 {v(vT1)}, 0")
    A(f"s_mov_b64 exec, 1")
    A(f"buffer_atomic_add {v(vT0)}, {v(vT1)}, {s(S_DBG,4)}, 0 offen offset:{D_CHECKIN*4} sc1")
    A(f"s_mov_b64 exec, -1")
    A.label(Lci)
    try_issue()
    A(f"s_lshr_b32 {s(sT3)}, {s(sH)}, 2")
    A(f"s_lshl_b32 {s(sT3)}, {s(sT3)}, 10")
    A(f"s_and_b32 {s(sT4)}, {s(sH)}, 1")
    A(f"s_lshl_b32 {s(sT4)}, {s(sT4)}, 9")
    A(f"s_add_u32 {s(sT3)}, {s(sT3)}, {s(sT4)}")
    A(f"s_and_b32 {s(sT4)}, {s(sH)}, 2")
    A(f"s_lshl_b32 {s(sT4)}, {s(sT4)}, 4")
    A(f"s_add_u32 {s(sT3)}, {s(sT3)}, {s(sT4)}")
    lane_expr(A, vMst, vL, [(5, 1, 256), (1, 2, 64), (0, 1, 16), (4, 1, 8)], sregs=[sT3])
    A(f"v_and_b32 {v(vT1)}, 8, {v(vL)}")
    A(f"v_lshlrev_b32 {v(vT1)}, 27, {v(vT1)}")
    A(f"v_add_u32 {v(vMst)}, {v(vMst)}, {v(vT1)}")
    A(f"s_cmp_eq_u32 {s(sWAVE)}, 0")
    Lw0 = A.new_label("w0")
    A(f"s_cbranch_scc1 {Lw0}")
    A(f"v_mov_b32 {v(vMst)}, {v(vMre)}")
    A(f"s_cmp_eq_u32 {s(sWAVE)}, 3")
    A(f"s_cbranch_scc1 {Lw0}")
    A(f"v_mov_b32 {v(vMst)}, {OOB:#x}")
    A.label(Lw0)
    for (dst, bit) in ((vIdx, 2), (vIdxW, 8)):
        A(f"v_mov_b32 {v(dst)}, 0x4444")
        A(f"v_mov_b32 {v(vT0)}, 0xeeee")
        A(f"v_and_b32 {v(vT1)}, {bit}, {v(vL)}")
        A(f"v_cmp_ne_u32 vcc, 0, {v(vT1)}")
        A.nop(2)
        A(f"v_cndmask_b32 {v(dst)}, {v(dst)}, {v(vT0)}, vcc")
    A(f"s_lshl_b32 {s(sT0)}, {s(sWAVE)}, 9")
    lane_expr(A, vQKw, vL, [(0, 4, 16), (4, 2, 4)], sregs=[sT0])
    A(f"s_lshl_b32 {s(sT0)}, {s(sWAVE)}, 10")
    A(f"s_lshr_b32 {s(sT1)}, {s(sWAVE)}, 1")
    A(f"s_lshl_b32 {s(sT1)}, {s(sT1)}, 11")
    A(f"s_add_u32 {s(sT0)}, {s(sT0)}, {s(sT1)}")
    lane_expr(A, vKw, vL, [(0, 4, 32), (4, 2, 8)], const=2048, sregs=[sT0])
    lane_expr(A, vKr, vL, [(5, 1, 512), (4, 1, 128), (2, 2, 32), (0, 2, 8)])
    lane_expr(A, vQKr, vL, [(5, 1, 256), (4, 1, 64), (2, 2, 16), (0, 1, 8)])
    A(f"s_lshl_b32 {s(sT0)}, {s(sWAVE)}, 9")
    lane_expr(A, vOw, vL, [(4, 2, 128), (0, 3, 16)], const=O_OFF, sregs=[sT0])
    A(f"s_lshl_b32 {s(sT0)}, {s(sWAVE)}, 11")
    A(f"s_add_u32 {s(sT0)}, {s(sT0)}, {MEM_OFF}")
    A(f"v_add_u32 {v(vMw)}, {s(sT0)}, {v(vL16)}")
    A(f"s_lshl_b32 {s(sT0)}, {s(sWAVE)}, 16")
    A(f"s_lshl_b32 {s(sT1)}, {s(sH)}, 8")
    lane_expr(A, vPst, vL, [(5, 1, 8192), (0, 4, 16), (4, 1, 8)], sregs=[sT0, sT1])
    A(f"s_lshl_b32 {s(sT0)}, {s(sH)}, 13")
    A(f"v_add_u32 {v(vRed)}, {s(sT0)}, {v(vL16)}")
    A(f"s_and_b32 {s(sT1)}, {s(sWAVE)}, 1")
    A(f"s_lshl_b32 {s(sT1)}, {s(sT1)}, 13")
    A(f"s_lshl_b32 {s(sT0)}, {s(sH)}, 14")
    A(f"s_add_u32 {s(sT0)}, {s(sT0)}, {s(sT1)}")
    A(f"v_lshlrev_b32 {v(vPf)}, 6, {v(vL)}")
    A(f"v_add_u32 {v(vPf)}, {s(sT0)}, {v(vPf)}")
    A(f"s_mov_b32 {s(sMLo)}, -1")
    A(f"s_mov_b32 {s(sMLo+1)}, 0")
    A(f"s_mov_b32 {s(sMHi)}, 0")
    A(f"s_mov_b32 {s(sMHi+1)}, -1")
    A(f"s_mov_b32 {s(sC)}, {f32_hex(SCALE_C):#x}")
    A(f"s_mov_b32 {s(sNC)}, {f32_hex(-SCALE_C):#x}")
    Lsel = A.new_label("sel")
    A(f"s_cmp_lg_u32 {s(sWAVE)}, 0")
    A(f"s_cbranch_scc1 {Lsel}")
    A(f"v_and_b32 {v(vT0)}, 15, {v(vL)}")
    A(f"v_mov_b32 {v(vS0)}, 0x3f80")
    A(f"v_mov_b32 {v(vT1)}, 0x3f800000")
    A(f"v_and_b32 v112, 1, {v(vT0)}")
    A(f"v_cmp_eq_u32 vcc, 1, v112")
    A.nop(2)
    A(f"v_cndmask_b32 {v(vS0)}, {v(vS0)}, {v(vT1)}, vcc")
    A(f"v_lshrrev_b32 {v(vT0)}, 1, {v(vT0)}")
    for i in range(4):
        A(f"v_cmp_eq_u32 vcc, {i}, {v(vT0)}")
        A.nop(2)
        A(f"v_cndmask_b32 {v(vSEL+i)}, 0, {v(vS0)}, vcc")
    A(f"v_bfe_u32 {v(vTagE)}, {v(vL)}, 4, 1")
    A(f"v_xor_b32 {v(vTagE)}, 1, {v(vTagE)}")
    A.label(Lsel)
    for i in range(4):
        A(f"v_mov_b32 {v(vONE+i)}, 0x3f803f80")
    for i in range(1, 4):
        A(f"v_mov_b32 {v(vBM+i)}, 0")

    for b, u in enumerate(units):
        assert st_['issued'] > b, "loader deadlock"
        vq.wait(id(u))
        A(f"s_barrier")
        if u['kind'] == 'qkv':
            for k in range(8):
                A(f"ds_write_b128 {v(vSW + (k & 1) + 2 * (k >> 2))}, {reg(u['raw'][k], 4)} offset:{k * 1024}")
            A(f"s_waitcnt lgkmcnt(0)")
            A(f"s_barrier")
            x = u['x']
            for i in range(4):
                for t_ in range(2):
                    r_, fin = u['res'][2 * i + t_]
                    A(f"v_xor_b32 {v(vTA + (t_ & 1))}, {(i << 13) | (t_ << 5):#x}, {v(vTRb)}")
                    for q0 in range(2):
                        A(f"ds_read_b64_tr_b16 {reg(off(r_, 2 * q0), 2)}, {v(vTA + (t_ & 1))} offset:{512 * q0}")
            A(f"s_waitcnt lgkmcnt(0)")
            for (r_, fin) in u['res']:
                if fin is not None:
                    A(f"ds_write_b128 {v(vWo)}, {reg(r_, 4)} offset:{fin}")
        else:
            ks = u['ks']
            for k in range(8):
                A(f"ds_write_b128 {v(vSWo + (k >> 2))}, {reg(u['raw'][k], 4)} offset:{k * 1024}")
            base = u['raw'][0][1]
            fins = []
            for cg in range(4):
                io = wo_ops.index((cg, ks))
                dst = WORR[io] if io < 8 else ('v', base + 8 * cg)
                A(f"v_xor_b32 {v(vTA + (cg & 1))}, {cg << 6:#x}, {v(vTRo)}")
                for i in range(4):
                    A(f"ds_read_b64_tr_b16 {reg(off(dst, 2 * i), 2)}, {v(vTA + (cg & 1))} offset:{(8 * (i >> 1) + 2 * (i & 1)) * 256}")
                if io >= 8:
                    fins.append((dst, io * 2048))
            A(f"s_waitcnt lgkmcnt(0)")
            for (dst, o) in fins:
                A(f"ds_write_b128 {v(vWo)}, {reg(dst, 4)} offset:{o}")
                A(f"ds_write_b128 {v(vWo)}, {reg(off(dst, 4), 4)} offset:{o + 1024}")
        if id(u) in held:
            kind, tmp = held[id(u)]
            A(f"s_waitcnt lgkmcnt(0)")
            if kind == 'pool':
                wo_left[0] -= 1
                if wo_left[0] >= 2:
                    free_pool.append(tmp)
                else:
                    free_temp.extend([tmp + 8 * j for j in range(4)])
            else:
                free_temp.append(tmp)
        if opts.get('prof') and not opts.get('cprof') and b in (0, 3, 7, 11):
            stamp(A, {0: 4, 3: 5, 7: 6, 11: 7}[b])
        try_issue()
    A("s_waitcnt lgkmcnt(0)")
    stamp(A, 2) if not opts.get('cprof') else None
    A(f"s_barrier")
    mk_srd(A, S_A, P_MEM0, 8192)
    A(f"s_lshl_b32 {s(sT0)}, {s(sWAVE)}, 8")
    lane_expr(A, vT0, vL, [(2, 2, 2048), (0, 1, 1024), (1, 1, 64), (4, 2, 16)], sregs=[sT0])
    A(f"buffer_load_dwordx4 {v(X+24,4)}, {v(vT0)}, {s(S_A,4)}, 0 offen")
    A(f"buffer_load_dwordx4 {v(X+28,4)}, {v(vT0)}, {s(S_A,4)}, 0 offen offset:128")
    A(f"s_waitcnt vmcnt(0)")
    A(f"ds_write_b128 {v(vMw)}, {v(X+24,4)}")
    A(f"ds_write_b128 {v(vMw)}, {v(X+28,4)} offset:1024")
    for i in range(16):
        A(f"v_mov_b32 {v(ACC+i)}, 0")
    for i in range(8):
        A(f"v_mov_b32 {v(Y+24+i)}, 0")
    A(f"s_lshl_b32 {s(sW2k)}, {s(sWAVE)}, 11")
    A(f"s_mov_b32 {s(sSlotP1)}, {WS_P + 16384}")
    A(f"s_mov_b32 {s(sPc2)}, {WS_P + 32768}")
    A(f"s_mov_b32 {s(sPc3)}, {WS_P + 49152}")
    A(f"s_mov_b32 {s(sSlotP4)}, {WS_P + 4096}")
    A(f"s_and_b32 {s(sTag)}, {s(sH)}, 1")
    A(f"s_xor_b32 {s(sTag)}, {s(sTag)}, 1")
    A(f"s_lshl_b32 {s(sFb)}, {s(sH)}, 7")
    A(f"s_add_u32 {s(sFb)}, {s(sFb)}, {WS_KVF:#x}")
    A(f"s_mov_b32 {s(sT5)}, {s(sFb)}")
    A(f"s_cmp_eq_u32 {s(sWAVE)}, 0")
    A(f"s_cselect_b32 {s(sFb)}, {OOB:#x}, {s(sFb)}")
    A(f"s_cmp_ge_u32 {s(sWAVE)}, 2")
    A(f"s_mov_b32 {s(sT0)}, {OOB:#x}")
    A(f"s_mov_b32 {s(sPf)}, {WS_KX + 0x80000:#x}")
    A(f"s_cselect_b32 {s(sPf)}, {s(sPf)}, {s(sT0)}")
    A(f"s_add_u32 {s(sM0K)}, {s(sW2k)}, {KX_OFF}")
    A(f"s_lshl_b32 {s(sKn)}, {s(sH)}, 14")
    A(f"s_add_u32 {s(sKn)}, {s(sKn)}, {s(sW2k)}")
    A(f"s_add_u32 {s(sKn)}, {s(sKn)}, {WS_KX:#x}")
    A(f"s_add_u32 {s(sM0V)}, {s(sW2k)}, {VX_OFF}")
    A(f"s_lshl_b32 {s(sKV)}, {s(sH)}, 14")
    A(f"s_add_u32 {s(sKV)}, {s(sKV)}, {s(sW2k)}")
    A(f"s_add_u32 {s(sKV)}, {s(sKV)}, {WS_KX:#x}")
    A(f"s_lshl_b32 {s(sKM)}, {s(sH)}, 12")
    A(f"s_add_u32 {s(sKM)}, {s(sKM)}, {WS_KM:#x}")
    A(f"s_mov_b32 {s(sJ4)}, 8")
    A(f"s_mov_b32 {s(sCn)}, 1")
    A(f"s_mov_b32 {s(sNeed)}, 1")
    A(f"s_add_u32 {s(sFo)}, {s(sFb)}, 8")
    A(f"v_mov_b32 {v(vT1)}, 0")
    A(f"s_mov_b32 {s(sT2)}, {D_CHECKIN*4}")
    A(f"s_mov_b32 {s(sT3)}, 0")
    wait_byte(A, vFlag, vT1, sT2, sT3, 32, "ci", sleep=1)
    A(f"buffer_load_dword {v(vFlag)}, {v(vT1)}, {s(S_DBG,4)}, 0 offen offset:{D_CHECKIN*4} sc1")
    A(f"s_getreg_b32 {s(sT0)}, hwreg(HW_REG_XCC_ID, 0, 4)")
    A(f"s_mul_i32 {s(sT1)}, {s(sT0)}, {s(sT0)}")
    A(f"s_lshl_b32 {s(sT1)}, {s(sT1)}, 22")
    A(f"s_lshl_b32 {s(sT0)}, {s(sT0)}, 13")
    A(f"s_add_u32 {s(sT0)}, {s(sT0)}, {s(sT1)}")
    A(f"s_add_u32 {s(sT0)}, {s(sT0)}, 32")
    A(f"s_waitcnt vmcnt(0)")
    A(f"v_readfirstlane_b32 {s(sT1)}, {v(vFlag)}")
    A(f"s_cmp_eq_u32 {s(sT0)}, {s(sT1)}")
    A(f"s_cselect_b32 {s(sFastF)}, 1, 0")
    for j in range(2):
        Lp = A.new_label("kvp")
        Ld = A.new_label("kvd")
        A(f"s_mov_b32 {s(sRet)}, 0")
        A(f"s_cmp_lg_u32 {s(sDEAD)}, 0")
        A(f"s_cbranch_scc1 {Ld}")
        A.label(Lp)
        A(f"buffer_load_dword {v(vFlag)}, off, {s(S_WS,4)}, {s(sT5)} offset:{4*j} sc1")
        A(f"s_waitcnt vmcnt(0)")
        A(f"v_readfirstlane_b32 {s(sT0)}, {v(vFlag)}")
        A(f"s_cmp_ge_u32 {s(sT0)}, 1")
        A(f"s_cbranch_scc1 {Ld}")
        A(f"s_sleep 1")
        A(f"s_add_u32 {s(sRet)}, {s(sRet)}, 1")
        A(f"s_cmp_lt_u32 {s(sRet)}, {SPIN_LIMIT}")
        A(f"s_cbranch_scc1 {Lp}")
        A(f"s_mov_b32 {s(sDEAD)}, 1")
        A.label(Ld)
    A(f"s_mov_b32 m0, {s(sM0K)}")
    A(f"s_nop 0")
    for i in range(2):
        A(f"buffer_load_dwordx4 {v(vL16)}, {s(S_WS,4)}, {s(sKn)} offen offset:{1024*i} lds")
    A(f"s_mov_b32 {s(sS)}, 0")
    A(f"s_waitcnt vmcnt(0) lgkmcnt(0)")
    A(f"s_barrier")
    stamp(A, 3) if not opts.get('cprof') else None
    if opts.get('cprof'):
        A(f"s_mov_b32 {s(sCP0)}, 0")
        A(f"s_mov_b32 {s(sCP1)}, 0")
    for k, r_ in ((1, vT0), (2, vT1), (3, vS0)):
        A(f"v_xor_b32 {v(r_)}, {k << 11:#x}, {v(vMw)}")
    A(f"s_cmp_eq_u32 {s(sFastF)}, 1")
    if opts.get('forceslow'):
        A(f"s_branch L_own1_s")
    A(f"s_cbranch_scc0 L_own1_s")
    A(f"s_branch L_own1_f")
    gen_step(A, True, opts)
    gen_step(A, False, opts)


def G_tr(A, vD, vL, kind, base_sreg):
    tr_lane_addr(A, vD, vL, vT0, vS0, kind, base_sreg=base_sreg)
```

```python
from dsl import *
import gen as G
from gen import *

QK_OFF, O_OFF, MEM_OFF, KX_OFF, VX_OFF, WO_OFF = 0, 4096, 8192, 16384, 24576, 32768

vL16, vKw, vIdx, vQKw, vQKr, vOw, vMw, vWo, vPst, vRed, vMst, vPf, vFlag, vJunk = range(14)
vT0, vT1 = 14, 15
vSEL = 16
vVM1, vKr, vONE = 20, 21, 22
vBM = 26
vS0, vIdxW = 30, 31
KIMG = [2048, 3072, 6144, 7168]
X = 32
Y = 64
PA = 96
ACC = 112
sH, sS, sSlotP, sSlotP1, sSlotP4, sSlotM, sKM, sKV, sC, sNC, sRet = range(44, 55)
sRa0, sRa2, sFastF = 55, 56, 57
sMLo, sMHi = 58, 60
sU = 76
sFo, sNeed, sJ4, sCn, sPf, sGat, sKn, sM0K, sM0V = 78, 79, 80, 81, 84, 85, 86, 87, 88
sW1k, sRaM, sRaA, sFb, sPfb, sW2k = 64, 65, 66, 67, 68, 69
sPc2, sPc3 = 70, 71
sRo, sRm = 72, 89
sPc = [sSlotP, sSlotP1, sPc2, sPc3]
sTag = 55
sGw, sMq, sTagE = 64, 65, 66
sCP0, sCP1 = 82, 83
OOB = 0x40000000
RED_LIMIT = 1 << 16

LOG2E = 1.4426950408889634
SCALE_C = (128 ** -0.5) * LOG2E


def f32_hex(x):
    import struct
    return struct.unpack("<I", struct.pack("<f", x))[0]


RT = False
LATE = [False]
CSTEP = [39]


TRACE = [False]


def lstamp(A, i, late=None):
    if TRACE[0]:
        if i <= 8:
            A(f"s_memtime s[{16 + 2 * (i - 1)}:{17 + 2 * (i - 1)}]")
        return
    L = A.new_label("ls")
    if late is None:
        late = i >= 8
    A(f"s_cmp_lg_u32 {s(sS)}, {CSTEP[0] + 1 if late else CSTEP[0]}")
    A(f"s_cbranch_scc1 {L}")
    r = 16 + 2 * (i - 1) if i < 9 else 62
    A(f"{'s_memrealtime' if RT else 's_memtime'} s[{r}:{r+1}]")
    A.label(L)


import re as _re


def _regs(tok):
    tok = tok.strip().rstrip(',')
    m = _re.match(r'^([va])\[(\d+):(\d+)\]$', tok)
    if m:
        return {(m.group(1), i) for i in range(int(m.group(2)), int(m.group(3)) + 1)}
    m = _re.match(r'^([va])(\d+)$', tok)
    if m:
        return {(m.group(1), int(m.group(2)))}
    return set()


def _all_regs(line):
    r = set()
    for tok in _re.findall(r'[va]\[\d+:\d+\]|\b[va]\d+\b', line):
        r |= _regs(tok)
    return r


def gap_reorder(lines, report=False):
    out = []
    i = 0
    n = len(lines)
    issm = lambda x: x.strip().startswith('v_smfmac')
    while i < n:
        out.append(lines[i])
        if issm(lines[i]):
            j = i + 1
            gap = []
            while j < n and not issm(lines[j]) and not lines[j].endswith(':') and not lines[j].strip().startswith(('s_cbranch', 's_branch', 'v_mfma', 's_nop', 's_memtime', 's_memrealtime', 's_cmp')):
                gap.append(lines[j])
                j += 1
            if j < n and issm(lines[j]):
                changed = True
                while changed:
                    changed = False
                    for k in range(len(gap) - 1):
                        a_, b_ = gap[k].strip(), gap[k + 1].strip()
                        if a_.startswith('v_') and not b_.startswith('v_') and 'vcc' not in a_ and 'exec' not in b_:
                            if not (_all_regs(a_) & _all_regs(b_)):
                                gap[k], gap[k + 1] = gap[k + 1], gap[k]
                                changed = True
                nv = sum(1 for g in gap if g.strip().startswith('v_'))
                no = len(gap) - nv
                lastv = all(not gap[k].strip().startswith('v_') or gap[k + 1].strip().startswith('v_') for k in range(len(gap) - 1))
                if report and (nv > 1 or (nv and no > 2) or no > 3 or not lastv):
                    print("gap over budget:", [g.strip()[:40] for g in gap])
            out.extend(gap)
            i = j
            continue
        i += 1
    return out


def gen_step(A, fast, opts):
    i0 = len(A.L)
    gen_step_raw(A, fast, opts)
    if opts.get('reord', 1):
        A.L[i0:] = gap_reorder(A.L[i0:], report=fast and opts.get('report'))


def gen_step_raw(A, fast, opts):
    st = "" if fast else " sc1"
    tag = "f" if fast else "s"
    Lown = [f"L_own0_{tag}", f"L_own1_{tag}"]
    Lcommon = f"L_common_{tag}"
    Llast = f"L_last_{tag}"
    lq = Q(A, "lgkmcnt", 15)
    cp = opts.get('cprof') or opts.get('trace')
    rp = opts.get('rprof')
    AQ, AV, AK = ACC, ACC + 8, Y + 24
    CQ, CK = AQ + 2, AK + 2
    H0, H1 = X + 16, X + 24
    AO = Y
    KXR = {0: X + 16, 4: X + 20, 1: X + 24, 5: X + 28, 2: X, 6: X + 4, 3: X + 8, 7: X + 12}
    RB = [X, X + 8, PA, PA + 8]
    RIDX = {0: 0, 1: 1, 4: 2, 5: 3, 6: 4, 7: 5}

    def WB(m, jj, t):
        if m == 'q':
            return a(16 * jj + 8 * t, 8)
        if jj in (2, 3):
            return v(RB[2 * (jj - 2) + t], 8)
        return (a if m == 'k' else v)(128 + 16 * RIDX[jj] + 8 * t, 8)

    def rdR(m, b, half):
        fi = (0 if m == 'k' else 4) + b
        lq.issue(('R', m, b), f"ds_read_b128 {v(RB[b] + 4*half, 4)}, {v(vWo)} offset:{fi * 2048 + 1024 * half}")
    AC = {'q': AQ, 'k': AK, 'v': AV}
    vA = [None, vT0, vT1, vS0]

    def smf(m, jj, t, areg):
        if m != 'q' and jj in (2, 3):
            lq.wait(('R', m, 2 * (jj - 2) + t))
        A(f"v_smfmac_f32_16x16x64_bf16 {v(AC[m] + 4*t, 4)}, {v(areg, 4)}, {WB(m, jj, t)}, {v(vIdx)}")

    def rdKX(j):
        lq.issue(('KX', j), f"ds_read_b128 {v(KXR[j],4)}, {v(vL16)} offset:{KX_OFF + j*1024}")

    salu = [
        f"s_and_b32 {s(sT4)}, {s(sS)}, 3",
        f"s_lshl_b32 {s(sSlotM)}, {s(sT4)}, 13",
        f"s_add_u32 {s(sSlotM)}, {s(sSlotM)}, {WS_M:#x}",
        f"s_add_u32 {s(sGat)}, {s(sSlotM)}, {s(sGw)}",
        f"s_add_u32 {s(sMq)}, {s(sSlotM)}, {s(sW2k)}",
        f"s_xor_b32 {s(sRa2)}, {s(sMq)}, 0x4000",
        f"s_xor_b32 {s(sTag)}, {s(sTag)}, 1",
        f"s_and_b32 {s(sTagE)}, {s(sS)}, 1",
    ]

    def su(n):
        for _ in range(n):
            if salu:
                A(salu.pop(0))

    Lar = f"L_top_{tag}"
    Lspec = f"L_spec_{tag}"
    Lretry0 = f"L_retry0_{tag}"
    rt = opts.get('rtrace')

    def rstamp(k):
        if rt:
            A(f"s_memtime s[{16 + 2*k}:{17 + 2*k}]")

    LretryG = f"L_retryG_{tag}"
    LbackG = f"L_backG_{tag}"
    GR = X + 8
    tw = opts.get('tw', 0)

    def con_issue(R, so):
        A(f"buffer_load_dwordx4 {v(R,4)}, {v(vL16)}, {s(S_WS,4)}, {s(so)} offen sc1")
        A(f"buffer_load_dwordx4 {v(R+4,4)}, {v(vL16)}, {s(S_WS,4)}, {s(so)} offen offset:1024 sc1")

    def sent_check(R):
        A(f"v_max3_u32 {v(vT0)}, {v(R)}, {v(R+1)}, {v(R+2)}")
        A(f"v_max3_u32 {v(vT1)}, {v(R+3)}, {v(R+4)}, {v(R+5)}")
        A(f"v_max3_u32 {v(vT0)}, {v(vT0)}, {v(R+6)}, {v(R+7)}")
        A(f"v_max_u32 {v(vT0)}, {v(vT0)}, {v(vT1)}")
        A(f"v_cmp_eq_u32 vcc, -1, {v(vT0)}")

    def own(H, spec):
        lq.ops = []
        n = 0
        for m in 'qkv':
            for jj in range(2):
                for t in range(2):
                    n += 1
                    smf(m, jj, t, H + 4 * jj)
                    if spec and n == 3:
                        A(f"s_waitcnt vmcnt(2)")
                        A(f"ds_write_b128 {v(vMw)}, {v(GR,4)}")
                        A(f"v_max3_u32 {v(vT0)}, {v(GR)}, {v(GR+1)}, {v(GR+2)}")
                    elif spec and n == 4:
                        A(f"ds_write_b128 {v(vMw)}, {v(GR+4,4)} offset:1024")
                        A(f"v_max3_u32 {v(vT1)}, {v(GR+3)}, {v(GR+4)}, {v(GR+5)}")
                        A(f"v_max3_u32 {v(vT0)}, {v(vT0)}, {v(GR+6)}, {v(GR+7)}")
                    elif spec and n == 5:
                        A(f"v_max_u32 {v(vT0)}, {v(vT0)}, {v(vT1)}")
                        A(f"v_cmp_eq_u32 vcc, -1, {v(vT0)}")
                        A(f"s_cbranch_vccnz {LretryG}")
                        A.label(LbackG)
                        A(f"s_waitcnt lgkmcnt(0)")
                        A(f"s_barrier")
                    if 6 <= n <= 11:
                        j2 = n - 6 + 2
                        lq.issue(('A', j2), f"ds_read_b128 {v(AO + 4*(j2-2), 4)}, {v(vL16)} offset:{MEM_OFF + (j2 >> 1) * 2048 + (j2 & 1) * 1024}")
                    if spec and n == 6:
                        A(f"v_cmp_u_f32 vcc, {v(AQ)}, {v(AQ+1)}")
                    elif spec and n == 7:
                        A(f"v_cmp_u_f32 {s(sU,2)}, {v(AQ+2)}, {v(AQ+3)}")
                    elif spec and n == 8:
                        A(f"s_or_b64 vcc, vcc, {s(sU,2)}")
                        A(f"s_cbranch_scc1 {Lretry0}")
                    elif n == 11:
                        A(f"s_mov_b32 m0, {s(sM0V)}")
                        A(f"s_add_u32 {s(sT3)}, {s(sKV)}, 8192")
                    elif n == 12:
                        A(f"buffer_load_dwordx4 {v(vL16)}, {s(S_WS,4)}, {s(sT3)} offen lds")
                        rdR('k', 0, 0)
    A.label(Lar)
    if cp:
        lstamp(A, 8)
    rstamp(5)
    for _ in range(opts.get('gdelay', 0)):
        A(f"s_sleep 1")
    con_issue(H0, sSlotM)
    con_issue(GR, sGat)
    for _ in range(opts.get('gspace', 1)):
        A(f"s_sleep 1")
    con_issue(H1, sSlotM)
    A(f"s_mov_b32 {s(sRet)}, 0")
    A(f"s_waitcnt vmcnt(4)")
    rstamp(6)
    if cp:
        lstamp(A, 9)
        lstamp(A, 1)
    if rt:
        A("s_memtime s[30:31]")
    own(H0, True)
    A.label(Lcommon)
    n = 12
    for jj in range(2, 8):
        for t in range(2):
            n += 1
            if t == 0:
                lq.wait(('A', jj))
            smf('q', jj, t, AO + 4 * (jj - 2))
            if n == 13:
                A(f"buffer_load_dwordx4 {v(vL16)}, {s(S_WS,4)}, {s(sT3)} offen offset:1024 lds")
                rdR('k', 0, 1)
            elif n == 14:
                A(f"buffer_load_dword {v(vFlag)}, off, {s(S_WS,4)}, {s(sFo)} sc1")
                rdR('k', 1, 0)
            elif n == 15:
                if not opts.get('nopf'):
                    A(f"buffer_load_dword {v(vJunk)}, {v(vPf)}, {s(S_WS,4)}, {s(sPf)} offen")
                rdR('k', 1, 1)
            elif n == 16:
                A(f"s_add_u32 {s(sT3)}, {s(sPf)}, 4096")
                rdR('k', 2, 0)
            elif n == 17:
                if not opts.get('nopf'):
                    A(f"buffer_load_dword {v(vJunk)}, {v(vPf)}, {s(S_WS,4)}, {s(sT3)} offen")
                rdR('k', 2, 1)
                su(1)
            elif n == 18:
                rdR('k', 3, 0)
                su(2)
            elif n == 19:
                A(f"s_waitcnt vmcnt(5)")
                rdR('k', 3, 1)
                su(1)
            elif 20 <= n <= 23:
                rdKX((0, 4, 1, 5)[n - 20])
                su(1)
            else:
                su(3)
    if cp and not rp:
        lstamp(A, 2)

    def post(m, step):
        t, k = step // 3, step % 3
        T = AC[m] + 4 * t
        if k < 2:
            A(f"v_add_f32 {v(T + k)}, {v(T + k)}, {v(T + k + 2)}")
        else:
            d = {'q': CQ + t, 'k': CK + t, 'v': (vS0, vVM1)[t]}[m]
            A(f"v_cvt_pk_bf16_f32 {v(d)}, {v(T)}, {v(T + 1)}")
    for jj in range(2, 8):
        for t in range(2):
            n += 1
            smf('k', jj, t, AO + 4 * (jj - 2))
            if n == 31:
                lq.issue('wq', f"ds_write2st64_b32 {v(vQKw)}, {v(CQ)}, {v(CQ+1)} offset0:0 offset1:1")
            elif n == 33:
                A(f"s_mov_b32 m0, {s(sM0K)}")
                A(f"s_add_u32 {s(sKn)}, {s(sKn)}, 0x80000")
            elif n == 35:
                lq.wait('wq')
                A(f"s_barrier")
            if 26 <= n <= 30:
                rdR('v', (n - 26) >> 1, (n - 26) & 1)
            elif n in (32, 33, 34):
                rdR('v', (n - 27) >> 1, (n - 27) & 1)
            if n in (31, 32):
                su(1)
            if 25 <= n <= 30:
                post('q', n - 25)
            elif n >= 33:
                A(f"v_mov_b64 {v(ACC + 2*(n - 33), 2)}, 0")
    assert not salu
    if cp and not rp:
        lstamp(A, 3)
    QR, KR = Y, Y + 16

    def trq(i):
        ks, hf = i >> 1, i & 1
        lq.issue(('q', ks), f"ds_read_b64_tr_b16 {v(QR+4*ks+2*hf,2)}, {v(vQKr)} offset:{QK_OFF + (32*ks+8*hf)*16}")

    def trk(i):
        ks, hf = i >> 1, i & 1
        lq.issue(('k', ks), f"ds_read_b64_tr_b16 {v(KR+4*ks+2*hf,2)}, {v(vKr)} offset:{KIMG[ks] + hf*256}")
    trq_at = {38: 0, 39: 1, 40: 2, 41: 3, 42: 4, 44: 5, 45: 6, 46: 7}
    for jj in range(2, 8):
        for t in range(2):
            n += 1
            smf('v', jj, t, AO + 4 * (jj - 2))
            if n in trq_at:
                trq(trq_at[n])
            if 39 <= n <= 42:
                rdKX((2, 6, 3, 7)[n - 39])
            if n == 43:
                lq.issue('wk', f"ds_write2st64_b32 {v(vKw)}, {v(CK)}, {v(CK+1)} offset0:0 offset1:2")
            elif n == 44:
                A(f"buffer_store_dword {v(CK)}, {v(vQKw)}, {s(S_WS,4)}, {s(sKM)} offen sc1")
            elif n == 45:
                A(f"buffer_store_dword {v(CK+1)}, {v(vQKw)}, {s(S_WS,4)}, {s(sKM)} offen offset:256 sc1")
            elif n == 47:
                lq.wait('wk')
                A(f"s_barrier")
                trk(0)
            elif n == 48:
                trk(1)
                A(f"buffer_load_dwordx4 {v(vL16)}, {s(S_WS,4)}, {s(sKn)} offen lds")
            if 37 <= n <= 42:
                post('k', n - 37)
    if cp and not rp:
        lstamp(A, 4)
    T0, T1, TM = PA, PA + 4, PA + 8
    m, t_ = vT0, vT1
    wo_ops = [(cg, 0) for cg in range(4)] + [(cg, ks) for cg in range(4) for ks in range(1, 4)]
    bufs = [X + 16, X + 24, X, X + 8, Y, Y + 8, Y + 16, Y + 24]

    WOR = [a(224, 8), a(232, 8), a(240, 8), a(248, 8), v(224, 8), v(232, 8), v(240, 8), v(248, 8)]

    def rdW(i, half):
        o = (8 + i) * 2048 + 1024 * half
        lq.issue(('W', i), f"ds_read_b128 {v(bufs[i] + 4*half, 4)}, {v(vWo)} offset:{o}")
    for i in range(8):
        ks, t = i >> 1, i & 1
        if i in (0, 4):
            lq.wait(('q', ks + 1))
        T = (T0, T1)[t]
        c = "0" if ks == 0 else v(T, 4)
        A(f"v_mfma_f32_16x16x32_bf16 {v(T,4)}, {v(KXR[4*t+ks],4)}, {v(QR+4*ks,4)}, {c}")
        if i == 0:
            A(f"buffer_load_dwordx4 {v(vL16)}, {s(S_WS,4)}, {s(sKn)} offen offset:1024 lds")
        if i <= 5:
            trk(i + 2)
            post('v', i)
        elif i == 6:
            A(f"buffer_store_dword {v(vS0)}, {v(vQKw)}, {s(S_WS,4)}, {s(sKM)} offen offset:2048 sc1")
            A(f"buffer_store_dword {v(vVM1)}, {v(vQKw)}, {s(S_WS,4)}, {s(sKM)} offen offset:2304 sc1")
    A(f"s_cmp_eq_u32 {s(sS)}, 63")
    A(f"s_cbranch_scc1 {Llast}")
    for ks in range(4):
        if ks in (0, 2):
            lq.wait(('k', ks + 1))
        cm = "0" if ks == 0 else v(TM, 4)
        A(f"v_mfma_f32_16x16x32_bf16 {v(TM,4)}, {v(KR+4*ks,4)}, {v(QR+4*ks,4)}, {cm}")
        rdW(ks >> 1, ks & 1)
        if ks == 1:
            A(f"v_max3_f32 {v(m)}, {v(T0)}, {v(T0+1)}, {v(T0+2)}")
        elif ks == 2:
            A(f"v_max3_f32 {v(t_)}, {v(T0+3)}, {v(T1)}, {v(T1+1)}")
        elif ks == 3:
            A(f"v_max3_f32 {v(m)}, {v(m)}, {v(T1+2)}, {v(T1+3)}")
    ralate = 1

    def rearm(k, now=False):
        if now and k == 2:
            A(f"buffer_store_dwordx4 {v(vSEL,4)}, {v(vMst)}, {s(S_WS,4)}, {s(sRa2)} offen{st}")
    VX0 = Y + 16
    u0, u1 = TM + 2, TM + 3
    A(f"s_waitcnt vmcnt(9)")
    lq.issue('vx', f"ds_read_b128 {v(VX0,4)}, {v(vMw)} offset:{VX_OFF - MEM_OFF}")
    lq.issue('vx', f"ds_read_b128 {v(VX0+4,4)}, {v(vMw)} offset:{VX_OFF - MEM_OFF + 1024}")
    rdW(2, 0)
    rdW(2, 1)
    A(f"v_mov_b64 {v(ACC+10,2)}, 0")
    A(f"v_max3_f32 {v(m)}, {v(m)}, {v(t_)}, {v(TM)}")
    A(f"v_max_f32 {v(u0)}, {v(m)}, {v(TM+1)}")
    A(f"v_max_f32 {v(u1)}, {v(m)}, {v(TM+1)}")
    rdW(3, 0)
    A(f"v_mov_b64 {v(ACC+8,2)}, 0")
    A(f"v_permlane16_swap_b32 {v(u0)}, {v(u1)}")
    A(f"v_max_f32 {v(m)}, {v(u0)}, {v(u1)}")
    A(f"v_max_f32 {v(t_)}, {v(u0)}, {v(u1)}")
    rdW(3, 1)
    A(f"s_nop 0")
    A(f"v_permlane32_swap_b32 {v(m)}, {v(t_)}")
    A(f"v_max_f32 {v(m)}, {v(m)}, {v(t_)}")
    A(f"v_mul_f32 {v(m)}, {s(sNC)}, {v(m)}")
    BX = ACC + 12
    xs = [T0, T0 + 1, T0 + 2, T0 + 3, T1, T1 + 1, T1 + 2, T1 + 3]
    ms = [TM, TM + 1]
    if opts.get('pk', 1):
        def pkf(r):
            A(f"v_pk_fma_f32 {v(r,2)}, {v(r,2)}, {s(sC,2)}, {v(m,2)} op_sel_hi:[1,0,0]")
        pkf(T0)
        pkf(T0 + 2)
        for j in range(8):
            A(f"v_exp_f32 {v(xs[j])}, {v(xs[j])}")
            if j == 1:
                pkf(T1)
            elif j == 3:
                pkf(T1 + 2)
            elif j == 5:
                pkf(TM)
            if j >= 2 and j % 2 == 0:
                q = (j - 2) // 2
                A(f"v_cvt_pk_bf16_f32 {v(BX+q)}, {v(xs[2*q])}, {v(xs[2*q+1])}")
    else:
        for r in xs[:2]:
            A(f"v_fma_f32 {v(r)}, {v(r)}, {s(sC)}, {v(m)}")
        for j in range(8):
            A(f"v_exp_f32 {v(xs[j])}, {v(xs[j])}")
            nx = (xs + ms)[j + 2]
            A(f"v_fma_f32 {v(nx)}, {v(nx)}, {s(sC)}, {v(m)}")
            if j >= 2 and j % 2 == 0:
                q = (j - 2) // 2
                A(f"v_cvt_pk_bf16_f32 {v(BX+q)}, {v(xs[2*q])}, {v(xs[2*q+1])}")
    A(f"v_exp_f32 {v(ms[0])}, {v(ms[0])}")
    A(f"v_cvt_pk_bf16_f32 {v(BX+3)}, {v(xs[6])}, {v(xs[7])}")
    A(f"v_exp_f32 {v(ms[1])}, {v(ms[1])}")
    if cp and not rp:
        lstamp(A, 5)
    O0, O1, LS, PKO = PA, PA + 4, PA + 12, PA + 8
    lq.wait('vx')
    A(f"v_mfma_f32_16x16x32_bf16 {v(LS,4)}, {v(vONE,4)}, {v(BX,4)}, 0")
    A(f"v_cvt_pk_bf16_f32 {v(vBM)}, {v(ms[0])}, {v(ms[1])}")
    A(f"v_mfma_f32_16x16x32_bf16 {v(O0,4)}, {v(VX0,4)}, {v(BX,4)}, 0")
    rdW(4, 0)
    A(f"v_mfma_f32_16x16x32_bf16 {v(O1,4)}, {v(VX0+4,4)}, {v(BX,4)}, 0")
    A(f"v_mfma_f32_16x16x32_bf16 {v(LS,4)}, {v(vONE,4)}, {v(vBM,4)}, {v(LS,4)}")
    A(f"v_mfma_f32_16x16x32_bf16 {v(O0,4)}, {v(vS0,4)}, {v(vBM,4)}, {v(O0,4)}")
    A(f"v_mov_b64 {v(ACC+12,2)}, 0")
    A(f"v_mfma_f32_16x16x32_bf16 {v(O1,4)}, {v(vVM1,4)}, {v(vBM,4)}, {v(O1,4)}")
    rdW(4, 1)
    A(f"v_rcp_f32 {v(m)}, {v(LS)}")
    rdW(5, 0)
    A(f"v_mov_b64 {v(ACC+14,2)}, 0")
    if opts.get('pk', 1):
        def pkm(r):
            A(f"v_pk_mul_f32 {v(r,2)}, {v(r,2)}, {v(m,2)} op_sel_hi:[1,0]")
        pkm(O0)
        pkm(O0 + 2)
        pkm(O1)
        A(f"v_cvt_pk_bf16_f32 {v(PKO)}, {v(O0)}, {v(O0+1)}")
        pkm(O1 + 2)
        A(f"v_cvt_pk_bf16_f32 {v(PKO+1)}, {v(O0+2)}, {v(O0+3)}")
    else:
        for r in range(4):
            A(f"v_mul_f32 {v(O0+r)}, {v(O0+r)}, {v(m)}")
        A(f"v_cvt_pk_bf16_f32 {v(PKO)}, {v(O0)}, {v(O0+1)}")
        A(f"v_cvt_pk_bf16_f32 {v(PKO+1)}, {v(O0+2)}, {v(O0+3)}")
        for r in range(4):
            A(f"v_mul_f32 {v(O1+r)}, {v(O1+r)}, {v(m)}")
    A(f"v_cvt_pk_bf16_f32 {v(PKO+2)}, {v(O1)}, {v(O1+1)}")
    A(f"v_cvt_pk_bf16_f32 {v(PKO+3)}, {v(O1+2)}, {v(O1+3)}")
    lq.issue('wo_', f"ds_write_b128 {v(vOw)}, {v(PKO,4)} offset:0")
    AOr = [PKO, PA, PA + 4, PA + 12]
    vAo = [None, vT0, vT1, vS0]
    for k in range(1, 4):
        A(f"v_xor_b32 {v(vAo[k])}, {k << 9:#x}, {v(vOw)}")
    if cp and not rp:
        lstamp(A, 6)

    def pack(cg, k):
        A(f"v_cvt_pk_bf16_f32 {v(ACC+4*cg+k)}, {v(ACC+4*cg+2*k)}, {v(ACC+4*cg+2*k+1)}")

    def tagp(cg):
        A(f"v_and_or_b32 {v(ACC+4*cg)}, {v(ACC+4*cg)}, -2, {s(sTag)}")

    def pstore(cg):
        A(f"buffer_store_dwordx2 {v(ACC+4*cg,2)}, {v(vPst)}, {s(S_WS,4)}, {s(sSlotP4) if cg >= 2 else 0} offen offset:{(cg & 1) * 2048}{st}")
    for i, (cg, ks) in enumerate(wo_ops):
        if ks:
            lq.wait(('Ao', ks))
        if i >= 8:
            lq.wait(('W', i - 8))
        A(f"v_smfmac_f32_16x16x64_bf16 {v(ACC+4*cg,4)}, {v(AOr[ks],4)}, {WOR[i] if i < 8 else v(bufs[i - 8],8)}, {v(vIdxW)}")
        if i == opts.get('obar', 1):
            lq.wait('wo_')
            A(f"s_barrier")
            for k in range(1, 4):
                lq.issue(('Ao', k), f"ds_read_b128 {v(AOr[k],4)}, {v(vAo[k])}")
        if i == 2:
            rdW(5, 1)
            rdW(6, 0)
        elif i == 3:
            rdW(6, 1)
            rdW(7, 0)
        elif i == 4:
            rdW(7, 1)
        pst = opts.get('pst', 1)
        if pst == 1:
            if i in (11, 14):
                pstore((i - 11) // 3)
            if i in (8, 11, 14):
                pack((i - 8) // 3, 0)
            elif i in (9, 12, 15):
                pack((i - 9) // 3, 1)
            elif i in (10, 13):
                tagp((i - 10) // 3)
        elif pst == 2:
            if i in (8, 11, 14):
                pack((i - 8) // 3, 0)
                pack((i - 8) // 3, 1)
            elif i in (9, 12, 15):
                tagp((i - 9) // 3)
            elif i in (10, 13):
                pstore((i - 10) // 3)
        elif pst == 3:
            if i in (8, 11, 14):
                pack((i - 8) // 3, 0)
            elif i in (9, 12, 15):
                pack((i - 9) // 3, 1)
                tagp((i - 9) // 3)
            elif i in (10, 13):
                pstore((i - 10) // 3)
    if pst == 1:
        tagp(2)
        pstore(2)
        A(f"s_nop 5")
    else:
        pstore(2)
        A(f"s_nop 6")
    pack(3, 0)
    pack(3, 1)
    tagp(3)
    pstore(3)
    if cp:
        lstamp(A, 7)

    def bookkeeping():
        A(f"s_add_u32 {s(sS)}, {s(sS)}, 1")
        A(f"s_add_u32 {s(sKM)}, {s(sKM)}, 0x20000")
        A(f"s_add_u32 {s(sKV)}, {s(sKV)}, 0x80000")
        A(f"s_add_u32 {s(sPf)}, {s(sPf)}, 0x80000")
        A(f"s_add_u32 {s(sJ4)}, {s(sJ4)}, 4")
        A(f"s_cmp_eq_u32 {s(sJ4)}, 20")
        A(f"s_cselect_b32 {s(sJ4)}, 0, {s(sJ4)}")
        A(f"s_addc_u32 {s(sCn)}, {s(sCn)}, 0")

    def bookkeeping2():
        A(f"s_add_u32 {s(sFo)}, {s(sFb)}, {s(sJ4)}")
        A(f"s_cmp_lt_u32 {s(sS)}, 62")
        A(f"s_cselect_b32 {s(sNeed)}, {s(sCn)}, 0")

    def zero_acc():
        for i in range(8):
            A(f"v_mov_b64 {v(ACC+2*i,2)}, 0")
        for i in range(4):
            A(f"v_mov_b64 {v(AK+2*i,2)}, 0")

    Lred = A.new_label("red")
    Lredok = A.new_label("redok")
    Lrfail = A.new_label("rfail")
    Lfok = A.new_label("fok")
    Lfsp = A.new_label("fsp")
    RD = PA
    RS = [Y, Y + 8]

    def ld(R):
        for j in range(2):
            A(f"buffer_load_dwordx4 {v(R+4*j,4)}, {v(vRed)}, {s(S_WS,4)}, 0 offen offset:{j*1024} sc1")

    def chk(R, c0, c1, first=False):
        if rt:
            A(f"s_add_u32 {s(sCP0)}, {s(sCP0)}, 1")
        A(f"s_waitcnt vmcnt({c0})")
        if first:
            rstamp(2)
        A(f"v_mfma_f32_16x16x32_bf16 {v(RD,4)}, {v(R,4)}, {v(vSEL,4)}, 0")
        A(f"v_bitop3_b32 {v(vT0)}, {v(R)}, {v(R+2)}, {v(vS0)} bitop3:0x7e")
        A(f"s_waitcnt vmcnt({c1})")
        if first:
            rstamp(3)
        A(f"v_mfma_f32_16x16x32_bf16 {v(RD,4)}, {v(R+4,4)}, {v(vSEL,4)}, {v(RD,4)}")
        A(f"v_bitop3_b32 {v(vT1)}, {v(R+4)}, {v(R+6)}, {v(vS0)} bitop3:0x7e")
        A(f"v_bitop3_b32 {v(vT0)}, {v(vT0)}, {v(vT1)}, 1 bitop3:0xa8")
        A(f"v_cmp_ne_u32 vcc, 0, {v(vT0)}")
    rstamp(0) if False else None
    if rt:
        A(f"s_memtime s[62:63]")
    for (w_, o_) in ((3, 'pdelay3'), (2, 'pdelay2')):
        k_ = opts.get(o_, 1 if w_ == 3 else 0)
        if k_:
            Lx = A.new_label("pd")
            A(f"s_cmp_lg_u32 {s(sWAVE)}, {w_}")
            A(f"s_cbranch_scc1 {Lx}")
            for _ in range(k_):
                A(f"s_sleep 1")
            A.label(Lx)
    for _ in range(opts.get('rdelay', 0)):
        A(f"s_sleep 1")
    rstamp(1) if not rt else A(f"s_memtime s[90:91]")
    ld(RS[0])
    A(f"v_bfe_u32 {v(vS0)}, {v(vL16)}, 4, 1")
    A(f"v_xor_b32 {v(vS0)}, {s(sTagE)}, {v(vS0)}")
    A(f"s_waitcnt vmcnt(14)")
    A(f"v_readfirstlane_b32 {s(sT0)}, {v(vFlag)}")
    A(f"v_mov_b32 {v(vT1)}, -1")
    A(f"s_mov_b32 {s(sRet)}, 0")
    A(f"s_cmp_ge_u32 {s(sT0)}, {s(sNeed)}")
    A(f"s_cbranch_scc0 {Lfsp}")
    A.label(Lfok)
    A(f"buffer_store_dword {v(vT1)}, {v(vMst)}, {s(S_WS,4)}, {s(sRa2)} offen{st}")
    extra = 0

    def sel_wave(w_):
        A(f"s_cmp_eq_u32 {s(sWAVE)}, {w_}")
        A(f"s_cselect_b32 {s(sT0)}, {s(sT0)}, {OOB:#x}")
    if rt:
        A(f"s_lshl_b32 {s(sT0)}, {s(sH)}, 6")
        A(f"s_add_u32 {s(sT0)}, {s(sT0)}, {s(sS)}")
        A(f"s_lshl_b32 {s(sT0)}, {s(sT0)}, 6")
        A(f"s_add_u32 {s(sT0)}, {s(sT0)}, {WS_T + 0x10000:#x}")
        sel_wave(tw)
        A(f"s_waitcnt lgkmcnt(0)")
        A(f"v_mov_b32 {v(vT0)}, s16")
        for k in range(1, 8):
            A(f"v_writelane_b32 {v(vT0)}, s{16 + 2*k}, {k}")
        A(f"v_writelane_b32 {v(vT0)}, s{sCP0}, 8")
        A(f"v_writelane_b32 {v(vT0)}, s{sCP1}, 9")
        A(f"v_lshrrev_b32 {v(vT1)}, 2, {v(vL16)}")
        A(f"s_mov_b64 exec, 0x3ff")
        A(f"buffer_store_dword {v(vT0)}, {v(vT1)}, {s(S_WS,4)}, {s(sT0)} offen")
        A(f"s_mov_b64 exec, -1")
        A(f"s_mov_b32 s16, s62")
        A(f"s_mov_b32 s18, s90")
        A(f"s_mov_b32 {s(sCP0)}, 0")
        A(f"s_mov_b32 {s(sCP1)}, 0")
        extra += 1
    if TRACE[0]:
        A(f"s_lshl_b32 {s(sT0)}, {s(sH)}, 6")
        A(f"s_add_u32 {s(sT0)}, {s(sT0)}, {s(sS)}")
        A(f"s_lshl_b32 {s(sT0)}, {s(sT0)}, 5")
        A(f"s_add_u32 {s(sT0)}, {s(sT0)}, {WS_T + 0x10000:#x}")
        sel_wave(opts.get('tw', 1))
        A(f"s_waitcnt lgkmcnt(0)")
        A(f"v_mov_b32 {v(vT0)}, s16")
        for k in range(1, 8):
            A(f"v_writelane_b32 {v(vT0)}, s{16 + 2*k}, {k}")
        A(f"v_lshrrev_b32 {v(vT1)}, 2, {v(vL16)}")
        A(f"s_mov_b64 exec, 0xff")
        A(f"buffer_store_dword {v(vT0)}, {v(vT1)}, {s(S_WS,4)}, {s(sT0)} offen")
        A(f"s_mov_b64 exec, -1")
        extra += 1
    if opts.get('steplog'):
        A(f"s_memrealtime s[62:63]")
        A(f"s_memtime s[{92 if rt else 16}:{93 if rt else 17}]")
        A(f"s_lshl_b32 {s(sT0)}, {s(sH)}, 6")
        A(f"s_add_u32 {s(sT0)}, {s(sT0)}, {s(sS)}")
        A(f"s_lshl_b32 {s(sT0)}, {s(sT0)}, 3")
        A(f"s_add_u32 {s(sT0)}, {s(sT0)}, {WS_T + 0x8000:#x}")
        sel_wave(1)
        A(f"s_waitcnt lgkmcnt(0)")
        A(f"v_mov_b32 {v(vT0)}, s62")
        A(f"v_mov_b32 {v(vT1)}, s{92 if rt else 16}")
        A(f"s_mov_b64 exec, 1")
        A(f"buffer_store_dwordx2 {v(vT0,2)}, off, {s(S_WS,4)}, {s(sT0)}")
        A(f"s_mov_b64 exec, -1")
        extra += 1
    zero_acc()
    bookkeeping()
    bookkeeping2()
    for _ in range(opts.get('rspace', 1)):
        A(f"s_sleep 1")
    ld(RS[1])
    chk(RS[0], 4 + extra, 3 + extra, True)
    A(f"s_cbranch_vccnz {Lrfail}")
    A.label(Lredok)
    rstamp(4)
    A(f"s_nop 3")
    A(f"v_pk_add_f32 {v(RD,2)}, {v(RD,2)}, {v(RD+2,2)}")
    A(f"v_add_f32 {v(RD+2)}, {v(RD)}, {v(RD+1)}")
    A(f"v_add_f32 {v(RD+3)}, {v(RD)}, {v(RD+1)}")
    A(f"s_nop 1")
    A(f"v_permlane16_swap_b32 {v(RD+2)}, {v(RD+3)}")
    A(f"v_cvt_pk_bf16_f32 {v(RD+4)}, {v(RD+2)}, {v(RD+3)}")
    A(f"buffer_store_dword {v(RD+4)}, {v(vMst)}, {s(S_WS,4)}, {s(sMq)} offen{st}")
    A(f"s_branch {Lar}")
    A.label(Lrfail)
    A(f"s_mov_b32 {s(sRet)}, 0")
    A.label(Lred)
    ld(RS[0])
    chk(RS[1], 3, 2)
    A(f"s_cbranch_vccz {Lredok}")
    ld(RS[1])
    chk(RS[0], 3, 2)
    A(f"s_cbranch_vccz {Lredok}")
    A(f"s_add_u32 {s(sRet)}, {s(sRet)}, 1")
    A(f"s_cmp_lg_u32 {s(sDEAD)}, 0")
    A(f"s_cbranch_scc1 {Lredok}")
    A(f"s_cmp_lt_u32 {s(sRet)}, {RED_LIMIT}")
    A(f"s_cbranch_scc1 {Lred}")
    A(f"s_mov_b32 {s(sDEAD)}, 1")
    A(f"s_branch {Lredok}")
    A.label(Lfsp)
    A(f"s_cmp_lg_u32 {s(sDEAD)}, 0")
    A(f"s_cbranch_scc1 {Lfok}")
    A(f"buffer_load_dword {v(vFlag)}, off, {s(S_WS,4)}, {s(sFo)} sc1")
    A(f"s_waitcnt vmcnt(0)")
    A(f"v_readfirstlane_b32 {s(sT0)}, {v(vFlag)}")
    A(f"s_cmp_ge_u32 {s(sT0)}, {s(sNeed)}")
    A(f"s_cbranch_scc1 {Lfok}")
    A(f"s_sleep 1")
    A(f"s_add_u32 {s(sRet)}, {s(sRet)}, 1")
    A(f"s_cmp_lt_u32 {s(sRet)}, {SPIN_LIMIT}")
    A(f"s_cbranch_scc1 {Lfsp}")
    A(f"s_mov_b32 {s(sDEAD)}, 1")
    A(f"s_branch {Lfok}")
    A.label(LretryG)
    if rt:
        A(f"s_add_u32 {s(sCP1)}, {s(sCP1)}, 0x100")
    con_issue(GR, sGat)
    A(f"s_waitcnt vmcnt(0)")
    A(f"ds_write_b128 {v(vMw)}, {v(GR,4)}")
    A(f"ds_write_b128 {v(vMw)}, {v(GR+4,4)} offset:1024")
    sent_check(GR)
    A(f"s_add_u32 {s(sRet)}, {s(sRet)}, 1")
    A(f"s_cbranch_vccz {LbackG}")
    A(f"s_cmp_lg_u32 {s(sDEAD)}, 0")
    A(f"s_cbranch_scc1 {LbackG}")
    A(f"s_cmp_lt_u32 {s(sRet)}, {RED_LIMIT}")
    A(f"s_cbranch_scc1 {LretryG}")
    A(f"s_mov_b32 {s(sDEAD)}, 1")
    A(f"s_branch {LbackG}")
    Lr0 = A.new_label("r0")
    A.label(Lretry0)
    A(f"s_nop 7")
    A(f"s_waitcnt lgkmcnt(0)")
    for i in range(4):
        A(f"v_mov_b64 {v(AQ+2*i,2)}, 0")
        A(f"v_mov_b64 {v(AK+2*i,2)}, 0")
    A.label(Lr0)
    if rt:
        A(f"s_add_u32 {s(sCP1)}, {s(sCP1)}, 1")
    A(f"s_waitcnt vmcnt(0)")
    sent_check(H1)
    A(f"s_add_u32 {s(sRet)}, {s(sRet)}, 1")
    A(f"s_cbranch_vccz {Lown[1]}")
    con_issue(H1, sSlotM)
    A(f"s_cmp_lg_u32 {s(sDEAD)}, 0")
    A(f"s_cbranch_scc1 {Lown[1]}")
    A(f"s_cmp_lt_u32 {s(sRet)}, {RED_LIMIT}")
    A(f"s_cbranch_scc1 {Lr0}")
    A(f"s_mov_b32 {s(sDEAD)}, 1")
    A(f"s_waitcnt vmcnt(0)")
    A.label(Lown[1])
    own(H1, False)
    A(f"s_branch {Lcommon}")
    A.label(Llast)
    A(f"s_waitcnt vmcnt(0) lgkmcnt(0)")
    if cp and not TRACE[0]:
        for i in range(1, 10):
            A(f"s_mov_b32 s{92+i}, s{16+2*(i-1) if i < 9 else 62}")
        A(f"s_lshl_b32 {s(sCP1)}, {s(sCP1)}, 16")
        A(f"s_or_b32 s92, {s(sCP0)}, {s(sCP1)}")
        A("s_branch L_flush")
    A(f"s_branch L_role_end")


def gen_chain(A, opts):
    global RT
    RT = bool(opts.get('rt'))
    CSTEP[0] = opts.get('cstep', 39)
    TRACE[0] = bool(opts.get('trace'))
    vL = 13
    A(f"s_mov_b32 {s(sH)}, {s(sIDX)}")
    A(f"v_and_b32 {v(vL)}, 63, v0")
    mk_srd(A, S_A, P_WQ, 512 * 8192)
    mk_srd(A, S_B, P_WK, 512 * 8192)
    mk_srd(A, S_C, P_WV, 512 * 8192)
    mk_srd(A, S_D, P_WO, 4096 * 1024)
    A(f"v_lshlrev_b32 {v(vL16)}, 4, {v(vL)}")
    for i in range(4):
        A(f"v_mov_b32 {v(vSEL+i)}, -1")
    A(f"s_lshl_b32 {s(sT0)}, {s(sH)}, 13")
    A(f"s_lshl_b32 {s(sT1)}, {s(sWAVE)}, 11")
    A(f"s_add_u32 {s(sT0)}, {s(sT0)}, {s(sT1)}")
    nst = 0
    A(f"v_bfe_u32 {v(vT0)}, {v(vL)}, 2, 1")
    for i in range(4):
        A(f"v_xor_b32 {v(ACC+i)}, -1, {v(vT0)}")
    A(f"buffer_store_dwordx4 {v(ACC,4)}, {v(vL16)}, {s(S_WS,4)}, {s(sT0)} offen sc1")
    A(f"buffer_store_dwordx4 {v(ACC,4)}, {v(vL16)}, {s(S_WS,4)}, {s(sT0)} offen offset:1024 sc1")
    nst += 2
    vMre = 2
    A(f"s_lshl_b32 {s(sT2)}, {s(sH)}, 8")
    A(f"v_add_u32 {v(vT0)}, {s(sT2)}, {v(vL16)}")
    A(f"v_cmp_gt_u32 vcc, 16, {v(vL)}")
    A(f"v_mov_b32 {v(vT1)}, {OOB:#x}")
    A.nop(1)
    A(f"v_cndmask_b32 {v(vMre)}, {v(vT1)}, {v(vT0)}, vcc")
    for sl in range(4):
        A(f"s_mov_b32 {s(sT1)}, {WS_M + sl*8192:#x}")
        A(f"buffer_store_dwordx4 {v(vSEL,4)}, {v(vMre)}, {s(S_WS,4)}, {s(sT1)} offen sc1")
        nst += 1
    Z = 20
    for i in range(4):
        A(f"v_mov_b32 {v(Z+i)}, 0")
    A(f"v_cndmask_b32 {v(Z+4)}, {v(vT1)}, {v(vL16)}, vcc")
    A(f"s_lshl_b32 {s(sT1)}, {s(sH)}, 8")
    A(f"s_add_u32 {s(sT1)}, {s(sT1)}, {WS_OF:#x}")
    A(f"buffer_store_dwordx4 {v(Z,4)}, {v(Z+4)}, {s(S_WS,4)}, {s(sT1)} offen sc1")
    A(f"v_cmp_gt_u32 vcc, 8, {v(vL)}")
    A.nop(2)
    A(f"v_cndmask_b32 {v(Z+5)}, {v(vT1)}, {v(vL16)}, vcc")
    A(f"s_lshl_b32 {s(sT1)}, {s(sH)}, 7")
    A(f"s_add_u32 {s(sT1)}, {s(sT1)}, {WS_KVF:#x}")
    A(f"buffer_store_dwordx4 {v(Z,4)}, {v(Z+5)}, {s(S_WS,4)}, {s(sT1)} offen sc1")
    nst += 2

    vG, vGo, vSW, vSWo, vTRb, vTRo, vTA = 116, 117, 118, 122, 124, 125, 126
    POOL = [40, 72]
    TEMPS = [104, 32]
    sXo = sRo + 1
    A(f"s_lshl_b32 {s(sT0)}, {s(sH)}, 8")
    A(f"s_lshl_b32 {s(sT1)}, {s(sWAVE)}, 18")
    A(f"s_add_u32 {s(sT0)}, {s(sT0)}, {s(sT1)}")
    lane_expr(A, vG, vL, [(4, 2, 8192), (0, 4, 16)], sregs=[sT0])
    A(f"s_lshl_b32 {s(sT0)}, {s(sH)}, 17")
    A(f"s_lshl_b32 {s(sT1)}, {s(sWAVE)}, 8")
    A(f"s_add_u32 {s(sT0)}, {s(sT0)}, {s(sT1)}")
    lane_expr(A, vGo, vL, [(4, 2, 1024), (0, 4, 16)], sregs=[sT0])
    A(f"s_lshl_b32 {s(sXo)}, {s(sWAVE)}, 15")

    RIDX = {0: 0, 1: 1, 4: 2, 5: 3, 6: 4, 7: 5}
    wo_ops = [(cg, 0) for cg in range(4)] + [(cg, ks) for cg in range(4) for ks in range(1, 4)]
    WORR = [('a', 224), ('a', 232), ('a', 240), ('a', 248), ('v', 224), ('v', 232), ('v', 240), ('v', 248)]

    def qkv_unit(m, hp, x):
        u = dict(kind='qkv', m=m, hp=hp, x=x, srd={'q': S_A, 'k': S_B, 'v': S_C}[m], needs_temp=(m != 'q'))
        u['soff'] = [(256 * hp + 16 * x + 4 * (k & 3) + 128 * (k >> 2)) * 8192 for k in range(8)]
        return u

    def bind(u, temp):
        if u['kind'] == 'qkv':
            m, hp, x = u['m'], u['hp'], u['x']
            res = []
            for i in range(4):
                sl = hp + 2 * i
                for t_ in range(2):
                    if m == 'q':
                        res.append((('a', 16 * sl + 8 * t_ + 4 * x), None))
                    elif sl in (2, 3):
                        fi = (0 if m == 'k' else 4) + 2 * (sl - 2) + t_
                        res.append((('v', temp + 4 * t_), fi * 2048 + 1024 * x))
                    else:
                        res.append(((('a' if m == 'k' else 'v'), 128 + 16 * RIDX[sl] + 8 * t_ + 4 * x), None))
            u['raw'] = [r[0] for r in res]
            u['res'] = res
        else:
            u['raw'] = [('v', temp + 4 * k) for k in range(8)]

    def wo_unit(ks):
        return dict(kind='wo', ks=ks, srd=S_D, soff=[(32 * ks + 4 * k) * 1024 for k in range(8)])
    U = {f"O{k}": wo_unit(k) for k in range(4)}
    for m in 'qkv':
        for hp in range(2):
            for x in range(2):
                U[f"{m.upper()}{hp}{x}"] = qkv_unit(m, hp, x)
    order = {0: "O0 O1 Q00 Q01 Q10 Q11 O2 O3 K00 K01 K10 K11 V00 V01 V10 V11",
             1: "Q00 Q01 Q10 Q11 O0 O1 K00 K01 O2 O3 K10 K11 V00 V01 V10 V11",
             2: "K00 K01 Q00 Q01 Q10 Q11 O0 O1 K10 K11 O2 O3 V00 V01 V10 V11",
             3: "O0 O1 Q00 Q01 Q10 Q11 O2 O3 V00 V01 V10 V11 K00 K01 K10 K11"}[opts.get('word', 0)].split()
    units = [U[n] for n in order]
    vq = Q(A, "vmcnt", 63)
    vq.ops = ['st'] * nst
    free_pool = list(POOL)
    free_temp = list(TEMPS)
    wo_left = [4]
    held = {}
    WIN = opts.get('cwin', 56)
    st_ = dict(issued=0)

    def inflight():
        return len(vq.ops)

    def try_issue():
        while st_['issued'] < len(units):
            u = units[st_['issued']]
            limit = min(WIN + (nst if 'st' in vq.ops else 0), 62)
            if inflight() + 8 > limit:
                return
            if u['kind'] == 'wo':
                if not free_pool:
                    return
                tmp = free_pool.pop(0)
                held[id(u)] = ('pool', tmp)
            elif u['needs_temp']:
                if not free_temp:
                    return
                tmp = free_temp.pop(0)
                held[id(u)] = ('temp', tmp)
            else:
                tmp = None
            bind(u, tmp)
            for k in range(8):
                if u['kind'] == 'wo':
                    A(f"s_xor_b32 {s(sT0)}, {u['soff'][k]:#x}, {s(sXo)}")
                    vq.issue(id(u), f"buffer_load_dwordx4 {reg(u['raw'][k], 4)}, {v(vGo)}, {s(u['srd'],4)}, {s(sT0)} offen")
                else:
                    A(f"s_mov_b32 {s(sT0)}, {u['soff'][k]:#x}")
                    vq.issue(id(u), f"buffer_load_dwordx4 {reg(u['raw'][k], 4)}, {v(vG)}, {s(u['srd'],4)}, {s(sT0)} offen")
            st_['issued'] += 1
    stamp(A, 1) if not opts.get('cprof') else None
    try_issue()
    A(f"s_lshl_b32 {s(sT2)}, {s(sWAVE)}, 13")
    lane_expr(A, vSW, vL, [(4, 2, 256), (1, 3, 32), (0, 1, 16)], sregs=[sT2])
    A(f"v_mov_b32 {v(vSWo)}, {v(vSW)}")
    A(f"v_bfe_u32 {v(vTA)}, {v(vL)}, 4, 1")
    A(f"v_lshlrev_b32 {v(vT0)}, 5, {v(vTA)}")
    A(f"v_xor_b32 {v(vSW)}, {v(vSW)}, {v(vT0)}")
    A(f"v_lshlrev_b32 {v(vT0)}, 6, {v(vTA)}")
    A(f"v_xor_b32 {v(vSWo)}, {v(vSWo)}, {v(vT0)}")
    A(f"v_xor_b32 {v(vSW+1)}, 64, {v(vSW)}")
    A(f"v_xor_b32 {v(vSW+2)}, 0x80, {v(vSW)}")
    A(f"v_xor_b32 {v(vSW+3)}, 0xc0, {v(vSW)}")
    A(f"v_xor_b32 {v(vSWo+1)}, 0x80, {v(vSWo)}")
    A(f"s_lshl_b32 {s(sT3)}, {s(sWAVE)}, 6")
    lane_expr(A, vTRb, vL, [(2, 1, 256 + 32), (4, 1, 1024 + 64), (5, 1, 2048), (3, 1, 4096 + 128), (0, 2, 8)])
    A(f"v_xor_b32 {v(vTRb)}, {s(sT3)}, {v(vTRb)}")
    lane_expr(A, vTRo, vL, [(2, 1, 256 + 64), (4, 1, 4096 + 128), (5, 1, 1024), (3, 1, 32), (0, 2, 8)], sregs=[sT2])
    A(f"s_lshl_b32 {s(sT0)}, {s(sWAVE)}, 15")
    A(f"s_add_u32 {s(sT0)}, {s(sT0)}, {WO_OFF}")
    A(f"v_add_u32 {v(vWo)}, {s(sT0)}, {v(vL16)}")
    vq.wait('st')
    A(f"s_barrier")
    Lci = A.new_label("ci")
    A(f"s_cmp_lg_u32 {s(sWAVE)}, 0")
    A(f"s_cbranch_scc1 {Lci}")
    A(f"s_getreg_b32 {s(sT0)}, hwreg(HW_REG_XCC_ID, 0, 4)")
    A(f"s_mul_i32 {s(sT1)}, {s(sT0)}, {s(sT0)}")
    A(f"s_lshl_b32 {s(sT1)}, {s(sT1)}, 17")
    A(f"s_lshl_b32 {s(sT0)}, {s(sT0)}, 8")
    A(f"s_add_u32 {s(sT0)}, {s(sT0)}, {s(sT1)}")
    A(f"s_add_u32 {s(sT0)}, {s(sT0)}, 1")
    A(f"v_mov_b32 {v(vT0)}, {s(sT0)}")
    A(f"v_mov_b32 {v(vT1)}, 0")
    A(f"s_mov_b64 exec, 1")
    A(f"buffer_atomic_add {v(vT0)}, {v(vT1)}, {s(S_DBG,4)}, 0 offen offset:{D_CHECKIN*4} sc1")
    A(f"s_mov_b64 exec, -1")
    A.label(Lci)
    try_issue()
    A(f"s_lshr_b32 {s(sT3)}, {s(sH)}, 4")
    A(f"s_lshl_b32 {s(sT3)}, {s(sT3)}, 10")
    A(f"s_lshr_b32 {s(sT4)}, {s(sH)}, 1")
    A(f"s_and_b32 {s(sT4)}, {s(sT4)}, 3")
    A(f"s_lshl_b32 {s(sT4)}, {s(sT4)}, 8")
    A(f"s_add_u32 {s(sT3)}, {s(sT3)}, {s(sT4)}")
    A(f"s_and_b32 {s(sT4)}, {s(sH)}, 8")
    A(f"s_lshl_b32 {s(sT4)}, {s(sT4)}, 2")
    A(f"s_add_u32 {s(sT3)}, {s(sT3)}, {s(sT4)}")
    A(f"s_and_b32 {s(sT4)}, {s(sH)}, 1")
    A(f"s_lshl_b32 {s(sT4)}, {s(sT4)}, 3")
    A(f"s_add_u32 {s(sT3)}, {s(sT3)}, {s(sT4)}")
    lane_expr(A, vMst, vL, [(1, 2, 64), (0, 1, 16), (5, 1, 4)], sregs=[sT3])
    A(f"v_and_b32 {v(vT1)}, 24, {v(vL)}")
    A(f"v_cmp_ne_u32 vcc, 0, {v(vT1)}")
    A(f"v_mov_b32 {v(vT1)}, {OOB:#x}")
    A.nop(1)
    A(f"v_cndmask_b32 {v(vMst)}, {v(vMst)}, {v(vT1)}, vcc")
    for (dst, bit) in ((vIdx, 2), (vIdxW, 8)):
        A(f"v_mov_b32 {v(dst)}, 0x4444")
        A(f"v_mov_b32 {v(vT0)}, 0xeeee")
        A(f"v_and_b32 {v(vT1)}, {bit}, {v(vL)}")
        A(f"v_cmp_ne_u32 vcc, 0, {v(vT1)}")
        A.nop(2)
        A(f"v_cndmask_b32 {v(dst)}, {v(dst)}, {v(vT0)}, vcc")
    A(f"s_lshl_b32 {s(sT0)}, {s(sWAVE)}, 9")
    lane_expr(A, vQKw, vL, [(0, 4, 16), (4, 2, 4)], sregs=[sT0])
    A(f"s_lshl_b32 {s(sT0)}, {s(sWAVE)}, 10")
    A(f"s_lshr_b32 {s(sT1)}, {s(sWAVE)}, 1")
    A(f"s_lshl_b32 {s(sT1)}, {s(sT1)}, 11")
    A(f"s_add_u32 {s(sT0)}, {s(sT0)}, {s(sT1)}")
    lane_expr(A, vKw, vL, [(0, 4, 32), (4, 2, 8)], const=2048, sregs=[sT0])
    lane_expr(A, vKr, vL, [(5, 1, 512), (4, 1, 128), (2, 2, 32), (0, 2, 8)])
    lane_expr(A, vQKr, vL, [(5, 1, 256), (4, 1, 64), (2, 2, 16), (0, 1, 8)])
    A(f"s_lshl_b32 {s(sT0)}, {s(sWAVE)}, 9")
    lane_expr(A, vOw, vL, [(4, 2, 128), (0, 3, 16)], const=O_OFF, sregs=[sT0])
    A(f"s_lshl_b32 {s(sT0)}, {s(sWAVE)}, 11")
    A(f"s_add_u32 {s(sT0)}, {s(sT0)}, {MEM_OFF}")
    A(f"v_add_u32 {v(vMw)}, {s(sT0)}, {v(vL16)}")
    A(f"s_lshl_b32 {s(sT0)}, {s(sWAVE)}, 16")
    A(f"s_lshl_b32 {s(sT1)}, {s(sH)}, 6")
    lane_expr(A, vPst, vL, [(5, 1, 32768), (2, 2, 8192), (0, 2, 16), (4, 1, 8)], sregs=[sT0, sT1])
    A(f"s_lshl_b32 {s(sT0)}, {s(sH)}, 13")
    A(f"s_lshl_b32 {s(sT1)}, {s(sWAVE)}, 11")
    lane_expr(A, vRed, vL, [(4, 2, 256), (0, 2, 64), (2, 2, 16)], sregs=[sT0, sT1])
    A(f"s_and_b32 {s(sT1)}, {s(sWAVE)}, 1")
    A(f"s_lshl_b32 {s(sT1)}, {s(sT1)}, 13")
    A(f"s_lshl_b32 {s(sT0)}, {s(sH)}, 14")
    A(f"s_add_u32 {s(sT0)}, {s(sT0)}, {s(sT1)}")
    A(f"v_lshlrev_b32 {v(vPf)}, 6, {v(vL)}")
    A(f"v_add_u32 {v(vPf)}, {s(sT0)}, {v(vPf)}")
    A(f"s_mov_b32 {s(sMLo)}, -1")
    A(f"s_mov_b32 {s(sMLo+1)}, 0")
    A(f"s_mov_b32 {s(sMHi)}, 0")
    A(f"s_mov_b32 {s(sMHi+1)}, -1")
    A(f"s_mov_b32 {s(sC)}, {f32_hex(SCALE_C):#x}")
    A(f"s_mov_b32 {s(sNC)}, {f32_hex(-SCALE_C):#x}")
    A(f"v_and_b32 {v(vT0)}, 15, {v(vL)}")
    A(f"v_mov_b32 {v(vS0)}, 0x3f80")
    A(f"v_mov_b32 {v(vT1)}, 0x3f800000")
    A(f"v_and_b32 v112, 1, {v(vT0)}")
    A(f"v_cmp_eq_u32 vcc, 1, v112")
    A.nop(2)
    A(f"v_cndmask_b32 {v(vS0)}, {v(vS0)}, {v(vT1)}, vcc")
    A(f"v_lshrrev_b32 {v(vT0)}, 1, {v(vT0)}")
    for i in range(4):
        A(f"v_cmp_eq_u32 vcc, {i}, {v(vT0)}")
        A.nop(2)
        A(f"v_cndmask_b32 {v(vSEL+i)}, 0, {v(vS0)}, vcc")
    for i in range(4):
        A(f"v_mov_b32 {v(vONE+i)}, 0x3f803f80")
    for i in range(1, 4):
        A(f"v_mov_b32 {v(vBM+i)}, 0")

    for b, u in enumerate(units):
        assert st_['issued'] > b, "loader deadlock"
        vq.wait(id(u))
        A(f"s_barrier")
        if u['kind'] == 'qkv':
            for k in range(8):
                A(f"ds_write_b128 {v(vSW + (k & 1) + 2 * (k >> 2))}, {reg(u['raw'][k], 4)} offset:{k * 1024}")
            A(f"s_waitcnt lgkmcnt(0)")
            A(f"s_barrier")
            x = u['x']
            for i in range(4):
                for t_ in range(2):
                    r_, fin = u['res'][2 * i + t_]
                    A(f"v_xor_b32 {v(vTA + (t_ & 1))}, {(i << 13) | (t_ << 5):#x}, {v(vTRb)}")
                    for q0 in range(2):
                        A(f"ds_read_b64_tr_b16 {reg(off(r_, 2 * q0), 2)}, {v(vTA + (t_ & 1))} offset:{512 * q0}")
            A(f"s_waitcnt lgkmcnt(0)")
            for (r_, fin) in u['res']:
                if fin is not None:
                    A(f"ds_write_b128 {v(vWo)}, {reg(r_, 4)} offset:{fin}")
        else:
            ks = u['ks']
            for k in range(8):
                A(f"ds_write_b128 {v(vSWo + (k >> 2))}, {reg(u['raw'][k], 4)} offset:{k * 1024}")
            base = u['raw'][0][1]
            fins = []
            for cg in range(4):
                io = wo_ops.index((cg, ks))
                dst = WORR[io] if io < 8 else ('v', base + 8 * cg)
                A(f"v_xor_b32 {v(vTA + (cg & 1))}, {cg << 6:#x}, {v(vTRo)}")
                for i in range(4):
                    A(f"ds_read_b64_tr_b16 {reg(off(dst, 2 * i), 2)}, {v(vTA + (cg & 1))} offset:{(8 * (i >> 1) + 2 * (i & 1)) * 256}")
                if io >= 8:
                    fins.append((dst, io * 2048))
            A(f"s_waitcnt lgkmcnt(0)")
            for (dst, o) in fins:
                A(f"ds_write_b128 {v(vWo)}, {reg(dst, 4)} offset:{o}")
                A(f"ds_write_b128 {v(vWo)}, {reg(off(dst, 4), 4)} offset:{o + 1024}")
        if id(u) in held:
            kind, tmp = held[id(u)]
            A(f"s_waitcnt lgkmcnt(0)")
            if kind == 'pool':
                wo_left[0] -= 1
                if wo_left[0] >= 2:
                    free_pool.append(tmp)
                else:
                    free_temp.extend([tmp + 8 * j for j in range(4)])
            else:
                free_temp.append(tmp)
        if opts.get('prof') and not opts.get('cprof') and b in (0, 3, 7, 11):
            stamp(A, {0: 4, 3: 5, 7: 6, 11: 7}[b])
        try_issue()
    A("s_waitcnt lgkmcnt(0)")
    stamp(A, 2) if not opts.get('cprof') else None
    A(f"s_barrier")
    mk_srd(A, S_A, P_MEM0, 8192)
    A(f"s_lshl_b32 {s(sT0)}, {s(sWAVE)}, 6")
    lane_expr(A, vT0, vL, [(2, 2, 2048), (0, 1, 1024), (1, 1, 256), (4, 2, 16)])
    A(f"buffer_load_dwordx4 {v(X+24,4)}, {v(vT0)}, {s(S_A,4)}, 0 offen")
    A(f"buffer_load_dwordx4 {v(X+28,4)}, {v(vT0)}, {s(S_A,4)}, 0 offen offset:512")
    A(f"buffer_load_dwordx4 {v(X+8,4)}, {v(vT0)}, {s(S_A,4)}, {s(sT0)} offen")
    A(f"buffer_load_dwordx4 {v(X+12,4)}, {v(vT0)}, {s(S_A,4)}, {s(sT0)} offen offset:512")
    A(f"s_waitcnt vmcnt(0)")
    A(f"ds_write_b128 {v(vMw)}, {v(X+8,4)}")
    A(f"ds_write_b128 {v(vMw)}, {v(X+12,4)} offset:1024")
    for i in range(16):
        A(f"v_mov_b32 {v(ACC+i)}, 0")
    for i in range(8):
        A(f"v_mov_b32 {v(Y+24+i)}, 0")
    A(f"s_lshl_b32 {s(sW2k)}, {s(sWAVE)}, 11")
    A(f"s_mov_b32 {s(sSlotP4)}, {WS_P + 4096}")
    A(f"s_cmp_eq_u32 {s(sWAVE)}, 0")
    A(f"s_cselect_b32 {s(sGw)}, {OOB:#x}, {s(sW2k)}")
    A(f"s_and_b32 {s(sTag)}, {s(sH)}, 1")
    A(f"s_xor_b32 {s(sTag)}, {s(sTag)}, 1")
    A(f"s_lshl_b32 {s(sFb)}, {s(sH)}, 7")
    A(f"s_add_u32 {s(sFb)}, {s(sFb)}, {WS_KVF:#x}")
    A(f"s_mov_b32 {s(sT5)}, {s(sFb)}")
    A(f"s_cmp_ge_u32 {s(sWAVE)}, 2")
    A(f"s_mov_b32 {s(sT0)}, {OOB:#x}")
    A(f"s_mov_b32 {s(sPf)}, {WS_KX + 0x80000:#x}")
    A(f"s_cselect_b32 {s(sPf)}, {s(sPf)}, {s(sT0)}")
    A(f"s_add_u32 {s(sM0K)}, {s(sW2k)}, {KX_OFF}")
    A(f"s_lshl_b32 {s(sKn)}, {s(sH)}, 14")
    A(f"s_add_u32 {s(sKn)}, {s(sKn)}, {s(sW2k)}")
    A(f"s_add_u32 {s(sKn)}, {s(sKn)}, {WS_KX:#x}")
    A(f"s_add_u32 {s(sM0V)}, {s(sW2k)}, {VX_OFF}")
    A(f"s_lshl_b32 {s(sKV)}, {s(sH)}, 14")
    A(f"s_add_u32 {s(sKV)}, {s(sKV)}, {s(sW2k)}")
    A(f"s_add_u32 {s(sKV)}, {s(sKV)}, {WS_KX:#x}")
    A(f"s_lshl_b32 {s(sKM)}, {s(sH)}, 12")
    A(f"s_add_u32 {s(sKM)}, {s(sKM)}, {WS_KM:#x}")
    A(f"s_mov_b32 {s(sJ4)}, 8")
    A(f"s_mov_b32 {s(sCn)}, 1")
    A(f"s_mov_b32 {s(sNeed)}, 1")
    A(f"s_add_u32 {s(sFo)}, {s(sFb)}, 8")
    A(f"v_mov_b32 {v(vT1)}, 0")
    A(f"s_mov_b32 {s(sT2)}, {D_CHECKIN*4}")
    A(f"s_mov_b32 {s(sT3)}, 0")
    wait_byte(A, vFlag, vT1, sT2, sT3, 32, "ci", sleep=1)
    A(f"buffer_load_dword {v(vFlag)}, {v(vT1)}, {s(S_DBG,4)}, 0 offen offset:{D_CHECKIN*4} sc1")
    A(f"s_getreg_b32 {s(sT0)}, hwreg(HW_REG_XCC_ID, 0, 4)")
    A(f"s_mul_i32 {s(sT1)}, {s(sT0)}, {s(sT0)}")
    A(f"s_lshl_b32 {s(sT1)}, {s(sT1)}, 22")
    A(f"s_lshl_b32 {s(sT0)}, {s(sT0)}, 13")
    A(f"s_add_u32 {s(sT0)}, {s(sT0)}, {s(sT1)}")
    A(f"s_add_u32 {s(sT0)}, {s(sT0)}, 32")
    A(f"s_waitcnt vmcnt(0)")
    A(f"v_readfirstlane_b32 {s(sT1)}, {v(vFlag)}")
    A(f"s_cmp_eq_u32 {s(sT0)}, {s(sT1)}")
    A(f"s_cselect_b32 {s(sFastF)}, 1, 0")
    for j in range(2):
        Lp = A.new_label("kvp")
        Ld = A.new_label("kvd")
        A(f"s_mov_b32 {s(sRet)}, 0")
        A(f"s_cmp_lg_u32 {s(sDEAD)}, 0")
        A(f"s_cbranch_scc1 {Ld}")
        A.label(Lp)
        A(f"buffer_load_dword {v(vFlag)}, off, {s(S_WS,4)}, {s(sT5)} offset:{4*j} sc1")
        A(f"s_waitcnt vmcnt(0)")
        A(f"v_readfirstlane_b32 {s(sT0)}, {v(vFlag)}")
        A(f"s_cmp_ge_u32 {s(sT0)}, 1")
        A(f"s_cbranch_scc1 {Ld}")
        A(f"s_sleep 1")
        A(f"s_add_u32 {s(sRet)}, {s(sRet)}, 1")
        A(f"s_cmp_lt_u32 {s(sRet)}, {SPIN_LIMIT}")
        A(f"s_cbranch_scc1 {Lp}")
        A(f"s_mov_b32 {s(sDEAD)}, 1")
        A.label(Ld)
    A(f"s_mov_b32 m0, {s(sM0K)}")
    A(f"s_nop 0")
    for i in range(2):
        A(f"buffer_load_dwordx4 {v(vL16)}, {s(S_WS,4)}, {s(sKn)} offen offset:{1024*i} lds")
    A(f"s_mov_b32 {s(sS)}, 0")
    A(f"s_waitcnt vmcnt(0) lgkmcnt(0)")
    A(f"s_barrier")
    stamp(A, 3) if not opts.get('cprof') else None
    if opts.get('cprof'):
        A(f"s_mov_b32 {s(sCP0)}, 0")
        A(f"s_mov_b32 {s(sCP1)}, 0")
    A(f"s_cmp_eq_u32 {s(sFastF)}, 1")
    if opts.get('forceslow'):
        A(f"s_branch L_own1_s")
    A(f"s_cbranch_scc0 L_own1_s")
    A(f"s_branch L_own1_f")
    gen_step(A, True, opts)
    gen_step(A, False, opts)


def G_tr(A, vD, vL, kind, base_sreg):
    tr_lane_addr(A, vD, vL, vT0, vS0, kind, base_sreg=base_sreg)
```

```python
import sys
from dsl import *

KNAME = "gated_mix__memory_aug_recurrent_mem_tr__dense_activation_silu__prompt_kernel"

WS_P = 0
WS_M = 0x100000
WS_KVF = 0x110000
WS_OF = 0x120000
WS_KM = 0x200000
WS_KX = 0x1000000
KVSTR = 16384
WS_QX = 0x3000000
WS_OX = 0x4000000
WS_HX = 0x5000000
HX_STRIDE = 2 * 43 * 1024
WS_G = 0x5800000
WS_T = 0x5810000
WS_SIZE = 0x5860000

D_CHECKIN = 0
D_XCCMASK = 1
D_FFN = 2
D_ERR = 4
D_WDONE = 5
D_KV = 8
D_O = 24
D_PROG = 40

S_WS, S_DBG, S_X, S_A, S_B, S_C, S_D = 4, 8, 12, 16, 20, 24, 28
sWAVE, sIDX, sXCD = 32, 33, 34
sT0, sT1, sT2, sT3, sT4, sT5 = 35, 36, 37, 38, 39, 40
sDEAD = 41
sEX = 42
P_X, P_MEM0, P_WQ, P_WK, P_WV, P_WO, P_W1, P_W2, P_GATE, P_OUT, P_DBG, P_WS = 64, 66, 68, 70, 72, 74, 80, 82, 84, 86, 88, 90
SPIN_LIMIT = 1 << 17

LDS_BYTES = 160 * 1024


def mk_srd(A, d, p, size):
    A(f"s_mov_b32 {s(d)}, {s(p)}")
    A(f"s_mov_b32 {s(d+1)}, {s(p+1)}")
    A(f"s_mov_b32 {s(d+2)}, {size:#x}")
    A(f"s_mov_b32 {s(d+3)}, 0x00020000")


def wait_byte(A, vT, vZero, s_off, s_shift, target, tag, s_tmp=sT0, s_cnt=sT1, target_is_sreg=False, sleep=2):
    L = A.new_label("w" + tag)
    Ld = A.new_label("wd" + tag)
    A(f"s_mov_b32 {s(s_cnt)}, 0")
    A(f"s_cmp_lg_u32 {s(sDEAD)}, 0")
    A(f"s_cbranch_scc1 {Ld}")
    A.label(L)
    A(f"buffer_load_dword {v(vT)}, {v(vZero)}, {s(S_DBG,4)}, {s(s_off)} offen sc1")
    A(f"s_waitcnt vmcnt(0)")
    A(f"v_readfirstlane_b32 {s(s_tmp)}, {v(vT)}")
    A(f"s_lshr_b32 {s(s_tmp)}, {s(s_tmp)}, {s(s_shift)}")
    A(f"s_and_b32 {s(s_tmp)}, {s(s_tmp)}, 0xff")
    A(f"s_cmp_ge_u32 {s(s_tmp)}, {s(target) if target_is_sreg else target}")
    A(f"s_cbranch_scc1 {Ld}")
    if sleep:
        A(f"s_sleep {sleep}")
    A(f"s_add_u32 {s(s_cnt)}, {s(s_cnt)}, 1")
    A(f"s_cmp_lt_u32 {s(s_cnt)}, {SPIN_LIMIT}")
    A(f"s_cbranch_scc1 {L}")
    A(f"s_mov_b32 {s(sDEAD)}, 1")
    A.label(Ld)


def signal_byte(A, vOne, vZero, s_off, s_shift, vTmp):
    A(f"s_lshl_b32 {s(sT0)}, 1, {s(s_shift)}")
    A(f"v_mov_b32 {v(vTmp)}, {s(sT0)}")
    A(f"s_mov_b64 {s(sEX,2)}, exec")
    A(f"s_mov_b64 exec, 1")
    A(f"buffer_atomic_add {v(vTmp)}, {v(vZero)}, {s(S_DBG,4)}, {s(s_off)} offen sc1")
    A(f"s_mov_b64 exec, {s(sEX,2)}")


PROF = False
sSTAMP = 92


def stamp(A, i):
    if not PROF:
        return
    A(f"s_memrealtime s[62:63]")
    A(f"s_waitcnt lgkmcnt(0)")
    A(f"s_mov_b32 {s(sSTAMP+i)}, s62")


def stamp_clk(A, i):
    if not PROF:
        return
    A(f"s_memtime s[62:63]")
    A(f"s_waitcnt lgkmcnt(0)")
    A(f"s_mov_b32 {s(sSTAMP+i)}, s62")


def stamp_if_lt(A, i, sreg, limit, clk=False):
    if not PROF:
        return
    L = A.new_label("st")
    A(f"s_cmp_lt_u32 {s(sreg)}, {limit}")
    A(f"s_cbranch_scc0 {L}")
    (stamp_clk if clk else stamp)(A, i)
    A.label(L)


def stamp_flush(A):
    if not PROF:
        return
    A(f"s_lshl_b32 s62, s2, 2")
    A(f"s_add_u32 s62, s62, {s(sWAVE)}")
    A(f"s_lshl_b32 s62, s62, 6")
    A(f"s_add_u32 s62, s62, {WS_T:#x}")
    A(f"v_mov_b32 v1, 0")
    A(f"s_mov_b64 exec, 1")
    for i in range(10):
        A(f"v_mov_b32 v2, {s(sSTAMP+i)}")
        A(f"buffer_store_dword v2, v1, {s(S_WS,4)}, s62 offen offset:{4*i}")
    A(f"s_waitcnt vmcnt(0)")


STG_BUF = 3072


def stage_addr(row):
    return 64 * row + 128 * (row >> 2)


def load_blocks(A, blocks, vST, window, after_first_issue=None, nolds=False):
    n = len(blocks)

    def issue(b):
        blk = blocks[b]
        for k in range(2):
            so = blk['soff'][k]
            A(f"s_mov_b32 {s(sT0)}, {so:#x}")
            if blk.get('sbase') is not None:
                A(f"s_add_u32 {s(sT0)}, {s(sT0)}, {s(blk['sbase'])}")
            A(f"buffer_load_dwordx4 {reg(off(blk['raw'], 4*k), 4)}, {v(blk['voff'])}, {s(blk['srd'],4)}, {s(sT0)} offen")

    issued = 0
    def can_issue(b, done):
        r = blocks[b]['raw']
        for p in range(b):
            if blocks[p]['raw'] == r or blocks[p].get('dst') == r:
                if p >= done:
                    return False
        return True

    while issued < n and issued < window and can_issue(issued, 0):
        issue(issued)
        issued += 1
    if after_first_issue:
        after_first_issue(2 * issued)
    for b in range(n):
        blk = blocks[b]
        assert issued > b, "window deadlock"
        A(f"s_waitcnt vmcnt({2*(issued-b-1)})")
        buf = (b & 1) * STG_BUF
        if not nolds:
            A(f"ds_write_b128 {v(vST)}, {reg(blk['raw'],4)} offset:{buf}")
            A(f"ds_write_b128 {v(vST)}, {reg(off(blk['raw'],4),4)} offset:{buf + stage_addr(16)}")
            for i in range(4):
                A(f"ds_read_b64_tr_b16 {reg(off(blk['dst'],2*i),2)}, {v(blk['vtr'])} offset:{buf + blk['imm'][i]}")
        if blk.get('post'):
            blk['post'](A)
        while issued < n and issued - b - 1 < window and can_issue(issued, b + 1):
            issue(issued)
            issued += 1
    A("s_waitcnt lgkmcnt(0)")


def load_blocks2(A, blocks, vST, window, extra=None, nolds=False, vq=None, upto=None):
    n = len(blocks)
    vq = vq or Q(A, "vmcnt", 63)
    state = dict(issued=0, xi=False, xc=False)

    def issue(b):
        blk = blocks[b]
        for k in range(2):
            A(f"s_mov_b32 {s(sT0)}, {blk['soff'][k]:#x}")
            vq.issue(('B', id(blk)), f"buffer_load_dwordx4 {reg(off(blk['raw'], 4*k), 4)}, {v(blk['voff'])}, {s(blk['srd'],4)}, {s(sT0)} offen")
        state['issued'] += 1
        if extra and b == extra[0]:
            extra[1](vq)
            state['xi'] = True
    while state['issued'] < n and state['issued'] < window:
        issue(state['issued'])
    for b in range(n):
        blk = blocks[b]
        vq.wait(('B', id(blk)))
        if extra and state['xi'] and not state['xc'] and b > extra[0]:
            extra[2](vq)
            state['xc'] = True
        buf = (b & 1) * STG_BUF
        if not nolds:
            A(f"ds_write_b128 {v(vST)}, {reg(blk['raw'],4)} offset:{buf}")
            A(f"ds_write_b128 {v(vST)}, {reg(off(blk['raw'],4),4)} offset:{buf + stage_addr(16)}")
            for i in range(4):
                A(f"ds_read_b64_tr_b16 {reg(off(blk['dst'],2*i),2)}, {v(blk['vtr'])} offset:{buf + blk['imm'][i]}")
        if blk.get('post'):
            blk['post'](A)
        while state['issued'] < n and state['issued'] - b - 1 < window:
            issue(state['issued'])
    if extra and not state['xc']:
        extra[2](vq)
    A("s_waitcnt lgkmcnt(0)")


def tr_lane_addr(A, vD, vL, vT1, vT2, kind, base_sreg=None, base_imm=0):
    A(f"v_lshrrev_b32 {v(vT1)}, 4, {v(vL)}")
    A(f"v_bfe_u32 {v(vT2)}, {v(vL)}, 2, 2")
    A(f"v_and_b32 {v(vD)}, 3, {v(vL)}")
    A(f"v_lshlrev_b32 {v(vD)}, 3, {v(vD)}")

    def add_term(expr_src, mask_shift, mul):
        sh, bits = mask_shift
        A(f"v_bfe_u32 v{TMPX}, {v(expr_src)}, {sh}, {bits}")
        A(f"v_mul_u32_u24 v{TMPX}, {mul}, v{TMPX}")
        A(f"v_add_u32 {v(vD)}, {v(vD)}, v{TMPX}")

    G, r = vT1, vT2
    def sa(row):
        return stage_addr(row)
    if kind == 'chain_qkv':
        add_term(G, (1, 1), sa(8)); add_term(G, (0, 1), sa(4)); add_term(r, (0, 1), sa(1)); add_term(r, (1, 1), 32)
    elif kind == 'chain_wo':
        add_term(G, (0, 1), sa(16)); add_term(G, (1, 1), sa(4)); add_term(r, (0, 1), sa(1)); add_term(r, (1, 1), 32)
    elif kind == 'k16':
        add_term(G, (1, 1), sa(8)); add_term(r, (0, 2), sa(1)); add_term(G, (0, 1), 32)
    elif kind == 'out_wo':
        add_term(G, (0, 2), sa(4)); add_term(r, (0, 2), sa(1))
    elif kind == 'out_w2':
        add_term(G, (1, 1), sa(16)); add_term(G, (0, 1), sa(4)); add_term(r, (0, 2), sa(1))
    else:
        raise ValueError(kind)
    if base_sreg is not None:
        A(f"v_add_u32 {v(vD)}, {s(base_sreg)}, {v(vD)}")
    if base_imm:
        A(f"v_add_u32 {v(vD)}, {base_imm}, {v(vD)}")


TR_IMM = {
    'chain_qkv': [stage_addr(16 * hi + 2 * qq) for hi in range(2) for qq in range(2)],
    'chain_wo': [stage_addr(8 * hi + 2 * qq) for hi in range(2) for qq in range(2)],
    'k16': [stage_addr(16 * kk + 4 * hf) for kk in range(2) for hf in range(2)],
    'out_wo': [stage_addr(16 * hf) + 32 * ct for ct in range(2) for hf in range(2)],
    'out_w2': [stage_addr(8 * hf) + 32 * ct for ct in range(2) for hf in range(2)],
}
TMPX = 15


def stage_lane_addr(A, vD, vL, vT, base_sreg):
    A(f"v_lshrrev_b32 {v(vD)}, 2, {v(vL)}")
    A(f"v_lshlrev_b32 {v(vD)}, 6, {v(vD)}")
    A(f"v_lshrrev_b32 {v(vT)}, 4, {v(vL)}")
    A(f"v_lshlrev_b32 {v(vT)}, 7, {v(vT)}")
    A(f"v_add_u32 {v(vD)}, {v(vD)}, {v(vT)}")
    A(f"v_and_b32 {v(vT)}, 3, {v(vL)}")
    A(f"v_lshlrev_b32 {v(vT)}, 4, {v(vT)}")
    A(f"v_add_u32 {v(vD)}, {v(vD)}, {v(vT)}")
    A(f"v_add_u32 {v(vD)}, {s(base_sreg)}, {v(vD)}")


def raw_lane_off(A, vD, vL, vT, pitch):
    A(f"v_lshrrev_b32 {v(vD)}, 2, {v(vL)}")
    A(f"v_mul_u32_u24 {v(vD)}, {pitch}, {v(vD)}")
    A(f"v_and_b32 {v(vT)}, 3, {v(vL)}")
    A(f"v_lshlrev_b32 {v(vT)}, 4, {v(vT)}")
    A(f"v_add_u32 {v(vD)}, {v(vD)}, {v(vT)}")


def lane_expr(A, vD, vL, terms, const=0, sregs=(), tmp=None):
    tmp = TMPX if tmp is None else tmp
    first = True
    for (sh, bits, mul) in terms:
        dst = vD if first else tmp
        A(f"v_bfe_u32 {v(dst)}, {v(vL)}, {sh}, {bits}")
        if mul != 1:
            A(f"v_mul_u32_u24 {v(dst)}, {mul}, {v(dst)}")
        if not first:
            A(f"v_add_u32 {v(vD)}, {v(vD)}, {v(tmp)}")
        first = False
    if first:
        A(f"v_mov_b32 {v(vD)}, 0")
    if const:
        A(f"v_add_u32 {v(vD)}, {const:#x}, {v(vD)}")
    for sr in sregs:
        A(f"v_add_u32 {v(vD)}, {s(sr)}, {v(vD)}")


class Q:
    def __init__(self, A, name, cap):
        self.A, self.name, self.cap = A, name, cap
        self.ops = []

    def issue(self, tag, text):
        self.A(text)
        self.ops.append(tag)

    def wait(self, tag):
        if tag not in self.ops:
            return
        i = max(j for j, t in enumerate(self.ops) if t == tag)
        n = len(self.ops) - 1 - i
        self.A(f"s_waitcnt {self.name}({min(n, self.cap)})")
        if n <= self.cap:
            self.ops = self.ops[i + 1:]
        else:
            self.ops = self.ops[len(self.ops) - self.cap:]

    def wait_all(self):
        self.A(f"s_waitcnt {self.name}(0)")
        self.ops = []


XBUF = 64 * 528
XB1 = 36864


class XG:
    vL, vL16, vXW, vXR, vZero, vTmp, vT1, vT2 = 1, 2, 3, 4, 10, 11, 12, 13
    XP, XF = 16, 48
    NF = 4

    def __init__(self, A, sDelta):
        self.A, self.sDelta = A, sDelta

    def setup(self):
        A = self.A
        vL, vL16, vXW, vXR, vZero, vT1 = self.vL, self.vL16, self.vXW, self.vXR, self.vZero, self.vT1
        A(f"v_and_b32 {v(vL)}, 63, v0")
        A(f"v_lshlrev_b32 {v(vL16)}, 4, {v(vL)}")
        A(f"v_mov_b32 {v(vZero)}, 0")
        A(f"v_mul_u32_u24 {v(vXW)}, 528, {v(vL)}")
        A(f"s_lshl_b32 {s(sT0)}, {s(sWAVE)}, 7")
        A(f"v_add_u32 {v(vXW)}, {s(sT0)}, {v(vXW)}")
        A(f"v_lshrrev_b32 {v(vXR)}, 5, {v(vL)}")
        A(f"v_mul_u32_u24 {v(vXR)}, 528, {v(vXR)}")
        A(f"v_and_b32 {v(vT1)}, 31, {v(vL)}")
        A(f"v_lshlrev_b32 {v(vT1)}, 4, {v(vT1)}")
        A(f"v_add_u32 {v(vXR)}, {v(vXR)}, {v(vT1)}")

    def issue_x(self, seg_sreg, vq=None):
        A = self.A
        if vq is not None:
            A = lambda x_: (vq.issue('x', x_) if x_.startswith('buffer_load') else self.A(x_))
        A(f"s_lshl_b32 {s(sT0)}, {s(seg_sreg)}, 15")
        A(f"s_lshl_b32 {s(sT1)}, {s(sWAVE)}, 13")
        A(f"s_add_u32 {s(sT0)}, {s(sT0)}, {s(sT1)}")
        for i in range(8):
            if i == 4:
                A(f"s_add_u32 {s(sT0)}, {s(sT0)}, 4096")
            A(f"buffer_load_dwordx4 {v(self.XP+4*i,4)}, {v(self.vL16)}, {s(S_X,4)}, {s(sT0)} offen offset:{(i%4)*1024}")

    def write_x(self):
        for i in range(8):
            self.A(f"ds_write_b128 {v(self.vXW)}, {v(self.XP+4*i,4)} offset:{i*16}")

    def after_weights(self):
        A = self.A
        A(f"s_waitcnt lgkmcnt(0)")
        A(f"s_barrier")
        A(f"s_mov_b32 {s(self.sDelta)}, {XB1}")
        A(f"v_add_u32 {v(self.vXW)}, {s(self.sDelta)}, {v(self.vXW)}")

    def body(self, mfmas, wpos=9):
        A, NF, XF = self.A, self.NF, self.XF

        def rd(kk):
            A(f"ds_read_b128 {v(XF + 4*(kk % NF), 4)}, {v(self.vXR)} offset:{kk*1056}")
        for kk in range(NF - 1):
            rd(kk)
        for kk in range(32):
            if kk + NF - 1 < 32:
                rd(kk + NF - 1)
                A(f"s_waitcnt lgkmcnt({NF-1})")
            else:
                A(f"s_waitcnt lgkmcnt({31-kk})")
            mfmas(kk, v(XF + 4 * (kk % NF), 4))
            if wpos is not None and kk == wpos:
                A(f"s_waitcnt vmcnt(0)")
                self.write_x()
                A(f"s_waitcnt lgkmcnt(0)")

    def toggle(self):
        A = self.A
        A(f"v_add_u32 {v(self.vXR)}, {s(self.sDelta)}, {v(self.vXR)}")
        A(f"s_sub_u32 {s(self.sDelta)}, 0, {s(self.sDelta)}")
        A(f"v_add_u32 {v(self.vXW)}, {s(self.sDelta)}, {v(self.vXW)}")


def gen_hq(A, opts):
    vWG, vST, vTR, vKst, vVst = 5, 6, 7, 8, 9
    ACC = 64
    EP = 112
    sH, sJ, sSeg, sNext, sDelta, sSegOff, sKVoff, sKVsh, sXa = 44, 45, 46, 47, 48, 49, 50, 51, 52
    sCnt, sKVF = 53, 60
    xg = XG(A, sDelta)
    vL, vL16, vZero, vTmp, vT1, vT2, XF = xg.vL, xg.vL16, xg.vZero, xg.vTmp, xg.vT1, xg.vT2, xg.XF
    A(f"s_sub_u32 {s(sT0)}, {s(sXCD)}, 3")
    A(f"s_lshl_b32 {s(sT0)}, {s(sT0)}, 5")
    A(f"s_add_u32 {s(sT0)}, {s(sT0)}, {s(sIDX)}")
    A(f"s_mul_i32 {s(sH)}, {s(sT0)}, 205")
    A(f"s_lshr_b32 {s(sH)}, {s(sH)}, 10")
    A(f"s_mul_i32 {s(sT1)}, {s(sH)}, 5")
    A(f"s_sub_u32 {s(sJ)}, {s(sT0)}, {s(sT1)}")
    mk_srd(A, S_A, P_WQ, 512 * 8192)
    mk_srd(A, S_B, P_WK, 512 * 8192)
    mk_srd(A, S_C, P_WV, 512 * 8192)
    xg.setup()
    A(f"s_mov_b32 {s(sSeg)}, {s(sJ)}")
    raw_lane_off(A, vWG, vL, vT1, 8192)
    A(f"s_lshl_b32 {s(sT0)}, {s(sH)}, 8")
    A(f"s_lshl_b32 {s(sT1)}, {s(sWAVE)}, 6")
    A(f"s_add_u32 {s(sT0)}, {s(sT0)}, {s(sT1)}")
    A(f"v_add_u32 {v(vWG)}, {s(sT0)}, {v(vWG)}")
    STG = 80 * 1024
    A(f"s_mul_i32 {s(sT2)}, {s(sWAVE)}, {2*STG_BUF}")
    A(f"s_add_u32 {s(sT2)}, {s(sT2)}, {STG}")
    stage_lane_addr(A, vST, vL, vT1, sT2)
    tr_lane_addr(A, vTR, vL, vT1, vT2, 'k16', base_sreg=sT2)
    A(f"s_lshl_b32 {s(sT0)}, {s(sWAVE)}, 10")
    lane_expr(A, vKst, vL, [(4, 1, 4096), (5, 1, 256), (0, 4, 16)], sregs=[sT0])
    A(f"s_lshl_b32 {s(sT0)}, {s(sWAVE)}, 11")
    lane_expr(A, vVst, vL, [(4, 1, 1024), (5, 1, 256), (0, 4, 16)], sregs=[sT0])

    def wblocks(srd, dst):
        return [dict(srd=srd, voff=vWG, soff=[(32 * b) * 8192, (32 * b + 16) * 8192], raw=off(dst, 8 * b), dst=off(dst, 8 * b),
                     vtr=vTR, imm=TR_IMM['k16']) for b in range(16)]
    kvb = wblocks(S_B, ('a', 128)) + wblocks(S_C, ('v', 128))
    qb = wblocks(S_A, ('a', 0))
    stamp(A, 1)
    if PROF:
        kvb[15]['post'] = lambda A_: stamp(A_, 6)
        kvb[0]['post'] = lambda A_: stamp(A_, 8)

    def x_issue(vq):
        xg.issue_x(sSeg, vq)

    def x_consume(vq):
        vq.wait('x')
        xg.write_x()
        stamp(A, 5)
    hw = opts.get('hqwin', 10)
    load_blocks2(A, kvb, vST, window=hw, extra=(opts.get('hqxpos', 16), x_issue, x_consume))
    stamp(A, 7)
    xg.after_weights()
    A(f"s_mov_b32 {s(sXa)}, -1")
    A(f"s_mov_b32 {s(sCnt)}, 1")
    A(f"s_lshl_b32 {s(sKVF)}, {s(sH)}, 7")
    A(f"s_lshl_b32 {s(sT0)}, {s(sJ)}, 2")
    A(f"s_add_u32 {s(sKVF)}, {s(sKVF)}, {s(sT0)}")
    A(f"s_add_u32 {s(sKVF)}, {s(sKVF)}, {WS_KVF:#x}")
    A(f"buffer_load_dword v15, {v(vZero)}, {s(S_DBG,4)}, 0 offen offset:{D_CHECKIN*4} sc1")

    def mf_k(kk, f):
        c = lambda base: "0" if kk == 0 else v(base, 16)
        A(f"v_mfma_f32_32x32x16_bf16 {v(ACC+16,16)}, {a(128+4*kk,4)}, {f}, {c(ACC+16)}")

    def mf_v(kk, f):
        c = lambda base: "0" if kk == 0 else v(base, 16)
        A(f"v_mfma_f32_32x32x16_bf16 {v(ACC+32,16)}, {f}, {v(128+4*kk,4)}, {c(ACC+32)}")

    def mf_q(kk, f):
        c = lambda base: "0" if kk == 0 else v(base, 16)
        A(f"v_mfma_f32_32x32x16_bf16 {v(ACC,16)}, {a(4*kk,4)}, {f}, {c(ACC)}")

    def seg_offsets():
        A(f"s_lshl_b32 {s(sSegOff)}, {s(sSeg)}, 5")
        A(f"s_add_u32 {s(sSegOff)}, {s(sSegOff)}, {s(sH)}")
        A(f"s_lshl_b32 {s(sKVoff)}, {s(sSegOff)}, 14")
        A(f"s_lshl_b32 {s(sKVsh)}, {s(sSegOff)}, 12")
        A(f"s_lshl_b32 {s(sSegOff)}, {s(sSegOff)}, 13")

    def store_ct(acc, sbase, region, ep):
        for c in range(2):
            for q in range(4):
                A(f"v_cvt_pk_bf16_f32 {v(ep+4*c+q)}, {v(acc+8*c+2*q)}, {v(acc+8*c+2*q+1)}")
        A(f"s_add_u32 {s(sT0)}, {s(sbase)}, {region:#x}")
        for c in range(2):
            A(f"buffer_store_dwordx4 {v(ep+4*c,4)}, {v(vKst)}, {s(S_WS,4)}, {s(sT0)} offen offset:{c*512} sc1")

    def store_kv():
        store_ct(ACC + 16, sKVoff, WS_KX, EP)
        acc = ACC + 32
        for c in range(2):
            for hf in range(2):
                u = c + 2 * hf
                for q in range(2):
                    A(f"v_cvt_pk_bf16_f32 {v(EP+8+4*c+2*hf+q)}, {v(acc+4*u+2*q)}, {v(acc+4*u+2*q+1)}")
        A(f"s_add_u32 {s(sT0)}, {s(sKVoff)}, {WS_KX + 8192:#x}")
        for c in range(2):
            A(f"buffer_store_dwordx4 {v(EP+8+4*c,4)}, {v(vVst)}, {s(S_WS,4)}, {s(sT0)} offen offset:{c*512} sc1")

    def arm_km():
        for i in range(4):
            A(f"v_mov_b32 {v(XF+8+i)}, -1")
        A(f"s_lshl_b32 {s(sT1)}, {s(sWAVE)}, 10")
        A(f"s_add_u32 {s(sT0)}, {s(sKVsh)}, {s(sT1)}")
        A(f"s_add_u32 {s(sT0)}, {s(sT0)}, {WS_KM:#x}")
        A(f"buffer_store_dwordx4 {v(XF+8,4)}, {v(vL16)}, {s(S_WS,4)}, {s(sT0)} offen sc1")

    def flag_store():
        A(f"v_mov_b32 {v(vTmp)}, {s(sCnt)}")
        A(f"s_mov_b64 exec, 1")
        A(f"buffer_store_dword {v(vTmp)}, off, {s(S_WS,4)}, {s(sKVF)} sc1")
        A(f"s_mov_b64 exec, -1")
    xg.body(lambda kk, f: (mf_k(kk, f), mf_v(kk, f)), wpos=None)
    A.nop(12)
    seg_offsets()
    store_kv()
    arm_km()
    vq = Q(A, "vmcnt", 63)
    qn = [0]

    def q_first(vq_):
        pass
    nq0 = opts.get('hqq0', 8)
    for b in range(nq0):
        blk = qb[b]
        for k in range(2):
            A(f"s_mov_b32 {s(sT0)}, {blk['soff'][k]:#x}")
            vq.issue(('B', id(blk)), f"buffer_load_dwordx4 {reg(off(blk['raw'], 4*k), 4)}, {v(blk['voff'])}, {s(blk['srd'],4)}, {s(sT0)} offen")
    A(f"s_waitcnt vmcnt({2*nq0})")
    A(f"s_barrier")
    Lnf1 = A.new_label("hq_nf1")
    Lci = A.new_label("hq_ci")
    A(f"s_cmp_lg_u32 {s(sWAVE)}, 0")
    A(f"s_cbranch_scc1 {Lnf1}")
    A(f"v_readfirstlane_b32 {s(sT0)}, v15")
    A(f"s_and_b32 {s(sT0)}, {s(sT0)}, 0xff")
    A(f"s_cmp_ge_u32 {s(sT0)}, 32")
    A(f"s_cbranch_scc1 {Lci}")
    A(f"s_mov_b32 {s(sT2)}, {D_CHECKIN*4}")
    A(f"s_mov_b32 {s(sT3)}, 0")
    wait_byte(A, vTmp, vZero, sT2, sT3, 32, "hqci", sleep=4)
    A.label(Lci)
    flag_store()
    A.label(Lnf1)
    stamp(A, 3)
    for b in range(16):
        blk = qb[b]
        if b == 0:
            pass
        if b + nq0 < 16:
            nb_ = qb[b + nq0]
        vq.wait(('B', id(blk)))
        buf = (b & 1) * STG_BUF
        A(f"ds_write_b128 {v(vST)}, {reg(blk['raw'],4)} offset:{buf}")
        A(f"ds_write_b128 {v(vST)}, {reg(off(blk['raw'],4),4)} offset:{buf + stage_addr(16)}")
        for i in range(4):
            A(f"ds_read_b64_tr_b16 {reg(off(blk['dst'],2*i),2)}, {v(blk['vtr'])} offset:{buf + blk['imm'][i]}")
        if b + nq0 < 16:
            for k in range(2):
                A(f"s_mov_b32 {s(sT0)}, {nb_['soff'][k]:#x}")
                vq.issue(('B', id(nb_)), f"buffer_load_dwordx4 {reg(off(nb_['raw'], 4*k), 4)}, {v(nb_['voff'])}, {s(nb_['srd'],4)}, {s(sT0)} offen")
    A("s_waitcnt lgkmcnt(0)")
    stamp(A, 2)
    if opts.get('xatt'):
        from gen_xatt import xatt_setup, xatt_task
        xatt_setup(A, xg, sH)
    A(f"s_add_u32 {s(sNext)}, {s(sSeg)}, 5")
    xg.issue_x(sNext)
    xg.body(mf_q, wpos=opts.get('wpos', 9))
    A.nop(12)
    store_ct(ACC, sSegOff, WS_QX, XF)
    xg.toggle()
    A(f"s_waitcnt vmcnt(0) lgkmcnt(0)")
    A(f"s_barrier")
    A(f"s_mov_b32 {s(sXa)}, {s(sSeg)}")
    A(f"s_mov_b32 {s(sSeg)}, {s(sNext)}")

    Lloop = A.new_label("hq_loop")
    Lnoq = A.new_label("hq_noq")
    Lnoflag = A.new_label("hq_noflag")
    A.label(Lloop)
    A(f"s_add_u32 {s(sNext)}, {s(sSeg)}, 5")
    A(f"s_cmp_ge_u32 {s(sSeg)}, 64")
    A(f"s_cbranch_scc1 {Lnoq}")
    xg.issue_x(sNext)
    xg.body(lambda kk, f: (mf_k(kk, f), mf_v(kk, f), mf_q(kk, f)), wpos=opts.get('wpos', 9))
    A.nop(12)
    seg_offsets()
    store_kv()
    store_ct(ACC, sSegOff, WS_QX, XF)
    arm_km()
    xg.toggle()
    A(f"s_waitcnt vmcnt(0) lgkmcnt(0)")
    A(f"s_barrier")
    A(f"s_add_u32 {s(sCnt)}, {s(sCnt)}, 1")
    A(f"s_cmp_lg_u32 {s(sWAVE)}, 0")
    A(f"s_cbranch_scc1 {Lnoflag}")
    flag_store()
    A.label(Lnoflag)
    A.label(Lnoq)
    if opts.get('xatt'):
        xatt_task(A, xg, sH, sXa)
    A(f"s_mov_b32 {s(sXa)}, {s(sSeg)}")
    A(f"s_mov_b32 {s(sSeg)}, {s(sNext)}")
    A(f"s_cmp_lt_u32 {s(sXa)}, 64")
    A(f"s_cbranch_scc1 {Lloop}")
    stamp(A, 4)


def gen(opts):
    global PROF
    PROF = bool(opts.get('prof'))
    A = Asm()
    A.L.append(open("header.txt").read().rstrip("\n"))
    A.L.append(f"; @launch grid=(256,1,1) block=(256,1,1) lds={LDS_BYTES}")
    A.L.append('.amdgcn_target "amdgcn-amd-amdhsa--gfx950"')
    A.L.append(".text")
    A.L.append(f".globl {KNAME}")
    A.L.append(".p2align 8")
    A.L.append(f".type {KNAME},@function")
    A.label(KNAME)
    A(f"s_cmp_ge_u32 s2, 256")
    A(f"s_cbranch_scc1 L_exit")
    A(f"s_load_dwordx16 s[64:79], s[0:1], 0")
    A(f"s_load_dwordx8 s[80:87], s[0:1], 64")
    A(f"s_load_dwordx4 s[88:91], s[0:1], 96")
    A(f"s_and_b32 {s(sXCD)}, s2, 7")
    A(f"s_lshr_b32 {s(sIDX)}, s2, 3")
    A(f"v_lshrrev_b32 v1, 6, v0")
    A(f"s_mov_b32 {s(sDEAD)}, 0")
    A(f"v_readfirstlane_b32 {s(sWAVE)}, v1")
    A(f"s_waitcnt lgkmcnt(0)")
    mk_srd(A, S_WS, P_WS, WS_SIZE)
    mk_srd(A, S_DBG, P_DBG, 256)
    mk_srd(A, S_X, P_X, 2048 * 1024)
    if PROF:
        for i in range(10):
            A(f"s_mov_b32 {s(sSTAMP+i)}, 0")
    stamp(A, 0)
    A(f"s_cmp_eq_u32 {s(sXCD)}, 0")
    A(f"s_cbranch_scc1 L_chain")
    A(f"s_cmp_lt_u32 {s(sXCD)}, 3")
    A(f"s_cbranch_scc1 L_out")
    if opts.get('hq', True):
        gen_hq(A, opts)
    A(f"s_branch L_role_end")
    A.label("L_chain")
    if opts.get('clkprobe'):
        A("s_memrealtime s[44:45]")
        A("s_waitcnt lgkmcnt(0)")
        for i in range(1, 9):
            L = A.new_label("cp")
            A(f"s_add_u32 s46, s44, {i*500}")
            A.label(L)
            A("s_memrealtime s[48:49]")
            A("s_waitcnt lgkmcnt(0)")
            A("s_sub_u32 s50, s48, s46")
            A("s_cmp_lt_i32 s50, 0")
            A(f"s_cbranch_scc1 {L}")
            stamp_clk(A, i)
    if opts.get('chain'):
        cv = opts.get('cv', 7)
        if cv == 4:
            from gen_chain4 import gen_chain
        elif cv == 5:
            from gen_chain5 import gen_chain
        elif cv == 6:
            from gen_chain6 import gen_chain
        else:
            from gen_chain7 import gen_chain
        gen_chain(A, opts)
    A(f"s_branch L_role_end")
    A.label("L_out")
    if opts.get('out'):
        from gen_out import gen_out
        gen_out(A, opts)
    A.label("L_role_end")
    stamp(A, 9)
    A.label("L_flush")
    stamp_flush(A)
    A.label("L_exit")
    A("s_endpgm")
    A.L.append(f""".section .rodata,"a"
.p2align 6
.amdhsa_kernel {KNAME}
  .amdhsa_next_free_vgpr 512
  .amdhsa_next_free_sgpr 102
  .amdhsa_accum_offset 256
  .amdhsa_group_segment_fixed_size 0
  .amdhsa_kernarg_size 112
  .amdhsa_user_sgpr_count 2
  .amdhsa_user_sgpr_kernarg_segment_ptr 1
  .amdhsa_system_sgpr_workgroup_id_x 1
.end_amdhsa_kernel""")
    return A.text()


def main():
    opts = {}
    outp = sys.argv[1]
    for o in sys.argv[2:]:
        if "=" in o:
            k, val = o.split("=")
            opts[k] = int(val)
        else:
            opts[o] = True
    open(outp, "w").write(gen(opts))


if __name__ == "__main__":
    import gen as _g
    _g.main()
```

```python
from dsl import *
import gen as G
from gen import *

QK_OFF, O_OFF, MEM_OFF, KX_OFF, VX_OFF, WO_OFF = 0, 4096, 8192, 16384, 24576, 32768

vL16, vKw, vIdx, vQKw, vQKr, vOw, vMw, vWo, vPst, vRed, vMst, vPf, vFlag, vJunk = range(14)
vT0, vT1 = 14, 15
vSEL = 16
vVM1, vKr, vONE = 20, 21, 22
vBM = 26
vS0, vIdxW = 30, 31
KIMG = [2048, 3072, 6144, 7168]
X = 32
Y = 64
PA = 96
ACC = 112
sH, sS, sSlotP, sSlotP1, sSlotP4, sSlotM, sKM, sKV, sC, sNC, sRet = range(44, 55)
sRa0, sRa2, sFastF = 55, 56, 57
sMLo, sMHi = 58, 60
sU = 76
sFo, sNeed, sJ4, sCn, sPf, sGat, sKn, sM0K, sM0V = 78, 79, 80, 81, 84, 85, 86, 87, 88
sW1k, sRaM, sRaA, sFb, sPfb, sW2k = 64, 65, 66, 67, 68, 69
sPc2, sPc3 = 70, 71
sRo, sRm = 72, 89
sPc = [sSlotP, sSlotP1, sPc2, sPc3]
sTag = 55
vTagE = vPf
sCP0, sCP1 = 82, 83
sKok = 57
OOB = 0x40000000
RED_LIMIT = 1 << 16

LOG2E = 1.4426950408889634
WPOL = ["", " nt", " sc1", " sc0 sc1", " sc1 nt", " sc0", " sc0 nt", " sc0 sc1 nt"]
SCALE_C = (128 ** -0.5) * LOG2E


def f32_hex(x):
    import struct
    return struct.unpack("<I", struct.pack("<f", x))[0]


RT = False
LATE = [False]
CSTEP = [39]


TRACE = [False]


def lstamp(A, i, late=None):
    if TRACE[0]:
        if i <= 8:
            A(f"s_memtime s[{16 + 2 * (i - 1)}:{17 + 2 * (i - 1)}]")
        return
    L = A.new_label("ls")
    if late is None:
        late = i >= 8
    A(f"s_cmp_lg_u32 {s(sS)}, {CSTEP[0] + 1 if late else CSTEP[0]}")
    A(f"s_cbranch_scc1 {L}")
    r = 16 + 2 * (i - 1) if i < 9 else 62
    A(f"{'s_memrealtime' if RT else 's_memtime'} s[{r}:{r+1}]")
    A.label(L)


import re as _re


def _regs(tok):
    tok = tok.strip().rstrip(',')
    m = _re.match(r'^([va])\[(\d+):(\d+)\]$', tok)
    if m:
        return {(m.group(1), i) for i in range(int(m.group(2)), int(m.group(3)) + 1)}
    m = _re.match(r'^([va])(\d+)$', tok)
    if m:
        return {(m.group(1), int(m.group(2)))}
    return set()


def _all_regs(line):
    r = set()
    for tok in _re.findall(r'[va]\[\d+:\d+\]|\b[va]\d+\b', line):
        r |= _regs(tok)
    return r


def gap_reorder(lines, report=False):
    out = []
    i = 0
    n = len(lines)
    issm = lambda x: x.strip().startswith('v_smfmac')
    while i < n:
        out.append(lines[i])
        if issm(lines[i]):
            j = i + 1
            gap = []
            while j < n and not issm(lines[j]) and not lines[j].endswith(':') and not lines[j].strip().startswith(('s_cbranch', 's_branch', 'v_mfma', 's_nop', 's_memtime', 's_memrealtime', 's_cmp')):
                gap.append(lines[j])
                j += 1
            if j < n and issm(lines[j]):
                changed = True
                while changed:
                    changed = False
                    for k in range(len(gap) - 1):
                        a_, b_ = gap[k].strip(), gap[k + 1].strip()
                        if a_.startswith('v_') and not b_.startswith('v_') and 'vcc' not in a_ and 'exec' not in b_:
                            if not (_all_regs(a_) & _all_regs(b_)):
                                gap[k], gap[k + 1] = gap[k + 1], gap[k]
                                changed = True
                nv = sum(1 for g in gap if g.strip().startswith('v_'))
                no = len(gap) - nv
                lastv = all(not gap[k].strip().startswith('v_') or gap[k + 1].strip().startswith('v_') for k in range(len(gap) - 1))
                if report and (nv > 1 or (nv and no > 2) or no > 3 or not lastv):
                    print("gap over budget:", [g.strip()[:40] for g in gap])
            out.extend(gap)
            i = j
            continue
        i += 1
    return out


def gen_step(A, fast, opts):
    i0 = len(A.L)
    gen_step_raw(A, fast, opts)
    if opts.get('reord', 1):
        A.L[i0:] = gap_reorder(A.L[i0:], report=fast and opts.get('report'))


def gen_step_raw(A, fast, opts):
    st = "" if fast else " sc1"
    tag = "f" if fast else "s"
    Lown = [f"L_own0_{tag}", f"L_own1_{tag}"]
    Lcommon = f"L_common_{tag}"
    Llast = f"L_last_{tag}"
    lq = Q(A, "lgkmcnt", 15)
    cp = opts.get('cprof') or opts.get('trace')
    rp = opts.get('rprof')
    AQ, AV, AK = ACC, ACC + 8, Y + 24
    CQ, CK = AQ + 2, AK + 2
    H0, H1 = X + 16, X + 24
    AO = Y
    KXR = {0: X + 16, 4: X + 20, 1: X + 24, 5: X + 28, 2: X, 6: X + 4, 3: X + 8, 7: X + 12}
    RB = [X, X + 8, PA, PA + 8]
    RIDX = {0: 0, 1: 1, 4: 2, 5: 3, 6: 4, 7: 5}

    def WB(m, jj, t):
        if m == 'q':
            return a(16 * jj + 8 * t, 8)
        if jj in (2, 3):
            return v(RB[2 * (jj - 2) + t], 8)
        return (a if m == 'k' else v)(128 + 16 * RIDX[jj] + 8 * t, 8)

    def rdR(m, b, half):
        fi = (0 if m == 'k' else 4) + b
        lq.issue(('R', m, b), f"ds_read_b128 {v(RB[b] + 4*half, 4)}, {v(vWo)} offset:{fi * 2048 + 1024 * half}")
    AC = {'q': AQ, 'k': AK, 'v': AV}
    vA = [None, vT0, vT1, vS0]

    def smf(m, jj, t, areg):
        if m != 'q' and jj in (2, 3):
            lq.wait(('R', m, 2 * (jj - 2) + t))
        A(f"v_smfmac_f32_16x16x64_bf16 {v(AC[m] + 4*t, 4)}, {v(areg, 4)}, {WB(m, jj, t)}, {v(vIdx)}")

    def rdKX(j):
        lq.issue(('KX', j), f"ds_read_b128 {v(KXR[j],4)}, {v(vL16)} offset:{KX_OFF + j*1024}")

    salu = [
        f"s_and_b32 {s(sT4)}, {s(sS)}, 3",
        f"s_lshl_b32 {s(sSlotM)}, {s(sT4)}, 13",
        f"s_add_u32 {s(sSlotM)}, {s(sSlotM)}, {WS_M:#x}",
        f"s_add_u32 {s(sGat)}, {s(sSlotM)}, {s(sW2k)}",
        f"s_xor_b32 {s(sRa2)}, {s(sSlotM)}, 0x4000",
        f"s_xor_b32 {s(sTag)}, {s(sTag)}, 1",
    ]

    def su(n):
        for _ in range(n):
            if salu:
                A(salu.pop(0))

    Lar = f"L_top_{tag}"
    Lspec = f"L_spec_{tag}"
    Lretry0 = f"L_retry0_{tag}"
    rt = opts.get('rtrace')

    def rstamp(k):
        if rt:
            A(f"s_memtime s[{16 + 2*k}:{17 + 2*k}]")

    def con_issue(R):
        A(f"buffer_load_dwordx4 {v(R,4)}, {v(vL16)}, {s(S_WS,4)}, {s(sGat)} offen sc1")
        A(f"buffer_load_dwordx4 {v(R+4,4)}, {v(vL16)}, {s(S_WS,4)}, {s(sGat)} offen offset:1024 sc1")

    def own(H, spec):
        lq.ops = []
        n = 0
        c0 = Y
        for m in 'qkv':
            for jj in range(2):
                for t in range(2):
                    n += 1
                    smf(m, jj, t, H + 4 * jj)
                    if spec and n == 1:
                        A(f"v_max3_u32 {v(c0)}, {v(H)}, {v(H+2)}, {v(H+4)}")
                    elif spec and n == 2:
                        A(f"v_max_u32 {v(c0)}, {v(c0)}, {v(H+6)}")
                    elif spec and n == 3:
                        A(f"v_cmp_eq_u32 vcc, -1, {v(c0)}")
                        A(f"s_add_u32 {s(sRet)}, {s(sRet)}, 1")
                        A(f"s_cbranch_vccnz {Lretry0}")
                    elif n == 4:
                        A(f"s_waitcnt lgkmcnt(0)")
                        A(f"s_barrier")
                    elif 5 <= n <= 10:
                        j2 = n - 5 + 2
                        lq.issue(('A', j2), f"ds_read_b128 {v(AO + 4*(j2-2), 4)}, {v(vA[j2 >> 1])} offset:{(j2 & 1) * 1024}")
                    elif n == 11:
                        A(f"s_mov_b32 m0, {s(sM0V)}")
                        A(f"s_add_u32 {s(sT3)}, {s(sKV)}, 8192")
                        rdR('k', 0, 0)
                    elif n == 12:
                        A(f"buffer_load_dwordx4 {v(vL16)}, {s(S_WS,4)}, {s(sT3)} offen lds")
                        rdR('k', 0, 1)
    if opts.get('lalign'):
        A.L.append(f".p2align {opts['lalign']}")
        for _ in range(opts.get('lpad', 0)):
            A("s_nop 0")
    A.label(Lar)
    A(f"s_barrier")
    if cp:
        lstamp(A, 8)
    rstamp(5)
    for k in range(1, 4):
        A(f"v_xor_b32 {v(vA[k])}, {k << 11:#x}, {v(vMw)}")
    A(f"s_mov_b32 {s(sRet)}, 0")
    for _ in range(opts.get('gdelay', 0)):
        A(f"s_sleep 1")
    con_issue(H0)
    for _ in range(opts.get('gspace', 1)):
        A(f"s_sleep 1")
    con_issue(H1)
    A.label(Lspec)
    A(f"s_waitcnt vmcnt(2)")
    if rt:
        rstamp(6)
    A(f"ds_write_b128 {v(vMw)}, {v(H0,4)}")
    A(f"ds_write_b128 {v(vMw)}, {v(H0+4,4)} offset:1024")
    if cp:
        lstamp(A, 9)
        lstamp(A, 1)
    if rt:
        A("s_memtime s[30:31]")
    own(H0, True)
    A.label(Lcommon)
    n = 12
    for jj in range(2, 8):
        for t in range(2):
            n += 1
            if t == 0:
                lq.wait(('A', jj))
            smf('q', jj, t, AO + 4 * (jj - 2))
            if n == 13:
                A(f"buffer_load_dwordx4 {v(vL16)}, {s(S_WS,4)}, {s(sT3)} offen offset:1024 lds")
                rdR('k', 1, 0)
            elif n == 14:
                A(f"buffer_load_dword {v(vFlag)}, off, {s(S_WS,4)}, {s(sFo)} sc1")
                rdR('k', 1, 1)
            elif n == 15:
                if not opts.get('nopf'):
                    A(f"buffer_load_dword {v(vJunk)}, {v(vPf)}, {s(S_WS,4)}, {s(sPf)} offen")
                rdR('k', 2, 0)
            elif n == 16:
                A(f"s_add_u32 {s(sT3)}, {s(sPf)}, 4096")
                rdR('k', 2, 1)
            elif n == 17:
                if not opts.get('nopf'):
                    A(f"buffer_load_dword {v(vJunk)}, {v(vPf)}, {s(S_WS,4)}, {s(sT3)} offen")
                rdR('k', 3, 0)
                su(1)
            elif n == 18:
                A(f"s_waitcnt vmcnt(5)")
                rdR('k', 3, 1)
                su(1)
            elif 19 <= n <= 22:
                rdKX((0, 4, 1, 5)[n - 19])
                su(1)
            else:
                su(3)
    if cp and not rp:
        lstamp(A, 2)

    def post(m, step):
        t, k = step // 3, step % 3
        T = AC[m] + 4 * t
        if k < 2:
            A(f"v_add_f32 {v(T + k)}, {v(T + k)}, {v(T + k + 2)}")
        else:
            d = {'q': CQ + t, 'k': CK + t, 'v': (vS0, vVM1)[t]}[m]
            A(f"v_cvt_pk_bf16_f32 {v(d)}, {v(T)}, {v(T + 1)}")
    for jj in range(2, 8):
        for t in range(2):
            n += 1
            smf('k', jj, t, AO + 4 * (jj - 2))
            if n == 31:
                lq.issue('wq', f"ds_write2st64_b32 {v(vQKw)}, {v(CQ)}, {v(CQ+1)} offset0:0 offset1:1")
            elif n == 33:
                A(f"s_mov_b32 m0, {s(sM0K)}")
                A(f"s_add_u32 {s(sKn)}, {s(sKn)}, 0x80000")
            elif n == 35:
                lq.wait('wq')
                A(f"s_barrier")
            if 26 <= n <= 30:
                rdR('v', (n - 26) >> 1, (n - 26) & 1)
            elif n in (32, 33, 34):
                rdR('v', (n - 27) >> 1, (n - 27) & 1)
            if n in (31, 32):
                su(1)
            if 25 <= n <= 30:
                post('q', n - 25)
            elif n >= 33:
                A(f"v_mov_b64 {v(ACC + 2*(n - 33), 2)}, 0")
    assert not salu
    if cp and not rp:
        lstamp(A, 3)
    QR, KR = Y, Y + 16

    def trq(i):
        ks, hf = i >> 1, i & 1
        lq.issue(('q', ks), f"ds_read_b64_tr_b16 {v(QR+4*ks+2*hf,2)}, {v(vQKr)} offset:{QK_OFF + (32*ks+8*hf)*16}")

    def trk(i):
        ks, hf = i >> 1, i & 1
        lq.issue(('k', ks), f"ds_read_b64_tr_b16 {v(KR+4*ks+2*hf,2)}, {v(vKr)} offset:{KIMG[ks] + hf*256}")
    trq_at = {38: 0, 39: 1, 40: 2, 41: 3, 42: 4, 44: 5, 45: 6, 46: 7}
    for jj in range(2, 8):
        for t in range(2):
            n += 1
            smf('v', jj, t, AO + 4 * (jj - 2))
            if n in trq_at:
                trq(trq_at[n])
            if 39 <= n <= 42:
                rdKX((2, 6, 3, 7)[n - 39])
            if n == 43:
                lq.issue('wk', f"ds_write2st64_b32 {v(vKw)}, {v(CK)}, {v(CK+1)} offset0:0 offset1:2")
            elif n == 44:
                A(f"buffer_store_dword {v(CK)}, {v(vQKw)}, {s(S_WS,4)}, {s(sKM)} offen sc1")
            elif n == 45:
                A(f"buffer_store_dword {v(CK+1)}, {v(vQKw)}, {s(S_WS,4)}, {s(sKM)} offen offset:256 sc1")
            elif n == 47:
                lq.wait('wk')
                A(f"s_barrier")
                trk(0)
            elif n == 48:
                trk(1)
                A(f"buffer_load_dwordx4 {v(vL16)}, {s(S_WS,4)}, {s(sKn)} offen lds")
            if 37 <= n <= 42:
                post('k', n - 37)
    if cp and not rp:
        lstamp(A, 4)
    T0, T1, TM = PA, PA + 4, PA + 8
    m, t_ = vT0, vT1
    wo_ops = [(cg, 0) for cg in range(4)] + [(cg, ks) for cg in range(4) for ks in range(1, 4)]
    bufs = [X + 16, X + 24, X, X + 8, Y, Y + 8, Y + 16, Y + 24]

    WOR = [a(224, 8), a(232, 8), a(240, 8), a(248, 8), v(224, 8), v(232, 8), v(240, 8), v(248, 8)]

    def rdW(i, half):
        o = (8 + i) * 2048 + 1024 * half
        lq.issue(('W', i), f"ds_read_b128 {v(bufs[i] + 4*half, 4)}, {v(vWo)} offset:{o}")
    for i in range(8):
        ks, t = i >> 1, i & 1
        if i in (0, 4):
            lq.wait(('q', ks + 1))
        T = (T0, T1)[t]
        c = "0" if ks == 0 else v(T, 4)
        A(f"v_mfma_f32_16x16x32_bf16 {v(T,4)}, {v(KXR[4*t+ks],4)}, {v(QR+4*ks,4)}, {c}")
        if i == 0:
            A(f"buffer_load_dwordx4 {v(vL16)}, {s(S_WS,4)}, {s(sKn)} offen offset:1024 lds")
        if i <= 5:
            trk(i + 2)
            post('v', i)
        elif i == 6:
            A(f"buffer_store_dword {v(vS0)}, {v(vQKw)}, {s(S_WS,4)}, {s(sKM)} offen offset:2048 sc1")
            A(f"buffer_store_dword {v(vVM1)}, {v(vQKw)}, {s(S_WS,4)}, {s(sKM)} offen offset:2304 sc1")
    A(f"s_cmp_eq_u32 {s(sS)}, 63")
    A(f"s_cbranch_scc1 {Llast}")
    for ks in range(4):
        if ks in (0, 2):
            lq.wait(('k', ks + 1))
        cm = "0" if ks == 0 else v(TM, 4)
        A(f"v_mfma_f32_16x16x32_bf16 {v(TM,4)}, {v(KR+4*ks,4)}, {v(QR+4*ks,4)}, {cm}")
        rdW(ks >> 1, ks & 1)
        if ks == 1:
            A(f"v_max3_f32 {v(m)}, {v(T0)}, {v(T0+1)}, {v(T0+2)}")
        elif ks == 2:
            A(f"v_max3_f32 {v(t_)}, {v(T0+3)}, {v(T1)}, {v(T1+1)}")
        elif ks == 3:
            A(f"v_max3_f32 {v(m)}, {v(m)}, {v(T1+2)}, {v(T1+3)}")
    ralate = 1

    def rearm(k, now=False):
        if now and k == 2:
            A(f"buffer_store_dwordx4 {v(vSEL,4)}, {v(vMst)}, {s(S_WS,4)}, {s(sRa2)} offen{st}")
    VX0 = Y + 16
    u0, u1 = TM + 2, TM + 3
    A(f"s_waitcnt vmcnt(9)")
    lq.issue('vx', f"ds_read_b128 {v(VX0,4)}, {v(vMw)} offset:{VX_OFF - MEM_OFF}")
    lq.issue('vx', f"ds_read_b128 {v(VX0+4,4)}, {v(vMw)} offset:{VX_OFF - MEM_OFF + 1024}")
    rdW(2, 0)
    rdW(2, 1)
    A(f"v_mov_b64 {v(ACC+10,2)}, 0")
    A(f"v_max3_f32 {v(m)}, {v(m)}, {v(t_)}, {v(TM)}")
    A(f"v_max_f32 {v(u0)}, {v(m)}, {v(TM+1)}")
    A(f"v_max_f32 {v(u1)}, {v(m)}, {v(TM+1)}")
    rdW(3, 0)
    A(f"v_mov_b64 {v(ACC+8,2)}, 0")
    A(f"v_permlane16_swap_b32 {v(u0)}, {v(u1)}")
    A(f"v_max_f32 {v(m)}, {v(u0)}, {v(u1)}")
    A(f"v_max_f32 {v(t_)}, {v(u0)}, {v(u1)}")
    rdW(3, 1)
    A(f"s_nop 0")
    A(f"v_permlane32_swap_b32 {v(m)}, {v(t_)}")
    A(f"v_max_f32 {v(m)}, {v(m)}, {v(t_)}")
    A(f"v_mul_f32 {v(m)}, {s(sNC)}, {v(m)}")
    BX = ACC + 12
    xs = [T0, T0 + 1, T0 + 2, T0 + 3, T1, T1 + 1, T1 + 2, T1 + 3]
    ms = [TM, TM + 1]
    if opts.get('pk', 1):
        def pkf(r):
            A(f"v_pk_fma_f32 {v(r,2)}, {v(r,2)}, {s(sC,2)}, {v(m,2)} op_sel_hi:[1,0,0]")
        pkf(T0)
        pkf(T0 + 2)
        for j in range(8):
            A(f"v_exp_f32 {v(xs[j])}, {v(xs[j])}")
            if j == 1:
                pkf(T1)
            elif j == 3:
                pkf(T1 + 2)
            elif j == 5:
                pkf(TM)
            if j >= 2 and j % 2 == 0:
                q = (j - 2) // 2
                A(f"v_cvt_pk_bf16_f32 {v(BX+q)}, {v(xs[2*q])}, {v(xs[2*q+1])}")
    else:
        for r in xs[:2]:
            A(f"v_fma_f32 {v(r)}, {v(r)}, {s(sC)}, {v(m)}")
        for j in range(8):
            A(f"v_exp_f32 {v(xs[j])}, {v(xs[j])}")
            nx = (xs + ms)[j + 2]
            A(f"v_fma_f32 {v(nx)}, {v(nx)}, {s(sC)}, {v(m)}")
            if j >= 2 and j % 2 == 0:
                q = (j - 2) // 2
                A(f"v_cvt_pk_bf16_f32 {v(BX+q)}, {v(xs[2*q])}, {v(xs[2*q+1])}")
    A(f"v_exp_f32 {v(ms[0])}, {v(ms[0])}")
    A(f"v_cvt_pk_bf16_f32 {v(BX+3)}, {v(xs[6])}, {v(xs[7])}")
    A(f"v_exp_f32 {v(ms[1])}, {v(ms[1])}")
    if cp and not rp:
        lstamp(A, 5)
    O0, O1, LS, PKO = PA, PA + 4, PA + 12, PA + 8
    lq.wait('vx')
    A(f"v_mfma_f32_16x16x32_bf16 {v(LS,4)}, {v(vONE,4)}, {v(BX,4)}, 0")
    A(f"v_cvt_pk_bf16_f32 {v(vBM)}, {v(ms[0])}, {v(ms[1])}")
    A(f"v_mfma_f32_16x16x32_bf16 {v(O0,4)}, {v(VX0,4)}, {v(BX,4)}, 0")
    rdW(4, 0)
    A(f"v_mfma_f32_16x16x32_bf16 {v(O1,4)}, {v(VX0+4,4)}, {v(BX,4)}, 0")
    A(f"v_mfma_f32_16x16x32_bf16 {v(LS,4)}, {v(vONE,4)}, {v(vBM,4)}, {v(LS,4)}")
    A(f"v_mfma_f32_16x16x32_bf16 {v(O0,4)}, {v(vS0,4)}, {v(vBM,4)}, {v(O0,4)}")
    A(f"v_mov_b64 {v(ACC+12,2)}, 0")
    A(f"v_mfma_f32_16x16x32_bf16 {v(O1,4)}, {v(vVM1,4)}, {v(vBM,4)}, {v(O1,4)}")
    rdW(4, 1)
    A(f"v_rcp_f32 {v(m)}, {v(LS)}")
    rdW(5, 0)
    A(f"v_mov_b64 {v(ACC+14,2)}, 0")
    if opts.get('pk', 1):
        def pkm(r):
            A(f"v_pk_mul_f32 {v(r,2)}, {v(r,2)}, {v(m,2)} op_sel_hi:[1,0]")
        pkm(O0)
        pkm(O0 + 2)
        pkm(O1)
        A(f"v_cvt_pk_bf16_f32 {v(PKO)}, {v(O0)}, {v(O0+1)}")
        pkm(O1 + 2)
        A(f"v_cvt_pk_bf16_f32 {v(PKO+1)}, {v(O0+2)}, {v(O0+3)}")
    else:
        for r in range(4):
            A(f"v_mul_f32 {v(O0+r)}, {v(O0+r)}, {v(m)}")
        A(f"v_cvt_pk_bf16_f32 {v(PKO)}, {v(O0)}, {v(O0+1)}")
        A(f"v_cvt_pk_bf16_f32 {v(PKO+1)}, {v(O0+2)}, {v(O0+3)}")
        for r in range(4):
            A(f"v_mul_f32 {v(O1+r)}, {v(O1+r)}, {v(m)}")
    A(f"v_cvt_pk_bf16_f32 {v(PKO+2)}, {v(O1)}, {v(O1+1)}")
    A(f"v_cvt_pk_bf16_f32 {v(PKO+3)}, {v(O1+2)}, {v(O1+3)}")
    lq.issue('wo_', f"ds_write_b128 {v(vOw)}, {v(PKO,4)} offset:0")
    AOr = [PKO, PA, PA + 4, PA + 12]
    vAo = [None, vT0, vT1, vS0]
    for k in range(1, 4):
        A(f"v_xor_b32 {v(vAo[k])}, {k << 9:#x}, {v(vOw)}")
    if cp and not rp:
        lstamp(A, 6)

    def pack(cg, k):
        A(f"v_cvt_pk_bf16_f32 {v(ACC+4*cg+k)}, {v(ACC+4*cg+2*k)}, {v(ACC+4*cg+2*k+1)}")

    def tagp(cg):
        A(f"v_and_or_b32 {v(ACC+4*cg)}, {v(ACC+4*cg)}, -2, {s(sTag)}")

    def pstore(cg):
        A(f"buffer_store_dwordx2 {v(ACC+4*cg,2)}, {v(vPst)}, {s(S_WS,4)}, {s(sPc[cg]) if cg else 0} offen{st}")
    for i, (cg, ks) in enumerate(wo_ops):
        if ks:
            lq.wait(('Ao', ks))
        if i >= 8:
            lq.wait(('W', i - 8))
        A(f"v_smfmac_f32_16x16x64_bf16 {v(ACC+4*cg,4)}, {v(AOr[ks],4)}, {WOR[i] if i < 8 else v(bufs[i - 8],8)}, {v(vIdxW)}")
        if i == opts.get('obar', 1):
            lq.wait('wo_')
            A(f"s_barrier")
            for k in range(1, 4):
                lq.issue(('Ao', k), f"ds_read_b128 {v(AOr[k],4)}, {v(vAo[k])}")
        if i == 2:
            rdW(5, 1)
            rdW(6, 0)
        elif i == 3:
            rdW(6, 1)
            rdW(7, 0)
        elif i == 4:
            rdW(7, 1)
        pst = opts.get('pst', 1)
        if pst == 1:
            if i in (11, 14):
                pstore((i - 11) // 3)
            if i in (8, 11, 14):
                pack((i - 8) // 3, 0)
            elif i in (9, 12, 15):
                pack((i - 9) // 3, 1)
            elif i in (10, 13):
                tagp((i - 10) // 3)
        elif pst == 2:
            if i in (8, 11, 14):
                pack((i - 8) // 3, 0)
                pack((i - 8) // 3, 1)
            elif i in (9, 12, 15):
                tagp((i - 9) // 3)
            elif i in (10, 13):
                pstore((i - 10) // 3)
        elif pst == 3:
            if i in (8, 11, 14):
                pack((i - 8) // 3, 0)
            elif i in (9, 12, 15):
                pack((i - 9) // 3, 1)
                tagp((i - 9) // 3)
            elif i in (10, 13):
                pstore((i - 10) // 3)
    if pst == 1:
        tagp(2)
        pstore(2)
        A(f"s_nop 5")
    else:
        pstore(2)
        A(f"s_nop 6")
    pack(3, 0)
    pack(3, 1)
    tagp(3)
    pstore(3)
    if cp:
        lstamp(A, 7)
    Lnr = A.new_label("notred")

    def bookkeeping():
        A(f"s_add_u32 {s(sS)}, {s(sS)}, 1")
        A(f"s_add_u32 {s(sKM)}, {s(sKM)}, 0x20000")
        A(f"s_add_u32 {s(sKV)}, {s(sKV)}, 0x80000")
        A(f"s_add_u32 {s(sPf)}, {s(sPf)}, 0x80000")
        A(f"s_add_u32 {s(sJ4)}, {s(sJ4)}, 4")
        A(f"s_cmp_eq_u32 {s(sJ4)}, 20")
        A(f"s_cselect_b32 {s(sJ4)}, 0, {s(sJ4)}")
        A(f"s_addc_u32 {s(sCn)}, {s(sCn)}, 0")

    def bookkeeping2():
        A(f"s_add_u32 {s(sFo)}, {s(sFb)}, {s(sJ4)}")
        A(f"s_cmp_lt_u32 {s(sS)}, 62")
        A(f"s_cselect_b32 {s(sNeed)}, {s(sCn)}, 0")

    def zero_acc():
        for i in range(8):
            A(f"v_mov_b64 {v(ACC+2*i,2)}, 0")
        for i in range(4):
            A(f"v_mov_b64 {v(AK+2*i,2)}, 0")

    if opts.get('rbar', 1):
        A(f"s_barrier")
    A(f"s_cmp_lg_u32 {s(sWAVE)}, 0")
    A(f"s_cbranch_scc1 {Lnr}")
    Lred = A.new_label("red")
    Lredok = A.new_label("redok")
    RA = PA
    two = opts.get('rtwo', 0)

    if rt:
        A(f"s_memtime s[62:63]")
        A(f"s_lshl_b32 {s(sT0)}, {s(sH)}, 6")
        A(f"s_add_u32 {s(sT0)}, {s(sT0)}, {s(sS)}")
        A(f"s_lshl_b32 {s(sT0)}, {s(sT0)}, 6")
        A(f"s_add_u32 {s(sT0)}, {s(sT0)}, {WS_T + 0x10000:#x}")
        A(f"s_waitcnt lgkmcnt(0)")
        A(f"v_mov_b32 {v(vT0)}, s16")
        for k in range(1, 8):
            A(f"v_writelane_b32 {v(vT0)}, s{16 + 2*k}, {k}")
        A(f"v_writelane_b32 {v(vT0)}, s{sCP0}, 8")
        A(f"v_writelane_b32 {v(vT0)}, s{sRet}, 9")
        A(f"v_lshrrev_b32 {v(vT1)}, 2, {v(vL16)}")
        A(f"s_mov_b64 exec, 0x3ff")
        A(f"buffer_store_dword {v(vT0)}, {v(vT1)}, {s(S_WS,4)}, {s(sT0)} offen")
        A(f"s_mov_b64 exec, -1")
        A(f"s_mov_b32 s16, s62")
        A(f"s_mov_b32 {s(sCP0)}, 0")
    zero_acc()
    A(f"v_xor_b32 {v(vTagE)}, 1, {v(vTagE)}")
    bookkeeping()
    bookkeeping2()
    A(f"s_mov_b32 {s(sRet)}, 0")
    RS = [[X + 4 * i for i in range(8)], [Y + 4 * i for i in range(6)] + [PA + 8, PA + 12]]
    mode = opts.get('rmode', 1)

    def ld(R, i):
        A(f"buffer_load_dwordx4 {v(R[i],4)}, {v(vRed)}, {s(S_WS,4)}, {0 if i < 4 else s(sSlotP4)} offen offset:{(i%4)*1024} sc1")

    def chk(R, other, cnt, first=False):
        ys = [vT0, vT1, vS0, vT1, vS0, vT1, vS0, vT1]
        if rt:
            A(f"s_add_u32 {s(sCP0)}, {s(sCP0)}, 1")
        for i in range(8):
            A(f"s_waitcnt vmcnt({cnt(i)})")
            if first and i == 0:
                rstamp(2)
            if first and i == 7:
                rstamp(3)
            c = "0" if i == 0 else v(RA, 4)
            A(f"v_mfma_f32_16x16x32_bf16 {v(RA,4)}, {v(R[i],4)}, {v(vSEL,4)}, {c}")
            if other is not None:
                ld(other, i)
            A(f"v_bitop3_b32 {v(ys[i])}, {v(R[i])}, {v(R[i]+2)}, {v(vTagE)} bitop3:0x7e")
            if i in (2, 4, 6):
                A(f"v_or3_b32 {v(vT0)}, {v(vT0)}, {v(vT1)}, {v(vS0)}")
        A(f"v_bitop3_b32 {v(vT0)}, {v(vT0)}, {v(vT1)}, 1 bitop3:0xa8")
        A(f"v_cmp_ne_u32 vcc, 0, {v(vT0)}")
    for _ in range(opts.get('rdelay', 0)):
        A(f"s_sleep 1")
    rstamp(1)
    for i in range(8):
        ld(RS[0], i)
    Lrfail = A.new_label("rfail")
    if mode == 2:
        for _ in range(opts.get('rspace', 1)):
            A(f"s_sleep 1")
        for i in range(8):
            ld(RS[1], i)
        chk(RS[0], None, lambda i: 15 - i, True)
    elif mode == 1:
        chk(RS[0], RS[1], lambda i: 7, True)
    else:
        chk(RS[0], None, lambda i: 7 - i, True)
    A(f"s_cbranch_vccnz {Lrfail}")
    A.label(Lredok)
    rstamp(4)
    A(f"s_nop {3 if mode == 1 else 4}")
    A(f"v_cvt_pk_bf16_f32 {v(RA+4)}, {v(RA)}, {v(RA+1)}")
    A(f"v_cvt_pk_bf16_f32 {v(RA+5)}, {v(RA+2)}, {v(RA+3)}")
    A(f"buffer_store_dwordx2 {v(RA+4,2)}, {v(vMst)}, {s(S_WS,4)}, {s(sSlotM)} offen{st}")
    A(f"s_branch {Lar}")
    A.label(Lrfail)
    if mode == 0:
        for i in range(8):
            ld(RS[1], i)
    A.label(Lred)
    chk(RS[1], RS[0], lambda i: 7)
    A(f"s_cbranch_vccz {Lredok}")
    chk(RS[0], RS[1], lambda i: 7)
    A(f"s_cbranch_vccz {Lredok}")
    A(f"s_add_u32 {s(sRet)}, {s(sRet)}, 1")
    A(f"s_cmp_lg_u32 {s(sDEAD)}, 0")
    A(f"s_cbranch_scc1 {Lredok}")
    A(f"s_cmp_lt_u32 {s(sRet)}, {RED_LIMIT}")
    A(f"s_cbranch_scc1 {Lred}")
    A(f"s_mov_b32 {s(sDEAD)}, 1")
    A(f"s_branch {Lredok}")
    A.label(Lnr)
    Lfok = A.new_label("fok")
    Lfsp = A.new_label("fsp")
    A(f"s_mov_b32 {s(sRet)}, 0")
    A(f"s_waitcnt vmcnt(12)")
    A(f"v_readfirstlane_b32 {s(sT0)}, {v(vFlag)}")
    zero_acc()
    A(f"s_cmp_ge_u32 {s(sT0)}, {s(sNeed)}")
    A(f"s_cbranch_scc1 {Lfok}")
    A(f"s_cmp_lg_u32 {s(sDEAD)}, 0")
    A(f"s_cbranch_scc1 {Lfok}")
    A(f"s_mov_b32 {s(sRet)}, 0")
    A.label(Lfsp)
    A(f"buffer_load_dword {v(vFlag)}, off, {s(S_WS,4)}, {s(sFo)} sc1")
    A(f"s_waitcnt vmcnt(0)")
    A(f"v_readfirstlane_b32 {s(sT0)}, {v(vFlag)}")
    A(f"s_cmp_ge_u32 {s(sT0)}, {s(sNeed)}")
    A(f"s_cbranch_scc1 {Lfok}")
    A(f"s_sleep 1")
    A(f"s_add_u32 {s(sRet)}, {s(sRet)}, 1")
    A(f"s_cmp_lt_u32 {s(sRet)}, {SPIN_LIMIT}")
    A(f"s_cbranch_scc1 {Lfsp}")
    A(f"s_mov_b32 {s(sDEAD)}, 1")
    A.label(Lfok)
    if TRACE[0]:
        Lsl = A.new_label("tr")
        A(f"s_cmp_lg_u32 {s(sWAVE)}, {opts.get('tw', 1)}")
        A(f"s_cbranch_scc1 {Lsl}")
        A(f"s_lshl_b32 {s(sT0)}, {s(sH)}, 6")
        A(f"s_add_u32 {s(sT0)}, {s(sT0)}, {s(sS)}")
        A(f"s_lshl_b32 {s(sT0)}, {s(sT0)}, 5")
        A(f"s_add_u32 {s(sT0)}, {s(sT0)}, {WS_T + 0x10000:#x}")
        A(f"s_waitcnt lgkmcnt(0)")
        A(f"v_mov_b32 {v(vT0)}, s16")
        for k in range(1, 8):
            A(f"v_writelane_b32 {v(vT0)}, s{16 + 2*k}, {k}")
        A(f"v_lshrrev_b32 {v(vT1)}, 2, {v(vL16)}")
        A(f"s_mov_b64 exec, 0xff")
        A(f"buffer_store_dword {v(vT0)}, {v(vT1)}, {s(S_WS,4)}, {s(sT0)} offen")
        A(f"s_mov_b64 exec, -1")
        A.label(Lsl)
    if opts.get('steplog'):
        Lsl = A.new_label("sl")
        A(f"s_cmp_lg_u32 {s(sWAVE)}, 1")
        A(f"s_cbranch_scc1 {Lsl}")
        A(f"s_memrealtime s[62:63]")
        A(f"s_memtime s[16:17]")
        A(f"s_lshl_b32 {s(sT0)}, {s(sH)}, 6")
        A(f"s_add_u32 {s(sT0)}, {s(sT0)}, {s(sS)}")
        A(f"s_lshl_b32 {s(sT0)}, {s(sT0)}, 3")
        A(f"s_add_u32 {s(sT0)}, {s(sT0)}, {WS_T + (0x30000 if opts.get('prof') else 0x8000):#x}")
        A(f"s_waitcnt lgkmcnt(0)")
        A(f"v_mov_b32 {v(vT0)}, s62")
        A(f"v_mov_b32 {v(vT1)}, s16")
        A(f"s_mov_b64 exec, 1")
        A(f"buffer_store_dwordx2 {v(vT0,2)}, off, {s(S_WS,4)}, {s(sT0)}")
        A(f"s_mov_b64 exec, -1")
        A.label(Lsl)
    bookkeeping()
    bookkeeping2()
    rearm(2, True)
    A(f"s_branch {Lar}")
    A.label(Lretry0)
    A(f"s_nop 7")
    for i in range(4):
        A(f"v_mov_b64 {v(AQ+2*i,2)}, 0")
    con_issue(H0)
    A(f"s_waitcnt vmcnt(2)")
    A(f"ds_write_b128 {v(vMw)}, {v(H1,4)}")
    A(f"v_max3_u32 {v(Y)}, {v(H1)}, {v(H1+2)}, {v(H1+4)}")
    A(f"ds_write_b128 {v(vMw)}, {v(H1+4,4)} offset:1024")
    A(f"v_max_u32 {v(Y)}, {v(Y)}, {v(H1+6)}")
    A(f"v_cmp_eq_u32 vcc, -1, {v(Y)}")
    A(f"s_add_u32 {s(sRet)}, {s(sRet)}, 1")
    A(f"s_cbranch_vccz {Lown[1]}")
    con_issue(H1)
    A(f"s_cmp_lg_u32 {s(sDEAD)}, 0")
    A(f"s_cbranch_scc1 {Lown[1]}")
    A(f"s_cmp_lt_u32 {s(sRet)}, {RED_LIMIT}")
    A(f"s_cbranch_scc1 {Lspec}")
    A(f"s_mov_b32 {s(sDEAD)}, 1")
    A.label(Lown[1])
    own(H1, False)
    A(f"s_branch {Lcommon}")
    A.label(Llast)
    A(f"s_waitcnt vmcnt(0) lgkmcnt(0)")
    if fast and opts.get('cwb'):
        Lwb = A.new_label("cwb")
        A(f"s_cmp_lg_u32 {s(sWAVE)}, 0")
        A(f"s_cbranch_scc1 {Lwb}")
        A(f"buffer_wbl2 sc1")
        A(f"s_waitcnt vmcnt(0)")
        A.label(Lwb)
    if cp and not TRACE[0]:
        for i in range(1, 10):
            A(f"s_mov_b32 s{92+i}, s{16+2*(i-1) if i < 9 else 62}")
        A(f"s_lshl_b32 {s(sCP1)}, {s(sCP1)}, 16")
        A(f"s_or_b32 s92, {s(sCP0)}, {s(sCP1)}")
        A("s_branch L_flush")
    A(f"s_branch L_role_end")


def kv_polls(A):
    for j in range(2):
        Lp = A.new_label("kvp")
        Ld = A.new_label("kvd")
        A(f"s_mov_b32 {s(sRet)}, 0")
        A(f"s_cmp_lg_u32 {s(sDEAD)}, 0")
        A(f"s_cbranch_scc1 {Ld}")
        A.label(Lp)
        A(f"buffer_load_dword {v(vFlag)}, off, {s(S_WS,4)}, {s(sT5)} offset:{4*j} sc1")
        A(f"s_waitcnt vmcnt(0)")
        A(f"v_readfirstlane_b32 {s(sT0)}, {v(vFlag)}")
        A(f"s_cmp_ge_u32 {s(sT0)}, 1")
        A(f"s_cbranch_scc1 {Ld}")
        A(f"s_sleep 1")
        A(f"s_add_u32 {s(sRet)}, {s(sRet)}, 1")
        A(f"s_cmp_lt_u32 {s(sRet)}, {SPIN_LIMIT}")
        A(f"s_cbranch_scc1 {Lp}")
        A(f"s_mov_b32 {s(sDEAD)}, 1")
        A.label(Ld)


def fb_consts(A):
    A(f"s_cmp_eq_u32 {s(sWAVE)}, 0")
    A(f"s_cselect_b32 {s(sFb)}, {OOB:#x}, {s(sT5)}")
    A(f"s_add_u32 {s(sFo)}, {s(sFb)}, 8")


def gen_late_start(A, opts, vL):
    mk_srd(A, S_A, P_MEM0, 8192)
    A(f"s_lshl_b32 {s(sT0)}, {s(sWAVE)}, 8")
    lane_expr(A, vT0, vL, [(2, 2, 2048), (0, 1, 1024), (1, 1, 64), (4, 2, 16)], sregs=[sT0])
    A(f"buffer_load_dwordx4 {v(X+24,4)}, {v(vT0)}, {s(S_A,4)}, 0 offen")
    A(f"buffer_load_dwordx4 {v(X+28,4)}, {v(vT0)}, {s(S_A,4)}, 0 offen offset:128")
    A(f"s_waitcnt vmcnt(0)")
    A(f"ds_write_b128 {v(vMw)}, {v(X+24,4)}")
    A(f"ds_write_b128 {v(vMw)}, {v(X+28,4)} offset:1024")
    for i in range(16):
        A(f"v_mov_b32 {v(ACC+i)}, 0")
    for i in range(8):
        A(f"v_mov_b32 {v(Y+24+i)}, 0")
    fb_consts(A)
    A(f"v_mov_b32 {v(vT1)}, 0")
    A(f"s_mov_b32 {s(sT2)}, {D_CHECKIN*4}")
    A(f"s_mov_b32 {s(sT3)}, 0")
    wait_byte(A, vFlag, vT1, sT2, sT3, 32, "ci", sleep=1)
    A(f"buffer_load_dword {v(vFlag)}, {v(vT1)}, {s(S_DBG,4)}, 0 offen offset:{D_CHECKIN*4} sc1")
    A(f"s_getreg_b32 {s(sT0)}, hwreg(HW_REG_XCC_ID, 0, 4)")
    A(f"s_mul_i32 {s(sT1)}, {s(sT0)}, {s(sT0)}")
    A(f"s_lshl_b32 {s(sT1)}, {s(sT1)}, 22")
    A(f"s_lshl_b32 {s(sT0)}, {s(sT0)}, 13")
    A(f"s_add_u32 {s(sT0)}, {s(sT0)}, {s(sT1)}")
    A(f"s_add_u32 {s(sT0)}, {s(sT0)}, 32")
    A(f"s_waitcnt vmcnt(0)")
    A(f"v_readfirstlane_b32 {s(sT1)}, {v(vFlag)}")
    A(f"s_cmp_eq_u32 {s(sT0)}, {s(sT1)}")
    A(f"s_cselect_b32 {s(sFastF)}, 1, 0")
    kv_polls(A)
    A(f"s_mov_b32 m0, {s(sM0K)}")
    A(f"s_nop 0")
    for i in range(2):
        A(f"buffer_load_dwordx4 {v(vL16)}, {s(S_WS,4)}, {s(sKn)} offen offset:{1024*i} lds")


def gen_chain(A, opts):
    global RT
    RT = bool(opts.get('rt'))
    CSTEP[0] = opts.get('cstep', 39)
    TRACE[0] = bool(opts.get('trace'))
    vL = 13
    A(f"s_xor_b32 {s(sH)}, {s(sIDX)}, {opts.get('hperm', 0)}")
    A(f"v_and_b32 {v(vL)}, 63, v0")
    mk_srd(A, S_A, P_WQ, 512 * 8192)
    mk_srd(A, S_B, P_WK, 512 * 8192)
    mk_srd(A, S_C, P_WV, 512 * 8192)
    mk_srd(A, S_D, P_WO, 4096 * 1024)
    A(f"v_lshlrev_b32 {v(vL16)}, 4, {v(vL)}")
    for i in range(4):
        A(f"v_mov_b32 {v(vSEL+i)}, -1")
    A(f"s_lshl_b32 {s(sT0)}, {s(sH)}, 13")
    A(f"s_lshl_b32 {s(sT1)}, {s(sWAVE)}, 11")
    A(f"s_add_u32 {s(sT0)}, {s(sT0)}, {s(sT1)}")
    nst = 0
    A(f"v_bfe_u32 {v(vT0)}, {v(vL)}, 4, 1")
    for i in range(4):
        A(f"v_xor_b32 {v(ACC+i)}, -1, {v(vT0)}")
    A(f"buffer_store_dwordx4 {v(ACC,4)}, {v(vL16)}, {s(S_WS,4)}, {s(sT0)} offen sc1")
    A(f"buffer_store_dwordx4 {v(ACC,4)}, {v(vL16)}, {s(S_WS,4)}, {s(sT0)} offen offset:1024 sc1")
    nst += 2
    vMre = 2
    A(f"s_lshl_b32 {s(sT2)}, {s(sH)}, 8")
    A(f"v_add_u32 {v(vT0)}, {s(sT2)}, {v(vL16)}")
    A(f"v_cmp_gt_u32 vcc, 16, {v(vL)}")
    A(f"v_mov_b32 {v(vT1)}, {OOB:#x}")
    A.nop(1)
    A(f"v_cndmask_b32 {v(vMre)}, {v(vT1)}, {v(vT0)}, vcc")
    for sl in range(4):
        A(f"s_mov_b32 {s(sT1)}, {WS_M + sl*8192:#x}")
        A(f"buffer_store_dwordx4 {v(vSEL,4)}, {v(vMre)}, {s(S_WS,4)}, {s(sT1)} offen sc1")
        nst += 1
    Z = 20
    for i in range(4):
        A(f"v_mov_b32 {v(Z+i)}, 0")
    A(f"v_cndmask_b32 {v(Z+4)}, {v(vT1)}, {v(vL16)}, vcc")
    A(f"s_lshl_b32 {s(sT1)}, {s(sH)}, 8")
    A(f"s_add_u32 {s(sT1)}, {s(sT1)}, {WS_OF:#x}")
    A(f"buffer_store_dwordx4 {v(Z,4)}, {v(Z+4)}, {s(S_WS,4)}, {s(sT1)} offen sc1")
    A(f"v_cmp_gt_u32 vcc, 8, {v(vL)}")
    A.nop(2)
    A(f"v_cndmask_b32 {v(Z+5)}, {v(vT1)}, {v(vL16)}, vcc")
    A(f"s_lshl_b32 {s(sT1)}, {s(sH)}, 7")
    A(f"s_add_u32 {s(sT1)}, {s(sT1)}, {WS_KVF:#x}")
    A(f"buffer_store_dwordx4 {v(Z,4)}, {v(Z+5)}, {s(S_WS,4)}, {s(sT1)} offen sc1")
    nst += 2

    vG, vGo, vSW, vSWo, vTRb, vTRo, vTA = 116, 117, 118, 122, 124, 125, 126
    POOL = [40, 72]
    TEMPS = [104, 32]
    sXo = sRo + 1
    A(f"s_lshl_b32 {s(sT0)}, {s(sH)}, 8")
    A(f"s_lshl_b32 {s(sT1)}, {s(sWAVE)}, 20")
    A(f"s_add_u32 {s(sT0)}, {s(sT0)}, {s(sT1)}")
    lane_expr(A, vG, vL, [(4, 2, 8192), (0, 4, 16)], sregs=[sT0])
    A(f"s_lshl_b32 {s(sT0)}, {s(sH)}, 17")
    A(f"s_lshl_b32 {s(sT1)}, {s(sWAVE)}, 8")
    A(f"s_add_u32 {s(sT0)}, {s(sT0)}, {s(sT1)}")
    lane_expr(A, vGo, vL, [(4, 2, 1024), (0, 4, 16)], sregs=[sT0])
    A(f"s_lshl_b32 {s(sXo)}, {s(sWAVE)}, 15")

    RIDX = {0: 0, 1: 1, 4: 2, 5: 3, 6: 4, 7: 5}
    wo_ops = [(cg, 0) for cg in range(4)] + [(cg, ks) for cg in range(4) for ks in range(1, 4)]
    WORR = [('a', 224), ('a', 232), ('a', 240), ('a', 248), ('v', 224), ('v', 232), ('v', 240), ('v', 248)]

    def qkv_unit(m, hp, x):
        u = dict(kind='qkv', m=m, hp=hp, x=x, srd={'q': S_A, 'k': S_B, 'v': S_C}[m], needs_temp=(m != 'q'))
        u['soff'] = [(64 * hp + 16 * x + 4 * (k & 3) + 32 * (k >> 2)) * 8192 for k in range(8)]
        return u

    def bind(u, temp):
        if u['kind'] == 'qkv':
            m, hp, x = u['m'], u['hp'], u['x']
            res = []
            for i in range(4):
                sl = hp + 2 * i
                for t_ in range(2):
                    if m == 'q':
                        res.append((('a', 16 * sl + 8 * t_ + 4 * x), None))
                    elif sl in (2, 3):
                        fi = (0 if m == 'k' else 4) + 2 * (sl - 2) + t_
                        res.append((('v', temp + 4 * t_), fi * 2048 + 1024 * x))
                    else:
                        res.append(((('a' if m == 'k' else 'v'), 128 + 16 * RIDX[sl] + 8 * t_ + 4 * x), None))
            u['raw'] = [r[0] for r in res]
            u['res'] = res
        else:
            u['raw'] = [('v', temp + 4 * k) for k in range(8)]

    def wo_unit(ks):
        return dict(kind='wo', ks=ks, srd=S_D, soff=[(32 * ks + 4 * k) * 1024 for k in range(8)])
    U = {f"O{k}": wo_unit(k) for k in range(4)}
    for m in 'qkv':
        for hp in range(2):
            for x in range(2):
                U[f"{m.upper()}{hp}{x}"] = qkv_unit(m, hp, x)
    order = {0: "O0 O1 Q00 Q01 Q10 Q11 O2 O3 K00 K01 K10 K11 V00 V01 V10 V11",
             1: "Q00 Q01 Q10 Q11 O0 O1 K00 K01 O2 O3 K10 K11 V00 V01 V10 V11",
             2: "K00 K01 Q00 Q01 Q10 Q11 O0 O1 K10 K11 O2 O3 V00 V01 V10 V11",
             3: "O0 O1 Q00 Q01 Q10 Q11 O2 O3 V00 V01 V10 V11 K00 K01 K10 K11"}[opts.get('word', 0)].split()
    units = [U[n] for n in order]
    vq = Q(A, "vmcnt", 63)
    vq.ops = ['st'] * nst
    free_pool = list(POOL)
    free_temp = list(TEMPS)
    wo_left = [4]
    held = {}
    WIN = opts.get('cwin', 56)
    st_ = dict(issued=0)

    def inflight():
        return len(vq.ops)

    EARLY = opts.get('early', 1)
    vEK, vEF, vEC, vEA = 40, 48, 50, 51

    def early_issue():
        mk_srd(A, S_A, P_MEM0, 8192)
        A(f"s_lshl_b32 {s(sT0)}, {s(sWAVE)}, 8")
        lane_expr(A, vEA, vL, [(2, 2, 2048), (0, 1, 1024), (1, 1, 64), (4, 2, 16)], sregs=[sT0])
        vq.issue('fl', f"buffer_load_dwordx2 {v(vEF,2)}, off, {s(S_WS,4)}, {s(sT5)} sc1")
        vq.issue('ci', f"buffer_load_dword {v(vEC)}, off, {s(S_DBG,4)}, 0 offset:{D_CHECKIN*4} sc1")
        vq.issue('m0', f"buffer_load_dwordx4 {v(X+24,4)}, {v(vEA)}, {s(S_A,4)}, 0 offen")
        vq.issue('m0', f"buffer_load_dwordx4 {v(X+28,4)}, {v(vEA)}, {s(S_A,4)}, 0 offen offset:128")

    def early_k():
        vq.wait('fl')
        A(f"v_min_u32 {v(vEF)}, {v(vEF)}, {v(vEF+1)}")
        A.nop(1)
        A(f"v_readfirstlane_b32 {s(sT0)}, {v(vEF)}")
        A(f"s_cmp_ge_u32 {s(sT0)}, 1")
        A(f"s_cselect_b32 {s(sKok)}, 1, 0")
        A(f"s_cselect_b32 {s(sT1)}, {s(sKn)}, {OOB:#x}")
        vq.issue('kx', f"buffer_load_dwordx4 {v(vEK,4)}, {v(vL16)}, {s(S_WS,4)}, {s(sT1)} offen")
        vq.issue('kx', f"buffer_load_dwordx4 {v(vEK+4,4)}, {v(vL16)}, {s(S_WS,4)}, {s(sT1)} offen offset:1024")

    def try_issue():
        while st_['issued'] < len(units):
            u = units[st_['issued']]
            limit = min(WIN + (nst if 'st' in vq.ops else 0), 62)
            if EARLY and st_['issued'] == len(units) - 1 and not st_.get('early'):
                if inflight() + 8 > limit:
                    return
                early_issue()
                st_['early'] = True
                limit += 4
            elif EARLY and st_.get('early'):
                limit += 4
            if inflight() + 8 > limit:
                return
            if u['kind'] == 'wo':
                if not free_pool:
                    return
                tmp = free_pool.pop(0)
                held[id(u)] = ('pool', tmp)
            elif u['needs_temp']:
                if not free_temp:
                    return
                tmp = free_temp.pop(0)
                held[id(u)] = ('temp', tmp)
            else:
                tmp = None
            bind(u, tmp)
            for k in range(8):
                if u['kind'] == 'wo':
                    A(f"s_xor_b32 {s(sT0)}, {u['soff'][k]:#x}, {s(sXo)}")
                    vq.issue(id(u), f"buffer_load_dwordx4 {reg(u['raw'][k], 4)}, {v(vGo)}, {s(u['srd'],4)}, {s(sT0)} offen" + WPOL[opts.get('wnto', 0)])
                else:
                    A(f"s_mov_b32 {s(sT0)}, {u['soff'][k]:#x}")
                    vq.issue(id(u), f"buffer_load_dwordx4 {reg(u['raw'][k], 4)}, {v(vG)}, {s(u['srd'],4)}, {s(sT0)} offen" + WPOL[opts.get('wnt', 0)])
            st_['issued'] += 1
    stamp(A, 1) if not opts.get('cprof') else None
    try_issue()
    A(f"s_lshl_b32 {s(sT2)}, {s(sWAVE)}, 13")
    lane_expr(A, vSW, vL, [(4, 2, 256), (1, 3, 32), (0, 1, 16)], sregs=[sT2])
    A(f"v_mov_b32 {v(vSWo)}, {v(vSW)}")
    A(f"v_bfe_u32 {v(vTA)}, {v(vL)}, 4, 1")
    A(f"v_lshlrev_b32 {v(vT0)}, 5, {v(vTA)}")
    A(f"v_xor_b32 {v(vSW)}, {v(vSW)}, {v(vT0)}")
    A(f"v_lshlrev_b32 {v(vT0)}, 6, {v(vTA)}")
    A(f"v_xor_b32 {v(vSWo)}, {v(vSWo)}, {v(vT0)}")
    A(f"v_xor_b32 {v(vSW+1)}, 64, {v(vSW)}")
    A(f"v_xor_b32 {v(vSW+2)}, 0x80, {v(vSW)}")
    A(f"v_xor_b32 {v(vSW+3)}, 0xc0, {v(vSW)}")
    A(f"v_xor_b32 {v(vSWo+1)}, 0x80, {v(vSWo)}")
    A(f"s_lshl_b32 {s(sT3)}, {s(sWAVE)}, 6")
    lane_expr(A, vTRb, vL, [(2, 1, 256 + 32), (4, 1, 1024 + 64), (5, 1, 2048), (3, 1, 4096 + 128), (0, 2, 8)])
    A(f"v_xor_b32 {v(vTRb)}, {s(sT3)}, {v(vTRb)}")
    A(f"v_add_u32 {v(vTRb)}, {s(sT2)}, {v(vTRb)}")
    lane_expr(A, vTRo, vL, [(2, 1, 256 + 64), (4, 1, 4096 + 128), (5, 1, 1024), (3, 1, 32), (0, 2, 8)], sregs=[sT2])
    A(f"s_lshl_b32 {s(sT0)}, {s(sWAVE)}, 15")
    A(f"s_add_u32 {s(sT0)}, {s(sT0)}, {WO_OFF}")
    A(f"v_add_u32 {v(vWo)}, {s(sT0)}, {v(vL16)}")
    vq.wait('st')
    A(f"s_barrier")
    Lci = A.new_label("ci")
    A(f"s_cmp_lg_u32 {s(sWAVE)}, 0")
    A(f"s_cbranch_scc1 {Lci}")
    A(f"s_getreg_b32 {s(sT0)}, hwreg(HW_REG_XCC_ID, 0, 4)")
    A(f"s_mul_i32 {s(sT1)}, {s(sT0)}, {s(sT0)}")
    A(f"s_lshl_b32 {s(sT1)}, {s(sT1)}, 17")
    A(f"s_lshl_b32 {s(sT0)}, {s(sT0)}, 8")
    A(f"s_add_u32 {s(sT0)}, {s(sT0)}, {s(sT1)}")
    A(f"s_add_u32 {s(sT0)}, {s(sT0)}, 1")
    A(f"v_mov_b32 {v(vT0)}, {s(sT0)}")
    A(f"v_mov_b32 {v(vT1)}, 0")
    A(f"s_mov_b64 exec, 1")
    A(f"buffer_atomic_add {v(vT0)}, {v(vT1)}, {s(S_DBG,4)}, 0 offen offset:{D_CHECKIN*4} sc1")
    A(f"s_mov_b64 exec, -1")
    A.label(Lci)
    try_issue()
    A(f"s_lshr_b32 {s(sT3)}, {s(sH)}, 2")
    A(f"s_lshl_b32 {s(sT3)}, {s(sT3)}, 10")
    A(f"s_and_b32 {s(sT4)}, {s(sH)}, 1")
    A(f"s_lshl_b32 {s(sT4)}, {s(sT4)}, 9")
    A(f"s_add_u32 {s(sT3)}, {s(sT3)}, {s(sT4)}")
    A(f"s_and_b32 {s(sT4)}, {s(sH)}, 2")
    A(f"s_lshl_b32 {s(sT4)}, {s(sT4)}, 4")
    A(f"s_add_u32 {s(sT3)}, {s(sT3)}, {s(sT4)}")
    lane_expr(A, vMst, vL, [(5, 1, 256), (1, 2, 64), (0, 1, 16), (4, 1, 8)], sregs=[sT3])
    A(f"v_and_b32 {v(vT1)}, 8, {v(vL)}")
    A(f"v_lshlrev_b32 {v(vT1)}, 27, {v(vT1)}")
    A(f"v_add_u32 {v(vMst)}, {v(vMst)}, {v(vT1)}")
    A(f"s_cmp_eq_u32 {s(sWAVE)}, 0")
    Lw0 = A.new_label("w0")
    A(f"s_cbranch_scc1 {Lw0}")
    A(f"v_mov_b32 {v(vMst)}, {v(vMre)}")
    A(f"s_cmp_eq_u32 {s(sWAVE)}, 3")
    A(f"s_cbranch_scc1 {Lw0}")
    A(f"v_mov_b32 {v(vMst)}, {OOB:#x}")
    A.label(Lw0)
    for (dst, bit) in ((vIdx, 2), (vIdxW, 8)):
        A(f"v_mov_b32 {v(dst)}, 0x4444")
        A(f"v_mov_b32 {v(vT0)}, 0xeeee")
        A(f"v_and_b32 {v(vT1)}, {bit}, {v(vL)}")
        A(f"v_cmp_ne_u32 vcc, 0, {v(vT1)}")
        A.nop(2)
        A(f"v_cndmask_b32 {v(dst)}, {v(dst)}, {v(vT0)}, vcc")
    A(f"s_lshl_b32 {s(sT0)}, {s(sWAVE)}, 9")
    lane_expr(A, vQKw, vL, [(0, 4, 16), (4, 2, 4)], sregs=[sT0])
    A(f"s_lshl_b32 {s(sT0)}, {s(sWAVE)}, 10")
    A(f"s_lshr_b32 {s(sT1)}, {s(sWAVE)}, 1")
    A(f"s_lshl_b32 {s(sT1)}, {s(sT1)}, 11")
    A(f"s_add_u32 {s(sT0)}, {s(sT0)}, {s(sT1)}")
    lane_expr(A, vKw, vL, [(0, 4, 32), (4, 2, 8)], const=2048, sregs=[sT0])
    lane_expr(A, vKr, vL, [(5, 1, 512), (4, 1, 128), (2, 2, 32), (0, 2, 8)])
    lane_expr(A, vQKr, vL, [(5, 1, 256), (4, 1, 64), (2, 2, 16), (0, 1, 8)])
    A(f"s_lshl_b32 {s(sT0)}, {s(sWAVE)}, 9")
    lane_expr(A, vOw, vL, [(4, 2, 128), (0, 3, 16)], const=O_OFF, sregs=[sT0])
    A(f"s_lshl_b32 {s(sT0)}, {s(sWAVE)}, 11")
    A(f"s_add_u32 {s(sT0)}, {s(sT0)}, {MEM_OFF}")
    A(f"v_add_u32 {v(vMw)}, {s(sT0)}, {v(vL16)}")
    A(f"s_lshl_b32 {s(sT0)}, {s(sWAVE)}, 16")
    A(f"s_lshl_b32 {s(sT1)}, {s(sH)}, 8")
    lane_expr(A, vPst, vL, [(5, 1, 8192), (0, 4, 16), (4, 1, 8)], sregs=[sT0, sT1])
    A(f"s_lshl_b32 {s(sT0)}, {s(sH)}, 13")
    A(f"v_add_u32 {v(vRed)}, {s(sT0)}, {v(vL16)}")
    A(f"s_and_b32 {s(sT1)}, {s(sWAVE)}, 1")
    A(f"s_lshl_b32 {s(sT1)}, {s(sT1)}, 13")
    A(f"s_lshl_b32 {s(sT0)}, {s(sH)}, 14")
    A(f"s_add_u32 {s(sT0)}, {s(sT0)}, {s(sT1)}")
    A(f"v_lshlrev_b32 {v(vPf)}, 6, {v(vL)}")
    A(f"v_add_u32 {v(vPf)}, {s(sT0)}, {v(vPf)}")
    A(f"s_mov_b32 {s(sMLo)}, -1")
    A(f"s_mov_b32 {s(sMLo+1)}, 0")
    A(f"s_mov_b32 {s(sMHi)}, 0")
    A(f"s_mov_b32 {s(sMHi+1)}, -1")
    A(f"s_mov_b32 {s(sC)}, {f32_hex(SCALE_C):#x}")
    A(f"s_mov_b32 {s(sNC)}, {f32_hex(-SCALE_C):#x}")
    Lsel = A.new_label("sel")
    A(f"s_cmp_lg_u32 {s(sWAVE)}, 0")
    A(f"s_cbranch_scc1 {Lsel}")
    A(f"v_and_b32 {v(vT0)}, 15, {v(vL)}")
    A(f"v_mov_b32 {v(vS0)}, 0x3f80")
    A(f"v_mov_b32 {v(vT1)}, 0x3f800000")
    A(f"v_and_b32 v112, 1, {v(vT0)}")
    A(f"v_cmp_eq_u32 vcc, 1, v112")
    A.nop(2)
    A(f"v_cndmask_b32 {v(vS0)}, {v(vS0)}, {v(vT1)}, vcc")
    A(f"v_lshrrev_b32 {v(vT0)}, 1, {v(vT0)}")
    for i in range(4):
        A(f"v_cmp_eq_u32 vcc, {i}, {v(vT0)}")
        A.nop(2)
        A(f"v_cndmask_b32 {v(vSEL+i)}, 0, {v(vS0)}, vcc")
    A(f"v_bfe_u32 {v(vTagE)}, {v(vL)}, 4, 1")
    A(f"v_xor_b32 {v(vTagE)}, 1, {v(vTagE)}")
    A.label(Lsel)
    for i in range(4):
        A(f"v_mov_b32 {v(vONE+i)}, 0x3f803f80")
    for i in range(1, 4):
        A(f"v_mov_b32 {v(vBM+i)}, 0")

    A(f"s_lshl_b32 {s(sW2k)}, {s(sWAVE)}, 11")
    A(f"s_mov_b32 {s(sSlotP1)}, {WS_P + 16384}")
    A(f"s_mov_b32 {s(sPc2)}, {WS_P + 32768}")
    A(f"s_mov_b32 {s(sPc3)}, {WS_P + 49152}")
    A(f"s_mov_b32 {s(sSlotP4)}, {WS_P + 4096}")
    A(f"s_and_b32 {s(sTag)}, {s(sH)}, 1")
    A(f"s_xor_b32 {s(sTag)}, {s(sTag)}, 1")
    A(f"s_lshl_b32 {s(sT5)}, {s(sH)}, 7")
    A(f"s_add_u32 {s(sT5)}, {s(sT5)}, {WS_KVF:#x}")
    A(f"s_cmp_ge_u32 {s(sWAVE)}, 2")
    A(f"s_mov_b32 {s(sT0)}, {OOB:#x}")
    A(f"s_mov_b32 {s(sPf)}, {WS_KX + 0x80000:#x}")
    A(f"s_cselect_b32 {s(sPf)}, {s(sPf)}, {s(sT0)}")
    A(f"s_add_u32 {s(sM0K)}, {s(sW2k)}, {KX_OFF}")
    A(f"s_lshl_b32 {s(sKn)}, {s(sH)}, 14")
    A(f"s_add_u32 {s(sKn)}, {s(sKn)}, {s(sW2k)}")
    A(f"s_add_u32 {s(sKn)}, {s(sKn)}, {WS_KX:#x}")
    A(f"s_add_u32 {s(sM0V)}, {s(sW2k)}, {VX_OFF}")
    A(f"s_lshl_b32 {s(sKV)}, {s(sH)}, 14")
    A(f"s_add_u32 {s(sKV)}, {s(sKV)}, {s(sW2k)}")
    A(f"s_add_u32 {s(sKV)}, {s(sKV)}, {WS_KX:#x}")
    A(f"s_lshl_b32 {s(sKM)}, {s(sH)}, 12")
    A(f"s_add_u32 {s(sKM)}, {s(sKM)}, {WS_KM:#x}")
    A(f"s_mov_b32 {s(sJ4)}, 8")
    A(f"s_mov_b32 {s(sCn)}, 1")
    A(f"s_mov_b32 {s(sNeed)}, 1")
    for b, u in enumerate(units):
        assert st_['issued'] > b, "loader deadlock"
        if EARLY and b == len(units) - 1:
            assert st_.get('early')
            early_k()
        vq.wait(id(u))
        A(f"s_barrier")
        if u['kind'] == 'qkv':
            for k in range(8):
                A(f"ds_write_b128 {v(vSW + (k & 1) + 2 * (k >> 2))}, {reg(u['raw'][k], 4)} offset:{k * 1024}")
            A(f"s_waitcnt lgkmcnt(0)")
            A(f"s_barrier")
            x = u['x']
            for i in range(4):
                for t_ in range(2):
                    r_, fin = u['res'][2 * i + t_]
                    A(f"v_xor_b32 {v(vTA + (t_ & 1))}, {(i << 13) | (t_ << 5):#x}, {v(vTRb)}")
                    for q0 in range(2):
                        A(f"ds_read_b64_tr_b16 {reg(off(r_, 2 * q0), 2)}, {v(vTA + (t_ & 1))} offset:{512 * q0}")
            A(f"s_waitcnt lgkmcnt(0)")
            for (r_, fin) in u['res']:
                if fin is not None:
                    A(f"ds_write_b128 {v(vWo)}, {reg(r_, 4)} offset:{fin}")
        else:
            ks = u['ks']
            for k in range(8):
                A(f"ds_write_b128 {v(vSWo + (k >> 2))}, {reg(u['raw'][k], 4)} offset:{k * 1024}")
            base = u['raw'][0][1]
            fins = []
            for cg in range(4):
                io = wo_ops.index((cg, ks))
                dst = WORR[io] if io < 8 else ('v', base + 8 * cg)
                A(f"v_xor_b32 {v(vTA + (cg & 1))}, {cg << 6:#x}, {v(vTRo)}")
                for i in range(4):
                    A(f"ds_read_b64_tr_b16 {reg(off(dst, 2 * i), 2)}, {v(vTA + (cg & 1))} offset:{(8 * (i >> 1) + 2 * (i & 1)) * 256}")
                if io >= 8:
                    fins.append((dst, io * 2048))
            A(f"s_waitcnt lgkmcnt(0)")
            for (dst, o) in fins:
                A(f"ds_write_b128 {v(vWo)}, {reg(dst, 4)} offset:{o}")
                A(f"ds_write_b128 {v(vWo)}, {reg(off(dst, 4), 4)} offset:{o + 1024}")
        if id(u) in held:
            kind, tmp = held[id(u)]
            A(f"s_waitcnt lgkmcnt(0)")
            if kind == 'pool':
                wo_left[0] -= 1
                if wo_left[0] >= 2:
                    free_pool.append(tmp)
                elif not (EARLY and tmp == POOL[0]):
                    free_temp.extend([tmp + 8 * j for j in range(4)])
            else:
                free_temp.append(tmp)
        if opts.get('prof') and not opts.get('cprof') and b in (0, 3, 7, 11):
            stamp(A, {0: 4, 3: 5, 7: 6, 11: 7}[b])
        try_issue()
    A("s_waitcnt lgkmcnt(0)")
    stamp(A, 2) if not opts.get('cprof') else None
    A(f"s_barrier")
    if not EARLY:
        gen_late_start(A, opts, vL)
    else:
        Lkok = A.new_label("kok")
        A(f"s_cmp_eq_u32 {s(sKok)}, 1")
        A(f"s_cbranch_scc1 {Lkok}")
        kv_polls(A)
        A(f"buffer_load_dwordx4 {v(vEK,4)}, {v(vL16)}, {s(S_WS,4)}, {s(sKn)} offen")
        A(f"buffer_load_dwordx4 {v(vEK+4,4)}, {v(vL16)}, {s(S_WS,4)}, {s(sKn)} offen offset:1024")
        A.label(Lkok)
        A(f"s_waitcnt vmcnt(0)")
        A(f"ds_write_b128 {v(vMw)}, {v(X+24,4)}")
        A(f"ds_write_b128 {v(vMw)}, {v(X+28,4)} offset:1024")
        A(f"ds_write_b128 {v(vMw)}, {v(vEK,4)} offset:{KX_OFF - MEM_OFF}")
        A(f"ds_write_b128 {v(vMw)}, {v(vEK+4,4)} offset:{KX_OFF - MEM_OFF + 1024}")
        for i in range(16):
            A(f"v_mov_b32 {v(ACC+i)}, 0")
        for i in range(8):
            A(f"v_mov_b32 {v(Y+24+i)}, 0")
        fb_consts(A)
        Lcok = A.new_label("cok")
        A(f"v_readfirstlane_b32 {s(sT1)}, {v(vEC)}")
        A(f"s_and_b32 {s(sT0)}, {s(sT1)}, 0xff")
        A(f"s_cmp_ge_u32 {s(sT0)}, 32")
        A(f"s_cbranch_scc1 {Lcok}")
        A(f"v_mov_b32 {v(vT1)}, 0")
        A(f"s_mov_b32 {s(sT2)}, {D_CHECKIN*4}")
        A(f"s_mov_b32 {s(sT3)}, 0")
        wait_byte(A, vFlag, vT1, sT2, sT3, 32, "ci", sleep=1)
        A(f"buffer_load_dword {v(vEC)}, {v(vT1)}, {s(S_DBG,4)}, 0 offen offset:{D_CHECKIN*4} sc1")
        A(f"s_waitcnt vmcnt(0)")
        A.label(Lcok)
        A(f"s_getreg_b32 {s(sT0)}, hwreg(HW_REG_XCC_ID, 0, 4)")
        A(f"s_mul_i32 {s(sT1)}, {s(sT0)}, {s(sT0)}")
        A(f"s_lshl_b32 {s(sT1)}, {s(sT1)}, 22")
        A(f"s_lshl_b32 {s(sT0)}, {s(sT0)}, 13")
        A(f"s_add_u32 {s(sT0)}, {s(sT0)}, {s(sT1)}")
        A(f"s_add_u32 {s(sT0)}, {s(sT0)}, 32")
        A(f"v_readfirstlane_b32 {s(sT1)}, {v(vEC)}")
        A(f"s_cmp_eq_u32 {s(sT0)}, {s(sT1)}")
        A(f"s_cselect_b32 {s(sFastF)}, 1, 0")
        A(f"s_mov_b32 m0, {s(sM0K)}")
    A(f"s_mov_b32 {s(sS)}, 0")
    A(f"s_waitcnt vmcnt(0) lgkmcnt(0)")
    A(f"s_barrier")
    stamp(A, 3) if not opts.get('cprof') else None
    if opts.get('cprof'):
        A(f"s_mov_b32 {s(sCP0)}, 0")
        A(f"s_mov_b32 {s(sCP1)}, 0")
    for k, r_ in ((1, vT0), (2, vT1), (3, vS0)):
        A(f"v_xor_b32 {v(r_)}, {k << 11:#x}, {v(vMw)}")
    A(f"s_cmp_eq_u32 {s(sFastF)}, 1")
    if opts.get('forceslow'):
        A(f"s_branch L_own1_s")
    A(f"s_cbranch_scc0 L_own1_s")
    A(f"s_branch L_own1_f")
    gen_step(A, True, opts)
    gen_step(A, False, opts)


def G_tr(A, vD, vL, kind, base_sreg):
    tr_lane_addr(A, vD, vL, vT0, vS0, kind, base_sreg=base_sreg)
```

```python
from dsl import *
import gen as G
from gen import *
from gen_chain2 import f32_hex, SCALE_C

KML = 73728
vKr, vKw, vVm, vOst = 14, 116, 117, 118
vKw, vVm, vOst = 5, 6, 7
vOnes = 120
sMask = 16
sLo = 54
sC, sNC = 56, 57
sPo, sPs = 58, 59
RK, RQ, RV, RKM, RVM = 16, 48, 64, 80, 96
TS = 108
ONES = 120
BM = 124


def xatt_setup(A, xg, sH):
    vL = xg.vL
    vT1, vT2 = xg.vT1, xg.vT2
    A(f"s_lshl_b32 {s(sT0)}, {s(sWAVE)}, 11")
    A(f"s_add_u32 {s(sT0)}, {s(sT0)}, {KML}")
    lane_expr(A, vKr, vL, [(5, 1, 256), (4, 1, 64), (2, 2, 16), (0, 1, 8)], sregs=[sT0])
    A(f"v_add_u32 {v(vKw)}, {s(sT0)}, {v(xg.vL16)}")
    A(f"s_lshr_b32 {s(sT0)}, {s(sWAVE)}, 1")
    A(f"s_lshl_b32 {s(sT0)}, {s(sT0)}, 10")
    lane_expr(A, vVm, vL, [(0, 4, 16), (4, 1, 8)], const=2048, sregs=[sT0])
    A(f"s_and_b32 {s(sT1)}, {s(sWAVE)}, 1")
    A(f"s_lshl_b32 {s(sT1)}, {s(sT1)}, 12")
    A(f"s_lshl_b32 {s(sT0)}, {s(sT0)}, 1")
    A(f"s_add_u32 {s(sT0)}, {s(sT0)}, {s(sT1)}")
    A(f"v_add_u32 {v(vOst)}, {s(sT0)}, {v(xg.vL16)}")
    A(f"s_and_b32 {s(sT1)}, {s(sWAVE)}, 1")
    A(f"s_lshl_b32 {s(sT1)}, {s(sT1)}, 4")
    A(f"v_and_b32 {v(vT1)}, 15, {v(vL)}")
    A(f"v_lshrrev_b32 {v(vT2)}, 4, {v(vL)}")
    A(f"v_lshlrev_b32 {v(vT2)}, 2, {v(vT2)}")
    A(f"v_sub_u32 {v(vT1)}, {v(vT1)}, {v(vT2)}")
    A(f"v_add_u32 {v(vT1)}, {s(sT1)}, {v(vT1)}")
    for t in range(2):
        for r in range(4):
            A(f"v_cmp_le_i32 {s(sMask + 2*(4*t+r), 2)}, {16*t+r}, {v(vT1)}")
    A(f"s_mov_b32 {s(sLo)}, -1")
    A(f"s_mov_b32 {s(sLo+1)}, 0")
    A(f"s_mov_b32 {s(sC)}, {f32_hex(SCALE_C):#x}")
    A(f"s_mov_b32 {s(sNC)}, {f32_hex(-SCALE_C):#x}")


def xatt_task(A, xg, sH, sSegX, opts={}):
    vL16, vZero, vTmp, vT1, vT2 = xg.vL16, xg.vZero, xg.vTmp, xg.vT1, xg.vT2
    sB = sT2
    A(f"s_lshl_b32 {s(sT2)}, {s(sSegX)}, 5")
    A(f"s_add_u32 {s(sT2)}, {s(sT2)}, {s(sH)}")
    A(f"s_lshl_b32 {s(sT3)}, {s(sT2)}, 13")
    A(f"s_lshl_b32 {s(sT5)}, {s(sT2)}, 14")
    A(f"s_add_u32 {s(sT4)}, {s(sT5)}, {WS_KX:#x}")
    for j in range(8):
        if j == 4:
            A(f"s_add_u32 {s(sT4)}, {s(sT4)}, 4096")
        A(f"buffer_load_dwordx4 {v(RK+4*j,4)}, {v(vL16)}, {s(S_WS,4)}, {s(sT4)} offen offset:{(j%4)*1024}")
    A(f"s_and_b32 {s(sT4)}, {s(sWAVE)}, 1")
    A(f"s_lshl_b32 {s(sT4)}, {s(sT4)}, 12")
    A(f"s_add_u32 {s(sT4)}, {s(sT4)}, {s(sT3)}")
    A(f"s_add_u32 {s(sT4)}, {s(sT4)}, {WS_QX:#x}")
    for ks in range(4):
        A(f"buffer_load_dwordx4 {v(RQ+4*ks,4)}, {v(vL16)}, {s(S_WS,4)}, {s(sT4)} offen offset:{ks*1024}")
    A(f"s_lshr_b32 {s(sT4)}, {s(sWAVE)}, 1")
    A(f"s_lshl_b32 {s(sT4)}, {s(sT4)}, 12")
    A(f"s_add_u32 {s(sT4)}, {s(sT4)}, {s(sT5)}")
    A(f"s_add_u32 {s(sT4)}, {s(sT4)}, {WS_KX + 8192:#x}")
    for p in range(4):
        A(f"buffer_load_dwordx4 {v(RV+4*p,4)}, {v(vL16)}, {s(S_WS,4)}, {s(sT4)} offen offset:{p*1024}")
    for i in range(4):
        A(f"v_mov_b32 {v(ONES+i)}, 0x3f803f80")
    A(f"v_mov_b32 {v(BM+2)}, 0")
    A(f"v_mov_b32 {v(BM+3)}, 0")
    A(f"v_mov_b32 {v(RVM+8)}, 0")
    A(f"v_mov_b32 {v(RVM+9)}, 0")
    A(f"s_lshl_b32 {s(sPo)}, {s(sT2)}, 12")
    A(f"s_add_u32 {s(sPo)}, {s(sPo)}, {WS_KM:#x}")
    Lw = A.new_label("xw")
    Lp = A.new_label("xp")
    A(f"s_cmp_lg_u32 {s(sWAVE)}, 0")
    A(f"s_cbranch_scc1 {Lw}")
    A(f"s_cmp_lg_u32 {s(sDEAD)}, 0")
    A(f"s_cbranch_scc1 {Lw}")
    A(f"s_mov_b32 {s(sPs)}, 0")
    A(f"s_add_u32 {s(sT4)}, {s(sPo)}, 4092")
    if opts.get('xlast', 1):
        A(f"s_sub_u32 {s(sT0)}, {s(sT4)}, {32 * 4096:#x}")
        A(f"s_cmp_ge_u32 {s(sSegX)}, {64 - opts.get('xlast', 1)}")
        A(f"s_cselect_b32 {s(sT4)}, {s(sT0)}, {s(sT4)}")
    A.label(Lp)
    A(f"buffer_load_dword {v(vTmp)}, off, {s(S_WS,4)}, {s(sT4)} sc1")
    A(f"s_waitcnt vmcnt(0)")
    A(f"v_readfirstlane_b32 {s(sT0)}, {v(vTmp)}")
    A(f"s_cmp_lg_u32 {s(sT0)}, -1")
    A(f"s_cbranch_scc1 {Lw}")
    A(f"s_sleep 4")
    A(f"s_add_u32 {s(sPs)}, {s(sPs)}, 1")
    A(f"s_cmp_lt_u32 {s(sPs)}, {SPIN_LIMIT}")
    A(f"s_cbranch_scc1 {Lp}")
    A(f"s_mov_b32 {s(sDEAD)}, 1")
    A.label(Lw)
    A(f"s_barrier")
    Lr = A.new_label("xr")
    Lk = A.new_label("xk")
    A(f"s_mov_b32 {s(sPs)}, 0")
    A.label(Lr)
    A(f"buffer_load_dwordx4 {v(RKM,4)}, {v(vL16)}, {s(S_WS,4)}, {s(sPo)} offen sc1")
    A(f"buffer_load_dwordx4 {v(RKM+4,4)}, {v(vL16)}, {s(S_WS,4)}, {s(sPo)} offen offset:1024 sc1")
    for p in range(4):
        A(f"buffer_load_dwordx2 {v(RVM+2*p,2)}, {v(vVm)}, {s(S_WS,4)}, {s(sPo)} offen offset:{p*256} sc1")
    A(f"s_waitcnt vmcnt(4)")
    A(f"v_max3_u32 {v(RKM+8)}, {v(RKM)}, {v(RKM+1)}, {v(RKM+2)}")
    A(f"v_max3_u32 {v(RKM+9)}, {v(RKM+3)}, {v(RKM+4)}, {v(RKM+5)}")
    A(f"v_max3_u32 {v(RKM+8)}, {v(RKM+8)}, {v(RKM+6)}, {v(RKM+7)}")
    A(f"s_waitcnt vmcnt(0)")
    A(f"v_max3_u32 {v(RKM+10)}, {v(RVM)}, {v(RVM+1)}, {v(RVM+2)}")
    A(f"v_max3_u32 {v(RKM+11)}, {v(RVM+3)}, {v(RVM+4)}, {v(RVM+5)}")
    A(f"v_max3_u32 {v(RKM+10)}, {v(RKM+10)}, {v(RVM+6)}, {v(RVM+7)}")
    A(f"v_max3_u32 {v(RKM+8)}, {v(RKM+8)}, {v(RKM+9)}, {v(RKM+10)}")
    A(f"v_max_u32 {v(RKM+8)}, {v(RKM+8)}, {v(RKM+11)}")
    A(f"v_cmp_eq_u32 vcc, -1, {v(RKM+8)}")
    A(f"s_add_u32 {s(sPs)}, {s(sPs)}, 1")
    A(f"s_nop 0")
    A(f"s_cbranch_vccz {Lk}")
    A(f"s_cmp_lg_u32 {s(sDEAD)}, 0")
    A(f"s_cbranch_scc1 {Lk}")
    A(f"s_sleep {opts.get('xsleep', 2)}")
    A(f"s_cmp_lt_u32 {s(sPs)}, {SPIN_LIMIT}")
    A(f"s_cbranch_scc1 {Lr}")
    A(f"s_mov_b32 {s(sDEAD)}, 1")
    A.label(Lk)
    A(f"ds_write_b128 {v(vKw)}, {v(RKM,4)}")
    A(f"ds_write_b128 {v(vKw)}, {v(RKM+4,4)} offset:1024")
    for ks in range(4):
        for hf in range(2):
            A(f"ds_read_b64_tr_b16 {v(RKM+4*ks+2*hf,2)}, {v(vKr)} offset:{(32*ks+8*hf)*16}")
    T0, T1, TM = TS, TS + 4, TS + 8
    for ks in range(4):
        c0 = "0" if ks == 0 else v(T0, 4)
        c1 = "0" if ks == 0 else v(T1, 4)
        A(f"v_mfma_f32_16x16x32_bf16 {v(T0,4)}, {v(RK+4*ks,4)}, {v(RQ+4*ks,4)}, {c0}")
        A(f"v_mfma_f32_16x16x32_bf16 {v(T1,4)}, {v(RK+16+4*ks,4)}, {v(RQ+4*ks,4)}, {c1}")
    A(f"s_waitcnt lgkmcnt(0)")
    for ks in range(4):
        cm = "0" if ks == 0 else v(TM, 4)
        A(f"v_mfma_f32_16x16x32_bf16 {v(TM,4)}, {v(RKM+4*ks,4)}, {v(RQ+4*ks,4)}, {cm}")
    A(f"v_mov_b32 {v(vT2)}, 0xff800000")
    A.nop(2)
    for t in range(2):
        for r in range(4):
            A(f"v_cndmask_b32 {v(TS+4*t+r)}, {v(vT2)}, {v(TS+4*t+r)}, {s(sMask+2*(4*t+r),2)}")
    m, t_ = vT1, vT2
    x0, x1 = RK, RK + 1
    A(f"v_max3_f32 {v(m)}, {v(T0)}, {v(T0+1)}, {v(T0+2)}")
    A(f"v_max3_f32 {v(t_)}, {v(T0+3)}, {v(T1)}, {v(T1+1)}")
    A(f"v_max3_f32 {v(m)}, {v(m)}, {v(T1+2)}, {v(T1+3)}")
    A(f"v_max3_f32 {v(m)}, {v(m)}, {v(t_)}, {v(TM)}")
    A(f"v_max3_f32 {v(t_)}, {v(TM+1)}, {v(TM+2)}, {v(TM+3)}")
    A(f"v_max_f32 {v(x0)}, {v(m)}, {v(t_)}")
    A(f"v_max_f32 {v(x1)}, {v(m)}, {v(t_)}")
    A.nop(2)
    A(f"v_permlane16_swap_b32 {v(x0)}, {v(x1)}")
    A(f"v_max_f32 {v(m)}, {v(x0)}, {v(x1)}")
    A(f"v_max_f32 {v(t_)}, {v(x0)}, {v(x1)}")
    A.nop(2)
    A(f"v_permlane32_swap_b32 {v(m)}, {v(t_)}")
    A(f"v_max_f32 {v(m)}, {v(m)}, {v(t_)}")
    A(f"v_mul_f32 {v(m)}, {s(sNC)}, {v(m)}")
    for i in range(12):
        A(f"v_fma_f32 {v(TS+i)}, {v(TS+i)}, {s(sC)}, {v(m)}")
    for i in range(12):
        A(f"v_exp_f32 {v(TS+i)}, {v(TS+i)}")
    BX = RK + 4
    A.nop(1)
    A(f"v_cvt_pk_bf16_f32 {v(BX)}, {v(T0)}, {v(T0+1)}")
    A(f"v_cvt_pk_bf16_f32 {v(BX+1)}, {v(T0+2)}, {v(T0+3)}")
    A(f"v_cvt_pk_bf16_f32 {v(BX+2)}, {v(T1)}, {v(T1+1)}")
    A(f"v_cvt_pk_bf16_f32 {v(BX+3)}, {v(T1+2)}, {v(T1+3)}")
    A(f"v_cvt_pk_bf16_f32 {v(BM)}, {v(TM)}, {v(TM+1)}")
    A(f"v_cvt_pk_bf16_f32 {v(BM+1)}, {v(TM+2)}, {v(TM+3)}")
    A(f"v_cndmask_b32 {v(BM)}, 0, {v(BM)}, {s(sLo,2)}")
    A(f"v_cndmask_b32 {v(BM+1)}, 0, {v(BM+1)}, {s(sLo,2)}")
    O = RK + 8
    LS = RK + 24
    A(f"s_waitcnt vmcnt(0)")
    A.nop(2)
    A(f"v_mfma_f32_16x16x32_bf16 {v(LS,4)}, {v(ONES,4)}, {v(BX,4)}, 0")
    for p in range(4):
        A(f"v_mfma_f32_16x16x32_bf16 {v(O+4*p,4)}, {v(RV+4*p,4)}, {v(BX,4)}, 0")
    A(f"v_mfma_f32_16x16x32_bf16 {v(LS,4)}, {v(ONES,4)}, {v(BM,4)}, {v(LS,4)}")
    for p in range(4):
        A(f"v_mfma_f32_16x16x32_bf16 {v(O+4*p,4)}, {v(RVM+2*p,4)}, {v(BM,4)}, {v(O+4*p,4)}")
    A.nop(8)
    A(f"v_rcp_f32 {v(m)}, {v(LS)}")
    A.nop(1)
    for i in range(16):
        A(f"v_mul_f32 {v(O+i)}, {v(O+i)}, {v(m)}")
    PKO = RQ
    for i in range(8):
        A(f"v_cvt_pk_bf16_f32 {v(PKO+i)}, {v(O+2*i)}, {v(O+2*i+1)}")
    A(f"s_add_u32 {s(sT4)}, {s(sT3)}, {WS_OX:#x}")
    A(f"buffer_store_dwordx4 {v(PKO,4)}, {v(vOst)}, {s(S_WS,4)}, {s(sT4)} offen sc1")
    A(f"buffer_store_dwordx4 {v(PKO+4,4)}, {v(vOst)}, {s(S_WS,4)}, {s(sT4)} offen offset:1024 sc1")
    A(f"s_waitcnt vmcnt(0)")
    A(f"s_barrier")
    Lf = A.new_label("xf")
    A(f"s_cmp_lg_u32 {s(sWAVE)}, 0")
    A(f"s_cbranch_scc1 {Lf}")
    A(f"s_lshl_b32 {s(sT0)}, {s(sSegX)}, 7")
    A(f"s_lshl_b32 {s(sT1)}, {s(sH)}, 2")
    A(f"s_add_u32 {s(sT0)}, {s(sT0)}, {s(sT1)}")
    A(f"s_add_u32 {s(sT0)}, {s(sT0)}, {WS_OF:#x}")
    A(f"v_mov_b32 {v(vTmp)}, 1")
    A(f"s_mov_b64 exec, 1")
    A(f"buffer_store_dword {v(vTmp)}, off, {s(S_WS,4)}, {s(sT0)} sc1")
    A(f"s_mov_b64 exec, -1")
    A.label(Lf)
```

```python
import sys
from dsl import *

KNAME = "gated_mix__memory_aug_recurrent_mem_tr__dense_activation_silu__prompt_kernel"

WS_P = 0
WS_M = 0x100000
WS_KVF = 0x110000
WS_OF = 0x120000
WS_KM = 0x200000
WS_KX = 0x1000000
KVSTR = 16384
WS_QX = 0x3000000
WS_OX = 0x4000000
WS_HX = 0x5000000
HX_STRIDE = 2 * 43 * 1024
WS_G = 0x5800000
WS_T = 0x5810000
WS_SIZE = 0x5860000

D_CHECKIN = 0
D_XCCMASK = 1
D_FFN = 2
D_ERR = 4
D_WDONE = 5
D_KV = 8
D_O = 24
D_PROG = 40

S_WS, S_DBG, S_X, S_A, S_B, S_C, S_D = 4, 8, 12, 16, 20, 24, 28
sWAVE, sIDX, sXCD = 32, 33, 34
sT0, sT1, sT2, sT3, sT4, sT5 = 35, 36, 37, 38, 39, 40
sDEAD = 41
sEX = 42
P_X, P_MEM0, P_WQ, P_WK, P_WV, P_WO, P_W1, P_W2, P_GATE, P_OUT, P_DBG, P_WS = 64, 66, 68, 70, 72, 74, 80, 82, 84, 86, 88, 90
SPIN_LIMIT = 1 << 17

LDS_BYTES = 160 * 1024


def mk_srd(A, d, p, size):
    A(f"s_mov_b32 {s(d)}, {s(p)}")
    A(f"s_mov_b32 {s(d+1)}, {s(p+1)}")
    A(f"s_mov_b32 {s(d+2)}, {size:#x}")
    A(f"s_mov_b32 {s(d+3)}, 0x00020000")


def wait_byte(A, vT, vZero, s_off, s_shift, target, tag, s_tmp=sT0, s_cnt=sT1, target_is_sreg=False, sleep=2):
    L = A.new_label("w" + tag)
    Ld = A.new_label("wd" + tag)
    A(f"s_mov_b32 {s(s_cnt)}, 0")
    A(f"s_cmp_lg_u32 {s(sDEAD)}, 0")
    A(f"s_cbranch_scc1 {Ld}")
    A.label(L)
    A(f"buffer_load_dword {v(vT)}, {v(vZero)}, {s(S_DBG,4)}, {s(s_off)} offen sc1")
    A(f"s_waitcnt vmcnt(0)")
    A(f"v_readfirstlane_b32 {s(s_tmp)}, {v(vT)}")
    A(f"s_lshr_b32 {s(s_tmp)}, {s(s_tmp)}, {s(s_shift)}")
    A(f"s_and_b32 {s(s_tmp)}, {s(s_tmp)}, 0xff")
    A(f"s_cmp_ge_u32 {s(s_tmp)}, {s(target) if target_is_sreg else target}")
    A(f"s_cbranch_scc1 {Ld}")
    if sleep:
        A(f"s_sleep {sleep}")
    A(f"s_add_u32 {s(s_cnt)}, {s(s_cnt)}, 1")
    A(f"s_cmp_lt_u32 {s(s_cnt)}, {SPIN_LIMIT}")
    A(f"s_cbranch_scc1 {L}")
    A(f"s_mov_b32 {s(sDEAD)}, 1")
    A.label(Ld)


def signal_byte(A, vOne, vZero, s_off, s_shift, vTmp):
    A(f"s_lshl_b32 {s(sT0)}, 1, {s(s_shift)}")
    A(f"v_mov_b32 {v(vTmp)}, {s(sT0)}")
    A(f"s_mov_b64 {s(sEX,2)}, exec")
    A(f"s_mov_b64 exec, 1")
    A(f"buffer_atomic_add {v(vTmp)}, {v(vZero)}, {s(S_DBG,4)}, {s(s_off)} offen sc1")
    A(f"s_mov_b64 exec, {s(sEX,2)}")


PROF = False
sSTAMP = 92


def stamp(A, i):
    if not PROF:
        return
    A(f"s_memrealtime s[62:63]")
    A(f"s_waitcnt lgkmcnt(0)")
    A(f"s_mov_b32 {s(sSTAMP+i)}, s62")


def stamp_clk(A, i):
    if not PROF:
        return
    A(f"s_memtime s[62:63]")
    A(f"s_waitcnt lgkmcnt(0)")
    A(f"s_mov_b32 {s(sSTAMP+i)}, s62")


def stamp_if_lt(A, i, sreg, limit, clk=False):
    if not PROF:
        return
    L = A.new_label("st")
    A(f"s_cmp_lt_u32 {s(sreg)}, {limit}")
    A(f"s_cbranch_scc0 {L}")
    (stamp_clk if clk else stamp)(A, i)
    A.label(L)


def stamp_flush(A):
    if not PROF:
        return
    A(f"s_lshl_b32 s62, s2, 2")
    A(f"s_add_u32 s62, s62, {s(sWAVE)}")
    A(f"s_lshl_b32 s62, s62, 6")
    A(f"s_add_u32 s62, s62, {WS_T:#x}")
    A(f"v_mov_b32 v1, 0")
    A(f"s_mov_b64 exec, 1")
    for i in range(10):
        A(f"v_mov_b32 v2, {s(sSTAMP+i)}")
        A(f"buffer_store_dword v2, v1, {s(S_WS,4)}, s62 offen offset:{4*i}")
    A(f"s_waitcnt vmcnt(0)")


STG_BUF = 3072


def stage_addr(row):
    return 64 * row + 128 * (row >> 2)


def load_blocks(A, blocks, vST, window, after_first_issue=None, nolds=False):
    n = len(blocks)

    def issue(b):
        blk = blocks[b]
        for k in range(2):
            so = blk['soff'][k]
            A(f"s_mov_b32 {s(sT0)}, {so:#x}")
            if blk.get('sbase') is not None:
                A(f"s_add_u32 {s(sT0)}, {s(sT0)}, {s(blk['sbase'])}")
            A(f"buffer_load_dwordx4 {reg(off(blk['raw'], 4*k), 4)}, {v(blk['voff'])}, {s(blk['srd'],4)}, {s(sT0)} offen")

    issued = 0
    def can_issue(b, done):
        r = blocks[b]['raw']
        for p in range(b):
            if blocks[p]['raw'] == r or blocks[p].get('dst') == r:
                if p >= done:
                    return False
        return True

    while issued < n and issued < window and can_issue(issued, 0):
        issue(issued)
        issued += 1
    if after_first_issue:
        after_first_issue(2 * issued)
    for b in range(n):
        blk = blocks[b]
        assert issued > b, "window deadlock"
        A(f"s_waitcnt vmcnt({2*(issued-b-1)})")
        buf = (b & 1) * STG_BUF
        if not nolds:
            A(f"ds_write_b128 {v(vST)}, {reg(blk['raw'],4)} offset:{buf}")
            A(f"ds_write_b128 {v(vST)}, {reg(off(blk['raw'],4),4)} offset:{buf + stage_addr(16)}")
            for i in range(4):
                A(f"ds_read_b64_tr_b16 {reg(off(blk['dst'],2*i),2)}, {v(blk['vtr'])} offset:{buf + blk['imm'][i]}")
        if blk.get('post'):
            blk['post'](A)
        while issued < n and issued - b - 1 < window and can_issue(issued, b + 1):
            issue(issued)
            issued += 1
    A("s_waitcnt lgkmcnt(0)")


def load_blocks2(A, blocks, vST, window, extra=None, nolds=False, vq=None, upto=None):
    n = len(blocks)
    vq = vq or Q(A, "vmcnt", 63)
    state = dict(issued=0, xi=False, xc=False)

    def issue(b):
        blk = blocks[b]
        for k in range(2):
            A(f"s_mov_b32 {s(sT0)}, {blk['soff'][k]:#x}")
            vq.issue(('B', id(blk)), f"buffer_load_dwordx4 {reg(off(blk['raw'], 4*k), 4)}, {v(blk['voff'])}, {s(blk['srd'],4)}, {s(sT0)} offen")
        state['issued'] += 1
        if extra and b == extra[0]:
            extra[1](vq)
            state['xi'] = True
    while state['issued'] < n and state['issued'] < window:
        issue(state['issued'])
    for b in range(n):
        blk = blocks[b]
        vq.wait(('B', id(blk)))
        if extra and state['xi'] and not state['xc'] and b > extra[0]:
            extra[2](vq)
            state['xc'] = True
        buf = (b & 1) * STG_BUF
        if not nolds:
            A(f"ds_write_b128 {v(vST)}, {reg(blk['raw'],4)} offset:{buf}")
            A(f"ds_write_b128 {v(vST)}, {reg(off(blk['raw'],4),4)} offset:{buf + stage_addr(16)}")
            for i in range(4):
                A(f"ds_read_b64_tr_b16 {reg(off(blk['dst'],2*i),2)}, {v(blk['vtr'])} offset:{buf + blk['imm'][i]}")
        if blk.get('post'):
            blk['post'](A)
        while state['issued'] < n and state['issued'] - b - 1 < window:
            issue(state['issued'])
    if extra and not state['xc']:
        extra[2](vq)
    A("s_waitcnt lgkmcnt(0)")


def tr_lane_addr(A, vD, vL, vT1, vT2, kind, base_sreg=None, base_imm=0):
    A(f"v_lshrrev_b32 {v(vT1)}, 4, {v(vL)}")
    A(f"v_bfe_u32 {v(vT2)}, {v(vL)}, 2, 2")
    A(f"v_and_b32 {v(vD)}, 3, {v(vL)}")
    A(f"v_lshlrev_b32 {v(vD)}, 3, {v(vD)}")

    def add_term(expr_src, mask_shift, mul):
        sh, bits = mask_shift
        A(f"v_bfe_u32 v{TMPX}, {v(expr_src)}, {sh}, {bits}")
        A(f"v_mul_u32_u24 v{TMPX}, {mul}, v{TMPX}")
        A(f"v_add_u32 {v(vD)}, {v(vD)}, v{TMPX}")

    G, r = vT1, vT2
    def sa(row):
        return stage_addr(row)
    if kind == 'chain_qkv':
        add_term(G, (1, 1), sa(8)); add_term(G, (0, 1), sa(4)); add_term(r, (0, 1), sa(1)); add_term(r, (1, 1), 32)
    elif kind == 'chain_wo':
        add_term(G, (0, 1), sa(16)); add_term(G, (1, 1), sa(4)); add_term(r, (0, 1), sa(1)); add_term(r, (1, 1), 32)
    elif kind == 'k16':
        add_term(G, (1, 1), sa(8)); add_term(r, (0, 2), sa(1)); add_term(G, (0, 1), 32)
    elif kind == 'out_wo':
        add_term(G, (0, 2), sa(4)); add_term(r, (0, 2), sa(1))
    elif kind == 'out_w2':
        add_term(G, (1, 1), sa(16)); add_term(G, (0, 1), sa(4)); add_term(r, (0, 2), sa(1))
    else:
        raise ValueError(kind)
    if base_sreg is not None:
        A(f"v_add_u32 {v(vD)}, {s(base_sreg)}, {v(vD)}")
    if base_imm:
        A(f"v_add_u32 {v(vD)}, {base_imm}, {v(vD)}")


TR_IMM = {
    'chain_qkv': [stage_addr(16 * hi + 2 * qq) for hi in range(2) for qq in range(2)],
    'chain_wo': [stage_addr(8 * hi + 2 * qq) for hi in range(2) for qq in range(2)],
    'k16': [stage_addr(16 * kk + 4 * hf) for kk in range(2) for hf in range(2)],
    'out_wo': [stage_addr(16 * hf) + 32 * ct for ct in range(2) for hf in range(2)],
    'out_w2': [stage_addr(8 * hf) + 32 * ct for ct in range(2) for hf in range(2)],
}
TMPX = 15


def stage_lane_addr(A, vD, vL, vT, base_sreg):
    A(f"v_lshrrev_b32 {v(vD)}, 2, {v(vL)}")
    A(f"v_lshlrev_b32 {v(vD)}, 6, {v(vD)}")
    A(f"v_lshrrev_b32 {v(vT)}, 4, {v(vL)}")
    A(f"v_lshlrev_b32 {v(vT)}, 7, {v(vT)}")
    A(f"v_add_u32 {v(vD)}, {v(vD)}, {v(vT)}")
    A(f"v_and_b32 {v(vT)}, 3, {v(vL)}")
    A(f"v_lshlrev_b32 {v(vT)}, 4, {v(vT)}")
    A(f"v_add_u32 {v(vD)}, {v(vD)}, {v(vT)}")
    A(f"v_add_u32 {v(vD)}, {s(base_sreg)}, {v(vD)}")


def raw_lane_off(A, vD, vL, vT, pitch):
    A(f"v_lshrrev_b32 {v(vD)}, 2, {v(vL)}")
    A(f"v_mul_u32_u24 {v(vD)}, {pitch}, {v(vD)}")
    A(f"v_and_b32 {v(vT)}, 3, {v(vL)}")
    A(f"v_lshlrev_b32 {v(vT)}, 4, {v(vT)}")
    A(f"v_add_u32 {v(vD)}, {v(vD)}, {v(vT)}")


def lane_expr(A, vD, vL, terms, const=0, sregs=(), tmp=None):
    tmp = TMPX if tmp is None else tmp
    first = True
    for (sh, bits, mul) in terms:
        dst = vD if first else tmp
        A(f"v_bfe_u32 {v(dst)}, {v(vL)}, {sh}, {bits}")
        if mul != 1:
            A(f"v_mul_u32_u24 {v(dst)}, {mul}, {v(dst)}")
        if not first:
            A(f"v_add_u32 {v(vD)}, {v(vD)}, {v(tmp)}")
        first = False
    if first:
        A(f"v_mov_b32 {v(vD)}, 0")
    if const:
        A(f"v_add_u32 {v(vD)}, {const:#x}, {v(vD)}")
    for sr in sregs:
        A(f"v_add_u32 {v(vD)}, {s(sr)}, {v(vD)}")


class Q:
    def __init__(self, A, name, cap):
        self.A, self.name, self.cap = A, name, cap
        self.ops = []

    def issue(self, tag, text):
        self.A(text)
        self.ops.append(tag)

    def wait(self, tag):
        if tag not in self.ops:
            return
        i = max(j for j, t in enumerate(self.ops) if t == tag)
        n = len(self.ops) - 1 - i
        self.A(f"s_waitcnt {self.name}({min(n, self.cap)})")
        if n <= self.cap:
            self.ops = self.ops[i + 1:]
        else:
            self.ops = self.ops[len(self.ops) - self.cap:]

    def wait_all(self):
        self.A(f"s_waitcnt {self.name}(0)")
        self.ops = []


XBUF = 64 * 528
XB1 = 36864


class XG:
    vL, vL16, vXW, vXR, vZero, vTmp, vT1, vT2 = 1, 2, 3, 4, 10, 11, 12, 13
    XP, XF = 16, 48
    NF = 4

    def __init__(self, A, sDelta):
        self.A, self.sDelta = A, sDelta

    def setup(self):
        A = self.A
        vL, vL16, vXW, vXR, vZero, vT1 = self.vL, self.vL16, self.vXW, self.vXR, self.vZero, self.vT1
        A(f"v_and_b32 {v(vL)}, 63, v0")
        A(f"v_lshlrev_b32 {v(vL16)}, 4, {v(vL)}")
        A(f"v_mov_b32 {v(vZero)}, 0")
        A(f"v_mul_u32_u24 {v(vXW)}, 528, {v(vL)}")
        A(f"s_lshl_b32 {s(sT0)}, {s(sWAVE)}, 7")
        A(f"v_add_u32 {v(vXW)}, {s(sT0)}, {v(vXW)}")
        A(f"v_lshrrev_b32 {v(vXR)}, 5, {v(vL)}")
        A(f"v_mul_u32_u24 {v(vXR)}, 528, {v(vXR)}")
        A(f"v_and_b32 {v(vT1)}, 31, {v(vL)}")
        A(f"v_lshlrev_b32 {v(vT1)}, 4, {v(vT1)}")
        A(f"v_add_u32 {v(vXR)}, {v(vXR)}, {v(vT1)}")

    def issue_x(self, seg_sreg, vq=None):
        A = self.A
        if vq is not None:
            A = lambda x_: (vq.issue('x', x_) if x_.startswith('buffer_load') else self.A(x_))
        A(f"s_lshl_b32 {s(sT0)}, {s(seg_sreg)}, 15")
        A(f"s_lshl_b32 {s(sT1)}, {s(sWAVE)}, 13")
        A(f"s_add_u32 {s(sT0)}, {s(sT0)}, {s(sT1)}")
        for i in range(8):
            if i == 4:
                A(f"s_add_u32 {s(sT0)}, {s(sT0)}, 4096")
            A(f"buffer_load_dwordx4 {v(self.XP+4*i,4)}, {v(self.vL16)}, {s(S_X,4)}, {s(sT0)} offen offset:{(i%4)*1024}")

    def write_x(self):
        for i in range(8):
            self.A(f"ds_write_b128 {v(self.vXW)}, {v(self.XP+4*i,4)} offset:{i*16}")

    def after_weights(self):
        A = self.A
        A(f"s_waitcnt lgkmcnt(0)")
        A(f"s_barrier")
        A(f"s_mov_b32 {s(self.sDelta)}, {XB1}")
        A(f"v_add_u32 {v(self.vXW)}, {s(self.sDelta)}, {v(self.vXW)}")

    def body(self, mfmas, wpos=9):
        A, NF, XF = self.A, self.NF, self.XF

        def rd(kk):
            A(f"ds_read_b128 {v(XF + 4*(kk % NF), 4)}, {v(self.vXR)} offset:{kk*1056}")
        for kk in range(NF - 1):
            rd(kk)
        for kk in range(32):
            if kk + NF - 1 < 32:
                rd(kk + NF - 1)
                A(f"s_waitcnt lgkmcnt({NF-1})")
            else:
                A(f"s_waitcnt lgkmcnt({31-kk})")
            mfmas(kk, v(XF + 4 * (kk % NF), 4))
            if wpos is not None and kk == wpos:
                A(f"s_waitcnt vmcnt(0)")
                self.write_x()
                A(f"s_waitcnt lgkmcnt(0)")

    def toggle(self):
        A = self.A
        A(f"v_add_u32 {v(self.vXR)}, {s(self.sDelta)}, {v(self.vXR)}")
        A(f"s_sub_u32 {s(self.sDelta)}, 0, {s(self.sDelta)}")
        A(f"v_add_u32 {v(self.vXW)}, {s(self.sDelta)}, {v(self.vXW)}")


def gen_hq(A, opts):
    vWG, vST, vTR, vKst, vVst = 5, 6, 7, 8, 9
    ACC = 64
    EP = 112
    sH, sJ, sSeg, sNext, sDelta, sSegOff, sKVoff, sKVsh, sXa = 44, 45, 46, 47, 48, 49, 50, 51, 52
    sCnt, sKVF = 53, 60
    xg = XG(A, sDelta)
    vL, vL16, vZero, vTmp, vT1, vT2, XF = xg.vL, xg.vL16, xg.vZero, xg.vTmp, xg.vT1, xg.vT2, xg.XF
    A(f"s_sub_u32 {s(sT0)}, {s(sXCD)}, 3")
    A(f"s_lshl_b32 {s(sT0)}, {s(sT0)}, 5")
    A(f"s_add_u32 {s(sT0)}, {s(sT0)}, {s(sIDX)}")
    A(f"s_mul_i32 {s(sH)}, {s(sT0)}, 205")
    A(f"s_lshr_b32 {s(sH)}, {s(sH)}, 10")
    A(f"s_mul_i32 {s(sT1)}, {s(sH)}, 5")
    A(f"s_sub_u32 {s(sJ)}, {s(sT0)}, {s(sT1)}")
    mk_srd(A, S_A, P_WQ, 512 * 8192)
    mk_srd(A, S_B, P_WK, 512 * 8192)
    mk_srd(A, S_C, P_WV, 512 * 8192)
    xg.setup()
    A(f"s_mov_b32 {s(sSeg)}, {s(sJ)}")
    raw_lane_off(A, vWG, vL, vT1, 8192)
    A(f"s_lshl_b32 {s(sT0)}, {s(sH)}, 8")
    A(f"s_lshl_b32 {s(sT1)}, {s(sWAVE)}, 6")
    A(f"s_add_u32 {s(sT0)}, {s(sT0)}, {s(sT1)}")
    A(f"v_add_u32 {v(vWG)}, {s(sT0)}, {v(vWG)}")
    STG = 80 * 1024
    A(f"s_mul_i32 {s(sT2)}, {s(sWAVE)}, {2*STG_BUF}")
    A(f"s_add_u32 {s(sT2)}, {s(sT2)}, {STG}")
    stage_lane_addr(A, vST, vL, vT1, sT2)
    tr_lane_addr(A, vTR, vL, vT1, vT2, 'k16', base_sreg=sT2)
    A(f"s_lshl_b32 {s(sT0)}, {s(sWAVE)}, 10")
    lane_expr(A, vKst, vL, [(4, 1, 4096), (5, 1, 256), (0, 4, 16)], sregs=[sT0])
    A(f"s_lshl_b32 {s(sT0)}, {s(sWAVE)}, 11")
    lane_expr(A, vVst, vL, [(4, 1, 1024), (5, 1, 256), (0, 4, 16)], sregs=[sT0])

    def wblocks(srd, dst):
        return [dict(srd=srd, voff=vWG, soff=[(32 * b) * 8192, (32 * b + 16) * 8192], raw=off(dst, 8 * b), dst=off(dst, 8 * b),
                     vtr=vTR, imm=TR_IMM['k16']) for b in range(16)]
    kvb = wblocks(S_B, ('a', 128)) + wblocks(S_C, ('v', 128))
    qb = wblocks(S_A, ('a', 0))
    stamp(A, 1)
    if PROF:
        kvb[15]['post'] = lambda A_: stamp(A_, 6)
        kvb[0]['post'] = lambda A_: stamp(A_, 8)

    def x_issue(vq):
        xg.issue_x(sSeg, vq)

    def x_consume(vq):
        vq.wait('x')
        xg.write_x()
        stamp(A, 5)
    hw = opts.get('hqwin', 10)
    load_blocks2(A, kvb, vST, window=hw, extra=(opts.get('hqxpos', 16), x_issue, x_consume))
    stamp(A, 7)
    xg.after_weights()
    A(f"s_mov_b32 {s(sXa)}, -1")
    A(f"s_mov_b32 {s(sCnt)}, 1")
    A(f"s_lshl_b32 {s(sKVF)}, {s(sH)}, 7")
    A(f"s_lshl_b32 {s(sT0)}, {s(sJ)}, 2")
    A(f"s_add_u32 {s(sKVF)}, {s(sKVF)}, {s(sT0)}")
    A(f"s_add_u32 {s(sKVF)}, {s(sKVF)}, {WS_KVF:#x}")
    A(f"buffer_load_dword v15, {v(vZero)}, {s(S_DBG,4)}, 0 offen offset:{D_CHECKIN*4} sc1")

    def mf_k(kk, f):
        c = lambda base: "0" if kk == 0 else v(base, 16)
        A(f"v_mfma_f32_32x32x16_bf16 {v(ACC+16,16)}, {a(128+4*kk,4)}, {f}, {c(ACC+16)}")

    def mf_v(kk, f):
        c = lambda base: "0" if kk == 0 else v(base, 16)
        A(f"v_mfma_f32_32x32x16_bf16 {v(ACC+32,16)}, {f}, {v(128+4*kk,4)}, {c(ACC+32)}")

    def mf_q(kk, f):
        c = lambda base: "0" if kk == 0 else v(base, 16)
        A(f"v_mfma_f32_32x32x16_bf16 {v(ACC,16)}, {a(4*kk,4)}, {f}, {c(ACC)}")

    def seg_offsets():
        A(f"s_lshl_b32 {s(sSegOff)}, {s(sSeg)}, 5")
        A(f"s_add_u32 {s(sSegOff)}, {s(sSegOff)}, {s(sH)}")
        A(f"s_lshl_b32 {s(sKVoff)}, {s(sSegOff)}, 14")
        A(f"s_lshl_b32 {s(sKVsh)}, {s(sSegOff)}, 12")
        A(f"s_lshl_b32 {s(sSegOff)}, {s(sSegOff)}, 13")

    def store_ct(acc, sbase, region, ep):
        for c in range(2):
            for q in range(4):
                A(f"v_cvt_pk_bf16_f32 {v(ep+4*c+q)}, {v(acc+8*c+2*q)}, {v(acc+8*c+2*q+1)}")
        A(f"s_add_u32 {s(sT0)}, {s(sbase)}, {region:#x}")
        for c in range(2):
            A(f"buffer_store_dwordx4 {v(ep+4*c,4)}, {v(vKst)}, {s(S_WS,4)}, {s(sT0)} offen offset:{c*512} sc1")

    def store_kv():
        store_ct(ACC + 16, sKVoff, WS_KX, EP)
        acc = ACC + 32
        for c in range(2):
            for hf in range(2):
                u = c + 2 * hf
                for q in range(2):
                    A(f"v_cvt_pk_bf16_f32 {v(EP+8+4*c+2*hf+q)}, {v(acc+4*u+2*q)}, {v(acc+4*u+2*q+1)}")
        A(f"s_add_u32 {s(sT0)}, {s(sKVoff)}, {WS_KX + 8192:#x}")
        for c in range(2):
            A(f"buffer_store_dwordx4 {v(EP+8+4*c,4)}, {v(vVst)}, {s(S_WS,4)}, {s(sT0)} offen offset:{c*512} sc1")

    def arm_km():
        for i in range(4):
            A(f"v_mov_b32 {v(XF+8+i)}, -1")
        A(f"s_lshl_b32 {s(sT1)}, {s(sWAVE)}, 10")
        A(f"s_add_u32 {s(sT0)}, {s(sKVsh)}, {s(sT1)}")
        A(f"s_add_u32 {s(sT0)}, {s(sT0)}, {WS_KM:#x}")
        A(f"buffer_store_dwordx4 {v(XF+8,4)}, {v(vL16)}, {s(S_WS,4)}, {s(sT0)} offen sc1")

    def flag_store():
        A(f"v_mov_b32 {v(vTmp)}, {s(sCnt)}")
        A(f"s_mov_b64 exec, 1")
        A(f"buffer_store_dword {v(vTmp)}, off, {s(S_WS,4)}, {s(sKVF)} sc1")
        A(f"s_mov_b64 exec, -1")
    xg.body(lambda kk, f: (mf_k(kk, f), mf_v(kk, f)), wpos=None)
    A.nop(12)
    seg_offsets()
    store_kv()
    arm_km()
    vq = Q(A, "vmcnt", 63)
    qn = [0]

    def q_first(vq_):
        pass
    nq0 = opts.get('hqq0', 8)
    for b in range(nq0):
        blk = qb[b]
        for k in range(2):
            A(f"s_mov_b32 {s(sT0)}, {blk['soff'][k]:#x}")
            vq.issue(('B', id(blk)), f"buffer_load_dwordx4 {reg(off(blk['raw'], 4*k), 4)}, {v(blk['voff'])}, {s(blk['srd'],4)}, {s(sT0)} offen")
    A(f"s_waitcnt vmcnt({2*nq0})")
    A(f"s_barrier")
    Lnf1 = A.new_label("hq_nf1")
    Lci = A.new_label("hq_ci")
    A(f"s_cmp_lg_u32 {s(sWAVE)}, 0")
    A(f"s_cbranch_scc1 {Lnf1}")
    A(f"v_readfirstlane_b32 {s(sT0)}, v15")
    A(f"s_and_b32 {s(sT0)}, {s(sT0)}, 0xff")
    A(f"s_cmp_ge_u32 {s(sT0)}, 32")
    A(f"s_cbranch_scc1 {Lci}")
    A(f"s_mov_b32 {s(sT2)}, {D_CHECKIN*4}")
    A(f"s_mov_b32 {s(sT3)}, 0")
    wait_byte(A, vTmp, vZero, sT2, sT3, 32, "hqci", sleep=4)
    A.label(Lci)
    flag_store()
    A.label(Lnf1)
    stamp(A, 3)
    for b in range(16):
        blk = qb[b]
        if b == 0:
            pass
        if b + nq0 < 16:
            nb_ = qb[b + nq0]
        vq.wait(('B', id(blk)))
        buf = (b & 1) * STG_BUF
        A(f"ds_write_b128 {v(vST)}, {reg(blk['raw'],4)} offset:{buf}")
        A(f"ds_write_b128 {v(vST)}, {reg(off(blk['raw'],4),4)} offset:{buf + stage_addr(16)}")
        for i in range(4):
            A(f"ds_read_b64_tr_b16 {reg(off(blk['dst'],2*i),2)}, {v(blk['vtr'])} offset:{buf + blk['imm'][i]}")
        if b + nq0 < 16:
            for k in range(2):
                A(f"s_mov_b32 {s(sT0)}, {nb_['soff'][k]:#x}")
                vq.issue(('B', id(nb_)), f"buffer_load_dwordx4 {reg(off(nb_['raw'], 4*k), 4)}, {v(nb_['voff'])}, {s(nb_['srd'],4)}, {s(sT0)} offen")
    A("s_waitcnt lgkmcnt(0)")
    stamp(A, 2)
    if opts.get('xatt'):
        from gen_xatt import xatt_setup, xatt_task
        xatt_setup(A, xg, sH)
    A(f"s_add_u32 {s(sNext)}, {s(sSeg)}, 5")
    xg.issue_x(sNext)
    xg.body(mf_q, wpos=opts.get('wpos', 9))
    A.nop(12)
    store_ct(ACC, sSegOff, WS_QX, XF)
    xg.toggle()
    A(f"s_waitcnt vmcnt(0) lgkmcnt(0)")
    A(f"s_barrier")
    A(f"s_mov_b32 {s(sXa)}, {s(sSeg)}")
    A(f"s_mov_b32 {s(sSeg)}, {s(sNext)}")

    Lloop = A.new_label("hq_loop")
    Lnoq = A.new_label("hq_noq")
    Lnoflag = A.new_label("hq_noflag")
    A.label(Lloop)
    A(f"s_add_u32 {s(sNext)}, {s(sSeg)}, 5")
    A(f"s_cmp_ge_u32 {s(sSeg)}, 64")
    A(f"s_cbranch_scc1 {Lnoq}")
    xg.issue_x(sNext)
    xg.body(lambda kk, f: (mf_k(kk, f), mf_v(kk, f), mf_q(kk, f)), wpos=opts.get('wpos', 9))
    A.nop(12)
    seg_offsets()
    store_kv()
    store_ct(ACC, sSegOff, WS_QX, XF)
    arm_km()
    xg.toggle()
    A(f"s_waitcnt vmcnt(0) lgkmcnt(0)")
    A(f"s_barrier")
    A(f"s_add_u32 {s(sCnt)}, {s(sCnt)}, 1")
    A(f"s_cmp_lg_u32 {s(sWAVE)}, 0")
    A(f"s_cbranch_scc1 {Lnoflag}")
    flag_store()
    A.label(Lnoflag)
    A.label(Lnoq)
    if opts.get('xatt'):
        xatt_task(A, xg, sH, sXa)
    A(f"s_mov_b32 {s(sXa)}, {s(sSeg)}")
    A(f"s_mov_b32 {s(sSeg)}, {s(sNext)}")
    A(f"s_cmp_lt_u32 {s(sXa)}, 64")
    A(f"s_cbranch_scc1 {Lloop}")
    stamp(A, 4)


def gen(opts):
    global PROF
    PROF = bool(opts.get('prof'))
    A = Asm()
    A.L.append(open("header.txt").read().rstrip("\n"))
    A.L.append(f"; @launch grid=(256,1,1) block=(256,1,1) lds={LDS_BYTES}")
    A.L.append('.amdgcn_target "amdgcn-amd-amdhsa--gfx950"')
    A.L.append(".text")
    A.L.append(f".globl {KNAME}")
    A.L.append(".p2align 8")
    A.L.append(f".type {KNAME},@function")
    A.label(KNAME)
    A(f"s_cmp_ge_u32 s2, 256")
    A(f"s_cbranch_scc1 L_exit")
    A(f"s_load_dwordx16 s[64:79], s[0:1], 0")
    A(f"s_load_dwordx8 s[80:87], s[0:1], 64")
    A(f"s_load_dwordx4 s[88:91], s[0:1], 96")
    A(f"s_and_b32 {s(sXCD)}, s2, 7")
    A(f"s_lshr_b32 {s(sIDX)}, s2, 3")
    if opts.get('cpf'):
        A("s_getpc_b64 s[44:45]")
        A.label("L_pc")
        A("v_lshlrev_b32 v2, 7, v0")
        A("s_mov_b32 s46, L_exit-L_pc")
        for i in range(opts.get('cpf')):
            A(f"v_add_u32 v4, {i * 32768:#x}, v2")
            A("v_min_u32 v4, s46, v4")
            A("v_mov_b32 v5, s45")
            A("v_add_co_u32 v4, vcc, s44, v4")
            A("v_addc_co_u32 v5, vcc, 0, v5, vcc")
            A("global_load_dword v255, v[4:5], off")
    A(f"v_lshrrev_b32 v1, 6, v0")
    A(f"s_mov_b32 {s(sDEAD)}, 0")
    A(f"v_readfirstlane_b32 {s(sWAVE)}, v1")
    A(f"s_waitcnt lgkmcnt(0)")
    mk_srd(A, S_WS, P_WS, WS_SIZE)
    mk_srd(A, S_DBG, P_DBG, 256)
    mk_srd(A, S_X, P_X, 2048 * 1024)
    if PROF:
        for i in range(10):
            A(f"s_mov_b32 {s(sSTAMP+i)}, 0")
    stamp(A, 0)
    A(f"s_cmp_eq_u32 {s(sXCD)}, 0")
    A(f"s_cbranch_scc1 L_chain")
    A(f"s_cmp_lt_u32 {s(sXCD)}, 3")
    A(f"s_cbranch_scc1 L_out")
    if opts.get('hq', True):
        gen_hq(A, opts)
    A(f"s_branch L_role_end")
    A.label("L_chain")
    if opts.get('clkprobe'):
        A("s_memrealtime s[44:45]")
        A("s_waitcnt lgkmcnt(0)")
        for i in range(1, 9):
            L = A.new_label("cp")
            A(f"s_add_u32 s46, s44, {i*500}")
            A.label(L)
            A("s_memrealtime s[48:49]")
            A("s_waitcnt lgkmcnt(0)")
            A("s_sub_u32 s50, s48, s46")
            A("s_cmp_lt_i32 s50, 0")
            A(f"s_cbranch_scc1 {L}")
            stamp_clk(A, i)
    if opts.get('chain'):
        cv = opts.get('cv', 7)
        if cv == 4:
            from gen_chain4 import gen_chain
        elif cv == 5:
            from gen_chain5 import gen_chain
        elif cv == 6:
            from gen_chain6 import gen_chain
        else:
            from gen_chain7 import gen_chain
        gen_chain(A, opts)
    A(f"s_branch L_role_end")
    A.label("L_out")
    if opts.get('out'):
        from gen_out import gen_out
        gen_out(A, opts)
    A.label("L_role_end")
    stamp(A, 9)
    A.label("L_flush")
    stamp_flush(A)
    A.label("L_exit")
    A("s_endpgm")
    A.L.append(f""".section .rodata,"a"
.p2align 6
.amdhsa_kernel {KNAME}
  .amdhsa_next_free_vgpr 512
  .amdhsa_next_free_sgpr 102
  .amdhsa_accum_offset 256
  .amdhsa_group_segment_fixed_size 0
  .amdhsa_kernarg_size 112
  .amdhsa_user_sgpr_count 2
  .amdhsa_user_sgpr_kernarg_segment_ptr 1
  .amdhsa_system_sgpr_workgroup_id_x 1
.end_amdhsa_kernel""")
    return A.text()


def main():
    opts = {}
    outp = sys.argv[1]
    for o in sys.argv[2:]:
        if "=" in o:
            k, val = o.split("=")
            opts[k] = int(val)
        else:
            opts[o] = True
    open(outp, "w").write(gen(opts))


if __name__ == "__main__":
    import gen as _g
    _g.main()
```

```python
from dsl import *
import gen as G
from gen import *

QK_OFF, O_OFF, MEM_OFF, KX_OFF, VX_OFF, WO_OFF = 0, 4096, 8192, 16384, 24576, 32768

vL16, vKw, vIdx, vQKw, vQKr, vOw, vMw, vWo, vPst, vRed, vMst, vPf, vFlag, vJunk = range(14)
vT0, vT1 = 14, 15
vSEL = 16
vVM1, vKr, vONE = 20, 21, 22
vBM = 26
vS0, vIdxW = 30, 31
KIMG = [2048, 3072, 6144, 7168]
X = 32
Y = 64
PA = 96
ACC = 112
sH, sS, sSlotP, sSlotP1, sSlotP4, sSlotM, sKM, sKV, sC, sNC, sRet = range(44, 55)
sRa0, sRa2, sFastF = 55, 56, 57
sMLo, sMHi = 58, 60
sU = 76
sFo, sNeed, sJ4, sCn, sPf, sGat, sKn, sM0K, sM0V = 78, 79, 80, 81, 84, 85, 86, 87, 88
sW1k, sRaM, sRaA, sFb, sPfb, sW2k = 64, 65, 66, 67, 68, 69
sPc2, sPc3 = 70, 71
sRo, sRm = 72, 89
sPc = [sSlotP, sSlotP1, sPc2, sPc3]
sTag = 55
vTagE = vPf
sCP0, sCP1 = 82, 83
OOB = 0x40000000
RED_LIMIT = 1 << 16

LOG2E = 1.4426950408889634
WPOL = ["", " nt", " sc1", " sc0 sc1", " sc1 nt", " sc0", " sc0 nt", " sc0 sc1 nt"]
SCALE_C = (128 ** -0.5) * LOG2E


def f32_hex(x):
    import struct
    return struct.unpack("<I", struct.pack("<f", x))[0]


RT = False
LATE = [False]
CSTEP = [39]


TRACE = [False]


def lstamp(A, i, late=None):
    if TRACE[0]:
        if i <= 8:
            A(f"s_memtime s[{16 + 2 * (i - 1)}:{17 + 2 * (i - 1)}]")
        return
    L = A.new_label("ls")
    if late is None:
        late = i >= 8
    A(f"s_cmp_lg_u32 {s(sS)}, {CSTEP[0] + 1 if late else CSTEP[0]}")
    A(f"s_cbranch_scc1 {L}")
    r = 16 + 2 * (i - 1) if i < 9 else 62
    A(f"{'s_memrealtime' if RT else 's_memtime'} s[{r}:{r+1}]")
    A.label(L)


import re as _re


def _regs(tok):
    tok = tok.strip().rstrip(',')
    m = _re.match(r'^([va])\[(\d+):(\d+)\]$', tok)
    if m:
        return {(m.group(1), i) for i in range(int(m.group(2)), int(m.group(3)) + 1)}
    m = _re.match(r'^([va])(\d+)$', tok)
    if m:
        return {(m.group(1), int(m.group(2)))}
    return set()


def _all_regs(line):
    r = set()
    for tok in _re.findall(r'[va]\[\d+:\d+\]|\b[va]\d+\b', line):
        r |= _regs(tok)
    return r


def gap_reorder(lines, report=False):
    out = []
    i = 0
    n = len(lines)
    issm = lambda x: x.strip().startswith('v_smfmac')
    while i < n:
        out.append(lines[i])
        if issm(lines[i]):
            j = i + 1
            gap = []
            while j < n and not issm(lines[j]) and not lines[j].endswith(':') and not lines[j].strip().startswith(('s_cbranch', 's_branch', 'v_mfma', 's_nop', 's_memtime', 's_memrealtime', 's_cmp')):
                gap.append(lines[j])
                j += 1
            if j < n and issm(lines[j]):
                changed = True
                while changed:
                    changed = False
                    for k in range(len(gap) - 1):
                        a_, b_ = gap[k].strip(), gap[k + 1].strip()
                        if a_.startswith('v_') and not b_.startswith('v_') and 'vcc' not in a_ and 'exec' not in b_:
                            if not (_all_regs(a_) & _all_regs(b_)):
                                gap[k], gap[k + 1] = gap[k + 1], gap[k]
                                changed = True
                nv = sum(1 for g in gap if g.strip().startswith('v_'))
                no = len(gap) - nv
                lastv = all(not gap[k].strip().startswith('v_') or gap[k + 1].strip().startswith('v_') for k in range(len(gap) - 1))
                if report and (nv > 1 or (nv and no > 2) or no > 3 or not lastv):
                    print("gap over budget:", [g.strip()[:40] for g in gap])
            out.extend(gap)
            i = j
            continue
        i += 1
    return out


def gen_step(A, fast, opts):
    i0 = len(A.L)
    gen_step_raw(A, fast, opts)
    if opts.get('reord', 1):
        A.L[i0:] = gap_reorder(A.L[i0:], report=fast and opts.get('report'))


def gen_step_raw(A, fast, opts):
    st = "" if fast else " sc1"
    tag = "f" if fast else "s"
    Lown = [f"L_own0_{tag}", f"L_own1_{tag}"]
    Lcommon = f"L_common_{tag}"
    Llast = f"L_last_{tag}"
    lq = Q(A, "lgkmcnt", 15)
    cp = opts.get('cprof') or opts.get('trace')
    rp = opts.get('rprof')
    AQ, AV, AK = ACC, ACC + 8, Y + 24
    CQ, CK = AQ + 2, AK + 2
    H0, H1 = X + 16, X + 24
    AO = Y
    KXR = {0: X + 16, 4: X + 20, 1: X + 24, 5: X + 28, 2: X, 6: X + 4, 3: X + 8, 7: X + 12}
    RB = [X, X + 8, PA, PA + 8]
    RIDX = {0: 0, 1: 1, 4: 2, 5: 3, 6: 4, 7: 5}

    def WB(m, jj, t):
        if m == 'q':
            return a(16 * jj + 8 * t, 8)
        if jj in (2, 3):
            return v(RB[2 * (jj - 2) + t], 8)
        return (a if m == 'k' else v)(128 + 16 * RIDX[jj] + 8 * t, 8)

    def rdR(m, b, half):
        fi = (0 if m == 'k' else 4) + b
        lq.issue(('R', m, b), f"ds_read_b128 {v(RB[b] + 4*half, 4)}, {v(vWo)} offset:{fi * 2048 + 1024 * half}")
    AC = {'q': AQ, 'k': AK, 'v': AV}
    vA = [None, vT0, vT1, vS0]

    def smf(m, jj, t, areg):
        if m != 'q' and jj in (2, 3):
            lq.wait(('R', m, 2 * (jj - 2) + t))
        A(f"v_smfmac_f32_16x16x64_bf16 {v(AC[m] + 4*t, 4)}, {v(areg, 4)}, {WB(m, jj, t)}, {v(vIdx)}")

    def rdKX(j):
        lq.issue(('KX', j), f"ds_read_b128 {v(KXR[j],4)}, {v(vL16)} offset:{KX_OFF + j*1024}")

    salu = [
        f"s_and_b32 {s(sT4)}, {s(sS)}, 3",
        f"s_lshl_b32 {s(sSlotM)}, {s(sT4)}, 13",
        f"s_add_u32 {s(sSlotM)}, {s(sSlotM)}, {WS_M:#x}",
        f"s_add_u32 {s(sGat)}, {s(sSlotM)}, {s(sW2k)}",
        f"s_xor_b32 {s(sRa2)}, {s(sSlotM)}, 0x4000",
        f"s_xor_b32 {s(sTag)}, {s(sTag)}, 1",
    ]

    def su(n):
        for _ in range(n):
            if salu:
                A(salu.pop(0))

    Lar = f"L_top_{tag}"
    Lspec = f"L_spec_{tag}"
    Lretry0 = f"L_retry0_{tag}"
    rt = opts.get('rtrace')

    def rstamp(k):
        if rt:
            A(f"s_memtime s[{16 + 2*k}:{17 + 2*k}]")

    def con_issue(R):
        A(f"buffer_load_dwordx4 {v(R,4)}, {v(vL16)}, {s(S_WS,4)}, {s(sGat)} offen sc1")
        A(f"buffer_load_dwordx4 {v(R+4,4)}, {v(vL16)}, {s(S_WS,4)}, {s(sGat)} offen offset:1024 sc1")

    def own(H, spec):
        lq.ops = []
        n = 0
        c0 = Y
        for m in 'qkv':
            for jj in range(2):
                for t in range(2):
                    n += 1
                    smf(m, jj, t, H + 4 * jj)
                    if spec and n == 1:
                        A(f"v_max3_u32 {v(c0)}, {v(H)}, {v(H+2)}, {v(H+4)}")
                    elif spec and n == 2:
                        A(f"v_max_u32 {v(c0)}, {v(c0)}, {v(H+6)}")
                    elif spec and n == 3:
                        A(f"v_cmp_eq_u32 vcc, -1, {v(c0)}")
                        A(f"s_add_u32 {s(sRet)}, {s(sRet)}, 1")
                        A(f"s_cbranch_vccnz {Lretry0}")
                    elif n == 4:
                        A(f"s_waitcnt lgkmcnt(0)")
                        A(f"s_barrier")
                    elif 5 <= n <= 10:
                        j2 = n - 5 + 2
                        lq.issue(('A', j2), f"ds_read_b128 {v(AO + 4*(j2-2), 4)}, {v(vA[j2 >> 1])} offset:{(j2 & 1) * 1024}")
                    elif n == 11:
                        A(f"s_mov_b32 m0, {s(sM0V)}")
                        A(f"s_add_u32 {s(sT3)}, {s(sKV)}, 8192")
                        rdR('k', 0, 0)
                    elif n == 12:
                        A(f"buffer_load_dwordx4 {v(vL16)}, {s(S_WS,4)}, {s(sT3)} offen lds")
                        rdR('k', 0, 1)
    A.label(Lar)
    A(f"s_barrier")
    if cp:
        lstamp(A, 8)
    rstamp(5)
    for k in range(1, 4):
        A(f"v_xor_b32 {v(vA[k])}, {k << 11:#x}, {v(vMw)}")
    A(f"s_mov_b32 {s(sRet)}, 0")
    for _ in range(opts.get('gdelay', 0)):
        A(f"s_sleep 1")
    con_issue(H0)
    for _ in range(opts.get('gspace', 1)):
        A(f"s_sleep 1")
    con_issue(H1)
    A.label(Lspec)
    A(f"s_waitcnt vmcnt(2)")
    if rt:
        rstamp(6)
    A(f"ds_write_b128 {v(vMw)}, {v(H0,4)}")
    A(f"ds_write_b128 {v(vMw)}, {v(H0+4,4)} offset:1024")
    if cp:
        lstamp(A, 9)
        lstamp(A, 1)
    if rt:
        A("s_memtime s[30:31]")
    own(H0, True)
    A.label(Lcommon)
    n = 12
    for jj in range(2, 8):
        for t in range(2):
            n += 1
            if t == 0:
                lq.wait(('A', jj))
            smf('q', jj, t, AO + 4 * (jj - 2))
            if n == 13:
                A(f"buffer_load_dwordx4 {v(vL16)}, {s(S_WS,4)}, {s(sT3)} offen offset:1024 lds")
                rdR('k', 1, 0)
            elif n == 14:
                A(f"buffer_load_dword {v(vFlag)}, off, {s(S_WS,4)}, {s(sFo)} sc1")
                rdR('k', 1, 1)
            elif n == 15:
                if not opts.get('nopf'):
                    A(f"buffer_load_dword {v(vJunk)}, {v(vPf)}, {s(S_WS,4)}, {s(sPf)} offen")
                rdR('k', 2, 0)
            elif n == 16:
                A(f"s_add_u32 {s(sT3)}, {s(sPf)}, 4096")
                rdR('k', 2, 1)
            elif n == 17:
                if not opts.get('nopf'):
                    A(f"buffer_load_dword {v(vJunk)}, {v(vPf)}, {s(S_WS,4)}, {s(sT3)} offen")
                rdR('k', 3, 0)
                su(1)
            elif n == 18:
                A(f"s_waitcnt vmcnt(5)")
                rdR('k', 3, 1)
                su(1)
            elif 19 <= n <= 22:
                rdKX((0, 4, 1, 5)[n - 19])
                su(1)
            else:
                su(3)
    if cp and not rp:
        lstamp(A, 2)

    def post(m, step):
        t, k = step // 3, step % 3
        T = AC[m] + 4 * t
        if k < 2:
            A(f"v_add_f32 {v(T + k)}, {v(T + k)}, {v(T + k + 2)}")
        else:
            d = {'q': CQ + t, 'k': CK + t, 'v': (vS0, vVM1)[t]}[m]
            A(f"v_cvt_pk_bf16_f32 {v(d)}, {v(T)}, {v(T + 1)}")
    for jj in range(2, 8):
        for t in range(2):
            n += 1
            smf('k', jj, t, AO + 4 * (jj - 2))
            if n == 31:
                lq.issue('wq', f"ds_write2st64_b32 {v(vQKw)}, {v(CQ)}, {v(CQ+1)} offset0:0 offset1:1")
            elif n == 33:
                A(f"s_mov_b32 m0, {s(sM0K)}")
                A(f"s_add_u32 {s(sKn)}, {s(sKn)}, 0x80000")
            elif n == 35:
                lq.wait('wq')
                A(f"s_barrier")
            if 26 <= n <= 30:
                rdR('v', (n - 26) >> 1, (n - 26) & 1)
            elif n in (32, 33, 34):
                rdR('v', (n - 27) >> 1, (n - 27) & 1)
            if n in (31, 32):
                su(1)
            if 25 <= n <= 30:
                post('q', n - 25)
            elif n >= 33:
                A(f"v_mov_b64 {v(ACC + 2*(n - 33), 2)}, 0")
    assert not salu
    if cp and not rp:
        lstamp(A, 3)
    QR, KR = Y, Y + 16

    def trq(i):
        ks, hf = i >> 1, i & 1
        lq.issue(('q', ks), f"ds_read_b64_tr_b16 {v(QR+4*ks+2*hf,2)}, {v(vQKr)} offset:{QK_OFF + (32*ks+8*hf)*16}")

    def trk(i):
        ks, hf = i >> 1, i & 1
        lq.issue(('k', ks), f"ds_read_b64_tr_b16 {v(KR+4*ks+2*hf,2)}, {v(vKr)} offset:{KIMG[ks] + hf*256}")
    trq_at = {38: 0, 39: 1, 40: 2, 41: 3, 42: 4, 44: 5, 45: 6, 46: 7}
    for jj in range(2, 8):
        for t in range(2):
            n += 1
            smf('v', jj, t, AO + 4 * (jj - 2))
            if n in trq_at:
                trq(trq_at[n])
            if 39 <= n <= 42:
                rdKX((2, 6, 3, 7)[n - 39])
            if n == 43:
                lq.issue('wk', f"ds_write2st64_b32 {v(vKw)}, {v(CK)}, {v(CK+1)} offset0:0 offset1:2")
            elif n == 44:
                A(f"buffer_store_dword {v(CK)}, {v(vQKw)}, {s(S_WS,4)}, {s(sKM)} offen sc1")
            elif n == 45:
                A(f"buffer_store_dword {v(CK+1)}, {v(vQKw)}, {s(S_WS,4)}, {s(sKM)} offen offset:256 sc1")
            elif n == 47:
                lq.wait('wk')
                A(f"s_barrier")
                trk(0)
            elif n == 48:
                trk(1)
                A(f"buffer_load_dwordx4 {v(vL16)}, {s(S_WS,4)}, {s(sKn)} offen lds")
            if 37 <= n <= 42:
                post('k', n - 37)
    if cp and not rp:
        lstamp(A, 4)
    T0, T1, TM = PA, PA + 4, PA + 8
    m, t_ = vT0, vT1
    wo_ops = [(cg, 0) for cg in range(4)] + [(cg, ks) for cg in range(4) for ks in range(1, 4)]
    bufs = [X + 16, X + 24, X, X + 8, Y, Y + 8, Y + 16, Y + 24]

    WOR = [a(224, 8), a(232, 8), a(240, 8), a(248, 8), v(224, 8), v(232, 8), v(240, 8), v(248, 8)]

    def rdW(i, half):
        o = (8 + i) * 2048 + 1024 * half
        lq.issue(('W', i), f"ds_read_b128 {v(bufs[i] + 4*half, 4)}, {v(vWo)} offset:{o}")
    for i in range(8):
        ks, t = i >> 1, i & 1
        if i in (0, 4):
            lq.wait(('q', ks + 1))
        T = (T0, T1)[t]
        c = "0" if ks == 0 else v(T, 4)
        A(f"v_mfma_f32_16x16x32_bf16 {v(T,4)}, {v(KXR[4*t+ks],4)}, {v(QR+4*ks,4)}, {c}")
        if i == 0:
            A(f"buffer_load_dwordx4 {v(vL16)}, {s(S_WS,4)}, {s(sKn)} offen offset:1024 lds")
        if i <= 5:
            trk(i + 2)
            post('v', i)
        elif i == 6:
            A(f"buffer_store_dword {v(vS0)}, {v(vQKw)}, {s(S_WS,4)}, {s(sKM)} offen offset:2048 sc1")
            A(f"buffer_store_dword {v(vVM1)}, {v(vQKw)}, {s(S_WS,4)}, {s(sKM)} offen offset:2304 sc1")
    A(f"s_cmp_eq_u32 {s(sS)}, 63")
    A(f"s_cbranch_scc1 {Llast}")
    for ks in range(4):
        if ks in (0, 2):
            lq.wait(('k', ks + 1))
        cm = "0" if ks == 0 else v(TM, 4)
        A(f"v_mfma_f32_16x16x32_bf16 {v(TM,4)}, {v(KR+4*ks,4)}, {v(QR+4*ks,4)}, {cm}")
        rdW(ks >> 1, ks & 1)
        if ks == 1:
            A(f"v_max3_f32 {v(m)}, {v(T0)}, {v(T0+1)}, {v(T0+2)}")
        elif ks == 2:
            A(f"v_max3_f32 {v(t_)}, {v(T0+3)}, {v(T1)}, {v(T1+1)}")
        elif ks == 3:
            A(f"v_max3_f32 {v(m)}, {v(m)}, {v(T1+2)}, {v(T1+3)}")
    ralate = 1

    def rearm(k, now=False):
        if now and k == 2:
            A(f"buffer_store_dwordx4 {v(vSEL,4)}, {v(vMst)}, {s(S_WS,4)}, {s(sRa2)} offen{st}")
    VX0 = Y + 16
    u0, u1 = TM + 2, TM + 3
    A(f"s_waitcnt vmcnt(9)")
    lq.issue('vx', f"ds_read_b128 {v(VX0,4)}, {v(vMw)} offset:{VX_OFF - MEM_OFF}")
    lq.issue('vx', f"ds_read_b128 {v(VX0+4,4)}, {v(vMw)} offset:{VX_OFF - MEM_OFF + 1024}")
    rdW(2, 0)
    rdW(2, 1)
    A(f"v_mov_b64 {v(ACC+10,2)}, 0")
    A(f"v_max3_f32 {v(m)}, {v(m)}, {v(t_)}, {v(TM)}")
    A(f"v_max_f32 {v(u0)}, {v(m)}, {v(TM+1)}")
    A(f"v_max_f32 {v(u1)}, {v(m)}, {v(TM+1)}")
    rdW(3, 0)
    A(f"v_mov_b64 {v(ACC+8,2)}, 0")
    A(f"v_permlane16_swap_b32 {v(u0)}, {v(u1)}")
    A(f"v_max_f32 {v(m)}, {v(u0)}, {v(u1)}")
    A(f"v_max_f32 {v(t_)}, {v(u0)}, {v(u1)}")
    rdW(3, 1)
    A(f"s_nop 0")
    A(f"v_permlane32_swap_b32 {v(m)}, {v(t_)}")
    A(f"v_max_f32 {v(m)}, {v(m)}, {v(t_)}")
    A(f"v_mul_f32 {v(m)}, {s(sNC)}, {v(m)}")
    BX = ACC + 12
    xs = [T0, T0 + 1, T0 + 2, T0 + 3, T1, T1 + 1, T1 + 2, T1 + 3]
    ms = [TM, TM + 1]
    if opts.get('pk', 1):
        def pkf(r):
            A(f"v_pk_fma_f32 {v(r,2)}, {v(r,2)}, {s(sC,2)}, {v(m,2)} op_sel_hi:[1,0,0]")
        pkf(T0)
        pkf(T0 + 2)
        for j in range(8):
            A(f"v_exp_f32 {v(xs[j])}, {v(xs[j])}")
            if j == 1:
                pkf(T1)
            elif j == 3:
                pkf(T1 + 2)
            elif j == 5:
                pkf(TM)
            if j >= 2 and j % 2 == 0:
                q = (j - 2) // 2
                A(f"v_cvt_pk_bf16_f32 {v(BX+q)}, {v(xs[2*q])}, {v(xs[2*q+1])}")
    else:
        for r in xs[:2]:
            A(f"v_fma_f32 {v(r)}, {v(r)}, {s(sC)}, {v(m)}")
        for j in range(8):
            A(f"v_exp_f32 {v(xs[j])}, {v(xs[j])}")
            nx = (xs + ms)[j + 2]
            A(f"v_fma_f32 {v(nx)}, {v(nx)}, {s(sC)}, {v(m)}")
            if j >= 2 and j % 2 == 0:
                q = (j - 2) // 2
                A(f"v_cvt_pk_bf16_f32 {v(BX+q)}, {v(xs[2*q])}, {v(xs[2*q+1])}")
    A(f"v_exp_f32 {v(ms[0])}, {v(ms[0])}")
    A(f"v_cvt_pk_bf16_f32 {v(BX+3)}, {v(xs[6])}, {v(xs[7])}")
    A(f"v_exp_f32 {v(ms[1])}, {v(ms[1])}")
    if cp and not rp:
        lstamp(A, 5)
    O0, O1, LS, PKO = PA, PA + 4, PA + 12, PA + 8
    lq.wait('vx')
    A(f"v_mfma_f32_16x16x32_bf16 {v(LS,4)}, {v(vONE,4)}, {v(BX,4)}, 0")
    A(f"v_cvt_pk_bf16_f32 {v(vBM)}, {v(ms[0])}, {v(ms[1])}")
    A(f"v_mfma_f32_16x16x32_bf16 {v(O0,4)}, {v(VX0,4)}, {v(BX,4)}, 0")
    rdW(4, 0)
    A(f"v_mfma_f32_16x16x32_bf16 {v(O1,4)}, {v(VX0+4,4)}, {v(BX,4)}, 0")
    A(f"v_mfma_f32_16x16x32_bf16 {v(LS,4)}, {v(vONE,4)}, {v(vBM,4)}, {v(LS,4)}")
    A(f"v_mfma_f32_16x16x32_bf16 {v(O0,4)}, {v(vS0,4)}, {v(vBM,4)}, {v(O0,4)}")
    A(f"v_mov_b64 {v(ACC+12,2)}, 0")
    A(f"v_mfma_f32_16x16x32_bf16 {v(O1,4)}, {v(vVM1,4)}, {v(vBM,4)}, {v(O1,4)}")
    rdW(4, 1)
    A(f"v_rcp_f32 {v(m)}, {v(LS)}")
    rdW(5, 0)
    A(f"v_mov_b64 {v(ACC+14,2)}, 0")
    if opts.get('pk', 1):
        def pkm(r):
            A(f"v_pk_mul_f32 {v(r,2)}, {v(r,2)}, {v(m,2)} op_sel_hi:[1,0]")
        pkm(O0)
        pkm(O0 + 2)
        pkm(O1)
        A(f"v_cvt_pk_bf16_f32 {v(PKO)}, {v(O0)}, {v(O0+1)}")
        pkm(O1 + 2)
        A(f"v_cvt_pk_bf16_f32 {v(PKO+1)}, {v(O0+2)}, {v(O0+3)}")
    else:
        for r in range(4):
            A(f"v_mul_f32 {v(O0+r)}, {v(O0+r)}, {v(m)}")
        A(f"v_cvt_pk_bf16_f32 {v(PKO)}, {v(O0)}, {v(O0+1)}")
        A(f"v_cvt_pk_bf16_f32 {v(PKO+1)}, {v(O0+2)}, {v(O0+3)}")
        for r in range(4):
            A(f"v_mul_f32 {v(O1+r)}, {v(O1+r)}, {v(m)}")
    A(f"v_cvt_pk_bf16_f32 {v(PKO+2)}, {v(O1)}, {v(O1+1)}")
    A(f"v_cvt_pk_bf16_f32 {v(PKO+3)}, {v(O1+2)}, {v(O1+3)}")
    lq.issue('wo_', f"ds_write_b128 {v(vOw)}, {v(PKO,4)} offset:0")
    AOr = [PKO, PA, PA + 4, PA + 12]
    vAo = [None, vT0, vT1, vS0]
    for k in range(1, 4):
        A(f"v_xor_b32 {v(vAo[k])}, {k << 9:#x}, {v(vOw)}")
    if cp and not rp:
        lstamp(A, 6)

    def pack(cg, k):
        A(f"v_cvt_pk_bf16_f32 {v(ACC+4*cg+k)}, {v(ACC+4*cg+2*k)}, {v(ACC+4*cg+2*k+1)}")

    def tagp(cg):
        A(f"v_and_or_b32 {v(ACC+4*cg)}, {v(ACC+4*cg)}, -2, {s(sTag)}")

    def pstore(cg):
        A(f"buffer_store_dwordx2 {v(ACC+4*cg,2)}, {v(vPst)}, {s(S_WS,4)}, {s(sPc[cg]) if cg else 0} offen{st}")
    for i, (cg, ks) in enumerate(wo_ops):
        if ks:
            lq.wait(('Ao', ks))
        if i >= 8:
            lq.wait(('W', i - 8))
        A(f"v_smfmac_f32_16x16x64_bf16 {v(ACC+4*cg,4)}, {v(AOr[ks],4)}, {WOR[i] if i < 8 else v(bufs[i - 8],8)}, {v(vIdxW)}")
        if i == opts.get('obar', 1):
            lq.wait('wo_')
            A(f"s_barrier")
            for k in range(1, 4):
                lq.issue(('Ao', k), f"ds_read_b128 {v(AOr[k],4)}, {v(vAo[k])}")
        if i == 2:
            rdW(5, 1)
            rdW(6, 0)
        elif i == 3:
            rdW(6, 1)
            rdW(7, 0)
        elif i == 4:
            rdW(7, 1)
        pst = opts.get('pst', 1)
        if pst == 1:
            if i in (11, 14):
                pstore((i - 11) // 3)
            if i in (8, 11, 14):
                pack((i - 8) // 3, 0)
            elif i in (9, 12, 15):
                pack((i - 9) // 3, 1)
            elif i in (10, 13):
                tagp((i - 10) // 3)
        elif pst == 2:
            if i in (8, 11, 14):
                pack((i - 8) // 3, 0)
                pack((i - 8) // 3, 1)
            elif i in (9, 12, 15):
                tagp((i - 9) // 3)
            elif i in (10, 13):
                pstore((i - 10) // 3)
        elif pst == 3:
            if i in (8, 11, 14):
                pack((i - 8) // 3, 0)
            elif i in (9, 12, 15):
                pack((i - 9) // 3, 1)
                tagp((i - 9) // 3)
            elif i in (10, 13):
                pstore((i - 10) // 3)
    if pst == 1:
        tagp(2)
        pstore(2)
        A(f"s_nop 5")
    else:
        pstore(2)
        A(f"s_nop 6")
    pack(3, 0)
    pack(3, 1)
    tagp(3)
    pstore(3)
    if cp:
        lstamp(A, 7)
    Lnr = A.new_label("notred")

    def bookkeeping():
        A(f"s_add_u32 {s(sS)}, {s(sS)}, 1")
        A(f"s_add_u32 {s(sKM)}, {s(sKM)}, 0x20000")
        A(f"s_add_u32 {s(sKV)}, {s(sKV)}, 0x80000")
        A(f"s_add_u32 {s(sPf)}, {s(sPf)}, 0x80000")
        A(f"s_add_u32 {s(sJ4)}, {s(sJ4)}, 4")
        A(f"s_cmp_eq_u32 {s(sJ4)}, 20")
        A(f"s_cselect_b32 {s(sJ4)}, 0, {s(sJ4)}")
        A(f"s_addc_u32 {s(sCn)}, {s(sCn)}, 0")

    def bookkeeping2():
        A(f"s_add_u32 {s(sFo)}, {s(sFb)}, {s(sJ4)}")
        A(f"s_cmp_lt_u32 {s(sS)}, 62")
        A(f"s_cselect_b32 {s(sNeed)}, {s(sCn)}, 0")

    def zero_acc():
        for i in range(8):
            A(f"v_mov_b64 {v(ACC+2*i,2)}, 0")
        for i in range(4):
            A(f"v_mov_b64 {v(AK+2*i,2)}, 0")

    if opts.get('rbar', 1):
        A(f"s_barrier")
    A(f"s_cmp_lg_u32 {s(sWAVE)}, 0")
    A(f"s_cbranch_scc1 {Lnr}")
    Lred = A.new_label("red")
    Lredok = A.new_label("redok")
    RA = PA
    two = opts.get('rtwo', 0)

    if rt:
        A(f"s_memtime s[62:63]")
        A(f"s_lshl_b32 {s(sT0)}, {s(sH)}, 6")
        A(f"s_add_u32 {s(sT0)}, {s(sT0)}, {s(sS)}")
        A(f"s_lshl_b32 {s(sT0)}, {s(sT0)}, 6")
        A(f"s_add_u32 {s(sT0)}, {s(sT0)}, {WS_T + 0x10000:#x}")
        A(f"s_waitcnt lgkmcnt(0)")
        A(f"v_mov_b32 {v(vT0)}, s16")
        for k in range(1, 8):
            A(f"v_writelane_b32 {v(vT0)}, s{16 + 2*k}, {k}")
        A(f"v_writelane_b32 {v(vT0)}, s{sCP0}, 8")
        A(f"v_writelane_b32 {v(vT0)}, s{sRet}, 9")
        A(f"v_lshrrev_b32 {v(vT1)}, 2, {v(vL16)}")
        A(f"s_mov_b64 exec, 0x3ff")
        A(f"buffer_store_dword {v(vT0)}, {v(vT1)}, {s(S_WS,4)}, {s(sT0)} offen")
        A(f"s_mov_b64 exec, -1")
        A(f"s_mov_b32 s16, s62")
        A(f"s_mov_b32 {s(sCP0)}, 0")
    zero_acc()
    A(f"v_xor_b32 {v(vTagE)}, 1, {v(vTagE)}")
    bookkeeping()
    bookkeeping2()
    A(f"s_mov_b32 {s(sRet)}, 0")
    RS = [[X + 4 * i for i in range(8)], [Y + 4 * i for i in range(6)] + [PA + 8, PA + 12]]
    mode = opts.get('rmode', 1)

    def ld(R, i):
        A(f"buffer_load_dwordx4 {v(R[i],4)}, {v(vRed)}, {s(S_WS,4)}, {0 if i < 4 else s(sSlotP4)} offen offset:{(i%4)*1024} sc1")

    def chk(R, other, cnt, first=False):
        ys = [vT0, vT1, vS0, vT1, vS0, vT1, vS0, vT1]
        if rt:
            A(f"s_add_u32 {s(sCP0)}, {s(sCP0)}, 1")
        for i in range(8):
            A(f"s_waitcnt vmcnt({cnt(i)})")
            if first and i == 0:
                rstamp(2)
            if first and i == 7:
                rstamp(3)
            c = "0" if i == 0 else v(RA, 4)
            A(f"v_mfma_f32_16x16x32_bf16 {v(RA,4)}, {v(R[i],4)}, {v(vSEL,4)}, {c}")
            if other is not None:
                ld(other, i)
            A(f"v_bitop3_b32 {v(ys[i])}, {v(R[i])}, {v(R[i]+2)}, {v(vTagE)} bitop3:0x7e")
            if i in (2, 4, 6):
                A(f"v_or3_b32 {v(vT0)}, {v(vT0)}, {v(vT1)}, {v(vS0)}")
        A(f"v_bitop3_b32 {v(vT0)}, {v(vT0)}, {v(vT1)}, 1 bitop3:0xa8")
        A(f"v_cmp_ne_u32 vcc, 0, {v(vT0)}")
    for _ in range(opts.get('rdelay', 0)):
        A(f"s_sleep 1")
    rstamp(1)
    for i in range(8):
        ld(RS[0], i)
    Lrfail = A.new_label("rfail")
    if mode == 2:
        for _ in range(opts.get('rspace', 1)):
            A(f"s_sleep 1")
        for i in range(8):
            ld(RS[1], i)
        chk(RS[0], None, lambda i: 15 - i, True)
    elif mode == 1:
        chk(RS[0], RS[1], lambda i: 7, True)
    else:
        chk(RS[0], None, lambda i: 7 - i, True)
    A(f"s_cbranch_vccnz {Lrfail}")
    A.label(Lredok)
    rstamp(4)
    A(f"s_nop {3 if mode == 1 else 4}")
    A(f"v_cvt_pk_bf16_f32 {v(RA+4)}, {v(RA)}, {v(RA+1)}")
    A(f"v_cvt_pk_bf16_f32 {v(RA+5)}, {v(RA+2)}, {v(RA+3)}")
    A(f"buffer_store_dwordx2 {v(RA+4,2)}, {v(vMst)}, {s(S_WS,4)}, {s(sSlotM)} offen{st}")
    A(f"s_branch {Lar}")
    A.label(Lrfail)
    if mode == 0:
        for i in range(8):
            ld(RS[1], i)
    A.label(Lred)
    chk(RS[1], RS[0], lambda i: 7)
    A(f"s_cbranch_vccz {Lredok}")
    chk(RS[0], RS[1], lambda i: 7)
    A(f"s_cbranch_vccz {Lredok}")
    A(f"s_add_u32 {s(sRet)}, {s(sRet)}, 1")
    A(f"s_cmp_lg_u32 {s(sDEAD)}, 0")
    A(f"s_cbranch_scc1 {Lredok}")
    A(f"s_cmp_lt_u32 {s(sRet)}, {RED_LIMIT}")
    A(f"s_cbranch_scc1 {Lred}")
    A(f"s_mov_b32 {s(sDEAD)}, 1")
    A(f"s_branch {Lredok}")
    A.label(Lnr)
    Lfok = A.new_label("fok")
    Lfsp = A.new_label("fsp")
    A(f"s_mov_b32 {s(sRet)}, 0")
    A(f"s_waitcnt vmcnt(12)")
    A(f"v_readfirstlane_b32 {s(sT0)}, {v(vFlag)}")
    zero_acc()
    A(f"s_cmp_ge_u32 {s(sT0)}, {s(sNeed)}")
    A(f"s_cbranch_scc1 {Lfok}")
    A(f"s_cmp_lg_u32 {s(sDEAD)}, 0")
    A(f"s_cbranch_scc1 {Lfok}")
    A(f"s_mov_b32 {s(sRet)}, 0")
    A.label(Lfsp)
    A(f"buffer_load_dword {v(vFlag)}, off, {s(S_WS,4)}, {s(sFo)} sc1")
    A(f"s_waitcnt vmcnt(0)")
    A(f"v_readfirstlane_b32 {s(sT0)}, {v(vFlag)}")
    A(f"s_cmp_ge_u32 {s(sT0)}, {s(sNeed)}")
    A(f"s_cbranch_scc1 {Lfok}")
    A(f"s_sleep 1")
    A(f"s_add_u32 {s(sRet)}, {s(sRet)}, 1")
    A(f"s_cmp_lt_u32 {s(sRet)}, {SPIN_LIMIT}")
    A(f"s_cbranch_scc1 {Lfsp}")
    A(f"s_mov_b32 {s(sDEAD)}, 1")
    A.label(Lfok)
    if TRACE[0]:
        Lsl = A.new_label("tr")
        A(f"s_cmp_lg_u32 {s(sWAVE)}, {opts.get('tw', 1)}")
        A(f"s_cbranch_scc1 {Lsl}")
        A(f"s_lshl_b32 {s(sT0)}, {s(sH)}, 6")
        A(f"s_add_u32 {s(sT0)}, {s(sT0)}, {s(sS)}")
        A(f"s_lshl_b32 {s(sT0)}, {s(sT0)}, 5")
        A(f"s_add_u32 {s(sT0)}, {s(sT0)}, {WS_T + 0x10000:#x}")
        A(f"s_waitcnt lgkmcnt(0)")
        A(f"v_mov_b32 {v(vT0)}, s16")
        for k in range(1, 8):
            A(f"v_writelane_b32 {v(vT0)}, s{16 + 2*k}, {k}")
        A(f"v_lshrrev_b32 {v(vT1)}, 2, {v(vL16)}")
        A(f"s_mov_b64 exec, 0xff")
        A(f"buffer_store_dword {v(vT0)}, {v(vT1)}, {s(S_WS,4)}, {s(sT0)} offen")
        A(f"s_mov_b64 exec, -1")
        A.label(Lsl)
    if opts.get('steplog'):
        Lsl = A.new_label("sl")
        A(f"s_cmp_lg_u32 {s(sWAVE)}, 1")
        A(f"s_cbranch_scc1 {Lsl}")
        A(f"s_memrealtime s[62:63]")
        A(f"s_memtime s[16:17]")
        A(f"s_lshl_b32 {s(sT0)}, {s(sH)}, 6")
        A(f"s_add_u32 {s(sT0)}, {s(sT0)}, {s(sS)}")
        A(f"s_lshl_b32 {s(sT0)}, {s(sT0)}, 3")
        A(f"s_add_u32 {s(sT0)}, {s(sT0)}, {WS_T + 0x8000:#x}")
        A(f"s_waitcnt lgkmcnt(0)")
        A(f"v_mov_b32 {v(vT0)}, s62")
        A(f"v_mov_b32 {v(vT1)}, s16")
        A(f"s_mov_b64 exec, 1")
        A(f"buffer_store_dwordx2 {v(vT0,2)}, off, {s(S_WS,4)}, {s(sT0)}")
        A(f"s_mov_b64 exec, -1")
        A.label(Lsl)
    bookkeeping()
    bookkeeping2()
    rearm(2, True)
    A(f"s_branch {Lar}")
    A.label(Lretry0)
    A(f"s_nop 7")
    for i in range(4):
        A(f"v_mov_b64 {v(AQ+2*i,2)}, 0")
    con_issue(H0)
    A(f"s_waitcnt vmcnt(2)")
    A(f"ds_write_b128 {v(vMw)}, {v(H1,4)}")
    A(f"v_max3_u32 {v(Y)}, {v(H1)}, {v(H1+2)}, {v(H1+4)}")
    A(f"ds_write_b128 {v(vMw)}, {v(H1+4,4)} offset:1024")
    A(f"v_max_u32 {v(Y)}, {v(Y)}, {v(H1+6)}")
    A(f"v_cmp_eq_u32 vcc, -1, {v(Y)}")
    A(f"s_add_u32 {s(sRet)}, {s(sRet)}, 1")
    A(f"s_cbranch_vccz {Lown[1]}")
    con_issue(H1)
    A(f"s_cmp_lg_u32 {s(sDEAD)}, 0")
    A(f"s_cbranch_scc1 {Lown[1]}")
    A(f"s_cmp_lt_u32 {s(sRet)}, {RED_LIMIT}")
    A(f"s_cbranch_scc1 {Lspec}")
    A(f"s_mov_b32 {s(sDEAD)}, 1")
    A.label(Lown[1])
    own(H1, False)
    A(f"s_branch {Lcommon}")
    A.label(Llast)
    A(f"s_waitcnt vmcnt(0) lgkmcnt(0)")
    if fast and opts.get('cwb'):
        Lwb = A.new_label("cwb")
        A(f"s_cmp_lg_u32 {s(sWAVE)}, 0")
        A(f"s_cbranch_scc1 {Lwb}")
        A(f"buffer_wbl2 sc1")
        A(f"s_waitcnt vmcnt(0)")
        A.label(Lwb)
    if cp and not TRACE[0]:
        for i in range(1, 10):
            A(f"s_mov_b32 s{92+i}, s{16+2*(i-1) if i < 9 else 62}")
        A(f"s_lshl_b32 {s(sCP1)}, {s(sCP1)}, 16")
        A(f"s_or_b32 s92, {s(sCP0)}, {s(sCP1)}")
        A("s_branch L_flush")
    A(f"s_branch L_role_end")


def gen_chain(A, opts):
    global RT
    RT = bool(opts.get('rt'))
    CSTEP[0] = opts.get('cstep', 39)
    TRACE[0] = bool(opts.get('trace'))
    vL = 13
    A(f"s_xor_b32 {s(sH)}, {s(sIDX)}, {opts.get('hperm', 0)}")
    A(f"v_and_b32 {v(vL)}, 63, v0")
    mk_srd(A, S_A, P_WQ, 512 * 8192)
    mk_srd(A, S_B, P_WK, 512 * 8192)
    mk_srd(A, S_C, P_WV, 512 * 8192)
    mk_srd(A, S_D, P_WO, 4096 * 1024)
    A(f"v_lshlrev_b32 {v(vL16)}, 4, {v(vL)}")
    for i in range(4):
        A(f"v_mov_b32 {v(vSEL+i)}, -1")
    A(f"s_lshl_b32 {s(sT0)}, {s(sH)}, 13")
    A(f"s_lshl_b32 {s(sT1)}, {s(sWAVE)}, 11")
    A(f"s_add_u32 {s(sT0)}, {s(sT0)}, {s(sT1)}")
    nst = 0
    A(f"v_bfe_u32 {v(vT0)}, {v(vL)}, 4, 1")
    for i in range(4):
        A(f"v_xor_b32 {v(ACC+i)}, -1, {v(vT0)}")
    A(f"buffer_store_dwordx4 {v(ACC,4)}, {v(vL16)}, {s(S_WS,4)}, {s(sT0)} offen sc1")
    A(f"buffer_store_dwordx4 {v(ACC,4)}, {v(vL16)}, {s(S_WS,4)}, {s(sT0)} offen offset:1024 sc1")
    nst += 2
    vMre = 2
    A(f"s_lshl_b32 {s(sT2)}, {s(sH)}, 8")
    A(f"v_add_u32 {v(vT0)}, {s(sT2)}, {v(vL16)}")
    A(f"v_cmp_gt_u32 vcc, 16, {v(vL)}")
    A(f"v_mov_b32 {v(vT1)}, {OOB:#x}")
    A.nop(1)
    A(f"v_cndmask_b32 {v(vMre)}, {v(vT1)}, {v(vT0)}, vcc")
    for sl in range(4):
        A(f"s_mov_b32 {s(sT1)}, {WS_M + sl*8192:#x}")
        A(f"buffer_store_dwordx4 {v(vSEL,4)}, {v(vMre)}, {s(S_WS,4)}, {s(sT1)} offen sc1")
        nst += 1
    Z = 20
    for i in range(4):
        A(f"v_mov_b32 {v(Z+i)}, 0")
    A(f"v_cndmask_b32 {v(Z+4)}, {v(vT1)}, {v(vL16)}, vcc")
    A(f"s_lshl_b32 {s(sT1)}, {s(sH)}, 8")
    A(f"s_add_u32 {s(sT1)}, {s(sT1)}, {WS_OF:#x}")
    A(f"buffer_store_dwordx4 {v(Z,4)}, {v(Z+4)}, {s(S_WS,4)}, {s(sT1)} offen sc1")
    A(f"v_cmp_gt_u32 vcc, 8, {v(vL)}")
    A.nop(2)
    A(f"v_cndmask_b32 {v(Z+5)}, {v(vT1)}, {v(vL16)}, vcc")
    A(f"s_lshl_b32 {s(sT1)}, {s(sH)}, 7")
    A(f"s_add_u32 {s(sT1)}, {s(sT1)}, {WS_KVF:#x}")
    A(f"buffer_store_dwordx4 {v(Z,4)}, {v(Z+5)}, {s(S_WS,4)}, {s(sT1)} offen sc1")
    nst += 2

    vG, vGo, vSW, vSWo, vTRb, vTRo, vTA = 116, 117, 118, 122, 124, 125, 126
    POOL = [40, 72]
    TEMPS = [104, 32]
    sXo = sRo + 1
    A(f"s_lshl_b32 {s(sT0)}, {s(sH)}, 8")
    A(f"s_lshl_b32 {s(sT1)}, {s(sWAVE)}, 20")
    A(f"s_add_u32 {s(sT0)}, {s(sT0)}, {s(sT1)}")
    lane_expr(A, vG, vL, [(4, 2, 8192), (0, 4, 16)], sregs=[sT0])
    A(f"s_lshl_b32 {s(sT0)}, {s(sH)}, 17")
    A(f"s_lshl_b32 {s(sT1)}, {s(sWAVE)}, 8")
    A(f"s_add_u32 {s(sT0)}, {s(sT0)}, {s(sT1)}")
    lane_expr(A, vGo, vL, [(4, 2, 1024), (0, 4, 16)], sregs=[sT0])
    A(f"s_lshl_b32 {s(sXo)}, {s(sWAVE)}, 15")

    RIDX = {0: 0, 1: 1, 4: 2, 5: 3, 6: 4, 7: 5}
    wo_ops = [(cg, 0) for cg in range(4)] + [(cg, ks) for cg in range(4) for ks in range(1, 4)]
    WORR = [('a', 224), ('a', 232), ('a', 240), ('a', 248), ('v', 224), ('v', 232), ('v', 240), ('v', 248)]

    def qkv_unit(m, hp, x):
        u = dict(kind='qkv', m=m, hp=hp, x=x, srd={'q': S_A, 'k': S_B, 'v': S_C}[m], needs_temp=(m != 'q'))
        u['soff'] = [(64 * hp + 16 * x + 4 * (k & 3) + 32 * (k >> 2)) * 8192 for k in range(8)]
        return u

    def bind(u, temp):
        if u['kind'] == 'qkv':
            m, hp, x = u['m'], u['hp'], u['x']
            res = []
            for i in range(4):
                sl = hp + 2 * i
                for t_ in range(2):
                    if m == 'q':
                        res.append((('a', 16 * sl + 8 * t_ + 4 * x), None))
                    elif sl in (2, 3):
                        fi = (0 if m == 'k' else 4) + 2 * (sl - 2) + t_
                        res.append((('v', temp + 4 * t_), fi * 2048 + 1024 * x))
                    else:
                        res.append(((('a' if m == 'k' else 'v'), 128 + 16 * RIDX[sl] + 8 * t_ + 4 * x), None))
            u['raw'] = [r[0] for r in res]
            u['res'] = res
        else:
            u['raw'] = [('v', temp + 4 * k) for k in range(8)]

    def wo_unit(ks):
        return dict(kind='wo', ks=ks, srd=S_D, soff=[(32 * ks + 4 * k) * 1024 for k in range(8)])
    U = {f"O{k}": wo_unit(k) for k in range(4)}
    for m in 'qkv':
        for hp in range(2):
            for x in range(2):
                U[f"{m.upper()}{hp}{x}"] = qkv_unit(m, hp, x)
    order = {0: "O0 O1 Q00 Q01 Q10 Q11 O2 O3 K00 K01 K10 K11 V00 V01 V10 V11",
             1: "Q00 Q01 Q10 Q11 O0 O1 K00 K01 O2 O3 K10 K11 V00 V01 V10 V11",
             2: "K00 K01 Q00 Q01 Q10 Q11 O0 O1 K10 K11 O2 O3 V00 V01 V10 V11",
             3: "O0 O1 Q00 Q01 Q10 Q11 O2 O3 V00 V01 V10 V11 K00 K01 K10 K11"}[opts.get('word', 0)].split()
    units = [U[n] for n in order]
    vq = Q(A, "vmcnt", 63)
    vq.ops = ['st'] * nst
    free_pool = list(POOL)
    free_temp = list(TEMPS)
    wo_left = [4]
    held = {}
    WIN = opts.get('cwin', 56)
    st_ = dict(issued=0)

    def inflight():
        return len(vq.ops)

    def try_issue():
        while st_['issued'] < len(units):
            u = units[st_['issued']]
            limit = min(WIN + (nst if 'st' in vq.ops else 0), 62)
            if inflight() + 8 > limit:
                return
            if u['kind'] == 'wo':
                if not free_pool:
                    return
                tmp = free_pool.pop(0)
                held[id(u)] = ('pool', tmp)
            elif u['needs_temp']:
                if not free_temp:
                    return
                tmp = free_temp.pop(0)
                held[id(u)] = ('temp', tmp)
            else:
                tmp = None
            bind(u, tmp)
            for k in range(8):
                if u['kind'] == 'wo':
                    A(f"s_xor_b32 {s(sT0)}, {u['soff'][k]:#x}, {s(sXo)}")
                    vq.issue(id(u), f"buffer_load_dwordx4 {reg(u['raw'][k], 4)}, {v(vGo)}, {s(u['srd'],4)}, {s(sT0)} offen" + WPOL[opts.get('wnto', 0)])
                else:
                    A(f"s_mov_b32 {s(sT0)}, {u['soff'][k]:#x}")
                    vq.issue(id(u), f"buffer_load_dwordx4 {reg(u['raw'][k], 4)}, {v(vG)}, {s(u['srd'],4)}, {s(sT0)} offen" + WPOL[opts.get('wnt', 0)])
            st_['issued'] += 1
    stamp(A, 1) if not opts.get('cprof') else None
    try_issue()
    A(f"s_lshl_b32 {s(sT2)}, {s(sWAVE)}, 13")
    lane_expr(A, vSW, vL, [(4, 2, 256), (1, 3, 32), (0, 1, 16)], sregs=[sT2])
    A(f"v_mov_b32 {v(vSWo)}, {v(vSW)}")
    A(f"v_bfe_u32 {v(vTA)}, {v(vL)}, 4, 1")
    A(f"v_lshlrev_b32 {v(vT0)}, 5, {v(vTA)}")
    A(f"v_xor_b32 {v(vSW)}, {v(vSW)}, {v(vT0)}")
    A(f"v_lshlrev_b32 {v(vT0)}, 6, {v(vTA)}")
    A(f"v_xor_b32 {v(vSWo)}, {v(vSWo)}, {v(vT0)}")
    A(f"v_xor_b32 {v(vSW+1)}, 64, {v(vSW)}")
    A(f"v_xor_b32 {v(vSW+2)}, 0x80, {v(vSW)}")
    A(f"v_xor_b32 {v(vSW+3)}, 0xc0, {v(vSW)}")
    A(f"v_xor_b32 {v(vSWo+1)}, 0x80, {v(vSWo)}")
    A(f"s_lshl_b32 {s(sT3)}, {s(sWAVE)}, 6")
    lane_expr(A, vTRb, vL, [(2, 1, 256 + 32), (4, 1, 1024 + 64), (5, 1, 2048), (3, 1, 4096 + 128), (0, 2, 8)])
    A(f"v_xor_b32 {v(vTRb)}, {s(sT3)}, {v(vTRb)}")
    A(f"v_add_u32 {v(vTRb)}, {s(sT2)}, {v(vTRb)}")
    lane_expr(A, vTRo, vL, [(2, 1, 256 + 64), (4, 1, 4096 + 128), (5, 1, 1024), (3, 1, 32), (0, 2, 8)], sregs=[sT2])
    A(f"s_lshl_b32 {s(sT0)}, {s(sWAVE)}, 15")
    A(f"s_add_u32 {s(sT0)}, {s(sT0)}, {WO_OFF}")
    A(f"v_add_u32 {v(vWo)}, {s(sT0)}, {v(vL16)}")
    vq.wait('st')
    A(f"s_barrier")
    Lci = A.new_label("ci")
    A(f"s_cmp_lg_u32 {s(sWAVE)}, 0")
    A(f"s_cbranch_scc1 {Lci}")
    A(f"s_getreg_b32 {s(sT0)}, hwreg(HW_REG_XCC_ID, 0, 4)")
    A(f"s_mul_i32 {s(sT1)}, {s(sT0)}, {s(sT0)}")
    A(f"s_lshl_b32 {s(sT1)}, {s(sT1)}, 17")
    A(f"s_lshl_b32 {s(sT0)}, {s(sT0)}, 8")
    A(f"s_add_u32 {s(sT0)}, {s(sT0)}, {s(sT1)}")
    A(f"s_add_u32 {s(sT0)}, {s(sT0)}, 1")
    A(f"v_mov_b32 {v(vT0)}, {s(sT0)}")
    A(f"v_mov_b32 {v(vT1)}, 0")
    A(f"s_mov_b64 exec, 1")
    A(f"buffer_atomic_add {v(vT0)}, {v(vT1)}, {s(S_DBG,4)}, 0 offen offset:{D_CHECKIN*4} sc1")
    A(f"s_mov_b64 exec, -1")
    A.label(Lci)
    try_issue()
    A(f"s_lshr_b32 {s(sT3)}, {s(sH)}, 2")
    A(f"s_lshl_b32 {s(sT3)}, {s(sT3)}, 10")
    A(f"s_and_b32 {s(sT4)}, {s(sH)}, 1")
    A(f"s_lshl_b32 {s(sT4)}, {s(sT4)}, 9")
    A(f"s_add_u32 {s(sT3)}, {s(sT3)}, {s(sT4)}")
    A(f"s_and_b32 {s(sT4)}, {s(sH)}, 2")
    A(f"s_lshl_b32 {s(sT4)}, {s(sT4)}, 4")
    A(f"s_add_u32 {s(sT3)}, {s(sT3)}, {s(sT4)}")
    lane_expr(A, vMst, vL, [(5, 1, 256), (1, 2, 64), (0, 1, 16), (4, 1, 8)], sregs=[sT3])
    A(f"v_and_b32 {v(vT1)}, 8, {v(vL)}")
    A(f"v_lshlrev_b32 {v(vT1)}, 27, {v(vT1)}")
    A(f"v_add_u32 {v(vMst)}, {v(vMst)}, {v(vT1)}")
    A(f"s_cmp_eq_u32 {s(sWAVE)}, 0")
    Lw0 = A.new_label("w0")
    A(f"s_cbranch_scc1 {Lw0}")
    A(f"v_mov_b32 {v(vMst)}, {v(vMre)}")
    A(f"s_cmp_eq_u32 {s(sWAVE)}, 3")
    A(f"s_cbranch_scc1 {Lw0}")
    A(f"v_mov_b32 {v(vMst)}, {OOB:#x}")
    A.label(Lw0)
    for (dst, bit) in ((vIdx, 2), (vIdxW, 8)):
        A(f"v_mov_b32 {v(dst)}, 0x4444")
        A(f"v_mov_b32 {v(vT0)}, 0xeeee")
        A(f"v_and_b32 {v(vT1)}, {bit}, {v(vL)}")
        A(f"v_cmp_ne_u32 vcc, 0, {v(vT1)}")
        A.nop(2)
        A(f"v_cndmask_b32 {v(dst)}, {v(dst)}, {v(vT0)}, vcc")
    A(f"s_lshl_b32 {s(sT0)}, {s(sWAVE)}, 9")
    lane_expr(A, vQKw, vL, [(0, 4, 16), (4, 2, 4)], sregs=[sT0])
    A(f"s_lshl_b32 {s(sT0)}, {s(sWAVE)}, 10")
    A(f"s_lshr_b32 {s(sT1)}, {s(sWAVE)}, 1")
    A(f"s_lshl_b32 {s(sT1)}, {s(sT1)}, 11")
    A(f"s_add_u32 {s(sT0)}, {s(sT0)}, {s(sT1)}")
    lane_expr(A, vKw, vL, [(0, 4, 32), (4, 2, 8)], const=2048, sregs=[sT0])
    lane_expr(A, vKr, vL, [(5, 1, 512), (4, 1, 128), (2, 2, 32), (0, 2, 8)])
    lane_expr(A, vQKr, vL, [(5, 1, 256), (4, 1, 64), (2, 2, 16), (0, 1, 8)])
    A(f"s_lshl_b32 {s(sT0)}, {s(sWAVE)}, 9")
    lane_expr(A, vOw, vL, [(4, 2, 128), (0, 3, 16)], const=O_OFF, sregs=[sT0])
    A(f"s_lshl_b32 {s(sT0)}, {s(sWAVE)}, 11")
    A(f"s_add_u32 {s(sT0)}, {s(sT0)}, {MEM_OFF}")
    A(f"v_add_u32 {v(vMw)}, {s(sT0)}, {v(vL16)}")
    A(f"s_lshl_b32 {s(sT0)}, {s(sWAVE)}, 16")
    A(f"s_lshl_b32 {s(sT1)}, {s(sH)}, 8")
    lane_expr(A, vPst, vL, [(5, 1, 8192), (0, 4, 16), (4, 1, 8)], sregs=[sT0, sT1])
    A(f"s_lshl_b32 {s(sT0)}, {s(sH)}, 13")
    A(f"v_add_u32 {v(vRed)}, {s(sT0)}, {v(vL16)}")
    A(f"s_and_b32 {s(sT1)}, {s(sWAVE)}, 1")
    A(f"s_lshl_b32 {s(sT1)}, {s(sT1)}, 13")
    A(f"s_lshl_b32 {s(sT0)}, {s(sH)}, 14")
    A(f"s_add_u32 {s(sT0)}, {s(sT0)}, {s(sT1)}")
    A(f"v_lshlrev_b32 {v(vPf)}, 6, {v(vL)}")
    A(f"v_add_u32 {v(vPf)}, {s(sT0)}, {v(vPf)}")
    A(f"s_mov_b32 {s(sMLo)}, -1")
    A(f"s_mov_b32 {s(sMLo+1)}, 0")
    A(f"s_mov_b32 {s(sMHi)}, 0")
    A(f"s_mov_b32 {s(sMHi+1)}, -1")
    A(f"s_mov_b32 {s(sC)}, {f32_hex(SCALE_C):#x}")
    A(f"s_mov_b32 {s(sNC)}, {f32_hex(-SCALE_C):#x}")
    Lsel = A.new_label("sel")
    A(f"s_cmp_lg_u32 {s(sWAVE)}, 0")
    A(f"s_cbranch_scc1 {Lsel}")
    A(f"v_and_b32 {v(vT0)}, 15, {v(vL)}")
    A(f"v_mov_b32 {v(vS0)}, 0x3f80")
    A(f"v_mov_b32 {v(vT1)}, 0x3f800000")
    A(f"v_and_b32 v112, 1, {v(vT0)}")
    A(f"v_cmp_eq_u32 vcc, 1, v112")
    A.nop(2)
    A(f"v_cndmask_b32 {v(vS0)}, {v(vS0)}, {v(vT1)}, vcc")
    A(f"v_lshrrev_b32 {v(vT0)}, 1, {v(vT0)}")
    for i in range(4):
        A(f"v_cmp_eq_u32 vcc, {i}, {v(vT0)}")
        A.nop(2)
        A(f"v_cndmask_b32 {v(vSEL+i)}, 0, {v(vS0)}, vcc")
    A(f"v_bfe_u32 {v(vTagE)}, {v(vL)}, 4, 1")
    A(f"v_xor_b32 {v(vTagE)}, 1, {v(vTagE)}")
    A.label(Lsel)
    for i in range(4):
        A(f"v_mov_b32 {v(vONE+i)}, 0x3f803f80")
    for i in range(1, 4):
        A(f"v_mov_b32 {v(vBM+i)}, 0")

    for b, u in enumerate(units):
        assert st_['issued'] > b, "loader deadlock"
        vq.wait(id(u))
        A(f"s_barrier")
        if u['kind'] == 'qkv':
            for k in range(8):
                A(f"ds_write_b128 {v(vSW + (k & 1) + 2 * (k >> 2))}, {reg(u['raw'][k], 4)} offset:{k * 1024}")
            A(f"s_waitcnt lgkmcnt(0)")
            A(f"s_barrier")
            x = u['x']
            for i in range(4):
                for t_ in range(2):
                    r_, fin = u['res'][2 * i + t_]
                    A(f"v_xor_b32 {v(vTA + (t_ & 1))}, {(i << 13) | (t_ << 5):#x}, {v(vTRb)}")
                    for q0 in range(2):
                        A(f"ds_read_b64_tr_b16 {reg(off(r_, 2 * q0), 2)}, {v(vTA + (t_ & 1))} offset:{512 * q0}")
            A(f"s_waitcnt lgkmcnt(0)")
            for (r_, fin) in u['res']:
                if fin is not None:
                    A(f"ds_write_b128 {v(vWo)}, {reg(r_, 4)} offset:{fin}")
        else:
            ks = u['ks']
            for k in range(8):
                A(f"ds_write_b128 {v(vSWo + (k >> 2))}, {reg(u['raw'][k], 4)} offset:{k * 1024}")
            base = u['raw'][0][1]
            fins = []
            for cg in range(4):
                io = wo_ops.index((cg, ks))
                dst = WORR[io] if io < 8 else ('v', base + 8 * cg)
                A(f"v_xor_b32 {v(vTA + (cg & 1))}, {cg << 6:#x}, {v(vTRo)}")
                for i in range(4):
                    A(f"ds_read_b64_tr_b16 {reg(off(dst, 2 * i), 2)}, {v(vTA + (cg & 1))} offset:{(8 * (i >> 1) + 2 * (i & 1)) * 256}")
                if io >= 8:
                    fins.append((dst, io * 2048))
            A(f"s_waitcnt lgkmcnt(0)")
            for (dst, o) in fins:
                A(f"ds_write_b128 {v(vWo)}, {reg(dst, 4)} offset:{o}")
                A(f"ds_write_b128 {v(vWo)}, {reg(off(dst, 4), 4)} offset:{o + 1024}")
        if id(u) in held:
            kind, tmp = held[id(u)]
            A(f"s_waitcnt lgkmcnt(0)")
            if kind == 'pool':
                wo_left[0] -= 1
                if wo_left[0] >= 2:
                    free_pool.append(tmp)
                else:
                    free_temp.extend([tmp + 8 * j for j in range(4)])
            else:
                free_temp.append(tmp)
        if opts.get('prof') and not opts.get('cprof') and b in (0, 3, 7, 11):
            stamp(A, {0: 4, 3: 5, 7: 6, 11: 7}[b])
        try_issue()
    A("s_waitcnt lgkmcnt(0)")
    stamp(A, 2) if not opts.get('cprof') else None
    A(f"s_barrier")
    mk_srd(A, S_A, P_MEM0, 8192)
    A(f"s_lshl_b32 {s(sT0)}, {s(sWAVE)}, 8")
    lane_expr(A, vT0, vL, [(2, 2, 2048), (0, 1, 1024), (1, 1, 64), (4, 2, 16)], sregs=[sT0])
    A(f"buffer_load_dwordx4 {v(X+24,4)}, {v(vT0)}, {s(S_A,4)}, 0 offen")
    A(f"buffer_load_dwordx4 {v(X+28,4)}, {v(vT0)}, {s(S_A,4)}, 0 offen offset:128")
    A(f"s_waitcnt vmcnt(0)")
    A(f"ds_write_b128 {v(vMw)}, {v(X+24,4)}")
    A(f"ds_write_b128 {v(vMw)}, {v(X+28,4)} offset:1024")
    for i in range(16):
        A(f"v_mov_b32 {v(ACC+i)}, 0")
    for i in range(8):
        A(f"v_mov_b32 {v(Y+24+i)}, 0")
    A(f"s_lshl_b32 {s(sW2k)}, {s(sWAVE)}, 11")
    A(f"s_mov_b32 {s(sSlotP1)}, {WS_P + 16384}")
    A(f"s_mov_b32 {s(sPc2)}, {WS_P + 32768}")
    A(f"s_mov_b32 {s(sPc3)}, {WS_P + 49152}")
    A(f"s_mov_b32 {s(sSlotP4)}, {WS_P + 4096}")
    A(f"s_and_b32 {s(sTag)}, {s(sH)}, 1")
    A(f"s_xor_b32 {s(sTag)}, {s(sTag)}, 1")
    A(f"s_lshl_b32 {s(sFb)}, {s(sH)}, 7")
    A(f"s_add_u32 {s(sFb)}, {s(sFb)}, {WS_KVF:#x}")
    A(f"s_mov_b32 {s(sT5)}, {s(sFb)}")
    A(f"s_cmp_eq_u32 {s(sWAVE)}, 0")
    A(f"s_cselect_b32 {s(sFb)}, {OOB:#x}, {s(sFb)}")
    A(f"s_cmp_ge_u32 {s(sWAVE)}, 2")
    A(f"s_mov_b32 {s(sT0)}, {OOB:#x}")
    A(f"s_mov_b32 {s(sPf)}, {WS_KX + 0x80000:#x}")
    A(f"s_cselect_b32 {s(sPf)}, {s(sPf)}, {s(sT0)}")
    A(f"s_add_u32 {s(sM0K)}, {s(sW2k)}, {KX_OFF}")
    A(f"s_lshl_b32 {s(sKn)}, {s(sH)}, 14")
    A(f"s_add_u32 {s(sKn)}, {s(sKn)}, {s(sW2k)}")
    A(f"s_add_u32 {s(sKn)}, {s(sKn)}, {WS_KX:#x}")
    A(f"s_add_u32 {s(sM0V)}, {s(sW2k)}, {VX_OFF}")
    A(f"s_lshl_b32 {s(sKV)}, {s(sH)}, 14")
    A(f"s_add_u32 {s(sKV)}, {s(sKV)}, {s(sW2k)}")
    A(f"s_add_u32 {s(sKV)}, {s(sKV)}, {WS_KX:#x}")
    A(f"s_lshl_b32 {s(sKM)}, {s(sH)}, 12")
    A(f"s_add_u32 {s(sKM)}, {s(sKM)}, {WS_KM:#x}")
    A(f"s_mov_b32 {s(sJ4)}, 8")
    A(f"s_mov_b32 {s(sCn)}, 1")
    A(f"s_mov_b32 {s(sNeed)}, 1")
    A(f"s_add_u32 {s(sFo)}, {s(sFb)}, 8")
    A(f"v_mov_b32 {v(vT1)}, 0")
    A(f"s_mov_b32 {s(sT2)}, {D_CHECKIN*4}")
    A(f"s_mov_b32 {s(sT3)}, 0")
    wait_byte(A, vFlag, vT1, sT2, sT3, 32, "ci", sleep=1)
    A(f"buffer_load_dword {v(vFlag)}, {v(vT1)}, {s(S_DBG,4)}, 0 offen offset:{D_CHECKIN*4} sc1")
    A(f"s_getreg_b32 {s(sT0)}, hwreg(HW_REG_XCC_ID, 0, 4)")
    A(f"s_mul_i32 {s(sT1)}, {s(sT0)}, {s(sT0)}")
    A(f"s_lshl_b32 {s(sT1)}, {s(sT1)}, 22")
    A(f"s_lshl_b32 {s(sT0)}, {s(sT0)}, 13")
    A(f"s_add_u32 {s(sT0)}, {s(sT0)}, {s(sT1)}")
    A(f"s_add_u32 {s(sT0)}, {s(sT0)}, 32")
    A(f"s_waitcnt vmcnt(0)")
    A(f"v_readfirstlane_b32 {s(sT1)}, {v(vFlag)}")
    A(f"s_cmp_eq_u32 {s(sT0)}, {s(sT1)}")
    A(f"s_cselect_b32 {s(sFastF)}, 1, 0")
    for j in range(2):
        Lp = A.new_label("kvp")
        Ld = A.new_label("kvd")
        A(f"s_mov_b32 {s(sRet)}, 0")
        A(f"s_cmp_lg_u32 {s(sDEAD)}, 0")
        A(f"s_cbranch_scc1 {Ld}")
        A.label(Lp)
        A(f"buffer_load_dword {v(vFlag)}, off, {s(S_WS,4)}, {s(sT5)} offset:{4*j} sc1")
        A(f"s_waitcnt vmcnt(0)")
        A(f"v_readfirstlane_b32 {s(sT0)}, {v(vFlag)}")
        A(f"s_cmp_ge_u32 {s(sT0)}, 1")
        A(f"s_cbranch_scc1 {Ld}")
        A(f"s_sleep 1")
        A(f"s_add_u32 {s(sRet)}, {s(sRet)}, 1")
        A(f"s_cmp_lt_u32 {s(sRet)}, {SPIN_LIMIT}")
        A(f"s_cbranch_scc1 {Lp}")
        A(f"s_mov_b32 {s(sDEAD)}, 1")
        A.label(Ld)
    A(f"s_mov_b32 m0, {s(sM0K)}")
    A(f"s_nop 0")
    for i in range(2):
        A(f"buffer_load_dwordx4 {v(vL16)}, {s(S_WS,4)}, {s(sKn)} offen offset:{1024*i} lds")
    A(f"s_mov_b32 {s(sS)}, 0")
    A(f"s_waitcnt vmcnt(0) lgkmcnt(0)")
    A(f"s_barrier")
    stamp(A, 3) if not opts.get('cprof') else None
    if opts.get('cprof'):
        A(f"s_mov_b32 {s(sCP0)}, 0")
        A(f"s_mov_b32 {s(sCP1)}, 0")
    for k, r_ in ((1, vT0), (2, vT1), (3, vS0)):
        A(f"v_xor_b32 {v(r_)}, {k << 11:#x}, {v(vMw)}")
    A(f"s_cmp_eq_u32 {s(sFastF)}, 1")
    if opts.get('forceslow'):
        A(f"s_branch L_own1_s")
    A(f"s_cbranch_scc0 L_own1_s")
    A(f"s_branch L_own1_f")
    gen_step(A, True, opts)
    gen_step(A, False, opts)


def G_tr(A, vD, vL, kind, base_sreg):
    tr_lane_addr(A, vD, vL, vT0, vS0, kind, base_sreg=base_sreg)
```

```python
import sys
from dsl import *

KNAME = "gated_mix__memory_aug_recurrent_mem_tr__dense_activation_silu__prompt_kernel"

WS_P = 0
WS_M = 0x100000
WS_KVF = 0x110000
WS_OF = 0x120000
WS_KM = 0x200000
WS_KX = 0x1000000
KVSTR = 16384
WS_QX = 0x3000000
WS_OX = 0x4000000
WS_HX = 0x5000000
HX_STRIDE = 2 * 43 * 1024
WS_G = 0x5800000
WS_T = 0x5810000
WS_SIZE = 0x5860000

D_CHECKIN = 0
D_XCCMASK = 1
D_FFN = 2
D_ERR = 4
D_WDONE = 5
D_KV = 8
D_O = 24
D_PROG = 40

S_WS, S_DBG, S_X, S_A, S_B, S_C, S_D = 4, 8, 12, 16, 20, 24, 28
sWAVE, sIDX, sXCD = 32, 33, 34
sT0, sT1, sT2, sT3, sT4, sT5 = 35, 36, 37, 38, 39, 40
sDEAD = 41
sEX = 42
P_X, P_MEM0, P_WQ, P_WK, P_WV, P_WO, P_W1, P_W2, P_GATE, P_OUT, P_DBG, P_WS = 64, 66, 68, 70, 72, 74, 80, 82, 84, 86, 88, 90
SPIN_LIMIT = 1 << 17

LDS_BYTES = 160 * 1024


def mk_srd(A, d, p, size):
    A(f"s_mov_b32 {s(d)}, {s(p)}")
    A(f"s_mov_b32 {s(d+1)}, {s(p+1)}")
    A(f"s_mov_b32 {s(d+2)}, {size:#x}")
    A(f"s_mov_b32 {s(d+3)}, 0x00020000")


def wait_byte(A, vT, vZero, s_off, s_shift, target, tag, s_tmp=sT0, s_cnt=sT1, target_is_sreg=False, sleep=2):
    L = A.new_label("w" + tag)
    Ld = A.new_label("wd" + tag)
    A(f"s_mov_b32 {s(s_cnt)}, 0")
    A(f"s_cmp_lg_u32 {s(sDEAD)}, 0")
    A(f"s_cbranch_scc1 {Ld}")
    A.label(L)
    A(f"buffer_load_dword {v(vT)}, {v(vZero)}, {s(S_DBG,4)}, {s(s_off)} offen sc1")
    A(f"s_waitcnt vmcnt(0)")
    A(f"v_readfirstlane_b32 {s(s_tmp)}, {v(vT)}")
    A(f"s_lshr_b32 {s(s_tmp)}, {s(s_tmp)}, {s(s_shift)}")
    A(f"s_and_b32 {s(s_tmp)}, {s(s_tmp)}, 0xff")
    A(f"s_cmp_ge_u32 {s(s_tmp)}, {s(target) if target_is_sreg else target}")
    A(f"s_cbranch_scc1 {Ld}")
    if sleep:
        A(f"s_sleep {sleep}")
    A(f"s_add_u32 {s(s_cnt)}, {s(s_cnt)}, 1")
    A(f"s_cmp_lt_u32 {s(s_cnt)}, {SPIN_LIMIT}")
    A(f"s_cbranch_scc1 {L}")
    A(f"s_mov_b32 {s(sDEAD)}, 1")
    A.label(Ld)


def signal_byte(A, vOne, vZero, s_off, s_shift, vTmp):
    A(f"s_lshl_b32 {s(sT0)}, 1, {s(s_shift)}")
    A(f"v_mov_b32 {v(vTmp)}, {s(sT0)}")
    A(f"s_mov_b64 {s(sEX,2)}, exec")
    A(f"s_mov_b64 exec, 1")
    A(f"buffer_atomic_add {v(vTmp)}, {v(vZero)}, {s(S_DBG,4)}, {s(s_off)} offen sc1")
    A(f"s_mov_b64 exec, {s(sEX,2)}")


PROF = False
sSTAMP = 92


def stamp(A, i):
    if not PROF:
        return
    A(f"s_memrealtime s[62:63]")
    A(f"s_waitcnt lgkmcnt(0)")
    A(f"s_mov_b32 {s(sSTAMP+i)}, s62")


def stamp_clk(A, i):
    if not PROF:
        return
    A(f"s_memtime s[62:63]")
    A(f"s_waitcnt lgkmcnt(0)")
    A(f"s_mov_b32 {s(sSTAMP+i)}, s62")


def stamp_if_lt(A, i, sreg, limit, clk=False):
    if not PROF:
        return
    L = A.new_label("st")
    A(f"s_cmp_lt_u32 {s(sreg)}, {limit}")
    A(f"s_cbranch_scc0 {L}")
    (stamp_clk if clk else stamp)(A, i)
    A.label(L)


def stamp_flush(A):
    if not PROF:
        return
    A(f"s_lshl_b32 s62, s2, 2")
    A(f"s_add_u32 s62, s62, {s(sWAVE)}")
    A(f"s_lshl_b32 s62, s62, 6")
    A(f"s_add_u32 s62, s62, {WS_T:#x}")
    A(f"v_mov_b32 v1, 0")
    A(f"s_mov_b64 exec, 1")
    for i in range(10):
        A(f"v_mov_b32 v2, {s(sSTAMP+i)}")
        A(f"buffer_store_dword v2, v1, {s(S_WS,4)}, s62 offen offset:{4*i}")
    A(f"s_waitcnt vmcnt(0)")


STG_BUF = 3072


def stage_addr(row):
    return 64 * row + 128 * (row >> 2)


def load_blocks(A, blocks, vST, window, after_first_issue=None, nolds=False):
    n = len(blocks)

    def issue(b):
        blk = blocks[b]
        for k in range(2):
            so = blk['soff'][k]
            A(f"s_mov_b32 {s(sT0)}, {so:#x}")
            if blk.get('sbase') is not None:
                A(f"s_add_u32 {s(sT0)}, {s(sT0)}, {s(blk['sbase'])}")
            A(f"buffer_load_dwordx4 {reg(off(blk['raw'], 4*k), 4)}, {v(blk['voff'])}, {s(blk['srd'],4)}, {s(sT0)} offen")

    issued = 0
    def can_issue(b, done):
        r = blocks[b]['raw']
        for p in range(b):
            if blocks[p]['raw'] == r or blocks[p].get('dst') == r:
                if p >= done:
                    return False
        return True

    while issued < n and issued < window and can_issue(issued, 0):
        issue(issued)
        issued += 1
    if after_first_issue:
        after_first_issue(2 * issued)
    for b in range(n):
        blk = blocks[b]
        assert issued > b, "window deadlock"
        A(f"s_waitcnt vmcnt({2*(issued-b-1)})")
        buf = (b & 1) * STG_BUF
        if not nolds:
            A(f"ds_write_b128 {v(vST)}, {reg(blk['raw'],4)} offset:{buf}")
            A(f"ds_write_b128 {v(vST)}, {reg(off(blk['raw'],4),4)} offset:{buf + stage_addr(16)}")
            for i in range(4):
                A(f"ds_read_b64_tr_b16 {reg(off(blk['dst'],2*i),2)}, {v(blk['vtr'])} offset:{buf + blk['imm'][i]}")
        if blk.get('post'):
            blk['post'](A)
        while issued < n and issued - b - 1 < window and can_issue(issued, b + 1):
            issue(issued)
            issued += 1
    A("s_waitcnt lgkmcnt(0)")


def load_blocks2(A, blocks, vST, window, extra=None, nolds=False, vq=None, upto=None):
    n = len(blocks)
    vq = vq or Q(A, "vmcnt", 63)
    state = dict(issued=0, xi=False, xc=False)

    def issue(b):
        blk = blocks[b]
        for k in range(2):
            A(f"s_mov_b32 {s(sT0)}, {blk['soff'][k]:#x}")
            vq.issue(('B', id(blk)), f"buffer_load_dwordx4 {reg(off(blk['raw'], 4*k), 4)}, {v(blk['voff'])}, {s(blk['srd'],4)}, {s(sT0)} offen")
        state['issued'] += 1
        if extra and b == extra[0]:
            extra[1](vq)
            state['xi'] = True
    while state['issued'] < n and state['issued'] < window:
        issue(state['issued'])
    for b in range(n):
        blk = blocks[b]
        vq.wait(('B', id(blk)))
        if extra and state['xi'] and not state['xc'] and b > extra[0]:
            extra[2](vq)
            state['xc'] = True
        buf = (b & 1) * STG_BUF
        if not nolds:
            A(f"ds_write_b128 {v(vST)}, {reg(blk['raw'],4)} offset:{buf}")
            A(f"ds_write_b128 {v(vST)}, {reg(off(blk['raw'],4),4)} offset:{buf + stage_addr(16)}")
            for i in range(4):
                A(f"ds_read_b64_tr_b16 {reg(off(blk['dst'],2*i),2)}, {v(blk['vtr'])} offset:{buf + blk['imm'][i]}")
        if blk.get('post'):
            blk['post'](A)
        while state['issued'] < n and state['issued'] - b - 1 < window:
            issue(state['issued'])
    if extra and not state['xc']:
        extra[2](vq)
    A("s_waitcnt lgkmcnt(0)")


def tr_lane_addr(A, vD, vL, vT1, vT2, kind, base_sreg=None, base_imm=0):
    A(f"v_lshrrev_b32 {v(vT1)}, 4, {v(vL)}")
    A(f"v_bfe_u32 {v(vT2)}, {v(vL)}, 2, 2")
    A(f"v_and_b32 {v(vD)}, 3, {v(vL)}")
    A(f"v_lshlrev_b32 {v(vD)}, 3, {v(vD)}")

    def add_term(expr_src, mask_shift, mul):
        sh, bits = mask_shift
        A(f"v_bfe_u32 v{TMPX}, {v(expr_src)}, {sh}, {bits}")
        A(f"v_mul_u32_u24 v{TMPX}, {mul}, v{TMPX}")
        A(f"v_add_u32 {v(vD)}, {v(vD)}, v{TMPX}")

    G, r = vT1, vT2
    def sa(row):
        return stage_addr(row)
    if kind == 'chain_qkv':
        add_term(G, (1, 1), sa(8)); add_term(G, (0, 1), sa(4)); add_term(r, (0, 1), sa(1)); add_term(r, (1, 1), 32)
    elif kind == 'chain_wo':
        add_term(G, (0, 1), sa(16)); add_term(G, (1, 1), sa(4)); add_term(r, (0, 1), sa(1)); add_term(r, (1, 1), 32)
    elif kind == 'k16':
        add_term(G, (1, 1), sa(8)); add_term(r, (0, 2), sa(1)); add_term(G, (0, 1), 32)
    elif kind == 'out_wo':
        add_term(G, (0, 2), sa(4)); add_term(r, (0, 2), sa(1))
    elif kind == 'out_w2':
        add_term(G, (1, 1), sa(16)); add_term(G, (0, 1), sa(4)); add_term(r, (0, 2), sa(1))
    else:
        raise ValueError(kind)
    if base_sreg is not None:
        A(f"v_add_u32 {v(vD)}, {s(base_sreg)}, {v(vD)}")
    if base_imm:
        A(f"v_add_u32 {v(vD)}, {base_imm}, {v(vD)}")


TR_IMM = {
    'chain_qkv': [stage_addr(16 * hi + 2 * qq) for hi in range(2) for qq in range(2)],
    'chain_wo': [stage_addr(8 * hi + 2 * qq) for hi in range(2) for qq in range(2)],
    'k16': [stage_addr(16 * kk + 4 * hf) for kk in range(2) for hf in range(2)],
    'out_wo': [stage_addr(16 * hf) + 32 * ct for ct in range(2) for hf in range(2)],
    'out_w2': [stage_addr(8 * hf) + 32 * ct for ct in range(2) for hf in range(2)],
}
TMPX = 15


def stage_lane_addr(A, vD, vL, vT, base_sreg):
    A(f"v_lshrrev_b32 {v(vD)}, 2, {v(vL)}")
    A(f"v_lshlrev_b32 {v(vD)}, 6, {v(vD)}")
    A(f"v_lshrrev_b32 {v(vT)}, 4, {v(vL)}")
    A(f"v_lshlrev_b32 {v(vT)}, 7, {v(vT)}")
    A(f"v_add_u32 {v(vD)}, {v(vD)}, {v(vT)}")
    A(f"v_and_b32 {v(vT)}, 3, {v(vL)}")
    A(f"v_lshlrev_b32 {v(vT)}, 4, {v(vT)}")
    A(f"v_add_u32 {v(vD)}, {v(vD)}, {v(vT)}")
    A(f"v_add_u32 {v(vD)}, {s(base_sreg)}, {v(vD)}")


def raw_lane_off(A, vD, vL, vT, pitch):
    A(f"v_lshrrev_b32 {v(vD)}, 2, {v(vL)}")
    A(f"v_mul_u32_u24 {v(vD)}, {pitch}, {v(vD)}")
    A(f"v_and_b32 {v(vT)}, 3, {v(vL)}")
    A(f"v_lshlrev_b32 {v(vT)}, 4, {v(vT)}")
    A(f"v_add_u32 {v(vD)}, {v(vD)}, {v(vT)}")


def lane_expr(A, vD, vL, terms, const=0, sregs=(), tmp=None):
    tmp = TMPX if tmp is None else tmp
    first = True
    for (sh, bits, mul) in terms:
        dst = vD if first else tmp
        A(f"v_bfe_u32 {v(dst)}, {v(vL)}, {sh}, {bits}")
        if mul != 1:
            A(f"v_mul_u32_u24 {v(dst)}, {mul}, {v(dst)}")
        if not first:
            A(f"v_add_u32 {v(vD)}, {v(vD)}, {v(tmp)}")
        first = False
    if first:
        A(f"v_mov_b32 {v(vD)}, 0")
    if const:
        A(f"v_add_u32 {v(vD)}, {const:#x}, {v(vD)}")
    for sr in sregs:
        A(f"v_add_u32 {v(vD)}, {s(sr)}, {v(vD)}")


class Q:
    def __init__(self, A, name, cap):
        self.A, self.name, self.cap = A, name, cap
        self.ops = []

    def issue(self, tag, text):
        self.A(text)
        self.ops.append(tag)

    def wait(self, tag):
        if tag not in self.ops:
            return
        i = max(j for j, t in enumerate(self.ops) if t == tag)
        n = len(self.ops) - 1 - i
        self.A(f"s_waitcnt {self.name}({min(n, self.cap)})")
        if n <= self.cap:
            self.ops = self.ops[i + 1:]
        else:
            self.ops = self.ops[len(self.ops) - self.cap:]

    def wait_all(self):
        self.A(f"s_waitcnt {self.name}(0)")
        self.ops = []


XBUF = 64 * 528
XB1 = 36864


class XG:
    vL, vL16, vXW, vXR, vZero, vTmp, vT1, vT2 = 1, 2, 3, 4, 10, 11, 12, 13
    XP, XF = 16, 48
    NF = 4

    def __init__(self, A, sDelta):
        self.A, self.sDelta = A, sDelta

    def setup(self):
        A = self.A
        vL, vL16, vXW, vXR, vZero, vT1 = self.vL, self.vL16, self.vXW, self.vXR, self.vZero, self.vT1
        A(f"v_and_b32 {v(vL)}, 63, v0")
        A(f"v_lshlrev_b32 {v(vL16)}, 4, {v(vL)}")
        A(f"v_mov_b32 {v(vZero)}, 0")
        A(f"v_mul_u32_u24 {v(vXW)}, 528, {v(vL)}")
        A(f"s_lshl_b32 {s(sT0)}, {s(sWAVE)}, 7")
        A(f"v_add_u32 {v(vXW)}, {s(sT0)}, {v(vXW)}")
        A(f"v_lshrrev_b32 {v(vXR)}, 5, {v(vL)}")
        A(f"v_mul_u32_u24 {v(vXR)}, 528, {v(vXR)}")
        A(f"v_and_b32 {v(vT1)}, 31, {v(vL)}")
        A(f"v_lshlrev_b32 {v(vT1)}, 4, {v(vT1)}")
        A(f"v_add_u32 {v(vXR)}, {v(vXR)}, {v(vT1)}")

    def issue_x(self, seg_sreg, vq=None):
        A = self.A
        if vq is not None:
            A = lambda x_: (vq.issue('x', x_) if x_.startswith('buffer_load') else self.A(x_))
        A(f"s_lshl_b32 {s(sT0)}, {s(seg_sreg)}, 15")
        A(f"s_lshl_b32 {s(sT1)}, {s(sWAVE)}, 13")
        A(f"s_add_u32 {s(sT0)}, {s(sT0)}, {s(sT1)}")
        for i in range(8):
            if i == 4:
                A(f"s_add_u32 {s(sT0)}, {s(sT0)}, 4096")
            A(f"buffer_load_dwordx4 {v(self.XP+4*i,4)}, {v(self.vL16)}, {s(S_X,4)}, {s(sT0)} offen offset:{(i%4)*1024}")

    def write_x(self):
        for i in range(8):
            self.A(f"ds_write_b128 {v(self.vXW)}, {v(self.XP+4*i,4)} offset:{i*16}")

    def after_weights(self):
        A = self.A
        A(f"s_waitcnt lgkmcnt(0)")
        A(f"s_barrier")
        A(f"s_mov_b32 {s(self.sDelta)}, {XB1}")
        A(f"v_add_u32 {v(self.vXW)}, {s(self.sDelta)}, {v(self.vXW)}")

    def body(self, mfmas, wpos=9):
        A, NF, XF = self.A, self.NF, self.XF

        def rd(kk):
            A(f"ds_read_b128 {v(XF + 4*(kk % NF), 4)}, {v(self.vXR)} offset:{kk*1056}")
        for kk in range(NF - 1):
            rd(kk)
        for kk in range(32):
            if kk + NF - 1 < 32:
                rd(kk + NF - 1)
                A(f"s_waitcnt lgkmcnt({NF-1})")
            else:
                A(f"s_waitcnt lgkmcnt({31-kk})")
            mfmas(kk, v(XF + 4 * (kk % NF), 4))
            if wpos is not None and kk == wpos:
                A(f"s_waitcnt vmcnt(0)")
                self.write_x()
                A(f"s_waitcnt lgkmcnt(0)")

    def toggle(self):
        A = self.A
        A(f"v_add_u32 {v(self.vXR)}, {s(self.sDelta)}, {v(self.vXR)}")
        A(f"s_sub_u32 {s(self.sDelta)}, 0, {s(self.sDelta)}")
        A(f"v_add_u32 {v(self.vXW)}, {s(self.sDelta)}, {v(self.vXW)}")


def gen_hq(A, opts):
    vWG, vST, vTR, vKst, vVst = 5, 6, 7, 8, 9
    ACC = 64
    EP = 112
    sH, sJ, sSeg, sNext, sDelta, sSegOff, sKVoff, sKVsh, sXa = 44, 45, 46, 47, 48, 49, 50, 51, 52
    sCnt, sKVF = 53, 60
    xg = XG(A, sDelta)
    vL, vL16, vZero, vTmp, vT1, vT2, XF = xg.vL, xg.vL16, xg.vZero, xg.vTmp, xg.vT1, xg.vT2, xg.XF
    A(f"s_sub_u32 {s(sT0)}, {s(sXCD)}, 3")
    A(f"s_lshl_b32 {s(sT0)}, {s(sT0)}, 5")
    A(f"s_add_u32 {s(sT0)}, {s(sT0)}, {s(sIDX)}")
    A(f"s_mul_i32 {s(sH)}, {s(sT0)}, 205")
    A(f"s_lshr_b32 {s(sH)}, {s(sH)}, 10")
    A(f"s_mul_i32 {s(sT1)}, {s(sH)}, 5")
    A(f"s_sub_u32 {s(sJ)}, {s(sT0)}, {s(sT1)}")
    mk_srd(A, S_A, P_WQ, 512 * 8192)
    mk_srd(A, S_B, P_WK, 512 * 8192)
    mk_srd(A, S_C, P_WV, 512 * 8192)
    xg.setup()
    A(f"s_mov_b32 {s(sSeg)}, {s(sJ)}")
    raw_lane_off(A, vWG, vL, vT1, 8192)
    A(f"s_lshl_b32 {s(sT0)}, {s(sH)}, 8")
    A(f"s_lshl_b32 {s(sT1)}, {s(sWAVE)}, 6")
    A(f"s_add_u32 {s(sT0)}, {s(sT0)}, {s(sT1)}")
    A(f"v_add_u32 {v(vWG)}, {s(sT0)}, {v(vWG)}")
    STG = 80 * 1024
    A(f"s_mul_i32 {s(sT2)}, {s(sWAVE)}, {2*STG_BUF}")
    A(f"s_add_u32 {s(sT2)}, {s(sT2)}, {STG}")
    stage_lane_addr(A, vST, vL, vT1, sT2)
    tr_lane_addr(A, vTR, vL, vT1, vT2, 'k16', base_sreg=sT2)
    A(f"s_lshl_b32 {s(sT0)}, {s(sWAVE)}, 10")
    lane_expr(A, vKst, vL, [(4, 1, 4096), (5, 1, 256), (0, 4, 16)], sregs=[sT0])
    A(f"s_lshl_b32 {s(sT0)}, {s(sWAVE)}, 11")
    lane_expr(A, vVst, vL, [(4, 1, 1024), (5, 1, 256), (0, 4, 16)], sregs=[sT0])

    def wblocks(srd, dst):
        return [dict(srd=srd, voff=vWG, soff=[(32 * b) * 8192, (32 * b + 16) * 8192], raw=off(dst, 8 * b), dst=off(dst, 8 * b),
                     vtr=vTR, imm=TR_IMM['k16']) for b in range(16)]
    kvb = wblocks(S_B, ('a', 128)) + wblocks(S_C, ('v', 128))
    qb = wblocks(S_A, ('a', 0))
    stamp(A, 1)
    if PROF:
        kvb[15]['post'] = lambda A_: stamp(A_, 6)
        kvb[0]['post'] = lambda A_: stamp(A_, 8)

    def x_issue(vq):
        xg.issue_x(sSeg, vq)

    def x_consume(vq):
        vq.wait('x')
        xg.write_x()
        stamp(A, 5)
    hw = opts.get('hqwin', 10)
    load_blocks2(A, kvb, vST, window=hw, extra=(opts.get('hqxpos', 16), x_issue, x_consume))
    stamp(A, 7)
    xg.after_weights()
    A(f"s_mov_b32 {s(sXa)}, -1")
    A(f"s_mov_b32 {s(sCnt)}, 1")
    A(f"s_lshl_b32 {s(sKVF)}, {s(sH)}, 7")
    A(f"s_lshl_b32 {s(sT0)}, {s(sJ)}, 2")
    A(f"s_add_u32 {s(sKVF)}, {s(sKVF)}, {s(sT0)}")
    A(f"s_add_u32 {s(sKVF)}, {s(sKVF)}, {WS_KVF:#x}")
    A(f"buffer_load_dword v15, {v(vZero)}, {s(S_DBG,4)}, 0 offen offset:{D_CHECKIN*4} sc1")

    def mf_k(kk, f):
        c = lambda base: "0" if kk == 0 else v(base, 16)
        A(f"v_mfma_f32_32x32x16_bf16 {v(ACC+16,16)}, {a(128+4*kk,4)}, {f}, {c(ACC+16)}")

    def mf_v(kk, f):
        c = lambda base: "0" if kk == 0 else v(base, 16)
        A(f"v_mfma_f32_32x32x16_bf16 {v(ACC+32,16)}, {f}, {v(128+4*kk,4)}, {c(ACC+32)}")

    def mf_q(kk, f):
        c = lambda base: "0" if kk == 0 else v(base, 16)
        A(f"v_mfma_f32_32x32x16_bf16 {v(ACC,16)}, {a(4*kk,4)}, {f}, {c(ACC)}")

    def seg_offsets():
        A(f"s_lshl_b32 {s(sSegOff)}, {s(sSeg)}, 5")
        A(f"s_add_u32 {s(sSegOff)}, {s(sSegOff)}, {s(sH)}")
        A(f"s_lshl_b32 {s(sKVoff)}, {s(sSegOff)}, 14")
        A(f"s_lshl_b32 {s(sKVsh)}, {s(sSegOff)}, 12")
        A(f"s_lshl_b32 {s(sSegOff)}, {s(sSegOff)}, 13")

    def store_ct(acc, sbase, region, ep):
        for c in range(2):
            for q in range(4):
                A(f"v_cvt_pk_bf16_f32 {v(ep+4*c+q)}, {v(acc+8*c+2*q)}, {v(acc+8*c+2*q+1)}")
        A(f"s_add_u32 {s(sT0)}, {s(sbase)}, {region:#x}")
        for c in range(2):
            A(f"buffer_store_dwordx4 {v(ep+4*c,4)}, {v(vKst)}, {s(S_WS,4)}, {s(sT0)} offen offset:{c*512} sc1")

    def store_kv():
        store_ct(ACC + 16, sKVoff, WS_KX, EP)
        acc = ACC + 32
        for c in range(2):
            for hf in range(2):
                u = c + 2 * hf
                for q in range(2):
                    A(f"v_cvt_pk_bf16_f32 {v(EP+8+4*c+2*hf+q)}, {v(acc+4*u+2*q)}, {v(acc+4*u+2*q+1)}")
        A(f"s_add_u32 {s(sT0)}, {s(sKVoff)}, {WS_KX + 8192:#x}")
        for c in range(2):
            A(f"buffer_store_dwordx4 {v(EP+8+4*c,4)}, {v(vVst)}, {s(S_WS,4)}, {s(sT0)} offen offset:{c*512} sc1")

    def arm_km():
        for i in range(4):
            A(f"v_mov_b32 {v(XF+8+i)}, -1")
        A(f"s_lshl_b32 {s(sT1)}, {s(sWAVE)}, 10")
        A(f"s_add_u32 {s(sT0)}, {s(sKVsh)}, {s(sT1)}")
        A(f"s_add_u32 {s(sT0)}, {s(sT0)}, {WS_KM:#x}")
        A(f"buffer_store_dwordx4 {v(XF+8,4)}, {v(vL16)}, {s(S_WS,4)}, {s(sT0)} offen sc1")

    def flag_store():
        A(f"v_mov_b32 {v(vTmp)}, {s(sCnt)}")
        A(f"s_mov_b64 exec, 1")
        A(f"buffer_store_dword {v(vTmp)}, off, {s(S_WS,4)}, {s(sKVF)} sc1")
        A(f"s_mov_b64 exec, -1")
    xg.body(lambda kk, f: (mf_k(kk, f), mf_v(kk, f)), wpos=None)
    A.nop(12)
    seg_offsets()
    store_kv()
    arm_km()
    vq = Q(A, "vmcnt", 63)
    qn = [0]

    def q_first(vq_):
        pass
    nq0 = opts.get('hqq0', 8)
    for b in range(nq0):
        blk = qb[b]
        for k in range(2):
            A(f"s_mov_b32 {s(sT0)}, {blk['soff'][k]:#x}")
            vq.issue(('B', id(blk)), f"buffer_load_dwordx4 {reg(off(blk['raw'], 4*k), 4)}, {v(blk['voff'])}, {s(blk['srd'],4)}, {s(sT0)} offen")
    A(f"s_waitcnt vmcnt({2*nq0})")
    A(f"s_barrier")
    Lnf1 = A.new_label("hq_nf1")
    Lci = A.new_label("hq_ci")
    A(f"s_cmp_lg_u32 {s(sWAVE)}, 0")
    A(f"s_cbranch_scc1 {Lnf1}")
    A(f"v_readfirstlane_b32 {s(sT0)}, v15")
    A(f"s_and_b32 {s(sT0)}, {s(sT0)}, 0xff")
    A(f"s_cmp_ge_u32 {s(sT0)}, 32")
    A(f"s_cbranch_scc1 {Lci}")
    A(f"s_mov_b32 {s(sT2)}, {D_CHECKIN*4}")
    A(f"s_mov_b32 {s(sT3)}, 0")
    wait_byte(A, vTmp, vZero, sT2, sT3, 32, "hqci", sleep=4)
    A.label(Lci)
    flag_store()
    A.label(Lnf1)
    stamp(A, 3)
    for b in range(16):
        blk = qb[b]
        if b == 0:
            pass
        if b + nq0 < 16:
            nb_ = qb[b + nq0]
        vq.wait(('B', id(blk)))
        buf = (b & 1) * STG_BUF
        A(f"ds_write_b128 {v(vST)}, {reg(blk['raw'],4)} offset:{buf}")
        A(f"ds_write_b128 {v(vST)}, {reg(off(blk['raw'],4),4)} offset:{buf + stage_addr(16)}")
        for i in range(4):
            A(f"ds_read_b64_tr_b16 {reg(off(blk['dst'],2*i),2)}, {v(blk['vtr'])} offset:{buf + blk['imm'][i]}")
        if b + nq0 < 16:
            for k in range(2):
                A(f"s_mov_b32 {s(sT0)}, {nb_['soff'][k]:#x}")
                vq.issue(('B', id(nb_)), f"buffer_load_dwordx4 {reg(off(nb_['raw'], 4*k), 4)}, {v(nb_['voff'])}, {s(nb_['srd'],4)}, {s(sT0)} offen")
    A("s_waitcnt lgkmcnt(0)")
    stamp(A, 2)
    if opts.get('xatt'):
        from gen_xatt import xatt_setup, xatt_task
        xatt_setup(A, xg, sH)
    A(f"s_add_u32 {s(sNext)}, {s(sSeg)}, 5")
    xg.issue_x(sNext)
    xg.body(mf_q, wpos=opts.get('wpos', 9))
    A.nop(12)
    store_ct(ACC, sSegOff, WS_QX, XF)
    xg.toggle()
    A(f"s_waitcnt vmcnt(0) lgkmcnt(0)")
    A(f"s_barrier")
    A(f"s_mov_b32 {s(sXa)}, {s(sSeg)}")
    A(f"s_mov_b32 {s(sSeg)}, {s(sNext)}")

    Lloop = A.new_label("hq_loop")
    Lnoq = A.new_label("hq_noq")
    Lnoflag = A.new_label("hq_noflag")
    A.label(Lloop)
    A(f"s_add_u32 {s(sNext)}, {s(sSeg)}, 5")
    A(f"s_cmp_ge_u32 {s(sSeg)}, 64")
    A(f"s_cbranch_scc1 {Lnoq}")
    xg.issue_x(sNext)
    xg.body(lambda kk, f: (mf_k(kk, f), mf_v(kk, f), mf_q(kk, f)), wpos=opts.get('wpos', 9))
    A.nop(12)
    seg_offsets()
    store_kv()
    store_ct(ACC, sSegOff, WS_QX, XF)
    arm_km()
    xg.toggle()
    A(f"s_waitcnt vmcnt(0) lgkmcnt(0)")
    A(f"s_barrier")
    A(f"s_add_u32 {s(sCnt)}, {s(sCnt)}, 1")
    A(f"s_cmp_lg_u32 {s(sWAVE)}, 0")
    A(f"s_cbranch_scc1 {Lnoflag}")
    flag_store()
    A.label(Lnoflag)
    A.label(Lnoq)
    if opts.get('xatt'):
        xatt_task(A, xg, sH, sXa, opts)
    A(f"s_mov_b32 {s(sXa)}, {s(sSeg)}")
    A(f"s_mov_b32 {s(sSeg)}, {s(sNext)}")
    A(f"s_cmp_lt_u32 {s(sXa)}, 64")
    A(f"s_cbranch_scc1 {Lloop}")
    stamp(A, 4)


def gen(opts):
    global PROF
    PROF = bool(opts.get('prof'))
    A = Asm()
    A.L.append(open("header.txt").read().rstrip("\n"))
    A.L.append(f"; @launch grid=(256,1,1) block=(256,1,1) lds={LDS_BYTES}")
    A.L.append('.amdgcn_target "amdgcn-amd-amdhsa--gfx950"')
    A.L.append(".text")
    A.L.append(f".globl {KNAME}")
    A.L.append(".p2align 8")
    A.L.append(f".type {KNAME},@function")
    A.label(KNAME)
    A(f"s_cmp_ge_u32 s2, 256")
    A(f"s_cbranch_scc1 L_exit")
    A(f"s_load_dwordx16 s[64:79], s[0:1], 0")
    A(f"s_load_dwordx8 s[80:87], s[0:1], 64")
    A(f"s_load_dwordx4 s[88:91], s[0:1], 96")
    A(f"s_and_b32 {s(sXCD)}, s2, 7")
    A(f"s_lshr_b32 {s(sIDX)}, s2, 3")
    if opts.get('cpf'):
        A("s_getpc_b64 s[44:45]")
        A.label("L_pc")
        A("v_lshlrev_b32 v2, 7, v0")
        A("s_mov_b32 s46, L_exit-L_pc")
        for i in range(opts.get('cpf')):
            A(f"v_add_u32 v4, {i * 32768:#x}, v2")
            A("v_min_u32 v4, s46, v4")
            A("v_mov_b32 v5, s45")
            A("v_add_co_u32 v4, vcc, s44, v4")
            A("v_addc_co_u32 v5, vcc, 0, v5, vcc")
            A("global_load_dword v255, v[4:5], off")
    A(f"v_lshrrev_b32 v1, 6, v0")
    A(f"s_mov_b32 {s(sDEAD)}, 0")
    A(f"v_readfirstlane_b32 {s(sWAVE)}, v1")
    A(f"s_waitcnt lgkmcnt(0)")
    mk_srd(A, S_WS, P_WS, WS_SIZE)
    mk_srd(A, S_DBG, P_DBG, 256)
    mk_srd(A, S_X, P_X, 2048 * 1024)
    if PROF:
        for i in range(10):
            A(f"s_mov_b32 {s(sSTAMP+i)}, 0")
    stamp(A, 0)
    A(f"s_cmp_eq_u32 {s(sXCD)}, 0")
    A(f"s_cbranch_scc1 L_chain")
    A(f"s_cmp_lt_u32 {s(sXCD)}, 3")
    A(f"s_cbranch_scc1 L_out")
    if opts.get('hq', True):
        gen_hq(A, opts)
    A(f"s_branch L_role_end")
    A.label("L_chain")
    if opts.get('clkprobe'):
        A("s_memrealtime s[44:45]")
        A("s_waitcnt lgkmcnt(0)")
        for i in range(1, 9):
            L = A.new_label("cp")
            A(f"s_add_u32 s46, s44, {i*500}")
            A.label(L)
            A("s_memrealtime s[48:49]")
            A("s_waitcnt lgkmcnt(0)")
            A("s_sub_u32 s50, s48, s46")
            A("s_cmp_lt_i32 s50, 0")
            A(f"s_cbranch_scc1 {L}")
            stamp_clk(A, i)
    if opts.get('chain'):
        cv = opts.get('cv', 7)
        if cv == 4:
            from gen_chain4 import gen_chain
        elif cv == 5:
            from gen_chain5 import gen_chain
        elif cv == 6:
            from gen_chain6 import gen_chain
        else:
            from gen_chain7 import gen_chain
        gen_chain(A, opts)
    A(f"s_branch L_role_end")
    A.label("L_out")
    if opts.get('out'):
        from gen_out import gen_out
        gen_out(A, opts)
    A.label("L_role_end")
    stamp(A, 9)
    A.label("L_flush")
    stamp_flush(A)
    A.label("L_exit")
    A("s_endpgm")
    A.L.append(f""".section .rodata,"a"
.p2align 6
.amdhsa_kernel {KNAME}
  .amdhsa_next_free_vgpr 512
  .amdhsa_next_free_sgpr 102
  .amdhsa_accum_offset 256
  .amdhsa_group_segment_fixed_size 0
  .amdhsa_kernarg_size 112
  .amdhsa_user_sgpr_count 2
  .amdhsa_user_sgpr_kernarg_segment_ptr 1
  .amdhsa_system_sgpr_workgroup_id_x 1
.end_amdhsa_kernel""")
    return A.text()


def main():
    opts = {}
    outp = sys.argv[1]
    for o in sys.argv[2:]:
        if "=" in o:
            k, val = o.split("=")
            opts[k] = int(val)
        else:
            opts[o] = True
    open(outp, "w").write(gen(opts))


if __name__ == "__main__":
    import gen as _g
    _g.main()
```

```python
from dsl import *
import gen as G
from gen import *

QK_OFF, O_OFF, MEM_OFF, KX_OFF, VX_OFF, WO_OFF = 0, 4096, 8192, 16384, 24576, 32768

vL16, vKw, vIdx, vQKw, vQKr, vOw, vMw, vWo, vPst, vRed, vMst, vPf, vFlag, vJunk = range(14)
vT0, vT1 = 14, 15
vSEL = 16
vVM1, vKr, vONE = 20, 21, 22
vBM = 26
vS0, vIdxW = 30, 31
KIMG = [2048, 3072, 6144, 7168]
X = 32
Y = 64
PA = 96
ACC = 112
sH, sS, sSlotP, sSlotP1, sSlotP4, sSlotM, sKM, sKV, sC, sNC, sRet = range(44, 55)
sRa0, sRa2, sFastF = 55, 56, 57
sMLo, sMHi = 58, 60
sU = 76
sFo, sNeed, sJ4, sCn, sPf, sGat, sKn, sM0K, sM0V = 78, 79, 80, 81, 84, 85, 86, 87, 88
sW1k, sRaM, sRaA, sFb, sPfb, sW2k = 64, 65, 66, 67, 68, 69
sPc2, sPc3 = 70, 71
sRo, sRm = 72, 89
sPc = [sSlotP, sSlotP1, sPc2, sPc3]
sTag = 55
vTagE = vPf
sCP0, sCP1 = 82, 83
sKok = 57
OOB = 0x40000000
RED_LIMIT = 1 << 16

LOG2E = 1.4426950408889634
WPOL = ["", " nt", " sc1", " sc0 sc1", " sc1 nt", " sc0", " sc0 nt", " sc0 sc1 nt"]
SCALE_C = (128 ** -0.5) * LOG2E


def f32_hex(x):
    import struct
    return struct.unpack("<I", struct.pack("<f", x))[0]


RT = False
LATE = [False]
CSTEP = [39]


TRACE = [False]


def lstamp(A, i, late=None):
    if TRACE[0]:
        if i <= 8:
            A(f"s_memtime s[{16 + 2 * (i - 1)}:{17 + 2 * (i - 1)}]")
        return
    L = A.new_label("ls")
    if late is None:
        late = i >= 8
    A(f"s_cmp_lg_u32 {s(sS)}, {CSTEP[0] + 1 if late else CSTEP[0]}")
    A(f"s_cbranch_scc1 {L}")
    r = 16 + 2 * (i - 1) if i < 9 else 62
    A(f"{'s_memrealtime' if RT else 's_memtime'} s[{r}:{r+1}]")
    A.label(L)


import re as _re


def _regs(tok):
    tok = tok.strip().rstrip(',')
    m = _re.match(r'^([va])\[(\d+):(\d+)\]$', tok)
    if m:
        return {(m.group(1), i) for i in range(int(m.group(2)), int(m.group(3)) + 1)}
    m = _re.match(r'^([va])(\d+)$', tok)
    if m:
        return {(m.group(1), int(m.group(2)))}
    return set()


def _all_regs(line):
    r = set()
    for tok in _re.findall(r'[va]\[\d+:\d+\]|\b[va]\d+\b', line):
        r |= _regs(tok)
    return r


def gap_reorder(lines, report=False):
    out = []
    i = 0
    n = len(lines)
    issm = lambda x: x.strip().startswith('v_smfmac')
    while i < n:
        out.append(lines[i])
        if issm(lines[i]):
            j = i + 1
            gap = []
            while j < n and not issm(lines[j]) and not lines[j].endswith(':') and not lines[j].strip().startswith(('s_cbranch', 's_branch', 'v_mfma', 's_nop', 's_memtime', 's_memrealtime', 's_cmp')):
                gap.append(lines[j])
                j += 1
            if j < n and issm(lines[j]):
                changed = True
                while changed:
                    changed = False
                    for k in range(len(gap) - 1):
                        a_, b_ = gap[k].strip(), gap[k + 1].strip()
                        if a_.startswith('v_') and not b_.startswith('v_') and 'vcc' not in a_ and 'exec' not in b_:
                            if not (_all_regs(a_) & _all_regs(b_)):
                                gap[k], gap[k + 1] = gap[k + 1], gap[k]
                                changed = True
                nv = sum(1 for g in gap if g.strip().startswith('v_'))
                no = len(gap) - nv
                lastv = all(not gap[k].strip().startswith('v_') or gap[k + 1].strip().startswith('v_') for k in range(len(gap) - 1))
                if report and (nv > 1 or (nv and no > 2) or no > 3 or not lastv):
                    print("gap over budget:", [g.strip()[:40] for g in gap])
            out.extend(gap)
            i = j
            continue
        i += 1
    return out


def gen_step(A, fast, opts):
    i0 = len(A.L)
    gen_step_raw(A, fast, opts)
    if opts.get('reord', 1):
        A.L[i0:] = gap_reorder(A.L[i0:], report=fast and opts.get('report'))


def gen_step_raw(A, fast, opts):
    st = "" if fast else " sc1"
    tag = "f" if fast else "s"
    Lown = [f"L_own0_{tag}", f"L_own1_{tag}"]
    Lcommon = f"L_common_{tag}"
    Llast = f"L_last_{tag}"
    lq = Q(A, "lgkmcnt", 15)
    cp = opts.get('cprof') or opts.get('trace')
    rp = opts.get('rprof')
    AQ, AV, AK = ACC, ACC + 8, Y + 24
    CQ, CK = AQ + 2, AK + 2
    H0, H1 = X + 16, X + 24
    AO = Y
    KXR = {0: X + 16, 4: X + 20, 1: X + 24, 5: X + 28, 2: X, 6: X + 4, 3: X + 8, 7: X + 12}
    RB = [X, X + 8, PA, PA + 8]
    RIDX = {0: 0, 1: 1, 4: 2, 5: 3, 6: 4, 7: 5}

    def WB(m, jj, t):
        if m == 'q':
            return a(16 * jj + 8 * t, 8)
        if jj in (2, 3):
            return v(RB[2 * (jj - 2) + t], 8)
        return (a if m == 'k' else v)(128 + 16 * RIDX[jj] + 8 * t, 8)

    def rdR(m, b, half):
        fi = (0 if m == 'k' else 4) + b
        lq.issue(('R', m, b), f"ds_read_b128 {v(RB[b] + 4*half, 4)}, {v(vWo)} offset:{fi * 2048 + 1024 * half}")
    AC = {'q': AQ, 'k': AK, 'v': AV}
    vA = [None, vT0, vT1, vS0]

    def smf(m, jj, t, areg):
        if m != 'q' and jj in (2, 3):
            lq.wait(('R', m, 2 * (jj - 2) + t))
        A(f"v_smfmac_f32_16x16x64_bf16 {v(AC[m] + 4*t, 4)}, {v(areg, 4)}, {WB(m, jj, t)}, {v(vIdx)}")

    def rdKX(j):
        lq.issue(('KX', j), f"ds_read_b128 {v(KXR[j],4)}, {v(vL16)} offset:{KX_OFF + j*1024}")

    salu = [
        f"s_and_b32 {s(sT4)}, {s(sS)}, 3",
        f"s_lshl_b32 {s(sSlotM)}, {s(sT4)}, 13",
        f"s_add_u32 {s(sSlotM)}, {s(sSlotM)}, {WS_M:#x}",
        f"s_add_u32 {s(sGat)}, {s(sSlotM)}, {s(sW2k)}",
        f"s_xor_b32 {s(sRa2)}, {s(sSlotM)}, 0x4000",
        f"s_xor_b32 {s(sTag)}, {s(sTag)}, 1",
    ]

    def su(n):
        for _ in range(n):
            if salu:
                A(salu.pop(0))

    Lar = f"L_top_{tag}"
    Lspec = f"L_spec_{tag}"
    Lretry0 = f"L_retry0_{tag}"
    rt = opts.get('rtrace')

    def rstamp(k):
        if rt:
            A(f"s_memtime s[{16 + 2*k}:{17 + 2*k}]")

    def con_issue(R):
        A(f"buffer_load_dwordx4 {v(R,4)}, {v(vL16)}, {s(S_WS,4)}, {s(sGat)} offen sc1")
        A(f"buffer_load_dwordx4 {v(R+4,4)}, {v(vL16)}, {s(S_WS,4)}, {s(sGat)} offen offset:1024 sc1")

    def own(H, spec):
        lq.ops = []
        n = 0
        c0 = Y
        for m in 'qkv':
            for jj in range(2):
                for t in range(2):
                    n += 1
                    smf(m, jj, t, H + 4 * jj)
                    if spec and n == 1:
                        A(f"v_max3_u32 {v(c0)}, {v(H)}, {v(H+2)}, {v(H+4)}")
                    elif spec and n == 2:
                        A(f"v_max_u32 {v(c0)}, {v(c0)}, {v(H+6)}")
                    elif spec and n == 3:
                        A(f"v_cmp_eq_u32 vcc, -1, {v(c0)}")
                        A(f"s_add_u32 {s(sRet)}, {s(sRet)}, 1")
                        A(f"s_cbranch_vccnz {Lretry0}")
                    elif n == 4:
                        A(f"s_waitcnt lgkmcnt(0)")
                        A(f"s_barrier")
                    elif 5 <= n <= 10:
                        j2 = n - 5 + 2
                        lq.issue(('A', j2), f"ds_read_b128 {v(AO + 4*(j2-2), 4)}, {v(vA[j2 >> 1])} offset:{(j2 & 1) * 1024}")
                    elif n == 11:
                        A(f"s_mov_b32 m0, {s(sM0V)}")
                        A(f"s_add_u32 {s(sT3)}, {s(sKV)}, 8192")
                        rdR('k', 0, 0)
                    elif n == 12:
                        A(f"buffer_load_dwordx4 {v(vL16)}, {s(S_WS,4)}, {s(sT3)} offen lds")
                        rdR('k', 0, 1)
    if opts.get('lalign'):
        A.L.append(f".p2align {opts['lalign']}")
        for _ in range(opts.get('lpad', 0)):
            A("s_nop 0")
    A.label(Lar)
    A(f"s_barrier")
    if cp:
        lstamp(A, 8)
    rstamp(5)
    for k in range(1, 4):
        A(f"v_xor_b32 {v(vA[k])}, {k << 11:#x}, {v(vMw)}")
    A(f"s_mov_b32 {s(sRet)}, 0")
    for _ in range(opts.get('gdelay', 0)):
        A(f"s_sleep 1")
    con_issue(H0)
    for _ in range(opts.get('gspace', 1)):
        A(f"s_sleep 1")
    con_issue(H1)
    A.label(Lspec)
    A(f"s_waitcnt vmcnt(2)")
    if rt:
        rstamp(6)
    A(f"ds_write_b128 {v(vMw)}, {v(H0,4)}")
    A(f"ds_write_b128 {v(vMw)}, {v(H0+4,4)} offset:1024")
    if cp:
        lstamp(A, 9)
        lstamp(A, 1)
    if rt:
        A("s_memtime s[30:31]")
    own(H0, True)
    A.label(Lcommon)
    n = 12
    for jj in range(2, 8):
        for t in range(2):
            n += 1
            if t == 0:
                lq.wait(('A', jj))
            smf('q', jj, t, AO + 4 * (jj - 2))
            if n == 13:
                A(f"buffer_load_dwordx4 {v(vL16)}, {s(S_WS,4)}, {s(sT3)} offen offset:1024 lds")
                rdR('k', 1, 0)
            elif n == 14:
                A(f"buffer_load_dword {v(vFlag)}, off, {s(S_WS,4)}, {s(sFo)} sc1")
                rdR('k', 1, 1)
            elif n == 15:
                if not opts.get('nopf'):
                    A(f"buffer_load_dword {v(vJunk)}, {v(vPf)}, {s(S_WS,4)}, {s(sPf)} offen")
                rdR('k', 2, 0)
            elif n == 16:
                A(f"s_add_u32 {s(sT3)}, {s(sPf)}, 4096")
                rdR('k', 2, 1)
            elif n == 17:
                if not opts.get('nopf'):
                    A(f"buffer_load_dword {v(vJunk)}, {v(vPf)}, {s(S_WS,4)}, {s(sT3)} offen")
                rdR('k', 3, 0)
                su(1)
            elif n == 18:
                A(f"s_waitcnt vmcnt(5)")
                rdR('k', 3, 1)
                su(1)
            elif 19 <= n <= 22:
                rdKX((0, 4, 1, 5)[n - 19])
                su(1)
            else:
                su(3)
    if cp and not rp:
        lstamp(A, 2)

    def post(m, step):
        t, k = step // 3, step % 3
        T = AC[m] + 4 * t
        if k < 2:
            A(f"v_add_f32 {v(T + k)}, {v(T + k)}, {v(T + k + 2)}")
        else:
            d = {'q': CQ + t, 'k': CK + t, 'v': (vS0, vVM1)[t]}[m]
            A(f"v_cvt_pk_bf16_f32 {v(d)}, {v(T)}, {v(T + 1)}")
    for jj in range(2, 8):
        for t in range(2):
            n += 1
            smf('k', jj, t, AO + 4 * (jj - 2))
            if n == 31:
                lq.issue('wq', f"ds_write2st64_b32 {v(vQKw)}, {v(CQ)}, {v(CQ+1)} offset0:0 offset1:1")
            elif n == 33:
                A(f"s_mov_b32 m0, {s(sM0K)}")
                A(f"s_add_u32 {s(sKn)}, {s(sKn)}, 0x80000")
            elif n == 35:
                lq.wait('wq')
                A(f"s_barrier")
            if 26 <= n <= 30:
                rdR('v', (n - 26) >> 1, (n - 26) & 1)
            elif n in (32, 33, 34):
                rdR('v', (n - 27) >> 1, (n - 27) & 1)
            if n in (31, 32):
                su(1)
            if 25 <= n <= 30:
                post('q', n - 25)
            elif n >= 33:
                A(f"v_mov_b64 {v(ACC + 2*(n - 33), 2)}, 0")
    assert not salu
    if cp and not rp:
        lstamp(A, 3)
    QR, KR = Y, Y + 16

    def trq(i):
        ks, hf = i >> 1, i & 1
        lq.issue(('q', ks), f"ds_read_b64_tr_b16 {v(QR+4*ks+2*hf,2)}, {v(vQKr)} offset:{QK_OFF + (32*ks+8*hf)*16}")

    def trk(i):
        ks, hf = i >> 1, i & 1
        lq.issue(('k', ks), f"ds_read_b64_tr_b16 {v(KR+4*ks+2*hf,2)}, {v(vKr)} offset:{KIMG[ks] + hf*256}")
    trq_at = {38: 0, 39: 1, 40: 2, 41: 3, 42: 4, 44: 5, 45: 6, 46: 7}
    for jj in range(2, 8):
        for t in range(2):
            n += 1
            smf('v', jj, t, AO + 4 * (jj - 2))
            if n in trq_at:
                trq(trq_at[n])
            if 39 <= n <= 42:
                rdKX((2, 6, 3, 7)[n - 39])
            if n == 43:
                lq.issue('wk', f"ds_write2st64_b32 {v(vKw)}, {v(CK)}, {v(CK+1)} offset0:0 offset1:2")
            elif n == 44:
                A(f"buffer_store_dword {v(CK)}, {v(vQKw)}, {s(S_WS,4)}, {s(sKM)} offen sc1")
            elif n == 45:
                A(f"buffer_store_dword {v(CK+1)}, {v(vQKw)}, {s(S_WS,4)}, {s(sKM)} offen offset:256 sc1")
            elif n == 47:
                lq.wait('wk')
                A(f"s_barrier")
                trk(0)
            elif n == 48:
                trk(1)
                A(f"buffer_load_dwordx4 {v(vL16)}, {s(S_WS,4)}, {s(sKn)} offen lds")
            if 37 <= n <= 42:
                post('k', n - 37)
    if cp and not rp:
        lstamp(A, 4)
    T0, T1, TM = PA, PA + 4, PA + 8
    m, t_ = vT0, vT1
    wo_ops = [(cg, 0) for cg in range(4)] + [(cg, ks) for cg in range(4) for ks in range(1, 4)]
    bufs = [X + 16, X + 24, X, X + 8, Y, Y + 8, Y + 16, Y + 24]

    WOR = [a(224, 8), a(232, 8), a(240, 8), a(248, 8), v(224, 8), v(232, 8), v(240, 8), v(248, 8)]

    def rdW(i, half):
        o = (8 + i) * 2048 + 1024 * half
        lq.issue(('W', i), f"ds_read_b128 {v(bufs[i] + 4*half, 4)}, {v(vWo)} offset:{o}")
    for i in range(8):
        ks, t = i >> 1, i & 1
        if i in (0, 4):
            lq.wait(('q', ks + 1))
        T = (T0, T1)[t]
        c = "0" if ks == 0 else v(T, 4)
        A(f"v_mfma_f32_16x16x32_bf16 {v(T,4)}, {v(KXR[4*t+ks],4)}, {v(QR+4*ks,4)}, {c}")
        if i == 0:
            A(f"buffer_load_dwordx4 {v(vL16)}, {s(S_WS,4)}, {s(sKn)} offen offset:1024 lds")
        if i <= 5:
            trk(i + 2)
            post('v', i)
        elif i == 6:
            A(f"buffer_store_dword {v(vS0)}, {v(vQKw)}, {s(S_WS,4)}, {s(sKM)} offen offset:2048 sc1")
            A(f"buffer_store_dword {v(vVM1)}, {v(vQKw)}, {s(S_WS,4)}, {s(sKM)} offen offset:2304 sc1")
    A(f"s_cmp_eq_u32 {s(sS)}, 63")
    A(f"s_cbranch_scc1 {Llast}")
    for ks in range(4):
        if ks in (0, 2):
            lq.wait(('k', ks + 1))
        cm = "0" if ks == 0 else v(TM, 4)
        A(f"v_mfma_f32_16x16x32_bf16 {v(TM,4)}, {v(KR+4*ks,4)}, {v(QR+4*ks,4)}, {cm}")
        rdW(ks >> 1, ks & 1)
        if ks == 1:
            A(f"v_max3_f32 {v(m)}, {v(T0)}, {v(T0+1)}, {v(T0+2)}")
        elif ks == 2:
            A(f"v_max3_f32 {v(t_)}, {v(T0+3)}, {v(T1)}, {v(T1+1)}")
        elif ks == 3:
            A(f"v_max3_f32 {v(m)}, {v(m)}, {v(T1+2)}, {v(T1+3)}")
    ralate = 1

    def rearm(k, now=False):
        if now and k == 2:
            A(f"buffer_store_dwordx4 {v(vSEL,4)}, {v(vMst)}, {s(S_WS,4)}, {s(sRa2)} offen{st}")
    VX0 = Y + 16
    u0, u1 = TM + 2, TM + 3
    A(f"s_waitcnt vmcnt(9)")
    lq.issue('vx', f"ds_read_b128 {v(VX0,4)}, {v(vMw)} offset:{VX_OFF - MEM_OFF}")
    lq.issue('vx', f"ds_read_b128 {v(VX0+4,4)}, {v(vMw)} offset:{VX_OFF - MEM_OFF + 1024}")
    rdW(2, 0)
    rdW(2, 1)
    A(f"v_mov_b64 {v(ACC+10,2)}, 0")
    A(f"v_max3_f32 {v(m)}, {v(m)}, {v(t_)}, {v(TM)}")
    A(f"v_max_f32 {v(u0)}, {v(m)}, {v(TM+1)}")
    A(f"v_max_f32 {v(u1)}, {v(m)}, {v(TM+1)}")
    rdW(3, 0)
    A(f"v_mov_b64 {v(ACC+8,2)}, 0")
    A(f"v_permlane16_swap_b32 {v(u0)}, {v(u1)}")
    A(f"v_max_f32 {v(m)}, {v(u0)}, {v(u1)}")
    A(f"v_max_f32 {v(t_)}, {v(u0)}, {v(u1)}")
    rdW(3, 1)
    A(f"s_nop 0")
    A(f"v_permlane32_swap_b32 {v(m)}, {v(t_)}")
    A(f"v_max_f32 {v(m)}, {v(m)}, {v(t_)}")
    A(f"v_mul_f32 {v(m)}, {s(sNC)}, {v(m)}")
    BX = ACC + 12
    xs = [T0, T0 + 1, T0 + 2, T0 + 3, T1, T1 + 1, T1 + 2, T1 + 3]
    ms = [TM, TM + 1]
    if opts.get('pk', 1):
        def pkf(r):
            A(f"v_pk_fma_f32 {v(r,2)}, {v(r,2)}, {s(sC,2)}, {v(m,2)} op_sel_hi:[1,0,0]")
        pkf(T0)
        pkf(T0 + 2)
        for j in range(8):
            A(f"v_exp_f32 {v(xs[j])}, {v(xs[j])}")
            if j == 1:
                pkf(T1)
            elif j == 3:
                pkf(T1 + 2)
            elif j == 5:
                pkf(TM)
            if j >= 2 and j % 2 == 0:
                q = (j - 2) // 2
                A(f"v_cvt_pk_bf16_f32 {v(BX+q)}, {v(xs[2*q])}, {v(xs[2*q+1])}")
    else:
        for r in xs[:2]:
            A(f"v_fma_f32 {v(r)}, {v(r)}, {s(sC)}, {v(m)}")
        for j in range(8):
            A(f"v_exp_f32 {v(xs[j])}, {v(xs[j])}")
            nx = (xs + ms)[j + 2]
            A(f"v_fma_f32 {v(nx)}, {v(nx)}, {s(sC)}, {v(m)}")
            if j >= 2 and j % 2 == 0:
                q = (j - 2) // 2
                A(f"v_cvt_pk_bf16_f32 {v(BX+q)}, {v(xs[2*q])}, {v(xs[2*q+1])}")
    A(f"v_exp_f32 {v(ms[0])}, {v(ms[0])}")
    A(f"v_cvt_pk_bf16_f32 {v(BX+3)}, {v(xs[6])}, {v(xs[7])}")
    A(f"v_exp_f32 {v(ms[1])}, {v(ms[1])}")
    if cp and not rp:
        lstamp(A, 5)
    O0, O1, LS, PKO = PA, PA + 4, PA + 12, PA + 8
    lq.wait('vx')
    A(f"v_mfma_f32_16x16x32_bf16 {v(LS,4)}, {v(vONE,4)}, {v(BX,4)}, 0")
    A(f"v_cvt_pk_bf16_f32 {v(vBM)}, {v(ms[0])}, {v(ms[1])}")
    A(f"v_mfma_f32_16x16x32_bf16 {v(O0,4)}, {v(VX0,4)}, {v(BX,4)}, 0")
    rdW(4, 0)
    A(f"v_mfma_f32_16x16x32_bf16 {v(O1,4)}, {v(VX0+4,4)}, {v(BX,4)}, 0")
    A(f"v_mfma_f32_16x16x32_bf16 {v(LS,4)}, {v(vONE,4)}, {v(vBM,4)}, {v(LS,4)}")
    A(f"v_mfma_f32_16x16x32_bf16 {v(O0,4)}, {v(vS0,4)}, {v(vBM,4)}, {v(O0,4)}")
    A(f"v_mov_b64 {v(ACC+12,2)}, 0")
    A(f"v_mfma_f32_16x16x32_bf16 {v(O1,4)}, {v(vVM1,4)}, {v(vBM,4)}, {v(O1,4)}")
    rdW(4, 1)
    A(f"v_rcp_f32 {v(m)}, {v(LS)}")
    rdW(5, 0)
    A(f"v_mov_b64 {v(ACC+14,2)}, 0")
    if opts.get('pk', 1):
        def pkm(r):
            A(f"v_pk_mul_f32 {v(r,2)}, {v(r,2)}, {v(m,2)} op_sel_hi:[1,0]")
        pkm(O0)
        pkm(O0 + 2)
        pkm(O1)
        A(f"v_cvt_pk_bf16_f32 {v(PKO)}, {v(O0)}, {v(O0+1)}")
        pkm(O1 + 2)
        A(f"v_cvt_pk_bf16_f32 {v(PKO+1)}, {v(O0+2)}, {v(O0+3)}")
    else:
        for r in range(4):
            A(f"v_mul_f32 {v(O0+r)}, {v(O0+r)}, {v(m)}")
        A(f"v_cvt_pk_bf16_f32 {v(PKO)}, {v(O0)}, {v(O0+1)}")
        A(f"v_cvt_pk_bf16_f32 {v(PKO+1)}, {v(O0+2)}, {v(O0+3)}")
        for r in range(4):
            A(f"v_mul_f32 {v(O1+r)}, {v(O1+r)}, {v(m)}")
    A(f"v_cvt_pk_bf16_f32 {v(PKO+2)}, {v(O1)}, {v(O1+1)}")
    A(f"v_cvt_pk_bf16_f32 {v(PKO+3)}, {v(O1+2)}, {v(O1+3)}")
    lq.issue('wo_', f"ds_write_b128 {v(vOw)}, {v(PKO,4)} offset:0")
    AOr = [PKO, PA, PA + 4, PA + 12]
    vAo = [None, vT0, vT1, vS0]
    for k in range(1, 4):
        A(f"v_xor_b32 {v(vAo[k])}, {k << 9:#x}, {v(vOw)}")
    if cp and not rp:
        lstamp(A, 6)

    def pack(cg, k):
        A(f"v_cvt_pk_bf16_f32 {v(ACC+4*cg+k)}, {v(ACC+4*cg+2*k)}, {v(ACC+4*cg+2*k+1)}")

    def tagp(cg):
        A(f"v_and_or_b32 {v(ACC+4*cg)}, {v(ACC+4*cg)}, -2, {s(sTag)}")

    def pstore(cg):
        A(f"buffer_store_dwordx2 {v(ACC+4*cg,2)}, {v(vPst)}, {s(S_WS,4)}, {s(sPc[cg]) if cg else 0} offen{st}")
    for i, (cg, ks) in enumerate(wo_ops):
        if ks:
            lq.wait(('Ao', ks))
        if i >= 8:
            lq.wait(('W', i - 8))
        A(f"v_smfmac_f32_16x16x64_bf16 {v(ACC+4*cg,4)}, {v(AOr[ks],4)}, {WOR[i] if i < 8 else v(bufs[i - 8],8)}, {v(vIdxW)}")
        if i == opts.get('obar', 1):
            lq.wait('wo_')
            A(f"s_barrier")
            for k in range(1, 4):
                lq.issue(('Ao', k), f"ds_read_b128 {v(AOr[k],4)}, {v(vAo[k])}")
        if i == 2:
            rdW(5, 1)
            rdW(6, 0)
        elif i == 3:
            rdW(6, 1)
            rdW(7, 0)
        elif i == 4:
            rdW(7, 1)
        pst = opts.get('pst', 1)
        if pst == 1:
            if i in (11, 14):
                pstore((i - 11) // 3)
            if i in (8, 11, 14):
                pack((i - 8) // 3, 0)
            elif i in (9, 12, 15):
                pack((i - 9) // 3, 1)
            elif i in (10, 13):
                tagp((i - 10) // 3)
        elif pst == 2:
            if i in (8, 11, 14):
                pack((i - 8) // 3, 0)
                pack((i - 8) // 3, 1)
            elif i in (9, 12, 15):
                tagp((i - 9) // 3)
            elif i in (10, 13):
                pstore((i - 10) // 3)
        elif pst == 3:
            if i in (8, 11, 14):
                pack((i - 8) // 3, 0)
            elif i in (9, 12, 15):
                pack((i - 9) // 3, 1)
                tagp((i - 9) // 3)
            elif i in (10, 13):
                pstore((i - 10) // 3)
    if pst == 1:
        tagp(2)
        pstore(2)
        A(f"s_nop 5")
    else:
        pstore(2)
        A(f"s_nop 6")
    pack(3, 0)
    pack(3, 1)
    tagp(3)
    pstore(3)
    if cp:
        lstamp(A, 7)
    Lnr = A.new_label("notred")

    def bookkeeping():
        A(f"s_add_u32 {s(sS)}, {s(sS)}, 1")
        A(f"s_add_u32 {s(sKM)}, {s(sKM)}, 0x20000")
        A(f"s_add_u32 {s(sKV)}, {s(sKV)}, 0x80000")
        A(f"s_add_u32 {s(sPf)}, {s(sPf)}, 0x80000")
        A(f"s_add_u32 {s(sJ4)}, {s(sJ4)}, 4")
        A(f"s_cmp_eq_u32 {s(sJ4)}, 20")
        A(f"s_cselect_b32 {s(sJ4)}, 0, {s(sJ4)}")
        A(f"s_addc_u32 {s(sCn)}, {s(sCn)}, 0")

    def bookkeeping2():
        A(f"s_add_u32 {s(sFo)}, {s(sFb)}, {s(sJ4)}")
        A(f"s_cmp_lt_u32 {s(sS)}, 62")
        A(f"s_cselect_b32 {s(sNeed)}, {s(sCn)}, 0")

    def zero_acc():
        for i in range(8):
            A(f"v_mov_b64 {v(ACC+2*i,2)}, 0")
        for i in range(4):
            A(f"v_mov_b64 {v(AK+2*i,2)}, 0")

    if opts.get('rbar', 1):
        A(f"s_barrier")
    A(f"s_cmp_lg_u32 {s(sWAVE)}, 0")
    A(f"s_cbranch_scc1 {Lnr}")
    Lred = A.new_label("red")
    Lredok = A.new_label("redok")
    RA = PA
    two = opts.get('rtwo', 0)

    if rt:
        A(f"s_memtime s[62:63]")
        A(f"s_lshl_b32 {s(sT0)}, {s(sH)}, 6")
        A(f"s_add_u32 {s(sT0)}, {s(sT0)}, {s(sS)}")
        A(f"s_lshl_b32 {s(sT0)}, {s(sT0)}, 6")
        A(f"s_add_u32 {s(sT0)}, {s(sT0)}, {WS_T + 0x10000:#x}")
        A(f"s_waitcnt lgkmcnt(0)")
        A(f"v_mov_b32 {v(vT0)}, s16")
        for k in range(1, 8):
            A(f"v_writelane_b32 {v(vT0)}, s{16 + 2*k}, {k}")
        A(f"v_writelane_b32 {v(vT0)}, s{sCP0}, 8")
        A(f"v_writelane_b32 {v(vT0)}, s{sRet}, 9")
        A(f"v_lshrrev_b32 {v(vT1)}, 2, {v(vL16)}")
        A(f"s_mov_b64 exec, 0x3ff")
        A(f"buffer_store_dword {v(vT0)}, {v(vT1)}, {s(S_WS,4)}, {s(sT0)} offen")
        A(f"s_mov_b64 exec, -1")
        A(f"s_mov_b32 s16, s62")
        A(f"s_mov_b32 {s(sCP0)}, 0")
    zero_acc()
    A(f"v_xor_b32 {v(vTagE)}, 1, {v(vTagE)}")
    bookkeeping()
    bookkeeping2()
    A(f"s_mov_b32 {s(sRet)}, 0")
    RS = [[X + 4 * i for i in range(8)], [Y + 4 * i for i in range(6)] + [PA + 8, PA + 12]]
    mode = opts.get('rmode', 1)

    def ld(R, i):
        A(f"buffer_load_dwordx4 {v(R[i],4)}, {v(vRed)}, {s(S_WS,4)}, {0 if i < 4 else s(sSlotP4)} offen offset:{(i%4)*1024} sc1")

    def chk(R, other, cnt, first=False):
        ys = [vT0, vT1, vS0, vT1, vS0, vT1, vS0, vT1]
        if rt:
            A(f"s_add_u32 {s(sCP0)}, {s(sCP0)}, 1")
        for i in range(8):
            A(f"s_waitcnt vmcnt({cnt(i)})")
            if first and i == 0:
                rstamp(2)
            if first and i == 7:
                rstamp(3)
            c = "0" if i == 0 else v(RA, 4)
            A(f"v_mfma_f32_16x16x32_bf16 {v(RA,4)}, {v(R[i],4)}, {v(vSEL,4)}, {c}")
            if other is not None:
                ld(other, i)
            A(f"v_bitop3_b32 {v(ys[i])}, {v(R[i])}, {v(R[i]+2)}, {v(vTagE)} bitop3:0x7e")
            if i in (2, 4, 6):
                A(f"v_or3_b32 {v(vT0)}, {v(vT0)}, {v(vT1)}, {v(vS0)}")
        A(f"v_bitop3_b32 {v(vT0)}, {v(vT0)}, {v(vT1)}, 1 bitop3:0xa8")
        A(f"v_cmp_ne_u32 vcc, 0, {v(vT0)}")
    for _ in range(opts.get('rdelay', 0)):
        A(f"s_sleep 1")
    rstamp(1)
    for i in range(8):
        ld(RS[0], i)
    Lrfail = A.new_label("rfail")
    if mode == 2:
        for _ in range(opts.get('rspace', 1)):
            A(f"s_sleep 1")
        for i in range(8):
            ld(RS[1], i)
        chk(RS[0], None, lambda i: 15 - i, True)
    elif mode == 1:
        chk(RS[0], RS[1], lambda i: 7, True)
    else:
        chk(RS[0], None, lambda i: 7 - i, True)
    A(f"s_cbranch_vccnz {Lrfail}")
    A.label(Lredok)
    rstamp(4)
    A(f"s_nop {3 if mode == 1 else 4}")
    A(f"v_cvt_pk_bf16_f32 {v(RA+4)}, {v(RA)}, {v(RA+1)}")
    A(f"v_cvt_pk_bf16_f32 {v(RA+5)}, {v(RA+2)}, {v(RA+3)}")
    A(f"buffer_store_dwordx2 {v(RA+4,2)}, {v(vMst)}, {s(S_WS,4)}, {s(sSlotM)} offen{st}")
    A(f"s_branch {Lar}")
    A.label(Lrfail)
    if mode == 0:
        for i in range(8):
            ld(RS[1], i)
    A.label(Lred)
    chk(RS[1], RS[0], lambda i: 7)
    A(f"s_cbranch_vccz {Lredok}")
    chk(RS[0], RS[1], lambda i: 7)
    A(f"s_cbranch_vccz {Lredok}")
    A(f"s_add_u32 {s(sRet)}, {s(sRet)}, 1")
    A(f"s_cmp_lg_u32 {s(sDEAD)}, 0")
    A(f"s_cbranch_scc1 {Lredok}")
    A(f"s_cmp_lt_u32 {s(sRet)}, {RED_LIMIT}")
    A(f"s_cbranch_scc1 {Lred}")
    A(f"s_mov_b32 {s(sDEAD)}, 1")
    A(f"s_branch {Lredok}")
    A.label(Lnr)
    Lfok = A.new_label("fok")
    Lfsp = A.new_label("fsp")
    A(f"s_mov_b32 {s(sRet)}, 0")
    A(f"s_waitcnt vmcnt(12)")
    A(f"v_readfirstlane_b32 {s(sT0)}, {v(vFlag)}")
    zero_acc()
    A(f"s_cmp_ge_u32 {s(sT0)}, {s(sNeed)}")
    A(f"s_cbranch_scc1 {Lfok}")
    A(f"s_cmp_lg_u32 {s(sDEAD)}, 0")
    A(f"s_cbranch_scc1 {Lfok}")
    A(f"s_mov_b32 {s(sRet)}, 0")
    A.label(Lfsp)
    A(f"buffer_load_dword {v(vFlag)}, off, {s(S_WS,4)}, {s(sFo)} sc1")
    A(f"s_waitcnt vmcnt(0)")
    A(f"v_readfirstlane_b32 {s(sT0)}, {v(vFlag)}")
    A(f"s_cmp_ge_u32 {s(sT0)}, {s(sNeed)}")
    A(f"s_cbranch_scc1 {Lfok}")
    A(f"s_sleep 1")
    A(f"s_add_u32 {s(sRet)}, {s(sRet)}, 1")
    A(f"s_cmp_lt_u32 {s(sRet)}, {SPIN_LIMIT}")
    A(f"s_cbranch_scc1 {Lfsp}")
    A(f"s_mov_b32 {s(sDEAD)}, 1")
    A.label(Lfok)
    if TRACE[0]:
        Lsl = A.new_label("tr")
        A(f"s_cmp_lg_u32 {s(sWAVE)}, {opts.get('tw', 1)}")
        A(f"s_cbranch_scc1 {Lsl}")
        A(f"s_lshl_b32 {s(sT0)}, {s(sH)}, 6")
        A(f"s_add_u32 {s(sT0)}, {s(sT0)}, {s(sS)}")
        A(f"s_lshl_b32 {s(sT0)}, {s(sT0)}, 5")
        A(f"s_add_u32 {s(sT0)}, {s(sT0)}, {WS_T + 0x10000:#x}")
        A(f"s_waitcnt lgkmcnt(0)")
        A(f"v_mov_b32 {v(vT0)}, s16")
        for k in range(1, 8):
            A(f"v_writelane_b32 {v(vT0)}, s{16 + 2*k}, {k}")
        A(f"v_lshrrev_b32 {v(vT1)}, 2, {v(vL16)}")
        A(f"s_mov_b64 exec, 0xff")
        A(f"buffer_store_dword {v(vT0)}, {v(vT1)}, {s(S_WS,4)}, {s(sT0)} offen")
        A(f"s_mov_b64 exec, -1")
        A.label(Lsl)
    if opts.get('steplog'):
        Lsl = A.new_label("sl")
        A(f"s_cmp_lg_u32 {s(sWAVE)}, 1")
        A(f"s_cbranch_scc1 {Lsl}")
        A(f"s_memrealtime s[62:63]")
        A(f"s_memtime s[16:17]")
        A(f"s_lshl_b32 {s(sT0)}, {s(sH)}, 6")
        A(f"s_add_u32 {s(sT0)}, {s(sT0)}, {s(sS)}")
        A(f"s_lshl_b32 {s(sT0)}, {s(sT0)}, 3")
        A(f"s_add_u32 {s(sT0)}, {s(sT0)}, {WS_T + (0x30000 if opts.get('prof') else 0x8000):#x}")
        A(f"s_waitcnt lgkmcnt(0)")
        A(f"v_mov_b32 {v(vT0)}, s62")
        A(f"v_mov_b32 {v(vT1)}, s16")
        A(f"s_mov_b64 exec, 1")
        A(f"buffer_store_dwordx2 {v(vT0,2)}, off, {s(S_WS,4)}, {s(sT0)}")
        A(f"s_mov_b64 exec, -1")
        A.label(Lsl)
    bookkeeping()
    bookkeeping2()
    rearm(2, True)
    A(f"s_branch {Lar}")
    A.label(Lretry0)
    A(f"s_nop 7")
    for i in range(4):
        A(f"v_mov_b64 {v(AQ+2*i,2)}, 0")
    con_issue(H0)
    A(f"s_waitcnt vmcnt(2)")
    A(f"ds_write_b128 {v(vMw)}, {v(H1,4)}")
    A(f"v_max3_u32 {v(Y)}, {v(H1)}, {v(H1+2)}, {v(H1+4)}")
    A(f"ds_write_b128 {v(vMw)}, {v(H1+4,4)} offset:1024")
    A(f"v_max_u32 {v(Y)}, {v(Y)}, {v(H1+6)}")
    A(f"v_cmp_eq_u32 vcc, -1, {v(Y)}")
    A(f"s_add_u32 {s(sRet)}, {s(sRet)}, 1")
    A(f"s_cbranch_vccz {Lown[1]}")
    con_issue(H1)
    A(f"s_cmp_lg_u32 {s(sDEAD)}, 0")
    A(f"s_cbranch_scc1 {Lown[1]}")
    A(f"s_cmp_lt_u32 {s(sRet)}, {RED_LIMIT}")
    A(f"s_cbranch_scc1 {Lspec}")
    A(f"s_mov_b32 {s(sDEAD)}, 1")
    A.label(Lown[1])
    own(H1, False)
    A(f"s_branch {Lcommon}")
    A.label(Llast)
    A(f"s_waitcnt vmcnt(0) lgkmcnt(0)")
    if fast and opts.get('cwb'):
        Lwb = A.new_label("cwb")
        A(f"s_cmp_lg_u32 {s(sWAVE)}, 0")
        A(f"s_cbranch_scc1 {Lwb}")
        A(f"buffer_wbl2 sc1")
        A(f"s_waitcnt vmcnt(0)")
        A.label(Lwb)
    if cp and not TRACE[0]:
        for i in range(1, 10):
            A(f"s_mov_b32 s{92+i}, s{16+2*(i-1) if i < 9 else 62}")
        A(f"s_lshl_b32 {s(sCP1)}, {s(sCP1)}, 16")
        A(f"s_or_b32 s92, {s(sCP0)}, {s(sCP1)}")
        A("s_branch L_flush")
    A(f"s_branch L_role_end")


def kv_polls(A):
    for j in range(2):
        Lp = A.new_label("kvp")
        Ld = A.new_label("kvd")
        A(f"s_mov_b32 {s(sRet)}, 0")
        A(f"s_cmp_lg_u32 {s(sDEAD)}, 0")
        A(f"s_cbranch_scc1 {Ld}")
        A.label(Lp)
        A(f"buffer_load_dword {v(vFlag)}, off, {s(S_WS,4)}, {s(sT5)} offset:{4*j} sc1")
        A(f"s_waitcnt vmcnt(0)")
        A(f"v_readfirstlane_b32 {s(sT0)}, {v(vFlag)}")
        A(f"s_cmp_ge_u32 {s(sT0)}, 1")
        A(f"s_cbranch_scc1 {Ld}")
        A(f"s_sleep 1")
        A(f"s_add_u32 {s(sRet)}, {s(sRet)}, 1")
        A(f"s_cmp_lt_u32 {s(sRet)}, {SPIN_LIMIT}")
        A(f"s_cbranch_scc1 {Lp}")
        A(f"s_mov_b32 {s(sDEAD)}, 1")
        A.label(Ld)


def fb_consts(A):
    A(f"s_cmp_eq_u32 {s(sWAVE)}, 0")
    A(f"s_cselect_b32 {s(sFb)}, {OOB:#x}, {s(sT5)}")
    A(f"s_add_u32 {s(sFo)}, {s(sFb)}, 8")


def gen_late_start(A, opts, vL):
    mk_srd(A, S_A, P_MEM0, 8192)
    A(f"s_lshl_b32 {s(sT0)}, {s(sWAVE)}, 8")
    lane_expr(A, vT0, vL, [(2, 2, 2048), (0, 1, 1024), (1, 1, 64), (4, 2, 16)], sregs=[sT0])
    A(f"buffer_load_dwordx4 {v(X+24,4)}, {v(vT0)}, {s(S_A,4)}, 0 offen")
    A(f"buffer_load_dwordx4 {v(X+28,4)}, {v(vT0)}, {s(S_A,4)}, 0 offen offset:128")
    A(f"s_waitcnt vmcnt(0)")
    A(f"ds_write_b128 {v(vMw)}, {v(X+24,4)}")
    A(f"ds_write_b128 {v(vMw)}, {v(X+28,4)} offset:1024")
    for i in range(16):
        A(f"v_mov_b32 {v(ACC+i)}, 0")
    for i in range(8):
        A(f"v_mov_b32 {v(Y+24+i)}, 0")
    fb_consts(A)
    A(f"v_mov_b32 {v(vT1)}, 0")
    A(f"s_mov_b32 {s(sT2)}, {D_CHECKIN*4}")
    A(f"s_mov_b32 {s(sT3)}, 0")
    wait_byte(A, vFlag, vT1, sT2, sT3, 32, "ci", sleep=1)
    A(f"buffer_load_dword {v(vFlag)}, {v(vT1)}, {s(S_DBG,4)}, 0 offen offset:{D_CHECKIN*4} sc1")
    A(f"s_getreg_b32 {s(sT0)}, hwreg(HW_REG_XCC_ID, 0, 4)")
    A(f"s_mul_i32 {s(sT1)}, {s(sT0)}, {s(sT0)}")
    A(f"s_lshl_b32 {s(sT1)}, {s(sT1)}, 22")
    A(f"s_lshl_b32 {s(sT0)}, {s(sT0)}, 13")
    A(f"s_add_u32 {s(sT0)}, {s(sT0)}, {s(sT1)}")
    A(f"s_add_u32 {s(sT0)}, {s(sT0)}, 32")
    A(f"s_waitcnt vmcnt(0)")
    A(f"v_readfirstlane_b32 {s(sT1)}, {v(vFlag)}")
    A(f"s_cmp_eq_u32 {s(sT0)}, {s(sT1)}")
    A(f"s_cselect_b32 {s(sFastF)}, 1, 0")
    kv_polls(A)
    A(f"s_mov_b32 m0, {s(sM0K)}")
    A(f"s_nop 0")
    for i in range(2):
        A(f"buffer_load_dwordx4 {v(vL16)}, {s(S_WS,4)}, {s(sKn)} offen offset:{1024*i} lds")


def gen_chain(A, opts):
    global RT
    RT = bool(opts.get('rt'))
    CSTEP[0] = opts.get('cstep', 39)
    TRACE[0] = bool(opts.get('trace'))
    vL = 13
    A(f"s_xor_b32 {s(sH)}, {s(sIDX)}, {opts.get('hperm', 0)}")
    A(f"v_and_b32 {v(vL)}, 63, v0")
    mk_srd(A, S_A, P_WQ, 512 * 8192)
    mk_srd(A, S_B, P_WK, 512 * 8192)
    mk_srd(A, S_C, P_WV, 512 * 8192)
    mk_srd(A, S_D, P_WO, 4096 * 1024)
    A(f"v_lshlrev_b32 {v(vL16)}, 4, {v(vL)}")
    vMre = 2
    vG, vGo, vSW, vSWo, vTRb, vTRo, vTA = 116, 117, 118, 122, 124, 125, 126
    POOL = [40, 72]
    TEMPS = [104, 32]
    sXo = sRo + 1
    A(f"s_lshl_b32 {s(sT0)}, {s(sH)}, 8")
    A(f"s_lshl_b32 {s(sT1)}, {s(sWAVE)}, 20")
    A(f"s_add_u32 {s(sT0)}, {s(sT0)}, {s(sT1)}")
    lane_expr(A, vG, vL, [(4, 2, 8192), (0, 4, 16)], sregs=[sT0])
    A(f"s_lshl_b32 {s(sT0)}, {s(sH)}, 17")
    A(f"s_lshl_b32 {s(sT1)}, {s(sWAVE)}, 8")
    A(f"s_add_u32 {s(sT0)}, {s(sT0)}, {s(sT1)}")
    lane_expr(A, vGo, vL, [(4, 2, 1024), (0, 4, 16)], sregs=[sT0])
    A(f"s_lshl_b32 {s(sXo)}, {s(sWAVE)}, 15")

    RIDX = {0: 0, 1: 1, 4: 2, 5: 3, 6: 4, 7: 5}
    wo_ops = [(cg, 0) for cg in range(4)] + [(cg, ks) for cg in range(4) for ks in range(1, 4)]
    WORR = [('a', 224), ('a', 232), ('a', 240), ('a', 248), ('v', 224), ('v', 232), ('v', 240), ('v', 248)]

    def arm():
        for i in range(4):
            A(f"v_mov_b32 {v(vSEL+i)}, -1")
        A(f"s_lshl_b32 {s(sT0)}, {s(sH)}, 13")
        A(f"s_lshl_b32 {s(sT1)}, {s(sWAVE)}, 11")
        A(f"s_add_u32 {s(sT0)}, {s(sT0)}, {s(sT1)}")
        A(f"v_bfe_u32 {v(vT0)}, {v(vL)}, 4, 1")
        for i in range(4):
            A(f"v_xor_b32 {v(ACC+i)}, -1, {v(vT0)}")
        vq.issue('st', f"buffer_store_dwordx4 {v(ACC,4)}, {v(vL16)}, {s(S_WS,4)}, {s(sT0)} offen sc1")
        vq.issue('st', f"buffer_store_dwordx4 {v(ACC,4)}, {v(vL16)}, {s(S_WS,4)}, {s(sT0)} offen offset:1024 sc1")
        A(f"s_lshl_b32 {s(sT2)}, {s(sH)}, 8")
        A(f"v_add_u32 {v(vT0)}, {s(sT2)}, {v(vL16)}")
        A(f"v_cmp_gt_u32 vcc, 16, {v(vL)}")
        A(f"v_mov_b32 {v(vT1)}, {OOB:#x}")
        A.nop(1)
        A(f"v_cndmask_b32 {v(vMre)}, {v(vT1)}, {v(vT0)}, vcc")
        for sl in range(4):
            A(f"s_mov_b32 {s(sT1)}, {WS_M + sl*8192:#x}")
            vq.issue('st', f"buffer_store_dwordx4 {v(vSEL,4)}, {v(vMre)}, {s(S_WS,4)}, {s(sT1)} offen sc1")
        Z = 20
        for i in range(4):
            A(f"v_mov_b32 {v(Z+i)}, 0")
        A(f"v_cndmask_b32 {v(Z+4)}, {v(vT1)}, {v(vL16)}, vcc")
        A(f"s_lshl_b32 {s(sT1)}, {s(sH)}, 8")
        A(f"s_add_u32 {s(sT1)}, {s(sT1)}, {WS_OF:#x}")
        vq.issue('st', f"buffer_store_dwordx4 {v(Z,4)}, {v(Z+4)}, {s(S_WS,4)}, {s(sT1)} offen sc1")
        A(f"v_cmp_gt_u32 vcc, 8, {v(vL)}")
        A.nop(2)
        A(f"v_cndmask_b32 {v(Z+5)}, {v(vT1)}, {v(vL16)}, vcc")
        A(f"s_lshl_b32 {s(sT1)}, {s(sH)}, 7")
        A(f"s_add_u32 {s(sT1)}, {s(sT1)}, {WS_KVF:#x}")
        vq.issue('st', f"buffer_store_dwordx4 {v(Z,4)}, {v(Z+5)}, {s(S_WS,4)}, {s(sT1)} offen sc1")

    def qkv_unit(m, hp, x):
        u = dict(kind='qkv', m=m, hp=hp, x=x, srd={'q': S_A, 'k': S_B, 'v': S_C}[m], needs_temp=(m != 'q'))
        u['soff'] = [(64 * hp + 16 * x + 4 * (k & 3) + 32 * (k >> 2)) * 8192 for k in range(8)]
        return u

    def bind(u, temp):
        if u['kind'] == 'qkv':
            m, hp, x = u['m'], u['hp'], u['x']
            res = []
            for i in range(4):
                sl = hp + 2 * i
                for t_ in range(2):
                    if m == 'q':
                        res.append((('a', 16 * sl + 8 * t_ + 4 * x), None))
                    elif sl in (2, 3):
                        fi = (0 if m == 'k' else 4) + 2 * (sl - 2) + t_
                        res.append((('v', temp + 4 * t_), fi * 2048 + 1024 * x))
                    else:
                        res.append(((('a' if m == 'k' else 'v'), 128 + 16 * RIDX[sl] + 8 * t_ + 4 * x), None))
            u['raw'] = [r[0] for r in res]
            u['res'] = res
        else:
            u['raw'] = [('v', temp + 4 * k) for k in range(8)]

    def wo_unit(ks):
        return dict(kind='wo', ks=ks, srd=S_D, soff=[(32 * ks + 4 * k) * 1024 for k in range(8)])
    U = {f"O{k}": wo_unit(k) for k in range(4)}
    for m in 'qkv':
        for hp in range(2):
            for x in range(2):
                U[f"{m.upper()}{hp}{x}"] = qkv_unit(m, hp, x)
    order = {0: "O0 O1 Q00 Q01 Q10 Q11 O2 O3 K00 K01 K10 K11 V00 V01 V10 V11",
             1: "Q00 Q01 Q10 Q11 O0 O1 K00 K01 O2 O3 K10 K11 V00 V01 V10 V11",
             2: "K00 K01 Q00 Q01 Q10 Q11 O0 O1 K10 K11 O2 O3 V00 V01 V10 V11",
             3: "O0 O1 Q00 Q01 Q10 Q11 O2 O3 V00 V01 V10 V11 K00 K01 K10 K11",
             4: "K00 K01 K10 K11 V00 V01 V10 V11 Q00 Q01 Q10 Q11 O0 O1 O2 O3",
             5: "K00 K01 K10 K11 V00 V01 V10 V11 Q00 O0 Q01 O1 Q10 O2 Q11 O3",
             6: "O0 O1 K00 K01 K10 K11 V00 V01 V10 V11 Q00 O2 Q01 O3 Q10 Q11",
             8: "K00 K01 K10 K11 V00 V01 V10 V11 O0 O1 O2 O3 Q00 Q01 Q10 Q11",
             7: "K00 K01 K10 K11 O0 V00 V01 O1 V10 V11 Q00 O2 Q01 O3 Q10 Q11"}[opts.get('word', 0)].split()
    units = [U[n] for n in order]
    vq = Q(A, "vmcnt", 63)
    nst = 8
    ARMLATE = opts.get('armlate', 1)
    if not ARMLATE:
        arm()
    busy = set()
    TPREF = [40, 48, 56, 64, 104, 32, 72, 80, 88, 96]
    PPREF = [72, 40]

    def alloc_temp():
        for g in TPREF:
            if g not in busy:
                busy.add(g)
                return g
        return None

    def alloc_pool():
        for p in PPREF:
            gs = [p + 8 * j for j in range(4)]
            if not any(g in busy for g in gs):
                busy.update(gs)
                return p
        return None
    held = {}
    WIN = opts.get('cwin', 56)
    st_ = dict(issued=0)

    def inflight():
        return len(vq.ops)

    EARLY = opts.get('early', 1)
    vEK, vEM, vEF, vEC, vEA = 104, 32, 112, 114, 115

    def early_issue():
        assert 104 not in busy and 32 not in busy
        busy.update((104, 32))
        mk_srd(A, S_X, P_MEM0, 8192)
        A(f"s_lshl_b32 {s(sT0)}, {s(sWAVE)}, 8")
        lane_expr(A, vEA, vL, [(2, 2, 2048), (0, 1, 1024), (1, 1, 64), (4, 2, 16)], sregs=[sT0])
        vq.issue('fl', f"buffer_load_dwordx2 {v(vEF,2)}, off, {s(S_WS,4)}, {s(sT5)} sc1")
        vq.issue('ci', f"buffer_load_dword {v(vEC)}, off, {s(S_DBG,4)}, 0 offset:{D_CHECKIN*4} sc1")
        vq.issue('m0', f"buffer_load_dwordx4 {v(vEM,4)}, {v(vEA)}, {s(S_X,4)}, 0 offen")
        vq.issue('m0', f"buffer_load_dwordx4 {v(vEM+4,4)}, {v(vEA)}, {s(S_X,4)}, 0 offen offset:128")

    def early_k():
        vq.wait('fl')
        A(f"v_min_u32 {v(vEF)}, {v(vEF)}, {v(vEF+1)}")
        A.nop(1)
        A(f"v_readfirstlane_b32 {s(sT0)}, {v(vEF)}")
        A(f"s_cmp_ge_u32 {s(sT0)}, 1")
        A(f"s_cselect_b32 {s(sKok)}, 1, 0")
        A(f"s_cselect_b32 {s(sT1)}, {s(sKn)}, {OOB:#x}")
        vq.issue('kx', f"buffer_load_dwordx4 {v(vEK,4)}, {v(vL16)}, {s(S_WS,4)}, {s(sT1)} offen")
        vq.issue('kx', f"buffer_load_dwordx4 {v(vEK+4,4)}, {v(vL16)}, {s(S_WS,4)}, {s(sT1)} offen offset:1024")

    def try_issue():
        while st_['issued'] < len(units):
            u = units[st_['issued']]
            limit = min(WIN + (nst if 'st' in vq.ops else 0), 62)
            if EARLY and st_['issued'] == len(units) - 1 and not st_.get('early'):
                if inflight() + 8 > limit or 104 in busy or 32 in busy:
                    return
                early_issue()
                st_['early'] = True
                limit += 4
            elif EARLY and st_.get('early'):
                limit += 4
            if inflight() + 8 > limit:
                return
            if u['kind'] == 'wo':
                tmp = alloc_pool()
                if tmp is None:
                    return
                held[id(u)] = ('pool', tmp)
            elif u['needs_temp']:
                tmp = alloc_temp()
                if tmp is None:
                    return
                held[id(u)] = ('temp', tmp)
            else:
                tmp = None
            bind(u, tmp)
            for k in range(8):
                if u['kind'] == 'wo':
                    A(f"s_xor_b32 {s(sT0)}, {u['soff'][k]:#x}, {s(sXo)}")
                    vq.issue(id(u), f"buffer_load_dwordx4 {reg(u['raw'][k], 4)}, {v(vGo)}, {s(u['srd'],4)}, {s(sT0)} offen" + WPOL[opts.get('wnto', 0)])
                else:
                    A(f"s_mov_b32 {s(sT0)}, {u['soff'][k]:#x}")
                    vq.issue(id(u), f"buffer_load_dwordx4 {reg(u['raw'][k], 4)}, {v(vG)}, {s(u['srd'],4)}, {s(sT0)} offen" + WPOL[opts.get('wnt', 0)])
            st_['issued'] += 1
    stamp(A, 1) if not opts.get('cprof') else None
    try_issue()
    if ARMLATE:
        arm()
    A(f"s_lshl_b32 {s(sT2)}, {s(sWAVE)}, 13")
    lane_expr(A, vSW, vL, [(4, 2, 256), (1, 3, 32), (0, 1, 16)], sregs=[sT2])
    A(f"v_mov_b32 {v(vSWo)}, {v(vSW)}")
    A(f"v_bfe_u32 {v(vTA)}, {v(vL)}, 4, 1")
    A(f"v_lshlrev_b32 {v(vT0)}, 5, {v(vTA)}")
    A(f"v_xor_b32 {v(vSW)}, {v(vSW)}, {v(vT0)}")
    A(f"v_lshlrev_b32 {v(vT0)}, 6, {v(vTA)}")
    A(f"v_xor_b32 {v(vSWo)}, {v(vSWo)}, {v(vT0)}")
    A(f"v_xor_b32 {v(vSW+1)}, 64, {v(vSW)}")
    A(f"v_xor_b32 {v(vSW+2)}, 0x80, {v(vSW)}")
    A(f"v_xor_b32 {v(vSW+3)}, 0xc0, {v(vSW)}")
    A(f"v_xor_b32 {v(vSWo+1)}, 0x80, {v(vSWo)}")
    A(f"s_lshl_b32 {s(sT3)}, {s(sWAVE)}, 6")
    lane_expr(A, vTRb, vL, [(2, 1, 256 + 32), (4, 1, 1024 + 64), (5, 1, 2048), (3, 1, 4096 + 128), (0, 2, 8)])
    A(f"v_xor_b32 {v(vTRb)}, {s(sT3)}, {v(vTRb)}")
    A(f"v_add_u32 {v(vTRb)}, {s(sT2)}, {v(vTRb)}")
    lane_expr(A, vTRo, vL, [(2, 1, 256 + 64), (4, 1, 4096 + 128), (5, 1, 1024), (3, 1, 32), (0, 2, 8)], sregs=[sT2])
    A(f"s_lshl_b32 {s(sT0)}, {s(sWAVE)}, 15")
    A(f"s_add_u32 {s(sT0)}, {s(sT0)}, {WO_OFF}")
    A(f"v_add_u32 {v(vWo)}, {s(sT0)}, {v(vL16)}")
    def checkin():
        vq.wait('st')
        A(f"s_barrier")
        Lci = A.new_label("ci")
        A(f"s_cmp_lg_u32 {s(sWAVE)}, 0")
        A(f"s_cbranch_scc1 {Lci}")
        A(f"s_getreg_b32 {s(sT0)}, hwreg(HW_REG_XCC_ID, 0, 4)")
        A(f"s_mul_i32 {s(sT1)}, {s(sT0)}, {s(sT0)}")
        A(f"s_lshl_b32 {s(sT1)}, {s(sT1)}, 17")
        A(f"s_lshl_b32 {s(sT0)}, {s(sT0)}, 8")
        A(f"s_add_u32 {s(sT0)}, {s(sT0)}, {s(sT1)}")
        A(f"s_add_u32 {s(sT0)}, {s(sT0)}, 1")
        A(f"v_mov_b32 {v(vT0)}, {s(sT0)}")
        A(f"v_mov_b32 {v(vT1)}, 0")
        A(f"s_mov_b64 exec, 1")
        A(f"buffer_atomic_add {v(vT0)}, {v(vT1)}, {s(S_DBG,4)}, 0 offen offset:{D_CHECKIN*4} sc1")
        A(f"s_mov_b64 exec, -1")
        A.label(Lci)

    if not ARMLATE:
        checkin()
        try_issue()
    A(f"s_lshr_b32 {s(sT3)}, {s(sH)}, 2")
    A(f"s_lshl_b32 {s(sT3)}, {s(sT3)}, 10")
    A(f"s_and_b32 {s(sT4)}, {s(sH)}, 1")
    A(f"s_lshl_b32 {s(sT4)}, {s(sT4)}, 9")
    A(f"s_add_u32 {s(sT3)}, {s(sT3)}, {s(sT4)}")
    A(f"s_and_b32 {s(sT4)}, {s(sH)}, 2")
    A(f"s_lshl_b32 {s(sT4)}, {s(sT4)}, 4")
    A(f"s_add_u32 {s(sT3)}, {s(sT3)}, {s(sT4)}")
    lane_expr(A, vMst, vL, [(5, 1, 256), (1, 2, 64), (0, 1, 16), (4, 1, 8)], sregs=[sT3])
    A(f"v_and_b32 {v(vT1)}, 8, {v(vL)}")
    A(f"v_lshlrev_b32 {v(vT1)}, 27, {v(vT1)}")
    A(f"v_add_u32 {v(vMst)}, {v(vMst)}, {v(vT1)}")
    A(f"s_cmp_eq_u32 {s(sWAVE)}, 0")
    Lw0 = A.new_label("w0")
    A(f"s_cbranch_scc1 {Lw0}")
    A(f"v_mov_b32 {v(vMst)}, {v(vMre)}")
    A(f"s_cmp_eq_u32 {s(sWAVE)}, 3")
    A(f"s_cbranch_scc1 {Lw0}")
    A(f"v_mov_b32 {v(vMst)}, {OOB:#x}")
    A.label(Lw0)
    for (dst, bit) in ((vIdx, 2), (vIdxW, 8)):
        A(f"v_mov_b32 {v(dst)}, 0x4444")
        A(f"v_mov_b32 {v(vT0)}, 0xeeee")
        A(f"v_and_b32 {v(vT1)}, {bit}, {v(vL)}")
        A(f"v_cmp_ne_u32 vcc, 0, {v(vT1)}")
        A.nop(2)
        A(f"v_cndmask_b32 {v(dst)}, {v(dst)}, {v(vT0)}, vcc")
    A(f"s_lshl_b32 {s(sT0)}, {s(sWAVE)}, 9")
    lane_expr(A, vQKw, vL, [(0, 4, 16), (4, 2, 4)], sregs=[sT0])
    A(f"s_lshl_b32 {s(sT0)}, {s(sWAVE)}, 10")
    A(f"s_lshr_b32 {s(sT1)}, {s(sWAVE)}, 1")
    A(f"s_lshl_b32 {s(sT1)}, {s(sT1)}, 11")
    A(f"s_add_u32 {s(sT0)}, {s(sT0)}, {s(sT1)}")
    lane_expr(A, vKw, vL, [(0, 4, 32), (4, 2, 8)], const=2048, sregs=[sT0])
    lane_expr(A, vKr, vL, [(5, 1, 512), (4, 1, 128), (2, 2, 32), (0, 2, 8)])
    lane_expr(A, vQKr, vL, [(5, 1, 256), (4, 1, 64), (2, 2, 16), (0, 1, 8)])
    A(f"s_lshl_b32 {s(sT0)}, {s(sWAVE)}, 9")
    lane_expr(A, vOw, vL, [(4, 2, 128), (0, 3, 16)], const=O_OFF, sregs=[sT0])
    A(f"s_lshl_b32 {s(sT0)}, {s(sWAVE)}, 11")
    A(f"s_add_u32 {s(sT0)}, {s(sT0)}, {MEM_OFF}")
    A(f"v_add_u32 {v(vMw)}, {s(sT0)}, {v(vL16)}")
    A(f"s_lshl_b32 {s(sT0)}, {s(sWAVE)}, 16")
    A(f"s_lshl_b32 {s(sT1)}, {s(sH)}, 8")
    lane_expr(A, vPst, vL, [(5, 1, 8192), (0, 4, 16), (4, 1, 8)], sregs=[sT0, sT1])
    A(f"s_lshl_b32 {s(sT0)}, {s(sH)}, 13")
    A(f"v_add_u32 {v(vRed)}, {s(sT0)}, {v(vL16)}")
    A(f"s_and_b32 {s(sT1)}, {s(sWAVE)}, 1")
    A(f"s_lshl_b32 {s(sT1)}, {s(sT1)}, 13")
    A(f"s_lshl_b32 {s(sT0)}, {s(sH)}, 14")
    A(f"s_add_u32 {s(sT0)}, {s(sT0)}, {s(sT1)}")
    A(f"v_lshlrev_b32 {v(vPf)}, 6, {v(vL)}")
    A(f"v_add_u32 {v(vPf)}, {s(sT0)}, {v(vPf)}")
    A(f"s_mov_b32 {s(sMLo)}, -1")
    A(f"s_mov_b32 {s(sMLo+1)}, 0")
    A(f"s_mov_b32 {s(sMHi)}, 0")
    A(f"s_mov_b32 {s(sMHi+1)}, -1")
    A(f"s_mov_b32 {s(sC)}, {f32_hex(SCALE_C):#x}")
    A(f"s_mov_b32 {s(sNC)}, {f32_hex(-SCALE_C):#x}")
    Lsel = A.new_label("sel")
    A(f"s_cmp_lg_u32 {s(sWAVE)}, 0")
    A(f"s_cbranch_scc1 {Lsel}")
    A(f"v_and_b32 {v(vT0)}, 15, {v(vL)}")
    A(f"v_mov_b32 {v(vS0)}, 0x3f80")
    A(f"v_mov_b32 {v(vT1)}, 0x3f800000")
    A(f"v_and_b32 v112, 1, {v(vT0)}")
    A(f"v_cmp_eq_u32 vcc, 1, v112")
    A.nop(2)
    A(f"v_cndmask_b32 {v(vS0)}, {v(vS0)}, {v(vT1)}, vcc")
    A(f"v_lshrrev_b32 {v(vT0)}, 1, {v(vT0)}")
    for i in range(4):
        A(f"v_cmp_eq_u32 vcc, {i}, {v(vT0)}")
        A.nop(2)
        A(f"v_cndmask_b32 {v(vSEL+i)}, 0, {v(vS0)}, vcc")
    A(f"v_bfe_u32 {v(vTagE)}, {v(vL)}, 4, 1")
    A(f"v_xor_b32 {v(vTagE)}, 1, {v(vTagE)}")
    A.label(Lsel)
    for i in range(4):
        A(f"v_mov_b32 {v(vONE+i)}, 0x3f803f80")
    for i in range(1, 4):
        A(f"v_mov_b32 {v(vBM+i)}, 0")

    A(f"s_lshl_b32 {s(sW2k)}, {s(sWAVE)}, 11")
    A(f"s_mov_b32 {s(sSlotP1)}, {WS_P + 16384}")
    A(f"s_mov_b32 {s(sPc2)}, {WS_P + 32768}")
    A(f"s_mov_b32 {s(sPc3)}, {WS_P + 49152}")
    A(f"s_mov_b32 {s(sSlotP4)}, {WS_P + 4096}")
    A(f"s_and_b32 {s(sTag)}, {s(sH)}, 1")
    A(f"s_xor_b32 {s(sTag)}, {s(sTag)}, 1")
    A(f"s_lshl_b32 {s(sT5)}, {s(sH)}, 7")
    A(f"s_add_u32 {s(sT5)}, {s(sT5)}, {WS_KVF:#x}")
    A(f"s_cmp_ge_u32 {s(sWAVE)}, 2")
    A(f"s_mov_b32 {s(sT0)}, {OOB:#x}")
    A(f"s_mov_b32 {s(sPf)}, {WS_KX + 0x80000:#x}")
    A(f"s_cselect_b32 {s(sPf)}, {s(sPf)}, {s(sT0)}")
    A(f"s_add_u32 {s(sM0K)}, {s(sW2k)}, {KX_OFF}")
    A(f"s_lshl_b32 {s(sKn)}, {s(sH)}, 14")
    A(f"s_add_u32 {s(sKn)}, {s(sKn)}, {s(sW2k)}")
    A(f"s_add_u32 {s(sKn)}, {s(sKn)}, {WS_KX:#x}")
    A(f"s_add_u32 {s(sM0V)}, {s(sW2k)}, {VX_OFF}")
    A(f"s_lshl_b32 {s(sKV)}, {s(sH)}, 14")
    A(f"s_add_u32 {s(sKV)}, {s(sKV)}, {s(sW2k)}")
    A(f"s_add_u32 {s(sKV)}, {s(sKV)}, {WS_KX:#x}")
    A(f"s_lshl_b32 {s(sKM)}, {s(sH)}, 12")
    A(f"s_add_u32 {s(sKM)}, {s(sKM)}, {WS_KM:#x}")
    A(f"s_mov_b32 {s(sJ4)}, 8")
    A(f"s_mov_b32 {s(sCn)}, 1")
    A(f"s_mov_b32 {s(sNeed)}, 1")
    for b, u in enumerate(units):
        assert st_['issued'] > b, "loader deadlock"
        if EARLY and b == len(units) - 1:
            assert st_.get('early')
            early_k()
        vq.wait(id(u))
        A(f"s_barrier")
        if u['kind'] == 'qkv':
            for k in range(8):
                A(f"ds_write_b128 {v(vSW + (k & 1) + 2 * (k >> 2))}, {reg(u['raw'][k], 4)} offset:{k * 1024}")
            A(f"s_waitcnt lgkmcnt(0)")
            A(f"s_barrier")
            x = u['x']
            for i in range(4):
                for t_ in range(2):
                    r_, fin = u['res'][2 * i + t_]
                    A(f"v_xor_b32 {v(vTA + (t_ & 1))}, {(i << 13) | (t_ << 5):#x}, {v(vTRb)}")
                    for q0 in range(2):
                        A(f"ds_read_b64_tr_b16 {reg(off(r_, 2 * q0), 2)}, {v(vTA + (t_ & 1))} offset:{512 * q0}")
            A(f"s_waitcnt lgkmcnt(0)")
            for (r_, fin) in u['res']:
                if fin is not None:
                    A(f"ds_write_b128 {v(vWo)}, {reg(r_, 4)} offset:{fin}")
        else:
            ks = u['ks']
            for k in range(8):
                A(f"ds_write_b128 {v(vSWo + (k >> 2))}, {reg(u['raw'][k], 4)} offset:{k * 1024}")
            base = u['raw'][0][1]
            fins = []
            for cg in range(4):
                io = wo_ops.index((cg, ks))
                dst = WORR[io] if io < 8 else ('v', base + 8 * cg)
                A(f"v_xor_b32 {v(vTA + (cg & 1))}, {cg << 6:#x}, {v(vTRo)}")
                for i in range(4):
                    A(f"ds_read_b64_tr_b16 {reg(off(dst, 2 * i), 2)}, {v(vTA + (cg & 1))} offset:{(8 * (i >> 1) + 2 * (i & 1)) * 256}")
                if io >= 8:
                    fins.append((dst, io * 2048))
            A(f"s_waitcnt lgkmcnt(0)")
            for (dst, o) in fins:
                A(f"ds_write_b128 {v(vWo)}, {reg(dst, 4)} offset:{o}")
                A(f"ds_write_b128 {v(vWo)}, {reg(off(dst, 4), 4)} offset:{o + 1024}")
        if id(u) in held:
            kind, tmp = held[id(u)]
            A(f"s_waitcnt lgkmcnt(0)")
            if kind == 'pool':
                busy.difference_update(tmp + 8 * j for j in range(4))
            else:
                busy.discard(tmp)
        if ARMLATE and b == opts.get('cipos', 1):
            checkin()
        if opts.get('prof') and not opts.get('cprof') and b in (0, 3, 7, 11):
            stamp(A, {0: 4, 3: 5, 7: 6, 11: 7}[b])
        try_issue()
    A("s_waitcnt lgkmcnt(0)")
    stamp(A, 2) if not opts.get('cprof') else None
    A(f"s_barrier")
    if not EARLY:
        gen_late_start(A, opts, vL)
    else:
        Lkok = A.new_label("kok")
        A(f"s_cmp_eq_u32 {s(sKok)}, 1")
        A(f"s_cbranch_scc1 {Lkok}")
        kv_polls(A)
        A(f"buffer_load_dwordx4 {v(vEK,4)}, {v(vL16)}, {s(S_WS,4)}, {s(sKn)} offen")
        A(f"buffer_load_dwordx4 {v(vEK+4,4)}, {v(vL16)}, {s(S_WS,4)}, {s(sKn)} offen offset:1024")
        A.label(Lkok)
        A(f"s_waitcnt vmcnt(0)")
        A(f"ds_write_b128 {v(vMw)}, {v(vEM,4)}")
        A(f"ds_write_b128 {v(vMw)}, {v(vEM+4,4)} offset:1024")
        for i in range(4):
            A(f"v_mov_b64 {v(X+24+2*i,2)}, {v(vEM+2*i,2)}")
        A(f"v_readfirstlane_b32 {s(sT4)}, {v(vEC)}")
        A(f"ds_write_b128 {v(vMw)}, {v(vEK,4)} offset:{KX_OFF - MEM_OFF}")
        A(f"ds_write_b128 {v(vMw)}, {v(vEK+4,4)} offset:{KX_OFF - MEM_OFF + 1024}")
        for i in range(16):
            A(f"v_mov_b32 {v(ACC+i)}, 0")
        for i in range(8):
            A(f"v_mov_b32 {v(Y+24+i)}, 0")
        fb_consts(A)
        Lcok = A.new_label("cok")
        A(f"s_and_b32 {s(sT0)}, {s(sT4)}, 0xff")
        A(f"s_cmp_ge_u32 {s(sT0)}, 32")
        A(f"s_cbranch_scc1 {Lcok}")
        A(f"v_mov_b32 {v(vT1)}, 0")
        A(f"s_mov_b32 {s(sT2)}, {D_CHECKIN*4}")
        A(f"s_mov_b32 {s(sT3)}, 0")
        wait_byte(A, vFlag, vT1, sT2, sT3, 32, "ci", sleep=1)
        A(f"buffer_load_dword {v(vFlag)}, {v(vT1)}, {s(S_DBG,4)}, 0 offen offset:{D_CHECKIN*4} sc1")
        A(f"s_waitcnt vmcnt(0)")
        A(f"v_readfirstlane_b32 {s(sT4)}, {v(vFlag)}")
        A.label(Lcok)
        A(f"s_getreg_b32 {s(sT0)}, hwreg(HW_REG_XCC_ID, 0, 4)")
        A(f"s_mul_i32 {s(sT1)}, {s(sT0)}, {s(sT0)}")
        A(f"s_lshl_b32 {s(sT1)}, {s(sT1)}, 22")
        A(f"s_lshl_b32 {s(sT0)}, {s(sT0)}, 13")
        A(f"s_add_u32 {s(sT0)}, {s(sT0)}, {s(sT1)}")
        A(f"s_add_u32 {s(sT0)}, {s(sT0)}, 32")
        A(f"s_cmp_eq_u32 {s(sT0)}, {s(sT4)}")
        A(f"s_cselect_b32 {s(sFastF)}, 1, 0")
        A(f"s_mov_b32 m0, {s(sM0K)}")
    A(f"s_mov_b32 {s(sS)}, 0")
    A(f"s_waitcnt vmcnt(0) lgkmcnt(0)")
    A(f"s_barrier")
    stamp(A, 3) if not opts.get('cprof') else None
    if opts.get('cprof'):
        A(f"s_mov_b32 {s(sCP0)}, 0")
        A(f"s_mov_b32 {s(sCP1)}, 0")
    for k, r_ in ((1, vT0), (2, vT1), (3, vS0)):
        A(f"v_xor_b32 {v(r_)}, {k << 11:#x}, {v(vMw)}")
    A(f"s_cmp_eq_u32 {s(sFastF)}, 1")
    if opts.get('forceslow'):
        A(f"s_branch L_own1_s")
    A(f"s_cbranch_scc0 L_own1_s")
    A(f"s_branch L_own1_f")
    gen_step(A, True, opts)
    gen_step(A, False, opts)


def G_tr(A, vD, vL, kind, base_sreg):
    tr_lane_addr(A, vD, vL, vT0, vS0, kind, base_sreg=base_sreg)
```

```python
from dsl import *
import gen as G
from gen import *
from gen_chain2 import f32_hex, LOG2E


def gen_out(A, opts):
    A.comment("==== role OUT ====")
    sPar, sSh, sC_, sSeg, sNext, sDelta, sOff, sShf, sBlk, sCnt, sSO = 44, 45, 46, 47, 48, 49, 50, 51, 52, 53, 54
    vWG, vST, vTR, vHst = 5, 6, 7, 8
    ACC = 64
    EP = 112
    xg = XG(A, sDelta)
    vL, vL16, vZero, vTmp, vT1, vT2 = xg.vL, xg.vL16, xg.vZero, xg.vTmp, xg.vT1, xg.vT2
    A(f"s_sub_u32 {s(sPar)}, {s(sXCD)}, 1")
    A(f"s_lshr_b32 {s(sSh)}, {s(sIDX)}, 4")
    A(f"s_and_b32 {s(sC_)}, {s(sIDX)}, 15")
    xg.setup()
    if opts.get('opf'):
        mats = {1: [P_WQ], 2: [P_WQ, P_WK], 3: [P_WQ, P_WK, P_WV], 4: [P_WK, P_WV, P_WQ], 5: [P_WQ, P_WV], 6: [P_WK, P_WV, P_WQ, P_WO], 7: [P_WK, P_WV], 8: [P_WV, P_WQ, P_WO], 9: [P_WK, P_WV, P_WO, P_WQ]}[opts['opf']]
        A(f"s_lshl_b32 {s(sT0)}, {s(sPar)}, 5")
        A(f"s_add_u32 {s(sT0)}, {s(sT0)}, {s(sIDX)}")
        A(f"s_lshl_b32 {s(sT0)}, {s(sT0)}, 2")
        A(f"s_add_u32 {s(sT0)}, {s(sT0)}, {s(sWAVE)}")
        A(f"s_lshl_b32 {s(sT0)}, {s(sT0)}, 14")
        for P in mats:
            mk_srd(A, S_D, P, 512 * 8192)
            for k in range(16):
                if k and k % 4 == 0:
                    A(f"s_add_u32 {s(sT0)}, {s(sT0)}, 4096")
                A(f"buffer_load_dwordx4 v[252:255], {v(vL16)}, {s(S_D,4)}, {s(sT0)} offen offset:{(k % 4) * 1024}")
            A(f"s_sub_u32 {s(sT0)}, {s(sT0)}, {3 * 4096}")
    STG = 80 * 1024
    A(f"s_mul_i32 {s(sT2)}, {s(sWAVE)}, {2*STG_BUF}")
    A(f"s_add_u32 {s(sT2)}, {s(sT2)}, {STG}")
    stage_lane_addr(A, vST, vL, vT1, sT2)
    Lph2 = A.new_label("out_ph2")

    def wait_wdone(tag):
        L = A.new_label("wd" + tag)
        A(f"s_cmp_lg_u32 {s(sWAVE)}, 0")
        A(f"s_cbranch_scc1 {L}")
        A(f"s_mov_b32 {s(sOff)}, {D_WDONE*4}")
        A(f"s_mov_b32 {s(sShf)}, 0")
        wait_byte(A, vTmp, vZero, sOff, sShf, opts.get('wdn', 32), "wd" + tag, sleep=8)
        A.label(L)
        A(f"s_barrier")
    if opts.get('odelay') == 1:
        wait_wdone("a")
    A(f"s_cmp_gt_u32 {s(sC_)}, 10")
    A(f"s_cbranch_scc1 {Lph2}")
    mk_srd(A, S_A, P_W1, 512 * 2752)
    mk_srd(A, S_B, P_GATE, 1024)
    A(f"s_lshl_b32 {s(sBlk)}, {s(sC_)}, 2")
    A(f"s_add_u32 {s(sBlk)}, {s(sBlk)}, {s(sWAVE)}")
    A(f"s_lshl_b32 {s(sSeg)}, {s(sSh)}, 1")
    A(f"s_add_u32 {s(sSeg)}, {s(sSeg)}, {s(sPar)}")
    xg.issue_x(sSeg)
    A(f"s_waitcnt vmcnt(0)")
    xg.write_x()
    tr_lane_addr(A, vTR, vL, vT1, vT2, 'k16', base_sreg=sT2)
    Lgate = A.new_label("gatew")
    Lwdone = A.new_label("wdone")
    A(f"s_cmp_eq_u32 {s(sBlk)}, 43")
    A(f"s_cbranch_scc1 {Lgate}")
    raw_lane_off(A, vWG, vL, vT1, 2752)
    A(f"s_lshl_b32 {s(sT0)}, {s(sBlk)}, 6")
    A(f"v_add_u32 {v(vWG)}, {s(sT0)}, {v(vWG)}")
    blocks = []
    for b in range(16):
        blocks.append(dict(srd=S_A, voff=vWG, soff=[(32 * b) * 2752, (32 * b + 16) * 2752], raw=('a', 8 * b), dst=('a', 8 * b),
                           vtr=vTR, imm=TR_IMM['k16']))
    load_blocks(A, blocks, vST, window=16)
    A(f"s_branch {Lwdone}")
    A.label(Lgate)
    A(f"v_lshrrev_b32 {v(vWG)}, 5, {v(vL)}")
    A(f"v_lshlrev_b32 {v(vWG)}, 4, {v(vWG)}")
    A(f"v_and_b32 {v(vT1)}, 31, {v(vL)}")
    A(f"v_lshlrev_b32 {v(vT1)}, 12, {v(vT1)}")
    A(f"v_add_u32 {v(vWG)}, {v(vWG)}, {v(vT1)}")
    for kk in range(32):
        A(f"buffer_load_dwordx4 {a(4*kk,4)}, {v(vWG)}, {s(S_B,4)}, 0 offen offset:{kk*32}")
    A(f"s_waitcnt vmcnt(0)")
    A.label(Lwdone)
    xg.after_weights()
    A(f"s_lshl_b32 {s(sT0)}, {s(sBlk)}, 10")
    lane_expr(A, vHst, vL, [(4, 1, 43 * 1024), (5, 1, 256), (0, 4, 16)], sregs=[sT0])
    Lloop = A.new_label("ffn_loop")
    A.label(Lloop)
    A(f"s_add_u32 {s(sNext)}, {s(sSeg)}, 4")
    xg.issue_x(sNext)

    def mf(kk, f):
        c = "0" if kk == 0 else v(ACC, 16)
        A(f"v_mfma_f32_32x32x16_bf16 {v(ACC,16)}, {a(4*kk,4)}, {f}, {c}")
    xg.body(mf, wpos=opts.get('fwpos', 9))
    A.nop(12)
    Lge = A.new_label("gate_ep")
    Lepd = A.new_label("ep_done")
    A(f"s_cmp_eq_u32 {s(sBlk)}, 43")
    A(f"s_cbranch_scc1 {Lge}")
    A(f"s_mov_b32 {s(sT0)}, {f32_hex(-LOG2E):#x}")
    T = 80
    for i in range(16):
        A(f"v_mul_f32 {v(T+i)}, {s(sT0)}, {v(ACC+i)}")
    for i in range(16):
        A(f"v_exp_f32 {v(T+i)}, {v(T+i)}")
    for i in range(16):
        A(f"v_add_f32 {v(T+i)}, 1.0, {v(T+i)}")
    for i in range(16):
        A(f"v_rcp_f32 {v(T+i)}, {v(T+i)}")
    for i in range(16):
        A(f"v_mul_f32 {v(ACC+i)}, {v(ACC+i)}, {v(T+i)}")
    for i in range(8):
        A(f"v_cvt_pk_bf16_f32 {v(EP+i)}, {v(ACC+2*i)}, {v(ACC+2*i+1)}")
    A(f"s_mul_i32 {s(sT0)}, {s(sSeg)}, {HX_STRIDE}")
    A(f"s_add_u32 {s(sT0)}, {s(sT0)}, {WS_HX:#x}")
    for c in range(2):
        A(f"buffer_store_dwordx4 {v(EP+4*c,4)}, {v(vHst)}, {s(S_WS,4)}, {s(sT0)} offen offset:{c*512} sc1")
    A(f"s_branch {Lepd}")
    A.label(Lge)
    A(f"s_mov_b32 {s(sT0)}, {f32_hex(-LOG2E):#x}")
    A(f"v_mul_f32 {v(vT1)}, {s(sT0)}, {v(ACC)}")
    A(f"v_exp_f32 {v(vT1)}, {v(vT1)}")
    A.nop(1)
    A(f"v_add_f32 {v(vT1)}, 1.0, {v(vT1)}")
    A(f"v_rcp_f32 {v(vT1)}, {v(vT1)}")
    A(f"v_lshlrev_b32 {v(vT2)}, 2, {v(vL)}")
    A(f"s_lshl_b32 {s(sT0)}, {s(sSeg)}, 7")
    A(f"s_add_u32 {s(sT0)}, {s(sT0)}, {WS_G:#x}")
    A(f"s_mov_b64 exec, 0xffffffff")
    A(f"buffer_store_dword {v(vT1)}, {v(vT2)}, {s(S_WS,4)}, {s(sT0)} offen sc1")
    A(f"s_mov_b64 exec, -1")
    A.label(Lepd)
    xg.toggle()
    A(f"s_waitcnt lgkmcnt(0)")
    A(f"s_barrier")
    A(f"s_mov_b32 {s(sSeg)}, {s(sNext)}")
    A(f"s_cmp_lt_u32 {s(sSeg)}, 64")
    A(f"s_cbranch_scc1 {Lloop}")
    A(f"s_waitcnt vmcnt(0)")
    A(f"s_barrier")
    Lnf = A.new_label("ffn_nf")
    A(f"s_cmp_lg_u32 {s(sWAVE)}, 0")
    A(f"s_cbranch_scc1 {Lnf}")
    A(f"s_lshl_b32 {s(sOff)}, {s(sPar)}, 2")
    A(f"s_add_u32 {s(sOff)}, {s(sOff)}, {D_FFN*4}")
    A(f"s_mov_b32 {s(sShf)}, 0")
    signal_byte(A, None, vZero, sOff, sShf, vTmp)
    A.label(Lnf)
    A.label(Lph2)
    if opts.get('odelay') == 2:
        wait_wdone("b")
    stamp(A, 1)
    mk_srd(A, S_A, P_WO, 4096 * 1024)
    mk_srd(A, S_B, P_W2, 1376 * 1024)
    mk_srd(A, S_C, P_OUT, 2048 * 1024)
    vWG2, vTR2 = 8, 9
    raw_lane_off(A, vWG, vL, vT1, 1024)
    A(f"s_lshl_b32 {s(sT0)}, {s(sC_)}, 6")
    A(f"v_add_u32 {v(vWG)}, {s(sT0)}, {v(vWG)}")
    A(f"s_mul_i32 {s(sT0)}, {s(sWAVE)}, {11*32*1024}")
    A(f"v_add_u32 {v(vWG2)}, {s(sT0)}, {v(vWG)}")
    A(f"s_lshl_b32 {s(sT0)}, {s(sWAVE)}, 20")
    A(f"v_add_u32 {v(vWG)}, {s(sT0)}, {v(vWG)}")
    A(f"s_mul_i32 {s(sT2)}, {s(sWAVE)}, {2*STG_BUF}")
    A(f"s_add_u32 {s(sT2)}, {s(sT2)}, {STG}")
    tr_lane_addr(A, vTR, vL, vT1, vT2, 'out_wo', base_sreg=sT2)
    tr_lane_addr(A, vTR2, vL, vT1, vT2, 'out_w2', base_sreg=sT2)
    blocks = []
    for b in range(11):
        blocks.append(dict(srd=S_B, voff=vWG2, soff=[(32 * b) * 1024, (32 * b + 16) * 1024], raw=('v', 128 + 8 * b), dst=('v', 128 + 8 * b),
                           vtr=vTR2, imm=TR_IMM['out_w2']))
    for b in range(32):
        blocks.append(dict(srd=S_A, voff=vWG, soff=[(32 * b) * 1024, (32 * b + 16) * 1024], raw=('a', 8 * b), dst=('a', 8 * b),
                           vtr=vTR, imm=TR_IMM['out_wo']))
    load_blocks(A, blocks, vST, window=31)
    stamp(A, 2)
    A(f"s_lshl_b32 {s(sOff)}, {s(sPar)}, 2")
    A(f"s_add_u32 {s(sOff)}, {s(sOff)}, {D_FFN*4}")
    A(f"s_mov_b32 {s(sShf)}, 0")
    wait_byte(A, vTmp, vZero, sOff, sShf, 22, "ffn", sleep=4)
    A(f"s_mov_b32 {s(sOff)}, {D_CHECKIN*4}")
    wait_byte(A, vTmp, vZero, sOff, sShf, 32, "oci", sleep=4)
    A(f"s_barrier")
    vOF = 11
    A(f"v_and_b32 {v(vOF)}, 31, {v(vL)}")
    A(f"v_lshlrev_b32 {v(vOF)}, 2, {v(vOF)}")
    stamp(A, 3)
    aA, aB = 16, 24
    bufs = [32 + 4 * i for i in range(24)] + [216 + 4 * i for i in range(10)]
    vRw, vRr, vOut, vG = 5, 6, 7, 8
    RED = 0
    A(f"s_lshl_b32 {s(sT0)}, {s(sWAVE)}, 12")
    A(f"v_add_u32 {v(vRw)}, {s(sT0)}, {v(vL16)}")
    A(f"s_and_b32 {s(sT0)}, {s(sWAVE)}, 1")
    A(f"s_lshl_b32 {s(sT0)}, {s(sT0)}, 10")
    A(f"v_add_u32 {v(vRr)}, {s(sT0)}, {v(vL16)}")
    A(f"s_lshl_b32 {s(sT0)}, {s(sSh)}, 14")
    A(f"s_lshl_b32 {s(sT1)}, {s(sC_)}, 6")
    A(f"s_add_u32 {s(sT0)}, {s(sT0)}, {s(sT1)}")
    A(f"s_and_b32 {s(sT1)}, {s(sWAVE)}, 1")
    A(f"s_lshl_b32 {s(sT1)}, {s(sT1)}, 5")
    A(f"s_add_u32 {s(sT0)}, {s(sT0)}, {s(sT1)}")
    lane_expr(A, vOut, vL, [(0, 4, 1024), (4, 2, 8)], sregs=[sT0])
    A(f"s_lshl_b32 {s(sT0)}, {s(sSh)}, 6")
    lane_expr(A, vG, vL, [(0, 4, 4)], sregs=[sT0])
    A(f"s_mov_b32 {s(sSeg)}, {s(sPar)}")
    Lm = A.new_label("out_loop")
    A.label(Lm)
    A(f"s_mul_i32 {s(sT2)}, {s(sSeg)}, {HX_STRIDE}")
    A(f"s_mul_i32 {s(sT3)}, {s(sSh)}, {43*1024}")
    A(f"s_add_u32 {s(sT2)}, {s(sT2)}, {s(sT3)}")
    A(f"s_mul_i32 {s(sT3)}, {s(sWAVE)}, {11*1024}")
    A(f"s_add_u32 {s(sT2)}, {s(sT2)}, {s(sT3)}")
    A(f"s_add_u32 {s(sT2)}, {s(sT2)}, {WS_HX:#x}")
    vq = Q(A, "vmcnt", 63)
    for b in range(11):
        if b in (4, 8):
            A(f"s_add_u32 {s(sT2)}, {s(sT2)}, 4096")
        if b == 10:
            A(f"s_cmp_eq_u32 {s(sWAVE)}, 3")
            A(f"s_cselect_b32 {s(sT3)}, 1024, 0")
            A(f"s_sub_u32 {s(sT2)}, {s(sT2)}, {s(sT3)}")
        vq.issue(('H', b), f"buffer_load_dwordx4 {v(bufs[b],4)}, {v(vL16)}, {s(S_WS,4)}, {s(sT2)} offen offset:{(b%4)*1024}")
    A(f"s_lshl_b32 {s(sT2)}, {s(sSeg)}, 7")
    A(f"s_add_u32 {s(sT2)}, {s(sT2)}, {WS_G:#x}")
    vq.issue('g', f"buffer_load_dword v9, {v(vG)}, {s(S_WS,4)}, {s(sT2)} offen")
    A(f"s_lshl_b32 {s(sOff)}, {s(sSeg)}, 7")
    A(f"s_add_u32 {s(sOff)}, {s(sOff)}, {WS_OF:#x}")
    Lw = A.new_label("ow")
    Lp = A.new_label("op")
    A(f"s_cmp_lg_u32 {s(sWAVE)}, 0")
    A(f"s_cbranch_scc1 {Lw}")
    A(f"s_cmp_lg_u32 {s(sDEAD)}, 0")
    A(f"s_cbranch_scc1 {Lw}")
    A(f"s_mov_b32 {s(sShf)}, 0")
    A.label(Lp)
    A(f"buffer_load_dword v10, {v(vOF)}, {s(S_WS,4)}, {s(sOff)} offen sc1")
    A(f"s_waitcnt vmcnt(0)")
    A(f"v_cmp_ne_u32 vcc, 0, v10")
    A(f"s_add_u32 {s(sShf)}, {s(sShf)}, 1")
    A(f"s_nop 0")
    A(f"s_cmp_eq_u64 vcc, -1")
    A(f"s_cbranch_scc1 {Lw}")
    A(f"s_sleep 4")
    A(f"s_cmp_lt_u32 {s(sShf)}, {SPIN_LIMIT}")
    A(f"s_cbranch_scc1 {Lp}")
    A(f"s_mov_b32 {s(sDEAD)}, 1")
    A.label(Lw)
    A(f"s_barrier")
    A(f"s_lshl_b32 {s(sSO)}, {s(sSeg)}, 5")
    A(f"s_lshl_b32 {s(sT3)}, {s(sWAVE)}, 3")
    A(f"s_add_u32 {s(sSO)}, {s(sSO)}, {s(sT3)}")
    A(f"s_lshl_b32 {s(sSO)}, {s(sSO)}, 13")
    A(f"s_lshl_b32 {s(sT3)}, {s(sSh)}, 12")
    A(f"s_add_u32 {s(sSO)}, {s(sSO)}, {s(sT3)}")
    A(f"s_add_u32 {s(sSO)}, {s(sSO)}, {WS_OX:#x}")

    obuf = {}
    def issue_o(b, buf):
        A(f"s_add_u32 {s(sT3)}, {s(sSO)}, {(b>>2)*8192}")
        vq.issue(('O', b), f"buffer_load_dwordx4 {v(buf,4)}, {v(vL16)}, {s(S_WS,4)}, {s(sT3)} offen offset:{(b&3)*1024}")
        obuf[b] = buf
    nfree = len(bufs) - 11
    for b in range(nfree):
        issue_o(b, bufs[11 + b])
    nxt = nfree
    for b in range(11):
        vq.wait(('H', b))
        for ct in range(2):
            c = "0" if b == 0 else v(aB + 4 * ct, 4)
            A(f"v_mfma_f32_16x16x32_bf16 {v(aB+4*ct,4)}, {v(128+8*b+4*ct,4)}, {v(bufs[b],4)}, {c}")
        if nxt < 32:
            issue_o(nxt, bufs[b])
            nxt += 1
    for b in range(32):
        vq.wait(('O', b))
        for ct in range(2):
            c = "0" if b == 0 else v(aA + 4 * ct, 4)
            A(f"v_mfma_f32_16x16x32_bf16 {v(aA+4*ct,4)}, {a(8*b+4*ct,4)}, {v(obuf[b],4)}, {c}")
    A.nop(8)
    A(f"ds_write_b128 {v(vRw)}, {v(aA,4)} offset:0")
    A(f"ds_write_b128 {v(vRw)}, {v(aA+4,4)} offset:1024")
    A(f"ds_write_b128 {v(vRw)}, {v(aB,4)} offset:2048")
    A(f"ds_write_b128 {v(vRw)}, {v(aB+4,4)} offset:3072")
    A(f"s_waitcnt lgkmcnt(0)")
    A(f"s_barrier")
    Lsk = A.new_label("osk")
    A(f"s_cmp_gt_u32 {s(sWAVE)}, 1")
    A(f"s_cbranch_scc1 {Lsk}")
    R = 32
    for w in range(4):
        A(f"ds_read_b128 {v(R+8*w,4)}, {v(vRr)} offset:{w*4096}")
        A(f"ds_read_b128 {v(R+8*w+4,4)}, {v(vRr)} offset:{w*4096+2048}")
    A(f"s_waitcnt lgkmcnt(0)")
    for r in range(4):
        A(f"v_add_f32 {v(R+r)}, {v(R+r)}, {v(R+8+r)}")
        A(f"v_add_f32 {v(R+16+r)}, {v(R+16+r)}, {v(R+24+r)}")
        A(f"v_add_f32 {v(R+4+r)}, {v(R+4+r)}, {v(R+12+r)}")
        A(f"v_add_f32 {v(R+20+r)}, {v(R+20+r)}, {v(R+28+r)}")
    for r in range(4):
        A(f"v_add_f32 {v(R+r)}, {v(R+r)}, {v(R+16+r)}")
        A(f"v_add_f32 {v(R+4+r)}, {v(R+4+r)}, {v(R+20+r)}")
    for r in range(4):
        A(f"v_sub_f32 {v(R+r)}, {v(R+r)}, {v(R+4+r)}")
    for r in range(4):
        A(f"v_fma_f32 {v(R+r)}, {v(R+r)}, v9, {v(R+4+r)}")
    A(f"v_cvt_pk_bf16_f32 {v(R+8)}, {v(R)}, {v(R+1)}")
    A(f"v_cvt_pk_bf16_f32 {v(R+9)}, {v(R+2)}, {v(R+3)}")
    A(f"s_lshl_b32 {s(sT2)}, {s(sSeg)}, 15")
    A(f"buffer_store_dwordx2 {v(R+8,2)}, {v(vOut)}, {s(S_C,4)}, {s(sT2)} offen" + ["", " sc1", " sc0 sc1", " nt", " sc1 nt"][opts.get('opol', 0)])
    A.label(Lsk)
    A(f"s_add_u32 {s(sSeg)}, {s(sSeg)}, 2")
    A(f"s_cmp_lt_u32 {s(sSeg)}, 64")
    A(f"s_cbranch_scc1 {Lm}")
    A(f"s_waitcnt vmcnt(0)")
```

```python
import sys
from dsl import *

KNAME = "gated_mix__memory_aug_recurrent_mem_tr__dense_activation_silu__prompt_kernel"

WS_P = 0
WS_M = 0x100000
WS_KVF = 0x110000
WS_OF = 0x120000
WS_KM = 0x200000
WS_KX = 0x1000000
KVSTR = 16384
WS_QX = 0x3000000
WS_OX = 0x4000000
WS_HX = 0x5000000
HX_STRIDE = 2 * 43 * 1024
WS_G = 0x5800000
WS_T = 0x5810000
WS_SIZE = 0x5860000

D_CHECKIN = 0
D_XCCMASK = 1
D_FFN = 2
D_ERR = 4
D_WDONE = 5
D_KV = 8
D_O = 24
D_PROG = 40

S_WS, S_DBG, S_X, S_A, S_B, S_C, S_D = 4, 8, 12, 16, 20, 24, 28
sWAVE, sIDX, sXCD = 32, 33, 34
sT0, sT1, sT2, sT3, sT4, sT5 = 35, 36, 37, 38, 39, 40
sDEAD = 41
sEX = 42
P_X, P_MEM0, P_WQ, P_WK, P_WV, P_WO, P_W1, P_W2, P_GATE, P_OUT, P_DBG, P_WS = 64, 66, 68, 70, 72, 74, 80, 82, 84, 86, 88, 90
SPIN_LIMIT = 1 << 17

LDS_BYTES = 160 * 1024


def mk_srd(A, d, p, size):
    A(f"s_mov_b32 {s(d)}, {s(p)}")
    A(f"s_mov_b32 {s(d+1)}, {s(p+1)}")
    A(f"s_mov_b32 {s(d+2)}, {size:#x}")
    A(f"s_mov_b32 {s(d+3)}, 0x00020000")


def wait_byte(A, vT, vZero, s_off, s_shift, target, tag, s_tmp=sT0, s_cnt=sT1, target_is_sreg=False, sleep=2):
    L = A.new_label("w" + tag)
    Ld = A.new_label("wd" + tag)
    A(f"s_mov_b32 {s(s_cnt)}, 0")
    A(f"s_cmp_lg_u32 {s(sDEAD)}, 0")
    A(f"s_cbranch_scc1 {Ld}")
    A.label(L)
    A(f"buffer_load_dword {v(vT)}, {v(vZero)}, {s(S_DBG,4)}, {s(s_off)} offen sc1")
    A(f"s_waitcnt vmcnt(0)")
    A(f"v_readfirstlane_b32 {s(s_tmp)}, {v(vT)}")
    A(f"s_lshr_b32 {s(s_tmp)}, {s(s_tmp)}, {s(s_shift)}")
    A(f"s_and_b32 {s(s_tmp)}, {s(s_tmp)}, 0xff")
    A(f"s_cmp_ge_u32 {s(s_tmp)}, {s(target) if target_is_sreg else target}")
    A(f"s_cbranch_scc1 {Ld}")
    if sleep:
        A(f"s_sleep {sleep}")
    A(f"s_add_u32 {s(s_cnt)}, {s(s_cnt)}, 1")
    A(f"s_cmp_lt_u32 {s(s_cnt)}, {SPIN_LIMIT}")
    A(f"s_cbranch_scc1 {L}")
    A(f"s_mov_b32 {s(sDEAD)}, 1")
    A.label(Ld)


def signal_byte(A, vOne, vZero, s_off, s_shift, vTmp):
    A(f"s_lshl_b32 {s(sT0)}, 1, {s(s_shift)}")
    A(f"v_mov_b32 {v(vTmp)}, {s(sT0)}")
    A(f"s_mov_b64 {s(sEX,2)}, exec")
    A(f"s_mov_b64 exec, 1")
    A(f"buffer_atomic_add {v(vTmp)}, {v(vZero)}, {s(S_DBG,4)}, {s(s_off)} offen sc1")
    A(f"s_mov_b64 exec, {s(sEX,2)}")


PROF = False
sSTAMP = 92


def stamp(A, i):
    if not PROF:
        return
    A(f"s_memrealtime s[62:63]")
    A(f"s_waitcnt lgkmcnt(0)")
    A(f"s_mov_b32 {s(sSTAMP+i)}, s62")


def stamp_clk(A, i):
    if not PROF:
        return
    A(f"s_memtime s[62:63]")
    A(f"s_waitcnt lgkmcnt(0)")
    A(f"s_mov_b32 {s(sSTAMP+i)}, s62")


def stamp_if_lt(A, i, sreg, limit, clk=False):
    if not PROF:
        return
    L = A.new_label("st")
    A(f"s_cmp_lt_u32 {s(sreg)}, {limit}")
    A(f"s_cbranch_scc0 {L}")
    (stamp_clk if clk else stamp)(A, i)
    A.label(L)


def stamp_flush(A):
    if not PROF:
        return
    A(f"s_lshl_b32 s62, s2, 2")
    A(f"s_add_u32 s62, s62, {s(sWAVE)}")
    A(f"s_lshl_b32 s62, s62, 6")
    A(f"s_add_u32 s62, s62, {WS_T:#x}")
    A(f"v_mov_b32 v1, 0")
    A(f"s_mov_b64 exec, 1")
    for i in range(10):
        A(f"v_mov_b32 v2, {s(sSTAMP+i)}")
        A(f"buffer_store_dword v2, v1, {s(S_WS,4)}, s62 offen offset:{4*i}")
    A(f"s_waitcnt vmcnt(0)")


STG_BUF = 3072


def stage_addr(row):
    return 64 * row + 128 * (row >> 2)


def load_blocks(A, blocks, vST, window, after_first_issue=None, nolds=False):
    n = len(blocks)

    def issue(b):
        blk = blocks[b]
        for k in range(2):
            so = blk['soff'][k]
            A(f"s_mov_b32 {s(sT0)}, {so:#x}")
            if blk.get('sbase') is not None:
                A(f"s_add_u32 {s(sT0)}, {s(sT0)}, {s(blk['sbase'])}")
            A(f"buffer_load_dwordx4 {reg(off(blk['raw'], 4*k), 4)}, {v(blk['voff'])}, {s(blk['srd'],4)}, {s(sT0)} offen")

    issued = 0
    def can_issue(b, done):
        r = blocks[b]['raw']
        for p in range(b):
            if blocks[p]['raw'] == r or blocks[p].get('dst') == r:
                if p >= done:
                    return False
        return True

    while issued < n and issued < window and can_issue(issued, 0):
        issue(issued)
        issued += 1
    if after_first_issue:
        after_first_issue(2 * issued)
    for b in range(n):
        blk = blocks[b]
        assert issued > b, "window deadlock"
        A(f"s_waitcnt vmcnt({2*(issued-b-1)})")
        buf = (b & 1) * STG_BUF
        if not nolds:
            A(f"ds_write_b128 {v(vST)}, {reg(blk['raw'],4)} offset:{buf}")
            A(f"ds_write_b128 {v(vST)}, {reg(off(blk['raw'],4),4)} offset:{buf + stage_addr(16)}")
            for i in range(4):
                A(f"ds_read_b64_tr_b16 {reg(off(blk['dst'],2*i),2)}, {v(blk['vtr'])} offset:{buf + blk['imm'][i]}")
        if blk.get('post'):
            blk['post'](A)
        while issued < n and issued - b - 1 < window and can_issue(issued, b + 1):
            issue(issued)
            issued += 1
    A("s_waitcnt lgkmcnt(0)")


def load_blocks2(A, blocks, vST, window, extra=None, nolds=False, vq=None, upto=None):
    n = len(blocks)
    vq = vq or Q(A, "vmcnt", 63)
    state = dict(issued=0, xi=False, xc=False)

    def issue(b):
        blk = blocks[b]
        for k in range(2):
            A(f"s_mov_b32 {s(sT0)}, {blk['soff'][k]:#x}")
            vq.issue(('B', id(blk)), f"buffer_load_dwordx4 {reg(off(blk['raw'], 4*k), 4)}, {v(blk['voff'])}, {s(blk['srd'],4)}, {s(sT0)} offen")
        state['issued'] += 1
        if extra and b == extra[0]:
            extra[1](vq)
            state['xi'] = True
    while state['issued'] < n and state['issued'] < window:
        issue(state['issued'])
    for b in range(n):
        blk = blocks[b]
        vq.wait(('B', id(blk)))
        if extra and state['xi'] and not state['xc'] and b > extra[0]:
            extra[2](vq)
            state['xc'] = True
        buf = (b & 1) * STG_BUF
        if not nolds:
            A(f"ds_write_b128 {v(vST)}, {reg(blk['raw'],4)} offset:{buf}")
            A(f"ds_write_b128 {v(vST)}, {reg(off(blk['raw'],4),4)} offset:{buf + stage_addr(16)}")
            for i in range(4):
                A(f"ds_read_b64_tr_b16 {reg(off(blk['dst'],2*i),2)}, {v(blk['vtr'])} offset:{buf + blk['imm'][i]}")
        if blk.get('post'):
            blk['post'](A)
        while state['issued'] < n and state['issued'] - b - 1 < window:
            issue(state['issued'])
    if extra and not state['xc']:
        extra[2](vq)
    A("s_waitcnt lgkmcnt(0)")


def tr_lane_addr(A, vD, vL, vT1, vT2, kind, base_sreg=None, base_imm=0):
    A(f"v_lshrrev_b32 {v(vT1)}, 4, {v(vL)}")
    A(f"v_bfe_u32 {v(vT2)}, {v(vL)}, 2, 2")
    A(f"v_and_b32 {v(vD)}, 3, {v(vL)}")
    A(f"v_lshlrev_b32 {v(vD)}, 3, {v(vD)}")

    def add_term(expr_src, mask_shift, mul):
        sh, bits = mask_shift
        A(f"v_bfe_u32 v{TMPX}, {v(expr_src)}, {sh}, {bits}")
        A(f"v_mul_u32_u24 v{TMPX}, {mul}, v{TMPX}")
        A(f"v_add_u32 {v(vD)}, {v(vD)}, v{TMPX}")

    G, r = vT1, vT2
    def sa(row):
        return stage_addr(row)
    if kind == 'chain_qkv':
        add_term(G, (1, 1), sa(8)); add_term(G, (0, 1), sa(4)); add_term(r, (0, 1), sa(1)); add_term(r, (1, 1), 32)
    elif kind == 'chain_wo':
        add_term(G, (0, 1), sa(16)); add_term(G, (1, 1), sa(4)); add_term(r, (0, 1), sa(1)); add_term(r, (1, 1), 32)
    elif kind == 'k16':
        add_term(G, (1, 1), sa(8)); add_term(r, (0, 2), sa(1)); add_term(G, (0, 1), 32)
    elif kind == 'out_wo':
        add_term(G, (0, 2), sa(4)); add_term(r, (0, 2), sa(1))
    elif kind == 'out_w2':
        add_term(G, (1, 1), sa(16)); add_term(G, (0, 1), sa(4)); add_term(r, (0, 2), sa(1))
    else:
        raise ValueError(kind)
    if base_sreg is not None:
        A(f"v_add_u32 {v(vD)}, {s(base_sreg)}, {v(vD)}")
    if base_imm:
        A(f"v_add_u32 {v(vD)}, {base_imm}, {v(vD)}")


TR_IMM = {
    'chain_qkv': [stage_addr(16 * hi + 2 * qq) for hi in range(2) for qq in range(2)],
    'chain_wo': [stage_addr(8 * hi + 2 * qq) for hi in range(2) for qq in range(2)],
    'k16': [stage_addr(16 * kk + 4 * hf) for kk in range(2) for hf in range(2)],
    'out_wo': [stage_addr(16 * hf) + 32 * ct for ct in range(2) for hf in range(2)],
    'out_w2': [stage_addr(8 * hf) + 32 * ct for ct in range(2) for hf in range(2)],
}
TMPX = 15


def stage_lane_addr(A, vD, vL, vT, base_sreg):
    A(f"v_lshrrev_b32 {v(vD)}, 2, {v(vL)}")
    A(f"v_lshlrev_b32 {v(vD)}, 6, {v(vD)}")
    A(f"v_lshrrev_b32 {v(vT)}, 4, {v(vL)}")
    A(f"v_lshlrev_b32 {v(vT)}, 7, {v(vT)}")
    A(f"v_add_u32 {v(vD)}, {v(vD)}, {v(vT)}")
    A(f"v_and_b32 {v(vT)}, 3, {v(vL)}")
    A(f"v_lshlrev_b32 {v(vT)}, 4, {v(vT)}")
    A(f"v_add_u32 {v(vD)}, {v(vD)}, {v(vT)}")
    A(f"v_add_u32 {v(vD)}, {s(base_sreg)}, {v(vD)}")


def raw_lane_off(A, vD, vL, vT, pitch):
    A(f"v_lshrrev_b32 {v(vD)}, 2, {v(vL)}")
    A(f"v_mul_u32_u24 {v(vD)}, {pitch}, {v(vD)}")
    A(f"v_and_b32 {v(vT)}, 3, {v(vL)}")
    A(f"v_lshlrev_b32 {v(vT)}, 4, {v(vT)}")
    A(f"v_add_u32 {v(vD)}, {v(vD)}, {v(vT)}")


def lane_expr(A, vD, vL, terms, const=0, sregs=(), tmp=None):
    tmp = TMPX if tmp is None else tmp
    first = True
    for (sh, bits, mul) in terms:
        dst = vD if first else tmp
        A(f"v_bfe_u32 {v(dst)}, {v(vL)}, {sh}, {bits}")
        if mul != 1:
            A(f"v_mul_u32_u24 {v(dst)}, {mul}, {v(dst)}")
        if not first:
            A(f"v_add_u32 {v(vD)}, {v(vD)}, {v(tmp)}")
        first = False
    if first:
        A(f"v_mov_b32 {v(vD)}, 0")
    if const:
        A(f"v_add_u32 {v(vD)}, {const:#x}, {v(vD)}")
    for sr in sregs:
        A(f"v_add_u32 {v(vD)}, {s(sr)}, {v(vD)}")


class Q:
    def __init__(self, A, name, cap):
        self.A, self.name, self.cap = A, name, cap
        self.ops = []

    def issue(self, tag, text):
        self.A(text)
        self.ops.append(tag)

    def wait(self, tag):
        if tag not in self.ops:
            return
        i = max(j for j, t in enumerate(self.ops) if t == tag)
        n = len(self.ops) - 1 - i
        self.A(f"s_waitcnt {self.name}({min(n, self.cap)})")
        if n <= self.cap:
            self.ops = self.ops[i + 1:]
        else:
            self.ops = self.ops[len(self.ops) - self.cap:]

    def wait_all(self):
        self.A(f"s_waitcnt {self.name}(0)")
        self.ops = []


XBUF = 64 * 528
XB1 = 36864


class XG:
    vL, vL16, vXW, vXR, vZero, vTmp, vT1, vT2 = 1, 2, 3, 4, 10, 11, 12, 13
    XP, XF = 16, 48
    NF = 4

    def __init__(self, A, sDelta):
        self.A, self.sDelta = A, sDelta

    def setup(self):
        A = self.A
        vL, vL16, vXW, vXR, vZero, vT1 = self.vL, self.vL16, self.vXW, self.vXR, self.vZero, self.vT1
        A(f"v_and_b32 {v(vL)}, 63, v0")
        A(f"v_lshlrev_b32 {v(vL16)}, 4, {v(vL)}")
        A(f"v_mov_b32 {v(vZero)}, 0")
        A(f"v_mul_u32_u24 {v(vXW)}, 528, {v(vL)}")
        A(f"s_lshl_b32 {s(sT0)}, {s(sWAVE)}, 7")
        A(f"v_add_u32 {v(vXW)}, {s(sT0)}, {v(vXW)}")
        A(f"v_lshrrev_b32 {v(vXR)}, 5, {v(vL)}")
        A(f"v_mul_u32_u24 {v(vXR)}, 528, {v(vXR)}")
        A(f"v_and_b32 {v(vT1)}, 31, {v(vL)}")
        A(f"v_lshlrev_b32 {v(vT1)}, 4, {v(vT1)}")
        A(f"v_add_u32 {v(vXR)}, {v(vXR)}, {v(vT1)}")

    def issue_x(self, seg_sreg, vq=None):
        A = self.A
        if vq is not None:
            A = lambda x_: (vq.issue('x', x_) if x_.startswith('buffer_load') else self.A(x_))
        A(f"s_lshl_b32 {s(sT0)}, {s(seg_sreg)}, 15")
        A(f"s_lshl_b32 {s(sT1)}, {s(sWAVE)}, 13")
        A(f"s_add_u32 {s(sT0)}, {s(sT0)}, {s(sT1)}")
        for i in range(8):
            if i == 4:
                A(f"s_add_u32 {s(sT0)}, {s(sT0)}, 4096")
            A(f"buffer_load_dwordx4 {v(self.XP+4*i,4)}, {v(self.vL16)}, {s(S_X,4)}, {s(sT0)} offen offset:{(i%4)*1024}")

    def write_x(self):
        for i in range(8):
            self.A(f"ds_write_b128 {v(self.vXW)}, {v(self.XP+4*i,4)} offset:{i*16}")

    def after_weights(self):
        A = self.A
        A(f"s_waitcnt lgkmcnt(0)")
        A(f"s_barrier")
        A(f"s_mov_b32 {s(self.sDelta)}, {XB1}")
        A(f"v_add_u32 {v(self.vXW)}, {s(self.sDelta)}, {v(self.vXW)}")

    def body(self, mfmas, wpos=9):
        A, NF, XF = self.A, self.NF, self.XF

        def rd(kk):
            A(f"ds_read_b128 {v(XF + 4*(kk % NF), 4)}, {v(self.vXR)} offset:{kk*1056}")
        for kk in range(NF - 1):
            rd(kk)
        for kk in range(32):
            if kk + NF - 1 < 32:
                rd(kk + NF - 1)
                A(f"s_waitcnt lgkmcnt({NF-1})")
            else:
                A(f"s_waitcnt lgkmcnt({31-kk})")
            mfmas(kk, v(XF + 4 * (kk % NF), 4))
            if wpos is not None and kk == wpos:
                A(f"s_waitcnt vmcnt(0)")
                self.write_x()
                A(f"s_waitcnt lgkmcnt(0)")

    def toggle(self):
        A = self.A
        A(f"v_add_u32 {v(self.vXR)}, {s(self.sDelta)}, {v(self.vXR)}")
        A(f"s_sub_u32 {s(self.sDelta)}, 0, {s(self.sDelta)}")
        A(f"v_add_u32 {v(self.vXW)}, {s(self.sDelta)}, {v(self.vXW)}")


def gen_hq(A, opts):
    vWG, vST, vTR, vKst, vVst = 5, 6, 7, 8, 9
    ACC = 64
    EP = 112
    sH, sJ, sSeg, sNext, sDelta, sSegOff, sKVoff, sKVsh, sXa = 44, 45, 46, 47, 48, 49, 50, 51, 52
    sCnt, sKVF = 53, 60
    xg = XG(A, sDelta)
    vL, vL16, vZero, vTmp, vT1, vT2, XF = xg.vL, xg.vL16, xg.vZero, xg.vTmp, xg.vT1, xg.vT2, xg.XF
    A(f"s_sub_u32 {s(sT0)}, {s(sXCD)}, 3")
    A(f"s_lshl_b32 {s(sT0)}, {s(sT0)}, 5")
    A(f"s_add_u32 {s(sT0)}, {s(sT0)}, {s(sIDX)}")
    A(f"s_mul_i32 {s(sH)}, {s(sT0)}, 205")
    A(f"s_lshr_b32 {s(sH)}, {s(sH)}, 10")
    A(f"s_mul_i32 {s(sT1)}, {s(sH)}, 5")
    A(f"s_sub_u32 {s(sJ)}, {s(sT0)}, {s(sT1)}")
    mk_srd(A, S_A, P_WQ, 512 * 8192)
    mk_srd(A, S_B, P_WK, 512 * 8192)
    mk_srd(A, S_C, P_WV, 512 * 8192)
    xg.setup()
    A(f"s_mov_b32 {s(sSeg)}, {s(sJ)}")
    raw_lane_off(A, vWG, vL, vT1, 8192)
    A(f"s_lshl_b32 {s(sT0)}, {s(sH)}, 8")
    A(f"s_lshl_b32 {s(sT1)}, {s(sWAVE)}, 6")
    A(f"s_add_u32 {s(sT0)}, {s(sT0)}, {s(sT1)}")
    A(f"v_add_u32 {v(vWG)}, {s(sT0)}, {v(vWG)}")
    STG = 80 * 1024
    A(f"s_mul_i32 {s(sT2)}, {s(sWAVE)}, {2*STG_BUF}")
    A(f"s_add_u32 {s(sT2)}, {s(sT2)}, {STG}")
    stage_lane_addr(A, vST, vL, vT1, sT2)
    tr_lane_addr(A, vTR, vL, vT1, vT2, 'k16', base_sreg=sT2)
    A(f"s_lshl_b32 {s(sT0)}, {s(sWAVE)}, 10")
    lane_expr(A, vKst, vL, [(4, 1, 4096), (5, 1, 256), (0, 4, 16)], sregs=[sT0])
    A(f"s_lshl_b32 {s(sT0)}, {s(sWAVE)}, 11")
    lane_expr(A, vVst, vL, [(4, 1, 1024), (5, 1, 256), (0, 4, 16)], sregs=[sT0])

    def wblocks(srd, dst):
        return [dict(srd=srd, voff=vWG, soff=[(32 * b) * 8192, (32 * b + 16) * 8192], raw=off(dst, 8 * b), dst=off(dst, 8 * b),
                     vtr=vTR, imm=TR_IMM['k16']) for b in range(16)]
    kvb = wblocks(S_B, ('a', 128)) + wblocks(S_C, ('v', 128))
    qb = wblocks(S_A, ('a', 0))
    stamp(A, 1)
    if PROF:
        kvb[15]['post'] = lambda A_: stamp(A_, 6)
        kvb[0]['post'] = lambda A_: stamp(A_, 8)

    def x_issue(vq):
        xg.issue_x(sSeg, vq)

    def x_consume(vq):
        vq.wait('x')
        xg.write_x()
        stamp(A, 5)
    hw = opts.get('hqwin', 10)
    load_blocks2(A, kvb, vST, window=hw, extra=(opts.get('hqxpos', 16), x_issue, x_consume))
    stamp(A, 7)
    xg.after_weights()
    A(f"s_mov_b32 {s(sXa)}, -1")
    A(f"s_mov_b32 {s(sCnt)}, 1")
    A(f"s_lshl_b32 {s(sKVF)}, {s(sH)}, 7")
    A(f"s_lshl_b32 {s(sT0)}, {s(sJ)}, 2")
    A(f"s_add_u32 {s(sKVF)}, {s(sKVF)}, {s(sT0)}")
    A(f"s_add_u32 {s(sKVF)}, {s(sKVF)}, {WS_KVF:#x}")
    A(f"buffer_load_dword v15, {v(vZero)}, {s(S_DBG,4)}, 0 offen offset:{D_CHECKIN*4} sc1")

    def mf_k(kk, f):
        c = lambda base: "0" if kk == 0 else v(base, 16)
        A(f"v_mfma_f32_32x32x16_bf16 {v(ACC+16,16)}, {a(128+4*kk,4)}, {f}, {c(ACC+16)}")

    def mf_v(kk, f):
        c = lambda base: "0" if kk == 0 else v(base, 16)
        A(f"v_mfma_f32_32x32x16_bf16 {v(ACC+32,16)}, {f}, {v(128+4*kk,4)}, {c(ACC+32)}")

    def mf_q(kk, f):
        c = lambda base: "0" if kk == 0 else v(base, 16)
        A(f"v_mfma_f32_32x32x16_bf16 {v(ACC,16)}, {a(4*kk,4)}, {f}, {c(ACC)}")

    def seg_offsets():
        A(f"s_lshl_b32 {s(sSegOff)}, {s(sSeg)}, 5")
        A(f"s_add_u32 {s(sSegOff)}, {s(sSegOff)}, {s(sH)}")
        A(f"s_lshl_b32 {s(sKVoff)}, {s(sSegOff)}, 14")
        A(f"s_lshl_b32 {s(sKVsh)}, {s(sSegOff)}, 12")
        A(f"s_lshl_b32 {s(sSegOff)}, {s(sSegOff)}, 13")

    def store_ct(acc, sbase, region, ep):
        for c in range(2):
            for q in range(4):
                A(f"v_cvt_pk_bf16_f32 {v(ep+4*c+q)}, {v(acc+8*c+2*q)}, {v(acc+8*c+2*q+1)}")
        A(f"s_add_u32 {s(sT0)}, {s(sbase)}, {region:#x}")
        for c in range(2):
            A(f"buffer_store_dwordx4 {v(ep+4*c,4)}, {v(vKst)}, {s(S_WS,4)}, {s(sT0)} offen offset:{c*512} sc1")

    def store_kv():
        store_ct(ACC + 16, sKVoff, WS_KX, EP)
        acc = ACC + 32
        for c in range(2):
            for hf in range(2):
                u = c + 2 * hf
                for q in range(2):
                    A(f"v_cvt_pk_bf16_f32 {v(EP+8+4*c+2*hf+q)}, {v(acc+4*u+2*q)}, {v(acc+4*u+2*q+1)}")
        A(f"s_add_u32 {s(sT0)}, {s(sKVoff)}, {WS_KX + 8192:#x}")
        for c in range(2):
            A(f"buffer_store_dwordx4 {v(EP+8+4*c,4)}, {v(vVst)}, {s(S_WS,4)}, {s(sT0)} offen offset:{c*512} sc1")

    def arm_km():
        for i in range(4):
            A(f"v_mov_b32 {v(XF+8+i)}, -1")
        A(f"s_lshl_b32 {s(sT1)}, {s(sWAVE)}, 10")
        A(f"s_add_u32 {s(sT0)}, {s(sKVsh)}, {s(sT1)}")
        A(f"s_add_u32 {s(sT0)}, {s(sT0)}, {WS_KM:#x}")
        A(f"buffer_store_dwordx4 {v(XF+8,4)}, {v(vL16)}, {s(S_WS,4)}, {s(sT0)} offen sc1")

    def flag_store():
        A(f"v_mov_b32 {v(vTmp)}, {s(sCnt)}")
        A(f"s_mov_b64 exec, 1")
        A(f"buffer_store_dword {v(vTmp)}, off, {s(S_WS,4)}, {s(sKVF)} sc1")
        A(f"s_mov_b64 exec, -1")
    xg.body(lambda kk, f: (mf_k(kk, f), mf_v(kk, f)), wpos=None)
    A.nop(12)
    seg_offsets()
    store_kv()
    arm_km()
    vq = Q(A, "vmcnt", 63)
    qn = [0]

    def q_first(vq_):
        pass
    nq0 = opts.get('hqq0', 8)
    for b in range(nq0):
        blk = qb[b]
        for k in range(2):
            A(f"s_mov_b32 {s(sT0)}, {blk['soff'][k]:#x}")
            vq.issue(('B', id(blk)), f"buffer_load_dwordx4 {reg(off(blk['raw'], 4*k), 4)}, {v(blk['voff'])}, {s(blk['srd'],4)}, {s(sT0)} offen")
    A(f"s_waitcnt vmcnt({2*nq0})")
    A(f"s_barrier")
    Lnf1 = A.new_label("hq_nf1")
    Lci = A.new_label("hq_ci")
    A(f"s_cmp_lg_u32 {s(sWAVE)}, 0")
    A(f"s_cbranch_scc1 {Lnf1}")
    A(f"v_readfirstlane_b32 {s(sT0)}, v15")
    A(f"s_and_b32 {s(sT0)}, {s(sT0)}, 0xff")
    A(f"s_cmp_ge_u32 {s(sT0)}, 32")
    A(f"s_cbranch_scc1 {Lci}")
    A(f"s_mov_b32 {s(sT2)}, {D_CHECKIN*4}")
    A(f"s_mov_b32 {s(sT3)}, 0")
    wait_byte(A, vTmp, vZero, sT2, sT3, 32, "hqci", sleep=4)
    A.label(Lci)
    flag_store()
    A.label(Lnf1)
    stamp(A, 3)
    for b in range(16):
        blk = qb[b]
        if b == 0:
            pass
        if b + nq0 < 16:
            nb_ = qb[b + nq0]
        vq.wait(('B', id(blk)))
        buf = (b & 1) * STG_BUF
        A(f"ds_write_b128 {v(vST)}, {reg(blk['raw'],4)} offset:{buf}")
        A(f"ds_write_b128 {v(vST)}, {reg(off(blk['raw'],4),4)} offset:{buf + stage_addr(16)}")
        for i in range(4):
            A(f"ds_read_b64_tr_b16 {reg(off(blk['dst'],2*i),2)}, {v(blk['vtr'])} offset:{buf + blk['imm'][i]}")
        if b + nq0 < 16:
            for k in range(2):
                A(f"s_mov_b32 {s(sT0)}, {nb_['soff'][k]:#x}")
                vq.issue(('B', id(nb_)), f"buffer_load_dwordx4 {reg(off(nb_['raw'], 4*k), 4)}, {v(nb_['voff'])}, {s(nb_['srd'],4)}, {s(sT0)} offen")
    A("s_waitcnt lgkmcnt(0)")
    stamp(A, 2)
    if opts.get('xatt'):
        from gen_xatt import xatt_setup, xatt_task
        xatt_setup(A, xg, sH)
    A(f"s_add_u32 {s(sNext)}, {s(sSeg)}, 5")
    xg.issue_x(sNext)
    xg.body(mf_q, wpos=opts.get('wpos', 9))
    A.nop(12)
    store_ct(ACC, sSegOff, WS_QX, XF)
    xg.toggle()
    A(f"s_waitcnt vmcnt(0) lgkmcnt(0)")
    A(f"s_barrier")
    A(f"s_mov_b32 {s(sXa)}, {s(sSeg)}")
    A(f"s_mov_b32 {s(sSeg)}, {s(sNext)}")

    Lloop = A.new_label("hq_loop")
    Lnoq = A.new_label("hq_noq")
    Lnoflag = A.new_label("hq_noflag")
    A.label(Lloop)
    A(f"s_add_u32 {s(sNext)}, {s(sSeg)}, 5")
    A(f"s_cmp_ge_u32 {s(sSeg)}, 64")
    A(f"s_cbranch_scc1 {Lnoq}")
    xg.issue_x(sNext)
    xg.body(lambda kk, f: (mf_k(kk, f), mf_v(kk, f), mf_q(kk, f)), wpos=opts.get('wpos', 9))
    A.nop(12)
    seg_offsets()
    store_kv()
    store_ct(ACC, sSegOff, WS_QX, XF)
    arm_km()
    xg.toggle()
    A(f"s_waitcnt vmcnt(0) lgkmcnt(0)")
    A(f"s_barrier")
    A(f"s_add_u32 {s(sCnt)}, {s(sCnt)}, 1")
    A(f"s_cmp_lg_u32 {s(sWAVE)}, 0")
    A(f"s_cbranch_scc1 {Lnoflag}")
    flag_store()
    A.label(Lnoflag)
    A.label(Lnoq)
    if opts.get('xatt'):
        xatt_task(A, xg, sH, sXa, opts)
    A(f"s_mov_b32 {s(sXa)}, {s(sSeg)}")
    A(f"s_mov_b32 {s(sSeg)}, {s(sNext)}")
    A(f"s_cmp_lt_u32 {s(sXa)}, 64")
    A(f"s_cbranch_scc1 {Lloop}")
    stamp(A, 4)


def gen(opts):
    global PROF
    PROF = bool(opts.get('prof'))
    A = Asm()
    A.L.append(open("header.txt").read().rstrip("\n"))
    A.L.append(f"; @launch grid=(256,1,1) block=(256,1,1) lds={LDS_BYTES}")
    A.L.append('.amdgcn_target "amdgcn-amd-amdhsa--gfx950"')
    A.L.append(".text")
    A.L.append(f".globl {KNAME}")
    A.L.append(".p2align 8")
    A.L.append(f".type {KNAME},@function")
    A.label(KNAME)
    A(f"s_cmp_ge_u32 s2, 256")
    A(f"s_cbranch_scc1 L_exit")
    A(f"s_load_dwordx16 s[64:79], s[0:1], 0")
    A(f"s_load_dwordx8 s[80:87], s[0:1], 64")
    A(f"s_load_dwordx4 s[88:91], s[0:1], 96")
    if opts.get('xrot'):
        A(f"s_add_u32 {s(sXCD)}, s2, {opts['xrot']}")
        A(f"s_and_b32 {s(sXCD)}, {s(sXCD)}, 7")
    else:
        A(f"s_and_b32 {s(sXCD)}, s2, 7")
    A(f"s_lshr_b32 {s(sIDX)}, s2, 3")
    if opts.get('cpf'):
        A("s_getpc_b64 s[44:45]")
        A.label("L_pc")
        A("v_lshlrev_b32 v2, 7, v0")
        A("s_mov_b32 s46, L_exit-L_pc")
        for i in range(opts.get('cpf')):
            A(f"v_add_u32 v4, {i * 32768:#x}, v2")
            A("v_min_u32 v4, s46, v4")
            A("v_mov_b32 v5, s45")
            A("v_add_co_u32 v4, vcc, s44, v4")
            A("v_addc_co_u32 v5, vcc, 0, v5, vcc")
            A("global_load_dword v255, v[4:5], off")
    A(f"v_lshrrev_b32 v1, 6, v0")
    A(f"s_mov_b32 {s(sDEAD)}, 0")
    A(f"v_readfirstlane_b32 {s(sWAVE)}, v1")
    A(f"s_waitcnt lgkmcnt(0)")
    mk_srd(A, S_WS, P_WS, WS_SIZE)
    mk_srd(A, S_DBG, P_DBG, 256)
    mk_srd(A, S_X, P_X, 2048 * 1024)
    if PROF:
        for i in range(10):
            A(f"s_mov_b32 {s(sSTAMP+i)}, 0")
    stamp(A, 0)
    A(f"s_cmp_eq_u32 {s(sXCD)}, 0")
    A(f"s_cbranch_scc1 L_chain")
    A(f"s_cmp_lt_u32 {s(sXCD)}, 3")
    A(f"s_cbranch_scc1 L_out")
    if opts.get('hq', True):
        gen_hq(A, opts)
    A(f"s_branch L_role_end")
    A.label("L_chain")
    if opts.get('clkprobe'):
        A("s_memrealtime s[44:45]")
        A("s_waitcnt lgkmcnt(0)")
        for i in range(1, 9):
            L = A.new_label("cp")
            A(f"s_add_u32 s46, s44, {i*500}")
            A.label(L)
            A("s_memrealtime s[48:49]")
            A("s_waitcnt lgkmcnt(0)")
            A("s_sub_u32 s50, s48, s46")
            A("s_cmp_lt_i32 s50, 0")
            A(f"s_cbranch_scc1 {L}")
            stamp_clk(A, i)
    if opts.get('chain'):
        cv = opts.get('cv', 7)
        if cv == 4:
            from gen_chain4 import gen_chain
        elif cv == 5:
            from gen_chain5 import gen_chain
        elif cv == 6:
            from gen_chain6 import gen_chain
        else:
            from gen_chain7 import gen_chain
        gen_chain(A, opts)
    A(f"s_branch L_role_end")
    A.label("L_out")
    if opts.get('out'):
        from gen_out import gen_out
        gen_out(A, opts)
    A.label("L_role_end")
    stamp(A, 9)
    A.label("L_flush")
    stamp_flush(A)
    A.label("L_exit")
    A("s_endpgm")
    A.L.append(f""".section .rodata,"a"
.p2align 6
.amdhsa_kernel {KNAME}
  .amdhsa_next_free_vgpr 512
  .amdhsa_next_free_sgpr 102
  .amdhsa_accum_offset 256
  .amdhsa_group_segment_fixed_size 0
  .amdhsa_kernarg_size 112
  .amdhsa_user_sgpr_count 2
  .amdhsa_user_sgpr_kernarg_segment_ptr 1
  .amdhsa_system_sgpr_workgroup_id_x 1
.end_amdhsa_kernel""")
    return A.text()


def main():
    opts = {}
    outp = sys.argv[1]
    for o in sys.argv[2:]:
        if "=" in o:
            k, val = o.split("=")
            opts[k] = int(val)
        else:
            opts[o] = True
    open(outp, "w").write(gen(opts))


if __name__ == "__main__":
    import gen as _g
    _g.main()
```

```python
from dsl import *
import gen as G
from gen import *

QK_OFF, O_OFF, MEM_OFF, KX_OFF, VX_OFF, WO_OFF = 0, 4096, 8192, 16384, 24576, 32768

vL16, vKw, vIdx, vQKw, vQKr, vOw, vMw, vWo, vPst, vRed, vMst, vPf, vFlag, vJunk = range(14)
vT0, vT1 = 14, 15
vSEL = 16
vVM1, vKr, vONE = 20, 21, 22
vBM = 26
vS0, vIdxW = 30, 31
KIMG = [2048, 3072, 6144, 7168]
X = 32
Y = 64
PA = 96
ACC = 112
sH, sS, sSlotP, sSlotP1, sSlotP4, sSlotM, sKM, sKV, sC, sNC, sRet = range(44, 55)
sRa0, sRa2, sFastF = 55, 56, 57
sMLo, sMHi = 58, 60
sU = 76
sFo, sNeed, sJ4, sCn, sPf, sGat, sKn, sM0K, sM0V = 78, 79, 80, 81, 84, 85, 86, 87, 88
sW1k, sRaM, sRaA, sFb, sPfb, sW2k = 64, 65, 66, 67, 68, 69
sPc2, sPc3 = 70, 71
sRo, sRm = 72, 89
sPc = [sSlotP, sSlotP1, sPc2, sPc3]
sTag = 55
vTagE = vPf
sCP0, sCP1 = 82, 83
sKok = 57
OOB = 0x40000000
RED_LIMIT = 1 << 16

LOG2E = 1.4426950408889634
WPOL = ["", " nt", " sc1", " sc0 sc1", " sc1 nt", " sc0", " sc0 nt", " sc0 sc1 nt"]
SCALE_C = (128 ** -0.5) * LOG2E


def f32_hex(x):
    import struct
    return struct.unpack("<I", struct.pack("<f", x))[0]


RT = False
LATE = [False]
CSTEP = [39]


TRACE = [False]


FTR = [0]


def fstamp(A, k):
    if TRACE[0] and FTR[0]:
        A(f"s_memtime s[{16 + 2 * (k - 1)}:{17 + 2 * (k - 1)}]")


def lstamp(A, i, late=None):
    if TRACE[0]:
        if FTR[0] == 1:
            m_ = {3: 1, 4: 5, 5: 8}.get(i)
        elif FTR[0] == 2:
            m_ = {5: 1, 6: 4, 7: 8}.get(i)
        elif FTR[0] == 3:
            m_ = {1: 1, 2: 5, 3: 8}.get(i)
        else:
            m_ = i if i <= 8 else None
        if m_:
            A(f"s_memtime s[{16 + 2 * (m_ - 1)}:{17 + 2 * (m_ - 1)}]")
        return
    L = A.new_label("ls")
    if late is None:
        late = i >= 8
    A(f"s_cmp_lg_u32 {s(sS)}, {CSTEP[0] + 1 if late else CSTEP[0]}")
    A(f"s_cbranch_scc1 {L}")
    r = 16 + 2 * (i - 1) if i < 9 else 62
    A(f"{'s_memrealtime' if RT else 's_memtime'} s[{r}:{r+1}]")
    A.label(L)


import re as _re


def _regs(tok):
    tok = tok.strip().rstrip(',')
    m = _re.match(r'^([va])\[(\d+):(\d+)\]$', tok)
    if m:
        return {(m.group(1), i) for i in range(int(m.group(2)), int(m.group(3)) + 1)}
    m = _re.match(r'^([va])(\d+)$', tok)
    if m:
        return {(m.group(1), int(m.group(2)))}
    return set()


def _all_regs(line):
    r = set()
    for tok in _re.findall(r'[va]\[\d+:\d+\]|\b[va]\d+\b', line):
        r |= _regs(tok)
    return r


def gap_reorder(lines, report=False):
    out = []
    i = 0
    n = len(lines)
    issm = lambda x: x.strip().startswith('v_smfmac')
    while i < n:
        out.append(lines[i])
        if issm(lines[i]):
            j = i + 1
            gap = []
            while j < n and not issm(lines[j]) and not lines[j].endswith(':') and not lines[j].strip().startswith(('s_cbranch', 's_branch', 'v_mfma', 's_nop', 's_memtime', 's_memrealtime', 's_cmp')):
                gap.append(lines[j])
                j += 1
            if j < n and issm(lines[j]):
                changed = True
                while changed:
                    changed = False
                    for k in range(len(gap) - 1):
                        a_, b_ = gap[k].strip(), gap[k + 1].strip()
                        if a_.startswith('v_') and not b_.startswith('v_') and 'vcc' not in a_ and 'exec' not in b_:
                            if not (_all_regs(a_) & _all_regs(b_)):
                                gap[k], gap[k + 1] = gap[k + 1], gap[k]
                                changed = True
                nv = sum(1 for g in gap if g.strip().startswith('v_'))
                no = len(gap) - nv
                lastv = all(not gap[k].strip().startswith('v_') or gap[k + 1].strip().startswith('v_') for k in range(len(gap) - 1))
                if report and (nv > 1 or (nv and no > 2) or no > 3 or not lastv):
                    print("gap over budget:", [g.strip()[:40] for g in gap])
            out.extend(gap)
            i = j
            continue
        i += 1
    return out


def gen_step(A, fast, opts):
    i0 = len(A.L)
    gen_step_raw(A, fast, opts)
    if opts.get('reord', 1):
        A.L[i0:] = gap_reorder(A.L[i0:], report=fast and opts.get('report'))


def gen_step_raw(A, fast, opts):
    KP, VP = opts.get('kpos', 0), opts.get('vpos', 0)
    RBT = opts.get('rbtop', 0)
    VAT = opts.get('vat', 12)
    M0TOP = KP in (1, 2) and VP == 0
    M0FIX = KP == 4 and VP == 0

    def vdma(n):
        if VP != 0:
            return
        if n == VAT - 1:
            if not M0TOP and not M0FIX:
                A(f"s_mov_b32 m0, {s(sM0V)}")
            A(f"s_add_u32 {s(sT3)}, {s(sKV)}, 8192")
        elif n == VAT:
            A(f"buffer_load_dwordx4 {v(vL16)}, {s(S_WS,4)}, {s(sT3)} offen lds")
        elif n == VAT + opts.get('vsp', 1):
            A(f"buffer_load_dwordx4 {v(vL16)}, {s(S_WS,4)}, {s(sT3)} offen offset:1024 lds")
    st = "" if fast else " sc1"
    tag = "f" if fast else "s"
    Lown = [f"L_own0_{tag}", f"L_own1_{tag}"]
    Lcommon = f"L_common_{tag}"
    Llast = f"L_last_{tag}"
    lq = Q(A, "lgkmcnt", 15)
    cp = opts.get('cprof') or opts.get('trace')
    rp = opts.get('rprof')
    AQ, AV, AK = ACC, ACC + 8, Y + 24
    CQ, CK = AQ + 2, AK + 2
    H0, H1 = X + 16, X + 24
    H2 = PA + 8
    G3 = opts.get('gsets', 2) == 3
    AO = Y
    KXR = {0: X + 16, 4: X + 20, 1: X + 24, 5: X + 28, 2: X, 6: X + 4, 3: X + 8, 7: X + 12}
    RB = [X, X + 8, PA, PA + 8]
    RIDX = {0: 0, 1: 1, 4: 2, 5: 3, 6: 4, 7: 5}

    def WB(m, jj, t):
        if m == 'q':
            return a(16 * jj + 8 * t, 8)
        if jj in (2, 3):
            return v(RB[2 * (jj - 2) + t], 8)
        return (a if m == 'k' else v)(128 + 16 * RIDX[jj] + 8 * t, 8)

    def rdR(m, b, half, top=False):
        if m == 'k' and 2 * b + half < RBT and not top:
            return
        fi = (0 if m == 'k' else 4) + b
        lq.issue(('R', m, b), f"ds_read_b128 {v(RB[b] + 4*half, 4)}, {v(vWo)} offset:{fi * 2048 + 1024 * half}")
    AC = {'q': AQ, 'k': AK, 'v': AV}
    vA = [None, vT0, vT1, vS0]

    def smf(m, jj, t, areg):
        if m != 'q' and jj in (2, 3):
            lq.wait(('R', m, 2 * (jj - 2) + t))
        A(f"v_smfmac_f32_16x16x64_bf16 {v(AC[m] + 4*t, 4)}, {v(areg, 4)}, {WB(m, jj, t)}, {v(vIdx)}")

    def rdKX(j):
        lq.issue(('KX', j), f"ds_read_b128 {v(KXR[j],4)}, {v(vL16)} offset:{KX_OFF + j*1024}")

    salu = [
        f"s_and_b32 {s(sT4)}, {s(sS)}, 3",
        f"s_lshl_b32 {s(sSlotM)}, {s(sT4)}, 13",
        f"s_add_u32 {s(sSlotM)}, {s(sSlotM)}, {WS_M:#x}",
        f"s_add_u32 {s(sGat)}, {s(sSlotM)}, {s(sW2k)}",
        f"s_xor_b32 {s(sRa2)}, {s(sSlotM)}, 0x4000",
        f"s_xor_b32 {s(sTag)}, {s(sTag)}, 1",
    ]

    def su(n):
        for _ in range(n):
            if salu:
                A(salu.pop(0))

    Lar = f"L_top_{tag}"
    Lspec = f"L_spec_{tag}"
    Lretry0 = f"L_retry0_{tag}"
    rt = opts.get('rtrace')

    def rstamp(k):
        if rt:
            A(f"s_memtime s[{16 + 2*k}:{17 + 2*k}]")

    def con_issue(R):
        A(f"buffer_load_dwordx4 {v(R,4)}, {v(vL16)}, {s(S_WS,4)}, {s(sGat)} offen sc1")
        A(f"buffer_load_dwordx4 {v(R+4,4)}, {v(vL16)}, {s(S_WS,4)}, {s(sGat)} offen offset:1024 sc1")

    def own(H, spec):
        lq.ops = []
        n = 0
        c0 = Y
        for m in 'qkv':
            for jj in range(2):
                for t in range(2):
                    n += 1
                    smf(m, jj, t, H + 4 * jj)
                    if spec and n == 1:
                        A(f"v_max3_u32 {v(c0)}, {v(H)}, {v(H+2)}, {v(H+4)}")
                    elif spec and n == 2:
                        A(f"v_max_u32 {v(c0)}, {v(c0)}, {v(H+6)}")
                    elif spec and n == 3:
                        A(f"v_cmp_eq_u32 vcc, -1, {v(c0)}")
                        A(f"s_add_u32 {s(sRet)}, {s(sRet)}, 1")
                        A(f"s_cbranch_vccnz {Lretry0}")
                    elif n == 4:
                        if FTR[0] == 3:
                            fstamp(A, 2)
                        A(f"s_waitcnt lgkmcnt(0)")
                        A(f"s_barrier")
                        if FTR[0] == 3:
                            fstamp(A, 3)
                    elif 5 <= n <= 10:
                        vdma(n)
                        j2 = n - 5 + 2
                        lq.issue(('A', j2), f"ds_read_b128 {v(AO + 4*(j2-2), 4)}, {v(vA[j2 >> 1])} offset:{(j2 & 1) * 1024}")
                    elif n == 11:
                        vdma(n)
                        rdR('k', 0, 0)
                    elif n == 12:
                        vdma(n)
                        rdR('k', 0, 1)
    if opts.get('lalign'):
        A.L.append(f".p2align {opts['lalign']}")
        for _ in range(opts.get('lpad', 0)):
            A("s_nop 0")
    A.label(Lar)
    A(f"s_barrier")
    if cp:
        lstamp(A, 8)
    rstamp(5)
    for k in range(1, 4):
        A(f"v_xor_b32 {v(vA[k])}, {k << 11:#x}, {v(vMw)}")
    A(f"s_mov_b32 {s(sRet)}, 0")

    def dma_pair(m0reg, soff):
        A(f"s_mov_b32 m0, {s(m0reg)}")
        A(f"s_nop 0")
        A(f"buffer_load_dwordx4 {v(vL16)}, {s(S_WS,4)}, {s(soff)} offen lds")
        A(f"buffer_load_dwordx4 {v(vL16)}, {s(S_WS,4)}, {s(soff)} offen offset:1024 lds")
    for _ in range(opts.get('tpre', 0)):
        A(f"s_sleep 1")
    if KP == 4:
        A(f"buffer_load_dwordx4 {v(X,4)}, {v(vL16)}, {s(S_WS,4)}, {s(sKV)} offen")
        A(f"buffer_load_dwordx4 {v(X+4,4)}, {v(vL16)}, {s(S_WS,4)}, {s(sKV)} offen offset:1024")
    if VP == 4:
        A(f"s_add_u32 {s(sT3)}, {s(sKV)}, 8192")
        A(f"buffer_load_dwordx4 {v(X+8,4)}, {v(vL16)}, {s(S_WS,4)}, {s(sT3)} offen")
        A(f"buffer_load_dwordx4 {v(X+12,4)}, {v(vL16)}, {s(S_WS,4)}, {s(sT3)} offen offset:1024")
    if KP == 1:
        dma_pair(sM0K, sKV)
        if M0TOP:
            A(f"s_mov_b32 m0, {s(sM0V)}")
    if VP == 1:
        A(f"s_add_u32 {s(sT3)}, {s(sKV)}, 8192")
        dma_pair(sM0V, sT3)
    if opts.get('rbpos', 0) == 0:
        for q in range(RBT):
            rdR('k', q >> 1, q & 1, True)
    for _ in range(opts.get('gdelay', 0)):
        A(f"s_sleep 1")
    con_issue(H0)
    for _ in range(opts.get('gspace', 1)):
        A(f"s_sleep 1")
    con_issue(H1)
    if G3:
        for _ in range(opts.get('gspace2', opts.get('gspace', 1))):
            A(f"s_sleep 1")
        con_issue(H2)
    if opts.get('rbpos', 0) == 1:
        for q in range(RBT):
            rdR('k', q >> 1, q & 1, True)
    if KP == 4 or VP == 4:
        assert not RBT and not G3
        A(f"s_waitcnt vmcnt(4)")
        if KP == 4:
            A(f"ds_write_b128 {v(vMw)}, {v(X,4)} offset:{KX_OFF - MEM_OFF}")
            A(f"ds_write_b128 {v(vMw)}, {v(X+4,4)} offset:{KX_OFF - MEM_OFF + 1024}")
        if VP == 4:
            A(f"ds_write_b128 {v(vMw)}, {v(X+8,4)} offset:{VX_OFF - MEM_OFF}")
            A(f"ds_write_b128 {v(vMw)}, {v(X+12,4)} offset:{VX_OFF - MEM_OFF + 1024}")
    A.label(Lspec)
    A(f"s_waitcnt vmcnt({4 if G3 else 2})")
    if rt:
        rstamp(6)
    A(f"ds_write_b128 {v(vMw)}, {v(H0,4)}")
    A(f"ds_write_b128 {v(vMw)}, {v(H0+4,4)} offset:1024")
    if cp:
        lstamp(A, 9)
        lstamp(A, 1)
    if rt:
        A("s_memtime s[30:31]")
    own(H0, True)
    A.label(Lcommon)
    if FTR[0] == 3:
        fstamp(A, 4)
    n = 12
    for jj in range(2, 8):
        for t in range(2):
            n += 1
            if t == 0:
                lq.wait(('A', jj))
            smf('q', jj, t, AO + 4 * (jj - 2))
            if n == 13 or n >= 19:
                vdma(n)
            if n == 13:
                rdR('k', 1, 0)
            elif n == 14:
                A(f"buffer_load_dword {v(vFlag)}, off, {s(S_WS,4)}, {s(sFo)} sc1")
                rdR('k', 1, 1)
            elif n == 15:
                if not opts.get('nopf'):
                    A(f"buffer_load_dword {v(vJunk)}, {v(vPf)}, {s(S_WS,4)}, {s(sPf)} offen")
                rdR('k', 2, 0)
            elif n == 16:
                A(f"s_add_u32 {s(sT3)}, {s(sPf)}, 4096")
                rdR('k', 2, 1)
            elif n == 17:
                if not opts.get('nopf'):
                    A(f"buffer_load_dword {v(vJunk)}, {v(vPf)}, {s(S_WS,4)}, {s(sT3)} offen")
                if G3:
                    A(f"s_waitcnt vmcnt({5 if VP == 0 and VAT <= 12 else 3})")
                rdR('k', 3, 0)
                su(1)
            elif n == 18:
                if not G3:
                    A(f"s_waitcnt vmcnt({5 if VP == 0 and VAT <= 12 else 3})")
                rdR('k', 3, 1)
                su(1)
            elif 19 <= n <= 22:
                rdKX((0, 4, 1, 5)[n - 19])
                su(1)
            else:
                su(3)
    if cp and not rp:
        lstamp(A, 2)

    def post(m, step):
        t, k = step // 3, step % 3
        T = AC[m] + 4 * t
        if k < 2:
            A(f"v_add_f32 {v(T + k)}, {v(T + k)}, {v(T + k + 2)}")
        else:
            d = {'q': CQ + t, 'k': CK + t, 'v': (vS0, vVM1)[t]}[m]
            A(f"v_cvt_pk_bf16_f32 {v(d)}, {v(T)}, {v(T + 1)}")
    for jj in range(2, 8):
        for t in range(2):
            n += 1
            smf('k', jj, t, AO + 4 * (jj - 2))
            vdma(n)
            if n == 31:
                lq.issue('wq', f"ds_write2st64_b32 {v(vQKw)}, {v(CQ)}, {v(CQ+1)} offset0:0 offset1:1")
            elif n == 33 and KP == 0:
                A(f"s_mov_b32 m0, {s(sM0K)}")
                A(f"s_add_u32 {s(sKn)}, {s(sKn)}, 0x80000")
            elif n == 35:
                if FTR[0] == 3:
                    fstamp(A, 6)
                lq.wait('wq')
                A(f"s_barrier")
                if FTR[0] == 3:
                    fstamp(A, 7)
            if 26 <= n <= 30:
                rdR('v', (n - 26) >> 1, (n - 26) & 1)
            elif n in (32, 33, 34):
                rdR('v', (n - 27) >> 1, (n - 27) & 1)
            if n in (31, 32):
                su(1)
            if 25 <= n <= 30:
                post('q', n - 25)
            elif n >= 33:
                A(f"v_mov_b64 {v(ACC + 2*(n - 33), 2)}, 0")
    assert not salu
    if cp and not rp:
        lstamp(A, 3)
    QR, KR = Y, Y + 16

    def trq(i):
        ks, hf = i >> 1, i & 1
        lq.issue(('q', ks), f"ds_read_b64_tr_b16 {v(QR+4*ks+2*hf,2)}, {v(vQKr)} offset:{QK_OFF + (32*ks+8*hf)*16}")

    def trk(i):
        ks, hf = i >> 1, i & 1
        lq.issue(('k', ks), f"ds_read_b64_tr_b16 {v(KR+4*ks+2*hf,2)}, {v(vKr)} offset:{KIMG[ks] + hf*256}")
    trq_at = {38: 0, 39: 1, 40: 2, 41: 3, 42: 4, 44: 5, 45: 6, 46: 7}
    for jj in range(2, 8):
        for t in range(2):
            n += 1
            smf('v', jj, t, AO + 4 * (jj - 2))
            vdma(n)
            if n in trq_at:
                trq(trq_at[n])
            if 39 <= n <= 42:
                rdKX((2, 6, 3, 7)[n - 39])
            if n == 43:
                lq.issue('wk', f"ds_write2st64_b32 {v(vKw)}, {v(CK)}, {v(CK+1)} offset0:0 offset1:2")
            elif n == 44 and not opts.get('xnokm'):
                A(f"buffer_store_dword {v(CK)}, {v(vQKw)}, {s(S_WS,4)}, {s(sKM)} offen sc1")
            elif n == 45 and not opts.get('xnokm'):
                A(f"buffer_store_dword {v(CK+1)}, {v(vQKw)}, {s(S_WS,4)}, {s(sKM)} offen offset:256 sc1")
            elif n == 47:
                if FTR[0] == 1:
                    fstamp(A, 3)
                lq.wait('wk')
                A(f"s_barrier")
                if FTR[0] == 1:
                    fstamp(A, 4)
                trk(0)
            elif n == 48:
                trk(1)
                if KP == 0:
                    A(f"buffer_load_dwordx4 {v(vL16)}, {s(S_WS,4)}, {s(sKn)} offen lds")
            if 37 <= n <= 42:
                post('k', n - 37)
            if n == 42 and FTR[0] == 1:
                fstamp(A, 2)
    if cp and not rp:
        lstamp(A, 4)
    T0, T1, TM = PA, PA + 4, PA + 8
    m, t_ = vT0, vT1
    wo_ops = [(cg, 0) for cg in range(4)] + [(cg, ks) for cg in range(4) for ks in range(1, 4)]
    bufs = [X + 16, X + 24, X, X + 8, Y, Y + 8, Y + 16, Y + 24]

    WOR = [a(224, 8), a(232, 8), a(240, 8), a(248, 8), v(224, 8), v(232, 8), v(240, 8), v(248, 8)]

    def rdW(i, half):
        o = (8 + i) * 2048 + 1024 * half
        lq.issue(('W', i), f"ds_read_b128 {v(bufs[i] + 4*half, 4)}, {v(vWo)} offset:{o}")
    for i in range(8):
        ks, t = i >> 1, i & 1
        if i in (0, 4):
            lq.wait(('q', ks + 1))
        T = (T0, T1)[t]
        c = "0" if ks == 0 else v(T, 4)
        A(f"v_mfma_f32_16x16x32_bf16 {v(T,4)}, {v(KXR[4*t+ks],4)}, {v(QR+4*ks,4)}, {c}")
        if i == 0 and KP == 0:
            A(f"buffer_load_dwordx4 {v(vL16)}, {s(S_WS,4)}, {s(sKn)} offen offset:1024 lds")
        if i <= 5:
            trk(i + 2)
            post('v', i)
        elif i == 6 and not opts.get('xnokm'):
            A(f"buffer_store_dword {v(vS0)}, {v(vQKw)}, {s(S_WS,4)}, {s(sKM)} offen offset:2048 sc1")
            A(f"buffer_store_dword {v(vVM1)}, {v(vQKw)}, {s(S_WS,4)}, {s(sKM)} offen offset:2304 sc1")
    if FTR[0] == 1:
        fstamp(A, 6)
    A(f"s_cmp_eq_u32 {s(sS)}, 63")
    A(f"s_cbranch_scc1 {Llast}")
    for ks in range(4):
        if ks in (0, 2):
            lq.wait(('k', ks + 1))
        cm = "0" if ks == 0 else v(TM, 4)
        A(f"v_mfma_f32_16x16x32_bf16 {v(TM,4)}, {v(KR+4*ks,4)}, {v(QR+4*ks,4)}, {cm}")
        rdW(ks >> 1, ks & 1)
        if ks == 1:
            A(f"v_max3_f32 {v(m)}, {v(T0)}, {v(T0+1)}, {v(T0+2)}")
        elif ks == 2:
            A(f"v_max3_f32 {v(t_)}, {v(T0+3)}, {v(T1)}, {v(T1+1)}")
        elif ks == 3:
            A(f"v_max3_f32 {v(m)}, {v(m)}, {v(T1+2)}, {v(T1+3)}")
    if FTR[0] == 1:
        fstamp(A, 7)
    ralate = 1

    def rearm(k, now=False):
        if now and k == 2:
            A(f"buffer_store_dwordx4 {v(vSEL,4)}, {v(vMst)}, {s(S_WS,4)}, {s(sRa2)} offen{st}")
    VX0 = Y + 16
    u0, u1 = TM + 2, TM + 3
    if VP == 0:
        v2 = VAT + opts.get('vsp', 1)
        young = (3 if VAT <= 12 else 0) + (v2 <= 44) + (v2 <= 45) + 2 + (2 if KP == 0 else 0)
        assert v2 <= 47
        A(f"s_waitcnt vmcnt({young})")
    lq.issue('vx', f"ds_read_b128 {v(VX0,4)}, {v(vMw)} offset:{VX_OFF - MEM_OFF}")
    lq.issue('vx', f"ds_read_b128 {v(VX0+4,4)}, {v(vMw)} offset:{VX_OFF - MEM_OFF + 1024}")
    rdW(2, 0)
    rdW(2, 1)
    A(f"v_mov_b64 {v(ACC+10,2)}, 0")
    A(f"v_max3_f32 {v(m)}, {v(m)}, {v(t_)}, {v(TM)}")
    A(f"v_max_f32 {v(u0)}, {v(m)}, {v(TM+1)}")
    A(f"v_max_f32 {v(u1)}, {v(m)}, {v(TM+1)}")
    rdW(3, 0)
    A(f"v_mov_b64 {v(ACC+8,2)}, 0")
    A(f"v_permlane16_swap_b32 {v(u0)}, {v(u1)}")
    A(f"v_max_f32 {v(m)}, {v(u0)}, {v(u1)}")
    A(f"v_max_f32 {v(t_)}, {v(u0)}, {v(u1)}")
    rdW(3, 1)
    A(f"s_nop 0")
    A(f"v_permlane32_swap_b32 {v(m)}, {v(t_)}")
    A(f"v_max_f32 {v(m)}, {v(m)}, {v(t_)}")
    A(f"v_mul_f32 {v(m)}, {s(sNC)}, {v(m)}")
    BX = ACC + 12
    xs = [T0, T0 + 1, T0 + 2, T0 + 3, T1, T1 + 1, T1 + 2, T1 + 3]
    ms = [TM, TM + 1]
    if opts.get('pk', 1):
        def pkf(r):
            A(f"v_pk_fma_f32 {v(r,2)}, {v(r,2)}, {s(sC,2)}, {v(m,2)} op_sel_hi:[1,0,0]")
        pkf(T0)
        pkf(T0 + 2)
        for j in range(8):
            A(f"v_exp_f32 {v(xs[j])}, {v(xs[j])}")
            if j == 1:
                pkf(T1)
            elif j == 3:
                pkf(T1 + 2)
            elif j == 5:
                pkf(TM)
            if j >= 2 and j % 2 == 0:
                q = (j - 2) // 2
                A(f"v_cvt_pk_bf16_f32 {v(BX+q)}, {v(xs[2*q])}, {v(xs[2*q+1])}")
    else:
        for r in xs[:2]:
            A(f"v_fma_f32 {v(r)}, {v(r)}, {s(sC)}, {v(m)}")
        for j in range(8):
            A(f"v_exp_f32 {v(xs[j])}, {v(xs[j])}")
            nx = (xs + ms)[j + 2]
            A(f"v_fma_f32 {v(nx)}, {v(nx)}, {s(sC)}, {v(m)}")
            if j >= 2 and j % 2 == 0:
                q = (j - 2) // 2
                A(f"v_cvt_pk_bf16_f32 {v(BX+q)}, {v(xs[2*q])}, {v(xs[2*q+1])}")
    A(f"v_exp_f32 {v(ms[0])}, {v(ms[0])}")
    A(f"v_cvt_pk_bf16_f32 {v(BX+3)}, {v(xs[6])}, {v(xs[7])}")
    A(f"v_exp_f32 {v(ms[1])}, {v(ms[1])}")
    if cp and not rp:
        lstamp(A, 5)
    O0, O1, LS, PKO = PA, PA + 4, PA + 12, PA + 8
    lq.wait('vx')
    A(f"v_mfma_f32_16x16x32_bf16 {v(LS,4)}, {v(vONE,4)}, {v(BX,4)}, 0")
    A(f"v_cvt_pk_bf16_f32 {v(vBM)}, {v(ms[0])}, {v(ms[1])}")
    A(f"v_mfma_f32_16x16x32_bf16 {v(O0,4)}, {v(VX0,4)}, {v(BX,4)}, 0")
    rdW(4, 0)
    A(f"v_mfma_f32_16x16x32_bf16 {v(O1,4)}, {v(VX0+4,4)}, {v(BX,4)}, 0")
    A(f"v_mfma_f32_16x16x32_bf16 {v(LS,4)}, {v(vONE,4)}, {v(vBM,4)}, {v(LS,4)}")
    A(f"v_mfma_f32_16x16x32_bf16 {v(O0,4)}, {v(vS0,4)}, {v(vBM,4)}, {v(O0,4)}")
    A(f"v_mov_b64 {v(ACC+12,2)}, 0")
    A(f"v_mfma_f32_16x16x32_bf16 {v(O1,4)}, {v(vVM1,4)}, {v(vBM,4)}, {v(O1,4)}")
    rdW(4, 1)
    if FTR[0] == 2:
        fstamp(A, 2)
    A(f"v_rcp_f32 {v(m)}, {v(LS)}")
    rdW(5, 0)
    A(f"v_mov_b64 {v(ACC+14,2)}, 0")
    if opts.get('pk', 1):
        def pkm(r):
            A(f"v_pk_mul_f32 {v(r,2)}, {v(r,2)}, {v(m,2)} op_sel_hi:[1,0]")
        pkm(O0)
        pkm(O0 + 2)
        pkm(O1)
        A(f"v_cvt_pk_bf16_f32 {v(PKO)}, {v(O0)}, {v(O0+1)}")
        pkm(O1 + 2)
        A(f"v_cvt_pk_bf16_f32 {v(PKO+1)}, {v(O0+2)}, {v(O0+3)}")
    else:
        for r in range(4):
            A(f"v_mul_f32 {v(O0+r)}, {v(O0+r)}, {v(m)}")
        A(f"v_cvt_pk_bf16_f32 {v(PKO)}, {v(O0)}, {v(O0+1)}")
        A(f"v_cvt_pk_bf16_f32 {v(PKO+1)}, {v(O0+2)}, {v(O0+3)}")
        for r in range(4):
            A(f"v_mul_f32 {v(O1+r)}, {v(O1+r)}, {v(m)}")
    A(f"v_cvt_pk_bf16_f32 {v(PKO+2)}, {v(O1)}, {v(O1+1)}")
    A(f"v_cvt_pk_bf16_f32 {v(PKO+3)}, {v(O1+2)}, {v(O1+3)}")
    if FTR[0] == 2:
        fstamp(A, 3)
    lq.issue('wo_', f"ds_write_b128 {v(vOw)}, {v(PKO,4)} offset:0")
    AOr = [PKO, PA, PA + 4, PA + 12]
    vAo = [None, vT0, vT1, vS0]
    for k in range(1, 4):
        A(f"v_xor_b32 {v(vAo[k])}, {k << 9:#x}, {v(vOw)}")
    if cp and not rp:
        lstamp(A, 6)

    def pack(cg, k):
        A(f"v_cvt_pk_bf16_f32 {v(ACC+4*cg+k)}, {v(ACC+4*cg+2*k)}, {v(ACC+4*cg+2*k+1)}")

    def tagp(cg):
        A(f"v_and_or_b32 {v(ACC+4*cg)}, {v(ACC+4*cg)}, -2, {s(sTag)}")

    def pstore(cg):
        A(f"buffer_store_dwordx2 {v(ACC+4*cg,2)}, {v(vPst)}, {s(S_WS,4)}, {s(sPc[cg]) if cg else 0} offen{st}")
    for i, (cg, ks) in enumerate(wo_ops):
        if ks:
            lq.wait(('Ao', ks))
        if i >= 8:
            lq.wait(('W', i - 8))
        A(f"v_smfmac_f32_16x16x64_bf16 {v(ACC+4*cg,4)}, {v(AOr[ks],4)}, {WOR[i] if i < 8 else v(bufs[i - 8],8)}, {v(vIdxW)}")
        if i == opts.get('obar', 1):
            lq.wait('wo_')
            A(f"s_barrier")
            if FTR[0] == 2:
                fstamp(A, 5)
            for k in range(1, 4):
                lq.issue(('Ao', k), f"ds_read_b128 {v(AOr[k],4)}, {v(vAo[k])}")
        if i == 4 and FTR[0] == 2:
            fstamp(A, 6)
        if i == 9 and FTR[0] == 2:
            fstamp(A, 7)
        if i == 2:
            rdW(5, 1)
            rdW(6, 0)
        elif i == 3:
            rdW(6, 1)
            rdW(7, 0)
        elif i == 4:
            rdW(7, 1)
        pst = opts.get('pst', 1)
        if pst == 1:
            if i in (11, 14):
                pstore((i - 11) // 3)
            if i in (8, 11, 14):
                pack((i - 8) // 3, 0)
            elif i in (9, 12, 15):
                pack((i - 9) // 3, 1)
            elif i in (10, 13):
                tagp((i - 10) // 3)
        elif pst == 2:
            if i in (8, 11, 14):
                pack((i - 8) // 3, 0)
                pack((i - 8) // 3, 1)
            elif i in (9, 12, 15):
                tagp((i - 9) // 3)
            elif i in (10, 13):
                pstore((i - 10) // 3)
        elif pst == 3:
            if i in (8, 11, 14):
                pack((i - 8) // 3, 0)
            elif i in (9, 12, 15):
                pack((i - 9) // 3, 1)
                tagp((i - 9) // 3)
            elif i in (10, 13):
                pstore((i - 10) // 3)
    if pst == 1:
        tagp(2)
        pstore(2)
        A(f"s_nop 5")
    else:
        pstore(2)
        A(f"s_nop 6")
    pack(3, 0)
    pack(3, 1)
    tagp(3)
    pstore(3)
    if cp:
        lstamp(A, 7)
    Lnr = A.new_label("notred")

    def bookkeeping():
        A(f"s_add_u32 {s(sS)}, {s(sS)}, 1")
        A(f"s_add_u32 {s(sKM)}, {s(sKM)}, 0x20000")
        A(f"s_add_u32 {s(sKV)}, {s(sKV)}, 0x80000")
        A(f"s_add_u32 {s(sPf)}, {s(sPf)}, 0x80000")
        A(f"s_add_u32 {s(sJ4)}, {s(sJ4)}, 4")
        A(f"s_cmp_eq_u32 {s(sJ4)}, 20")
        A(f"s_cselect_b32 {s(sJ4)}, 0, {s(sJ4)}")
        A(f"s_addc_u32 {s(sCn)}, {s(sCn)}, 0")

    def bookkeeping2():
        A(f"s_add_u32 {s(sFo)}, {s(sFb)}, {s(sJ4)}")
        A(f"s_cmp_lt_u32 {s(sS)}, 62")
        A(f"s_cselect_b32 {s(sNeed)}, {s(sCn)}, 0")

    def zero_acc():
        for i in range(8):
            A(f"v_mov_b64 {v(ACC+2*i,2)}, 0")
        for i in range(4):
            A(f"v_mov_b64 {v(AK+2*i,2)}, 0")

    def w1_dma():
        for _ in range(opts.get('w1d', 0)):
            A(f"s_sleep 1")
        if KP == 2:
            A(f"s_add_u32 {s(sT3)}, {s(sKV)}, 0x80000")
            dma_pair(sM0K, sT3)
            if M0TOP:
                A(f"s_mov_b32 m0, {s(sM0V)}")
        if VP == 2:
            A(f"s_add_u32 {s(sT3)}, {s(sKV)}, {0x80000 + 8192:#x}")
            dma_pair(sM0V, sT3)
    nw1 = 2 * ((KP == 2) + (VP == 2))
    if nw1 and opts.get('w1pre'):
        w1_dma()
    if opts.get('rbar', 1):
        A(f"s_barrier")
    if nw1 and not opts.get('w1pre'):
        w1_dma()
    A(f"s_cmp_lg_u32 {s(sWAVE)}, 0")
    A(f"s_cbranch_scc1 {Lnr}")
    Lred = A.new_label("red")
    Lredok = A.new_label("redok")
    RA = PA
    two = opts.get('rtwo', 0)

    if rt:
        A(f"s_memtime s[62:63]")
        A(f"s_lshl_b32 {s(sT0)}, {s(sH)}, 6")
        A(f"s_add_u32 {s(sT0)}, {s(sT0)}, {s(sS)}")
        A(f"s_lshl_b32 {s(sT0)}, {s(sT0)}, 6")
        A(f"s_add_u32 {s(sT0)}, {s(sT0)}, {WS_T + 0x10000:#x}")
        A(f"s_waitcnt lgkmcnt(0)")
        A(f"v_mov_b32 {v(vT0)}, s16")
        for k in range(1, 8):
            A(f"v_writelane_b32 {v(vT0)}, s{16 + 2*k}, {k}")
        A(f"v_writelane_b32 {v(vT0)}, s{sCP0}, 8")
        A(f"v_writelane_b32 {v(vT0)}, s{sRet}, 9")
        A(f"v_lshrrev_b32 {v(vT1)}, 2, {v(vL16)}")
        A(f"s_mov_b64 exec, 0x3ff")
        A(f"buffer_store_dword {v(vT0)}, {v(vT1)}, {s(S_WS,4)}, {s(sT0)} offen")
        A(f"s_mov_b64 exec, -1")
        A(f"s_mov_b32 s16, s62")
        A(f"s_mov_b32 {s(sCP0)}, 0")
    zero_acc()
    A(f"v_xor_b32 {v(vTagE)}, 1, {v(vTagE)}")
    bookkeeping()
    bookkeeping2()
    A(f"s_mov_b32 {s(sRet)}, 0")
    RS = [[X + 4 * i for i in range(8)], [Y + 4 * i for i in range(6)] + [PA + 8, PA + 12]]
    mode = opts.get('rmode', 1)

    def ld(R, i):
        A(f"buffer_load_dwordx4 {v(R[i],4)}, {v(vRed)}, {s(S_WS,4)}, {0 if i < 4 else s(sSlotP4)} offen offset:{(i%4)*1024} sc1")

    def chk(R, other, cnt, first=False):
        ys = [vT0, vT1, vS0, vT1, vS0, vT1, vS0, vT1]
        if rt:
            A(f"s_add_u32 {s(sCP0)}, {s(sCP0)}, 1")
        for i in range(8):
            A(f"s_waitcnt vmcnt({cnt(i)})")
            if first and i == 0:
                rstamp(2)
            if first and i == 7:
                rstamp(3)
            c = "0" if i == 0 else v(RA, 4)
            A(f"v_mfma_f32_16x16x32_bf16 {v(RA,4)}, {v(R[i],4)}, {v(vSEL,4)}, {c}")
            if other is not None:
                ld(other, i)
            A(f"v_bitop3_b32 {v(ys[i])}, {v(R[i])}, {v(R[i]+2)}, {v(vTagE)} bitop3:0x7e")
            if i in (2, 4, 6):
                A(f"v_or3_b32 {v(vT0)}, {v(vT0)}, {v(vT1)}, {v(vS0)}")
        A(f"v_bitop3_b32 {v(vT0)}, {v(vT0)}, {v(vT1)}, 1 bitop3:0xa8")
        A(f"v_cmp_ne_u32 vcc, 0, {v(vT0)}")
    for _ in range(opts.get('rdelay', 0)):
        A(f"s_sleep 1")
    rstamp(1)
    for i in range(8):
        ld(RS[0], i)
    Lrfail = A.new_label("rfail")
    if mode == 2:
        for _ in range(opts.get('rspace', 1)):
            A(f"s_sleep 1")
        for i in range(8):
            ld(RS[1], i)
        chk(RS[0], None, lambda i: 15 - i, True)
    elif mode == 1:
        chk(RS[0], RS[1], lambda i: 7, True)
    else:
        chk(RS[0], None, lambda i: 7 - i, True)
    A(f"s_cbranch_vccnz {Lrfail}")
    A.label(Lredok)
    rstamp(4)
    A(f"s_nop {3 if mode == 1 else 4}")
    A(f"v_cvt_pk_bf16_f32 {v(RA+4)}, {v(RA)}, {v(RA+1)}")
    A(f"v_cvt_pk_bf16_f32 {v(RA+5)}, {v(RA+2)}, {v(RA+3)}")
    A(f"buffer_store_dwordx2 {v(RA+4,2)}, {v(vMst)}, {s(S_WS,4)}, {s(sSlotM)} offen{st}")
    A(f"s_branch {Lar}")
    A.label(Lrfail)
    if opts.get('hist'):
        A(f"s_add_u32 {s(sCP0)}, {s(sCP0)}, 1")
    if mode == 0:
        for i in range(8):
            ld(RS[1], i)
    A.label(Lred)
    Lredok2 = A.new_label("redok2") if RBT else Lredok
    chk(RS[1], RS[0], lambda i: 7)
    A(f"s_cbranch_vccz {Lredok2}")
    if opts.get('hist'):
        A(f"s_add_u32 {s(sCP0)}, {s(sCP0)}, 0x1000")
    chk(RS[0], RS[1], lambda i: 7)
    A(f"s_cbranch_vccz {Lredok2}")
    if opts.get('hist'):
        A(f"s_add_u32 {s(sCP0)}, {s(sCP0)}, 0x1000000")
    A(f"s_add_u32 {s(sRet)}, {s(sRet)}, 1")
    A(f"s_cmp_lg_u32 {s(sDEAD)}, 0")
    A(f"s_cbranch_scc1 {Lredok2}")
    A(f"s_cmp_lt_u32 {s(sRet)}, {RED_LIMIT}")
    A(f"s_cbranch_scc1 {Lred}")
    A(f"s_mov_b32 {s(sDEAD)}, 1")
    if RBT:
        A.label(Lredok2)
        A(f"s_waitcnt vmcnt(0)")
    A(f"s_branch {Lredok}")
    A.label(Lnr)
    Lfok = A.new_label("fok")
    Lfsp = A.new_label("fsp")
    A(f"s_mov_b32 {s(sRet)}, 0")
    A(f"s_waitcnt vmcnt({10 + (2 if KP == 0 else 0) + nw1 + (2 if VP == 0 and VAT > 12 else 0)})")
    A(f"v_readfirstlane_b32 {s(sT0)}, {v(vFlag)}")
    zero_acc()
    A(f"s_cmp_ge_u32 {s(sT0)}, {s(sNeed)}")
    A(f"s_cbranch_scc1 {Lfok}")
    A(f"s_cmp_lg_u32 {s(sDEAD)}, 0")
    A(f"s_cbranch_scc1 {Lfok}")
    A(f"s_mov_b32 {s(sRet)}, 0")
    A.label(Lfsp)
    A(f"buffer_load_dword {v(vFlag)}, off, {s(S_WS,4)}, {s(sFo)} sc1")
    A(f"s_waitcnt vmcnt(0)")
    A(f"v_readfirstlane_b32 {s(sT0)}, {v(vFlag)}")
    A(f"s_cmp_ge_u32 {s(sT0)}, {s(sNeed)}")
    A(f"s_cbranch_scc1 {Lfok}")
    A(f"s_sleep 1")
    A(f"s_add_u32 {s(sRet)}, {s(sRet)}, 1")
    A(f"s_cmp_lt_u32 {s(sRet)}, {SPIN_LIMIT}")
    A(f"s_cbranch_scc1 {Lfsp}")
    A(f"s_mov_b32 {s(sDEAD)}, 1")
    A.label(Lfok)
    if TRACE[0]:
        Lsl = A.new_label("tr")
        A(f"s_cmp_lg_u32 {s(sWAVE)}, {opts.get('tw', 1)}")
        A(f"s_cbranch_scc1 {Lsl}")
        A(f"s_lshl_b32 {s(sT0)}, {s(sH)}, 6")
        A(f"s_add_u32 {s(sT0)}, {s(sT0)}, {s(sS)}")
        A(f"s_lshl_b32 {s(sT0)}, {s(sT0)}, 5")
        A(f"s_add_u32 {s(sT0)}, {s(sT0)}, {WS_T + 0x10000:#x}")
        A(f"s_waitcnt lgkmcnt(0)")
        A(f"v_mov_b32 {v(vT0)}, s16")
        for k in range(1, 8):
            A(f"v_writelane_b32 {v(vT0)}, s{16 + 2*k}, {k}")
        A(f"v_lshrrev_b32 {v(vT1)}, 2, {v(vL16)}")
        A(f"s_mov_b64 exec, 0xff")
        A(f"buffer_store_dword {v(vT0)}, {v(vT1)}, {s(S_WS,4)}, {s(sT0)} offen")
        A(f"s_mov_b64 exec, -1")
        A.label(Lsl)
    if opts.get('steplog'):
        Lsl = A.new_label("sl")
        A(f"s_cmp_lg_u32 {s(sWAVE)}, 1")
        A(f"s_cbranch_scc1 {Lsl}")
        A(f"s_memrealtime s[62:63]")
        A(f"s_memtime s[16:17]")
        A(f"s_lshl_b32 {s(sT0)}, {s(sH)}, 6")
        A(f"s_add_u32 {s(sT0)}, {s(sT0)}, {s(sS)}")
        A(f"s_lshl_b32 {s(sT0)}, {s(sT0)}, 3")
        A(f"s_add_u32 {s(sT0)}, {s(sT0)}, {WS_T + (0x30000 if opts.get('prof') else 0x8000):#x}")
        A(f"s_waitcnt lgkmcnt(0)")
        A(f"v_mov_b32 {v(vT0)}, s62")
        A(f"v_mov_b32 {v(vT1)}, s16")
        A(f"s_mov_b64 exec, 1")
        A(f"buffer_store_dwordx2 {v(vT0,2)}, off, {s(S_WS,4)}, {s(sT0)}")
        A(f"s_mov_b64 exec, -1")
        A.label(Lsl)
    bookkeeping()
    bookkeeping2()
    rearm(2, True)
    A(f"s_branch {Lar}")
    A.label(Lretry0)
    if opts.get('hist'):
        A(f"s_add_u32 {s(sCP1)}, {s(sCP1)}, 1")
    GM = opts.get('gm', 0)

    def re_issue(R):
        if GM & 1:
            A(f"s_mov_b64 exec, vcc")
        con_issue(R)
        if GM & 1:
            A(f"s_mov_b64 exec, -1")
    if GM:
        re_issue(H0)
        A(f"s_nop {3 if GM & 1 else 5}")
    else:
        A(f"s_nop 7")
    for i in range(4):
        A(f"v_mov_b64 {v(AQ+2*i,2)}, 0")
    if not GM:
        con_issue(H0)
    A(f"s_waitcnt vmcnt({4 if G3 else 2})")
    A(f"ds_write_b128 {v(vMw)}, {v(H1,4)}")
    A(f"v_max3_u32 {v(Y)}, {v(H1)}, {v(H1+2)}, {v(H1+4)}")
    A(f"ds_write_b128 {v(vMw)}, {v(H1+4,4)} offset:1024")
    A(f"v_max_u32 {v(Y)}, {v(Y)}, {v(H1+6)}")
    A(f"v_cmp_eq_u32 vcc, -1, {v(Y)}")
    A(f"s_add_u32 {s(sRet)}, {s(sRet)}, 1")
    A(f"s_cbranch_vccz {Lown[1]}")
    if opts.get('hist'):
        A(f"s_add_u32 {s(sCP1)}, {s(sCP1)}, 0x10000")
    re_issue(H1)
    if G3:
        Lown2 = f"L_own2_{tag}"
        A(f"s_waitcnt vmcnt(4)")
        A(f"ds_write_b128 {v(vMw)}, {v(H2,4)}")
        A(f"v_max3_u32 {v(Y)}, {v(H2)}, {v(H2+2)}, {v(H2+4)}")
        A(f"ds_write_b128 {v(vMw)}, {v(H2+4,4)} offset:1024")
        A(f"v_max_u32 {v(Y)}, {v(Y)}, {v(H2+6)}")
        A(f"v_cmp_eq_u32 vcc, -1, {v(Y)}")
        A(f"s_add_u32 {s(sRet)}, {s(sRet)}, 1")
        A(f"s_cbranch_vccz {Lown2}")
        con_issue(H2)
    A(f"s_cmp_lg_u32 {s(sDEAD)}, 0")
    A(f"s_cbranch_scc1 {Lown[1]}")
    A(f"s_cmp_lt_u32 {s(sRet)}, {RED_LIMIT}")
    A(f"s_cbranch_scc1 {Lspec}")
    A(f"s_mov_b32 {s(sDEAD)}, 1")
    A.label(Lown[1])
    own(H1, False)
    A(f"s_branch {Lcommon}")
    if G3:
        A.label(Lown2)
        own(H2, False)
        A(f"s_branch {Lcommon}")
    A.label(Llast)
    A(f"s_waitcnt vmcnt(0) lgkmcnt(0)")
    if opts.get('hist'):
        A(f"s_lshl_b32 {s(sT0)}, {s(sH)}, 2")
        A(f"s_add_u32 {s(sT0)}, {s(sT0)}, {s(sWAVE)}")
        A(f"s_lshl_b32 {s(sT0)}, {s(sT0)}, 3")
        A(f"s_add_u32 {s(sT0)}, {s(sT0)}, {WS_T + 0x40000:#x}")
        A(f"v_mov_b32 {v(vT0)}, {s(sCP0)}")
        A(f"v_mov_b32 {v(vT1)}, {s(sCP1)}")
        A(f"s_mov_b64 exec, 1")
        A(f"buffer_store_dwordx2 {v(vT0,2)}, off, {s(S_WS,4)}, {s(sT0)}")
        A(f"s_mov_b64 exec, -1")
        A(f"s_waitcnt vmcnt(0)")
    if fast and opts.get('cwb'):
        Lwb = A.new_label("cwb")
        A(f"s_cmp_lg_u32 {s(sWAVE)}, 0")
        A(f"s_cbranch_scc1 {Lwb}")
        A(f"buffer_wbl2 sc1")
        A(f"s_waitcnt vmcnt(0)")
        A.label(Lwb)
    if cp and not TRACE[0]:
        for i in range(1, 10):
            A(f"s_mov_b32 s{92+i}, s{16+2*(i-1) if i < 9 else 62}")
        A(f"s_lshl_b32 {s(sCP1)}, {s(sCP1)}, 16")
        A(f"s_or_b32 s92, {s(sCP0)}, {s(sCP1)}")
        A("s_branch L_flush")
    A(f"s_branch L_role_end")


def kv_polls(A):
    for j in range(2):
        Lp = A.new_label("kvp")
        Ld = A.new_label("kvd")
        A(f"s_mov_b32 {s(sRet)}, 0")
        A(f"s_cmp_lg_u32 {s(sDEAD)}, 0")
        A(f"s_cbranch_scc1 {Ld}")
        A.label(Lp)
        A(f"buffer_load_dword {v(vFlag)}, off, {s(S_WS,4)}, {s(sT5)} offset:{4*j} sc1")
        A(f"s_waitcnt vmcnt(0)")
        A(f"v_readfirstlane_b32 {s(sT0)}, {v(vFlag)}")
        A(f"s_cmp_ge_u32 {s(sT0)}, 1")
        A(f"s_cbranch_scc1 {Ld}")
        A(f"s_sleep 1")
        A(f"s_add_u32 {s(sRet)}, {s(sRet)}, 1")
        A(f"s_cmp_lt_u32 {s(sRet)}, {SPIN_LIMIT}")
        A(f"s_cbranch_scc1 {Lp}")
        A(f"s_mov_b32 {s(sDEAD)}, 1")
        A.label(Ld)


def fb_consts(A):
    A(f"s_cmp_eq_u32 {s(sWAVE)}, 0")
    A(f"s_cselect_b32 {s(sFb)}, {OOB:#x}, {s(sT5)}")
    A(f"s_add_u32 {s(sFo)}, {s(sFb)}, 8")


def gen_late_start(A, opts, vL):
    mk_srd(A, S_A, P_MEM0, 8192)
    A(f"s_lshl_b32 {s(sT0)}, {s(sWAVE)}, 8")
    lane_expr(A, vT0, vL, [(2, 2, 2048), (0, 1, 1024), (1, 1, 64), (4, 2, 16)], sregs=[sT0])
    A(f"buffer_load_dwordx4 {v(X+24,4)}, {v(vT0)}, {s(S_A,4)}, 0 offen")
    A(f"buffer_load_dwordx4 {v(X+28,4)}, {v(vT0)}, {s(S_A,4)}, 0 offen offset:128")
    A(f"s_waitcnt vmcnt(0)")
    A(f"ds_write_b128 {v(vMw)}, {v(X+24,4)}")
    A(f"ds_write_b128 {v(vMw)}, {v(X+28,4)} offset:1024")
    for i in range(16):
        A(f"v_mov_b32 {v(ACC+i)}, 0")
    for i in range(8):
        A(f"v_mov_b32 {v(Y+24+i)}, 0")
    fb_consts(A)
    A(f"v_mov_b32 {v(vT1)}, 0")
    A(f"s_mov_b32 {s(sT2)}, {D_CHECKIN*4}")
    A(f"s_mov_b32 {s(sT3)}, 0")
    wait_byte(A, vFlag, vT1, sT2, sT3, 32, "ci", sleep=1)
    A(f"buffer_load_dword {v(vFlag)}, {v(vT1)}, {s(S_DBG,4)}, 0 offen offset:{D_CHECKIN*4} sc1")
    A(f"s_getreg_b32 {s(sT0)}, hwreg(HW_REG_XCC_ID, 0, 4)")
    A(f"s_mul_i32 {s(sT1)}, {s(sT0)}, {s(sT0)}")
    A(f"s_lshl_b32 {s(sT1)}, {s(sT1)}, 22")
    A(f"s_lshl_b32 {s(sT0)}, {s(sT0)}, 13")
    A(f"s_add_u32 {s(sT0)}, {s(sT0)}, {s(sT1)}")
    A(f"s_add_u32 {s(sT0)}, {s(sT0)}, 32")
    A(f"s_waitcnt vmcnt(0)")
    A(f"v_readfirstlane_b32 {s(sT1)}, {v(vFlag)}")
    A(f"s_cmp_eq_u32 {s(sT0)}, {s(sT1)}")
    A(f"s_cselect_b32 {s(sFastF)}, 1, 0")
    kv_polls(A)
    A(f"s_mov_b32 m0, {s(sM0K)}")
    A(f"s_nop 0")
    for i in range(2):
        A(f"buffer_load_dwordx4 {v(vL16)}, {s(S_WS,4)}, {s(sKn)} offen offset:{1024*i} lds")


def gen_chain(A, opts):
    global RT
    RT = bool(opts.get('rt'))
    CSTEP[0] = opts.get('cstep', 39)
    TRACE[0] = bool(opts.get('trace'))
    FTR[0] = opts.get('ftr', 0)
    vL = 13
    A(f"s_xor_b32 {s(sH)}, {s(sIDX)}, {opts.get('hperm', 0)}")
    A(f"v_and_b32 {v(vL)}, 63, v0")
    mk_srd(A, S_A, P_WQ, 512 * 8192)
    mk_srd(A, S_B, P_WK, 512 * 8192)
    mk_srd(A, S_C, P_WV, 512 * 8192)
    mk_srd(A, S_D, P_WO, 4096 * 1024)
    A(f"v_lshlrev_b32 {v(vL16)}, 4, {v(vL)}")
    vMre = 2
    vG, vGo, vSW, vSWo, vTRb, vTRo, vTA = 116, 117, 118, 122, 124, 125, 126
    POOL = [40, 72]
    TEMPS = [104, 32]
    sXo = sRo + 1
    A(f"s_lshl_b32 {s(sT0)}, {s(sH)}, 8")
    A(f"s_lshl_b32 {s(sT1)}, {s(sWAVE)}, 20")
    A(f"s_add_u32 {s(sT0)}, {s(sT0)}, {s(sT1)}")
    lane_expr(A, vG, vL, [(4, 2, 8192), (0, 4, 16)], sregs=[sT0])
    A(f"s_lshl_b32 {s(sT0)}, {s(sH)}, 17")
    A(f"s_lshl_b32 {s(sT1)}, {s(sWAVE)}, 8")
    A(f"s_add_u32 {s(sT0)}, {s(sT0)}, {s(sT1)}")
    lane_expr(A, vGo, vL, [(4, 2, 1024), (0, 4, 16)], sregs=[sT0])
    A(f"s_lshl_b32 {s(sXo)}, {s(sWAVE)}, 15")

    RIDX = {0: 0, 1: 1, 4: 2, 5: 3, 6: 4, 7: 5}
    wo_ops = [(cg, 0) for cg in range(4)] + [(cg, ks) for cg in range(4) for ks in range(1, 4)]
    WORR = [('a', 224), ('a', 232), ('a', 240), ('a', 248), ('v', 224), ('v', 232), ('v', 240), ('v', 248)]

    def arm():
        for i in range(4):
            A(f"v_mov_b32 {v(vSEL+i)}, -1")
        A(f"s_lshl_b32 {s(sT0)}, {s(sH)}, 13")
        A(f"s_lshl_b32 {s(sT1)}, {s(sWAVE)}, 11")
        A(f"s_add_u32 {s(sT0)}, {s(sT0)}, {s(sT1)}")
        A(f"v_bfe_u32 {v(vT0)}, {v(vL)}, 4, 1")
        for i in range(4):
            A(f"v_xor_b32 {v(ACC+i)}, -1, {v(vT0)}")
        vq.issue('st', f"buffer_store_dwordx4 {v(ACC,4)}, {v(vL16)}, {s(S_WS,4)}, {s(sT0)} offen sc1")
        vq.issue('st', f"buffer_store_dwordx4 {v(ACC,4)}, {v(vL16)}, {s(S_WS,4)}, {s(sT0)} offen offset:1024 sc1")
        A(f"s_lshl_b32 {s(sT2)}, {s(sH)}, 8")
        A(f"v_add_u32 {v(vT0)}, {s(sT2)}, {v(vL16)}")
        A(f"v_cmp_gt_u32 vcc, 16, {v(vL)}")
        A(f"v_mov_b32 {v(vT1)}, {OOB:#x}")
        A.nop(1)
        A(f"v_cndmask_b32 {v(vMre)}, {v(vT1)}, {v(vT0)}, vcc")
        for sl in range(4):
            A(f"s_mov_b32 {s(sT1)}, {WS_M + sl*8192:#x}")
            vq.issue('st', f"buffer_store_dwordx4 {v(vSEL,4)}, {v(vMre)}, {s(S_WS,4)}, {s(sT1)} offen sc1")
        Z = 20
        for i in range(4):
            A(f"v_mov_b32 {v(Z+i)}, 0")
        A(f"v_cndmask_b32 {v(Z+4)}, {v(vT1)}, {v(vL16)}, vcc")
        A(f"s_lshl_b32 {s(sT1)}, {s(sH)}, 8")
        A(f"s_add_u32 {s(sT1)}, {s(sT1)}, {WS_OF:#x}")
        vq.issue('st', f"buffer_store_dwordx4 {v(Z,4)}, {v(Z+4)}, {s(S_WS,4)}, {s(sT1)} offen sc1")
        A(f"v_cmp_gt_u32 vcc, 8, {v(vL)}")
        A.nop(2)
        A(f"v_cndmask_b32 {v(Z+5)}, {v(vT1)}, {v(vL16)}, vcc")
        A(f"s_lshl_b32 {s(sT1)}, {s(sH)}, 7")
        A(f"s_add_u32 {s(sT1)}, {s(sT1)}, {WS_KVF:#x}")
        vq.issue('st', f"buffer_store_dwordx4 {v(Z,4)}, {v(Z+5)}, {s(S_WS,4)}, {s(sT1)} offen sc1")

    def qkv_unit(m, hp, x):
        u = dict(kind='qkv', m=m, hp=hp, x=x, srd={'q': S_A, 'k': S_B, 'v': S_C}[m], needs_temp=(m != 'q'))
        u['soff'] = [(64 * hp + 16 * x + 4 * (k & 3) + 32 * (k >> 2)) * 8192 for k in range(8)]
        return u

    def bind(u, temp):
        if u['kind'] == 'qkv':
            m, hp, x = u['m'], u['hp'], u['x']
            res = []
            for i in range(4):
                sl = hp + 2 * i
                for t_ in range(2):
                    if m == 'q':
                        res.append((('a', 16 * sl + 8 * t_ + 4 * x), None))
                    elif sl in (2, 3):
                        fi = (0 if m == 'k' else 4) + 2 * (sl - 2) + t_
                        res.append((('v', temp + 4 * t_), fi * 2048 + 1024 * x))
                    else:
                        res.append(((('a' if m == 'k' else 'v'), 128 + 16 * RIDX[sl] + 8 * t_ + 4 * x), None))
            u['raw'] = [r[0] for r in res]
            u['res'] = res
        else:
            u['raw'] = [('v', temp + 4 * k) for k in range(8)]

    def wo_unit(ks):
        return dict(kind='wo', ks=ks, srd=S_D, soff=[(32 * ks + 4 * k) * 1024 for k in range(8)])
    U = {f"O{k}": wo_unit(k) for k in range(4)}
    for m in 'qkv':
        for hp in range(2):
            for x in range(2):
                U[f"{m.upper()}{hp}{x}"] = qkv_unit(m, hp, x)
    order = {0: "O0 O1 Q00 Q01 Q10 Q11 O2 O3 K00 K01 K10 K11 V00 V01 V10 V11",
             1: "Q00 Q01 Q10 Q11 O0 O1 K00 K01 O2 O3 K10 K11 V00 V01 V10 V11",
             2: "K00 K01 Q00 Q01 Q10 Q11 O0 O1 K10 K11 O2 O3 V00 V01 V10 V11",
             3: "O0 O1 Q00 Q01 Q10 Q11 O2 O3 V00 V01 V10 V11 K00 K01 K10 K11",
             4: "K00 K01 K10 K11 V00 V01 V10 V11 Q00 Q01 Q10 Q11 O0 O1 O2 O3",
             5: "K00 K01 K10 K11 V00 V01 V10 V11 Q00 O0 Q01 O1 Q10 O2 Q11 O3",
             6: "O0 O1 K00 K01 K10 K11 V00 V01 V10 V11 Q00 O2 Q01 O3 Q10 Q11",
             8: "K00 K01 K10 K11 V00 V01 V10 V11 O0 O1 O2 O3 Q00 Q01 Q10 Q11",
             7: "K00 K01 K10 K11 O0 V00 V01 O1 V10 V11 Q00 O2 Q01 O3 Q10 Q11"}[opts.get('word', 0)].split()
    units = [U[n] for n in order]
    vq = Q(A, "vmcnt", 63)
    nst = 8
    ARMLATE = opts.get('armlate', 1)
    if not ARMLATE:
        arm()
    busy = set()
    TPREF = [40, 48, 56, 64, 104, 32, 72, 80, 88, 96]
    PPREF = [72, 40]

    def alloc_temp():
        for g in TPREF:
            if g not in busy:
                busy.add(g)
                return g
        return None

    def alloc_pool():
        for p in PPREF:
            gs = [p + 8 * j for j in range(4)]
            if not any(g in busy for g in gs):
                busy.update(gs)
                return p
        return None
    held = {}
    WIN = opts.get('cwin', 56)
    st_ = dict(issued=0)

    def inflight():
        return len(vq.ops)

    EARLY = opts.get('early', 1)
    vEK, vEM, vEF, vEC, vEA = 104, 32, 112, 114, 115
    vEV = 96
    DMI = opts.get('vpos', 0) != 0

    def early_issue():
        assert 104 not in busy and 32 not in busy
        busy.update((104, 32))
        if DMI:
            assert vEV not in busy
            busy.add(vEV)
        mk_srd(A, S_X, P_MEM0, 8192)
        A(f"s_lshl_b32 {s(sT0)}, {s(sWAVE)}, 8")
        lane_expr(A, vEA, vL, [(2, 2, 2048), (0, 1, 1024), (1, 1, 64), (4, 2, 16)], sregs=[sT0])
        vq.issue('fl', f"buffer_load_dwordx2 {v(vEF,2)}, off, {s(S_WS,4)}, {s(sT5)} sc1")
        vq.issue('ci', f"buffer_load_dword {v(vEC)}, off, {s(S_DBG,4)}, 0 offset:{D_CHECKIN*4} sc1")
        vq.issue('m0', f"buffer_load_dwordx4 {v(vEM,4)}, {v(vEA)}, {s(S_X,4)}, 0 offen")
        vq.issue('m0', f"buffer_load_dwordx4 {v(vEM+4,4)}, {v(vEA)}, {s(S_X,4)}, 0 offen offset:128")

    def early_k():
        vq.wait('fl')
        A(f"v_min_u32 {v(vEF)}, {v(vEF)}, {v(vEF+1)}")
        A.nop(1)
        A(f"v_readfirstlane_b32 {s(sT0)}, {v(vEF)}")
        A(f"s_cmp_ge_u32 {s(sT0)}, 1")
        A(f"s_cselect_b32 {s(sKok)}, 1, 0")
        A(f"s_cselect_b32 {s(sT1)}, {s(sKn)}, {OOB:#x}")
        vq.issue('kx', f"buffer_load_dwordx4 {v(vEK,4)}, {v(vL16)}, {s(S_WS,4)}, {s(sT1)} offen")
        vq.issue('kx', f"buffer_load_dwordx4 {v(vEK+4,4)}, {v(vL16)}, {s(S_WS,4)}, {s(sT1)} offen offset:1024")
        if DMI:
            A(f"s_add_u32 {s(sT1)}, {s(sT1)}, 8192")
            vq.issue('kx', f"buffer_load_dwordx4 {v(vEV,4)}, {v(vL16)}, {s(S_WS,4)}, {s(sT1)} offen")
            vq.issue('kx', f"buffer_load_dwordx4 {v(vEV+4,4)}, {v(vL16)}, {s(S_WS,4)}, {s(sT1)} offen offset:1024")

    def try_issue():
        while st_['issued'] < len(units):
            u = units[st_['issued']]
            limit = min(WIN + (nst if 'st' in vq.ops else 0), 62)
            if EARLY and st_['issued'] == len(units) - 1 and not st_.get('early'):
                if inflight() + 8 > limit or 104 in busy or 32 in busy or (DMI and vEV in busy):
                    return
                early_issue()
                st_['early'] = True
                limit += 4
            elif EARLY and st_.get('early'):
                limit += 4
            if inflight() + 8 > limit:
                return
            if u['kind'] == 'wo':
                tmp = alloc_pool()
                if tmp is None:
                    return
                held[id(u)] = ('pool', tmp)
            elif u['needs_temp']:
                tmp = alloc_temp()
                if tmp is None:
                    return
                held[id(u)] = ('temp', tmp)
            else:
                tmp = None
            bind(u, tmp)
            for k in range(8):
                if u['kind'] == 'wo':
                    A(f"s_xor_b32 {s(sT0)}, {u['soff'][k]:#x}, {s(sXo)}")
                    vq.issue(id(u), f"buffer_load_dwordx4 {reg(u['raw'][k], 4)}, {v(vGo)}, {s(u['srd'],4)}, {s(sT0)} offen" + WPOL[opts.get('wnto', 0)])
                else:
                    A(f"s_mov_b32 {s(sT0)}, {u['soff'][k]:#x}")
                    vq.issue(id(u), f"buffer_load_dwordx4 {reg(u['raw'][k], 4)}, {v(vG)}, {s(u['srd'],4)}, {s(sT0)} offen" + WPOL[opts.get('wnt', 0)])
            st_['issued'] += 1
    stamp(A, 1) if not opts.get('cprof') else None
    try_issue()
    if ARMLATE:
        arm()
    A(f"s_lshl_b32 {s(sT2)}, {s(sWAVE)}, 13")
    lane_expr(A, vSW, vL, [(4, 2, 256), (1, 3, 32), (0, 1, 16)], sregs=[sT2])
    A(f"v_mov_b32 {v(vSWo)}, {v(vSW)}")
    A(f"v_bfe_u32 {v(vTA)}, {v(vL)}, 4, 1")
    A(f"v_lshlrev_b32 {v(vT0)}, 5, {v(vTA)}")
    A(f"v_xor_b32 {v(vSW)}, {v(vSW)}, {v(vT0)}")
    A(f"v_lshlrev_b32 {v(vT0)}, 6, {v(vTA)}")
    A(f"v_xor_b32 {v(vSWo)}, {v(vSWo)}, {v(vT0)}")
    A(f"v_xor_b32 {v(vSW+1)}, 64, {v(vSW)}")
    A(f"v_xor_b32 {v(vSW+2)}, 0x80, {v(vSW)}")
    A(f"v_xor_b32 {v(vSW+3)}, 0xc0, {v(vSW)}")
    A(f"v_xor_b32 {v(vSWo+1)}, 0x80, {v(vSWo)}")
    A(f"s_lshl_b32 {s(sT3)}, {s(sWAVE)}, 6")
    lane_expr(A, vTRb, vL, [(2, 1, 256 + 32), (4, 1, 1024 + 64), (5, 1, 2048), (3, 1, 4096 + 128), (0, 2, 8)])
    A(f"v_xor_b32 {v(vTRb)}, {s(sT3)}, {v(vTRb)}")
    A(f"v_add_u32 {v(vTRb)}, {s(sT2)}, {v(vTRb)}")
    lane_expr(A, vTRo, vL, [(2, 1, 256 + 64), (4, 1, 4096 + 128), (5, 1, 1024), (3, 1, 32), (0, 2, 8)], sregs=[sT2])
    A(f"s_lshl_b32 {s(sT0)}, {s(sWAVE)}, 15")
    A(f"s_add_u32 {s(sT0)}, {s(sT0)}, {WO_OFF}")
    A(f"v_add_u32 {v(vWo)}, {s(sT0)}, {v(vL16)}")
    def checkin():
        vq.wait('st')
        A(f"s_barrier")
        Lci = A.new_label("ci")
        A(f"s_cmp_lg_u32 {s(sWAVE)}, 0")
        A(f"s_cbranch_scc1 {Lci}")
        A(f"s_getreg_b32 {s(sT0)}, hwreg(HW_REG_XCC_ID, 0, 4)")
        A(f"s_mul_i32 {s(sT1)}, {s(sT0)}, {s(sT0)}")
        A(f"s_lshl_b32 {s(sT1)}, {s(sT1)}, 17")
        A(f"s_lshl_b32 {s(sT0)}, {s(sT0)}, 8")
        A(f"s_add_u32 {s(sT0)}, {s(sT0)}, {s(sT1)}")
        A(f"s_add_u32 {s(sT0)}, {s(sT0)}, 1")
        A(f"v_mov_b32 {v(vT0)}, {s(sT0)}")
        A(f"v_mov_b32 {v(vT1)}, 0")
        A(f"s_mov_b64 exec, 1")
        A(f"buffer_atomic_add {v(vT0)}, {v(vT1)}, {s(S_DBG,4)}, 0 offen offset:{D_CHECKIN*4} sc1")
        A(f"s_mov_b64 exec, -1")
        A.label(Lci)

    if not ARMLATE:
        checkin()
        try_issue()
    A(f"s_lshr_b32 {s(sT3)}, {s(sH)}, 2")
    A(f"s_lshl_b32 {s(sT3)}, {s(sT3)}, 10")
    A(f"s_and_b32 {s(sT4)}, {s(sH)}, 1")
    A(f"s_lshl_b32 {s(sT4)}, {s(sT4)}, 9")
    A(f"s_add_u32 {s(sT3)}, {s(sT3)}, {s(sT4)}")
    A(f"s_and_b32 {s(sT4)}, {s(sH)}, 2")
    A(f"s_lshl_b32 {s(sT4)}, {s(sT4)}, 4")
    A(f"s_add_u32 {s(sT3)}, {s(sT3)}, {s(sT4)}")
    lane_expr(A, vMst, vL, [(5, 1, 256), (1, 2, 64), (0, 1, 16), (4, 1, 8)], sregs=[sT3])
    A(f"v_and_b32 {v(vT1)}, 8, {v(vL)}")
    A(f"v_lshlrev_b32 {v(vT1)}, 27, {v(vT1)}")
    A(f"v_add_u32 {v(vMst)}, {v(vMst)}, {v(vT1)}")
    A(f"s_cmp_eq_u32 {s(sWAVE)}, 0")
    Lw0 = A.new_label("w0")
    A(f"s_cbranch_scc1 {Lw0}")
    A(f"v_mov_b32 {v(vMst)}, {v(vMre)}")
    A(f"s_cmp_eq_u32 {s(sWAVE)}, 3")
    A(f"s_cbranch_scc1 {Lw0}")
    A(f"v_mov_b32 {v(vMst)}, {OOB:#x}")
    A.label(Lw0)
    for (dst, bit) in ((vIdx, 2), (vIdxW, 8)):
        A(f"v_mov_b32 {v(dst)}, 0x4444")
        A(f"v_mov_b32 {v(vT0)}, 0xeeee")
        A(f"v_and_b32 {v(vT1)}, {bit}, {v(vL)}")
        A(f"v_cmp_ne_u32 vcc, 0, {v(vT1)}")
        A.nop(2)
        A(f"v_cndmask_b32 {v(dst)}, {v(dst)}, {v(vT0)}, vcc")
    A(f"s_lshl_b32 {s(sT0)}, {s(sWAVE)}, 9")
    lane_expr(A, vQKw, vL, [(0, 4, 16), (4, 2, 4)], sregs=[sT0])
    A(f"s_lshl_b32 {s(sT0)}, {s(sWAVE)}, 10")
    A(f"s_lshr_b32 {s(sT1)}, {s(sWAVE)}, 1")
    A(f"s_lshl_b32 {s(sT1)}, {s(sT1)}, 11")
    A(f"s_add_u32 {s(sT0)}, {s(sT0)}, {s(sT1)}")
    lane_expr(A, vKw, vL, [(0, 4, 32), (4, 2, 8)], const=2048, sregs=[sT0])
    lane_expr(A, vKr, vL, [(5, 1, 512), (4, 1, 128), (2, 2, 32), (0, 2, 8)])
    lane_expr(A, vQKr, vL, [(5, 1, 256), (4, 1, 64), (2, 2, 16), (0, 1, 8)])
    A(f"s_lshl_b32 {s(sT0)}, {s(sWAVE)}, 9")
    lane_expr(A, vOw, vL, [(4, 2, 128), (0, 3, 16)], const=O_OFF, sregs=[sT0])
    A(f"s_lshl_b32 {s(sT0)}, {s(sWAVE)}, 11")
    A(f"s_add_u32 {s(sT0)}, {s(sT0)}, {MEM_OFF}")
    A(f"v_add_u32 {v(vMw)}, {s(sT0)}, {v(vL16)}")
    A(f"s_lshl_b32 {s(sT0)}, {s(sWAVE)}, 16")
    A(f"s_lshl_b32 {s(sT1)}, {s(sH)}, 8")
    lane_expr(A, vPst, vL, [(5, 1, 8192), (0, 4, 16), (4, 1, 8)], sregs=[sT0, sT1])
    A(f"s_lshl_b32 {s(sT0)}, {s(sH)}, 13")
    A(f"v_add_u32 {v(vRed)}, {s(sT0)}, {v(vL16)}")
    A(f"s_and_b32 {s(sT1)}, {s(sWAVE)}, 1")
    A(f"s_lshl_b32 {s(sT1)}, {s(sT1)}, 13")
    A(f"s_lshl_b32 {s(sT0)}, {s(sH)}, 14")
    A(f"s_add_u32 {s(sT0)}, {s(sT0)}, {s(sT1)}")
    A(f"v_lshlrev_b32 {v(vPf)}, 6, {v(vL)}")
    A(f"v_add_u32 {v(vPf)}, {s(sT0)}, {v(vPf)}")
    A(f"s_mov_b32 {s(sMLo)}, -1")
    A(f"s_mov_b32 {s(sMLo+1)}, 0")
    A(f"s_mov_b32 {s(sMHi)}, 0")
    A(f"s_mov_b32 {s(sMHi+1)}, -1")
    A(f"s_mov_b32 {s(sC)}, {f32_hex(SCALE_C):#x}")
    A(f"s_mov_b32 {s(sNC)}, {f32_hex(-SCALE_C):#x}")
    Lsel = A.new_label("sel")
    A(f"s_cmp_lg_u32 {s(sWAVE)}, 0")
    A(f"s_cbranch_scc1 {Lsel}")
    A(f"v_and_b32 {v(vT0)}, 15, {v(vL)}")
    A(f"v_mov_b32 {v(vS0)}, 0x3f80")
    A(f"v_mov_b32 {v(vT1)}, 0x3f800000")
    A(f"v_and_b32 v112, 1, {v(vT0)}")
    A(f"v_cmp_eq_u32 vcc, 1, v112")
    A.nop(2)
    A(f"v_cndmask_b32 {v(vS0)}, {v(vS0)}, {v(vT1)}, vcc")
    A(f"v_lshrrev_b32 {v(vT0)}, 1, {v(vT0)}")
    for i in range(4):
        A(f"v_cmp_eq_u32 vcc, {i}, {v(vT0)}")
        A.nop(2)
        A(f"v_cndmask_b32 {v(vSEL+i)}, 0, {v(vS0)}, vcc")
    A(f"v_bfe_u32 {v(vTagE)}, {v(vL)}, 4, 1")
    A(f"v_xor_b32 {v(vTagE)}, 1, {v(vTagE)}")
    A.label(Lsel)
    for i in range(4):
        A(f"v_mov_b32 {v(vONE+i)}, 0x3f803f80")
    for i in range(1, 4):
        A(f"v_mov_b32 {v(vBM+i)}, 0")

    A(f"s_lshl_b32 {s(sW2k)}, {s(sWAVE)}, 11")
    A(f"s_mov_b32 {s(sSlotP1)}, {WS_P + 16384}")
    A(f"s_mov_b32 {s(sPc2)}, {WS_P + 32768}")
    A(f"s_mov_b32 {s(sPc3)}, {WS_P + 49152}")
    A(f"s_mov_b32 {s(sSlotP4)}, {WS_P + 4096}")
    A(f"s_and_b32 {s(sTag)}, {s(sH)}, 1")
    A(f"s_xor_b32 {s(sTag)}, {s(sTag)}, 1")
    A(f"s_lshl_b32 {s(sT5)}, {s(sH)}, 7")
    A(f"s_add_u32 {s(sT5)}, {s(sT5)}, {WS_KVF:#x}")
    A(f"s_cmp_ge_u32 {s(sWAVE)}, 2")
    A(f"s_mov_b32 {s(sT0)}, {OOB:#x}")
    A(f"s_mov_b32 {s(sPf)}, {WS_KX + 0x80000:#x}")
    A(f"s_cselect_b32 {s(sPf)}, {s(sPf)}, {s(sT0)}")
    A(f"s_add_u32 {s(sM0K)}, {s(sW2k)}, {KX_OFF}")
    A(f"s_lshl_b32 {s(sKn)}, {s(sH)}, 14")
    A(f"s_add_u32 {s(sKn)}, {s(sKn)}, {s(sW2k)}")
    A(f"s_add_u32 {s(sKn)}, {s(sKn)}, {WS_KX:#x}")
    A(f"s_add_u32 {s(sM0V)}, {s(sW2k)}, {VX_OFF}")
    A(f"s_lshl_b32 {s(sKV)}, {s(sH)}, 14")
    A(f"s_add_u32 {s(sKV)}, {s(sKV)}, {s(sW2k)}")
    A(f"s_add_u32 {s(sKV)}, {s(sKV)}, {WS_KX:#x}")
    A(f"s_lshl_b32 {s(sKM)}, {s(sH)}, 12")
    A(f"s_add_u32 {s(sKM)}, {s(sKM)}, {WS_KM:#x}")
    A(f"s_mov_b32 {s(sJ4)}, 8")
    A(f"s_mov_b32 {s(sCn)}, 1")
    A(f"s_mov_b32 {s(sNeed)}, 1")
    for b, u in enumerate(units):
        assert st_['issued'] > b, "loader deadlock"
        if EARLY and b == len(units) - 1:
            assert st_.get('early')
            early_k()
        vq.wait(id(u))
        A(f"s_barrier")
        if u['kind'] == 'qkv':
            for k in range(8):
                A(f"ds_write_b128 {v(vSW + (k & 1) + 2 * (k >> 2))}, {reg(u['raw'][k], 4)} offset:{k * 1024}")
            A(f"s_waitcnt lgkmcnt(0)")
            A(f"s_barrier")
            x = u['x']
            for i in range(4):
                for t_ in range(2):
                    r_, fin = u['res'][2 * i + t_]
                    A(f"v_xor_b32 {v(vTA + (t_ & 1))}, {(i << 13) | (t_ << 5):#x}, {v(vTRb)}")
                    for q0 in range(2):
                        A(f"ds_read_b64_tr_b16 {reg(off(r_, 2 * q0), 2)}, {v(vTA + (t_ & 1))} offset:{512 * q0}")
            A(f"s_waitcnt lgkmcnt(0)")
            for (r_, fin) in u['res']:
                if fin is not None:
                    A(f"ds_write_b128 {v(vWo)}, {reg(r_, 4)} offset:{fin}")
        else:
            ks = u['ks']
            for k in range(8):
                A(f"ds_write_b128 {v(vSWo + (k >> 2))}, {reg(u['raw'][k], 4)} offset:{k * 1024}")
            base = u['raw'][0][1]
            fins = []
            for cg in range(4):
                io = wo_ops.index((cg, ks))
                dst = WORR[io] if io < 8 else ('v', base + 8 * cg)
                A(f"v_xor_b32 {v(vTA + (cg & 1))}, {cg << 6:#x}, {v(vTRo)}")
                for i in range(4):
                    A(f"ds_read_b64_tr_b16 {reg(off(dst, 2 * i), 2)}, {v(vTA + (cg & 1))} offset:{(8 * (i >> 1) + 2 * (i & 1)) * 256}")
                if io >= 8:
                    fins.append((dst, io * 2048))
            A(f"s_waitcnt lgkmcnt(0)")
            for (dst, o) in fins:
                A(f"ds_write_b128 {v(vWo)}, {reg(dst, 4)} offset:{o}")
                A(f"ds_write_b128 {v(vWo)}, {reg(off(dst, 4), 4)} offset:{o + 1024}")
        if id(u) in held:
            kind, tmp = held[id(u)]
            A(f"s_waitcnt lgkmcnt(0)")
            if kind == 'pool':
                busy.difference_update(tmp + 8 * j for j in range(4))
            else:
                busy.discard(tmp)
        if ARMLATE and b == opts.get('cipos', 1):
            checkin()
        if opts.get('prof') and not opts.get('cprof') and b in (0, 3, 7, 11):
            stamp(A, {0: 4, 3: 5, 7: 6, 11: 7}[b])
        try_issue()
    A("s_waitcnt lgkmcnt(0)")
    stamp(A, 2) if not opts.get('cprof') else None
    A(f"s_barrier")
    if not EARLY:
        gen_late_start(A, opts, vL)
    else:
        Lkok = A.new_label("kok")
        A(f"s_cmp_eq_u32 {s(sKok)}, 1")
        A(f"s_cbranch_scc1 {Lkok}")
        kv_polls(A)
        A(f"buffer_load_dwordx4 {v(vEK,4)}, {v(vL16)}, {s(S_WS,4)}, {s(sKn)} offen")
        A(f"buffer_load_dwordx4 {v(vEK+4,4)}, {v(vL16)}, {s(S_WS,4)}, {s(sKn)} offen offset:1024")
        if DMI:
            A(f"s_add_u32 {s(sT1)}, {s(sKn)}, 8192")
            A(f"buffer_load_dwordx4 {v(vEV,4)}, {v(vL16)}, {s(S_WS,4)}, {s(sT1)} offen")
            A(f"buffer_load_dwordx4 {v(vEV+4,4)}, {v(vL16)}, {s(S_WS,4)}, {s(sT1)} offen offset:1024")
        A.label(Lkok)
        A(f"s_waitcnt vmcnt(0)")
        A(f"ds_write_b128 {v(vMw)}, {v(vEM,4)}")
        A(f"ds_write_b128 {v(vMw)}, {v(vEM+4,4)} offset:1024")
        for i in range(4):
            A(f"v_mov_b64 {v(X+24+2*i,2)}, {v(vEM+2*i,2)}")
        A(f"v_readfirstlane_b32 {s(sT4)}, {v(vEC)}")
        A(f"ds_write_b128 {v(vMw)}, {v(vEK,4)} offset:{KX_OFF - MEM_OFF}")
        A(f"ds_write_b128 {v(vMw)}, {v(vEK+4,4)} offset:{KX_OFF - MEM_OFF + 1024}")
        if DMI:
            A(f"ds_write_b128 {v(vMw)}, {v(vEV,4)} offset:{VX_OFF - MEM_OFF}")
            A(f"ds_write_b128 {v(vMw)}, {v(vEV+4,4)} offset:{VX_OFF - MEM_OFF + 1024}")
        for i in range(16):
            A(f"v_mov_b32 {v(ACC+i)}, 0")
        for i in range(8):
            A(f"v_mov_b32 {v(Y+24+i)}, 0")
        fb_consts(A)
        Lcok = A.new_label("cok")
        A(f"s_and_b32 {s(sT0)}, {s(sT4)}, 0xff")
        A(f"s_cmp_ge_u32 {s(sT0)}, 32")
        A(f"s_cbranch_scc1 {Lcok}")
        A(f"v_mov_b32 {v(vT1)}, 0")
        A(f"s_mov_b32 {s(sT2)}, {D_CHECKIN*4}")
        A(f"s_mov_b32 {s(sT3)}, 0")
        wait_byte(A, vFlag, vT1, sT2, sT3, 32, "ci", sleep=1)
        A(f"buffer_load_dword {v(vFlag)}, {v(vT1)}, {s(S_DBG,4)}, 0 offen offset:{D_CHECKIN*4} sc1")
        A(f"s_waitcnt vmcnt(0)")
        A(f"v_readfirstlane_b32 {s(sT4)}, {v(vFlag)}")
        A.label(Lcok)
        A(f"s_getreg_b32 {s(sT0)}, hwreg(HW_REG_XCC_ID, 0, 4)")
        A(f"s_mul_i32 {s(sT1)}, {s(sT0)}, {s(sT0)}")
        A(f"s_lshl_b32 {s(sT1)}, {s(sT1)}, 22")
        A(f"s_lshl_b32 {s(sT0)}, {s(sT0)}, 13")
        A(f"s_add_u32 {s(sT0)}, {s(sT0)}, {s(sT1)}")
        A(f"s_add_u32 {s(sT0)}, {s(sT0)}, 32")
        A(f"s_cmp_eq_u32 {s(sT0)}, {s(sT4)}")
        A(f"s_cselect_b32 {s(sFastF)}, 1, 0")
        A(f"s_mov_b32 m0, {s(sM0V if opts.get('kpos', 0) else sM0K)}")
    A(f"s_mov_b32 {s(sS)}, 0")
    A(f"s_waitcnt vmcnt(0) lgkmcnt(0)")
    A(f"s_barrier")
    stamp(A, 3) if not opts.get('cprof') else None
    if opts.get('cprof') or opts.get('hist'):
        A(f"s_mov_b32 {s(sCP0)}, 0")
        A(f"s_mov_b32 {s(sCP1)}, 0")
    for k, r_ in ((1, vT0), (2, vT1), (3, vS0)):
        A(f"v_xor_b32 {v(r_)}, {k << 11:#x}, {v(vMw)}")
    for q in range(opts.get('rbtop', 0)):
        A(f"ds_read_b128 {v([X, X + 8, PA, PA + 8][q >> 1] + 4 * (q & 1), 4)}, {v(vWo)} offset:{(q >> 1) * 2048 + 1024 * (q & 1)}")
    A(f"s_cmp_eq_u32 {s(sFastF)}, 1")
    if opts.get('forceslow'):
        A(f"s_branch L_own1_s")
    A(f"s_cbranch_scc0 L_own1_s")
    A(f"s_branch L_own1_f")
    gen_step(A, True, opts)
    gen_step(A, False, opts)


def G_tr(A, vD, vL, kind, base_sreg):
    tr_lane_addr(A, vD, vL, vT0, vS0, kind, base_sreg=base_sreg)
```

```python
from dsl import *
import gen as G
from gen import *
from gen_chain2 import f32_hex, LOG2E


def gen_out(A, opts):
    A.comment("==== role OUT ====")
    sPar, sSh, sC_, sSeg, sNext, sDelta, sOff, sShf, sBlk, sCnt, sSO = 44, 45, 46, 47, 48, 49, 50, 51, 52, 53, 54
    vWG, vST, vTR, vHst = 5, 6, 7, 8
    ACC = 64
    EP = 112
    xg = XG(A, sDelta)
    vL, vL16, vZero, vTmp, vT1, vT2 = xg.vL, xg.vL16, xg.vZero, xg.vTmp, xg.vT1, xg.vT2
    A(f"s_sub_u32 {s(sPar)}, {s(sXCD)}, 1")
    A(f"s_lshr_b32 {s(sSh)}, {s(sIDX)}, 4")
    A(f"s_and_b32 {s(sC_)}, {s(sIDX)}, 15")
    xg.setup()
    if opts.get('opf'):
        mats = {1: [P_WQ], 2: [P_WQ, P_WK], 3: [P_WQ, P_WK, P_WV], 4: [P_WK, P_WV, P_WQ], 5: [P_WQ, P_WV], 6: [P_WK, P_WV, P_WQ, P_WO], 7: [P_WK, P_WV], 8: [P_WV, P_WQ, P_WO], 9: [P_WK, P_WV, P_WO, P_WQ]}[opts['opf']]
        A(f"s_lshl_b32 {s(sT0)}, {s(sPar)}, 5")
        A(f"s_add_u32 {s(sT0)}, {s(sT0)}, {s(sIDX)}")
        A(f"s_lshl_b32 {s(sT0)}, {s(sT0)}, 2")
        A(f"s_add_u32 {s(sT0)}, {s(sT0)}, {s(sWAVE)}")
        A(f"s_lshl_b32 {s(sT0)}, {s(sT0)}, 14")
        for P in mats:
            mk_srd(A, S_D, P, 512 * 8192)
            for k in range(16):
                if k and k % 4 == 0:
                    A(f"s_add_u32 {s(sT0)}, {s(sT0)}, 4096")
                A(f"buffer_load_dwordx4 v[252:255], {v(vL16)}, {s(S_D,4)}, {s(sT0)} offen offset:{(k % 4) * 1024}")
            A(f"s_sub_u32 {s(sT0)}, {s(sT0)}, {3 * 4096}")
    STG = 80 * 1024
    A(f"s_mul_i32 {s(sT2)}, {s(sWAVE)}, {2*STG_BUF}")
    A(f"s_add_u32 {s(sT2)}, {s(sT2)}, {STG}")
    stage_lane_addr(A, vST, vL, vT1, sT2)
    Lph2 = A.new_label("out_ph2")

    def wait_wdone(tag):
        L = A.new_label("wd" + tag)
        A(f"s_cmp_lg_u32 {s(sWAVE)}, 0")
        A(f"s_cbranch_scc1 {L}")
        A(f"s_mov_b32 {s(sOff)}, {D_WDONE*4}")
        A(f"s_mov_b32 {s(sShf)}, 0")
        wait_byte(A, vTmp, vZero, sOff, sShf, opts.get('wdn', 32), "wd" + tag, sleep=8)
        A.label(L)
        A(f"s_barrier")
    if opts.get('odelay') == 1:
        wait_wdone("a")
    if opts.get('odelay') == 3:
        Lod = A.new_label("od")
        A(f"s_cmp_lg_u32 {s(sWAVE)}, 0")
        A(f"s_cbranch_scc1 {Lod}")
        A(f"s_mov_b32 {s(sOff)}, {D_CHECKIN*4}")
        A(f"s_mov_b32 {s(sShf)}, 0")
        wait_byte(A, vTmp, vZero, sOff, sShf, 32, "od", sleep=4)
        A.label(Lod)
        A(f"s_barrier")
    A(f"s_cmp_gt_u32 {s(sC_)}, 10")
    A(f"s_cbranch_scc1 {Lph2}")
    mk_srd(A, S_A, P_W1, 512 * 2752)
    mk_srd(A, S_B, P_GATE, 1024)
    A(f"s_lshl_b32 {s(sBlk)}, {s(sC_)}, 2")
    A(f"s_add_u32 {s(sBlk)}, {s(sBlk)}, {s(sWAVE)}")
    A(f"s_lshl_b32 {s(sSeg)}, {s(sSh)}, 1")
    A(f"s_add_u32 {s(sSeg)}, {s(sSeg)}, {s(sPar)}")
    xg.issue_x(sSeg)
    A(f"s_waitcnt vmcnt(0)")
    xg.write_x()
    tr_lane_addr(A, vTR, vL, vT1, vT2, 'k16', base_sreg=sT2)
    Lgate = A.new_label("gatew")
    Lwdone = A.new_label("wdone")
    A(f"s_cmp_eq_u32 {s(sBlk)}, 43")
    A(f"s_cbranch_scc1 {Lgate}")
    raw_lane_off(A, vWG, vL, vT1, 2752)
    A(f"s_lshl_b32 {s(sT0)}, {s(sBlk)}, 6")
    A(f"v_add_u32 {v(vWG)}, {s(sT0)}, {v(vWG)}")
    blocks = []
    for b in range(16):
        blocks.append(dict(srd=S_A, voff=vWG, soff=[(32 * b) * 2752, (32 * b + 16) * 2752], raw=('a', 8 * b), dst=('a', 8 * b),
                           vtr=vTR, imm=TR_IMM['k16']))
    load_blocks(A, blocks, vST, window=16)
    A(f"s_branch {Lwdone}")
    A.label(Lgate)
    A(f"v_lshrrev_b32 {v(vWG)}, 5, {v(vL)}")
    A(f"v_lshlrev_b32 {v(vWG)}, 4, {v(vWG)}")
    A(f"v_and_b32 {v(vT1)}, 31, {v(vL)}")
    A(f"v_lshlrev_b32 {v(vT1)}, 12, {v(vT1)}")
    A(f"v_add_u32 {v(vWG)}, {v(vWG)}, {v(vT1)}")
    for kk in range(32):
        A(f"buffer_load_dwordx4 {a(4*kk,4)}, {v(vWG)}, {s(S_B,4)}, 0 offen offset:{kk*32}")
    A(f"s_waitcnt vmcnt(0)")
    A.label(Lwdone)
    xg.after_weights()
    A(f"s_lshl_b32 {s(sT0)}, {s(sBlk)}, 10")
    lane_expr(A, vHst, vL, [(4, 1, 43 * 1024), (5, 1, 256), (0, 4, 16)], sregs=[sT0])
    Lloop = A.new_label("ffn_loop")
    A.label(Lloop)
    A(f"s_add_u32 {s(sNext)}, {s(sSeg)}, 4")
    xg.issue_x(sNext)

    def mf(kk, f):
        c = "0" if kk == 0 else v(ACC, 16)
        A(f"v_mfma_f32_32x32x16_bf16 {v(ACC,16)}, {a(4*kk,4)}, {f}, {c}")
    xg.body(mf, wpos=opts.get('fwpos', 9))
    A.nop(12)
    Lge = A.new_label("gate_ep")
    Lepd = A.new_label("ep_done")
    A(f"s_cmp_eq_u32 {s(sBlk)}, 43")
    A(f"s_cbranch_scc1 {Lge}")
    A(f"s_mov_b32 {s(sT0)}, {f32_hex(-LOG2E):#x}")
    T = 80
    for i in range(16):
        A(f"v_mul_f32 {v(T+i)}, {s(sT0)}, {v(ACC+i)}")
    for i in range(16):
        A(f"v_exp_f32 {v(T+i)}, {v(T+i)}")
    for i in range(16):
        A(f"v_add_f32 {v(T+i)}, 1.0, {v(T+i)}")
    for i in range(16):
        A(f"v_rcp_f32 {v(T+i)}, {v(T+i)}")
    for i in range(16):
        A(f"v_mul_f32 {v(ACC+i)}, {v(ACC+i)}, {v(T+i)}")
    for i in range(8):
        A(f"v_cvt_pk_bf16_f32 {v(EP+i)}, {v(ACC+2*i)}, {v(ACC+2*i+1)}")
    A(f"s_mul_i32 {s(sT0)}, {s(sSeg)}, {HX_STRIDE}")
    A(f"s_add_u32 {s(sT0)}, {s(sT0)}, {WS_HX:#x}")
    for c in range(2):
        A(f"buffer_store_dwordx4 {v(EP+4*c,4)}, {v(vHst)}, {s(S_WS,4)}, {s(sT0)} offen offset:{c*512} sc1")
    A(f"s_branch {Lepd}")
    A.label(Lge)
    A(f"s_mov_b32 {s(sT0)}, {f32_hex(-LOG2E):#x}")
    A(f"v_mul_f32 {v(vT1)}, {s(sT0)}, {v(ACC)}")
    A(f"v_exp_f32 {v(vT1)}, {v(vT1)}")
    A.nop(1)
    A(f"v_add_f32 {v(vT1)}, 1.0, {v(vT1)}")
    A(f"v_rcp_f32 {v(vT1)}, {v(vT1)}")
    A(f"v_lshlrev_b32 {v(vT2)}, 2, {v(vL)}")
    A(f"s_lshl_b32 {s(sT0)}, {s(sSeg)}, 7")
    A(f"s_add_u32 {s(sT0)}, {s(sT0)}, {WS_G:#x}")
    A(f"s_mov_b64 exec, 0xffffffff")
    A(f"buffer_store_dword {v(vT1)}, {v(vT2)}, {s(S_WS,4)}, {s(sT0)} offen sc1")
    A(f"s_mov_b64 exec, -1")
    A.label(Lepd)
    xg.toggle()
    A(f"s_waitcnt lgkmcnt(0)")
    A(f"s_barrier")
    A(f"s_mov_b32 {s(sSeg)}, {s(sNext)}")
    A(f"s_cmp_lt_u32 {s(sSeg)}, 64")
    A(f"s_cbranch_scc1 {Lloop}")
    A(f"s_waitcnt vmcnt(0)")
    A(f"s_barrier")
    Lnf = A.new_label("ffn_nf")
    A(f"s_cmp_lg_u32 {s(sWAVE)}, 0")
    A(f"s_cbranch_scc1 {Lnf}")
    A(f"s_lshl_b32 {s(sOff)}, {s(sPar)}, 2")
    A(f"s_add_u32 {s(sOff)}, {s(sOff)}, {D_FFN*4}")
    A(f"s_mov_b32 {s(sShf)}, 0")
    signal_byte(A, None, vZero, sOff, sShf, vTmp)
    A.label(Lnf)
    A.label(Lph2)
    if opts.get('odelay') == 2:
        wait_wdone("b")
    stamp(A, 1)
    mk_srd(A, S_A, P_WO, 4096 * 1024)
    mk_srd(A, S_B, P_W2, 1376 * 1024)
    mk_srd(A, S_C, P_OUT, 2048 * 1024)
    vWG2, vTR2 = 8, 9
    raw_lane_off(A, vWG, vL, vT1, 1024)
    A(f"s_lshl_b32 {s(sT0)}, {s(sC_)}, 6")
    A(f"v_add_u32 {v(vWG)}, {s(sT0)}, {v(vWG)}")
    A(f"s_mul_i32 {s(sT0)}, {s(sWAVE)}, {11*32*1024}")
    A(f"v_add_u32 {v(vWG2)}, {s(sT0)}, {v(vWG)}")
    A(f"s_lshl_b32 {s(sT0)}, {s(sWAVE)}, 20")
    A(f"v_add_u32 {v(vWG)}, {s(sT0)}, {v(vWG)}")
    A(f"s_mul_i32 {s(sT2)}, {s(sWAVE)}, {2*STG_BUF}")
    A(f"s_add_u32 {s(sT2)}, {s(sT2)}, {STG}")
    tr_lane_addr(A, vTR, vL, vT1, vT2, 'out_wo', base_sreg=sT2)
    tr_lane_addr(A, vTR2, vL, vT1, vT2, 'out_w2', base_sreg=sT2)
    blocks = []
    for b in range(11):
        blocks.append(dict(srd=S_B, voff=vWG2, soff=[(32 * b) * 1024, (32 * b + 16) * 1024], raw=('v', 128 + 8 * b), dst=('v', 128 + 8 * b),
                           vtr=vTR2, imm=TR_IMM['out_w2']))
    for b in range(32):
        blocks.append(dict(srd=S_A, voff=vWG, soff=[(32 * b) * 1024, (32 * b + 16) * 1024], raw=('a', 8 * b), dst=('a', 8 * b),
                           vtr=vTR, imm=TR_IMM['out_wo']))
    load_blocks(A, blocks, vST, window=31)
    stamp(A, 2)
    A(f"s_lshl_b32 {s(sOff)}, {s(sPar)}, 2")
    A(f"s_add_u32 {s(sOff)}, {s(sOff)}, {D_FFN*4}")
    A(f"s_mov_b32 {s(sShf)}, 0")
    wait_byte(A, vTmp, vZero, sOff, sShf, 22, "ffn", sleep=4)
    A(f"s_mov_b32 {s(sOff)}, {D_CHECKIN*4}")
    wait_byte(A, vTmp, vZero, sOff, sShf, 32, "oci", sleep=4)
    A(f"s_barrier")
    vOF = 11
    A(f"v_and_b32 {v(vOF)}, 31, {v(vL)}")
    A(f"v_lshlrev_b32 {v(vOF)}, 2, {v(vOF)}")
    for _ in range(opts.get('otestdelay', 0)):
        A("s_sleep 127")
    stamp(A, 3)
    aA, aB = 16, 24
    bufs = [32 + 4 * i for i in range(24)] + [216 + 4 * i for i in range(10)]
    vRw, vRr, vOut, vG = 5, 6, 7, 8
    RED = 0
    A(f"s_lshl_b32 {s(sT0)}, {s(sWAVE)}, 12")
    A(f"v_add_u32 {v(vRw)}, {s(sT0)}, {v(vL16)}")
    A(f"s_and_b32 {s(sT0)}, {s(sWAVE)}, 1")
    A(f"s_lshl_b32 {s(sT0)}, {s(sT0)}, 10")
    A(f"v_add_u32 {v(vRr)}, {s(sT0)}, {v(vL16)}")
    A(f"s_lshl_b32 {s(sT0)}, {s(sSh)}, 14")
    A(f"s_lshl_b32 {s(sT1)}, {s(sC_)}, 6")
    A(f"s_add_u32 {s(sT0)}, {s(sT0)}, {s(sT1)}")
    A(f"s_and_b32 {s(sT1)}, {s(sWAVE)}, 1")
    A(f"s_lshl_b32 {s(sT1)}, {s(sT1)}, 5")
    A(f"s_add_u32 {s(sT0)}, {s(sT0)}, {s(sT1)}")
    lane_expr(A, vOut, vL, [(0, 4, 1024), (4, 2, 8)], sregs=[sT0])
    A(f"s_lshl_b32 {s(sT0)}, {s(sSh)}, 6")
    lane_expr(A, vG, vL, [(0, 4, 4)], sregs=[sT0])
    A(f"s_mov_b32 {s(sSeg)}, {s(sPar)}")
    A(f"v_mov_b32 v12, 0")
    Lm = A.new_label("out_loop")
    A.label(Lm)
    A(f"s_mul_i32 {s(sT2)}, {s(sSeg)}, {HX_STRIDE}")
    A(f"s_mul_i32 {s(sT3)}, {s(sSh)}, {43*1024}")
    A(f"s_add_u32 {s(sT2)}, {s(sT2)}, {s(sT3)}")
    A(f"s_mul_i32 {s(sT3)}, {s(sWAVE)}, {11*1024}")
    A(f"s_add_u32 {s(sT2)}, {s(sT2)}, {s(sT3)}")
    A(f"s_add_u32 {s(sT2)}, {s(sT2)}, {WS_HX:#x}")
    vq = Q(A, "vmcnt", 63)
    for b in range(11):
        if b in (4, 8):
            A(f"s_add_u32 {s(sT2)}, {s(sT2)}, 4096")
        if b == 10:
            A(f"s_cmp_eq_u32 {s(sWAVE)}, 3")
            A(f"s_cselect_b32 {s(sT3)}, 1024, 0")
            A(f"s_sub_u32 {s(sT2)}, {s(sT2)}, {s(sT3)}")
        vq.issue(('H', b), f"buffer_load_dwordx4 {v(bufs[b],4)}, {v(vL16)}, {s(S_WS,4)}, {s(sT2)} offen offset:{(b%4)*1024}")
    A(f"s_lshl_b32 {s(sT2)}, {s(sSeg)}, 7")
    A(f"s_add_u32 {s(sT2)}, {s(sT2)}, {WS_G:#x}")
    vq.issue('g', f"buffer_load_dword v9, {v(vG)}, {s(S_WS,4)}, {s(sT2)} offen")
    A(f"s_lshl_b32 {s(sOff)}, {s(sSeg)}, 7")
    A(f"s_add_u32 {s(sOff)}, {s(sOff)}, {WS_OF:#x}")
    Lw = A.new_label("ow")
    Lp = A.new_label("op")
    OFE = opts.get('ofe', 1)
    if OFE:
        A(f"v_cmp_ne_u32 vcc, 0, v12")
        A(f"s_nop 0")
        A(f"s_cmp_eq_u64 vcc, -1")
        A(f"s_cbranch_scc1 {Lw}")
    else:
        A(f"s_cmp_lg_u32 {s(sWAVE)}, 0")
        A(f"s_cbranch_scc1 {Lw}")
    A(f"s_cmp_lg_u32 {s(sDEAD)}, 0")
    A(f"s_cbranch_scc1 {Lw}")
    A(f"s_mov_b32 {s(sShf)}, 0")
    A.label(Lp)
    A(f"buffer_load_dword v10, {v(vOF)}, {s(S_WS,4)}, {s(sOff)} offen sc1")
    A(f"s_waitcnt vmcnt(0)")
    A(f"v_cmp_ne_u32 vcc, 0, v10")
    A(f"s_add_u32 {s(sShf)}, {s(sShf)}, 1")
    A(f"s_nop 0")
    A(f"s_cmp_eq_u64 vcc, -1")
    A(f"s_cbranch_scc1 {Lw}")
    A(f"s_sleep {opts.get('osleep', 4)}")
    A(f"s_cmp_lt_u32 {s(sShf)}, {SPIN_LIMIT}")
    A(f"s_cbranch_scc1 {Lp}")
    A(f"s_mov_b32 {s(sDEAD)}, 1")
    A.label(Lw)
    if OFE:
        A(f"s_add_u32 {s(sOff)}, {s(sOff)}, 256")
        vq.issue('fl', f"buffer_load_dword v12, {v(vOF)}, {s(S_WS,4)}, {s(sOff)} offen sc1")
    else:
        A(f"s_barrier")
    A(f"s_lshl_b32 {s(sSO)}, {s(sSeg)}, 5")
    A(f"s_lshl_b32 {s(sT3)}, {s(sWAVE)}, 3")
    A(f"s_add_u32 {s(sSO)}, {s(sSO)}, {s(sT3)}")
    A(f"s_lshl_b32 {s(sSO)}, {s(sSO)}, 13")
    A(f"s_lshl_b32 {s(sT3)}, {s(sSh)}, 12")
    A(f"s_add_u32 {s(sSO)}, {s(sSO)}, {s(sT3)}")
    A(f"s_add_u32 {s(sSO)}, {s(sSO)}, {WS_OX:#x}")

    obuf = {}
    def issue_o(b, buf):
        A(f"s_add_u32 {s(sT3)}, {s(sSO)}, {(b>>2)*8192}")
        vq.issue(('O', b), f"buffer_load_dwordx4 {v(buf,4)}, {v(vL16)}, {s(S_WS,4)}, {s(sT3)} offen offset:{(b&3)*1024}")
        obuf[b] = buf
    nfree = len(bufs) - 11
    for b in range(nfree):
        issue_o(b, bufs[11 + b])
    nxt = nfree
    for b in range(11):
        vq.wait(('H', b))
        for ct in range(2):
            c = "0" if b == 0 else v(aB + 4 * ct, 4)
            A(f"v_mfma_f32_16x16x32_bf16 {v(aB+4*ct,4)}, {v(128+8*b+4*ct,4)}, {v(bufs[b],4)}, {c}")
        if nxt < 32:
            issue_o(nxt, bufs[b])
            nxt += 1
    for b in range(32):
        vq.wait(('O', b))
        for ct in range(2):
            c = "0" if b == 0 else v(aA + 4 * ct, 4)
            A(f"v_mfma_f32_16x16x32_bf16 {v(aA+4*ct,4)}, {a(8*b+4*ct,4)}, {v(obuf[b],4)}, {c}")
    A.nop(8)
    A(f"ds_write_b128 {v(vRw)}, {v(aA,4)} offset:0")
    A(f"ds_write_b128 {v(vRw)}, {v(aA+4,4)} offset:1024")
    A(f"ds_write_b128 {v(vRw)}, {v(aB,4)} offset:2048")
    A(f"ds_write_b128 {v(vRw)}, {v(aB+4,4)} offset:3072")
    A(f"s_waitcnt lgkmcnt(0)")
    A(f"s_barrier")
    Lsk = A.new_label("osk")
    A(f"s_cmp_gt_u32 {s(sWAVE)}, 1")
    A(f"s_cbranch_scc1 {Lsk}")
    R = 32
    for w in range(4):
        A(f"ds_read_b128 {v(R+8*w,4)}, {v(vRr)} offset:{w*4096}")
        A(f"ds_read_b128 {v(R+8*w+4,4)}, {v(vRr)} offset:{w*4096+2048}")
    A(f"s_waitcnt lgkmcnt(0)")
    for r in range(4):
        A(f"v_add_f32 {v(R+r)}, {v(R+r)}, {v(R+8+r)}")
        A(f"v_add_f32 {v(R+16+r)}, {v(R+16+r)}, {v(R+24+r)}")
        A(f"v_add_f32 {v(R+4+r)}, {v(R+4+r)}, {v(R+12+r)}")
        A(f"v_add_f32 {v(R+20+r)}, {v(R+20+r)}, {v(R+28+r)}")
    for r in range(4):
        A(f"v_add_f32 {v(R+r)}, {v(R+r)}, {v(R+16+r)}")
        A(f"v_add_f32 {v(R+4+r)}, {v(R+4+r)}, {v(R+20+r)}")
    for r in range(4):
        A(f"v_sub_f32 {v(R+r)}, {v(R+r)}, {v(R+4+r)}")
    for r in range(4):
        A(f"v_fma_f32 {v(R+r)}, {v(R+r)}, v9, {v(R+4+r)}")
    A(f"v_cvt_pk_bf16_f32 {v(R+8)}, {v(R)}, {v(R+1)}")
    A(f"v_cvt_pk_bf16_f32 {v(R+9)}, {v(R+2)}, {v(R+3)}")
    A(f"s_lshl_b32 {s(sT2)}, {s(sSeg)}, 15")
    A(f"buffer_store_dwordx2 {v(R+8,2)}, {v(vOut)}, {s(S_C,4)}, {s(sT2)} offen" + ["", " sc1", " sc0 sc1", " nt", " sc1 nt"][opts.get('opol', 0)])
    A.label(Lsk)
    if opts.get('ofe', 1):
        A(f"v_xor_b32 {v(vRw)}, 0x4000, {v(vRw)}")
        A(f"v_xor_b32 {v(vRr)}, 0x4000, {v(vRr)}")
    A(f"s_add_u32 {s(sSeg)}, {s(sSeg)}, 2")
    A(f"s_cmp_lt_u32 {s(sSeg)}, 64")
    A(f"s_cbranch_scc1 {Lm}")
    A(f"s_waitcnt vmcnt(0)")
```

```python
import sys
from dsl import *

KNAME = "gated_mix__memory_aug_recurrent_mem_tr__dense_activation_silu__prompt_kernel"

WS_P = 0
WS_M = 0x100000
WS_KVF = 0x110000
WS_OF = 0x120000
WS_KM = 0x200000
WS_KX = 0x1000000
KVSTR = 16384
WS_QX = 0x3000000
WS_OX = 0x4000000
WS_HX = 0x5000000
HX_STRIDE = 2 * 43 * 1024
WS_CP = 0x5600000
WS_G = 0x5800000
WS_T = 0x5810000
WS_SIZE = 0x5860000

D_CHECKIN = 0
D_XCCMASK = 1
D_FFN = 2
D_ERR = 4
D_WDONE = 5
D_KV = 8
D_O = 24
D_PROG = 40

S_WS, S_DBG, S_X, S_A, S_B, S_C, S_D = 4, 8, 12, 16, 20, 24, 28
sWAVE, sIDX, sXCD = 32, 33, 34
sT0, sT1, sT2, sT3, sT4, sT5 = 35, 36, 37, 38, 39, 40
sDEAD = 41
sEX = 42
P_X, P_MEM0, P_WQ, P_WK, P_WV, P_WO, P_W1, P_W2, P_GATE, P_OUT, P_DBG, P_WS = 64, 66, 68, 70, 72, 74, 80, 82, 84, 86, 88, 90
SPIN_LIMIT = 1 << 17

LDS_BYTES = 160 * 1024


def mk_srd(A, d, p, size):
    A(f"s_mov_b32 {s(d)}, {s(p)}")
    A(f"s_mov_b32 {s(d+1)}, {s(p+1)}")
    A(f"s_mov_b32 {s(d+2)}, {size:#x}")
    A(f"s_mov_b32 {s(d+3)}, 0x00020000")


def wait_byte(A, vT, vZero, s_off, s_shift, target, tag, s_tmp=sT0, s_cnt=sT1, target_is_sreg=False, sleep=2):
    L = A.new_label("w" + tag)
    Ld = A.new_label("wd" + tag)
    A(f"s_mov_b32 {s(s_cnt)}, 0")
    A(f"s_cmp_lg_u32 {s(sDEAD)}, 0")
    A(f"s_cbranch_scc1 {Ld}")
    A.label(L)
    A(f"buffer_load_dword {v(vT)}, {v(vZero)}, {s(S_DBG,4)}, {s(s_off)} offen sc1")
    A(f"s_waitcnt vmcnt(0)")
    A(f"v_readfirstlane_b32 {s(s_tmp)}, {v(vT)}")
    A(f"s_lshr_b32 {s(s_tmp)}, {s(s_tmp)}, {s(s_shift)}")
    A(f"s_and_b32 {s(s_tmp)}, {s(s_tmp)}, 0xff")
    A(f"s_cmp_ge_u32 {s(s_tmp)}, {s(target) if target_is_sreg else target}")
    A(f"s_cbranch_scc1 {Ld}")
    if sleep:
        A(f"s_sleep {sleep}")
    A(f"s_add_u32 {s(s_cnt)}, {s(s_cnt)}, 1")
    A(f"s_cmp_lt_u32 {s(s_cnt)}, {SPIN_LIMIT}")
    A(f"s_cbranch_scc1 {L}")
    A(f"s_mov_b32 {s(sDEAD)}, 1")
    A.label(Ld)


def signal_byte(A, vOne, vZero, s_off, s_shift, vTmp):
    A(f"s_lshl_b32 {s(sT0)}, 1, {s(s_shift)}")
    A(f"v_mov_b32 {v(vTmp)}, {s(sT0)}")
    A(f"s_mov_b64 {s(sEX,2)}, exec")
    A(f"s_mov_b64 exec, 1")
    A(f"buffer_atomic_add {v(vTmp)}, {v(vZero)}, {s(S_DBG,4)}, {s(s_off)} offen sc1")
    A(f"s_mov_b64 exec, {s(sEX,2)}")


PROF = False
sSTAMP = 92


def stamp(A, i):
    if not PROF:
        return
    A(f"s_memrealtime s[62:63]")
    A(f"s_waitcnt lgkmcnt(0)")
    A(f"s_mov_b32 {s(sSTAMP+i)}, s62")


def stamp_clk(A, i):
    if not PROF:
        return
    A(f"s_memtime s[62:63]")
    A(f"s_waitcnt lgkmcnt(0)")
    A(f"s_mov_b32 {s(sSTAMP+i)}, s62")


def stamp_if_lt(A, i, sreg, limit, clk=False):
    if not PROF:
        return
    L = A.new_label("st")
    A(f"s_cmp_lt_u32 {s(sreg)}, {limit}")
    A(f"s_cbranch_scc0 {L}")
    (stamp_clk if clk else stamp)(A, i)
    A.label(L)


def stamp_flush(A):
    if not PROF:
        return
    A(f"s_lshl_b32 s62, s2, 2")
    A(f"s_add_u32 s62, s62, {s(sWAVE)}")
    A(f"s_lshl_b32 s62, s62, 6")
    A(f"s_add_u32 s62, s62, {WS_T:#x}")
    A(f"v_mov_b32 v1, 0")
    A(f"s_mov_b64 exec, 1")
    for i in range(10):
        A(f"v_mov_b32 v2, {s(sSTAMP+i)}")
        A(f"buffer_store_dword v2, v1, {s(S_WS,4)}, s62 offen offset:{4*i}")
    A(f"s_waitcnt vmcnt(0)")


STG_BUF = 3072


def stage_addr(row):
    return 64 * row + 128 * (row >> 2)


def load_blocks(A, blocks, vST, window, after_first_issue=None, nolds=False):
    n = len(blocks)

    def issue(b):
        blk = blocks[b]
        for k in range(2):
            so = blk['soff'][k]
            A(f"s_mov_b32 {s(sT0)}, {so:#x}")
            if blk.get('sbase') is not None:
                A(f"s_add_u32 {s(sT0)}, {s(sT0)}, {s(blk['sbase'])}")
            A(f"buffer_load_dwordx4 {reg(off(blk['raw'], 4*k), 4)}, {v(blk['voff'])}, {s(blk['srd'],4)}, {s(sT0)} offen")

    issued = 0
    def can_issue(b, done):
        r = blocks[b]['raw']
        for p in range(b):
            if blocks[p]['raw'] == r or blocks[p].get('dst') == r:
                if p >= done:
                    return False
        return True

    while issued < n and issued < window and can_issue(issued, 0):
        issue(issued)
        issued += 1
    if after_first_issue:
        after_first_issue(2 * issued)
    for b in range(n):
        blk = blocks[b]
        assert issued > b, "window deadlock"
        A(f"s_waitcnt vmcnt({2*(issued-b-1)})")
        buf = (b & 1) * STG_BUF
        if not nolds:
            A(f"ds_write_b128 {v(vST)}, {reg(blk['raw'],4)} offset:{buf}")
            A(f"ds_write_b128 {v(vST)}, {reg(off(blk['raw'],4),4)} offset:{buf + stage_addr(16)}")
            for i in range(4):
                A(f"ds_read_b64_tr_b16 {reg(off(blk['dst'],2*i),2)}, {v(blk['vtr'])} offset:{buf + blk['imm'][i]}")
        if blk.get('post'):
            blk['post'](A)
        while issued < n and issued - b - 1 < window and can_issue(issued, b + 1):
            issue(issued)
            issued += 1
    A("s_waitcnt lgkmcnt(0)")


def load_blocks2(A, blocks, vST, window, extra=None, nolds=False, vq=None, upto=None):
    n = len(blocks)
    vq = vq or Q(A, "vmcnt", 63)
    state = dict(issued=0, xi=False, xc=False)

    def issue(b):
        blk = blocks[b]
        for k in range(2):
            A(f"s_mov_b32 {s(sT0)}, {blk['soff'][k]:#x}")
            vq.issue(('B', id(blk)), f"buffer_load_dwordx4 {reg(off(blk['raw'], 4*k), 4)}, {v(blk['voff'])}, {s(blk['srd'],4)}, {s(sT0)} offen")
        state['issued'] += 1
        if extra and b == extra[0]:
            extra[1](vq)
            state['xi'] = True
    while state['issued'] < n and state['issued'] < window:
        issue(state['issued'])
    for b in range(n):
        blk = blocks[b]
        vq.wait(('B', id(blk)))
        if extra and state['xi'] and not state['xc'] and b > extra[0]:
            extra[2](vq)
            state['xc'] = True
        buf = (b & 1) * STG_BUF
        if not nolds:
            A(f"ds_write_b128 {v(vST)}, {reg(blk['raw'],4)} offset:{buf}")
            A(f"ds_write_b128 {v(vST)}, {reg(off(blk['raw'],4),4)} offset:{buf + stage_addr(16)}")
            for i in range(4):
                A(f"ds_read_b64_tr_b16 {reg(off(blk['dst'],2*i),2)}, {v(blk['vtr'])} offset:{buf + blk['imm'][i]}")
        if blk.get('post'):
            blk['post'](A)
        while state['issued'] < n and state['issued'] - b - 1 < window:
            issue(state['issued'])
    if extra and not state['xc']:
        extra[2](vq)
    A("s_waitcnt lgkmcnt(0)")


def tr_lane_addr(A, vD, vL, vT1, vT2, kind, base_sreg=None, base_imm=0):
    A(f"v_lshrrev_b32 {v(vT1)}, 4, {v(vL)}")
    A(f"v_bfe_u32 {v(vT2)}, {v(vL)}, 2, 2")
    A(f"v_and_b32 {v(vD)}, 3, {v(vL)}")
    A(f"v_lshlrev_b32 {v(vD)}, 3, {v(vD)}")

    def add_term(expr_src, mask_shift, mul):
        sh, bits = mask_shift
        A(f"v_bfe_u32 v{TMPX}, {v(expr_src)}, {sh}, {bits}")
        A(f"v_mul_u32_u24 v{TMPX}, {mul}, v{TMPX}")
        A(f"v_add_u32 {v(vD)}, {v(vD)}, v{TMPX}")

    G, r = vT1, vT2
    def sa(row):
        return stage_addr(row)
    if kind == 'chain_qkv':
        add_term(G, (1, 1), sa(8)); add_term(G, (0, 1), sa(4)); add_term(r, (0, 1), sa(1)); add_term(r, (1, 1), 32)
    elif kind == 'chain_wo':
        add_term(G, (0, 1), sa(16)); add_term(G, (1, 1), sa(4)); add_term(r, (0, 1), sa(1)); add_term(r, (1, 1), 32)
    elif kind == 'k16':
        add_term(G, (1, 1), sa(8)); add_term(r, (0, 2), sa(1)); add_term(G, (0, 1), 32)
    elif kind == 'out_wo':
        add_term(G, (0, 2), sa(4)); add_term(r, (0, 2), sa(1))
    elif kind == 'out_w2':
        add_term(G, (1, 1), sa(16)); add_term(G, (0, 1), sa(4)); add_term(r, (0, 2), sa(1))
    else:
        raise ValueError(kind)
    if base_sreg is not None:
        A(f"v_add_u32 {v(vD)}, {s(base_sreg)}, {v(vD)}")
    if base_imm:
        A(f"v_add_u32 {v(vD)}, {base_imm}, {v(vD)}")


TR_IMM = {
    'chain_qkv': [stage_addr(16 * hi + 2 * qq) for hi in range(2) for qq in range(2)],
    'chain_wo': [stage_addr(8 * hi + 2 * qq) for hi in range(2) for qq in range(2)],
    'k16': [stage_addr(16 * kk + 4 * hf) for kk in range(2) for hf in range(2)],
    'out_wo': [stage_addr(16 * hf) + 32 * ct for ct in range(2) for hf in range(2)],
    'out_w2': [stage_addr(8 * hf) + 32 * ct for ct in range(2) for hf in range(2)],
}
TMPX = 15


def stage_lane_addr(A, vD, vL, vT, base_sreg):
    A(f"v_lshrrev_b32 {v(vD)}, 2, {v(vL)}")
    A(f"v_lshlrev_b32 {v(vD)}, 6, {v(vD)}")
    A(f"v_lshrrev_b32 {v(vT)}, 4, {v(vL)}")
    A(f"v_lshlrev_b32 {v(vT)}, 7, {v(vT)}")
    A(f"v_add_u32 {v(vD)}, {v(vD)}, {v(vT)}")
    A(f"v_and_b32 {v(vT)}, 3, {v(vL)}")
    A(f"v_lshlrev_b32 {v(vT)}, 4, {v(vT)}")
    A(f"v_add_u32 {v(vD)}, {v(vD)}, {v(vT)}")
    A(f"v_add_u32 {v(vD)}, {s(base_sreg)}, {v(vD)}")


def raw_lane_off(A, vD, vL, vT, pitch):
    A(f"v_lshrrev_b32 {v(vD)}, 2, {v(vL)}")
    A(f"v_mul_u32_u24 {v(vD)}, {pitch}, {v(vD)}")
    A(f"v_and_b32 {v(vT)}, 3, {v(vL)}")
    A(f"v_lshlrev_b32 {v(vT)}, 4, {v(vT)}")
    A(f"v_add_u32 {v(vD)}, {v(vD)}, {v(vT)}")


def lane_expr(A, vD, vL, terms, const=0, sregs=(), tmp=None):
    tmp = TMPX if tmp is None else tmp
    first = True
    for (sh, bits, mul) in terms:
        dst = vD if first else tmp
        A(f"v_bfe_u32 {v(dst)}, {v(vL)}, {sh}, {bits}")
        if mul != 1:
            A(f"v_mul_u32_u24 {v(dst)}, {mul}, {v(dst)}")
        if not first:
            A(f"v_add_u32 {v(vD)}, {v(vD)}, {v(tmp)}")
        first = False
    if first:
        A(f"v_mov_b32 {v(vD)}, 0")
    if const:
        A(f"v_add_u32 {v(vD)}, {const:#x}, {v(vD)}")
    for sr in sregs:
        A(f"v_add_u32 {v(vD)}, {s(sr)}, {v(vD)}")


class Q:
    def __init__(self, A, name, cap):
        self.A, self.name, self.cap = A, name, cap
        self.ops = []

    def issue(self, tag, text):
        self.A(text)
        self.ops.append(tag)

    def wait(self, tag):
        if tag not in self.ops:
            return
        i = max(j for j, t in enumerate(self.ops) if t == tag)
        n = len(self.ops) - 1 - i
        self.A(f"s_waitcnt {self.name}({min(n, self.cap)})")
        if n <= self.cap:
            self.ops = self.ops[i + 1:]
        else:
            self.ops = self.ops[len(self.ops) - self.cap:]

    def wait_all(self):
        self.A(f"s_waitcnt {self.name}(0)")
        self.ops = []


XBUF = 64 * 528
XB1 = 36864


class XG:
    vL, vL16, vXW, vXR, vZero, vTmp, vT1, vT2 = 1, 2, 3, 4, 10, 11, 12, 13
    XP, XF = 16, 48
    NF = 4

    def __init__(self, A, sDelta):
        self.A, self.sDelta = A, sDelta

    def setup(self):
        A = self.A
        vL, vL16, vXW, vXR, vZero, vT1 = self.vL, self.vL16, self.vXW, self.vXR, self.vZero, self.vT1
        A(f"v_and_b32 {v(vL)}, 63, v0")
        A(f"v_lshlrev_b32 {v(vL16)}, 4, {v(vL)}")
        A(f"v_mov_b32 {v(vZero)}, 0")
        A(f"v_mul_u32_u24 {v(vXW)}, 528, {v(vL)}")
        A(f"s_lshl_b32 {s(sT0)}, {s(sWAVE)}, 7")
        A(f"v_add_u32 {v(vXW)}, {s(sT0)}, {v(vXW)}")
        A(f"v_lshrrev_b32 {v(vXR)}, 5, {v(vL)}")
        A(f"v_mul_u32_u24 {v(vXR)}, 528, {v(vXR)}")
        A(f"v_and_b32 {v(vT1)}, 31, {v(vL)}")
        A(f"v_lshlrev_b32 {v(vT1)}, 4, {v(vT1)}")
        A(f"v_add_u32 {v(vXR)}, {v(vXR)}, {v(vT1)}")

    def issue_x(self, seg_sreg, vq=None):
        A = self.A
        if vq is not None:
            A = lambda x_: (vq.issue('x', x_) if x_.startswith('buffer_load') else self.A(x_))
        A(f"s_lshl_b32 {s(sT0)}, {s(seg_sreg)}, 15")
        A(f"s_lshl_b32 {s(sT1)}, {s(sWAVE)}, 13")
        A(f"s_add_u32 {s(sT0)}, {s(sT0)}, {s(sT1)}")
        for i in range(8):
            if i == 4:
                A(f"s_add_u32 {s(sT0)}, {s(sT0)}, 4096")
            A(f"buffer_load_dwordx4 {v(self.XP+4*i,4)}, {v(self.vL16)}, {s(S_X,4)}, {s(sT0)} offen offset:{(i%4)*1024}")

    def write_x(self):
        for i in range(8):
            self.A(f"ds_write_b128 {v(self.vXW)}, {v(self.XP+4*i,4)} offset:{i*16}")

    def after_weights(self):
        A = self.A
        A(f"s_waitcnt lgkmcnt(0)")
        A(f"s_barrier")
        A(f"s_mov_b32 {s(self.sDelta)}, {XB1}")
        A(f"v_add_u32 {v(self.vXW)}, {s(self.sDelta)}, {v(self.vXW)}")

    def body(self, mfmas, wpos=9):
        A, NF, XF = self.A, self.NF, self.XF

        def rd(kk):
            A(f"ds_read_b128 {v(XF + 4*(kk % NF), 4)}, {v(self.vXR)} offset:{kk*1056}")
        for kk in range(NF - 1):
            rd(kk)
        for kk in range(32):
            if kk + NF - 1 < 32:
                rd(kk + NF - 1)
                A(f"s_waitcnt lgkmcnt({NF-1})")
            else:
                A(f"s_waitcnt lgkmcnt({31-kk})")
            mfmas(kk, v(XF + 4 * (kk % NF), 4))
            if wpos is not None and kk == wpos:
                A(f"s_waitcnt vmcnt(0)")
                self.write_x()
                A(f"s_waitcnt lgkmcnt(0)")

    def toggle(self):
        A = self.A
        A(f"v_add_u32 {v(self.vXR)}, {s(self.sDelta)}, {v(self.vXR)}")
        A(f"s_sub_u32 {s(self.sDelta)}, 0, {s(self.sDelta)}")
        A(f"v_add_u32 {v(self.vXW)}, {s(self.sDelta)}, {v(self.vXW)}")


def gen_hq(A, opts):
    vWG, vST, vTR, vKst, vVst = 5, 6, 7, 8, 9
    ACC = 64
    EP = 112
    sH, sJ, sSeg, sNext, sDelta, sSegOff, sKVoff, sKVsh, sXa = 44, 45, 46, 47, 48, 49, 50, 51, 52
    sCnt, sKVF = 53, 60
    xg = XG(A, sDelta)
    vL, vL16, vZero, vTmp, vT1, vT2, XF = xg.vL, xg.vL16, xg.vZero, xg.vTmp, xg.vT1, xg.vT2, xg.XF
    A(f"s_sub_u32 {s(sT0)}, {s(sXCD)}, 3")
    A(f"s_lshl_b32 {s(sT0)}, {s(sT0)}, 5")
    A(f"s_add_u32 {s(sT0)}, {s(sT0)}, {s(sIDX)}")
    A(f"s_mul_i32 {s(sH)}, {s(sT0)}, 205")
    A(f"s_lshr_b32 {s(sH)}, {s(sH)}, 10")
    A(f"s_mul_i32 {s(sT1)}, {s(sH)}, 5")
    A(f"s_sub_u32 {s(sJ)}, {s(sT0)}, {s(sT1)}")
    mk_srd(A, S_A, P_WQ, 512 * 8192)
    mk_srd(A, S_B, P_WK, 512 * 8192)
    mk_srd(A, S_C, P_WV, 512 * 8192)
    xg.setup()
    A(f"s_mov_b32 {s(sSeg)}, {s(sJ)}")
    raw_lane_off(A, vWG, vL, vT1, 8192)
    A(f"s_lshl_b32 {s(sT0)}, {s(sH)}, 8")
    A(f"s_lshl_b32 {s(sT1)}, {s(sWAVE)}, 6")
    A(f"s_add_u32 {s(sT0)}, {s(sT0)}, {s(sT1)}")
    A(f"v_add_u32 {v(vWG)}, {s(sT0)}, {v(vWG)}")
    STG = 80 * 1024
    A(f"s_mul_i32 {s(sT2)}, {s(sWAVE)}, {2*STG_BUF}")
    A(f"s_add_u32 {s(sT2)}, {s(sT2)}, {STG}")
    stage_lane_addr(A, vST, vL, vT1, sT2)
    tr_lane_addr(A, vTR, vL, vT1, vT2, 'k16', base_sreg=sT2)
    A(f"s_lshl_b32 {s(sT0)}, {s(sWAVE)}, 10")
    lane_expr(A, vKst, vL, [(4, 1, 4096), (5, 1, 256), (0, 4, 16)], sregs=[sT0])
    A(f"s_lshl_b32 {s(sT0)}, {s(sWAVE)}, 11")
    lane_expr(A, vVst, vL, [(4, 1, 1024), (5, 1, 256), (0, 4, 16)], sregs=[sT0])

    def wblocks(srd, dst):
        return [dict(srd=srd, voff=vWG, soff=[(32 * b) * 8192, (32 * b + 16) * 8192], raw=off(dst, 8 * b), dst=off(dst, 8 * b),
                     vtr=vTR, imm=TR_IMM['k16']) for b in range(16)]
    kvb = wblocks(S_B, ('a', 128)) + wblocks(S_C, ('v', 128))
    qb = wblocks(S_A, ('a', 0))
    if opts.get('hdelay'):
        Lhd = A.new_label("hqd")
        A(f"s_cmp_lg_u32 {s(sWAVE)}, 0")
        A(f"s_cbranch_scc1 {Lhd}")
        A(f"s_mov_b32 {s(sT2)}, {D_CHECKIN*4}")
        A(f"s_mov_b32 {s(sT3)}, 0")
        wait_byte(A, vTmp, vZero, sT2, sT3, opts['hdelay'], "hqd", sleep=4)
        A.label(Lhd)
        A(f"s_barrier")
    stamp(A, 1)
    if PROF:
        kvb[15]['post'] = lambda A_: stamp(A_, 6)
        kvb[0]['post'] = lambda A_: stamp(A_, 8)

    def x_issue(vq):
        xg.issue_x(sSeg, vq)

    def x_consume(vq):
        vq.wait('x')
        xg.write_x()
        stamp(A, 5)
    hw = opts.get('hqwin', 10)
    load_blocks2(A, kvb, vST, window=hw, extra=(opts.get('hqxpos', 16), x_issue, x_consume))
    stamp(A, 7)
    xg.after_weights()
    A(f"s_mov_b32 {s(sXa)}, -1")
    A(f"s_mov_b32 {s(sCnt)}, 1")
    A(f"s_lshl_b32 {s(sKVF)}, {s(sH)}, 7")
    A(f"s_lshl_b32 {s(sT0)}, {s(sJ)}, 2")
    A(f"s_add_u32 {s(sKVF)}, {s(sKVF)}, {s(sT0)}")
    A(f"s_add_u32 {s(sKVF)}, {s(sKVF)}, {WS_KVF:#x}")
    A(f"buffer_load_dword v15, {v(vZero)}, {s(S_DBG,4)}, 0 offen offset:{D_CHECKIN*4} sc1")

    def mf_k(kk, f):
        c = lambda base: "0" if kk == 0 else v(base, 16)
        A(f"v_mfma_f32_32x32x16_bf16 {v(ACC+16,16)}, {a(128+4*kk,4)}, {f}, {c(ACC+16)}")

    def mf_v(kk, f):
        c = lambda base: "0" if kk == 0 else v(base, 16)
        A(f"v_mfma_f32_32x32x16_bf16 {v(ACC+32,16)}, {f}, {v(128+4*kk,4)}, {c(ACC+32)}")

    def mf_q(kk, f):
        c = lambda base: "0" if kk == 0 else v(base, 16)
        A(f"v_mfma_f32_32x32x16_bf16 {v(ACC,16)}, {a(4*kk,4)}, {f}, {c(ACC)}")

    def seg_offsets():
        A(f"s_lshl_b32 {s(sSegOff)}, {s(sSeg)}, 5")
        A(f"s_add_u32 {s(sSegOff)}, {s(sSegOff)}, {s(sH)}")
        A(f"s_lshl_b32 {s(sKVoff)}, {s(sSegOff)}, 14")
        A(f"s_lshl_b32 {s(sKVsh)}, {s(sSegOff)}, 12")
        A(f"s_lshl_b32 {s(sSegOff)}, {s(sSegOff)}, 13")

    def store_ct(acc, sbase, region, ep):
        for c in range(2):
            for q in range(4):
                A(f"v_cvt_pk_bf16_f32 {v(ep+4*c+q)}, {v(acc+8*c+2*q)}, {v(acc+8*c+2*q+1)}")
        A(f"s_add_u32 {s(sT0)}, {s(sbase)}, {region:#x}")
        for c in range(2):
            A(f"buffer_store_dwordx4 {v(ep+4*c,4)}, {v(vKst)}, {s(S_WS,4)}, {s(sT0)} offen offset:{c*512} sc1")

    def store_kv():
        store_ct(ACC + 16, sKVoff, WS_KX, EP)
        acc = ACC + 32
        for c in range(2):
            for hf in range(2):
                u = c + 2 * hf
                for q in range(2):
                    A(f"v_cvt_pk_bf16_f32 {v(EP+8+4*c+2*hf+q)}, {v(acc+4*u+2*q)}, {v(acc+4*u+2*q+1)}")
        A(f"s_add_u32 {s(sT0)}, {s(sKVoff)}, {WS_KX + 8192:#x}")
        for c in range(2):
            A(f"buffer_store_dwordx4 {v(EP+8+4*c,4)}, {v(vVst)}, {s(S_WS,4)}, {s(sT0)} offen offset:{c*512} sc1")

    def arm_km():
        for i in range(4):
            A(f"v_mov_b32 {v(XF+8+i)}, -1")
        A(f"s_lshl_b32 {s(sT1)}, {s(sWAVE)}, 10")
        A(f"s_add_u32 {s(sT0)}, {s(sKVsh)}, {s(sT1)}")
        A(f"s_add_u32 {s(sT0)}, {s(sT0)}, {WS_KM:#x}")
        A(f"buffer_store_dwordx4 {v(XF+8,4)}, {v(vL16)}, {s(S_WS,4)}, {s(sT0)} offen sc1")

    def flag_store():
        A(f"v_mov_b32 {v(vTmp)}, {s(sCnt)}")
        A(f"s_mov_b64 exec, 1")
        A(f"buffer_store_dword {v(vTmp)}, off, {s(S_WS,4)}, {s(sKVF)} sc1")
        A(f"s_mov_b64 exec, -1")
    xg.body(lambda kk, f: (mf_k(kk, f), mf_v(kk, f)), wpos=None)
    A.nop(12)
    seg_offsets()
    store_kv()
    arm_km()
    vq = Q(A, "vmcnt", 63)
    qn = [0]

    def q_first(vq_):
        pass
    nq0 = opts.get('hqq0', 8)
    for b in range(nq0):
        blk = qb[b]
        for k in range(2):
            A(f"s_mov_b32 {s(sT0)}, {blk['soff'][k]:#x}")
            vq.issue(('B', id(blk)), f"buffer_load_dwordx4 {reg(off(blk['raw'], 4*k), 4)}, {v(blk['voff'])}, {s(blk['srd'],4)}, {s(sT0)} offen")
    A(f"s_waitcnt vmcnt({2*nq0})")
    A(f"s_barrier")
    Lnf1 = A.new_label("hq_nf1")
    Lci = A.new_label("hq_ci")
    A(f"s_cmp_lg_u32 {s(sWAVE)}, 0")
    A(f"s_cbranch_scc1 {Lnf1}")
    A(f"v_readfirstlane_b32 {s(sT0)}, v15")
    A(f"s_and_b32 {s(sT0)}, {s(sT0)}, 0xff")
    A(f"s_cmp_ge_u32 {s(sT0)}, 32")
    A(f"s_cbranch_scc1 {Lci}")
    A(f"s_mov_b32 {s(sT2)}, {D_CHECKIN*4}")
    A(f"s_mov_b32 {s(sT3)}, 0")
    wait_byte(A, vTmp, vZero, sT2, sT3, 32, "hqci", sleep=4)
    A.label(Lci)
    flag_store()
    A.label(Lnf1)
    stamp(A, 3)
    for b in range(16):
        blk = qb[b]
        if b == 0:
            pass
        if b + nq0 < 16:
            nb_ = qb[b + nq0]
        vq.wait(('B', id(blk)))
        buf = (b & 1) * STG_BUF
        A(f"ds_write_b128 {v(vST)}, {reg(blk['raw'],4)} offset:{buf}")
        A(f"ds_write_b128 {v(vST)}, {reg(off(blk['raw'],4),4)} offset:{buf + stage_addr(16)}")
        for i in range(4):
            A(f"ds_read_b64_tr_b16 {reg(off(blk['dst'],2*i),2)}, {v(blk['vtr'])} offset:{buf + blk['imm'][i]}")
        if b + nq0 < 16:
            for k in range(2):
                A(f"s_mov_b32 {s(sT0)}, {nb_['soff'][k]:#x}")
                vq.issue(('B', id(nb_)), f"buffer_load_dwordx4 {reg(off(nb_['raw'], 4*k), 4)}, {v(nb_['voff'])}, {s(nb_['srd'],4)}, {s(sT0)} offen")
    A("s_waitcnt lgkmcnt(0)")
    stamp(A, 2)
    if opts.get('xatt'):
        from gen_xatt import xatt_setup, xatt_task
        xatt_setup(A, xg, sH)
    A(f"s_add_u32 {s(sNext)}, {s(sSeg)}, 5")
    xg.issue_x(sNext)
    xg.body(mf_q, wpos=opts.get('wpos', 9))
    A.nop(12)
    store_ct(ACC, sSegOff, WS_QX, XF)
    xg.toggle()
    A(f"s_waitcnt vmcnt(0) lgkmcnt(0)")
    A(f"s_barrier")
    A(f"s_mov_b32 {s(sXa)}, {s(sSeg)}")
    A(f"s_mov_b32 {s(sSeg)}, {s(sNext)}")

    Lloop = A.new_label("hq_loop")
    Lnoq = A.new_label("hq_noq")
    Lnoflag = A.new_label("hq_noflag")
    A.label(Lloop)
    A(f"s_add_u32 {s(sNext)}, {s(sSeg)}, 5")
    A(f"s_cmp_ge_u32 {s(sSeg)}, 64")
    A(f"s_cbranch_scc1 {Lnoq}")
    xg.issue_x(sNext)
    xg.body(lambda kk, f: (mf_k(kk, f), mf_v(kk, f), mf_q(kk, f)), wpos=opts.get('wpos', 9))
    A.nop(12)
    seg_offsets()
    store_kv()
    store_ct(ACC, sSegOff, WS_QX, XF)
    arm_km()
    xg.toggle()
    A(f"s_waitcnt vmcnt(0) lgkmcnt(0)")
    A(f"s_barrier")
    A(f"s_add_u32 {s(sCnt)}, {s(sCnt)}, 1")
    A(f"s_cmp_lg_u32 {s(sWAVE)}, 0")
    A(f"s_cbranch_scc1 {Lnoflag}")
    flag_store()
    A.label(Lnoflag)
    A.label(Lnoq)
    if opts.get('xatt'):
        xatt_task(A, xg, sH, sXa, opts)
    A(f"s_mov_b32 {s(sXa)}, {s(sSeg)}")
    A(f"s_mov_b32 {s(sSeg)}, {s(sNext)}")
    A(f"s_cmp_lt_u32 {s(sXa)}, 64")
    A(f"s_cbranch_scc1 {Lloop}")
    stamp(A, 4)


def gen(opts):
    global PROF
    PROF = bool(opts.get('prof'))
    A = Asm()
    A.L.append(open("header.txt").read().rstrip("\n"))
    A.L.append(f"; @launch grid=(256,1,1) block=(256,1,1) lds={LDS_BYTES}")
    A.L.append('.amdgcn_target "amdgcn-amd-amdhsa--gfx950"')
    A.L.append(".text")
    A.L.append(f".globl {KNAME}")
    A.L.append(".p2align 8")
    A.L.append(f".type {KNAME},@function")
    A.label(KNAME)
    A(f"s_cmp_ge_u32 s2, 256")
    A(f"s_cbranch_scc1 L_exit")
    A(f"s_load_dwordx16 s[64:79], s[0:1], 0")
    A(f"s_load_dwordx8 s[80:87], s[0:1], 64")
    A(f"s_load_dwordx4 s[88:91], s[0:1], 96")
    if opts.get('xrot'):
        A(f"s_add_u32 {s(sXCD)}, s2, {opts['xrot']}")
        A(f"s_and_b32 {s(sXCD)}, {s(sXCD)}, 7")
    else:
        A(f"s_and_b32 {s(sXCD)}, s2, 7")
    A(f"s_lshr_b32 {s(sIDX)}, s2, 3")
    if opts.get('cpf'):
        A("s_getpc_b64 s[44:45]")
        A.label("L_pc")
        A("v_lshlrev_b32 v2, 7, v0")
        A("s_mov_b32 s46, L_exit-L_pc")
        for i in range(opts.get('cpf')):
            A(f"v_add_u32 v4, {i * 32768:#x}, v2")
            A("v_min_u32 v4, s46, v4")
            A("v_mov_b32 v5, s45")
            A("v_add_co_u32 v4, vcc, s44, v4")
            A("v_addc_co_u32 v5, vcc, 0, v5, vcc")
            A("global_load_dword v255, v[4:5], off")
    A(f"v_lshrrev_b32 v1, 6, v0")
    A(f"s_mov_b32 {s(sDEAD)}, 0")
    A(f"v_readfirstlane_b32 {s(sWAVE)}, v1")
    A(f"s_waitcnt lgkmcnt(0)")
    mk_srd(A, S_WS, P_WS, WS_SIZE)
    mk_srd(A, S_DBG, P_DBG, 256)
    mk_srd(A, S_X, P_X, 2048 * 1024)
    if PROF:
        for i in range(10):
            A(f"s_mov_b32 {s(sSTAMP+i)}, 0")
    stamp(A, 0)
    A(f"s_cmp_eq_u32 {s(sXCD)}, 0")
    A(f"s_cbranch_scc1 L_chain")
    A(f"s_cmp_lt_u32 {s(sXCD)}, 3")
    A(f"s_cbranch_scc1 L_out")
    if opts.get('hq', True):
        gen_hq(A, opts)
    A(f"s_branch L_role_end")
    A.label("L_chain")
    if opts.get('clkprobe'):
        A("s_memrealtime s[44:45]")
        A("s_waitcnt lgkmcnt(0)")
        for i in range(1, 9):
            L = A.new_label("cp")
            A(f"s_add_u32 s46, s44, {i*500}")
            A.label(L)
            A("s_memrealtime s[48:49]")
            A("s_waitcnt lgkmcnt(0)")
            A("s_sub_u32 s50, s48, s46")
            A("s_cmp_lt_i32 s50, 0")
            A(f"s_cbranch_scc1 {L}")
            stamp_clk(A, i)
    if opts.get('chain'):
        cv = opts.get('cv', 7)
        if cv == 4:
            from gen_chain4 import gen_chain
        elif cv == 5:
            from gen_chain5 import gen_chain
        elif cv == 6:
            from gen_chain6 import gen_chain
        else:
            from gen_chain7 import gen_chain
        gen_chain(A, opts)
    A(f"s_branch L_role_end")
    A.label("L_out")
    if opts.get('out'):
        from gen_out import gen_out
        gen_out(A, opts)
    A.label("L_role_end")
    stamp(A, 9)
    A.label("L_flush")
    stamp_flush(A)
    A.label("L_exit")
    A("s_endpgm")
    A.L.append(f""".section .rodata,"a"
.p2align 6
.amdhsa_kernel {KNAME}
  .amdhsa_next_free_vgpr 512
  .amdhsa_next_free_sgpr 102
  .amdhsa_accum_offset 256
  .amdhsa_group_segment_fixed_size 0
  .amdhsa_kernarg_size 112
  .amdhsa_user_sgpr_count 2
  .amdhsa_user_sgpr_kernarg_segment_ptr 1
  .amdhsa_system_sgpr_workgroup_id_x 1
.end_amdhsa_kernel""")
    return A.text()


def main():
    opts = {}
    outp = sys.argv[1]
    for o in sys.argv[2:]:
        if "=" in o:
            k, val = o.split("=")
            opts[k] = int(val)
        else:
            opts[o] = True
    open(outp, "w").write(gen(opts))


if __name__ == "__main__":
    import gen as _g
    _g.main()
```

```python
from dsl import *
import gen as G
from gen import *

QK_OFF, O_OFF, MEM_OFF, KX_OFF, VX_OFF, WO_OFF = 0, 4096, 8192, 16384, 24576, 32768

vL16, vKw, vIdx, vQKw, vQKr, vOw, vMw, vWo, vPst, vRed, vMst, vPf, vFlag, vJunk = range(14)
vT0, vT1 = 14, 15
vSEL = 16
vVM1, vKr, vONE = 20, 21, 22
vBM = 26
vS0, vIdxW = 30, 31
KIMG = [2048, 3072, 6144, 7168]
X = 32
Y = 64
PA = 96
ACC = 112
sH, sS, sSlotP, sSlotP1, sSlotP4, sSlotM, sKM, sKV, sC, sNC, sRet = range(44, 55)
sRa0, sRa2, sFastF = 55, 56, 57
sMLo, sMHi = 58, 60
sU = 76
sFo, sNeed, sJ4, sCn, sPf, sGat, sKn, sM0K, sM0V = 78, 79, 80, 81, 84, 85, 86, 87, 88
sW1k, sRaM, sRaA, sFb, sPfb, sW2k = 64, 65, 66, 67, 68, 69
sPc2, sPc3 = 70, 71
sRo, sRm = 72, 89
sPc = [sSlotP, sSlotP1, sPc2, sPc3]
sTag = 55
vTagE = vPf
sCP0, sCP1 = 82, 83
sKok = 57
OOB = 0x40000000
RED_LIMIT = 1 << 16

LOG2E = 1.4426950408889634
WPOL = ["", " nt", " sc1", " sc0 sc1", " sc1 nt", " sc0", " sc0 nt", " sc0 sc1 nt"]
SCALE_C = (128 ** -0.5) * LOG2E


def f32_hex(x):
    import struct
    return struct.unpack("<I", struct.pack("<f", x))[0]


RT = False
LATE = [False]
CSTEP = [39]


TRACE = [False]


FTR = [0]


def fstamp(A, k):
    if TRACE[0] and FTR[0]:
        A(f"s_memtime s[{16 + 2 * (k - 1)}:{17 + 2 * (k - 1)}]")


def lstamp(A, i, late=None):
    if TRACE[0]:
        if FTR[0] == 1:
            m_ = {3: 1, 4: 5, 5: 8}.get(i)
        elif FTR[0] == 2:
            m_ = {5: 1, 6: 4, 7: 8}.get(i)
        elif FTR[0] == 3:
            m_ = {1: 1, 2: 5, 3: 8}.get(i)
        else:
            m_ = i if i <= 8 else None
        if m_:
            A(f"s_memtime s[{16 + 2 * (m_ - 1)}:{17 + 2 * (m_ - 1)}]")
        return
    L = A.new_label("ls")
    if late is None:
        late = i >= 8
    A(f"s_cmp_lg_u32 {s(sS)}, {CSTEP[0] + 1 if late else CSTEP[0]}")
    A(f"s_cbranch_scc1 {L}")
    r = 16 + 2 * (i - 1) if i < 9 else 62
    A(f"{'s_memrealtime' if RT else 's_memtime'} s[{r}:{r+1}]")
    A.label(L)


import re as _re


def _regs(tok):
    tok = tok.strip().rstrip(',')
    m = _re.match(r'^([va])\[(\d+):(\d+)\]$', tok)
    if m:
        return {(m.group(1), i) for i in range(int(m.group(2)), int(m.group(3)) + 1)}
    m = _re.match(r'^([va])(\d+)$', tok)
    if m:
        return {(m.group(1), int(m.group(2)))}
    return set()


def _all_regs(line):
    r = set()
    for tok in _re.findall(r'[va]\[\d+:\d+\]|\b[va]\d+\b', line):
        r |= _regs(tok)
    return r


def gap_reorder(lines, report=False):
    out = []
    i = 0
    n = len(lines)
    issm = lambda x: x.strip().startswith('v_smfmac')
    while i < n:
        out.append(lines[i])
        if issm(lines[i]):
            j = i + 1
            gap = []
            while j < n and not issm(lines[j]) and not lines[j].endswith(':') and not lines[j].strip().startswith(('s_cbranch', 's_branch', 'v_mfma', 's_nop', 's_memtime', 's_memrealtime', 's_cmp')):
                gap.append(lines[j])
                j += 1
            if j < n and issm(lines[j]):
                changed = True
                while changed:
                    changed = False
                    for k in range(len(gap) - 1):
                        a_, b_ = gap[k].strip(), gap[k + 1].strip()
                        if a_.startswith('v_') and not b_.startswith('v_') and 'vcc' not in a_ and 'exec' not in b_:
                            if not (_all_regs(a_) & _all_regs(b_)):
                                gap[k], gap[k + 1] = gap[k + 1], gap[k]
                                changed = True
                nv = sum(1 for g in gap if g.strip().startswith('v_'))
                no = len(gap) - nv
                lastv = all(not gap[k].strip().startswith('v_') or gap[k + 1].strip().startswith('v_') for k in range(len(gap) - 1))
                if report and (nv > 1 or (nv and no > 2) or no > 3 or not lastv):
                    print("gap over budget:", [g.strip()[:40] for g in gap])
            out.extend(gap)
            i = j
            continue
        i += 1
    return out


def gen_step(A, fast, opts):
    i0 = len(A.L)
    gen_step_raw(A, fast, opts)
    if opts.get('reord', 1):
        A.L[i0:] = gap_reorder(A.L[i0:], report=fast and opts.get('report'))


def gen_step_raw(A, fast, opts):
    KP, VP = opts.get('kpos', 0), opts.get('vpos', 0)
    RBT = opts.get('rbtop', 0)
    VAT = opts.get('vat', 12)
    M0TOP = KP in (1, 2) and VP == 0
    M0FIX = KP == 4 and VP == 0

    def vdma(n):
        if VP != 0:
            return
        if n == VAT - 1:
            if not M0TOP and not M0FIX:
                A(f"s_mov_b32 m0, {s(sM0V)}")
            A(f"s_add_u32 {s(sT3)}, {s(sKV)}, 8192")
        elif n == VAT:
            A(f"buffer_load_dwordx4 {v(vL16)}, {s(S_WS,4)}, {s(sT3)} offen lds")
        elif n == VAT + opts.get('vsp', 1):
            A(f"buffer_load_dwordx4 {v(vL16)}, {s(S_WS,4)}, {s(sT3)} offen offset:1024 lds")
    st = "" if fast else " sc1"
    tag = "f" if fast else "s"
    Lown = [f"L_own0_{tag}", f"L_own1_{tag}"]
    Lcommon = f"L_common_{tag}"
    Llast = f"L_last_{tag}"
    lq = Q(A, "lgkmcnt", 15)
    cp = opts.get('cprof') or opts.get('trace')
    rp = opts.get('rprof')
    AQ, AV, AK = ACC, ACC + 8, Y + 24
    CQ, CK = AQ + 2, AK + 2
    H0, H1 = X + 16, X + 24
    H2 = PA + 8
    G3 = opts.get('gsets', 2) == 3
    AO = Y
    KXR = {0: X + 16, 4: X + 20, 1: X + 24, 5: X + 28, 2: X, 6: X + 4, 3: X + 8, 7: X + 12}
    RB = [X, X + 8, PA, PA + 8]
    RIDX = {0: 0, 1: 1, 4: 2, 5: 3, 6: 4, 7: 5}

    def WB(m, jj, t):
        if m == 'q':
            return a(16 * jj + 8 * t, 8)
        if jj in (2, 3):
            return v(RB[2 * (jj - 2) + t], 8)
        return (a if m == 'k' else v)(128 + 16 * RIDX[jj] + 8 * t, 8)

    def rdR(m, b, half, top=False):
        if m == 'k' and 2 * b + half < RBT and not top:
            return
        fi = (0 if m == 'k' else 4) + b
        lq.issue(('R', m, b), f"ds_read_b128 {v(RB[b] + 4*half, 4)}, {v(vWo)} offset:{fi * 2048 + 1024 * half}")
    AC = {'q': AQ, 'k': AK, 'v': AV}
    vA = [None, vT0, vT1, vS0]

    def smf(m, jj, t, areg):
        if m != 'q' and jj in (2, 3):
            lq.wait(('R', m, 2 * (jj - 2) + t))
        A(f"v_smfmac_f32_16x16x64_bf16 {v(AC[m] + 4*t, 4)}, {v(areg, 4)}, {WB(m, jj, t)}, {v(vIdx)}")

    def rdKX(j):
        lq.issue(('KX', j), f"ds_read_b128 {v(KXR[j],4)}, {v(vL16)} offset:{KX_OFF + j*1024}")

    salu = [
        f"s_and_b32 {s(sT4)}, {s(sS)}, 3",
        f"s_lshl_b32 {s(sSlotM)}, {s(sT4)}, 13",
        f"s_add_u32 {s(sSlotM)}, {s(sSlotM)}, {WS_M:#x}",
        f"s_add_u32 {s(sGat)}, {s(sSlotM)}, {s(sW2k)}",
        f"s_xor_b32 {s(sRa2)}, {s(sSlotM)}, 0x4000",
        f"s_xor_b32 {s(sTag)}, {s(sTag)}, 1",
    ]

    def su(n):
        for _ in range(n):
            if salu:
                A(salu.pop(0))

    Lar = f"L_top_{tag}"
    Lspec = f"L_spec_{tag}"
    Lretry0 = f"L_retry0_{tag}"
    rt = opts.get('rtrace')

    def rstamp(k):
        if rt:
            A(f"s_memtime s[{16 + 2*k}:{17 + 2*k}]")

    def con_issue(R):
        A(f"buffer_load_dwordx4 {v(R,4)}, {v(vL16)}, {s(S_WS,4)}, {s(sGat)} offen sc1")
        A(f"buffer_load_dwordx4 {v(R+4,4)}, {v(vL16)}, {s(S_WS,4)}, {s(sGat)} offen offset:1024 sc1")

    def own(H, spec):
        lq.ops = []
        n = 0
        c0 = Y
        for m in 'qkv':
            for jj in range(2):
                for t in range(2):
                    n += 1
                    smf(m, jj, t, H + 4 * jj)
                    if spec and n == 1:
                        A(f"v_max3_u32 {v(c0)}, {v(H)}, {v(H+2)}, {v(H+4)}")
                    elif spec and n == 2:
                        A(f"v_max_u32 {v(c0)}, {v(c0)}, {v(H+6)}")
                    elif spec and n == 3:
                        A(f"v_cmp_eq_u32 vcc, -1, {v(c0)}")
                        A(f"s_add_u32 {s(sRet)}, {s(sRet)}, 1")
                        A(f"s_cbranch_vccnz {Lretry0}")
                    elif n == 4:
                        if FTR[0] == 3:
                            fstamp(A, 2)
                        A(f"s_waitcnt lgkmcnt(0)")
                        A(f"s_barrier")
                        if FTR[0] == 3:
                            fstamp(A, 3)
                    elif 5 <= n <= 10:
                        vdma(n)
                        j2 = n - 5 + 2
                        lq.issue(('A', j2), f"ds_read_b128 {v(AO + 4*(j2-2), 4)}, {v(vA[j2 >> 1])} offset:{(j2 & 1) * 1024}")
                    elif n == 11:
                        vdma(n)
                        rdR('k', 0, 0)
                    elif n == 12:
                        vdma(n)
                        rdR('k', 0, 1)
    if opts.get('lalign'):
        A.L.append(f".p2align {opts['lalign']}")
        for _ in range(opts.get('lpad', 0)):
            A("s_nop 0")
    A.label(Lar)
    A(f"s_barrier")
    if cp:
        lstamp(A, 8)
    rstamp(5)
    for k in range(1, 4):
        A(f"v_xor_b32 {v(vA[k])}, {k << 11:#x}, {v(vMw)}")
    A(f"s_mov_b32 {s(sRet)}, 0")

    def dma_pair(m0reg, soff):
        A(f"s_mov_b32 m0, {s(m0reg)}")
        A(f"s_nop 0")
        A(f"buffer_load_dwordx4 {v(vL16)}, {s(S_WS,4)}, {s(soff)} offen lds")
        A(f"buffer_load_dwordx4 {v(vL16)}, {s(S_WS,4)}, {s(soff)} offen offset:1024 lds")
    for _ in range(opts.get('tpre', 0)):
        A(f"s_sleep 1")
    if KP == 4:
        A(f"buffer_load_dwordx4 {v(X,4)}, {v(vL16)}, {s(S_WS,4)}, {s(sKV)} offen")
        A(f"buffer_load_dwordx4 {v(X+4,4)}, {v(vL16)}, {s(S_WS,4)}, {s(sKV)} offen offset:1024")
    if VP == 4:
        A(f"s_add_u32 {s(sT3)}, {s(sKV)}, 8192")
        A(f"buffer_load_dwordx4 {v(X+8,4)}, {v(vL16)}, {s(S_WS,4)}, {s(sT3)} offen")
        A(f"buffer_load_dwordx4 {v(X+12,4)}, {v(vL16)}, {s(S_WS,4)}, {s(sT3)} offen offset:1024")
    if KP == 1:
        dma_pair(sM0K, sKV)
        if M0TOP:
            A(f"s_mov_b32 m0, {s(sM0V)}")
    if VP == 1:
        A(f"s_add_u32 {s(sT3)}, {s(sKV)}, 8192")
        dma_pair(sM0V, sT3)
    if opts.get('rbpos', 0) == 0:
        for q in range(RBT):
            rdR('k', q >> 1, q & 1, True)
    for _ in range(opts.get('gdelay', 0)):
        A(f"s_sleep 1")
    con_issue(H0)
    for _ in range(opts.get('gspace', 1)):
        A(f"s_sleep 1")
    con_issue(H1)
    if G3:
        for _ in range(opts.get('gspace2', opts.get('gspace', 1))):
            A(f"s_sleep 1")
        con_issue(H2)
    if opts.get('rbpos', 0) == 1:
        for q in range(RBT):
            rdR('k', q >> 1, q & 1, True)
    if KP == 4 or VP == 4:
        assert not RBT and not G3
        A(f"s_waitcnt vmcnt(4)")
        if KP == 4:
            A(f"ds_write_b128 {v(vMw)}, {v(X,4)} offset:{KX_OFF - MEM_OFF}")
            A(f"ds_write_b128 {v(vMw)}, {v(X+4,4)} offset:{KX_OFF - MEM_OFF + 1024}")
        if VP == 4:
            A(f"ds_write_b128 {v(vMw)}, {v(X+8,4)} offset:{VX_OFF - MEM_OFF}")
            A(f"ds_write_b128 {v(vMw)}, {v(X+12,4)} offset:{VX_OFF - MEM_OFF + 1024}")
    A.label(Lspec)
    A(f"s_waitcnt vmcnt({4 if G3 else 2})")
    if rt:
        rstamp(6)
    A(f"ds_write_b128 {v(vMw)}, {v(H0,4)}")
    A(f"ds_write_b128 {v(vMw)}, {v(H0+4,4)} offset:1024")
    if cp:
        lstamp(A, 9)
        lstamp(A, 1)
    if rt:
        A("s_memtime s[30:31]")
    own(H0, True)
    A.label(Lcommon)
    if FTR[0] == 3:
        fstamp(A, 4)
    n = 12
    for jj in range(2, 8):
        for t in range(2):
            n += 1
            if t == 0:
                lq.wait(('A', jj))
            smf('q', jj, t, AO + 4 * (jj - 2))
            if n == 13 or n >= 19:
                vdma(n)
            if n == 13:
                rdR('k', 1, 0)
            elif n == 14:
                A(f"buffer_load_dword {v(vFlag)}, off, {s(S_WS,4)}, {s(sFo)} sc1")
                rdR('k', 1, 1)
            elif n == 15:
                if not opts.get('nopf'):
                    A(f"buffer_load_dword {v(vJunk)}, {v(vPf)}, {s(S_WS,4)}, {s(sPf)} offen")
                rdR('k', 2, 0)
            elif n == 16:
                A(f"s_add_u32 {s(sT3)}, {s(sPf)}, 4096")
                rdR('k', 2, 1)
            elif n == 17:
                if not opts.get('nopf'):
                    A(f"buffer_load_dword {v(vJunk)}, {v(vPf)}, {s(S_WS,4)}, {s(sT3)} offen")
                if G3:
                    A(f"s_waitcnt vmcnt({5 if VP == 0 and VAT <= 12 else 3})")
                rdR('k', 3, 0)
                su(1)
            elif n == 18:
                if not G3:
                    A(f"s_waitcnt vmcnt({5 if VP == 0 and VAT <= 12 else 3})")
                rdR('k', 3, 1)
                su(1)
            elif 19 <= n <= 22:
                rdKX((0, 4, 1, 5)[n - 19])
                su(1)
            else:
                su(3)
    if cp and not rp:
        lstamp(A, 2)

    def post(m, step):
        t, k = step // 3, step % 3
        T = AC[m] + 4 * t
        if k < 2:
            A(f"v_add_f32 {v(T + k)}, {v(T + k)}, {v(T + k + 2)}")
        else:
            d = {'q': CQ + t, 'k': CK + t, 'v': (vS0, vVM1)[t]}[m]
            A(f"v_cvt_pk_bf16_f32 {v(d)}, {v(T)}, {v(T + 1)}")
    for jj in range(2, 8):
        for t in range(2):
            n += 1
            smf('k', jj, t, AO + 4 * (jj - 2))
            vdma(n)
            if n == 31:
                lq.issue('wq', f"ds_write2st64_b32 {v(vQKw)}, {v(CQ)}, {v(CQ+1)} offset0:0 offset1:1")
            elif n == 33 and KP == 0:
                A(f"s_mov_b32 m0, {s(sM0K)}")
                A(f"s_add_u32 {s(sKn)}, {s(sKn)}, 0x80000")
            elif n == 35:
                if FTR[0] == 3:
                    fstamp(A, 6)
                lq.wait('wq')
                A(f"s_barrier")
                if FTR[0] == 3:
                    fstamp(A, 7)
            if 26 <= n <= 30:
                rdR('v', (n - 26) >> 1, (n - 26) & 1)
            elif n in (32, 33, 34):
                rdR('v', (n - 27) >> 1, (n - 27) & 1)
            if n in (31, 32):
                su(1)
            if 25 <= n <= 30:
                post('q', n - 25)
            elif n >= 33:
                A(f"v_mov_b64 {v(ACC + 2*(n - 33), 2)}, 0")
    assert not salu
    if cp and not rp:
        lstamp(A, 3)
    QR, KR = Y, Y + 16

    def trq(i):
        ks, hf = i >> 1, i & 1
        lq.issue(('q', ks), f"ds_read_b64_tr_b16 {v(QR+4*ks+2*hf,2)}, {v(vQKr)} offset:{QK_OFF + (32*ks+8*hf)*16}")

    def trk(i):
        ks, hf = i >> 1, i & 1
        lq.issue(('k', ks), f"ds_read_b64_tr_b16 {v(KR+4*ks+2*hf,2)}, {v(vKr)} offset:{KIMG[ks] + hf*256}")
    trq_at = {38: 0, 39: 1, 40: 2, 41: 3, 42: 4, 44: 5, 45: 6, 46: 7}
    for jj in range(2, 8):
        for t in range(2):
            n += 1
            smf('v', jj, t, AO + 4 * (jj - 2))
            vdma(n)
            if n in trq_at:
                trq(trq_at[n])
            if 39 <= n <= 42:
                rdKX((2, 6, 3, 7)[n - 39])
            if n == 43:
                lq.issue('wk', f"ds_write2st64_b32 {v(vKw)}, {v(CK)}, {v(CK+1)} offset0:0 offset1:2")
            elif n == 44 and not opts.get('xnokm'):
                A(f"buffer_store_dword {v(CK)}, {v(vQKw)}, {s(S_WS,4)}, {s(sKM)} offen sc1")
            elif n == 45 and not opts.get('xnokm'):
                A(f"buffer_store_dword {v(CK+1)}, {v(vQKw)}, {s(S_WS,4)}, {s(sKM)} offen offset:256 sc1")
            elif n == 47:
                if FTR[0] == 1:
                    fstamp(A, 3)
                lq.wait('wk')
                A(f"s_barrier")
                if FTR[0] == 1:
                    fstamp(A, 4)
                trk(0)
            elif n == 48:
                trk(1)
                if KP == 0:
                    A(f"buffer_load_dwordx4 {v(vL16)}, {s(S_WS,4)}, {s(sKn)} offen lds")
            if 37 <= n <= 42:
                post('k', n - 37)
            if n == 42 and FTR[0] == 1:
                fstamp(A, 2)
    if cp and not rp:
        lstamp(A, 4)
    T0, T1, TM = PA, PA + 4, PA + 8
    m, t_ = vT0, vT1
    wo_ops = [(cg, 0) for cg in range(4)] + [(cg, ks) for cg in range(4) for ks in range(1, 4)]
    bufs = [X + 16, X + 24, X, X + 8, Y, Y + 8, Y + 16, Y + 24]

    WOR = [a(224, 8), a(232, 8), a(240, 8), a(248, 8), v(224, 8), v(232, 8), v(240, 8), v(248, 8)]

    def rdW(i, half):
        o = (8 + i) * 2048 + 1024 * half
        lq.issue(('W', i), f"ds_read_b128 {v(bufs[i] + 4*half, 4)}, {v(vWo)} offset:{o}")
    for i in range(8):
        ks, t = i >> 1, i & 1
        if i in (0, 4):
            lq.wait(('q', ks + 1))
        T = (T0, T1)[t]
        c = "0" if ks == 0 else v(T, 4)
        A(f"v_mfma_f32_16x16x32_bf16 {v(T,4)}, {v(KXR[4*t+ks],4)}, {v(QR+4*ks,4)}, {c}")
        if i == 0 and KP == 0:
            A(f"buffer_load_dwordx4 {v(vL16)}, {s(S_WS,4)}, {s(sKn)} offen offset:1024 lds")
        if i <= 5:
            trk(i + 2)
            post('v', i)
        elif i == 6 and not opts.get('xnokm'):
            A(f"buffer_store_dword {v(vS0)}, {v(vQKw)}, {s(S_WS,4)}, {s(sKM)} offen offset:2048 sc1")
            A(f"buffer_store_dword {v(vVM1)}, {v(vQKw)}, {s(S_WS,4)}, {s(sKM)} offen offset:2304 sc1")
    if FTR[0] == 1:
        fstamp(A, 6)
    A(f"s_cmp_eq_u32 {s(sS)}, 63")
    A(f"s_cbranch_scc1 {Llast}")
    for ks in range(4):
        if ks in (0, 2):
            lq.wait(('k', ks + 1))
        cm = "0" if ks == 0 else v(TM, 4)
        A(f"v_mfma_f32_16x16x32_bf16 {v(TM,4)}, {v(KR+4*ks,4)}, {v(QR+4*ks,4)}, {cm}")
        rdW(ks >> 1, ks & 1)
        if ks == 1:
            A(f"v_max3_f32 {v(m)}, {v(T0)}, {v(T0+1)}, {v(T0+2)}")
        elif ks == 2:
            A(f"v_max3_f32 {v(t_)}, {v(T0+3)}, {v(T1)}, {v(T1+1)}")
        elif ks == 3:
            A(f"v_max3_f32 {v(m)}, {v(m)}, {v(T1+2)}, {v(T1+3)}")
    if FTR[0] == 1:
        fstamp(A, 7)
    ralate = 1

    def rearm(k, now=False):
        if now and k == 2:
            A(f"buffer_store_dwordx4 {v(vSEL,4)}, {v(vMst)}, {s(S_WS,4)}, {s(sRa2)} offen{st}")
    VX0 = Y + 16
    u0, u1 = TM + 2, TM + 3
    if VP == 0:
        v2 = VAT + opts.get('vsp', 1)
        young = (3 if VAT <= 12 else 0) + (v2 <= 44) + (v2 <= 45) + 2 + (2 if KP == 0 else 0)
        assert v2 <= 47
        A(f"s_waitcnt vmcnt({young})")
    lq.issue('vx', f"ds_read_b128 {v(VX0,4)}, {v(vMw)} offset:{VX_OFF - MEM_OFF}")
    lq.issue('vx', f"ds_read_b128 {v(VX0+4,4)}, {v(vMw)} offset:{VX_OFF - MEM_OFF + 1024}")
    rdW(2, 0)
    rdW(2, 1)
    A(f"v_mov_b64 {v(ACC+10,2)}, 0")
    A(f"v_max3_f32 {v(m)}, {v(m)}, {v(t_)}, {v(TM)}")
    A(f"v_max_f32 {v(u0)}, {v(m)}, {v(TM+1)}")
    A(f"v_max_f32 {v(u1)}, {v(m)}, {v(TM+1)}")
    rdW(3, 0)
    A(f"v_mov_b64 {v(ACC+8,2)}, 0")
    A(f"v_permlane16_swap_b32 {v(u0)}, {v(u1)}")
    A(f"v_max_f32 {v(m)}, {v(u0)}, {v(u1)}")
    A(f"v_max_f32 {v(t_)}, {v(u0)}, {v(u1)}")
    rdW(3, 1)
    A(f"s_nop 0")
    A(f"v_permlane32_swap_b32 {v(m)}, {v(t_)}")
    A(f"v_max_f32 {v(m)}, {v(m)}, {v(t_)}")
    A(f"v_mul_f32 {v(m)}, {s(sNC)}, {v(m)}")
    BX = ACC + 12
    xs = [T0, T0 + 1, T0 + 2, T0 + 3, T1, T1 + 1, T1 + 2, T1 + 3]
    ms = [TM, TM + 1]
    if opts.get('pk', 1):
        def pkf(r):
            A(f"v_pk_fma_f32 {v(r,2)}, {v(r,2)}, {s(sC,2)}, {v(m,2)} op_sel_hi:[1,0,0]")
        pkf(T0)
        pkf(T0 + 2)
        for j in range(8):
            A(f"v_exp_f32 {v(xs[j])}, {v(xs[j])}")
            if j == 1:
                pkf(T1)
            elif j == 3:
                pkf(T1 + 2)
            elif j == 5:
                pkf(TM)
            if j >= 2 and j % 2 == 0:
                q = (j - 2) // 2
                A(f"v_cvt_pk_bf16_f32 {v(BX+q)}, {v(xs[2*q])}, {v(xs[2*q+1])}")
    else:
        for r in xs[:2]:
            A(f"v_fma_f32 {v(r)}, {v(r)}, {s(sC)}, {v(m)}")
        for j in range(8):
            A(f"v_exp_f32 {v(xs[j])}, {v(xs[j])}")
            nx = (xs + ms)[j + 2]
            A(f"v_fma_f32 {v(nx)}, {v(nx)}, {s(sC)}, {v(m)}")
            if j >= 2 and j % 2 == 0:
                q = (j - 2) // 2
                A(f"v_cvt_pk_bf16_f32 {v(BX+q)}, {v(xs[2*q])}, {v(xs[2*q+1])}")
    A(f"v_exp_f32 {v(ms[0])}, {v(ms[0])}")
    A(f"v_cvt_pk_bf16_f32 {v(BX+3)}, {v(xs[6])}, {v(xs[7])}")
    A(f"v_exp_f32 {v(ms[1])}, {v(ms[1])}")
    if cp and not rp:
        lstamp(A, 5)
    O0, O1, LS, PKO = PA, PA + 4, PA + 12, PA + 8
    lq.wait('vx')
    A(f"v_mfma_f32_16x16x32_bf16 {v(LS,4)}, {v(vONE,4)}, {v(BX,4)}, 0")
    A(f"v_cvt_pk_bf16_f32 {v(vBM)}, {v(ms[0])}, {v(ms[1])}")
    A(f"v_mfma_f32_16x16x32_bf16 {v(O0,4)}, {v(VX0,4)}, {v(BX,4)}, 0")
    rdW(4, 0)
    WE = opts.get('wearly', 0)
    A(f"v_mfma_f32_16x16x32_bf16 {v(O1,4)}, {v(VX0+4,4)}, {v(BX,4)}, 0")
    if WE:
        rdW(4, 1)
    A(f"v_mfma_f32_16x16x32_bf16 {v(LS,4)}, {v(vONE,4)}, {v(vBM,4)}, {v(LS,4)}")
    if WE:
        rdW(5, 0)
    A(f"v_mfma_f32_16x16x32_bf16 {v(O0,4)}, {v(vS0,4)}, {v(vBM,4)}, {v(O0,4)}")
    if WE:
        rdW(5, 1)
    A(f"v_mov_b64 {v(ACC+12,2)}, 0")
    A(f"v_mfma_f32_16x16x32_bf16 {v(O1,4)}, {v(vVM1,4)}, {v(vBM,4)}, {v(O1,4)}")
    if WE:
        rdW(7, 0)
    else:
        rdW(4, 1)
    if FTR[0] == 2:
        fstamp(A, 2)
    A(f"v_rcp_f32 {v(m)}, {v(LS)}")
    if WE:
        rdW(7, 1)
    else:
        rdW(5, 0)
    A(f"v_mov_b64 {v(ACC+14,2)}, 0")
    if WE == 2:
        rdW(6, 0)
        rdW(6, 1)
    if opts.get('pk', 1):
        def pkm(r):
            A(f"v_pk_mul_f32 {v(r,2)}, {v(r,2)}, {v(m,2)} op_sel_hi:[1,0]")
        pkm(O0)
        pkm(O0 + 2)
        pkm(O1)
        A(f"v_cvt_pk_bf16_f32 {v(PKO)}, {v(O0)}, {v(O0+1)}")
        pkm(O1 + 2)
        A(f"v_cvt_pk_bf16_f32 {v(PKO+1)}, {v(O0+2)}, {v(O0+3)}")
    else:
        for r in range(4):
            A(f"v_mul_f32 {v(O0+r)}, {v(O0+r)}, {v(m)}")
        A(f"v_cvt_pk_bf16_f32 {v(PKO)}, {v(O0)}, {v(O0+1)}")
        A(f"v_cvt_pk_bf16_f32 {v(PKO+1)}, {v(O0+2)}, {v(O0+3)}")
        for r in range(4):
            A(f"v_mul_f32 {v(O1+r)}, {v(O1+r)}, {v(m)}")
    A(f"v_cvt_pk_bf16_f32 {v(PKO+2)}, {v(O1)}, {v(O1+1)}")
    A(f"v_cvt_pk_bf16_f32 {v(PKO+3)}, {v(O1+2)}, {v(O1+3)}")
    if FTR[0] == 2:
        fstamp(A, 3)
    lq.issue('wo_', f"ds_write_b128 {v(vOw)}, {v(PKO,4)} offset:0")
    AOr = [PKO, PA, PA + 4, PA + 12]
    vAo = [None, vT0, vT1, vS0]
    for k in range(1, 4):
        A(f"v_xor_b32 {v(vAo[k])}, {k << 9:#x}, {v(vOw)}")
    if cp and not rp:
        lstamp(A, 6)

    def pack(cg, k):
        A(f"v_cvt_pk_bf16_f32 {v(ACC+4*cg+k)}, {v(ACC+4*cg+2*k)}, {v(ACC+4*cg+2*k+1)}")

    def tagp(cg):
        A(f"v_and_or_b32 {v(ACC+4*cg)}, {v(ACC+4*cg)}, -2, {s(sTag)}")

    def pstore(cg):
        A(f"buffer_store_dwordx2 {v(ACC+4*cg,2)}, {v(vPst)}, {s(S_WS,4)}, {s(sPc[cg]) if cg else 0} offen{st}")
    for i, (cg, ks) in enumerate(wo_ops):
        if ks:
            lq.wait(('Ao', ks))
        if i >= 8:
            lq.wait(('W', i - 8))
        A(f"v_smfmac_f32_16x16x64_bf16 {v(ACC+4*cg,4)}, {v(AOr[ks],4)}, {WOR[i] if i < 8 else v(bufs[i - 8],8)}, {v(vIdxW)}")
        if i == opts.get('obar', 1):
            lq.wait('wo_')
            A(f"s_barrier")
            if FTR[0] == 2:
                fstamp(A, 5)
            for k in range(1, 4):
                lq.issue(('Ao', k), f"ds_read_b128 {v(AOr[k],4)}, {v(vAo[k])}")
        if i == 4 and FTR[0] == 2:
            fstamp(A, 6)
        if i == 9 and FTR[0] == 2:
            fstamp(A, 7)
        if WE == 0:
            if i == 2:
                rdW(5, 1)
                rdW(6, 0)
            elif i == 3:
                rdW(6, 1)
                rdW(7, 0)
            elif i == 4:
                rdW(7, 1)
        elif WE == 1:
            if i == 2:
                rdW(6, 0)
            elif i == 3:
                rdW(6, 1)
        pst = opts.get('pst', 1)
        if pst == 1:
            if i in (11, 14):
                pstore((i - 11) // 3)
            if i in (8, 11, 14):
                pack((i - 8) // 3, 0)
            elif i in (9, 12, 15):
                pack((i - 9) // 3, 1)
            elif i in (10, 13):
                tagp((i - 10) // 3)
        elif pst == 2:
            if i in (8, 11, 14):
                pack((i - 8) // 3, 0)
                pack((i - 8) // 3, 1)
            elif i in (9, 12, 15):
                tagp((i - 9) // 3)
            elif i in (10, 13):
                pstore((i - 10) // 3)
        elif pst == 3:
            if i in (8, 11, 14):
                pack((i - 8) // 3, 0)
            elif i in (9, 12, 15):
                pack((i - 9) // 3, 1)
                tagp((i - 9) // 3)
            elif i in (10, 13):
                pstore((i - 10) // 3)
    if pst == 1:
        tagp(2)
        pstore(2)
        A(f"s_nop 5")
    else:
        pstore(2)
        A(f"s_nop 6")
    pack(3, 0)
    pack(3, 1)
    tagp(3)
    pstore(3)
    if cp:
        lstamp(A, 7)
    Lnr = A.new_label("notred")

    def bookkeeping():
        A(f"s_add_u32 {s(sS)}, {s(sS)}, 1")
        A(f"s_add_u32 {s(sKM)}, {s(sKM)}, 0x20000")
        A(f"s_add_u32 {s(sKV)}, {s(sKV)}, 0x80000")
        A(f"s_add_u32 {s(sPf)}, {s(sPf)}, 0x80000")
        A(f"s_add_u32 {s(sJ4)}, {s(sJ4)}, 4")
        A(f"s_cmp_eq_u32 {s(sJ4)}, 20")
        A(f"s_cselect_b32 {s(sJ4)}, 0, {s(sJ4)}")
        A(f"s_addc_u32 {s(sCn)}, {s(sCn)}, 0")

    def bookkeeping2():
        A(f"s_add_u32 {s(sFo)}, {s(sFb)}, {s(sJ4)}")
        A(f"s_cmp_lt_u32 {s(sS)}, 62")
        A(f"s_cselect_b32 {s(sNeed)}, {s(sCn)}, 0")

    def zero_acc():
        for i in range(8):
            A(f"v_mov_b64 {v(ACC+2*i,2)}, 0")
        for i in range(4):
            A(f"v_mov_b64 {v(AK+2*i,2)}, 0")

    def w1_dma():
        for _ in range(opts.get('w1d', 0)):
            A(f"s_sleep 1")
        if KP == 2:
            A(f"s_add_u32 {s(sT3)}, {s(sKV)}, 0x80000")
            dma_pair(sM0K, sT3)
            if M0TOP:
                A(f"s_mov_b32 m0, {s(sM0V)}")
        if VP == 2:
            A(f"s_add_u32 {s(sT3)}, {s(sKV)}, {0x80000 + 8192:#x}")
            dma_pair(sM0V, sT3)
    nw1 = 2 * ((KP == 2) + (VP == 2))
    if nw1 and opts.get('w1pre'):
        w1_dma()
    if opts.get('rbar', 1):
        A(f"s_barrier")
    if nw1 and not opts.get('w1pre'):
        w1_dma()
    A(f"s_cmp_lg_u32 {s(sWAVE)}, 0")
    A(f"s_cbranch_scc1 {Lnr}")
    Lred = A.new_label("red")
    Lredok = A.new_label("redok")
    RA = PA
    two = opts.get('rtwo', 0)

    if rt:
        A(f"s_memtime s[62:63]")
        A(f"s_lshl_b32 {s(sT0)}, {s(sH)}, 6")
        A(f"s_add_u32 {s(sT0)}, {s(sT0)}, {s(sS)}")
        A(f"s_lshl_b32 {s(sT0)}, {s(sT0)}, 6")
        A(f"s_add_u32 {s(sT0)}, {s(sT0)}, {WS_T + 0x10000:#x}")
        A(f"s_waitcnt lgkmcnt(0)")
        A(f"v_mov_b32 {v(vT0)}, s16")
        for k in range(1, 8):
            A(f"v_writelane_b32 {v(vT0)}, s{16 + 2*k}, {k}")
        A(f"v_writelane_b32 {v(vT0)}, s{sCP0}, 8")
        A(f"v_writelane_b32 {v(vT0)}, s{sRet}, 9")
        A(f"v_lshrrev_b32 {v(vT1)}, 2, {v(vL16)}")
        A(f"s_mov_b64 exec, 0x3ff")
        A(f"buffer_store_dword {v(vT0)}, {v(vT1)}, {s(S_WS,4)}, {s(sT0)} offen")
        A(f"s_mov_b64 exec, -1")
        A(f"s_mov_b32 s16, s62")
        A(f"s_mov_b32 {s(sCP0)}, 0")
    zero_acc()
    A(f"v_xor_b32 {v(vTagE)}, 1, {v(vTagE)}")
    bookkeeping()
    bookkeeping2()
    A(f"s_mov_b32 {s(sRet)}, 0")
    RS = [[X + 4 * i for i in range(8)], [Y + 4 * i for i in range(6)] + [PA + 8, PA + 12]]
    mode = opts.get('rmode', 1)

    def ld(R, i):
        A(f"buffer_load_dwordx4 {v(R[i],4)}, {v(vRed)}, {s(S_WS,4)}, {0 if i < 4 else s(sSlotP4)} offen offset:{(i%4)*1024} sc1")

    def chk(R, other, cnt, first=False):
        ys = [vT0, vT1, vS0, vT1, vS0, vT1, vS0, vT1]
        if rt:
            A(f"s_add_u32 {s(sCP0)}, {s(sCP0)}, 1")
        for i in range(8):
            A(f"s_waitcnt vmcnt({cnt(i)})")
            if first and i == 0:
                rstamp(2)
            if first and i == 7:
                rstamp(3)
            c = "0" if i == 0 else v(RA, 4)
            A(f"v_mfma_f32_16x16x32_bf16 {v(RA,4)}, {v(R[i],4)}, {v(vSEL,4)}, {c}")
            if other is not None:
                ld(other, i)
            A(f"v_bitop3_b32 {v(ys[i])}, {v(R[i])}, {v(R[i]+2)}, {v(vTagE)} bitop3:0x7e")
            if i in (2, 4, 6):
                A(f"v_or3_b32 {v(vT0)}, {v(vT0)}, {v(vT1)}, {v(vS0)}")
        A(f"v_bitop3_b32 {v(vT0)}, {v(vT0)}, {v(vT1)}, 1 bitop3:0xa8")
        A(f"v_cmp_ne_u32 vcc, 0, {v(vT0)}")
    for _ in range(opts.get('rdelay', 0)):
        A(f"s_sleep 1")
    rstamp(1)
    for i in range(8):
        ld(RS[0], i)
    Lrfail = A.new_label("rfail")
    Lredok2 = A.new_label("redok2") if RBT else Lredok
    if mode == 2:
        for _ in range(opts.get('rspace', 1)):
            A(f"s_sleep 1")
        for i in range(8):
            ld(RS[1], i)
        chk(RS[0], None, lambda i: 15 - i, True)
    elif mode == 1:
        chk(RS[0], RS[1], lambda i: 7, True)
    else:
        chk(RS[0], None, lambda i: 7 - i, True)
    A(f"s_cbranch_vccnz {Lrfail}")
    A.label(Lredok)
    rstamp(4)
    A(f"s_nop {3 if mode == 1 else 4}")
    A(f"v_cvt_pk_bf16_f32 {v(RA+4)}, {v(RA)}, {v(RA+1)}")
    A(f"v_cvt_pk_bf16_f32 {v(RA+5)}, {v(RA+2)}, {v(RA+3)}")
    A(f"buffer_store_dwordx2 {v(RA+4,2)}, {v(vMst)}, {s(S_WS,4)}, {s(sSlotM)} offen{st}")
    A(f"s_branch {Lar}")
    A.label(Lrfail)
    if opts.get('hist'):
        A(f"s_add_u32 {s(sCP0)}, {s(sCP0)}, 1")
    if mode == 0:
        for i in range(8):
            ld(RS[1], i)
    if mode == 2 and opts.get('rlazy'):
        chk(RS[1], None, lambda i: 7 - i)
        A(f"s_cbranch_vccz {Lredok}")
        for i in range(8):
            ld(RS[0], i)
        for _ in range(opts.get('rspace', 1)):
            A(f"s_sleep 1")
        for i in range(8):
            ld(RS[1], i)
        chk(RS[0], None, lambda i: 15 - i)
        A(f"s_cbranch_vccz {Lredok}")
    A.label(Lred)
    chk(RS[1], RS[0], lambda i: 7)
    A(f"s_cbranch_vccz {Lredok2}")
    if opts.get('hist'):
        A(f"s_add_u32 {s(sCP0)}, {s(sCP0)}, 0x1000")
    chk(RS[0], RS[1], lambda i: 7)
    A(f"s_cbranch_vccz {Lredok2}")
    if opts.get('hist'):
        A(f"s_add_u32 {s(sCP0)}, {s(sCP0)}, 0x1000000")
    A(f"s_add_u32 {s(sRet)}, {s(sRet)}, 1")
    A(f"s_cmp_lg_u32 {s(sDEAD)}, 0")
    A(f"s_cbranch_scc1 {Lredok2}")
    A(f"s_cmp_lt_u32 {s(sRet)}, {RED_LIMIT}")
    A(f"s_cbranch_scc1 {Lred}")
    A(f"s_mov_b32 {s(sDEAD)}, 1")
    if RBT:
        A.label(Lredok2)
        A(f"s_waitcnt vmcnt(0)")
    A(f"s_branch {Lredok}")
    A.label(Lnr)
    Lfok = A.new_label("fok")
    Lfsp = A.new_label("fsp")
    A(f"s_mov_b32 {s(sRet)}, 0")
    A(f"s_waitcnt vmcnt({10 + (2 if KP == 0 else 0) + nw1 + (2 if VP == 0 and VAT > 12 else 0)})")
    A(f"v_readfirstlane_b32 {s(sT0)}, {v(vFlag)}")
    zero_acc()
    A(f"s_cmp_ge_u32 {s(sT0)}, {s(sNeed)}")
    A(f"s_cbranch_scc1 {Lfok}")
    A(f"s_cmp_lg_u32 {s(sDEAD)}, 0")
    A(f"s_cbranch_scc1 {Lfok}")
    A(f"s_mov_b32 {s(sRet)}, 0")
    A.label(Lfsp)
    A(f"buffer_load_dword {v(vFlag)}, off, {s(S_WS,4)}, {s(sFo)} sc1")
    A(f"s_waitcnt vmcnt(0)")
    A(f"v_readfirstlane_b32 {s(sT0)}, {v(vFlag)}")
    A(f"s_cmp_ge_u32 {s(sT0)}, {s(sNeed)}")
    A(f"s_cbranch_scc1 {Lfok}")
    A(f"s_sleep 1")
    A(f"s_add_u32 {s(sRet)}, {s(sRet)}, 1")
    A(f"s_cmp_lt_u32 {s(sRet)}, {SPIN_LIMIT}")
    A(f"s_cbranch_scc1 {Lfsp}")
    A(f"s_mov_b32 {s(sDEAD)}, 1")
    A.label(Lfok)
    if TRACE[0]:
        Lsl = A.new_label("tr")
        A(f"s_cmp_lg_u32 {s(sWAVE)}, {opts.get('tw', 1)}")
        A(f"s_cbranch_scc1 {Lsl}")
        A(f"s_lshl_b32 {s(sT0)}, {s(sH)}, 6")
        A(f"s_add_u32 {s(sT0)}, {s(sT0)}, {s(sS)}")
        A(f"s_lshl_b32 {s(sT0)}, {s(sT0)}, 5")
        A(f"s_add_u32 {s(sT0)}, {s(sT0)}, {WS_T + 0x10000:#x}")
        A(f"s_waitcnt lgkmcnt(0)")
        A(f"v_mov_b32 {v(vT0)}, s16")
        for k in range(1, 8):
            A(f"v_writelane_b32 {v(vT0)}, s{16 + 2*k}, {k}")
        A(f"v_lshrrev_b32 {v(vT1)}, 2, {v(vL16)}")
        A(f"s_mov_b64 exec, 0xff")
        A(f"buffer_store_dword {v(vT0)}, {v(vT1)}, {s(S_WS,4)}, {s(sT0)} offen")
        A(f"s_mov_b64 exec, -1")
        A.label(Lsl)
    if opts.get('steplog'):
        Lsl = A.new_label("sl")
        A(f"s_cmp_lg_u32 {s(sWAVE)}, 1")
        A(f"s_cbranch_scc1 {Lsl}")
        A(f"s_memrealtime s[62:63]")
        A(f"s_memtime s[16:17]")
        A(f"s_lshl_b32 {s(sT0)}, {s(sH)}, 6")
        A(f"s_add_u32 {s(sT0)}, {s(sT0)}, {s(sS)}")
        A(f"s_lshl_b32 {s(sT0)}, {s(sT0)}, 3")
        A(f"s_add_u32 {s(sT0)}, {s(sT0)}, {WS_T + (0x30000 if opts.get('prof') else 0x8000):#x}")
        A(f"s_waitcnt lgkmcnt(0)")
        A(f"v_mov_b32 {v(vT0)}, s62")
        A(f"v_mov_b32 {v(vT1)}, s16")
        A(f"s_mov_b64 exec, 1")
        A(f"buffer_store_dwordx2 {v(vT0,2)}, off, {s(S_WS,4)}, {s(sT0)}")
        A(f"s_mov_b64 exec, -1")
        A.label(Lsl)
    bookkeeping()
    bookkeeping2()
    rearm(2, True)
    A(f"s_branch {Lar}")
    A.label(Lretry0)
    if opts.get('hist'):
        A(f"s_add_u32 {s(sCP1)}, {s(sCP1)}, 1")
    GM = opts.get('gm', 0)

    def re_issue(R):
        if GM & 1:
            A(f"s_mov_b64 exec, vcc")
        con_issue(R)
        if GM & 1:
            A(f"s_mov_b64 exec, -1")
    if GM:
        re_issue(H0)
        A(f"s_nop {3 if GM & 1 else 5}")
    else:
        A(f"s_nop 7")
    for i in range(4):
        A(f"v_mov_b64 {v(AQ+2*i,2)}, 0")
    if not GM:
        con_issue(H0)
    A(f"s_waitcnt vmcnt({4 if G3 else 2})")
    A(f"ds_write_b128 {v(vMw)}, {v(H1,4)}")
    A(f"v_max3_u32 {v(Y)}, {v(H1)}, {v(H1+2)}, {v(H1+4)}")
    A(f"ds_write_b128 {v(vMw)}, {v(H1+4,4)} offset:1024")
    A(f"v_max_u32 {v(Y)}, {v(Y)}, {v(H1+6)}")
    A(f"v_cmp_eq_u32 vcc, -1, {v(Y)}")
    A(f"s_add_u32 {s(sRet)}, {s(sRet)}, 1")
    A(f"s_cbranch_vccz {Lown[1]}")
    if opts.get('hist'):
        A(f"s_add_u32 {s(sCP1)}, {s(sCP1)}, 0x10000")
    re_issue(H1)
    if G3:
        Lown2 = f"L_own2_{tag}"
        A(f"s_waitcnt vmcnt(4)")
        A(f"ds_write_b128 {v(vMw)}, {v(H2,4)}")
        A(f"v_max3_u32 {v(Y)}, {v(H2)}, {v(H2+2)}, {v(H2+4)}")
        A(f"ds_write_b128 {v(vMw)}, {v(H2+4,4)} offset:1024")
        A(f"v_max_u32 {v(Y)}, {v(Y)}, {v(H2+6)}")
        A(f"v_cmp_eq_u32 vcc, -1, {v(Y)}")
        A(f"s_add_u32 {s(sRet)}, {s(sRet)}, 1")
        A(f"s_cbranch_vccz {Lown2}")
        con_issue(H2)
    A(f"s_cmp_lg_u32 {s(sDEAD)}, 0")
    A(f"s_cbranch_scc1 {Lown[1]}")
    A(f"s_cmp_lt_u32 {s(sRet)}, {RED_LIMIT}")
    A(f"s_cbranch_scc1 {Lspec}")
    A(f"s_mov_b32 {s(sDEAD)}, 1")
    A.label(Lown[1])
    own(H1, False)
    A(f"s_branch {Lcommon}")
    if G3:
        A.label(Lown2)
        own(H2, False)
        A(f"s_branch {Lcommon}")
    A.label(Llast)
    A(f"s_waitcnt vmcnt(0) lgkmcnt(0)")
    if opts.get('hist'):
        A(f"s_lshl_b32 {s(sT0)}, {s(sH)}, 2")
        A(f"s_add_u32 {s(sT0)}, {s(sT0)}, {s(sWAVE)}")
        A(f"s_lshl_b32 {s(sT0)}, {s(sT0)}, 3")
        A(f"s_add_u32 {s(sT0)}, {s(sT0)}, {WS_T + 0x40000:#x}")
        A(f"v_mov_b32 {v(vT0)}, {s(sCP0)}")
        A(f"v_mov_b32 {v(vT1)}, {s(sCP1)}")
        A(f"s_mov_b64 exec, 1")
        A(f"buffer_store_dwordx2 {v(vT0,2)}, off, {s(S_WS,4)}, {s(sT0)}")
        A(f"s_mov_b64 exec, -1")
        A(f"s_waitcnt vmcnt(0)")
    if fast and opts.get('cwb'):
        Lwb = A.new_label("cwb")
        A(f"s_cmp_lg_u32 {s(sWAVE)}, 0")
        A(f"s_cbranch_scc1 {Lwb}")
        A(f"buffer_wbl2 sc1")
        A(f"s_waitcnt vmcnt(0)")
        A.label(Lwb)
    if cp and not TRACE[0]:
        for i in range(1, 10):
            A(f"s_mov_b32 s{92+i}, s{16+2*(i-1) if i < 9 else 62}")
        A(f"s_lshl_b32 {s(sCP1)}, {s(sCP1)}, 16")
        A(f"s_or_b32 s92, {s(sCP0)}, {s(sCP1)}")
        A("s_branch L_flush")
    A(f"s_branch L_role_end")


def kv_polls(A):
    for j in range(2):
        Lp = A.new_label("kvp")
        Ld = A.new_label("kvd")
        A(f"s_mov_b32 {s(sRet)}, 0")
        A(f"s_cmp_lg_u32 {s(sDEAD)}, 0")
        A(f"s_cbranch_scc1 {Ld}")
        A.label(Lp)
        A(f"buffer_load_dword {v(vFlag)}, off, {s(S_WS,4)}, {s(sT5)} offset:{4*j} sc1")
        A(f"s_waitcnt vmcnt(0)")
        A(f"v_readfirstlane_b32 {s(sT0)}, {v(vFlag)}")
        A(f"s_cmp_ge_u32 {s(sT0)}, 1")
        A(f"s_cbranch_scc1 {Ld}")
        A(f"s_sleep 1")
        A(f"s_add_u32 {s(sRet)}, {s(sRet)}, 1")
        A(f"s_cmp_lt_u32 {s(sRet)}, {SPIN_LIMIT}")
        A(f"s_cbranch_scc1 {Lp}")
        A(f"s_mov_b32 {s(sDEAD)}, 1")
        A.label(Ld)


def fb_consts(A):
    A(f"s_cmp_eq_u32 {s(sWAVE)}, 0")
    A(f"s_cselect_b32 {s(sFb)}, {OOB:#x}, {s(sT5)}")
    A(f"s_add_u32 {s(sFo)}, {s(sFb)}, 8")


def gen_late_start(A, opts, vL):
    mk_srd(A, S_A, P_MEM0, 8192)
    A(f"s_lshl_b32 {s(sT0)}, {s(sWAVE)}, 8")
    lane_expr(A, vT0, vL, [(2, 2, 2048), (0, 1, 1024), (1, 1, 64), (4, 2, 16)], sregs=[sT0])
    A(f"buffer_load_dwordx4 {v(X+24,4)}, {v(vT0)}, {s(S_A,4)}, 0 offen")
    A(f"buffer_load_dwordx4 {v(X+28,4)}, {v(vT0)}, {s(S_A,4)}, 0 offen offset:128")
    A(f"s_waitcnt vmcnt(0)")
    A(f"ds_write_b128 {v(vMw)}, {v(X+24,4)}")
    A(f"ds_write_b128 {v(vMw)}, {v(X+28,4)} offset:1024")
    for i in range(16):
        A(f"v_mov_b32 {v(ACC+i)}, 0")
    for i in range(8):
        A(f"v_mov_b32 {v(Y+24+i)}, 0")
    fb_consts(A)
    A(f"v_mov_b32 {v(vT1)}, 0")
    A(f"s_mov_b32 {s(sT2)}, {D_CHECKIN*4}")
    A(f"s_mov_b32 {s(sT3)}, 0")
    wait_byte(A, vFlag, vT1, sT2, sT3, 32, "ci", sleep=1)
    A(f"buffer_load_dword {v(vFlag)}, {v(vT1)}, {s(S_DBG,4)}, 0 offen offset:{D_CHECKIN*4} sc1")
    A(f"s_getreg_b32 {s(sT0)}, hwreg(HW_REG_XCC_ID, 0, 4)")
    A(f"s_mul_i32 {s(sT1)}, {s(sT0)}, {s(sT0)}")
    A(f"s_lshl_b32 {s(sT1)}, {s(sT1)}, 22")
    A(f"s_lshl_b32 {s(sT0)}, {s(sT0)}, 13")
    A(f"s_add_u32 {s(sT0)}, {s(sT0)}, {s(sT1)}")
    A(f"s_add_u32 {s(sT0)}, {s(sT0)}, 32")
    A(f"s_waitcnt vmcnt(0)")
    A(f"v_readfirstlane_b32 {s(sT1)}, {v(vFlag)}")
    A(f"s_cmp_eq_u32 {s(sT0)}, {s(sT1)}")
    A(f"s_cselect_b32 {s(sFastF)}, 1, 0")
    kv_polls(A)
    A(f"s_mov_b32 m0, {s(sM0K)}")
    A(f"s_nop 0")
    for i in range(2):
        A(f"buffer_load_dwordx4 {v(vL16)}, {s(S_WS,4)}, {s(sKn)} offen offset:{1024*i} lds")


def gen_chain(A, opts):
    global RT
    RT = bool(opts.get('rt'))
    CSTEP[0] = opts.get('cstep', 39)
    TRACE[0] = bool(opts.get('trace'))
    FTR[0] = opts.get('ftr', 0)
    vL = 13
    A(f"s_xor_b32 {s(sH)}, {s(sIDX)}, {opts.get('hperm', 0)}")
    A(f"v_and_b32 {v(vL)}, 63, v0")
    mk_srd(A, S_A, P_WQ, 512 * 8192)
    mk_srd(A, S_B, P_WK, 512 * 8192)
    mk_srd(A, S_C, P_WV, 512 * 8192)
    mk_srd(A, S_D, P_WO, 4096 * 1024)
    A(f"v_lshlrev_b32 {v(vL16)}, 4, {v(vL)}")
    vMre = 2
    vG, vGo, vSW, vSWo, vTRb, vTRo, vTA = 116, 117, 118, 122, 124, 125, 126
    POOL = [40, 72]
    TEMPS = [104, 32]
    sXo = sRo + 1
    A(f"s_lshl_b32 {s(sT0)}, {s(sH)}, 8")
    A(f"s_lshl_b32 {s(sT1)}, {s(sWAVE)}, 20")
    A(f"s_add_u32 {s(sT0)}, {s(sT0)}, {s(sT1)}")
    lane_expr(A, vG, vL, [(4, 2, 8192), (0, 4, 16)], sregs=[sT0])
    A(f"s_lshl_b32 {s(sT0)}, {s(sH)}, 17")
    A(f"s_lshl_b32 {s(sT1)}, {s(sWAVE)}, 8")
    A(f"s_add_u32 {s(sT0)}, {s(sT0)}, {s(sT1)}")
    lane_expr(A, vGo, vL, [(4, 2, 1024), (0, 4, 16)], sregs=[sT0])
    A(f"s_lshl_b32 {s(sXo)}, {s(sWAVE)}, 15")

    RIDX = {0: 0, 1: 1, 4: 2, 5: 3, 6: 4, 7: 5}
    wo_ops = [(cg, 0) for cg in range(4)] + [(cg, ks) for cg in range(4) for ks in range(1, 4)]
    WORR = [('a', 224), ('a', 232), ('a', 240), ('a', 248), ('v', 224), ('v', 232), ('v', 240), ('v', 248)]

    def arm():
        for i in range(4):
            A(f"v_mov_b32 {v(vSEL+i)}, -1")
        A(f"s_lshl_b32 {s(sT0)}, {s(sH)}, 13")
        A(f"s_lshl_b32 {s(sT1)}, {s(sWAVE)}, 11")
        A(f"s_add_u32 {s(sT0)}, {s(sT0)}, {s(sT1)}")
        A(f"v_bfe_u32 {v(vT0)}, {v(vL)}, 4, 1")
        for i in range(4):
            A(f"v_xor_b32 {v(ACC+i)}, -1, {v(vT0)}")
        vq.issue('st', f"buffer_store_dwordx4 {v(ACC,4)}, {v(vL16)}, {s(S_WS,4)}, {s(sT0)} offen sc1")
        vq.issue('st', f"buffer_store_dwordx4 {v(ACC,4)}, {v(vL16)}, {s(S_WS,4)}, {s(sT0)} offen offset:1024 sc1")
        A(f"s_lshl_b32 {s(sT2)}, {s(sH)}, 8")
        A(f"v_add_u32 {v(vT0)}, {s(sT2)}, {v(vL16)}")
        A(f"v_cmp_gt_u32 vcc, 16, {v(vL)}")
        A(f"v_mov_b32 {v(vT1)}, {OOB:#x}")
        A.nop(1)
        A(f"v_cndmask_b32 {v(vMre)}, {v(vT1)}, {v(vT0)}, vcc")
        for sl in range(4):
            A(f"s_mov_b32 {s(sT1)}, {WS_M + sl*8192:#x}")
            vq.issue('st', f"buffer_store_dwordx4 {v(vSEL,4)}, {v(vMre)}, {s(S_WS,4)}, {s(sT1)} offen sc1")
        Z = 20
        for i in range(4):
            A(f"v_mov_b32 {v(Z+i)}, 0")
        A(f"v_cndmask_b32 {v(Z+4)}, {v(vT1)}, {v(vL16)}, vcc")
        A(f"s_lshl_b32 {s(sT1)}, {s(sH)}, 8")
        A(f"s_add_u32 {s(sT1)}, {s(sT1)}, {WS_OF:#x}")
        vq.issue('st', f"buffer_store_dwordx4 {v(Z,4)}, {v(Z+4)}, {s(S_WS,4)}, {s(sT1)} offen sc1")
        A(f"v_cmp_gt_u32 vcc, 8, {v(vL)}")
        A.nop(2)
        A(f"v_cndmask_b32 {v(Z+5)}, {v(vT1)}, {v(vL16)}, vcc")
        A(f"s_lshl_b32 {s(sT1)}, {s(sH)}, 7")
        A(f"s_add_u32 {s(sT1)}, {s(sT1)}, {WS_KVF:#x}")
        vq.issue('st', f"buffer_store_dwordx4 {v(Z,4)}, {v(Z+5)}, {s(S_WS,4)}, {s(sT1)} offen sc1")

    def qkv_unit(m, hp, x):
        u = dict(kind='qkv', m=m, hp=hp, x=x, srd={'q': S_A, 'k': S_B, 'v': S_C}[m], needs_temp=(m != 'q'))
        u['soff'] = [(64 * hp + 16 * x + 4 * (k & 3) + 32 * (k >> 2)) * 8192 for k in range(8)]
        return u

    def bind(u, temp):
        if u['kind'] == 'qkv':
            m, hp, x = u['m'], u['hp'], u['x']
            res = []
            for i in range(4):
                sl = hp + 2 * i
                for t_ in range(2):
                    if m == 'q':
                        res.append((('a', 16 * sl + 8 * t_ + 4 * x), None))
                    elif sl in (2, 3):
                        fi = (0 if m == 'k' else 4) + 2 * (sl - 2) + t_
                        res.append((('v', temp + 4 * t_), fi * 2048 + 1024 * x))
                    else:
                        res.append(((('a' if m == 'k' else 'v'), 128 + 16 * RIDX[sl] + 8 * t_ + 4 * x), None))
            u['raw'] = [r[0] for r in res]
            u['res'] = res
        else:
            u['raw'] = [('v', temp + 4 * k) for k in range(8)]

    def wo_unit(ks):
        return dict(kind='wo', ks=ks, srd=S_D, soff=[(32 * ks + 4 * k) * 1024 for k in range(8)])
    U = {f"O{k}": wo_unit(k) for k in range(4)}
    for m in 'qkv':
        for hp in range(2):
            for x in range(2):
                U[f"{m.upper()}{hp}{x}"] = qkv_unit(m, hp, x)
    order = {0: "O0 O1 Q00 Q01 Q10 Q11 O2 O3 K00 K01 K10 K11 V00 V01 V10 V11",
             1: "Q00 Q01 Q10 Q11 O0 O1 K00 K01 O2 O3 K10 K11 V00 V01 V10 V11",
             2: "K00 K01 Q00 Q01 Q10 Q11 O0 O1 K10 K11 O2 O3 V00 V01 V10 V11",
             3: "O0 O1 Q00 Q01 Q10 Q11 O2 O3 V00 V01 V10 V11 K00 K01 K10 K11",
             4: "K00 K01 K10 K11 V00 V01 V10 V11 Q00 Q01 Q10 Q11 O0 O1 O2 O3",
             5: "K00 K01 K10 K11 V00 V01 V10 V11 Q00 O0 Q01 O1 Q10 O2 Q11 O3",
             6: "O0 O1 K00 K01 K10 K11 V00 V01 V10 V11 Q00 O2 Q01 O3 Q10 Q11",
             8: "K00 K01 K10 K11 V00 V01 V10 V11 O0 O1 O2 O3 Q00 Q01 Q10 Q11",
             7: "K00 K01 K10 K11 O0 V00 V01 O1 V10 V11 Q00 O2 Q01 O3 Q10 Q11"}[opts.get('word', 0)].split()
    units = [U[n] for n in order]
    vq = Q(A, "vmcnt", 63)
    nst = 8
    ARMLATE = opts.get('armlate', 1)
    if not ARMLATE:
        arm()
    busy = set()
    TPREF = [40, 48, 56, 64, 104, 32, 72, 80, 88, 96]
    PPREF = [72, 40]

    def alloc_temp():
        for g in TPREF:
            if g not in busy:
                busy.add(g)
                return g
        return None

    def alloc_pool():
        for p in PPREF:
            gs = [p + 8 * j for j in range(4)]
            if not any(g in busy for g in gs):
                busy.update(gs)
                return p
        return None
    held = {}
    WIN = opts.get('cwin', 56)
    st_ = dict(issued=0)

    def inflight():
        return len(vq.ops)

    EARLY = opts.get('early', 1)
    vEK, vEM, vEF, vEC, vEA = 104, 32, 112, 114, 115
    vEV = 96
    DMI = opts.get('vpos', 0) != 0

    def early_issue():
        assert 104 not in busy and 32 not in busy
        busy.update((104, 32))
        if DMI:
            assert vEV not in busy
            busy.add(vEV)
        mk_srd(A, S_X, P_MEM0, 8192)
        A(f"s_lshl_b32 {s(sT0)}, {s(sWAVE)}, 8")
        lane_expr(A, vEA, vL, [(2, 2, 2048), (0, 1, 1024), (1, 1, 64), (4, 2, 16)], sregs=[sT0])
        vq.issue('fl', f"buffer_load_dwordx2 {v(vEF,2)}, off, {s(S_WS,4)}, {s(sT5)} sc1")
        vq.issue('ci', f"buffer_load_dword {v(vEC)}, off, {s(S_DBG,4)}, 0 offset:{D_CHECKIN*4} sc1")
        vq.issue('m0', f"buffer_load_dwordx4 {v(vEM,4)}, {v(vEA)}, {s(S_X,4)}, 0 offen")
        vq.issue('m0', f"buffer_load_dwordx4 {v(vEM+4,4)}, {v(vEA)}, {s(S_X,4)}, 0 offen offset:128")

    def early_k():
        vq.wait('fl')
        A(f"v_min_u32 {v(vEF)}, {v(vEF)}, {v(vEF+1)}")
        A.nop(1)
        A(f"v_readfirstlane_b32 {s(sT0)}, {v(vEF)}")
        A(f"s_cmp_ge_u32 {s(sT0)}, 1")
        A(f"s_cselect_b32 {s(sKok)}, 1, 0")
        A(f"s_cselect_b32 {s(sT1)}, {s(sKn)}, {OOB:#x}")
        vq.issue('kx', f"buffer_load_dwordx4 {v(vEK,4)}, {v(vL16)}, {s(S_WS,4)}, {s(sT1)} offen")
        vq.issue('kx', f"buffer_load_dwordx4 {v(vEK+4,4)}, {v(vL16)}, {s(S_WS,4)}, {s(sT1)} offen offset:1024")
        if DMI:
            A(f"s_add_u32 {s(sT1)}, {s(sT1)}, 8192")
            vq.issue('kx', f"buffer_load_dwordx4 {v(vEV,4)}, {v(vL16)}, {s(S_WS,4)}, {s(sT1)} offen")
            vq.issue('kx', f"buffer_load_dwordx4 {v(vEV+4,4)}, {v(vL16)}, {s(S_WS,4)}, {s(sT1)} offen offset:1024")

    def try_issue():
        while st_['issued'] < len(units):
            u = units[st_['issued']]
            limit = min(WIN + (nst if 'st' in vq.ops else 0), 62)
            if EARLY and st_['issued'] == len(units) - 1 and not st_.get('early'):
                if inflight() + 8 > limit or 104 in busy or 32 in busy or (DMI and vEV in busy):
                    return
                early_issue()
                st_['early'] = True
                limit += 4
            elif EARLY and st_.get('early'):
                limit += 4
            if inflight() + 8 > limit:
                return
            if u['kind'] == 'wo':
                tmp = alloc_pool()
                if tmp is None:
                    return
                held[id(u)] = ('pool', tmp)
            elif u['needs_temp']:
                tmp = alloc_temp()
                if tmp is None:
                    return
                held[id(u)] = ('temp', tmp)
            else:
                tmp = None
            bind(u, tmp)
            for k in range(8):
                if u['kind'] == 'wo':
                    A(f"s_xor_b32 {s(sT0)}, {u['soff'][k]:#x}, {s(sXo)}")
                    vq.issue(id(u), f"buffer_load_dwordx4 {reg(u['raw'][k], 4)}, {v(vGo)}, {s(u['srd'],4)}, {s(sT0)} offen" + WPOL[opts.get('wnto', 0)])
                else:
                    A(f"s_mov_b32 {s(sT0)}, {u['soff'][k]:#x}")
                    vq.issue(id(u), f"buffer_load_dwordx4 {reg(u['raw'][k], 4)}, {v(vG)}, {s(u['srd'],4)}, {s(sT0)} offen" + WPOL[opts.get('wnt', 0)])
            st_['issued'] += 1
    stamp(A, 1) if not opts.get('cprof') else None
    try_issue()
    if ARMLATE:
        arm()
    A(f"s_lshl_b32 {s(sT2)}, {s(sWAVE)}, 13")
    lane_expr(A, vSW, vL, [(4, 2, 256), (1, 3, 32), (0, 1, 16)], sregs=[sT2])
    A(f"v_mov_b32 {v(vSWo)}, {v(vSW)}")
    A(f"v_bfe_u32 {v(vTA)}, {v(vL)}, 4, 1")
    A(f"v_lshlrev_b32 {v(vT0)}, 5, {v(vTA)}")
    A(f"v_xor_b32 {v(vSW)}, {v(vSW)}, {v(vT0)}")
    A(f"v_lshlrev_b32 {v(vT0)}, 6, {v(vTA)}")
    A(f"v_xor_b32 {v(vSWo)}, {v(vSWo)}, {v(vT0)}")
    A(f"v_xor_b32 {v(vSW+1)}, 64, {v(vSW)}")
    A(f"v_xor_b32 {v(vSW+2)}, 0x80, {v(vSW)}")
    A(f"v_xor_b32 {v(vSW+3)}, 0xc0, {v(vSW)}")
    A(f"v_xor_b32 {v(vSWo+1)}, 0x80, {v(vSWo)}")
    A(f"s_lshl_b32 {s(sT3)}, {s(sWAVE)}, 6")
    lane_expr(A, vTRb, vL, [(2, 1, 256 + 32), (4, 1, 1024 + 64), (5, 1, 2048), (3, 1, 4096 + 128), (0, 2, 8)])
    A(f"v_xor_b32 {v(vTRb)}, {s(sT3)}, {v(vTRb)}")
    A(f"v_add_u32 {v(vTRb)}, {s(sT2)}, {v(vTRb)}")
    lane_expr(A, vTRo, vL, [(2, 1, 256 + 64), (4, 1, 4096 + 128), (5, 1, 1024), (3, 1, 32), (0, 2, 8)], sregs=[sT2])
    A(f"s_lshl_b32 {s(sT0)}, {s(sWAVE)}, 15")
    A(f"s_add_u32 {s(sT0)}, {s(sT0)}, {WO_OFF}")
    A(f"v_add_u32 {v(vWo)}, {s(sT0)}, {v(vL16)}")
    def checkin():
        vq.wait('st')
        A(f"s_barrier")
        Lci = A.new_label("ci")
        A(f"s_cmp_lg_u32 {s(sWAVE)}, 0")
        A(f"s_cbranch_scc1 {Lci}")
        A(f"s_getreg_b32 {s(sT0)}, hwreg(HW_REG_XCC_ID, 0, 4)")
        A(f"s_mul_i32 {s(sT1)}, {s(sT0)}, {s(sT0)}")
        A(f"s_lshl_b32 {s(sT1)}, {s(sT1)}, 17")
        A(f"s_lshl_b32 {s(sT0)}, {s(sT0)}, 8")
        A(f"s_add_u32 {s(sT0)}, {s(sT0)}, {s(sT1)}")
        A(f"s_add_u32 {s(sT0)}, {s(sT0)}, 1")
        A(f"v_mov_b32 {v(vT0)}, {s(sT0)}")
        A(f"v_mov_b32 {v(vT1)}, 0")
        A(f"s_mov_b64 exec, 1")
        A(f"buffer_atomic_add {v(vT0)}, {v(vT1)}, {s(S_DBG,4)}, 0 offen offset:{D_CHECKIN*4} sc1")
        A(f"s_mov_b64 exec, -1")
        A.label(Lci)

    if not ARMLATE:
        checkin()
        try_issue()
    A(f"s_lshr_b32 {s(sT3)}, {s(sH)}, 2")
    A(f"s_lshl_b32 {s(sT3)}, {s(sT3)}, 10")
    A(f"s_and_b32 {s(sT4)}, {s(sH)}, 1")
    A(f"s_lshl_b32 {s(sT4)}, {s(sT4)}, 9")
    A(f"s_add_u32 {s(sT3)}, {s(sT3)}, {s(sT4)}")
    A(f"s_and_b32 {s(sT4)}, {s(sH)}, 2")
    A(f"s_lshl_b32 {s(sT4)}, {s(sT4)}, 4")
    A(f"s_add_u32 {s(sT3)}, {s(sT3)}, {s(sT4)}")
    lane_expr(A, vMst, vL, [(5, 1, 256), (1, 2, 64), (0, 1, 16), (4, 1, 8)], sregs=[sT3])
    A(f"v_and_b32 {v(vT1)}, 8, {v(vL)}")
    A(f"v_lshlrev_b32 {v(vT1)}, 27, {v(vT1)}")
    A(f"v_add_u32 {v(vMst)}, {v(vMst)}, {v(vT1)}")
    A(f"s_cmp_eq_u32 {s(sWAVE)}, 0")
    Lw0 = A.new_label("w0")
    A(f"s_cbranch_scc1 {Lw0}")
    A(f"v_mov_b32 {v(vMst)}, {v(vMre)}")
    A(f"s_cmp_eq_u32 {s(sWAVE)}, 3")
    A(f"s_cbranch_scc1 {Lw0}")
    A(f"v_mov_b32 {v(vMst)}, {OOB:#x}")
    A.label(Lw0)
    for (dst, bit) in ((vIdx, 2), (vIdxW, 8)):
        A(f"v_mov_b32 {v(dst)}, 0x4444")
        A(f"v_mov_b32 {v(vT0)}, 0xeeee")
        A(f"v_and_b32 {v(vT1)}, {bit}, {v(vL)}")
        A(f"v_cmp_ne_u32 vcc, 0, {v(vT1)}")
        A.nop(2)
        A(f"v_cndmask_b32 {v(dst)}, {v(dst)}, {v(vT0)}, vcc")
    A(f"s_lshl_b32 {s(sT0)}, {s(sWAVE)}, 9")
    lane_expr(A, vQKw, vL, [(0, 4, 16), (4, 2, 4)], sregs=[sT0])
    A(f"s_lshl_b32 {s(sT0)}, {s(sWAVE)}, 10")
    A(f"s_lshr_b32 {s(sT1)}, {s(sWAVE)}, 1")
    A(f"s_lshl_b32 {s(sT1)}, {s(sT1)}, 11")
    A(f"s_add_u32 {s(sT0)}, {s(sT0)}, {s(sT1)}")
    lane_expr(A, vKw, vL, [(0, 4, 32), (4, 2, 8)], const=2048, sregs=[sT0])
    lane_expr(A, vKr, vL, [(5, 1, 512), (4, 1, 128), (2, 2, 32), (0, 2, 8)])
    lane_expr(A, vQKr, vL, [(5, 1, 256), (4, 1, 64), (2, 2, 16), (0, 1, 8)])
    A(f"s_lshl_b32 {s(sT0)}, {s(sWAVE)}, 9")
    lane_expr(A, vOw, vL, [(4, 2, 128), (0, 3, 16)], const=O_OFF, sregs=[sT0])
    A(f"s_lshl_b32 {s(sT0)}, {s(sWAVE)}, 11")
    A(f"s_add_u32 {s(sT0)}, {s(sT0)}, {MEM_OFF}")
    A(f"v_add_u32 {v(vMw)}, {s(sT0)}, {v(vL16)}")
    A(f"s_lshl_b32 {s(sT0)}, {s(sWAVE)}, 16")
    A(f"s_lshl_b32 {s(sT1)}, {s(sH)}, 8")
    lane_expr(A, vPst, vL, [(5, 1, 8192), (0, 4, 16), (4, 1, 8)], sregs=[sT0, sT1])
    A(f"s_lshl_b32 {s(sT0)}, {s(sH)}, 13")
    A(f"v_add_u32 {v(vRed)}, {s(sT0)}, {v(vL16)}")
    A(f"s_and_b32 {s(sT1)}, {s(sWAVE)}, 1")
    A(f"s_lshl_b32 {s(sT1)}, {s(sT1)}, 13")
    A(f"s_lshl_b32 {s(sT0)}, {s(sH)}, 14")
    A(f"s_add_u32 {s(sT0)}, {s(sT0)}, {s(sT1)}")
    A(f"v_lshlrev_b32 {v(vPf)}, 6, {v(vL)}")
    A(f"v_add_u32 {v(vPf)}, {s(sT0)}, {v(vPf)}")
    A(f"s_mov_b32 {s(sMLo)}, -1")
    A(f"s_mov_b32 {s(sMLo+1)}, 0")
    A(f"s_mov_b32 {s(sMHi)}, 0")
    A(f"s_mov_b32 {s(sMHi+1)}, -1")
    A(f"s_mov_b32 {s(sC)}, {f32_hex(SCALE_C):#x}")
    A(f"s_mov_b32 {s(sNC)}, {f32_hex(-SCALE_C):#x}")
    Lsel = A.new_label("sel")
    A(f"s_cmp_lg_u32 {s(sWAVE)}, 0")
    A(f"s_cbranch_scc1 {Lsel}")
    A(f"v_and_b32 {v(vT0)}, 15, {v(vL)}")
    A(f"v_mov_b32 {v(vS0)}, 0x3f80")
    A(f"v_mov_b32 {v(vT1)}, 0x3f800000")
    A(f"v_and_b32 v112, 1, {v(vT0)}")
    A(f"v_cmp_eq_u32 vcc, 1, v112")
    A.nop(2)
    A(f"v_cndmask_b32 {v(vS0)}, {v(vS0)}, {v(vT1)}, vcc")
    A(f"v_lshrrev_b32 {v(vT0)}, 1, {v(vT0)}")
    for i in range(4):
        A(f"v_cmp_eq_u32 vcc, {i}, {v(vT0)}")
        A.nop(2)
        A(f"v_cndmask_b32 {v(vSEL+i)}, 0, {v(vS0)}, vcc")
    A(f"v_bfe_u32 {v(vTagE)}, {v(vL)}, 4, 1")
    A(f"v_xor_b32 {v(vTagE)}, 1, {v(vTagE)}")
    A.label(Lsel)
    for i in range(4):
        A(f"v_mov_b32 {v(vONE+i)}, 0x3f803f80")
    for i in range(1, 4):
        A(f"v_mov_b32 {v(vBM+i)}, 0")

    A(f"s_lshl_b32 {s(sW2k)}, {s(sWAVE)}, 11")
    A(f"s_mov_b32 {s(sSlotP1)}, {WS_P + 16384}")
    A(f"s_mov_b32 {s(sPc2)}, {WS_P + 32768}")
    A(f"s_mov_b32 {s(sPc3)}, {WS_P + 49152}")
    A(f"s_mov_b32 {s(sSlotP4)}, {WS_P + 4096}")
    A(f"s_and_b32 {s(sTag)}, {s(sH)}, 1")
    A(f"s_xor_b32 {s(sTag)}, {s(sTag)}, 1")
    A(f"s_lshl_b32 {s(sT5)}, {s(sH)}, 7")
    A(f"s_add_u32 {s(sT5)}, {s(sT5)}, {WS_KVF:#x}")
    A(f"s_cmp_ge_u32 {s(sWAVE)}, 2")
    A(f"s_mov_b32 {s(sT0)}, {OOB:#x}")
    A(f"s_mov_b32 {s(sPf)}, {WS_KX + 0x80000:#x}")
    A(f"s_cselect_b32 {s(sPf)}, {s(sPf)}, {s(sT0)}")
    A(f"s_add_u32 {s(sM0K)}, {s(sW2k)}, {KX_OFF}")
    A(f"s_lshl_b32 {s(sKn)}, {s(sH)}, 14")
    A(f"s_add_u32 {s(sKn)}, {s(sKn)}, {s(sW2k)}")
    A(f"s_add_u32 {s(sKn)}, {s(sKn)}, {WS_KX:#x}")
    A(f"s_add_u32 {s(sM0V)}, {s(sW2k)}, {VX_OFF}")
    A(f"s_lshl_b32 {s(sKV)}, {s(sH)}, 14")
    A(f"s_add_u32 {s(sKV)}, {s(sKV)}, {s(sW2k)}")
    A(f"s_add_u32 {s(sKV)}, {s(sKV)}, {WS_KX:#x}")
    A(f"s_lshl_b32 {s(sKM)}, {s(sH)}, 12")
    A(f"s_add_u32 {s(sKM)}, {s(sKM)}, {WS_KM:#x}")
    A(f"s_mov_b32 {s(sJ4)}, 8")
    A(f"s_mov_b32 {s(sCn)}, 1")
    A(f"s_mov_b32 {s(sNeed)}, 1")
    for b, u in enumerate(units):
        assert st_['issued'] > b, "loader deadlock"
        if EARLY and b == len(units) - 1:
            assert st_.get('early')
            early_k()
        vq.wait(id(u))
        A(f"s_barrier")
        if u['kind'] == 'qkv':
            for k in range(8):
                A(f"ds_write_b128 {v(vSW + (k & 1) + 2 * (k >> 2))}, {reg(u['raw'][k], 4)} offset:{k * 1024}")
            A(f"s_waitcnt lgkmcnt(0)")
            A(f"s_barrier")
            x = u['x']
            for i in range(4):
                for t_ in range(2):
                    r_, fin = u['res'][2 * i + t_]
                    A(f"v_xor_b32 {v(vTA + (t_ & 1))}, {(i << 13) | (t_ << 5):#x}, {v(vTRb)}")
                    for q0 in range(2):
                        A(f"ds_read_b64_tr_b16 {reg(off(r_, 2 * q0), 2)}, {v(vTA + (t_ & 1))} offset:{512 * q0}")
            A(f"s_waitcnt lgkmcnt(0)")
            for (r_, fin) in u['res']:
                if fin is not None:
                    A(f"ds_write_b128 {v(vWo)}, {reg(r_, 4)} offset:{fin}")
        else:
            ks = u['ks']
            for k in range(8):
                A(f"ds_write_b128 {v(vSWo + (k >> 2))}, {reg(u['raw'][k], 4)} offset:{k * 1024}")
            base = u['raw'][0][1]
            fins = []
            for cg in range(4):
                io = wo_ops.index((cg, ks))
                dst = WORR[io] if io < 8 else ('v', base + 8 * cg)
                A(f"v_xor_b32 {v(vTA + (cg & 1))}, {cg << 6:#x}, {v(vTRo)}")
                for i in range(4):
                    A(f"ds_read_b64_tr_b16 {reg(off(dst, 2 * i), 2)}, {v(vTA + (cg & 1))} offset:{(8 * (i >> 1) + 2 * (i & 1)) * 256}")
                if io >= 8:
                    fins.append((dst, io * 2048))
            A(f"s_waitcnt lgkmcnt(0)")
            for (dst, o) in fins:
                A(f"ds_write_b128 {v(vWo)}, {reg(dst, 4)} offset:{o}")
                A(f"ds_write_b128 {v(vWo)}, {reg(off(dst, 4), 4)} offset:{o + 1024}")
        if id(u) in held:
            kind, tmp = held[id(u)]
            A(f"s_waitcnt lgkmcnt(0)")
            if kind == 'pool':
                busy.difference_update(tmp + 8 * j for j in range(4))
            else:
                busy.discard(tmp)
        if ARMLATE and b == opts.get('cipos', 1):
            checkin()
        if opts.get('prof') and not opts.get('cprof') and b in (0, 3, 7, 11):
            stamp(A, {0: 4, 3: 5, 7: 6, 11: 7}[b])
        try_issue()
    A("s_waitcnt lgkmcnt(0)")
    stamp(A, 2) if not opts.get('cprof') else None
    A(f"s_barrier")
    if not EARLY:
        gen_late_start(A, opts, vL)
    else:
        Lkok = A.new_label("kok")
        A(f"s_cmp_eq_u32 {s(sKok)}, 1")
        A(f"s_cbranch_scc1 {Lkok}")
        kv_polls(A)
        A(f"buffer_load_dwordx4 {v(vEK,4)}, {v(vL16)}, {s(S_WS,4)}, {s(sKn)} offen")
        A(f"buffer_load_dwordx4 {v(vEK+4,4)}, {v(vL16)}, {s(S_WS,4)}, {s(sKn)} offen offset:1024")
        if DMI:
            A(f"s_add_u32 {s(sT1)}, {s(sKn)}, 8192")
            A(f"buffer_load_dwordx4 {v(vEV,4)}, {v(vL16)}, {s(S_WS,4)}, {s(sT1)} offen")
            A(f"buffer_load_dwordx4 {v(vEV+4,4)}, {v(vL16)}, {s(S_WS,4)}, {s(sT1)} offen offset:1024")
        A.label(Lkok)
        A(f"s_waitcnt vmcnt(0)")
        A(f"ds_write_b128 {v(vMw)}, {v(vEM,4)}")
        A(f"ds_write_b128 {v(vMw)}, {v(vEM+4,4)} offset:1024")
        for i in range(4):
            A(f"v_mov_b64 {v(X+24+2*i,2)}, {v(vEM+2*i,2)}")
        A(f"v_readfirstlane_b32 {s(sT4)}, {v(vEC)}")
        A(f"ds_write_b128 {v(vMw)}, {v(vEK,4)} offset:{KX_OFF - MEM_OFF}")
        A(f"ds_write_b128 {v(vMw)}, {v(vEK+4,4)} offset:{KX_OFF - MEM_OFF + 1024}")
        if DMI:
            A(f"ds_write_b128 {v(vMw)}, {v(vEV,4)} offset:{VX_OFF - MEM_OFF}")
            A(f"ds_write_b128 {v(vMw)}, {v(vEV+4,4)} offset:{VX_OFF - MEM_OFF + 1024}")
        for i in range(16):
            A(f"v_mov_b32 {v(ACC+i)}, 0")
        for i in range(8):
            A(f"v_mov_b32 {v(Y+24+i)}, 0")
        fb_consts(A)
        Lcok = A.new_label("cok")
        A(f"s_and_b32 {s(sT0)}, {s(sT4)}, 0xff")
        A(f"s_cmp_ge_u32 {s(sT0)}, 32")
        A(f"s_cbranch_scc1 {Lcok}")
        A(f"v_mov_b32 {v(vT1)}, 0")
        A(f"s_mov_b32 {s(sT2)}, {D_CHECKIN*4}")
        A(f"s_mov_b32 {s(sT3)}, 0")
        wait_byte(A, vFlag, vT1, sT2, sT3, 32, "ci", sleep=1)
        A(f"buffer_load_dword {v(vFlag)}, {v(vT1)}, {s(S_DBG,4)}, 0 offen offset:{D_CHECKIN*4} sc1")
        A(f"s_waitcnt vmcnt(0)")
        A(f"v_readfirstlane_b32 {s(sT4)}, {v(vFlag)}")
        A.label(Lcok)
        A(f"s_getreg_b32 {s(sT0)}, hwreg(HW_REG_XCC_ID, 0, 4)")
        A(f"s_mul_i32 {s(sT1)}, {s(sT0)}, {s(sT0)}")
        A(f"s_lshl_b32 {s(sT1)}, {s(sT1)}, 22")
        A(f"s_lshl_b32 {s(sT0)}, {s(sT0)}, 13")
        A(f"s_add_u32 {s(sT0)}, {s(sT0)}, {s(sT1)}")
        A(f"s_add_u32 {s(sT0)}, {s(sT0)}, 32")
        A(f"s_cmp_eq_u32 {s(sT0)}, {s(sT4)}")
        A(f"s_cselect_b32 {s(sFastF)}, 1, 0")
        A(f"s_mov_b32 m0, {s(sM0V if opts.get('kpos', 0) else sM0K)}")
    A(f"s_mov_b32 {s(sS)}, 0")
    A(f"s_waitcnt vmcnt(0) lgkmcnt(0)")
    A(f"s_barrier")
    stamp(A, 3) if not opts.get('cprof') else None
    if opts.get('cprof') or opts.get('hist'):
        A(f"s_mov_b32 {s(sCP0)}, 0")
        A(f"s_mov_b32 {s(sCP1)}, 0")
    for k, r_ in ((1, vT0), (2, vT1), (3, vS0)):
        A(f"v_xor_b32 {v(r_)}, {k << 11:#x}, {v(vMw)}")
    for q in range(opts.get('rbtop', 0)):
        A(f"ds_read_b128 {v([X, X + 8, PA, PA + 8][q >> 1] + 4 * (q & 1), 4)}, {v(vWo)} offset:{(q >> 1) * 2048 + 1024 * (q & 1)}")
    A(f"s_cmp_eq_u32 {s(sFastF)}, 1")
    if opts.get('forceslow'):
        A(f"s_branch L_own1_s")
    A(f"s_cbranch_scc0 L_own1_s")
    A(f"s_branch L_own1_f")
    gen_step(A, True, opts)
    gen_step(A, False, opts)


def G_tr(A, vD, vL, kind, base_sreg):
    tr_lane_addr(A, vD, vL, vT0, vS0, kind, base_sreg=base_sreg)
```

```python
from dsl import *
import gen as G
from gen import *

QK_OFF, O_OFF, MEM_OFF, KX_OFF, VX_OFF, WO_OFF = 0, 4096, 8192, 16384, 24576, 32768

vL16, vKw, vIdx, vQKw, vQKr, vOw, vMw, vWo, vPst, vRed, vMst, vPf, vFlag, vJunk = range(14)
vT0, vT1 = 14, 15
vSEL = 16
vVM1, vKr, vONE = 20, 21, 22
vBM = 26
vS0, vIdxW = 30, 31
KIMG = [2048, 3072, 6144, 7168]
X = 32
Y = 64
PA = 96
ACC = 112
sH, sS, sSlotP, sSlotP1, sSlotP4, sSlotM, sKM, sKV, sC, sNC, sRet = range(44, 55)
sRa0, sRa2, sFastF = 55, 56, 57
sMLo, sMHi = 58, 60
sU = 76
sFo, sNeed, sJ4, sCn, sPf, sGat, sKn, sM0K, sM0V = 78, 79, 80, 81, 84, 85, 86, 87, 88
sW1k, sRaM, sRaA, sFb, sPfb, sW2k = 64, 65, 66, 67, 68, 69
sPc2, sPc3 = 70, 71
sRo, sRm = 72, 89
sPc = [sSlotP, sSlotP1, sPc2, sPc3]
sTag = 55
vTagE = vPf
sCP0, sCP1 = 82, 83
sKok = 57
OOB = 0x40000000
RED_LIMIT = 1 << 16

LOG2E = 1.4426950408889634
WPOL = ["", " nt", " sc1", " sc0 sc1", " sc1 nt", " sc0", " sc0 nt", " sc0 sc1 nt"]
SCALE_C = (128 ** -0.5) * LOG2E


def f32_hex(x):
    import struct
    return struct.unpack("<I", struct.pack("<f", x))[0]


RT = False
LATE = [False]
CSTEP = [39]


TRACE = [False]


FTR = [0]


def fstamp(A, k):
    if TRACE[0] and FTR[0]:
        A(f"s_memtime s[{16 + 2 * (k - 1)}:{17 + 2 * (k - 1)}]")


def lstamp(A, i, late=None):
    if TRACE[0]:
        if FTR[0] == 1:
            m_ = {3: 1, 4: 5, 5: 8}.get(i)
        elif FTR[0] == 2:
            m_ = {5: 1, 6: 4, 7: 8}.get(i)
        elif FTR[0] == 3:
            m_ = {1: 1, 2: 5, 3: 8}.get(i)
        else:
            m_ = i if i <= 8 else None
        if m_:
            A(f"s_memtime s[{16 + 2 * (m_ - 1)}:{17 + 2 * (m_ - 1)}]")
        return
    L = A.new_label("ls")
    if late is None:
        late = i >= 8
    A(f"s_cmp_lg_u32 {s(sS)}, {CSTEP[0] + 1 if late else CSTEP[0]}")
    A(f"s_cbranch_scc1 {L}")
    r = 16 + 2 * (i - 1) if i < 9 else 62
    A(f"{'s_memrealtime' if RT else 's_memtime'} s[{r}:{r+1}]")
    A.label(L)


import re as _re


def _regs(tok):
    tok = tok.strip().rstrip(',')
    m = _re.match(r'^([va])\[(\d+):(\d+)\]$', tok)
    if m:
        return {(m.group(1), i) for i in range(int(m.group(2)), int(m.group(3)) + 1)}
    m = _re.match(r'^([va])(\d+)$', tok)
    if m:
        return {(m.group(1), int(m.group(2)))}
    return set()


def _all_regs(line):
    r = set()
    for tok in _re.findall(r'[va]\[\d+:\d+\]|\b[va]\d+\b', line):
        r |= _regs(tok)
    return r


def gap_reorder(lines, report=False):
    out = []
    i = 0
    n = len(lines)
    issm = lambda x: x.strip().startswith('v_smfmac')
    while i < n:
        out.append(lines[i])
        if issm(lines[i]):
            j = i + 1
            gap = []
            while j < n and not issm(lines[j]) and not lines[j].endswith(':') and not lines[j].strip().startswith(('s_cbranch', 's_branch', 'v_mfma', 's_nop', 's_memtime', 's_memrealtime', 's_cmp')):
                gap.append(lines[j])
                j += 1
            if j < n and issm(lines[j]):
                changed = True
                while changed:
                    changed = False
                    for k in range(len(gap) - 1):
                        a_, b_ = gap[k].strip(), gap[k + 1].strip()
                        if a_.startswith('v_') and not b_.startswith('v_') and 'vcc' not in a_ and 'exec' not in b_:
                            if not (_all_regs(a_) & _all_regs(b_)):
                                gap[k], gap[k + 1] = gap[k + 1], gap[k]
                                changed = True
                nv = sum(1 for g in gap if g.strip().startswith('v_'))
                no = len(gap) - nv
                lastv = all(not gap[k].strip().startswith('v_') or gap[k + 1].strip().startswith('v_') for k in range(len(gap) - 1))
                if report and (nv > 1 or (nv and no > 2) or no > 3 or not lastv):
                    print("gap over budget:", [g.strip()[:40] for g in gap])
            out.extend(gap)
            i = j
            continue
        i += 1
    return out


def red3(A, opts, R, RA, ld, st, Lar, rstamp, RBT):
    sSave = sU
    LfA, LfB, LfAB, Lgen, Lok = (A.new_label(x) for x in ("rfA", "rfB", "rfAB", "rgen", "rok"))
    hist = opts.get('hist')

    main = [True]

    def item(i, cnt, first):
        if cnt is not None:
            A(f"s_waitcnt vmcnt({cnt})")
        if main[0] and i in (0, 7):
            rstamp(2 if i == 0 else 3)
        c = "0" if first else v(RA, 4)
        A(f"v_mfma_f32_16x16x32_bf16 {v(RA,4)}, {v(R[i],4)}, {v(vSEL,4)}, {c}")

    def tagchk(i, y):
        A(f"v_bitop3_b32 {v(y)}, {v(R[i])}, {v(R[i]+2)}, {v(vTagE)} bitop3:0x7e")

    def half(base, cnts, first, k0=0, chk=True):
        for k in range(k0, 4):
            item(base + k, cnts[k], first and k == 0)
            if chk:
                tagchk(base + k, [vT0, vT1, vS0, vT1][k])
                if k == 2:
                    A(f"v_or3_b32 {v(vT0)}, {v(vT0)}, {v(vT1)}, {v(vS0)}")
        if chk:
            A(f"v_bitop3_b32 {v(vT0)}, {v(vT0)}, {v(vT1)}, 1 bitop3:0xa8")
            A(f"v_cmp_ne_u32 vcc, 0, {v(vT0)}")

    def repoll(lo, hi, d=0):
        for _ in range(d):
            A(f"s_sleep 1")
        A(f"s_mov_b64 exec, vcc")
        for i in range(lo, hi):
            ld(R, i)
        A(f"s_mov_b64 exec, -1")

    def both(first_cnts):
        half(0, first_cnts, True)
        A(f"s_mov_b64 {s(sSave,2)}, vcc")
        half(4, [3, 2, 1, 0], False)
        A(f"s_or_b64 vcc, vcc, {s(sSave,2)}")
    half(0, [7, 6, 5, 4], True)
    item(4, 3, False)
    tagchk(4, vT0)
    A(f"s_cbranch_vccnz {LfA}")
    half(4, [3, 2, 1, 0], False, k0=1)
    A(f"s_cbranch_vccnz {LfB}")
    main[0] = False
    A.label(Lok)
    rstamp(4)
    A(f"s_nop 4")
    A(f"v_cvt_pk_bf16_f32 {v(RA+4)}, {v(RA)}, {v(RA+1)}")
    A(f"v_cvt_pk_bf16_f32 {v(RA+5)}, {v(RA+2)}, {v(RA+3)}")
    A(f"buffer_store_dwordx2 {v(RA+4,2)}, {v(vMst)}, {s(S_WS,4)}, {s(sSlotM)} offen{st}")
    A(f"s_branch {Lar}")
    A.label(LfA)
    repoll(0, 4, opts.get('rda', 0))
    if hist or opts.get('rtrace'):
        A(f"s_add_u32 {s(sCP0)}, {s(sCP0)}, 1")
    half(4, [None, 6, 5, 4], True)
    A(f"s_cbranch_vccnz {LfAB}")
    half(0, [3, 2, 1, 0], False)
    A(f"s_cbranch_vccz {Lok}")
    A(f"s_branch {Lgen}")
    A.label(LfAB)
    repoll(4, 8)
    both([7, 6, 5, 4])
    A(f"s_cbranch_vccz {Lok}")
    A(f"s_branch {Lgen}")
    A.label(LfB)
    repoll(4, 8, opts.get('rdb', 0))
    if hist or opts.get('rtrace'):
        A(f"s_add_u32 {s(sCP0)}, {s(sCP0)}, {0x1000000 if opts.get('hist') == 2 else 1}")
    half(0, [None] * 4, True, chk=False)
    half(4, [3, 2, 1, 0], False)
    A(f"s_cbranch_vccz {Lok}")
    A.label(Lgen)
    repoll(0, 8, opts.get('rdg', 0))
    if hist:
        A(f"s_add_u32 {s(sCP0)}, {s(sCP0)}, 0x1000")
    if opts.get('rtrace'):
        A(f"s_add_u32 {s(sCP0)}, {s(sCP0)}, 2")
    both([7, 6, 5, 4])
    A(f"s_cbranch_vccz {Lok}")
    A(f"s_add_u32 {s(sRet)}, {s(sRet)}, 1")
    A(f"s_cmp_lg_u32 {s(sDEAD)}, 0")
    A(f"s_cbranch_scc1 {Lok}")
    A(f"s_cmp_lt_u32 {s(sRet)}, {RED_LIMIT}")
    A(f"s_cbranch_scc1 {Lgen}")
    A(f"s_mov_b32 {s(sDEAD)}, 1")
    A(f"s_branch {Lok}")


def gen_step(A, fast, opts):
    i0 = len(A.L)
    gen_step_raw(A, fast, opts)
    if opts.get('reord', 1):
        A.L[i0:] = gap_reorder(A.L[i0:], report=fast and opts.get('report'))


def gen_step_raw(A, fast, opts):
    KP, VP = opts.get('kpos', 0), opts.get('vpos', 0)
    RBT = opts.get('rbtop', 0)
    VAT = opts.get('vat', 12)
    M0TOP = KP in (1, 2) and VP == 0
    M0FIX = KP == 4 and VP == 0

    def vdma(n):
        if VP != 0:
            return
        if n == VAT - 1:
            if not M0TOP and not M0FIX:
                A(f"s_mov_b32 m0, {s(sM0V)}")
            A(f"s_add_u32 {s(sT3)}, {s(sKV)}, 8192")
        elif n == VAT:
            A(f"buffer_load_dwordx4 {v(vL16)}, {s(S_WS,4)}, {s(sT3)} offen lds")
        elif n == VAT + opts.get('vsp', 1):
            A(f"buffer_load_dwordx4 {v(vL16)}, {s(S_WS,4)}, {s(sT3)} offen offset:1024 lds")
    st = "" if fast else " sc1"
    tag = "f" if fast else "s"
    Lown = [f"L_own0_{tag}", f"L_own1_{tag}"]
    Lcommon = f"L_common_{tag}"
    Llast = f"L_last_{tag}"
    lq = Q(A, "lgkmcnt", 15)
    cp = opts.get('cprof') or opts.get('trace')
    rp = opts.get('rprof')
    AQ, AV, AK = ACC, ACC + 8, Y + 24
    CQ, CK = AQ + 2, AK + 2
    H0, H1 = X + 16, X + 24
    H2 = PA + 8
    G3 = opts.get('gsets', 2) == 3
    AO = Y
    KXR = {0: X + 16, 4: X + 20, 1: X + 24, 5: X + 28, 2: X, 6: X + 4, 3: X + 8, 7: X + 12}
    RB = [X, X + 8, PA, PA + 8]
    RIDX = {0: 0, 1: 1, 4: 2, 5: 3, 6: 4, 7: 5}

    def WB(m, jj, t):
        if m == 'q':
            return a(16 * jj + 8 * t, 8)
        if jj in (2, 3):
            return v(RB[2 * (jj - 2) + t], 8)
        return (a if m == 'k' else v)(128 + 16 * RIDX[jj] + 8 * t, 8)

    def rdR(m, b, half, top=False):
        if m == 'k' and 2 * b + half < RBT and not top:
            return
        fi = (0 if m == 'k' else 4) + b
        lq.issue(('R', m, b), f"ds_read_b128 {v(RB[b] + 4*half, 4)}, {v(vWo)} offset:{fi * 2048 + 1024 * half}")
    AC = {'q': AQ, 'k': AK, 'v': AV}
    vA = [None, vT0, vT1, vS0]

    def smf(m, jj, t, areg):
        if m != 'q' and jj in (2, 3):
            lq.wait(('R', m, 2 * (jj - 2) + t))
        A(f"v_smfmac_f32_16x16x64_bf16 {v(AC[m] + 4*t, 4)}, {v(areg, 4)}, {WB(m, jj, t)}, {v(vIdx)}")

    def rdKX(j):
        lq.issue(('KX', j), f"ds_read_b128 {v(KXR[j],4)}, {v(vL16)} offset:{KX_OFF + j*1024}")

    salu = [
        f"s_and_b32 {s(sT4)}, {s(sS)}, 3",
        f"s_lshl_b32 {s(sSlotM)}, {s(sT4)}, 13",
        f"s_add_u32 {s(sSlotM)}, {s(sSlotM)}, {WS_M:#x}",
        f"s_add_u32 {s(sGat)}, {s(sSlotM)}, {s(sW2k)}",
        f"s_xor_b32 {s(sRa2)}, {s(sSlotM)}, 0x4000",
        f"s_xor_b32 {s(sTag)}, {s(sTag)}, 1",
    ]

    def su(n):
        for _ in range(n):
            if salu:
                A(salu.pop(0))

    Lar = f"L_top_{tag}"
    Lspec = f"L_spec_{tag}"
    Lretry0 = f"L_retry0_{tag}"
    rt = opts.get('rtrace')

    def rstamp(k):
        if rt:
            A(f"s_memtime s[{16 + 2*k}:{17 + 2*k}]")

    def con_issue(R):
        A(f"buffer_load_dwordx4 {v(R,4)}, {v(vL16)}, {s(S_WS,4)}, {s(sGat)} offen sc1")
        A(f"buffer_load_dwordx4 {v(R+4,4)}, {v(vL16)}, {s(S_WS,4)}, {s(sGat)} offen offset:1024 sc1")

    def own(H, spec):
        lq.ops = []
        n = 0
        c0 = Y
        for m in 'qkv':
            for jj in range(2):
                for t in range(2):
                    n += 1
                    smf(m, jj, t, H + 4 * jj)
                    if spec and n == 1:
                        A(f"v_max3_u32 {v(c0)}, {v(H)}, {v(H+2)}, {v(H+4)}")
                    elif spec and n == 2:
                        A(f"v_max_u32 {v(c0)}, {v(c0)}, {v(H+6)}")
                    elif spec and n == 3:
                        A(f"v_cmp_eq_u32 vcc, -1, {v(c0)}")
                        A(f"s_add_u32 {s(sRet)}, {s(sRet)}, 1")
                        A(f"s_cbranch_vccnz {Lretry0}")
                    elif n == 4:
                        if FTR[0] == 3:
                            fstamp(A, 2)
                        A(f"s_waitcnt lgkmcnt(0)")
                        A(f"s_barrier")
                        if FTR[0] == 3:
                            fstamp(A, 3)
                    elif 5 <= n <= 10:
                        vdma(n)
                        j2 = n - 5 + 2
                        lq.issue(('A', j2), f"ds_read_b128 {v(AO + 4*(j2-2), 4)}, {v(vA[j2 >> 1])} offset:{(j2 & 1) * 1024}")
                    elif n == 11:
                        vdma(n)
                        rdR('k', 0, 0)
                    elif n == 12:
                        vdma(n)
                        rdR('k', 0, 1)
    if opts.get('lalign'):
        A.L.append(f".p2align {opts['lalign']}")
        for _ in range(opts.get('lpad', 0)):
            A("s_nop 0")
    A.label(Lar)
    A(f"s_barrier")
    if cp:
        lstamp(A, 8)
    rstamp(5)
    for k in range(1, 4):
        A(f"v_xor_b32 {v(vA[k])}, {k << 11:#x}, {v(vMw)}")
    A(f"s_mov_b32 {s(sRet)}, 0")

    def dma_pair(m0reg, soff):
        A(f"s_mov_b32 m0, {s(m0reg)}")
        A(f"s_nop 0")
        A(f"buffer_load_dwordx4 {v(vL16)}, {s(S_WS,4)}, {s(soff)} offen lds")
        A(f"buffer_load_dwordx4 {v(vL16)}, {s(S_WS,4)}, {s(soff)} offen offset:1024 lds")
    for _ in range(opts.get('tpre', 0)):
        A(f"s_sleep 1")
    if KP == 4:
        A(f"buffer_load_dwordx4 {v(X,4)}, {v(vL16)}, {s(S_WS,4)}, {s(sKV)} offen")
        A(f"buffer_load_dwordx4 {v(X+4,4)}, {v(vL16)}, {s(S_WS,4)}, {s(sKV)} offen offset:1024")
    if VP == 4:
        A(f"s_add_u32 {s(sT3)}, {s(sKV)}, 8192")
        A(f"buffer_load_dwordx4 {v(X+8,4)}, {v(vL16)}, {s(S_WS,4)}, {s(sT3)} offen")
        A(f"buffer_load_dwordx4 {v(X+12,4)}, {v(vL16)}, {s(S_WS,4)}, {s(sT3)} offen offset:1024")
    if KP == 1:
        dma_pair(sM0K, sKV)
        if M0TOP:
            A(f"s_mov_b32 m0, {s(sM0V)}")
    if VP == 1:
        A(f"s_add_u32 {s(sT3)}, {s(sKV)}, 8192")
        dma_pair(sM0V, sT3)
    if opts.get('rbpos', 0) == 0:
        for q in range(RBT):
            rdR('k', q >> 1, q & 1, True)
    for _ in range(opts.get('gdelay', 0)):
        A(f"s_sleep 1")
    con_issue(H0)
    for _ in range(opts.get('gspace', 1)):
        A(f"s_sleep 1")
    con_issue(H1)
    if G3:
        for _ in range(opts.get('gspace2', opts.get('gspace', 1))):
            A(f"s_sleep 1")
        con_issue(H2)
    if opts.get('rbpos', 0) == 1:
        for q in range(RBT):
            rdR('k', q >> 1, q & 1, True)
    if KP == 4 or VP == 4:
        assert not RBT and not G3
        A(f"s_waitcnt vmcnt(4)")
        if KP == 4:
            A(f"ds_write_b128 {v(vMw)}, {v(X,4)} offset:{KX_OFF - MEM_OFF}")
            A(f"ds_write_b128 {v(vMw)}, {v(X+4,4)} offset:{KX_OFF - MEM_OFF + 1024}")
        if VP == 4:
            A(f"ds_write_b128 {v(vMw)}, {v(X+8,4)} offset:{VX_OFF - MEM_OFF}")
            A(f"ds_write_b128 {v(vMw)}, {v(X+12,4)} offset:{VX_OFF - MEM_OFF + 1024}")
    A.label(Lspec)
    A(f"s_waitcnt vmcnt({4 if G3 else 2})")
    if rt:
        rstamp(6)
    A(f"ds_write_b128 {v(vMw)}, {v(H0,4)}")
    A(f"ds_write_b128 {v(vMw)}, {v(H0+4,4)} offset:1024")
    if cp:
        lstamp(A, 9)
        lstamp(A, 1)
    if rt:
        A("s_memtime s[30:31]")
    own(H0, True)
    A.label(Lcommon)
    if FTR[0] == 3:
        fstamp(A, 4)
    n = 12
    for jj in range(2, 8):
        for t in range(2):
            n += 1
            if t == 0:
                lq.wait(('A', jj))
            smf('q', jj, t, AO + 4 * (jj - 2))
            if n == 13 or n >= 19:
                vdma(n)
            if n == 13:
                rdR('k', 1, 0)
            elif n == 14:
                A(f"buffer_load_dword {v(vFlag)}, off, {s(S_WS,4)}, {s(sFo)} sc1")
                rdR('k', 1, 1)
            elif n == 15:
                if not opts.get('nopf'):
                    A(f"buffer_load_dword {v(vJunk)}, {v(vPf)}, {s(S_WS,4)}, {s(sPf)} offen")
                rdR('k', 2, 0)
            elif n == 16:
                A(f"s_add_u32 {s(sT3)}, {s(sPf)}, 4096")
                rdR('k', 2, 1)
            elif n == 17:
                if not opts.get('nopf'):
                    A(f"buffer_load_dword {v(vJunk)}, {v(vPf)}, {s(S_WS,4)}, {s(sT3)} offen")
                if G3:
                    A(f"s_waitcnt vmcnt({5 if VP == 0 and VAT <= 12 else 3})")
                rdR('k', 3, 0)
                su(1)
            elif n == 18:
                if not G3:
                    A(f"s_waitcnt vmcnt({5 if VP == 0 and VAT <= 12 else 3})")
                rdR('k', 3, 1)
                su(1)
            elif 19 <= n <= 22:
                rdKX((0, 4, 1, 5)[n - 19])
                su(1)
            else:
                su(3)
    if cp and not rp:
        lstamp(A, 2)

    def post(m, step):
        t, k = step // 3, step % 3
        T = AC[m] + 4 * t
        if k < 2:
            A(f"v_add_f32 {v(T + k)}, {v(T + k)}, {v(T + k + 2)}")
        else:
            d = {'q': CQ + t, 'k': CK + t, 'v': (vS0, vVM1)[t]}[m]
            A(f"v_cvt_pk_bf16_f32 {v(d)}, {v(T)}, {v(T + 1)}")
    for jj in range(2, 8):
        for t in range(2):
            n += 1
            smf('k', jj, t, AO + 4 * (jj - 2))
            vdma(n)
            if n == 31:
                lq.issue('wq', f"ds_write2st64_b32 {v(vQKw)}, {v(CQ)}, {v(CQ+1)} offset0:0 offset1:1")
            elif n == 33 and KP == 0:
                A(f"s_mov_b32 m0, {s(sM0K)}")
                A(f"s_add_u32 {s(sKn)}, {s(sKn)}, 0x80000")
            elif n == 35:
                if FTR[0] == 3:
                    fstamp(A, 6)
                lq.wait('wq')
                A(f"s_barrier")
                if FTR[0] == 3:
                    fstamp(A, 7)
            if 26 <= n <= 30:
                rdR('v', (n - 26) >> 1, (n - 26) & 1)
            elif n in (32, 33, 34):
                rdR('v', (n - 27) >> 1, (n - 27) & 1)
            if n in (31, 32):
                su(1)
            if 25 <= n <= 30:
                post('q', n - 25)
            elif n >= 33:
                A(f"v_mov_b64 {v(ACC + 2*(n - 33), 2)}, 0")
    assert not salu
    if cp and not rp:
        lstamp(A, 3)
    QR, KR = Y, Y + 16

    def trq(i):
        ks, hf = i >> 1, i & 1
        lq.issue(('q', ks), f"ds_read_b64_tr_b16 {v(QR+4*ks+2*hf,2)}, {v(vQKr)} offset:{QK_OFF + (32*ks+8*hf)*16}")

    def trk(i):
        ks, hf = i >> 1, i & 1
        lq.issue(('k', ks), f"ds_read_b64_tr_b16 {v(KR+4*ks+2*hf,2)}, {v(vKr)} offset:{KIMG[ks] + hf*256}")
    trq_at = {38: 0, 39: 1, 40: 2, 41: 3, 42: 4, 44: 5, 45: 6, 46: 7}
    for jj in range(2, 8):
        for t in range(2):
            n += 1
            smf('v', jj, t, AO + 4 * (jj - 2))
            vdma(n)
            if n in trq_at:
                trq(trq_at[n])
            if 39 <= n <= 42:
                rdKX((2, 6, 3, 7)[n - 39])
            if n == 43:
                lq.issue('wk', f"ds_write2st64_b32 {v(vKw)}, {v(CK)}, {v(CK+1)} offset0:0 offset1:2")
            elif n == 44 and not opts.get('xnokm'):
                A(f"buffer_store_dword {v(CK)}, {v(vQKw)}, {s(S_WS,4)}, {s(sKM)} offen sc1")
            elif n == 45 and not opts.get('xnokm'):
                A(f"buffer_store_dword {v(CK+1)}, {v(vQKw)}, {s(S_WS,4)}, {s(sKM)} offen offset:256 sc1")
            elif n == 47:
                if FTR[0] == 1:
                    fstamp(A, 3)
                lq.wait('wk')
                A(f"s_barrier")
                if FTR[0] == 1:
                    fstamp(A, 4)
                trk(0)
            elif n == 48:
                trk(1)
                if KP == 0:
                    A(f"buffer_load_dwordx4 {v(vL16)}, {s(S_WS,4)}, {s(sKn)} offen lds")
            if 37 <= n <= 42:
                post('k', n - 37)
            if n == 42 and FTR[0] == 1:
                fstamp(A, 2)
    if cp and not rp:
        lstamp(A, 4)
    T0, T1, TM = PA, PA + 4, PA + 8
    m, t_ = vT0, vT1
    wo_ops = [(cg, 0) for cg in range(4)] + [(cg, ks) for cg in range(4) for ks in range(1, 4)]
    bufs = [X + 16, X + 24, X, X + 8, Y, Y + 8, Y + 16, Y + 24]

    WOR = [a(224, 8), a(232, 8), a(240, 8), a(248, 8), v(224, 8), v(232, 8), v(240, 8), v(248, 8)]

    def rdW(i, half):
        o = (8 + i) * 2048 + 1024 * half
        lq.issue(('W', i), f"ds_read_b128 {v(bufs[i] + 4*half, 4)}, {v(vWo)} offset:{o}")
    for i in range(8):
        ks, t = i >> 1, i & 1
        if i in (0, 4):
            lq.wait(('q', ks + 1))
        T = (T0, T1)[t]
        c = "0" if ks == 0 else v(T, 4)
        A(f"v_mfma_f32_16x16x32_bf16 {v(T,4)}, {v(KXR[4*t+ks],4)}, {v(QR+4*ks,4)}, {c}")
        if i == 0 and KP == 0:
            A(f"buffer_load_dwordx4 {v(vL16)}, {s(S_WS,4)}, {s(sKn)} offen offset:1024 lds")
        if i <= 5:
            trk(i + 2)
            post('v', i)
        elif i == 6 and not opts.get('xnokm'):
            A(f"buffer_store_dword {v(vS0)}, {v(vQKw)}, {s(S_WS,4)}, {s(sKM)} offen offset:2048 sc1")
            A(f"buffer_store_dword {v(vVM1)}, {v(vQKw)}, {s(S_WS,4)}, {s(sKM)} offen offset:2304 sc1")
    if FTR[0] == 1:
        fstamp(A, 6)
    A(f"s_cmp_eq_u32 {s(sS)}, 63")
    A(f"s_cbranch_scc1 {Llast}")
    for ks in range(4):
        if ks in (0, 2):
            lq.wait(('k', ks + 1))
        cm = "0" if ks == 0 else v(TM, 4)
        A(f"v_mfma_f32_16x16x32_bf16 {v(TM,4)}, {v(KR+4*ks,4)}, {v(QR+4*ks,4)}, {cm}")
        rdW(ks >> 1, ks & 1)
        if ks == 1:
            A(f"v_max3_f32 {v(m)}, {v(T0)}, {v(T0+1)}, {v(T0+2)}")
        elif ks == 2:
            A(f"v_max3_f32 {v(t_)}, {v(T0+3)}, {v(T1)}, {v(T1+1)}")
        elif ks == 3:
            A(f"v_max3_f32 {v(m)}, {v(m)}, {v(T1+2)}, {v(T1+3)}")
    if FTR[0] == 1:
        fstamp(A, 7)
    ralate = 1

    def rearm(k, now=False):
        if now and k == 2:
            A(f"buffer_store_dwordx4 {v(vSEL,4)}, {v(vMst)}, {s(S_WS,4)}, {s(sRa2)} offen{st}")
    VX0 = Y + 16
    u0, u1 = TM + 2, TM + 3
    if VP == 0:
        v2 = VAT + opts.get('vsp', 1)
        young = (3 if VAT <= 12 else 0) + (v2 <= 44) + (v2 <= 45) + 2 + (2 if KP == 0 else 0)
        assert v2 <= 47
        A(f"s_waitcnt vmcnt({young})")
    lq.issue('vx', f"ds_read_b128 {v(VX0,4)}, {v(vMw)} offset:{VX_OFF - MEM_OFF}")
    lq.issue('vx', f"ds_read_b128 {v(VX0+4,4)}, {v(vMw)} offset:{VX_OFF - MEM_OFF + 1024}")
    rdW(2, 0)
    rdW(2, 1)
    A(f"v_mov_b64 {v(ACC+10,2)}, 0")
    A(f"v_max3_f32 {v(m)}, {v(m)}, {v(t_)}, {v(TM)}")
    A(f"v_max_f32 {v(u0)}, {v(m)}, {v(TM+1)}")
    A(f"v_max_f32 {v(u1)}, {v(m)}, {v(TM+1)}")
    rdW(3, 0)
    A(f"v_mov_b64 {v(ACC+8,2)}, 0")
    A(f"v_permlane16_swap_b32 {v(u0)}, {v(u1)}")
    A(f"v_max_f32 {v(m)}, {v(u0)}, {v(u1)}")
    A(f"v_max_f32 {v(t_)}, {v(u0)}, {v(u1)}")
    rdW(3, 1)
    A(f"s_nop 0")
    A(f"v_permlane32_swap_b32 {v(m)}, {v(t_)}")
    A(f"v_max_f32 {v(m)}, {v(m)}, {v(t_)}")
    A(f"v_mul_f32 {v(m)}, {s(sNC)}, {v(m)}")
    BX = ACC + 12
    xs = [T0, T0 + 1, T0 + 2, T0 + 3, T1, T1 + 1, T1 + 2, T1 + 3]
    ms = [TM, TM + 1]
    if opts.get('pk', 1):
        def pkf(r):
            A(f"v_pk_fma_f32 {v(r,2)}, {v(r,2)}, {s(sC,2)}, {v(m,2)} op_sel_hi:[1,0,0]")
        pkf(T0)
        pkf(T0 + 2)
        for j in range(8):
            A(f"v_exp_f32 {v(xs[j])}, {v(xs[j])}")
            if j == 1:
                pkf(T1)
            elif j == 3:
                pkf(T1 + 2)
            elif j == 5:
                pkf(TM)
            if j >= 2 and j % 2 == 0:
                q = (j - 2) // 2
                A(f"v_cvt_pk_bf16_f32 {v(BX+q)}, {v(xs[2*q])}, {v(xs[2*q+1])}")
    else:
        for r in xs[:2]:
            A(f"v_fma_f32 {v(r)}, {v(r)}, {s(sC)}, {v(m)}")
        for j in range(8):
            A(f"v_exp_f32 {v(xs[j])}, {v(xs[j])}")
            nx = (xs + ms)[j + 2]
            A(f"v_fma_f32 {v(nx)}, {v(nx)}, {s(sC)}, {v(m)}")
            if j >= 2 and j % 2 == 0:
                q = (j - 2) // 2
                A(f"v_cvt_pk_bf16_f32 {v(BX+q)}, {v(xs[2*q])}, {v(xs[2*q+1])}")
    A(f"v_exp_f32 {v(ms[0])}, {v(ms[0])}")
    A(f"v_cvt_pk_bf16_f32 {v(BX+3)}, {v(xs[6])}, {v(xs[7])}")
    A(f"v_exp_f32 {v(ms[1])}, {v(ms[1])}")
    if cp and not rp:
        lstamp(A, 5)
    O0, O1, LS, PKO = PA, PA + 4, PA + 12, PA + 8
    lq.wait('vx')
    A(f"v_mfma_f32_16x16x32_bf16 {v(LS,4)}, {v(vONE,4)}, {v(BX,4)}, 0")
    A(f"v_cvt_pk_bf16_f32 {v(vBM)}, {v(ms[0])}, {v(ms[1])}")
    A(f"v_mfma_f32_16x16x32_bf16 {v(O0,4)}, {v(VX0,4)}, {v(BX,4)}, 0")
    rdW(4, 0)
    WE = opts.get('wearly', 0)
    A(f"v_mfma_f32_16x16x32_bf16 {v(O1,4)}, {v(VX0+4,4)}, {v(BX,4)}, 0")
    if WE:
        rdW(4, 1)
    A(f"v_mfma_f32_16x16x32_bf16 {v(LS,4)}, {v(vONE,4)}, {v(vBM,4)}, {v(LS,4)}")
    if WE:
        rdW(5, 0)
    A(f"v_mfma_f32_16x16x32_bf16 {v(O0,4)}, {v(vS0,4)}, {v(vBM,4)}, {v(O0,4)}")
    if WE:
        rdW(5, 1)
    A(f"v_mov_b64 {v(ACC+12,2)}, 0")
    A(f"v_mfma_f32_16x16x32_bf16 {v(O1,4)}, {v(vVM1,4)}, {v(vBM,4)}, {v(O1,4)}")
    if WE:
        rdW(7, 0)
    else:
        rdW(4, 1)
    if FTR[0] == 2:
        fstamp(A, 2)
    A(f"v_rcp_f32 {v(m)}, {v(LS)}")
    if WE:
        rdW(7, 1)
    else:
        rdW(5, 0)
    A(f"v_mov_b64 {v(ACC+14,2)}, 0")
    if WE == 2:
        rdW(6, 0)
        rdW(6, 1)
    if opts.get('pk', 1):
        def pkm(r):
            A(f"v_pk_mul_f32 {v(r,2)}, {v(r,2)}, {v(m,2)} op_sel_hi:[1,0]")
        pkm(O0)
        pkm(O0 + 2)
        pkm(O1)
        A(f"v_cvt_pk_bf16_f32 {v(PKO)}, {v(O0)}, {v(O0+1)}")
        pkm(O1 + 2)
        A(f"v_cvt_pk_bf16_f32 {v(PKO+1)}, {v(O0+2)}, {v(O0+3)}")
    else:
        for r in range(4):
            A(f"v_mul_f32 {v(O0+r)}, {v(O0+r)}, {v(m)}")
        A(f"v_cvt_pk_bf16_f32 {v(PKO)}, {v(O0)}, {v(O0+1)}")
        A(f"v_cvt_pk_bf16_f32 {v(PKO+1)}, {v(O0+2)}, {v(O0+3)}")
        for r in range(4):
            A(f"v_mul_f32 {v(O1+r)}, {v(O1+r)}, {v(m)}")
    A(f"v_cvt_pk_bf16_f32 {v(PKO+2)}, {v(O1)}, {v(O1+1)}")
    A(f"v_cvt_pk_bf16_f32 {v(PKO+3)}, {v(O1+2)}, {v(O1+3)}")
    if FTR[0] == 2:
        fstamp(A, 3)
    lq.issue('wo_', f"ds_write_b128 {v(vOw)}, {v(PKO,4)} offset:0")
    AOr = [PKO, PA, PA + 4, PA + 12]
    vAo = [None, vT0, vT1, vS0]
    for k in range(1, 4):
        A(f"v_xor_b32 {v(vAo[k])}, {k << 9:#x}, {v(vOw)}")
    if cp and not rp:
        lstamp(A, 6)

    def pack(cg, k):
        A(f"v_cvt_pk_bf16_f32 {v(ACC+4*cg+k)}, {v(ACC+4*cg+2*k)}, {v(ACC+4*cg+2*k+1)}")

    def tagp(cg):
        A(f"v_and_or_b32 {v(ACC+4*cg)}, {v(ACC+4*cg)}, -2, {s(sTag)}")

    def pstore(cg):
        A(f"buffer_store_dwordx2 {v(ACC+4*cg,2)}, {v(vPst)}, {s(S_WS,4)}, {s(sPc[cg]) if cg else 0} offen{st}")
    for i, (cg, ks) in enumerate(wo_ops):
        if ks:
            lq.wait(('Ao', ks))
        if i >= 8:
            lq.wait(('W', i - 8))
        A(f"v_smfmac_f32_16x16x64_bf16 {v(ACC+4*cg,4)}, {v(AOr[ks],4)}, {WOR[i] if i < 8 else v(bufs[i - 8],8)}, {v(vIdxW)}")
        if i == opts.get('obar', 1):
            lq.wait('wo_')
            A(f"s_barrier")
            if FTR[0] == 2:
                fstamp(A, 5)
            for k in range(1, 4):
                lq.issue(('Ao', k), f"ds_read_b128 {v(AOr[k],4)}, {v(vAo[k])}")
        if i == 4 and FTR[0] == 2:
            fstamp(A, 6)
        if i == 9 and FTR[0] == 2:
            fstamp(A, 7)
        if WE == 0:
            if i == 2:
                rdW(5, 1)
                rdW(6, 0)
            elif i == 3:
                rdW(6, 1)
                rdW(7, 0)
            elif i == 4:
                rdW(7, 1)
        elif WE == 1:
            if i == 2:
                rdW(6, 0)
            elif i == 3:
                rdW(6, 1)
        pst = opts.get('pst', 1)
        if pst == 1:
            if i in (11, 14):
                pstore((i - 11) // 3)
            if i in (8, 11, 14):
                pack((i - 8) // 3, 0)
            elif i in (9, 12, 15):
                pack((i - 9) // 3, 1)
            elif i in (10, 13):
                tagp((i - 10) // 3)
        elif pst == 2:
            if i in (8, 11, 14):
                pack((i - 8) // 3, 0)
                pack((i - 8) // 3, 1)
            elif i in (9, 12, 15):
                tagp((i - 9) // 3)
            elif i in (10, 13):
                pstore((i - 10) // 3)
        elif pst == 3:
            if i in (8, 11, 14):
                pack((i - 8) // 3, 0)
            elif i in (9, 12, 15):
                pack((i - 9) // 3, 1)
                tagp((i - 9) // 3)
            elif i in (10, 13):
                pstore((i - 10) // 3)
    if pst == 1:
        tagp(2)
        pstore(2)
        A(f"s_nop 5")
    else:
        pstore(2)
        A(f"s_nop 6")
    pack(3, 0)
    pack(3, 1)
    tagp(3)
    pstore(3)
    if cp:
        lstamp(A, 7)
    Lnr = A.new_label("notred")

    def bookkeeping():
        A(f"s_add_u32 {s(sS)}, {s(sS)}, 1")
        A(f"s_add_u32 {s(sKM)}, {s(sKM)}, 0x20000")
        A(f"s_add_u32 {s(sKV)}, {s(sKV)}, 0x80000")
        A(f"s_add_u32 {s(sPf)}, {s(sPf)}, 0x80000")
        A(f"s_add_u32 {s(sJ4)}, {s(sJ4)}, 4")
        A(f"s_cmp_eq_u32 {s(sJ4)}, 20")
        A(f"s_cselect_b32 {s(sJ4)}, 0, {s(sJ4)}")
        A(f"s_addc_u32 {s(sCn)}, {s(sCn)}, 0")

    def bookkeeping2():
        A(f"s_add_u32 {s(sFo)}, {s(sFb)}, {s(sJ4)}")
        A(f"s_cmp_lt_u32 {s(sS)}, 62")
        A(f"s_cselect_b32 {s(sNeed)}, {s(sCn)}, 0")

    def zero_acc():
        for i in range(8):
            A(f"v_mov_b64 {v(ACC+2*i,2)}, 0")
        for i in range(4):
            A(f"v_mov_b64 {v(AK+2*i,2)}, 0")

    def w1_dma():
        for _ in range(opts.get('w1d', 0)):
            A(f"s_sleep 1")
        if KP == 2:
            A(f"s_add_u32 {s(sT3)}, {s(sKV)}, 0x80000")
            dma_pair(sM0K, sT3)
            if M0TOP:
                A(f"s_mov_b32 m0, {s(sM0V)}")
        if VP == 2:
            A(f"s_add_u32 {s(sT3)}, {s(sKV)}, {0x80000 + 8192:#x}")
            dma_pair(sM0V, sT3)
    nw1 = 2 * ((KP == 2) + (VP == 2))
    if nw1 and opts.get('w1pre'):
        w1_dma()
    if opts.get('rbar', 1):
        A(f"s_barrier")
    if nw1 and not opts.get('w1pre'):
        w1_dma()
    A(f"s_cmp_lg_u32 {s(sWAVE)}, 0")
    A(f"s_cbranch_scc1 {Lnr}")
    Lred = A.new_label("red")
    Lredok = A.new_label("redok")
    RA = PA
    two = opts.get('rtwo', 0)

    if rt:
        A(f"s_memtime s[62:63]")
        A(f"s_lshl_b32 {s(sT0)}, {s(sH)}, 6")
        A(f"s_add_u32 {s(sT0)}, {s(sT0)}, {s(sS)}")
        A(f"s_lshl_b32 {s(sT0)}, {s(sT0)}, 6")
        A(f"s_add_u32 {s(sT0)}, {s(sT0)}, {WS_T + 0x10000:#x}")
        A(f"s_waitcnt lgkmcnt(0)")
        A(f"v_mov_b32 {v(vT0)}, s16")
        for k in range(1, 8):
            A(f"v_writelane_b32 {v(vT0)}, s{16 + 2*k}, {k}")
        A(f"v_writelane_b32 {v(vT0)}, s{sCP0}, 8")
        A(f"v_writelane_b32 {v(vT0)}, s{sRet}, 9")
        A(f"v_lshrrev_b32 {v(vT1)}, 2, {v(vL16)}")
        A(f"s_mov_b64 exec, 0x3ff")
        A(f"buffer_store_dword {v(vT0)}, {v(vT1)}, {s(S_WS,4)}, {s(sT0)} offen")
        A(f"s_mov_b64 exec, -1")
        A(f"s_mov_b32 s16, s62")
        A(f"s_mov_b32 {s(sCP0)}, 0")
    zero_acc()
    A(f"v_xor_b32 {v(vTagE)}, 1, {v(vTagE)}")
    bookkeeping()
    bookkeeping2()
    A(f"s_mov_b32 {s(sRet)}, 0")
    RS = [[X + 4 * i for i in range(8)], [Y + 4 * i for i in range(6)] + [PA + 8, PA + 12]]
    mode = opts.get('rmode', 1)

    def ld(R, i):
        A(f"buffer_load_dwordx4 {v(R[i],4)}, {v(vRed)}, {s(S_WS,4)}, {0 if i < 4 else s(sSlotP4)} offen offset:{(i%4)*1024} sc1")

    def chk(R, other, cnt, first=False):
        ys = [vT0, vT1, vS0, vT1, vS0, vT1, vS0, vT1]
        if rt:
            A(f"s_add_u32 {s(sCP0)}, {s(sCP0)}, 1")
        for i in range(8):
            A(f"s_waitcnt vmcnt({cnt(i)})")
            if first and i == 0:
                rstamp(2)
            if first and i == 7:
                rstamp(3)
            c = "0" if i == 0 else v(RA, 4)
            A(f"v_mfma_f32_16x16x32_bf16 {v(RA,4)}, {v(R[i],4)}, {v(vSEL,4)}, {c}")
            if other is not None:
                ld(other, i)
            A(f"v_bitop3_b32 {v(ys[i])}, {v(R[i])}, {v(R[i]+2)}, {v(vTagE)} bitop3:0x7e")
            if i in (2, 4, 6):
                A(f"v_or3_b32 {v(vT0)}, {v(vT0)}, {v(vT1)}, {v(vS0)}")
        A(f"v_bitop3_b32 {v(vT0)}, {v(vT0)}, {v(vT1)}, 1 bitop3:0xa8")
        A(f"v_cmp_ne_u32 vcc, 0, {v(vT0)}")
    for _ in range(opts.get('rdelay', 0)):
        A(f"s_sleep 1")
    rstamp(1)
    for i in range(8):
        ld(RS[0], i)
    if mode == 3:
        red3(A, opts, RS[0], RA, ld, st, Lar, rstamp, RBT)
        return_after_red = True
    else:
        return_after_red = False
    if not return_after_red:
        Lrfail = A.new_label("rfail")
        Lredok2 = A.new_label("redok2") if RBT else Lredok
        if mode == 2:
            for _ in range(opts.get('rspace', 1)):
                A(f"s_sleep 1")
            for i in range(8):
                ld(RS[1], i)
            chk(RS[0], None, lambda i: 15 - i, True)
        elif mode == 1:
            chk(RS[0], RS[1], lambda i: 7, True)
        else:
            chk(RS[0], None, lambda i: 7 - i, True)
        A(f"s_cbranch_vccnz {Lrfail}")
        A.label(Lredok)
        rstamp(4)
        A(f"s_nop {3 if mode == 1 else 4}")
        A(f"v_cvt_pk_bf16_f32 {v(RA+4)}, {v(RA)}, {v(RA+1)}")
        A(f"v_cvt_pk_bf16_f32 {v(RA+5)}, {v(RA+2)}, {v(RA+3)}")
        A(f"buffer_store_dwordx2 {v(RA+4,2)}, {v(vMst)}, {s(S_WS,4)}, {s(sSlotM)} offen{st}")
        A(f"s_branch {Lar}")
        A.label(Lrfail)
        if opts.get('hist'):
            A(f"s_add_u32 {s(sCP0)}, {s(sCP0)}, 1")
        if mode == 0:
            for i in range(8):
                ld(RS[1], i)
        if mode == 2 and opts.get('rlazy'):
            chk(RS[1], None, lambda i: 7 - i)
            A(f"s_cbranch_vccz {Lredok}")
            if opts.get('hist'):
                A(f"s_add_u32 {s(sCP0)}, {s(sCP0)}, 0x1000")
            for i in range(8):
                ld(RS[0], i)
            for _ in range(opts.get('rspace', 1)):
                A(f"s_sleep 1")
            for i in range(8):
                ld(RS[1], i)
            chk(RS[0], None, lambda i: 15 - i)
            A(f"s_cbranch_vccz {Lredok}")
        A.label(Lred)
        chk(RS[1], RS[0], lambda i: 7)
        A(f"s_cbranch_vccz {Lredok2}")
        if opts.get('hist'):
            A(f"s_add_u32 {s(sCP0)}, {s(sCP0)}, {0x1000000 if opts.get('rlazy') else 0x1000}")
        chk(RS[0], RS[1], lambda i: 7)
        A(f"s_cbranch_vccz {Lredok2}")
        if opts.get('hist'):
            A(f"s_add_u32 {s(sCP0)}, {s(sCP0)}, 0x1000000")
        A(f"s_add_u32 {s(sRet)}, {s(sRet)}, 1")
        A(f"s_cmp_lg_u32 {s(sDEAD)}, 0")
        A(f"s_cbranch_scc1 {Lredok2}")
        A(f"s_cmp_lt_u32 {s(sRet)}, {RED_LIMIT}")
        A(f"s_cbranch_scc1 {Lred}")
        A(f"s_mov_b32 {s(sDEAD)}, 1")
        if RBT:
            A.label(Lredok2)
            A(f"s_waitcnt vmcnt(0)")
        A(f"s_branch {Lredok}")
    A.label(Lnr)
    Lfok = A.new_label("fok")
    Lfsp = A.new_label("fsp")
    A(f"s_mov_b32 {s(sRet)}, 0")
    A(f"s_waitcnt vmcnt({10 + (2 if KP == 0 else 0) + nw1 + (2 if VP == 0 and VAT > 12 else 0)})")
    A(f"v_readfirstlane_b32 {s(sT0)}, {v(vFlag)}")
    zero_acc()
    A(f"s_cmp_ge_u32 {s(sT0)}, {s(sNeed)}")
    A(f"s_cbranch_scc1 {Lfok}")
    A(f"s_cmp_lg_u32 {s(sDEAD)}, 0")
    A(f"s_cbranch_scc1 {Lfok}")
    A(f"s_mov_b32 {s(sRet)}, 0")
    A.label(Lfsp)
    A(f"buffer_load_dword {v(vFlag)}, off, {s(S_WS,4)}, {s(sFo)} sc1")
    A(f"s_waitcnt vmcnt(0)")
    A(f"v_readfirstlane_b32 {s(sT0)}, {v(vFlag)}")
    A(f"s_cmp_ge_u32 {s(sT0)}, {s(sNeed)}")
    A(f"s_cbranch_scc1 {Lfok}")
    A(f"s_sleep 1")
    A(f"s_add_u32 {s(sRet)}, {s(sRet)}, 1")
    A(f"s_cmp_lt_u32 {s(sRet)}, {SPIN_LIMIT}")
    A(f"s_cbranch_scc1 {Lfsp}")
    A(f"s_mov_b32 {s(sDEAD)}, 1")
    A.label(Lfok)
    if TRACE[0]:
        Lsl = A.new_label("tr")
        A(f"s_cmp_lg_u32 {s(sWAVE)}, {opts.get('tw', 1)}")
        A(f"s_cbranch_scc1 {Lsl}")
        A(f"s_lshl_b32 {s(sT0)}, {s(sH)}, 6")
        A(f"s_add_u32 {s(sT0)}, {s(sT0)}, {s(sS)}")
        A(f"s_lshl_b32 {s(sT0)}, {s(sT0)}, 5")
        A(f"s_add_u32 {s(sT0)}, {s(sT0)}, {WS_T + 0x10000:#x}")
        A(f"s_waitcnt lgkmcnt(0)")
        A(f"v_mov_b32 {v(vT0)}, s16")
        for k in range(1, 8):
            A(f"v_writelane_b32 {v(vT0)}, s{16 + 2*k}, {k}")
        A(f"v_lshrrev_b32 {v(vT1)}, 2, {v(vL16)}")
        A(f"s_mov_b64 exec, 0xff")
        A(f"buffer_store_dword {v(vT0)}, {v(vT1)}, {s(S_WS,4)}, {s(sT0)} offen")
        A(f"s_mov_b64 exec, -1")
        A.label(Lsl)
    if opts.get('steplog'):
        Lsl = A.new_label("sl")
        A(f"s_cmp_lg_u32 {s(sWAVE)}, 1")
        A(f"s_cbranch_scc1 {Lsl}")
        A(f"s_memrealtime s[62:63]")
        A(f"s_memtime s[16:17]")
        A(f"s_lshl_b32 {s(sT0)}, {s(sH)}, 6")
        A(f"s_add_u32 {s(sT0)}, {s(sT0)}, {s(sS)}")
        A(f"s_lshl_b32 {s(sT0)}, {s(sT0)}, 3")
        A(f"s_add_u32 {s(sT0)}, {s(sT0)}, {WS_T + (0x30000 if opts.get('prof') else 0x8000):#x}")
        A(f"s_waitcnt lgkmcnt(0)")
        A(f"v_mov_b32 {v(vT0)}, s62")
        A(f"v_mov_b32 {v(vT1)}, s16")
        A(f"s_mov_b64 exec, 1")
        A(f"buffer_store_dwordx2 {v(vT0,2)}, off, {s(S_WS,4)}, {s(sT0)}")
        A(f"s_mov_b64 exec, -1")
        A.label(Lsl)
    bookkeeping()
    bookkeeping2()
    rearm(2, True)
    A(f"s_branch {Lar}")
    A.label(Lretry0)
    if opts.get('hist'):
        A(f"s_add_u32 {s(sCP1)}, {s(sCP1)}, 1")
    GM = opts.get('gm', 0)

    def re_issue(R):
        if GM & 1:
            A(f"s_mov_b64 exec, vcc")
        con_issue(R)
        if GM & 1:
            A(f"s_mov_b64 exec, -1")
    if GM:
        re_issue(H0)
        A(f"s_nop {3 if GM & 1 else 5}")
    else:
        A(f"s_nop 7")
    for i in range(4):
        A(f"v_mov_b64 {v(AQ+2*i,2)}, 0")
    if not GM:
        con_issue(H0)
    A(f"s_waitcnt vmcnt({4 if G3 else 2})")
    A(f"ds_write_b128 {v(vMw)}, {v(H1,4)}")
    A(f"v_max3_u32 {v(Y)}, {v(H1)}, {v(H1+2)}, {v(H1+4)}")
    A(f"ds_write_b128 {v(vMw)}, {v(H1+4,4)} offset:1024")
    A(f"v_max_u32 {v(Y)}, {v(Y)}, {v(H1+6)}")
    A(f"v_cmp_eq_u32 vcc, -1, {v(Y)}")
    A(f"s_add_u32 {s(sRet)}, {s(sRet)}, 1")
    A(f"s_cbranch_vccz {Lown[1]}")
    if opts.get('hist'):
        A(f"s_add_u32 {s(sCP1)}, {s(sCP1)}, 0x10000")
    re_issue(H1)
    if G3:
        Lown2 = f"L_own2_{tag}"
        A(f"s_waitcnt vmcnt(4)")
        A(f"ds_write_b128 {v(vMw)}, {v(H2,4)}")
        A(f"v_max3_u32 {v(Y)}, {v(H2)}, {v(H2+2)}, {v(H2+4)}")
        A(f"ds_write_b128 {v(vMw)}, {v(H2+4,4)} offset:1024")
        A(f"v_max_u32 {v(Y)}, {v(Y)}, {v(H2+6)}")
        A(f"v_cmp_eq_u32 vcc, -1, {v(Y)}")
        A(f"s_add_u32 {s(sRet)}, {s(sRet)}, 1")
        A(f"s_cbranch_vccz {Lown2}")
        con_issue(H2)
    A(f"s_cmp_lg_u32 {s(sDEAD)}, 0")
    A(f"s_cbranch_scc1 {Lown[1]}")
    A(f"s_cmp_lt_u32 {s(sRet)}, {RED_LIMIT}")
    A(f"s_cbranch_scc1 {Lspec}")
    A(f"s_mov_b32 {s(sDEAD)}, 1")
    A.label(Lown[1])
    own(H1, False)
    A(f"s_branch {Lcommon}")
    if G3:
        A.label(Lown2)
        own(H2, False)
        A(f"s_branch {Lcommon}")
    A.label(Llast)
    A(f"s_waitcnt vmcnt(0) lgkmcnt(0)")
    if opts.get('hist'):
        A(f"s_lshl_b32 {s(sT0)}, {s(sH)}, 2")
        A(f"s_add_u32 {s(sT0)}, {s(sT0)}, {s(sWAVE)}")
        A(f"s_lshl_b32 {s(sT0)}, {s(sT0)}, 3")
        A(f"s_add_u32 {s(sT0)}, {s(sT0)}, {WS_T + 0x40000:#x}")
        A(f"v_mov_b32 {v(vT0)}, {s(sCP0)}")
        A(f"v_mov_b32 {v(vT1)}, {s(sCP1)}")
        A(f"s_mov_b64 exec, 1")
        A(f"buffer_store_dwordx2 {v(vT0,2)}, off, {s(S_WS,4)}, {s(sT0)}")
        A(f"s_mov_b64 exec, -1")
        A(f"s_waitcnt vmcnt(0)")
    if fast and opts.get('cwb'):
        Lwb = A.new_label("cwb")
        A(f"s_cmp_lg_u32 {s(sWAVE)}, 0")
        A(f"s_cbranch_scc1 {Lwb}")
        A(f"buffer_wbl2 sc1")
        A(f"s_waitcnt vmcnt(0)")
        A.label(Lwb)
    if cp and not TRACE[0]:
        for i in range(1, 10):
            A(f"s_mov_b32 s{92+i}, s{16+2*(i-1) if i < 9 else 62}")
        A(f"s_lshl_b32 {s(sCP1)}, {s(sCP1)}, 16")
        A(f"s_or_b32 s92, {s(sCP0)}, {s(sCP1)}")
        A("s_branch L_flush")
    A(f"s_branch L_role_end")


def kv_polls(A):
    for j in range(2):
        Lp = A.new_label("kvp")
        Ld = A.new_label("kvd")
        A(f"s_mov_b32 {s(sRet)}, 0")
        A(f"s_cmp_lg_u32 {s(sDEAD)}, 0")
        A(f"s_cbranch_scc1 {Ld}")
        A.label(Lp)
        A(f"buffer_load_dword {v(vFlag)}, off, {s(S_WS,4)}, {s(sT5)} offset:{4*j} sc1")
        A(f"s_waitcnt vmcnt(0)")
        A(f"v_readfirstlane_b32 {s(sT0)}, {v(vFlag)}")
        A(f"s_cmp_ge_u32 {s(sT0)}, 1")
        A(f"s_cbranch_scc1 {Ld}")
        A(f"s_sleep 1")
        A(f"s_add_u32 {s(sRet)}, {s(sRet)}, 1")
        A(f"s_cmp_lt_u32 {s(sRet)}, {SPIN_LIMIT}")
        A(f"s_cbranch_scc1 {Lp}")
        A(f"s_mov_b32 {s(sDEAD)}, 1")
        A.label(Ld)


def fb_consts(A):
    A(f"s_cmp_eq_u32 {s(sWAVE)}, 0")
    A(f"s_cselect_b32 {s(sFb)}, {OOB:#x}, {s(sT5)}")
    A(f"s_add_u32 {s(sFo)}, {s(sFb)}, 8")


def gen_late_start(A, opts, vL):
    mk_srd(A, S_A, P_MEM0, 8192)
    A(f"s_lshl_b32 {s(sT0)}, {s(sWAVE)}, 8")
    lane_expr(A, vT0, vL, [(2, 2, 2048), (0, 1, 1024), (1, 1, 64), (4, 2, 16)], sregs=[sT0])
    A(f"buffer_load_dwordx4 {v(X+24,4)}, {v(vT0)}, {s(S_A,4)}, 0 offen")
    A(f"buffer_load_dwordx4 {v(X+28,4)}, {v(vT0)}, {s(S_A,4)}, 0 offen offset:128")
    A(f"s_waitcnt vmcnt(0)")
    A(f"ds_write_b128 {v(vMw)}, {v(X+24,4)}")
    A(f"ds_write_b128 {v(vMw)}, {v(X+28,4)} offset:1024")
    for i in range(16):
        A(f"v_mov_b32 {v(ACC+i)}, 0")
    for i in range(8):
        A(f"v_mov_b32 {v(Y+24+i)}, 0")
    fb_consts(A)
    A(f"v_mov_b32 {v(vT1)}, 0")
    A(f"s_mov_b32 {s(sT2)}, {D_CHECKIN*4}")
    A(f"s_mov_b32 {s(sT3)}, 0")
    wait_byte(A, vFlag, vT1, sT2, sT3, 32, "ci", sleep=1)
    A(f"buffer_load_dword {v(vFlag)}, {v(vT1)}, {s(S_DBG,4)}, 0 offen offset:{D_CHECKIN*4} sc1")
    A(f"s_getreg_b32 {s(sT0)}, hwreg(HW_REG_XCC_ID, 0, 4)")
    A(f"s_mul_i32 {s(sT1)}, {s(sT0)}, {s(sT0)}")
    A(f"s_lshl_b32 {s(sT1)}, {s(sT1)}, 22")
    A(f"s_lshl_b32 {s(sT0)}, {s(sT0)}, 13")
    A(f"s_add_u32 {s(sT0)}, {s(sT0)}, {s(sT1)}")
    A(f"s_add_u32 {s(sT0)}, {s(sT0)}, 32")
    A(f"s_waitcnt vmcnt(0)")
    A(f"v_readfirstlane_b32 {s(sT1)}, {v(vFlag)}")
    A(f"s_cmp_eq_u32 {s(sT0)}, {s(sT1)}")
    A(f"s_cselect_b32 {s(sFastF)}, 1, 0")
    kv_polls(A)
    A(f"s_mov_b32 m0, {s(sM0K)}")
    A(f"s_nop 0")
    for i in range(2):
        A(f"buffer_load_dwordx4 {v(vL16)}, {s(S_WS,4)}, {s(sKn)} offen offset:{1024*i} lds")


def gen_chain(A, opts):
    global RT
    RT = bool(opts.get('rt'))
    CSTEP[0] = opts.get('cstep', 39)
    TRACE[0] = bool(opts.get('trace'))
    FTR[0] = opts.get('ftr', 0)
    vL = 13
    A(f"s_xor_b32 {s(sH)}, {s(sIDX)}, {opts.get('hperm', 0)}")
    A(f"v_and_b32 {v(vL)}, 63, v0")
    mk_srd(A, S_A, P_WQ, 512 * 8192)
    mk_srd(A, S_B, P_WK, 512 * 8192)
    mk_srd(A, S_C, P_WV, 512 * 8192)
    mk_srd(A, S_D, P_WO, 4096 * 1024)
    A(f"v_lshlrev_b32 {v(vL16)}, 4, {v(vL)}")
    vMre = 2
    vG, vGo, vSW, vSWo, vTRb, vTRo, vTA = 116, 117, 118, 122, 124, 125, 126
    POOL = [40, 72]
    TEMPS = [104, 32]
    sXo = sRo + 1
    A(f"s_lshl_b32 {s(sT0)}, {s(sH)}, 8")
    A(f"s_lshl_b32 {s(sT1)}, {s(sWAVE)}, 20")
    A(f"s_add_u32 {s(sT0)}, {s(sT0)}, {s(sT1)}")
    lane_expr(A, vG, vL, [(4, 2, 8192), (0, 4, 16)], sregs=[sT0])
    A(f"s_lshl_b32 {s(sT0)}, {s(sH)}, 17")
    A(f"s_lshl_b32 {s(sT1)}, {s(sWAVE)}, 8")
    A(f"s_add_u32 {s(sT0)}, {s(sT0)}, {s(sT1)}")
    lane_expr(A, vGo, vL, [(4, 2, 1024), (0, 4, 16)], sregs=[sT0])
    A(f"s_lshl_b32 {s(sXo)}, {s(sWAVE)}, 15")

    RIDX = {0: 0, 1: 1, 4: 2, 5: 3, 6: 4, 7: 5}
    wo_ops = [(cg, 0) for cg in range(4)] + [(cg, ks) for cg in range(4) for ks in range(1, 4)]
    WORR = [('a', 224), ('a', 232), ('a', 240), ('a', 248), ('v', 224), ('v', 232), ('v', 240), ('v', 248)]

    def arm():
        for i in range(4):
            A(f"v_mov_b32 {v(vSEL+i)}, -1")
        A(f"s_lshl_b32 {s(sT0)}, {s(sH)}, 13")
        A(f"s_lshl_b32 {s(sT1)}, {s(sWAVE)}, 11")
        A(f"s_add_u32 {s(sT0)}, {s(sT0)}, {s(sT1)}")
        A(f"v_bfe_u32 {v(vT0)}, {v(vL)}, 4, 1")
        for i in range(4):
            A(f"v_xor_b32 {v(ACC+i)}, -1, {v(vT0)}")
        vq.issue('st', f"buffer_store_dwordx4 {v(ACC,4)}, {v(vL16)}, {s(S_WS,4)}, {s(sT0)} offen sc1")
        vq.issue('st', f"buffer_store_dwordx4 {v(ACC,4)}, {v(vL16)}, {s(S_WS,4)}, {s(sT0)} offen offset:1024 sc1")
        A(f"s_lshl_b32 {s(sT2)}, {s(sH)}, 8")
        A(f"v_add_u32 {v(vT0)}, {s(sT2)}, {v(vL16)}")
        A(f"v_cmp_gt_u32 vcc, 16, {v(vL)}")
        A(f"v_mov_b32 {v(vT1)}, {OOB:#x}")
        A.nop(1)
        A(f"v_cndmask_b32 {v(vMre)}, {v(vT1)}, {v(vT0)}, vcc")
        for sl in range(4):
            A(f"s_mov_b32 {s(sT1)}, {WS_M + sl*8192:#x}")
            vq.issue('st', f"buffer_store_dwordx4 {v(vSEL,4)}, {v(vMre)}, {s(S_WS,4)}, {s(sT1)} offen sc1")
        Z = 20
        for i in range(4):
            A(f"v_mov_b32 {v(Z+i)}, 0")
        A(f"v_cndmask_b32 {v(Z+4)}, {v(vT1)}, {v(vL16)}, vcc")
        A(f"s_lshl_b32 {s(sT1)}, {s(sH)}, 8")
        A(f"s_add_u32 {s(sT1)}, {s(sT1)}, {WS_OF:#x}")
        vq.issue('st', f"buffer_store_dwordx4 {v(Z,4)}, {v(Z+4)}, {s(S_WS,4)}, {s(sT1)} offen sc1")
        A(f"v_cmp_gt_u32 vcc, 8, {v(vL)}")
        A.nop(2)
        A(f"v_cndmask_b32 {v(Z+5)}, {v(vT1)}, {v(vL16)}, vcc")
        A(f"s_lshl_b32 {s(sT1)}, {s(sH)}, 7")
        A(f"s_add_u32 {s(sT1)}, {s(sT1)}, {WS_KVF:#x}")
        vq.issue('st', f"buffer_store_dwordx4 {v(Z,4)}, {v(Z+5)}, {s(S_WS,4)}, {s(sT1)} offen sc1")

    def qkv_unit(m, hp, x):
        u = dict(kind='qkv', m=m, hp=hp, x=x, srd={'q': S_A, 'k': S_B, 'v': S_C}[m], needs_temp=(m != 'q'))
        u['soff'] = [(64 * hp + 16 * x + 4 * (k & 3) + 32 * (k >> 2)) * 8192 for k in range(8)]
        return u

    def bind(u, temp):
        if u['kind'] == 'qkv':
            m, hp, x = u['m'], u['hp'], u['x']
            res = []
            for i in range(4):
                sl = hp + 2 * i
                for t_ in range(2):
                    if m == 'q':
                        res.append((('a', 16 * sl + 8 * t_ + 4 * x), None))
                    elif sl in (2, 3):
                        fi = (0 if m == 'k' else 4) + 2 * (sl - 2) + t_
                        res.append((('v', temp + 4 * t_), fi * 2048 + 1024 * x))
                    else:
                        res.append(((('a' if m == 'k' else 'v'), 128 + 16 * RIDX[sl] + 8 * t_ + 4 * x), None))
            u['raw'] = [r[0] for r in res]
            u['res'] = res
        else:
            u['raw'] = [('v', temp + 4 * k) for k in range(8)]

    def wo_unit(ks):
        return dict(kind='wo', ks=ks, srd=S_D, soff=[(32 * ks + 4 * k) * 1024 for k in range(8)])
    U = {f"O{k}": wo_unit(k) for k in range(4)}
    for m in 'qkv':
        for hp in range(2):
            for x in range(2):
                U[f"{m.upper()}{hp}{x}"] = qkv_unit(m, hp, x)
    order = {0: "O0 O1 Q00 Q01 Q10 Q11 O2 O3 K00 K01 K10 K11 V00 V01 V10 V11",
             1: "Q00 Q01 Q10 Q11 O0 O1 K00 K01 O2 O3 K10 K11 V00 V01 V10 V11",
             2: "K00 K01 Q00 Q01 Q10 Q11 O0 O1 K10 K11 O2 O3 V00 V01 V10 V11",
             3: "O0 O1 Q00 Q01 Q10 Q11 O2 O3 V00 V01 V10 V11 K00 K01 K10 K11",
             4: "K00 K01 K10 K11 V00 V01 V10 V11 Q00 Q01 Q10 Q11 O0 O1 O2 O3",
             5: "K00 K01 K10 K11 V00 V01 V10 V11 Q00 O0 Q01 O1 Q10 O2 Q11 O3",
             6: "O0 O1 K00 K01 K10 K11 V00 V01 V10 V11 Q00 O2 Q01 O3 Q10 Q11",
             8: "K00 K01 K10 K11 V00 V01 V10 V11 O0 O1 O2 O3 Q00 Q01 Q10 Q11",
             9: "O0 O1 O2 O3 K00 K01 K10 K11 V00 V01 V10 V11 Q00 Q01 Q10 Q11",
             10: "O0 O1 O2 O3 Q00 Q01 Q10 Q11 K00 K01 K10 K11 V00 V01 V10 V11",
             11: "O0 O1 O2 K00 K01 K10 K11 V00 V01 V10 V11 Q00 Q01 Q10 Q11 O3",
             12: "O0 O1 K00 K01 K10 K11 V00 V01 V10 V11 Q00 Q01 Q10 Q11 O2 O3",
             7: "K00 K01 K10 K11 O0 V00 V01 O1 V10 V11 Q00 O2 Q01 O3 Q10 Q11"}[opts.get('word', 0)].split()
    units = [U[n] for n in order]
    for n_ in U:
        U[n_]['name'] = n_
    CPN = opts.get('cpx', 0)
    cpu_ = [n_ for n_ in order if n_[0] in 'QKV']
    cpu_ = (cpu_[:CPN] if opts.get('cpfirst') else cpu_[-CPN:]) if CPN else []
    WS_CP = opts.get('cpbase', G.WS_CP)
    vCp, sCpB = 127, sU
    sSlowH = sU + 1
    if opts.get('cwsm'):
        A(f"s_and_b32 {s(sT0)}, {s(sH)}, 3")
        A(f"s_cmp_eq_u32 {s(sT0)}, {opts.get('cph', 1)}")
        A(f"s_cselect_b32 {s(sSlowH)}, 1, 0")
    if CPN:
        A(f"s_and_b32 {s(sT0)}, {s(sH)}, 3")
        A(f"s_lshr_b32 {s(sT1)}, {s(sH)}, 2")
        A(f"s_mul_i32 {s(sT1)}, {s(sT1)}, {CPN * 32 * 2048}")
        A(f"s_lshl_b32 {s(sT2)}, {s(sWAVE)}, 14")
        A(f"s_add_u32 {s(sT1)}, {s(sT1)}, {s(sT2)}")
        A(f"s_add_u32 {s(sT1)}, {s(sT1)}, {WS_CP:#x}")
        A(f"s_cmp_eq_u32 {s(sT0)}, {opts.get('cph', 1)}")
        A(f"s_cselect_b32 {s(sCpB)}, {s(sT1)}, 0")
        lane_expr(A, vCp, vL, [(4, 2, 256), (0, 4, 16)])
        A(f"v_cmp_lt_u32 vcc, 15, {v(vL)}")
        A(f"v_add_u32 {v(vT0)}, 256, {v(vCp)}")
        A.nop(1)
        A(f"v_cndmask_b32 {v(vCp)}, {v(vCp)}, {v(vT0)}, vcc")
    vq = Q(A, "vmcnt", 63)
    nst = 8
    ARMLATE = opts.get('armlate', 1)
    if not ARMLATE:
        arm()
    busy = set()
    TPREF = [40, 48, 56, 64, 104, 32, 72, 80, 88, 96]
    PPREF = [72, 40]

    def alloc_temp():
        for g in TPREF:
            if g not in busy:
                busy.add(g)
                return g
        return None

    def alloc_pool():
        for p in PPREF:
            gs = [p + 8 * j for j in range(4)]
            if not any(g in busy for g in gs):
                busy.update(gs)
                return p
        return None
    held = {}
    WIN = opts.get('cwin', 56)
    st_ = dict(issued=0)

    def inflight():
        return len(vq.ops)

    EARLY = opts.get('early', 1)
    vEK, vEM, vEF, vEC, vEA = 104, 32, 112, 114, 115
    vEV = 96
    DMI = opts.get('vpos', 0) != 0

    def early_issue():
        assert 104 not in busy and 32 not in busy
        busy.update((104, 32))
        if DMI:
            assert vEV not in busy
            busy.add(vEV)
        mk_srd(A, S_X, P_MEM0, 8192)
        A(f"s_lshl_b32 {s(sT0)}, {s(sWAVE)}, 8")
        lane_expr(A, vEA, vL, [(2, 2, 2048), (0, 1, 1024), (1, 1, 64), (4, 2, 16)], sregs=[sT0])
        vq.issue('fl', f"buffer_load_dwordx2 {v(vEF,2)}, off, {s(S_WS,4)}, {s(sT5)} sc1")
        vq.issue('ci', f"buffer_load_dword {v(vEC)}, off, {s(S_DBG,4)}, 0 offset:{D_CHECKIN*4} sc1")
        vq.issue('m0', f"buffer_load_dwordx4 {v(vEM,4)}, {v(vEA)}, {s(S_X,4)}, 0 offen")
        vq.issue('m0', f"buffer_load_dwordx4 {v(vEM+4,4)}, {v(vEA)}, {s(S_X,4)}, 0 offen offset:128")

    def early_k():
        vq.wait('fl')
        A(f"v_min_u32 {v(vEF)}, {v(vEF)}, {v(vEF+1)}")
        A.nop(1)
        A(f"v_readfirstlane_b32 {s(sT0)}, {v(vEF)}")
        A(f"s_cmp_ge_u32 {s(sT0)}, 1")
        A(f"s_cselect_b32 {s(sKok)}, 1, 0")
        A(f"s_cselect_b32 {s(sT1)}, {s(sKn)}, {OOB:#x}")
        vq.issue('kx', f"buffer_load_dwordx4 {v(vEK,4)}, {v(vL16)}, {s(S_WS,4)}, {s(sT1)} offen")
        vq.issue('kx', f"buffer_load_dwordx4 {v(vEK+4,4)}, {v(vL16)}, {s(S_WS,4)}, {s(sT1)} offen offset:1024")
        if DMI:
            A(f"s_add_u32 {s(sT1)}, {s(sT1)}, 8192")
            vq.issue('kx', f"buffer_load_dwordx4 {v(vEV,4)}, {v(vL16)}, {s(S_WS,4)}, {s(sT1)} offen")
            vq.issue('kx', f"buffer_load_dwordx4 {v(vEV+4,4)}, {v(vL16)}, {s(S_WS,4)}, {s(sT1)} offen offset:1024")

    def try_issue():
        while st_['issued'] < len(units):
            u = units[st_['issued']]
            limit = min(WIN + (nst if 'st' in vq.ops else 0), 62)
            if EARLY and st_['issued'] == len(units) - 1 and not st_.get('early'):
                if inflight() + 8 > limit or 104 in busy or 32 in busy or (DMI and vEV in busy):
                    return
                early_issue()
                st_['early'] = True
                limit += 4
            elif EARLY and st_.get('early'):
                limit += 4
            if inflight() + 8 > limit:
                return
            if u['kind'] == 'wo':
                tmp = alloc_pool()
                if tmp is None:
                    return
                held[id(u)] = ('pool', tmp)
            elif u['needs_temp']:
                tmp = alloc_temp()
                if tmp is None:
                    return
                held[id(u)] = ('temp', tmp)
            else:
                tmp = None
            bind(u, tmp)
            if opts.get('cwsm') and inflight() + 8 > opts['cwsm']:
                Lsm = A.new_label("sm")
                A(f"s_cmp_eq_u32 {s(sSlowH)}, 1")
                A(f"s_cbranch_scc1 {Lsm}")
                A(f"s_waitcnt vmcnt({opts['cwsm'] - 8})")
                A.label(Lsm)
            Lcp = None
            if u['name'] in cpu_:
                Lcp, Lcq = A.new_label("cp"), A.new_label("cq")
                A(f"s_cmp_lg_u32 {s(sCpB)}, 0")
                A(f"s_cbranch_scc1 {Lcp}")
            for k in range(8):
                if u['kind'] == 'wo':
                    A(f"s_xor_b32 {s(sT0)}, {u['soff'][k]:#x}, {s(sXo)}")
                    vq.issue(id(u), f"buffer_load_dwordx4 {reg(u['raw'][k], 4)}, {v(vGo)}, {s(u['srd'],4)}, {s(sT0)} offen" + WPOL[opts.get('wnto', 0)])
                else:
                    A(f"s_mov_b32 {s(sT0)}, {u['soff'][k]:#x}")
                    vq.issue(id(u), f"buffer_load_dwordx4 {reg(u['raw'][k], 4)}, {v(vG)}, {s(u['srd'],4)}, {s(sT0)} offen" + WPOL[opts.get('wnt', 0)])
            if Lcp:
                A(f"s_branch {Lcq}")
                A.label(Lcp)
                for k in range(8):
                    A(f"s_add_u32 {s(sT0)}, {s(sCpB)}, {(cpu_.index(u['name']) * 32 + k) * 2048:#x}")
                    A(f"buffer_load_dwordx4 {reg(u['raw'][k], 4)}, {v(vCp)}, {s(S_WS,4)}, {s(sT0)} offen")
                A.label(Lcq)
            st_['issued'] += 1
    stamp(A, 1) if not opts.get('cprof') else None
    try_issue()
    if ARMLATE:
        arm()
    A(f"s_lshl_b32 {s(sT2)}, {s(sWAVE)}, 13")
    lane_expr(A, vSW, vL, [(4, 2, 256), (1, 3, 32), (0, 1, 16)], sregs=[sT2])
    A(f"v_mov_b32 {v(vSWo)}, {v(vSW)}")
    A(f"v_bfe_u32 {v(vTA)}, {v(vL)}, 4, 1")
    A(f"v_lshlrev_b32 {v(vT0)}, 5, {v(vTA)}")
    A(f"v_xor_b32 {v(vSW)}, {v(vSW)}, {v(vT0)}")
    A(f"v_lshlrev_b32 {v(vT0)}, 6, {v(vTA)}")
    A(f"v_xor_b32 {v(vSWo)}, {v(vSWo)}, {v(vT0)}")
    A(f"v_xor_b32 {v(vSW+1)}, 64, {v(vSW)}")
    A(f"v_xor_b32 {v(vSW+2)}, 0x80, {v(vSW)}")
    A(f"v_xor_b32 {v(vSW+3)}, 0xc0, {v(vSW)}")
    A(f"v_xor_b32 {v(vSWo+1)}, 0x80, {v(vSWo)}")
    A(f"s_lshl_b32 {s(sT3)}, {s(sWAVE)}, 6")
    lane_expr(A, vTRb, vL, [(2, 1, 256 + 32), (4, 1, 1024 + 64), (5, 1, 2048), (3, 1, 4096 + 128), (0, 2, 8)])
    A(f"v_xor_b32 {v(vTRb)}, {s(sT3)}, {v(vTRb)}")
    A(f"v_add_u32 {v(vTRb)}, {s(sT2)}, {v(vTRb)}")
    lane_expr(A, vTRo, vL, [(2, 1, 256 + 64), (4, 1, 4096 + 128), (5, 1, 1024), (3, 1, 32), (0, 2, 8)], sregs=[sT2])
    A(f"s_lshl_b32 {s(sT0)}, {s(sWAVE)}, 15")
    A(f"s_add_u32 {s(sT0)}, {s(sT0)}, {WO_OFF}")
    A(f"v_add_u32 {v(vWo)}, {s(sT0)}, {v(vL16)}")
    def checkin():
        vq.wait('st')
        A(f"s_barrier")
        Lci = A.new_label("ci")
        A(f"s_cmp_lg_u32 {s(sWAVE)}, 0")
        A(f"s_cbranch_scc1 {Lci}")
        A(f"s_getreg_b32 {s(sT0)}, hwreg(HW_REG_XCC_ID, 0, 4)")
        A(f"s_mul_i32 {s(sT1)}, {s(sT0)}, {s(sT0)}")
        A(f"s_lshl_b32 {s(sT1)}, {s(sT1)}, 17")
        A(f"s_lshl_b32 {s(sT0)}, {s(sT0)}, 8")
        A(f"s_add_u32 {s(sT0)}, {s(sT0)}, {s(sT1)}")
        A(f"s_add_u32 {s(sT0)}, {s(sT0)}, 1")
        A(f"v_mov_b32 {v(vT0)}, {s(sT0)}")
        A(f"v_mov_b32 {v(vT1)}, 0")
        A(f"s_mov_b64 exec, 1")
        A(f"buffer_atomic_add {v(vT0)}, {v(vT1)}, {s(S_DBG,4)}, 0 offen offset:{D_CHECKIN*4} sc1")
        A(f"s_mov_b64 exec, -1")
        A.label(Lci)

    if not ARMLATE:
        checkin()
        try_issue()
    A(f"s_lshr_b32 {s(sT3)}, {s(sH)}, 2")
    A(f"s_lshl_b32 {s(sT3)}, {s(sT3)}, 10")
    A(f"s_and_b32 {s(sT4)}, {s(sH)}, 1")
    A(f"s_lshl_b32 {s(sT4)}, {s(sT4)}, 9")
    A(f"s_add_u32 {s(sT3)}, {s(sT3)}, {s(sT4)}")
    A(f"s_and_b32 {s(sT4)}, {s(sH)}, 2")
    A(f"s_lshl_b32 {s(sT4)}, {s(sT4)}, 4")
    A(f"s_add_u32 {s(sT3)}, {s(sT3)}, {s(sT4)}")
    lane_expr(A, vMst, vL, [(5, 1, 256), (1, 2, 64), (0, 1, 16), (4, 1, 8)], sregs=[sT3])
    A(f"v_and_b32 {v(vT1)}, 8, {v(vL)}")
    A(f"v_lshlrev_b32 {v(vT1)}, 27, {v(vT1)}")
    A(f"v_add_u32 {v(vMst)}, {v(vMst)}, {v(vT1)}")
    A(f"s_cmp_eq_u32 {s(sWAVE)}, 0")
    Lw0 = A.new_label("w0")
    A(f"s_cbranch_scc1 {Lw0}")
    A(f"v_mov_b32 {v(vMst)}, {v(vMre)}")
    A(f"s_cmp_eq_u32 {s(sWAVE)}, 3")
    A(f"s_cbranch_scc1 {Lw0}")
    A(f"v_mov_b32 {v(vMst)}, {OOB:#x}")
    A.label(Lw0)
    for (dst, bit) in ((vIdx, 2), (vIdxW, 8)):
        A(f"v_mov_b32 {v(dst)}, 0x4444")
        A(f"v_mov_b32 {v(vT0)}, 0xeeee")
        A(f"v_and_b32 {v(vT1)}, {bit}, {v(vL)}")
        A(f"v_cmp_ne_u32 vcc, 0, {v(vT1)}")
        A.nop(2)
        A(f"v_cndmask_b32 {v(dst)}, {v(dst)}, {v(vT0)}, vcc")
    A(f"s_lshl_b32 {s(sT0)}, {s(sWAVE)}, 9")
    lane_expr(A, vQKw, vL, [(0, 4, 16), (4, 2, 4)], sregs=[sT0])
    A(f"s_lshl_b32 {s(sT0)}, {s(sWAVE)}, 10")
    A(f"s_lshr_b32 {s(sT1)}, {s(sWAVE)}, 1")
    A(f"s_lshl_b32 {s(sT1)}, {s(sT1)}, 11")
    A(f"s_add_u32 {s(sT0)}, {s(sT0)}, {s(sT1)}")
    lane_expr(A, vKw, vL, [(0, 4, 32), (4, 2, 8)], const=2048, sregs=[sT0])
    lane_expr(A, vKr, vL, [(5, 1, 512), (4, 1, 128), (2, 2, 32), (0, 2, 8)])
    lane_expr(A, vQKr, vL, [(5, 1, 256), (4, 1, 64), (2, 2, 16), (0, 1, 8)])
    A(f"s_lshl_b32 {s(sT0)}, {s(sWAVE)}, 9")
    lane_expr(A, vOw, vL, [(4, 2, 128), (0, 3, 16)], const=O_OFF, sregs=[sT0])
    A(f"s_lshl_b32 {s(sT0)}, {s(sWAVE)}, 11")
    A(f"s_add_u32 {s(sT0)}, {s(sT0)}, {MEM_OFF}")
    A(f"v_add_u32 {v(vMw)}, {s(sT0)}, {v(vL16)}")
    A(f"s_lshl_b32 {s(sT0)}, {s(sWAVE)}, 16")
    A(f"s_lshl_b32 {s(sT1)}, {s(sH)}, 8")
    lane_expr(A, vPst, vL, [(5, 1, 8192), (0, 4, 16), (4, 1, 8)], sregs=[sT0, sT1])
    A(f"s_lshl_b32 {s(sT0)}, {s(sH)}, 13")
    A(f"v_add_u32 {v(vRed)}, {s(sT0)}, {v(vL16)}")
    A(f"s_and_b32 {s(sT1)}, {s(sWAVE)}, 1")
    A(f"s_lshl_b32 {s(sT1)}, {s(sT1)}, 13")
    A(f"s_lshl_b32 {s(sT0)}, {s(sH)}, 14")
    A(f"s_add_u32 {s(sT0)}, {s(sT0)}, {s(sT1)}")
    A(f"v_lshlrev_b32 {v(vPf)}, 6, {v(vL)}")
    A(f"v_add_u32 {v(vPf)}, {s(sT0)}, {v(vPf)}")
    A(f"s_mov_b32 {s(sMLo)}, -1")
    A(f"s_mov_b32 {s(sMLo+1)}, 0")
    A(f"s_mov_b32 {s(sMHi)}, 0")
    A(f"s_mov_b32 {s(sMHi+1)}, -1")
    A(f"s_mov_b32 {s(sC)}, {f32_hex(SCALE_C):#x}")
    A(f"s_mov_b32 {s(sNC)}, {f32_hex(-SCALE_C):#x}")
    Lsel = A.new_label("sel")
    A(f"s_cmp_lg_u32 {s(sWAVE)}, 0")
    A(f"s_cbranch_scc1 {Lsel}")
    A(f"v_and_b32 {v(vT0)}, 15, {v(vL)}")
    A(f"v_mov_b32 {v(vS0)}, 0x3f80")
    A(f"v_mov_b32 {v(vT1)}, 0x3f800000")
    A(f"v_and_b32 v112, 1, {v(vT0)}")
    A(f"v_cmp_eq_u32 vcc, 1, v112")
    A.nop(2)
    A(f"v_cndmask_b32 {v(vS0)}, {v(vS0)}, {v(vT1)}, vcc")
    A(f"v_lshrrev_b32 {v(vT0)}, 1, {v(vT0)}")
    for i in range(4):
        A(f"v_cmp_eq_u32 vcc, {i}, {v(vT0)}")
        A.nop(2)
        A(f"v_cndmask_b32 {v(vSEL+i)}, 0, {v(vS0)}, vcc")
    A(f"v_bfe_u32 {v(vTagE)}, {v(vL)}, 4, 1")
    A(f"v_xor_b32 {v(vTagE)}, 1, {v(vTagE)}")
    A.label(Lsel)
    for i in range(4):
        A(f"v_mov_b32 {v(vONE+i)}, 0x3f803f80")
    for i in range(1, 4):
        A(f"v_mov_b32 {v(vBM+i)}, 0")

    A(f"s_lshl_b32 {s(sW2k)}, {s(sWAVE)}, 11")
    A(f"s_mov_b32 {s(sSlotP1)}, {WS_P + 16384}")
    A(f"s_mov_b32 {s(sPc2)}, {WS_P + 32768}")
    A(f"s_mov_b32 {s(sPc3)}, {WS_P + 49152}")
    A(f"s_mov_b32 {s(sSlotP4)}, {WS_P + 4096}")
    A(f"s_and_b32 {s(sTag)}, {s(sH)}, 1")
    A(f"s_xor_b32 {s(sTag)}, {s(sTag)}, 1")
    A(f"s_lshl_b32 {s(sT5)}, {s(sH)}, 7")
    A(f"s_add_u32 {s(sT5)}, {s(sT5)}, {WS_KVF:#x}")
    A(f"s_cmp_ge_u32 {s(sWAVE)}, 2")
    A(f"s_mov_b32 {s(sT0)}, {OOB:#x}")
    A(f"s_mov_b32 {s(sPf)}, {WS_KX + 0x80000:#x}")
    A(f"s_cselect_b32 {s(sPf)}, {s(sPf)}, {s(sT0)}")
    A(f"s_add_u32 {s(sM0K)}, {s(sW2k)}, {KX_OFF}")
    A(f"s_lshl_b32 {s(sKn)}, {s(sH)}, 14")
    A(f"s_add_u32 {s(sKn)}, {s(sKn)}, {s(sW2k)}")
    A(f"s_add_u32 {s(sKn)}, {s(sKn)}, {WS_KX:#x}")
    A(f"s_add_u32 {s(sM0V)}, {s(sW2k)}, {VX_OFF}")
    A(f"s_lshl_b32 {s(sKV)}, {s(sH)}, 14")
    A(f"s_add_u32 {s(sKV)}, {s(sKV)}, {s(sW2k)}")
    A(f"s_add_u32 {s(sKV)}, {s(sKV)}, {WS_KX:#x}")
    A(f"s_lshl_b32 {s(sKM)}, {s(sH)}, 12")
    A(f"s_add_u32 {s(sKM)}, {s(sKM)}, {WS_KM:#x}")
    A(f"s_mov_b32 {s(sJ4)}, 8")
    A(f"s_mov_b32 {s(sCn)}, 1")
    A(f"s_mov_b32 {s(sNeed)}, 1")
    for b, u in enumerate(units):
        assert st_['issued'] > b, "loader deadlock"
        if EARLY and b == len(units) - 1:
            assert st_.get('early')
            early_k()
        vq.wait(id(u))
        if opts.get('pst0') and b < 4:
            stamp(A, 4 + b)
        A(f"s_barrier")
        if u['kind'] == 'qkv':
            for k in range(8):
                A(f"ds_write_b128 {v(vSW + (k & 1) + 2 * (k >> 2))}, {reg(u['raw'][k], 4)} offset:{k * 1024}")
            A(f"s_waitcnt lgkmcnt(0)")
            A(f"s_barrier")
            x = u['x']
            for i in range(4):
                for t_ in range(2):
                    r_, fin = u['res'][2 * i + t_]
                    A(f"v_xor_b32 {v(vTA + (t_ & 1))}, {(i << 13) | (t_ << 5):#x}, {v(vTRb)}")
                    for q0 in range(2):
                        A(f"ds_read_b64_tr_b16 {reg(off(r_, 2 * q0), 2)}, {v(vTA + (t_ & 1))} offset:{512 * q0}")
            A(f"s_waitcnt lgkmcnt(0)")
            for (r_, fin) in u['res']:
                if fin is not None:
                    A(f"ds_write_b128 {v(vWo)}, {reg(r_, 4)} offset:{fin}")
        else:
            ks = u['ks']
            for k in range(8):
                A(f"ds_write_b128 {v(vSWo + (k >> 2))}, {reg(u['raw'][k], 4)} offset:{k * 1024}")
            base = u['raw'][0][1]
            fins = []
            for cg in range(4):
                io = wo_ops.index((cg, ks))
                dst = WORR[io] if io < 8 else ('v', base + 8 * cg)
                A(f"v_xor_b32 {v(vTA + (cg & 1))}, {cg << 6:#x}, {v(vTRo)}")
                for i in range(4):
                    A(f"ds_read_b64_tr_b16 {reg(off(dst, 2 * i), 2)}, {v(vTA + (cg & 1))} offset:{(8 * (i >> 1) + 2 * (i & 1)) * 256}")
                if io >= 8:
                    fins.append((dst, io * 2048))
            A(f"s_waitcnt lgkmcnt(0)")
            for (dst, o) in fins:
                A(f"ds_write_b128 {v(vWo)}, {reg(dst, 4)} offset:{o}")
                A(f"ds_write_b128 {v(vWo)}, {reg(off(dst, 4), 4)} offset:{o + 1024}")
        if id(u) in held:
            kind, tmp = held[id(u)]
            A(f"s_waitcnt lgkmcnt(0)")
            if kind == 'pool':
                busy.difference_update(tmp + 8 * j for j in range(4))
            else:
                busy.discard(tmp)
        if ARMLATE and b == opts.get('cipos', 1):
            checkin()
        if opts.get('prof') and not opts.get('cprof') and not opts.get('pst0') and b in (0, 3, 7, 11):
            stamp(A, {0: 4, 3: 5, 7: 6, 11: 7}[b])
        try_issue()
    A("s_waitcnt lgkmcnt(0)")
    stamp(A, 2) if not opts.get('cprof') else None
    A(f"s_barrier")
    if not EARLY:
        gen_late_start(A, opts, vL)
    else:
        Lkok = A.new_label("kok")
        A(f"s_cmp_eq_u32 {s(sKok)}, 1")
        A(f"s_cbranch_scc1 {Lkok}")
        kv_polls(A)
        A(f"buffer_load_dwordx4 {v(vEK,4)}, {v(vL16)}, {s(S_WS,4)}, {s(sKn)} offen")
        A(f"buffer_load_dwordx4 {v(vEK+4,4)}, {v(vL16)}, {s(S_WS,4)}, {s(sKn)} offen offset:1024")
        if DMI:
            A(f"s_add_u32 {s(sT1)}, {s(sKn)}, 8192")
            A(f"buffer_load_dwordx4 {v(vEV,4)}, {v(vL16)}, {s(S_WS,4)}, {s(sT1)} offen")
            A(f"buffer_load_dwordx4 {v(vEV+4,4)}, {v(vL16)}, {s(S_WS,4)}, {s(sT1)} offen offset:1024")
        A.label(Lkok)
        A(f"s_waitcnt vmcnt(0)")
        A(f"ds_write_b128 {v(vMw)}, {v(vEM,4)}")
        A(f"ds_write_b128 {v(vMw)}, {v(vEM+4,4)} offset:1024")
        for i in range(4):
            A(f"v_mov_b64 {v(X+24+2*i,2)}, {v(vEM+2*i,2)}")
        A(f"v_readfirstlane_b32 {s(sT4)}, {v(vEC)}")
        A(f"ds_write_b128 {v(vMw)}, {v(vEK,4)} offset:{KX_OFF - MEM_OFF}")
        A(f"ds_write_b128 {v(vMw)}, {v(vEK+4,4)} offset:{KX_OFF - MEM_OFF + 1024}")
        if DMI:
            A(f"ds_write_b128 {v(vMw)}, {v(vEV,4)} offset:{VX_OFF - MEM_OFF}")
            A(f"ds_write_b128 {v(vMw)}, {v(vEV+4,4)} offset:{VX_OFF - MEM_OFF + 1024}")
        for i in range(16):
            A(f"v_mov_b32 {v(ACC+i)}, 0")
        for i in range(8):
            A(f"v_mov_b32 {v(Y+24+i)}, 0")
        fb_consts(A)
        Lcok = A.new_label("cok")
        A(f"s_and_b32 {s(sT0)}, {s(sT4)}, 0xff")
        A(f"s_cmp_ge_u32 {s(sT0)}, 32")
        A(f"s_cbranch_scc1 {Lcok}")
        A(f"v_mov_b32 {v(vT1)}, 0")
        A(f"s_mov_b32 {s(sT2)}, {D_CHECKIN*4}")
        A(f"s_mov_b32 {s(sT3)}, 0")
        wait_byte(A, vFlag, vT1, sT2, sT3, 32, "ci", sleep=1)
        A(f"buffer_load_dword {v(vFlag)}, {v(vT1)}, {s(S_DBG,4)}, 0 offen offset:{D_CHECKIN*4} sc1")
        A(f"s_waitcnt vmcnt(0)")
        A(f"v_readfirstlane_b32 {s(sT4)}, {v(vFlag)}")
        A.label(Lcok)
        A(f"s_getreg_b32 {s(sT0)}, hwreg(HW_REG_XCC_ID, 0, 4)")
        A(f"s_mul_i32 {s(sT1)}, {s(sT0)}, {s(sT0)}")
        A(f"s_lshl_b32 {s(sT1)}, {s(sT1)}, 22")
        A(f"s_lshl_b32 {s(sT0)}, {s(sT0)}, 13")
        A(f"s_add_u32 {s(sT0)}, {s(sT0)}, {s(sT1)}")
        A(f"s_add_u32 {s(sT0)}, {s(sT0)}, 32")
        A(f"s_cmp_eq_u32 {s(sT0)}, {s(sT4)}")
        A(f"s_cselect_b32 {s(sFastF)}, 1, 0")
        A(f"s_mov_b32 m0, {s(sM0V if opts.get('kpos', 0) else sM0K)}")
    A(f"s_mov_b32 {s(sS)}, 0")
    A(f"s_waitcnt vmcnt(0) lgkmcnt(0)")
    A(f"s_barrier")
    stamp(A, 3) if not opts.get('cprof') else None
    if opts.get('cprof') or opts.get('hist'):
        A(f"s_mov_b32 {s(sCP0)}, 0")
        A(f"s_mov_b32 {s(sCP1)}, 0")
    for k, r_ in ((1, vT0), (2, vT1), (3, vS0)):
        A(f"v_xor_b32 {v(r_)}, {k << 11:#x}, {v(vMw)}")
    for q in range(opts.get('rbtop', 0)):
        A(f"ds_read_b128 {v([X, X + 8, PA, PA + 8][q >> 1] + 4 * (q & 1), 4)}, {v(vWo)} offset:{(q >> 1) * 2048 + 1024 * (q & 1)}")
    A(f"s_cmp_eq_u32 {s(sFastF)}, 1")
    if opts.get('forceslow'):
        A(f"s_branch L_own1_s")
    A(f"s_cbranch_scc0 L_own1_s")
    A(f"s_branch L_own1_f")
    gen_step(A, True, opts)
    gen_step(A, False, opts)


def G_tr(A, vD, vL, kind, base_sreg):
    tr_lane_addr(A, vD, vL, vT0, vS0, kind, base_sreg=base_sreg)
```

```python
from dsl import *
import gen as G
from gen import *
from gen_chain2 import f32_hex, LOG2E


def gen_out(A, opts):
    A.comment("==== role OUT ====")
    sPar, sSh, sC_, sSeg, sNext, sDelta, sOff, sShf, sBlk, sCnt, sSO = 44, 45, 46, 47, 48, 49, 50, 51, 52, 53, 54
    vWG, vST, vTR, vHst = 5, 6, 7, 8
    ACC = 64
    EP = 112
    xg = XG(A, sDelta)
    vL, vL16, vZero, vTmp, vT1, vT2 = xg.vL, xg.vL16, xg.vZero, xg.vTmp, xg.vT1, xg.vT2
    A(f"s_sub_u32 {s(sPar)}, {s(sXCD)}, 1")
    A(f"s_lshr_b32 {s(sSh)}, {s(sIDX)}, 4")
    A(f"s_and_b32 {s(sC_)}, {s(sIDX)}, 15")
    xg.setup()
    if opts.get('opf'):
        mats = {1: [P_WQ], 2: [P_WQ, P_WK], 3: [P_WQ, P_WK, P_WV], 4: [P_WK, P_WV, P_WQ], 5: [P_WQ, P_WV], 6: [P_WK, P_WV, P_WQ, P_WO], 7: [P_WK, P_WV], 8: [P_WV, P_WQ, P_WO], 9: [P_WK, P_WV, P_WO, P_WQ]}[opts['opf']]
        A(f"s_lshl_b32 {s(sT0)}, {s(sPar)}, 5")
        A(f"s_add_u32 {s(sT0)}, {s(sT0)}, {s(sIDX)}")
        A(f"s_lshl_b32 {s(sT0)}, {s(sT0)}, 2")
        A(f"s_add_u32 {s(sT0)}, {s(sT0)}, {s(sWAVE)}")
        A(f"s_lshl_b32 {s(sT0)}, {s(sT0)}, 14")
        for P in mats:
            mk_srd(A, S_D, P, 512 * 8192)
            for k in range(16):
                if k and k % 4 == 0:
                    A(f"s_add_u32 {s(sT0)}, {s(sT0)}, 4096")
                A(f"buffer_load_dwordx4 v[252:255], {v(vL16)}, {s(S_D,4)}, {s(sT0)} offen offset:{(k % 4) * 1024}")
            A(f"s_sub_u32 {s(sT0)}, {s(sT0)}, {3 * 4096}")
    if opts.get('opc'):
        mats = {1: [P_WQ, P_WK, P_WV], 2: [P_WK, P_WV, P_WQ], 3: [P_WQ, P_WK], 4: [P_WK, P_WV], 5: [P_WQ], 6: [P_WO, P_WQ, P_WK, P_WV], 7: [P_WO, P_WQ, P_WK], 8: [P_WQ, P_WO, P_WK, P_WV], 9: [P_WO, P_WK, P_WV, P_WQ]}[opts['opc']]
        A(f"s_lshl_b32 {s(sT0)}, {s(sPar)}, 5")
        A(f"s_add_u32 {s(sT0)}, {s(sT0)}, {s(sIDX)}")
        A(f"s_lshl_b32 {s(sT0)}, {s(sT0)}, 2")
        A(f"s_add_u32 {s(sT0)}, {s(sT0)}, {s(sWAVE)}")
        A(f"s_lshl_b32 {s(sT0)}, {s(sT0)}, 14")
        lane_expr(A, vT1, vL, [(4, 2, 1024), (0, 4, 16)], const=256)
        lane_expr(A, vT2, vL, [(4, 1, 8192), (0, 4, 16)], const=31 * 256)
        for P in mats:
            mk_srd(A, S_D, P, 512 * 8192)
            for k in range(4):
                A(f"s_add_u32 {s(sT1)}, {s(sT0)}, {k * 4096}")
                A(f"buffer_load_dwordx4 v[252:255], {v(vT1)}, {s(S_D,4)}, {s(sT1)} offen")
            if opts.get('opc31', 1) and P != P_WO:
                A(f"s_mov_b64 exec, 0xffffffff")
                A(f"buffer_load_dwordx4 v[252:255], {v(vT2)}, {s(S_D,4)}, {s(sT0)} offen")
                A(f"s_mov_b64 exec, -1")
    STG = 80 * 1024
    A(f"s_mul_i32 {s(sT2)}, {s(sWAVE)}, {2*STG_BUF}")
    A(f"s_add_u32 {s(sT2)}, {s(sT2)}, {STG}")
    stage_lane_addr(A, vST, vL, vT1, sT2)
    Lph2 = A.new_label("out_ph2")

    def wait_wdone(tag):
        L = A.new_label("wd" + tag)
        A(f"s_cmp_lg_u32 {s(sWAVE)}, 0")
        A(f"s_cbranch_scc1 {L}")
        A(f"s_mov_b32 {s(sOff)}, {D_WDONE*4}")
        A(f"s_mov_b32 {s(sShf)}, 0")
        wait_byte(A, vTmp, vZero, sOff, sShf, opts.get('wdn', 32), "wd" + tag, sleep=8)
        A.label(L)
        A(f"s_barrier")
    if opts.get('odelay') == 1:
        wait_wdone("a")
    if opts.get('odelay') == 3:
        Lod = A.new_label("od")
        A(f"s_cmp_lg_u32 {s(sWAVE)}, 0")
        A(f"s_cbranch_scc1 {Lod}")
        A(f"s_mov_b32 {s(sOff)}, {D_CHECKIN*4}")
        A(f"s_mov_b32 {s(sShf)}, 0")
        wait_byte(A, vTmp, vZero, sOff, sShf, 32, "od", sleep=4)
        A.label(Lod)
        A(f"s_barrier")
    A(f"s_cmp_gt_u32 {s(sC_)}, 10")
    A(f"s_cbranch_scc1 {Lph2}")
    mk_srd(A, S_A, P_W1, 512 * 2752)
    mk_srd(A, S_B, P_GATE, 1024)
    A(f"s_lshl_b32 {s(sBlk)}, {s(sC_)}, 2")
    A(f"s_add_u32 {s(sBlk)}, {s(sBlk)}, {s(sWAVE)}")
    A(f"s_lshl_b32 {s(sSeg)}, {s(sSh)}, 1")
    A(f"s_add_u32 {s(sSeg)}, {s(sSeg)}, {s(sPar)}")
    xg.issue_x(sSeg)
    A(f"s_waitcnt vmcnt(0)")
    xg.write_x()
    tr_lane_addr(A, vTR, vL, vT1, vT2, 'k16', base_sreg=sT2)
    Lgate = A.new_label("gatew")
    Lwdone = A.new_label("wdone")
    A(f"s_cmp_eq_u32 {s(sBlk)}, 43")
    A(f"s_cbranch_scc1 {Lgate}")
    raw_lane_off(A, vWG, vL, vT1, 2752)
    A(f"s_lshl_b32 {s(sT0)}, {s(sBlk)}, 6")
    A(f"v_add_u32 {v(vWG)}, {s(sT0)}, {v(vWG)}")
    blocks = []
    for b in range(16):
        blocks.append(dict(srd=S_A, voff=vWG, soff=[(32 * b) * 2752, (32 * b + 16) * 2752], raw=('a', 8 * b), dst=('a', 8 * b),
                           vtr=vTR, imm=TR_IMM['k16']))
    load_blocks(A, blocks, vST, window=16)
    A(f"s_branch {Lwdone}")
    A.label(Lgate)
    A(f"v_lshrrev_b32 {v(vWG)}, 5, {v(vL)}")
    A(f"v_lshlrev_b32 {v(vWG)}, 4, {v(vWG)}")
    A(f"v_and_b32 {v(vT1)}, 31, {v(vL)}")
    A(f"v_lshlrev_b32 {v(vT1)}, 12, {v(vT1)}")
    A(f"v_add_u32 {v(vWG)}, {v(vWG)}, {v(vT1)}")
    for kk in range(32):
        A(f"buffer_load_dwordx4 {a(4*kk,4)}, {v(vWG)}, {s(S_B,4)}, 0 offen offset:{kk*32}")
    A(f"s_waitcnt vmcnt(0)")
    A.label(Lwdone)
    xg.after_weights()
    A(f"s_lshl_b32 {s(sT0)}, {s(sBlk)}, 10")
    lane_expr(A, vHst, vL, [(4, 1, 43 * 1024), (5, 1, 256), (0, 4, 16)], sregs=[sT0])
    Lloop = A.new_label("ffn_loop")
    A.label(Lloop)
    A(f"s_add_u32 {s(sNext)}, {s(sSeg)}, 4")
    xg.issue_x(sNext)

    def mf(kk, f):
        c = "0" if kk == 0 else v(ACC, 16)
        A(f"v_mfma_f32_32x32x16_bf16 {v(ACC,16)}, {a(4*kk,4)}, {f}, {c}")
    xg.body(mf, wpos=opts.get('fwpos', 9))
    A.nop(12)
    Lge = A.new_label("gate_ep")
    Lepd = A.new_label("ep_done")
    A(f"s_cmp_eq_u32 {s(sBlk)}, 43")
    A(f"s_cbranch_scc1 {Lge}")
    A(f"s_mov_b32 {s(sT0)}, {f32_hex(-LOG2E):#x}")
    T = 80
    for i in range(16):
        A(f"v_mul_f32 {v(T+i)}, {s(sT0)}, {v(ACC+i)}")
    for i in range(16):
        A(f"v_exp_f32 {v(T+i)}, {v(T+i)}")
    for i in range(16):
        A(f"v_add_f32 {v(T+i)}, 1.0, {v(T+i)}")
    for i in range(16):
        A(f"v_rcp_f32 {v(T+i)}, {v(T+i)}")
    for i in range(16):
        A(f"v_mul_f32 {v(ACC+i)}, {v(ACC+i)}, {v(T+i)}")
    for i in range(8):
        A(f"v_cvt_pk_bf16_f32 {v(EP+i)}, {v(ACC+2*i)}, {v(ACC+2*i+1)}")
    A(f"s_mul_i32 {s(sT0)}, {s(sSeg)}, {HX_STRIDE}")
    A(f"s_add_u32 {s(sT0)}, {s(sT0)}, {WS_HX:#x}")
    for c in range(2):
        A(f"buffer_store_dwordx4 {v(EP+4*c,4)}, {v(vHst)}, {s(S_WS,4)}, {s(sT0)} offen offset:{c*512} sc1")
    A(f"s_branch {Lepd}")
    A.label(Lge)
    A(f"s_mov_b32 {s(sT0)}, {f32_hex(-LOG2E):#x}")
    A(f"v_mul_f32 {v(vT1)}, {s(sT0)}, {v(ACC)}")
    A(f"v_exp_f32 {v(vT1)}, {v(vT1)}")
    A.nop(1)
    A(f"v_add_f32 {v(vT1)}, 1.0, {v(vT1)}")
    A(f"v_rcp_f32 {v(vT1)}, {v(vT1)}")
    A(f"v_lshlrev_b32 {v(vT2)}, 2, {v(vL)}")
    A(f"s_lshl_b32 {s(sT0)}, {s(sSeg)}, 7")
    A(f"s_add_u32 {s(sT0)}, {s(sT0)}, {WS_G:#x}")
    A(f"s_mov_b64 exec, 0xffffffff")
    A(f"buffer_store_dword {v(vT1)}, {v(vT2)}, {s(S_WS,4)}, {s(sT0)} offen sc1")
    A(f"s_mov_b64 exec, -1")
    A.label(Lepd)
    xg.toggle()
    A(f"s_waitcnt lgkmcnt(0)")
    A(f"s_barrier")
    A(f"s_mov_b32 {s(sSeg)}, {s(sNext)}")
    A(f"s_cmp_lt_u32 {s(sSeg)}, 64")
    A(f"s_cbranch_scc1 {Lloop}")
    A(f"s_waitcnt vmcnt(0)")
    A(f"s_barrier")
    Lnf = A.new_label("ffn_nf")
    A(f"s_cmp_lg_u32 {s(sWAVE)}, 0")
    A(f"s_cbranch_scc1 {Lnf}")
    A(f"s_lshl_b32 {s(sOff)}, {s(sPar)}, 2")
    A(f"s_add_u32 {s(sOff)}, {s(sOff)}, {D_FFN*4}")
    A(f"s_mov_b32 {s(sShf)}, 0")
    signal_byte(A, None, vZero, sOff, sShf, vTmp)
    A.label(Lnf)
    A.label(Lph2)
    if opts.get('odelay') == 2:
        wait_wdone("b")
    stamp(A, 1)
    mk_srd(A, S_A, P_WO, 4096 * 1024)
    mk_srd(A, S_B, P_W2, 1376 * 1024)
    mk_srd(A, S_C, P_OUT, 2048 * 1024)
    vWG2, vTR2 = 8, 9
    raw_lane_off(A, vWG, vL, vT1, 1024)
    A(f"s_lshl_b32 {s(sT0)}, {s(sC_)}, 6")
    A(f"v_add_u32 {v(vWG)}, {s(sT0)}, {v(vWG)}")
    A(f"s_mul_i32 {s(sT0)}, {s(sWAVE)}, {11*32*1024}")
    A(f"v_add_u32 {v(vWG2)}, {s(sT0)}, {v(vWG)}")
    A(f"s_lshl_b32 {s(sT0)}, {s(sWAVE)}, 20")
    A(f"v_add_u32 {v(vWG)}, {s(sT0)}, {v(vWG)}")
    A(f"s_mul_i32 {s(sT2)}, {s(sWAVE)}, {2*STG_BUF}")
    A(f"s_add_u32 {s(sT2)}, {s(sT2)}, {STG}")
    tr_lane_addr(A, vTR, vL, vT1, vT2, 'out_wo', base_sreg=sT2)
    tr_lane_addr(A, vTR2, vL, vT1, vT2, 'out_w2', base_sreg=sT2)
    blocks = []
    for b in range(11):
        blocks.append(dict(srd=S_B, voff=vWG2, soff=[(32 * b) * 1024, (32 * b + 16) * 1024], raw=('v', 128 + 8 * b), dst=('v', 128 + 8 * b),
                           vtr=vTR2, imm=TR_IMM['out_w2']))
    for b in range(32):
        blocks.append(dict(srd=S_A, voff=vWG, soff=[(32 * b) * 1024, (32 * b + 16) * 1024], raw=('a', 8 * b), dst=('a', 8 * b),
                           vtr=vTR, imm=TR_IMM['out_wo']))
    load_blocks(A, blocks, vST, window=31)
    stamp(A, 2)
    A(f"s_lshl_b32 {s(sOff)}, {s(sPar)}, 2")
    A(f"s_add_u32 {s(sOff)}, {s(sOff)}, {D_FFN*4}")
    A(f"s_mov_b32 {s(sShf)}, 0")
    wait_byte(A, vTmp, vZero, sOff, sShf, 22, "ffn", sleep=4)
    A(f"s_mov_b32 {s(sOff)}, {D_CHECKIN*4}")
    wait_byte(A, vTmp, vZero, sOff, sShf, 32, "oci", sleep=4)
    A(f"s_barrier")
    vOF = 11
    A(f"v_and_b32 {v(vOF)}, 31, {v(vL)}")
    A(f"v_lshlrev_b32 {v(vOF)}, 2, {v(vOF)}")
    for _ in range(opts.get('otestdelay', 0)):
        A("s_sleep 127")
    stamp(A, 3)
    aA, aB = 16, 24
    bufs = [32 + 4 * i for i in range(24)] + [216 + 4 * i for i in range(10)]
    vRw, vRr, vOut, vG = 5, 6, 7, 8
    RED = 0
    A(f"s_lshl_b32 {s(sT0)}, {s(sWAVE)}, 12")
    A(f"v_add_u32 {v(vRw)}, {s(sT0)}, {v(vL16)}")
    A(f"s_and_b32 {s(sT0)}, {s(sWAVE)}, 1")
    A(f"s_lshl_b32 {s(sT0)}, {s(sT0)}, 10")
    A(f"v_add_u32 {v(vRr)}, {s(sT0)}, {v(vL16)}")
    A(f"s_lshl_b32 {s(sT0)}, {s(sSh)}, 14")
    A(f"s_lshl_b32 {s(sT1)}, {s(sC_)}, 6")
    A(f"s_add_u32 {s(sT0)}, {s(sT0)}, {s(sT1)}")
    A(f"s_and_b32 {s(sT1)}, {s(sWAVE)}, 1")
    A(f"s_lshl_b32 {s(sT1)}, {s(sT1)}, 5")
    A(f"s_add_u32 {s(sT0)}, {s(sT0)}, {s(sT1)}")
    lane_expr(A, vOut, vL, [(0, 4, 1024), (4, 2, 8)], sregs=[sT0])
    A(f"s_lshl_b32 {s(sT0)}, {s(sSh)}, 6")
    lane_expr(A, vG, vL, [(0, 4, 4)], sregs=[sT0])
    A(f"s_mov_b32 {s(sSeg)}, {s(sPar)}")
    A(f"v_mov_b32 v12, 0")
    Lm = A.new_label("out_loop")
    A.label(Lm)
    A(f"s_mul_i32 {s(sT2)}, {s(sSeg)}, {HX_STRIDE}")
    A(f"s_mul_i32 {s(sT3)}, {s(sSh)}, {43*1024}")
    A(f"s_add_u32 {s(sT2)}, {s(sT2)}, {s(sT3)}")
    A(f"s_mul_i32 {s(sT3)}, {s(sWAVE)}, {11*1024}")
    A(f"s_add_u32 {s(sT2)}, {s(sT2)}, {s(sT3)}")
    A(f"s_add_u32 {s(sT2)}, {s(sT2)}, {WS_HX:#x}")
    vq = Q(A, "vmcnt", 63)
    for b in range(11):
        if b in (4, 8):
            A(f"s_add_u32 {s(sT2)}, {s(sT2)}, 4096")
        if b == 10:
            A(f"s_cmp_eq_u32 {s(sWAVE)}, 3")
            A(f"s_cselect_b32 {s(sT3)}, 1024, 0")
            A(f"s_sub_u32 {s(sT2)}, {s(sT2)}, {s(sT3)}")
        vq.issue(('H', b), f"buffer_load_dwordx4 {v(bufs[b],4)}, {v(vL16)}, {s(S_WS,4)}, {s(sT2)} offen offset:{(b%4)*1024}")
    A(f"s_lshl_b32 {s(sT2)}, {s(sSeg)}, 7")
    A(f"s_add_u32 {s(sT2)}, {s(sT2)}, {WS_G:#x}")
    vq.issue('g', f"buffer_load_dword v9, {v(vG)}, {s(S_WS,4)}, {s(sT2)} offen")
    A(f"s_lshl_b32 {s(sOff)}, {s(sSeg)}, 7")
    A(f"s_add_u32 {s(sOff)}, {s(sOff)}, {WS_OF:#x}")
    Lw = A.new_label("ow")
    Lp = A.new_label("op")
    OFE = opts.get('ofe', 1)
    if OFE:
        A(f"v_cmp_ne_u32 vcc, 0, v12")
        A(f"s_nop 0")
        A(f"s_cmp_eq_u64 vcc, -1")
        A(f"s_cbranch_scc1 {Lw}")
    else:
        A(f"s_cmp_lg_u32 {s(sWAVE)}, 0")
        A(f"s_cbranch_scc1 {Lw}")
    A(f"s_cmp_lg_u32 {s(sDEAD)}, 0")
    A(f"s_cbranch_scc1 {Lw}")
    A(f"s_mov_b32 {s(sShf)}, 0")
    A.label(Lp)
    A(f"buffer_load_dword v10, {v(vOF)}, {s(S_WS,4)}, {s(sOff)} offen sc1")
    A(f"s_waitcnt vmcnt(0)")
    A(f"v_cmp_ne_u32 vcc, 0, v10")
    A(f"s_add_u32 {s(sShf)}, {s(sShf)}, 1")
    A(f"s_nop 0")
    A(f"s_cmp_eq_u64 vcc, -1")
    A(f"s_cbranch_scc1 {Lw}")
    A(f"s_sleep {opts.get('osleep', 4)}")
    A(f"s_cmp_lt_u32 {s(sShf)}, {SPIN_LIMIT}")
    A(f"s_cbranch_scc1 {Lp}")
    A(f"s_mov_b32 {s(sDEAD)}, 1")
    A.label(Lw)
    if OFE:
        A(f"s_add_u32 {s(sOff)}, {s(sOff)}, 256")
        vq.issue('fl', f"buffer_load_dword v12, {v(vOF)}, {s(S_WS,4)}, {s(sOff)} offen sc1")
    else:
        A(f"s_barrier")
    A(f"s_lshl_b32 {s(sSO)}, {s(sSeg)}, 5")
    A(f"s_lshl_b32 {s(sT3)}, {s(sWAVE)}, 3")
    A(f"s_add_u32 {s(sSO)}, {s(sSO)}, {s(sT3)}")
    A(f"s_lshl_b32 {s(sSO)}, {s(sSO)}, 13")
    A(f"s_lshl_b32 {s(sT3)}, {s(sSh)}, 12")
    A(f"s_add_u32 {s(sSO)}, {s(sSO)}, {s(sT3)}")
    A(f"s_add_u32 {s(sSO)}, {s(sSO)}, {WS_OX:#x}")

    obuf = {}
    def issue_o(b, buf):
        A(f"s_add_u32 {s(sT3)}, {s(sSO)}, {(b>>2)*8192}")
        vq.issue(('O', b), f"buffer_load_dwordx4 {v(buf,4)}, {v(vL16)}, {s(S_WS,4)}, {s(sT3)} offen offset:{(b&3)*1024}")
        obuf[b] = buf
    nfree = len(bufs) - 11
    for b in range(nfree):
        issue_o(b, bufs[11 + b])
    nxt = nfree
    for b in range(11):
        vq.wait(('H', b))
        for ct in range(2):
            c = "0" if b == 0 else v(aB + 4 * ct, 4)
            A(f"v_mfma_f32_16x16x32_bf16 {v(aB+4*ct,4)}, {v(128+8*b+4*ct,4)}, {v(bufs[b],4)}, {c}")
        if nxt < 32:
            issue_o(nxt, bufs[b])
            nxt += 1
    for b in range(32):
        vq.wait(('O', b))
        for ct in range(2):
            c = "0" if b == 0 else v(aA + 4 * ct, 4)
            A(f"v_mfma_f32_16x16x32_bf16 {v(aA+4*ct,4)}, {a(8*b+4*ct,4)}, {v(obuf[b],4)}, {c}")
    A.nop(8)
    A(f"ds_write_b128 {v(vRw)}, {v(aA,4)} offset:0")
    A(f"ds_write_b128 {v(vRw)}, {v(aA+4,4)} offset:1024")
    A(f"ds_write_b128 {v(vRw)}, {v(aB,4)} offset:2048")
    A(f"ds_write_b128 {v(vRw)}, {v(aB+4,4)} offset:3072")
    A(f"s_waitcnt lgkmcnt(0)")
    A(f"s_barrier")
    Lsk = A.new_label("osk")
    A(f"s_cmp_gt_u32 {s(sWAVE)}, 1")
    A(f"s_cbranch_scc1 {Lsk}")
    R = 32
    for w in range(4):
        A(f"ds_read_b128 {v(R+8*w,4)}, {v(vRr)} offset:{w*4096}")
        A(f"ds_read_b128 {v(R+8*w+4,4)}, {v(vRr)} offset:{w*4096+2048}")
    A(f"s_waitcnt lgkmcnt(0)")
    for r in range(4):
        A(f"v_add_f32 {v(R+r)}, {v(R+r)}, {v(R+8+r)}")
        A(f"v_add_f32 {v(R+16+r)}, {v(R+16+r)}, {v(R+24+r)}")
        A(f"v_add_f32 {v(R+4+r)}, {v(R+4+r)}, {v(R+12+r)}")
        A(f"v_add_f32 {v(R+20+r)}, {v(R+20+r)}, {v(R+28+r)}")
    for r in range(4):
        A(f"v_add_f32 {v(R+r)}, {v(R+r)}, {v(R+16+r)}")
        A(f"v_add_f32 {v(R+4+r)}, {v(R+4+r)}, {v(R+20+r)}")
    for r in range(4):
        A(f"v_sub_f32 {v(R+r)}, {v(R+r)}, {v(R+4+r)}")
    for r in range(4):
        A(f"v_fma_f32 {v(R+r)}, {v(R+r)}, v9, {v(R+4+r)}")
    A(f"v_cvt_pk_bf16_f32 {v(R+8)}, {v(R)}, {v(R+1)}")
    A(f"v_cvt_pk_bf16_f32 {v(R+9)}, {v(R+2)}, {v(R+3)}")
    A(f"s_lshl_b32 {s(sT2)}, {s(sSeg)}, 15")
    A(f"buffer_store_dwordx2 {v(R+8,2)}, {v(vOut)}, {s(S_C,4)}, {s(sT2)} offen" + ["", " sc1", " sc0 sc1", " nt", " sc1 nt"][opts.get('opol', 0)])
    A.label(Lsk)
    if opts.get('ofe', 1):
        A(f"v_xor_b32 {v(vRw)}, 0x4000, {v(vRw)}")
        A(f"v_xor_b32 {v(vRr)}, 0x4000, {v(vRr)}")
    A(f"s_add_u32 {s(sSeg)}, {s(sSeg)}, 2")
    A(f"s_cmp_lt_u32 {s(sSeg)}, 64")
    A(f"s_cbranch_scc1 {Lm}")
    A(f"s_waitcnt vmcnt(0)")
```

```python
from dsl import *
import gen as G
from gen import *

QK_OFF, O_OFF, MEM_OFF, KX_OFF, VX_OFF, WO_OFF = 0, 4096, 8192, 16384, 24576, 32768

vL16, vKw, vIdx, vQKw, vQKr, vOw, vMw, vWo, vPst, vRed, vMst, vPf, vFlag, vJunk = range(14)
vT0, vT1 = 14, 15
vSEL = 16
vVM1, vKr, vONE = 20, 21, 22
vBM = 26
vS0, vIdxW = 30, 31
KIMG = [2048, 3072, 6144, 7168]
X = 32
Y = 64
PA = 96
ACC = 112
sH, sS, sSlotP, sSlotP1, sSlotP4, sSlotM, sKM, sKV, sC, sNC, sRet = range(44, 55)
sRa0, sRa2, sFastF = 55, 56, 57
sMLo, sMHi = 58, 60
sU = 76
sFo, sNeed, sJ4, sCn, sPf, sGat, sKn, sM0K, sM0V = 78, 79, 80, 81, 84, 85, 86, 87, 88
sW1k, sRaM, sRaA, sFb, sPfb, sW2k = 64, 65, 66, 67, 68, 69
sPc2, sPc3 = 70, 71
sRo, sRm = 72, 89
sPc = [sSlotP, sSlotP1, sPc2, sPc3]
sTag = 55
vTagE = vPf
sCP0, sCP1 = 82, 83
sB63 = 3
sKok = 57
OOB = 0x40000000
RED_LIMIT = 1 << 16

LOG2E = 1.4426950408889634
WPOL = ["", " nt", " sc1", " sc0 sc1", " sc1 nt", " sc0", " sc0 nt", " sc0 sc1 nt"]
SCALE_C = (128 ** -0.5) * LOG2E


def f32_hex(x):
    import struct
    return struct.unpack("<I", struct.pack("<f", x))[0]


RT = False
LATE = [False]
CSTEP = [39]


TRACE = [False]


FTR = [0]


def fstamp(A, k):
    if TRACE[0] and FTR[0]:
        A(f"s_memtime s[{16 + 2 * (k - 1)}:{17 + 2 * (k - 1)}]")


def lstamp(A, i, late=None):
    if TRACE[0]:
        if FTR[0] == 1:
            m_ = {3: 1, 4: 5, 5: 8}.get(i)
        elif FTR[0] == 2:
            m_ = {5: 1, 6: 4, 7: 8}.get(i)
        elif FTR[0] == 3:
            m_ = {1: 1, 2: 5, 3: 8}.get(i)
        else:
            m_ = i if i <= 8 else None
        if m_:
            A(f"s_memtime s[{16 + 2 * (m_ - 1)}:{17 + 2 * (m_ - 1)}]")
        return
    L = A.new_label("ls")
    if late is None:
        late = i >= 8
    A(f"s_cmp_lg_u32 {s(sS)}, {CSTEP[0] + 1 if late else CSTEP[0]}")
    A(f"s_cbranch_scc1 {L}")
    r = 16 + 2 * (i - 1) if i < 9 else 62
    A(f"{'s_memrealtime' if RT else 's_memtime'} s[{r}:{r+1}]")
    A.label(L)


import re as _re


def _regs(tok):
    tok = tok.strip().rstrip(',')
    m = _re.match(r'^([va])\[(\d+):(\d+)\]$', tok)
    if m:
        return {(m.group(1), i) for i in range(int(m.group(2)), int(m.group(3)) + 1)}
    m = _re.match(r'^([va])(\d+)$', tok)
    if m:
        return {(m.group(1), int(m.group(2)))}
    return set()


def _all_regs(line):
    r = set()
    for tok in _re.findall(r'[va]\[\d+:\d+\]|\b[va]\d+\b', line):
        r |= _regs(tok)
    return r


def gap_reorder(lines, report=False):
    out = []
    i = 0
    n = len(lines)
    issm = lambda x: x.strip().startswith('v_smfmac')
    while i < n:
        out.append(lines[i])
        if issm(lines[i]):
            j = i + 1
            gap = []
            while j < n and not issm(lines[j]) and not lines[j].endswith(':') and not lines[j].strip().startswith(('s_cbranch', 's_branch', 'v_mfma', 's_nop', 's_memtime', 's_memrealtime', 's_cmp')):
                gap.append(lines[j])
                j += 1
            if j < n and issm(lines[j]):
                changed = True
                while changed:
                    changed = False
                    for k in range(len(gap) - 1):
                        a_, b_ = gap[k].strip(), gap[k + 1].strip()
                        if a_.startswith('v_') and not b_.startswith('v_') and 'vcc' not in a_ and 'exec' not in b_:
                            if not (_all_regs(a_) & _all_regs(b_)):
                                gap[k], gap[k + 1] = gap[k + 1], gap[k]
                                changed = True
                nv = sum(1 for g in gap if g.strip().startswith('v_'))
                no = len(gap) - nv
                lastv = all(not gap[k].strip().startswith('v_') or gap[k + 1].strip().startswith('v_') for k in range(len(gap) - 1))
                if report and (nv > 1 or (nv and no > 2) or no > 3 or not lastv):
                    print("gap over budget:", [g.strip()[:40] for g in gap])
            out.extend(gap)
            i = j
            continue
        i += 1
    return out


def red3(A, opts, R, RA, ld, st, Lar, rstamp, RBT):
    sSave = sU
    LfA, LfB, LfAB, Lgen, Lok = (A.new_label(x) for x in ("rfA", "rfB", "rfAB", "rgen", "rok"))
    hist = opts.get('hist')

    main = [True]

    def item(i, cnt, first):
        if cnt is not None:
            A(f"s_waitcnt vmcnt({cnt})")
        if main[0] and i in (0, 7):
            rstamp(2 if i == 0 else 3)
        c = "0" if first else v(RA, 4)
        A(f"v_mfma_f32_16x16x32_bf16 {v(RA,4)}, {v(R[i],4)}, {v(vSEL,4)}, {c}")

    def tagchk(i, y):
        A(f"v_bitop3_b32 {v(y)}, {v(R[i])}, {v(R[i]+2)}, {v(vTagE)} bitop3:0x7e")

    def half(base, cnts, first, k0=0, chk=True):
        for k in range(k0, 4):
            item(base + k, cnts[k], first and k == 0)
            if chk:
                tagchk(base + k, [vT0, vT1, vS0, vT1][k])
                if k == 2:
                    A(f"v_or3_b32 {v(vT0)}, {v(vT0)}, {v(vT1)}, {v(vS0)}")
        if chk:
            A(f"v_bitop3_b32 {v(vT0)}, {v(vT0)}, {v(vT1)}, 1 bitop3:0xa8")
            A(f"v_cmp_ne_u32 vcc, 0, {v(vT0)}")

    def repoll(lo, hi, d=0):
        for _ in range(d):
            A(f"s_sleep 1")
        A(f"s_mov_b64 exec, vcc")
        for i in range(lo, hi):
            ld(R, i)
        A(f"s_mov_b64 exec, -1")

    def both(first_cnts):
        half(0, first_cnts, True)
        A(f"s_mov_b64 {s(sSave,2)}, vcc")
        half(4, [3, 2, 1, 0], False)
        A(f"s_or_b64 vcc, vcc, {s(sSave,2)}")
    half(0, [7, 6, 5, 4], True)
    item(4, 3, False)
    tagchk(4, vT0)
    A(f"s_cbranch_vccnz {LfA}")
    half(4, [3, 2, 1, 0], False, k0=1)
    A(f"s_cbranch_vccnz {LfB}")
    main[0] = False
    A.label(Lok)
    rstamp(4)
    A(f"s_nop 4")
    A(f"v_cvt_pk_bf16_f32 {v(RA+4)}, {v(RA)}, {v(RA+1)}")
    A(f"v_cvt_pk_bf16_f32 {v(RA+5)}, {v(RA+2)}, {v(RA+3)}")
    A(f"buffer_store_dwordx2 {v(RA+4,2)}, {v(vMst)}, {s(S_WS,4)}, {s(sSlotM)} offen{st}")
    A(f"s_branch {Lar}")
    A.label(LfA)
    repoll(0, 4, opts.get('rda', 0))
    if hist or opts.get('rtrace'):
        A(f"s_add_u32 {s(sCP0)}, {s(sCP0)}, 1")
    half(4, [None, 6, 5, 4], True)
    A(f"s_cbranch_vccnz {LfAB}")
    half(0, [3, 2, 1, 0], False)
    A(f"s_cbranch_vccz {Lok}")
    A(f"s_branch {Lgen}")
    A.label(LfAB)
    repoll(4, 8)
    both([7, 6, 5, 4])
    A(f"s_cbranch_vccz {Lok}")
    A(f"s_branch {Lgen}")
    A.label(LfB)
    repoll(4, 8, opts.get('rdb', 0))
    if hist or opts.get('rtrace'):
        A(f"s_add_u32 {s(sCP0)}, {s(sCP0)}, {0x1000000 if opts.get('hist') == 2 else 1}")
    half(0, [None] * 4, True, chk=False)
    half(4, [3, 2, 1, 0], False)
    A(f"s_cbranch_vccz {Lok}")
    A.label(Lgen)
    repoll(0, 8, opts.get('rdg', 0))
    if hist:
        A(f"s_add_u32 {s(sCP0)}, {s(sCP0)}, 0x1000")
    if opts.get('rtrace'):
        A(f"s_add_u32 {s(sCP0)}, {s(sCP0)}, 2")
    both([7, 6, 5, 4])
    A(f"s_cbranch_vccz {Lok}")
    A(f"s_add_u32 {s(sRet)}, {s(sRet)}, 1")
    A(f"s_cmp_lg_u32 {s(sDEAD)}, 0")
    A(f"s_cbranch_scc1 {Lok}")
    A(f"s_cmp_lt_u32 {s(sRet)}, {RED_LIMIT}")
    A(f"s_cbranch_scc1 {Lgen}")
    A(f"s_mov_b32 {s(sDEAD)}, 1")
    A(f"s_branch {Lok}")


def gen_step(A, fast, opts):
    i0 = len(A.L)
    gen_step_raw(A, fast, opts)
    if opts.get('reord', 1):
        A.L[i0:] = gap_reorder(A.L[i0:], report=fast and opts.get('report'))


def gen_step_raw(A, fast, opts):
    KP, VP = opts.get('kpos', 0), opts.get('vpos', 0)
    RBT = opts.get('rbtop', 0)
    VAT = opts.get('vat', 12)
    M0TOP = KP in (1, 2) and VP == 0
    M0FIX = KP == 4 and VP == 0

    def vdma(n):
        if VP != 0:
            return
        if n == VAT - 1:
            if not M0TOP and not M0FIX:
                A(f"s_mov_b32 m0, {s(sM0V)}")
            A(f"s_add_u32 {s(sT3)}, {s(sKV)}, 8192")
        elif n == VAT:
            A(f"buffer_load_dwordx4 {v(vL16)}, {s(S_WS,4)}, {s(sT3)} offen lds")
        elif n == VAT + opts.get('vsp', 1):
            A(f"buffer_load_dwordx4 {v(vL16)}, {s(S_WS,4)}, {s(sT3)} offen offset:1024 lds")
    st = "" if fast else " sc1"
    tag = "f" if fast else "s"
    Lown = [f"L_own0_{tag}", f"L_own1_{tag}"]
    Lcommon = f"L_common_{tag}"
    Llast = f"L_last_{tag}"
    lq = Q(A, "lgkmcnt", 15)
    cp = opts.get('cprof') or opts.get('trace')
    rp = opts.get('rprof')
    AQ, AV, AK = ACC, ACC + 8, Y + 24
    CQ, CK = AQ + 2, AK + 2
    H0, H1 = X + 16, X + 24
    H2 = PA + 8
    G3 = opts.get('gsets', 2) == 3
    AO = Y
    KXR = {0: X + 16, 4: X + 20, 1: X + 24, 5: X + 28, 2: X, 6: X + 4, 3: X + 8, 7: X + 12}
    RB = [X, X + 8, PA, PA + 8]
    RIDX = {0: 0, 1: 1, 4: 2, 5: 3, 6: 4, 7: 5}

    def WB(m, jj, t):
        if m == 'q':
            return a(16 * jj + 8 * t, 8)
        if jj in (2, 3):
            return v(RB[2 * (jj - 2) + t], 8)
        return (a if m == 'k' else v)(128 + 16 * RIDX[jj] + 8 * t, 8)

    def rdR(m, b, half, top=False):
        if m == 'k' and 2 * b + half < RBT and not top:
            return
        fi = (0 if m == 'k' else 4) + b
        lq.issue(('R', m, b), f"ds_read_b128 {v(RB[b] + 4*half, 4)}, {v(vWo)} offset:{fi * 2048 + 1024 * half}")
    AC = {'q': AQ, 'k': AK, 'v': AV}
    vA = [None, vT0, vT1, vS0]

    def smf(m, jj, t, areg):
        if m != 'q' and jj in (2, 3):
            lq.wait(('R', m, 2 * (jj - 2) + t))
        A(f"v_smfmac_f32_16x16x64_bf16 {v(AC[m] + 4*t, 4)}, {v(areg, 4)}, {WB(m, jj, t)}, {v(vIdx)}")

    def rdKX(j):
        lq.issue(('KX', j), f"ds_read_b128 {v(KXR[j],4)}, {v(vL16)} offset:{KX_OFF + j*1024}")

    salu = [
        f"s_and_b32 {s(sT4)}, {s(sS)}, 3",
        f"s_lshl_b32 {s(sSlotM)}, {s(sT4)}, 13",
        f"s_add_u32 {s(sSlotM)}, {s(sSlotM)}, {WS_M:#x}",
        f"s_add_u32 {s(sGat)}, {s(sSlotM)}, {s(sW2k)}",
        f"s_xor_b32 {s(sRa2)}, {s(sSlotM)}, 0x4000",
        f"s_xor_b32 {s(sTag)}, {s(sTag)}, 1",
    ]

    def su(n):
        for _ in range(n):
            if salu:
                A(salu.pop(0))

    Lar = f"L_top_{tag}"
    Lspec = f"L_spec_{tag}"
    Lretry0 = f"L_retry0_{tag}"
    rt = opts.get('rtrace')

    def rstamp(k):
        if rt:
            A(f"s_memtime s[{16 + 2*k}:{17 + 2*k}]")

    def con_issue(R):
        A(f"buffer_load_dwordx4 {v(R,4)}, {v(vL16)}, {s(S_WS,4)}, {s(sGat)} offen sc1")
        A(f"buffer_load_dwordx4 {v(R+4,4)}, {v(vL16)}, {s(S_WS,4)}, {s(sGat)} offen offset:1024 sc1")

    def own(H, spec):
        lq.ops = []
        n = 0
        c0 = Y
        for m in 'qkv':
            for jj in range(2):
                for t in range(2):
                    n += 1
                    smf(m, jj, t, H + 4 * jj)
                    if spec and n == 1:
                        A(f"v_max3_u32 {v(c0)}, {v(H)}, {v(H+2)}, {v(H+4)}")
                    elif spec and n == 2:
                        A(f"v_max_u32 {v(c0)}, {v(c0)}, {v(H+6)}")
                    elif spec and n == 3:
                        A(f"v_cmp_eq_u32 vcc, -1, {v(c0)}")
                        A(f"s_add_u32 {s(sRet)}, {s(sRet)}, 1")
                        A(f"s_cbranch_vccnz {Lretry0}")
                    elif n == 4:
                        if FTR[0] == 3:
                            fstamp(A, 2)
                        A(f"s_waitcnt lgkmcnt(0)")
                        A(f"s_barrier")
                        if FTR[0] == 3:
                            fstamp(A, 3)
                    elif 5 <= n <= 10:
                        vdma(n)
                        j2 = n - 5 + 2
                        lq.issue(('A', j2), f"ds_read_b128 {v(AO + 4*(j2-2), 4)}, {v(vA[j2 >> 1])} offset:{(j2 & 1) * 1024}")
                    elif n == 11:
                        vdma(n)
                        rdR('k', 0, 0)
                    elif n == 12:
                        vdma(n)
                        rdR('k', 0, 1)
    if opts.get('lalign'):
        A.L.append(f".p2align {opts['lalign']}")
        for _ in range(opts.get('lpad', 0)):
            A("s_nop 0")
    A.label(Lar)
    A(f"s_barrier")
    if cp:
        lstamp(A, 8)
    rstamp(5)
    for k in range(1, 4):
        A(f"v_xor_b32 {v(vA[k])}, {k << 11:#x}, {v(vMw)}")
    A(f"s_mov_b32 {s(sRet)}, 0")

    def dma_pair(m0reg, soff):
        A(f"s_mov_b32 m0, {s(m0reg)}")
        A(f"s_nop 0")
        A(f"buffer_load_dwordx4 {v(vL16)}, {s(S_WS,4)}, {s(soff)} offen lds")
        A(f"buffer_load_dwordx4 {v(vL16)}, {s(S_WS,4)}, {s(soff)} offen offset:1024 lds")
    for _ in range(opts.get('tpre', 0)):
        A(f"s_sleep 1")
    if KP == 4:
        A(f"buffer_load_dwordx4 {v(X,4)}, {v(vL16)}, {s(S_WS,4)}, {s(sKV)} offen")
        A(f"buffer_load_dwordx4 {v(X+4,4)}, {v(vL16)}, {s(S_WS,4)}, {s(sKV)} offen offset:1024")
    if VP == 4:
        A(f"s_add_u32 {s(sT3)}, {s(sKV)}, 8192")
        A(f"buffer_load_dwordx4 {v(X+8,4)}, {v(vL16)}, {s(S_WS,4)}, {s(sT3)} offen")
        A(f"buffer_load_dwordx4 {v(X+12,4)}, {v(vL16)}, {s(S_WS,4)}, {s(sT3)} offen offset:1024")
    if KP == 1:
        dma_pair(sM0K, sKV)
        if M0TOP:
            A(f"s_mov_b32 m0, {s(sM0V)}")
    if VP == 1:
        A(f"s_add_u32 {s(sT3)}, {s(sKV)}, 8192")
        dma_pair(sM0V, sT3)
    if opts.get('rbpos', 0) == 0:
        for q in range(RBT):
            rdR('k', q >> 1, q & 1, True)
    for _ in range(opts.get('gdelay', 0)):
        A(f"s_sleep 1")
    con_issue(H0)
    for _ in range(opts.get('gspace', 1)):
        A(f"s_sleep 1")
    con_issue(H1)
    if G3:
        for _ in range(opts.get('gspace2', opts.get('gspace', 1))):
            A(f"s_sleep 1")
        con_issue(H2)
    if opts.get('rbpos', 0) == 1:
        for q in range(RBT):
            rdR('k', q >> 1, q & 1, True)
    if KP == 4 or VP == 4:
        assert not RBT and not G3
        A(f"s_waitcnt vmcnt(4)")
        if KP == 4:
            A(f"ds_write_b128 {v(vMw)}, {v(X,4)} offset:{KX_OFF - MEM_OFF}")
            A(f"ds_write_b128 {v(vMw)}, {v(X+4,4)} offset:{KX_OFF - MEM_OFF + 1024}")
        if VP == 4:
            A(f"ds_write_b128 {v(vMw)}, {v(X+8,4)} offset:{VX_OFF - MEM_OFF}")
            A(f"ds_write_b128 {v(vMw)}, {v(X+12,4)} offset:{VX_OFF - MEM_OFF + 1024}")
    A.label(Lspec)
    A(f"s_waitcnt vmcnt({4 if G3 else 2})")
    if rt:
        rstamp(6)
    A(f"ds_write_b128 {v(vMw)}, {v(H0,4)}")
    A(f"ds_write_b128 {v(vMw)}, {v(H0+4,4)} offset:1024")
    if cp:
        lstamp(A, 9)
        lstamp(A, 1)
    if rt:
        A("s_memtime s[30:31]")
    own(H0, True)
    A.label(Lcommon)
    if FTR[0] == 3:
        fstamp(A, 4)
    n = 12
    for jj in range(2, 8):
        for t in range(2):
            n += 1
            if t == 0:
                lq.wait(('A', jj))
            smf('q', jj, t, AO + 4 * (jj - 2))
            if n == 13 or n >= 19:
                vdma(n)
            if n == 13:
                rdR('k', 1, 0)
            elif n == 14:
                A(f"buffer_load_dword {v(vFlag)}, off, {s(S_WS,4)}, {s(sFo)} sc1")
                rdR('k', 1, 1)
            elif n == 15:
                if not opts.get('nopf'):
                    A(f"buffer_load_dword {v(vJunk)}, {v(vPf)}, {s(S_WS,4)}, {s(sPf)} offen")
                rdR('k', 2, 0)
            elif n == 16:
                A(f"s_add_u32 {s(sT3)}, {s(sPf)}, 4096")
                rdR('k', 2, 1)
            elif n == 17:
                if not opts.get('nopf'):
                    A(f"buffer_load_dword {v(vJunk)}, {v(vPf)}, {s(S_WS,4)}, {s(sT3)} offen")
                if G3:
                    A(f"s_waitcnt vmcnt({5 if VP == 0 and VAT <= 12 else 3})")
                rdR('k', 3, 0)
                su(1)
            elif n == 18:
                if not G3:
                    A(f"s_waitcnt vmcnt({5 if VP == 0 and VAT <= 12 else 3})")
                rdR('k', 3, 1)
                su(1)
            elif 19 <= n <= 22:
                rdKX((0, 4, 1, 5)[n - 19])
                su(1)
            else:
                su(3)
    if cp and not rp:
        lstamp(A, 2)

    def post(m, step):
        t, k = step // 3, step % 3
        T = AC[m] + 4 * t
        if k < 2:
            A(f"v_add_f32 {v(T + k)}, {v(T + k)}, {v(T + k + 2)}")
        else:
            d = {'q': CQ + t, 'k': CK + t, 'v': (vS0, vVM1)[t]}[m]
            A(f"v_cvt_pk_bf16_f32 {v(d)}, {v(T)}, {v(T + 1)}")
    for jj in range(2, 8):
        for t in range(2):
            n += 1
            smf('k', jj, t, AO + 4 * (jj - 2))
            vdma(n)
            if n == 31:
                lq.issue('wq', f"ds_write2st64_b32 {v(vQKw)}, {v(CQ)}, {v(CQ+1)} offset0:0 offset1:1")
            elif n == 33 and KP == 0:
                A(f"s_mov_b32 m0, {s(sM0K)}")
                A(f"s_add_u32 {s(sKn)}, {s(sKn)}, 0x80000")
            elif n == 35:
                if FTR[0] == 3:
                    fstamp(A, 6)
                lq.wait('wq')
                A(f"s_barrier")
                if FTR[0] == 3:
                    fstamp(A, 7)
            if 26 <= n <= 30:
                rdR('v', (n - 26) >> 1, (n - 26) & 1)
            elif n in (32, 33, 34):
                rdR('v', (n - 27) >> 1, (n - 27) & 1)
            if n in (31, 32):
                su(1)
            if n == opts.get('cfk', 36) and opts.get('cf'):
                A(f"s_cmp_eq_u32 {s(sS)}, 63")
                A(f"s_cselect_b32 {s(sKM)}, {OOB:#x}, {s(sKM)}")
            if 25 <= n <= 30:
                post('q', n - 25)
            elif n >= 33:
                A(f"v_mov_b64 {v(ACC + 2*(n - 33), 2)}, 0")
    assert not salu
    if cp and not rp:
        lstamp(A, 3)
    QR, KR = Y, Y + 16

    def trq(i):
        ks, hf = i >> 1, i & 1
        lq.issue(('q', ks), f"ds_read_b64_tr_b16 {v(QR+4*ks+2*hf,2)}, {v(vQKr)} offset:{QK_OFF + (32*ks+8*hf)*16}")

    def trk(i):
        ks, hf = i >> 1, i & 1
        lq.issue(('k', ks), f"ds_read_b64_tr_b16 {v(KR+4*ks+2*hf,2)}, {v(vKr)} offset:{KIMG[ks] + hf*256}")
    trq_at = {38: 0, 39: 1, 40: 2, 41: 3, 42: 4, 44: 5, 45: 6, 46: 7}
    for jj in range(2, 8):
        for t in range(2):
            n += 1
            smf('v', jj, t, AO + 4 * (jj - 2))
            vdma(n)
            if n in trq_at:
                trq(trq_at[n])
            if 39 <= n <= 42:
                rdKX((2, 6, 3, 7)[n - 39])
            if n == 43:
                lq.issue('wk', f"ds_write2st64_b32 {v(vKw)}, {v(CK)}, {v(CK+1)} offset0:0 offset1:2")
            elif n == 44 and not opts.get('xnokm'):
                A(f"buffer_store_dword {v(CK)}, {v(vQKw)}, {s(S_WS,4)}, {s(sKM)} offen sc1")
            elif n == 45 and not opts.get('xnokm'):
                A(f"buffer_store_dword {v(CK+1)}, {v(vQKw)}, {s(S_WS,4)}, {s(sKM)} offen offset:256 sc1")
            elif n == 47:
                if FTR[0] == 1:
                    fstamp(A, 3)
                lq.wait('wk')
                A(f"s_barrier")
                if FTR[0] == 1:
                    fstamp(A, 4)
                trk(0)
            elif n == 48:
                trk(1)
                if KP == 0:
                    A(f"buffer_load_dwordx4 {v(vL16)}, {s(S_WS,4)}, {s(sKn)} offen lds")
            if 37 <= n <= 42:
                post('k', n - 37)
            if n == 42 and FTR[0] == 1:
                fstamp(A, 2)
    if cp and not rp:
        lstamp(A, 4)
    T0, T1, TM = PA, PA + 4, PA + 8
    m, t_ = vT0, vT1
    wo_ops = [(cg, 0) for cg in range(4)] + [(cg, ks) for cg in range(4) for ks in range(1, 4)]
    bufs = [X + 16, X + 24, X, X + 8, Y, Y + 8, Y + 16, Y + 24]

    WOR = [a(224, 8), a(232, 8), a(240, 8), a(248, 8), v(224, 8), v(232, 8), v(240, 8), v(248, 8)]

    def rdW(i, half):
        o = (8 + i) * 2048 + 1024 * half
        lq.issue(('W', i), f"ds_read_b128 {v(bufs[i] + 4*half, 4)}, {v(vWo)} offset:{o}")
    for i in range(8):
        ks, t = i >> 1, i & 1
        if i in (0, 4):
            lq.wait(('q', ks + 1))
        T = (T0, T1)[t]
        c = "0" if ks == 0 else v(T, 4)
        A(f"v_mfma_f32_16x16x32_bf16 {v(T,4)}, {v(KXR[4*t+ks],4)}, {v(QR+4*ks,4)}, {c}")
        if i == 0 and KP == 0:
            A(f"buffer_load_dwordx4 {v(vL16)}, {s(S_WS,4)}, {s(sKn)} offen offset:1024 lds")
        if i <= 5:
            trk(i + 2)
            post('v', i)
        elif i == 6 and not opts.get('xnokm'):
            A(f"buffer_store_dword {v(vS0)}, {v(vQKw)}, {s(S_WS,4)}, {s(sKM)} offen offset:2048 sc1")
            A(f"buffer_store_dword {v(vVM1)}, {v(vQKw)}, {s(S_WS,4)}, {s(sKM)} offen offset:2304 sc1")
    if FTR[0] == 1:
        fstamp(A, 6)
    A(f"s_cmp_eq_u32 {s(sS)}, 63")
    A(f"s_cbranch_scc1 {Llast}")
    for ks in range(4):
        if ks in (0, 2):
            lq.wait(('k', ks + 1))
        cm = "0" if ks == 0 else v(TM, 4)
        A(f"v_mfma_f32_16x16x32_bf16 {v(TM,4)}, {v(KR+4*ks,4)}, {v(QR+4*ks,4)}, {cm}")
        rdW(ks >> 1, ks & 1)
        if ks == 1:
            A(f"v_max3_f32 {v(m)}, {v(T0)}, {v(T0+1)}, {v(T0+2)}")
        elif ks == 2:
            A(f"v_max3_f32 {v(t_)}, {v(T0+3)}, {v(T1)}, {v(T1+1)}")
        elif ks == 3:
            A(f"v_max3_f32 {v(m)}, {v(m)}, {v(T1+2)}, {v(T1+3)}")
    if FTR[0] == 1:
        fstamp(A, 7)
    ralate = 1

    def rearm(k, now=False):
        if now and k == 2:
            A(f"buffer_store_dwordx4 {v(vSEL,4)}, {v(vMst)}, {s(S_WS,4)}, {s(sRa2)} offen{st}")
    VX0 = Y + 16
    u0, u1 = TM + 2, TM + 3
    if VP == 0:
        v2 = VAT + opts.get('vsp', 1)
        young = (3 if VAT <= 12 else 0) + (v2 <= 44) + (v2 <= 45) + 2 + (2 if KP == 0 else 0)
        assert v2 <= 47
        A(f"s_waitcnt vmcnt({young})")
    lq.issue('vx', f"ds_read_b128 {v(VX0,4)}, {v(vMw)} offset:{VX_OFF - MEM_OFF}")
    lq.issue('vx', f"ds_read_b128 {v(VX0+4,4)}, {v(vMw)} offset:{VX_OFF - MEM_OFF + 1024}")
    rdW(2, 0)
    rdW(2, 1)
    A(f"v_mov_b64 {v(ACC+10,2)}, 0")
    A(f"v_max3_f32 {v(m)}, {v(m)}, {v(t_)}, {v(TM)}")
    A(f"v_max_f32 {v(u0)}, {v(m)}, {v(TM+1)}")
    A(f"v_max_f32 {v(u1)}, {v(m)}, {v(TM+1)}")
    rdW(3, 0)
    A(f"v_mov_b64 {v(ACC+8,2)}, 0")
    A(f"v_permlane16_swap_b32 {v(u0)}, {v(u1)}")
    A(f"v_max_f32 {v(m)}, {v(u0)}, {v(u1)}")
    A(f"v_max_f32 {v(t_)}, {v(u0)}, {v(u1)}")
    rdW(3, 1)
    A(f"s_nop 0")
    A(f"v_permlane32_swap_b32 {v(m)}, {v(t_)}")
    A(f"v_max_f32 {v(m)}, {v(m)}, {v(t_)}")
    A(f"v_mul_f32 {v(m)}, {s(sNC)}, {v(m)}")
    BX = ACC + 12
    xs = [T0, T0 + 1, T0 + 2, T0 + 3, T1, T1 + 1, T1 + 2, T1 + 3]
    ms = [TM, TM + 1]
    if opts.get('pk', 1):
        def pkf(r):
            A(f"v_pk_fma_f32 {v(r,2)}, {v(r,2)}, {s(sC,2)}, {v(m,2)} op_sel_hi:[1,0,0]")
        pkf(T0)
        pkf(T0 + 2)
        for j in range(8):
            A(f"v_exp_f32 {v(xs[j])}, {v(xs[j])}")
            if j == 1:
                pkf(T1)
            elif j == 3:
                pkf(T1 + 2)
            elif j == 5:
                pkf(TM)
            if j >= 2 and j % 2 == 0:
                q = (j - 2) // 2
                A(f"v_cvt_pk_bf16_f32 {v(BX+q)}, {v(xs[2*q])}, {v(xs[2*q+1])}")
    else:
        for r in xs[:2]:
            A(f"v_fma_f32 {v(r)}, {v(r)}, {s(sC)}, {v(m)}")
        for j in range(8):
            A(f"v_exp_f32 {v(xs[j])}, {v(xs[j])}")
            nx = (xs + ms)[j + 2]
            A(f"v_fma_f32 {v(nx)}, {v(nx)}, {s(sC)}, {v(m)}")
            if j >= 2 and j % 2 == 0:
                q = (j - 2) // 2
                A(f"v_cvt_pk_bf16_f32 {v(BX+q)}, {v(xs[2*q])}, {v(xs[2*q+1])}")
    A(f"v_exp_f32 {v(ms[0])}, {v(ms[0])}")
    A(f"v_cvt_pk_bf16_f32 {v(BX+3)}, {v(xs[6])}, {v(xs[7])}")
    A(f"v_exp_f32 {v(ms[1])}, {v(ms[1])}")
    if cp and not rp:
        lstamp(A, 5)
    O0, O1, LS, PKO = PA, PA + 4, PA + 12, PA + 8
    lq.wait('vx')
    A(f"v_mfma_f32_16x16x32_bf16 {v(LS,4)}, {v(vONE,4)}, {v(BX,4)}, 0")
    A(f"v_cvt_pk_bf16_f32 {v(vBM)}, {v(ms[0])}, {v(ms[1])}")
    A(f"v_mfma_f32_16x16x32_bf16 {v(O0,4)}, {v(VX0,4)}, {v(BX,4)}, 0")
    rdW(4, 0)
    WE = opts.get('wearly', 0)
    A(f"v_mfma_f32_16x16x32_bf16 {v(O1,4)}, {v(VX0+4,4)}, {v(BX,4)}, 0")
    if WE:
        rdW(4, 1)
    A(f"v_mfma_f32_16x16x32_bf16 {v(LS,4)}, {v(vONE,4)}, {v(vBM,4)}, {v(LS,4)}")
    if WE:
        rdW(5, 0)
    A(f"v_mfma_f32_16x16x32_bf16 {v(O0,4)}, {v(vS0,4)}, {v(vBM,4)}, {v(O0,4)}")
    if WE:
        rdW(5, 1)
    A(f"v_mov_b64 {v(ACC+12,2)}, 0")
    A(f"v_mfma_f32_16x16x32_bf16 {v(O1,4)}, {v(vVM1,4)}, {v(vBM,4)}, {v(O1,4)}")
    if WE:
        rdW(7, 0)
    else:
        rdW(4, 1)
    if FTR[0] == 2:
        fstamp(A, 2)
    A(f"v_rcp_f32 {v(m)}, {v(LS)}")
    if WE:
        rdW(7, 1)
    else:
        rdW(5, 0)
    A(f"v_mov_b64 {v(ACC+14,2)}, 0")
    if WE == 2:
        rdW(6, 0)
        rdW(6, 1)
    if opts.get('pk', 1):
        def pkm(r):
            A(f"v_pk_mul_f32 {v(r,2)}, {v(r,2)}, {v(m,2)} op_sel_hi:[1,0]")
        pkm(O0)
        pkm(O0 + 2)
        pkm(O1)
        A(f"v_cvt_pk_bf16_f32 {v(PKO)}, {v(O0)}, {v(O0+1)}")
        pkm(O1 + 2)
        A(f"v_cvt_pk_bf16_f32 {v(PKO+1)}, {v(O0+2)}, {v(O0+3)}")
    else:
        for r in range(4):
            A(f"v_mul_f32 {v(O0+r)}, {v(O0+r)}, {v(m)}")
        A(f"v_cvt_pk_bf16_f32 {v(PKO)}, {v(O0)}, {v(O0+1)}")
        A(f"v_cvt_pk_bf16_f32 {v(PKO+1)}, {v(O0+2)}, {v(O0+3)}")
        for r in range(4):
            A(f"v_mul_f32 {v(O1+r)}, {v(O1+r)}, {v(m)}")
    A(f"v_cvt_pk_bf16_f32 {v(PKO+2)}, {v(O1)}, {v(O1+1)}")
    A(f"v_cvt_pk_bf16_f32 {v(PKO+3)}, {v(O1+2)}, {v(O1+3)}")
    if FTR[0] == 2:
        fstamp(A, 3)
    lq.issue('wo_', f"ds_write_b128 {v(vOw)}, {v(PKO,4)} offset:0")
    AOr = [PKO, PA, PA + 4, PA + 12]
    vAo = [None, vT0, vT1, vS0]
    for k in range(1, 4):
        A(f"v_xor_b32 {v(vAo[k])}, {k << 9:#x}, {v(vOw)}")
    if cp and not rp:
        lstamp(A, 6)

    def pack(cg, k):
        A(f"v_cvt_pk_bf16_f32 {v(ACC+4*cg+k)}, {v(ACC+4*cg+2*k)}, {v(ACC+4*cg+2*k+1)}")

    def tagp(cg):
        A(f"v_and_or_b32 {v(ACC+4*cg)}, {v(ACC+4*cg)}, -2, {s(sTag)}")

    def pstore(cg):
        A(f"buffer_store_dwordx2 {v(ACC+4*cg,2)}, {v(vPst)}, {s(S_WS,4)}, {s(sPc[cg]) if cg else 0} offen{st}")
    for i, (cg, ks) in enumerate(wo_ops):
        if ks:
            lq.wait(('Ao', ks))
        if i >= 8:
            lq.wait(('W', i - 8))
        A(f"v_smfmac_f32_16x16x64_bf16 {v(ACC+4*cg,4)}, {v(AOr[ks],4)}, {WOR[i] if i < 8 else v(bufs[i - 8],8)}, {v(vIdxW)}")
        if i == opts.get('obar', 1):
            lq.wait('wo_')
            A(f"s_barrier")
            if FTR[0] == 2:
                fstamp(A, 5)
            for k in range(1, 4):
                lq.issue(('Ao', k), f"ds_read_b128 {v(AOr[k],4)}, {v(vAo[k])}")
        if i == 4 and FTR[0] == 2:
            fstamp(A, 6)
        if i == 9 and FTR[0] == 2:
            fstamp(A, 7)
        if WE == 0:
            if i == 2:
                rdW(5, 1)
                rdW(6, 0)
            elif i == 3:
                rdW(6, 1)
                rdW(7, 0)
            elif i == 4:
                rdW(7, 1)
        elif WE == 1:
            if i == 2:
                rdW(6, 0)
            elif i == 3:
                rdW(6, 1)
        pst = opts.get('pst', 1)
        if pst == 1:
            if i in (11, 14):
                pstore((i - 11) // 3)
            if i in (8, 11, 14):
                pack((i - 8) // 3, 0)
            elif i in (9, 12, 15):
                pack((i - 9) // 3, 1)
            elif i in (10, 13):
                tagp((i - 10) // 3)
        elif pst == 2:
            if i in (8, 11, 14):
                pack((i - 8) // 3, 0)
                pack((i - 8) // 3, 1)
            elif i in (9, 12, 15):
                tagp((i - 9) // 3)
            elif i in (10, 13):
                pstore((i - 10) // 3)
        elif pst == 3:
            if i in (8, 11, 14):
                pack((i - 8) // 3, 0)
            elif i in (9, 12, 15):
                pack((i - 9) // 3, 1)
                tagp((i - 9) // 3)
            elif i in (10, 13):
                pstore((i - 10) // 3)
    if pst == 1:
        tagp(2)
        pstore(2)
        A(f"s_nop 5")
    else:
        pstore(2)
        A(f"s_nop 6")
    pack(3, 0)
    pack(3, 1)
    tagp(3)
    pstore(3)
    if cp:
        lstamp(A, 7)
    Lnr = A.new_label("notred")

    def bookkeeping():
        A(f"s_add_u32 {s(sS)}, {s(sS)}, 1")
        A(f"s_add_u32 {s(sKM)}, {s(sKM)}, 0x20000")
        A(f"s_add_u32 {s(sKV)}, {s(sKV)}, 0x80000")
        A(f"s_add_u32 {s(sPf)}, {s(sPf)}, 0x80000")
        A(f"s_add_u32 {s(sJ4)}, {s(sJ4)}, 4")
        A(f"s_cmp_eq_u32 {s(sJ4)}, 20")
        A(f"s_cselect_b32 {s(sJ4)}, 0, {s(sJ4)}")
        A(f"s_addc_u32 {s(sCn)}, {s(sCn)}, 0")

    def bookkeeping2(w0=False):
        A(f"s_add_u32 {s(sFo)}, {s(sFb)}, {s(sJ4)}")
        A(f"s_cmp_lt_u32 {s(sS)}, 62")
        A(f"s_cselect_b32 {s(sNeed)}, {s(sCn)}, 0")
        if opts.get('cf') and not w0:
            A(f"s_cmp_eq_u32 {s(sS)}, 62")
            A(f"s_cselect_b32 {s(sFo)}, {WS_OF + 63 * 128:#x}, {s(sFo)}")
            A(f"s_cselect_b32 {s(sNeed)}, 32, {s(sNeed)}")
            bookkeeping3()

    def bookkeeping3():
        A(f"s_cmp_eq_u32 {s(sS)}, 63")
        A(f"s_cselect_b32 {s(sPf)}, {OOB:#x}, {s(sPf)}")
        A(f"s_cselect_b32 {s(sFo)}, {OOB:#x}, {s(sFo)}")

    def zero_acc():
        for i in range(8):
            A(f"v_mov_b64 {v(ACC+2*i,2)}, 0")
        for i in range(4):
            A(f"v_mov_b64 {v(AK+2*i,2)}, 0")

    def w1_dma():
        for _ in range(opts.get('w1d', 0)):
            A(f"s_sleep 1")
        if KP == 2:
            A(f"s_add_u32 {s(sT3)}, {s(sKV)}, 0x80000")
            dma_pair(sM0K, sT3)
            if M0TOP:
                A(f"s_mov_b32 m0, {s(sM0V)}")
        if VP == 2:
            A(f"s_add_u32 {s(sT3)}, {s(sKV)}, {0x80000 + 8192:#x}")
            dma_pair(sM0V, sT3)
    nw1 = 2 * ((KP == 2) + (VP == 2))
    if nw1 and opts.get('w1pre'):
        w1_dma()
    if opts.get('rbar', 1):
        A(f"s_barrier")
    if nw1 and not opts.get('w1pre'):
        w1_dma()
    A(f"s_cmp_lg_u32 {s(sWAVE)}, 0")
    A(f"s_cbranch_scc1 {Lnr}")
    Lred = A.new_label("red")
    Lredok = A.new_label("redok")
    RA = PA
    two = opts.get('rtwo', 0)

    if rt:
        A(f"s_memtime s[62:63]")
        A(f"s_lshl_b32 {s(sT0)}, {s(sH)}, 6")
        A(f"s_add_u32 {s(sT0)}, {s(sT0)}, {s(sS)}")
        A(f"s_lshl_b32 {s(sT0)}, {s(sT0)}, 6")
        A(f"s_add_u32 {s(sT0)}, {s(sT0)}, {WS_T + 0x10000:#x}")
        A(f"s_waitcnt lgkmcnt(0)")
        A(f"v_mov_b32 {v(vT0)}, s16")
        for k in range(1, 8):
            A(f"v_writelane_b32 {v(vT0)}, s{16 + 2*k}, {k}")
        A(f"v_writelane_b32 {v(vT0)}, s{sCP0}, 8")
        A(f"v_writelane_b32 {v(vT0)}, s{sRet}, 9")
        A(f"v_lshrrev_b32 {v(vT1)}, 2, {v(vL16)}")
        A(f"s_mov_b64 exec, 0x3ff")
        A(f"buffer_store_dword {v(vT0)}, {v(vT1)}, {s(S_WS,4)}, {s(sT0)} offen")
        A(f"s_mov_b64 exec, -1")
        A(f"s_mov_b32 s16, s62")
        A(f"s_mov_b32 {s(sCP0)}, 0")
    zero_acc()
    A(f"v_xor_b32 {v(vTagE)}, 1, {v(vTagE)}")
    bookkeeping()
    bookkeeping2(True)
    A(f"s_mov_b32 {s(sRet)}, 0")
    RS = [[X + 4 * i for i in range(8)], [Y + 4 * i for i in range(6)] + [PA + 8, PA + 12]]
    mode = opts.get('rmode', 1)

    def ld(R, i):
        A(f"buffer_load_dwordx4 {v(R[i],4)}, {v(vRed)}, {s(S_WS,4)}, {0 if i < 4 else s(sSlotP4)} offen offset:{(i%4)*1024} sc1")

    def chk(R, other, cnt, first=False):
        ys = [vT0, vT1, vS0, vT1, vS0, vT1, vS0, vT1]
        if rt:
            A(f"s_add_u32 {s(sCP0)}, {s(sCP0)}, 1")
        for i in range(8):
            A(f"s_waitcnt vmcnt({cnt(i)})")
            if first and i == 0:
                rstamp(2)
            if first and i == 7:
                rstamp(3)
            c = "0" if i == 0 else v(RA, 4)
            A(f"v_mfma_f32_16x16x32_bf16 {v(RA,4)}, {v(R[i],4)}, {v(vSEL,4)}, {c}")
            if other is not None:
                ld(other, i)
            A(f"v_bitop3_b32 {v(ys[i])}, {v(R[i])}, {v(R[i]+2)}, {v(vTagE)} bitop3:0x7e")
            if i in (2, 4, 6):
                A(f"v_or3_b32 {v(vT0)}, {v(vT0)}, {v(vT1)}, {v(vS0)}")
        A(f"v_bitop3_b32 {v(vT0)}, {v(vT0)}, {v(vT1)}, 1 bitop3:0xa8")
        A(f"v_cmp_ne_u32 vcc, 0, {v(vT0)}")
    for _ in range(opts.get('rdelay', 0)):
        A(f"s_sleep 1")
    rstamp(1)
    for i in range(8):
        ld(RS[0], i)
    if mode == 3:
        red3(A, opts, RS[0], RA, ld, st, Lar, rstamp, RBT)
        return_after_red = True
    else:
        return_after_red = False
    if not return_after_red:
        Lrfail = A.new_label("rfail")
        Lredok2 = A.new_label("redok2") if RBT else Lredok
        if mode == 2:
            for _ in range(opts.get('rspace', 1)):
                A(f"s_sleep 1")
            for i in range(8):
                ld(RS[1], i)
            chk(RS[0], None, lambda i: 15 - i, True)
        elif mode == 1:
            chk(RS[0], RS[1], lambda i: 7, True)
        else:
            chk(RS[0], None, lambda i: 7 - i, True)
        A(f"s_cbranch_vccnz {Lrfail}")
        A.label(Lredok)
        rstamp(4)
        A(f"s_nop {3 if mode == 1 else 4}")
        A(f"v_cvt_pk_bf16_f32 {v(RA+4)}, {v(RA)}, {v(RA+1)}")
        A(f"v_cvt_pk_bf16_f32 {v(RA+5)}, {v(RA+2)}, {v(RA+3)}")
        A(f"buffer_store_dwordx2 {v(RA+4,2)}, {v(vMst)}, {s(S_WS,4)}, {s(sSlotM)} offen{st}")
        if opts.get('cf'):
            A(f"s_cmp_eq_u32 {s(sS)}, 63")
            A(f"s_cbranch_scc1 L_cfq0_{tag}")
        A(f"s_branch {Lar}")
        A.label(Lrfail)
        if opts.get('hist'):
            A(f"s_add_u32 {s(sCP0)}, {s(sCP0)}, 1")
        if mode == 0:
            for i in range(8):
                ld(RS[1], i)
        if mode == 2 and opts.get('rlazy'):
            chk(RS[1], None, lambda i: 7 - i)
            A(f"s_cbranch_vccz {Lredok}")
            if opts.get('hist'):
                A(f"s_add_u32 {s(sCP0)}, {s(sCP0)}, 0x1000")
            for i in range(8):
                ld(RS[0], i)
            for _ in range(opts.get('rspace', 1)):
                A(f"s_sleep 1")
            for i in range(8):
                ld(RS[1], i)
            chk(RS[0], None, lambda i: 15 - i)
            A(f"s_cbranch_vccz {Lredok}")
        A.label(Lred)
        chk(RS[1], RS[0], lambda i: 7)
        A(f"s_cbranch_vccz {Lredok2}")
        if opts.get('hist'):
            A(f"s_add_u32 {s(sCP0)}, {s(sCP0)}, {0x1000000 if opts.get('rlazy') else 0x1000}")
        chk(RS[0], RS[1], lambda i: 7)
        A(f"s_cbranch_vccz {Lredok2}")
        if opts.get('hist'):
            A(f"s_add_u32 {s(sCP0)}, {s(sCP0)}, 0x1000000")
        A(f"s_add_u32 {s(sRet)}, {s(sRet)}, 1")
        A(f"s_cmp_lg_u32 {s(sDEAD)}, 0")
        A(f"s_cbranch_scc1 {Lredok2}")
        A(f"s_cmp_lt_u32 {s(sRet)}, {RED_LIMIT}")
        A(f"s_cbranch_scc1 {Lred}")
        A(f"s_mov_b32 {s(sDEAD)}, 1")
        if RBT:
            A.label(Lredok2)
            A(f"s_waitcnt vmcnt(0)")
        A(f"s_branch {Lredok}")
    A.label(Lnr)
    Lfok = A.new_label("fok")
    Lfsp = A.new_label("fsp")
    A(f"s_mov_b32 {s(sRet)}, 0")
    A(f"s_waitcnt vmcnt({10 + (2 if KP == 0 else 0) + nw1 + (2 if VP == 0 and VAT > 12 else 0)})")
    A(f"v_readfirstlane_b32 {s(sT0)}, {v(vFlag)}")
    zero_acc()
    A(f"s_cmp_ge_u32 {s(sT0)}, {s(sNeed)}")
    A(f"s_cbranch_scc1 {Lfok}")
    A(f"s_cmp_lg_u32 {s(sDEAD)}, 0")
    A(f"s_cbranch_scc1 {Lfok}")
    A(f"s_mov_b32 {s(sRet)}, 0")
    A.label(Lfsp)
    A(f"buffer_load_dword {v(vFlag)}, off, {s(S_WS,4)}, {s(sFo)} sc1")
    A(f"s_waitcnt vmcnt(0)")
    A(f"v_readfirstlane_b32 {s(sT0)}, {v(vFlag)}")
    A(f"s_cmp_ge_u32 {s(sT0)}, {s(sNeed)}")
    A(f"s_cbranch_scc1 {Lfok}")
    A(f"s_sleep 1")
    A(f"s_add_u32 {s(sRet)}, {s(sRet)}, 1")
    A(f"s_cmp_lt_u32 {s(sRet)}, {SPIN_LIMIT}")
    A(f"s_cbranch_scc1 {Lfsp}")
    A(f"s_mov_b32 {s(sDEAD)}, 1")
    A.label(Lfok)
    if opts.get('cf'):
        A(f"s_sub_u32 {s(sT0)}, {s(sS)}, 57")
        A(f"s_cmp_lt_u32 {s(sT0)}, 6")
        A(f"s_cbranch_scc1 L_cfa_{tag}")
        A.label(f"L_cfar_{tag}")
    if TRACE[0]:
        Lsl = A.new_label("tr")
        A(f"s_cmp_lg_u32 {s(sWAVE)}, {opts.get('tw', 1)}")
        A(f"s_cbranch_scc1 {Lsl}")
        A(f"s_lshl_b32 {s(sT0)}, {s(sH)}, 6")
        A(f"s_add_u32 {s(sT0)}, {s(sT0)}, {s(sS)}")
        A(f"s_lshl_b32 {s(sT0)}, {s(sT0)}, 5")
        A(f"s_add_u32 {s(sT0)}, {s(sT0)}, {WS_T + 0x10000:#x}")
        A(f"s_waitcnt lgkmcnt(0)")
        A(f"v_mov_b32 {v(vT0)}, s16")
        for k in range(1, 8):
            A(f"v_writelane_b32 {v(vT0)}, s{16 + 2*k}, {k}")
        A(f"v_lshrrev_b32 {v(vT1)}, 2, {v(vL16)}")
        A(f"s_mov_b64 exec, 0xff")
        A(f"buffer_store_dword {v(vT0)}, {v(vT1)}, {s(S_WS,4)}, {s(sT0)} offen")
        A(f"s_mov_b64 exec, -1")
        A.label(Lsl)
    if opts.get('steplog'):
        Lsl = A.new_label("sl")
        A(f"s_cmp_lg_u32 {s(sWAVE)}, 1")
        A(f"s_cbranch_scc1 {Lsl}")
        A(f"s_memrealtime s[62:63]")
        A(f"s_memtime s[16:17]")
        A(f"s_lshl_b32 {s(sT0)}, {s(sH)}, 6")
        A(f"s_add_u32 {s(sT0)}, {s(sT0)}, {s(sS)}")
        A(f"s_lshl_b32 {s(sT0)}, {s(sT0)}, 3")
        A(f"s_add_u32 {s(sT0)}, {s(sT0)}, {WS_T + (0x30000 if opts.get('prof') else 0x8000):#x}")
        A(f"s_waitcnt lgkmcnt(0)")
        A(f"v_mov_b32 {v(vT0)}, s62")
        A(f"v_mov_b32 {v(vT1)}, s16")
        A(f"s_mov_b64 exec, 1")
        A(f"buffer_store_dwordx2 {v(vT0,2)}, off, {s(S_WS,4)}, {s(sT0)}")
        A(f"s_mov_b64 exec, -1")
        A.label(Lsl)
    bookkeeping()
    bookkeeping2()
    rearm(2, True)
    A(f"s_branch {Lar}")
    A.label(Lretry0)
    if opts.get('hist'):
        A(f"s_add_u32 {s(sCP1)}, {s(sCP1)}, 1")
    GM = opts.get('gm', 0)

    def re_issue(R):
        if GM & 1:
            A(f"s_mov_b64 exec, vcc")
        con_issue(R)
        if GM & 1:
            A(f"s_mov_b64 exec, -1")
    if GM:
        re_issue(H0)
        A(f"s_nop {3 if GM & 1 else 5}")
    else:
        A(f"s_nop 7")
    for i in range(4):
        A(f"v_mov_b64 {v(AQ+2*i,2)}, 0")
    if not GM:
        con_issue(H0)
    A(f"s_waitcnt vmcnt({4 if G3 else 2})")
    A(f"ds_write_b128 {v(vMw)}, {v(H1,4)}")
    A(f"v_max3_u32 {v(Y)}, {v(H1)}, {v(H1+2)}, {v(H1+4)}")
    A(f"ds_write_b128 {v(vMw)}, {v(H1+4,4)} offset:1024")
    A(f"v_max_u32 {v(Y)}, {v(Y)}, {v(H1+6)}")
    A(f"v_cmp_eq_u32 vcc, -1, {v(Y)}")
    A(f"s_add_u32 {s(sRet)}, {s(sRet)}, 1")
    A(f"s_cbranch_vccz {Lown[1]}")
    if opts.get('hist'):
        A(f"s_add_u32 {s(sCP1)}, {s(sCP1)}, 0x10000")
    re_issue(H1)
    if G3:
        Lown2 = f"L_own2_{tag}"
        A(f"s_waitcnt vmcnt(4)")
        A(f"ds_write_b128 {v(vMw)}, {v(H2,4)}")
        A(f"v_max3_u32 {v(Y)}, {v(H2)}, {v(H2+2)}, {v(H2+4)}")
        A(f"ds_write_b128 {v(vMw)}, {v(H2+4,4)} offset:1024")
        A(f"v_max_u32 {v(Y)}, {v(Y)}, {v(H2+6)}")
        A(f"v_cmp_eq_u32 vcc, -1, {v(Y)}")
        A(f"s_add_u32 {s(sRet)}, {s(sRet)}, 1")
        A(f"s_cbranch_vccz {Lown2}")
        con_issue(H2)
    A(f"s_cmp_lg_u32 {s(sDEAD)}, 0")
    A(f"s_cbranch_scc1 {Lown[1]}")
    A(f"s_cmp_lt_u32 {s(sRet)}, {RED_LIMIT}")
    A(f"s_cbranch_scc1 {Lspec}")
    A(f"s_mov_b32 {s(sDEAD)}, 1")
    A.label(Lown[1])
    own(H1, False)
    A(f"s_branch {Lcommon}")
    if G3:
        A.label(Lown2)
        own(H2, False)
        A(f"s_branch {Lcommon}")
    icf = len(A.L)
    if opts.get('cf'):
        cf_side(A, fast, opts, tag, Lar)
    A.label(Llast)
    if opts.get('tprof') in (1, 2):
        stamp(A, 4)
    if opts.get('cf'):
        cf_tail(A, fast, opts)
        if fast and opts.get('walk'):
            from isz import add_stubs
            add_stubs(A, icf, "cf", "L_walk_cf", "L_walk_ret", opts.get('wstep', 64))
    A(f"s_waitcnt vmcnt(0) lgkmcnt(0)")
    if opts.get('hist'):
        A(f"s_lshl_b32 {s(sT0)}, {s(sH)}, 2")
        A(f"s_add_u32 {s(sT0)}, {s(sT0)}, {s(sWAVE)}")
        A(f"s_lshl_b32 {s(sT0)}, {s(sT0)}, 3")
        A(f"s_add_u32 {s(sT0)}, {s(sT0)}, {WS_T + 0x40000:#x}")
        A(f"v_mov_b32 {v(vT0)}, {s(sCP0)}")
        A(f"v_mov_b32 {v(vT1)}, {s(sCP1)}")
        A(f"s_mov_b64 exec, 1")
        A(f"buffer_store_dwordx2 {v(vT0,2)}, off, {s(S_WS,4)}, {s(sT0)}")
        A(f"s_mov_b64 exec, -1")
        A(f"s_waitcnt vmcnt(0)")
    if fast and opts.get('cwb'):
        Lwb = A.new_label("cwb")
        A(f"s_cmp_lg_u32 {s(sWAVE)}, 0")
        A(f"s_cbranch_scc1 {Lwb}")
        A(f"buffer_wbl2 sc1")
        A(f"s_waitcnt vmcnt(0)")
        A.label(Lwb)
    if cp and not TRACE[0]:
        for i in range(1, 10):
            A(f"s_mov_b32 s{92+i}, s{16+2*(i-1) if i < 9 else 62}")
        A(f"s_lshl_b32 {s(sCP1)}, {s(sCP1)}, 16")
        A(f"s_or_b32 s92, {s(sCP0)}, {s(sCP1)}")
        A("s_branch L_flush")
    A(f"s_branch L_role_end")


def cf_qload(A):
    A(f"s_lshl_b32 {s(sT0)}, {s(sH)}, 13")
    A(f"s_lshr_b32 {s(sT1)}, {s(sWAVE)}, 1")
    A(f"s_lshl_b32 {s(sT1)}, {s(sT1)}, 12")
    A(f"s_add_u32 {s(sT0)}, {s(sT0)}, {s(sT1)}")
    A(f"s_and_b32 {s(sT1)}, {s(sWAVE)}, 1")
    A(f"s_lshl_b32 {s(sT1)}, {s(sT1)}, 7")
    A(f"s_add_u32 {s(sT0)}, {s(sT0)}, {s(sT1)}")
    A(f"s_add_u32 {s(sT0)}, {s(sT0)}, {WS_QX + 63 * 32 * 8192:#x}")
    A(f"v_and_b32 {v(vT0)}, 0x370, {v(vL16)}")
    for ks in range(4):
        A(f"buffer_load_dwordx4 {a(4*ks,4)}, {v(vT0)}, {s(S_WS,4)}, {s(sT0)} offen offset:{ks*1024}")


def cf_side(A, fast, opts, tag, Lar):
    A.label(f"L_cfa_{tag}")
    Lq = A.new_label("cfq")
    A(f"s_cmp_eq_u32 {s(sS)}, 62")
    A(f"s_cbranch_scc1 {Lq}")
    if fast and opts.get('cfpf', 1):
        A(f"s_add_u32 {s(sT0)}, {s(sS)}, 3")
        A(f"s_and_b32 {s(sT0)}, {s(sT0)}, 3")
        A(f"s_lshl_b32 {s(sT0)}, {s(sT0)}, 18")
        A(f"s_add_u32 {s(sT0)}, {s(sT0)}, {WS_PF - 8192 - 0x80000:#x}")
        A(f"s_cmp_eq_u32 {s(sS)}, 61")
        A(f"s_cselect_b32 {s(sT0)}, {WS_QX + 63 * 32 * 8192 - 8192 - 0x80000:#x}, {s(sT0)}")
        A(f"s_lshl_b32 {s(sT1)}, {s(sH)}, 13")
        A(f"s_sub_u32 {s(sT0)}, {s(sT0)}, {s(sT1)}")
        A(f"s_cmp_eq_u32 {s(sWAVE)}, 1")
        A(f"s_cselect_b32 {s(sPf)}, {s(sT0)}, {s(sPf)}")
    A(f"s_branch L_cfar_{tag}")
    A.label(Lq)
    cf_qload(A)
    A(f"s_branch L_cfar_{tag}")
    A.label(f"L_cfq0_{tag}")
    cf_qload(A)
    A(f"s_branch {Lar}")


def cf_tail(A, fast, opts):
    st = "" if fast else " sc1"
    nst = [0]

    def cst():
        if opts.get('tprof') == 3:
            A(f"s_memtime s[{64 + 2*nst[0]}:{65 + 2*nst[0]}]")
            nst[0] += 1
    cst()
    KR = Y + 16
    KXR = {0: X + 16, 4: X + 20, 1: X + 24, 5: X + 28, 2: X, 6: X + 4, 3: X + 8, 7: X + 12}
    T0, T1, TM = PA, PA + 4, PA + 8
    m, t_ = vT0, vT1
    VMX, OA, LS, BX, SEL, PK = 64, 192, ACC + 8, ACC + 12, ACC + 4, PA
    WST, VXF = 96, 160
    WA = 128
    RF = 192
    sMask, sOut = 12, 28
    u0, u1, u2, u3 = ACC, ACC + 1, ACC + 2, ACC + 3
    lq = Q(A, "lgkmcnt", 15)
    A(f"s_lshl_b32 {s(sT0)}, {s(sWAVE)}, 9")
    A(f"v_lshrrev_b32 {v(u1)}, 2, {v(vL16)}")
    A(f"v_add_u32 {v(u0)}, {s(sT0)}, {v(u1)}")
    A(f"ds_write_b32 {v(u0)}, {v(vS0)} offset:{O_OFF}")
    A(f"ds_write_b32 {v(u0)}, {v(vVM1)} offset:{O_OFF + 256}")
    A(f"v_bfe_u32 {v(u2)}, {v(vL16)}, 4, 3")
    A(f"v_lshrrev_b32 {v(u3)}, 6, {v(vL16)}")
    A(f"v_and_b32 {v(u3)}, 12, {v(u3)}")
    A(f"v_sub_u32 {v(u2)}, {v(u2)}, {v(u3)}")
    A(f"s_lshl_b32 {s(sT0)}, {s(sWAVE)}, 3")
    A(f"v_add_u32 {v(u2)}, {s(sT0)}, {v(u2)}")
    A(f"s_mov_b32 {s(sOut+2)}, {2048*1024:#x}")
    A(f"s_mov_b32 {s(sOut+3)}, 0x00020000")
    cst()
    A(f"s_waitcnt vmcnt(4) lgkmcnt(0)")
    cst()
    A(f"s_barrier")
    fill = [f"v_cmp_le_i32 {s(sMask + 2*(4*t+r), 2)}, {16*t+r}, {v(u2)}" for t in range(2) for r in range(4)]
    fill += [f"v_mov_b32 {v(VMX + 2*j + 1)}, 0" for j in range(8)]
    fill += [f"v_mov_b64 {v(WA+2*i,2)}, 0" for i in range(32)]

    def fl(n):
        for _ in range(n):
            if fill:
                A(fill.pop(0))
    rd = [('vm', f"ds_read_b32 {v(VMX + 2*j)}, {v(u1)} offset:{O_OFF + j*256}") for j in range(8)]
    rd += [('vx', f"ds_read_b128 {a(VXF + 4*j, 4)}, {v(vL16)} offset:{VX_OFF + j*1024}") for j in range(8)]
    rw = [('w', f"ds_read_b128 {a(WST + 8*i + 4*hf, 4)}, {v(vWo)} offset:{(8 + i) * 2048 + 1024 * hf}") for i in range(8) for hf in range(2)]
    for ks in range(4):
        for t in range(2):
            T = (T0, T1)[t]
            c = "0" if ks == 0 else v(T, 4)
            A(f"v_mfma_f32_16x16x32_bf16 {v(T,4)}, {v(KXR[4*t+ks],4)}, {a(4*ks,4)}, {c}")
            lq.issue(*rd.pop(0))
            fl(1)
    for ks in range(4):
        cm = "0" if ks == 0 else v(TM, 4)
        A(f"v_mfma_f32_16x16x32_bf16 {v(TM,4)}, {v(KR+4*ks,4)}, {a(4*ks,4)}, {cm}")
        if ks == 0:
            lq.wait('vm')
        lq.issue(*rd.pop(0))
        lq.issue(*rd.pop(0))
        fl(2)
    A(f"v_mov_b32 {v(u0)}, 0xff800000")
    for t in range(2):
        for r in range(4):
            A(f"v_cndmask_b32 {v(PA+4*t+r)}, {v(u0)}, {v(PA+4*t+r)}, {s(sMask+2*(4*t+r),2)}")
    A(f"v_max3_f32 {v(m)}, {v(T0)}, {v(T0+1)}, {v(T0+2)}")
    A(f"v_max3_f32 {v(t_)}, {v(T0+3)}, {v(T1)}, {v(T1+1)}")
    A(f"v_max3_f32 {v(m)}, {v(m)}, {v(T1+2)}, {v(T1+3)}")
    A(f"v_max3_f32 {v(m)}, {v(m)}, {v(t_)}, {v(TM)}")
    A(f"v_max_f32 {v(u0)}, {v(m)}, {v(TM+1)}")
    A(f"v_max_f32 {v(u3)}, {v(m)}, {v(TM+1)}")
    fl(2)
    A(f"v_permlane16_swap_b32 {v(u0)}, {v(u3)}")
    A(f"v_max_f32 {v(m)}, {v(u0)}, {v(u3)}")
    A(f"v_max_f32 {v(t_)}, {v(u0)}, {v(u3)}")
    fl(2)
    A(f"v_permlane32_swap_b32 {v(m)}, {v(t_)}")
    A(f"v_max_f32 {v(m)}, {v(m)}, {v(t_)}")
    A(f"v_mul_f32 {v(m)}, {s(sNC)}, {v(m)}")
    xs = [T0 + i for i in range(8)] + [TM, TM + 1]
    lq.wait('vx')
    for r in range(0, 10, 2):
        A(f"v_pk_fma_f32 {v(xs[r],2)}, {v(xs[r],2)}, {s(sC,2)}, {v(m,2)} op_sel_hi:[1,0,0]")
        lq.issue(*rw.pop(0))
    for k, r in enumerate(xs):
        A(f"v_exp_f32 {v(r)}, {v(r)}")
        if k >= 2 and k % 2 == 0:
            q = (k - 2) // 2
            A(f"v_cvt_pk_bf16_f32 {v(BX+q)}, {v(xs[2*q])}, {v(xs[2*q+1])}")
        if k < 8:
            lq.issue(*rw.pop(0))
    cst()
    A(f"v_mfma_f32_16x16x32_bf16 {v(LS,4)}, {v(vONE,4)}, {v(BX,4)}, 0")
    A(f"v_cvt_pk_bf16_f32 {v(vBM)}, {v(TM)}, {v(TM+1)}")
    for j in range(8):
        A(f"v_mfma_f32_16x16x32_bf16 {v(OA+4*j,4)}, {a(VXF+4*j,4)}, {v(BX,4)}, 0")
        if j == 0:
            A(f"v_and_b32 {v(u0)}, 0x1ff, {v(vOw)}")
        elif j == 1:
            A(f"v_mfma_f32_16x16x32_bf16 {v(LS,4)}, {v(vONE,4)}, {v(vBM,4)}, {v(LS,4)}")
            A(f"s_lshl_b32 {s(sT0)}, {s(sWAVE)}, 11")
            A(f"v_add_u32 {v(u0)}, {s(sT0)}, {v(u0)}")
        elif j == 5:
            A(f"v_rcp_f32 {v(m)}, {v(LS)}")
        else:
            fl(1)
        if rw:
            lq.issue(*rw.pop(0))
    assert not rw

    def norm(j, k):
        if k < 2:
            A(f"v_pk_mul_f32 {v(OA+4*j+2*k,2)}, {v(OA+4*j+2*k,2)}, {v(m,2)} op_sel_hi:[1,0]")
        else:
            A(f"v_cvt_pk_bf16_f32 {v(PK+2*j+k-2)}, {v(OA+4*j+2*(k-2))}, {v(OA+4*j+2*(k-2)+1)}")
    todo = []
    for j in range(8):
        A(f"v_mfma_f32_16x16x32_bf16 {v(OA+4*j,4)}, {v(VMX+2*j,4)}, {v(vBM,4)}, {v(OA+4*j,4)}")
        if j >= 3:
            todo += [(j - 3, k) for k in range(4)]
        for _ in range(2):
            if todo:
                norm(*todo.pop(0))
            else:
                fl(1)
    todo += [(j, k) for j in range(5, 8) for k in range(4)]
    wrote = 0
    for q, (j, k) in enumerate(todo):
        if j == 7 and k == 0:
            fl(2)
        norm(j, k)
        if k == 3 and j % 2 == 1:
            while wrote <= j // 2:
                lq.issue('ow', f"ds_write_b128 {v(u0)}, {v(PK+4*wrote,4)} offset:{MEM_OFF + wrote*512}")
                wrote += 1
    assert wrote == 4
    vAo = [vOw, u2, u3, u1]
    for k in range(1, 4):
        A(f"v_xor_b32 {v(vAo[k])}, {k << 9:#x}, {v(vOw)}")
    fl(99)
    lq.wait_all()
    A(f"s_barrier")
    cst()
    wo_idx = [(cg, 0) for cg in range(4)] + [(cg, ks) for cg in range(4) for ks in range(1, 4)]
    WOR = [a(224, 8), a(232, 8), a(240, 8), a(248, 8), v(224, 8), v(232, 8), v(240, 8), v(248, 8)]
    order = [(cg, ks) for ks in range(4) for cg in range(4)]

    def rdA(gam, ks):
        lq.issue(('A', gam, ks), f"ds_read_b128 {v(32 + 16*gam + 4*ks, 4)}, {v(vAo[ks])} offset:{MEM_OFF - O_OFF + gam*2048}")
    for gam in range(2):
        for ks in range(4):
            rdA(gam, ks)
    soff = [sT0, sT1, sT2, sT3]
    vq = Q(A, "vmcnt", 63)

    def post(gam, i):
        cg, k = i // 4, i % 4
        R = WA + 16 * gam + 4 * cg
        if k == 0:
            A(f"s_mov_b32 {s(soff[cg])}, {WS_PF + gam * 0x40000 + cg * 16384:#x}")
            A(f"v_cvt_pk_bf16_f32 {v(R)}, {v(R)}, {v(R+1)}")
        elif k == 1:
            A(f"v_cvt_pk_bf16_f32 {v(R+1)}, {v(R+2)}, {v(R+3)}")
        elif k == 2:
            A(f"v_or_b32 {v(R)}, 1, {v(R)}")
        else:
            vq.issue('p', f"buffer_store_dwordx2 {v(R,2)}, {v(vPst)}, {s(S_WS,4)}, {s(soff[cg])} offen{st}")
    sPo, sPo4, sOo = sRa2, sCn, sNeed
    f0 = [f"v_bfe_u32 {v(t_)}, {v(vL16)}, 4, 4",
          f"v_and_b32 {v(m)}, 1, {v(t_)}",
          f"v_lshlrev_b32 {v(m)}, 4, {v(m)}",
          f"v_lshlrev_b32 {v(m)}, {v(m)}, {v(SEL)}",
          f"v_lshrrev_b32 {v(t_)}, 1, {v(t_)}"]
    for i in range(4):
        f0 += [f"v_cmp_eq_u32 vcc, {i}, {v(t_)}", f"v_cndmask_b32 {v(SEL+i)}, 0, {v(m)}, vcc"]
    A(f"v_mov_b32 {v(SEL)}, 0x3f80")
    f1 = [f"v_and_b32 {v(LS)}, 0x70, {v(vL16)}",
          f"v_lshrrev_b32 {v(LS+1)}, 2, {v(LS)}",
          f"v_lshlrev_b32 {v(LS)}, 7, {v(LS)}",
          f"v_lshrrev_b32 {v(LS+2)}, 8, {v(vL16)}",
          f"v_lshlrev_b32 {v(LS+2)}, 4, {v(LS+2)}",
          f"v_add_u32 {v(LS)}, {v(LS)}, {v(LS+2)}"]
    RS = [RF + 4 * i for i in range(8)]

    def ld(i):
        vq.issue(('r', i), f"buffer_load_dwordx4 {v(RS[i],4)}, {v(vRed)}, {s(S_WS,4)}, {s(sPo if i < 4 else sPo4)} offen offset:{(i%4)*1024} sc1")

    def group(gam, polls=False):
        for i, (cg, ks) in enumerate(order):
            lq.wait(('A', gam, ks))
            io = wo_idx.index((cg, ks))
            B = WOR[io] if io < 8 else a(WST + 8 * (io - 8), 8)
            A(f"v_smfmac_f32_16x16x64_bf16 {v(WA+16*gam+4*cg,4)}, {v(32 + 16*gam + 4*ks, 4)}, {B}, {v(vIdxW)}")
            if gam < 2 and i in (4, 6, 8, 10):
                rdA(gam + 2, (i - 4) // 2)
            if gam == 0:
                if f0:
                    A(f0.pop(0))
                elif f1:
                    A(f1.pop(0))
            else:
                if i >= 2:
                    post(gam - 1, i - 2)
                if i == 15:
                    post(gam - 1, 14)
                    post(gam - 1, 15)
            if gam == 1 and i == 0:
                while f1:
                    A(f1.pop(0)) if i == 0 else None
            if polls and i % 2 == 0:
                ld(i // 2)
    group(0)
    while f1:
        A(f1.pop(0))
    A(f"s_lshl_b32 {s(sPo)}, {s(sWAVE)}, 5")
    A(f"s_add_u32 {s(sPo)}, {s(sPo)}, {WS_G + 63 * 128:#x}")
    vq.issue('g', f"buffer_load_dword {a(84)}, {v(LS+1)}, {s(S_WS,4)}, {s(sPo)} offen")
    A(f"s_lshl_b32 {s(sPo)}, {s(sWAVE)}, 14")
    A(f"s_lshl_b32 {s(sPo4)}, {s(sH)}, 6")
    A(f"s_add_u32 {s(sPo)}, {s(sPo)}, {s(sPo4)}")
    A(f"s_add_u32 {s(sPo)}, {s(sPo)}, {WS_B63:#x}")
    vq.issue('g', f"buffer_load_dwordx4 {a(80,4)}, {v(LS,4 if False else 1)}, {s(S_WS,4)}, {s(sPo)} offen")
    group(1)
    A(f"s_lshl_b32 {s(sPo)}, {s(sWAVE)}, 18")
    A(f"s_add_u32 {s(sPo)}, {s(sPo)}, {WS_PF:#x}")
    A(f"s_add_u32 {s(sPo4)}, {s(sPo)}, 4096")
    group(2)
    A(f"v_bfe_u32 {v(u0)}, {v(vL16)}, 4, 4")
    A(f"v_lshlrev_b32 {v(u1)}, 10, {v(u0)}")
    A(f"v_lshrrev_b32 {v(u0)}, 3, {v(u0)}")
    A(f"v_lshlrev_b32 {v(u0)}, 30, {v(u0)}")
    A(f"v_add_u32 {v(u1)}, {v(u1)}, {v(u0)}")
    A(f"v_lshrrev_b32 {v(u0)}, 8, {v(vL16)}")
    A(f"v_lshlrev_b32 {v(u0)}, 3, {v(u0)}")
    A(f"v_add_u32 {v(u1)}, {v(u1)}, {v(u0)}")
    A(f"s_lshl_b32 {s(sOo)}, {s(sWAVE)}, 13")
    A(f"s_lshl_b32 {s(sRet)}, {s(sH)}, 5")
    A(f"s_add_u32 {s(sOo)}, {s(sOo)}, {s(sRet)}")
    A(f"s_add_u32 {s(sOo)}, {s(sOo)}, {63 * 32 * 1024:#x}")
    A(f"s_mov_b32 {s(sRet)}, 0")
    RA = PA
    Lb, Lp, Lok, Lchk, Lw3 = (A.new_label(x) for x in ("cfb", "cfp", "cfok", "cfchk", "cfw3"))

    def final_posts():
        cst()
        A.nop(4)
        for i in range(16):
            post(3, i)
            if i % 4 == 0:
                A.nop(1)
        cst()

    def chk(cnt):
        for i in range(8):
            A(f"s_waitcnt vmcnt({cnt(i)})")
            c = "0" if i == 0 else v(RA, 4)
            A(f"v_mfma_f32_16x16x32_bf16 {v(RA,4)}, {v(RS[i],4)}, {v(SEL,4)}, {c}")
            if i == 0:
                A(f"v_and_b32 {v(m)}, {v(RS[i])}, {v(RS[i]+2)}")
            else:
                A(f"v_bitop3_b32 {v(m)}, {v(m)}, {v(RS[i])}, {v(RS[i]+2)} bitop3:0x80")
        A(f"v_and_b32 {v(m)}, 1, {v(m)}")
        A(f"v_cmp_ne_u32 vcc, 1, {v(m)}")
    A(f"s_cmp_ge_u32 {s(sWAVE)}, 2")
    A(f"s_cbranch_scc1 {Lb}")
    save = (list(vq.ops), list(lq.ops), nst[0])
    group(3, True)
    final_posts()
    young = [len(vq.ops) - 1 - vq.ops.index(('r', i)) for i in range(8)]
    chk(lambda i: young[i])
    A(f"s_cbranch_vccz {Lok}")
    A(f"s_branch {Lp}")
    A.label(Lb)
    vq.ops, lq.ops, nst[0] = save
    group(3)
    final_posts()
    A(f"s_cmp_eq_u32 {s(sWAVE)}, 2")
    A(f"s_cbranch_scc1 {Lp}")
    for _ in range(opts.get('cfd', 3)):
        A(f"s_sleep 1")
    A.label(Lp)
    for i in range(8):
        ld(i)
    chk(lambda i: 7 - i)
    A(f"s_cbranch_vccz {Lok}")
    A(f"s_add_u32 {s(sRet)}, {s(sRet)}, 1")
    A(f"s_cmp_lg_u32 {s(sDEAD)}, 0")
    A(f"s_cbranch_scc1 {Lok}")
    A(f"s_cmp_lt_u32 {s(sRet)}, {RED_LIMIT}")
    A(f"s_cbranch_scc1 {Lp}")
    A(f"s_mov_b32 {s(sDEAD)}, 1")
    A.label(Lok)
    cst()
    BG = PA + 8
    for r in range(5):
        A(f"v_accvgpr_read_b32 {v(BG+r)}, {a(80+r)}")
    for r in range(4):
        A(f"v_sub_f32 {v(RA+r)}, {v(RA+r)}, {v(BG+r)}")
    for r in range(4):
        A(f"v_fma_f32 {v(RA+r)}, {v(RA+r)}, {v(BG+4)}, {v(BG+r)}")
    A(f"v_cvt_pk_bf16_f32 {v(RA+4)}, {v(RA)}, {v(RA+1)}")
    A(f"v_cvt_pk_bf16_f32 {v(RA+5)}, {v(RA+2)}, {v(RA+3)}")
    A(f"buffer_store_dwordx2 {v(RA+4,2)}, {v(u1)}, {s(sOut,4)}, {s(sOo)} offen")
    if opts.get('tprof') == 3:
        A(f"s_waitcnt vmcnt(0)")
        cst()
        A(f"s_waitcnt lgkmcnt(0)")
        for k in range(1, 10):
            A(f"s_sub_u32 s{92 + k - 1}, s{64 + 2*k}, s64")
        A(f"s_mov_b32 s101, {s(sRet)}")
        A(f"s_branch L_flush")


def kv_polls(A):
    for j in range(2):
        Lp = A.new_label("kvp")
        Ld = A.new_label("kvd")
        A(f"s_mov_b32 {s(sRet)}, 0")
        A(f"s_cmp_lg_u32 {s(sDEAD)}, 0")
        A(f"s_cbranch_scc1 {Ld}")
        A.label(Lp)
        A(f"buffer_load_dword {v(vFlag)}, off, {s(S_WS,4)}, {s(sT5)} offset:{4*j} sc1")
        A(f"s_waitcnt vmcnt(0)")
        A(f"v_readfirstlane_b32 {s(sT0)}, {v(vFlag)}")
        A(f"s_cmp_ge_u32 {s(sT0)}, 1")
        A(f"s_cbranch_scc1 {Ld}")
        A(f"s_sleep 1")
        A(f"s_add_u32 {s(sRet)}, {s(sRet)}, 1")
        A(f"s_cmp_lt_u32 {s(sRet)}, {SPIN_LIMIT}")
        A(f"s_cbranch_scc1 {Lp}")
        A(f"s_mov_b32 {s(sDEAD)}, 1")
        A.label(Ld)


def fb_consts(A):
    A(f"s_cmp_eq_u32 {s(sWAVE)}, 0")
    A(f"s_cselect_b32 {s(sFb)}, {OOB:#x}, {s(sT5)}")
    A(f"s_add_u32 {s(sFo)}, {s(sFb)}, 8")


def gen_late_start(A, opts, vL):
    mk_srd(A, S_A, P_MEM0, 8192)
    A(f"s_lshl_b32 {s(sT0)}, {s(sWAVE)}, 8")
    lane_expr(A, vT0, vL, [(2, 2, 2048), (0, 1, 1024), (1, 1, 64), (4, 2, 16)], sregs=[sT0])
    A(f"buffer_load_dwordx4 {v(X+24,4)}, {v(vT0)}, {s(S_A,4)}, 0 offen")
    A(f"buffer_load_dwordx4 {v(X+28,4)}, {v(vT0)}, {s(S_A,4)}, 0 offen offset:128")
    A(f"s_waitcnt vmcnt(0)")
    A(f"ds_write_b128 {v(vMw)}, {v(X+24,4)}")
    A(f"ds_write_b128 {v(vMw)}, {v(X+28,4)} offset:1024")
    for i in range(16):
        A(f"v_mov_b32 {v(ACC+i)}, 0")
    for i in range(8):
        A(f"v_mov_b32 {v(Y+24+i)}, 0")
    fb_consts(A)
    A(f"v_mov_b32 {v(vT1)}, 0")
    A(f"s_mov_b32 {s(sT2)}, {D_CHECKIN*4}")
    A(f"s_mov_b32 {s(sT3)}, 0")
    wait_byte(A, vFlag, vT1, sT2, sT3, 32, "ci", sleep=1)
    A(f"buffer_load_dword {v(vFlag)}, {v(vT1)}, {s(S_DBG,4)}, 0 offen offset:{D_CHECKIN*4} sc1")
    A(f"s_getreg_b32 {s(sT0)}, hwreg(HW_REG_XCC_ID, 0, 4)")
    A(f"s_mul_i32 {s(sT1)}, {s(sT0)}, {s(sT0)}")
    A(f"s_lshl_b32 {s(sT1)}, {s(sT1)}, 22")
    A(f"s_lshl_b32 {s(sT0)}, {s(sT0)}, 13")
    A(f"s_add_u32 {s(sT0)}, {s(sT0)}, {s(sT1)}")
    A(f"s_add_u32 {s(sT0)}, {s(sT0)}, 32")
    A(f"s_waitcnt vmcnt(0)")
    A(f"v_readfirstlane_b32 {s(sT1)}, {v(vFlag)}")
    A(f"s_cmp_eq_u32 {s(sT0)}, {s(sT1)}")
    A(f"s_cselect_b32 {s(sFastF)}, 1, 0")
    kv_polls(A)
    A(f"s_mov_b32 m0, {s(sM0K)}")
    A(f"s_nop 0")
    for i in range(2):
        A(f"buffer_load_dwordx4 {v(vL16)}, {s(S_WS,4)}, {s(sKn)} offen offset:{1024*i} lds")


def gen_chain(A, opts):
    global RT
    RT = bool(opts.get('rt'))
    CSTEP[0] = opts.get('cstep', 39)
    TRACE[0] = bool(opts.get('trace'))
    FTR[0] = opts.get('ftr', 0)
    vL = 13
    A(f"s_xor_b32 {s(sH)}, {s(sIDX)}, {opts.get('hperm', 0)}")
    A(f"v_and_b32 {v(vL)}, 63, v0")
    mk_srd(A, S_A, P_WQ, 512 * 8192)
    mk_srd(A, S_B, P_WK, 512 * 8192)
    mk_srd(A, S_C, P_WV, 512 * 8192)
    mk_srd(A, S_D, P_WO, 4096 * 1024)
    A(f"v_lshlrev_b32 {v(vL16)}, 4, {v(vL)}")
    if opts.get('walk') == 1:
        A(f"s_mov_b64 exec, 0")
        A(f"s_branch L_walk_cf")
        A.label("L_walk_ret")
        A(f"s_mov_b64 exec, -1")
    vMre = 2
    vG, vGo, vSW, vSWo, vTRb, vTRo, vTA = 116, 117, 118, 122, 124, 125, 126
    POOL = [40, 72]
    TEMPS = [104, 32]
    sXo = sRo + 1
    A(f"s_lshl_b32 {s(sT0)}, {s(sH)}, 8")
    A(f"s_lshl_b32 {s(sT1)}, {s(sWAVE)}, 20")
    A(f"s_add_u32 {s(sT0)}, {s(sT0)}, {s(sT1)}")
    lane_expr(A, vG, vL, [(4, 2, 8192), (0, 4, 16)], sregs=[sT0])
    A(f"s_lshl_b32 {s(sT0)}, {s(sH)}, 17")
    A(f"s_lshl_b32 {s(sT1)}, {s(sWAVE)}, 8")
    A(f"s_add_u32 {s(sT0)}, {s(sT0)}, {s(sT1)}")
    lane_expr(A, vGo, vL, [(4, 2, 1024), (0, 4, 16)], sregs=[sT0])
    A(f"s_lshl_b32 {s(sXo)}, {s(sWAVE)}, 15")

    RIDX = {0: 0, 1: 1, 4: 2, 5: 3, 6: 4, 7: 5}
    wo_ops = [(cg, 0) for cg in range(4)] + [(cg, ks) for cg in range(4) for ks in range(1, 4)]
    WORR = [('a', 224), ('a', 232), ('a', 240), ('a', 248), ('v', 224), ('v', 232), ('v', 240), ('v', 248)]

    def arm():
        for i in range(4):
            A(f"v_mov_b32 {v(vSEL+i)}, -1")
        A(f"s_lshl_b32 {s(sT0)}, {s(sH)}, 13")
        A(f"s_lshl_b32 {s(sT1)}, {s(sWAVE)}, 11")
        A(f"s_add_u32 {s(sT0)}, {s(sT0)}, {s(sT1)}")
        A(f"v_bfe_u32 {v(vT0)}, {v(vL)}, 4, 1")
        for i in range(4):
            A(f"v_xor_b32 {v(ACC+i)}, -1, {v(vT0)}")
        vq.issue('st', f"buffer_store_dwordx4 {v(ACC,4)}, {v(vL16)}, {s(S_WS,4)}, {s(sT0)} offen sc1")
        vq.issue('st', f"buffer_store_dwordx4 {v(ACC,4)}, {v(vL16)}, {s(S_WS,4)}, {s(sT0)} offen offset:1024 sc1")
        A(f"s_lshl_b32 {s(sT2)}, {s(sH)}, 8")
        A(f"v_add_u32 {v(vT0)}, {s(sT2)}, {v(vL16)}")
        A(f"v_cmp_gt_u32 vcc, 16, {v(vL)}")
        A(f"v_mov_b32 {v(vT1)}, {OOB:#x}")
        A.nop(1)
        A(f"v_cndmask_b32 {v(vMre)}, {v(vT1)}, {v(vT0)}, vcc")
        for sl in range(4):
            A(f"s_mov_b32 {s(sT1)}, {WS_M + sl*8192:#x}")
            vq.issue('st', f"buffer_store_dwordx4 {v(vSEL,4)}, {v(vMre)}, {s(S_WS,4)}, {s(sT1)} offen sc1")
        Z = 20
        for i in range(4):
            A(f"v_mov_b32 {v(Z+i)}, 0")
        A(f"v_cndmask_b32 {v(Z+4)}, {v(vT1)}, {v(vL16)}, vcc")
        A(f"s_lshl_b32 {s(sT1)}, {s(sH)}, 8")
        A(f"s_add_u32 {s(sT1)}, {s(sT1)}, {WS_OF:#x}")
        vq.issue('st', f"buffer_store_dwordx4 {v(Z,4)}, {v(Z+4)}, {s(S_WS,4)}, {s(sT1)} offen sc1")
        A(f"v_cmp_gt_u32 vcc, 8, {v(vL)}")
        A.nop(2)
        A(f"v_cndmask_b32 {v(Z+5)}, {v(vT1)}, {v(vL16)}, vcc")
        A(f"s_lshl_b32 {s(sT1)}, {s(sH)}, 7")
        A(f"s_add_u32 {s(sT1)}, {s(sT1)}, {WS_KVF:#x}")
        vq.issue('st', f"buffer_store_dwordx4 {v(Z,4)}, {v(Z+5)}, {s(S_WS,4)}, {s(sT1)} offen sc1")

    def qkv_unit(m, hp, x):
        u = dict(kind='qkv', m=m, hp=hp, x=x, srd={'q': S_A, 'k': S_B, 'v': S_C}[m], needs_temp=(m != 'q'))
        u['soff'] = [(64 * hp + 16 * x + 4 * (k & 3) + 32 * (k >> 2)) * 8192 for k in range(8)]
        return u

    def bind(u, temp):
        if u['kind'] == 'qkv':
            m, hp, x = u['m'], u['hp'], u['x']
            res = []
            for i in range(4):
                sl = hp + 2 * i
                for t_ in range(2):
                    if m == 'q':
                        res.append((('a', 16 * sl + 8 * t_ + 4 * x), None))
                    elif sl in (2, 3):
                        fi = (0 if m == 'k' else 4) + 2 * (sl - 2) + t_
                        res.append((('v', temp + 4 * t_), fi * 2048 + 1024 * x))
                    else:
                        res.append(((('a' if m == 'k' else 'v'), 128 + 16 * RIDX[sl] + 8 * t_ + 4 * x), None))
            u['raw'] = [r[0] for r in res]
            u['res'] = res
        else:
            u['raw'] = [('v', temp + 4 * k) for k in range(8)]

    def wo_unit(ks):
        return dict(kind='wo', ks=ks, srd=S_D, soff=[(32 * ks + 4 * k) * 1024 for k in range(8)])
    U = {f"O{k}": wo_unit(k) for k in range(4)}
    for m in 'qkv':
        for hp in range(2):
            for x in range(2):
                U[f"{m.upper()}{hp}{x}"] = qkv_unit(m, hp, x)
    order = {0: "O0 O1 Q00 Q01 Q10 Q11 O2 O3 K00 K01 K10 K11 V00 V01 V10 V11",
             1: "Q00 Q01 Q10 Q11 O0 O1 K00 K01 O2 O3 K10 K11 V00 V01 V10 V11",
             2: "K00 K01 Q00 Q01 Q10 Q11 O0 O1 K10 K11 O2 O3 V00 V01 V10 V11",
             3: "O0 O1 Q00 Q01 Q10 Q11 O2 O3 V00 V01 V10 V11 K00 K01 K10 K11",
             4: "K00 K01 K10 K11 V00 V01 V10 V11 Q00 Q01 Q10 Q11 O0 O1 O2 O3",
             5: "K00 K01 K10 K11 V00 V01 V10 V11 Q00 O0 Q01 O1 Q10 O2 Q11 O3",
             6: "O0 O1 K00 K01 K10 K11 V00 V01 V10 V11 Q00 O2 Q01 O3 Q10 Q11",
             8: "K00 K01 K10 K11 V00 V01 V10 V11 O0 O1 O2 O3 Q00 Q01 Q10 Q11",
             9: "O0 O1 O2 O3 K00 K01 K10 K11 V00 V01 V10 V11 Q00 Q01 Q10 Q11",
             10: "O0 O1 O2 O3 Q00 Q01 Q10 Q11 K00 K01 K10 K11 V00 V01 V10 V11",
             11: "O0 O1 O2 K00 K01 K10 K11 V00 V01 V10 V11 Q00 Q01 Q10 Q11 O3",
             12: "O0 O1 K00 K01 K10 K11 V00 V01 V10 V11 Q00 Q01 Q10 Q11 O2 O3",
             7: "K00 K01 K10 K11 O0 V00 V01 O1 V10 V11 Q00 O2 Q01 O3 Q10 Q11"}[opts.get('word', 0)].split()
    units = [U[n] for n in order]
    for n_ in U:
        U[n_]['name'] = n_
    CPN = opts.get('cpx', 0)
    cpu_ = [n_ for n_ in order if n_[0] in 'QKV']
    cpu_ = (cpu_[:CPN] if opts.get('cpfirst') else cpu_[-CPN:]) if CPN else []
    WS_CP = opts.get('cpbase', G.WS_CP)
    vCp, sCpB = 127, sU
    sSlowH = sU + 1
    if opts.get('cwsm'):
        A(f"s_and_b32 {s(sT0)}, {s(sH)}, 3")
        A(f"s_cmp_eq_u32 {s(sT0)}, {opts.get('cph', 1)}")
        A(f"s_cselect_b32 {s(sSlowH)}, 1, 0")
    if CPN:
        A(f"s_and_b32 {s(sT0)}, {s(sH)}, 3")
        A(f"s_lshr_b32 {s(sT1)}, {s(sH)}, 2")
        A(f"s_mul_i32 {s(sT1)}, {s(sT1)}, {CPN * 32 * 2048}")
        A(f"s_lshl_b32 {s(sT2)}, {s(sWAVE)}, 14")
        A(f"s_add_u32 {s(sT1)}, {s(sT1)}, {s(sT2)}")
        A(f"s_add_u32 {s(sT1)}, {s(sT1)}, {WS_CP:#x}")
        A(f"s_cmp_eq_u32 {s(sT0)}, {opts.get('cph', 1)}")
        A(f"s_cselect_b32 {s(sCpB)}, {s(sT1)}, 0")
        lane_expr(A, vCp, vL, [(4, 2, 256), (0, 4, 16)])
        A(f"v_cmp_lt_u32 vcc, 15, {v(vL)}")
        A(f"v_add_u32 {v(vT0)}, 256, {v(vCp)}")
        A.nop(1)
        A(f"v_cndmask_b32 {v(vCp)}, {v(vCp)}, {v(vT0)}, vcc")
    vq = Q(A, "vmcnt", 63)
    nst = 8
    ARMLATE = opts.get('armlate', 1)
    if not ARMLATE:
        arm()
    busy = set()
    TPREF = [40, 48, 56, 64, 104, 32, 72, 80, 88, 96]
    PPREF = [72, 40]

    def alloc_temp():
        for g in TPREF:
            if g not in busy:
                busy.add(g)
                return g
        return None

    def alloc_pool():
        for p in PPREF:
            gs = [p + 8 * j for j in range(4)]
            if not any(g in busy for g in gs):
                busy.update(gs)
                return p
        return None
    held = {}
    WIN = opts.get('cwin', 56)
    st_ = dict(issued=0)

    def inflight():
        return len(vq.ops)

    EARLY = opts.get('early', 1)
    vEK, vEM, vEF, vEC, vEA = 104, 32, 112, 114, 115
    vEV = 96
    DMI = opts.get('vpos', 0) != 0

    def early_issue():
        assert 104 not in busy and 32 not in busy
        busy.update((104, 32))
        if DMI:
            assert vEV not in busy
            busy.add(vEV)
        mk_srd(A, S_X, P_MEM0, 8192)
        A(f"s_lshl_b32 {s(sT0)}, {s(sWAVE)}, 8")
        lane_expr(A, vEA, vL, [(2, 2, 2048), (0, 1, 1024), (1, 1, 64), (4, 2, 16)], sregs=[sT0])
        vq.issue('fl', f"buffer_load_dwordx2 {v(vEF,2)}, off, {s(S_WS,4)}, {s(sT5)} sc1")
        vq.issue('ci', f"buffer_load_dword {v(vEC)}, off, {s(S_DBG,4)}, 0 offset:{D_CHECKIN*4} sc1")
        vq.issue('m0', f"buffer_load_dwordx4 {v(vEM,4)}, {v(vEA)}, {s(S_X,4)}, 0 offen")
        vq.issue('m0', f"buffer_load_dwordx4 {v(vEM+4,4)}, {v(vEA)}, {s(S_X,4)}, 0 offen offset:128")

    def early_k():
        vq.wait('fl')
        A(f"v_min_u32 {v(vEF)}, {v(vEF)}, {v(vEF+1)}")
        A.nop(1)
        A(f"v_readfirstlane_b32 {s(sT0)}, {v(vEF)}")
        A(f"s_cmp_ge_u32 {s(sT0)}, 1")
        A(f"s_cselect_b32 {s(sKok)}, 1, 0")
        A(f"s_cselect_b32 {s(sT1)}, {s(sKn)}, {OOB:#x}")
        vq.issue('kx', f"buffer_load_dwordx4 {v(vEK,4)}, {v(vL16)}, {s(S_WS,4)}, {s(sT1)} offen")
        vq.issue('kx', f"buffer_load_dwordx4 {v(vEK+4,4)}, {v(vL16)}, {s(S_WS,4)}, {s(sT1)} offen offset:1024")
        if DMI:
            A(f"s_add_u32 {s(sT1)}, {s(sT1)}, 8192")
            vq.issue('kx', f"buffer_load_dwordx4 {v(vEV,4)}, {v(vL16)}, {s(S_WS,4)}, {s(sT1)} offen")
            vq.issue('kx', f"buffer_load_dwordx4 {v(vEV+4,4)}, {v(vL16)}, {s(S_WS,4)}, {s(sT1)} offen offset:1024")

    def try_issue():
        while st_['issued'] < len(units):
            u = units[st_['issued']]
            limit = min(WIN + (nst if 'st' in vq.ops else 0), 62)
            if EARLY and st_['issued'] == len(units) - 1 and not st_.get('early'):
                if inflight() + 8 > limit or 104 in busy or 32 in busy or (DMI and vEV in busy):
                    return
                early_issue()
                st_['early'] = True
                limit += 4
            elif EARLY and st_.get('early'):
                limit += 4
            if inflight() + 8 > limit:
                return
            if u['kind'] == 'wo':
                tmp = alloc_pool()
                if tmp is None:
                    return
                held[id(u)] = ('pool', tmp)
            elif u['needs_temp']:
                tmp = alloc_temp()
                if tmp is None:
                    return
                held[id(u)] = ('temp', tmp)
            else:
                tmp = None
            bind(u, tmp)
            if opts.get('cwsm') and inflight() + 8 > opts['cwsm']:
                Lsm = A.new_label("sm")
                A(f"s_cmp_eq_u32 {s(sSlowH)}, 1")
                A(f"s_cbranch_scc1 {Lsm}")
                A(f"s_waitcnt vmcnt({opts['cwsm'] - 8})")
                A.label(Lsm)
            Lcp = None
            if u['name'] in cpu_:
                Lcp, Lcq = A.new_label("cp"), A.new_label("cq")
                A(f"s_cmp_lg_u32 {s(sCpB)}, 0")
                A(f"s_cbranch_scc1 {Lcp}")
            for k in range(8):
                if u['kind'] == 'wo':
                    A(f"s_xor_b32 {s(sT0)}, {u['soff'][k]:#x}, {s(sXo)}")
                    vq.issue(id(u), f"buffer_load_dwordx4 {reg(u['raw'][k], 4)}, {v(vGo)}, {s(u['srd'],4)}, {s(sT0)} offen" + WPOL[opts.get('wnto', 0)])
                else:
                    A(f"s_mov_b32 {s(sT0)}, {u['soff'][k]:#x}")
                    vq.issue(id(u), f"buffer_load_dwordx4 {reg(u['raw'][k], 4)}, {v(vG)}, {s(u['srd'],4)}, {s(sT0)} offen" + WPOL[opts.get('wnt', 0)])
            if Lcp:
                A(f"s_branch {Lcq}")
                A.label(Lcp)
                for k in range(8):
                    A(f"s_add_u32 {s(sT0)}, {s(sCpB)}, {(cpu_.index(u['name']) * 32 + k) * 2048:#x}")
                    A(f"buffer_load_dwordx4 {reg(u['raw'][k], 4)}, {v(vCp)}, {s(S_WS,4)}, {s(sT0)} offen")
                A.label(Lcq)
            st_['issued'] += 1
    stamp(A, 1) if not opts.get('cprof') else None
    try_issue()
    if ARMLATE:
        arm()
    A(f"s_lshl_b32 {s(sT2)}, {s(sWAVE)}, 13")
    lane_expr(A, vSW, vL, [(4, 2, 256), (1, 3, 32), (0, 1, 16)], sregs=[sT2])
    A(f"v_mov_b32 {v(vSWo)}, {v(vSW)}")
    A(f"v_bfe_u32 {v(vTA)}, {v(vL)}, 4, 1")
    A(f"v_lshlrev_b32 {v(vT0)}, 5, {v(vTA)}")
    A(f"v_xor_b32 {v(vSW)}, {v(vSW)}, {v(vT0)}")
    A(f"v_lshlrev_b32 {v(vT0)}, 6, {v(vTA)}")
    A(f"v_xor_b32 {v(vSWo)}, {v(vSWo)}, {v(vT0)}")
    A(f"v_xor_b32 {v(vSW+1)}, 64, {v(vSW)}")
    A(f"v_xor_b32 {v(vSW+2)}, 0x80, {v(vSW)}")
    A(f"v_xor_b32 {v(vSW+3)}, 0xc0, {v(vSW)}")
    A(f"v_xor_b32 {v(vSWo+1)}, 0x80, {v(vSWo)}")
    A(f"s_lshl_b32 {s(sT3)}, {s(sWAVE)}, 6")
    lane_expr(A, vTRb, vL, [(2, 1, 256 + 32), (4, 1, 1024 + 64), (5, 1, 2048), (3, 1, 4096 + 128), (0, 2, 8)])
    A(f"v_xor_b32 {v(vTRb)}, {s(sT3)}, {v(vTRb)}")
    A(f"v_add_u32 {v(vTRb)}, {s(sT2)}, {v(vTRb)}")
    lane_expr(A, vTRo, vL, [(2, 1, 256 + 64), (4, 1, 4096 + 128), (5, 1, 1024), (3, 1, 32), (0, 2, 8)], sregs=[sT2])
    A(f"s_lshl_b32 {s(sT0)}, {s(sWAVE)}, 15")
    A(f"s_add_u32 {s(sT0)}, {s(sT0)}, {WO_OFF}")
    A(f"v_add_u32 {v(vWo)}, {s(sT0)}, {v(vL16)}")
    def checkin():
        vq.wait('st')
        A(f"s_barrier")
        Lci = A.new_label("ci")
        A(f"s_cmp_lg_u32 {s(sWAVE)}, 0")
        A(f"s_cbranch_scc1 {Lci}")
        A(f"s_getreg_b32 {s(sT0)}, hwreg(HW_REG_XCC_ID, 0, 4)")
        A(f"s_mul_i32 {s(sT1)}, {s(sT0)}, {s(sT0)}")
        A(f"s_lshl_b32 {s(sT1)}, {s(sT1)}, 17")
        A(f"s_lshl_b32 {s(sT0)}, {s(sT0)}, 8")
        A(f"s_add_u32 {s(sT0)}, {s(sT0)}, {s(sT1)}")
        A(f"s_add_u32 {s(sT0)}, {s(sT0)}, 1")
        A(f"v_mov_b32 {v(vT0)}, {s(sT0)}")
        A(f"v_mov_b32 {v(vT1)}, 0")
        A(f"s_mov_b64 exec, 1")
        A(f"buffer_atomic_add {v(vT0)}, {v(vT1)}, {s(S_DBG,4)}, 0 offen offset:{D_CHECKIN*4} sc1")
        A(f"s_mov_b64 exec, -1")
        A.label(Lci)

    if not ARMLATE:
        checkin()
        try_issue()
    A(f"s_lshr_b32 {s(sT3)}, {s(sH)}, 2")
    A(f"s_lshl_b32 {s(sT3)}, {s(sT3)}, 10")
    A(f"s_and_b32 {s(sT4)}, {s(sH)}, 1")
    A(f"s_lshl_b32 {s(sT4)}, {s(sT4)}, 9")
    A(f"s_add_u32 {s(sT3)}, {s(sT3)}, {s(sT4)}")
    A(f"s_and_b32 {s(sT4)}, {s(sH)}, 2")
    A(f"s_lshl_b32 {s(sT4)}, {s(sT4)}, 4")
    A(f"s_add_u32 {s(sT3)}, {s(sT3)}, {s(sT4)}")
    lane_expr(A, vMst, vL, [(5, 1, 256), (1, 2, 64), (0, 1, 16), (4, 1, 8)], sregs=[sT3])
    A(f"v_and_b32 {v(vT1)}, 8, {v(vL)}")
    A(f"v_lshlrev_b32 {v(vT1)}, 27, {v(vT1)}")
    A(f"v_add_u32 {v(vMst)}, {v(vMst)}, {v(vT1)}")
    A(f"s_cmp_eq_u32 {s(sWAVE)}, 0")
    Lw0 = A.new_label("w0")
    A(f"s_cbranch_scc1 {Lw0}")
    A(f"v_mov_b32 {v(vMst)}, {v(vMre)}")
    A(f"s_cmp_eq_u32 {s(sWAVE)}, 3")
    A(f"s_cbranch_scc1 {Lw0}")
    A(f"v_mov_b32 {v(vMst)}, {OOB:#x}")
    A.label(Lw0)
    for (dst, bit) in ((vIdx, 2), (vIdxW, 8)):
        A(f"v_mov_b32 {v(dst)}, 0x4444")
        A(f"v_mov_b32 {v(vT0)}, 0xeeee")
        A(f"v_and_b32 {v(vT1)}, {bit}, {v(vL)}")
        A(f"v_cmp_ne_u32 vcc, 0, {v(vT1)}")
        A.nop(2)
        A(f"v_cndmask_b32 {v(dst)}, {v(dst)}, {v(vT0)}, vcc")
    A(f"s_lshl_b32 {s(sT0)}, {s(sWAVE)}, 9")
    lane_expr(A, vQKw, vL, [(0, 4, 16), (4, 2, 4)], sregs=[sT0])
    A(f"s_lshl_b32 {s(sT0)}, {s(sWAVE)}, 10")
    A(f"s_lshr_b32 {s(sT1)}, {s(sWAVE)}, 1")
    A(f"s_lshl_b32 {s(sT1)}, {s(sT1)}, 11")
    A(f"s_add_u32 {s(sT0)}, {s(sT0)}, {s(sT1)}")
    lane_expr(A, vKw, vL, [(0, 4, 32), (4, 2, 8)], const=2048, sregs=[sT0])
    lane_expr(A, vKr, vL, [(5, 1, 512), (4, 1, 128), (2, 2, 32), (0, 2, 8)])
    lane_expr(A, vQKr, vL, [(5, 1, 256), (4, 1, 64), (2, 2, 16), (0, 1, 8)])
    A(f"s_lshl_b32 {s(sT0)}, {s(sWAVE)}, 9")
    lane_expr(A, vOw, vL, [(4, 2, 128), (0, 3, 16)], const=O_OFF, sregs=[sT0])
    A(f"s_lshl_b32 {s(sT0)}, {s(sWAVE)}, 11")
    A(f"s_add_u32 {s(sT0)}, {s(sT0)}, {MEM_OFF}")
    A(f"v_add_u32 {v(vMw)}, {s(sT0)}, {v(vL16)}")
    A(f"s_lshl_b32 {s(sT0)}, {s(sWAVE)}, 16")
    A(f"s_lshl_b32 {s(sT1)}, {s(sH)}, 8")
    lane_expr(A, vPst, vL, [(5, 1, 8192), (0, 4, 16), (4, 1, 8)], sregs=[sT0, sT1])
    A(f"s_lshl_b32 {s(sT0)}, {s(sH)}, 13")
    A(f"v_add_u32 {v(vRed)}, {s(sT0)}, {v(vL16)}")
    A(f"s_and_b32 {s(sT1)}, {s(sWAVE)}, 1")
    A(f"s_lshl_b32 {s(sT1)}, {s(sT1)}, 13")
    A(f"s_lshl_b32 {s(sT0)}, {s(sH)}, 14")
    A(f"s_add_u32 {s(sT0)}, {s(sT0)}, {s(sT1)}")
    A(f"v_lshlrev_b32 {v(vPf)}, 6, {v(vL)}")
    A(f"v_add_u32 {v(vPf)}, {s(sT0)}, {v(vPf)}")
    A(f"s_mov_b32 {s(sMLo)}, -1")
    A(f"s_mov_b32 {s(sMLo+1)}, 0")
    A(f"s_mov_b32 {s(sMHi)}, 0")
    A(f"s_mov_b32 {s(sMHi+1)}, -1")
    A(f"s_mov_b32 {s(sC)}, {f32_hex(SCALE_C):#x}")
    A(f"s_mov_b32 {s(sNC)}, {f32_hex(-SCALE_C):#x}")
    Lsel = A.new_label("sel")
    A(f"s_cmp_lg_u32 {s(sWAVE)}, 0")
    A(f"s_cbranch_scc1 {Lsel}")
    A(f"v_and_b32 {v(vT0)}, 15, {v(vL)}")
    A(f"v_mov_b32 {v(vS0)}, 0x3f80")
    A(f"v_mov_b32 {v(vT1)}, 0x3f800000")
    A(f"v_and_b32 v112, 1, {v(vT0)}")
    A(f"v_cmp_eq_u32 vcc, 1, v112")
    A.nop(2)
    A(f"v_cndmask_b32 {v(vS0)}, {v(vS0)}, {v(vT1)}, vcc")
    A(f"v_lshrrev_b32 {v(vT0)}, 1, {v(vT0)}")
    for i in range(4):
        A(f"v_cmp_eq_u32 vcc, {i}, {v(vT0)}")
        A.nop(2)
        A(f"v_cndmask_b32 {v(vSEL+i)}, 0, {v(vS0)}, vcc")
    A(f"v_bfe_u32 {v(vTagE)}, {v(vL)}, 4, 1")
    A(f"v_xor_b32 {v(vTagE)}, 1, {v(vTagE)}")
    A.label(Lsel)
    for i in range(4):
        A(f"v_mov_b32 {v(vONE+i)}, 0x3f803f80")
    for i in range(1, 4):
        A(f"v_mov_b32 {v(vBM+i)}, 0")

    A(f"s_lshl_b32 {s(sW2k)}, {s(sWAVE)}, 11")
    A(f"s_mov_b32 {s(sSlotP1)}, {WS_P + 16384}")
    A(f"s_mov_b32 {s(sPc2)}, {WS_P + 32768}")
    A(f"s_mov_b32 {s(sPc3)}, {WS_P + 49152}")
    A(f"s_mov_b32 {s(sSlotP4)}, {WS_P + 4096}")
    A(f"s_and_b32 {s(sTag)}, {s(sH)}, 1")
    A(f"s_xor_b32 {s(sTag)}, {s(sTag)}, 1")
    A(f"s_lshl_b32 {s(sT5)}, {s(sH)}, 7")
    A(f"s_add_u32 {s(sT5)}, {s(sT5)}, {WS_KVF:#x}")
    A(f"s_cmp_ge_u32 {s(sWAVE)}, 2")
    A(f"s_mov_b32 {s(sT0)}, {OOB:#x}")
    A(f"s_mov_b32 {s(sPf)}, {WS_KX + 0x80000:#x}")
    A(f"s_cselect_b32 {s(sPf)}, {s(sPf)}, {s(sT0)}")
    A(f"s_add_u32 {s(sM0K)}, {s(sW2k)}, {KX_OFF}")
    A(f"s_lshl_b32 {s(sKn)}, {s(sH)}, 14")
    A(f"s_add_u32 {s(sKn)}, {s(sKn)}, {s(sW2k)}")
    A(f"s_add_u32 {s(sKn)}, {s(sKn)}, {WS_KX:#x}")
    A(f"s_add_u32 {s(sM0V)}, {s(sW2k)}, {VX_OFF}")
    A(f"s_lshl_b32 {s(sKV)}, {s(sH)}, 14")
    A(f"s_add_u32 {s(sKV)}, {s(sKV)}, {s(sW2k)}")
    A(f"s_add_u32 {s(sKV)}, {s(sKV)}, {WS_KX:#x}")
    A(f"s_lshl_b32 {s(sKM)}, {s(sH)}, 12")
    A(f"s_add_u32 {s(sKM)}, {s(sKM)}, {WS_KM:#x}")
    A(f"s_mov_b32 {s(sJ4)}, 8")
    A(f"s_mov_b32 {s(sCn)}, 1")
    A(f"s_mov_b32 {s(sNeed)}, 1")
    for b, u in enumerate(units):
        assert st_['issued'] > b, "loader deadlock"
        if EARLY and b == len(units) - 1:
            assert st_.get('early')
            early_k()
        vq.wait(id(u))
        if opts.get('pst0') and b < 4:
            stamp(A, 4 + b)
        A(f"s_barrier")
        if u['kind'] == 'qkv':
            for k in range(8):
                A(f"ds_write_b128 {v(vSW + (k & 1) + 2 * (k >> 2))}, {reg(u['raw'][k], 4)} offset:{k * 1024}")
            A(f"s_waitcnt lgkmcnt(0)")
            A(f"s_barrier")
            x = u['x']
            for i in range(4):
                for t_ in range(2):
                    r_, fin = u['res'][2 * i + t_]
                    A(f"v_xor_b32 {v(vTA + (t_ & 1))}, {(i << 13) | (t_ << 5):#x}, {v(vTRb)}")
                    for q0 in range(2):
                        A(f"ds_read_b64_tr_b16 {reg(off(r_, 2 * q0), 2)}, {v(vTA + (t_ & 1))} offset:{512 * q0}")
            A(f"s_waitcnt lgkmcnt(0)")
            for (r_, fin) in u['res']:
                if fin is not None:
                    A(f"ds_write_b128 {v(vWo)}, {reg(r_, 4)} offset:{fin}")
        else:
            ks = u['ks']
            for k in range(8):
                A(f"ds_write_b128 {v(vSWo + (k >> 2))}, {reg(u['raw'][k], 4)} offset:{k * 1024}")
            base = u['raw'][0][1]
            fins = []
            for cg in range(4):
                io = wo_ops.index((cg, ks))
                dst = WORR[io] if io < 8 else ('v', base + 8 * cg)
                A(f"v_xor_b32 {v(vTA + (cg & 1))}, {cg << 6:#x}, {v(vTRo)}")
                for i in range(4):
                    A(f"ds_read_b64_tr_b16 {reg(off(dst, 2 * i), 2)}, {v(vTA + (cg & 1))} offset:{(8 * (i >> 1) + 2 * (i & 1)) * 256}")
                if io >= 8:
                    fins.append((dst, io * 2048))
            A(f"s_waitcnt lgkmcnt(0)")
            for (dst, o) in fins:
                A(f"ds_write_b128 {v(vWo)}, {reg(dst, 4)} offset:{o}")
                A(f"ds_write_b128 {v(vWo)}, {reg(off(dst, 4), 4)} offset:{o + 1024}")
        if id(u) in held:
            kind, tmp = held[id(u)]
            A(f"s_waitcnt lgkmcnt(0)")
            if kind == 'pool':
                busy.difference_update(tmp + 8 * j for j in range(4))
            else:
                busy.discard(tmp)
        if ARMLATE and b == opts.get('cipos', 1):
            checkin()
        if opts.get('prof') and not opts.get('cprof') and not opts.get('pst0') and b in (0, 3, 7, 11):
            stamp(A, {0: 4, 3: 5, 7: 6, 11: 7}[b])
        try_issue()
    A("s_waitcnt lgkmcnt(0)")
    stamp(A, 2) if not opts.get('cprof') else None
    A(f"s_barrier")
    if not EARLY:
        gen_late_start(A, opts, vL)
    else:
        Lkok = A.new_label("kok")
        A(f"s_cmp_eq_u32 {s(sKok)}, 1")
        A(f"s_cbranch_scc1 {Lkok}")
        kv_polls(A)
        A(f"buffer_load_dwordx4 {v(vEK,4)}, {v(vL16)}, {s(S_WS,4)}, {s(sKn)} offen")
        A(f"buffer_load_dwordx4 {v(vEK+4,4)}, {v(vL16)}, {s(S_WS,4)}, {s(sKn)} offen offset:1024")
        if DMI:
            A(f"s_add_u32 {s(sT1)}, {s(sKn)}, 8192")
            A(f"buffer_load_dwordx4 {v(vEV,4)}, {v(vL16)}, {s(S_WS,4)}, {s(sT1)} offen")
            A(f"buffer_load_dwordx4 {v(vEV+4,4)}, {v(vL16)}, {s(S_WS,4)}, {s(sT1)} offen offset:1024")
        A.label(Lkok)
        A(f"s_waitcnt vmcnt(0)")
        A(f"ds_write_b128 {v(vMw)}, {v(vEM,4)}")
        A(f"ds_write_b128 {v(vMw)}, {v(vEM+4,4)} offset:1024")
        for i in range(4):
            A(f"v_mov_b64 {v(X+24+2*i,2)}, {v(vEM+2*i,2)}")
        A(f"v_readfirstlane_b32 {s(sT4)}, {v(vEC)}")
        A(f"ds_write_b128 {v(vMw)}, {v(vEK,4)} offset:{KX_OFF - MEM_OFF}")
        A(f"ds_write_b128 {v(vMw)}, {v(vEK+4,4)} offset:{KX_OFF - MEM_OFF + 1024}")
        if DMI:
            A(f"ds_write_b128 {v(vMw)}, {v(vEV,4)} offset:{VX_OFF - MEM_OFF}")
            A(f"ds_write_b128 {v(vMw)}, {v(vEV+4,4)} offset:{VX_OFF - MEM_OFF + 1024}")
        for i in range(16):
            A(f"v_mov_b32 {v(ACC+i)}, 0")
        for i in range(8):
            A(f"v_mov_b32 {v(Y+24+i)}, 0")
        fb_consts(A)
        Lcok = A.new_label("cok")
        A(f"s_and_b32 {s(sT0)}, {s(sT4)}, 0xff")
        A(f"s_cmp_ge_u32 {s(sT0)}, 32")
        A(f"s_cbranch_scc1 {Lcok}")
        A(f"v_mov_b32 {v(vT1)}, 0")
        A(f"s_mov_b32 {s(sT2)}, {D_CHECKIN*4}")
        A(f"s_mov_b32 {s(sT3)}, 0")
        wait_byte(A, vFlag, vT1, sT2, sT3, 32, "ci", sleep=1)
        A(f"buffer_load_dword {v(vFlag)}, {v(vT1)}, {s(S_DBG,4)}, 0 offen offset:{D_CHECKIN*4} sc1")
        A(f"s_waitcnt vmcnt(0)")
        A(f"v_readfirstlane_b32 {s(sT4)}, {v(vFlag)}")
        A.label(Lcok)
        A(f"s_getreg_b32 {s(sT0)}, hwreg(HW_REG_XCC_ID, 0, 4)")
        A(f"s_mul_i32 {s(sT1)}, {s(sT0)}, {s(sT0)}")
        A(f"s_lshl_b32 {s(sT1)}, {s(sT1)}, 22")
        A(f"s_lshl_b32 {s(sT0)}, {s(sT0)}, 13")
        A(f"s_add_u32 {s(sT0)}, {s(sT0)}, {s(sT1)}")
        A(f"s_add_u32 {s(sT0)}, {s(sT0)}, 32")
        A(f"s_cmp_eq_u32 {s(sT0)}, {s(sT4)}")
        A(f"s_cselect_b32 {s(sFastF)}, 1, 0")
        A(f"s_mov_b32 m0, {s(sM0V if opts.get('kpos', 0) else sM0K)}")
    A(f"s_mov_b32 {s(sS)}, 0")
    if opts.get('cf') and not opts.get('nosld'):
        A(f"s_load_dwordx2 s[28:29], s[0:1], 88")
    A(f"s_waitcnt vmcnt(0) lgkmcnt(0)")
    A(f"s_barrier")
    stamp(A, 3) if not opts.get('cprof') else None
    if opts.get('cprof') or opts.get('hist'):
        A(f"s_mov_b32 {s(sCP0)}, 0")
        A(f"s_mov_b32 {s(sCP1)}, 0")
    for k, r_ in ((1, vT0), (2, vT1), (3, vS0)):
        A(f"v_xor_b32 {v(r_)}, {k << 11:#x}, {v(vMw)}")
    for q in range(opts.get('rbtop', 0)):
        A(f"ds_read_b128 {v([X, X + 8, PA, PA + 8][q >> 1] + 4 * (q & 1), 4)}, {v(vWo)} offset:{(q >> 1) * 2048 + 1024 * (q & 1)}")
    A(f"s_cmp_eq_u32 {s(sFastF)}, 1")
    if opts.get('forceslow'):
        A(f"s_branch L_own1_s")
    A(f"s_cbranch_scc0 L_own1_s")
    A(f"s_branch L_own1_f")
    gen_step(A, True, opts)
    gen_step(A, False, opts)


def G_tr(A, vD, vL, kind, base_sreg):
    tr_lane_addr(A, vD, vL, vT0, vS0, kind, base_sreg=base_sreg)
```

```python
from dsl import *
import gen as G
from gen import *
from gen_chain2 import f32_hex, LOG2E


def gen_out(A, opts):
    A.comment("==== role OUT ====")
    sPar, sSh, sC_, sSeg, sNext, sDelta, sOff, sShf, sBlk, sCnt, sSO = 44, 45, 46, 47, 48, 49, 50, 51, 52, 53, 54
    vWG, vST, vTR, vHst = 5, 6, 7, 8
    ACC = 64
    EP = 112
    xg = XG(A, sDelta)
    vL, vL16, vZero, vTmp, vT1, vT2 = xg.vL, xg.vL16, xg.vZero, xg.vTmp, xg.vT1, xg.vT2
    A(f"s_sub_u32 {s(sPar)}, {s(sXCD)}, 1")
    A(f"s_lshr_b32 {s(sSh)}, {s(sIDX)}, 4")
    A(f"s_and_b32 {s(sC_)}, {s(sIDX)}, 15")
    xg.setup()
    if opts.get('opf'):
        mats = {1: [P_WQ], 2: [P_WQ, P_WK], 3: [P_WQ, P_WK, P_WV], 4: [P_WK, P_WV, P_WQ], 5: [P_WQ, P_WV], 6: [P_WK, P_WV, P_WQ, P_WO], 7: [P_WK, P_WV], 8: [P_WV, P_WQ, P_WO], 9: [P_WK, P_WV, P_WO, P_WQ]}[opts['opf']]
        A(f"s_lshl_b32 {s(sT0)}, {s(sPar)}, 5")
        A(f"s_add_u32 {s(sT0)}, {s(sT0)}, {s(sIDX)}")
        A(f"s_lshl_b32 {s(sT0)}, {s(sT0)}, 2")
        A(f"s_add_u32 {s(sT0)}, {s(sT0)}, {s(sWAVE)}")
        A(f"s_lshl_b32 {s(sT0)}, {s(sT0)}, 14")
        for P in mats:
            mk_srd(A, S_D, P, 512 * 8192)
            for k in range(16):
                if k and k % 4 == 0:
                    A(f"s_add_u32 {s(sT0)}, {s(sT0)}, 4096")
                A(f"buffer_load_dwordx4 v[252:255], {v(vL16)}, {s(S_D,4)}, {s(sT0)} offen offset:{(k % 4) * 1024}")
            A(f"s_sub_u32 {s(sT0)}, {s(sT0)}, {3 * 4096}")
    if opts.get('opc'):
        mats = {1: [P_WQ, P_WK, P_WV], 2: [P_WK, P_WV, P_WQ], 3: [P_WQ, P_WK], 4: [P_WK, P_WV], 5: [P_WQ], 6: [P_WO, P_WQ, P_WK, P_WV], 7: [P_WO, P_WQ, P_WK], 8: [P_WQ, P_WO, P_WK, P_WV], 9: [P_WO, P_WK, P_WV, P_WQ]}[opts['opc']]
        A(f"s_lshl_b32 {s(sT0)}, {s(sPar)}, 5")
        A(f"s_add_u32 {s(sT0)}, {s(sT0)}, {s(sIDX)}")
        A(f"s_lshl_b32 {s(sT0)}, {s(sT0)}, 2")
        A(f"s_add_u32 {s(sT0)}, {s(sT0)}, {s(sWAVE)}")
        A(f"s_lshl_b32 {s(sT0)}, {s(sT0)}, 14")
        lane_expr(A, vT1, vL, [(4, 2, 1024), (0, 4, 16)], const=256)
        lane_expr(A, vT2, vL, [(4, 1, 8192), (0, 4, 16)], const=31 * 256)
        for P in mats:
            mk_srd(A, S_D, P, 512 * 8192)
            for k in range(4):
                A(f"s_add_u32 {s(sT1)}, {s(sT0)}, {k * 4096}")
                A(f"buffer_load_dwordx4 v[252:255], {v(vT1)}, {s(S_D,4)}, {s(sT1)} offen")
            if opts.get('opc31', 1) and P != P_WO:
                A(f"s_mov_b64 exec, 0xffffffff")
                A(f"buffer_load_dwordx4 v[252:255], {v(vT2)}, {s(S_D,4)}, {s(sT0)} offen")
                A(f"s_mov_b64 exec, -1")
    STG = 80 * 1024
    A(f"s_mul_i32 {s(sT2)}, {s(sWAVE)}, {2*STG_BUF}")
    A(f"s_add_u32 {s(sT2)}, {s(sT2)}, {STG}")
    stage_lane_addr(A, vST, vL, vT1, sT2)
    Lph2 = A.new_label("out_ph2")

    def wait_wdone(tag):
        L = A.new_label("wd" + tag)
        A(f"s_cmp_lg_u32 {s(sWAVE)}, 0")
        A(f"s_cbranch_scc1 {L}")
        A(f"s_mov_b32 {s(sOff)}, {D_WDONE*4}")
        A(f"s_mov_b32 {s(sShf)}, 0")
        wait_byte(A, vTmp, vZero, sOff, sShf, opts.get('wdn', 32), "wd" + tag, sleep=8)
        A.label(L)
        A(f"s_barrier")
    if opts.get('odelay') == 1:
        wait_wdone("a")
    if opts.get('odelay') == 3:
        Lod = A.new_label("od")
        A(f"s_cmp_lg_u32 {s(sWAVE)}, 0")
        A(f"s_cbranch_scc1 {Lod}")
        A(f"s_mov_b32 {s(sOff)}, {D_CHECKIN*4}")
        A(f"s_mov_b32 {s(sShf)}, 0")
        wait_byte(A, vTmp, vZero, sOff, sShf, 32, "od", sleep=4)
        A.label(Lod)
        A(f"s_barrier")
    A(f"s_cmp_gt_u32 {s(sC_)}, 10")
    A(f"s_cbranch_scc1 {Lph2}")
    mk_srd(A, S_A, P_W1, 512 * 2752)
    mk_srd(A, S_B, P_GATE, 1024)
    A(f"s_lshl_b32 {s(sBlk)}, {s(sC_)}, 2")
    A(f"s_add_u32 {s(sBlk)}, {s(sBlk)}, {s(sWAVE)}")
    A(f"s_lshl_b32 {s(sSeg)}, {s(sSh)}, 1")
    A(f"s_add_u32 {s(sSeg)}, {s(sSeg)}, {s(sPar)}")
    xg.issue_x(sSeg)
    A(f"s_waitcnt vmcnt(0)")
    xg.write_x()
    tr_lane_addr(A, vTR, vL, vT1, vT2, 'k16', base_sreg=sT2)
    Lgate = A.new_label("gatew")
    Lwdone = A.new_label("wdone")
    A(f"s_cmp_eq_u32 {s(sBlk)}, 43")
    A(f"s_cbranch_scc1 {Lgate}")
    raw_lane_off(A, vWG, vL, vT1, 2752)
    A(f"s_lshl_b32 {s(sT0)}, {s(sBlk)}, 6")
    A(f"v_add_u32 {v(vWG)}, {s(sT0)}, {v(vWG)}")
    blocks = []
    for b in range(16):
        blocks.append(dict(srd=S_A, voff=vWG, soff=[(32 * b) * 2752, (32 * b + 16) * 2752], raw=('a', 8 * b), dst=('a', 8 * b),
                           vtr=vTR, imm=TR_IMM['k16']))
    load_blocks(A, blocks, vST, window=16)
    A(f"s_branch {Lwdone}")
    A.label(Lgate)
    A(f"v_lshrrev_b32 {v(vWG)}, 5, {v(vL)}")
    A(f"v_lshlrev_b32 {v(vWG)}, 4, {v(vWG)}")
    A(f"v_and_b32 {v(vT1)}, 31, {v(vL)}")
    A(f"v_lshlrev_b32 {v(vT1)}, 12, {v(vT1)}")
    A(f"v_add_u32 {v(vWG)}, {v(vWG)}, {v(vT1)}")
    for kk in range(32):
        A(f"buffer_load_dwordx4 {a(4*kk,4)}, {v(vWG)}, {s(S_B,4)}, 0 offen offset:{kk*32}")
    A(f"s_waitcnt vmcnt(0)")
    A.label(Lwdone)
    xg.after_weights()
    A(f"s_lshl_b32 {s(sT0)}, {s(sBlk)}, 10")
    lane_expr(A, vHst, vL, [(4, 1, 43 * 1024), (5, 1, 256), (0, 4, 16)], sregs=[sT0])
    Lloop = A.new_label("ffn_loop")
    A.label(Lloop)
    A(f"s_add_u32 {s(sNext)}, {s(sSeg)}, 4")
    xg.issue_x(sNext)

    def mf(kk, f):
        c = "0" if kk == 0 else v(ACC, 16)
        A(f"v_mfma_f32_32x32x16_bf16 {v(ACC,16)}, {a(4*kk,4)}, {f}, {c}")
    xg.body(mf, wpos=opts.get('fwpos', 9))
    A.nop(12)
    Lge = A.new_label("gate_ep")
    Lepd = A.new_label("ep_done")
    A(f"s_cmp_eq_u32 {s(sBlk)}, 43")
    A(f"s_cbranch_scc1 {Lge}")
    A(f"s_mov_b32 {s(sT0)}, {f32_hex(-LOG2E):#x}")
    T = 80
    for i in range(16):
        A(f"v_mul_f32 {v(T+i)}, {s(sT0)}, {v(ACC+i)}")
    for i in range(16):
        A(f"v_exp_f32 {v(T+i)}, {v(T+i)}")
    for i in range(16):
        A(f"v_add_f32 {v(T+i)}, 1.0, {v(T+i)}")
    for i in range(16):
        A(f"v_rcp_f32 {v(T+i)}, {v(T+i)}")
    for i in range(16):
        A(f"v_mul_f32 {v(ACC+i)}, {v(ACC+i)}, {v(T+i)}")
    for i in range(8):
        A(f"v_cvt_pk_bf16_f32 {v(EP+i)}, {v(ACC+2*i)}, {v(ACC+2*i+1)}")
    A(f"s_mul_i32 {s(sT0)}, {s(sSeg)}, {HX_STRIDE}")
    A(f"s_add_u32 {s(sT0)}, {s(sT0)}, {WS_HX:#x}")
    for c in range(2):
        A(f"buffer_store_dwordx4 {v(EP+4*c,4)}, {v(vHst)}, {s(S_WS,4)}, {s(sT0)} offen offset:{c*512} sc1")
    A(f"s_branch {Lepd}")
    A.label(Lge)
    A(f"s_mov_b32 {s(sT0)}, {f32_hex(-LOG2E):#x}")
    A(f"v_mul_f32 {v(vT1)}, {s(sT0)}, {v(ACC)}")
    A(f"v_exp_f32 {v(vT1)}, {v(vT1)}")
    A.nop(1)
    A(f"v_add_f32 {v(vT1)}, 1.0, {v(vT1)}")
    A(f"v_rcp_f32 {v(vT1)}, {v(vT1)}")
    A(f"v_lshlrev_b32 {v(vT2)}, 2, {v(vL)}")
    A(f"s_lshl_b32 {s(sT0)}, {s(sSeg)}, 7")
    A(f"s_add_u32 {s(sT0)}, {s(sT0)}, {WS_G:#x}")
    A(f"s_mov_b64 exec, 0xffffffff")
    A(f"buffer_store_dword {v(vT1)}, {v(vT2)}, {s(S_WS,4)}, {s(sT0)} offen sc1")
    A(f"s_mov_b64 exec, -1")
    A.label(Lepd)
    xg.toggle()
    A(f"s_waitcnt lgkmcnt(0)")
    A(f"s_barrier")
    A(f"s_mov_b32 {s(sSeg)}, {s(sNext)}")
    A(f"s_cmp_lt_u32 {s(sSeg)}, 64")
    A(f"s_cbranch_scc1 {Lloop}")
    A(f"s_waitcnt vmcnt(0)")
    A(f"s_barrier")
    Lnf = A.new_label("ffn_nf")
    A(f"s_cmp_lg_u32 {s(sWAVE)}, 0")
    A(f"s_cbranch_scc1 {Lnf}")
    A(f"s_lshl_b32 {s(sOff)}, {s(sPar)}, 2")
    A(f"s_add_u32 {s(sOff)}, {s(sOff)}, {D_FFN*4}")
    A(f"s_mov_b32 {s(sShf)}, 0")
    signal_byte(A, None, vZero, sOff, sShf, vTmp)
    A.label(Lnf)
    A.label(Lph2)
    if opts.get('odelay') == 2:
        wait_wdone("b")
    stamp(A, 1)
    mk_srd(A, S_A, P_WO, 4096 * 1024)
    mk_srd(A, S_B, P_W2, 1376 * 1024)
    mk_srd(A, S_C, P_OUT, 2048 * 1024)
    vWG2, vTR2 = 8, 9
    raw_lane_off(A, vWG, vL, vT1, 1024)
    A(f"s_lshl_b32 {s(sT0)}, {s(sC_)}, 6")
    A(f"v_add_u32 {v(vWG)}, {s(sT0)}, {v(vWG)}")
    A(f"s_mul_i32 {s(sT0)}, {s(sWAVE)}, {11*32*1024}")
    A(f"v_add_u32 {v(vWG2)}, {s(sT0)}, {v(vWG)}")
    A(f"s_lshl_b32 {s(sT0)}, {s(sWAVE)}, 20")
    A(f"v_add_u32 {v(vWG)}, {s(sT0)}, {v(vWG)}")
    A(f"s_mul_i32 {s(sT2)}, {s(sWAVE)}, {2*STG_BUF}")
    A(f"s_add_u32 {s(sT2)}, {s(sT2)}, {STG}")
    tr_lane_addr(A, vTR, vL, vT1, vT2, 'out_wo', base_sreg=sT2)
    tr_lane_addr(A, vTR2, vL, vT1, vT2, 'out_w2', base_sreg=sT2)
    blocks = []
    for b in range(11):
        blocks.append(dict(srd=S_B, voff=vWG2, soff=[(32 * b) * 1024, (32 * b + 16) * 1024], raw=('v', 128 + 8 * b), dst=('v', 128 + 8 * b),
                           vtr=vTR2, imm=TR_IMM['out_w2']))
    for b in range(32):
        blocks.append(dict(srd=S_A, voff=vWG, soff=[(32 * b) * 1024, (32 * b + 16) * 1024], raw=('a', 8 * b), dst=('a', 8 * b),
                           vtr=vTR, imm=TR_IMM['out_wo']))
    load_blocks(A, blocks, vST, window=31)
    stamp(A, 2)
    A(f"s_lshl_b32 {s(sOff)}, {s(sPar)}, 2")
    A(f"s_add_u32 {s(sOff)}, {s(sOff)}, {D_FFN*4}")
    A(f"s_mov_b32 {s(sShf)}, 0")
    wait_byte(A, vTmp, vZero, sOff, sShf, 22, "ffn", sleep=4)
    A(f"s_mov_b32 {s(sOff)}, {D_CHECKIN*4}")
    wait_byte(A, vTmp, vZero, sOff, sShf, 32, "oci", sleep=4)
    A(f"s_barrier")
    vOF = 11
    A(f"v_and_b32 {v(vOF)}, 31, {v(vL)}")
    A(f"v_lshlrev_b32 {v(vOF)}, 2, {v(vOF)}")
    for _ in range(opts.get('otestdelay', 0)):
        A("s_sleep 127")
    stamp(A, 3)
    aA, aB = 16, 24
    bufs = [32 + 4 * i for i in range(24)] + [216 + 4 * i for i in range(10)]
    vRw, vRr, vOut, vG = 5, 6, 7, 8
    RED = 0
    A(f"s_lshl_b32 {s(sT0)}, {s(sWAVE)}, 12")
    A(f"v_add_u32 {v(vRw)}, {s(sT0)}, {v(vL16)}")
    A(f"s_and_b32 {s(sT0)}, {s(sWAVE)}, 1")
    A(f"s_lshl_b32 {s(sT0)}, {s(sT0)}, 10")
    A(f"v_add_u32 {v(vRr)}, {s(sT0)}, {v(vL16)}")
    A(f"s_lshl_b32 {s(sT0)}, {s(sSh)}, 14")
    A(f"s_lshl_b32 {s(sT1)}, {s(sC_)}, 6")
    A(f"s_add_u32 {s(sT0)}, {s(sT0)}, {s(sT1)}")
    A(f"s_and_b32 {s(sT1)}, {s(sWAVE)}, 1")
    A(f"s_lshl_b32 {s(sT1)}, {s(sT1)}, 5")
    A(f"s_add_u32 {s(sT0)}, {s(sT0)}, {s(sT1)}")
    lane_expr(A, vOut, vL, [(0, 4, 1024), (4, 2, 8)], sregs=[sT0])
    A(f"s_lshl_b32 {s(sT0)}, {s(sSh)}, 6")
    lane_expr(A, vG, vL, [(0, 4, 4)], sregs=[sT0])
    if opts.get('cf'):
        Lnb = A.new_label("nob63")
        A(f"s_cmp_lg_u32 {s(sPar)}, 1")
        A(f"s_cbranch_scc1 {Lnb}")
        A(f"s_mul_i32 {s(sT3)}, {s(sSh)}, {43*1024}")
        A(f"s_mul_i32 {s(sT2)}, {s(sWAVE)}, {11*1024}")
        A(f"s_add_u32 {s(sT2)}, {s(sT2)}, {s(sT3)}")
        A(f"s_add_u32 {s(sT2)}, {s(sT2)}, {WS_HX + 63 * HX_STRIDE:#x}")
        for b in range(11):
            if b in (4, 8):
                A(f"s_add_u32 {s(sT2)}, {s(sT2)}, 4096")
            if b == 10:
                A(f"s_cmp_eq_u32 {s(sWAVE)}, 3")
                A(f"s_cselect_b32 {s(sT3)}, 1024, 0")
                A(f"s_sub_u32 {s(sT2)}, {s(sT2)}, {s(sT3)}")
            A(f"buffer_load_dwordx4 {v(bufs[b],4)}, {v(vL16)}, {s(S_WS,4)}, {s(sT2)} offen offset:{(b%4)*1024}")
        for b in range(11):
            A(f"s_waitcnt vmcnt({10 - b})")
            for ct in range(2):
                c = "0" if b == 0 else v(aB + 4 * ct, 4)
                A(f"v_mfma_f32_16x16x32_bf16 {v(aB+4*ct,4)}, {v(128+8*b+4*ct,4)}, {v(bufs[b],4)}, {c}")
        A.nop(8)
        A(f"ds_write_b128 {v(vRw)}, {v(aB,4)} offset:2048")
        A(f"ds_write_b128 {v(vRw)}, {v(aB+4,4)} offset:3072")
        A(f"s_waitcnt lgkmcnt(0)")
        A(f"s_barrier")
        Lb2 = A.new_label("b63s")
        A(f"s_cmp_gt_u32 {s(sWAVE)}, 1")
        A(f"s_cbranch_scc1 {Lb2}")
        for w in range(4):
            A(f"ds_read_b128 {v(32+4*w,4)}, {v(vRr)} offset:{w*4096+2048}")
        A(f"v_lshlrev_b32 {v(vT1)}, 1, {v(vOut)}")
        A(f"s_waitcnt lgkmcnt(0)")
        for r in range(4):
            A(f"v_add_f32 {v(32+r)}, {v(32+r)}, {v(36+r)}")
            A(f"v_add_f32 {v(40+r)}, {v(40+r)}, {v(44+r)}")
        for r in range(4):
            A(f"v_add_f32 {v(32+r)}, {v(32+r)}, {v(40+r)}")
        A(f"s_mov_b32 {s(sT2)}, {WS_B63:#x}")
        A(f"buffer_store_dwordx4 {v(32,4)}, {v(vT1)}, {s(S_WS,4)}, {s(sT2)} offen sc1")
        A(f"s_waitcnt vmcnt(0)")
        A.label(Lb2)
        A(f"s_barrier")
        Lb3 = A.new_label("b63f")
        A(f"s_cmp_lg_u32 {s(sWAVE)}, 0")
        A(f"s_cbranch_scc1 {Lb3}")
        A(f"v_mov_b32 {v(vT2)}, 1")
        A(f"s_mov_b32 {s(sT2)}, {WS_OF + 63 * 128:#x}")
        A(f"s_mov_b64 exec, 1")
        A(f"buffer_atomic_add {v(vT2)}, off, {s(S_WS,4)}, {s(sT2)} sc1")
        A(f"s_mov_b64 exec, -1")
        A.label(Lb3)
        A.label(Lnb)
    A(f"s_mov_b32 {s(sSeg)}, {s(sPar)}")
    A(f"v_mov_b32 v12, 0")
    Lm = A.new_label("out_loop")
    A.label(Lm)
    A(f"s_mul_i32 {s(sT2)}, {s(sSeg)}, {HX_STRIDE}")
    A(f"s_mul_i32 {s(sT3)}, {s(sSh)}, {43*1024}")
    A(f"s_add_u32 {s(sT2)}, {s(sT2)}, {s(sT3)}")
    A(f"s_mul_i32 {s(sT3)}, {s(sWAVE)}, {11*1024}")
    A(f"s_add_u32 {s(sT2)}, {s(sT2)}, {s(sT3)}")
    A(f"s_add_u32 {s(sT2)}, {s(sT2)}, {WS_HX:#x}")
    vq = Q(A, "vmcnt", 63)
    for b in range(11):
        if b in (4, 8):
            A(f"s_add_u32 {s(sT2)}, {s(sT2)}, 4096")
        if b == 10:
            A(f"s_cmp_eq_u32 {s(sWAVE)}, 3")
            A(f"s_cselect_b32 {s(sT3)}, 1024, 0")
            A(f"s_sub_u32 {s(sT2)}, {s(sT2)}, {s(sT3)}")
        vq.issue(('H', b), f"buffer_load_dwordx4 {v(bufs[b],4)}, {v(vL16)}, {s(S_WS,4)}, {s(sT2)} offen offset:{(b%4)*1024}")
    A(f"s_lshl_b32 {s(sT2)}, {s(sSeg)}, 7")
    A(f"s_add_u32 {s(sT2)}, {s(sT2)}, {WS_G:#x}")
    vq.issue('g', f"buffer_load_dword v9, {v(vG)}, {s(S_WS,4)}, {s(sT2)} offen")
    A(f"s_lshl_b32 {s(sOff)}, {s(sSeg)}, 7")
    A(f"s_add_u32 {s(sOff)}, {s(sOff)}, {WS_OF:#x}")
    Lw = A.new_label("ow")
    Lp = A.new_label("op")
    OFE = opts.get('ofe', 1)
    if OFE:
        A(f"v_cmp_ne_u32 vcc, 0, v12")
        A(f"s_nop 0")
        A(f"s_cmp_eq_u64 vcc, -1")
        A(f"s_cbranch_scc1 {Lw}")
    else:
        A(f"s_cmp_lg_u32 {s(sWAVE)}, 0")
        A(f"s_cbranch_scc1 {Lw}")
    A(f"s_cmp_lg_u32 {s(sDEAD)}, 0")
    A(f"s_cbranch_scc1 {Lw}")
    A(f"s_mov_b32 {s(sShf)}, 0")
    A.label(Lp)
    A(f"buffer_load_dword v10, {v(vOF)}, {s(S_WS,4)}, {s(sOff)} offen sc1")
    A(f"s_waitcnt vmcnt(0)")
    A(f"v_cmp_ne_u32 vcc, 0, v10")
    A(f"s_add_u32 {s(sShf)}, {s(sShf)}, 1")
    A(f"s_nop 0")
    A(f"s_cmp_eq_u64 vcc, -1")
    A(f"s_cbranch_scc1 {Lw}")
    A(f"s_sleep {opts.get('osleep', 4)}")
    A(f"s_cmp_lt_u32 {s(sShf)}, {SPIN_LIMIT}")
    A(f"s_cbranch_scc1 {Lp}")
    A(f"s_mov_b32 {s(sDEAD)}, 1")
    A.label(Lw)
    if opts.get('tprof'):
        stamp(A, 4)
    if OFE:
        A(f"s_add_u32 {s(sOff)}, {s(sOff)}, 256")
        vq.issue('fl', f"buffer_load_dword v12, {v(vOF)}, {s(S_WS,4)}, {s(sOff)} offen sc1")
    else:
        A(f"s_barrier")
    A(f"s_lshl_b32 {s(sSO)}, {s(sSeg)}, 5")
    A(f"s_lshl_b32 {s(sT3)}, {s(sWAVE)}, 3")
    A(f"s_add_u32 {s(sSO)}, {s(sSO)}, {s(sT3)}")
    A(f"s_lshl_b32 {s(sSO)}, {s(sSO)}, 13")
    A(f"s_lshl_b32 {s(sT3)}, {s(sSh)}, 12")
    A(f"s_add_u32 {s(sSO)}, {s(sSO)}, {s(sT3)}")
    A(f"s_add_u32 {s(sSO)}, {s(sSO)}, {WS_OX:#x}")

    obuf = {}
    def issue_o(b, buf):
        A(f"s_add_u32 {s(sT3)}, {s(sSO)}, {(b>>2)*8192}")
        vq.issue(('O', b), f"buffer_load_dwordx4 {v(buf,4)}, {v(vL16)}, {s(S_WS,4)}, {s(sT3)} offen offset:{(b&3)*1024}")
        obuf[b] = buf
    nfree = len(bufs) - 11
    for b in range(nfree):
        issue_o(b, bufs[11 + b])
    nxt = nfree
    for b in range(11):
        vq.wait(('H', b))
        for ct in range(2):
            c = "0" if b == 0 else v(aB + 4 * ct, 4)
            A(f"v_mfma_f32_16x16x32_bf16 {v(aB+4*ct,4)}, {v(128+8*b+4*ct,4)}, {v(bufs[b],4)}, {c}")
        if nxt < 32:
            issue_o(nxt, bufs[b])
            nxt += 1
    for b in range(32):
        vq.wait(('O', b))
        if opts.get('tprof') and b in (0, 31):
            stamp(A, 5 if b == 0 else 6)
        for ct in range(2):
            c = "0" if b == 0 else v(aA + 4 * ct, 4)
            A(f"v_mfma_f32_16x16x32_bf16 {v(aA+4*ct,4)}, {a(8*b+4*ct,4)}, {v(obuf[b],4)}, {c}")
    A.nop(8)
    A(f"ds_write_b128 {v(vRw)}, {v(aA,4)} offset:0")
    A(f"ds_write_b128 {v(vRw)}, {v(aA+4,4)} offset:1024")
    A(f"ds_write_b128 {v(vRw)}, {v(aB,4)} offset:2048")
    A(f"ds_write_b128 {v(vRw)}, {v(aB+4,4)} offset:3072")
    A(f"s_waitcnt lgkmcnt(0)")
    A(f"s_barrier")
    Lsk = A.new_label("osk")
    A(f"s_cmp_gt_u32 {s(sWAVE)}, 1")
    A(f"s_cbranch_scc1 {Lsk}")
    R = 32
    for w in range(4):
        A(f"ds_read_b128 {v(R+8*w,4)}, {v(vRr)} offset:{w*4096}")
        A(f"ds_read_b128 {v(R+8*w+4,4)}, {v(vRr)} offset:{w*4096+2048}")
    A(f"s_waitcnt lgkmcnt(0)")
    for r in range(4):
        A(f"v_add_f32 {v(R+r)}, {v(R+r)}, {v(R+8+r)}")
        A(f"v_add_f32 {v(R+16+r)}, {v(R+16+r)}, {v(R+24+r)}")
        A(f"v_add_f32 {v(R+4+r)}, {v(R+4+r)}, {v(R+12+r)}")
        A(f"v_add_f32 {v(R+20+r)}, {v(R+20+r)}, {v(R+28+r)}")
    for r in range(4):
        A(f"v_add_f32 {v(R+r)}, {v(R+r)}, {v(R+16+r)}")
        A(f"v_add_f32 {v(R+4+r)}, {v(R+4+r)}, {v(R+20+r)}")
    for r in range(4):
        A(f"v_sub_f32 {v(R+r)}, {v(R+r)}, {v(R+4+r)}")
    for r in range(4):
        A(f"v_fma_f32 {v(R+r)}, {v(R+r)}, v9, {v(R+4+r)}")
    A(f"v_cvt_pk_bf16_f32 {v(R+8)}, {v(R)}, {v(R+1)}")
    A(f"v_cvt_pk_bf16_f32 {v(R+9)}, {v(R+2)}, {v(R+3)}")
    A(f"s_lshl_b32 {s(sT2)}, {s(sSeg)}, 15")
    A(f"buffer_store_dwordx2 {v(R+8,2)}, {v(vOut)}, {s(S_C,4)}, {s(sT2)} offen" + ["", " sc1", " sc0 sc1", " nt", " sc1 nt"][opts.get('opol', 0)])
    A.label(Lsk)
    if opts.get('tprof'):
        stamp(A, 7)
    if opts.get('ofe', 1):
        A(f"v_xor_b32 {v(vRw)}, 0x4000, {v(vRw)}")
        A(f"v_xor_b32 {v(vRr)}, 0x4000, {v(vRr)}")
    A(f"s_add_u32 {s(sSeg)}, {s(sSeg)}, 2")
    A(f"s_cmp_lt_u32 {s(sSeg)}, {63 if opts.get('cf') else 64}")
    A(f"s_cbranch_scc1 {Lm}")
    A(f"s_waitcnt vmcnt(0)")
```

```python
from dsl import *
import gen as G
from gen import *
from gen_chain2 import f32_hex, SCALE_C

KML = 73728
vKr, vKw, vVm, vOst = 14, 116, 117, 118
vKw, vVm, vOst = 5, 6, 7
vOnes = 120
sMask = 16
sLo = 54
sC, sNC = 56, 57
sPo, sPs = 58, 59
RK, RQ, RV, RKM, RVM = 16, 48, 64, 80, 96
TS = 108
ONES = 120
BM = 124


def xatt_setup(A, xg, sH):
    vL = xg.vL
    vT1, vT2 = xg.vT1, xg.vT2
    A(f"s_lshl_b32 {s(sT0)}, {s(sWAVE)}, 11")
    A(f"s_add_u32 {s(sT0)}, {s(sT0)}, {KML}")
    lane_expr(A, vKr, vL, [(5, 1, 256), (4, 1, 64), (2, 2, 16), (0, 1, 8)], sregs=[sT0])
    A(f"v_add_u32 {v(vKw)}, {s(sT0)}, {v(xg.vL16)}")
    A(f"s_lshr_b32 {s(sT0)}, {s(sWAVE)}, 1")
    A(f"s_lshl_b32 {s(sT0)}, {s(sT0)}, 10")
    lane_expr(A, vVm, vL, [(0, 4, 16), (4, 1, 8)], const=2048, sregs=[sT0])
    A(f"s_and_b32 {s(sT1)}, {s(sWAVE)}, 1")
    A(f"s_lshl_b32 {s(sT1)}, {s(sT1)}, 12")
    A(f"s_lshl_b32 {s(sT0)}, {s(sT0)}, 1")
    A(f"s_add_u32 {s(sT0)}, {s(sT0)}, {s(sT1)}")
    A(f"v_add_u32 {v(vOst)}, {s(sT0)}, {v(xg.vL16)}")
    A(f"s_and_b32 {s(sT1)}, {s(sWAVE)}, 1")
    A(f"s_lshl_b32 {s(sT1)}, {s(sT1)}, 4")
    A(f"v_and_b32 {v(vT1)}, 15, {v(vL)}")
    A(f"v_lshrrev_b32 {v(vT2)}, 4, {v(vL)}")
    A(f"v_lshlrev_b32 {v(vT2)}, 2, {v(vT2)}")
    A(f"v_sub_u32 {v(vT1)}, {v(vT1)}, {v(vT2)}")
    A(f"v_add_u32 {v(vT1)}, {s(sT1)}, {v(vT1)}")
    for t in range(2):
        for r in range(4):
            A(f"v_cmp_le_i32 {s(sMask + 2*(4*t+r), 2)}, {16*t+r}, {v(vT1)}")
    A(f"s_mov_b32 {s(sLo)}, -1")
    A(f"s_mov_b32 {s(sLo+1)}, 0")
    A(f"s_mov_b32 {s(sC)}, {f32_hex(SCALE_C):#x}")
    A(f"s_mov_b32 {s(sNC)}, {f32_hex(-SCALE_C):#x}")


def xatt_task(A, xg, sH, sSegX, opts={}):
    vL16, vZero, vTmp, vT1, vT2 = xg.vL16, xg.vZero, xg.vTmp, xg.vT1, xg.vT2
    sB = sT2
    A(f"s_lshl_b32 {s(sT2)}, {s(sSegX)}, 5")
    A(f"s_add_u32 {s(sT2)}, {s(sT2)}, {s(sH)}")
    A(f"s_lshl_b32 {s(sT3)}, {s(sT2)}, 13")
    A(f"s_lshl_b32 {s(sT5)}, {s(sT2)}, 14")
    A(f"s_add_u32 {s(sT4)}, {s(sT5)}, {WS_KX:#x}")
    for j in range(8):
        if j == 4:
            A(f"s_add_u32 {s(sT4)}, {s(sT4)}, 4096")
        A(f"buffer_load_dwordx4 {v(RK+4*j,4)}, {v(vL16)}, {s(S_WS,4)}, {s(sT4)} offen offset:{(j%4)*1024}")
    A(f"s_and_b32 {s(sT4)}, {s(sWAVE)}, 1")
    A(f"s_lshl_b32 {s(sT4)}, {s(sT4)}, 12")
    A(f"s_add_u32 {s(sT4)}, {s(sT4)}, {s(sT3)}")
    A(f"s_add_u32 {s(sT4)}, {s(sT4)}, {WS_QX:#x}")
    for ks in range(4):
        A(f"buffer_load_dwordx4 {v(RQ+4*ks,4)}, {v(vL16)}, {s(S_WS,4)}, {s(sT4)} offen offset:{ks*1024}")
    A(f"s_lshr_b32 {s(sT4)}, {s(sWAVE)}, 1")
    A(f"s_lshl_b32 {s(sT4)}, {s(sT4)}, 12")
    A(f"s_add_u32 {s(sT4)}, {s(sT4)}, {s(sT5)}")
    A(f"s_add_u32 {s(sT4)}, {s(sT4)}, {WS_KX + 8192:#x}")
    for p in range(4):
        A(f"buffer_load_dwordx4 {v(RV+4*p,4)}, {v(vL16)}, {s(S_WS,4)}, {s(sT4)} offen offset:{p*1024}")
    for i in range(4):
        A(f"v_mov_b32 {v(ONES+i)}, 0x3f803f80")
    A(f"v_mov_b32 {v(BM+2)}, 0")
    A(f"v_mov_b32 {v(BM+3)}, 0")
    A(f"v_mov_b32 {v(RVM+8)}, 0")
    A(f"v_mov_b32 {v(RVM+9)}, 0")
    A(f"s_lshl_b32 {s(sPo)}, {s(sT2)}, 12")
    A(f"s_add_u32 {s(sPo)}, {s(sPo)}, {WS_KM:#x}")
    Lw = A.new_label("xw")
    Lp = A.new_label("xp")
    A(f"s_cmp_lg_u32 {s(sWAVE)}, 0")
    A(f"s_cbranch_scc1 {Lw}")
    A(f"s_cmp_lg_u32 {s(sDEAD)}, 0")
    A(f"s_cbranch_scc1 {Lw}")
    A(f"s_mov_b32 {s(sPs)}, 0")
    A(f"s_add_u32 {s(sT4)}, {s(sPo)}, 4092")
    if opts.get('xlast', 1):
        A(f"s_sub_u32 {s(sT0)}, {s(sT4)}, {32 * 4096:#x}")
        A(f"s_cmp_ge_u32 {s(sSegX)}, {64 - opts.get('xlast', 1)}")
        A(f"s_cselect_b32 {s(sT4)}, {s(sT0)}, {s(sT4)}")
    A.label(Lp)
    A(f"buffer_load_dword {v(vTmp)}, off, {s(S_WS,4)}, {s(sT4)} sc1")
    A(f"s_waitcnt vmcnt(0)")
    A(f"v_readfirstlane_b32 {s(sT0)}, {v(vTmp)}")
    A(f"s_cmp_lg_u32 {s(sT0)}, -1")
    A(f"s_cbranch_scc1 {Lw}")
    A(f"s_sleep {opts.get('x1sleep', 4)}")
    A(f"s_add_u32 {s(sPs)}, {s(sPs)}, 1")
    A(f"s_cmp_lt_u32 {s(sPs)}, {SPIN_LIMIT}")
    A(f"s_cbranch_scc1 {Lp}")
    A(f"s_mov_b32 {s(sDEAD)}, 1")
    A.label(Lw)
    A(f"s_barrier")
    Lr = A.new_label("xr")
    Lk = A.new_label("xk")
    A(f"s_mov_b32 {s(sPs)}, 0")
    A.label(Lr)
    A(f"buffer_load_dwordx4 {v(RKM,4)}, {v(vL16)}, {s(S_WS,4)}, {s(sPo)} offen sc1")
    A(f"buffer_load_dwordx4 {v(RKM+4,4)}, {v(vL16)}, {s(S_WS,4)}, {s(sPo)} offen offset:1024 sc1")
    for p in range(4):
        A(f"buffer_load_dwordx2 {v(RVM+2*p,2)}, {v(vVm)}, {s(S_WS,4)}, {s(sPo)} offen offset:{p*256} sc1")
    A(f"s_waitcnt vmcnt(4)")
    A(f"v_max3_u32 {v(RKM+8)}, {v(RKM)}, {v(RKM+1)}, {v(RKM+2)}")
    A(f"v_max3_u32 {v(RKM+9)}, {v(RKM+3)}, {v(RKM+4)}, {v(RKM+5)}")
    A(f"v_max3_u32 {v(RKM+8)}, {v(RKM+8)}, {v(RKM+6)}, {v(RKM+7)}")
    A(f"s_waitcnt vmcnt(0)")
    A(f"v_max3_u32 {v(RKM+10)}, {v(RVM)}, {v(RVM+1)}, {v(RVM+2)}")
    A(f"v_max3_u32 {v(RKM+11)}, {v(RVM+3)}, {v(RVM+4)}, {v(RVM+5)}")
    A(f"v_max3_u32 {v(RKM+10)}, {v(RKM+10)}, {v(RVM+6)}, {v(RVM+7)}")
    A(f"v_max3_u32 {v(RKM+8)}, {v(RKM+8)}, {v(RKM+9)}, {v(RKM+10)}")
    A(f"v_max_u32 {v(RKM+8)}, {v(RKM+8)}, {v(RKM+11)}")
    A(f"v_cmp_eq_u32 vcc, -1, {v(RKM+8)}")
    A(f"s_add_u32 {s(sPs)}, {s(sPs)}, 1")
    A(f"s_nop 0")
    A(f"s_cbranch_vccz {Lk}")
    A(f"s_cmp_lg_u32 {s(sDEAD)}, 0")
    A(f"s_cbranch_scc1 {Lk}")
    A(f"s_sleep {opts.get('xsleep', 2)}")
    A(f"s_cmp_lt_u32 {s(sPs)}, {SPIN_LIMIT}")
    A(f"s_cbranch_scc1 {Lr}")
    A(f"s_mov_b32 {s(sDEAD)}, 1")
    A.label(Lk)
    if opts.get('tprof'):
        stamp(A, 5)
    A(f"ds_write_b128 {v(vKw)}, {v(RKM,4)}")
    A(f"ds_write_b128 {v(vKw)}, {v(RKM+4,4)} offset:1024")
    for ks in range(4):
        for hf in range(2):
            A(f"ds_read_b64_tr_b16 {v(RKM+4*ks+2*hf,2)}, {v(vKr)} offset:{(32*ks+8*hf)*16}")
    T0, T1, TM = TS, TS + 4, TS + 8
    for ks in range(4):
        c0 = "0" if ks == 0 else v(T0, 4)
        c1 = "0" if ks == 0 else v(T1, 4)
        A(f"v_mfma_f32_16x16x32_bf16 {v(T0,4)}, {v(RK+4*ks,4)}, {v(RQ+4*ks,4)}, {c0}")
        A(f"v_mfma_f32_16x16x32_bf16 {v(T1,4)}, {v(RK+16+4*ks,4)}, {v(RQ+4*ks,4)}, {c1}")
    A(f"s_waitcnt lgkmcnt(0)")
    for ks in range(4):
        cm = "0" if ks == 0 else v(TM, 4)
        A(f"v_mfma_f32_16x16x32_bf16 {v(TM,4)}, {v(RKM+4*ks,4)}, {v(RQ+4*ks,4)}, {cm}")
    A(f"v_mov_b32 {v(vT2)}, 0xff800000")
    A.nop(2)
    for t in range(2):
        for r in range(4):
            A(f"v_cndmask_b32 {v(TS+4*t+r)}, {v(vT2)}, {v(TS+4*t+r)}, {s(sMask+2*(4*t+r),2)}")
    m, t_ = vT1, vT2
    x0, x1 = RK, RK + 1
    A(f"v_max3_f32 {v(m)}, {v(T0)}, {v(T0+1)}, {v(T0+2)}")
    A(f"v_max3_f32 {v(t_)}, {v(T0+3)}, {v(T1)}, {v(T1+1)}")
    A(f"v_max3_f32 {v(m)}, {v(m)}, {v(T1+2)}, {v(T1+3)}")
    A(f"v_max3_f32 {v(m)}, {v(m)}, {v(t_)}, {v(TM)}")
    A(f"v_max3_f32 {v(t_)}, {v(TM+1)}, {v(TM+2)}, {v(TM+3)}")
    A(f"v_max_f32 {v(x0)}, {v(m)}, {v(t_)}")
    A(f"v_max_f32 {v(x1)}, {v(m)}, {v(t_)}")
    A.nop(2)
    A(f"v_permlane16_swap_b32 {v(x0)}, {v(x1)}")
    A(f"v_max_f32 {v(m)}, {v(x0)}, {v(x1)}")
    A(f"v_max_f32 {v(t_)}, {v(x0)}, {v(x1)}")
    A.nop(2)
    A(f"v_permlane32_swap_b32 {v(m)}, {v(t_)}")
    A(f"v_max_f32 {v(m)}, {v(m)}, {v(t_)}")
    A(f"v_mul_f32 {v(m)}, {s(sNC)}, {v(m)}")
    for i in range(12):
        A(f"v_fma_f32 {v(TS+i)}, {v(TS+i)}, {s(sC)}, {v(m)}")
    for i in range(12):
        A(f"v_exp_f32 {v(TS+i)}, {v(TS+i)}")
    BX = RK + 4
    A.nop(1)
    A(f"v_cvt_pk_bf16_f32 {v(BX)}, {v(T0)}, {v(T0+1)}")
    A(f"v_cvt_pk_bf16_f32 {v(BX+1)}, {v(T0+2)}, {v(T0+3)}")
    A(f"v_cvt_pk_bf16_f32 {v(BX+2)}, {v(T1)}, {v(T1+1)}")
    A(f"v_cvt_pk_bf16_f32 {v(BX+3)}, {v(T1+2)}, {v(T1+3)}")
    A(f"v_cvt_pk_bf16_f32 {v(BM)}, {v(TM)}, {v(TM+1)}")
    A(f"v_cvt_pk_bf16_f32 {v(BM+1)}, {v(TM+2)}, {v(TM+3)}")
    A(f"v_cndmask_b32 {v(BM)}, 0, {v(BM)}, {s(sLo,2)}")
    A(f"v_cndmask_b32 {v(BM+1)}, 0, {v(BM+1)}, {s(sLo,2)}")
    O = RK + 8
    LS = RK + 24
    A(f"s_waitcnt vmcnt(0)")
    A.nop(2)
    A(f"v_mfma_f32_16x16x32_bf16 {v(LS,4)}, {v(ONES,4)}, {v(BX,4)}, 0")
    for p in range(4):
        A(f"v_mfma_f32_16x16x32_bf16 {v(O+4*p,4)}, {v(RV+4*p,4)}, {v(BX,4)}, 0")
    A(f"v_mfma_f32_16x16x32_bf16 {v(LS,4)}, {v(ONES,4)}, {v(BM,4)}, {v(LS,4)}")
    for p in range(4):
        A(f"v_mfma_f32_16x16x32_bf16 {v(O+4*p,4)}, {v(RVM+2*p,4)}, {v(BM,4)}, {v(O+4*p,4)}")
    A.nop(8)
    A(f"v_rcp_f32 {v(m)}, {v(LS)}")
    A.nop(1)
    for i in range(16):
        A(f"v_mul_f32 {v(O+i)}, {v(O+i)}, {v(m)}")
    PKO = RQ
    for i in range(8):
        A(f"v_cvt_pk_bf16_f32 {v(PKO+i)}, {v(O+2*i)}, {v(O+2*i+1)}")
    A(f"s_add_u32 {s(sT4)}, {s(sT3)}, {WS_OX:#x}")
    A(f"buffer_store_dwordx4 {v(PKO,4)}, {v(vOst)}, {s(S_WS,4)}, {s(sT4)} offen sc1")
    A(f"buffer_store_dwordx4 {v(PKO+4,4)}, {v(vOst)}, {s(S_WS,4)}, {s(sT4)} offen offset:1024 sc1")
    if opts.get('tprof'):
        stamp(A, 6)
    A(f"s_waitcnt vmcnt(0)")
    if opts.get('tprof'):
        stamp(A, 7)
    A(f"s_barrier")
    Lf = A.new_label("xf")
    A(f"s_cmp_lg_u32 {s(sWAVE)}, 0")
    A(f"s_cbranch_scc1 {Lf}")
    A(f"s_lshl_b32 {s(sT0)}, {s(sSegX)}, 7")
    A(f"s_lshl_b32 {s(sT1)}, {s(sH)}, 2")
    A(f"s_add_u32 {s(sT0)}, {s(sT0)}, {s(sT1)}")
    A(f"s_add_u32 {s(sT0)}, {s(sT0)}, {WS_OF:#x}")
    A(f"v_mov_b32 {v(vTmp)}, 1")
    A(f"s_mov_b64 exec, 1")
    A(f"buffer_store_dword {v(vTmp)}, off, {s(S_WS,4)}, {s(sT0)} sc1")
    A(f"s_mov_b64 exec, -1")
    A.label(Lf)
```

```python
import sys
from dsl import *

KNAME = "gated_mix__memory_aug_recurrent_mem_tr__dense_activation_silu__prompt_kernel"

WS_P = 0
WS_M = 0x100000
WS_KVF = 0x110000
WS_OF = 0x120000
WS_KM = 0x200000
WS_PF = 0xA00000
WS_B63 = 0xB10000
WS_KX = 0x1000000
KVSTR = 16384
WS_QX = 0x3000000
WS_OX = 0x4000000
WS_HX = 0x5000000
HX_STRIDE = 2 * 43 * 1024
WS_CP = 0x5600000
WS_G = 0x5800000
WS_T = 0x5810000
WS_SIZE = 0x5860000

D_CHECKIN = 0
D_XCCMASK = 1
D_FFN = 2
D_ERR = 4
D_WDONE = 5
D_KV = 8
D_O = 24
D_PROG = 40

S_WS, S_DBG, S_X, S_A, S_B, S_C, S_D = 4, 8, 12, 16, 20, 24, 28
sWAVE, sIDX, sXCD = 32, 33, 34
sT0, sT1, sT2, sT3, sT4, sT5 = 35, 36, 37, 38, 39, 40
sDEAD = 41
sEX = 42
P_X, P_MEM0, P_WQ, P_WK, P_WV, P_WO, P_W1, P_W2, P_GATE, P_OUT, P_DBG, P_WS = 64, 66, 68, 70, 72, 74, 80, 82, 84, 86, 88, 90
SPIN_LIMIT = 1 << 17

LDS_BYTES = 160 * 1024


def mk_srd(A, d, p, size):
    A(f"s_mov_b32 {s(d)}, {s(p)}")
    A(f"s_mov_b32 {s(d+1)}, {s(p+1)}")
    A(f"s_mov_b32 {s(d+2)}, {size:#x}")
    A(f"s_mov_b32 {s(d+3)}, 0x00020000")


def wait_byte(A, vT, vZero, s_off, s_shift, target, tag, s_tmp=sT0, s_cnt=sT1, target_is_sreg=False, sleep=2):
    L = A.new_label("w" + tag)
    Ld = A.new_label("wd" + tag)
    A(f"s_mov_b32 {s(s_cnt)}, 0")
    A(f"s_cmp_lg_u32 {s(sDEAD)}, 0")
    A(f"s_cbranch_scc1 {Ld}")
    A.label(L)
    A(f"buffer_load_dword {v(vT)}, {v(vZero)}, {s(S_DBG,4)}, {s(s_off)} offen sc1")
    A(f"s_waitcnt vmcnt(0)")
    A(f"v_readfirstlane_b32 {s(s_tmp)}, {v(vT)}")
    A(f"s_lshr_b32 {s(s_tmp)}, {s(s_tmp)}, {s(s_shift)}")
    A(f"s_and_b32 {s(s_tmp)}, {s(s_tmp)}, 0xff")
    A(f"s_cmp_ge_u32 {s(s_tmp)}, {s(target) if target_is_sreg else target}")
    A(f"s_cbranch_scc1 {Ld}")
    if sleep:
        A(f"s_sleep {sleep}")
    A(f"s_add_u32 {s(s_cnt)}, {s(s_cnt)}, 1")
    A(f"s_cmp_lt_u32 {s(s_cnt)}, {SPIN_LIMIT}")
    A(f"s_cbranch_scc1 {L}")
    A(f"s_mov_b32 {s(sDEAD)}, 1")
    A.label(Ld)


def signal_byte(A, vOne, vZero, s_off, s_shift, vTmp):
    A(f"s_lshl_b32 {s(sT0)}, 1, {s(s_shift)}")
    A(f"v_mov_b32 {v(vTmp)}, {s(sT0)}")
    A(f"s_mov_b64 {s(sEX,2)}, exec")
    A(f"s_mov_b64 exec, 1")
    A(f"buffer_atomic_add {v(vTmp)}, {v(vZero)}, {s(S_DBG,4)}, {s(s_off)} offen sc1")
    A(f"s_mov_b64 exec, {s(sEX,2)}")


PROF = False
sSTAMP = 92


def stamp(A, i):
    if not PROF:
        return
    A(f"s_memrealtime s[62:63]")
    A(f"s_waitcnt lgkmcnt(0)")
    A(f"s_mov_b32 {s(sSTAMP+i)}, s62")


def stamp_clk(A, i):
    if not PROF:
        return
    A(f"s_memtime s[62:63]")
    A(f"s_waitcnt lgkmcnt(0)")
    A(f"s_mov_b32 {s(sSTAMP+i)}, s62")


def stamp_if_lt(A, i, sreg, limit, clk=False):
    if not PROF:
        return
    L = A.new_label("st")
    A(f"s_cmp_lt_u32 {s(sreg)}, {limit}")
    A(f"s_cbranch_scc0 {L}")
    (stamp_clk if clk else stamp)(A, i)
    A.label(L)


def stamp_flush(A):
    if not PROF:
        return
    A(f"s_lshl_b32 s62, s2, 2")
    A(f"s_add_u32 s62, s62, {s(sWAVE)}")
    A(f"s_lshl_b32 s62, s62, 6")
    A(f"s_add_u32 s62, s62, {WS_T:#x}")
    A(f"v_mov_b32 v1, 0")
    A(f"s_mov_b64 exec, 1")
    for i in range(10):
        A(f"v_mov_b32 v2, {s(sSTAMP+i)}")
        A(f"buffer_store_dword v2, v1, {s(S_WS,4)}, s62 offen offset:{4*i}")
    A(f"s_waitcnt vmcnt(0)")


STG_BUF = 3072


def stage_addr(row):
    return 64 * row + 128 * (row >> 2)


def load_blocks(A, blocks, vST, window, after_first_issue=None, nolds=False):
    n = len(blocks)

    def issue(b):
        blk = blocks[b]
        for k in range(2):
            so = blk['soff'][k]
            A(f"s_mov_b32 {s(sT0)}, {so:#x}")
            if blk.get('sbase') is not None:
                A(f"s_add_u32 {s(sT0)}, {s(sT0)}, {s(blk['sbase'])}")
            A(f"buffer_load_dwordx4 {reg(off(blk['raw'], 4*k), 4)}, {v(blk['voff'])}, {s(blk['srd'],4)}, {s(sT0)} offen")

    issued = 0
    def can_issue(b, done):
        r = blocks[b]['raw']
        for p in range(b):
            if blocks[p]['raw'] == r or blocks[p].get('dst') == r:
                if p >= done:
                    return False
        return True

    while issued < n and issued < window and can_issue(issued, 0):
        issue(issued)
        issued += 1
    if after_first_issue:
        after_first_issue(2 * issued)
    for b in range(n):
        blk = blocks[b]
        assert issued > b, "window deadlock"
        A(f"s_waitcnt vmcnt({2*(issued-b-1)})")
        buf = (b & 1) * STG_BUF
        if not nolds:
            A(f"ds_write_b128 {v(vST)}, {reg(blk['raw'],4)} offset:{buf}")
            A(f"ds_write_b128 {v(vST)}, {reg(off(blk['raw'],4),4)} offset:{buf + stage_addr(16)}")
            for i in range(4):
                A(f"ds_read_b64_tr_b16 {reg(off(blk['dst'],2*i),2)}, {v(blk['vtr'])} offset:{buf + blk['imm'][i]}")
        if blk.get('post'):
            blk['post'](A)
        while issued < n and issued - b - 1 < window and can_issue(issued, b + 1):
            issue(issued)
            issued += 1
    A("s_waitcnt lgkmcnt(0)")


def load_blocks2(A, blocks, vST, window, extra=None, nolds=False, vq=None, upto=None):
    n = len(blocks)
    vq = vq or Q(A, "vmcnt", 63)
    state = dict(issued=0, xi=False, xc=False)

    def issue(b):
        blk = blocks[b]
        for k in range(2):
            A(f"s_mov_b32 {s(sT0)}, {blk['soff'][k]:#x}")
            vq.issue(('B', id(blk)), f"buffer_load_dwordx4 {reg(off(blk['raw'], 4*k), 4)}, {v(blk['voff'])}, {s(blk['srd'],4)}, {s(sT0)} offen")
        state['issued'] += 1
        if extra and b == extra[0]:
            extra[1](vq)
            state['xi'] = True
    while state['issued'] < n and state['issued'] < window:
        issue(state['issued'])
    for b in range(n):
        blk = blocks[b]
        vq.wait(('B', id(blk)))
        if extra and state['xi'] and not state['xc'] and b > extra[0]:
            extra[2](vq)
            state['xc'] = True
        buf = (b & 1) * STG_BUF
        if not nolds:
            A(f"ds_write_b128 {v(vST)}, {reg(blk['raw'],4)} offset:{buf}")
            A(f"ds_write_b128 {v(vST)}, {reg(off(blk['raw'],4),4)} offset:{buf + stage_addr(16)}")
            for i in range(4):
                A(f"ds_read_b64_tr_b16 {reg(off(blk['dst'],2*i),2)}, {v(blk['vtr'])} offset:{buf + blk['imm'][i]}")
        if blk.get('post'):
            blk['post'](A)
        while state['issued'] < n and state['issued'] - b - 1 < window:
            issue(state['issued'])
    if extra and not state['xc']:
        extra[2](vq)
    A("s_waitcnt lgkmcnt(0)")


def tr_lane_addr(A, vD, vL, vT1, vT2, kind, base_sreg=None, base_imm=0):
    A(f"v_lshrrev_b32 {v(vT1)}, 4, {v(vL)}")
    A(f"v_bfe_u32 {v(vT2)}, {v(vL)}, 2, 2")
    A(f"v_and_b32 {v(vD)}, 3, {v(vL)}")
    A(f"v_lshlrev_b32 {v(vD)}, 3, {v(vD)}")

    def add_term(expr_src, mask_shift, mul):
        sh, bits = mask_shift
        A(f"v_bfe_u32 v{TMPX}, {v(expr_src)}, {sh}, {bits}")
        A(f"v_mul_u32_u24 v{TMPX}, {mul}, v{TMPX}")
        A(f"v_add_u32 {v(vD)}, {v(vD)}, v{TMPX}")

    G, r = vT1, vT2
    def sa(row):
        return stage_addr(row)
    if kind == 'chain_qkv':
        add_term(G, (1, 1), sa(8)); add_term(G, (0, 1), sa(4)); add_term(r, (0, 1), sa(1)); add_term(r, (1, 1), 32)
    elif kind == 'chain_wo':
        add_term(G, (0, 1), sa(16)); add_term(G, (1, 1), sa(4)); add_term(r, (0, 1), sa(1)); add_term(r, (1, 1), 32)
    elif kind == 'k16':
        add_term(G, (1, 1), sa(8)); add_term(r, (0, 2), sa(1)); add_term(G, (0, 1), 32)
    elif kind == 'out_wo':
        add_term(G, (0, 2), sa(4)); add_term(r, (0, 2), sa(1))
    elif kind == 'out_w2':
        add_term(G, (1, 1), sa(16)); add_term(G, (0, 1), sa(4)); add_term(r, (0, 2), sa(1))
    else:
        raise ValueError(kind)
    if base_sreg is not None:
        A(f"v_add_u32 {v(vD)}, {s(base_sreg)}, {v(vD)}")
    if base_imm:
        A(f"v_add_u32 {v(vD)}, {base_imm}, {v(vD)}")


TR_IMM = {
    'chain_qkv': [stage_addr(16 * hi + 2 * qq) for hi in range(2) for qq in range(2)],
    'chain_wo': [stage_addr(8 * hi + 2 * qq) for hi in range(2) for qq in range(2)],
    'k16': [stage_addr(16 * kk + 4 * hf) for kk in range(2) for hf in range(2)],
    'out_wo': [stage_addr(16 * hf) + 32 * ct for ct in range(2) for hf in range(2)],
    'out_w2': [stage_addr(8 * hf) + 32 * ct for ct in range(2) for hf in range(2)],
}
TMPX = 15


def stage_lane_addr(A, vD, vL, vT, base_sreg):
    A(f"v_lshrrev_b32 {v(vD)}, 2, {v(vL)}")
    A(f"v_lshlrev_b32 {v(vD)}, 6, {v(vD)}")
    A(f"v_lshrrev_b32 {v(vT)}, 4, {v(vL)}")
    A(f"v_lshlrev_b32 {v(vT)}, 7, {v(vT)}")
    A(f"v_add_u32 {v(vD)}, {v(vD)}, {v(vT)}")
    A(f"v_and_b32 {v(vT)}, 3, {v(vL)}")
    A(f"v_lshlrev_b32 {v(vT)}, 4, {v(vT)}")
    A(f"v_add_u32 {v(vD)}, {v(vD)}, {v(vT)}")
    A(f"v_add_u32 {v(vD)}, {s(base_sreg)}, {v(vD)}")


def raw_lane_off(A, vD, vL, vT, pitch):
    A(f"v_lshrrev_b32 {v(vD)}, 2, {v(vL)}")
    A(f"v_mul_u32_u24 {v(vD)}, {pitch}, {v(vD)}")
    A(f"v_and_b32 {v(vT)}, 3, {v(vL)}")
    A(f"v_lshlrev_b32 {v(vT)}, 4, {v(vT)}")
    A(f"v_add_u32 {v(vD)}, {v(vD)}, {v(vT)}")


def lane_expr(A, vD, vL, terms, const=0, sregs=(), tmp=None):
    tmp = TMPX if tmp is None else tmp
    first = True
    for (sh, bits, mul) in terms:
        dst = vD if first else tmp
        A(f"v_bfe_u32 {v(dst)}, {v(vL)}, {sh}, {bits}")
        if mul != 1:
            A(f"v_mul_u32_u24 {v(dst)}, {mul}, {v(dst)}")
        if not first:
            A(f"v_add_u32 {v(vD)}, {v(vD)}, {v(tmp)}")
        first = False
    if first:
        A(f"v_mov_b32 {v(vD)}, 0")
    if const:
        A(f"v_add_u32 {v(vD)}, {const:#x}, {v(vD)}")
    for sr in sregs:
        A(f"v_add_u32 {v(vD)}, {s(sr)}, {v(vD)}")


class Q:
    def __init__(self, A, name, cap):
        self.A, self.name, self.cap = A, name, cap
        self.ops = []

    def issue(self, tag, text):
        self.A(text)
        self.ops.append(tag)

    def wait(self, tag):
        if tag not in self.ops:
            return
        i = max(j for j, t in enumerate(self.ops) if t == tag)
        n = len(self.ops) - 1 - i
        self.A(f"s_waitcnt {self.name}({min(n, self.cap)})")
        if n <= self.cap:
            self.ops = self.ops[i + 1:]
        else:
            self.ops = self.ops[len(self.ops) - self.cap:]

    def wait_all(self):
        self.A(f"s_waitcnt {self.name}(0)")
        self.ops = []


XBUF = 64 * 528
XB1 = 36864


class XG:
    vL, vL16, vXW, vXR, vZero, vTmp, vT1, vT2 = 1, 2, 3, 4, 10, 11, 12, 13
    XP, XF = 16, 48
    NF = 4

    def __init__(self, A, sDelta):
        self.A, self.sDelta = A, sDelta

    def setup(self):
        A = self.A
        vL, vL16, vXW, vXR, vZero, vT1 = self.vL, self.vL16, self.vXW, self.vXR, self.vZero, self.vT1
        A(f"v_and_b32 {v(vL)}, 63, v0")
        A(f"v_lshlrev_b32 {v(vL16)}, 4, {v(vL)}")
        A(f"v_mov_b32 {v(vZero)}, 0")
        A(f"v_mul_u32_u24 {v(vXW)}, 528, {v(vL)}")
        A(f"s_lshl_b32 {s(sT0)}, {s(sWAVE)}, 7")
        A(f"v_add_u32 {v(vXW)}, {s(sT0)}, {v(vXW)}")
        A(f"v_lshrrev_b32 {v(vXR)}, 5, {v(vL)}")
        A(f"v_mul_u32_u24 {v(vXR)}, 528, {v(vXR)}")
        A(f"v_and_b32 {v(vT1)}, 31, {v(vL)}")
        A(f"v_lshlrev_b32 {v(vT1)}, 4, {v(vT1)}")
        A(f"v_add_u32 {v(vXR)}, {v(vXR)}, {v(vT1)}")

    def issue_x(self, seg_sreg, vq=None):
        A = self.A
        if vq is not None:
            A = lambda x_: (vq.issue('x', x_) if x_.startswith('buffer_load') else self.A(x_))
        A(f"s_lshl_b32 {s(sT0)}, {s(seg_sreg)}, 15")
        A(f"s_lshl_b32 {s(sT1)}, {s(sWAVE)}, 13")
        A(f"s_add_u32 {s(sT0)}, {s(sT0)}, {s(sT1)}")
        for i in range(8):
            if i == 4:
                A(f"s_add_u32 {s(sT0)}, {s(sT0)}, 4096")
            A(f"buffer_load_dwordx4 {v(self.XP+4*i,4)}, {v(self.vL16)}, {s(S_X,4)}, {s(sT0)} offen offset:{(i%4)*1024}")

    def write_x(self):
        for i in range(8):
            self.A(f"ds_write_b128 {v(self.vXW)}, {v(self.XP+4*i,4)} offset:{i*16}")

    def after_weights(self):
        A = self.A
        A(f"s_waitcnt lgkmcnt(0)")
        A(f"s_barrier")
        A(f"s_mov_b32 {s(self.sDelta)}, {XB1}")
        A(f"v_add_u32 {v(self.vXW)}, {s(self.sDelta)}, {v(self.vXW)}")

    def body(self, mfmas, wpos=9):
        A, NF, XF = self.A, self.NF, self.XF

        def rd(kk):
            A(f"ds_read_b128 {v(XF + 4*(kk % NF), 4)}, {v(self.vXR)} offset:{kk*1056}")
        for kk in range(NF - 1):
            rd(kk)
        for kk in range(32):
            if kk + NF - 1 < 32:
                rd(kk + NF - 1)
                A(f"s_waitcnt lgkmcnt({NF-1})")
            else:
                A(f"s_waitcnt lgkmcnt({31-kk})")
            mfmas(kk, v(XF + 4 * (kk % NF), 4))
            if wpos is not None and kk == wpos:
                A(f"s_waitcnt vmcnt(0)")
                self.write_x()
                A(f"s_waitcnt lgkmcnt(0)")

    def toggle(self):
        A = self.A
        A(f"v_add_u32 {v(self.vXR)}, {s(self.sDelta)}, {v(self.vXR)}")
        A(f"s_sub_u32 {s(self.sDelta)}, 0, {s(self.sDelta)}")
        A(f"v_add_u32 {v(self.vXW)}, {s(self.sDelta)}, {v(self.vXW)}")


def gen_hq(A, opts):
    vWG, vST, vTR, vKst, vVst = 5, 6, 7, 8, 9
    ACC = 64
    EP = 112
    sH, sJ, sSeg, sNext, sDelta, sSegOff, sKVoff, sKVsh, sXa = 44, 45, 46, 47, 48, 49, 50, 51, 52
    sCnt, sKVF = 53, 60
    xg = XG(A, sDelta)
    vL, vL16, vZero, vTmp, vT1, vT2, XF = xg.vL, xg.vL16, xg.vZero, xg.vTmp, xg.vT1, xg.vT2, xg.XF
    A(f"s_sub_u32 {s(sT0)}, {s(sXCD)}, 3")
    A(f"s_lshl_b32 {s(sT0)}, {s(sT0)}, 5")
    A(f"s_add_u32 {s(sT0)}, {s(sT0)}, {s(sIDX)}")
    A(f"s_mul_i32 {s(sH)}, {s(sT0)}, 205")
    A(f"s_lshr_b32 {s(sH)}, {s(sH)}, 10")
    A(f"s_mul_i32 {s(sT1)}, {s(sH)}, 5")
    A(f"s_sub_u32 {s(sJ)}, {s(sT0)}, {s(sT1)}")
    mk_srd(A, S_A, P_WQ, 512 * 8192)
    mk_srd(A, S_B, P_WK, 512 * 8192)
    mk_srd(A, S_C, P_WV, 512 * 8192)
    xg.setup()
    A(f"s_mov_b32 {s(sSeg)}, {s(sJ)}")
    raw_lane_off(A, vWG, vL, vT1, 8192)
    A(f"s_lshl_b32 {s(sT0)}, {s(sH)}, 8")
    A(f"s_lshl_b32 {s(sT1)}, {s(sWAVE)}, 6")
    A(f"s_add_u32 {s(sT0)}, {s(sT0)}, {s(sT1)}")
    A(f"v_add_u32 {v(vWG)}, {s(sT0)}, {v(vWG)}")
    STG = 80 * 1024
    A(f"s_mul_i32 {s(sT2)}, {s(sWAVE)}, {2*STG_BUF}")
    A(f"s_add_u32 {s(sT2)}, {s(sT2)}, {STG}")
    stage_lane_addr(A, vST, vL, vT1, sT2)
    tr_lane_addr(A, vTR, vL, vT1, vT2, 'k16', base_sreg=sT2)
    A(f"s_lshl_b32 {s(sT0)}, {s(sWAVE)}, 10")
    lane_expr(A, vKst, vL, [(4, 1, 4096), (5, 1, 256), (0, 4, 16)], sregs=[sT0])
    A(f"s_lshl_b32 {s(sT0)}, {s(sWAVE)}, 11")
    lane_expr(A, vVst, vL, [(4, 1, 1024), (5, 1, 256), (0, 4, 16)], sregs=[sT0])

    def wblocks(srd, dst):
        return [dict(srd=srd, voff=vWG, soff=[(32 * b) * 8192, (32 * b + 16) * 8192], raw=off(dst, 8 * b), dst=off(dst, 8 * b),
                     vtr=vTR, imm=TR_IMM['k16']) for b in range(16)]
    kvb = wblocks(S_B, ('a', 128)) + wblocks(S_C, ('v', 128))
    qb = wblocks(S_A, ('a', 0))
    if opts.get('hdelay'):
        Lhd = A.new_label("hqd")
        A(f"s_cmp_lg_u32 {s(sWAVE)}, 0")
        A(f"s_cbranch_scc1 {Lhd}")
        A(f"s_mov_b32 {s(sT2)}, {D_CHECKIN*4}")
        A(f"s_mov_b32 {s(sT3)}, 0")
        wait_byte(A, vTmp, vZero, sT2, sT3, opts['hdelay'], "hqd", sleep=4)
        A.label(Lhd)
        A(f"s_barrier")
    stamp(A, 1)
    if PROF:
        kvb[15]['post'] = lambda A_: stamp(A_, 6)
        kvb[0]['post'] = lambda A_: stamp(A_, 8)

    def x_issue(vq):
        xg.issue_x(sSeg, vq)

    def x_consume(vq):
        vq.wait('x')
        xg.write_x()
        stamp(A, 5)
    hw = opts.get('hqwin', 10)
    load_blocks2(A, kvb, vST, window=hw, extra=(opts.get('hqxpos', 16), x_issue, x_consume))
    stamp(A, 7)
    xg.after_weights()
    A(f"s_mov_b32 {s(sXa)}, -1")
    A(f"s_mov_b32 {s(sCnt)}, 1")
    A(f"s_lshl_b32 {s(sKVF)}, {s(sH)}, 7")
    A(f"s_lshl_b32 {s(sT0)}, {s(sJ)}, 2")
    A(f"s_add_u32 {s(sKVF)}, {s(sKVF)}, {s(sT0)}")
    A(f"s_add_u32 {s(sKVF)}, {s(sKVF)}, {WS_KVF:#x}")
    A(f"buffer_load_dword v15, {v(vZero)}, {s(S_DBG,4)}, 0 offen offset:{D_CHECKIN*4} sc1")

    def mf_k(kk, f):
        c = lambda base: "0" if kk == 0 else v(base, 16)
        A(f"v_mfma_f32_32x32x16_bf16 {v(ACC+16,16)}, {a(128+4*kk,4)}, {f}, {c(ACC+16)}")

    def mf_v(kk, f):
        c = lambda base: "0" if kk == 0 else v(base, 16)
        A(f"v_mfma_f32_32x32x16_bf16 {v(ACC+32,16)}, {f}, {v(128+4*kk,4)}, {c(ACC+32)}")

    def mf_q(kk, f):
        c = lambda base: "0" if kk == 0 else v(base, 16)
        A(f"v_mfma_f32_32x32x16_bf16 {v(ACC,16)}, {a(4*kk,4)}, {f}, {c(ACC)}")

    def seg_offsets():
        A(f"s_lshl_b32 {s(sSegOff)}, {s(sSeg)}, 5")
        A(f"s_add_u32 {s(sSegOff)}, {s(sSegOff)}, {s(sH)}")
        A(f"s_lshl_b32 {s(sKVoff)}, {s(sSegOff)}, 14")
        A(f"s_lshl_b32 {s(sKVsh)}, {s(sSegOff)}, 12")
        A(f"s_lshl_b32 {s(sSegOff)}, {s(sSegOff)}, 13")

    def store_ct(acc, sbase, region, ep):
        for c in range(2):
            for q in range(4):
                A(f"v_cvt_pk_bf16_f32 {v(ep+4*c+q)}, {v(acc+8*c+2*q)}, {v(acc+8*c+2*q+1)}")
        A(f"s_add_u32 {s(sT0)}, {s(sbase)}, {region:#x}")
        for c in range(2):
            A(f"buffer_store_dwordx4 {v(ep+4*c,4)}, {v(vKst)}, {s(S_WS,4)}, {s(sT0)} offen offset:{c*512} sc1")

    def store_kv():
        store_ct(ACC + 16, sKVoff, WS_KX, EP)
        acc = ACC + 32
        for c in range(2):
            for hf in range(2):
                u = c + 2 * hf
                for q in range(2):
                    A(f"v_cvt_pk_bf16_f32 {v(EP+8+4*c+2*hf+q)}, {v(acc+4*u+2*q)}, {v(acc+4*u+2*q+1)}")
        A(f"s_add_u32 {s(sT0)}, {s(sKVoff)}, {WS_KX + 8192:#x}")
        for c in range(2):
            A(f"buffer_store_dwordx4 {v(EP+8+4*c,4)}, {v(vVst)}, {s(S_WS,4)}, {s(sT0)} offen offset:{c*512} sc1")

    def arm_km():
        for i in range(4):
            A(f"v_mov_b32 {v(XF+8+i)}, -1")
        A(f"s_lshl_b32 {s(sT1)}, {s(sWAVE)}, 10")
        A(f"s_add_u32 {s(sT0)}, {s(sKVsh)}, {s(sT1)}")
        A(f"s_add_u32 {s(sT0)}, {s(sT0)}, {WS_KM:#x}")
        A(f"buffer_store_dwordx4 {v(XF+8,4)}, {v(vL16)}, {s(S_WS,4)}, {s(sT0)} offen sc1")

    def flag_store():
        A(f"v_mov_b32 {v(vTmp)}, {s(sCnt)}")
        A(f"s_mov_b64 exec, 1")
        A(f"buffer_store_dword {v(vTmp)}, off, {s(S_WS,4)}, {s(sKVF)} sc1")
        A(f"s_mov_b64 exec, -1")
    xg.body(lambda kk, f: (mf_k(kk, f), mf_v(kk, f)), wpos=None)
    A.nop(12)
    seg_offsets()
    store_kv()
    arm_km()
    vq = Q(A, "vmcnt", 63)
    qn = [0]

    def q_first(vq_):
        pass
    nq0 = opts.get('hqq0', 8)
    for b in range(nq0):
        blk = qb[b]
        for k in range(2):
            A(f"s_mov_b32 {s(sT0)}, {blk['soff'][k]:#x}")
            vq.issue(('B', id(blk)), f"buffer_load_dwordx4 {reg(off(blk['raw'], 4*k), 4)}, {v(blk['voff'])}, {s(blk['srd'],4)}, {s(sT0)} offen")
    A(f"s_waitcnt vmcnt({2*nq0})")
    A(f"s_barrier")
    Lnf1 = A.new_label("hq_nf1")
    Lci = A.new_label("hq_ci")
    A(f"s_cmp_lg_u32 {s(sWAVE)}, 0")
    A(f"s_cbranch_scc1 {Lnf1}")
    A(f"v_readfirstlane_b32 {s(sT0)}, v15")
    A(f"s_and_b32 {s(sT0)}, {s(sT0)}, 0xff")
    A(f"s_cmp_ge_u32 {s(sT0)}, 32")
    A(f"s_cbranch_scc1 {Lci}")
    A(f"s_mov_b32 {s(sT2)}, {D_CHECKIN*4}")
    A(f"s_mov_b32 {s(sT3)}, 0")
    wait_byte(A, vTmp, vZero, sT2, sT3, 32, "hqci", sleep=4)
    A.label(Lci)
    flag_store()
    A.label(Lnf1)
    stamp(A, 3)
    for b in range(16):
        blk = qb[b]
        if b == 0:
            pass
        if b + nq0 < 16:
            nb_ = qb[b + nq0]
        vq.wait(('B', id(blk)))
        buf = (b & 1) * STG_BUF
        A(f"ds_write_b128 {v(vST)}, {reg(blk['raw'],4)} offset:{buf}")
        A(f"ds_write_b128 {v(vST)}, {reg(off(blk['raw'],4),4)} offset:{buf + stage_addr(16)}")
        for i in range(4):
            A(f"ds_read_b64_tr_b16 {reg(off(blk['dst'],2*i),2)}, {v(blk['vtr'])} offset:{buf + blk['imm'][i]}")
        if b + nq0 < 16:
            for k in range(2):
                A(f"s_mov_b32 {s(sT0)}, {nb_['soff'][k]:#x}")
                vq.issue(('B', id(nb_)), f"buffer_load_dwordx4 {reg(off(nb_['raw'], 4*k), 4)}, {v(nb_['voff'])}, {s(nb_['srd'],4)}, {s(sT0)} offen")
    A("s_waitcnt lgkmcnt(0)")
    stamp(A, 2)
    if opts.get('xatt'):
        from gen_xatt import xatt_setup, xatt_task
        xatt_setup(A, xg, sH)
    A(f"s_add_u32 {s(sNext)}, {s(sSeg)}, 5")
    xg.issue_x(sNext)
    xg.body(mf_q, wpos=opts.get('wpos', 9))
    A.nop(12)
    store_ct(ACC, sSegOff, WS_QX, XF)
    xg.toggle()
    A(f"s_waitcnt vmcnt(0) lgkmcnt(0)")
    A(f"s_barrier")
    A(f"s_mov_b32 {s(sXa)}, {s(sSeg)}")
    A(f"s_mov_b32 {s(sSeg)}, {s(sNext)}")

    Lloop = A.new_label("hq_loop")
    Lnoq = A.new_label("hq_noq")
    Lnoflag = A.new_label("hq_noflag")
    A.label(Lloop)
    A(f"s_add_u32 {s(sNext)}, {s(sSeg)}, 5")
    A(f"s_cmp_ge_u32 {s(sSeg)}, 64")
    A(f"s_cbranch_scc1 {Lnoq}")
    xg.issue_x(sNext)
    xg.body(lambda kk, f: (mf_k(kk, f), mf_v(kk, f), mf_q(kk, f)), wpos=opts.get('wpos', 9))
    A.nop(12)
    seg_offsets()
    store_kv()
    store_ct(ACC, sSegOff, WS_QX, XF)
    arm_km()
    if opts.get('cf') and not opts.get('nopfclr'):
        Lpf = A.new_label("hq_pf")
        A(f"s_cmp_lg_u32 {s(sCnt)}, 1")
        A(f"s_cbranch_scc1 {Lpf}")
        A(f"s_cmp_gt_u32 {s(sJ)}, 3")
        A(f"s_cbranch_scc1 {Lpf}")
        for i in range(4):
            A(f"v_mov_b32 {v(XF+12+i)}, 0")
        A(f"s_lshl_b32 {s(sT0)}, {s(sJ)}, 18")
        A(f"s_lshl_b32 {s(sT1)}, {s(sH)}, 13")
        A(f"s_add_u32 {s(sT0)}, {s(sT0)}, {s(sT1)}")
        A(f"s_lshl_b32 {s(sT1)}, {s(sWAVE)}, 11")
        A(f"s_add_u32 {s(sT0)}, {s(sT0)}, {s(sT1)}")
        A(f"s_add_u32 {s(sT0)}, {s(sT0)}, {WS_PF:#x}")
        for k in range(2):
            A(f"buffer_store_dwordx4 {v(XF+12,4)}, {v(vL16)}, {s(S_WS,4)}, {s(sT0)} offen offset:{k*1024} sc1")
        A.label(Lpf)
    xg.toggle()
    A(f"s_waitcnt vmcnt(0) lgkmcnt(0)")
    A(f"s_barrier")
    A(f"s_add_u32 {s(sCnt)}, {s(sCnt)}, 1")
    A(f"s_cmp_lg_u32 {s(sWAVE)}, 0")
    A(f"s_cbranch_scc1 {Lnoflag}")
    flag_store()
    A.label(Lnoflag)
    A.label(Lnoq)
    if opts.get('xatt'):
        xatt_task(A, xg, sH, sXa, opts)
    A(f"s_mov_b32 {s(sXa)}, {s(sSeg)}")
    A(f"s_mov_b32 {s(sSeg)}, {s(sNext)}")
    A(f"s_cmp_lt_u32 {s(sXa)}, {63 if opts.get('cf') else 64}")
    A(f"s_cbranch_scc1 {Lloop}")
    stamp(A, 4)


def gen(opts):
    global PROF
    PROF = bool(opts.get('prof'))
    A = Asm()
    A.L.append(open("header.txt").read().rstrip("\n"))
    A.L.append(f"; @launch grid=(256,1,1) block=(256,1,1) lds={LDS_BYTES}")
    A.L.append('.amdgcn_target "amdgcn-amd-amdhsa--gfx950"')
    A.L.append(".text")
    A.L.append(f".globl {KNAME}")
    A.L.append(".p2align 8")
    A.L.append(f".type {KNAME},@function")
    A.label(KNAME)
    A(f"s_cmp_ge_u32 s2, 256")
    A(f"s_cbranch_scc1 L_exit")
    A(f"s_load_dwordx16 s[64:79], s[0:1], 0")
    A(f"s_load_dwordx8 s[80:87], s[0:1], 64")
    A(f"s_load_dwordx4 s[88:91], s[0:1], 96")
    if opts.get('xrot'):
        A(f"s_add_u32 {s(sXCD)}, s2, {opts['xrot']}")
        A(f"s_and_b32 {s(sXCD)}, {s(sXCD)}, 7")
    else:
        A(f"s_and_b32 {s(sXCD)}, s2, 7")
    A(f"s_lshr_b32 {s(sIDX)}, s2, 3")
    if opts.get('cpf'):
        A("s_getpc_b64 s[44:45]")
        A.label("L_pc")
        A("v_lshlrev_b32 v2, 7, v0")
        A("s_mov_b32 s46, L_exit-L_pc")
        for i in range(opts.get('cpf')):
            A(f"v_add_u32 v4, {i * 32768:#x}, v2")
            A("v_min_u32 v4, s46, v4")
            A("v_mov_b32 v5, s45")
            A("v_add_co_u32 v4, vcc, s44, v4")
            A("v_addc_co_u32 v5, vcc, 0, v5, vcc")
            A("global_load_dword v255, v[4:5], off")
    A(f"v_lshrrev_b32 v1, 6, v0")
    A(f"s_mov_b32 {s(sDEAD)}, 0")
    A(f"v_readfirstlane_b32 {s(sWAVE)}, v1")
    A(f"s_waitcnt lgkmcnt(0)")
    mk_srd(A, S_WS, P_WS, WS_SIZE)
    mk_srd(A, S_DBG, P_DBG, 256)
    mk_srd(A, S_X, P_X, 2048 * 1024)
    if PROF:
        for i in range(10):
            A(f"s_mov_b32 {s(sSTAMP+i)}, 0")
    stamp(A, 0)
    A(f"s_cmp_eq_u32 {s(sXCD)}, 0")
    A(f"s_cbranch_scc1 L_chain")
    A(f"s_cmp_lt_u32 {s(sXCD)}, 3")
    A(f"s_cbranch_scc1 L_out")
    if opts.get('hq', True):
        gen_hq(A, opts)
    A(f"s_branch L_role_end")
    A.label("L_chain")
    if opts.get('clkprobe'):
        A("s_memrealtime s[44:45]")
        A("s_waitcnt lgkmcnt(0)")
        for i in range(1, 9):
            L = A.new_label("cp")
            A(f"s_add_u32 s46, s44, {i*500}")
            A.label(L)
            A("s_memrealtime s[48:49]")
            A("s_waitcnt lgkmcnt(0)")
            A("s_sub_u32 s50, s48, s46")
            A("s_cmp_lt_i32 s50, 0")
            A(f"s_cbranch_scc1 {L}")
            stamp_clk(A, i)
    if opts.get('chain'):
        cv = opts.get('cv', 7)
        if cv == 4:
            from gen_chain4 import gen_chain
        elif cv == 5:
            from gen_chain5 import gen_chain
        elif cv == 6:
            from gen_chain6 import gen_chain
        else:
            from gen_chain7 import gen_chain
        gen_chain(A, opts)
    A(f"s_branch L_role_end")
    A.label("L_out")
    if opts.get('out'):
        from gen_out import gen_out
        gen_out(A, opts)
    A.label("L_role_end")
    stamp(A, 9)
    A.label("L_flush")
    stamp_flush(A)
    A.label("L_exit")
    A("s_endpgm")
    A.L.append(f""".section .rodata,"a"
.p2align 6
.amdhsa_kernel {KNAME}
  .amdhsa_next_free_vgpr 512
  .amdhsa_next_free_sgpr 102
  .amdhsa_accum_offset 256
  .amdhsa_group_segment_fixed_size 0
  .amdhsa_kernarg_size 112
  .amdhsa_user_sgpr_count 2
  .amdhsa_user_sgpr_kernarg_segment_ptr 1
  .amdhsa_system_sgpr_workgroup_id_x 1
.end_amdhsa_kernel""")
    return A.text()


def main():
    opts = {}
    outp = sys.argv[1]
    for o in sys.argv[2:]:
        if "=" in o:
            k, val = o.split("=")
            opts[k] = int(val)
        else:
            opts[o] = True
    open(outp, "w").write(gen(opts))


if __name__ == "__main__":
    import gen as _g
    _g.main()
```

```python
from dsl import *
import gen as G
from gen import *

QK_OFF, O_OFF, MEM_OFF, KX_OFF, VX_OFF, WO_OFF = 0, 4096, 8192, 16384, 24576, 32768

vL16, vKw, vIdx, vQKw, vQKr, vOw, vMw, vWo, vPst, vRed, vMst, vPf, vFlag, vJunk = range(14)
vT0, vT1 = 14, 15
vSEL = 16
vVM1, vKr, vONE = 20, 21, 22
vBM = 26
vS0, vIdxW = 30, 31
KIMG = [2048, 3072, 6144, 7168]
X = 32
Y = 64
PA = 96
ACC = 112
sH, sS, sSlotP, sSlotP1, sSlotP4, sSlotM, sKM, sKV, sC, sNC, sRet = range(44, 55)
sRa0, sRa2, sFastF = 55, 56, 57
sMLo, sMHi = 58, 60
sU = 76
sFo, sNeed, sJ4, sCn, sPf, sGat, sKn, sM0K, sM0V = 78, 79, 80, 81, 84, 85, 86, 87, 88
sW1k, sRaM, sRaA, sFb, sPfb, sW2k = 64, 65, 66, 67, 68, 69
sPc2, sPc3 = 70, 71
sRo, sRm = 72, 89
sPc = [sSlotP, sSlotP1, sPc2, sPc3]
sTag = 55
vTagE = vPf
sCP0, sCP1 = 82, 83
sB63 = 3
sKok = 57
OOB = 0x40000000
RED_LIMIT = 1 << 16

LOG2E = 1.4426950408889634
WPOL = ["", " nt", " sc1", " sc0 sc1", " sc1 nt", " sc0", " sc0 nt", " sc0 sc1 nt"]
SCALE_C = (128 ** -0.5) * LOG2E


def f32_hex(x):
    import struct
    return struct.unpack("<I", struct.pack("<f", x))[0]


RT = False
D3Q = []
LATE = [False]
CSTEP = [39]


TRACE = [False]


FTR = [0]


def fstamp(A, k):
    if TRACE[0] and FTR[0]:
        A(f"s_memtime s[{16 + 2 * (k - 1)}:{17 + 2 * (k - 1)}]")


def lstamp(A, i, late=None):
    if TRACE[0]:
        if FTR[0] == 1:
            m_ = {3: 1, 4: 5, 5: 8}.get(i)
        elif FTR[0] == 2:
            m_ = {5: 1, 6: 4, 7: 8}.get(i)
        elif FTR[0] == 3:
            m_ = {1: 1, 2: 5, 3: 8}.get(i)
        else:
            m_ = i if i <= 8 else None
        if m_:
            A(f"s_memtime s[{16 + 2 * (m_ - 1)}:{17 + 2 * (m_ - 1)}]")
        return
    L = A.new_label("ls")
    if late is None:
        late = i >= 8
    A(f"s_cmp_lg_u32 {s(sS)}, {CSTEP[0] + 1 if late else CSTEP[0]}")
    A(f"s_cbranch_scc1 {L}")
    r = 16 + 2 * (i - 1) if i < 9 else 62
    A(f"{'s_memrealtime' if RT else 's_memtime'} s[{r}:{r+1}]")
    A.label(L)


import re as _re


def _regs(tok):
    tok = tok.strip().rstrip(',')
    m = _re.match(r'^([va])\[(\d+):(\d+)\]$', tok)
    if m:
        return {(m.group(1), i) for i in range(int(m.group(2)), int(m.group(3)) + 1)}
    m = _re.match(r'^([va])(\d+)$', tok)
    if m:
        return {(m.group(1), int(m.group(2)))}
    return set()


def _all_regs(line):
    r = set()
    for tok in _re.findall(r'[va]\[\d+:\d+\]|\b[va]\d+\b', line):
        r |= _regs(tok)
    return r


def gap_reorder(lines, report=False):
    out = []
    i = 0
    n = len(lines)
    issm = lambda x: x.strip().startswith('v_smfmac')
    while i < n:
        out.append(lines[i])
        if issm(lines[i]):
            j = i + 1
            gap = []
            while j < n and not issm(lines[j]) and not lines[j].endswith(':') and not lines[j].strip().startswith(('s_cbranch', 's_branch', 'v_mfma', 's_nop', 's_memtime', 's_memrealtime', 's_cmp')):
                gap.append(lines[j])
                j += 1
            if j < n and issm(lines[j]):
                changed = True
                while changed:
                    changed = False
                    for k in range(len(gap) - 1):
                        a_, b_ = gap[k].strip(), gap[k + 1].strip()
                        if a_.startswith('v_') and not b_.startswith('v_') and 'vcc' not in a_ and 'exec' not in b_:
                            if not (_all_regs(a_) & _all_regs(b_)):
                                gap[k], gap[k + 1] = gap[k + 1], gap[k]
                                changed = True
                nv = sum(1 for g in gap if g.strip().startswith('v_'))
                no = len(gap) - nv
                lastv = all(not gap[k].strip().startswith('v_') or gap[k + 1].strip().startswith('v_') for k in range(len(gap) - 1))
                if report and (nv > 1 or (nv and no > 2) or no > 3 or not lastv):
                    print("gap over budget:", [g.strip()[:40] for g in gap])
            out.extend(gap)
            i = j
            continue
        i += 1
    return out


def red3(A, opts, R, RA, ld, st, Lar, rstamp, RBT):
    sSave = sU
    LfA, LfB, LfAB, Lgen, Lok = (A.new_label(x) for x in ("rfA", "rfB", "rfAB", "rgen", "rok"))
    hist = opts.get('hist')

    main = [True]

    def item(i, cnt, first):
        if cnt is not None:
            A(f"s_waitcnt vmcnt({cnt})")
        if main[0] and i in (0, 7):
            rstamp(2 if i == 0 else 3)
        c = "0" if first else v(RA, 4)
        A(f"v_mfma_f32_16x16x32_bf16 {v(RA,4)}, {v(R[i],4)}, {v(vSEL,4)}, {c}")

    def tagchk(i, y):
        A(f"v_bitop3_b32 {v(y)}, {v(R[i])}, {v(R[i]+2)}, {v(vTagE)} bitop3:0x7e")

    def half(base, cnts, first, k0=0, chk=True):
        for k in range(k0, 4):
            item(base + k, cnts[k], first and k == 0)
            if chk:
                tagchk(base + k, [vT0, vT1, vS0, vT1][k])
                if k == 2:
                    A(f"v_or3_b32 {v(vT0)}, {v(vT0)}, {v(vT1)}, {v(vS0)}")
        if chk:
            A(f"v_bitop3_b32 {v(vT0)}, {v(vT0)}, {v(vT1)}, 1 bitop3:0xa8")
            A(f"v_cmp_ne_u32 vcc, 0, {v(vT0)}")

    def repoll(lo, hi, d=0):
        for _ in range(d):
            A(f"s_sleep 1")
        A(f"s_mov_b64 exec, vcc")
        for i in range(lo, hi):
            ld(R, i)
        A(f"s_mov_b64 exec, -1")

    def both(first_cnts):
        half(0, first_cnts, True)
        A(f"s_mov_b64 {s(sSave,2)}, vcc")
        half(4, [3, 2, 1, 0], False)
        A(f"s_or_b64 vcc, vcc, {s(sSave,2)}")
    half(0, [7, 6, 5, 4], True)
    item(4, 3, False)
    tagchk(4, vT0)
    A(f"s_cbranch_vccnz {LfA}")
    half(4, [3, 2, 1, 0], False, k0=1)
    A(f"s_cbranch_vccnz {LfB}")
    main[0] = False
    A.label(Lok)
    rstamp(4)
    A(f"s_nop 4")
    A(f"v_cvt_pk_bf16_f32 {v(RA+4)}, {v(RA)}, {v(RA+1)}")
    A(f"v_cvt_pk_bf16_f32 {v(RA+5)}, {v(RA+2)}, {v(RA+3)}")
    A(f"buffer_store_dwordx2 {v(RA+4,2)}, {v(vMst)}, {s(S_WS,4)}, {s(sSlotM)} offen{st}")
    A(f"s_branch {Lar}")
    A.label(LfA)
    repoll(0, 4, opts.get('rda', 0))
    if hist or opts.get('rtrace'):
        A(f"s_add_u32 {s(sCP0)}, {s(sCP0)}, 1")
    half(4, [None, 6, 5, 4], True)
    A(f"s_cbranch_vccnz {LfAB}")
    half(0, [3, 2, 1, 0], False)
    A(f"s_cbranch_vccz {Lok}")
    A(f"s_branch {Lgen}")
    A.label(LfAB)
    repoll(4, 8)
    both([7, 6, 5, 4])
    A(f"s_cbranch_vccz {Lok}")
    A(f"s_branch {Lgen}")
    A.label(LfB)
    repoll(4, 8, opts.get('rdb', 0))
    if hist or opts.get('rtrace'):
        A(f"s_add_u32 {s(sCP0)}, {s(sCP0)}, {0x1000000 if opts.get('hist') == 2 else 1}")
    half(0, [None] * 4, True, chk=False)
    half(4, [3, 2, 1, 0], False)
    A(f"s_cbranch_vccz {Lok}")
    A.label(Lgen)
    repoll(0, 8, opts.get('rdg', 0))
    if hist:
        A(f"s_add_u32 {s(sCP0)}, {s(sCP0)}, 0x1000")
    if opts.get('rtrace'):
        A(f"s_add_u32 {s(sCP0)}, {s(sCP0)}, 2")
    both([7, 6, 5, 4])
    A(f"s_cbranch_vccz {Lok}")
    A(f"s_add_u32 {s(sRet)}, {s(sRet)}, 1")
    A(f"s_cmp_lg_u32 {s(sDEAD)}, 0")
    A(f"s_cbranch_scc1 {Lok}")
    A(f"s_cmp_lt_u32 {s(sRet)}, {RED_LIMIT}")
    A(f"s_cbranch_scc1 {Lgen}")
    A(f"s_mov_b32 {s(sDEAD)}, 1")
    A(f"s_branch {Lok}")


def gen_step(A, fast, opts, first=False):
    i0 = len(A.L)
    gen_step_raw(A, fast, opts, first)
    if opts.get('reord', 1):
        A.L[i0:] = gap_reorder(A.L[i0:], report=fast and opts.get('report'))


def gen_step_raw(A, fast, opts, first=False):
    KP, VP = opts.get('kpos', 0), opts.get('vpos', 0)
    RBT = opts.get('rbtop', 0)
    VAT = opts.get('vat', 12)
    M0TOP = KP in (1, 2) and VP == 0
    M0FIX = KP == 4 and VP == 0

    def vdma(n):
        if VP != 0 or first:
            return
        if n == VAT - 1:
            if not M0TOP and not M0FIX:
                A(f"s_mov_b32 m0, {s(sM0V)}")
            A(f"s_add_u32 {s(sT3)}, {s(sKV)}, 8192")
        elif n == VAT:
            A(f"buffer_load_dwordx4 {v(vL16)}, {s(S_WS,4)}, {s(sT3)} offen lds")
        elif n == VAT + opts.get('vsp', 1):
            A(f"buffer_load_dwordx4 {v(vL16)}, {s(S_WS,4)}, {s(sT3)} offen offset:1024 lds")
    st = "" if fast else " sc1"
    tag = "e" if first else "f" if fast else "s"
    Lown = [f"L_own0_{tag}", f"L_own1_{tag}"]
    Lcommon = f"L_common_{tag}"
    Llast = f"L_last_{tag}"
    lq = Q(A, "lgkmcnt", 15)
    cp = opts.get('cprof') or opts.get('trace')
    rp = opts.get('rprof')
    AQ, AV, AK = ACC, ACC + 8, Y + 24
    CQ, CK = AQ + 2, AK + 2
    H0, H1 = X + 16, X + 24
    H2 = PA + 8
    G3 = opts.get('gsets', 2) == 3
    AO = Y
    KXR = {0: X + 16, 4: X + 20, 1: X + 24, 5: X + 28, 2: X, 6: X + 4, 3: X + 8, 7: X + 12}
    RB = [X, X + 8, PA, PA + 8]
    RIDX = {0: 0, 1: 1, 4: 2, 5: 3, 6: 4, 7: 5}

    def WB(m, jj, t):
        if m == 'q':
            return a(16 * jj + 8 * t, 8)
        if jj in (2, 3):
            return v(RB[2 * (jj - 2) + t], 8)
        return (a if m == 'k' else v)(128 + 16 * RIDX[jj] + 8 * t, 8)

    def rdR(m, b, half, top=False):
        if m == 'k' and 2 * b + half < RBT and not top:
            return
        fi = (0 if m == 'k' else 4) + b
        lq.issue(('R', m, b), f"ds_read_b128 {v(RB[b] + 4*half, 4)}, {v(vWo)} offset:{fi * 2048 + 1024 * half}")
    AC = {'q': AQ, 'k': AK, 'v': AV}
    nsm = [0]
    keepL0 = A.L
    D3AT = {1: (1, 2, 3, 4, 5, 6, 7, 8), 2: (1, 3, 5, 7, 8, 9, 11, 13), 3: (1, 2, 3, 4, 9, 10, 12, 13)}.get(opts.get('esd3', 0), ())
    vA = [None, vT0, vT1, vS0]

    def smf(m, jj, t, areg):
        if m != 'q' and jj in (2, 3):
            lq.wait(('R', m, 2 * (jj - 2) + t))
        A(f"v_smfmac_f32_16x16x64_bf16 {v(AC[m] + 4*t, 4)}, {v(areg, 4)}, {WB(m, jj, t)}, {v(vIdx)}")
        if first and D3Q and A.L is keepL0:
            nsm[0] += 1
            if nsm[0] in D3AT:
                for l_ in D3Q.pop(0):
                    A(l_)

    def rdKX(j):
        lq.issue(('KX', j), f"ds_read_b128 {v(KXR[j],4)}, {v(vL16)} offset:{KX_OFF + j*1024}")

    salu = [
        f"s_and_b32 {s(sT4)}, {s(sS)}, 3",
        f"s_lshl_b32 {s(sSlotM)}, {s(sT4)}, 13",
        f"s_add_u32 {s(sSlotM)}, {s(sSlotM)}, {WS_M:#x}",
        f"s_add_u32 {s(sGat)}, {s(sSlotM)}, {s(sW2k)}",
        f"s_xor_b32 {s(sRa2)}, {s(sSlotM)}, 0x4000",
        f"s_xor_b32 {s(sTag)}, {s(sTag)}, 1",
    ]

    def su(n):
        for _ in range(n):
            if salu:
                A(salu.pop(0))

    Lar = f"L_top_{tag}"
    Lspec = f"L_spec_{tag}"
    Lretry0 = f"L_retry0_{tag}"
    rt = opts.get('rtrace')

    def rstamp(k):
        if rt:
            A(f"s_memtime s[{16 + 2*k}:{17 + 2*k}]")

    def con_issue(R):
        A(f"buffer_load_dwordx4 {v(R,4)}, {v(vL16)}, {s(S_WS,4)}, {s(sGat)} offen sc1")
        A(f"buffer_load_dwordx4 {v(R+4,4)}, {v(vL16)}, {s(S_WS,4)}, {s(sGat)} offen offset:1024 sc1")

    def own(H, spec):
        lq.ops = []
        n = 0
        c0 = Y
        for m in 'qkv':
            for jj in range(2):
                for t in range(2):
                    n += 1
                    smf(m, jj, t, H + 4 * jj)
                    if spec and n == 1:
                        A(f"v_max3_u32 {v(c0)}, {v(H)}, {v(H+2)}, {v(H+4)}")
                    elif spec and n == 2:
                        A(f"v_max_u32 {v(c0)}, {v(c0)}, {v(H+6)}")
                    elif spec and n == 3:
                        A(f"v_cmp_eq_u32 vcc, -1, {v(c0)}")
                        A(f"s_add_u32 {s(sRet)}, {s(sRet)}, 1")
                        A(f"s_cbranch_vccnz {Lretry0}")
                    elif n == 4:
                        if FTR[0] == 3:
                            fstamp(A, 2)
                        A(f"s_waitcnt lgkmcnt(0)")
                        A(f"s_barrier")
                        if FTR[0] == 3:
                            fstamp(A, 3)
                    elif 5 <= n <= 10:
                        vdma(n)
                        j2 = n - 5 + 2
                        lq.issue(('A', j2), f"ds_read_b128 {v(AO + 4*(j2-2), 4)}, {v(vA[j2 >> 1])} offset:{(j2 & 1) * 1024}")
                    elif n == 11:
                        vdma(n)
                        rdR('k', 0, 0)
                    elif n == 12:
                        vdma(n)
                        rdR('k', 0, 1)
    keepL = A.L
    if first:
        A.L = []
    if opts.get('lalign'):
        A.L.append(f".p2align {opts['lalign']}")
        for _ in range(opts.get('lpad', 0)):
            A("s_nop 0")
    A.label(Lar)
    A(f"s_barrier")
    if cp:
        lstamp(A, 8)
    rstamp(5)
    for k in range(1, 4):
        A(f"v_xor_b32 {v(vA[k])}, {k << 11:#x}, {v(vMw)}")
    A(f"s_mov_b32 {s(sRet)}, 0")

    def dma_pair(m0reg, soff):
        A(f"s_mov_b32 m0, {s(m0reg)}")
        A(f"s_nop 0")
        A(f"buffer_load_dwordx4 {v(vL16)}, {s(S_WS,4)}, {s(soff)} offen lds")
        A(f"buffer_load_dwordx4 {v(vL16)}, {s(S_WS,4)}, {s(soff)} offen offset:1024 lds")
    for _ in range(opts.get('tpre', 0)):
        A(f"s_sleep 1")
    if KP == 4:
        A(f"buffer_load_dwordx4 {v(X,4)}, {v(vL16)}, {s(S_WS,4)}, {s(sKV)} offen")
        A(f"buffer_load_dwordx4 {v(X+4,4)}, {v(vL16)}, {s(S_WS,4)}, {s(sKV)} offen offset:1024")
    if VP == 4:
        A(f"s_add_u32 {s(sT3)}, {s(sKV)}, 8192")
        A(f"buffer_load_dwordx4 {v(X+8,4)}, {v(vL16)}, {s(S_WS,4)}, {s(sT3)} offen")
        A(f"buffer_load_dwordx4 {v(X+12,4)}, {v(vL16)}, {s(S_WS,4)}, {s(sT3)} offen offset:1024")
    if KP == 1:
        dma_pair(sM0K, sKV)
        if M0TOP:
            A(f"s_mov_b32 m0, {s(sM0V)}")
    if VP == 1:
        A(f"s_add_u32 {s(sT3)}, {s(sKV)}, 8192")
        dma_pair(sM0V, sT3)
    if opts.get('rbpos', 0) == 0:
        for q in range(RBT):
            rdR('k', q >> 1, q & 1, True)
    for _ in range(opts.get('gdelay', 0)):
        A(f"s_sleep 1")
    con_issue(H0)
    for _ in range(opts.get('gspace', 1)):
        A(f"s_sleep 1")
    con_issue(H1)
    if G3:
        for _ in range(opts.get('gspace2', opts.get('gspace', 1))):
            A(f"s_sleep 1")
        con_issue(H2)
    if opts.get('rbpos', 0) == 1:
        for q in range(RBT):
            rdR('k', q >> 1, q & 1, True)
    if KP == 4 or VP == 4:
        assert not RBT and not G3
        A(f"s_waitcnt vmcnt(4)")
        if KP == 4:
            A(f"ds_write_b128 {v(vMw)}, {v(X,4)} offset:{KX_OFF - MEM_OFF}")
            A(f"ds_write_b128 {v(vMw)}, {v(X+4,4)} offset:{KX_OFF - MEM_OFF + 1024}")
        if VP == 4:
            A(f"ds_write_b128 {v(vMw)}, {v(X+8,4)} offset:{VX_OFF - MEM_OFF}")
            A(f"ds_write_b128 {v(vMw)}, {v(X+12,4)} offset:{VX_OFF - MEM_OFF + 1024}")
    A.label(Lspec)
    A(f"s_waitcnt vmcnt({4 if G3 else 2})")
    if rt:
        rstamp(6)
    A(f"ds_write_b128 {v(vMw)}, {v(H0,4)}")
    A(f"ds_write_b128 {v(vMw)}, {v(H0+4,4)} offset:1024")
    if cp:
        lstamp(A, 9)
        lstamp(A, 1)
    if rt:
        A("s_memtime s[30:31]")
    own(H0, True)
    if first:
        A.L = keepL
        own(H1, False)
    A.label(Lcommon)
    if FTR[0] == 3:
        fstamp(A, 4)
    n = 12
    for jj in range(2, 8):
        for t in range(2):
            n += 1
            if t == 0:
                lq.wait(('A', jj))
            smf('q', jj, t, AO + 4 * (jj - 2))
            if n == 13 or n >= 19:
                vdma(n)
            if n == 13:
                rdR('k', 1, 0)
            elif n == 14:
                A(f"buffer_load_dword {v(vFlag)}, off, {s(S_WS,4)}, {s(sFo)} sc1")
                rdR('k', 1, 1)
            elif n == 15:
                if not opts.get('nopf'):
                    A(f"buffer_load_dword {v(vJunk)}, {v(vPf)}, {s(S_WS,4)}, {s(sPf)} offen")
                rdR('k', 2, 0)
            elif n == 16:
                A(f"s_add_u32 {s(sT3)}, {s(sPf)}, 4096")
                rdR('k', 2, 1)
            elif n == 17:
                if not opts.get('nopf'):
                    A(f"buffer_load_dword {v(vJunk)}, {v(vPf)}, {s(S_WS,4)}, {s(sT3)} offen")
                if G3:
                    A(f"s_waitcnt vmcnt({5 if VP == 0 and VAT <= 12 else 3})")
                rdR('k', 3, 0)
                su(1)
            elif n == 18:
                if not G3 and not first:
                    A(f"s_waitcnt vmcnt({5 if VP == 0 and VAT <= 12 else 3})")
                rdR('k', 3, 1)
                su(1)
            elif 19 <= n <= 22:
                if not first:
                    rdKX((0, 4, 1, 5)[n - 19])
                su(1)
            else:
                su(3)
    if cp and not rp:
        lstamp(A, 2)

    def post(m, step):
        t, k = step // 3, step % 3
        T = AC[m] + 4 * t
        if k < 2:
            A(f"v_add_f32 {v(T + k)}, {v(T + k)}, {v(T + k + 2)}")
        else:
            d = {'q': CQ + t, 'k': CK + t, 'v': (vS0, vVM1)[t]}[m]
            A(f"v_cvt_pk_bf16_f32 {v(d)}, {v(T)}, {v(T + 1)}")
    for jj in range(2, 8):
        for t in range(2):
            n += 1
            smf('k', jj, t, AO + 4 * (jj - 2))
            vdma(n)
            if n == 31:
                lq.issue('wq', f"ds_write2st64_b32 {v(vQKw)}, {v(CQ)}, {v(CQ+1)} offset0:0 offset1:1")
            elif n == 33 and KP == 0:
                A(f"s_mov_b32 m0, {s(sM0K)}")
                A(f"s_add_u32 {s(sKn)}, {s(sKn)}, 0x80000")
            elif n == 35:
                if FTR[0] == 3:
                    fstamp(A, 6)
                lq.wait('wq')
                A(f"s_barrier")
                if FTR[0] == 3:
                    fstamp(A, 7)
            if 26 <= n <= 30:
                rdR('v', (n - 26) >> 1, (n - 26) & 1)
            elif n in (32, 33, 34):
                rdR('v', (n - 27) >> 1, (n - 27) & 1)
            if n in (31, 32):
                su(1)
            if n == opts.get('cfk', 36) and opts.get('cf') and not first:
                A(f"s_cmp_eq_u32 {s(sS)}, 63")
                A(f"s_cselect_b32 {s(sKM)}, {OOB:#x}, {s(sKM)}")
            if 25 <= n <= 30:
                post('q', n - 25)
            elif n >= 33:
                A(f"v_mov_b64 {v(ACC + 2*(n - 33), 2)}, 0")
    assert not salu
    if cp and not rp:
        lstamp(A, 3)
    QR, KR = Y, Y + 16

    def trq(i):
        ks, hf = i >> 1, i & 1
        lq.issue(('q', ks), f"ds_read_b64_tr_b16 {v(QR+4*ks+2*hf,2)}, {v(vQKr)} offset:{QK_OFF + (32*ks+8*hf)*16}")

    def trk(i):
        ks, hf = i >> 1, i & 1
        lq.issue(('k', ks), f"ds_read_b64_tr_b16 {v(KR+4*ks+2*hf,2)}, {v(vKr)} offset:{KIMG[ks] + hf*256}")
    trq_at = {38: 0, 39: 1, 40: 2, 41: 3, 42: 4, 44: 5, 45: 6, 46: 7}
    for jj in range(2, 8):
        for t in range(2):
            n += 1
            smf('v', jj, t, AO + 4 * (jj - 2))
            vdma(n)
            if n in trq_at:
                trq(trq_at[n])
            if 39 <= n <= 42 and not first:
                rdKX((2, 6, 3, 7)[n - 39])
            if n == 43:
                lq.issue('wk', f"ds_write2st64_b32 {v(vKw)}, {v(CK)}, {v(CK+1)} offset0:0 offset1:2")
            elif n == 44 and not opts.get('xnokm'):
                A(f"buffer_store_dword {v(CK)}, {v(vQKw)}, {s(S_WS,4)}, {s(sKM)} offen sc1")
            elif n == 45 and not opts.get('xnokm'):
                A(f"buffer_store_dword {v(CK+1)}, {v(vQKw)}, {s(S_WS,4)}, {s(sKM)} offen offset:256 sc1")
            elif n == 47:
                if FTR[0] == 1:
                    fstamp(A, 3)
                lq.wait('wk')
                if first:
                    if opts.get('esprof'):
                        stamp(A, 4)
                    A(f"s_waitcnt vmcnt(13)")
                    if opts.get('esprof'):
                        stamp(A, 5)
                A(f"s_barrier")
                if FTR[0] == 1:
                    fstamp(A, 4)
                trk(0)
                if first:
                    for j in (0, 4, 1, 5):
                        rdKX(j)
            elif n == 48:
                trk(1)
                if first:
                    for j in (2, 6, 3, 7):
                        rdKX(j)
                if KP == 0:
                    A(f"buffer_load_dwordx4 {v(vL16)}, {s(S_WS,4)}, {s(sKn)} offen lds")
            if 37 <= n <= 42:
                post('k', n - 37)
            if n == 42 and FTR[0] == 1:
                fstamp(A, 2)
    if cp and not rp:
        lstamp(A, 4)
    T0, T1, TM = PA, PA + 4, PA + 8
    m, t_ = vT0, vT1
    wo_ops = [(cg, 0) for cg in range(4)] + [(cg, ks) for cg in range(4) for ks in range(1, 4)]
    bufs = [X + 16, X + 24, X, X + 8, Y, Y + 8, Y + 16, Y + 24]

    WOR = [a(224, 8), a(232, 8), a(240, 8), a(248, 8), v(224, 8), v(232, 8), v(240, 8), v(248, 8)]

    AT = Y + 28
    TF = {2: X, 3: Y}
    atr = []
    trs = {u: [(cg, i) for cg in ((2, 3, 0, 1) if u == 2 else (0, 1, 2, 3)) for i in range(4)] for u in (2, 3)}

    def trW(u, cnt=1):
        for _ in range(cnt):
            if trs[u]:
                cg, i = trs[u].pop(0)
                lq.issue(('F', u, cg), f"ds_read_b64_tr_b16 {v(TF[u] + 8*cg + 2*i, 2)}, {v(AT + cg)} offset:{(u - 2) * 8192 + (8 * (i >> 1) + 2 * (i & 1)) * 256}")

    def rdW(i, half):
        if first:
            if atr:
                trW(2, 2)
            return
        o = (8 + i) * 2048 + 1024 * half
        lq.issue(('W', i), f"ds_read_b128 {v(bufs[i] + 4*half, 4)}, {v(vWo)} offset:{o}")
    for i in range(8):
        ks, t = i >> 1, i & 1
        if i in (0, 4):
            lq.wait(('q', ks + 1))
        if first:
            lq.wait(('KX', 4 * t + ks))
        T = (T0, T1)[t]
        c = "0" if ks == 0 else v(T, 4)
        A(f"v_mfma_f32_16x16x32_bf16 {v(T,4)}, {v(KXR[4*t+ks],4)}, {v(QR+4*ks,4)}, {c}")
        if i == 0 and KP == 0:
            A(f"buffer_load_dwordx4 {v(vL16)}, {s(S_WS,4)}, {s(sKn)} offen offset:1024 lds")
        if i <= 5:
            trk(i + 2)
            post('v', i)
        elif i == 6 and not opts.get('xnokm'):
            A(f"buffer_store_dword {v(vS0)}, {v(vQKw)}, {s(S_WS,4)}, {s(sKM)} offen offset:2048 sc1")
            A(f"buffer_store_dword {v(vVM1)}, {v(vQKw)}, {s(S_WS,4)}, {s(sKM)} offen offset:2304 sc1")
    if FTR[0] == 1:
        fstamp(A, 6)
    if not first:
        A(f"s_cmp_eq_u32 {s(sS)}, 63")
        A(f"s_cbranch_scc1 {Llast}")
    for ks in range(4):
        if ks in (0, 2):
            lq.wait(('k', ks + 1))
        cm = "0" if ks == 0 else v(TM, 4)
        A(f"v_mfma_f32_16x16x32_bf16 {v(TM,4)}, {v(KR+4*ks,4)}, {v(QR+4*ks,4)}, {cm}")
        rdW(ks >> 1, ks & 1)
        if ks == 1:
            A(f"v_max3_f32 {v(m)}, {v(T0)}, {v(T0+1)}, {v(T0+2)}")
        elif ks == 2:
            A(f"v_max3_f32 {v(t_)}, {v(T0+3)}, {v(T1)}, {v(T1+1)}")
        elif ks == 3:
            A(f"v_max3_f32 {v(m)}, {v(m)}, {v(T1+2)}, {v(T1+3)}")
    if first:
        A(f"s_lshl_b32 {s(sT2)}, {s(sWAVE)}, 15")
        A(f"s_add_u32 {s(sT2)}, {s(sT2)}, {WO_OFF + 16384:#x}")
        lane_expr(A, AT, vL16, [(6, 1, 256 + 64), (8, 1, 4096 + 128), (9, 1, 1024), (7, 1, 32), (4, 2, 8)], sregs=[sT2], tmp=AT + 1)
        for cg in range(1, 4):
            A(f"v_xor_b32 {v(AT + cg)}, {cg << 6:#x}, {v(AT)}")
        atr.append(1)
    if FTR[0] == 1:
        fstamp(A, 7)
    ralate = 1

    def rearm(k, now=False):
        if now and k == 2:
            A(f"buffer_store_dwordx4 {v(vSEL,4)}, {v(vMst)}, {s(S_WS,4)}, {s(sRa2)} offen{st}")
    VX0 = Y + 16
    u0, u1 = TM + 2, TM + 3
    if VP == 0:
        v2 = VAT + opts.get('vsp', 1)
        young = (3 if VAT <= 12 else 0) + (v2 <= 44) + (v2 <= 45) + 2 + (2 if KP == 0 else 0)
        assert v2 <= 47
        if not first:
            A(f"s_waitcnt vmcnt({young})")
    lq.issue('vx', f"ds_read_b128 {v(VX0,4)}, {v(vMw)} offset:{VX_OFF - MEM_OFF}")
    lq.issue('vx', f"ds_read_b128 {v(VX0+4,4)}, {v(vMw)} offset:{VX_OFF - MEM_OFF + 1024}")
    rdW(2, 0)
    rdW(2, 1)
    A(f"v_mov_b64 {v(ACC+10,2)}, 0")
    A(f"v_max3_f32 {v(m)}, {v(m)}, {v(t_)}, {v(TM)}")
    A(f"v_max_f32 {v(u0)}, {v(m)}, {v(TM+1)}")
    A(f"v_max_f32 {v(u1)}, {v(m)}, {v(TM+1)}")
    rdW(3, 0)
    A(f"v_mov_b64 {v(ACC+8,2)}, 0")
    A(f"v_permlane16_swap_b32 {v(u0)}, {v(u1)}")
    A(f"v_max_f32 {v(m)}, {v(u0)}, {v(u1)}")
    A(f"v_max_f32 {v(t_)}, {v(u0)}, {v(u1)}")
    rdW(3, 1)
    A(f"s_nop 0")
    A(f"v_permlane32_swap_b32 {v(m)}, {v(t_)}")
    A(f"v_max_f32 {v(m)}, {v(m)}, {v(t_)}")
    A(f"v_mul_f32 {v(m)}, {s(sNC)}, {v(m)}")
    BX = ACC + 12
    xs = [T0, T0 + 1, T0 + 2, T0 + 3, T1, T1 + 1, T1 + 2, T1 + 3]
    ms = [TM, TM + 1]
    if opts.get('pk', 1):
        def pkf(r):
            A(f"v_pk_fma_f32 {v(r,2)}, {v(r,2)}, {s(sC,2)}, {v(m,2)} op_sel_hi:[1,0,0]")
        pkf(T0)
        pkf(T0 + 2)
        for j in range(8):
            A(f"v_exp_f32 {v(xs[j])}, {v(xs[j])}")
            if j == 1:
                pkf(T1)
            elif j == 3:
                pkf(T1 + 2)
            elif j == 5:
                pkf(TM)
            if j >= 2 and j % 2 == 0:
                q = (j - 2) // 2
                A(f"v_cvt_pk_bf16_f32 {v(BX+q)}, {v(xs[2*q])}, {v(xs[2*q+1])}")
    else:
        for r in xs[:2]:
            A(f"v_fma_f32 {v(r)}, {v(r)}, {s(sC)}, {v(m)}")
        for j in range(8):
            A(f"v_exp_f32 {v(xs[j])}, {v(xs[j])}")
            nx = (xs + ms)[j + 2]
            A(f"v_fma_f32 {v(nx)}, {v(nx)}, {s(sC)}, {v(m)}")
            if j >= 2 and j % 2 == 0:
                q = (j - 2) // 2
                A(f"v_cvt_pk_bf16_f32 {v(BX+q)}, {v(xs[2*q])}, {v(xs[2*q+1])}")
    A(f"v_exp_f32 {v(ms[0])}, {v(ms[0])}")
    A(f"v_cvt_pk_bf16_f32 {v(BX+3)}, {v(xs[6])}, {v(xs[7])}")
    A(f"v_exp_f32 {v(ms[1])}, {v(ms[1])}")
    if cp and not rp:
        lstamp(A, 5)
    O0, O1, LS, PKO = PA, PA + 4, PA + 12, PA + 8
    lq.wait('vx')
    A(f"v_mfma_f32_16x16x32_bf16 {v(LS,4)}, {v(vONE,4)}, {v(BX,4)}, 0")
    A(f"v_cvt_pk_bf16_f32 {v(vBM)}, {v(ms[0])}, {v(ms[1])}")
    A(f"v_mfma_f32_16x16x32_bf16 {v(O0,4)}, {v(VX0,4)}, {v(BX,4)}, 0")
    rdW(4, 0)
    WE = opts.get('wearly', 0)
    A(f"v_mfma_f32_16x16x32_bf16 {v(O1,4)}, {v(VX0+4,4)}, {v(BX,4)}, 0")
    if WE:
        rdW(4, 1)
    A(f"v_mfma_f32_16x16x32_bf16 {v(LS,4)}, {v(vONE,4)}, {v(vBM,4)}, {v(LS,4)}")
    if WE:
        rdW(5, 0)
    A(f"v_mfma_f32_16x16x32_bf16 {v(O0,4)}, {v(vS0,4)}, {v(vBM,4)}, {v(O0,4)}")
    if WE:
        rdW(5, 1)
    A(f"v_mov_b64 {v(ACC+12,2)}, 0")
    A(f"v_mfma_f32_16x16x32_bf16 {v(O1,4)}, {v(vVM1,4)}, {v(vBM,4)}, {v(O1,4)}")
    if WE:
        rdW(7, 0)
    else:
        rdW(4, 1)
    if FTR[0] == 2:
        fstamp(A, 2)
    A(f"v_rcp_f32 {v(m)}, {v(LS)}")
    if WE:
        rdW(7, 1)
    else:
        rdW(5, 0)
    A(f"v_mov_b64 {v(ACC+14,2)}, 0")
    if WE == 2:
        rdW(6, 0)
        rdW(6, 1)
    if opts.get('pk', 1):
        def pkm(r):
            A(f"v_pk_mul_f32 {v(r,2)}, {v(r,2)}, {v(m,2)} op_sel_hi:[1,0]")
        pkm(O0)
        pkm(O0 + 2)
        pkm(O1)
        A(f"v_cvt_pk_bf16_f32 {v(PKO)}, {v(O0)}, {v(O0+1)}")
        pkm(O1 + 2)
        A(f"v_cvt_pk_bf16_f32 {v(PKO+1)}, {v(O0+2)}, {v(O0+3)}")
    else:
        for r in range(4):
            A(f"v_mul_f32 {v(O0+r)}, {v(O0+r)}, {v(m)}")
        A(f"v_cvt_pk_bf16_f32 {v(PKO)}, {v(O0)}, {v(O0+1)}")
        A(f"v_cvt_pk_bf16_f32 {v(PKO+1)}, {v(O0+2)}, {v(O0+3)}")
        for r in range(4):
            A(f"v_mul_f32 {v(O1+r)}, {v(O1+r)}, {v(m)}")
    A(f"v_cvt_pk_bf16_f32 {v(PKO+2)}, {v(O1)}, {v(O1+1)}")
    A(f"v_cvt_pk_bf16_f32 {v(PKO+3)}, {v(O1+2)}, {v(O1+3)}")
    if FTR[0] == 2:
        fstamp(A, 3)
    lq.issue('wo_', f"ds_write_b128 {v(vOw)}, {v(PKO,4)} offset:0")
    AOr = [PKO, PA, PA + 4, PA + 12]
    vAo = [None, vT0, vT1, vS0]
    for k in range(1, 4):
        A(f"v_xor_b32 {v(vAo[k])}, {k << 9:#x}, {v(vOw)}")
    if cp and not rp:
        lstamp(A, 6)

    def pack(cg, k):
        A(f"v_cvt_pk_bf16_f32 {v(ACC+4*cg+k)}, {v(ACC+4*cg+2*k)}, {v(ACC+4*cg+2*k+1)}")

    def tagp(cg):
        A(f"v_and_or_b32 {v(ACC+4*cg)}, {v(ACC+4*cg)}, -2, {s(sTag)}")

    def pstore(cg, st=st):
        A(f"buffer_store_dwordx2 {v(ACC+4*cg,2)}, {v(vPst)}, {s(S_WS,4)}, {s(sPc[cg]) if cg else 0} offen{st}")
    if first:
        trW(2, 16)

        def fin(r_, io):
            for hf in range(2):
                lq.issue(('fin', io), f"ds_write_b128 {v(vWo)}, {v(r_ + 4*hf, 4)} offset:{io * 2048 + 1024 * hf}")
        B1 = [224, 248, 232, 240]
        for ks in range(4):
            if ks == 3:
                A(f"s_waitcnt vmcnt(7)")
                if opts.get('esprof'):
                    stamp(A, 6)
                trW(3, 16)
            for cg in range(4):
                if ks and cg == 0:
                    lq.wait(('Ao', ks))
                if ks >= 2:
                    lq.wait(('F', ks, cg))
                B = a(224 + 8 * cg, 8) if ks == 0 else v(B1[cg], 8) if ks == 1 else v(TF[ks] + 8 * cg, 8)
                A(f"v_smfmac_f32_16x16x64_bf16 {v(ACC+4*cg,4)}, {v(AOr[ks],4)}, {B}, {v(vIdxW)}")
                if ks == 0 and cg == 1:
                    lq.wait('wo_')
                    A(f"s_barrier")
                    for k in range(1, 4):
                        lq.issue(('Ao', k), f"ds_read_b128 {v(AOr[k],4)}, {v(vAo[k])}")
                if ks == 2 and cg >= 1:
                    fin(*[(232, 10), (X + 8, 8), (X + 16, 11)][cg - 1])
        for (r_, io) in [(240, 13), (X + 24, 14), (Y + 8, 9), (Y + 16, 12), (Y + 24, 15)]:
            fin(r_, io)
            if io == 14:
                A.nop(4)
                for cg in range(4):
                    pack(cg, 0)
                    pack(cg, 1)
                    tagp(cg)
                Lsl, Lpd = A.new_label("esl"), A.new_label("epd")
                A(f"s_cmp_eq_u32 {s(sFastF)}, 1")
                if opts.get('forceslow'):
                    A(f"s_branch {Lsl}")
                A(f"s_cbranch_scc0 {Lsl}")
                for cg in range(4):
                    pstore(cg, "")
                A(f"s_branch {Lpd}")
                A.label(Lsl)
                for cg in range(4):
                    pstore(cg, " sc1")
                A.label(Lpd)
        lq.wait(('fin', 13))
        for i in range(4):
            A(f"v_mov_b64 {v(232 + 2*i, 2)}, {v(X + 2*i, 2)}")
            A(f"v_mov_b64 {v(240 + 2*i, 2)}, {v(Y + 2*i, 2)}")
        lq.wait_all()
        if opts.get('esprof'):
            stamp(A, 7)
        if opts.get('cf'):
            A(f"s_load_dwordx2 s[28:29], s[0:1], 88")
        A(f"s_cmp_eq_u32 {s(sFastF)}, 1")
        if opts.get('forceslow'):
            A(f"s_branch L_red_s")
        A(f"s_cbranch_scc0 L_red_s")
        A(f"s_branch L_red_f")
        return
    for i, (cg, ks) in enumerate(wo_ops):
        if ks:
            lq.wait(('Ao', ks))
        if i >= 8:
            lq.wait(('W', i - 8))
        A(f"v_smfmac_f32_16x16x64_bf16 {v(ACC+4*cg,4)}, {v(AOr[ks],4)}, {WOR[i] if i < 8 else v(bufs[i - 8],8)}, {v(vIdxW)}")
        if i == opts.get('obar', 1):
            lq.wait('wo_')
            A(f"s_barrier")
            if FTR[0] == 2:
                fstamp(A, 5)
            for k in range(1, 4):
                lq.issue(('Ao', k), f"ds_read_b128 {v(AOr[k],4)}, {v(vAo[k])}")
        if i == 4 and FTR[0] == 2:
            fstamp(A, 6)
        if i == 9 and FTR[0] == 2:
            fstamp(A, 7)
        if WE == 0:
            if i == 2:
                rdW(5, 1)
                rdW(6, 0)
            elif i == 3:
                rdW(6, 1)
                rdW(7, 0)
            elif i == 4:
                rdW(7, 1)
        elif WE == 1:
            if i == 2:
                rdW(6, 0)
            elif i == 3:
                rdW(6, 1)
        pst = opts.get('pst', 1)
        if pst == 1:
            if i in (11, 14):
                pstore((i - 11) // 3)
            if i in (8, 11, 14):
                pack((i - 8) // 3, 0)
            elif i in (9, 12, 15):
                pack((i - 9) // 3, 1)
            elif i in (10, 13):
                tagp((i - 10) // 3)
        elif pst == 2:
            if i in (8, 11, 14):
                pack((i - 8) // 3, 0)
                pack((i - 8) // 3, 1)
            elif i in (9, 12, 15):
                tagp((i - 9) // 3)
            elif i in (10, 13):
                pstore((i - 10) // 3)
        elif pst == 3:
            if i in (8, 11, 14):
                pack((i - 8) // 3, 0)
            elif i in (9, 12, 15):
                pack((i - 9) // 3, 1)
                tagp((i - 9) // 3)
            elif i in (10, 13):
                pstore((i - 10) // 3)
    if pst == 1:
        tagp(2)
        pstore(2)
        A(f"s_nop 5")
    else:
        pstore(2)
        A(f"s_nop 6")
    pack(3, 0)
    pack(3, 1)
    tagp(3)
    pstore(3)
    A.label(f"L_red_{tag}")
    if cp:
        lstamp(A, 7)
    Lnr = A.new_label("notred")

    def bookkeeping():
        A(f"s_add_u32 {s(sS)}, {s(sS)}, 1")
        A(f"s_add_u32 {s(sKM)}, {s(sKM)}, 0x20000")
        A(f"s_add_u32 {s(sKV)}, {s(sKV)}, 0x80000")
        A(f"s_add_u32 {s(sPf)}, {s(sPf)}, 0x80000")
        A(f"s_add_u32 {s(sJ4)}, {s(sJ4)}, 4")
        A(f"s_cmp_eq_u32 {s(sJ4)}, 20")
        A(f"s_cselect_b32 {s(sJ4)}, 0, {s(sJ4)}")
        A(f"s_addc_u32 {s(sCn)}, {s(sCn)}, 0")

    def bookkeeping2(w0=False):
        A(f"s_add_u32 {s(sFo)}, {s(sFb)}, {s(sJ4)}")
        A(f"s_cmp_lt_u32 {s(sS)}, 62")
        A(f"s_cselect_b32 {s(sNeed)}, {s(sCn)}, 0")
        if opts.get('cf') and not w0:
            A(f"s_cmp_eq_u32 {s(sS)}, 62")
            A(f"s_cselect_b32 {s(sFo)}, {WS_OF + 63 * 128:#x}, {s(sFo)}")
            A(f"s_cselect_b32 {s(sNeed)}, 32, {s(sNeed)}")
            bookkeeping3()

    def bookkeeping3():
        A(f"s_cmp_eq_u32 {s(sS)}, 63")
        A(f"s_cselect_b32 {s(sPf)}, {OOB:#x}, {s(sPf)}")
        A(f"s_cselect_b32 {s(sFo)}, {OOB:#x}, {s(sFo)}")

    def zero_acc():
        for i in range(8):
            A(f"v_mov_b64 {v(ACC+2*i,2)}, 0")
        for i in range(4):
            A(f"v_mov_b64 {v(AK+2*i,2)}, 0")

    def w1_dma():
        for _ in range(opts.get('w1d', 0)):
            A(f"s_sleep 1")
        if KP == 2:
            A(f"s_add_u32 {s(sT3)}, {s(sKV)}, 0x80000")
            dma_pair(sM0K, sT3)
            if M0TOP:
                A(f"s_mov_b32 m0, {s(sM0V)}")
        if VP == 2:
            A(f"s_add_u32 {s(sT3)}, {s(sKV)}, {0x80000 + 8192:#x}")
            dma_pair(sM0V, sT3)
    nw1 = 2 * ((KP == 2) + (VP == 2))
    if nw1 and opts.get('w1pre'):
        w1_dma()
    if opts.get('rbar', 1):
        A(f"s_barrier")
    if nw1 and not opts.get('w1pre'):
        w1_dma()
    A(f"s_cmp_lg_u32 {s(sWAVE)}, 0")
    A(f"s_cbranch_scc1 {Lnr}")
    Lred = A.new_label("red")
    Lredok = A.new_label("redok")
    RA = PA
    two = opts.get('rtwo', 0)

    if rt:
        A(f"s_memtime s[62:63]")
        A(f"s_lshl_b32 {s(sT0)}, {s(sH)}, 6")
        A(f"s_add_u32 {s(sT0)}, {s(sT0)}, {s(sS)}")
        A(f"s_lshl_b32 {s(sT0)}, {s(sT0)}, 6")
        A(f"s_add_u32 {s(sT0)}, {s(sT0)}, {WS_T + 0x10000:#x}")
        A(f"s_waitcnt lgkmcnt(0)")
        A(f"v_mov_b32 {v(vT0)}, s16")
        for k in range(1, 8):
            A(f"v_writelane_b32 {v(vT0)}, s{16 + 2*k}, {k}")
        A(f"v_writelane_b32 {v(vT0)}, s{sCP0}, 8")
        A(f"v_writelane_b32 {v(vT0)}, s{sRet}, 9")
        A(f"v_lshrrev_b32 {v(vT1)}, 2, {v(vL16)}")
        A(f"s_mov_b64 exec, 0x3ff")
        A(f"buffer_store_dword {v(vT0)}, {v(vT1)}, {s(S_WS,4)}, {s(sT0)} offen")
        A(f"s_mov_b64 exec, -1")
        A(f"s_mov_b32 s16, s62")
        A(f"s_mov_b32 {s(sCP0)}, 0")
    zero_acc()
    A(f"v_xor_b32 {v(vTagE)}, 1, {v(vTagE)}")
    bookkeeping()
    bookkeeping2(True)
    A(f"s_mov_b32 {s(sRet)}, 0")
    RS = [[X + 4 * i for i in range(8)], [Y + 4 * i for i in range(6)] + [PA + 8, PA + 12]]
    mode = opts.get('rmode', 1)

    def ld(R, i):
        A(f"buffer_load_dwordx4 {v(R[i],4)}, {v(vRed)}, {s(S_WS,4)}, {0 if i < 4 else s(sSlotP4)} offen offset:{(i%4)*1024} sc1")

    def chk(R, other, cnt, first=False):
        ys = [vT0, vT1, vS0, vT1, vS0, vT1, vS0, vT1]
        if rt:
            A(f"s_add_u32 {s(sCP0)}, {s(sCP0)}, 1")
        for i in range(8):
            A(f"s_waitcnt vmcnt({cnt(i)})")
            if first and i == 0:
                rstamp(2)
            if first and i == 7:
                rstamp(3)
            c = "0" if i == 0 else v(RA, 4)
            A(f"v_mfma_f32_16x16x32_bf16 {v(RA,4)}, {v(R[i],4)}, {v(vSEL,4)}, {c}")
            if other is not None:
                ld(other, i)
            A(f"v_bitop3_b32 {v(ys[i])}, {v(R[i])}, {v(R[i]+2)}, {v(vTagE)} bitop3:0x7e")
            if i in (2, 4, 6):
                A(f"v_or3_b32 {v(vT0)}, {v(vT0)}, {v(vT1)}, {v(vS0)}")
        A(f"v_bitop3_b32 {v(vT0)}, {v(vT0)}, {v(vT1)}, 1 bitop3:0xa8")
        A(f"v_cmp_ne_u32 vcc, 0, {v(vT0)}")
    for _ in range(opts.get('rdelay', 0)):
        A(f"s_sleep 1")
    rstamp(1)
    for i in range(8):
        ld(RS[0], i)
    if mode == 3:
        red3(A, opts, RS[0], RA, ld, st, Lar, rstamp, RBT)
        return_after_red = True
    else:
        return_after_red = False
    if not return_after_red:
        Lrfail = A.new_label("rfail")
        Lredok2 = A.new_label("redok2") if RBT else Lredok
        if mode == 2:
            for _ in range(opts.get('rspace', 1)):
                A(f"s_sleep 1")
            for i in range(8):
                ld(RS[1], i)
            chk(RS[0], None, lambda i: 15 - i, True)
        elif mode == 1:
            chk(RS[0], RS[1], lambda i: 7, True)
        else:
            chk(RS[0], None, lambda i: 7 - i, True)
        A(f"s_cbranch_vccnz {Lrfail}")
        A.label(Lredok)
        rstamp(4)
        A(f"s_nop {3 if mode == 1 else 4}")
        A(f"v_cvt_pk_bf16_f32 {v(RA+4)}, {v(RA)}, {v(RA+1)}")
        A(f"v_cvt_pk_bf16_f32 {v(RA+5)}, {v(RA+2)}, {v(RA+3)}")
        A(f"buffer_store_dwordx2 {v(RA+4,2)}, {v(vMst)}, {s(S_WS,4)}, {s(sSlotM)} offen{st}")
        if opts.get('cf'):
            A(f"s_cmp_eq_u32 {s(sS)}, 63")
            A(f"s_cbranch_scc1 L_cfq0_{tag}")
        A(f"s_branch {Lar}")
        A.label(Lrfail)
        if opts.get('hist'):
            A(f"s_add_u32 {s(sCP0)}, {s(sCP0)}, 1")
        if mode == 0:
            for i in range(8):
                ld(RS[1], i)
        if mode == 2 and opts.get('rlazy'):
            chk(RS[1], None, lambda i: 7 - i)
            A(f"s_cbranch_vccz {Lredok}")
            if opts.get('hist'):
                A(f"s_add_u32 {s(sCP0)}, {s(sCP0)}, 0x1000")
            for i in range(8):
                ld(RS[0], i)
            for _ in range(opts.get('rspace', 1)):
                A(f"s_sleep 1")
            for i in range(8):
                ld(RS[1], i)
            chk(RS[0], None, lambda i: 15 - i)
            A(f"s_cbranch_vccz {Lredok}")
        A.label(Lred)
        chk(RS[1], RS[0], lambda i: 7)
        A(f"s_cbranch_vccz {Lredok2}")
        if opts.get('hist'):
            A(f"s_add_u32 {s(sCP0)}, {s(sCP0)}, {0x1000000 if opts.get('rlazy') else 0x1000}")
        chk(RS[0], RS[1], lambda i: 7)
        A(f"s_cbranch_vccz {Lredok2}")
        if opts.get('hist'):
            A(f"s_add_u32 {s(sCP0)}, {s(sCP0)}, 0x1000000")
        A(f"s_add_u32 {s(sRet)}, {s(sRet)}, 1")
        A(f"s_cmp_lg_u32 {s(sDEAD)}, 0")
        A(f"s_cbranch_scc1 {Lredok2}")
        A(f"s_cmp_lt_u32 {s(sRet)}, {RED_LIMIT}")
        A(f"s_cbranch_scc1 {Lred}")
        A(f"s_mov_b32 {s(sDEAD)}, 1")
        if RBT:
            A.label(Lredok2)
            A(f"s_waitcnt vmcnt(0)")
        A(f"s_branch {Lredok}")
    A.label(Lnr)
    Lfok = A.new_label("fok")
    Lfsp = A.new_label("fsp")
    A(f"s_mov_b32 {s(sRet)}, 0")
    A(f"s_waitcnt vmcnt({10 + (2 if KP == 0 else 0) + nw1 + (2 if VP == 0 and VAT > 12 else 0)})")
    A(f"v_readfirstlane_b32 {s(sT0)}, {v(vFlag)}")
    zero_acc()
    A(f"s_cmp_ge_u32 {s(sT0)}, {s(sNeed)}")
    A(f"s_cbranch_scc1 {Lfok}")
    A(f"s_cmp_lg_u32 {s(sDEAD)}, 0")
    A(f"s_cbranch_scc1 {Lfok}")
    A(f"s_mov_b32 {s(sRet)}, 0")
    A.label(Lfsp)
    A(f"buffer_load_dword {v(vFlag)}, off, {s(S_WS,4)}, {s(sFo)} sc1")
    A(f"s_waitcnt vmcnt(0)")
    A(f"v_readfirstlane_b32 {s(sT0)}, {v(vFlag)}")
    A(f"s_cmp_ge_u32 {s(sT0)}, {s(sNeed)}")
    A(f"s_cbranch_scc1 {Lfok}")
    A(f"s_sleep 1")
    A(f"s_add_u32 {s(sRet)}, {s(sRet)}, 1")
    A(f"s_cmp_lt_u32 {s(sRet)}, {SPIN_LIMIT}")
    A(f"s_cbranch_scc1 {Lfsp}")
    A(f"s_mov_b32 {s(sDEAD)}, 1")
    A.label(Lfok)
    if opts.get('cf'):
        A(f"s_sub_u32 {s(sT0)}, {s(sS)}, 57")
        A(f"s_cmp_lt_u32 {s(sT0)}, 6")
        A(f"s_cbranch_scc1 L_cfa_{tag}")
        A.label(f"L_cfar_{tag}")
    if TRACE[0]:
        Lsl = A.new_label("tr")
        A(f"s_cmp_lg_u32 {s(sWAVE)}, {opts.get('tw', 1)}")
        A(f"s_cbranch_scc1 {Lsl}")
        A(f"s_lshl_b32 {s(sT0)}, {s(sH)}, 6")
        A(f"s_add_u32 {s(sT0)}, {s(sT0)}, {s(sS)}")
        A(f"s_lshl_b32 {s(sT0)}, {s(sT0)}, 5")
        A(f"s_add_u32 {s(sT0)}, {s(sT0)}, {WS_T + 0x10000:#x}")
        A(f"s_waitcnt lgkmcnt(0)")
        A(f"v_mov_b32 {v(vT0)}, s16")
        for k in range(1, 8):
            A(f"v_writelane_b32 {v(vT0)}, s{16 + 2*k}, {k}")
        A(f"v_lshrrev_b32 {v(vT1)}, 2, {v(vL16)}")
        A(f"s_mov_b64 exec, 0xff")
        A(f"buffer_store_dword {v(vT0)}, {v(vT1)}, {s(S_WS,4)}, {s(sT0)} offen")
        A(f"s_mov_b64 exec, -1")
        A.label(Lsl)
    if opts.get('steplog'):
        Lsl = A.new_label("sl")
        A(f"s_cmp_lg_u32 {s(sWAVE)}, 1")
        A(f"s_cbranch_scc1 {Lsl}")
        A(f"s_memrealtime s[62:63]")
        A(f"s_memtime s[16:17]")
        A(f"s_lshl_b32 {s(sT0)}, {s(sH)}, 6")
        A(f"s_add_u32 {s(sT0)}, {s(sT0)}, {s(sS)}")
        A(f"s_lshl_b32 {s(sT0)}, {s(sT0)}, 3")
        A(f"s_add_u32 {s(sT0)}, {s(sT0)}, {WS_T + (0x30000 if opts.get('prof') else 0x8000):#x}")
        A(f"s_waitcnt lgkmcnt(0)")
        A(f"v_mov_b32 {v(vT0)}, s62")
        A(f"v_mov_b32 {v(vT1)}, s16")
        A(f"s_mov_b64 exec, 1")
        A(f"buffer_store_dwordx2 {v(vT0,2)}, off, {s(S_WS,4)}, {s(sT0)}")
        A(f"s_mov_b64 exec, -1")
        A.label(Lsl)
    bookkeeping()
    bookkeeping2()
    rearm(2, True)
    A(f"s_branch {Lar}")
    A.label(Lretry0)
    if opts.get('hist'):
        A(f"s_add_u32 {s(sCP1)}, {s(sCP1)}, 1")
    GM = opts.get('gm', 0)

    def re_issue(R):
        if GM & 1:
            A(f"s_mov_b64 exec, vcc")
        con_issue(R)
        if GM & 1:
            A(f"s_mov_b64 exec, -1")
    if GM:
        re_issue(H0)
        A(f"s_nop {3 if GM & 1 else 5}")
    else:
        A(f"s_nop 7")
    for i in range(4):
        A(f"v_mov_b64 {v(AQ+2*i,2)}, 0")
    if not GM:
        con_issue(H0)
    A(f"s_waitcnt vmcnt({4 if G3 else 2})")
    A(f"ds_write_b128 {v(vMw)}, {v(H1,4)}")
    A(f"v_max3_u32 {v(Y)}, {v(H1)}, {v(H1+2)}, {v(H1+4)}")
    A(f"ds_write_b128 {v(vMw)}, {v(H1+4,4)} offset:1024")
    A(f"v_max_u32 {v(Y)}, {v(Y)}, {v(H1+6)}")
    A(f"v_cmp_eq_u32 vcc, -1, {v(Y)}")
    A(f"s_add_u32 {s(sRet)}, {s(sRet)}, 1")
    A(f"s_cbranch_vccz {Lown[1]}")
    if opts.get('hist'):
        A(f"s_add_u32 {s(sCP1)}, {s(sCP1)}, 0x10000")
    re_issue(H1)
    if G3:
        Lown2 = f"L_own2_{tag}"
        A(f"s_waitcnt vmcnt(4)")
        A(f"ds_write_b128 {v(vMw)}, {v(H2,4)}")
        A(f"v_max3_u32 {v(Y)}, {v(H2)}, {v(H2+2)}, {v(H2+4)}")
        A(f"ds_write_b128 {v(vMw)}, {v(H2+4,4)} offset:1024")
        A(f"v_max_u32 {v(Y)}, {v(Y)}, {v(H2+6)}")
        A(f"v_cmp_eq_u32 vcc, -1, {v(Y)}")
        A(f"s_add_u32 {s(sRet)}, {s(sRet)}, 1")
        A(f"s_cbranch_vccz {Lown2}")
        con_issue(H2)
    A(f"s_cmp_lg_u32 {s(sDEAD)}, 0")
    A(f"s_cbranch_scc1 {Lown[1]}")
    A(f"s_cmp_lt_u32 {s(sRet)}, {RED_LIMIT}")
    A(f"s_cbranch_scc1 {Lspec}")
    A(f"s_mov_b32 {s(sDEAD)}, 1")
    A.label(Lown[1])
    own(H1, False)
    A(f"s_branch {Lcommon}")
    if G3:
        A.label(Lown2)
        own(H2, False)
        A(f"s_branch {Lcommon}")
    icf = len(A.L)
    if opts.get('cf'):
        cf_side(A, fast, opts, tag, Lar)
    A.label(Llast)
    if opts.get('tprof') in (1, 2):
        stamp(A, 4)
    if opts.get('cf'):
        cf_tail(A, fast, opts)
        if fast and opts.get('walk'):
            from isz import add_stubs
            add_stubs(A, icf, "cf", "L_walk_cf", "L_walk_ret", opts.get('wstep', 64))
    A(f"s_waitcnt vmcnt(0) lgkmcnt(0)")
    if opts.get('hist'):
        A(f"s_lshl_b32 {s(sT0)}, {s(sH)}, 2")
        A(f"s_add_u32 {s(sT0)}, {s(sT0)}, {s(sWAVE)}")
        A(f"s_lshl_b32 {s(sT0)}, {s(sT0)}, 3")
        A(f"s_add_u32 {s(sT0)}, {s(sT0)}, {WS_T + 0x40000:#x}")
        A(f"v_mov_b32 {v(vT0)}, {s(sCP0)}")
        A(f"v_mov_b32 {v(vT1)}, {s(sCP1)}")
        A(f"s_mov_b64 exec, 1")
        A(f"buffer_store_dwordx2 {v(vT0,2)}, off, {s(S_WS,4)}, {s(sT0)}")
        A(f"s_mov_b64 exec, -1")
        A(f"s_waitcnt vmcnt(0)")
    if fast and opts.get('cwb'):
        Lwb = A.new_label("cwb")
        A(f"s_cmp_lg_u32 {s(sWAVE)}, 0")
        A(f"s_cbranch_scc1 {Lwb}")
        A(f"buffer_wbl2 sc1")
        A(f"s_waitcnt vmcnt(0)")
        A.label(Lwb)
    if cp and not TRACE[0]:
        for i in range(1, 10):
            A(f"s_mov_b32 s{92+i}, s{16+2*(i-1) if i < 9 else 62}")
        A(f"s_lshl_b32 {s(sCP1)}, {s(sCP1)}, 16")
        A(f"s_or_b32 s92, {s(sCP0)}, {s(sCP1)}")
        A("s_branch L_flush")
    A(f"s_branch L_role_end")


def cf_qload(A):
    A(f"s_lshl_b32 {s(sT0)}, {s(sH)}, 13")
    A(f"s_lshr_b32 {s(sT1)}, {s(sWAVE)}, 1")
    A(f"s_lshl_b32 {s(sT1)}, {s(sT1)}, 12")
    A(f"s_add_u32 {s(sT0)}, {s(sT0)}, {s(sT1)}")
    A(f"s_and_b32 {s(sT1)}, {s(sWAVE)}, 1")
    A(f"s_lshl_b32 {s(sT1)}, {s(sT1)}, 7")
    A(f"s_add_u32 {s(sT0)}, {s(sT0)}, {s(sT1)}")
    A(f"s_add_u32 {s(sT0)}, {s(sT0)}, {WS_QX + 63 * 32 * 8192:#x}")
    A(f"v_and_b32 {v(vT0)}, 0x370, {v(vL16)}")
    for ks in range(4):
        A(f"buffer_load_dwordx4 {a(4*ks,4)}, {v(vT0)}, {s(S_WS,4)}, {s(sT0)} offen offset:{ks*1024}")


def cf_side(A, fast, opts, tag, Lar):
    A.label(f"L_cfa_{tag}")
    Lq = A.new_label("cfq")
    A(f"s_cmp_eq_u32 {s(sS)}, 62")
    A(f"s_cbranch_scc1 {Lq}")
    if fast and opts.get('cfpf', 1):
        A(f"s_add_u32 {s(sT0)}, {s(sS)}, 3")
        A(f"s_and_b32 {s(sT0)}, {s(sT0)}, 3")
        A(f"s_lshl_b32 {s(sT0)}, {s(sT0)}, 18")
        A(f"s_add_u32 {s(sT0)}, {s(sT0)}, {WS_PF - 8192 - 0x80000:#x}")
        A(f"s_cmp_eq_u32 {s(sS)}, 61")
        A(f"s_cselect_b32 {s(sT0)}, {WS_QX + 63 * 32 * 8192 - 8192 - 0x80000:#x}, {s(sT0)}")
        A(f"s_lshl_b32 {s(sT1)}, {s(sH)}, 13")
        A(f"s_sub_u32 {s(sT0)}, {s(sT0)}, {s(sT1)}")
        A(f"s_cmp_eq_u32 {s(sWAVE)}, 1")
        A(f"s_cselect_b32 {s(sPf)}, {s(sT0)}, {s(sPf)}")
    A(f"s_branch L_cfar_{tag}")
    A.label(Lq)
    cf_qload(A)
    A(f"s_branch L_cfar_{tag}")
    A.label(f"L_cfq0_{tag}")
    cf_qload(A)
    A(f"s_branch {Lar}")


def cf_tail(A, fast, opts):
    st = "" if fast else " sc1"
    nst = [0]

    def cst():
        if opts.get('tprof') == 3:
            A(f"s_memtime s[{64 + 2*nst[0]}:{65 + 2*nst[0]}]")
            nst[0] += 1
    cst()
    KR = Y + 16
    KXR = {0: X + 16, 4: X + 20, 1: X + 24, 5: X + 28, 2: X, 6: X + 4, 3: X + 8, 7: X + 12}
    T0, T1, TM = PA, PA + 4, PA + 8
    m, t_ = vT0, vT1
    VMX, OA, LS, BX, SEL, PK = 64, 192, ACC + 8, ACC + 12, ACC + 4, PA
    WST, VXF = 96, 160
    WA = 128
    RF = 192
    sMask, sOut = 12, 28
    u0, u1, u2, u3 = ACC, ACC + 1, ACC + 2, ACC + 3
    lq = Q(A, "lgkmcnt", 15)
    A(f"s_lshl_b32 {s(sT0)}, {s(sWAVE)}, 9")
    A(f"v_lshrrev_b32 {v(u1)}, 2, {v(vL16)}")
    A(f"v_add_u32 {v(u0)}, {s(sT0)}, {v(u1)}")
    A(f"ds_write_b32 {v(u0)}, {v(vS0)} offset:{O_OFF}")
    A(f"ds_write_b32 {v(u0)}, {v(vVM1)} offset:{O_OFF + 256}")
    A(f"v_bfe_u32 {v(u2)}, {v(vL16)}, 4, 3")
    A(f"v_lshrrev_b32 {v(u3)}, 6, {v(vL16)}")
    A(f"v_and_b32 {v(u3)}, 12, {v(u3)}")
    A(f"v_sub_u32 {v(u2)}, {v(u2)}, {v(u3)}")
    A(f"s_lshl_b32 {s(sT0)}, {s(sWAVE)}, 3")
    A(f"v_add_u32 {v(u2)}, {s(sT0)}, {v(u2)}")
    A(f"s_mov_b32 {s(sOut+2)}, {2048*1024:#x}")
    A(f"s_mov_b32 {s(sOut+3)}, 0x00020000")
    cst()
    A(f"s_waitcnt vmcnt(4) lgkmcnt(0)")
    cst()
    A(f"s_barrier")
    fill = [f"v_cmp_le_i32 {s(sMask + 2*(4*t+r), 2)}, {16*t+r}, {v(u2)}" for t in range(2) for r in range(4)]
    fill += [f"v_mov_b32 {v(VMX + 2*j + 1)}, 0" for j in range(8)]
    fill += [f"v_mov_b64 {v(WA+2*i,2)}, 0" for i in range(32)]

    def fl(n):
        for _ in range(n):
            if fill:
                A(fill.pop(0))
    rd = [('vm', f"ds_read_b32 {v(VMX + 2*j)}, {v(u1)} offset:{O_OFF + j*256}") for j in range(8)]
    rd += [('vx', f"ds_read_b128 {a(VXF + 4*j, 4)}, {v(vL16)} offset:{VX_OFF + j*1024}") for j in range(8)]
    rw = [('w', f"ds_read_b128 {a(WST + 8*i + 4*hf, 4)}, {v(vWo)} offset:{(8 + i) * 2048 + 1024 * hf}") for i in range(8) for hf in range(2)]
    for ks in range(4):
        for t in range(2):
            T = (T0, T1)[t]
            c = "0" if ks == 0 else v(T, 4)
            A(f"v_mfma_f32_16x16x32_bf16 {v(T,4)}, {v(KXR[4*t+ks],4)}, {a(4*ks,4)}, {c}")
            lq.issue(*rd.pop(0))
            fl(1)
    for ks in range(4):
        cm = "0" if ks == 0 else v(TM, 4)
        A(f"v_mfma_f32_16x16x32_bf16 {v(TM,4)}, {v(KR+4*ks,4)}, {a(4*ks,4)}, {cm}")
        if ks == 0:
            lq.wait('vm')
        lq.issue(*rd.pop(0))
        lq.issue(*rd.pop(0))
        fl(2)
    A(f"v_mov_b32 {v(u0)}, 0xff800000")
    for t in range(2):
        for r in range(4):
            A(f"v_cndmask_b32 {v(PA+4*t+r)}, {v(u0)}, {v(PA+4*t+r)}, {s(sMask+2*(4*t+r),2)}")
    A(f"v_max3_f32 {v(m)}, {v(T0)}, {v(T0+1)}, {v(T0+2)}")
    A(f"v_max3_f32 {v(t_)}, {v(T0+3)}, {v(T1)}, {v(T1+1)}")
    A(f"v_max3_f32 {v(m)}, {v(m)}, {v(T1+2)}, {v(T1+3)}")
    A(f"v_max3_f32 {v(m)}, {v(m)}, {v(t_)}, {v(TM)}")
    A(f"v_max_f32 {v(u0)}, {v(m)}, {v(TM+1)}")
    A(f"v_max_f32 {v(u3)}, {v(m)}, {v(TM+1)}")
    fl(2)
    A(f"v_permlane16_swap_b32 {v(u0)}, {v(u3)}")
    A(f"v_max_f32 {v(m)}, {v(u0)}, {v(u3)}")
    A(f"v_max_f32 {v(t_)}, {v(u0)}, {v(u3)}")
    fl(2)
    A(f"v_permlane32_swap_b32 {v(m)}, {v(t_)}")
    A(f"v_max_f32 {v(m)}, {v(m)}, {v(t_)}")
    A(f"v_mul_f32 {v(m)}, {s(sNC)}, {v(m)}")
    xs = [T0 + i for i in range(8)] + [TM, TM + 1]
    lq.wait('vx')
    for r in range(0, 10, 2):
        A(f"v_pk_fma_f32 {v(xs[r],2)}, {v(xs[r],2)}, {s(sC,2)}, {v(m,2)} op_sel_hi:[1,0,0]")
        lq.issue(*rw.pop(0))
    for k, r in enumerate(xs):
        A(f"v_exp_f32 {v(r)}, {v(r)}")
        if k >= 2 and k % 2 == 0:
            q = (k - 2) // 2
            A(f"v_cvt_pk_bf16_f32 {v(BX+q)}, {v(xs[2*q])}, {v(xs[2*q+1])}")
        if k < 8:
            lq.issue(*rw.pop(0))
    cst()
    A(f"v_mfma_f32_16x16x32_bf16 {v(LS,4)}, {v(vONE,4)}, {v(BX,4)}, 0")
    A(f"v_cvt_pk_bf16_f32 {v(vBM)}, {v(TM)}, {v(TM+1)}")
    for j in range(8):
        A(f"v_mfma_f32_16x16x32_bf16 {v(OA+4*j,4)}, {a(VXF+4*j,4)}, {v(BX,4)}, 0")
        if j == 0:
            A(f"v_and_b32 {v(u0)}, 0x1ff, {v(vOw)}")
        elif j == 1:
            A(f"v_mfma_f32_16x16x32_bf16 {v(LS,4)}, {v(vONE,4)}, {v(vBM,4)}, {v(LS,4)}")
            A(f"s_lshl_b32 {s(sT0)}, {s(sWAVE)}, 11")
            A(f"v_add_u32 {v(u0)}, {s(sT0)}, {v(u0)}")
        elif j == 5:
            A(f"v_rcp_f32 {v(m)}, {v(LS)}")
        else:
            fl(1)
        if rw:
            lq.issue(*rw.pop(0))
    assert not rw

    def norm(j, k):
        if k < 2:
            A(f"v_pk_mul_f32 {v(OA+4*j+2*k,2)}, {v(OA+4*j+2*k,2)}, {v(m,2)} op_sel_hi:[1,0]")
        else:
            A(f"v_cvt_pk_bf16_f32 {v(PK+2*j+k-2)}, {v(OA+4*j+2*(k-2))}, {v(OA+4*j+2*(k-2)+1)}")
    todo = []
    for j in range(8):
        A(f"v_mfma_f32_16x16x32_bf16 {v(OA+4*j,4)}, {v(VMX+2*j,4)}, {v(vBM,4)}, {v(OA+4*j,4)}")
        if j >= 3:
            todo += [(j - 3, k) for k in range(4)]
        for _ in range(2):
            if todo:
                norm(*todo.pop(0))
            else:
                fl(1)
    todo += [(j, k) for j in range(5, 8) for k in range(4)]
    wrote = 0
    for q, (j, k) in enumerate(todo):
        if j == 7 and k == 0:
            fl(2)
        norm(j, k)
        if k == 3 and j % 2 == 1:
            while wrote <= j // 2:
                lq.issue('ow', f"ds_write_b128 {v(u0)}, {v(PK+4*wrote,4)} offset:{MEM_OFF + wrote*512}")
                wrote += 1
    assert wrote == 4
    vAo = [vOw, u2, u3, u1]
    for k in range(1, 4):
        A(f"v_xor_b32 {v(vAo[k])}, {k << 9:#x}, {v(vOw)}")
    fl(99)
    lq.wait_all()
    A(f"s_barrier")
    cst()
    wo_idx = [(cg, 0) for cg in range(4)] + [(cg, ks) for cg in range(4) for ks in range(1, 4)]
    WOR = [a(224, 8), a(232, 8), a(240, 8), a(248, 8), v(224, 8), v(232, 8), v(240, 8), v(248, 8)]
    order = [(cg, ks) for ks in range(4) for cg in range(4)]

    def rdA(gam, ks):
        lq.issue(('A', gam, ks), f"ds_read_b128 {v(32 + 16*gam + 4*ks, 4)}, {v(vAo[ks])} offset:{MEM_OFF - O_OFF + gam*2048}")
    for gam in range(2):
        for ks in range(4):
            rdA(gam, ks)
    soff = [sT0, sT1, sT2, sT3]
    vq = Q(A, "vmcnt", 63)

    def post(gam, i):
        cg, k = i // 4, i % 4
        R = WA + 16 * gam + 4 * cg
        if k == 0:
            A(f"s_mov_b32 {s(soff[cg])}, {WS_PF + gam * 0x40000 + cg * 16384:#x}")
            A(f"v_cvt_pk_bf16_f32 {v(R)}, {v(R)}, {v(R+1)}")
        elif k == 1:
            A(f"v_cvt_pk_bf16_f32 {v(R+1)}, {v(R+2)}, {v(R+3)}")
        elif k == 2:
            A(f"v_or_b32 {v(R)}, 1, {v(R)}")
        else:
            vq.issue('p', f"buffer_store_dwordx2 {v(R,2)}, {v(vPst)}, {s(S_WS,4)}, {s(soff[cg])} offen{st}")
    sPo, sPo4, sOo = sRa2, sCn, sNeed
    f0 = [f"v_bfe_u32 {v(t_)}, {v(vL16)}, 4, 4",
          f"v_and_b32 {v(m)}, 1, {v(t_)}",
          f"v_lshlrev_b32 {v(m)}, 4, {v(m)}",
          f"v_lshlrev_b32 {v(m)}, {v(m)}, {v(SEL)}",
          f"v_lshrrev_b32 {v(t_)}, 1, {v(t_)}"]
    for i in range(4):
        f0 += [f"v_cmp_eq_u32 vcc, {i}, {v(t_)}", f"v_cndmask_b32 {v(SEL+i)}, 0, {v(m)}, vcc"]
    A(f"v_mov_b32 {v(SEL)}, 0x3f80")
    f1 = [f"v_and_b32 {v(LS)}, 0x70, {v(vL16)}",
          f"v_lshrrev_b32 {v(LS+1)}, 2, {v(LS)}",
          f"v_lshlrev_b32 {v(LS)}, 7, {v(LS)}",
          f"v_lshrrev_b32 {v(LS+2)}, 8, {v(vL16)}",
          f"v_lshlrev_b32 {v(LS+2)}, 4, {v(LS+2)}",
          f"v_add_u32 {v(LS)}, {v(LS)}, {v(LS+2)}"]
    RS = [RF + 4 * i for i in range(8)]

    def ld(i):
        vq.issue(('r', i), f"buffer_load_dwordx4 {v(RS[i],4)}, {v(vRed)}, {s(S_WS,4)}, {s(sPo if i < 4 else sPo4)} offen offset:{(i%4)*1024} sc1")

    def group(gam, polls=False):
        for i, (cg, ks) in enumerate(order):
            lq.wait(('A', gam, ks))
            io = wo_idx.index((cg, ks))
            B = WOR[io] if io < 8 else a(WST + 8 * (io - 8), 8)
            A(f"v_smfmac_f32_16x16x64_bf16 {v(WA+16*gam+4*cg,4)}, {v(32 + 16*gam + 4*ks, 4)}, {B}, {v(vIdxW)}")
            if gam < 2 and i in (4, 6, 8, 10):
                rdA(gam + 2, (i - 4) // 2)
            if gam == 0:
                if f0:
                    A(f0.pop(0))
                elif f1:
                    A(f1.pop(0))
            else:
                if i >= 2:
                    post(gam - 1, i - 2)
                if i == 15:
                    post(gam - 1, 14)
                    post(gam - 1, 15)
            if gam == 1 and i == 0:
                while f1:
                    A(f1.pop(0)) if i == 0 else None
            if polls and i % 2 == 0:
                ld(i // 2)
    group(0)
    while f1:
        A(f1.pop(0))
    A(f"s_lshl_b32 {s(sPo)}, {s(sWAVE)}, 5")
    A(f"s_add_u32 {s(sPo)}, {s(sPo)}, {WS_G + 63 * 128:#x}")
    vq.issue('g', f"buffer_load_dword {a(84)}, {v(LS+1)}, {s(S_WS,4)}, {s(sPo)} offen")
    A(f"s_lshl_b32 {s(sPo)}, {s(sWAVE)}, 14")
    A(f"s_lshl_b32 {s(sPo4)}, {s(sH)}, 6")
    A(f"s_add_u32 {s(sPo)}, {s(sPo)}, {s(sPo4)}")
    A(f"s_add_u32 {s(sPo)}, {s(sPo)}, {WS_B63:#x}")
    vq.issue('g', f"buffer_load_dwordx4 {a(80,4)}, {v(LS,4 if False else 1)}, {s(S_WS,4)}, {s(sPo)} offen")
    group(1)
    A(f"s_lshl_b32 {s(sPo)}, {s(sWAVE)}, 18")
    A(f"s_add_u32 {s(sPo)}, {s(sPo)}, {WS_PF:#x}")
    A(f"s_add_u32 {s(sPo4)}, {s(sPo)}, 4096")
    group(2)
    A(f"v_bfe_u32 {v(u0)}, {v(vL16)}, 4, 4")
    A(f"v_lshlrev_b32 {v(u1)}, 10, {v(u0)}")
    A(f"v_lshrrev_b32 {v(u0)}, 3, {v(u0)}")
    A(f"v_lshlrev_b32 {v(u0)}, 30, {v(u0)}")
    A(f"v_add_u32 {v(u1)}, {v(u1)}, {v(u0)}")
    A(f"v_lshrrev_b32 {v(u0)}, 8, {v(vL16)}")
    A(f"v_lshlrev_b32 {v(u0)}, 3, {v(u0)}")
    A(f"v_add_u32 {v(u1)}, {v(u1)}, {v(u0)}")
    A(f"s_lshl_b32 {s(sOo)}, {s(sWAVE)}, 13")
    A(f"s_lshl_b32 {s(sRet)}, {s(sH)}, 5")
    A(f"s_add_u32 {s(sOo)}, {s(sOo)}, {s(sRet)}")
    A(f"s_add_u32 {s(sOo)}, {s(sOo)}, {63 * 32 * 1024:#x}")
    A(f"s_mov_b32 {s(sRet)}, 0")
    RA = PA
    Lb, Lp, Lok, Lchk, Lw3 = (A.new_label(x) for x in ("cfb", "cfp", "cfok", "cfchk", "cfw3"))

    def final_posts():
        cst()
        A.nop(4)
        for i in range(16):
            post(3, i)
            if i % 4 == 0:
                A.nop(1)
        cst()

    def chk(cnt):
        for i in range(8):
            A(f"s_waitcnt vmcnt({cnt(i)})")
            c = "0" if i == 0 else v(RA, 4)
            A(f"v_mfma_f32_16x16x32_bf16 {v(RA,4)}, {v(RS[i],4)}, {v(SEL,4)}, {c}")
            if i == 0:
                A(f"v_and_b32 {v(m)}, {v(RS[i])}, {v(RS[i]+2)}")
            else:
                A(f"v_bitop3_b32 {v(m)}, {v(m)}, {v(RS[i])}, {v(RS[i]+2)} bitop3:0x80")
        A(f"v_and_b32 {v(m)}, 1, {v(m)}")
        A(f"v_cmp_ne_u32 vcc, 1, {v(m)}")
    A(f"s_cmp_ge_u32 {s(sWAVE)}, 2")
    A(f"s_cbranch_scc1 {Lb}")
    save = (list(vq.ops), list(lq.ops), nst[0])
    group(3, True)
    final_posts()
    young = [len(vq.ops) - 1 - vq.ops.index(('r', i)) for i in range(8)]
    chk(lambda i: young[i])
    A(f"s_cbranch_vccz {Lok}")
    A(f"s_branch {Lp}")
    A.label(Lb)
    vq.ops, lq.ops, nst[0] = save
    group(3)
    final_posts()
    A(f"s_cmp_eq_u32 {s(sWAVE)}, 2")
    A(f"s_cbranch_scc1 {Lp}")
    for _ in range(opts.get('cfd', 3)):
        A(f"s_sleep 1")
    A.label(Lp)
    for i in range(8):
        ld(i)
    chk(lambda i: 7 - i)
    A(f"s_cbranch_vccz {Lok}")
    A(f"s_add_u32 {s(sRet)}, {s(sRet)}, 1")
    A(f"s_cmp_lg_u32 {s(sDEAD)}, 0")
    A(f"s_cbranch_scc1 {Lok}")
    A(f"s_cmp_lt_u32 {s(sRet)}, {RED_LIMIT}")
    A(f"s_cbranch_scc1 {Lp}")
    A(f"s_mov_b32 {s(sDEAD)}, 1")
    A.label(Lok)
    cst()
    BG = PA + 8
    for r in range(5):
        A(f"v_accvgpr_read_b32 {v(BG+r)}, {a(80+r)}")
    for r in range(4):
        A(f"v_sub_f32 {v(RA+r)}, {v(RA+r)}, {v(BG+r)}")
    for r in range(4):
        A(f"v_fma_f32 {v(RA+r)}, {v(RA+r)}, {v(BG+4)}, {v(BG+r)}")
    A(f"v_cvt_pk_bf16_f32 {v(RA+4)}, {v(RA)}, {v(RA+1)}")
    A(f"v_cvt_pk_bf16_f32 {v(RA+5)}, {v(RA+2)}, {v(RA+3)}")
    A(f"buffer_store_dwordx2 {v(RA+4,2)}, {v(u1)}, {s(sOut,4)}, {s(sOo)} offen")
    if opts.get('tprof') == 3:
        A(f"s_waitcnt vmcnt(0)")
        cst()
        A(f"s_waitcnt lgkmcnt(0)")
        for k in range(1, 10):
            A(f"s_sub_u32 s{92 + k - 1}, s{64 + 2*k}, s64")
        A(f"s_mov_b32 s101, {s(sRet)}")
        A(f"s_branch L_flush")


def kv_polls(A):
    for j in range(2):
        Lp = A.new_label("kvp")
        Ld = A.new_label("kvd")
        A(f"s_mov_b32 {s(sRet)}, 0")
        A(f"s_cmp_lg_u32 {s(sDEAD)}, 0")
        A(f"s_cbranch_scc1 {Ld}")
        A.label(Lp)
        A(f"buffer_load_dword {v(vFlag)}, off, {s(S_WS,4)}, {s(sT5)} offset:{4*j} sc1")
        A(f"s_waitcnt vmcnt(0)")
        A(f"v_readfirstlane_b32 {s(sT0)}, {v(vFlag)}")
        A(f"s_cmp_ge_u32 {s(sT0)}, 1")
        A(f"s_cbranch_scc1 {Ld}")
        A(f"s_sleep 1")
        A(f"s_add_u32 {s(sRet)}, {s(sRet)}, 1")
        A(f"s_cmp_lt_u32 {s(sRet)}, {SPIN_LIMIT}")
        A(f"s_cbranch_scc1 {Lp}")
        A(f"s_mov_b32 {s(sDEAD)}, 1")
        A.label(Ld)


def fb_consts(A):
    A(f"s_cmp_eq_u32 {s(sWAVE)}, 0")
    A(f"s_cselect_b32 {s(sFb)}, {OOB:#x}, {s(sT5)}")
    A(f"s_add_u32 {s(sFo)}, {s(sFb)}, 8")


def gen_late_start(A, opts, vL):
    mk_srd(A, S_A, P_MEM0, 8192)
    A(f"s_lshl_b32 {s(sT0)}, {s(sWAVE)}, 8")
    lane_expr(A, vT0, vL, [(2, 2, 2048), (0, 1, 1024), (1, 1, 64), (4, 2, 16)], sregs=[sT0])
    A(f"buffer_load_dwordx4 {v(X+24,4)}, {v(vT0)}, {s(S_A,4)}, 0 offen")
    A(f"buffer_load_dwordx4 {v(X+28,4)}, {v(vT0)}, {s(S_A,4)}, 0 offen offset:128")
    A(f"s_waitcnt vmcnt(0)")
    A(f"ds_write_b128 {v(vMw)}, {v(X+24,4)}")
    A(f"ds_write_b128 {v(vMw)}, {v(X+28,4)} offset:1024")
    for i in range(16):
        A(f"v_mov_b32 {v(ACC+i)}, 0")
    for i in range(8):
        A(f"v_mov_b32 {v(Y+24+i)}, 0")
    fb_consts(A)
    A(f"v_mov_b32 {v(vT1)}, 0")
    A(f"s_mov_b32 {s(sT2)}, {D_CHECKIN*4}")
    A(f"s_mov_b32 {s(sT3)}, 0")
    wait_byte(A, vFlag, vT1, sT2, sT3, 32, "ci", sleep=1)
    A(f"buffer_load_dword {v(vFlag)}, {v(vT1)}, {s(S_DBG,4)}, 0 offen offset:{D_CHECKIN*4} sc1")
    A(f"s_getreg_b32 {s(sT0)}, hwreg(HW_REG_XCC_ID, 0, 4)")
    A(f"s_mul_i32 {s(sT1)}, {s(sT0)}, {s(sT0)}")
    A(f"s_lshl_b32 {s(sT1)}, {s(sT1)}, 22")
    A(f"s_lshl_b32 {s(sT0)}, {s(sT0)}, 13")
    A(f"s_add_u32 {s(sT0)}, {s(sT0)}, {s(sT1)}")
    A(f"s_add_u32 {s(sT0)}, {s(sT0)}, 32")
    A(f"s_waitcnt vmcnt(0)")
    A(f"v_readfirstlane_b32 {s(sT1)}, {v(vFlag)}")
    A(f"s_cmp_eq_u32 {s(sT0)}, {s(sT1)}")
    A(f"s_cselect_b32 {s(sFastF)}, 1, 0")
    kv_polls(A)
    A(f"s_mov_b32 m0, {s(sM0K)}")
    A(f"s_nop 0")
    for i in range(2):
        A(f"buffer_load_dwordx4 {v(vL16)}, {s(S_WS,4)}, {s(sKn)} offen offset:{1024*i} lds")


def gen_chain(A, opts):
    global RT
    RT = bool(opts.get('rt'))
    CSTEP[0] = opts.get('cstep', 39)
    TRACE[0] = bool(opts.get('trace'))
    FTR[0] = opts.get('ftr', 0)
    vL = 13
    A(f"s_xor_b32 {s(sH)}, {s(sIDX)}, {opts.get('hperm', 0)}")
    A(f"v_and_b32 {v(vL)}, 63, v0")
    mk_srd(A, S_A, P_WQ, 512 * 8192)
    mk_srd(A, S_B, P_WK, 512 * 8192)
    mk_srd(A, S_C, P_WV, 512 * 8192)
    mk_srd(A, S_D, P_WO, 4096 * 1024)
    A(f"v_lshlrev_b32 {v(vL16)}, 4, {v(vL)}")
    if opts.get('walk') == 1:
        A(f"s_mov_b64 exec, 0")
        A(f"s_branch L_walk_cf")
        A.label("L_walk_ret")
        A(f"s_mov_b64 exec, -1")
    vMre = 2
    vG, vGo, vSW, vSWo, vTRb, vTRo, vTA = 116, 117, 118, 122, 124, 125, 126
    POOL = [40, 72]
    TEMPS = [104, 32]
    sXo = sRo + 1
    A(f"s_lshl_b32 {s(sT0)}, {s(sH)}, 8")
    A(f"s_lshl_b32 {s(sT1)}, {s(sWAVE)}, 20")
    A(f"s_add_u32 {s(sT0)}, {s(sT0)}, {s(sT1)}")
    lane_expr(A, vG, vL, [(4, 2, 8192), (0, 4, 16)], sregs=[sT0])
    A(f"s_lshl_b32 {s(sT0)}, {s(sH)}, 17")
    A(f"s_lshl_b32 {s(sT1)}, {s(sWAVE)}, 8")
    A(f"s_add_u32 {s(sT0)}, {s(sT0)}, {s(sT1)}")
    lane_expr(A, vGo, vL, [(4, 2, 1024), (0, 4, 16)], sregs=[sT0])
    A(f"s_lshl_b32 {s(sXo)}, {s(sWAVE)}, 15")

    RIDX = {0: 0, 1: 1, 4: 2, 5: 3, 6: 4, 7: 5}
    wo_ops = [(cg, 0) for cg in range(4)] + [(cg, ks) for cg in range(4) for ks in range(1, 4)]
    WORR = [('a', 224), ('a', 232), ('a', 240), ('a', 248), ('v', 224), ('v', 232), ('v', 240), ('v', 248)]

    def arm():
        for i in range(4):
            A(f"v_mov_b32 {v(vSEL+i)}, -1")
        A(f"s_lshl_b32 {s(sT0)}, {s(sH)}, 13")
        A(f"s_lshl_b32 {s(sT1)}, {s(sWAVE)}, 11")
        A(f"s_add_u32 {s(sT0)}, {s(sT0)}, {s(sT1)}")
        A(f"v_bfe_u32 {v(vT0)}, {v(vL)}, 4, 1")
        for i in range(4):
            A(f"v_xor_b32 {v(ACC+i)}, -1, {v(vT0)}")
        vq.issue('st', f"buffer_store_dwordx4 {v(ACC,4)}, {v(vL16)}, {s(S_WS,4)}, {s(sT0)} offen sc1")
        vq.issue('st', f"buffer_store_dwordx4 {v(ACC,4)}, {v(vL16)}, {s(S_WS,4)}, {s(sT0)} offen offset:1024 sc1")
        A(f"s_lshl_b32 {s(sT2)}, {s(sH)}, 8")
        A(f"v_add_u32 {v(vT0)}, {s(sT2)}, {v(vL16)}")
        A(f"v_cmp_gt_u32 vcc, 16, {v(vL)}")
        A(f"v_mov_b32 {v(vT1)}, {OOB:#x}")
        A.nop(1)
        A(f"v_cndmask_b32 {v(vMre)}, {v(vT1)}, {v(vT0)}, vcc")
        for sl in range(4):
            A(f"s_mov_b32 {s(sT1)}, {WS_M + sl*8192:#x}")
            vq.issue('st', f"buffer_store_dwordx4 {v(vSEL,4)}, {v(vMre)}, {s(S_WS,4)}, {s(sT1)} offen sc1")
        Z = 20
        for i in range(4):
            A(f"v_mov_b32 {v(Z+i)}, 0")
        A(f"v_cndmask_b32 {v(Z+4)}, {v(vT1)}, {v(vL16)}, vcc")
        A(f"s_lshl_b32 {s(sT1)}, {s(sH)}, 8")
        A(f"s_add_u32 {s(sT1)}, {s(sT1)}, {WS_OF:#x}")
        vq.issue('st', f"buffer_store_dwordx4 {v(Z,4)}, {v(Z+4)}, {s(S_WS,4)}, {s(sT1)} offen sc1")
        A(f"v_cmp_gt_u32 vcc, 8, {v(vL)}")
        A.nop(2)
        A(f"v_cndmask_b32 {v(Z+5)}, {v(vT1)}, {v(vL16)}, vcc")
        A(f"s_lshl_b32 {s(sT1)}, {s(sH)}, 7")
        A(f"s_add_u32 {s(sT1)}, {s(sT1)}, {WS_KVF:#x}")
        vq.issue('st', f"buffer_store_dwordx4 {v(Z,4)}, {v(Z+5)}, {s(S_WS,4)}, {s(sT1)} offen sc1")

    def qkv_unit(m, hp, x):
        u = dict(kind='qkv', m=m, hp=hp, x=x, srd={'q': S_A, 'k': S_B, 'v': S_C}[m], needs_temp=(m != 'q'))
        u['soff'] = [(64 * hp + 16 * x + 4 * (k & 3) + 32 * (k >> 2)) * 8192 for k in range(8)]
        return u

    def bind(u, temp):
        if u['kind'] == 'qkv':
            m, hp, x = u['m'], u['hp'], u['x']
            res = []
            for i in range(4):
                sl = hp + 2 * i
                for t_ in range(2):
                    if m == 'q':
                        res.append((('a', 16 * sl + 8 * t_ + 4 * x), None))
                    elif sl in (2, 3):
                        fi = (0 if m == 'k' else 4) + 2 * (sl - 2) + t_
                        res.append((('v', temp + 4 * t_), fi * 2048 + 1024 * x))
                    else:
                        res.append(((('a' if m == 'k' else 'v'), 128 + 16 * RIDX[sl] + 8 * t_ + 4 * x), None))
            u['raw'] = [r[0] for r in res]
            u['res'] = res
        else:
            u['raw'] = [('v', temp + 4 * k) for k in range(8)]

    def wo_unit(ks):
        return dict(kind='wo', ks=ks, srd=S_D, soff=[(32 * ks + 4 * k) * 1024 for k in range(8)])
    U = {f"O{k}": wo_unit(k) for k in range(4)}
    for m in 'qkv':
        for hp in range(2):
            for x in range(2):
                U[f"{m.upper()}{hp}{x}"] = qkv_unit(m, hp, x)
    order = {0: "O0 O1 Q00 Q01 Q10 Q11 O2 O3 K00 K01 K10 K11 V00 V01 V10 V11",
             1: "Q00 Q01 Q10 Q11 O0 O1 K00 K01 O2 O3 K10 K11 V00 V01 V10 V11",
             2: "K00 K01 Q00 Q01 Q10 Q11 O0 O1 K10 K11 O2 O3 V00 V01 V10 V11",
             3: "O0 O1 Q00 Q01 Q10 Q11 O2 O3 V00 V01 V10 V11 K00 K01 K10 K11",
             4: "K00 K01 K10 K11 V00 V01 V10 V11 Q00 Q01 Q10 Q11 O0 O1 O2 O3",
             5: "K00 K01 K10 K11 V00 V01 V10 V11 Q00 O0 Q01 O1 Q10 O2 Q11 O3",
             6: "O0 O1 K00 K01 K10 K11 V00 V01 V10 V11 Q00 O2 Q01 O3 Q10 Q11",
             8: "K00 K01 K10 K11 V00 V01 V10 V11 O0 O1 O2 O3 Q00 Q01 Q10 Q11",
             9: "O0 O1 O2 O3 K00 K01 K10 K11 V00 V01 V10 V11 Q00 Q01 Q10 Q11",
             10: "O0 O1 O2 O3 Q00 Q01 Q10 Q11 K00 K01 K10 K11 V00 V01 V10 V11",
             11: "O0 O1 O2 K00 K01 K10 K11 V00 V01 V10 V11 Q00 Q01 Q10 Q11 O3",
             12: "O0 O1 K00 K01 K10 K11 V00 V01 V10 V11 Q00 Q01 Q10 Q11 O2 O3",
             7: "K00 K01 K10 K11 O0 V00 V01 O1 V10 V11 Q00 O2 Q01 O3 Q10 Q11",
             13: "O0 O1 Q00 Q01 Q10 Q11 K00 K01 K10 K11 V00 V01 V10 V11 D2",
             14: "Q00 Q01 Q10 Q11 O0 O1 K00 K01 K10 K11 V00 V01 V10 V11 D2",
             15: "Q00 Q01 Q10 Q11 K00 K01 K10 K11 O0 O1 V00 V01 V10 V11 D2",
             16: "O0 O1 K00 K01 K10 K11 Q00 Q01 Q10 Q11 V00 V01 V10 V11 D2"}[opts.get('word', 0)].split()
    ES = opts.get('es', 0)
    assert bool(ES) == (order[-1] == 'D2')
    sDm = sRo + 2
    for k_ in (2, 3):
        U[f"D{k_}"] = dict(wo_unit(k_), kind='dma')
    PARK = {10: ('v', 232), 13: ('v', 240)} if ES else {}

    def dma_unit(u, vq):
        for k in range(8):
            A(f"s_add_u32 m0, {s(sDm)}, {(u['ks'] - 2) * 8192 + k * 1024:#x}")
            A(f"s_xor_b32 {s(sT0)}, {u['soff'][k]:#x}, {s(sXo)}")
            vq.issue(id(u), f"buffer_load_dwordx4 {v((vGo, vSWo + 1)[k >> 2])}, {s(u['srd'],4)}, {s(sT0)} offen lds" + WPOL[opts.get('wnto', 0)])
    units = [U[n] for n in order]
    for n_ in U:
        U[n_]['name'] = n_
    CPN = opts.get('cpx', 0)
    cpu_ = [n_ for n_ in order if n_[0] in 'QKV']
    cpu_ = (cpu_[:CPN] if opts.get('cpfirst') else cpu_[-CPN:]) if CPN else []
    WS_CP = opts.get('cpbase', G.WS_CP)
    vCp, sCpB = 127, sU
    sSlowH = sU + 1
    if opts.get('cwsm'):
        A(f"s_and_b32 {s(sT0)}, {s(sH)}, 3")
        A(f"s_cmp_eq_u32 {s(sT0)}, {opts.get('cph', 1)}")
        A(f"s_cselect_b32 {s(sSlowH)}, 1, 0")
    if CPN:
        A(f"s_and_b32 {s(sT0)}, {s(sH)}, 3")
        A(f"s_lshr_b32 {s(sT1)}, {s(sH)}, 2")
        A(f"s_mul_i32 {s(sT1)}, {s(sT1)}, {CPN * 32 * 2048}")
        A(f"s_lshl_b32 {s(sT2)}, {s(sWAVE)}, 14")
        A(f"s_add_u32 {s(sT1)}, {s(sT1)}, {s(sT2)}")
        A(f"s_add_u32 {s(sT1)}, {s(sT1)}, {WS_CP:#x}")
        A(f"s_cmp_eq_u32 {s(sT0)}, {opts.get('cph', 1)}")
        A(f"s_cselect_b32 {s(sCpB)}, {s(sT1)}, 0")
        lane_expr(A, vCp, vL, [(4, 2, 256), (0, 4, 16)])
        A(f"v_cmp_lt_u32 vcc, 15, {v(vL)}")
        A(f"v_add_u32 {v(vT0)}, 256, {v(vCp)}")
        A.nop(1)
        A(f"v_cndmask_b32 {v(vCp)}, {v(vCp)}, {v(vT0)}, vcc")
    vq = Q(A, "vmcnt", 63)
    nst = 8
    ARMLATE = opts.get('armlate', 1)
    if not ARMLATE:
        arm()
    busy = set()
    TPREF = [40, 48, 56, 64, 104, 32, 72, 80, 88, 96]
    PPREF = [72, 40]

    def alloc_temp():
        for g in TPREF:
            if g not in busy:
                busy.add(g)
                return g
        return None

    def alloc_pool():
        for p in PPREF:
            gs = [p + 8 * j for j in range(4)]
            if not any(g in busy for g in gs):
                busy.update(gs)
                return p
        return None
    held = {}
    WIN = opts.get('cwin', 56)
    st_ = dict(issued=0)

    def inflight():
        return len(vq.ops)

    EARLY = opts.get('early', 1)
    vEK, vEM, vEF, vEC, vEA = 104, 32, 112, 114, 115
    vEV = 96
    DMI = opts.get('vpos', 0) != 0

    def early_issue():
        assert 104 not in busy and 32 not in busy
        busy.update((104, 32))
        if DMI:
            assert vEV not in busy
            busy.add(vEV)
        mk_srd(A, S_X, P_MEM0, 8192)
        A(f"s_lshl_b32 {s(sT0)}, {s(sWAVE)}, 8")
        lane_expr(A, vEA, vL, [(2, 2, 2048), (0, 1, 1024), (1, 1, 64), (4, 2, 16)], sregs=[sT0])
        vq.issue('fl', f"buffer_load_dwordx2 {v(vEF,2)}, off, {s(S_WS,4)}, {s(sT5)} sc1")
        vq.issue('ci', f"buffer_load_dword {v(vEC)}, off, {s(S_DBG,4)}, 0 offset:{D_CHECKIN*4} sc1")
        vq.issue('m0', f"buffer_load_dwordx4 {v(vEM,4)}, {v(vEA)}, {s(S_X,4)}, 0 offen")
        vq.issue('m0', f"buffer_load_dwordx4 {v(vEM+4,4)}, {v(vEA)}, {s(S_X,4)}, 0 offen offset:128")

    def early_k():
        vq.wait('fl')
        A(f"v_min_u32 {v(vEF)}, {v(vEF)}, {v(vEF+1)}")
        A.nop(1)
        A(f"v_readfirstlane_b32 {s(sT0)}, {v(vEF)}")
        A(f"s_cmp_ge_u32 {s(sT0)}, 1")
        A(f"s_cselect_b32 {s(sKok)}, 1, 0")
        A(f"s_cselect_b32 {s(sT1)}, {s(sKn)}, {OOB:#x}")
        vq.issue('kx', f"buffer_load_dwordx4 {v(vEK,4)}, {v(vL16)}, {s(S_WS,4)}, {s(sT1)} offen")
        vq.issue('kx', f"buffer_load_dwordx4 {v(vEK+4,4)}, {v(vL16)}, {s(S_WS,4)}, {s(sT1)} offen offset:1024")
        if DMI:
            A(f"s_add_u32 {s(sT1)}, {s(sT1)}, 8192")
            vq.issue('kx', f"buffer_load_dwordx4 {v(vEV,4)}, {v(vL16)}, {s(S_WS,4)}, {s(sT1)} offen")
            vq.issue('kx', f"buffer_load_dwordx4 {v(vEV+4,4)}, {v(vL16)}, {s(S_WS,4)}, {s(sT1)} offen offset:1024")

    def try_issue():
        while st_['issued'] < len(units):
            u = units[st_['issued']]
            limit = min(WIN + (nst if 'st' in vq.ops else 0), 62)
            if EARLY and st_['issued'] == len(units) - 1 - (opts.get('esfl', 1) if ES else 0) and not st_.get('early'):
                if inflight() + 8 > limit or 104 in busy or 32 in busy or (DMI and vEV in busy):
                    return
                early_issue()
                st_['early'] = True
                limit += 4
            elif EARLY and st_.get('early'):
                limit += 4
            if inflight() + 8 > limit:
                return
            if u['kind'] == 'wo':
                tmp = alloc_pool()
                if tmp is None:
                    return
                held[id(u)] = ('pool', tmp)
            elif u['kind'] == 'dma':
                assert st_.get('o1')
                tmp = None
            elif u['needs_temp']:
                tmp = alloc_temp()
                if tmp is None:
                    return
                held[id(u)] = ('temp', tmp)
            else:
                tmp = None
            if u['kind'] != 'dma':
                bind(u, tmp)
            if opts.get('cwsm') and inflight() + 8 > opts['cwsm']:
                Lsm = A.new_label("sm")
                A(f"s_cmp_eq_u32 {s(sSlowH)}, 1")
                A(f"s_cbranch_scc1 {Lsm}")
                A(f"s_waitcnt vmcnt({opts['cwsm'] - 8})")
                A.label(Lsm)
            if u['kind'] == 'dma':
                dma_unit(u, vq)
                st_['issued'] += 1
                continue
            Lcp = None
            if u['name'] in cpu_:
                Lcp, Lcq = A.new_label("cp"), A.new_label("cq")
                A(f"s_cmp_lg_u32 {s(sCpB)}, 0")
                A(f"s_cbranch_scc1 {Lcp}")
            for k in range(8):
                if u['kind'] == 'wo':
                    A(f"s_xor_b32 {s(sT0)}, {u['soff'][k]:#x}, {s(sXo)}")
                    vq.issue(id(u), f"buffer_load_dwordx4 {reg(u['raw'][k], 4)}, {v(vGo)}, {s(u['srd'],4)}, {s(sT0)} offen" + WPOL[opts.get('wnto', 0)])
                else:
                    A(f"s_mov_b32 {s(sT0)}, {u['soff'][k]:#x}")
                    vq.issue(id(u), f"buffer_load_dwordx4 {reg(u['raw'][k], 4)}, {v(vG)}, {s(u['srd'],4)}, {s(sT0)} offen" + WPOL[opts.get('wnt', 0)])
            if Lcp:
                A(f"s_branch {Lcq}")
                A.label(Lcp)
                for k in range(8):
                    A(f"s_add_u32 {s(sT0)}, {s(sCpB)}, {(cpu_.index(u['name']) * 32 + k) * 2048:#x}")
                    A(f"buffer_load_dwordx4 {reg(u['raw'][k], 4)}, {v(vCp)}, {s(S_WS,4)}, {s(sT0)} offen")
                A.label(Lcq)
            st_['issued'] += 1
    stamp(A, 1) if not opts.get('cprof') else None
    try_issue()
    if ARMLATE:
        arm()
    A(f"s_lshl_b32 {s(sT2)}, {s(sWAVE)}, 13")
    lane_expr(A, vSW, vL, [(4, 2, 256), (1, 3, 32), (0, 1, 16)], sregs=[sT2])
    A(f"v_mov_b32 {v(vSWo)}, {v(vSW)}")
    A(f"v_bfe_u32 {v(vTA)}, {v(vL)}, 4, 1")
    A(f"v_lshlrev_b32 {v(vT0)}, 5, {v(vTA)}")
    A(f"v_xor_b32 {v(vSW)}, {v(vSW)}, {v(vT0)}")
    A(f"v_lshlrev_b32 {v(vT0)}, 6, {v(vTA)}")
    A(f"v_xor_b32 {v(vSWo)}, {v(vSWo)}, {v(vT0)}")
    A(f"v_xor_b32 {v(vSW+1)}, 64, {v(vSW)}")
    A(f"v_xor_b32 {v(vSW+2)}, 0x80, {v(vSW)}")
    A(f"v_xor_b32 {v(vSW+3)}, 0xc0, {v(vSW)}")
    A(f"v_xor_b32 {v(vSWo+1)}, 0x80, {v(vSWo)}")
    A(f"s_lshl_b32 {s(sT3)}, {s(sWAVE)}, 6")
    lane_expr(A, vTRb, vL, [(2, 1, 256 + 32), (4, 1, 1024 + 64), (5, 1, 2048), (3, 1, 4096 + 128), (0, 2, 8)])
    A(f"v_xor_b32 {v(vTRb)}, {s(sT3)}, {v(vTRb)}")
    A(f"v_add_u32 {v(vTRb)}, {s(sT2)}, {v(vTRb)}")
    lane_expr(A, vTRo, vL, [(2, 1, 256 + 64), (4, 1, 4096 + 128), (5, 1, 1024), (3, 1, 32), (0, 2, 8)], sregs=[sT2])
    A(f"s_lshl_b32 {s(sT0)}, {s(sWAVE)}, 15")
    A(f"s_add_u32 {s(sT0)}, {s(sT0)}, {WO_OFF}")
    A(f"v_add_u32 {v(vWo)}, {s(sT0)}, {v(vL16)}")
    def checkin():
        vq.wait('st')
        A(f"s_barrier")
        Lci = A.new_label("ci")
        A(f"s_cmp_lg_u32 {s(sWAVE)}, 0")
        A(f"s_cbranch_scc1 {Lci}")
        A(f"s_getreg_b32 {s(sT0)}, hwreg(HW_REG_XCC_ID, 0, 4)")
        A(f"s_mul_i32 {s(sT1)}, {s(sT0)}, {s(sT0)}")
        A(f"s_lshl_b32 {s(sT1)}, {s(sT1)}, 17")
        A(f"s_lshl_b32 {s(sT0)}, {s(sT0)}, 8")
        A(f"s_add_u32 {s(sT0)}, {s(sT0)}, {s(sT1)}")
        A(f"s_add_u32 {s(sT0)}, {s(sT0)}, 1")
        A(f"v_mov_b32 {v(vT0)}, {s(sT0)}")
        A(f"v_mov_b32 {v(vT1)}, 0")
        A(f"s_mov_b64 exec, 1")
        A(f"buffer_atomic_add {v(vT0)}, {v(vT1)}, {s(S_DBG,4)}, 0 offen offset:{D_CHECKIN*4} sc1")
        A(f"s_mov_b64 exec, -1")
        A.label(Lci)

    if not ARMLATE:
        checkin()
        try_issue()
    A(f"s_lshr_b32 {s(sT3)}, {s(sH)}, 2")
    A(f"s_lshl_b32 {s(sT3)}, {s(sT3)}, 10")
    A(f"s_and_b32 {s(sT4)}, {s(sH)}, 1")
    A(f"s_lshl_b32 {s(sT4)}, {s(sT4)}, 9")
    A(f"s_add_u32 {s(sT3)}, {s(sT3)}, {s(sT4)}")
    A(f"s_and_b32 {s(sT4)}, {s(sH)}, 2")
    A(f"s_lshl_b32 {s(sT4)}, {s(sT4)}, 4")
    A(f"s_add_u32 {s(sT3)}, {s(sT3)}, {s(sT4)}")
    lane_expr(A, vMst, vL, [(5, 1, 256), (1, 2, 64), (0, 1, 16), (4, 1, 8)], sregs=[sT3])
    A(f"v_and_b32 {v(vT1)}, 8, {v(vL)}")
    A(f"v_lshlrev_b32 {v(vT1)}, 27, {v(vT1)}")
    A(f"v_add_u32 {v(vMst)}, {v(vMst)}, {v(vT1)}")
    A(f"s_cmp_eq_u32 {s(sWAVE)}, 0")
    Lw0 = A.new_label("w0")
    A(f"s_cbranch_scc1 {Lw0}")
    A(f"v_mov_b32 {v(vMst)}, {v(vMre)}")
    A(f"s_cmp_eq_u32 {s(sWAVE)}, 3")
    A(f"s_cbranch_scc1 {Lw0}")
    A(f"v_mov_b32 {v(vMst)}, {OOB:#x}")
    A.label(Lw0)
    for (dst, bit) in ((vIdx, 2), (vIdxW, 8)):
        A(f"v_mov_b32 {v(dst)}, 0x4444")
        A(f"v_mov_b32 {v(vT0)}, 0xeeee")
        A(f"v_and_b32 {v(vT1)}, {bit}, {v(vL)}")
        A(f"v_cmp_ne_u32 vcc, 0, {v(vT1)}")
        A.nop(2)
        A(f"v_cndmask_b32 {v(dst)}, {v(dst)}, {v(vT0)}, vcc")
    A(f"s_lshl_b32 {s(sT0)}, {s(sWAVE)}, 9")
    lane_expr(A, vQKw, vL, [(0, 4, 16), (4, 2, 4)], sregs=[sT0])
    A(f"s_lshl_b32 {s(sT0)}, {s(sWAVE)}, 10")
    A(f"s_lshr_b32 {s(sT1)}, {s(sWAVE)}, 1")
    A(f"s_lshl_b32 {s(sT1)}, {s(sT1)}, 11")
    A(f"s_add_u32 {s(sT0)}, {s(sT0)}, {s(sT1)}")
    lane_expr(A, vKw, vL, [(0, 4, 32), (4, 2, 8)], const=2048, sregs=[sT0])
    lane_expr(A, vKr, vL, [(5, 1, 512), (4, 1, 128), (2, 2, 32), (0, 2, 8)])
    lane_expr(A, vQKr, vL, [(5, 1, 256), (4, 1, 64), (2, 2, 16), (0, 1, 8)])
    A(f"s_lshl_b32 {s(sT0)}, {s(sWAVE)}, 9")
    lane_expr(A, vOw, vL, [(4, 2, 128), (0, 3, 16)], const=O_OFF, sregs=[sT0])
    A(f"s_lshl_b32 {s(sT0)}, {s(sWAVE)}, 11")
    A(f"s_add_u32 {s(sT0)}, {s(sT0)}, {MEM_OFF}")
    A(f"v_add_u32 {v(vMw)}, {s(sT0)}, {v(vL16)}")
    A(f"s_lshl_b32 {s(sT0)}, {s(sWAVE)}, 16")
    A(f"s_lshl_b32 {s(sT1)}, {s(sH)}, 8")
    lane_expr(A, vPst, vL, [(5, 1, 8192), (0, 4, 16), (4, 1, 8)], sregs=[sT0, sT1])
    A(f"s_lshl_b32 {s(sT0)}, {s(sH)}, 13")
    A(f"v_add_u32 {v(vRed)}, {s(sT0)}, {v(vL16)}")
    A(f"s_and_b32 {s(sT1)}, {s(sWAVE)}, 1")
    A(f"s_lshl_b32 {s(sT1)}, {s(sT1)}, 13")
    A(f"s_lshl_b32 {s(sT0)}, {s(sH)}, 14")
    A(f"s_add_u32 {s(sT0)}, {s(sT0)}, {s(sT1)}")
    A(f"v_lshlrev_b32 {v(vPf)}, 6, {v(vL)}")
    A(f"v_add_u32 {v(vPf)}, {s(sT0)}, {v(vPf)}")
    A(f"s_mov_b32 {s(sMLo)}, -1")
    A(f"s_mov_b32 {s(sMLo+1)}, 0")
    A(f"s_mov_b32 {s(sMHi)}, 0")
    A(f"s_mov_b32 {s(sMHi+1)}, -1")
    A(f"s_mov_b32 {s(sC)}, {f32_hex(SCALE_C):#x}")
    A(f"s_mov_b32 {s(sNC)}, {f32_hex(-SCALE_C):#x}")
    Lsel = A.new_label("sel")
    A(f"s_cmp_lg_u32 {s(sWAVE)}, 0")
    A(f"s_cbranch_scc1 {Lsel}")
    A(f"v_and_b32 {v(vT0)}, 15, {v(vL)}")
    A(f"v_mov_b32 {v(vS0)}, 0x3f80")
    A(f"v_mov_b32 {v(vT1)}, 0x3f800000")
    A(f"v_and_b32 v112, 1, {v(vT0)}")
    A(f"v_cmp_eq_u32 vcc, 1, v112")
    A.nop(2)
    A(f"v_cndmask_b32 {v(vS0)}, {v(vS0)}, {v(vT1)}, vcc")
    A(f"v_lshrrev_b32 {v(vT0)}, 1, {v(vT0)}")
    for i in range(4):
        A(f"v_cmp_eq_u32 vcc, {i}, {v(vT0)}")
        A.nop(2)
        A(f"v_cndmask_b32 {v(vSEL+i)}, 0, {v(vS0)}, vcc")
    A(f"v_bfe_u32 {v(vTagE)}, {v(vL)}, 4, 1")
    A(f"v_xor_b32 {v(vTagE)}, 1, {v(vTagE)}")
    A.label(Lsel)
    for i in range(4):
        A(f"v_mov_b32 {v(vONE+i)}, 0x3f803f80")
    for i in range(1, 4):
        A(f"v_mov_b32 {v(vBM+i)}, 0")

    A(f"s_lshl_b32 {s(sW2k)}, {s(sWAVE)}, 11")
    A(f"s_mov_b32 {s(sSlotP1)}, {WS_P + 16384}")
    A(f"s_mov_b32 {s(sPc2)}, {WS_P + 32768}")
    A(f"s_mov_b32 {s(sPc3)}, {WS_P + 49152}")
    A(f"s_mov_b32 {s(sSlotP4)}, {WS_P + 4096}")
    A(f"s_and_b32 {s(sTag)}, {s(sH)}, 1")
    A(f"s_xor_b32 {s(sTag)}, {s(sTag)}, 1")
    A(f"s_lshl_b32 {s(sT5)}, {s(sH)}, 7")
    A(f"s_add_u32 {s(sT5)}, {s(sT5)}, {WS_KVF:#x}")
    A(f"s_cmp_ge_u32 {s(sWAVE)}, 2")
    A(f"s_mov_b32 {s(sT0)}, {OOB:#x}")
    A(f"s_mov_b32 {s(sPf)}, {WS_KX + 0x80000:#x}")
    A(f"s_cselect_b32 {s(sPf)}, {s(sPf)}, {s(sT0)}")
    A(f"s_add_u32 {s(sM0K)}, {s(sW2k)}, {KX_OFF}")
    A(f"s_lshl_b32 {s(sKn)}, {s(sH)}, 14")
    A(f"s_add_u32 {s(sKn)}, {s(sKn)}, {s(sW2k)}")
    A(f"s_add_u32 {s(sKn)}, {s(sKn)}, {WS_KX:#x}")
    A(f"s_add_u32 {s(sM0V)}, {s(sW2k)}, {VX_OFF}")
    A(f"s_lshl_b32 {s(sKV)}, {s(sH)}, 14")
    A(f"s_add_u32 {s(sKV)}, {s(sKV)}, {s(sW2k)}")
    A(f"s_add_u32 {s(sKV)}, {s(sKV)}, {WS_KX:#x}")
    A(f"s_lshl_b32 {s(sKM)}, {s(sH)}, 12")
    A(f"s_add_u32 {s(sKM)}, {s(sKM)}, {WS_KM:#x}")
    A(f"s_mov_b32 {s(sJ4)}, 8")
    A(f"s_mov_b32 {s(sCn)}, 1")
    A(f"s_mov_b32 {s(sNeed)}, 1")
    for b, u in enumerate(units):
        assert st_['issued'] > b, "loader deadlock"
        if u['kind'] == 'dma':
            break
        if EARLY and b == len(units) - 1:
            assert st_.get('early')
            early_k()
        vq.wait(id(u))
        if opts.get('pst0') and b < 4:
            stamp(A, 4 + b)
        A(f"s_barrier")
        if u['kind'] == 'qkv':
            for k in range(8):
                A(f"ds_write_b128 {v(vSW + (k & 1) + 2 * (k >> 2))}, {reg(u['raw'][k], 4)} offset:{k * 1024}")
            A(f"s_waitcnt lgkmcnt(0)")
            A(f"s_barrier")
            x = u['x']
            for i in range(4):
                for t_ in range(2):
                    r_, fin = u['res'][2 * i + t_]
                    A(f"v_xor_b32 {v(vTA + (t_ & 1))}, {(i << 13) | (t_ << 5):#x}, {v(vTRb)}")
                    for q0 in range(2):
                        A(f"ds_read_b64_tr_b16 {reg(off(r_, 2 * q0), 2)}, {v(vTA + (t_ & 1))} offset:{512 * q0}")
            A(f"s_waitcnt lgkmcnt(0)")
            for (r_, fin) in u['res']:
                if fin is not None:
                    A(f"ds_write_b128 {v(vWo)}, {reg(r_, 4)} offset:{fin}")
        else:
            ks = u['ks']
            for k in range(8):
                A(f"ds_write_b128 {v(vSWo + (k >> 2))}, {reg(u['raw'][k], 4)} offset:{k * 1024}")
            base = u['raw'][0][1]
            fins = []
            for cg in range(4):
                io = wo_ops.index((cg, ks))
                dst = WORR[io] if io < 8 else PARK.get(io, ('v', base + 8 * cg))
                A(f"v_xor_b32 {v(vTA + (cg & 1))}, {cg << 6:#x}, {v(vTRo)}")
                for i in range(4):
                    A(f"ds_read_b64_tr_b16 {reg(off(dst, 2 * i), 2)}, {v(vTA + (cg & 1))} offset:{(8 * (i >> 1) + 2 * (i & 1)) * 256}")
                if io >= 8 and io not in PARK:
                    fins.append((dst, io * 2048))
            A(f"s_waitcnt lgkmcnt(0)")
            for (dst, o) in fins:
                A(f"ds_write_b128 {v(vWo)}, {reg(dst, 4)} offset:{o}")
                A(f"ds_write_b128 {v(vWo)}, {reg(off(dst, 4), 4)} offset:{o + 1024}")
        if id(u) in held:
            kind, tmp = held[id(u)]
            A(f"s_waitcnt lgkmcnt(0)")
            if kind == 'pool':
                busy.difference_update(tmp + 8 * j for j in range(4))
            else:
                busy.discard(tmp)
        if ES and u['name'] == 'O1':
            A(f"v_bfe_u32 {v(vTA)}, {v(vL)}, 4, 1")
            A(f"v_lshlrev_b32 {v(vTA)}, 6, {v(vTA)}")
            A(f"s_lshl_b32 {s(sDm)}, {s(sWAVE)}, 15")
            A(f"v_xor_b32 {v(vGo)}, {v(vTA)}, {v(vGo)}")
            A(f"s_add_u32 {s(sDm)}, {s(sDm)}, {WO_OFF + 16384:#x}")
            A(f"v_xor_b32 {v(vSWo + 1)}, 0x80, {v(vGo)}")
            st_['o1'] = True
        if ARMLATE and b == opts.get('cipos', 1):
            checkin()
        if opts.get('prof') and not opts.get('cprof') and not opts.get('pst0') and not opts.get('esprof') and b in (0, 3, 7, 11):
            stamp(A, {0: 4, 3: 5, 7: 6, 11: 7}[b])
        try_issue()
    A("s_waitcnt lgkmcnt(0)")
    stamp(A, 2) if not opts.get('cprof') else None
    A(f"s_barrier")
    if ES:
        assert EARLY and st_['issued'] == len(units) and not DMI
        vq.wait('m0')
        A(f"v_min_u32 {v(vEF)}, {v(vEF)}, {v(vEF+1)}")
        A(f"ds_write_b128 {v(vMw)}, {v(vEM,4)}")
        A(f"v_readfirstlane_b32 {s(sT0)}, {v(vEF)}")
        A(f"ds_write_b128 {v(vMw)}, {v(vEM+4,4)} offset:1024")
        Lkok = A.new_label("kok")
        A(f"s_cmp_ge_u32 {s(sT0)}, 1")
        A(f"s_cbranch_scc1 {Lkok}")
        kv_polls(A)
        A.label(Lkok)
        if opts.get('esprof'):
            stamp(A, 8)
        A(f"s_mov_b32 m0, {s(sM0K)}")
        A(f"s_add_u32 {s(sT1)}, {s(sKn)}, 8192")
        A(f"buffer_load_dwordx4 {v(vL16)}, {s(S_WS,4)}, {s(sKn)} offen lds")
        A(f"buffer_load_dwordx4 {v(vL16)}, {s(S_WS,4)}, {s(sKn)} offen offset:1024 lds")
        A(f"s_mov_b32 m0, {s(sM0V)}")
        A(f"s_nop 0")
        A(f"buffer_load_dwordx4 {v(vL16)}, {s(S_WS,4)}, {s(sT1)} offen lds")
        A(f"buffer_load_dwordx4 {v(vL16)}, {s(S_WS,4)}, {s(sT1)} offen offset:1024 lds")
        D3Q.clear()
        if opts.get('esd3'):
            A(f"v_mov_b32 {v(X + 16)}, {v(vGo)}")
            A(f"v_mov_b32 {v(X + 17)}, {v(vSWo + 1)}")
            for k in range(8):
                D3Q.append([f"s_add_u32 m0, {s(sDm)}, {8192 + k * 1024:#x}",
                            f"s_xor_b32 {s(sT0)}, {U['D3']['soff'][k]:#x}, {s(sXo)}",
                            f"buffer_load_dwordx4 {v(X + 16 + (k >> 2))}, {s(S_D,4)}, {s(sT0)} offen lds" + WPOL[opts.get('wnto', 0)]])
        else:
            dma_unit(U['D3'], vq)
        for i in range(4):
            A(f"v_mov_b64 {v(X+24+2*i,2)}, {v(vEM+2*i,2)}")
        A(f"v_readfirstlane_b32 {s(sT4)}, {v(vEC)}")
    if not EARLY:
        gen_late_start(A, opts, vL)
    elif not ES:
        Lkok = A.new_label("kok")
        A(f"s_cmp_eq_u32 {s(sKok)}, 1")
        A(f"s_cbranch_scc1 {Lkok}")
        kv_polls(A)
        A(f"buffer_load_dwordx4 {v(vEK,4)}, {v(vL16)}, {s(S_WS,4)}, {s(sKn)} offen")
        A(f"buffer_load_dwordx4 {v(vEK+4,4)}, {v(vL16)}, {s(S_WS,4)}, {s(sKn)} offen offset:1024")
        if DMI:
            A(f"s_add_u32 {s(sT1)}, {s(sKn)}, 8192")
            A(f"buffer_load_dwordx4 {v(vEV,4)}, {v(vL16)}, {s(S_WS,4)}, {s(sT1)} offen")
            A(f"buffer_load_dwordx4 {v(vEV+4,4)}, {v(vL16)}, {s(S_WS,4)}, {s(sT1)} offen offset:1024")
        A.label(Lkok)
        A(f"s_waitcnt vmcnt(0)")
        A(f"ds_write_b128 {v(vMw)}, {v(vEM,4)}")
        A(f"ds_write_b128 {v(vMw)}, {v(vEM+4,4)} offset:1024")
        for i in range(4):
            A(f"v_mov_b64 {v(X+24+2*i,2)}, {v(vEM+2*i,2)}")
        A(f"v_readfirstlane_b32 {s(sT4)}, {v(vEC)}")
        A(f"ds_write_b128 {v(vMw)}, {v(vEK,4)} offset:{KX_OFF - MEM_OFF}")
        A(f"ds_write_b128 {v(vMw)}, {v(vEK+4,4)} offset:{KX_OFF - MEM_OFF + 1024}")
        if DMI:
            A(f"ds_write_b128 {v(vMw)}, {v(vEV,4)} offset:{VX_OFF - MEM_OFF}")
            A(f"ds_write_b128 {v(vMw)}, {v(vEV+4,4)} offset:{VX_OFF - MEM_OFF + 1024}")
    if EARLY:
        for i in range(16):
            A(f"v_mov_b32 {v(ACC+i)}, 0")
        for i in range(8):
            A(f"v_mov_b32 {v(Y+24+i)}, 0")
        fb_consts(A)
        Lcok = A.new_label("cok")
        A(f"s_and_b32 {s(sT0)}, {s(sT4)}, 0xff")
        A(f"s_cmp_ge_u32 {s(sT0)}, 32")
        A(f"s_cbranch_scc1 {Lcok}")
        A(f"v_mov_b32 {v(vT1)}, 0")
        A(f"s_mov_b32 {s(sT2)}, {D_CHECKIN*4}")
        A(f"s_mov_b32 {s(sT3)}, 0")
        wait_byte(A, vFlag, vT1, sT2, sT3, 32, "ci", sleep=1)
        A(f"buffer_load_dword {v(vFlag)}, {v(vT1)}, {s(S_DBG,4)}, 0 offen offset:{D_CHECKIN*4} sc1")
        A(f"s_waitcnt vmcnt(0)")
        A(f"v_readfirstlane_b32 {s(sT4)}, {v(vFlag)}")
        A.label(Lcok)
        A(f"s_getreg_b32 {s(sT0)}, hwreg(HW_REG_XCC_ID, 0, 4)")
        A(f"s_mul_i32 {s(sT1)}, {s(sT0)}, {s(sT0)}")
        A(f"s_lshl_b32 {s(sT1)}, {s(sT1)}, 22")
        A(f"s_lshl_b32 {s(sT0)}, {s(sT0)}, 13")
        A(f"s_add_u32 {s(sT0)}, {s(sT0)}, {s(sT1)}")
        A(f"s_add_u32 {s(sT0)}, {s(sT0)}, 32")
        A(f"s_cmp_eq_u32 {s(sT0)}, {s(sT4)}")
        A(f"s_cselect_b32 {s(sFastF)}, 1, 0")
        A(f"s_mov_b32 m0, {s(sM0V if opts.get('kpos', 0) else sM0K)}")
    A(f"s_mov_b32 {s(sS)}, 0")
    if opts.get('cf') and not opts.get('nosld') and not ES:
        A(f"s_load_dwordx2 s[28:29], s[0:1], 88")
    A(f"s_waitcnt lgkmcnt(0)" if ES else f"s_waitcnt vmcnt(0) lgkmcnt(0)")
    A(f"s_barrier")
    stamp(A, 3) if not opts.get('cprof') else None
    if opts.get('cprof') or opts.get('hist'):
        A(f"s_mov_b32 {s(sCP0)}, 0")
        A(f"s_mov_b32 {s(sCP1)}, 0")
    for k, r_ in ((1, vT0), (2, vT1), (3, vS0)):
        A(f"v_xor_b32 {v(r_)}, {k << 11:#x}, {v(vMw)}")
    for q in range(opts.get('rbtop', 0)):
        A(f"ds_read_b128 {v([X, X + 8, PA, PA + 8][q >> 1] + 4 * (q & 1), 4)}, {v(vWo)} offset:{(q >> 1) * 2048 + 1024 * (q & 1)}")
    if ES:
        gen_step(A, True, opts, first=True)
    else:
        A(f"s_cmp_eq_u32 {s(sFastF)}, 1")
        if opts.get('forceslow'):
            A(f"s_branch L_own1_s")
        A(f"s_cbranch_scc0 L_own1_s")
        A(f"s_branch L_own1_f")
    gen_step(A, True, opts)
    gen_step(A, False, opts)


def G_tr(A, vD, vL, kind, base_sreg):
    tr_lane_addr(A, vD, vL, vT0, vS0, kind, base_sreg=base_sreg)
```

```python
import sys
from dsl import *

KNAME = "gated_mix__memory_aug_recurrent_mem_tr__dense_activation_silu__prompt_kernel"

WS_P = 0
WS_M = 0x100000
WS_KVF = 0x110000
WS_OF = 0x120000
WS_KM = 0x200000
WS_PF = 0xA00000
WS_B63 = 0xB10000
WS_KX = 0x1000000
KVSTR = 16384
WS_QX = 0x3000000
WS_OX = 0x4000000
WS_HX = 0x5000000
HX_STRIDE = 2 * 43 * 1024
WS_CP = 0x5600000
WS_G = 0x5800000
WS_T = 0x5810000
WS_SIZE = 0x5860000

D_CHECKIN = 0
D_XCCMASK = 1
D_FFN = 2
D_ERR = 4
D_WDONE = 5
D_KV = 8
D_O = 24
D_PROG = 40

S_WS, S_DBG, S_X, S_A, S_B, S_C, S_D = 4, 8, 12, 16, 20, 24, 28
sWAVE, sIDX, sXCD = 32, 33, 34
sT0, sT1, sT2, sT3, sT4, sT5 = 35, 36, 37, 38, 39, 40
sDEAD = 41
sEX = 42
P_X, P_MEM0, P_WQ, P_WK, P_WV, P_WO, P_W1, P_W2, P_GATE, P_OUT, P_DBG, P_WS = 64, 66, 68, 70, 72, 74, 80, 82, 84, 86, 88, 90
SPIN_LIMIT = 1 << 17

LDS_BYTES = 160 * 1024


def mk_srd(A, d, p, size):
    A(f"s_mov_b32 {s(d)}, {s(p)}")
    A(f"s_mov_b32 {s(d+1)}, {s(p+1)}")
    A(f"s_mov_b32 {s(d+2)}, {size:#x}")
    A(f"s_mov_b32 {s(d+3)}, 0x00020000")


def wait_byte(A, vT, vZero, s_off, s_shift, target, tag, s_tmp=sT0, s_cnt=sT1, target_is_sreg=False, sleep=2):
    L = A.new_label("w" + tag)
    Ld = A.new_label("wd" + tag)
    A(f"s_mov_b32 {s(s_cnt)}, 0")
    A(f"s_cmp_lg_u32 {s(sDEAD)}, 0")
    A(f"s_cbranch_scc1 {Ld}")
    A.label(L)
    A(f"buffer_load_dword {v(vT)}, {v(vZero)}, {s(S_DBG,4)}, {s(s_off)} offen sc1")
    A(f"s_waitcnt vmcnt(0)")
    A(f"v_readfirstlane_b32 {s(s_tmp)}, {v(vT)}")
    A(f"s_lshr_b32 {s(s_tmp)}, {s(s_tmp)}, {s(s_shift)}")
    A(f"s_and_b32 {s(s_tmp)}, {s(s_tmp)}, 0xff")
    A(f"s_cmp_ge_u32 {s(s_tmp)}, {s(target) if target_is_sreg else target}")
    A(f"s_cbranch_scc1 {Ld}")
    if sleep:
        A(f"s_sleep {sleep}")
    A(f"s_add_u32 {s(s_cnt)}, {s(s_cnt)}, 1")
    A(f"s_cmp_lt_u32 {s(s_cnt)}, {SPIN_LIMIT}")
    A(f"s_cbranch_scc1 {L}")
    A(f"s_mov_b32 {s(sDEAD)}, 1")
    A.label(Ld)


def signal_byte(A, vOne, vZero, s_off, s_shift, vTmp):
    A(f"s_lshl_b32 {s(sT0)}, 1, {s(s_shift)}")
    A(f"v_mov_b32 {v(vTmp)}, {s(sT0)}")
    A(f"s_mov_b64 {s(sEX,2)}, exec")
    A(f"s_mov_b64 exec, 1")
    A(f"buffer_atomic_add {v(vTmp)}, {v(vZero)}, {s(S_DBG,4)}, {s(s_off)} offen sc1")
    A(f"s_mov_b64 exec, {s(sEX,2)}")


PROF = False
sSTAMP = 92


def stamp(A, i):
    if not PROF:
        return
    A(f"s_memrealtime s[62:63]")
    A(f"s_waitcnt lgkmcnt(0)")
    A(f"s_mov_b32 {s(sSTAMP+i)}, s62")


def stamp_clk(A, i):
    if not PROF:
        return
    A(f"s_memtime s[62:63]")
    A(f"s_waitcnt lgkmcnt(0)")
    A(f"s_mov_b32 {s(sSTAMP+i)}, s62")


def stamp_if_lt(A, i, sreg, limit, clk=False):
    if not PROF:
        return
    L = A.new_label("st")
    A(f"s_cmp_lt_u32 {s(sreg)}, {limit}")
    A(f"s_cbranch_scc0 {L}")
    (stamp_clk if clk else stamp)(A, i)
    A.label(L)


def stamp_flush(A):
    if not PROF:
        return
    A(f"s_lshl_b32 s62, s2, 2")
    A(f"s_add_u32 s62, s62, {s(sWAVE)}")
    A(f"s_lshl_b32 s62, s62, 6")
    A(f"s_add_u32 s62, s62, {WS_T:#x}")
    A(f"v_mov_b32 v1, 0")
    A(f"s_mov_b64 exec, 1")
    for i in range(10):
        A(f"v_mov_b32 v2, {s(sSTAMP+i)}")
        A(f"buffer_store_dword v2, v1, {s(S_WS,4)}, s62 offen offset:{4*i}")
    A(f"s_waitcnt vmcnt(0)")


STG_BUF = 3072


def stage_addr(row):
    return 64 * row + 128 * (row >> 2)


def load_blocks(A, blocks, vST, window, after_first_issue=None, nolds=False):
    n = len(blocks)

    def issue(b):
        blk = blocks[b]
        for k in range(2):
            so = blk['soff'][k]
            A(f"s_mov_b32 {s(sT0)}, {so:#x}")
            if blk.get('sbase') is not None:
                A(f"s_add_u32 {s(sT0)}, {s(sT0)}, {s(blk['sbase'])}")
            A(f"buffer_load_dwordx4 {reg(off(blk['raw'], 4*k), 4)}, {v(blk['voff'])}, {s(blk['srd'],4)}, {s(sT0)} offen")

    issued = 0
    def can_issue(b, done):
        r = blocks[b]['raw']
        for p in range(b):
            if blocks[p]['raw'] == r or blocks[p].get('dst') == r:
                if p >= done:
                    return False
        return True

    while issued < n and issued < window and can_issue(issued, 0):
        issue(issued)
        issued += 1
    if after_first_issue:
        after_first_issue(2 * issued)
    for b in range(n):
        blk = blocks[b]
        assert issued > b, "window deadlock"
        A(f"s_waitcnt vmcnt({2*(issued-b-1)})")
        buf = (b & 1) * STG_BUF
        if not nolds:
            A(f"ds_write_b128 {v(vST)}, {reg(blk['raw'],4)} offset:{buf}")
            A(f"ds_write_b128 {v(vST)}, {reg(off(blk['raw'],4),4)} offset:{buf + stage_addr(16)}")
            for i in range(4):
                A(f"ds_read_b64_tr_b16 {reg(off(blk['dst'],2*i),2)}, {v(blk['vtr'])} offset:{buf + blk['imm'][i]}")
        if blk.get('post'):
            blk['post'](A)
        while issued < n and issued - b - 1 < window and can_issue(issued, b + 1):
            issue(issued)
            issued += 1
    A("s_waitcnt lgkmcnt(0)")


def load_blocks2(A, blocks, vST, window, extra=None, nolds=False, vq=None, upto=None):
    n = len(blocks)
    vq = vq or Q(A, "vmcnt", 63)
    state = dict(issued=0, xi=False, xc=False)

    def issue(b):
        blk = blocks[b]
        for k in range(2):
            A(f"s_mov_b32 {s(sT0)}, {blk['soff'][k]:#x}")
            vq.issue(('B', id(blk)), f"buffer_load_dwordx4 {reg(off(blk['raw'], 4*k), 4)}, {v(blk['voff'])}, {s(blk['srd'],4)}, {s(sT0)} offen")
        state['issued'] += 1
        if extra and b == extra[0]:
            extra[1](vq)
            state['xi'] = True
    while state['issued'] < n and state['issued'] < window:
        issue(state['issued'])
    for b in range(n):
        blk = blocks[b]
        vq.wait(('B', id(blk)))
        if extra and state['xi'] and not state['xc'] and b > extra[0]:
            extra[2](vq)
            state['xc'] = True
        buf = (b & 1) * STG_BUF
        if not nolds:
            A(f"ds_write_b128 {v(vST)}, {reg(blk['raw'],4)} offset:{buf}")
            A(f"ds_write_b128 {v(vST)}, {reg(off(blk['raw'],4),4)} offset:{buf + stage_addr(16)}")
            for i in range(4):
                A(f"ds_read_b64_tr_b16 {reg(off(blk['dst'],2*i),2)}, {v(blk['vtr'])} offset:{buf + blk['imm'][i]}")
        if blk.get('post'):
            blk['post'](A)
        while state['issued'] < n and state['issued'] - b - 1 < window:
            issue(state['issued'])
    if extra and not state['xc']:
        extra[2](vq)
    A("s_waitcnt lgkmcnt(0)")


def tr_lane_addr(A, vD, vL, vT1, vT2, kind, base_sreg=None, base_imm=0):
    A(f"v_lshrrev_b32 {v(vT1)}, 4, {v(vL)}")
    A(f"v_bfe_u32 {v(vT2)}, {v(vL)}, 2, 2")
    A(f"v_and_b32 {v(vD)}, 3, {v(vL)}")
    A(f"v_lshlrev_b32 {v(vD)}, 3, {v(vD)}")

    def add_term(expr_src, mask_shift, mul):
        sh, bits = mask_shift
        A(f"v_bfe_u32 v{TMPX}, {v(expr_src)}, {sh}, {bits}")
        A(f"v_mul_u32_u24 v{TMPX}, {mul}, v{TMPX}")
        A(f"v_add_u32 {v(vD)}, {v(vD)}, v{TMPX}")

    G, r = vT1, vT2
    def sa(row):
        return stage_addr(row)
    if kind == 'chain_qkv':
        add_term(G, (1, 1), sa(8)); add_term(G, (0, 1), sa(4)); add_term(r, (0, 1), sa(1)); add_term(r, (1, 1), 32)
    elif kind == 'chain_wo':
        add_term(G, (0, 1), sa(16)); add_term(G, (1, 1), sa(4)); add_term(r, (0, 1), sa(1)); add_term(r, (1, 1), 32)
    elif kind == 'k16':
        add_term(G, (1, 1), sa(8)); add_term(r, (0, 2), sa(1)); add_term(G, (0, 1), 32)
    elif kind == 'out_wo':
        add_term(G, (0, 2), sa(4)); add_term(r, (0, 2), sa(1))
    elif kind == 'out_w2':
        add_term(G, (1, 1), sa(16)); add_term(G, (0, 1), sa(4)); add_term(r, (0, 2), sa(1))
    else:
        raise ValueError(kind)
    if base_sreg is not None:
        A(f"v_add_u32 {v(vD)}, {s(base_sreg)}, {v(vD)}")
    if base_imm:
        A(f"v_add_u32 {v(vD)}, {base_imm}, {v(vD)}")


TR_IMM = {
    'chain_qkv': [stage_addr(16 * hi + 2 * qq) for hi in range(2) for qq in range(2)],
    'chain_wo': [stage_addr(8 * hi + 2 * qq) for hi in range(2) for qq in range(2)],
    'k16': [stage_addr(16 * kk + 4 * hf) for kk in range(2) for hf in range(2)],
    'out_wo': [stage_addr(16 * hf) + 32 * ct for ct in range(2) for hf in range(2)],
    'out_w2': [stage_addr(8 * hf) + 32 * ct for ct in range(2) for hf in range(2)],
}
TMPX = 15


def stage_lane_addr(A, vD, vL, vT, base_sreg):
    A(f"v_lshrrev_b32 {v(vD)}, 2, {v(vL)}")
    A(f"v_lshlrev_b32 {v(vD)}, 6, {v(vD)}")
    A(f"v_lshrrev_b32 {v(vT)}, 4, {v(vL)}")
    A(f"v_lshlrev_b32 {v(vT)}, 7, {v(vT)}")
    A(f"v_add_u32 {v(vD)}, {v(vD)}, {v(vT)}")
    A(f"v_and_b32 {v(vT)}, 3, {v(vL)}")
    A(f"v_lshlrev_b32 {v(vT)}, 4, {v(vT)}")
    A(f"v_add_u32 {v(vD)}, {v(vD)}, {v(vT)}")
    A(f"v_add_u32 {v(vD)}, {s(base_sreg)}, {v(vD)}")


def raw_lane_off(A, vD, vL, vT, pitch):
    A(f"v_lshrrev_b32 {v(vD)}, 2, {v(vL)}")
    A(f"v_mul_u32_u24 {v(vD)}, {pitch}, {v(vD)}")
    A(f"v_and_b32 {v(vT)}, 3, {v(vL)}")
    A(f"v_lshlrev_b32 {v(vT)}, 4, {v(vT)}")
    A(f"v_add_u32 {v(vD)}, {v(vD)}, {v(vT)}")


def lane_expr(A, vD, vL, terms, const=0, sregs=(), tmp=None):
    tmp = TMPX if tmp is None else tmp
    first = True
    for (sh, bits, mul) in terms:
        dst = vD if first else tmp
        A(f"v_bfe_u32 {v(dst)}, {v(vL)}, {sh}, {bits}")
        if mul != 1:
            A(f"v_mul_u32_u24 {v(dst)}, {mul}, {v(dst)}")
        if not first:
            A(f"v_add_u32 {v(vD)}, {v(vD)}, {v(tmp)}")
        first = False
    if first:
        A(f"v_mov_b32 {v(vD)}, 0")
    if const:
        A(f"v_add_u32 {v(vD)}, {const:#x}, {v(vD)}")
    for sr in sregs:
        A(f"v_add_u32 {v(vD)}, {s(sr)}, {v(vD)}")


class Q:
    def __init__(self, A, name, cap):
        self.A, self.name, self.cap = A, name, cap
        self.ops = []

    def issue(self, tag, text):
        self.A(text)
        self.ops.append(tag)

    def wait(self, tag):
        if tag not in self.ops:
            return
        i = max(j for j, t in enumerate(self.ops) if t == tag)
        n = len(self.ops) - 1 - i
        self.A(f"s_waitcnt {self.name}({min(n, self.cap)})")
        if n <= self.cap:
            self.ops = self.ops[i + 1:]
        else:
            self.ops = self.ops[len(self.ops) - self.cap:]

    def wait_all(self):
        self.A(f"s_waitcnt {self.name}(0)")
        self.ops = []


XBUF = 64 * 528
XB1 = 36864


class XG:
    vL, vL16, vXW, vXR, vZero, vTmp, vT1, vT2 = 1, 2, 3, 4, 10, 11, 12, 13
    XP, XF = 16, 48
    NF = 4

    def __init__(self, A, sDelta):
        self.A, self.sDelta = A, sDelta

    def setup(self):
        A = self.A
        vL, vL16, vXW, vXR, vZero, vT1 = self.vL, self.vL16, self.vXW, self.vXR, self.vZero, self.vT1
        A(f"v_and_b32 {v(vL)}, 63, v0")
        A(f"v_lshlrev_b32 {v(vL16)}, 4, {v(vL)}")
        A(f"v_mov_b32 {v(vZero)}, 0")
        A(f"v_mul_u32_u24 {v(vXW)}, 528, {v(vL)}")
        A(f"s_lshl_b32 {s(sT0)}, {s(sWAVE)}, 7")
        A(f"v_add_u32 {v(vXW)}, {s(sT0)}, {v(vXW)}")
        A(f"v_lshrrev_b32 {v(vXR)}, 5, {v(vL)}")
        A(f"v_mul_u32_u24 {v(vXR)}, 528, {v(vXR)}")
        A(f"v_and_b32 {v(vT1)}, 31, {v(vL)}")
        A(f"v_lshlrev_b32 {v(vT1)}, 4, {v(vT1)}")
        A(f"v_add_u32 {v(vXR)}, {v(vXR)}, {v(vT1)}")

    def issue_x(self, seg_sreg, vq=None):
        A = self.A
        if vq is not None:
            A = lambda x_: (vq.issue('x', x_) if x_.startswith('buffer_load') else self.A(x_))
        A(f"s_lshl_b32 {s(sT0)}, {s(seg_sreg)}, 15")
        A(f"s_lshl_b32 {s(sT1)}, {s(sWAVE)}, 13")
        A(f"s_add_u32 {s(sT0)}, {s(sT0)}, {s(sT1)}")
        for i in range(8):
            if i == 4:
                A(f"s_add_u32 {s(sT0)}, {s(sT0)}, 4096")
            A(f"buffer_load_dwordx4 {v(self.XP+4*i,4)}, {v(self.vL16)}, {s(S_X,4)}, {s(sT0)} offen offset:{(i%4)*1024}")

    def write_x(self):
        for i in range(8):
            self.A(f"ds_write_b128 {v(self.vXW)}, {v(self.XP+4*i,4)} offset:{i*16}")

    def after_weights(self):
        A = self.A
        A(f"s_waitcnt lgkmcnt(0)")
        A(f"s_barrier")
        A(f"s_mov_b32 {s(self.sDelta)}, {XB1}")
        A(f"v_add_u32 {v(self.vXW)}, {s(self.sDelta)}, {v(self.vXW)}")

    def body(self, mfmas, wpos=9):
        A, NF, XF = self.A, self.NF, self.XF

        def rd(kk):
            A(f"ds_read_b128 {v(XF + 4*(kk % NF), 4)}, {v(self.vXR)} offset:{kk*1056}")
        for kk in range(NF - 1):
            rd(kk)
        for kk in range(32):
            if kk + NF - 1 < 32:
                rd(kk + NF - 1)
                A(f"s_waitcnt lgkmcnt({NF-1})")
            else:
                A(f"s_waitcnt lgkmcnt({31-kk})")
            mfmas(kk, v(XF + 4 * (kk % NF), 4))
            if wpos is not None and kk == wpos:
                A(f"s_waitcnt vmcnt(0)")
                self.write_x()
                A(f"s_waitcnt lgkmcnt(0)")

    def toggle(self):
        A = self.A
        A(f"v_add_u32 {v(self.vXR)}, {s(self.sDelta)}, {v(self.vXR)}")
        A(f"s_sub_u32 {s(self.sDelta)}, 0, {s(self.sDelta)}")
        A(f"v_add_u32 {v(self.vXW)}, {s(self.sDelta)}, {v(self.vXW)}")


def gen_hq(A, opts):
    vWG, vST, vTR, vKst, vVst = 5, 6, 7, 8, 9
    ACC = 64
    EP = 112
    sH, sJ, sSeg, sNext, sDelta, sSegOff, sKVoff, sKVsh, sXa = 44, 45, 46, 47, 48, 49, 50, 51, 52
    sCnt, sKVF = 53, 60
    xg = XG(A, sDelta)
    vL, vL16, vZero, vTmp, vT1, vT2, XF = xg.vL, xg.vL16, xg.vZero, xg.vTmp, xg.vT1, xg.vT2, xg.XF
    A(f"s_sub_u32 {s(sT0)}, {s(sXCD)}, 3")
    A(f"s_lshl_b32 {s(sT0)}, {s(sT0)}, 5")
    A(f"s_add_u32 {s(sT0)}, {s(sT0)}, {s(sIDX)}")
    A(f"s_mul_i32 {s(sH)}, {s(sT0)}, 205")
    A(f"s_lshr_b32 {s(sH)}, {s(sH)}, 10")
    A(f"s_mul_i32 {s(sT1)}, {s(sH)}, 5")
    A(f"s_sub_u32 {s(sJ)}, {s(sT0)}, {s(sT1)}")
    mk_srd(A, S_A, P_WQ, 512 * 8192)
    mk_srd(A, S_B, P_WK, 512 * 8192)
    mk_srd(A, S_C, P_WV, 512 * 8192)
    xg.setup()
    A(f"s_mov_b32 {s(sSeg)}, {s(sJ)}")
    raw_lane_off(A, vWG, vL, vT1, 8192)
    A(f"s_lshl_b32 {s(sT0)}, {s(sH)}, 8")
    A(f"s_lshl_b32 {s(sT1)}, {s(sWAVE)}, 6")
    A(f"s_add_u32 {s(sT0)}, {s(sT0)}, {s(sT1)}")
    A(f"v_add_u32 {v(vWG)}, {s(sT0)}, {v(vWG)}")
    STG = 80 * 1024
    A(f"s_mul_i32 {s(sT2)}, {s(sWAVE)}, {2*STG_BUF}")
    A(f"s_add_u32 {s(sT2)}, {s(sT2)}, {STG}")
    stage_lane_addr(A, vST, vL, vT1, sT2)
    tr_lane_addr(A, vTR, vL, vT1, vT2, 'k16', base_sreg=sT2)
    A(f"s_lshl_b32 {s(sT0)}, {s(sWAVE)}, 10")
    lane_expr(A, vKst, vL, [(4, 1, 4096), (5, 1, 256), (0, 4, 16)], sregs=[sT0])
    A(f"s_lshl_b32 {s(sT0)}, {s(sWAVE)}, 11")
    lane_expr(A, vVst, vL, [(4, 1, 1024), (5, 1, 256), (0, 4, 16)], sregs=[sT0])

    def wblocks(srd, dst):
        return [dict(srd=srd, voff=vWG, soff=[(32 * b) * 8192, (32 * b + 16) * 8192], raw=off(dst, 8 * b), dst=off(dst, 8 * b),
                     vtr=vTR, imm=TR_IMM['k16']) for b in range(16)]
    kvb = wblocks(S_B, ('a', 128)) + wblocks(S_C, ('v', 128))
    qb = wblocks(S_A, ('a', 0))
    if opts.get('hdelay'):
        Lhd = A.new_label("hqd")
        A(f"s_cmp_lg_u32 {s(sWAVE)}, 0")
        A(f"s_cbranch_scc1 {Lhd}")
        A(f"s_mov_b32 {s(sT2)}, {D_CHECKIN*4}")
        A(f"s_mov_b32 {s(sT3)}, 0")
        wait_byte(A, vTmp, vZero, sT2, sT3, opts['hdelay'], "hqd", sleep=4)
        A.label(Lhd)
        A(f"s_barrier")
    stamp(A, 1)
    if PROF:
        kvb[15]['post'] = lambda A_: stamp(A_, 6)
        kvb[0]['post'] = lambda A_: stamp(A_, 8)

    def x_issue(vq):
        xg.issue_x(sSeg, vq)

    def x_consume(vq):
        vq.wait('x')
        xg.write_x()
        stamp(A, 5)
    hw = opts.get('hqwin', 10)
    load_blocks2(A, kvb, vST, window=hw, extra=(opts.get('hqxpos', 16), x_issue, x_consume))
    stamp(A, 7)
    xg.after_weights()
    A(f"s_mov_b32 {s(sXa)}, -1")
    A(f"s_mov_b32 {s(sCnt)}, 1")
    A(f"s_lshl_b32 {s(sKVF)}, {s(sH)}, 7")
    A(f"s_lshl_b32 {s(sT0)}, {s(sJ)}, 2")
    A(f"s_add_u32 {s(sKVF)}, {s(sKVF)}, {s(sT0)}")
    A(f"s_add_u32 {s(sKVF)}, {s(sKVF)}, {WS_KVF:#x}")
    A(f"buffer_load_dword v15, {v(vZero)}, {s(S_DBG,4)}, 0 offen offset:{D_CHECKIN*4} sc1")

    def mf_k(kk, f):
        c = lambda base: "0" if kk == 0 else v(base, 16)
        A(f"v_mfma_f32_32x32x16_bf16 {v(ACC+16,16)}, {a(128+4*kk,4)}, {f}, {c(ACC+16)}")

    def mf_v(kk, f):
        c = lambda base: "0" if kk == 0 else v(base, 16)
        A(f"v_mfma_f32_32x32x16_bf16 {v(ACC+32,16)}, {f}, {v(128+4*kk,4)}, {c(ACC+32)}")

    def mf_q(kk, f):
        c = lambda base: "0" if kk == 0 else v(base, 16)
        A(f"v_mfma_f32_32x32x16_bf16 {v(ACC,16)}, {a(4*kk,4)}, {f}, {c(ACC)}")

    def seg_offsets():
        A(f"s_lshl_b32 {s(sSegOff)}, {s(sSeg)}, 5")
        A(f"s_add_u32 {s(sSegOff)}, {s(sSegOff)}, {s(sH)}")
        A(f"s_lshl_b32 {s(sKVoff)}, {s(sSegOff)}, 14")
        A(f"s_lshl_b32 {s(sKVsh)}, {s(sSegOff)}, 12")
        A(f"s_lshl_b32 {s(sSegOff)}, {s(sSegOff)}, 13")

    def store_ct(acc, sbase, region, ep):
        for c in range(2):
            for q in range(4):
                A(f"v_cvt_pk_bf16_f32 {v(ep+4*c+q)}, {v(acc+8*c+2*q)}, {v(acc+8*c+2*q+1)}")
        A(f"s_add_u32 {s(sT0)}, {s(sbase)}, {region:#x}")
        for c in range(2):
            A(f"buffer_store_dwordx4 {v(ep+4*c,4)}, {v(vKst)}, {s(S_WS,4)}, {s(sT0)} offen offset:{c*512} sc1")

    def store_kv():
        store_ct(ACC + 16, sKVoff, WS_KX, EP)
        acc = ACC + 32
        for c in range(2):
            for hf in range(2):
                u = c + 2 * hf
                for q in range(2):
                    A(f"v_cvt_pk_bf16_f32 {v(EP+8+4*c+2*hf+q)}, {v(acc+4*u+2*q)}, {v(acc+4*u+2*q+1)}")
        A(f"s_add_u32 {s(sT0)}, {s(sKVoff)}, {WS_KX + 8192:#x}")
        for c in range(2):
            A(f"buffer_store_dwordx4 {v(EP+8+4*c,4)}, {v(vVst)}, {s(S_WS,4)}, {s(sT0)} offen offset:{c*512} sc1")

    def arm_km():
        for i in range(4):
            A(f"v_mov_b32 {v(XF+8+i)}, -1")
        A(f"s_lshl_b32 {s(sT1)}, {s(sWAVE)}, 10")
        A(f"s_add_u32 {s(sT0)}, {s(sKVsh)}, {s(sT1)}")
        A(f"s_add_u32 {s(sT0)}, {s(sT0)}, {WS_KM:#x}")
        A(f"buffer_store_dwordx4 {v(XF+8,4)}, {v(vL16)}, {s(S_WS,4)}, {s(sT0)} offen sc1")

    def flag_store():
        A(f"v_mov_b32 {v(vTmp)}, {s(sCnt)}")
        A(f"s_mov_b64 exec, 1")
        A(f"buffer_store_dword {v(vTmp)}, off, {s(S_WS,4)}, {s(sKVF)} sc1")
        A(f"s_mov_b64 exec, -1")
    xg.body(lambda kk, f: (mf_k(kk, f), mf_v(kk, f)), wpos=None)
    A.nop(12)
    seg_offsets()
    store_kv()
    arm_km()
    vq = Q(A, "vmcnt", 63)
    qn = [0]

    def q_first(vq_):
        pass
    nq0 = opts.get('hqq0', 8)
    for b in range(nq0):
        blk = qb[b]
        for k in range(2):
            A(f"s_mov_b32 {s(sT0)}, {blk['soff'][k]:#x}")
            vq.issue(('B', id(blk)), f"buffer_load_dwordx4 {reg(off(blk['raw'], 4*k), 4)}, {v(blk['voff'])}, {s(blk['srd'],4)}, {s(sT0)} offen")
    A(f"s_waitcnt vmcnt({2*nq0})")
    A(f"s_barrier")
    Lnf1 = A.new_label("hq_nf1")
    Lci = A.new_label("hq_ci")
    A(f"s_cmp_lg_u32 {s(sWAVE)}, 0")
    A(f"s_cbranch_scc1 {Lnf1}")
    A(f"v_readfirstlane_b32 {s(sT0)}, v15")
    A(f"s_and_b32 {s(sT0)}, {s(sT0)}, 0xff")
    A(f"s_cmp_ge_u32 {s(sT0)}, 32")
    A(f"s_cbranch_scc1 {Lci}")
    A(f"s_mov_b32 {s(sT2)}, {D_CHECKIN*4}")
    A(f"s_mov_b32 {s(sT3)}, 0")
    wait_byte(A, vTmp, vZero, sT2, sT3, 32, "hqci", sleep=4)
    A.label(Lci)
    flag_store()
    A.label(Lnf1)
    stamp(A, 3)
    for b in range(16):
        blk = qb[b]
        if b == 0:
            pass
        if b + nq0 < 16:
            nb_ = qb[b + nq0]
        vq.wait(('B', id(blk)))
        buf = (b & 1) * STG_BUF
        A(f"ds_write_b128 {v(vST)}, {reg(blk['raw'],4)} offset:{buf}")
        A(f"ds_write_b128 {v(vST)}, {reg(off(blk['raw'],4),4)} offset:{buf + stage_addr(16)}")
        for i in range(4):
            A(f"ds_read_b64_tr_b16 {reg(off(blk['dst'],2*i),2)}, {v(blk['vtr'])} offset:{buf + blk['imm'][i]}")
        if b + nq0 < 16:
            for k in range(2):
                A(f"s_mov_b32 {s(sT0)}, {nb_['soff'][k]:#x}")
                vq.issue(('B', id(nb_)), f"buffer_load_dwordx4 {reg(off(nb_['raw'], 4*k), 4)}, {v(nb_['voff'])}, {s(nb_['srd'],4)}, {s(sT0)} offen")
    A("s_waitcnt lgkmcnt(0)")
    stamp(A, 2)
    if opts.get('xatt'):
        from gen_xatt import xatt_setup, xatt_task
        xatt_setup(A, xg, sH)
    A(f"s_add_u32 {s(sNext)}, {s(sSeg)}, 5")
    xg.issue_x(sNext)
    xg.body(mf_q, wpos=opts.get('wpos', 9))
    A.nop(12)
    store_ct(ACC, sSegOff, WS_QX, XF)
    xg.toggle()
    A(f"s_waitcnt vmcnt(0) lgkmcnt(0)")
    A(f"s_barrier")
    A(f"s_mov_b32 {s(sXa)}, {s(sSeg)}")
    A(f"s_mov_b32 {s(sSeg)}, {s(sNext)}")

    Lloop = A.new_label("hq_loop")
    Lnoq = A.new_label("hq_noq")
    Lnoflag = A.new_label("hq_noflag")
    A.label(Lloop)
    A(f"s_add_u32 {s(sNext)}, {s(sSeg)}, 5")
    A(f"s_cmp_ge_u32 {s(sSeg)}, 64")
    A(f"s_cbranch_scc1 {Lnoq}")
    xg.issue_x(sNext)
    xg.body(lambda kk, f: (mf_k(kk, f), mf_v(kk, f), mf_q(kk, f)), wpos=opts.get('wpos', 9))
    A.nop(12)
    seg_offsets()
    store_kv()
    store_ct(ACC, sSegOff, WS_QX, XF)
    arm_km()
    if opts.get('cf') and not opts.get('nopfclr'):
        Lpf = A.new_label("hq_pf")
        A(f"s_cmp_lg_u32 {s(sCnt)}, 1")
        A(f"s_cbranch_scc1 {Lpf}")
        A(f"s_cmp_gt_u32 {s(sJ)}, 3")
        A(f"s_cbranch_scc1 {Lpf}")
        for i in range(4):
            A(f"v_mov_b32 {v(XF+12+i)}, 0")
        A(f"s_lshl_b32 {s(sT0)}, {s(sJ)}, 18")
        A(f"s_lshl_b32 {s(sT1)}, {s(sH)}, 13")
        A(f"s_add_u32 {s(sT0)}, {s(sT0)}, {s(sT1)}")
        A(f"s_lshl_b32 {s(sT1)}, {s(sWAVE)}, 11")
        A(f"s_add_u32 {s(sT0)}, {s(sT0)}, {s(sT1)}")
        A(f"s_add_u32 {s(sT0)}, {s(sT0)}, {WS_PF:#x}")
        for k in range(2):
            A(f"buffer_store_dwordx4 {v(XF+12,4)}, {v(vL16)}, {s(S_WS,4)}, {s(sT0)} offen offset:{k*1024} sc1")
        A.label(Lpf)
    xg.toggle()
    A(f"s_waitcnt vmcnt(0) lgkmcnt(0)")
    A(f"s_barrier")
    A(f"s_add_u32 {s(sCnt)}, {s(sCnt)}, 1")
    A(f"s_cmp_lg_u32 {s(sWAVE)}, 0")
    A(f"s_cbranch_scc1 {Lnoflag}")
    flag_store()
    A.label(Lnoflag)
    A.label(Lnoq)
    if opts.get('xatt'):
        xatt_task(A, xg, sH, sXa, opts)
    A(f"s_mov_b32 {s(sXa)}, {s(sSeg)}")
    A(f"s_mov_b32 {s(sSeg)}, {s(sNext)}")
    A(f"s_cmp_lt_u32 {s(sXa)}, {63 if opts.get('cf') else 64}")
    A(f"s_cbranch_scc1 {Lloop}")
    stamp(A, 4)


def gen(opts):
    global PROF
    PROF = bool(opts.get('prof'))
    A = Asm()
    A.L.append(open("header.txt").read().rstrip("\n"))
    A.L.append(f"; @launch grid=(256,1,1) block=(256,1,1) lds={LDS_BYTES}")
    A.L.append('.amdgcn_target "amdgcn-amd-amdhsa--gfx950"')
    A.L.append(".text")
    A.L.append(f".globl {KNAME}")
    A.L.append(".p2align 8")
    A.L.append(f".type {KNAME},@function")
    A.label(KNAME)
    A(f"s_cmp_ge_u32 s2, 256")
    A(f"s_cbranch_scc1 L_exit")
    A(f"s_load_dwordx16 s[64:79], s[0:1], 0")
    A(f"s_load_dwordx8 s[80:87], s[0:1], 64")
    A(f"s_load_dwordx4 s[88:91], s[0:1], 96")
    if opts.get('xrot'):
        A(f"s_add_u32 {s(sXCD)}, s2, {opts['xrot']}")
        A(f"s_and_b32 {s(sXCD)}, {s(sXCD)}, 7")
    else:
        A(f"s_and_b32 {s(sXCD)}, s2, 7")
    A(f"s_lshr_b32 {s(sIDX)}, s2, 3")
    if opts.get('cpr'):
        A("s_getpc_b64 s[44:45]")
        A.label("L_pc")
        A("s_mov_b32 s46, 0")
        A("s_mov_b32 s47, L_chain-L_pc")
        A(f"s_cmp_lt_u32 {s(sXCD)}, 3")
        A("s_cselect_b32 s46, L_out-L_pc, s46")
        A("s_cselect_b32 s47, L_exit-L_out, s47")
        A(f"s_cmp_eq_u32 {s(sXCD)}, 0")
        A("s_cselect_b32 s46, L_chain-L_pc, s46")
        A(f"s_cselect_b32 s47, {'L_top_s' if opts['cpr'] == 1 else 'L_out'}-L_chain, s47")
        A("v_lshlrev_b32 v2, 7, v0")
        A("s_add_u32 s44, s44, s46")
        A("s_addc_u32 s45, s45, 0")
        A("v_min_u32 v2, s47, v2")
        A("v_mov_b32 v5, s45")
        A("v_add_co_u32 v4, vcc, s44, v2")
        A("v_addc_co_u32 v5, vcc, 0, v5, vcc")
        A("global_load_dword v255, v[4:5], off")
    if opts.get('cpf'):
        A("s_getpc_b64 s[44:45]")
        A.label("L_pc")
        A("v_lshlrev_b32 v2, 7, v0")
        A("s_mov_b32 s46, L_exit-L_pc")
        for i in range(opts.get('cpf')):
            A(f"v_add_u32 v4, {i * 32768:#x}, v2")
            A("v_min_u32 v4, s46, v4")
            A("v_mov_b32 v5, s45")
            A("v_add_co_u32 v4, vcc, s44, v4")
            A("v_addc_co_u32 v5, vcc, 0, v5, vcc")
            A("global_load_dword v255, v[4:5], off")
    A(f"v_lshrrev_b32 v1, 6, v0")
    A(f"s_mov_b32 {s(sDEAD)}, 0")
    A(f"v_readfirstlane_b32 {s(sWAVE)}, v1")
    A(f"s_waitcnt lgkmcnt(0)")
    mk_srd(A, S_WS, P_WS, WS_SIZE)
    mk_srd(A, S_DBG, P_DBG, 256)
    mk_srd(A, S_X, P_X, 2048 * 1024)
    if PROF:
        for i in range(10):
            A(f"s_mov_b32 {s(sSTAMP+i)}, 0")
    stamp(A, 0)
    A(f"s_cmp_eq_u32 {s(sXCD)}, 0")
    A(f"s_cbranch_scc1 L_chain")
    A(f"s_cmp_lt_u32 {s(sXCD)}, 3")
    A(f"s_cbranch_scc1 L_out")
    if opts.get('hq', True):
        gen_hq(A, opts)
    A(f"s_branch L_role_end")
    A.label("L_chain")
    if opts.get('clkprobe'):
        A("s_memrealtime s[44:45]")
        A("s_waitcnt lgkmcnt(0)")
        for i in range(1, 9):
            L = A.new_label("cp")
            A(f"s_add_u32 s46, s44, {i*500}")
            A.label(L)
            A("s_memrealtime s[48:49]")
            A("s_waitcnt lgkmcnt(0)")
            A("s_sub_u32 s50, s48, s46")
            A("s_cmp_lt_i32 s50, 0")
            A(f"s_cbranch_scc1 {L}")
            stamp_clk(A, i)
    if opts.get('chain'):
        cv = opts.get('cv', 7)
        if cv == 4:
            from gen_chain4 import gen_chain
        elif cv == 5:
            from gen_chain5 import gen_chain
        elif cv == 6:
            from gen_chain6 import gen_chain
        else:
            from gen_chain7 import gen_chain
        gen_chain(A, opts)
    A(f"s_branch L_role_end")
    A.label("L_out")
    if opts.get('out'):
        from gen_out import gen_out
        gen_out(A, opts)
    A.label("L_role_end")
    stamp(A, 9)
    A.label("L_flush")
    stamp_flush(A)
    A.label("L_exit")
    A("s_endpgm")
    A.L.append(f""".section .rodata,"a"
.p2align 6
.amdhsa_kernel {KNAME}
  .amdhsa_next_free_vgpr 512
  .amdhsa_next_free_sgpr 102
  .amdhsa_accum_offset 256
  .amdhsa_group_segment_fixed_size 0
  .amdhsa_kernarg_size 112
  .amdhsa_user_sgpr_count 2
  .amdhsa_user_sgpr_kernarg_segment_ptr 1
  .amdhsa_system_sgpr_workgroup_id_x 1
.end_amdhsa_kernel""")
    return A.text()


def main():
    opts = {}
    outp = sys.argv[1]
    for o in sys.argv[2:]:
        if "=" in o:
            k, val = o.split("=")
            opts[k] = int(val)
        else:
            opts[o] = True
    open(outp, "w").write(gen(opts))


if __name__ == "__main__":
    import gen as _g
    _g.main()
```

```python
from dsl import *
import gen as G
from gen import *

QK_OFF, O_OFF, MEM_OFF, KX_OFF, VX_OFF, WO_OFF = 0, 4096, 8192, 16384, 24576, 32768

vL16, vKw, vIdx, vQKw, vQKr, vOw, vMw, vWo, vPst, vRed, vMst, vPf, vFlag, vJunk = range(14)
vT0, vT1 = 14, 15
vSEL = 16
vVM1, vKr, vONE = 20, 21, 22
vBM = 26
vS0, vIdxW = 30, 31
KIMG = [2048, 3072, 6144, 7168]
X = 32
Y = 64
PA = 96
ACC = 112
sH, sS, sSlotP, sSlotP1, sSlotP4, sSlotM, sKM, sKV, sC, sNC, sRet = range(44, 55)
sRa0, sRa2, sFastF = 55, 56, 57
sMLo, sMHi = 58, 60
sU = 76
sFo, sNeed, sJ4, sCn, sPf, sGat, sKn, sM0K, sM0V = 78, 79, 80, 81, 84, 85, 86, 87, 88
sW1k, sRaM, sRaA, sFb, sPfb, sW2k = 64, 65, 66, 67, 68, 69
sPc2, sPc3 = 70, 71
sRo, sRm = 72, 89
sPc = [sSlotP, sSlotP1, sPc2, sPc3]
sTag = 55
vTagE = vPf
sCP0, sCP1 = 82, 83
sB63 = 3
sKok = 57
OOB = 0x40000000
RED_LIMIT = 1 << 16

LOG2E = 1.4426950408889634
WPOL = ["", " nt", " sc1", " sc0 sc1", " sc1 nt", " sc0", " sc0 nt", " sc0 sc1 nt"]
SCALE_C = (128 ** -0.5) * LOG2E


def f32_hex(x):
    import struct
    return struct.unpack("<I", struct.pack("<f", x))[0]


RT = False
D3Q = []
LATE = [False]
CSTEP = [39]


TRACE = [False]


FTR = [0]


def fstamp(A, k):
    if TRACE[0] and FTR[0]:
        A(f"s_memtime s[{16 + 2 * (k - 1)}:{17 + 2 * (k - 1)}]")


def lstamp(A, i, late=None):
    if TRACE[0]:
        if FTR[0] == 1:
            m_ = {3: 1, 4: 5, 5: 8}.get(i)
        elif FTR[0] == 2:
            m_ = {5: 1, 6: 4, 7: 8}.get(i)
        elif FTR[0] == 3:
            m_ = {1: 1, 2: 5, 3: 8}.get(i)
        else:
            m_ = i if i <= 8 else None
        if m_:
            A(f"s_memtime s[{16 + 2 * (m_ - 1)}:{17 + 2 * (m_ - 1)}]")
        return
    L = A.new_label("ls")
    if late is None:
        late = i >= 8
    A(f"s_cmp_lg_u32 {s(sS)}, {CSTEP[0] + 1 if late else CSTEP[0]}")
    A(f"s_cbranch_scc1 {L}")
    r = 16 + 2 * (i - 1) if i < 9 else 62
    A(f"{'s_memrealtime' if RT else 's_memtime'} s[{r}:{r+1}]")
    A.label(L)


import re as _re


def _regs(tok):
    tok = tok.strip().rstrip(',')
    m = _re.match(r'^([va])\[(\d+):(\d+)\]$', tok)
    if m:
        return {(m.group(1), i) for i in range(int(m.group(2)), int(m.group(3)) + 1)}
    m = _re.match(r'^([va])(\d+)$', tok)
    if m:
        return {(m.group(1), int(m.group(2)))}
    return set()


def _all_regs(line):
    r = set()
    for tok in _re.findall(r'[va]\[\d+:\d+\]|\b[va]\d+\b', line):
        r |= _regs(tok)
    return r


def gap_reorder(lines, report=False):
    out = []
    i = 0
    n = len(lines)
    issm = lambda x: x.strip().startswith('v_smfmac')
    while i < n:
        out.append(lines[i])
        if issm(lines[i]):
            j = i + 1
            gap = []
            while j < n and not issm(lines[j]) and not lines[j].endswith(':') and not lines[j].strip().startswith(('s_cbranch', 's_branch', 'v_mfma', 's_nop', 's_memtime', 's_memrealtime', 's_cmp')):
                gap.append(lines[j])
                j += 1
            if j < n and issm(lines[j]):
                changed = True
                while changed:
                    changed = False
                    for k in range(len(gap) - 1):
                        a_, b_ = gap[k].strip(), gap[k + 1].strip()
                        if a_.startswith('v_') and not b_.startswith('v_') and 'vcc' not in a_ and 'exec' not in b_:
                            if not (_all_regs(a_) & _all_regs(b_)):
                                gap[k], gap[k + 1] = gap[k + 1], gap[k]
                                changed = True
                nv = sum(1 for g in gap if g.strip().startswith('v_'))
                no = len(gap) - nv
                lastv = all(not gap[k].strip().startswith('v_') or gap[k + 1].strip().startswith('v_') for k in range(len(gap) - 1))
                if report and (nv > 1 or (nv and no > 2) or no > 3 or not lastv):
                    print("gap over budget:", [g.strip()[:40] for g in gap])
            out.extend(gap)
            i = j
            continue
        i += 1
    return out


def red3(A, opts, R, RA, ld, st, Lar, rstamp, RBT):
    sSave = sU
    LfA, LfB, LfAB, Lgen, Lok = (A.new_label(x) for x in ("rfA", "rfB", "rfAB", "rgen", "rok"))
    hist = opts.get('hist')

    main = [True]

    def item(i, cnt, first):
        if cnt is not None:
            A(f"s_waitcnt vmcnt({cnt})")
        if main[0] and i in (0, 7):
            rstamp(2 if i == 0 else 3)
        c = "0" if first else v(RA, 4)
        A(f"v_mfma_f32_16x16x32_bf16 {v(RA,4)}, {v(R[i],4)}, {v(vSEL,4)}, {c}")

    def tagchk(i, y):
        A(f"v_bitop3_b32 {v(y)}, {v(R[i])}, {v(R[i]+2)}, {v(vTagE)} bitop3:0x7e")

    def half(base, cnts, first, k0=0, chk=True):
        for k in range(k0, 4):
            item(base + k, cnts[k], first and k == 0)
            if chk:
                tagchk(base + k, [vT0, vT1, vS0, vT1][k])
                if k == 2:
                    A(f"v_or3_b32 {v(vT0)}, {v(vT0)}, {v(vT1)}, {v(vS0)}")
        if chk:
            A(f"v_bitop3_b32 {v(vT0)}, {v(vT0)}, {v(vT1)}, 1 bitop3:0xa8")
            A(f"v_cmp_ne_u32 vcc, 0, {v(vT0)}")

    def repoll(lo, hi, d=0):
        for _ in range(d):
            A(f"s_sleep 1")
        A(f"s_mov_b64 exec, vcc")
        for i in range(lo, hi):
            ld(R, i)
        A(f"s_mov_b64 exec, -1")

    def both(first_cnts):
        half(0, first_cnts, True)
        A(f"s_mov_b64 {s(sSave,2)}, vcc")
        half(4, [3, 2, 1, 0], False)
        A(f"s_or_b64 vcc, vcc, {s(sSave,2)}")
    half(0, [7, 6, 5, 4], True)
    item(4, 3, False)
    tagchk(4, vT0)
    A(f"s_cbranch_vccnz {LfA}")
    half(4, [3, 2, 1, 0], False, k0=1)
    A(f"s_cbranch_vccnz {LfB}")
    main[0] = False
    A.label(Lok)
    rstamp(4)
    A(f"s_nop 4")
    A(f"v_cvt_pk_bf16_f32 {v(RA+4)}, {v(RA)}, {v(RA+1)}")
    A(f"v_cvt_pk_bf16_f32 {v(RA+5)}, {v(RA+2)}, {v(RA+3)}")
    A(f"buffer_store_dwordx2 {v(RA+4,2)}, {v(vMst)}, {s(S_WS,4)}, {s(sSlotM)} offen{st}")
    A(f"s_branch {Lar}")
    A.label(LfA)
    repoll(0, 4, opts.get('rda', 0))
    if hist or opts.get('rtrace'):
        A(f"s_add_u32 {s(sCP0)}, {s(sCP0)}, 1")
    half(4, [None, 6, 5, 4], True)
    A(f"s_cbranch_vccnz {LfAB}")
    half(0, [3, 2, 1, 0], False)
    A(f"s_cbranch_vccz {Lok}")
    A(f"s_branch {Lgen}")
    A.label(LfAB)
    repoll(4, 8)
    both([7, 6, 5, 4])
    A(f"s_cbranch_vccz {Lok}")
    A(f"s_branch {Lgen}")
    A.label(LfB)
    repoll(4, 8, opts.get('rdb', 0))
    if hist or opts.get('rtrace'):
        A(f"s_add_u32 {s(sCP0)}, {s(sCP0)}, {0x1000000 if opts.get('hist') == 2 else 1}")
    half(0, [None] * 4, True, chk=False)
    half(4, [3, 2, 1, 0], False)
    A(f"s_cbranch_vccz {Lok}")
    A.label(Lgen)
    repoll(0, 8, opts.get('rdg', 0))
    if hist:
        A(f"s_add_u32 {s(sCP0)}, {s(sCP0)}, 0x1000")
    if opts.get('rtrace'):
        A(f"s_add_u32 {s(sCP0)}, {s(sCP0)}, 2")
    both([7, 6, 5, 4])
    A(f"s_cbranch_vccz {Lok}")
    A(f"s_add_u32 {s(sRet)}, {s(sRet)}, 1")
    A(f"s_cmp_lg_u32 {s(sDEAD)}, 0")
    A(f"s_cbranch_scc1 {Lok}")
    A(f"s_cmp_lt_u32 {s(sRet)}, {RED_LIMIT}")
    A(f"s_cbranch_scc1 {Lgen}")
    A(f"s_mov_b32 {s(sDEAD)}, 1")
    A(f"s_branch {Lok}")


def gen_step(A, fast, opts, first=False):
    i0 = len(A.L)
    gen_step_raw(A, fast, opts, first)
    if opts.get('reord', 1):
        A.L[i0:] = gap_reorder(A.L[i0:], report=fast and opts.get('report'))
    if fast and not first and any(opts.get(f"sh{i}") for i in range(1, 13)):
        A.L[i0:] = widen(A.L[i0:], opts)


def widen(L, opts):
    from isz import sizes
    L = list(L)
    st_ = [l.strip() for l in L]
    smf = [i for i, l in enumerate(st_) if l.startswith('v_smfmac')]
    top = st_.index('L_top_f:')
    com = st_.index('L_common_f:')
    red = st_.index('L_red_f:')
    main = [i for i in smf if top < i < red]
    assert len(main) == 64, len(main)
    mf = [i for i, l in enumerate(st_) if l.startswith('v_mfma') and i > main[47]]
    ex = [i for i, l in enumerate(st_) if l.startswith('v_exp') and i > main[47]]
    pv = [i for i in mf if i > ex[0]]
    pol = [i for i, l in enumerate(st_) if l.startswith('buffer_load_dwordx4') and i > red]
    fin = [i for i, l in enumerate(st_) if l.startswith('buffer_store_dwordx2') and i > pol[0]]
    pts = [com, main[24], main[36], mf[0], ex[0], pv[0], main[48], main[56], red, pol[0], fin[0], None]
    OK = ('v_add_f32', 'v_max_f32', 'v_mul_f32', 'v_mov_b32', 'v_mov_b64', 'v_exp_f32', 'v_rcp_f32', 'v_xor_b32', 'v_and_b32', 'v_add_u32', 'v_lshlrev_b32')
    cand = [i for i, l in enumerate(st_) if l.split(' ')[0] in OK and '0x' not in l and 'vcc' not in l]
    sz = sizes([st_[i] for i in cand])
    cand = [i for i, z in zip(cand, sz) if z == 4]
    if opts.get('shrep'):
        lo = top
        for k, p in enumerate(pts[:-1]):
            print("point", k + 1, st_[p][:60], "candidates", len([i for i in cand if lo < i < p]))
            lo = p
    lo = top
    for k, p in enumerate(pts):
        n = opts.get(f"sh{k + 1}", 0)
        if p is None:
            break
        c = [i for i in cand if lo < i < p]
        assert len(c) >= n, (k + 1, len(c), n)
        for i in c[len(c) - n:] if n else []:
            m, rest = st_[i].split(' ', 1)
            L[i] = f"    {m}_e64 {rest}"
        lo = p
    return L


def gen_step_raw(A, fast, opts, first=False):
    KP, VP = opts.get('kpos', 0), opts.get('vpos', 0)
    RBT = opts.get('rbtop', 0)
    VAT = opts.get('vat', 12)
    M0TOP = KP in (1, 2) and VP == 0
    M0FIX = KP == 4 and VP == 0

    def vdma(n):
        if VP != 0 or first:
            return
        if n == VAT - 1:
            if not M0TOP and not M0FIX:
                A(f"s_mov_b32 m0, {s(sM0V)}")
            A(f"s_add_u32 {s(sT3)}, {s(sKV)}, 8192")
        elif n == VAT:
            A(f"buffer_load_dwordx4 {v(vL16)}, {s(S_WS,4)}, {s(sT3)} offen lds")
        elif n == VAT + opts.get('vsp', 1):
            A(f"buffer_load_dwordx4 {v(vL16)}, {s(S_WS,4)}, {s(sT3)} offen offset:1024 lds")
    st = "" if fast else " sc1"
    tag = "e" if first else "f" if fast else "s"
    Lown = [f"L_own0_{tag}", f"L_own1_{tag}"]
    Lcommon = f"L_common_{tag}"
    Llast = f"L_last_{tag}"
    lq = Q(A, "lgkmcnt", 15)
    cp = opts.get('cprof') or opts.get('trace')
    rp = opts.get('rprof')
    AQ, AV, AK = ACC, ACC + 8, Y + 24
    CQ, CK = AQ + 2, AK + 2
    H0, H1 = X + 16, X + 24
    H2 = PA + 8
    G3 = opts.get('gsets', 2) == 3
    AO = Y
    KXR = {0: X + 16, 4: X + 20, 1: X + 24, 5: X + 28, 2: X, 6: X + 4, 3: X + 8, 7: X + 12}
    RB = [X, X + 8, PA, PA + 8]
    RIDX = {0: 0, 1: 1, 4: 2, 5: 3, 6: 4, 7: 5}

    def WB(m, jj, t):
        if m == 'q':
            return a(16 * jj + 8 * t, 8)
        if jj in (2, 3):
            return v(RB[2 * (jj - 2) + t], 8)
        return (a if m == 'k' else v)(128 + 16 * RIDX[jj] + 8 * t, 8)

    def rdR(m, b, half, top=False):
        if m == 'k' and 2 * b + half < RBT and not top:
            return
        fi = (0 if m == 'k' else 4) + b
        lq.issue(('R', m, b), f"ds_read_b128 {v(RB[b] + 4*half, 4)}, {v(vWo)} offset:{fi * 2048 + 1024 * half}")
    AC = {'q': AQ, 'k': AK, 'v': AV}
    nsm = [0]
    keepL0 = A.L
    D3AT = {1: (1, 2, 3, 4, 5, 6, 7, 8), 2: (1, 3, 5, 7, 8, 9, 11, 13), 3: (1, 2, 3, 4, 9, 10, 12, 13)}.get(opts.get('esd3', 0), ())
    vA = [None, vT0, vT1, vS0]

    def smf(m, jj, t, areg):
        if m != 'q' and jj in (2, 3):
            lq.wait(('R', m, 2 * (jj - 2) + t))
        A(f"v_smfmac_f32_16x16x64_bf16 {v(AC[m] + 4*t, 4)}, {v(areg, 4)}, {WB(m, jj, t)}, {v(vIdx)}")
        if first and D3Q and A.L is keepL0:
            nsm[0] += 1
            if nsm[0] in D3AT:
                for l_ in D3Q.pop(0):
                    A(l_)

    def rdKX(j):
        lq.issue(('KX', j), f"ds_read_b128 {v(KXR[j],4)}, {v(vL16)} offset:{KX_OFF + j*1024}")

    salu = [
        f"s_and_b32 {s(sT4)}, {s(sS)}, 3",
        f"s_lshl_b32 {s(sSlotM)}, {s(sT4)}, 13",
        f"s_add_u32 {s(sSlotM)}, {s(sSlotM)}, {WS_M:#x}",
        f"s_add_u32 {s(sGat)}, {s(sSlotM)}, {s(sW2k)}",
        f"s_xor_b32 {s(sRa2)}, {s(sSlotM)}, 0x4000",
        f"s_xor_b32 {s(sTag)}, {s(sTag)}, 1",
    ]

    def su(n):
        for _ in range(n):
            if salu:
                A(salu.pop(0))

    Lar = f"L_top_{tag}"
    Lspec = f"L_spec_{tag}"
    Lretry0 = f"L_retry0_{tag}"
    rt = opts.get('rtrace')

    def rstamp(k):
        if rt:
            A(f"s_memtime s[{16 + 2*k}:{17 + 2*k}]")

    def con_issue(R):
        A(f"buffer_load_dwordx4 {v(R,4)}, {v(vL16)}, {s(S_WS,4)}, {s(sGat)} offen sc1")
        A(f"buffer_load_dwordx4 {v(R+4,4)}, {v(vL16)}, {s(S_WS,4)}, {s(sGat)} offen offset:1024 sc1")

    def own(H, spec):
        lq.ops = []
        n = 0
        c0 = Y
        for m in 'qkv':
            for jj in range(2):
                for t in range(2):
                    n += 1
                    smf(m, jj, t, H + 4 * jj)
                    if spec and n == 1:
                        A(f"v_max3_u32 {v(c0)}, {v(H)}, {v(H+2)}, {v(H+4)}")
                    elif spec and n == 2:
                        A(f"v_max_u32 {v(c0)}, {v(c0)}, {v(H+6)}")
                    elif spec and n == 3:
                        A(f"v_cmp_eq_u32 vcc, -1, {v(c0)}")
                        A(f"s_add_u32 {s(sRet)}, {s(sRet)}, 1")
                        A(f"s_cbranch_vccnz {Lretry0}")
                    elif n == 4:
                        if FTR[0] == 3:
                            fstamp(A, 2)
                        A(f"s_waitcnt lgkmcnt(0)")
                        A(f"s_barrier")
                        if FTR[0] == 3:
                            fstamp(A, 3)
                    elif 5 <= n <= 10:
                        vdma(n)
                        j2 = n - 5 + 2
                        lq.issue(('A', j2), f"ds_read_b128 {v(AO + 4*(j2-2), 4)}, {v(vA[j2 >> 1])} offset:{(j2 & 1) * 1024}")
                    elif n == 11:
                        vdma(n)
                        rdR('k', 0, 0)
                    elif n == 12:
                        vdma(n)
                        rdR('k', 0, 1)
    keepL = A.L
    if first:
        A.L = []
    if opts.get('lalign'):
        A.L.append(f".p2align {opts['lalign']}")
        for _ in range(opts.get('lpad', 0)):
            A("s_nop 0")
    A.label(Lar)
    A(f"s_barrier")
    if cp:
        lstamp(A, 8)
    rstamp(5)
    for k in range(1, 4):
        A(f"v_xor_b32 {v(vA[k])}, {k << 11:#x}, {v(vMw)}")
    A(f"s_mov_b32 {s(sRet)}, 0")

    def dma_pair(m0reg, soff):
        A(f"s_mov_b32 m0, {s(m0reg)}")
        A(f"s_nop 0")
        A(f"buffer_load_dwordx4 {v(vL16)}, {s(S_WS,4)}, {s(soff)} offen lds")
        A(f"buffer_load_dwordx4 {v(vL16)}, {s(S_WS,4)}, {s(soff)} offen offset:1024 lds")
    for _ in range(opts.get('tpre', 0)):
        A(f"s_sleep 1")
    if KP == 4:
        A(f"buffer_load_dwordx4 {v(X,4)}, {v(vL16)}, {s(S_WS,4)}, {s(sKV)} offen")
        A(f"buffer_load_dwordx4 {v(X+4,4)}, {v(vL16)}, {s(S_WS,4)}, {s(sKV)} offen offset:1024")
    if VP == 4:
        A(f"s_add_u32 {s(sT3)}, {s(sKV)}, 8192")
        A(f"buffer_load_dwordx4 {v(X+8,4)}, {v(vL16)}, {s(S_WS,4)}, {s(sT3)} offen")
        A(f"buffer_load_dwordx4 {v(X+12,4)}, {v(vL16)}, {s(S_WS,4)}, {s(sT3)} offen offset:1024")
    if KP == 1:
        dma_pair(sM0K, sKV)
        if M0TOP:
            A(f"s_mov_b32 m0, {s(sM0V)}")
    if VP == 1:
        A(f"s_add_u32 {s(sT3)}, {s(sKV)}, 8192")
        dma_pair(sM0V, sT3)
    if opts.get('rbpos', 0) == 0:
        for q in range(RBT):
            rdR('k', q >> 1, q & 1, True)
    for _ in range(opts.get('gdelay', 0)):
        A(f"s_sleep 1")
    con_issue(H0)
    for _ in range(opts.get('gspace', 1)):
        A(f"s_sleep 1")
    con_issue(H1)
    if G3:
        for _ in range(opts.get('gspace2', opts.get('gspace', 1))):
            A(f"s_sleep 1")
        con_issue(H2)
    if opts.get('rbpos', 0) == 1:
        for q in range(RBT):
            rdR('k', q >> 1, q & 1, True)
    if KP == 4 or VP == 4:
        assert not RBT and not G3
        A(f"s_waitcnt vmcnt(4)")
        if KP == 4:
            A(f"ds_write_b128 {v(vMw)}, {v(X,4)} offset:{KX_OFF - MEM_OFF}")
            A(f"ds_write_b128 {v(vMw)}, {v(X+4,4)} offset:{KX_OFF - MEM_OFF + 1024}")
        if VP == 4:
            A(f"ds_write_b128 {v(vMw)}, {v(X+8,4)} offset:{VX_OFF - MEM_OFF}")
            A(f"ds_write_b128 {v(vMw)}, {v(X+12,4)} offset:{VX_OFF - MEM_OFF + 1024}")
    A.label(Lspec)
    A(f"s_waitcnt vmcnt({4 if G3 else 2})")
    if rt:
        rstamp(6)
    A(f"ds_write_b128 {v(vMw)}, {v(H0,4)}")
    A(f"ds_write_b128 {v(vMw)}, {v(H0+4,4)} offset:1024")
    if cp:
        lstamp(A, 9)
        lstamp(A, 1)
    if rt:
        A("s_memtime s[30:31]")
    own(H0, True)
    if first:
        A.L = keepL
        own(H1, False)
    A.label(Lcommon)
    if FTR[0] == 3:
        fstamp(A, 4)
    n = 12
    for jj in range(2, 8):
        for t in range(2):
            n += 1
            if t == 0:
                lq.wait(('A', jj))
            smf('q', jj, t, AO + 4 * (jj - 2))
            if n == 13 or n >= 19:
                vdma(n)
            if n == 13:
                rdR('k', 1, 0)
            elif n == 14:
                A(f"buffer_load_dword {v(vFlag)}, off, {s(S_WS,4)}, {s(sFo)} sc1")
                rdR('k', 1, 1)
            elif n == 15:
                if not opts.get('nopf'):
                    A(f"buffer_load_dword {v(vJunk)}, {v(vPf)}, {s(S_WS,4)}, {s(sPf)} offen")
                rdR('k', 2, 0)
            elif n == 16:
                A(f"s_add_u32 {s(sT3)}, {s(sPf)}, 4096")
                rdR('k', 2, 1)
            elif n == 17:
                if not opts.get('nopf'):
                    A(f"buffer_load_dword {v(vJunk)}, {v(vPf)}, {s(S_WS,4)}, {s(sT3)} offen")
                if G3:
                    A(f"s_waitcnt vmcnt({5 if VP == 0 and VAT <= 12 else 3})")
                rdR('k', 3, 0)
                su(1)
            elif n == 18:
                if not G3 and not first:
                    A(f"s_waitcnt vmcnt({5 if VP == 0 and VAT <= 12 else 3})")
                rdR('k', 3, 1)
                su(1)
            elif 19 <= n <= 22:
                if not first:
                    rdKX((0, 4, 1, 5)[n - 19])
                su(1)
            else:
                su(3)
    if cp and not rp:
        lstamp(A, 2)

    def post(m, step):
        t, k = step // 3, step % 3
        T = AC[m] + 4 * t
        if k < 2:
            A(f"v_add_f32 {v(T + k)}, {v(T + k)}, {v(T + k + 2)}")
        else:
            d = {'q': CQ + t, 'k': CK + t, 'v': (vS0, vVM1)[t]}[m]
            A(f"v_cvt_pk_bf16_f32 {v(d)}, {v(T)}, {v(T + 1)}")
    for jj in range(2, 8):
        for t in range(2):
            n += 1
            smf('k', jj, t, AO + 4 * (jj - 2))
            vdma(n)
            if n == 31:
                lq.issue('wq', f"ds_write2st64_b32 {v(vQKw)}, {v(CQ)}, {v(CQ+1)} offset0:0 offset1:1")
            elif n == 33 and KP == 0:
                A(f"s_mov_b32 m0, {s(sM0K)}")
                A(f"s_add_u32 {s(sKn)}, {s(sKn)}, 0x80000")
            elif n == 35:
                if FTR[0] == 3:
                    fstamp(A, 6)
                lq.wait('wq')
                A(f"s_barrier")
                if FTR[0] == 3:
                    fstamp(A, 7)
            if 26 <= n <= 30:
                rdR('v', (n - 26) >> 1, (n - 26) & 1)
            elif n in (32, 33, 34):
                rdR('v', (n - 27) >> 1, (n - 27) & 1)
            if n in (31, 32):
                su(1)
            if n == opts.get('cfk', 36) and opts.get('cf') and not first:
                A(f"s_cmp_eq_u32 {s(sS)}, 63")
                A(f"s_cselect_b32 {s(sKM)}, {OOB:#x}, {s(sKM)}")
            if 25 <= n <= 30:
                post('q', n - 25)
            elif n >= 33:
                A(f"v_mov_b64 {v(ACC + 2*(n - 33), 2)}, 0")
    assert not salu
    if cp and not rp:
        lstamp(A, 3)
    QR, KR = Y, Y + 16

    def trq(i):
        ks, hf = i >> 1, i & 1
        lq.issue(('q', ks), f"ds_read_b64_tr_b16 {v(QR+4*ks+2*hf,2)}, {v(vQKr)} offset:{QK_OFF + (32*ks+8*hf)*16}")

    def trk(i):
        ks, hf = i >> 1, i & 1
        lq.issue(('k', ks), f"ds_read_b64_tr_b16 {v(KR+4*ks+2*hf,2)}, {v(vKr)} offset:{KIMG[ks] + hf*256}")
    trq_at = {38: 0, 39: 1, 40: 2, 41: 3, 42: 4, 44: 5, 45: 6, 46: 7}
    for jj in range(2, 8):
        for t in range(2):
            n += 1
            smf('v', jj, t, AO + 4 * (jj - 2))
            vdma(n)
            if n in trq_at:
                trq(trq_at[n])
            if 39 <= n <= 42 and not first:
                rdKX((2, 6, 3, 7)[n - 39])
            if n == 43:
                lq.issue('wk', f"ds_write2st64_b32 {v(vKw)}, {v(CK)}, {v(CK+1)} offset0:0 offset1:2")
            elif n == 44 and not opts.get('xnokm'):
                A(f"buffer_store_dword {v(CK)}, {v(vQKw)}, {s(S_WS,4)}, {s(sKM)} offen sc1")
            elif n == 45 and not opts.get('xnokm'):
                A(f"buffer_store_dword {v(CK+1)}, {v(vQKw)}, {s(S_WS,4)}, {s(sKM)} offen offset:256 sc1")
            elif n == 47:
                if FTR[0] == 1:
                    fstamp(A, 3)
                lq.wait('wk')
                if first:
                    if opts.get('esprof'):
                        stamp(A, 4)
                    A(f"s_waitcnt vmcnt(13)")
                    if opts.get('esprof'):
                        stamp(A, 5)
                A(f"s_barrier")
                if FTR[0] == 1:
                    fstamp(A, 4)
                trk(0)
                if first:
                    for j in (0, 4, 1, 5):
                        rdKX(j)
            elif n == 48:
                trk(1)
                if first:
                    for j in (2, 6, 3, 7):
                        rdKX(j)
                if KP == 0:
                    A(f"buffer_load_dwordx4 {v(vL16)}, {s(S_WS,4)}, {s(sKn)} offen lds")
            if 37 <= n <= 42:
                post('k', n - 37)
            if n == 42 and FTR[0] == 1:
                fstamp(A, 2)
    if cp and not rp:
        lstamp(A, 4)
    T0, T1, TM = PA, PA + 4, PA + 8
    m, t_ = vT0, vT1
    wo_ops = [(cg, 0) for cg in range(4)] + [(cg, ks) for cg in range(4) for ks in range(1, 4)]
    bufs = [X + 16, X + 24, X, X + 8, Y, Y + 8, Y + 16, Y + 24]

    WOR = [a(224, 8), a(232, 8), a(240, 8), a(248, 8), v(224, 8), v(232, 8), v(240, 8), v(248, 8)]

    AT = Y + 28
    TF = {2: X, 3: Y}
    atr = []
    trs = {u: [(cg, i) for cg in ((2, 3, 0, 1) if u == 2 else (0, 1, 2, 3)) for i in range(4)] for u in (2, 3)}

    def trW(u, cnt=1):
        for _ in range(cnt):
            if trs[u]:
                cg, i = trs[u].pop(0)
                lq.issue(('F', u, cg), f"ds_read_b64_tr_b16 {v(TF[u] + 8*cg + 2*i, 2)}, {v(AT + cg)} offset:{(u - 2) * 8192 + (8 * (i >> 1) + 2 * (i & 1)) * 256}")

    def rdW(i, half):
        if first:
            if atr:
                trW(2, 2)
            return
        o = (8 + i) * 2048 + 1024 * half
        lq.issue(('W', i), f"ds_read_b128 {v(bufs[i] + 4*half, 4)}, {v(vWo)} offset:{o}")
    for i in range(8):
        ks, t = i >> 1, i & 1
        if i in (0, 4):
            lq.wait(('q', ks + 1))
        if first:
            lq.wait(('KX', 4 * t + ks))
        T = (T0, T1)[t]
        c = "0" if ks == 0 else v(T, 4)
        A(f"v_mfma_f32_16x16x32_bf16 {v(T,4)}, {v(KXR[4*t+ks],4)}, {v(QR+4*ks,4)}, {c}")
        if i == 0 and KP == 0:
            A(f"buffer_load_dwordx4 {v(vL16)}, {s(S_WS,4)}, {s(sKn)} offen offset:1024 lds")
        if i <= 5:
            trk(i + 2)
            post('v', i)
        elif i == 6 and not opts.get('xnokm'):
            A(f"buffer_store_dword {v(vS0)}, {v(vQKw)}, {s(S_WS,4)}, {s(sKM)} offen offset:2048 sc1")
            A(f"buffer_store_dword {v(vVM1)}, {v(vQKw)}, {s(S_WS,4)}, {s(sKM)} offen offset:2304 sc1")
    if FTR[0] == 1:
        fstamp(A, 6)
    if not first:
        A(f"s_cmp_eq_u32 {s(sS)}, 63")
        A(f"s_cbranch_scc1 {Llast}")
    for ks in range(4):
        if ks in (0, 2):
            lq.wait(('k', ks + 1))
        cm = "0" if ks == 0 else v(TM, 4)
        A(f"v_mfma_f32_16x16x32_bf16 {v(TM,4)}, {v(KR+4*ks,4)}, {v(QR+4*ks,4)}, {cm}")
        rdW(ks >> 1, ks & 1)
        if ks == 1:
            A(f"v_max3_f32 {v(m)}, {v(T0)}, {v(T0+1)}, {v(T0+2)}")
        elif ks == 2:
            A(f"v_max3_f32 {v(t_)}, {v(T0+3)}, {v(T1)}, {v(T1+1)}")
        elif ks == 3:
            A(f"v_max3_f32 {v(m)}, {v(m)}, {v(T1+2)}, {v(T1+3)}")
    if first:
        A(f"s_lshl_b32 {s(sT2)}, {s(sWAVE)}, 15")
        A(f"s_add_u32 {s(sT2)}, {s(sT2)}, {WO_OFF + 16384:#x}")
        lane_expr(A, AT, vL16, [(6, 1, 256 + 64), (8, 1, 4096 + 128), (9, 1, 1024), (7, 1, 32), (4, 2, 8)], sregs=[sT2], tmp=AT + 1)
        for cg in range(1, 4):
            A(f"v_xor_b32 {v(AT + cg)}, {cg << 6:#x}, {v(AT)}")
        atr.append(1)
    if FTR[0] == 1:
        fstamp(A, 7)
    ralate = 1

    def rearm(k, now=False):
        if now and k == 2:
            A(f"buffer_store_dwordx4 {v(vSEL,4)}, {v(vMst)}, {s(S_WS,4)}, {s(sRa2)} offen{st}")
    VX0 = Y + 16
    u0, u1 = TM + 2, TM + 3
    if VP == 0:
        v2 = VAT + opts.get('vsp', 1)
        young = (3 if VAT <= 12 else 0) + (v2 <= 44) + (v2 <= 45) + 2 + (2 if KP == 0 else 0)
        assert v2 <= 47
        if not first:
            A(f"s_waitcnt vmcnt({young})")
    lq.issue('vx', f"ds_read_b128 {v(VX0,4)}, {v(vMw)} offset:{VX_OFF - MEM_OFF}")
    lq.issue('vx', f"ds_read_b128 {v(VX0+4,4)}, {v(vMw)} offset:{VX_OFF - MEM_OFF + 1024}")
    rdW(2, 0)
    rdW(2, 1)
    A(f"v_mov_b64 {v(ACC+10,2)}, 0")
    A(f"v_max3_f32 {v(m)}, {v(m)}, {v(t_)}, {v(TM)}")
    A(f"v_max_f32 {v(u0)}, {v(m)}, {v(TM+1)}")
    A(f"v_max_f32 {v(u1)}, {v(m)}, {v(TM+1)}")
    rdW(3, 0)
    A(f"v_mov_b64 {v(ACC+8,2)}, 0")
    A(f"v_permlane16_swap_b32 {v(u0)}, {v(u1)}")
    A(f"v_max_f32 {v(m)}, {v(u0)}, {v(u1)}")
    A(f"v_max_f32 {v(t_)}, {v(u0)}, {v(u1)}")
    rdW(3, 1)
    A(f"s_nop 0")
    A(f"v_permlane32_swap_b32 {v(m)}, {v(t_)}")
    A(f"v_max_f32 {v(m)}, {v(m)}, {v(t_)}")
    A(f"v_mul_f32 {v(m)}, {s(sNC)}, {v(m)}")
    BX = ACC + 12
    xs = [T0, T0 + 1, T0 + 2, T0 + 3, T1, T1 + 1, T1 + 2, T1 + 3]
    ms = [TM, TM + 1]
    if opts.get('pk', 1):
        def pkf(r):
            A(f"v_pk_fma_f32 {v(r,2)}, {v(r,2)}, {s(sC,2)}, {v(m,2)} op_sel_hi:[1,0,0]")
        pkf(T0)
        pkf(T0 + 2)
        for j in range(8):
            A(f"v_exp_f32 {v(xs[j])}, {v(xs[j])}")
            if j == 1:
                pkf(T1)
            elif j == 3:
                pkf(T1 + 2)
            elif j == 5:
                pkf(TM)
            if j >= 2 and j % 2 == 0:
                q = (j - 2) // 2
                A(f"v_cvt_pk_bf16_f32 {v(BX+q)}, {v(xs[2*q])}, {v(xs[2*q+1])}")
    else:
        for r in xs[:2]:
            A(f"v_fma_f32 {v(r)}, {v(r)}, {s(sC)}, {v(m)}")
        for j in range(8):
            A(f"v_exp_f32 {v(xs[j])}, {v(xs[j])}")
            nx = (xs + ms)[j + 2]
            A(f"v_fma_f32 {v(nx)}, {v(nx)}, {s(sC)}, {v(m)}")
            if j >= 2 and j % 2 == 0:
                q = (j - 2) // 2
                A(f"v_cvt_pk_bf16_f32 {v(BX+q)}, {v(xs[2*q])}, {v(xs[2*q+1])}")
    A(f"v_exp_f32 {v(ms[0])}, {v(ms[0])}")
    A(f"v_cvt_pk_bf16_f32 {v(BX+3)}, {v(xs[6])}, {v(xs[7])}")
    A(f"v_exp_f32 {v(ms[1])}, {v(ms[1])}")
    if cp and not rp:
        lstamp(A, 5)
    O0, O1, LS, PKO = PA, PA + 4, PA + 12, PA + 8
    lq.wait('vx')
    A(f"v_mfma_f32_16x16x32_bf16 {v(LS,4)}, {v(vONE,4)}, {v(BX,4)}, 0")
    A(f"v_cvt_pk_bf16_f32 {v(vBM)}, {v(ms[0])}, {v(ms[1])}")
    A(f"v_mfma_f32_16x16x32_bf16 {v(O0,4)}, {v(VX0,4)}, {v(BX,4)}, 0")
    rdW(4, 0)
    WE = opts.get('wearly', 0)
    A(f"v_mfma_f32_16x16x32_bf16 {v(O1,4)}, {v(VX0+4,4)}, {v(BX,4)}, 0")
    if WE:
        rdW(4, 1)
    A(f"v_mfma_f32_16x16x32_bf16 {v(LS,4)}, {v(vONE,4)}, {v(vBM,4)}, {v(LS,4)}")
    if WE:
        rdW(5, 0)
    A(f"v_mfma_f32_16x16x32_bf16 {v(O0,4)}, {v(vS0,4)}, {v(vBM,4)}, {v(O0,4)}")
    if WE:
        rdW(5, 1)
    A(f"v_mov_b64 {v(ACC+12,2)}, 0")
    A(f"v_mfma_f32_16x16x32_bf16 {v(O1,4)}, {v(vVM1,4)}, {v(vBM,4)}, {v(O1,4)}")
    if WE:
        rdW(7, 0)
    else:
        rdW(4, 1)
    if FTR[0] == 2:
        fstamp(A, 2)
    A(f"v_rcp_f32 {v(m)}, {v(LS)}")
    if WE:
        rdW(7, 1)
    else:
        rdW(5, 0)
    A(f"v_mov_b64 {v(ACC+14,2)}, 0")
    if WE == 2:
        rdW(6, 0)
        rdW(6, 1)
    if opts.get('pk', 1):
        def pkm(r):
            A(f"v_pk_mul_f32 {v(r,2)}, {v(r,2)}, {v(m,2)} op_sel_hi:[1,0]")
        pkm(O0)
        pkm(O0 + 2)
        pkm(O1)
        A(f"v_cvt_pk_bf16_f32 {v(PKO)}, {v(O0)}, {v(O0+1)}")
        pkm(O1 + 2)
        A(f"v_cvt_pk_bf16_f32 {v(PKO+1)}, {v(O0+2)}, {v(O0+3)}")
    else:
        for r in range(4):
            A(f"v_mul_f32 {v(O0+r)}, {v(O0+r)}, {v(m)}")
        A(f"v_cvt_pk_bf16_f32 {v(PKO)}, {v(O0)}, {v(O0+1)}")
        A(f"v_cvt_pk_bf16_f32 {v(PKO+1)}, {v(O0+2)}, {v(O0+3)}")
        for r in range(4):
            A(f"v_mul_f32 {v(O1+r)}, {v(O1+r)}, {v(m)}")
    A(f"v_cvt_pk_bf16_f32 {v(PKO+2)}, {v(O1)}, {v(O1+1)}")
    A(f"v_cvt_pk_bf16_f32 {v(PKO+3)}, {v(O1+2)}, {v(O1+3)}")
    if FTR[0] == 2:
        fstamp(A, 3)
    lq.issue('wo_', f"ds_write_b128 {v(vOw)}, {v(PKO,4)} offset:0")
    AOr = [PKO, PA, PA + 4, PA + 12]
    vAo = [None, vT0, vT1, vS0]
    for k in range(1, 4):
        A(f"v_xor_b32 {v(vAo[k])}, {k << 9:#x}, {v(vOw)}")
    if cp and not rp:
        lstamp(A, 6)

    def pack(cg, k):
        A(f"v_cvt_pk_bf16_f32 {v(ACC+4*cg+k)}, {v(ACC+4*cg+2*k)}, {v(ACC+4*cg+2*k+1)}")

    def tagp(cg):
        A(f"v_and_or_b32 {v(ACC+4*cg)}, {v(ACC+4*cg)}, -2, {s(sTag)}")

    def pstore(cg, st=st):
        A(f"buffer_store_dwordx2 {v(ACC+4*cg,2)}, {v(vPst)}, {s(S_WS,4)}, {s(sPc[cg]) if cg else 0} offen{st}")
    if first:
        trW(2, 16)

        def fin(r_, io):
            for hf in range(2):
                lq.issue(('fin', io), f"ds_write_b128 {v(vWo)}, {v(r_ + 4*hf, 4)} offset:{io * 2048 + 1024 * hf}")
        B1 = [224, 248, 232, 240]
        for ks in range(4):
            if ks == 3:
                A(f"s_waitcnt vmcnt(7)")
                if opts.get('esprof'):
                    stamp(A, 6)
                trW(3, 16)
            for cg in range(4):
                if ks and cg == 0:
                    lq.wait(('Ao', ks))
                if ks >= 2:
                    lq.wait(('F', ks, cg))
                B = a(224 + 8 * cg, 8) if ks == 0 else v(B1[cg], 8) if ks == 1 else v(TF[ks] + 8 * cg, 8)
                A(f"v_smfmac_f32_16x16x64_bf16 {v(ACC+4*cg,4)}, {v(AOr[ks],4)}, {B}, {v(vIdxW)}")
                if ks == 0 and cg == 1:
                    lq.wait('wo_')
                    A(f"s_barrier")
                    for k in range(1, 4):
                        lq.issue(('Ao', k), f"ds_read_b128 {v(AOr[k],4)}, {v(vAo[k])}")
                if ks == 2 and cg >= 1:
                    fin(*[(232, 10), (X + 8, 8), (X + 16, 11)][cg - 1])
        for (r_, io) in [(240, 13), (X + 24, 14), (Y + 8, 9), (Y + 16, 12), (Y + 24, 15)]:
            fin(r_, io)
            if io == 14:
                A.nop(4)
                for cg in range(4):
                    pack(cg, 0)
                    pack(cg, 1)
                    tagp(cg)
                Lsl, Lpd = A.new_label("esl"), A.new_label("epd")
                A(f"s_cmp_eq_u32 {s(sFastF)}, 1")
                if opts.get('forceslow'):
                    A(f"s_branch {Lsl}")
                A(f"s_cbranch_scc0 {Lsl}")
                for cg in range(4):
                    pstore(cg, "")
                A(f"s_branch {Lpd}")
                A.label(Lsl)
                for cg in range(4):
                    pstore(cg, " sc1")
                A.label(Lpd)
        lq.wait(('fin', 13))
        for i in range(4):
            A(f"v_mov_b64 {v(232 + 2*i, 2)}, {v(X + 2*i, 2)}")
            A(f"v_mov_b64 {v(240 + 2*i, 2)}, {v(Y + 2*i, 2)}")
        lq.wait_all()
        if opts.get('esprof'):
            stamp(A, 7)
        if opts.get('cf'):
            A(f"s_load_dwordx2 s[28:29], s[0:1], 88")
        A(f"s_cmp_eq_u32 {s(sFastF)}, 1")
        if opts.get('forceslow'):
            A(f"s_branch L_red_s")
        A(f"s_cbranch_scc0 L_red_s")
        A(f"s_branch L_red_f")
        return
    for i, (cg, ks) in enumerate(wo_ops):
        if ks:
            lq.wait(('Ao', ks))
        if i >= 8:
            lq.wait(('W', i - 8))
        A(f"v_smfmac_f32_16x16x64_bf16 {v(ACC+4*cg,4)}, {v(AOr[ks],4)}, {WOR[i] if i < 8 else v(bufs[i - 8],8)}, {v(vIdxW)}")
        if i == opts.get('obar', 1):
            lq.wait('wo_')
            A(f"s_barrier")
            if FTR[0] == 2:
                fstamp(A, 5)
            for k in range(1, 4):
                lq.issue(('Ao', k), f"ds_read_b128 {v(AOr[k],4)}, {v(vAo[k])}")
        if i == 4 and FTR[0] == 2:
            fstamp(A, 6)
        if i == 9 and FTR[0] == 2:
            fstamp(A, 7)
        if WE == 0:
            if i == 2:
                rdW(5, 1)
                rdW(6, 0)
            elif i == 3:
                rdW(6, 1)
                rdW(7, 0)
            elif i == 4:
                rdW(7, 1)
        elif WE == 1:
            if i == 2:
                rdW(6, 0)
            elif i == 3:
                rdW(6, 1)
        pst = opts.get('pst', 1)
        if pst == 1:
            if i in (11, 14):
                pstore((i - 11) // 3)
            if i in (8, 11, 14):
                pack((i - 8) // 3, 0)
            elif i in (9, 12, 15):
                pack((i - 9) // 3, 1)
            elif i in (10, 13):
                tagp((i - 10) // 3)
        elif pst == 2:
            if i in (8, 11, 14):
                pack((i - 8) // 3, 0)
                pack((i - 8) // 3, 1)
            elif i in (9, 12, 15):
                tagp((i - 9) // 3)
            elif i in (10, 13):
                pstore((i - 10) // 3)
        elif pst == 3:
            if i in (8, 11, 14):
                pack((i - 8) // 3, 0)
            elif i in (9, 12, 15):
                pack((i - 9) // 3, 1)
                tagp((i - 9) // 3)
            elif i in (10, 13):
                pstore((i - 10) // 3)
    if pst == 1:
        tagp(2)
        pstore(2)
        A(f"s_nop 5")
    else:
        pstore(2)
        A(f"s_nop 6")
    pack(3, 0)
    pack(3, 1)
    tagp(3)
    pstore(3)
    A.label(f"L_red_{tag}")
    if cp:
        lstamp(A, 7)
    Lnr = A.new_label("notred")

    def bookkeeping():
        A(f"s_add_u32 {s(sS)}, {s(sS)}, 1")
        A(f"s_add_u32 {s(sKM)}, {s(sKM)}, 0x20000")
        A(f"s_add_u32 {s(sKV)}, {s(sKV)}, 0x80000")
        A(f"s_add_u32 {s(sPf)}, {s(sPf)}, 0x80000")
        A(f"s_add_u32 {s(sJ4)}, {s(sJ4)}, 4")
        A(f"s_cmp_eq_u32 {s(sJ4)}, 20")
        A(f"s_cselect_b32 {s(sJ4)}, 0, {s(sJ4)}")
        A(f"s_addc_u32 {s(sCn)}, {s(sCn)}, 0")

    def bookkeeping2(w0=False):
        A(f"s_add_u32 {s(sFo)}, {s(sFb)}, {s(sJ4)}")
        A(f"s_cmp_lt_u32 {s(sS)}, 62")
        A(f"s_cselect_b32 {s(sNeed)}, {s(sCn)}, 0")
        if opts.get('cf') and not w0:
            A(f"s_cmp_eq_u32 {s(sS)}, 62")
            A(f"s_cselect_b32 {s(sFo)}, {WS_OF + 63 * 128:#x}, {s(sFo)}")
            A(f"s_cselect_b32 {s(sNeed)}, 32, {s(sNeed)}")
            bookkeeping3()

    def bookkeeping3():
        A(f"s_cmp_eq_u32 {s(sS)}, 63")
        A(f"s_cselect_b32 {s(sPf)}, {OOB:#x}, {s(sPf)}")
        A(f"s_cselect_b32 {s(sFo)}, {OOB:#x}, {s(sFo)}")

    def zero_acc():
        for i in range(8):
            A(f"v_mov_b64 {v(ACC+2*i,2)}, 0")
        for i in range(4):
            A(f"v_mov_b64 {v(AK+2*i,2)}, 0")

    def w1_dma():
        for _ in range(opts.get('w1d', 0)):
            A(f"s_sleep 1")
        if KP == 2:
            A(f"s_add_u32 {s(sT3)}, {s(sKV)}, 0x80000")
            dma_pair(sM0K, sT3)
            if M0TOP:
                A(f"s_mov_b32 m0, {s(sM0V)}")
        if VP == 2:
            A(f"s_add_u32 {s(sT3)}, {s(sKV)}, {0x80000 + 8192:#x}")
            dma_pair(sM0V, sT3)
    nw1 = 2 * ((KP == 2) + (VP == 2))
    if nw1 and opts.get('w1pre'):
        w1_dma()
    if opts.get('rbar', 1):
        A(f"s_barrier")
    if nw1 and not opts.get('w1pre'):
        w1_dma()
    A(f"s_cmp_lg_u32 {s(sWAVE)}, 0")
    A(f"s_cbranch_scc1 {Lnr}")
    Lred = A.new_label("red")
    Lredok = A.new_label("redok")
    RA = PA
    two = opts.get('rtwo', 0)

    if rt:
        A(f"s_memtime s[62:63]")
        A(f"s_lshl_b32 {s(sT0)}, {s(sH)}, 6")
        A(f"s_add_u32 {s(sT0)}, {s(sT0)}, {s(sS)}")
        A(f"s_lshl_b32 {s(sT0)}, {s(sT0)}, 6")
        A(f"s_add_u32 {s(sT0)}, {s(sT0)}, {WS_T + 0x10000:#x}")
        A(f"s_waitcnt lgkmcnt(0)")
        A(f"v_mov_b32 {v(vT0)}, s16")
        for k in range(1, 8):
            A(f"v_writelane_b32 {v(vT0)}, s{16 + 2*k}, {k}")
        A(f"v_writelane_b32 {v(vT0)}, s{sCP0}, 8")
        A(f"v_writelane_b32 {v(vT0)}, s{sRet}, 9")
        A(f"v_lshrrev_b32 {v(vT1)}, 2, {v(vL16)}")
        A(f"s_mov_b64 exec, 0x3ff")
        A(f"buffer_store_dword {v(vT0)}, {v(vT1)}, {s(S_WS,4)}, {s(sT0)} offen")
        A(f"s_mov_b64 exec, -1")
        A(f"s_mov_b32 s16, s62")
        A(f"s_mov_b32 {s(sCP0)}, 0")
    im0 = len(A.L)
    zero_acc()
    A(f"v_xor_b32 {v(vTagE)}, 1, {v(vTagE)}")
    bookkeeping()
    bookkeeping2(True)
    A(f"s_mov_b32 {s(sRet)}, 0")
    moved = []
    if opts.get('rmov'):
        moved = A.L[len(A.L) - opts['rmov']:]
        del A.L[len(A.L) - opts['rmov']:]
    RS = [[X + 4 * i for i in range(8)], [Y + 4 * i for i in range(6)] + [PA + 8, PA + 12]]
    mode = opts.get('rmode', 1)

    def ld(R, i):
        A(f"buffer_load_dwordx4 {v(R[i],4)}, {v(vRed)}, {s(S_WS,4)}, {0 if i < 4 else s(sSlotP4)} offen offset:{(i%4)*1024} sc1")

    def chk(R, other, cnt, first=False):
        ys = [vT0, vT1, vS0, vT1, vS0, vT1, vS0, vT1]
        if rt:
            A(f"s_add_u32 {s(sCP0)}, {s(sCP0)}, 1")
        for i in range(8):
            A(f"s_waitcnt vmcnt({cnt(i)})")
            if first and i == 0:
                rstamp(2)
            if first and i == 7:
                rstamp(3)
            c = "0" if i == 0 else v(RA, 4)
            A(f"v_mfma_f32_16x16x32_bf16 {v(RA,4)}, {v(R[i],4)}, {v(vSEL,4)}, {c}")
            if other is not None:
                ld(other, i)
            A(f"v_bitop3_b32 {v(ys[i])}, {v(R[i])}, {v(R[i]+2)}, {v(vTagE)} bitop3:0x7e")
            if i in (2, 4, 6):
                A(f"v_or3_b32 {v(vT0)}, {v(vT0)}, {v(vT1)}, {v(vS0)}")
        A(f"v_bitop3_b32 {v(vT0)}, {v(vT0)}, {v(vT1)}, 1 bitop3:0xa8")
        A(f"v_cmp_ne_u32 vcc, 0, {v(vT0)}")
    for _ in range(opts.get('rdelay', 0)):
        A(f"s_sleep 1")
    rstamp(1)
    for i in range(8):
        ld(RS[0], i)
    A.L.extend(moved)
    if mode == 3:
        red3(A, opts, RS[0], RA, ld, st, Lar, rstamp, RBT)
        return_after_red = True
    else:
        return_after_red = False
    if not return_after_red:
        Lrfail = A.new_label("rfail")
        Lredok2 = A.new_label("redok2") if RBT else Lredok
        if mode == 2:
            for _ in range(opts.get('rspace', 1)):
                A(f"s_sleep 1")
            for i in range(8):
                ld(RS[1], i)
            chk(RS[0], None, lambda i: 15 - i, True)
        elif mode == 1:
            chk(RS[0], RS[1], lambda i: 7, True)
        else:
            chk(RS[0], None, lambda i: 7 - i, True)
        A(f"s_cbranch_vccnz {Lrfail}")
        A.label(Lredok)
        rstamp(4)
        RT_ = opts.get('cf') and opts.get('rtrim', 0) and mode != 1
        if RT_:
            A(f"s_cmp_eq_u32 {s(sS)}, 63")
            A(f"s_nop 2")
        else:
            A(f"s_nop {3 if mode == 1 else 4}")
        A(f"v_cvt_pk_bf16_f32 {v(RA+4)}, {v(RA)}, {v(RA+1)}")
        A(f"v_cvt_pk_bf16_f32 {v(RA+5)}, {v(RA+2)}, {v(RA+3)}")
        A(f"buffer_store_dwordx2 {v(RA+4,2)}, {v(vMst)}, {s(S_WS,4)}, {s(sSlotM)} offen{st}")
        if opts.get('cf'):
            if not RT_:
                A(f"s_cmp_eq_u32 {s(sS)}, 63")
            A(f"s_cbranch_scc1 L_cfq0_{tag}")
        A(f"s_branch {Lar}")
        A.label(Lrfail)
        if opts.get('hist'):
            A(f"s_add_u32 {s(sCP0)}, {s(sCP0)}, 1")
        if mode == 0:
            for i in range(8):
                ld(RS[1], i)
        if mode == 2 and opts.get('rlazy'):
            chk(RS[1], None, lambda i: 7 - i)
            A(f"s_cbranch_vccz {Lredok}")
            if opts.get('hist'):
                A(f"s_add_u32 {s(sCP0)}, {s(sCP0)}, 0x1000")
            for i in range(8):
                ld(RS[0], i)
            for _ in range(opts.get('rspace', 1)):
                A(f"s_sleep 1")
            for i in range(8):
                ld(RS[1], i)
            chk(RS[0], None, lambda i: 15 - i)
            A(f"s_cbranch_vccz {Lredok}")
        A.label(Lred)
        chk(RS[1], RS[0], lambda i: 7)
        A(f"s_cbranch_vccz {Lredok2}")
        if opts.get('hist'):
            A(f"s_add_u32 {s(sCP0)}, {s(sCP0)}, {0x1000000 if opts.get('rlazy') else 0x1000}")
        chk(RS[0], RS[1], lambda i: 7)
        A(f"s_cbranch_vccz {Lredok2}")
        if opts.get('hist'):
            A(f"s_add_u32 {s(sCP0)}, {s(sCP0)}, 0x1000000")
        A(f"s_add_u32 {s(sRet)}, {s(sRet)}, 1")
        A(f"s_cmp_lg_u32 {s(sDEAD)}, 0")
        A(f"s_cbranch_scc1 {Lredok2}")
        A(f"s_cmp_lt_u32 {s(sRet)}, {RED_LIMIT}")
        A(f"s_cbranch_scc1 {Lred}")
        A(f"s_mov_b32 {s(sDEAD)}, 1")
        if RBT:
            A.label(Lredok2)
            A(f"s_waitcnt vmcnt(0)")
        A(f"s_branch {Lredok}")
    A.label(Lnr)
    Lfok = A.new_label("fok")
    Lfsp = A.new_label("fsp")
    A(f"s_mov_b32 {s(sRet)}, 0")
    A(f"s_waitcnt vmcnt({10 + (2 if KP == 0 else 0) + nw1 + (2 if VP == 0 and VAT > 12 else 0)})")
    A(f"v_readfirstlane_b32 {s(sT0)}, {v(vFlag)}")
    zero_acc()
    A(f"s_cmp_ge_u32 {s(sT0)}, {s(sNeed)}")
    A(f"s_cbranch_scc1 {Lfok}")
    A(f"s_cmp_lg_u32 {s(sDEAD)}, 0")
    A(f"s_cbranch_scc1 {Lfok}")
    A(f"s_mov_b32 {s(sRet)}, 0")
    A.label(Lfsp)
    A(f"buffer_load_dword {v(vFlag)}, off, {s(S_WS,4)}, {s(sFo)} sc1")
    A(f"s_waitcnt vmcnt(0)")
    A(f"v_readfirstlane_b32 {s(sT0)}, {v(vFlag)}")
    A(f"s_cmp_ge_u32 {s(sT0)}, {s(sNeed)}")
    A(f"s_cbranch_scc1 {Lfok}")
    A(f"s_sleep 1")
    A(f"s_add_u32 {s(sRet)}, {s(sRet)}, 1")
    A(f"s_cmp_lt_u32 {s(sRet)}, {SPIN_LIMIT}")
    A(f"s_cbranch_scc1 {Lfsp}")
    A(f"s_mov_b32 {s(sDEAD)}, 1")
    A.label(Lfok)
    if opts.get('cf'):
        A(f"s_sub_u32 {s(sT0)}, {s(sS)}, 57")
        A(f"s_cmp_lt_u32 {s(sT0)}, 6")
        A(f"s_cbranch_scc1 L_cfa_{tag}")
        A.label(f"L_cfar_{tag}")
    if TRACE[0]:
        Lsl = A.new_label("tr")
        A(f"s_cmp_lg_u32 {s(sWAVE)}, {opts.get('tw', 1)}")
        A(f"s_cbranch_scc1 {Lsl}")
        A(f"s_lshl_b32 {s(sT0)}, {s(sH)}, 6")
        A(f"s_add_u32 {s(sT0)}, {s(sT0)}, {s(sS)}")
        A(f"s_lshl_b32 {s(sT0)}, {s(sT0)}, 5")
        A(f"s_add_u32 {s(sT0)}, {s(sT0)}, {WS_T + 0x10000:#x}")
        A(f"s_waitcnt lgkmcnt(0)")
        A(f"v_mov_b32 {v(vT0)}, s16")
        for k in range(1, 8):
            A(f"v_writelane_b32 {v(vT0)}, s{16 + 2*k}, {k}")
        A(f"v_lshrrev_b32 {v(vT1)}, 2, {v(vL16)}")
        A(f"s_mov_b64 exec, 0xff")
        A(f"buffer_store_dword {v(vT0)}, {v(vT1)}, {s(S_WS,4)}, {s(sT0)} offen")
        A(f"s_mov_b64 exec, -1")
        A.label(Lsl)
    if opts.get('steplog'):
        Lsl = A.new_label("sl")
        A(f"s_cmp_lg_u32 {s(sWAVE)}, 1")
        A(f"s_cbranch_scc1 {Lsl}")
        A(f"s_memrealtime s[62:63]")
        A(f"s_memtime s[16:17]")
        A(f"s_lshl_b32 {s(sT0)}, {s(sH)}, 6")
        A(f"s_add_u32 {s(sT0)}, {s(sT0)}, {s(sS)}")
        A(f"s_lshl_b32 {s(sT0)}, {s(sT0)}, 3")
        A(f"s_add_u32 {s(sT0)}, {s(sT0)}, {WS_T + (0x30000 if opts.get('prof') else 0x8000):#x}")
        A(f"s_waitcnt lgkmcnt(0)")
        A(f"v_mov_b32 {v(vT0)}, s62")
        A(f"v_mov_b32 {v(vT1)}, s16")
        A(f"s_mov_b64 exec, 1")
        A(f"buffer_store_dwordx2 {v(vT0,2)}, off, {s(S_WS,4)}, {s(sT0)}")
        A(f"s_mov_b64 exec, -1")
        A.label(Lsl)
    bookkeeping()
    bookkeeping2()
    rearm(2, True)
    A(f"s_branch {Lar}")
    A.label(Lretry0)
    if opts.get('hist'):
        A(f"s_add_u32 {s(sCP1)}, {s(sCP1)}, 1")
    GM = opts.get('gm', 0)

    def re_issue(R):
        if GM & 1:
            A(f"s_mov_b64 exec, vcc")
        con_issue(R)
        if GM & 1:
            A(f"s_mov_b64 exec, -1")
    if GM:
        re_issue(H0)
        A(f"s_nop {3 if GM & 1 else 5}")
    else:
        A(f"s_nop 7")
    for i in range(4):
        A(f"v_mov_b64 {v(AQ+2*i,2)}, 0")
    if not GM:
        con_issue(H0)
    A(f"s_waitcnt vmcnt({4 if G3 else 2})")
    A(f"ds_write_b128 {v(vMw)}, {v(H1,4)}")
    A(f"v_max3_u32 {v(Y)}, {v(H1)}, {v(H1+2)}, {v(H1+4)}")
    A(f"ds_write_b128 {v(vMw)}, {v(H1+4,4)} offset:1024")
    A(f"v_max_u32 {v(Y)}, {v(Y)}, {v(H1+6)}")
    A(f"v_cmp_eq_u32 vcc, -1, {v(Y)}")
    A(f"s_add_u32 {s(sRet)}, {s(sRet)}, 1")
    A(f"s_cbranch_vccz {Lown[1]}")
    if opts.get('hist'):
        A(f"s_add_u32 {s(sCP1)}, {s(sCP1)}, 0x10000")
    re_issue(H1)
    if G3:
        Lown2 = f"L_own2_{tag}"
        A(f"s_waitcnt vmcnt(4)")
        A(f"ds_write_b128 {v(vMw)}, {v(H2,4)}")
        A(f"v_max3_u32 {v(Y)}, {v(H2)}, {v(H2+2)}, {v(H2+4)}")
        A(f"ds_write_b128 {v(vMw)}, {v(H2+4,4)} offset:1024")
        A(f"v_max_u32 {v(Y)}, {v(Y)}, {v(H2+6)}")
        A(f"v_cmp_eq_u32 vcc, -1, {v(Y)}")
        A(f"s_add_u32 {s(sRet)}, {s(sRet)}, 1")
        A(f"s_cbranch_vccz {Lown2}")
        con_issue(H2)
    A(f"s_cmp_lg_u32 {s(sDEAD)}, 0")
    A(f"s_cbranch_scc1 {Lown[1]}")
    A(f"s_cmp_lt_u32 {s(sRet)}, {RED_LIMIT}")
    A(f"s_cbranch_scc1 {Lspec}")
    A(f"s_mov_b32 {s(sDEAD)}, 1")
    A.label(Lown[1])
    own(H1, False)
    A(f"s_branch {Lcommon}")
    if G3:
        A.label(Lown2)
        own(H2, False)
        A(f"s_branch {Lcommon}")
    icf = len(A.L)
    if opts.get('cf'):
        cf_side(A, fast, opts, tag, Lar)
    A.label(Llast)
    if opts.get('tprof') in (1, 2):
        stamp(A, 4)
    if opts.get('cf'):
        cf_tail(A, fast, opts)
        if fast and opts.get('walk'):
            from isz import add_stubs
            add_stubs(A, icf, "cf", "L_walk_cf", "L_walk_ret", opts.get('wstep', 64))
    A(f"s_waitcnt vmcnt(0) lgkmcnt(0)")
    if opts.get('hist'):
        A(f"s_lshl_b32 {s(sT0)}, {s(sH)}, 2")
        A(f"s_add_u32 {s(sT0)}, {s(sT0)}, {s(sWAVE)}")
        A(f"s_lshl_b32 {s(sT0)}, {s(sT0)}, 3")
        A(f"s_add_u32 {s(sT0)}, {s(sT0)}, {WS_T + 0x40000:#x}")
        A(f"v_mov_b32 {v(vT0)}, {s(sCP0)}")
        A(f"v_mov_b32 {v(vT1)}, {s(sCP1)}")
        A(f"s_mov_b64 exec, 1")
        A(f"buffer_store_dwordx2 {v(vT0,2)}, off, {s(S_WS,4)}, {s(sT0)}")
        A(f"s_mov_b64 exec, -1")
        A(f"s_waitcnt vmcnt(0)")
    if fast and opts.get('cwb'):
        Lwb = A.new_label("cwb")
        A(f"s_cmp_lg_u32 {s(sWAVE)}, 0")
        A(f"s_cbranch_scc1 {Lwb}")
        A(f"buffer_wbl2 sc1")
        A(f"s_waitcnt vmcnt(0)")
        A.label(Lwb)
    if cp and not TRACE[0]:
        for i in range(1, 10):
            A(f"s_mov_b32 s{92+i}, s{16+2*(i-1) if i < 9 else 62}")
        A(f"s_lshl_b32 {s(sCP1)}, {s(sCP1)}, 16")
        A(f"s_or_b32 s92, {s(sCP0)}, {s(sCP1)}")
        A("s_branch L_flush")
    A(f"s_branch L_role_end")


def cf_qload(A):
    A(f"s_lshl_b32 {s(sT0)}, {s(sH)}, 13")
    A(f"s_lshr_b32 {s(sT1)}, {s(sWAVE)}, 1")
    A(f"s_lshl_b32 {s(sT1)}, {s(sT1)}, 12")
    A(f"s_add_u32 {s(sT0)}, {s(sT0)}, {s(sT1)}")
    A(f"s_and_b32 {s(sT1)}, {s(sWAVE)}, 1")
    A(f"s_lshl_b32 {s(sT1)}, {s(sT1)}, 7")
    A(f"s_add_u32 {s(sT0)}, {s(sT0)}, {s(sT1)}")
    A(f"s_add_u32 {s(sT0)}, {s(sT0)}, {WS_QX + 63 * 32 * 8192:#x}")
    A(f"v_and_b32 {v(vT0)}, 0x370, {v(vL16)}")
    for ks in range(4):
        A(f"buffer_load_dwordx4 {a(4*ks,4)}, {v(vT0)}, {s(S_WS,4)}, {s(sT0)} offen offset:{ks*1024}")


def cf_side(A, fast, opts, tag, Lar):
    A.label(f"L_cfa_{tag}")
    Lq = A.new_label("cfq")
    A(f"s_cmp_eq_u32 {s(sS)}, 62")
    A(f"s_cbranch_scc1 {Lq}")
    if fast and opts.get('cfpf', 1):
        A(f"s_add_u32 {s(sT0)}, {s(sS)}, 3")
        A(f"s_and_b32 {s(sT0)}, {s(sT0)}, 3")
        A(f"s_lshl_b32 {s(sT0)}, {s(sT0)}, 18")
        A(f"s_add_u32 {s(sT0)}, {s(sT0)}, {WS_PF - 8192 - 0x80000:#x}")
        A(f"s_cmp_eq_u32 {s(sS)}, 61")
        A(f"s_cselect_b32 {s(sT0)}, {WS_QX + 63 * 32 * 8192 - 8192 - 0x80000:#x}, {s(sT0)}")
        A(f"s_lshl_b32 {s(sT1)}, {s(sH)}, 13")
        A(f"s_sub_u32 {s(sT0)}, {s(sT0)}, {s(sT1)}")
        A(f"s_cmp_eq_u32 {s(sWAVE)}, 1")
        A(f"s_cselect_b32 {s(sPf)}, {s(sT0)}, {s(sPf)}")
    A(f"s_branch L_cfar_{tag}")
    A.label(Lq)
    cf_qload(A)
    A(f"s_branch L_cfar_{tag}")
    A.label(f"L_cfq0_{tag}")
    cf_qload(A)
    A(f"s_branch {Lar}")


def cf_tail(A, fast, opts):
    st = "" if fast and not opts.get('cfsc') else " sc1"
    if fast and opts.get('cfwb'):
        Lwb = A.new_label("cfwb")
        A(f"s_cmp_lg_u32 {s(sWAVE)}, 3")
        A(f"s_cbranch_scc1 {Lwb}")
        A(f"s_cmp_lg_u32 {s(sH)}, {opts.get('cfwbh', 0)}")
        A(f"s_cbranch_scc1 {Lwb}")
        A(f"buffer_wbl2 sc1")
        A.label(Lwb)
    nst = [0]

    def cst():
        if opts.get('tprof') == 3:
            A(f"s_memtime s[{64 + 2*nst[0]}:{65 + 2*nst[0]}]")
            nst[0] += 1
    cst()
    KR = Y + 16
    KXR = {0: X + 16, 4: X + 20, 1: X + 24, 5: X + 28, 2: X, 6: X + 4, 3: X + 8, 7: X + 12}
    T0, T1, TM = PA, PA + 4, PA + 8
    m, t_ = vT0, vT1
    VMX, OA, LS, BX, SEL, PK = 64, 192, ACC + 8, ACC + 12, ACC + 4, PA
    WST, VXF = 96, 160
    WA = 128
    RF = 192
    sMask, sOut = 12, 28
    u0, u1, u2, u3 = ACC, ACC + 1, ACC + 2, ACC + 3
    lq = Q(A, "lgkmcnt", 15)
    A(f"s_lshl_b32 {s(sT0)}, {s(sWAVE)}, 9")
    A(f"v_lshrrev_b32 {v(u1)}, 2, {v(vL16)}")
    A(f"v_add_u32 {v(u0)}, {s(sT0)}, {v(u1)}")
    A(f"ds_write_b32 {v(u0)}, {v(vS0)} offset:{O_OFF}")
    A(f"ds_write_b32 {v(u0)}, {v(vVM1)} offset:{O_OFF + 256}")
    A(f"v_bfe_u32 {v(u2)}, {v(vL16)}, 4, 3")
    A(f"v_lshrrev_b32 {v(u3)}, 6, {v(vL16)}")
    A(f"v_and_b32 {v(u3)}, 12, {v(u3)}")
    A(f"v_sub_u32 {v(u2)}, {v(u2)}, {v(u3)}")
    A(f"s_lshl_b32 {s(sT0)}, {s(sWAVE)}, 3")
    A(f"v_add_u32 {v(u2)}, {s(sT0)}, {v(u2)}")
    A(f"s_mov_b32 {s(sOut+2)}, {2048*1024:#x}")
    A(f"s_mov_b32 {s(sOut+3)}, 0x00020000")
    cst()
    A(f"s_waitcnt vmcnt(4) lgkmcnt(0)")
    cst()
    A(f"s_barrier")
    fill = [f"v_cmp_le_i32 {s(sMask + 2*(4*t+r), 2)}, {16*t+r}, {v(u2)}" for t in range(2) for r in range(4)]
    fill += [f"v_mov_b32 {v(VMX + 2*j + 1)}, 0" for j in range(8)]
    fill += [f"v_mov_b64 {v(WA+2*i,2)}, 0" for i in range(32)]

    def fl(n):
        for _ in range(n):
            if fill:
                A(fill.pop(0))
    rd = [('vm', f"ds_read_b32 {v(VMX + 2*j)}, {v(u1)} offset:{O_OFF + j*256}") for j in range(8)]
    rd += [('vx', f"ds_read_b128 {a(VXF + 4*j, 4)}, {v(vL16)} offset:{VX_OFF + j*1024}") for j in range(8)]
    rw = [('w', f"ds_read_b128 {a(WST + 8*i + 4*hf, 4)}, {v(vWo)} offset:{(8 + i) * 2048 + 1024 * hf}") for i in range(8) for hf in range(2)]
    for ks in range(4):
        for t in range(2):
            T = (T0, T1)[t]
            c = "0" if ks == 0 else v(T, 4)
            A(f"v_mfma_f32_16x16x32_bf16 {v(T,4)}, {v(KXR[4*t+ks],4)}, {a(4*ks,4)}, {c}")
            lq.issue(*rd.pop(0))
            fl(1)
    for ks in range(4):
        cm = "0" if ks == 0 else v(TM, 4)
        A(f"v_mfma_f32_16x16x32_bf16 {v(TM,4)}, {v(KR+4*ks,4)}, {a(4*ks,4)}, {cm}")
        if ks == 0:
            lq.wait('vm')
        lq.issue(*rd.pop(0))
        lq.issue(*rd.pop(0))
        fl(2)
    A(f"v_mov_b32 {v(u0)}, 0xff800000")
    for t in range(2):
        for r in range(4):
            A(f"v_cndmask_b32 {v(PA+4*t+r)}, {v(u0)}, {v(PA+4*t+r)}, {s(sMask+2*(4*t+r),2)}")
    A(f"v_max3_f32 {v(m)}, {v(T0)}, {v(T0+1)}, {v(T0+2)}")
    A(f"v_max3_f32 {v(t_)}, {v(T0+3)}, {v(T1)}, {v(T1+1)}")
    A(f"v_max3_f32 {v(m)}, {v(m)}, {v(T1+2)}, {v(T1+3)}")
    A(f"v_max3_f32 {v(m)}, {v(m)}, {v(t_)}, {v(TM)}")
    A(f"v_max_f32 {v(u0)}, {v(m)}, {v(TM+1)}")
    A(f"v_max_f32 {v(u3)}, {v(m)}, {v(TM+1)}")
    fl(2)
    A(f"v_permlane16_swap_b32 {v(u0)}, {v(u3)}")
    A(f"v_max_f32 {v(m)}, {v(u0)}, {v(u3)}")
    A(f"v_max_f32 {v(t_)}, {v(u0)}, {v(u3)}")
    fl(2)
    A(f"v_permlane32_swap_b32 {v(m)}, {v(t_)}")
    A(f"v_max_f32 {v(m)}, {v(m)}, {v(t_)}")
    A(f"v_mul_f32 {v(m)}, {s(sNC)}, {v(m)}")
    xs = [T0 + i for i in range(8)] + [TM, TM + 1]
    lq.wait('vx')
    for r in range(0, 10, 2):
        A(f"v_pk_fma_f32 {v(xs[r],2)}, {v(xs[r],2)}, {s(sC,2)}, {v(m,2)} op_sel_hi:[1,0,0]")
        lq.issue(*rw.pop(0))
    for k, r in enumerate(xs):
        A(f"v_exp_f32 {v(r)}, {v(r)}")
        if k >= 2 and k % 2 == 0:
            q = (k - 2) // 2
            A(f"v_cvt_pk_bf16_f32 {v(BX+q)}, {v(xs[2*q])}, {v(xs[2*q+1])}")
        if k < 8:
            lq.issue(*rw.pop(0))
    cst()
    A(f"v_mfma_f32_16x16x32_bf16 {v(LS,4)}, {v(vONE,4)}, {v(BX,4)}, 0")
    A(f"v_cvt_pk_bf16_f32 {v(vBM)}, {v(TM)}, {v(TM+1)}")
    for j in range(8):
        A(f"v_mfma_f32_16x16x32_bf16 {v(OA+4*j,4)}, {a(VXF+4*j,4)}, {v(BX,4)}, 0")
        if j == 0:
            A(f"v_and_b32 {v(u0)}, 0x1ff, {v(vOw)}")
        elif j == 1:
            A(f"v_mfma_f32_16x16x32_bf16 {v(LS,4)}, {v(vONE,4)}, {v(vBM,4)}, {v(LS,4)}")
            A(f"s_lshl_b32 {s(sT0)}, {s(sWAVE)}, 11")
            A(f"v_add_u32 {v(u0)}, {s(sT0)}, {v(u0)}")
        elif j == 5:
            A(f"v_rcp_f32 {v(m)}, {v(LS)}")
        else:
            fl(1)
        if rw:
            lq.issue(*rw.pop(0))
    assert not rw

    def norm(j, k):
        if k < 2:
            A(f"v_pk_mul_f32 {v(OA+4*j+2*k,2)}, {v(OA+4*j+2*k,2)}, {v(m,2)} op_sel_hi:[1,0]")
        else:
            A(f"v_cvt_pk_bf16_f32 {v(PK+2*j+k-2)}, {v(OA+4*j+2*(k-2))}, {v(OA+4*j+2*(k-2)+1)}")
    todo = []
    for j in range(8):
        A(f"v_mfma_f32_16x16x32_bf16 {v(OA+4*j,4)}, {v(VMX+2*j,4)}, {v(vBM,4)}, {v(OA+4*j,4)}")
        if j >= 3:
            todo += [(j - 3, k) for k in range(4)]
        for _ in range(2):
            if todo:
                norm(*todo.pop(0))
            else:
                fl(1)
    todo += [(j, k) for j in range(5, 8) for k in range(4)]
    wrote = 0
    for q, (j, k) in enumerate(todo):
        if j == 7 and k == 0:
            fl(2)
        norm(j, k)
        if k == 3 and j % 2 == 1:
            while wrote <= j // 2:
                lq.issue('ow', f"ds_write_b128 {v(u0)}, {v(PK+4*wrote,4)} offset:{MEM_OFF + wrote*512}")
                wrote += 1
    assert wrote == 4
    vAo = [vOw, u2, u3, u1]
    for k in range(1, 4):
        A(f"v_xor_b32 {v(vAo[k])}, {k << 9:#x}, {v(vOw)}")
    fl(99)
    lq.wait_all()
    A(f"s_barrier")
    cst()
    wo_idx = [(cg, 0) for cg in range(4)] + [(cg, ks) for cg in range(4) for ks in range(1, 4)]
    WOR = [a(224, 8), a(232, 8), a(240, 8), a(248, 8), v(224, 8), v(232, 8), v(240, 8), v(248, 8)]
    order = [(cg, ks) for ks in range(4) for cg in range(4)]

    def rdA(gam, ks):
        lq.issue(('A', gam, ks), f"ds_read_b128 {v(32 + 16*gam + 4*ks, 4)}, {v(vAo[ks])} offset:{MEM_OFF - O_OFF + gam*2048}")
    for gam in range(2):
        for ks in range(4):
            rdA(gam, ks)
    soff = [sT0, sT1, sT2, sT3]
    vq = Q(A, "vmcnt", 63)

    def post(gam, i):
        cg, k = i // 4, i % 4
        R = WA + 16 * gam + 4 * cg
        if k == 0:
            A(f"s_mov_b32 {s(soff[cg])}, {WS_PF + gam * 0x40000 + cg * 16384:#x}")
            A(f"v_cvt_pk_bf16_f32 {v(R)}, {v(R)}, {v(R+1)}")
        elif k == 1:
            A(f"v_cvt_pk_bf16_f32 {v(R+1)}, {v(R+2)}, {v(R+3)}")
        elif k == 2:
            A(f"v_or_b32 {v(R)}, 1, {v(R)}")
        else:
            vq.issue('p', f"buffer_store_dwordx2 {v(R,2)}, {v(vPst)}, {s(S_WS,4)}, {s(soff[cg])} offen{st}")
    sPo, sPo4, sOo = sRa2, sCn, sNeed
    f0 = [f"v_bfe_u32 {v(t_)}, {v(vL16)}, 4, 4",
          f"v_and_b32 {v(m)}, 1, {v(t_)}",
          f"v_lshlrev_b32 {v(m)}, 4, {v(m)}",
          f"v_lshlrev_b32 {v(m)}, {v(m)}, {v(SEL)}",
          f"v_lshrrev_b32 {v(t_)}, 1, {v(t_)}"]
    for i in range(4):
        f0 += [f"v_cmp_eq_u32 vcc, {i}, {v(t_)}", f"v_cndmask_b32 {v(SEL+i)}, 0, {v(m)}, vcc"]
    A(f"v_mov_b32 {v(SEL)}, 0x3f80")
    f1 = [f"v_and_b32 {v(LS)}, 0x70, {v(vL16)}",
          f"v_lshrrev_b32 {v(LS+1)}, 2, {v(LS)}",
          f"v_lshlrev_b32 {v(LS)}, 7, {v(LS)}",
          f"v_lshrrev_b32 {v(LS+2)}, 8, {v(vL16)}",
          f"v_lshlrev_b32 {v(LS+2)}, 4, {v(LS+2)}",
          f"v_add_u32 {v(LS)}, {v(LS)}, {v(LS+2)}"]
    RS = [RF + 4 * i for i in range(8)]

    def ld(i):
        vq.issue(('r', i), f"buffer_load_dwordx4 {v(RS[i],4)}, {v(vRed)}, {s(S_WS,4)}, {s(sPo if i < 4 else sPo4)} offen offset:{(i%4)*1024} sc1")

    def group(gam, polls=False):
        for i, (cg, ks) in enumerate(order):
            lq.wait(('A', gam, ks))
            io = wo_idx.index((cg, ks))
            B = WOR[io] if io < 8 else a(WST + 8 * (io - 8), 8)
            A(f"v_smfmac_f32_16x16x64_bf16 {v(WA+16*gam+4*cg,4)}, {v(32 + 16*gam + 4*ks, 4)}, {B}, {v(vIdxW)}")
            if gam < 2 and i in (4, 6, 8, 10):
                rdA(gam + 2, (i - 4) // 2)
            if gam == 0:
                if f0:
                    A(f0.pop(0))
                elif f1:
                    A(f1.pop(0))
            else:
                if i >= 2:
                    post(gam - 1, i - 2)
                if i == 15:
                    post(gam - 1, 14)
                    post(gam - 1, 15)
            if gam == 1 and i == 0:
                while f1:
                    A(f1.pop(0)) if i == 0 else None
            if polls and i % 2 == 0:
                ld(i // 2)
    group(0)
    while f1:
        A(f1.pop(0))
    A(f"s_lshl_b32 {s(sPo)}, {s(sWAVE)}, 5")
    A(f"s_add_u32 {s(sPo)}, {s(sPo)}, {WS_G + 63 * 128:#x}")
    vq.issue('g', f"buffer_load_dword {a(84)}, {v(LS+1)}, {s(S_WS,4)}, {s(sPo)} offen")
    A(f"s_lshl_b32 {s(sPo)}, {s(sWAVE)}, 14")
    A(f"s_lshl_b32 {s(sPo4)}, {s(sH)}, 6")
    A(f"s_add_u32 {s(sPo)}, {s(sPo)}, {s(sPo4)}")
    A(f"s_add_u32 {s(sPo)}, {s(sPo)}, {WS_B63:#x}")
    vq.issue('g', f"buffer_load_dwordx4 {a(80,4)}, {v(LS,4 if False else 1)}, {s(S_WS,4)}, {s(sPo)} offen")
    group(1)
    A(f"s_lshl_b32 {s(sPo)}, {s(sWAVE)}, 18")
    A(f"s_add_u32 {s(sPo)}, {s(sPo)}, {WS_PF:#x}")
    A(f"s_add_u32 {s(sPo4)}, {s(sPo)}, 4096")
    group(2)
    A(f"v_bfe_u32 {v(u0)}, {v(vL16)}, 4, 4")
    A(f"v_lshlrev_b32 {v(u1)}, 10, {v(u0)}")
    A(f"v_lshrrev_b32 {v(u0)}, 3, {v(u0)}")
    A(f"v_lshlrev_b32 {v(u0)}, 30, {v(u0)}")
    A(f"v_add_u32 {v(u1)}, {v(u1)}, {v(u0)}")
    A(f"v_lshrrev_b32 {v(u0)}, 8, {v(vL16)}")
    A(f"v_lshlrev_b32 {v(u0)}, 3, {v(u0)}")
    A(f"v_add_u32 {v(u1)}, {v(u1)}, {v(u0)}")
    A(f"s_lshl_b32 {s(sOo)}, {s(sWAVE)}, 13")
    A(f"s_lshl_b32 {s(sRet)}, {s(sH)}, 5")
    A(f"s_add_u32 {s(sOo)}, {s(sOo)}, {s(sRet)}")
    A(f"s_add_u32 {s(sOo)}, {s(sOo)}, {63 * 32 * 1024:#x}")
    A(f"s_mov_b32 {s(sRet)}, 0")
    RA = PA
    Lb, Lp, Lok, Lchk, Lw3 = (A.new_label(x) for x in ("cfb", "cfp", "cfok", "cfchk", "cfw3"))

    def final_posts():
        cst()
        A.nop(4)
        for i in range(16):
            post(3, i)
            if i % 4 == 0:
                A.nop(1)
        cst()

    def chk(cnt):
        for i in range(8):
            A(f"s_waitcnt vmcnt({cnt(i)})")
            c = "0" if i == 0 else v(RA, 4)
            A(f"v_mfma_f32_16x16x32_bf16 {v(RA,4)}, {v(RS[i],4)}, {v(SEL,4)}, {c}")
            if i == 0:
                A(f"v_and_b32 {v(m)}, {v(RS[i])}, {v(RS[i]+2)}")
            else:
                A(f"v_bitop3_b32 {v(m)}, {v(m)}, {v(RS[i])}, {v(RS[i]+2)} bitop3:0x80")
        A(f"v_and_b32 {v(m)}, 1, {v(m)}")
        A(f"v_cmp_ne_u32 vcc, 1, {v(m)}")
    A(f"s_cmp_ge_u32 {s(sWAVE)}, 2")
    A(f"s_cbranch_scc1 {Lb}")
    save = (list(vq.ops), list(lq.ops), nst[0])
    group(3, True)
    final_posts()
    young = [len(vq.ops) - 1 - vq.ops.index(('r', i)) for i in range(8)]
    chk(lambda i: young[i])
    A(f"s_cbranch_vccz {Lok}")
    A(f"s_branch {Lp}")
    A.label(Lb)
    vq.ops, lq.ops, nst[0] = save
    group(3)
    final_posts()
    A(f"s_cmp_eq_u32 {s(sWAVE)}, 2")
    A(f"s_cbranch_scc1 {Lp}")
    for _ in range(opts.get('cfd', 3)):
        A(f"s_sleep 1")
    A.label(Lp)
    for i in range(8):
        ld(i)
    chk(lambda i: 7 - i)
    A(f"s_cbranch_vccz {Lok}")
    A(f"s_add_u32 {s(sRet)}, {s(sRet)}, 1")
    A(f"s_cmp_lg_u32 {s(sDEAD)}, 0")
    A(f"s_cbranch_scc1 {Lok}")
    A(f"s_cmp_lt_u32 {s(sRet)}, {RED_LIMIT}")
    A(f"s_cbranch_scc1 {Lp}")
    A(f"s_mov_b32 {s(sDEAD)}, 1")
    A.label(Lok)
    cst()
    BG = PA + 8
    for r in range(5):
        A(f"v_accvgpr_read_b32 {v(BG+r)}, {a(80+r)}")
    for r in range(4):
        A(f"v_sub_f32 {v(RA+r)}, {v(RA+r)}, {v(BG+r)}")
    for r in range(4):
        A(f"v_fma_f32 {v(RA+r)}, {v(RA+r)}, {v(BG+4)}, {v(BG+r)}")
    A(f"v_cvt_pk_bf16_f32 {v(RA+4)}, {v(RA)}, {v(RA+1)}")
    A(f"v_cvt_pk_bf16_f32 {v(RA+5)}, {v(RA+2)}, {v(RA+3)}")
    A(f"buffer_store_dwordx2 {v(RA+4,2)}, {v(u1)}, {s(sOut,4)}, {s(sOo)} offen")
    if opts.get('tprof') == 3:
        A(f"s_waitcnt vmcnt(0)")
        cst()
        A(f"s_waitcnt lgkmcnt(0)")
        for k in range(1, 10):
            A(f"s_sub_u32 s{92 + k - 1}, s{64 + 2*k}, s64")
        A(f"s_mov_b32 s101, {s(sRet)}")
        A(f"s_branch L_flush")


def kv_polls(A):
    for j in range(2):
        Lp = A.new_label("kvp")
        Ld = A.new_label("kvd")
        A(f"s_mov_b32 {s(sRet)}, 0")
        A(f"s_cmp_lg_u32 {s(sDEAD)}, 0")
        A(f"s_cbranch_scc1 {Ld}")
        A.label(Lp)
        A(f"buffer_load_dword {v(vFlag)}, off, {s(S_WS,4)}, {s(sT5)} offset:{4*j} sc1")
        A(f"s_waitcnt vmcnt(0)")
        A(f"v_readfirstlane_b32 {s(sT0)}, {v(vFlag)}")
        A(f"s_cmp_ge_u32 {s(sT0)}, 1")
        A(f"s_cbranch_scc1 {Ld}")
        A(f"s_sleep 1")
        A(f"s_add_u32 {s(sRet)}, {s(sRet)}, 1")
        A(f"s_cmp_lt_u32 {s(sRet)}, {SPIN_LIMIT}")
        A(f"s_cbranch_scc1 {Lp}")
        A(f"s_mov_b32 {s(sDEAD)}, 1")
        A.label(Ld)


def fb_consts(A):
    A(f"s_cmp_eq_u32 {s(sWAVE)}, 0")
    A(f"s_cselect_b32 {s(sFb)}, {OOB:#x}, {s(sT5)}")
    A(f"s_add_u32 {s(sFo)}, {s(sFb)}, 8")


def gen_late_start(A, opts, vL):
    mk_srd(A, S_A, P_MEM0, 8192)
    A(f"s_lshl_b32 {s(sT0)}, {s(sWAVE)}, 8")
    lane_expr(A, vT0, vL, [(2, 2, 2048), (0, 1, 1024), (1, 1, 64), (4, 2, 16)], sregs=[sT0])
    A(f"buffer_load_dwordx4 {v(X+24,4)}, {v(vT0)}, {s(S_A,4)}, 0 offen")
    A(f"buffer_load_dwordx4 {v(X+28,4)}, {v(vT0)}, {s(S_A,4)}, 0 offen offset:128")
    A(f"s_waitcnt vmcnt(0)")
    A(f"ds_write_b128 {v(vMw)}, {v(X+24,4)}")
    A(f"ds_write_b128 {v(vMw)}, {v(X+28,4)} offset:1024")
    for i in range(16):
        A(f"v_mov_b32 {v(ACC+i)}, 0")
    for i in range(8):
        A(f"v_mov_b32 {v(Y+24+i)}, 0")
    fb_consts(A)
    A(f"v_mov_b32 {v(vT1)}, 0")
    A(f"s_mov_b32 {s(sT2)}, {D_CHECKIN*4}")
    A(f"s_mov_b32 {s(sT3)}, 0")
    wait_byte(A, vFlag, vT1, sT2, sT3, 32, "ci", sleep=1)
    A(f"buffer_load_dword {v(vFlag)}, {v(vT1)}, {s(S_DBG,4)}, 0 offen offset:{D_CHECKIN*4} sc1")
    A(f"s_getreg_b32 {s(sT0)}, hwreg(HW_REG_XCC_ID, 0, 4)")
    A(f"s_mul_i32 {s(sT1)}, {s(sT0)}, {s(sT0)}")
    A(f"s_lshl_b32 {s(sT1)}, {s(sT1)}, 22")
    A(f"s_lshl_b32 {s(sT0)}, {s(sT0)}, 13")
    A(f"s_add_u32 {s(sT0)}, {s(sT0)}, {s(sT1)}")
    A(f"s_add_u32 {s(sT0)}, {s(sT0)}, 32")
    A(f"s_waitcnt vmcnt(0)")
    A(f"v_readfirstlane_b32 {s(sT1)}, {v(vFlag)}")
    A(f"s_cmp_eq_u32 {s(sT0)}, {s(sT1)}")
    A(f"s_cselect_b32 {s(sFastF)}, 1, 0")
    kv_polls(A)
    A(f"s_mov_b32 m0, {s(sM0K)}")
    A(f"s_nop 0")
    for i in range(2):
        A(f"buffer_load_dwordx4 {v(vL16)}, {s(S_WS,4)}, {s(sKn)} offen offset:{1024*i} lds")


def gen_chain(A, opts):
    global RT
    RT = bool(opts.get('rt'))
    CSTEP[0] = opts.get('cstep', 39)
    TRACE[0] = bool(opts.get('trace'))
    FTR[0] = opts.get('ftr', 0)
    vL = 13
    A(f"s_xor_b32 {s(sH)}, {s(sIDX)}, {opts.get('hperm', 0)}")
    A(f"v_and_b32 {v(vL)}, 63, v0")
    if not opts.get('kw'):
        mk_srd(A, S_A, P_WQ, 512 * 8192)
        mk_srd(A, S_B, P_WK, 512 * 8192)
        mk_srd(A, S_C, P_WV, 512 * 8192)
        mk_srd(A, S_D, P_WO, 4096 * 1024)
    A(f"v_lshlrev_b32 {v(vL16)}, 4, {v(vL)}")
    if opts.get('walk') == 1:
        A(f"s_mov_b64 exec, 0")
        A(f"s_branch L_walk_cf")
        A.label("L_walk_ret")
        A(f"s_mov_b64 exec, -1")
    vMre = 2
    vG, vGo, vSW, vSWo, vTRb, vTRo, vTA = 116, 117, 118, 122, 124, 125, 126
    POOL = [40, 72]
    TEMPS = [104, 32]
    sXo = sRo + 1
    A(f"s_lshl_b32 {s(sT0)}, {s(sH)}, 8")
    A(f"s_lshl_b32 {s(sT1)}, {s(sWAVE)}, 20")
    A(f"s_add_u32 {s(sT0)}, {s(sT0)}, {s(sT1)}")
    lane_expr(A, vG, vL, [(4, 2, 8192), (0, 4, 16)], sregs=[sT0])
    A(f"s_lshl_b32 {s(sT0)}, {s(sH)}, 17")
    A(f"s_lshl_b32 {s(sT1)}, {s(sWAVE)}, 8")
    A(f"s_add_u32 {s(sT0)}, {s(sT0)}, {s(sT1)}")
    lane_expr(A, vGo, vL, [(4, 2, 1024), (0, 4, 16)], sregs=[sT0])

    RIDX = {0: 0, 1: 1, 4: 2, 5: 3, 6: 4, 7: 5}
    wo_ops = [(cg, 0) for cg in range(4)] + [(cg, ks) for cg in range(4) for ks in range(1, 4)]
    WORR = [('a', 224), ('a', 232), ('a', 240), ('a', 248), ('v', 224), ('v', 232), ('v', 240), ('v', 248)]

    def arm(part=3):
        Z = 20
        if part & 1:
            for i in range(4):
                A(f"v_mov_b32 {v(vSEL+i)}, -1")
            A(f"v_bfe_u32 {v(vT0)}, {v(vL)}, 4, 1")
            for i in range(4):
                A(f"v_xor_b32 {v(ACC+i)}, -1, {v(vT0)}")
            A(f"s_lshl_b32 {s(sT2)}, {s(sH)}, 8")
            A(f"v_add_u32 {v(vT0)}, {s(sT2)}, {v(vL16)}")
            A(f"v_cmp_gt_u32 vcc, 16, {v(vL)}")
            A(f"v_mov_b32 {v(vT1)}, {OOB:#x}")
            A.nop(1)
            A(f"v_cndmask_b32 {v(vMre)}, {v(vT1)}, {v(vT0)}, vcc")
            for i in range(4):
                A(f"v_mov_b32 {v(Z+i)}, 0")
            A(f"v_cndmask_b32 {v(Z+4)}, {v(vT1)}, {v(vL16)}, vcc")
            A(f"v_cmp_gt_u32 vcc, 8, {v(vL)}")
            A.nop(2)
            A(f"v_cndmask_b32 {v(Z+5)}, {v(vT1)}, {v(vL16)}, vcc")
        if part & 2:
            A(f"s_lshl_b32 {s(sT0)}, {s(sH)}, 13")
            A(f"s_lshl_b32 {s(sT1)}, {s(sWAVE)}, 11")
            A(f"s_add_u32 {s(sT0)}, {s(sT0)}, {s(sT1)}")
            vq.issue('st', f"buffer_store_dwordx4 {v(ACC,4)}, {v(vL16)}, {s(S_WS,4)}, {s(sT0)} offen sc1")
            vq.issue('st', f"buffer_store_dwordx4 {v(ACC,4)}, {v(vL16)}, {s(S_WS,4)}, {s(sT0)} offen offset:1024 sc1")
            for sl in range(4):
                A(f"s_mov_b32 {s(sT1)}, {WS_M + sl*8192:#x}")
                vq.issue('st', f"buffer_store_dwordx4 {v(vSEL,4)}, {v(vMre)}, {s(S_WS,4)}, {s(sT1)} offen sc1")
            A(f"s_lshl_b32 {s(sT1)}, {s(sH)}, 8")
            A(f"s_add_u32 {s(sT1)}, {s(sT1)}, {WS_OF:#x}")
            vq.issue('st', f"buffer_store_dwordx4 {v(Z,4)}, {v(Z+4)}, {s(S_WS,4)}, {s(sT1)} offen sc1")
            A(f"s_lshl_b32 {s(sT1)}, {s(sH)}, 7")
            A(f"s_add_u32 {s(sT1)}, {s(sT1)}, {WS_KVF:#x}")
            vq.issue('st', f"buffer_store_dwordx4 {v(Z,4)}, {v(Z+5)}, {s(S_WS,4)}, {s(sT1)} offen sc1")
    KW = opts.get('kw', 0)
    if KW:
        assert not opts.get('armlate', 1)
        arm(1)
        G.karg_ready(A, opts, [(S_D, P_WO, 4096 * 1024), (S_A, P_WQ, 512 * 8192), (S_B, P_WK, 512 * 8192), (S_C, P_WV, 512 * 8192)])
    A(f"s_lshl_b32 {s(sXo)}, {s(sWAVE)}, 15")

    def qkv_unit(m, hp, x):
        u = dict(kind='qkv', m=m, hp=hp, x=x, srd={'q': S_A, 'k': S_B, 'v': S_C}[m], needs_temp=(m != 'q'))
        u['soff'] = [(64 * hp + 16 * x + 4 * (k & 3) + 32 * (k >> 2)) * 8192 for k in range(8)]
        return u

    def bind(u, temp):
        if u['kind'] == 'qkv':
            m, hp, x = u['m'], u['hp'], u['x']
            res = []
            for i in range(4):
                sl = hp + 2 * i
                for t_ in range(2):
                    if m == 'q':
                        res.append((('a', 16 * sl + 8 * t_ + 4 * x), None))
                    elif sl in (2, 3):
                        fi = (0 if m == 'k' else 4) + 2 * (sl - 2) + t_
                        res.append((('v', temp + 4 * t_), fi * 2048 + 1024 * x))
                    else:
                        res.append(((('a' if m == 'k' else 'v'), 128 + 16 * RIDX[sl] + 8 * t_ + 4 * x), None))
            u['raw'] = [r[0] for r in res]
            u['res'] = res
        else:
            u['raw'] = [('v', temp + 4 * k) for k in range(8)]

    def wo_unit(ks):
        return dict(kind='wo', ks=ks, srd=S_D, soff=[(32 * ks + 4 * k) * 1024 for k in range(8)])
    U = {f"O{k}": wo_unit(k) for k in range(4)}
    for m in 'qkv':
        for hp in range(2):
            for x in range(2):
                U[f"{m.upper()}{hp}{x}"] = qkv_unit(m, hp, x)
    order = {0: "O0 O1 Q00 Q01 Q10 Q11 O2 O3 K00 K01 K10 K11 V00 V01 V10 V11",
             1: "Q00 Q01 Q10 Q11 O0 O1 K00 K01 O2 O3 K10 K11 V00 V01 V10 V11",
             2: "K00 K01 Q00 Q01 Q10 Q11 O0 O1 K10 K11 O2 O3 V00 V01 V10 V11",
             3: "O0 O1 Q00 Q01 Q10 Q11 O2 O3 V00 V01 V10 V11 K00 K01 K10 K11",
             4: "K00 K01 K10 K11 V00 V01 V10 V11 Q00 Q01 Q10 Q11 O0 O1 O2 O3",
             5: "K00 K01 K10 K11 V00 V01 V10 V11 Q00 O0 Q01 O1 Q10 O2 Q11 O3",
             6: "O0 O1 K00 K01 K10 K11 V00 V01 V10 V11 Q00 O2 Q01 O3 Q10 Q11",
             8: "K00 K01 K10 K11 V00 V01 V10 V11 O0 O1 O2 O3 Q00 Q01 Q10 Q11",
             9: "O0 O1 O2 O3 K00 K01 K10 K11 V00 V01 V10 V11 Q00 Q01 Q10 Q11",
             10: "O0 O1 O2 O3 Q00 Q01 Q10 Q11 K00 K01 K10 K11 V00 V01 V10 V11",
             11: "O0 O1 O2 K00 K01 K10 K11 V00 V01 V10 V11 Q00 Q01 Q10 Q11 O3",
             12: "O0 O1 K00 K01 K10 K11 V00 V01 V10 V11 Q00 Q01 Q10 Q11 O2 O3",
             7: "K00 K01 K10 K11 O0 V00 V01 O1 V10 V11 Q00 O2 Q01 O3 Q10 Q11",
             13: "O0 O1 Q00 Q01 Q10 Q11 K00 K01 K10 K11 V00 V01 V10 V11 D2",
             14: "Q00 Q01 Q10 Q11 O0 O1 K00 K01 K10 K11 V00 V01 V10 V11 D2",
             15: "Q00 Q01 Q10 Q11 K00 K01 K10 K11 O0 O1 V00 V01 V10 V11 D2",
             16: "O0 O1 K00 K01 K10 K11 Q00 Q01 Q10 Q11 V00 V01 V10 V11 D2"}[opts.get('word', 0)].split()
    ES = opts.get('es', 0)
    assert bool(ES) == (order[-1] == 'D2')
    sDm = sRo + 2
    for k_ in (2, 3):
        U[f"D{k_}"] = dict(wo_unit(k_), kind='dma')
    PARK = {10: ('v', 232), 13: ('v', 240)} if ES else {}

    def dma_unit(u, vq):
        for k in range(8):
            A(f"s_add_u32 m0, {s(sDm)}, {(u['ks'] - 2) * 8192 + k * 1024:#x}")
            A(f"s_xor_b32 {s(sT0)}, {u['soff'][k]:#x}, {s(sXo)}")
            vq.issue(id(u), f"buffer_load_dwordx4 {v((vGo, vSWo + 1)[k >> 2])}, {s(u['srd'],4)}, {s(sT0)} offen lds" + WPOL[opts.get('wnto', 0)])
    units = [U[n] for n in order]
    for n_ in U:
        U[n_]['name'] = n_
    CPN = opts.get('cpx', 0)
    cpu_ = [n_ for n_ in order if n_[0] in 'QKV']
    cpu_ = (cpu_[:CPN] if opts.get('cpfirst') else cpu_[-CPN:]) if CPN else []
    WS_CP = opts.get('cpbase', G.WS_CP)
    vCp, sCpB = 127, sU
    sSlowH = sU + 1
    if opts.get('cwsm'):
        A(f"s_and_b32 {s(sT0)}, {s(sH)}, 3")
        A(f"s_cmp_eq_u32 {s(sT0)}, {opts.get('cph', 1)}")
        A(f"s_cselect_b32 {s(sSlowH)}, 1, 0")
    if CPN:
        A(f"s_and_b32 {s(sT0)}, {s(sH)}, 3")
        A(f"s_lshr_b32 {s(sT1)}, {s(sH)}, 2")
        A(f"s_mul_i32 {s(sT1)}, {s(sT1)}, {CPN * 32 * 2048}")
        A(f"s_lshl_b32 {s(sT2)}, {s(sWAVE)}, 14")
        A(f"s_add_u32 {s(sT1)}, {s(sT1)}, {s(sT2)}")
        A(f"s_add_u32 {s(sT1)}, {s(sT1)}, {WS_CP:#x}")
        A(f"s_cmp_eq_u32 {s(sT0)}, {opts.get('cph', 1)}")
        A(f"s_cselect_b32 {s(sCpB)}, {s(sT1)}, 0")
        lane_expr(A, vCp, vL, [(4, 2, 256), (0, 4, 16)])
        A(f"v_cmp_lt_u32 vcc, 15, {v(vL)}")
        A(f"v_add_u32 {v(vT0)}, 256, {v(vCp)}")
        A.nop(1)
        A(f"v_cndmask_b32 {v(vCp)}, {v(vCp)}, {v(vT0)}, vcc")
    vq = Q(A, "vmcnt", 63)
    nst = 8
    ARMLATE = opts.get('armlate', 1)
    if not ARMLATE:
        arm(2 if KW else 3)
    busy = set()
    TPREF = [40, 48, 56, 64, 104, 32, 72, 80, 88, 96]
    PPREF = [72, 40]

    def alloc_temp():
        for g in TPREF:
            if g not in busy:
                busy.add(g)
                return g
        return None

    def alloc_pool():
        for p in PPREF:
            gs = [p + 8 * j for j in range(4)]
            if not any(g in busy for g in gs):
                busy.update(gs)
                return p
        return None
    held = {}
    WIN = opts.get('cwin', 56)
    st_ = dict(issued=0)

    def inflight():
        return len(vq.ops)

    EARLY = opts.get('early', 1)
    vEK, vEM, vEF, vEC, vEA = 104, 32, 112, 114, 115
    vEV = 96
    DMI = opts.get('vpos', 0) != 0

    def early_issue():
        assert 104 not in busy and 32 not in busy
        busy.update((104, 32))
        if DMI:
            assert vEV not in busy
            busy.add(vEV)
        mk_srd(A, S_X, P_MEM0, 8192)
        A(f"s_lshl_b32 {s(sT0)}, {s(sWAVE)}, 8")
        lane_expr(A, vEA, vL, [(2, 2, 2048), (0, 1, 1024), (1, 1, 64), (4, 2, 16)], sregs=[sT0])
        vq.issue('fl', f"buffer_load_dwordx2 {v(vEF,2)}, off, {s(S_WS,4)}, {s(sT5)} sc1")
        vq.issue('ci', f"buffer_load_dword {v(vEC)}, off, {s(S_DBG,4)}, 0 offset:{D_CHECKIN*4} sc1")
        vq.issue('m0', f"buffer_load_dwordx4 {v(vEM,4)}, {v(vEA)}, {s(S_X,4)}, 0 offen")
        vq.issue('m0', f"buffer_load_dwordx4 {v(vEM+4,4)}, {v(vEA)}, {s(S_X,4)}, 0 offen offset:128")

    def early_k():
        vq.wait('fl')
        A(f"v_min_u32 {v(vEF)}, {v(vEF)}, {v(vEF+1)}")
        A.nop(1)
        A(f"v_readfirstlane_b32 {s(sT0)}, {v(vEF)}")
        A(f"s_cmp_ge_u32 {s(sT0)}, 1")
        A(f"s_cselect_b32 {s(sKok)}, 1, 0")
        A(f"s_cselect_b32 {s(sT1)}, {s(sKn)}, {OOB:#x}")
        vq.issue('kx', f"buffer_load_dwordx4 {v(vEK,4)}, {v(vL16)}, {s(S_WS,4)}, {s(sT1)} offen")
        vq.issue('kx', f"buffer_load_dwordx4 {v(vEK+4,4)}, {v(vL16)}, {s(S_WS,4)}, {s(sT1)} offen offset:1024")
        if DMI:
            A(f"s_add_u32 {s(sT1)}, {s(sT1)}, 8192")
            vq.issue('kx', f"buffer_load_dwordx4 {v(vEV,4)}, {v(vL16)}, {s(S_WS,4)}, {s(sT1)} offen")
            vq.issue('kx', f"buffer_load_dwordx4 {v(vEV+4,4)}, {v(vL16)}, {s(S_WS,4)}, {s(sT1)} offen offset:1024")

    def try_issue():
        while st_['issued'] < len(units):
            u = units[st_['issued']]
            limit = min(WIN + (nst if 'st' in vq.ops else 0), 62)
            if EARLY and st_['issued'] == len(units) - 1 - (opts.get('esfl', 1) if ES else 0) and not st_.get('early'):
                if inflight() + 8 > limit or 104 in busy or 32 in busy or (DMI and vEV in busy):
                    return
                early_issue()
                st_['early'] = True
                limit += 4
            elif EARLY and st_.get('early'):
                limit += 4
            if inflight() + 8 > limit:
                return
            if u['kind'] == 'wo':
                tmp = alloc_pool()
                if tmp is None:
                    return
                held[id(u)] = ('pool', tmp)
            elif u['kind'] == 'dma':
                assert st_.get('o1')
                tmp = None
            elif u['needs_temp']:
                tmp = alloc_temp()
                if tmp is None:
                    return
                held[id(u)] = ('temp', tmp)
            else:
                tmp = None
            if u['kind'] != 'dma':
                bind(u, tmp)
            if opts.get('cwsm') and inflight() + 8 > opts['cwsm']:
                Lsm = A.new_label("sm")
                A(f"s_cmp_eq_u32 {s(sSlowH)}, 1")
                A(f"s_cbranch_scc1 {Lsm}")
                A(f"s_waitcnt vmcnt({opts['cwsm'] - 8})")
                A.label(Lsm)
            if u['kind'] == 'dma':
                dma_unit(u, vq)
                st_['issued'] += 1
                continue
            Lcp = None
            if u['name'] in cpu_:
                Lcp, Lcq = A.new_label("cp"), A.new_label("cq")
                A(f"s_cmp_lg_u32 {s(sCpB)}, 0")
                A(f"s_cbranch_scc1 {Lcp}")
            for k in range(8):
                if u['kind'] == 'wo':
                    A(f"s_xor_b32 {s(sT0)}, {u['soff'][k]:#x}, {s(sXo)}")
                    vq.issue(id(u), f"buffer_load_dwordx4 {reg(u['raw'][k], 4)}, {v(vGo)}, {s(u['srd'],4)}, {s(sT0)} offen" + WPOL[opts.get('wnto', 0)])
                else:
                    A(f"s_mov_b32 {s(sT0)}, {u['soff'][k]:#x}")
                    vq.issue(id(u), f"buffer_load_dwordx4 {reg(u['raw'][k], 4)}, {v(vG)}, {s(u['srd'],4)}, {s(sT0)} offen" + WPOL[opts.get('wnt', 0)])
            if Lcp:
                A(f"s_branch {Lcq}")
                A.label(Lcp)
                for k in range(8):
                    A(f"s_add_u32 {s(sT0)}, {s(sCpB)}, {(cpu_.index(u['name']) * 32 + k) * 2048:#x}")
                    A(f"buffer_load_dwordx4 {reg(u['raw'][k], 4)}, {v(vCp)}, {s(S_WS,4)}, {s(sT0)} offen")
                A.label(Lcq)
            st_['issued'] += 1
    stamp(A, 1) if not opts.get('cprof') else None
    try_issue()
    if ARMLATE:
        arm()
    A(f"s_lshl_b32 {s(sT2)}, {s(sWAVE)}, 13")
    lane_expr(A, vSW, vL, [(4, 2, 256), (1, 3, 32), (0, 1, 16)], sregs=[sT2])
    A(f"v_mov_b32 {v(vSWo)}, {v(vSW)}")
    A(f"v_bfe_u32 {v(vTA)}, {v(vL)}, 4, 1")
    A(f"v_lshlrev_b32 {v(vT0)}, 5, {v(vTA)}")
    A(f"v_xor_b32 {v(vSW)}, {v(vSW)}, {v(vT0)}")
    A(f"v_lshlrev_b32 {v(vT0)}, 6, {v(vTA)}")
    A(f"v_xor_b32 {v(vSWo)}, {v(vSWo)}, {v(vT0)}")
    A(f"v_xor_b32 {v(vSW+1)}, 64, {v(vSW)}")
    A(f"v_xor_b32 {v(vSW+2)}, 0x80, {v(vSW)}")
    A(f"v_xor_b32 {v(vSW+3)}, 0xc0, {v(vSW)}")
    A(f"v_xor_b32 {v(vSWo+1)}, 0x80, {v(vSWo)}")
    A(f"s_lshl_b32 {s(sT3)}, {s(sWAVE)}, 6")
    lane_expr(A, vTRb, vL, [(2, 1, 256 + 32), (4, 1, 1024 + 64), (5, 1, 2048), (3, 1, 4096 + 128), (0, 2, 8)])
    A(f"v_xor_b32 {v(vTRb)}, {s(sT3)}, {v(vTRb)}")
    A(f"v_add_u32 {v(vTRb)}, {s(sT2)}, {v(vTRb)}")
    lane_expr(A, vTRo, vL, [(2, 1, 256 + 64), (4, 1, 4096 + 128), (5, 1, 1024), (3, 1, 32), (0, 2, 8)], sregs=[sT2])
    A(f"s_lshl_b32 {s(sT0)}, {s(sWAVE)}, 15")
    A(f"s_add_u32 {s(sT0)}, {s(sT0)}, {WO_OFF}")
    A(f"v_add_u32 {v(vWo)}, {s(sT0)}, {v(vL16)}")
    def checkin():
        vq.wait('st')
        A(f"s_barrier")
        Lci = A.new_label("ci")
        A(f"s_cmp_lg_u32 {s(sWAVE)}, 0")
        A(f"s_cbranch_scc1 {Lci}")
        A(f"s_getreg_b32 {s(sT0)}, hwreg(HW_REG_XCC_ID, 0, 4)")
        A(f"s_mul_i32 {s(sT1)}, {s(sT0)}, {s(sT0)}")
        A(f"s_lshl_b32 {s(sT1)}, {s(sT1)}, 17")
        A(f"s_lshl_b32 {s(sT0)}, {s(sT0)}, 8")
        A(f"s_add_u32 {s(sT0)}, {s(sT0)}, {s(sT1)}")
        A(f"s_add_u32 {s(sT0)}, {s(sT0)}, 1")
        A(f"v_mov_b32 {v(vT0)}, {s(sT0)}")
        A(f"v_mov_b32 {v(vT1)}, 0")
        A(f"s_mov_b64 exec, 1")
        A(f"buffer_atomic_add {v(vT0)}, {v(vT1)}, {s(S_DBG,4)}, 0 offen offset:{D_CHECKIN*4} sc1")
        A(f"s_mov_b64 exec, -1")
        A.label(Lci)

    if not ARMLATE:
        checkin()
        try_issue()
    A(f"s_lshr_b32 {s(sT3)}, {s(sH)}, 2")
    A(f"s_lshl_b32 {s(sT3)}, {s(sT3)}, 10")
    A(f"s_and_b32 {s(sT4)}, {s(sH)}, 1")
    A(f"s_lshl_b32 {s(sT4)}, {s(sT4)}, 9")
    A(f"s_add_u32 {s(sT3)}, {s(sT3)}, {s(sT4)}")
    A(f"s_and_b32 {s(sT4)}, {s(sH)}, 2")
    A(f"s_lshl_b32 {s(sT4)}, {s(sT4)}, 4")
    A(f"s_add_u32 {s(sT3)}, {s(sT3)}, {s(sT4)}")
    lane_expr(A, vMst, vL, [(5, 1, 256), (1, 2, 64), (0, 1, 16), (4, 1, 8)], sregs=[sT3])
    A(f"v_and_b32 {v(vT1)}, 8, {v(vL)}")
    A(f"v_lshlrev_b32 {v(vT1)}, 27, {v(vT1)}")
    A(f"v_add_u32 {v(vMst)}, {v(vMst)}, {v(vT1)}")
    A(f"s_cmp_eq_u32 {s(sWAVE)}, 0")
    Lw0 = A.new_label("w0")
    A(f"s_cbranch_scc1 {Lw0}")
    A(f"v_mov_b32 {v(vMst)}, {v(vMre)}")
    A(f"s_cmp_eq_u32 {s(sWAVE)}, 3")
    A(f"s_cbranch_scc1 {Lw0}")
    A(f"v_mov_b32 {v(vMst)}, {OOB:#x}")
    A.label(Lw0)
    for (dst, bit) in ((vIdx, 2), (vIdxW, 8)):
        A(f"v_mov_b32 {v(dst)}, 0x4444")
        A(f"v_mov_b32 {v(vT0)}, 0xeeee")
        A(f"v_and_b32 {v(vT1)}, {bit}, {v(vL)}")
        A(f"v_cmp_ne_u32 vcc, 0, {v(vT1)}")
        A.nop(2)
        A(f"v_cndmask_b32 {v(dst)}, {v(dst)}, {v(vT0)}, vcc")
    A(f"s_lshl_b32 {s(sT0)}, {s(sWAVE)}, 9")
    lane_expr(A, vQKw, vL, [(0, 4, 16), (4, 2, 4)], sregs=[sT0])
    A(f"s_lshl_b32 {s(sT0)}, {s(sWAVE)}, 10")
    A(f"s_lshr_b32 {s(sT1)}, {s(sWAVE)}, 1")
    A(f"s_lshl_b32 {s(sT1)}, {s(sT1)}, 11")
    A(f"s_add_u32 {s(sT0)}, {s(sT0)}, {s(sT1)}")
    lane_expr(A, vKw, vL, [(0, 4, 32), (4, 2, 8)], const=2048, sregs=[sT0])
    lane_expr(A, vKr, vL, [(5, 1, 512), (4, 1, 128), (2, 2, 32), (0, 2, 8)])
    lane_expr(A, vQKr, vL, [(5, 1, 256), (4, 1, 64), (2, 2, 16), (0, 1, 8)])
    A(f"s_lshl_b32 {s(sT0)}, {s(sWAVE)}, 9")
    lane_expr(A, vOw, vL, [(4, 2, 128), (0, 3, 16)], const=O_OFF, sregs=[sT0])
    A(f"s_lshl_b32 {s(sT0)}, {s(sWAVE)}, 11")
    A(f"s_add_u32 {s(sT0)}, {s(sT0)}, {MEM_OFF}")
    A(f"v_add_u32 {v(vMw)}, {s(sT0)}, {v(vL16)}")
    A(f"s_lshl_b32 {s(sT0)}, {s(sWAVE)}, 16")
    A(f"s_lshl_b32 {s(sT1)}, {s(sH)}, 8")
    lane_expr(A, vPst, vL, [(5, 1, 8192), (0, 4, 16), (4, 1, 8)], sregs=[sT0, sT1])
    A(f"s_lshl_b32 {s(sT0)}, {s(sH)}, 13")
    A(f"v_add_u32 {v(vRed)}, {s(sT0)}, {v(vL16)}")
    A(f"s_and_b32 {s(sT1)}, {s(sWAVE)}, 1")
    A(f"s_lshl_b32 {s(sT1)}, {s(sT1)}, 13")
    A(f"s_lshl_b32 {s(sT0)}, {s(sH)}, 14")
    A(f"s_add_u32 {s(sT0)}, {s(sT0)}, {s(sT1)}")
    A(f"v_lshlrev_b32 {v(vPf)}, 6, {v(vL)}")
    A(f"v_add_u32 {v(vPf)}, {s(sT0)}, {v(vPf)}")
    A(f"s_mov_b32 {s(sMLo)}, -1")
    A(f"s_mov_b32 {s(sMLo+1)}, 0")
    A(f"s_mov_b32 {s(sMHi)}, 0")
    A(f"s_mov_b32 {s(sMHi+1)}, -1")
    A(f"s_mov_b32 {s(sC)}, {f32_hex(SCALE_C):#x}")
    A(f"s_mov_b32 {s(sNC)}, {f32_hex(-SCALE_C):#x}")
    Lsel = A.new_label("sel")
    A(f"s_cmp_lg_u32 {s(sWAVE)}, 0")
    A(f"s_cbranch_scc1 {Lsel}")
    A(f"v_and_b32 {v(vT0)}, 15, {v(vL)}")
    A(f"v_mov_b32 {v(vS0)}, 0x3f80")
    A(f"v_mov_b32 {v(vT1)}, 0x3f800000")
    A(f"v_and_b32 v112, 1, {v(vT0)}")
    A(f"v_cmp_eq_u32 vcc, 1, v112")
    A.nop(2)
    A(f"v_cndmask_b32 {v(vS0)}, {v(vS0)}, {v(vT1)}, vcc")
    A(f"v_lshrrev_b32 {v(vT0)}, 1, {v(vT0)}")
    for i in range(4):
        A(f"v_cmp_eq_u32 vcc, {i}, {v(vT0)}")
        A.nop(2)
        A(f"v_cndmask_b32 {v(vSEL+i)}, 0, {v(vS0)}, vcc")
    A(f"v_bfe_u32 {v(vTagE)}, {v(vL)}, 4, 1")
    A(f"v_xor_b32 {v(vTagE)}, 1, {v(vTagE)}")
    A.label(Lsel)
    for i in range(4):
        A(f"v_mov_b32 {v(vONE+i)}, 0x3f803f80")
    for i in range(1, 4):
        A(f"v_mov_b32 {v(vBM+i)}, 0")

    A(f"s_lshl_b32 {s(sW2k)}, {s(sWAVE)}, 11")
    A(f"s_mov_b32 {s(sSlotP1)}, {WS_P + 16384}")
    A(f"s_mov_b32 {s(sPc2)}, {WS_P + 32768}")
    A(f"s_mov_b32 {s(sPc3)}, {WS_P + 49152}")
    A(f"s_mov_b32 {s(sSlotP4)}, {WS_P + 4096}")
    A(f"s_and_b32 {s(sTag)}, {s(sH)}, 1")
    A(f"s_xor_b32 {s(sTag)}, {s(sTag)}, 1")
    A(f"s_lshl_b32 {s(sT5)}, {s(sH)}, 7")
    A(f"s_add_u32 {s(sT5)}, {s(sT5)}, {WS_KVF:#x}")
    A(f"s_cmp_ge_u32 {s(sWAVE)}, 2")
    A(f"s_mov_b32 {s(sT0)}, {OOB:#x}")
    A(f"s_mov_b32 {s(sPf)}, {WS_KX + 0x80000:#x}")
    A(f"s_cselect_b32 {s(sPf)}, {s(sPf)}, {s(sT0)}")
    A(f"s_add_u32 {s(sM0K)}, {s(sW2k)}, {KX_OFF}")
    A(f"s_lshl_b32 {s(sKn)}, {s(sH)}, 14")
    A(f"s_add_u32 {s(sKn)}, {s(sKn)}, {s(sW2k)}")
    A(f"s_add_u32 {s(sKn)}, {s(sKn)}, {WS_KX:#x}")
    A(f"s_add_u32 {s(sM0V)}, {s(sW2k)}, {VX_OFF}")
    A(f"s_lshl_b32 {s(sKV)}, {s(sH)}, 14")
    A(f"s_add_u32 {s(sKV)}, {s(sKV)}, {s(sW2k)}")
    A(f"s_add_u32 {s(sKV)}, {s(sKV)}, {WS_KX:#x}")
    A(f"s_lshl_b32 {s(sKM)}, {s(sH)}, 12")
    A(f"s_add_u32 {s(sKM)}, {s(sKM)}, {WS_KM:#x}")
    A(f"s_mov_b32 {s(sJ4)}, 8")
    A(f"s_mov_b32 {s(sCn)}, 1")
    A(f"s_mov_b32 {s(sNeed)}, 1")
    for b, u in enumerate(units):
        assert st_['issued'] > b, "loader deadlock"
        if u['kind'] == 'dma':
            break
        if EARLY and b == len(units) - 1:
            assert st_.get('early')
            early_k()
        vq.wait(id(u))
        if opts.get('pst0') and b < 4:
            stamp(A, 4 + b)
        A(f"s_barrier")
        if u['kind'] == 'qkv':
            for k in range(8):
                A(f"ds_write_b128 {v(vSW + (k & 1) + 2 * (k >> 2))}, {reg(u['raw'][k], 4)} offset:{k * 1024}")
            A(f"s_waitcnt lgkmcnt(0)")
            A(f"s_barrier")
            x = u['x']
            for i in range(4):
                for t_ in range(2):
                    r_, fin = u['res'][2 * i + t_]
                    A(f"v_xor_b32 {v(vTA + (t_ & 1))}, {(i << 13) | (t_ << 5):#x}, {v(vTRb)}")
                    for q0 in range(2):
                        A(f"ds_read_b64_tr_b16 {reg(off(r_, 2 * q0), 2)}, {v(vTA + (t_ & 1))} offset:{512 * q0}")
            A(f"s_waitcnt lgkmcnt(0)")
            for (r_, fin) in u['res']:
                if fin is not None:
                    A(f"ds_write_b128 {v(vWo)}, {reg(r_, 4)} offset:{fin}")
        else:
            ks = u['ks']
            for k in range(8):
                A(f"ds_write_b128 {v(vSWo + (k >> 2))}, {reg(u['raw'][k], 4)} offset:{k * 1024}")
            base = u['raw'][0][1]
            fins = []
            for cg in range(4):
                io = wo_ops.index((cg, ks))
                dst = WORR[io] if io < 8 else PARK.get(io, ('v', base + 8 * cg))
                A(f"v_xor_b32 {v(vTA + (cg & 1))}, {cg << 6:#x}, {v(vTRo)}")
                for i in range(4):
                    A(f"ds_read_b64_tr_b16 {reg(off(dst, 2 * i), 2)}, {v(vTA + (cg & 1))} offset:{(8 * (i >> 1) + 2 * (i & 1)) * 256}")
                if io >= 8 and io not in PARK:
                    fins.append((dst, io * 2048))
            A(f"s_waitcnt lgkmcnt(0)")
            for (dst, o) in fins:
                A(f"ds_write_b128 {v(vWo)}, {reg(dst, 4)} offset:{o}")
                A(f"ds_write_b128 {v(vWo)}, {reg(off(dst, 4), 4)} offset:{o + 1024}")
        if id(u) in held:
            kind, tmp = held[id(u)]
            A(f"s_waitcnt lgkmcnt(0)")
            if kind == 'pool':
                busy.difference_update(tmp + 8 * j for j in range(4))
            else:
                busy.discard(tmp)
        if ES and u['name'] == 'O1':
            A(f"v_bfe_u32 {v(vTA)}, {v(vL)}, 4, 1")
            A(f"v_lshlrev_b32 {v(vTA)}, 6, {v(vTA)}")
            A(f"s_lshl_b32 {s(sDm)}, {s(sWAVE)}, 15")
            A(f"v_xor_b32 {v(vGo)}, {v(vTA)}, {v(vGo)}")
            A(f"s_add_u32 {s(sDm)}, {s(sDm)}, {WO_OFF + 16384:#x}")
            A(f"v_xor_b32 {v(vSWo + 1)}, 0x80, {v(vGo)}")
            st_['o1'] = True
        if ARMLATE and b == opts.get('cipos', 1):
            checkin()
        if opts.get('prof') and not opts.get('cprof') and not opts.get('pst0') and not opts.get('esprof') and b in (0, 3, 7, 11):
            stamp(A, {0: 4, 3: 5, 7: 6, 11: 7}[b])
        try_issue()
    A("s_waitcnt lgkmcnt(0)")
    stamp(A, 2) if not opts.get('cprof') else None
    A(f"s_barrier")
    if ES:
        assert EARLY and st_['issued'] == len(units) and not DMI
        vq.wait('m0')
        A(f"v_min_u32 {v(vEF)}, {v(vEF)}, {v(vEF+1)}")
        A(f"ds_write_b128 {v(vMw)}, {v(vEM,4)}")
        A(f"v_readfirstlane_b32 {s(sT0)}, {v(vEF)}")
        A(f"ds_write_b128 {v(vMw)}, {v(vEM+4,4)} offset:1024")
        Lkok = A.new_label("kok")
        A(f"s_cmp_ge_u32 {s(sT0)}, 1")
        A(f"s_cbranch_scc1 {Lkok}")
        kv_polls(A)
        A.label(Lkok)
        if opts.get('esprof'):
            stamp(A, 8)
        A(f"s_mov_b32 m0, {s(sM0K)}")
        A(f"s_add_u32 {s(sT1)}, {s(sKn)}, 8192")
        A(f"buffer_load_dwordx4 {v(vL16)}, {s(S_WS,4)}, {s(sKn)} offen lds")
        A(f"buffer_load_dwordx4 {v(vL16)}, {s(S_WS,4)}, {s(sKn)} offen offset:1024 lds")
        A(f"s_mov_b32 m0, {s(sM0V)}")
        A(f"s_nop 0")
        A(f"buffer_load_dwordx4 {v(vL16)}, {s(S_WS,4)}, {s(sT1)} offen lds")
        A(f"buffer_load_dwordx4 {v(vL16)}, {s(S_WS,4)}, {s(sT1)} offen offset:1024 lds")
        D3Q.clear()
        if opts.get('esd3'):
            A(f"v_mov_b32 {v(X + 16)}, {v(vGo)}")
            A(f"v_mov_b32 {v(X + 17)}, {v(vSWo + 1)}")
            for k in range(8):
                D3Q.append([f"s_add_u32 m0, {s(sDm)}, {8192 + k * 1024:#x}",
                            f"s_xor_b32 {s(sT0)}, {U['D3']['soff'][k]:#x}, {s(sXo)}",
                            f"buffer_load_dwordx4 {v(X + 16 + (k >> 2))}, {s(S_D,4)}, {s(sT0)} offen lds" + WPOL[opts.get('wnto', 0)]])
        else:
            dma_unit(U['D3'], vq)
        for i in range(4):
            A(f"v_mov_b64 {v(X+24+2*i,2)}, {v(vEM+2*i,2)}")
        A(f"v_readfirstlane_b32 {s(sT4)}, {v(vEC)}")
    if not EARLY:
        gen_late_start(A, opts, vL)
    elif not ES:
        Lkok = A.new_label("kok")
        A(f"s_cmp_eq_u32 {s(sKok)}, 1")
        A(f"s_cbranch_scc1 {Lkok}")
        kv_polls(A)
        A(f"buffer_load_dwordx4 {v(vEK,4)}, {v(vL16)}, {s(S_WS,4)}, {s(sKn)} offen")
        A(f"buffer_load_dwordx4 {v(vEK+4,4)}, {v(vL16)}, {s(S_WS,4)}, {s(sKn)} offen offset:1024")
        if DMI:
            A(f"s_add_u32 {s(sT1)}, {s(sKn)}, 8192")
            A(f"buffer_load_dwordx4 {v(vEV,4)}, {v(vL16)}, {s(S_WS,4)}, {s(sT1)} offen")
            A(f"buffer_load_dwordx4 {v(vEV+4,4)}, {v(vL16)}, {s(S_WS,4)}, {s(sT1)} offen offset:1024")
        A.label(Lkok)
        A(f"s_waitcnt vmcnt(0)")
        A(f"ds_write_b128 {v(vMw)}, {v(vEM,4)}")
        A(f"ds_write_b128 {v(vMw)}, {v(vEM+4,4)} offset:1024")
        for i in range(4):
            A(f"v_mov_b64 {v(X+24+2*i,2)}, {v(vEM+2*i,2)}")
        A(f"v_readfirstlane_b32 {s(sT4)}, {v(vEC)}")
        A(f"ds_write_b128 {v(vMw)}, {v(vEK,4)} offset:{KX_OFF - MEM_OFF}")
        A(f"ds_write_b128 {v(vMw)}, {v(vEK+4,4)} offset:{KX_OFF - MEM_OFF + 1024}")
        if DMI:
            A(f"ds_write_b128 {v(vMw)}, {v(vEV,4)} offset:{VX_OFF - MEM_OFF}")
            A(f"ds_write_b128 {v(vMw)}, {v(vEV+4,4)} offset:{VX_OFF - MEM_OFF + 1024}")
    if EARLY:
        for i in range(16):
            A(f"v_mov_b32 {v(ACC+i)}, 0")
        for i in range(8):
            A(f"v_mov_b32 {v(Y+24+i)}, 0")
        fb_consts(A)
        Lcok = A.new_label("cok")
        A(f"s_and_b32 {s(sT0)}, {s(sT4)}, 0xff")
        A(f"s_cmp_ge_u32 {s(sT0)}, 32")
        A(f"s_cbranch_scc1 {Lcok}")
        A(f"v_mov_b32 {v(vT1)}, 0")
        A(f"s_mov_b32 {s(sT2)}, {D_CHECKIN*4}")
        A(f"s_mov_b32 {s(sT3)}, 0")
        wait_byte(A, vFlag, vT1, sT2, sT3, 32, "ci", sleep=1)
        A(f"buffer_load_dword {v(vFlag)}, {v(vT1)}, {s(S_DBG,4)}, 0 offen offset:{D_CHECKIN*4} sc1")
        A(f"s_waitcnt vmcnt(0)")
        A(f"v_readfirstlane_b32 {s(sT4)}, {v(vFlag)}")
        A.label(Lcok)
        A(f"s_getreg_b32 {s(sT0)}, hwreg(HW_REG_XCC_ID, 0, 4)")
        A(f"s_mul_i32 {s(sT1)}, {s(sT0)}, {s(sT0)}")
        A(f"s_lshl_b32 {s(sT1)}, {s(sT1)}, 22")
        A(f"s_lshl_b32 {s(sT0)}, {s(sT0)}, 13")
        A(f"s_add_u32 {s(sT0)}, {s(sT0)}, {s(sT1)}")
        A(f"s_add_u32 {s(sT0)}, {s(sT0)}, 32")
        A(f"s_cmp_eq_u32 {s(sT0)}, {s(sT4)}")
        A(f"s_cselect_b32 {s(sFastF)}, 1, 0")
        A(f"s_mov_b32 m0, {s(sM0V if opts.get('kpos', 0) else sM0K)}")
    A(f"s_mov_b32 {s(sS)}, 0")
    if opts.get('cf') and not opts.get('nosld') and not ES:
        A(f"s_load_dwordx2 s[28:29], s[0:1], 88")
    A(f"s_waitcnt lgkmcnt(0)" if ES else f"s_waitcnt vmcnt(0) lgkmcnt(0)")
    A(f"s_barrier")
    stamp(A, 3) if not opts.get('cprof') else None
    if opts.get('cprof') or opts.get('hist'):
        A(f"s_mov_b32 {s(sCP0)}, 0")
        A(f"s_mov_b32 {s(sCP1)}, 0")
    for k, r_ in ((1, vT0), (2, vT1), (3, vS0)):
        A(f"v_xor_b32 {v(r_)}, {k << 11:#x}, {v(vMw)}")
    for q in range(opts.get('rbtop', 0)):
        A(f"ds_read_b128 {v([X, X + 8, PA, PA + 8][q >> 1] + 4 * (q & 1), 4)}, {v(vWo)} offset:{(q >> 1) * 2048 + 1024 * (q & 1)}")
    if ES:
        gen_step(A, True, opts, first=True)
    else:
        A(f"s_cmp_eq_u32 {s(sFastF)}, 1")
        if opts.get('forceslow'):
            A(f"s_branch L_own1_s")
        A(f"s_cbranch_scc0 L_own1_s")
        A(f"s_branch L_own1_f")
    gen_step(A, True, opts)
    gen_step(A, False, opts)


def G_tr(A, vD, vL, kind, base_sreg):
    tr_lane_addr(A, vD, vL, vT0, vS0, kind, base_sreg=base_sreg)
```

```python
import sys
from dsl import *

KNAME = "gated_mix__memory_aug_recurrent_mem_tr__dense_activation_silu__prompt_kernel"

WS_P = 0
WS_M = 0x100000
WS_KVF = 0x110000
WS_OF = 0x120000
WS_KM = 0x200000
WS_PF = 0xA00000
WS_B63 = 0xB10000
WS_KX = 0x1000000
KVSTR = 16384
WS_QX = 0x3000000
WS_OX = 0x4000000
WS_HX = 0x5000000
HX_STRIDE = 2 * 43 * 1024
WS_CP = 0x5600000
WS_G = 0x5800000
WS_T = 0x5810000
WS_SIZE = 0x5860000

D_CHECKIN = 0
D_XCCMASK = 1
D_FFN = 2
D_ERR = 4
D_WDONE = 5
D_KV = 8
D_O = 24
D_PROG = 40

S_WS, S_DBG, S_X, S_A, S_B, S_C, S_D = 4, 8, 12, 16, 20, 24, 28
sWAVE, sIDX, sXCD = 32, 33, 34
sT0, sT1, sT2, sT3, sT4, sT5 = 35, 36, 37, 38, 39, 40
sDEAD = 41
sEX = 42
P_X, P_MEM0, P_WQ, P_WK, P_WV, P_WO, P_W1, P_W2, P_GATE, P_OUT, P_DBG, P_WS = 64, 66, 68, 70, 72, 74, 80, 82, 84, 86, 88, 90
SPIN_LIMIT = 1 << 17

LDS_BYTES = 160 * 1024


def mk_srd(A, d, p, size):
    A(f"s_mov_b32 {s(d)}, {s(p)}")
    A(f"s_mov_b32 {s(d+1)}, {s(p+1)}")
    A(f"s_mov_b32 {s(d+2)}, {size:#x}")
    A(f"s_mov_b32 {s(d+3)}, 0x00020000")


def wait_byte(A, vT, vZero, s_off, s_shift, target, tag, s_tmp=sT0, s_cnt=sT1, target_is_sreg=False, sleep=2):
    L = A.new_label("w" + tag)
    Ld = A.new_label("wd" + tag)
    A(f"s_mov_b32 {s(s_cnt)}, 0")
    A(f"s_cmp_lg_u32 {s(sDEAD)}, 0")
    A(f"s_cbranch_scc1 {Ld}")
    A.label(L)
    A(f"buffer_load_dword {v(vT)}, {v(vZero)}, {s(S_DBG,4)}, {s(s_off)} offen sc1")
    A(f"s_waitcnt vmcnt(0)")
    A(f"v_readfirstlane_b32 {s(s_tmp)}, {v(vT)}")
    A(f"s_lshr_b32 {s(s_tmp)}, {s(s_tmp)}, {s(s_shift)}")
    A(f"s_and_b32 {s(s_tmp)}, {s(s_tmp)}, 0xff")
    A(f"s_cmp_ge_u32 {s(s_tmp)}, {s(target) if target_is_sreg else target}")
    A(f"s_cbranch_scc1 {Ld}")
    if sleep:
        A(f"s_sleep {sleep}")
    A(f"s_add_u32 {s(s_cnt)}, {s(s_cnt)}, 1")
    A(f"s_cmp_lt_u32 {s(s_cnt)}, {SPIN_LIMIT}")
    A(f"s_cbranch_scc1 {L}")
    A(f"s_mov_b32 {s(sDEAD)}, 1")
    A.label(Ld)


def signal_byte(A, vOne, vZero, s_off, s_shift, vTmp):
    A(f"s_lshl_b32 {s(sT0)}, 1, {s(s_shift)}")
    A(f"v_mov_b32 {v(vTmp)}, {s(sT0)}")
    A(f"s_mov_b64 {s(sEX,2)}, exec")
    A(f"s_mov_b64 exec, 1")
    A(f"buffer_atomic_add {v(vTmp)}, {v(vZero)}, {s(S_DBG,4)}, {s(s_off)} offen sc1")
    A(f"s_mov_b64 exec, {s(sEX,2)}")


PROF = False
sSTAMP = 92


def stamp(A, i):
    if not PROF:
        return
    A(f"s_memrealtime s[62:63]")
    A(f"s_waitcnt lgkmcnt(0)")
    A(f"s_mov_b32 {s(sSTAMP+i)}, s62")


def stamp_clk(A, i):
    if not PROF:
        return
    A(f"s_memtime s[62:63]")
    A(f"s_waitcnt lgkmcnt(0)")
    A(f"s_mov_b32 {s(sSTAMP+i)}, s62")


def stamp_if_lt(A, i, sreg, limit, clk=False):
    if not PROF:
        return
    L = A.new_label("st")
    A(f"s_cmp_lt_u32 {s(sreg)}, {limit}")
    A(f"s_cbranch_scc0 {L}")
    (stamp_clk if clk else stamp)(A, i)
    A.label(L)


def stamp_flush(A):
    if not PROF:
        return
    A(f"s_lshl_b32 s62, s2, 2")
    A(f"s_add_u32 s62, s62, {s(sWAVE)}")
    A(f"s_lshl_b32 s62, s62, 6")
    A(f"s_add_u32 s62, s62, {WS_T:#x}")
    A(f"v_mov_b32 v1, 0")
    A(f"s_mov_b64 exec, 1")
    for i in range(10):
        A(f"v_mov_b32 v2, {s(sSTAMP+i)}")
        A(f"buffer_store_dword v2, v1, {s(S_WS,4)}, s62 offen offset:{4*i}")
    A(f"s_waitcnt vmcnt(0)")


STG_BUF = 3072


def stage_addr(row):
    return 64 * row + 128 * (row >> 2)


def load_blocks(A, blocks, vST, window, after_first_issue=None, nolds=False):
    n = len(blocks)

    def issue(b):
        blk = blocks[b]
        for k in range(2):
            so = blk['soff'][k]
            A(f"s_mov_b32 {s(sT0)}, {so:#x}")
            if blk.get('sbase') is not None:
                A(f"s_add_u32 {s(sT0)}, {s(sT0)}, {s(blk['sbase'])}")
            A(f"buffer_load_dwordx4 {reg(off(blk['raw'], 4*k), 4)}, {v(blk['voff'])}, {s(blk['srd'],4)}, {s(sT0)} offen")

    issued = 0
    def can_issue(b, done):
        r = blocks[b]['raw']
        for p in range(b):
            if blocks[p]['raw'] == r or blocks[p].get('dst') == r:
                if p >= done:
                    return False
        return True

    while issued < n and issued < window and can_issue(issued, 0):
        issue(issued)
        issued += 1
    if after_first_issue:
        after_first_issue(2 * issued)
    for b in range(n):
        blk = blocks[b]
        assert issued > b, "window deadlock"
        A(f"s_waitcnt vmcnt({2*(issued-b-1)})")
        buf = (b & 1) * STG_BUF
        if not nolds:
            A(f"ds_write_b128 {v(vST)}, {reg(blk['raw'],4)} offset:{buf}")
            A(f"ds_write_b128 {v(vST)}, {reg(off(blk['raw'],4),4)} offset:{buf + stage_addr(16)}")
            for i in range(4):
                A(f"ds_read_b64_tr_b16 {reg(off(blk['dst'],2*i),2)}, {v(blk['vtr'])} offset:{buf + blk['imm'][i]}")
        if blk.get('post'):
            blk['post'](A)
        while issued < n and issued - b - 1 < window and can_issue(issued, b + 1):
            issue(issued)
            issued += 1
    A("s_waitcnt lgkmcnt(0)")


def load_blocks2(A, blocks, vST, window, extra=None, nolds=False, vq=None, upto=None):
    n = len(blocks)
    vq = vq or Q(A, "vmcnt", 63)
    state = dict(issued=0, xi=False, xc=False)

    def issue(b):
        blk = blocks[b]
        for k in range(2):
            A(f"s_mov_b32 {s(sT0)}, {blk['soff'][k]:#x}")
            vq.issue(('B', id(blk)), f"buffer_load_dwordx4 {reg(off(blk['raw'], 4*k), 4)}, {v(blk['voff'])}, {s(blk['srd'],4)}, {s(sT0)} offen")
        state['issued'] += 1
        if extra and b == extra[0]:
            extra[1](vq)
            state['xi'] = True
    while state['issued'] < n and state['issued'] < window:
        issue(state['issued'])
    for b in range(n):
        blk = blocks[b]
        vq.wait(('B', id(blk)))
        if extra and state['xi'] and not state['xc'] and b > extra[0]:
            extra[2](vq)
            state['xc'] = True
        buf = (b & 1) * STG_BUF
        if not nolds:
            A(f"ds_write_b128 {v(vST)}, {reg(blk['raw'],4)} offset:{buf}")
            A(f"ds_write_b128 {v(vST)}, {reg(off(blk['raw'],4),4)} offset:{buf + stage_addr(16)}")
            for i in range(4):
                A(f"ds_read_b64_tr_b16 {reg(off(blk['dst'],2*i),2)}, {v(blk['vtr'])} offset:{buf + blk['imm'][i]}")
        if blk.get('post'):
            blk['post'](A)
        while state['issued'] < n and state['issued'] - b - 1 < window:
            issue(state['issued'])
    if extra and not state['xc']:
        extra[2](vq)
    A("s_waitcnt lgkmcnt(0)")


def tr_lane_addr(A, vD, vL, vT1, vT2, kind, base_sreg=None, base_imm=0):
    A(f"v_lshrrev_b32 {v(vT1)}, 4, {v(vL)}")
    A(f"v_bfe_u32 {v(vT2)}, {v(vL)}, 2, 2")
    A(f"v_and_b32 {v(vD)}, 3, {v(vL)}")
    A(f"v_lshlrev_b32 {v(vD)}, 3, {v(vD)}")

    def add_term(expr_src, mask_shift, mul):
        sh, bits = mask_shift
        A(f"v_bfe_u32 v{TMPX}, {v(expr_src)}, {sh}, {bits}")
        A(f"v_mul_u32_u24 v{TMPX}, {mul}, v{TMPX}")
        A(f"v_add_u32 {v(vD)}, {v(vD)}, v{TMPX}")

    G, r = vT1, vT2
    def sa(row):
        return stage_addr(row)
    if kind == 'chain_qkv':
        add_term(G, (1, 1), sa(8)); add_term(G, (0, 1), sa(4)); add_term(r, (0, 1), sa(1)); add_term(r, (1, 1), 32)
    elif kind == 'chain_wo':
        add_term(G, (0, 1), sa(16)); add_term(G, (1, 1), sa(4)); add_term(r, (0, 1), sa(1)); add_term(r, (1, 1), 32)
    elif kind == 'k16':
        add_term(G, (1, 1), sa(8)); add_term(r, (0, 2), sa(1)); add_term(G, (0, 1), 32)
    elif kind == 'out_wo':
        add_term(G, (0, 2), sa(4)); add_term(r, (0, 2), sa(1))
    elif kind == 'out_w2':
        add_term(G, (1, 1), sa(16)); add_term(G, (0, 1), sa(4)); add_term(r, (0, 2), sa(1))
    else:
        raise ValueError(kind)
    if base_sreg is not None:
        A(f"v_add_u32 {v(vD)}, {s(base_sreg)}, {v(vD)}")
    if base_imm:
        A(f"v_add_u32 {v(vD)}, {base_imm}, {v(vD)}")


TR_IMM = {
    'chain_qkv': [stage_addr(16 * hi + 2 * qq) for hi in range(2) for qq in range(2)],
    'chain_wo': [stage_addr(8 * hi + 2 * qq) for hi in range(2) for qq in range(2)],
    'k16': [stage_addr(16 * kk + 4 * hf) for kk in range(2) for hf in range(2)],
    'out_wo': [stage_addr(16 * hf) + 32 * ct for ct in range(2) for hf in range(2)],
    'out_w2': [stage_addr(8 * hf) + 32 * ct for ct in range(2) for hf in range(2)],
}
TMPX = 15


def stage_lane_addr(A, vD, vL, vT, base_sreg):
    A(f"v_lshrrev_b32 {v(vD)}, 2, {v(vL)}")
    A(f"v_lshlrev_b32 {v(vD)}, 6, {v(vD)}")
    A(f"v_lshrrev_b32 {v(vT)}, 4, {v(vL)}")
    A(f"v_lshlrev_b32 {v(vT)}, 7, {v(vT)}")
    A(f"v_add_u32 {v(vD)}, {v(vD)}, {v(vT)}")
    A(f"v_and_b32 {v(vT)}, 3, {v(vL)}")
    A(f"v_lshlrev_b32 {v(vT)}, 4, {v(vT)}")
    A(f"v_add_u32 {v(vD)}, {v(vD)}, {v(vT)}")
    A(f"v_add_u32 {v(vD)}, {s(base_sreg)}, {v(vD)}")


def raw_lane_off(A, vD, vL, vT, pitch):
    A(f"v_lshrrev_b32 {v(vD)}, 2, {v(vL)}")
    A(f"v_mul_u32_u24 {v(vD)}, {pitch}, {v(vD)}")
    A(f"v_and_b32 {v(vT)}, 3, {v(vL)}")
    A(f"v_lshlrev_b32 {v(vT)}, 4, {v(vT)}")
    A(f"v_add_u32 {v(vD)}, {v(vD)}, {v(vT)}")


def lane_expr(A, vD, vL, terms, const=0, sregs=(), tmp=None):
    tmp = TMPX if tmp is None else tmp
    first = True
    for (sh, bits, mul) in terms:
        dst = vD if first else tmp
        A(f"v_bfe_u32 {v(dst)}, {v(vL)}, {sh}, {bits}")
        if mul != 1:
            A(f"v_mul_u32_u24 {v(dst)}, {mul}, {v(dst)}")
        if not first:
            A(f"v_add_u32 {v(vD)}, {v(vD)}, {v(tmp)}")
        first = False
    if first:
        A(f"v_mov_b32 {v(vD)}, 0")
    if const:
        A(f"v_add_u32 {v(vD)}, {const:#x}, {v(vD)}")
    for sr in sregs:
        A(f"v_add_u32 {v(vD)}, {s(sr)}, {v(vD)}")


class Q:
    def __init__(self, A, name, cap):
        self.A, self.name, self.cap = A, name, cap
        self.ops = []

    def issue(self, tag, text):
        self.A(text)
        self.ops.append(tag)

    def wait(self, tag):
        if tag not in self.ops:
            return
        i = max(j for j, t in enumerate(self.ops) if t == tag)
        n = len(self.ops) - 1 - i
        self.A(f"s_waitcnt {self.name}({min(n, self.cap)})")
        if n <= self.cap:
            self.ops = self.ops[i + 1:]
        else:
            self.ops = self.ops[len(self.ops) - self.cap:]

    def wait_all(self):
        self.A(f"s_waitcnt {self.name}(0)")
        self.ops = []


XBUF = 64 * 528
XB1 = 36864


class XG:
    vL, vL16, vXW, vXR, vZero, vTmp, vT1, vT2 = 1, 2, 3, 4, 10, 11, 12, 13
    XP, XF = 16, 48
    NF = 4

    def __init__(self, A, sDelta):
        self.A, self.sDelta = A, sDelta

    def setup(self):
        A = self.A
        vL, vL16, vXW, vXR, vZero, vT1 = self.vL, self.vL16, self.vXW, self.vXR, self.vZero, self.vT1
        A(f"v_and_b32 {v(vL)}, 63, v0")
        A(f"v_lshlrev_b32 {v(vL16)}, 4, {v(vL)}")
        A(f"v_mov_b32 {v(vZero)}, 0")
        A(f"v_mul_u32_u24 {v(vXW)}, 528, {v(vL)}")
        A(f"s_lshl_b32 {s(sT0)}, {s(sWAVE)}, 7")
        A(f"v_add_u32 {v(vXW)}, {s(sT0)}, {v(vXW)}")
        A(f"v_lshrrev_b32 {v(vXR)}, 5, {v(vL)}")
        A(f"v_mul_u32_u24 {v(vXR)}, 528, {v(vXR)}")
        A(f"v_and_b32 {v(vT1)}, 31, {v(vL)}")
        A(f"v_lshlrev_b32 {v(vT1)}, 4, {v(vT1)}")
        A(f"v_add_u32 {v(vXR)}, {v(vXR)}, {v(vT1)}")

    def issue_x(self, seg_sreg, vq=None):
        A = self.A
        if vq is not None:
            A = lambda x_: (vq.issue('x', x_) if x_.startswith('buffer_load') else self.A(x_))
        A(f"s_lshl_b32 {s(sT0)}, {s(seg_sreg)}, 15")
        A(f"s_lshl_b32 {s(sT1)}, {s(sWAVE)}, 13")
        A(f"s_add_u32 {s(sT0)}, {s(sT0)}, {s(sT1)}")
        for i in range(8):
            if i == 4:
                A(f"s_add_u32 {s(sT0)}, {s(sT0)}, 4096")
            A(f"buffer_load_dwordx4 {v(self.XP+4*i,4)}, {v(self.vL16)}, {s(S_X,4)}, {s(sT0)} offen offset:{(i%4)*1024}")

    def write_x(self):
        for i in range(8):
            self.A(f"ds_write_b128 {v(self.vXW)}, {v(self.XP+4*i,4)} offset:{i*16}")

    def after_weights(self):
        A = self.A
        A(f"s_waitcnt lgkmcnt(0)")
        A(f"s_barrier")
        A(f"s_mov_b32 {s(self.sDelta)}, {XB1}")
        A(f"v_add_u32 {v(self.vXW)}, {s(self.sDelta)}, {v(self.vXW)}")

    def body(self, mfmas, wpos=9):
        A, NF, XF = self.A, self.NF, self.XF

        def rd(kk):
            A(f"ds_read_b128 {v(XF + 4*(kk % NF), 4)}, {v(self.vXR)} offset:{kk*1056}")
        for kk in range(NF - 1):
            rd(kk)
        for kk in range(32):
            if kk + NF - 1 < 32:
                rd(kk + NF - 1)
                A(f"s_waitcnt lgkmcnt({NF-1})")
            else:
                A(f"s_waitcnt lgkmcnt({31-kk})")
            mfmas(kk, v(XF + 4 * (kk % NF), 4))
            if wpos is not None and kk == wpos:
                A(f"s_waitcnt vmcnt(0)")
                self.write_x()
                A(f"s_waitcnt lgkmcnt(0)")

    def toggle(self):
        A = self.A
        A(f"v_add_u32 {v(self.vXR)}, {s(self.sDelta)}, {v(self.vXR)}")
        A(f"s_sub_u32 {s(self.sDelta)}, 0, {s(self.sDelta)}")
        A(f"v_add_u32 {v(self.vXW)}, {s(self.sDelta)}, {v(self.vXW)}")


def gen_hq(A, opts):
    vWG, vST, vTR, vKst, vVst = 5, 6, 7, 8, 9
    ACC = 64
    EP = 112
    sH, sJ, sSeg, sNext, sDelta, sSegOff, sKVoff, sKVsh, sXa = 44, 45, 46, 47, 48, 49, 50, 51, 52
    sCnt, sKVF = 53, 60
    xg = XG(A, sDelta)
    vL, vL16, vZero, vTmp, vT1, vT2, XF = xg.vL, xg.vL16, xg.vZero, xg.vTmp, xg.vT1, xg.vT2, xg.XF
    A(f"s_sub_u32 {s(sT0)}, {s(sXCD)}, 3")
    A(f"s_lshl_b32 {s(sT0)}, {s(sT0)}, 5")
    A(f"s_add_u32 {s(sT0)}, {s(sT0)}, {s(sIDX)}")
    A(f"s_mul_i32 {s(sH)}, {s(sT0)}, 205")
    A(f"s_lshr_b32 {s(sH)}, {s(sH)}, 10")
    A(f"s_mul_i32 {s(sT1)}, {s(sH)}, 5")
    A(f"s_sub_u32 {s(sJ)}, {s(sT0)}, {s(sT1)}")
    mk_srd(A, S_A, P_WQ, 512 * 8192)
    mk_srd(A, S_B, P_WK, 512 * 8192)
    mk_srd(A, S_C, P_WV, 512 * 8192)
    xg.setup()
    A(f"s_mov_b32 {s(sSeg)}, {s(sJ)}")
    raw_lane_off(A, vWG, vL, vT1, 8192)
    A(f"s_lshl_b32 {s(sT0)}, {s(sH)}, 8")
    A(f"s_lshl_b32 {s(sT1)}, {s(sWAVE)}, 6")
    A(f"s_add_u32 {s(sT0)}, {s(sT0)}, {s(sT1)}")
    A(f"v_add_u32 {v(vWG)}, {s(sT0)}, {v(vWG)}")
    STG = 80 * 1024
    A(f"s_mul_i32 {s(sT2)}, {s(sWAVE)}, {2*STG_BUF}")
    A(f"s_add_u32 {s(sT2)}, {s(sT2)}, {STG}")
    stage_lane_addr(A, vST, vL, vT1, sT2)
    tr_lane_addr(A, vTR, vL, vT1, vT2, 'k16', base_sreg=sT2)
    A(f"s_lshl_b32 {s(sT0)}, {s(sWAVE)}, 10")
    lane_expr(A, vKst, vL, [(4, 1, 4096), (5, 1, 256), (0, 4, 16)], sregs=[sT0])
    A(f"s_lshl_b32 {s(sT0)}, {s(sWAVE)}, 11")
    lane_expr(A, vVst, vL, [(4, 1, 1024), (5, 1, 256), (0, 4, 16)], sregs=[sT0])

    def wblocks(srd, dst):
        return [dict(srd=srd, voff=vWG, soff=[(32 * b) * 8192, (32 * b + 16) * 8192], raw=off(dst, 8 * b), dst=off(dst, 8 * b),
                     vtr=vTR, imm=TR_IMM['k16']) for b in range(16)]
    kvb = wblocks(S_B, ('a', 128)) + wblocks(S_C, ('v', 128))
    qb = wblocks(S_A, ('a', 0))
    if opts.get('hdelay'):
        Lhd = A.new_label("hqd")
        A(f"s_cmp_lg_u32 {s(sWAVE)}, 0")
        A(f"s_cbranch_scc1 {Lhd}")
        A(f"s_mov_b32 {s(sT2)}, {D_CHECKIN*4}")
        A(f"s_mov_b32 {s(sT3)}, 0")
        wait_byte(A, vTmp, vZero, sT2, sT3, opts['hdelay'], "hqd", sleep=4)
        A.label(Lhd)
        A(f"s_barrier")
    stamp(A, 1)
    if PROF:
        kvb[15]['post'] = lambda A_: stamp(A_, 6)
        kvb[0]['post'] = lambda A_: stamp(A_, 8)

    def x_issue(vq):
        xg.issue_x(sSeg, vq)

    def x_consume(vq):
        vq.wait('x')
        xg.write_x()
        stamp(A, 5)
    hw = opts.get('hqwin', 10)
    load_blocks2(A, kvb, vST, window=hw, extra=(opts.get('hqxpos', 16), x_issue, x_consume))
    stamp(A, 7)
    xg.after_weights()
    A(f"s_mov_b32 {s(sXa)}, -1")
    A(f"s_mov_b32 {s(sCnt)}, 1")
    A(f"s_lshl_b32 {s(sKVF)}, {s(sH)}, 7")
    A(f"s_lshl_b32 {s(sT0)}, {s(sJ)}, 2")
    A(f"s_add_u32 {s(sKVF)}, {s(sKVF)}, {s(sT0)}")
    A(f"s_add_u32 {s(sKVF)}, {s(sKVF)}, {WS_KVF:#x}")
    A(f"buffer_load_dword v15, {v(vZero)}, {s(S_DBG,4)}, 0 offen offset:{D_CHECKIN*4} sc1")

    def mf_k(kk, f):
        c = lambda base: "0" if kk == 0 else v(base, 16)
        A(f"v_mfma_f32_32x32x16_bf16 {v(ACC+16,16)}, {a(128+4*kk,4)}, {f}, {c(ACC+16)}")

    def mf_v(kk, f):
        c = lambda base: "0" if kk == 0 else v(base, 16)
        A(f"v_mfma_f32_32x32x16_bf16 {v(ACC+32,16)}, {f}, {v(128+4*kk,4)}, {c(ACC+32)}")

    def mf_q(kk, f):
        c = lambda base: "0" if kk == 0 else v(base, 16)
        A(f"v_mfma_f32_32x32x16_bf16 {v(ACC,16)}, {a(4*kk,4)}, {f}, {c(ACC)}")

    def seg_offsets():
        A(f"s_lshl_b32 {s(sSegOff)}, {s(sSeg)}, 5")
        A(f"s_add_u32 {s(sSegOff)}, {s(sSegOff)}, {s(sH)}")
        A(f"s_lshl_b32 {s(sKVoff)}, {s(sSegOff)}, 14")
        A(f"s_lshl_b32 {s(sKVsh)}, {s(sSegOff)}, 12")
        A(f"s_lshl_b32 {s(sSegOff)}, {s(sSegOff)}, 13")

    def store_ct(acc, sbase, region, ep):
        for c in range(2):
            for q in range(4):
                A(f"v_cvt_pk_bf16_f32 {v(ep+4*c+q)}, {v(acc+8*c+2*q)}, {v(acc+8*c+2*q+1)}")
        A(f"s_add_u32 {s(sT0)}, {s(sbase)}, {region:#x}")
        for c in range(2):
            A(f"buffer_store_dwordx4 {v(ep+4*c,4)}, {v(vKst)}, {s(S_WS,4)}, {s(sT0)} offen offset:{c*512} sc1")

    def store_kv():
        store_ct(ACC + 16, sKVoff, WS_KX, EP)
        acc = ACC + 32
        for c in range(2):
            for hf in range(2):
                u = c + 2 * hf
                for q in range(2):
                    A(f"v_cvt_pk_bf16_f32 {v(EP+8+4*c+2*hf+q)}, {v(acc+4*u+2*q)}, {v(acc+4*u+2*q+1)}")
        A(f"s_add_u32 {s(sT0)}, {s(sKVoff)}, {WS_KX + 8192:#x}")
        for c in range(2):
            A(f"buffer_store_dwordx4 {v(EP+8+4*c,4)}, {v(vVst)}, {s(S_WS,4)}, {s(sT0)} offen offset:{c*512} sc1")

    def arm_km():
        for i in range(4):
            A(f"v_mov_b32 {v(XF+8+i)}, -1")
        A(f"s_lshl_b32 {s(sT1)}, {s(sWAVE)}, 10")
        A(f"s_add_u32 {s(sT0)}, {s(sKVsh)}, {s(sT1)}")
        A(f"s_add_u32 {s(sT0)}, {s(sT0)}, {WS_KM:#x}")
        A(f"buffer_store_dwordx4 {v(XF+8,4)}, {v(vL16)}, {s(S_WS,4)}, {s(sT0)} offen sc1")

    def flag_store():
        A(f"v_mov_b32 {v(vTmp)}, {s(sCnt)}")
        A(f"s_mov_b64 exec, 1")
        A(f"buffer_store_dword {v(vTmp)}, off, {s(S_WS,4)}, {s(sKVF)} sc1")
        A(f"s_mov_b64 exec, -1")
    xg.body(lambda kk, f: (mf_k(kk, f), mf_v(kk, f)), wpos=None)
    A.nop(12)
    seg_offsets()
    store_kv()
    arm_km()
    vq = Q(A, "vmcnt", 63)
    qn = [0]

    def q_first(vq_):
        pass
    nq0 = opts.get('hqq0', 8)
    for b in range(nq0):
        blk = qb[b]
        for k in range(2):
            A(f"s_mov_b32 {s(sT0)}, {blk['soff'][k]:#x}")
            vq.issue(('B', id(blk)), f"buffer_load_dwordx4 {reg(off(blk['raw'], 4*k), 4)}, {v(blk['voff'])}, {s(blk['srd'],4)}, {s(sT0)} offen")
    A(f"s_waitcnt vmcnt({2*nq0})")
    A(f"s_barrier")
    Lnf1 = A.new_label("hq_nf1")
    Lci = A.new_label("hq_ci")
    A(f"s_cmp_lg_u32 {s(sWAVE)}, 0")
    A(f"s_cbranch_scc1 {Lnf1}")
    A(f"v_readfirstlane_b32 {s(sT0)}, v15")
    A(f"s_and_b32 {s(sT0)}, {s(sT0)}, 0xff")
    A(f"s_cmp_ge_u32 {s(sT0)}, 32")
    A(f"s_cbranch_scc1 {Lci}")
    A(f"s_mov_b32 {s(sT2)}, {D_CHECKIN*4}")
    A(f"s_mov_b32 {s(sT3)}, 0")
    wait_byte(A, vTmp, vZero, sT2, sT3, 32, "hqci", sleep=4)
    A.label(Lci)
    flag_store()
    A.label(Lnf1)
    stamp(A, 3)
    for b in range(16):
        blk = qb[b]
        if b == 0:
            pass
        if b + nq0 < 16:
            nb_ = qb[b + nq0]
        vq.wait(('B', id(blk)))
        buf = (b & 1) * STG_BUF
        A(f"ds_write_b128 {v(vST)}, {reg(blk['raw'],4)} offset:{buf}")
        A(f"ds_write_b128 {v(vST)}, {reg(off(blk['raw'],4),4)} offset:{buf + stage_addr(16)}")
        for i in range(4):
            A(f"ds_read_b64_tr_b16 {reg(off(blk['dst'],2*i),2)}, {v(blk['vtr'])} offset:{buf + blk['imm'][i]}")
        if b + nq0 < 16:
            for k in range(2):
                A(f"s_mov_b32 {s(sT0)}, {nb_['soff'][k]:#x}")
                vq.issue(('B', id(nb_)), f"buffer_load_dwordx4 {reg(off(nb_['raw'], 4*k), 4)}, {v(nb_['voff'])}, {s(nb_['srd'],4)}, {s(sT0)} offen")
    A("s_waitcnt lgkmcnt(0)")
    stamp(A, 2)
    if opts.get('xatt'):
        from gen_xatt import xatt_setup, xatt_task
        xatt_setup(A, xg, sH)
    A(f"s_add_u32 {s(sNext)}, {s(sSeg)}, 5")
    xg.issue_x(sNext)
    xg.body(mf_q, wpos=opts.get('wpos', 9))
    A.nop(12)
    store_ct(ACC, sSegOff, WS_QX, XF)
    xg.toggle()
    A(f"s_waitcnt vmcnt(0) lgkmcnt(0)")
    A(f"s_barrier")
    A(f"s_mov_b32 {s(sXa)}, {s(sSeg)}")
    A(f"s_mov_b32 {s(sSeg)}, {s(sNext)}")

    Lloop = A.new_label("hq_loop")
    Lnoq = A.new_label("hq_noq")
    Lnoflag = A.new_label("hq_noflag")
    A.label(Lloop)
    A(f"s_add_u32 {s(sNext)}, {s(sSeg)}, 5")
    A(f"s_cmp_ge_u32 {s(sSeg)}, 64")
    A(f"s_cbranch_scc1 {Lnoq}")
    xg.issue_x(sNext)
    xg.body(lambda kk, f: (mf_k(kk, f), mf_v(kk, f), mf_q(kk, f)), wpos=opts.get('wpos', 9))
    A.nop(12)
    seg_offsets()
    store_kv()
    store_ct(ACC, sSegOff, WS_QX, XF)
    arm_km()
    if opts.get('cf') and not opts.get('nopfclr'):
        Lpf = A.new_label("hq_pf")
        A(f"s_cmp_lg_u32 {s(sCnt)}, 1")
        A(f"s_cbranch_scc1 {Lpf}")
        A(f"s_cmp_gt_u32 {s(sJ)}, 3")
        A(f"s_cbranch_scc1 {Lpf}")
        for i in range(4):
            A(f"v_mov_b32 {v(XF+12+i)}, 0")
        A(f"s_lshl_b32 {s(sT0)}, {s(sJ)}, 18")
        A(f"s_lshl_b32 {s(sT1)}, {s(sH)}, 13")
        A(f"s_add_u32 {s(sT0)}, {s(sT0)}, {s(sT1)}")
        A(f"s_lshl_b32 {s(sT1)}, {s(sWAVE)}, 11")
        A(f"s_add_u32 {s(sT0)}, {s(sT0)}, {s(sT1)}")
        A(f"s_add_u32 {s(sT0)}, {s(sT0)}, {WS_PF:#x}")
        for k in range(2):
            A(f"buffer_store_dwordx4 {v(XF+12,4)}, {v(vL16)}, {s(S_WS,4)}, {s(sT0)} offen offset:{k*1024} sc1")
        A.label(Lpf)
    xg.toggle()
    A(f"s_waitcnt vmcnt(0) lgkmcnt(0)")
    A(f"s_barrier")
    A(f"s_add_u32 {s(sCnt)}, {s(sCnt)}, 1")
    A(f"s_cmp_lg_u32 {s(sWAVE)}, 0")
    A(f"s_cbranch_scc1 {Lnoflag}")
    flag_store()
    A.label(Lnoflag)
    A.label(Lnoq)
    if opts.get('xatt'):
        xatt_task(A, xg, sH, sXa, opts)
    A(f"s_mov_b32 {s(sXa)}, {s(sSeg)}")
    A(f"s_mov_b32 {s(sSeg)}, {s(sNext)}")
    A(f"s_cmp_lt_u32 {s(sXa)}, {63 if opts.get('cf') else 64}")
    A(f"s_cbranch_scc1 {Lloop}")
    stamp(A, 4)


def karg_ready(A, opts, extra=None):
    lst = [(S_WS, P_WS, WS_SIZE), (S_DBG, P_DBG, 256), (S_X, P_X, 2048 * 1024)]
    if extra:
        lst = lst[:1] + extra + lst[1:]
        for d, p, size in lst:
            A(f"s_mov_b32 {s(d+2)}, {size:#x}")
            A(f"s_mov_b32 {s(d+3)}, 0x00020000")
        A(f"s_waitcnt lgkmcnt(0)")
        for d, p, size in lst:
            if opts.get('kw') == 2:
                A(f"s_mov_b64 {s(d,2)}, {s(p,2)}")
            else:
                A(f"s_mov_b32 {s(d)}, {s(p)}")
                A(f"s_mov_b32 {s(d+1)}, {s(p+1)}")
    else:
        A(f"s_waitcnt lgkmcnt(0)")
        for d, p, size in lst:
            mk_srd(A, d, p, size)
    if PROF:
        for i in range(10):
            A(f"s_mov_b32 {s(sSTAMP+i)}, 0")
    if opts.get('est'):
        stamp(A, 8)
        A(f"s_mov_b32 {s(sSTAMP)}, s60")
    else:
        stamp(A, 0)


def gen(opts):
    global PROF
    PROF = bool(opts.get('prof'))
    A = Asm()
    A.L.append(open("header.txt").read().rstrip("\n"))
    A.L.append(f"; @launch grid=(256,1,1) block=(256,1,1) lds={LDS_BYTES}")
    A.L.append('.amdgcn_target "amdgcn-amd-amdhsa--gfx950"')
    A.L.append(".text")
    A.L.append(f".globl {KNAME}")
    A.L.append(".p2align 8")
    A.L.append(f".type {KNAME},@function")
    A.label(KNAME)
    if opts.get('est'):
        A("s_memrealtime s[60:61]")
    A(f"s_cmp_ge_u32 s2, 256")
    A(f"s_cbranch_scc1 L_exit")
    A(f"s_load_dwordx16 s[64:79], s[0:1], 0")
    A(f"s_load_dwordx8 s[80:87], s[0:1], 64")
    A(f"s_load_dwordx4 s[88:91], s[0:1], 96")
    if opts.get('xrot'):
        A(f"s_add_u32 {s(sXCD)}, s2, {opts['xrot']}")
        A(f"s_and_b32 {s(sXCD)}, {s(sXCD)}, 7")
    else:
        A(f"s_and_b32 {s(sXCD)}, s2, 7")
    A(f"s_lshr_b32 {s(sIDX)}, s2, 3")
    if opts.get('cpr'):
        A("s_getpc_b64 s[44:45]")
        A.label("L_pc")
        A("s_mov_b32 s46, 0")
        A("s_mov_b32 s47, L_chain-L_pc")
        A(f"s_cmp_lt_u32 {s(sXCD)}, 3")
        A("s_cselect_b32 s46, L_out-L_pc, s46")
        A("s_cselect_b32 s47, L_exit-L_out, s47")
        A(f"s_cmp_eq_u32 {s(sXCD)}, 0")
        A("s_cselect_b32 s46, L_chain-L_pc, s46")
        A(f"s_cselect_b32 s47, {'L_top_s' if opts['cpr'] == 1 else 'L_out'}-L_chain, s47")
        A("v_lshlrev_b32 v2, 7, v0")
        A("s_add_u32 s44, s44, s46")
        A("s_addc_u32 s45, s45, 0")
        A("v_min_u32 v2, s47, v2")
        A("v_mov_b32 v5, s45")
        A("v_add_co_u32 v4, vcc, s44, v2")
        A("v_addc_co_u32 v5, vcc, 0, v5, vcc")
        A("global_load_dword v255, v[4:5], off")
    if opts.get('cpf'):
        A("s_getpc_b64 s[44:45]")
        A.label("L_pc")
        A("v_lshlrev_b32 v2, 7, v0")
        A("s_mov_b32 s46, L_exit-L_pc")
        for i in range(opts.get('cpf')):
            A(f"v_add_u32 v4, {i * 32768:#x}, v2")
            A("v_min_u32 v4, s46, v4")
            A("v_mov_b32 v5, s45")
            A("v_add_co_u32 v4, vcc, s44, v4")
            A("v_addc_co_u32 v5, vcc, 0, v5, vcc")
            A("global_load_dword v255, v[4:5], off")
    A(f"v_lshrrev_b32 v1, 6, v0")
    A(f"s_mov_b32 {s(sDEAD)}, 0")
    A(f"v_readfirstlane_b32 {s(sWAVE)}, v1")
    if opts.get('kw'):
        A(f"s_cmp_eq_u32 {s(sXCD)}, 0")
        A(f"s_cbranch_scc1 L_chain")
    karg_ready(A, opts)
    if not opts.get('kw'):
        A(f"s_cmp_eq_u32 {s(sXCD)}, 0")
        A(f"s_cbranch_scc1 L_chain")
    A(f"s_cmp_lt_u32 {s(sXCD)}, 3")
    A(f"s_cbranch_scc1 L_out")
    if opts.get('hq', True):
        gen_hq(A, opts)
    A(f"s_branch L_role_end")
    A.label("L_chain")
    if opts.get('clkprobe'):
        A("s_memrealtime s[44:45]")
        A("s_waitcnt lgkmcnt(0)")
        for i in range(1, 9):
            L = A.new_label("cp")
            A(f"s_add_u32 s46, s44, {i*500}")
            A.label(L)
            A("s_memrealtime s[48:49]")
            A("s_waitcnt lgkmcnt(0)")
            A("s_sub_u32 s50, s48, s46")
            A("s_cmp_lt_i32 s50, 0")
            A(f"s_cbranch_scc1 {L}")
            stamp_clk(A, i)
    if opts.get('chain'):
        cv = opts.get('cv', 7)
        if cv == 4:
            from gen_chain4 import gen_chain
        elif cv == 5:
            from gen_chain5 import gen_chain
        elif cv == 6:
            from gen_chain6 import gen_chain
        else:
            from gen_chain7 import gen_chain
        gen_chain(A, opts)
    A(f"s_branch L_role_end")
    A.label("L_out")
    if opts.get('out'):
        from gen_out import gen_out
        gen_out(A, opts)
    A.label("L_role_end")
    stamp(A, 9)
    A.label("L_flush")
    stamp_flush(A)
    A.label("L_exit")
    A("s_endpgm")
    A.L.append(f""".section .rodata,"a"
.p2align 6
.amdhsa_kernel {KNAME}
  .amdhsa_next_free_vgpr 512
  .amdhsa_next_free_sgpr 102
  .amdhsa_accum_offset 256
  .amdhsa_group_segment_fixed_size 0
  .amdhsa_kernarg_size 112
  .amdhsa_user_sgpr_count 2
  .amdhsa_user_sgpr_kernarg_segment_ptr 1
  .amdhsa_system_sgpr_workgroup_id_x 1
.end_amdhsa_kernel""")
    return A.text()


def main():
    opts = {}
    outp = sys.argv[1]
    for o in sys.argv[2:]:
        if "=" in o:
            k, val = o.split("=")
            opts[k] = int(val)
        else:
            opts[o] = True
    open(outp, "w").write(gen(opts))


if __name__ == "__main__":
    import gen as _g
    _g.main()
```

```python
from dsl import *
import gen as G
from gen import *
from gen_chain2 import f32_hex, LOG2E


def gen_out(A, opts):
    A.comment("==== role OUT ====")
    sPar, sSh, sC_, sSeg, sNext, sDelta, sOff, sShf, sBlk, sCnt, sSO = 44, 45, 46, 47, 48, 49, 50, 51, 52, 53, 54
    vWG, vST, vTR, vHst = 5, 6, 7, 8
    ACC = 64
    EP = 112
    xg = XG(A, sDelta)
    vL, vL16, vZero, vTmp, vT1, vT2 = xg.vL, xg.vL16, xg.vZero, xg.vTmp, xg.vT1, xg.vT2
    A(f"s_sub_u32 {s(sPar)}, {s(sXCD)}, 1")
    A(f"s_lshr_b32 {s(sSh)}, {s(sIDX)}, 4")
    A(f"s_and_b32 {s(sC_)}, {s(sIDX)}, 15")
    xg.setup()
    if opts.get('opf'):
        mats = {1: [P_WQ], 2: [P_WQ, P_WK], 3: [P_WQ, P_WK, P_WV], 4: [P_WK, P_WV, P_WQ], 5: [P_WQ, P_WV], 6: [P_WK, P_WV, P_WQ, P_WO], 7: [P_WK, P_WV], 8: [P_WV, P_WQ, P_WO], 9: [P_WK, P_WV, P_WO, P_WQ]}[opts['opf']]
        A(f"s_lshl_b32 {s(sT0)}, {s(sPar)}, 5")
        A(f"s_add_u32 {s(sT0)}, {s(sT0)}, {s(sIDX)}")
        A(f"s_lshl_b32 {s(sT0)}, {s(sT0)}, 2")
        A(f"s_add_u32 {s(sT0)}, {s(sT0)}, {s(sWAVE)}")
        A(f"s_lshl_b32 {s(sT0)}, {s(sT0)}, 14")
        for P in mats:
            mk_srd(A, S_D, P, 512 * 8192)
            for k in range(16):
                if k and k % 4 == 0:
                    A(f"s_add_u32 {s(sT0)}, {s(sT0)}, 4096")
                A(f"buffer_load_dwordx4 v[252:255], {v(vL16)}, {s(S_D,4)}, {s(sT0)} offen offset:{(k % 4) * 1024}")
            A(f"s_sub_u32 {s(sT0)}, {s(sT0)}, {3 * 4096}")
    if opts.get('opc'):
        mats = {1: [P_WQ, P_WK, P_WV], 2: [P_WK, P_WV, P_WQ], 3: [P_WQ, P_WK], 4: [P_WK, P_WV], 5: [P_WQ], 6: [P_WO, P_WQ, P_WK, P_WV], 7: [P_WO, P_WQ, P_WK], 8: [P_WQ, P_WO, P_WK, P_WV], 9: [P_WO, P_WK, P_WV, P_WQ]}[opts['opc']]
        A(f"s_lshl_b32 {s(sT0)}, {s(sPar)}, 5")
        A(f"s_add_u32 {s(sT0)}, {s(sT0)}, {s(sIDX)}")
        A(f"s_lshl_b32 {s(sT0)}, {s(sT0)}, 2")
        A(f"s_add_u32 {s(sT0)}, {s(sT0)}, {s(sWAVE)}")
        A(f"s_lshl_b32 {s(sT0)}, {s(sT0)}, 14")
        lane_expr(A, vT1, vL, [(4, 2, 1024), (0, 4, 16)], const=256)
        lane_expr(A, vT2, vL, [(4, 1, 8192), (0, 4, 16)], const=31 * 256)
        for P in mats:
            mk_srd(A, S_D, P, 512 * 8192)
            for k in range(4):
                A(f"s_add_u32 {s(sT1)}, {s(sT0)}, {k * 4096}")
                A(f"buffer_load_dwordx4 v[252:255], {v(vT1)}, {s(S_D,4)}, {s(sT1)} offen")
            if opts.get('opc31', 1) and P != P_WO:
                A(f"s_mov_b64 exec, 0xffffffff")
                A(f"buffer_load_dwordx4 v[252:255], {v(vT2)}, {s(S_D,4)}, {s(sT0)} offen")
                A(f"s_mov_b64 exec, -1")
    STG = 80 * 1024
    A(f"s_mul_i32 {s(sT2)}, {s(sWAVE)}, {2*STG_BUF}")
    A(f"s_add_u32 {s(sT2)}, {s(sT2)}, {STG}")
    stage_lane_addr(A, vST, vL, vT1, sT2)
    Lph2 = A.new_label("out_ph2")

    def wait_wdone(tag):
        L = A.new_label("wd" + tag)
        A(f"s_cmp_lg_u32 {s(sWAVE)}, 0")
        A(f"s_cbranch_scc1 {L}")
        A(f"s_mov_b32 {s(sOff)}, {D_WDONE*4}")
        A(f"s_mov_b32 {s(sShf)}, 0")
        wait_byte(A, vTmp, vZero, sOff, sShf, opts.get('wdn', 32), "wd" + tag, sleep=8)
        A.label(L)
        A(f"s_barrier")
    if opts.get('odelay') == 1:
        wait_wdone("a")
    if opts.get('odelay') == 3:
        Lod = A.new_label("od")
        A(f"s_cmp_lg_u32 {s(sWAVE)}, 0")
        A(f"s_cbranch_scc1 {Lod}")
        A(f"s_mov_b32 {s(sOff)}, {D_CHECKIN*4}")
        A(f"s_mov_b32 {s(sShf)}, 0")
        wait_byte(A, vTmp, vZero, sOff, sShf, 32, "od", sleep=4)
        A.label(Lod)
        A(f"s_barrier")
    A(f"s_cmp_gt_u32 {s(sC_)}, 10")
    A(f"s_cbranch_scc1 {Lph2}")
    mk_srd(A, S_A, P_W1, 512 * 2752)
    mk_srd(A, S_B, P_GATE, 1024)
    A(f"s_lshl_b32 {s(sBlk)}, {s(sC_)}, 2")
    A(f"s_add_u32 {s(sBlk)}, {s(sBlk)}, {s(sWAVE)}")
    A(f"s_lshl_b32 {s(sSeg)}, {s(sSh)}, 1")
    A(f"s_add_u32 {s(sSeg)}, {s(sSeg)}, {s(sPar)}")
    xg.issue_x(sSeg)
    A(f"s_waitcnt vmcnt(0)")
    xg.write_x()
    FPF = opts.get('fpf', 0)
    if FPF:
        A(f"s_add_u32 {s(sNext)}, {s(sSeg)}, 4")
        A(f"s_waitcnt lgkmcnt(0)")
        xg.issue_x(sNext)
        A(f"s_mul_i32 {s(sT2)}, {s(sWAVE)}, {2*STG_BUF}")
        A(f"s_add_u32 {s(sT2)}, {s(sT2)}, {STG}")
    tr_lane_addr(A, vTR, vL, vT1, vT2, 'k16', base_sreg=sT2)
    Lgate = A.new_label("gatew")
    Lwdone = A.new_label("wdone")
    A(f"s_cmp_eq_u32 {s(sBlk)}, 43")
    A(f"s_cbranch_scc1 {Lgate}")
    raw_lane_off(A, vWG, vL, vT1, 2752)
    A(f"s_lshl_b32 {s(sT0)}, {s(sBlk)}, 6")
    A(f"v_add_u32 {v(vWG)}, {s(sT0)}, {v(vWG)}")
    blocks = []
    for b in range(16):
        blocks.append(dict(srd=S_A, voff=vWG, soff=[(32 * b) * 2752, (32 * b + 16) * 2752], raw=('a', 8 * b), dst=('a', 8 * b),
                           vtr=vTR, imm=TR_IMM['k16']))
    load_blocks(A, blocks, vST, window=16)
    A(f"s_branch {Lwdone}")
    A.label(Lgate)
    A(f"v_lshrrev_b32 {v(vWG)}, 5, {v(vL)}")
    A(f"v_lshlrev_b32 {v(vWG)}, 4, {v(vWG)}")
    A(f"v_and_b32 {v(vT1)}, 31, {v(vL)}")
    A(f"v_lshlrev_b32 {v(vT1)}, 12, {v(vT1)}")
    A(f"v_add_u32 {v(vWG)}, {v(vWG)}, {v(vT1)}")
    for kk in range(32):
        A(f"buffer_load_dwordx4 {a(4*kk,4)}, {v(vWG)}, {s(S_B,4)}, 0 offen offset:{kk*32}")
    A(f"s_waitcnt vmcnt(0)")
    A.label(Lwdone)
    xg.after_weights()
    A(f"s_lshl_b32 {s(sT0)}, {s(sBlk)}, 10")
    lane_expr(A, vHst, vL, [(4, 1, 43 * 1024), (5, 1, 256), (0, 4, 16)], sregs=[sT0])
    Lloop = A.new_label("ffn_loop")
    A.label(Lloop)
    A(f"s_add_u32 {s(sNext)}, {s(sSeg)}, 4")
    if not FPF:
        xg.issue_x(sNext)

    def mf(kk, f):
        c = "0" if kk == 0 else v(ACC, 16)
        A(f"v_mfma_f32_32x32x16_bf16 {v(ACC,16)}, {a(4*kk,4)}, {f}, {c}")

    def nxt_x():
        A(f"s_add_u32 {s(sT5)}, {s(sSeg)}, 8")
        A(f"s_min_u32 {s(sT5)}, {s(sT5)}, 63")
        xg.issue_x(sT5)
    if FPF:
        xg.body(mf, wpos=opts.get('fwpos', 9), wcnt=2, after_write=nxt_x)
    else:
        xg.body(mf, wpos=opts.get('fwpos', 9))
    A.nop(12)
    Lge = A.new_label("gate_ep")
    Lepd = A.new_label("ep_done")
    A(f"s_cmp_eq_u32 {s(sBlk)}, 43")
    A(f"s_cbranch_scc1 {Lge}")
    A(f"s_mov_b32 {s(sT0)}, {f32_hex(-LOG2E):#x}")
    T = 80
    for i in range(16):
        A(f"v_mul_f32 {v(T+i)}, {s(sT0)}, {v(ACC+i)}")
    for i in range(16):
        A(f"v_exp_f32 {v(T+i)}, {v(T+i)}")
    for i in range(16):
        A(f"v_add_f32 {v(T+i)}, 1.0, {v(T+i)}")
    for i in range(16):
        A(f"v_rcp_f32 {v(T+i)}, {v(T+i)}")
    for i in range(16):
        A(f"v_mul_f32 {v(ACC+i)}, {v(ACC+i)}, {v(T+i)}")
    for i in range(8):
        A(f"v_cvt_pk_bf16_f32 {v(EP+i)}, {v(ACC+2*i)}, {v(ACC+2*i+1)}")
    A(f"s_mul_i32 {s(sT0)}, {s(sSeg)}, {HX_STRIDE}")
    A(f"s_add_u32 {s(sT0)}, {s(sT0)}, {WS_HX:#x}")
    for c in range(2):
        A(f"buffer_store_dwordx4 {v(EP+4*c,4)}, {v(vHst)}, {s(S_WS,4)}, {s(sT0)} offen offset:{c*512} sc1")
    A(f"s_branch {Lepd}")
    A.label(Lge)
    A(f"s_mov_b32 {s(sT0)}, {f32_hex(-LOG2E):#x}")
    A(f"v_mul_f32 {v(vT1)}, {s(sT0)}, {v(ACC)}")
    A(f"v_exp_f32 {v(vT1)}, {v(vT1)}")
    A.nop(1)
    A(f"v_add_f32 {v(vT1)}, 1.0, {v(vT1)}")
    A(f"v_rcp_f32 {v(vT1)}, {v(vT1)}")
    A(f"v_lshlrev_b32 {v(vT2)}, 2, {v(vL)}")
    A(f"s_lshl_b32 {s(sT0)}, {s(sSeg)}, 7")
    A(f"s_add_u32 {s(sT0)}, {s(sT0)}, {WS_G:#x}")
    A(f"s_mov_b64 exec, 0xffffffff")
    A(f"buffer_store_dword {v(vT1)}, {v(vT2)}, {s(S_WS,4)}, {s(sT0)} offen sc1")
    if FPF:
        A(f"buffer_store_dword {v(vT1)}, {v(vT2)}, {s(S_WS,4)}, {s(sT0)} offen sc1")
    A(f"s_mov_b64 exec, -1")
    A.label(Lepd)
    xg.toggle()
    A(f"s_waitcnt lgkmcnt(0)")
    A(f"s_barrier")
    A(f"s_mov_b32 {s(sSeg)}, {s(sNext)}")
    A(f"s_cmp_lt_u32 {s(sSeg)}, 64")
    A(f"s_cbranch_scc1 {Lloop}")
    A(f"s_waitcnt vmcnt(0)")
    A(f"s_barrier")
    Lnf = A.new_label("ffn_nf")
    A(f"s_cmp_lg_u32 {s(sWAVE)}, 0")
    A(f"s_cbranch_scc1 {Lnf}")
    A(f"s_lshl_b32 {s(sOff)}, {s(sPar)}, 2")
    A(f"s_add_u32 {s(sOff)}, {s(sOff)}, {D_FFN*4}")
    A(f"s_mov_b32 {s(sShf)}, 0")
    signal_byte(A, None, vZero, sOff, sShf, vTmp)
    A.label(Lnf)
    A.label(Lph2)
    if opts.get('odelay') == 2:
        wait_wdone("b")
    stamp(A, 1)
    mk_srd(A, S_A, P_WO, 4096 * 1024)
    mk_srd(A, S_B, P_W2, 1376 * 1024)
    mk_srd(A, S_C, P_OUT, 2048 * 1024)
    vWG2, vTR2 = 8, 9
    raw_lane_off(A, vWG, vL, vT1, 1024)
    A(f"s_lshl_b32 {s(sT0)}, {s(sC_)}, 6")
    A(f"v_add_u32 {v(vWG)}, {s(sT0)}, {v(vWG)}")
    A(f"s_mul_i32 {s(sT0)}, {s(sWAVE)}, {11*32*1024}")
    A(f"v_add_u32 {v(vWG2)}, {s(sT0)}, {v(vWG)}")
    A(f"s_lshl_b32 {s(sT0)}, {s(sWAVE)}, 20")
    A(f"v_add_u32 {v(vWG)}, {s(sT0)}, {v(vWG)}")
    A(f"s_mul_i32 {s(sT2)}, {s(sWAVE)}, {2*STG_BUF}")
    A(f"s_add_u32 {s(sT2)}, {s(sT2)}, {STG}")
    tr_lane_addr(A, vTR, vL, vT1, vT2, 'out_wo', base_sreg=sT2)
    tr_lane_addr(A, vTR2, vL, vT1, vT2, 'out_w2', base_sreg=sT2)
    blocks = []
    for b in range(11):
        blocks.append(dict(srd=S_B, voff=vWG2, soff=[(32 * b) * 1024, (32 * b + 16) * 1024], raw=('v', 128 + 8 * b), dst=('v', 128 + 8 * b),
                           vtr=vTR2, imm=TR_IMM['out_w2']))
    for b in range(32):
        blocks.append(dict(srd=S_A, voff=vWG, soff=[(32 * b) * 1024, (32 * b + 16) * 1024], raw=('a', 8 * b), dst=('a', 8 * b),
                           vtr=vTR, imm=TR_IMM['out_wo']))
    load_blocks(A, blocks, vST, window=31)
    stamp(A, 2)
    PFO = opts.get('pfo', 0)
    if PFO:
        Lpf = A.new_label("pfo")
        A(f"s_cmp_lt_u32 {s(sC_)}, 11")
        A(f"s_cbranch_scc1 {Lpf}")
        A(f"s_mul_i32 {s(sT2)}, {s(sSh)}, 5")
        A(f"s_add_u32 {s(sT2)}, {s(sT2)}, {s(sC_)}")
        A(f"s_sub_u32 {s(sT2)}, {s(sT2)}, 11")
        A(f"s_lshl_b32 {s(sT2)}, {s(sT2)}, 2")
        A(f"s_add_u32 {s(sT2)}, {s(sT2)}, {s(sWAVE)}")
        if PFO & 1:
            Lx = A.new_label("pfx")
            A(f"s_mov_b32 {s(sT3)}, {s(sT2)}")
            A.label(Lx)
            A(f"s_lshr_b32 {s(sT0)}, {s(sT3)}, 5")
            A(f"s_lshl_b32 {s(sT0)}, {s(sT0)}, 1")
            A(f"s_add_u32 {s(sT0)}, {s(sT0)}, {s(sPar)}")
            A(f"s_lshl_b32 {s(sT0)}, {s(sT0)}, 15")
            A(f"s_and_b32 {s(sT1)}, {s(sT3)}, 31")
            A(f"s_lshl_b32 {s(sT1)}, {s(sT1)}, 10")
            A(f"s_add_u32 {s(sT0)}, {s(sT0)}, {s(sT1)}")
            A(f"buffer_load_dwordx4 v[32:35], {v(vL16)}, {s(S_X,4)}, {s(sT0)} offen")
            A(f"s_waitcnt vmcnt({opts.get('pfw', 8)})")
            A(f"s_add_u32 {s(sT3)}, {s(sT3)}, 40")
            A(f"s_cmp_lt_u32 {s(sT3)}, 1024")
            A(f"s_cbranch_scc1 {Lx}")
        if PFO & 6:
            if PFO & 2:
                lane_expr(A, vT1, vL, [(3, 3, 1024), (0, 3, 16)], const=384)
                rows = 8
            else:
                A(f"v_mov_b32 {v(vT1)}, {v(vL16)}")
                rows = 1
            for (srd, nrow) in ((S_B, 1376), (S_A, 4096)):
                Lr = A.new_label("pfr")
                A(f"s_mul_i32 {s(sT3)}, {s(sT2)}, {rows}")
                if rows == 1:
                    A(f"s_mov_b64 exec, {(1 << opts.get('pfl', 48)) - 1:#x}" if opts.get('pfl', 48) <= 32 else f"s_bfm_b64 exec, {opts.get('pfl', 48)}, 0")
                A.label(Lr)
                A(f"s_lshl_b32 {s(sT0)}, {s(sT3)}, 10")
                A(f"buffer_load_dwordx4 v[32:35], {v(vT1)}, {s(srd,4)}, {s(sT0)} offen")
                A(f"s_waitcnt vmcnt({opts.get('pfw', 8)})")
                A(f"s_add_u32 {s(sT3)}, {s(sT3)}, {40 * rows}")
                A(f"s_cmp_lt_u32 {s(sT3)}, {nrow}")
                A(f"s_cbranch_scc1 {Lr}")
                if rows == 1:
                    A(f"s_mov_b64 exec, -1")
        A(f"s_waitcnt vmcnt(0)")
        A.label(Lpf)
    A(f"s_lshl_b32 {s(sOff)}, {s(sPar)}, 2")
    A(f"s_add_u32 {s(sOff)}, {s(sOff)}, {D_FFN*4}")
    A(f"s_mov_b32 {s(sShf)}, 0")
    Lfw = A.new_label("ffw")
    if opts.get('fw0'):
        A(f"s_cmp_lg_u32 {s(sWAVE)}, 0")
        A(f"s_cbranch_scc1 {Lfw}")
    wait_byte(A, vTmp, vZero, sOff, sShf, 22, "ffn", sleep=4)
    A(f"s_mov_b32 {s(sOff)}, {D_CHECKIN*4}")
    wait_byte(A, vTmp, vZero, sOff, sShf, 32, "oci", sleep=4)
    A.label(Lfw)
    A(f"s_barrier")
    vOF = 11
    A(f"v_and_b32 {v(vOF)}, 31, {v(vL)}")
    A(f"v_lshlrev_b32 {v(vOF)}, 2, {v(vOF)}")
    for _ in range(opts.get('otestdelay', 0)):
        A("s_sleep 127")
    stamp(A, 3)
    aA, aB = 16, 24
    bufs = [32 + 4 * i for i in range(24)] + [216 + 4 * i for i in range(10)]
    vRw, vRr, vOut, vG = 5, 6, 7, 8
    RED = 0
    A(f"s_lshl_b32 {s(sT0)}, {s(sWAVE)}, 12")
    A(f"v_add_u32 {v(vRw)}, {s(sT0)}, {v(vL16)}")
    A(f"s_and_b32 {s(sT0)}, {s(sWAVE)}, 1")
    A(f"s_lshl_b32 {s(sT0)}, {s(sT0)}, 10")
    A(f"v_add_u32 {v(vRr)}, {s(sT0)}, {v(vL16)}")
    A(f"s_lshl_b32 {s(sT0)}, {s(sSh)}, 14")
    A(f"s_lshl_b32 {s(sT1)}, {s(sC_)}, 6")
    A(f"s_add_u32 {s(sT0)}, {s(sT0)}, {s(sT1)}")
    A(f"s_and_b32 {s(sT1)}, {s(sWAVE)}, 1")
    A(f"s_lshl_b32 {s(sT1)}, {s(sT1)}, 5")
    A(f"s_add_u32 {s(sT0)}, {s(sT0)}, {s(sT1)}")
    lane_expr(A, vOut, vL, [(0, 4, 1024), (4, 2, 8)], sregs=[sT0])
    A(f"s_lshl_b32 {s(sT0)}, {s(sSh)}, 6")
    lane_expr(A, vG, vL, [(0, 4, 4)], sregs=[sT0])
    if opts.get('cf'):
        Lnb = A.new_label("nob63")
        A(f"s_cmp_lg_u32 {s(sPar)}, 1")
        A(f"s_cbranch_scc1 {Lnb}")
        A(f"s_mul_i32 {s(sT3)}, {s(sSh)}, {43*1024}")
        A(f"s_mul_i32 {s(sT2)}, {s(sWAVE)}, {11*1024}")
        A(f"s_add_u32 {s(sT2)}, {s(sT2)}, {s(sT3)}")
        A(f"s_add_u32 {s(sT2)}, {s(sT2)}, {WS_HX + 63 * HX_STRIDE:#x}")
        for b in range(11):
            if b in (4, 8):
                A(f"s_add_u32 {s(sT2)}, {s(sT2)}, 4096")
            if b == 10:
                A(f"s_cmp_eq_u32 {s(sWAVE)}, 3")
                A(f"s_cselect_b32 {s(sT3)}, 1024, 0")
                A(f"s_sub_u32 {s(sT2)}, {s(sT2)}, {s(sT3)}")
            A(f"buffer_load_dwordx4 {v(bufs[b],4)}, {v(vL16)}, {s(S_WS,4)}, {s(sT2)} offen offset:{(b%4)*1024}")
        for b in range(11):
            A(f"s_waitcnt vmcnt({10 - b})")
            for ct in range(2):
                c = "0" if b == 0 else v(aB + 4 * ct, 4)
                A(f"v_mfma_f32_16x16x32_bf16 {v(aB+4*ct,4)}, {v(128+8*b+4*ct,4)}, {v(bufs[b],4)}, {c}")
        A.nop(8)
        A(f"ds_write_b128 {v(vRw)}, {v(aB,4)} offset:2048")
        A(f"ds_write_b128 {v(vRw)}, {v(aB+4,4)} offset:3072")
        A(f"s_waitcnt lgkmcnt(0)")
        A(f"s_barrier")
        Lb2 = A.new_label("b63s")
        A(f"s_cmp_gt_u32 {s(sWAVE)}, 1")
        A(f"s_cbranch_scc1 {Lb2}")
        for w in range(4):
            A(f"ds_read_b128 {v(32+4*w,4)}, {v(vRr)} offset:{w*4096+2048}")
        A(f"v_lshlrev_b32 {v(vT1)}, 1, {v(vOut)}")
        A(f"s_waitcnt lgkmcnt(0)")
        for r in range(4):
            A(f"v_add_f32 {v(32+r)}, {v(32+r)}, {v(36+r)}")
            A(f"v_add_f32 {v(40+r)}, {v(40+r)}, {v(44+r)}")
        for r in range(4):
            A(f"v_add_f32 {v(32+r)}, {v(32+r)}, {v(40+r)}")
        A(f"s_mov_b32 {s(sT2)}, {WS_B63:#x}")
        A(f"buffer_store_dwordx4 {v(32,4)}, {v(vT1)}, {s(S_WS,4)}, {s(sT2)} offen sc1")
        A(f"s_waitcnt vmcnt(0)")
        A.label(Lb2)
        A(f"s_barrier")
        Lb3 = A.new_label("b63f")
        A(f"s_cmp_lg_u32 {s(sWAVE)}, 0")
        A(f"s_cbranch_scc1 {Lb3}")
        A(f"v_mov_b32 {v(vT2)}, 1")
        A(f"s_mov_b32 {s(sT2)}, {WS_OF + 63 * 128:#x}")
        A(f"s_mov_b64 exec, 1")
        A(f"buffer_atomic_add {v(vT2)}, off, {s(S_WS,4)}, {s(sT2)} sc1")
        A(f"s_mov_b64 exec, -1")
        A.label(Lb3)
        A.label(Lnb)
    A(f"s_mov_b32 {s(sSeg)}, {s(sPar)}")
    A(f"v_mov_b32 v12, 0")
    LP = ["", " nt", " sc0", " sc0 nt"][opts.get('olp', 0)]
    Lm = A.new_label("out_loop")
    A.label(Lm)
    A(f"s_mul_i32 {s(sT2)}, {s(sSeg)}, {HX_STRIDE}")
    A(f"s_mul_i32 {s(sT3)}, {s(sSh)}, {43*1024}")
    A(f"s_add_u32 {s(sT2)}, {s(sT2)}, {s(sT3)}")
    A(f"s_mul_i32 {s(sT3)}, {s(sWAVE)}, {11*1024}")
    A(f"s_add_u32 {s(sT2)}, {s(sT2)}, {s(sT3)}")
    A(f"s_add_u32 {s(sT2)}, {s(sT2)}, {WS_HX:#x}")
    vq = Q(A, "vmcnt", 63)
    for b in range(11):
        if b in (4, 8):
            A(f"s_add_u32 {s(sT2)}, {s(sT2)}, 4096")
        if b == 10:
            A(f"s_cmp_eq_u32 {s(sWAVE)}, 3")
            A(f"s_cselect_b32 {s(sT3)}, 1024, 0")
            A(f"s_sub_u32 {s(sT2)}, {s(sT2)}, {s(sT3)}")
        vq.issue(('H', b), f"buffer_load_dwordx4 {v(bufs[b],4)}, {v(vL16)}, {s(S_WS,4)}, {s(sT2)} offen offset:{(b%4)*1024}" + LP)
    A(f"s_lshl_b32 {s(sT2)}, {s(sSeg)}, 7")
    A(f"s_add_u32 {s(sT2)}, {s(sT2)}, {WS_G:#x}")
    vq.issue('g', f"buffer_load_dword v9, {v(vG)}, {s(S_WS,4)}, {s(sT2)} offen")
    A(f"s_lshl_b32 {s(sOff)}, {s(sSeg)}, 7")
    A(f"s_add_u32 {s(sOff)}, {s(sOff)}, {WS_OF:#x}")
    Lw = A.new_label("ow")
    Lp = A.new_label("op")
    OFE = opts.get('ofe', 1)
    if OFE:
        A(f"v_cmp_ne_u32 vcc, 0, v12")
        A(f"s_nop 0")
        A(f"s_cmp_eq_u64 vcc, -1")
        A(f"s_cbranch_scc1 {Lw}")
    else:
        A(f"s_cmp_lg_u32 {s(sWAVE)}, 0")
        A(f"s_cbranch_scc1 {Lw}")
    A(f"s_cmp_lg_u32 {s(sDEAD)}, 0")
    A(f"s_cbranch_scc1 {Lw}")
    A(f"s_mov_b32 {s(sShf)}, 0")
    A.label(Lp)
    A(f"buffer_load_dword v10, {v(vOF)}, {s(S_WS,4)}, {s(sOff)} offen sc1")
    A(f"s_waitcnt vmcnt(0)")
    A(f"v_cmp_ne_u32 vcc, 0, v10")
    A(f"s_add_u32 {s(sShf)}, {s(sShf)}, 1")
    A(f"s_nop 0")
    A(f"s_cmp_eq_u64 vcc, -1")
    A(f"s_cbranch_scc1 {Lw}")
    A(f"s_sleep {opts.get('osleep', 4)}")
    A(f"s_cmp_lt_u32 {s(sShf)}, {SPIN_LIMIT}")
    A(f"s_cbranch_scc1 {Lp}")
    A(f"s_mov_b32 {s(sDEAD)}, 1")
    A.label(Lw)
    if opts.get('tprof'):
        stamp(A, 4)
    if OFE:
        A(f"s_add_u32 {s(sOff)}, {s(sOff)}, 256")
        vq.issue('fl', f"buffer_load_dword v12, {v(vOF)}, {s(S_WS,4)}, {s(sOff)} offen sc1")
    else:
        A(f"s_barrier")
    A(f"s_lshl_b32 {s(sSO)}, {s(sSeg)}, 5")
    A(f"s_lshl_b32 {s(sT3)}, {s(sWAVE)}, 3")
    A(f"s_add_u32 {s(sSO)}, {s(sSO)}, {s(sT3)}")
    A(f"s_lshl_b32 {s(sSO)}, {s(sSO)}, 13")
    A(f"s_lshl_b32 {s(sT3)}, {s(sSh)}, 12")
    A(f"s_add_u32 {s(sSO)}, {s(sSO)}, {s(sT3)}")
    A(f"s_add_u32 {s(sSO)}, {s(sSO)}, {WS_OX:#x}")

    obuf = {}
    def issue_o(b, buf):
        A(f"s_add_u32 {s(sT3)}, {s(sSO)}, {(b>>2)*8192}")
        vq.issue(('O', b), f"buffer_load_dwordx4 {v(buf,4)}, {v(vL16)}, {s(S_WS,4)}, {s(sT3)} offen offset:{(b&3)*1024}" + LP)
        obuf[b] = buf
    nfree = len(bufs) - 11
    for b in range(nfree):
        issue_o(b, bufs[11 + b])
    nxt = nfree
    for b in range(11):
        vq.wait(('H', b))
        for ct in range(2):
            c = "0" if b == 0 else v(aB + 4 * ct, 4)
            A(f"v_mfma_f32_16x16x32_bf16 {v(aB+4*ct,4)}, {v(128+8*b+4*ct,4)}, {v(bufs[b],4)}, {c}")
        if nxt < 32:
            issue_o(nxt, bufs[b])
            nxt += 1
    for b in range(32):
        vq.wait(('O', b))
        if opts.get('tprof') and b in (0, 31):
            stamp(A, 5 if b == 0 else 6)
        for ct in range(2):
            c = "0" if b == 0 else v(aA + 4 * ct, 4)
            A(f"v_mfma_f32_16x16x32_bf16 {v(aA+4*ct,4)}, {a(8*b+4*ct,4)}, {v(obuf[b],4)}, {c}")
    A.nop(8)
    A(f"ds_write_b128 {v(vRw)}, {v(aA,4)} offset:0")
    A(f"ds_write_b128 {v(vRw)}, {v(aA+4,4)} offset:1024")
    A(f"ds_write_b128 {v(vRw)}, {v(aB,4)} offset:2048")
    A(f"ds_write_b128 {v(vRw)}, {v(aB+4,4)} offset:3072")
    A(f"s_waitcnt lgkmcnt(0)")
    A(f"s_barrier")
    Lsk = A.new_label("osk")
    A(f"s_cmp_gt_u32 {s(sWAVE)}, 1")
    A(f"s_cbranch_scc1 {Lsk}")
    R = 32
    for w in range(4):
        A(f"ds_read_b128 {v(R+8*w,4)}, {v(vRr)} offset:{w*4096}")
        A(f"ds_read_b128 {v(R+8*w+4,4)}, {v(vRr)} offset:{w*4096+2048}")
    A(f"s_waitcnt lgkmcnt(0)")
    for r in range(4):
        A(f"v_add_f32 {v(R+r)}, {v(R+r)}, {v(R+8+r)}")
        A(f"v_add_f32 {v(R+16+r)}, {v(R+16+r)}, {v(R+24+r)}")
        A(f"v_add_f32 {v(R+4+r)}, {v(R+4+r)}, {v(R+12+r)}")
        A(f"v_add_f32 {v(R+20+r)}, {v(R+20+r)}, {v(R+28+r)}")
    for r in range(4):
        A(f"v_add_f32 {v(R+r)}, {v(R+r)}, {v(R+16+r)}")
        A(f"v_add_f32 {v(R+4+r)}, {v(R+4+r)}, {v(R+20+r)}")
    for r in range(4):
        A(f"v_sub_f32 {v(R+r)}, {v(R+r)}, {v(R+4+r)}")
    for r in range(4):
        A(f"v_fma_f32 {v(R+r)}, {v(R+r)}, v9, {v(R+4+r)}")
    A(f"v_cvt_pk_bf16_f32 {v(R+8)}, {v(R)}, {v(R+1)}")
    A(f"v_cvt_pk_bf16_f32 {v(R+9)}, {v(R+2)}, {v(R+3)}")
    A(f"s_lshl_b32 {s(sT2)}, {s(sSeg)}, 15")
    A(f"buffer_store_dwordx2 {v(R+8,2)}, {v(vOut)}, {s(S_C,4)}, {s(sT2)} offen" + ["", " sc1", " sc0 sc1", " nt", " sc1 nt"][opts.get('opol', 0)])
    A.label(Lsk)
    if opts.get('tprof'):
        stamp(A, 7)
    if opts.get('ofe', 1):
        A(f"v_xor_b32 {v(vRw)}, 0x4000, {v(vRw)}")
        A(f"v_xor_b32 {v(vRr)}, 0x4000, {v(vRr)}")
    A(f"s_add_u32 {s(sSeg)}, {s(sSeg)}, 2")
    A(f"s_cmp_lt_u32 {s(sSeg)}, {63 if opts.get('cf') else 64}")
    A(f"s_cbranch_scc1 {Lm}")
    A(f"s_waitcnt vmcnt(0)")
```

```python
import sys
from dsl import *

KNAME = "gated_mix__memory_aug_recurrent_mem_tr__dense_activation_silu__prompt_kernel"

WS_P = 0
WS_M = 0x100000
WS_KVF = 0x110000
WS_OF = 0x120000
WS_KM = 0x200000
WS_PF = 0xA00000
WS_B63 = 0xB10000
WS_KX = 0x1000000
KVSTR = 16384
WS_QX = 0x3000000
WS_OX = 0x4000000
WS_HX = 0x5000000
HX_STRIDE = 2 * 43 * 1024
WS_CP = 0x5600000
WS_G = 0x5800000
WS_T = 0x5810000
WS_SIZE = 0x5860000

D_CHECKIN = 0
D_XCCMASK = 1
D_FFN = 2
D_ERR = 4
D_WDONE = 5
D_KV = 8
D_O = 24
D_PROG = 40

S_WS, S_DBG, S_X, S_A, S_B, S_C, S_D = 4, 8, 12, 16, 20, 24, 28
sWAVE, sIDX, sXCD = 32, 33, 34
sT0, sT1, sT2, sT3, sT4, sT5 = 35, 36, 37, 38, 39, 40
sDEAD = 41
sEX = 42
P_X, P_MEM0, P_WQ, P_WK, P_WV, P_WO, P_W1, P_W2, P_GATE, P_OUT, P_DBG, P_WS = 64, 66, 68, 70, 72, 74, 80, 82, 84, 86, 88, 90
SPIN_LIMIT = 1 << 17

LDS_BYTES = 160 * 1024


def mk_srd(A, d, p, size):
    A(f"s_mov_b32 {s(d)}, {s(p)}")
    A(f"s_mov_b32 {s(d+1)}, {s(p+1)}")
    A(f"s_mov_b32 {s(d+2)}, {size:#x}")
    A(f"s_mov_b32 {s(d+3)}, 0x00020000")


def wait_byte(A, vT, vZero, s_off, s_shift, target, tag, s_tmp=sT0, s_cnt=sT1, target_is_sreg=False, sleep=2):
    L = A.new_label("w" + tag)
    Ld = A.new_label("wd" + tag)
    A(f"s_mov_b32 {s(s_cnt)}, 0")
    A(f"s_cmp_lg_u32 {s(sDEAD)}, 0")
    A(f"s_cbranch_scc1 {Ld}")
    A.label(L)
    A(f"buffer_load_dword {v(vT)}, {v(vZero)}, {s(S_DBG,4)}, {s(s_off)} offen sc1")
    A(f"s_waitcnt vmcnt(0)")
    A(f"v_readfirstlane_b32 {s(s_tmp)}, {v(vT)}")
    A(f"s_lshr_b32 {s(s_tmp)}, {s(s_tmp)}, {s(s_shift)}")
    A(f"s_and_b32 {s(s_tmp)}, {s(s_tmp)}, 0xff")
    A(f"s_cmp_ge_u32 {s(s_tmp)}, {s(target) if target_is_sreg else target}")
    A(f"s_cbranch_scc1 {Ld}")
    if sleep:
        A(f"s_sleep {sleep}")
    A(f"s_add_u32 {s(s_cnt)}, {s(s_cnt)}, 1")
    A(f"s_cmp_lt_u32 {s(s_cnt)}, {SPIN_LIMIT}")
    A(f"s_cbranch_scc1 {L}")
    A(f"s_mov_b32 {s(sDEAD)}, 1")
    A.label(Ld)


def signal_byte(A, vOne, vZero, s_off, s_shift, vTmp):
    A(f"s_lshl_b32 {s(sT0)}, 1, {s(s_shift)}")
    A(f"v_mov_b32 {v(vTmp)}, {s(sT0)}")
    A(f"s_mov_b64 {s(sEX,2)}, exec")
    A(f"s_mov_b64 exec, 1")
    A(f"buffer_atomic_add {v(vTmp)}, {v(vZero)}, {s(S_DBG,4)}, {s(s_off)} offen sc1")
    A(f"s_mov_b64 exec, {s(sEX,2)}")


PROF = False
sSTAMP = 92


def stamp(A, i):
    if not PROF:
        return
    A(f"s_memrealtime s[62:63]")
    A(f"s_waitcnt lgkmcnt(0)")
    A(f"s_mov_b32 {s(sSTAMP+i)}, s62")


def stamp_clk(A, i):
    if not PROF:
        return
    A(f"s_memtime s[62:63]")
    A(f"s_waitcnt lgkmcnt(0)")
    A(f"s_mov_b32 {s(sSTAMP+i)}, s62")


def stamp_if_lt(A, i, sreg, limit, clk=False):
    if not PROF:
        return
    L = A.new_label("st")
    A(f"s_cmp_lt_u32 {s(sreg)}, {limit}")
    A(f"s_cbranch_scc0 {L}")
    (stamp_clk if clk else stamp)(A, i)
    A.label(L)


def stamp_flush(A):
    if not PROF:
        return
    A(f"s_lshl_b32 s62, s2, 2")
    A(f"s_add_u32 s62, s62, {s(sWAVE)}")
    A(f"s_lshl_b32 s62, s62, 6")
    A(f"s_add_u32 s62, s62, {WS_T:#x}")
    A(f"v_mov_b32 v1, 0")
    A(f"s_mov_b64 exec, 1")
    for i in range(10):
        A(f"v_mov_b32 v2, {s(sSTAMP+i)}")
        A(f"buffer_store_dword v2, v1, {s(S_WS,4)}, s62 offen offset:{4*i}")
    A(f"s_waitcnt vmcnt(0)")


STG_BUF = 3072


def stage_addr(row):
    return 64 * row + 128 * (row >> 2)


def load_blocks(A, blocks, vST, window, after_first_issue=None, nolds=False):
    n = len(blocks)

    def issue(b):
        blk = blocks[b]
        for k in range(2):
            so = blk['soff'][k]
            A(f"s_mov_b32 {s(sT0)}, {so:#x}")
            if blk.get('sbase') is not None:
                A(f"s_add_u32 {s(sT0)}, {s(sT0)}, {s(blk['sbase'])}")
            A(f"buffer_load_dwordx4 {reg(off(blk['raw'], 4*k), 4)}, {v(blk['voff'])}, {s(blk['srd'],4)}, {s(sT0)} offen")

    issued = 0
    def can_issue(b, done):
        r = blocks[b]['raw']
        for p in range(b):
            if blocks[p]['raw'] == r or blocks[p].get('dst') == r:
                if p >= done:
                    return False
        return True

    while issued < n and issued < window and can_issue(issued, 0):
        issue(issued)
        issued += 1
    if after_first_issue:
        after_first_issue(2 * issued)
    for b in range(n):
        blk = blocks[b]
        assert issued > b, "window deadlock"
        A(f"s_waitcnt vmcnt({2*(issued-b-1)})")
        buf = (b & 1) * STG_BUF
        if not nolds:
            A(f"ds_write_b128 {v(vST)}, {reg(blk['raw'],4)} offset:{buf}")
            A(f"ds_write_b128 {v(vST)}, {reg(off(blk['raw'],4),4)} offset:{buf + stage_addr(16)}")
            for i in range(4):
                A(f"ds_read_b64_tr_b16 {reg(off(blk['dst'],2*i),2)}, {v(blk['vtr'])} offset:{buf + blk['imm'][i]}")
        if blk.get('post'):
            blk['post'](A)
        while issued < n and issued - b - 1 < window and can_issue(issued, b + 1):
            issue(issued)
            issued += 1
    A("s_waitcnt lgkmcnt(0)")


def load_blocks2(A, blocks, vST, window, extra=None, nolds=False, vq=None, upto=None):
    n = len(blocks)
    vq = vq or Q(A, "vmcnt", 63)
    state = dict(issued=0, xi=False, xc=False)

    def issue(b):
        blk = blocks[b]
        for k in range(2):
            A(f"s_mov_b32 {s(sT0)}, {blk['soff'][k]:#x}")
            vq.issue(('B', id(blk)), f"buffer_load_dwordx4 {reg(off(blk['raw'], 4*k), 4)}, {v(blk['voff'])}, {s(blk['srd'],4)}, {s(sT0)} offen")
        state['issued'] += 1
        if extra and b == extra[0]:
            extra[1](vq)
            state['xi'] = True
    while state['issued'] < n and state['issued'] < window:
        issue(state['issued'])
    for b in range(n):
        blk = blocks[b]
        vq.wait(('B', id(blk)))
        if extra and state['xi'] and not state['xc'] and b > extra[0]:
            extra[2](vq)
            state['xc'] = True
        buf = (b & 1) * STG_BUF
        if not nolds:
            A(f"ds_write_b128 {v(vST)}, {reg(blk['raw'],4)} offset:{buf}")
            A(f"ds_write_b128 {v(vST)}, {reg(off(blk['raw'],4),4)} offset:{buf + stage_addr(16)}")
            for i in range(4):
                A(f"ds_read_b64_tr_b16 {reg(off(blk['dst'],2*i),2)}, {v(blk['vtr'])} offset:{buf + blk['imm'][i]}")
        if blk.get('post'):
            blk['post'](A)
        while state['issued'] < n and state['issued'] - b - 1 < window:
            issue(state['issued'])
    if extra and not state['xc']:
        extra[2](vq)
    A("s_waitcnt lgkmcnt(0)")


def tr_lane_addr(A, vD, vL, vT1, vT2, kind, base_sreg=None, base_imm=0):
    A(f"v_lshrrev_b32 {v(vT1)}, 4, {v(vL)}")
    A(f"v_bfe_u32 {v(vT2)}, {v(vL)}, 2, 2")
    A(f"v_and_b32 {v(vD)}, 3, {v(vL)}")
    A(f"v_lshlrev_b32 {v(vD)}, 3, {v(vD)}")

    def add_term(expr_src, mask_shift, mul):
        sh, bits = mask_shift
        A(f"v_bfe_u32 v{TMPX}, {v(expr_src)}, {sh}, {bits}")
        A(f"v_mul_u32_u24 v{TMPX}, {mul}, v{TMPX}")
        A(f"v_add_u32 {v(vD)}, {v(vD)}, v{TMPX}")

    G, r = vT1, vT2
    def sa(row):
        return stage_addr(row)
    if kind == 'chain_qkv':
        add_term(G, (1, 1), sa(8)); add_term(G, (0, 1), sa(4)); add_term(r, (0, 1), sa(1)); add_term(r, (1, 1), 32)
    elif kind == 'chain_wo':
        add_term(G, (0, 1), sa(16)); add_term(G, (1, 1), sa(4)); add_term(r, (0, 1), sa(1)); add_term(r, (1, 1), 32)
    elif kind == 'k16':
        add_term(G, (1, 1), sa(8)); add_term(r, (0, 2), sa(1)); add_term(G, (0, 1), 32)
    elif kind == 'out_wo':
        add_term(G, (0, 2), sa(4)); add_term(r, (0, 2), sa(1))
    elif kind == 'out_w2':
        add_term(G, (1, 1), sa(16)); add_term(G, (0, 1), sa(4)); add_term(r, (0, 2), sa(1))
    else:
        raise ValueError(kind)
    if base_sreg is not None:
        A(f"v_add_u32 {v(vD)}, {s(base_sreg)}, {v(vD)}")
    if base_imm:
        A(f"v_add_u32 {v(vD)}, {base_imm}, {v(vD)}")


TR_IMM = {
    'chain_qkv': [stage_addr(16 * hi + 2 * qq) for hi in range(2) for qq in range(2)],
    'chain_wo': [stage_addr(8 * hi + 2 * qq) for hi in range(2) for qq in range(2)],
    'k16': [stage_addr(16 * kk + 4 * hf) for kk in range(2) for hf in range(2)],
    'out_wo': [stage_addr(16 * hf) + 32 * ct for ct in range(2) for hf in range(2)],
    'out_w2': [stage_addr(8 * hf) + 32 * ct for ct in range(2) for hf in range(2)],
}
TMPX = 15


def stage_lane_addr(A, vD, vL, vT, base_sreg):
    A(f"v_lshrrev_b32 {v(vD)}, 2, {v(vL)}")
    A(f"v_lshlrev_b32 {v(vD)}, 6, {v(vD)}")
    A(f"v_lshrrev_b32 {v(vT)}, 4, {v(vL)}")
    A(f"v_lshlrev_b32 {v(vT)}, 7, {v(vT)}")
    A(f"v_add_u32 {v(vD)}, {v(vD)}, {v(vT)}")
    A(f"v_and_b32 {v(vT)}, 3, {v(vL)}")
    A(f"v_lshlrev_b32 {v(vT)}, 4, {v(vT)}")
    A(f"v_add_u32 {v(vD)}, {v(vD)}, {v(vT)}")
    A(f"v_add_u32 {v(vD)}, {s(base_sreg)}, {v(vD)}")


def raw_lane_off(A, vD, vL, vT, pitch):
    A(f"v_lshrrev_b32 {v(vD)}, 2, {v(vL)}")
    A(f"v_mul_u32_u24 {v(vD)}, {pitch}, {v(vD)}")
    A(f"v_and_b32 {v(vT)}, 3, {v(vL)}")
    A(f"v_lshlrev_b32 {v(vT)}, 4, {v(vT)}")
    A(f"v_add_u32 {v(vD)}, {v(vD)}, {v(vT)}")


def lane_expr(A, vD, vL, terms, const=0, sregs=(), tmp=None):
    tmp = TMPX if tmp is None else tmp
    first = True
    for (sh, bits, mul) in terms:
        dst = vD if first else tmp
        A(f"v_bfe_u32 {v(dst)}, {v(vL)}, {sh}, {bits}")
        if mul != 1:
            A(f"v_mul_u32_u24 {v(dst)}, {mul}, {v(dst)}")
        if not first:
            A(f"v_add_u32 {v(vD)}, {v(vD)}, {v(tmp)}")
        first = False
    if first:
        A(f"v_mov_b32 {v(vD)}, 0")
    if const:
        A(f"v_add_u32 {v(vD)}, {const:#x}, {v(vD)}")
    for sr in sregs:
        A(f"v_add_u32 {v(vD)}, {s(sr)}, {v(vD)}")


class Q:
    def __init__(self, A, name, cap):
        self.A, self.name, self.cap = A, name, cap
        self.ops = []

    def issue(self, tag, text):
        self.A(text)
        self.ops.append(tag)

    def wait(self, tag):
        if tag not in self.ops:
            return
        i = max(j for j, t in enumerate(self.ops) if t == tag)
        n = len(self.ops) - 1 - i
        self.A(f"s_waitcnt {self.name}({min(n, self.cap)})")
        if n <= self.cap:
            self.ops = self.ops[i + 1:]
        else:
            self.ops = self.ops[len(self.ops) - self.cap:]

    def wait_all(self):
        self.A(f"s_waitcnt {self.name}(0)")
        self.ops = []


XBUF = 64 * 528
XB1 = 36864


class XG:
    vL, vL16, vXW, vXR, vZero, vTmp, vT1, vT2 = 1, 2, 3, 4, 10, 11, 12, 13
    XP, XF = 16, 48
    NF = 4

    def __init__(self, A, sDelta):
        self.A, self.sDelta = A, sDelta

    def setup(self):
        A = self.A
        vL, vL16, vXW, vXR, vZero, vT1 = self.vL, self.vL16, self.vXW, self.vXR, self.vZero, self.vT1
        A(f"v_and_b32 {v(vL)}, 63, v0")
        A(f"v_lshlrev_b32 {v(vL16)}, 4, {v(vL)}")
        A(f"v_mov_b32 {v(vZero)}, 0")
        A(f"v_mul_u32_u24 {v(vXW)}, 528, {v(vL)}")
        A(f"s_lshl_b32 {s(sT0)}, {s(sWAVE)}, 7")
        A(f"v_add_u32 {v(vXW)}, {s(sT0)}, {v(vXW)}")
        A(f"v_lshrrev_b32 {v(vXR)}, 5, {v(vL)}")
        A(f"v_mul_u32_u24 {v(vXR)}, 528, {v(vXR)}")
        A(f"v_and_b32 {v(vT1)}, 31, {v(vL)}")
        A(f"v_lshlrev_b32 {v(vT1)}, 4, {v(vT1)}")
        A(f"v_add_u32 {v(vXR)}, {v(vXR)}, {v(vT1)}")

    def issue_x(self, seg_sreg, vq=None):
        A = self.A
        if vq is not None:
            A = lambda x_: (vq.issue('x', x_) if x_.startswith('buffer_load') else self.A(x_))
        A(f"s_lshl_b32 {s(sT0)}, {s(seg_sreg)}, 15")
        A(f"s_lshl_b32 {s(sT1)}, {s(sWAVE)}, 13")
        A(f"s_add_u32 {s(sT0)}, {s(sT0)}, {s(sT1)}")
        for i in range(8):
            if i == 4:
                A(f"s_add_u32 {s(sT0)}, {s(sT0)}, 4096")
            A(f"buffer_load_dwordx4 {v(self.XP+4*i,4)}, {v(self.vL16)}, {s(S_X,4)}, {s(sT0)} offen offset:{(i%4)*1024}")

    def write_x(self):
        for i in range(8):
            self.A(f"ds_write_b128 {v(self.vXW)}, {v(self.XP+4*i,4)} offset:{i*16}")

    def after_weights(self):
        A = self.A
        A(f"s_waitcnt lgkmcnt(0)")
        A(f"s_barrier")
        A(f"s_mov_b32 {s(self.sDelta)}, {XB1}")
        A(f"v_add_u32 {v(self.vXW)}, {s(self.sDelta)}, {v(self.vXW)}")

    def body(self, mfmas, wpos=9, wcnt=0, after_write=None):
        A, NF, XF = self.A, self.NF, self.XF

        def rd(kk):
            A(f"ds_read_b128 {v(XF + 4*(kk % NF), 4)}, {v(self.vXR)} offset:{kk*1056}")
        for kk in range(NF - 1):
            rd(kk)
        for kk in range(32):
            if kk + NF - 1 < 32:
                rd(kk + NF - 1)
                A(f"s_waitcnt lgkmcnt({NF-1})")
            else:
                A(f"s_waitcnt lgkmcnt({31-kk})")
            mfmas(kk, v(XF + 4 * (kk % NF), 4))
            if wpos is not None and kk == wpos:
                A(f"s_waitcnt vmcnt({wcnt})")
                self.write_x()
                A(f"s_waitcnt lgkmcnt(0)")
                if after_write:
                    after_write()

    def toggle(self):
        A = self.A
        A(f"v_add_u32 {v(self.vXR)}, {s(self.sDelta)}, {v(self.vXR)}")
        A(f"s_sub_u32 {s(self.sDelta)}, 0, {s(self.sDelta)}")
        A(f"v_add_u32 {v(self.vXW)}, {s(self.sDelta)}, {v(self.vXW)}")


def gen_hq(A, opts):
    vWG, vST, vTR, vKst, vVst = 5, 6, 7, 8, 9
    ACC = 64
    EP = 112
    sH, sJ, sSeg, sNext, sDelta, sSegOff, sKVoff, sKVsh, sXa = 44, 45, 46, 47, 48, 49, 50, 51, 52
    sCnt, sKVF = 53, 60
    xg = XG(A, sDelta)
    vL, vL16, vZero, vTmp, vT1, vT2, XF = xg.vL, xg.vL16, xg.vZero, xg.vTmp, xg.vT1, xg.vT2, xg.XF
    A(f"s_sub_u32 {s(sT0)}, {s(sXCD)}, 3")
    A(f"s_lshl_b32 {s(sT0)}, {s(sT0)}, 5")
    A(f"s_add_u32 {s(sT0)}, {s(sT0)}, {s(sIDX)}")
    A(f"s_mul_i32 {s(sH)}, {s(sT0)}, 205")
    A(f"s_lshr_b32 {s(sH)}, {s(sH)}, 10")
    A(f"s_mul_i32 {s(sT1)}, {s(sH)}, 5")
    A(f"s_sub_u32 {s(sJ)}, {s(sT0)}, {s(sT1)}")
    mk_srd(A, S_A, P_WQ, 512 * 8192)
    mk_srd(A, S_B, P_WK, 512 * 8192)
    mk_srd(A, S_C, P_WV, 512 * 8192)
    xg.setup()
    A(f"s_mov_b32 {s(sSeg)}, {s(sJ)}")
    raw_lane_off(A, vWG, vL, vT1, 8192)
    A(f"s_lshl_b32 {s(sT0)}, {s(sH)}, 8")
    A(f"s_lshl_b32 {s(sT1)}, {s(sWAVE)}, 6")
    A(f"s_add_u32 {s(sT0)}, {s(sT0)}, {s(sT1)}")
    A(f"v_add_u32 {v(vWG)}, {s(sT0)}, {v(vWG)}")
    STG = 80 * 1024
    A(f"s_mul_i32 {s(sT2)}, {s(sWAVE)}, {2*STG_BUF}")
    A(f"s_add_u32 {s(sT2)}, {s(sT2)}, {STG}")
    stage_lane_addr(A, vST, vL, vT1, sT2)
    tr_lane_addr(A, vTR, vL, vT1, vT2, 'k16', base_sreg=sT2)
    A(f"s_lshl_b32 {s(sT0)}, {s(sWAVE)}, 10")
    lane_expr(A, vKst, vL, [(4, 1, 4096), (5, 1, 256), (0, 4, 16)], sregs=[sT0])
    A(f"s_lshl_b32 {s(sT0)}, {s(sWAVE)}, 11")
    lane_expr(A, vVst, vL, [(4, 1, 1024), (5, 1, 256), (0, 4, 16)], sregs=[sT0])

    def wblocks(srd, dst):
        return [dict(srd=srd, voff=vWG, soff=[(32 * b) * 8192, (32 * b + 16) * 8192], raw=off(dst, 8 * b), dst=off(dst, 8 * b),
                     vtr=vTR, imm=TR_IMM['k16']) for b in range(16)]
    kvb = wblocks(S_B, ('a', 128)) + wblocks(S_C, ('v', 128))
    qb = wblocks(S_A, ('a', 0))
    if opts.get('hdelay'):
        Lhd = A.new_label("hqd")
        A(f"s_cmp_lg_u32 {s(sWAVE)}, 0")
        A(f"s_cbranch_scc1 {Lhd}")
        A(f"s_mov_b32 {s(sT2)}, {D_CHECKIN*4}")
        A(f"s_mov_b32 {s(sT3)}, 0")
        wait_byte(A, vTmp, vZero, sT2, sT3, opts['hdelay'], "hqd", sleep=4)
        A.label(Lhd)
        A(f"s_barrier")
    stamp(A, 1)
    if PROF:
        kvb[15]['post'] = lambda A_: stamp(A_, 6)
        kvb[0]['post'] = lambda A_: stamp(A_, 8)

    def x_issue(vq):
        xg.issue_x(sSeg, vq)

    def x_consume(vq):
        vq.wait('x')
        xg.write_x()
        stamp(A, 5)
    hw = opts.get('hqwin', 10)
    load_blocks2(A, kvb, vST, window=hw, extra=(opts.get('hqxpos', 16), x_issue, x_consume))
    stamp(A, 7)
    xg.after_weights()
    A(f"s_mov_b32 {s(sXa)}, -1")
    A(f"s_mov_b32 {s(sCnt)}, 1")
    A(f"s_lshl_b32 {s(sKVF)}, {s(sH)}, 7")
    A(f"s_lshl_b32 {s(sT0)}, {s(sJ)}, 2")
    A(f"s_add_u32 {s(sKVF)}, {s(sKVF)}, {s(sT0)}")
    A(f"s_add_u32 {s(sKVF)}, {s(sKVF)}, {WS_KVF:#x}")
    A(f"buffer_load_dword v15, {v(vZero)}, {s(S_DBG,4)}, 0 offen offset:{D_CHECKIN*4} sc1")

    def mf_k(kk, f):
        c = lambda base: "0" if kk == 0 else v(base, 16)
        A(f"v_mfma_f32_32x32x16_bf16 {v(ACC+16,16)}, {a(128+4*kk,4)}, {f}, {c(ACC+16)}")

    def mf_v(kk, f):
        c = lambda base: "0" if kk == 0 else v(base, 16)
        A(f"v_mfma_f32_32x32x16_bf16 {v(ACC+32,16)}, {f}, {v(128+4*kk,4)}, {c(ACC+32)}")

    def mf_q(kk, f):
        c = lambda base: "0" if kk == 0 else v(base, 16)
        A(f"v_mfma_f32_32x32x16_bf16 {v(ACC,16)}, {a(4*kk,4)}, {f}, {c(ACC)}")

    def seg_offsets():
        A(f"s_lshl_b32 {s(sSegOff)}, {s(sSeg)}, 5")
        A(f"s_add_u32 {s(sSegOff)}, {s(sSegOff)}, {s(sH)}")
        A(f"s_lshl_b32 {s(sKVoff)}, {s(sSegOff)}, 14")
        A(f"s_lshl_b32 {s(sKVsh)}, {s(sSegOff)}, 12")
        A(f"s_lshl_b32 {s(sSegOff)}, {s(sSegOff)}, 13")

    def store_ct(acc, sbase, region, ep):
        for c in range(2):
            for q in range(4):
                A(f"v_cvt_pk_bf16_f32 {v(ep+4*c+q)}, {v(acc+8*c+2*q)}, {v(acc+8*c+2*q+1)}")
        A(f"s_add_u32 {s(sT0)}, {s(sbase)}, {region:#x}")
        for c in range(2):
            A(f"buffer_store_dwordx4 {v(ep+4*c,4)}, {v(vKst)}, {s(S_WS,4)}, {s(sT0)} offen offset:{c*512} sc1")

    def store_kv():
        store_ct(ACC + 16, sKVoff, WS_KX, EP)
        acc = ACC + 32
        for c in range(2):
            for hf in range(2):
                u = c + 2 * hf
                for q in range(2):
                    A(f"v_cvt_pk_bf16_f32 {v(EP+8+4*c+2*hf+q)}, {v(acc+4*u+2*q)}, {v(acc+4*u+2*q+1)}")
        A(f"s_add_u32 {s(sT0)}, {s(sKVoff)}, {WS_KX + 8192:#x}")
        for c in range(2):
            A(f"buffer_store_dwordx4 {v(EP+8+4*c,4)}, {v(vVst)}, {s(S_WS,4)}, {s(sT0)} offen offset:{c*512} sc1")

    def arm_km():
        for i in range(4):
            A(f"v_mov_b32 {v(XF+8+i)}, -1")
        A(f"s_lshl_b32 {s(sT1)}, {s(sWAVE)}, 10")
        A(f"s_add_u32 {s(sT0)}, {s(sKVsh)}, {s(sT1)}")
        A(f"s_add_u32 {s(sT0)}, {s(sT0)}, {WS_KM:#x}")
        A(f"buffer_store_dwordx4 {v(XF+8,4)}, {v(vL16)}, {s(S_WS,4)}, {s(sT0)} offen sc1")

    def flag_store():
        A(f"v_mov_b32 {v(vTmp)}, {s(sCnt)}")
        A(f"s_mov_b64 exec, 1")
        A(f"buffer_store_dword {v(vTmp)}, off, {s(S_WS,4)}, {s(sKVF)} sc1")
        A(f"s_mov_b64 exec, -1")
    xg.body(lambda kk, f: (mf_k(kk, f), mf_v(kk, f)), wpos=None)
    A.nop(12)
    seg_offsets()
    store_kv()
    arm_km()
    vq = Q(A, "vmcnt", 63)
    qn = [0]

    def q_first(vq_):
        pass
    nq0 = opts.get('hqq0', 8)
    for b in range(nq0):
        blk = qb[b]
        for k in range(2):
            A(f"s_mov_b32 {s(sT0)}, {blk['soff'][k]:#x}")
            vq.issue(('B', id(blk)), f"buffer_load_dwordx4 {reg(off(blk['raw'], 4*k), 4)}, {v(blk['voff'])}, {s(blk['srd'],4)}, {s(sT0)} offen")
    A(f"s_waitcnt vmcnt({2*nq0})")
    A(f"s_barrier")
    Lnf1 = A.new_label("hq_nf1")
    Lci = A.new_label("hq_ci")
    A(f"s_cmp_lg_u32 {s(sWAVE)}, 0")
    A(f"s_cbranch_scc1 {Lnf1}")
    A(f"v_readfirstlane_b32 {s(sT0)}, v15")
    A(f"s_and_b32 {s(sT0)}, {s(sT0)}, 0xff")
    A(f"s_cmp_ge_u32 {s(sT0)}, 32")
    A(f"s_cbranch_scc1 {Lci}")
    A(f"s_mov_b32 {s(sT2)}, {D_CHECKIN*4}")
    A(f"s_mov_b32 {s(sT3)}, 0")
    wait_byte(A, vTmp, vZero, sT2, sT3, 32, "hqci", sleep=4)
    A.label(Lci)
    flag_store()
    A.label(Lnf1)
    stamp(A, 3)
    for b in range(16):
        blk = qb[b]
        if b == 0:
            pass
        if b + nq0 < 16:
            nb_ = qb[b + nq0]
        vq.wait(('B', id(blk)))
        buf = (b & 1) * STG_BUF
        A(f"ds_write_b128 {v(vST)}, {reg(blk['raw'],4)} offset:{buf}")
        A(f"ds_write_b128 {v(vST)}, {reg(off(blk['raw'],4),4)} offset:{buf + stage_addr(16)}")
        for i in range(4):
            A(f"ds_read_b64_tr_b16 {reg(off(blk['dst'],2*i),2)}, {v(blk['vtr'])} offset:{buf + blk['imm'][i]}")
        if b + nq0 < 16:
            for k in range(2):
                A(f"s_mov_b32 {s(sT0)}, {nb_['soff'][k]:#x}")
                vq.issue(('B', id(nb_)), f"buffer_load_dwordx4 {reg(off(nb_['raw'], 4*k), 4)}, {v(nb_['voff'])}, {s(nb_['srd'],4)}, {s(sT0)} offen")
    A("s_waitcnt lgkmcnt(0)")
    stamp(A, 2)
    if opts.get('xatt'):
        from gen_xatt import xatt_setup, xatt_task
        xatt_setup(A, xg, sH)
    A(f"s_add_u32 {s(sNext)}, {s(sSeg)}, 5")
    xg.issue_x(sNext)
    xg.body(mf_q, wpos=opts.get('wpos', 9))
    A.nop(12)
    store_ct(ACC, sSegOff, WS_QX, XF)
    xg.toggle()
    A(f"s_waitcnt vmcnt(0) lgkmcnt(0)")
    A(f"s_barrier")
    A(f"s_mov_b32 {s(sXa)}, {s(sSeg)}")
    A(f"s_mov_b32 {s(sSeg)}, {s(sNext)}")

    Lloop = A.new_label("hq_loop")
    Lnoq = A.new_label("hq_noq")
    Lnoflag = A.new_label("hq_noflag")
    A.label(Lloop)
    A(f"s_add_u32 {s(sNext)}, {s(sSeg)}, 5")
    A(f"s_cmp_ge_u32 {s(sSeg)}, 64")
    A(f"s_cbranch_scc1 {Lnoq}")
    xg.issue_x(sNext)
    xg.body(lambda kk, f: (mf_k(kk, f), mf_v(kk, f), mf_q(kk, f)), wpos=opts.get('wpos', 9))
    A.nop(12)
    seg_offsets()
    store_kv()
    store_ct(ACC, sSegOff, WS_QX, XF)
    arm_km()
    if opts.get('cf') and not opts.get('nopfclr'):
        Lpf = A.new_label("hq_pf")
        A(f"s_cmp_lg_u32 {s(sCnt)}, 1")
        A(f"s_cbranch_scc1 {Lpf}")
        A(f"s_cmp_gt_u32 {s(sJ)}, 3")
        A(f"s_cbranch_scc1 {Lpf}")
        for i in range(4):
            A(f"v_mov_b32 {v(XF+12+i)}, 0")
        A(f"s_lshl_b32 {s(sT0)}, {s(sJ)}, 18")
        A(f"s_lshl_b32 {s(sT1)}, {s(sH)}, 13")
        A(f"s_add_u32 {s(sT0)}, {s(sT0)}, {s(sT1)}")
        A(f"s_lshl_b32 {s(sT1)}, {s(sWAVE)}, 11")
        A(f"s_add_u32 {s(sT0)}, {s(sT0)}, {s(sT1)}")
        A(f"s_add_u32 {s(sT0)}, {s(sT0)}, {WS_PF:#x}")
        for k in range(2):
            A(f"buffer_store_dwordx4 {v(XF+12,4)}, {v(vL16)}, {s(S_WS,4)}, {s(sT0)} offen offset:{k*1024} sc1")
        A.label(Lpf)
    xg.toggle()
    A(f"s_waitcnt vmcnt(0) lgkmcnt(0)")
    A(f"s_barrier")
    A(f"s_add_u32 {s(sCnt)}, {s(sCnt)}, 1")
    A(f"s_cmp_lg_u32 {s(sWAVE)}, 0")
    A(f"s_cbranch_scc1 {Lnoflag}")
    flag_store()
    A.label(Lnoflag)
    A.label(Lnoq)
    if opts.get('xatt'):
        xatt_task(A, xg, sH, sXa, opts)
    A(f"s_mov_b32 {s(sXa)}, {s(sSeg)}")
    A(f"s_mov_b32 {s(sSeg)}, {s(sNext)}")
    A(f"s_cmp_lt_u32 {s(sXa)}, {63 if opts.get('cf') else 64}")
    A(f"s_cbranch_scc1 {Lloop}")
    stamp(A, 4)


def karg_ready(A, opts, extra=None):
    lst = [(S_WS, P_WS, WS_SIZE), (S_DBG, P_DBG, 256), (S_X, P_X, 2048 * 1024)]
    if extra:
        lst = lst[:1] + extra + lst[1:]
        for d, p, size in lst:
            A(f"s_mov_b32 {s(d+2)}, {size:#x}")
            A(f"s_mov_b32 {s(d+3)}, 0x00020000")
        A(f"s_waitcnt lgkmcnt(0)")
        for d, p, size in lst:
            if opts.get('kw') == 2:
                A(f"s_mov_b64 {s(d,2)}, {s(p,2)}")
            else:
                A(f"s_mov_b32 {s(d)}, {s(p)}")
                A(f"s_mov_b32 {s(d+1)}, {s(p+1)}")
    else:
        A(f"s_waitcnt lgkmcnt(0)")
        for d, p, size in lst:
            mk_srd(A, d, p, size)
    if PROF:
        for i in range(10):
            A(f"s_mov_b32 {s(sSTAMP+i)}, 0")
    if opts.get('est'):
        stamp(A, 8)
        A(f"s_mov_b32 {s(sSTAMP)}, s60")
    else:
        stamp(A, 0)


def gen(opts):
    global PROF
    PROF = bool(opts.get('prof'))
    A = Asm()
    A.L.append(open("header.txt").read().rstrip("\n"))
    A.L.append(f"; @launch grid=(256,1,1) block=(256,1,1) lds={LDS_BYTES}")
    A.L.append('.amdgcn_target "amdgcn-amd-amdhsa--gfx950"')
    A.L.append(".text")
    A.L.append(f".globl {KNAME}")
    A.L.append(".p2align 8")
    A.L.append(f".type {KNAME},@function")
    A.label(KNAME)
    if opts.get('est'):
        A("s_memrealtime s[60:61]")
    A(f"s_cmp_ge_u32 s2, 256")
    A(f"s_cbranch_scc1 L_exit")
    A(f"s_load_dwordx16 s[64:79], s[0:1], 0")
    A(f"s_load_dwordx8 s[80:87], s[0:1], 64")
    A(f"s_load_dwordx4 s[88:91], s[0:1], 96")
    if opts.get('xrot'):
        A(f"s_add_u32 {s(sXCD)}, s2, {opts['xrot']}")
        A(f"s_and_b32 {s(sXCD)}, {s(sXCD)}, 7")
    else:
        A(f"s_and_b32 {s(sXCD)}, s2, 7")
    A(f"s_lshr_b32 {s(sIDX)}, s2, 3")
    if opts.get('cpr'):
        A("s_getpc_b64 s[44:45]")
        A.label("L_pc")
        A("s_mov_b32 s46, 0")
        A("s_mov_b32 s47, L_chain-L_pc")
        A(f"s_cmp_lt_u32 {s(sXCD)}, 3")
        A("s_cselect_b32 s46, L_out-L_pc, s46")
        A("s_cselect_b32 s47, L_exit-L_out, s47")
        A(f"s_cmp_eq_u32 {s(sXCD)}, 0")
        A("s_cselect_b32 s46, L_chain-L_pc, s46")
        A(f"s_cselect_b32 s47, {'L_top_s' if opts['cpr'] == 1 else 'L_out'}-L_chain, s47")
        A("v_lshlrev_b32 v2, 7, v0")
        A("s_add_u32 s44, s44, s46")
        A("s_addc_u32 s45, s45, 0")
        A("v_min_u32 v2, s47, v2")
        A("v_mov_b32 v5, s45")
        A("v_add_co_u32 v4, vcc, s44, v2")
        A("v_addc_co_u32 v5, vcc, 0, v5, vcc")
        A("global_load_dword v255, v[4:5], off")
    if opts.get('cpf'):
        A("s_getpc_b64 s[44:45]")
        A.label("L_pc")
        A("v_lshlrev_b32 v2, 7, v0")
        A("s_mov_b32 s46, L_exit-L_pc")
        for i in range(opts.get('cpf')):
            A(f"v_add_u32 v4, {i * 32768:#x}, v2")
            A("v_min_u32 v4, s46, v4")
            A("v_mov_b32 v5, s45")
            A("v_add_co_u32 v4, vcc, s44, v4")
            A("v_addc_co_u32 v5, vcc, 0, v5, vcc")
            A("global_load_dword v255, v[4:5], off")
    A(f"v_lshrrev_b32 v1, 6, v0")
    A(f"s_mov_b32 {s(sDEAD)}, 0")
    A(f"v_readfirstlane_b32 {s(sWAVE)}, v1")
    if opts.get('kw'):
        A(f"s_cmp_eq_u32 {s(sXCD)}, 0")
        A(f"s_cbranch_scc1 L_chain")
    karg_ready(A, opts)
    if not opts.get('kw'):
        A(f"s_cmp_eq_u32 {s(sXCD)}, 0")
        A(f"s_cbranch_scc1 L_chain")
    A(f"s_cmp_lt_u32 {s(sXCD)}, 3")
    A(f"s_cbranch_scc1 L_out")
    if opts.get('hq', True):
        gen_hq(A, opts)
    A(f"s_branch L_role_end")
    A.label("L_chain")
    if opts.get('clkprobe'):
        A("s_memrealtime s[44:45]")
        A("s_waitcnt lgkmcnt(0)")
        for i in range(1, 9):
            L = A.new_label("cp")
            A(f"s_add_u32 s46, s44, {i*500}")
            A.label(L)
            A("s_memrealtime s[48:49]")
            A("s_waitcnt lgkmcnt(0)")
            A("s_sub_u32 s50, s48, s46")
            A("s_cmp_lt_i32 s50, 0")
            A(f"s_cbranch_scc1 {L}")
            stamp_clk(A, i)
    if opts.get('chain'):
        cv = opts.get('cv', 7)
        if cv == 4:
            from gen_chain4 import gen_chain
        elif cv == 5:
            from gen_chain5 import gen_chain
        elif cv == 6:
            from gen_chain6 import gen_chain
        else:
            from gen_chain7 import gen_chain
        gen_chain(A, opts)
    A(f"s_branch L_role_end")
    A.label("L_out")
    if opts.get('out'):
        from gen_out import gen_out
        gen_out(A, opts)
    A.label("L_role_end")
    stamp(A, 9)
    A.label("L_flush")
    stamp_flush(A)
    A.label("L_exit")
    A("s_endpgm")
    A.L.append(f""".section .rodata,"a"
.p2align 6
.amdhsa_kernel {KNAME}
  .amdhsa_next_free_vgpr 512
  .amdhsa_next_free_sgpr 102
  .amdhsa_accum_offset 256
  .amdhsa_group_segment_fixed_size 0
  .amdhsa_kernarg_size 112
  .amdhsa_user_sgpr_count 2
  .amdhsa_user_sgpr_kernarg_segment_ptr 1
  .amdhsa_system_sgpr_workgroup_id_x 1
.end_amdhsa_kernel""")
    return A.text()


def main():
    opts = {}
    outp = sys.argv[1]
    for o in sys.argv[2:]:
        if "=" in o:
            k, val = o.split("=")
            opts[k] = int(val)
        else:
            opts[o] = True
    open(outp, "w").write(gen(opts))


if __name__ == "__main__":
    import gen as _g
    _g.main()
```

```python
from dsl import *
import gen as G
from gen import *

QK_OFF, O_OFF, MEM_OFF, KX_OFF, VX_OFF, WO_OFF = 0, 4096, 8192, 16384, 24576, 32768

vL16, vKw, vIdx, vQKw, vQKr, vOw, vMw, vWo, vPst, vRed, vMst, vPf, vFlag, vJunk = range(14)
vT0, vT1 = 14, 15
vSEL = 16
vVM1, vKr, vONE = 20, 21, 22
vBM = 26
vS0, vIdxW = 30, 31
KIMG = [2048, 3072, 6144, 7168]
X = 32
Y = 64
PA = 96
ACC = 112
sH, sS, sSlotP, sSlotP1, sSlotP4, sSlotM, sKM, sKV, sC, sNC, sRet = range(44, 55)
sRa0, sRa2, sFastF = 55, 56, 57
sMLo, sMHi = 58, 60
sU = 76
sFo, sNeed, sJ4, sCn, sPf, sGat, sKn, sM0K, sM0V = 78, 79, 80, 81, 84, 85, 86, 87, 88
sW1k, sRaM, sRaA, sFb, sPfb, sW2k = 64, 65, 66, 67, 68, 69
sPc2, sPc3 = 70, 71
sRo, sRm = 72, 89
sPc = [sSlotP, sSlotP1, sPc2, sPc3]
sTag = 55
IW = {'n': 0}
def IWG(opts):
    return 4

vTagE = vPf
sCP0, sCP1 = 82, 83
sB63 = 3
sKok = 57
OOB = 0x40000000
RED_LIMIT = 1 << 16

LOG2E = 1.4426950408889634
WPOL = ["", " nt", " sc1", " sc0 sc1", " sc1 nt", " sc0", " sc0 nt", " sc0 sc1 nt"]
SCALE_C = (128 ** -0.5) * LOG2E


def f32_hex(x):
    import struct
    return struct.unpack("<I", struct.pack("<f", x))[0]


RT = False
D3Q = []
LATE = [False]
CSTEP = [39]


TRACE = [False]


FTR = [0]


def fstamp(A, k):
    if TRACE[0] and FTR[0]:
        A(f"s_memtime s[{16 + 2 * (k - 1)}:{17 + 2 * (k - 1)}]")


def lstamp(A, i, late=None):
    if TRACE[0]:
        if FTR[0] == 1:
            m_ = {3: 1, 4: 5, 5: 8}.get(i)
        elif FTR[0] == 2:
            m_ = {5: 1, 6: 4, 7: 8}.get(i)
        elif FTR[0] == 3:
            m_ = {1: 1, 2: 5, 3: 8}.get(i)
        else:
            m_ = i if i <= 8 else None
        if m_:
            A(f"s_memtime s[{16 + 2 * (m_ - 1)}:{17 + 2 * (m_ - 1)}]")
        return
    L = A.new_label("ls")
    if late is None:
        late = i >= 8
    A(f"s_cmp_lg_u32 {s(sS)}, {CSTEP[0] + 1 if late else CSTEP[0]}")
    A(f"s_cbranch_scc1 {L}")
    r = 16 + 2 * (i - 1) if i < 9 else 62
    A(f"{'s_memrealtime' if RT else 's_memtime'} s[{r}:{r+1}]")
    A.label(L)


import re as _re


def _regs(tok):
    tok = tok.strip().rstrip(',')
    m = _re.match(r'^([va])\[(\d+):(\d+)\]$', tok)
    if m:
        return {(m.group(1), i) for i in range(int(m.group(2)), int(m.group(3)) + 1)}
    m = _re.match(r'^([va])(\d+)$', tok)
    if m:
        return {(m.group(1), int(m.group(2)))}
    return set()


def _all_regs(line):
    r = set()
    for tok in _re.findall(r'[va]\[\d+:\d+\]|\b[va]\d+\b', line):
        r |= _regs(tok)
    return r


def gap_reorder(lines, report=False):
    out = []
    i = 0
    n = len(lines)
    issm = lambda x: x.strip().startswith('v_smfmac')
    while i < n:
        out.append(lines[i])
        if issm(lines[i]):
            j = i + 1
            gap = []
            while j < n and not issm(lines[j]) and not lines[j].endswith(':') and not lines[j].strip().startswith(('s_cbranch', 's_branch', 'v_mfma', 's_nop', 's_memtime', 's_memrealtime', 's_cmp')):
                gap.append(lines[j])
                j += 1
            if j < n and issm(lines[j]):
                changed = True
                while changed:
                    changed = False
                    for k in range(len(gap) - 1):
                        a_, b_ = gap[k].strip(), gap[k + 1].strip()
                        if a_.startswith('v_') and not b_.startswith('v_') and 'vcc' not in a_ and 'exec' not in b_:
                            if not (_all_regs(a_) & _all_regs(b_)):
                                gap[k], gap[k + 1] = gap[k + 1], gap[k]
                                changed = True
                nv = sum(1 for g in gap if g.strip().startswith('v_'))
                no = len(gap) - nv
                lastv = all(not gap[k].strip().startswith('v_') or gap[k + 1].strip().startswith('v_') for k in range(len(gap) - 1))
                if report and (nv > 1 or (nv and no > 2) or no > 3 or not lastv):
                    print("gap over budget:", [g.strip()[:40] for g in gap])
            out.extend(gap)
            i = j
            continue
        i += 1
    return out


def red3(A, opts, R, RA, ld, st, Lar, rstamp, RBT):
    sSave = sU
    LfA, LfB, LfAB, Lgen, Lok = (A.new_label(x) for x in ("rfA", "rfB", "rfAB", "rgen", "rok"))
    hist = opts.get('hist')

    main = [True]

    def item(i, cnt, first):
        if cnt is not None:
            A(f"s_waitcnt vmcnt({cnt})")
        if main[0] and i in (0, 7):
            rstamp(2 if i == 0 else 3)
        c = "0" if first else v(RA, 4)
        A(f"v_mfma_f32_16x16x32_bf16 {v(RA,4)}, {v(R[i],4)}, {v(vSEL,4)}, {c}")

    def tagchk(i, y):
        A(f"v_bitop3_b32 {v(y)}, {v(R[i])}, {v(R[i]+2)}, {v(vTagE)} bitop3:0x7e")

    def half(base, cnts, first, k0=0, chk=True):
        for k in range(k0, 4):
            item(base + k, cnts[k], first and k == 0)
            if chk:
                tagchk(base + k, [vT0, vT1, vS0, vT1][k])
                if k == 2:
                    A(f"v_or3_b32 {v(vT0)}, {v(vT0)}, {v(vT1)}, {v(vS0)}")
        if chk:
            A(f"v_bitop3_b32 {v(vT0)}, {v(vT0)}, {v(vT1)}, 1 bitop3:0xa8")
            A(f"v_cmp_ne_u32 vcc, 0, {v(vT0)}")

    def repoll(lo, hi, d=0):
        for _ in range(d):
            A(f"s_sleep 1")
        A(f"s_mov_b64 exec, vcc")
        for i in range(lo, hi):
            ld(R, i)
        A(f"s_mov_b64 exec, -1")

    def both(first_cnts):
        half(0, first_cnts, True)
        A(f"s_mov_b64 {s(sSave,2)}, vcc")
        half(4, [3, 2, 1, 0], False)
        A(f"s_or_b64 vcc, vcc, {s(sSave,2)}")
    half(0, [7, 6, 5, 4], True)
    item(4, 3, False)
    tagchk(4, vT0)
    A(f"s_cbranch_vccnz {LfA}")
    half(4, [3, 2, 1, 0], False, k0=1)
    A(f"s_cbranch_vccnz {LfB}")
    main[0] = False
    A.label(Lok)
    rstamp(4)
    A(f"s_nop 4")
    A(f"v_cvt_pk_bf16_f32 {v(RA+4)}, {v(RA)}, {v(RA+1)}")
    A(f"v_cvt_pk_bf16_f32 {v(RA+5)}, {v(RA+2)}, {v(RA+3)}")
    A(f"buffer_store_dwordx2 {v(RA+4,2)}, {v(vMst)}, {s(S_WS,4)}, {s(sSlotM)} offen{st}")
    A(f"s_branch {Lar}")
    A.label(LfA)
    repoll(0, 4, opts.get('rda', 0))
    if hist or opts.get('rtrace'):
        A(f"s_add_u32 {s(sCP0)}, {s(sCP0)}, 1")
    half(4, [None, 6, 5, 4], True)
    A(f"s_cbranch_vccnz {LfAB}")
    half(0, [3, 2, 1, 0], False)
    A(f"s_cbranch_vccz {Lok}")
    A(f"s_branch {Lgen}")
    A.label(LfAB)
    repoll(4, 8)
    both([7, 6, 5, 4])
    A(f"s_cbranch_vccz {Lok}")
    A(f"s_branch {Lgen}")
    A.label(LfB)
    repoll(4, 8, opts.get('rdb', 0))
    if hist or opts.get('rtrace'):
        A(f"s_add_u32 {s(sCP0)}, {s(sCP0)}, {0x1000000 if opts.get('hist') == 2 else 1}")
    half(0, [None] * 4, True, chk=False)
    half(4, [3, 2, 1, 0], False)
    A(f"s_cbranch_vccz {Lok}")
    A.label(Lgen)
    repoll(0, 8, opts.get('rdg', 0))
    if hist:
        A(f"s_add_u32 {s(sCP0)}, {s(sCP0)}, 0x1000")
    if opts.get('rtrace'):
        A(f"s_add_u32 {s(sCP0)}, {s(sCP0)}, 2")
    both([7, 6, 5, 4])
    A(f"s_cbranch_vccz {Lok}")
    A(f"s_add_u32 {s(sRet)}, {s(sRet)}, 1")
    A(f"s_cmp_lg_u32 {s(sDEAD)}, 0")
    A(f"s_cbranch_scc1 {Lok}")
    A(f"s_cmp_lt_u32 {s(sRet)}, {RED_LIMIT}")
    A(f"s_cbranch_scc1 {Lgen}")
    A(f"s_mov_b32 {s(sDEAD)}, 1")
    A(f"s_branch {Lok}")


def gen_step(A, fast, opts, first=False):
    i0 = len(A.L)
    gen_step_raw(A, fast, opts, first)
    if opts.get('reord', 1):
        A.L[i0:] = gap_reorder(A.L[i0:], report=fast and opts.get('report'))
    if fast and not first and any(opts.get(f"sh{i}") for i in range(1, 13)):
        A.L[i0:] = widen(A.L[i0:], opts)


def widen(L, opts):
    from isz import sizes
    L = list(L)
    st_ = [l.strip() for l in L]
    smf = [i for i, l in enumerate(st_) if l.startswith('v_smfmac')]
    top = st_.index('L_top_f:')
    com = st_.index('L_common_f:')
    red = st_.index('L_red_f:')
    main = [i for i in smf if top < i < red]
    assert len(main) == 64, len(main)
    mf = [i for i, l in enumerate(st_) if l.startswith('v_mfma') and i > main[47]]
    ex = [i for i, l in enumerate(st_) if l.startswith('v_exp') and i > main[47]]
    pv = [i for i in mf if i > ex[0]]
    pol = [i for i, l in enumerate(st_) if l.startswith('buffer_load_dwordx4') and i > red]
    fin = [i for i, l in enumerate(st_) if l.startswith('buffer_store_dwordx2') and i > pol[0]]
    pts = [com, main[24], main[36], mf[0], ex[0], pv[0], main[48], main[56], red, pol[0], fin[0], None]
    OK = ('v_add_f32', 'v_max_f32', 'v_mul_f32', 'v_mov_b32', 'v_mov_b64', 'v_exp_f32', 'v_rcp_f32', 'v_xor_b32', 'v_and_b32', 'v_add_u32', 'v_lshlrev_b32')
    cand = [i for i, l in enumerate(st_) if l.split(' ')[0] in OK and '0x' not in l and 'vcc' not in l]
    sz = sizes([st_[i] for i in cand])
    cand = [i for i, z in zip(cand, sz) if z == 4]
    if opts.get('shrep'):
        lo = top
        for k, p in enumerate(pts[:-1]):
            print("point", k + 1, st_[p][:60], "candidates", len([i for i in cand if lo < i < p]))
            lo = p
    lo = top
    for k, p in enumerate(pts):
        n = opts.get(f"sh{k + 1}", 0)
        if p is None:
            break
        c = [i for i in cand if lo < i < p]
        assert len(c) >= n, (k + 1, len(c), n)
        for i in c[len(c) - n:] if n else []:
            m, rest = st_[i].split(' ', 1)
            L[i] = f"    {m}_e64 {rest}"
        lo = p
    return L


def gen_step_raw(A, fast, opts, first=False):
    KP, VP = opts.get('kpos', 0), opts.get('vpos', 0)
    RBT = opts.get('rbtop', 0)
    VAT = opts.get('vat', 12)
    M0TOP = KP in (1, 2) and VP == 0
    M0FIX = KP == 4 and VP == 0

    def vdma(n):
        if VP != 0 or first:
            return
        if n == VAT - 1:
            if not M0TOP and not M0FIX:
                A(f"s_mov_b32 m0, {s(sM0V)}")
            A(f"s_add_u32 {s(sT3)}, {s(sKV)}, 8192")
        elif n == VAT:
            A(f"buffer_load_dwordx4 {v(vL16)}, {s(S_WS,4)}, {s(sT3)} offen lds")
        elif n == VAT + opts.get('vsp', 1):
            A(f"buffer_load_dwordx4 {v(vL16)}, {s(S_WS,4)}, {s(sT3)} offen offset:1024 lds")
    st = "" if fast else " sc1"
    tag = "e" if first else "f" if fast else "s"
    Lown = [f"L_own0_{tag}", f"L_own1_{tag}"]
    Lcommon = f"L_common_{tag}"
    Llast = f"L_last_{tag}"
    lq = Q(A, "lgkmcnt", 15)
    cp = opts.get('cprof') or opts.get('trace')
    rp = opts.get('rprof')
    AQ, AV, AK = ACC, ACC + 8, Y + 24
    CQ, CK = AQ + 2, AK + 2
    H0, H1 = X + 16, X + 24
    H2 = PA + 8
    G3 = opts.get('gsets', 2) == 3
    AO = Y
    KXR = {0: X + 16, 4: X + 20, 1: X + 24, 5: X + 28, 2: X, 6: X + 4, 3: X + 8, 7: X + 12}
    RB = [X, X + 8, PA, PA + 8]
    RIDX = {0: 0, 1: 1, 4: 2, 5: 3, 6: 4, 7: 5}

    def WB(m, jj, t):
        if m == 'q':
            return a(16 * jj + 8 * t, 8)
        if jj in (2, 3):
            return v(RB[2 * (jj - 2) + t], 8)
        return (a if m == 'k' else v)(128 + 16 * RIDX[jj] + 8 * t, 8)

    def rdR(m, b, half, top=False):
        if m == 'k' and 2 * b + half < RBT and not top:
            return
        fi = (0 if m == 'k' else 4) + b
        lq.issue(('R', m, b), f"ds_read_b128 {v(RB[b] + 4*half, 4)}, {v(vWo)} offset:{fi * 2048 + 1024 * half}")
    AC = {'q': AQ, 'k': AK, 'v': AV}
    nsm = [0]
    keepL0 = A.L
    D3AT = {1: (1, 2, 3, 4, 5, 6, 7, 8), 2: (1, 3, 5, 7, 8, 9, 11, 13), 3: (1, 2, 3, 4, 9, 10, 12, 13)}.get(opts.get('esd3', 0), ())
    vA = [None, vT0, vT1, vS0]

    def smf(m, jj, t, areg):
        if m != 'q' and jj in (2, 3):
            lq.wait(('R', m, 2 * (jj - 2) + t))
        A(f"v_smfmac_f32_16x16x64_bf16 {v(AC[m] + 4*t, 4)}, {v(areg, 4)}, {WB(m, jj, t)}, {v(vIdx)}")
        if first and D3Q and A.L is keepL0:
            nsm[0] += 1
            if nsm[0] in D3AT:
                for l_ in D3Q.pop(0):
                    A(l_)

    def rdKX(j):
        lq.issue(('KX', j), f"ds_read_b128 {v(KXR[j],4)}, {v(vL16)} offset:{KX_OFF + j*1024}")

    salu = [
        f"s_and_b32 {s(sT4)}, {s(sS)}, 3",
        f"s_lshl_b32 {s(sSlotM)}, {s(sT4)}, 13",
        f"s_add_u32 {s(sSlotM)}, {s(sSlotM)}, {WS_M:#x}",
        f"s_add_u32 {s(sGat)}, {s(sSlotM)}, {s(sW2k)}",
        f"s_xor_b32 {s(sRa2)}, {s(sSlotM)}, 0x4000",
        f"s_xor_b32 {s(sTag)}, {s(sTag)}, 1",
    ]

    def su(n):
        for _ in range(n):
            if salu:
                A(salu.pop(0))

    Lar = f"L_top_{tag}"
    Lspec = f"L_spec_{tag}"
    Lretry0 = f"L_retry0_{tag}"
    rt = opts.get('rtrace')

    def rstamp(k):
        if rt:
            A(f"s_memtime s[{16 + 2*k}:{17 + 2*k}]")

    def con_issue(R):
        A(f"buffer_load_dwordx4 {v(R,4)}, {v(vL16)}, {s(S_WS,4)}, {s(sGat)} offen sc1")
        A(f"buffer_load_dwordx4 {v(R+4,4)}, {v(vL16)}, {s(S_WS,4)}, {s(sGat)} offen offset:1024 sc1")

    def own(H, spec):
        lq.ops = []
        n = 0
        c0 = Y
        for m in 'qkv':
            for jj in range(2):
                for t in range(2):
                    n += 1
                    smf(m, jj, t, H + 4 * jj)
                    if spec and n == 1:
                        A(f"v_max3_u32 {v(c0)}, {v(H)}, {v(H+2)}, {v(H+4)}")
                    elif spec and n == 2:
                        A(f"v_max_u32 {v(c0)}, {v(c0)}, {v(H+6)}")
                    elif spec and n == 3:
                        A(f"v_cmp_eq_u32 vcc, -1, {v(c0)}")
                        A(f"s_add_u32 {s(sRet)}, {s(sRet)}, 1")
                        A(f"s_cbranch_vccnz {Lretry0}")
                    elif n == 4:
                        if FTR[0] == 3:
                            fstamp(A, 2)
                        A(f"s_waitcnt lgkmcnt(0)")
                        A(f"s_barrier")
                        if FTR[0] == 3:
                            fstamp(A, 3)
                    elif 5 <= n <= 10:
                        vdma(n)
                        j2 = n - 5 + 2
                        lq.issue(('A', j2), f"ds_read_b128 {v(AO + 4*(j2-2), 4)}, {v(vA[j2 >> 1])} offset:{(j2 & 1) * 1024}")
                    elif n == 11:
                        vdma(n)
                        rdR('k', 0, 0)
                    elif n == 12:
                        vdma(n)
                        rdR('k', 0, 1)
    keepL = A.L
    if first:
        A.L = []
    if opts.get('lalign'):
        A.L.append(f".p2align {opts['lalign']}")
        for _ in range(opts.get('lpad', 0)):
            A("s_nop 0")
    A.label(Lar)
    A(f"s_barrier")
    if cp:
        lstamp(A, 8)
    rstamp(5)
    for k in range(1, 4):
        A(f"v_xor_b32 {v(vA[k])}, {k << 11:#x}, {v(vMw)}")
    A(f"s_mov_b32 {s(sRet)}, 0")

    def dma_pair(m0reg, soff):
        A(f"s_mov_b32 m0, {s(m0reg)}")
        A(f"s_nop 0")
        A(f"buffer_load_dwordx4 {v(vL16)}, {s(S_WS,4)}, {s(soff)} offen lds")
        A(f"buffer_load_dwordx4 {v(vL16)}, {s(S_WS,4)}, {s(soff)} offen offset:1024 lds")
    for _ in range(opts.get('tpre', 0)):
        A(f"s_sleep 1")
    if KP == 4:
        A(f"buffer_load_dwordx4 {v(X,4)}, {v(vL16)}, {s(S_WS,4)}, {s(sKV)} offen")
        A(f"buffer_load_dwordx4 {v(X+4,4)}, {v(vL16)}, {s(S_WS,4)}, {s(sKV)} offen offset:1024")
    if VP == 4:
        A(f"s_add_u32 {s(sT3)}, {s(sKV)}, 8192")
        A(f"buffer_load_dwordx4 {v(X+8,4)}, {v(vL16)}, {s(S_WS,4)}, {s(sT3)} offen")
        A(f"buffer_load_dwordx4 {v(X+12,4)}, {v(vL16)}, {s(S_WS,4)}, {s(sT3)} offen offset:1024")
    if KP == 1:
        dma_pair(sM0K, sKV)
        if M0TOP:
            A(f"s_mov_b32 m0, {s(sM0V)}")
    if VP == 1:
        A(f"s_add_u32 {s(sT3)}, {s(sKV)}, 8192")
        dma_pair(sM0V, sT3)
    if opts.get('rbpos', 0) == 0:
        for q in range(RBT):
            rdR('k', q >> 1, q & 1, True)
    for _ in range(opts.get('gdelay', 0)):
        A(f"s_sleep 1")
    con_issue(H0)
    for _ in range(opts.get('gspace', 1)):
        A(f"s_sleep 1")
    con_issue(H1)
    if G3:
        for _ in range(opts.get('gspace2', opts.get('gspace', 1))):
            A(f"s_sleep 1")
        con_issue(H2)
    if opts.get('rbpos', 0) == 1:
        for q in range(RBT):
            rdR('k', q >> 1, q & 1, True)
    if KP == 4 or VP == 4:
        assert not RBT and not G3
        A(f"s_waitcnt vmcnt(4)")
        if KP == 4:
            A(f"ds_write_b128 {v(vMw)}, {v(X,4)} offset:{KX_OFF - MEM_OFF}")
            A(f"ds_write_b128 {v(vMw)}, {v(X+4,4)} offset:{KX_OFF - MEM_OFF + 1024}")
        if VP == 4:
            A(f"ds_write_b128 {v(vMw)}, {v(X+8,4)} offset:{VX_OFF - MEM_OFF}")
            A(f"ds_write_b128 {v(vMw)}, {v(X+12,4)} offset:{VX_OFF - MEM_OFF + 1024}")
    A.label(Lspec)
    A(f"s_waitcnt vmcnt({4 if G3 else 2})")
    if rt:
        rstamp(6)
    A(f"ds_write_b128 {v(vMw)}, {v(H0,4)}")
    A(f"ds_write_b128 {v(vMw)}, {v(H0+4,4)} offset:1024")
    if cp:
        lstamp(A, 9)
        lstamp(A, 1)
    if rt:
        A("s_memtime s[30:31]")
    own(H0, True)
    if first:
        A.L = keepL
        own(H1, False)
    A.label(Lcommon)
    if FTR[0] == 3:
        fstamp(A, 4)
    n = 12
    for jj in range(2, 8):
        for t in range(2):
            n += 1
            if t == 0:
                lq.wait(('A', jj))
            smf('q', jj, t, AO + 4 * (jj - 2))
            if n == 13 or n >= 19:
                vdma(n)
            if n == 13:
                rdR('k', 1, 0)
            elif n == 14:
                A(f"buffer_load_dword {v(vFlag)}, off, {s(S_WS,4)}, {s(sFo)} sc1")
                rdR('k', 1, 1)
            elif n == 15:
                if not opts.get('nopf'):
                    A(f"buffer_load_dword {v(vJunk)}, {v(vPf)}, {s(S_WS,4)}, {s(sPf)} offen")
                rdR('k', 2, 0)
            elif n == 16:
                A(f"s_add_u32 {s(sT3)}, {s(sPf)}, 4096")
                rdR('k', 2, 1)
            elif n == 17:
                if not opts.get('nopf'):
                    A(f"buffer_load_dword {v(vJunk)}, {v(vPf)}, {s(S_WS,4)}, {s(sT3)} offen")
                if G3:
                    A(f"s_waitcnt vmcnt({5 if VP == 0 and VAT <= 12 else 3})")
                rdR('k', 3, 0)
                su(1)
            elif n == 18:
                if not G3 and not first:
                    A(f"s_waitcnt vmcnt({5 if VP == 0 and VAT <= 12 else 3})")
                rdR('k', 3, 1)
                su(1)
            elif 19 <= n <= 22:
                if not first:
                    rdKX((0, 4, 1, 5)[n - 19])
                su(1)
            else:
                su(3)
    if cp and not rp:
        lstamp(A, 2)

    def post(m, step):
        t, k = step // 3, step % 3
        T = AC[m] + 4 * t
        if k < 2:
            A(f"v_add_f32 {v(T + k)}, {v(T + k)}, {v(T + k + 2)}")
        else:
            d = {'q': CQ + t, 'k': CK + t, 'v': (vS0, vVM1)[t]}[m]
            A(f"v_cvt_pk_bf16_f32 {v(d)}, {v(T)}, {v(T + 1)}")
    for jj in range(2, 8):
        for t in range(2):
            n += 1
            smf('k', jj, t, AO + 4 * (jj - 2))
            vdma(n)
            if n == 31:
                lq.issue('wq', f"ds_write2st64_b32 {v(vQKw)}, {v(CQ)}, {v(CQ+1)} offset0:0 offset1:1")
            elif n == 33 and KP == 0:
                A(f"s_mov_b32 m0, {s(sM0K)}")
                A(f"s_add_u32 {s(sKn)}, {s(sKn)}, 0x80000")
            elif n == 35:
                if FTR[0] == 3:
                    fstamp(A, 6)
                lq.wait('wq')
                A(f"s_barrier")
                if FTR[0] == 3:
                    fstamp(A, 7)
            if 26 <= n <= 30:
                rdR('v', (n - 26) >> 1, (n - 26) & 1)
            elif n in (32, 33, 34):
                rdR('v', (n - 27) >> 1, (n - 27) & 1)
            if n in (31, 32):
                su(1)
            if n == opts.get('cfk', 36) and opts.get('cf') and not first:
                A(f"s_cmp_eq_u32 {s(sS)}, 63")
                A(f"s_cselect_b32 {s(sKM)}, {OOB:#x}, {s(sKM)}")
            if 25 <= n <= 30:
                post('q', n - 25)
            elif n >= 33:
                A(f"v_mov_b64 {v(ACC + 2*(n - 33), 2)}, 0")
    assert not salu
    if cp and not rp:
        lstamp(A, 3)
    QR, KR = Y, Y + 16

    def trq(i):
        ks, hf = i >> 1, i & 1
        lq.issue(('q', ks), f"ds_read_b64_tr_b16 {v(QR+4*ks+2*hf,2)}, {v(vQKr)} offset:{QK_OFF + (32*ks+8*hf)*16}")

    def trk(i):
        ks, hf = i >> 1, i & 1
        lq.issue(('k', ks), f"ds_read_b64_tr_b16 {v(KR+4*ks+2*hf,2)}, {v(vKr)} offset:{KIMG[ks] + hf*256}")
    trq_at = {38: 0, 39: 1, 40: 2, 41: 3, 42: 4, 44: 5, 45: 6, 46: 7}
    for jj in range(2, 8):
        for t in range(2):
            n += 1
            smf('v', jj, t, AO + 4 * (jj - 2))
            vdma(n)
            if n in trq_at:
                trq(trq_at[n])
            if 39 <= n <= 42 and not first:
                rdKX((2, 6, 3, 7)[n - 39])
            if n == 43:
                lq.issue('wk', f"ds_write2st64_b32 {v(vKw)}, {v(CK)}, {v(CK+1)} offset0:0 offset1:2")
            elif n == 44 and not opts.get('xnokm'):
                A(f"buffer_store_dword {v(CK)}, {v(vQKw)}, {s(S_WS,4)}, {s(sKM)} offen sc1")
            elif n == 45 and not opts.get('xnokm'):
                A(f"buffer_store_dword {v(CK+1)}, {v(vQKw)}, {s(S_WS,4)}, {s(sKM)} offen offset:256 sc1")
            elif n == 47:
                if FTR[0] == 1:
                    fstamp(A, 3)
                lq.wait('wk')
                if first:
                    if opts.get('esprof'):
                        stamp(A, 4)
                    A(f"s_waitcnt vmcnt(13)")
                    if opts.get('esprof'):
                        stamp(A, 5)
                A(f"s_barrier")
                if FTR[0] == 1:
                    fstamp(A, 4)
                trk(0)
                if first:
                    for j in (0, 4, 1, 5):
                        rdKX(j)
            elif n == 48:
                trk(1)
                if first:
                    for j in (2, 6, 3, 7):
                        rdKX(j)
                if KP == 0:
                    A(f"buffer_load_dwordx4 {v(vL16)}, {s(S_WS,4)}, {s(sKn)} offen lds")
            if 37 <= n <= 42:
                post('k', n - 37)
            if n == 42 and FTR[0] == 1:
                fstamp(A, 2)
    if cp and not rp:
        lstamp(A, 4)
    T0, T1, TM = PA, PA + 4, PA + 8
    m, t_ = vT0, vT1
    wo_ops = [(cg, 0) for cg in range(4)] + [(cg, ks) for cg in range(4) for ks in range(1, 4)]
    bufs = [X + 16, X + 24, X, X + 8, Y, Y + 8, Y + 16, Y + 24]

    WOR = [a(224, 8), a(232, 8), a(240, 8), a(248, 8), v(224, 8), v(232, 8), v(240, 8), v(248, 8)]

    AT = Y + 28
    TF = {2: X, 3: Y}
    atr = []
    trs = {u: [(cg, i) for cg in ((2, 3, 0, 1) if u == 2 else (0, 1, 2, 3)) for i in range(4)] for u in (2, 3)}

    def trW(u, cnt=1):
        for _ in range(cnt):
            if trs[u]:
                cg, i = trs[u].pop(0)
                lq.issue(('F', u, cg), f"ds_read_b64_tr_b16 {v(TF[u] + 8*cg + 2*i, 2)}, {v(AT + cg)} offset:{(u - 2) * 8192 + (8 * (i >> 1) + 2 * (i & 1)) * 256}")

    def rdW(i, half):
        if first:
            if atr:
                trW(2, 2)
            return
        o = (8 + i) * 2048 + 1024 * half
        lq.issue(('W', i), f"ds_read_b128 {v(bufs[i] + 4*half, 4)}, {v(vWo)} offset:{o}")
    for i in range(8):
        ks, t = i >> 1, i & 1
        if i in (0, 4):
            lq.wait(('q', ks + 1))
        if first:
            lq.wait(('KX', 4 * t + ks))
        T = (T0, T1)[t]
        c = "0" if ks == 0 else v(T, 4)
        A(f"v_mfma_f32_16x16x32_bf16 {v(T,4)}, {v(KXR[4*t+ks],4)}, {v(QR+4*ks,4)}, {c}")
        if i == 0 and KP == 0:
            A(f"buffer_load_dwordx4 {v(vL16)}, {s(S_WS,4)}, {s(sKn)} offen offset:1024 lds")
        if i <= 5:
            trk(i + 2)
            post('v', i)
        elif i == 6 and not opts.get('xnokm'):
            A(f"buffer_store_dword {v(vS0)}, {v(vQKw)}, {s(S_WS,4)}, {s(sKM)} offen offset:2048 sc1")
            A(f"buffer_store_dword {v(vVM1)}, {v(vQKw)}, {s(S_WS,4)}, {s(sKM)} offen offset:2304 sc1")
    if FTR[0] == 1:
        fstamp(A, 6)
    if not first:
        A(f"s_cmp_eq_u32 {s(sS)}, 63")
        A(f"s_cbranch_scc1 {Llast}")
    for ks in range(4):
        if ks in (0, 2):
            lq.wait(('k', ks + 1))
        cm = "0" if ks == 0 else v(TM, 4)
        A(f"v_mfma_f32_16x16x32_bf16 {v(TM,4)}, {v(KR+4*ks,4)}, {v(QR+4*ks,4)}, {cm}")
        rdW(ks >> 1, ks & 1)
        if ks == 1:
            A(f"v_max3_f32 {v(m)}, {v(T0)}, {v(T0+1)}, {v(T0+2)}")
        elif ks == 2:
            A(f"v_max3_f32 {v(t_)}, {v(T0+3)}, {v(T1)}, {v(T1+1)}")
        elif ks == 3:
            A(f"v_max3_f32 {v(m)}, {v(m)}, {v(T1+2)}, {v(T1+3)}")
    if first:
        A(f"s_lshl_b32 {s(sT2)}, {s(sWAVE)}, 15")
        A(f"s_add_u32 {s(sT2)}, {s(sT2)}, {WO_OFF + 16384:#x}")
        lane_expr(A, AT, vL16, [(6, 1, 256 + 64), (8, 1, 4096 + 128), (9, 1, 1024), (7, 1, 32), (4, 2, 8)], sregs=[sT2], tmp=AT + 1)
        for cg in range(1, 4):
            A(f"v_xor_b32 {v(AT + cg)}, {cg << 6:#x}, {v(AT)}")
        atr.append(1)
    if FTR[0] == 1:
        fstamp(A, 7)
    ralate = 1

    def rearm(k, now=False):
        if now and k == 2:
            A(f"buffer_store_dwordx4 {v(vSEL,4)}, {v(vMst)}, {s(S_WS,4)}, {s(sRa2)} offen{st}")
    VX0 = Y + 16
    u0, u1 = TM + 2, TM + 3
    if VP == 0:
        v2 = VAT + opts.get('vsp', 1)
        young = (3 if VAT <= 12 else 0) + (v2 <= 44) + (v2 <= 45) + 2 + (2 if KP == 0 else 0)
        assert v2 <= 47
        if not first:
            A(f"s_waitcnt vmcnt({young})")
    lq.issue('vx', f"ds_read_b128 {v(VX0,4)}, {v(vMw)} offset:{VX_OFF - MEM_OFF}")
    lq.issue('vx', f"ds_read_b128 {v(VX0+4,4)}, {v(vMw)} offset:{VX_OFF - MEM_OFF + 1024}")
    rdW(2, 0)
    rdW(2, 1)
    A(f"v_mov_b64 {v(ACC+10,2)}, 0")
    A(f"v_max3_f32 {v(m)}, {v(m)}, {v(t_)}, {v(TM)}")
    A(f"v_max_f32 {v(u0)}, {v(m)}, {v(TM+1)}")
    A(f"v_max_f32 {v(u1)}, {v(m)}, {v(TM+1)}")
    rdW(3, 0)
    A(f"v_mov_b64 {v(ACC+8,2)}, 0")
    A(f"v_permlane16_swap_b32 {v(u0)}, {v(u1)}")
    A(f"v_max_f32 {v(m)}, {v(u0)}, {v(u1)}")
    A(f"v_max_f32 {v(t_)}, {v(u0)}, {v(u1)}")
    rdW(3, 1)
    A(f"s_nop 0")
    A(f"v_permlane32_swap_b32 {v(m)}, {v(t_)}")
    A(f"v_max_f32 {v(m)}, {v(m)}, {v(t_)}")
    A(f"v_mul_f32 {v(m)}, {s(sNC)}, {v(m)}")
    BX = ACC + 12
    xs = [T0, T0 + 1, T0 + 2, T0 + 3, T1, T1 + 1, T1 + 2, T1 + 3]
    ms = [TM, TM + 1]
    if opts.get('pk', 1):
        def pkf(r):
            A(f"v_pk_fma_f32 {v(r,2)}, {v(r,2)}, {s(sC,2)}, {v(m,2)} op_sel_hi:[1,0,0]")
        pkf(T0)
        pkf(T0 + 2)
        for j in range(8):
            A(f"v_exp_f32 {v(xs[j])}, {v(xs[j])}")
            if j == 1:
                pkf(T1)
            elif j == 3:
                pkf(T1 + 2)
            elif j == 5:
                pkf(TM)
            if j >= 2 and j % 2 == 0:
                q = (j - 2) // 2
                A(f"v_cvt_pk_bf16_f32 {v(BX+q)}, {v(xs[2*q])}, {v(xs[2*q+1])}")
    else:
        for r in xs[:2]:
            A(f"v_fma_f32 {v(r)}, {v(r)}, {s(sC)}, {v(m)}")
        for j in range(8):
            A(f"v_exp_f32 {v(xs[j])}, {v(xs[j])}")
            nx = (xs + ms)[j + 2]
            A(f"v_fma_f32 {v(nx)}, {v(nx)}, {s(sC)}, {v(m)}")
            if j >= 2 and j % 2 == 0:
                q = (j - 2) // 2
                A(f"v_cvt_pk_bf16_f32 {v(BX+q)}, {v(xs[2*q])}, {v(xs[2*q+1])}")
    A(f"v_exp_f32 {v(ms[0])}, {v(ms[0])}")
    A(f"v_cvt_pk_bf16_f32 {v(BX+3)}, {v(xs[6])}, {v(xs[7])}")
    A(f"v_exp_f32 {v(ms[1])}, {v(ms[1])}")
    if cp and not rp:
        lstamp(A, 5)
    O0, O1, LS, PKO = PA, PA + 4, PA + 12, PA + 8
    lq.wait('vx')
    A(f"v_mfma_f32_16x16x32_bf16 {v(LS,4)}, {v(vONE,4)}, {v(BX,4)}, 0")
    A(f"v_cvt_pk_bf16_f32 {v(vBM)}, {v(ms[0])}, {v(ms[1])}")
    A(f"v_mfma_f32_16x16x32_bf16 {v(O0,4)}, {v(VX0,4)}, {v(BX,4)}, 0")
    rdW(4, 0)
    WE = opts.get('wearly', 0)
    A(f"v_mfma_f32_16x16x32_bf16 {v(O1,4)}, {v(VX0+4,4)}, {v(BX,4)}, 0")
    if WE:
        rdW(4, 1)
    A(f"v_mfma_f32_16x16x32_bf16 {v(LS,4)}, {v(vONE,4)}, {v(vBM,4)}, {v(LS,4)}")
    if WE:
        rdW(5, 0)
    A(f"v_mfma_f32_16x16x32_bf16 {v(O0,4)}, {v(vS0,4)}, {v(vBM,4)}, {v(O0,4)}")
    if WE:
        rdW(5, 1)
    A(f"v_mov_b64 {v(ACC+12,2)}, 0")
    A(f"v_mfma_f32_16x16x32_bf16 {v(O1,4)}, {v(vVM1,4)}, {v(vBM,4)}, {v(O1,4)}")
    if WE:
        rdW(7, 0)
    else:
        rdW(4, 1)
    if FTR[0] == 2:
        fstamp(A, 2)
    A(f"v_rcp_f32 {v(m)}, {v(LS)}")
    if WE:
        rdW(7, 1)
    else:
        rdW(5, 0)
    A(f"v_mov_b64 {v(ACC+14,2)}, 0")
    if WE == 2:
        rdW(6, 0)
        rdW(6, 1)
    if opts.get('pk', 1):
        def pkm(r):
            A(f"v_pk_mul_f32 {v(r,2)}, {v(r,2)}, {v(m,2)} op_sel_hi:[1,0]")
        pkm(O0)
        pkm(O0 + 2)
        pkm(O1)
        A(f"v_cvt_pk_bf16_f32 {v(PKO)}, {v(O0)}, {v(O0+1)}")
        pkm(O1 + 2)
        A(f"v_cvt_pk_bf16_f32 {v(PKO+1)}, {v(O0+2)}, {v(O0+3)}")
    else:
        for r in range(4):
            A(f"v_mul_f32 {v(O0+r)}, {v(O0+r)}, {v(m)}")
        A(f"v_cvt_pk_bf16_f32 {v(PKO)}, {v(O0)}, {v(O0+1)}")
        A(f"v_cvt_pk_bf16_f32 {v(PKO+1)}, {v(O0+2)}, {v(O0+3)}")
        for r in range(4):
            A(f"v_mul_f32 {v(O1+r)}, {v(O1+r)}, {v(m)}")
    A(f"v_cvt_pk_bf16_f32 {v(PKO+2)}, {v(O1)}, {v(O1+1)}")
    A(f"v_cvt_pk_bf16_f32 {v(PKO+3)}, {v(O1+2)}, {v(O1+3)}")
    if FTR[0] == 2:
        fstamp(A, 3)
    lq.issue('wo_', f"ds_write_b128 {v(vOw)}, {v(PKO,4)} offset:0")
    AOr = [PKO, PA, PA + 4, PA + 12]
    vAo = [None, vT0, vT1, vS0]
    for k in range(1, 4):
        A(f"v_xor_b32 {v(vAo[k])}, {k << 9:#x}, {v(vOw)}")
    if cp and not rp:
        lstamp(A, 6)

    def pack(cg, k):
        A(f"v_cvt_pk_bf16_f32 {v(ACC+4*cg+k)}, {v(ACC+4*cg+2*k)}, {v(ACC+4*cg+2*k+1)}")

    def tagp(cg):
        A(f"v_and_or_b32 {v(ACC+4*cg)}, {v(ACC+4*cg)}, -2, {s(sTag)}")

    def pstore(cg, st=st):
        A(f"buffer_store_dwordx2 {v(ACC+4*cg,2)}, {v(vPst)}, {s(S_WS,4)}, {s(sPc[cg]) if cg else 0} offen{st}")
    if first:
        trW(2, 16)

        def fin(r_, io):
            for hf in range(2):
                lq.issue(('fin', io), f"ds_write_b128 {v(vWo)}, {v(r_ + 4*hf, 4)} offset:{io * 2048 + 1024 * hf}")
        B1 = [224, 248, 232, 240]
        for ks in range(4):
            if ks == 3:
                A(f"s_waitcnt vmcnt(7)")
                if opts.get('esprof'):
                    stamp(A, 6)
                trW(3, 16)
            for cg in range(4):
                if ks and cg == 0:
                    lq.wait(('Ao', ks))
                if ks >= 2:
                    lq.wait(('F', ks, cg))
                B = a(224 + 8 * cg, 8) if ks == 0 else v(B1[cg], 8) if ks == 1 else v(TF[ks] + 8 * cg, 8)
                A(f"v_smfmac_f32_16x16x64_bf16 {v(ACC+4*cg,4)}, {v(AOr[ks],4)}, {B}, {v(vIdxW)}")
                if ks == 0 and cg == 1:
                    lq.wait('wo_')
                    A(f"s_barrier")
                    for k in range(1, 4):
                        lq.issue(('Ao', k), f"ds_read_b128 {v(AOr[k],4)}, {v(vAo[k])}")
                if ks == 2 and cg >= 1:
                    fin(*[(232, 10), (X + 8, 8), (X + 16, 11)][cg - 1])
        for (r_, io) in [(240, 13), (X + 24, 14), (Y + 8, 9), (Y + 16, 12), (Y + 24, 15)]:
            fin(r_, io)
            if io == 14:
                A.nop(4)
                for cg in range(4):
                    pack(cg, 0)
                    pack(cg, 1)
                    tagp(cg)
                Lsl, Lpd = A.new_label("esl"), A.new_label("epd")
                A(f"s_cmp_eq_u32 {s(sFastF)}, 1")
                if opts.get('forceslow'):
                    A(f"s_branch {Lsl}")
                A(f"s_cbranch_scc0 {Lsl}")
                for cg in range(4):
                    pstore(cg, "")
                A(f"s_branch {Lpd}")
                A.label(Lsl)
                for cg in range(4):
                    pstore(cg, " sc1")
                A.label(Lpd)
        lq.wait(('fin', 13))
        for i in range(4):
            A(f"v_mov_b64 {v(232 + 2*i, 2)}, {v(X + 2*i, 2)}")
            A(f"v_mov_b64 {v(240 + 2*i, 2)}, {v(Y + 2*i, 2)}")
        lq.wait_all()
        if opts.get('esprof'):
            stamp(A, 7)
        if opts.get('cf'):
            A(f"s_load_dwordx2 s[28:29], s[0:1], 88")
        A(f"s_cmp_eq_u32 {s(sFastF)}, 1")
        if opts.get('forceslow'):
            A(f"s_branch L_red_s")
        A(f"s_cbranch_scc0 L_red_s")
        A(f"s_branch L_red_f")
        return
    for i, (cg, ks) in enumerate(wo_ops):
        if ks:
            lq.wait(('Ao', ks))
        if i >= 8:
            lq.wait(('W', i - 8))
        A(f"v_smfmac_f32_16x16x64_bf16 {v(ACC+4*cg,4)}, {v(AOr[ks],4)}, {WOR[i] if i < 8 else v(bufs[i - 8],8)}, {v(vIdxW)}")
        if i == opts.get('obar', 1):
            lq.wait('wo_')
            A(f"s_barrier")
            if FTR[0] == 2:
                fstamp(A, 5)
            for k in range(1, 4):
                lq.issue(('Ao', k), f"ds_read_b128 {v(AOr[k],4)}, {v(vAo[k])}")
        if i == 4 and FTR[0] == 2:
            fstamp(A, 6)
        if i == 9 and FTR[0] == 2:
            fstamp(A, 7)
        if WE == 0:
            if i == 2:
                rdW(5, 1)
                rdW(6, 0)
            elif i == 3:
                rdW(6, 1)
                rdW(7, 0)
            elif i == 4:
                rdW(7, 1)
        elif WE == 1:
            if i == 2:
                rdW(6, 0)
            elif i == 3:
                rdW(6, 1)
        pst = opts.get('pst', 1)
        if pst == 1:
            if i in (11, 14):
                pstore((i - 11) // 3)
            if i in (8, 11, 14):
                pack((i - 8) // 3, 0)
            elif i in (9, 12, 15):
                pack((i - 9) // 3, 1)
            elif i in (10, 13):
                tagp((i - 10) // 3)
        elif pst == 2:
            if i in (8, 11, 14):
                pack((i - 8) // 3, 0)
                pack((i - 8) // 3, 1)
            elif i in (9, 12, 15):
                tagp((i - 9) // 3)
            elif i in (10, 13):
                pstore((i - 10) // 3)
        elif pst == 3:
            if i in (8, 11, 14):
                pack((i - 8) // 3, 0)
            elif i in (9, 12, 15):
                pack((i - 9) // 3, 1)
                tagp((i - 9) // 3)
            elif i in (10, 13):
                pstore((i - 10) // 3)
    if pst == 1:
        tagp(2)
        pstore(2)
        A(f"s_nop 5")
    else:
        pstore(2)
        A(f"s_nop 6")
    pack(3, 0)
    pack(3, 1)
    tagp(3)
    pstore(3)
    A.label(f"L_red_{tag}")
    if cp:
        lstamp(A, 7)
    Lnr = A.new_label("notred")

    def bookkeeping():
        A(f"s_add_u32 {s(sS)}, {s(sS)}, 1")
        A(f"s_add_u32 {s(sKM)}, {s(sKM)}, 0x20000")
        A(f"s_add_u32 {s(sKV)}, {s(sKV)}, 0x80000")
        A(f"s_add_u32 {s(sPf)}, {s(sPf)}, 0x80000")
        A(f"s_add_u32 {s(sJ4)}, {s(sJ4)}, 4")
        A(f"s_cmp_eq_u32 {s(sJ4)}, 20")
        A(f"s_cselect_b32 {s(sJ4)}, 0, {s(sJ4)}")
        A(f"s_addc_u32 {s(sCn)}, {s(sCn)}, 0")

    def bookkeeping2(w0=False):
        A(f"s_add_u32 {s(sFo)}, {s(sFb)}, {s(sJ4)}")
        A(f"s_cmp_lt_u32 {s(sS)}, 62")
        A(f"s_cselect_b32 {s(sNeed)}, {s(sCn)}, 0")
        if opts.get('cf') and not w0:
            A(f"s_cmp_eq_u32 {s(sS)}, 62")
            A(f"s_cselect_b32 {s(sFo)}, {WS_OF + 63 * 128:#x}, {s(sFo)}")
            A(f"s_cselect_b32 {s(sNeed)}, 32, {s(sNeed)}")
            bookkeeping3()

    def bookkeeping3():
        A(f"s_cmp_eq_u32 {s(sS)}, 63")
        A(f"s_cselect_b32 {s(sPf)}, {OOB:#x}, {s(sPf)}")
        A(f"s_cselect_b32 {s(sFo)}, {OOB:#x}, {s(sFo)}")

    def zero_acc():
        for i in range(8):
            A(f"v_mov_b64 {v(ACC+2*i,2)}, 0")
        for i in range(4):
            A(f"v_mov_b64 {v(AK+2*i,2)}, 0")

    def w1_dma():
        for _ in range(opts.get('w1d', 0)):
            A(f"s_sleep 1")
        if KP == 2:
            A(f"s_add_u32 {s(sT3)}, {s(sKV)}, 0x80000")
            dma_pair(sM0K, sT3)
            if M0TOP:
                A(f"s_mov_b32 m0, {s(sM0V)}")
        if VP == 2:
            A(f"s_add_u32 {s(sT3)}, {s(sKV)}, {0x80000 + 8192:#x}")
            dma_pair(sM0V, sT3)
    nw1 = 2 * ((KP == 2) + (VP == 2))
    if nw1 and opts.get('w1pre'):
        w1_dma()
    if opts.get('rbar', 1):
        A(f"s_barrier")
    if nw1 and not opts.get('w1pre'):
        w1_dma()
    A(f"s_cmp_lg_u32 {s(sWAVE)}, 0")
    A(f"s_cbranch_scc1 {Lnr}")
    Lred = A.new_label("red")
    Lredok = A.new_label("redok")
    RA = PA
    two = opts.get('rtwo', 0)

    if rt:
        A(f"s_memtime s[62:63]")
        A(f"s_lshl_b32 {s(sT0)}, {s(sH)}, 6")
        A(f"s_add_u32 {s(sT0)}, {s(sT0)}, {s(sS)}")
        A(f"s_lshl_b32 {s(sT0)}, {s(sT0)}, 6")
        A(f"s_add_u32 {s(sT0)}, {s(sT0)}, {WS_T + 0x10000:#x}")
        A(f"s_waitcnt lgkmcnt(0)")
        A(f"v_mov_b32 {v(vT0)}, s16")
        for k in range(1, 8):
            A(f"v_writelane_b32 {v(vT0)}, s{16 + 2*k}, {k}")
        A(f"v_writelane_b32 {v(vT0)}, s{sCP0}, 8")
        A(f"v_writelane_b32 {v(vT0)}, s{sRet}, 9")
        A(f"v_lshrrev_b32 {v(vT1)}, 2, {v(vL16)}")
        A(f"s_mov_b64 exec, 0x3ff")
        A(f"buffer_store_dword {v(vT0)}, {v(vT1)}, {s(S_WS,4)}, {s(sT0)} offen")
        A(f"s_mov_b64 exec, -1")
        A(f"s_mov_b32 s16, s62")
        A(f"s_mov_b32 {s(sCP0)}, 0")
    im0 = len(A.L)
    zero_acc()
    A(f"v_xor_b32 {v(vTagE)}, 1, {v(vTagE)}")
    bookkeeping()
    bookkeeping2(True)
    A(f"s_mov_b32 {s(sRet)}, 0")
    moved = []
    if opts.get('rmov'):
        moved = A.L[len(A.L) - opts['rmov']:]
        del A.L[len(A.L) - opts['rmov']:]
    RS = [[X + 4 * i for i in range(8)], [Y + 4 * i for i in range(6)] + [PA + 8, PA + 12]]
    mode = opts.get('rmode', 1)

    def ld(R, i):
        A(f"buffer_load_dwordx4 {v(R[i],4)}, {v(vRed)}, {s(S_WS,4)}, {0 if i < 4 else s(sSlotP4)} offen offset:{(i%4)*1024} sc1")

    def chk(R, other, cnt, first=False):
        ys = [vT0, vT1, vS0, vT1, vS0, vT1, vS0, vT1]
        if rt:
            A(f"s_add_u32 {s(sCP0)}, {s(sCP0)}, 1")
        for i in range(8):
            A(f"s_waitcnt vmcnt({cnt(i)})")
            if first and i == 0:
                rstamp(2)
            if first and i == 7:
                rstamp(3)
            c = "0" if i == 0 else v(RA, 4)
            A(f"v_mfma_f32_16x16x32_bf16 {v(RA,4)}, {v(R[i],4)}, {v(vSEL,4)}, {c}")
            if other is not None:
                ld(other, i)
            A(f"v_bitop3_b32 {v(ys[i])}, {v(R[i])}, {v(R[i]+2)}, {v(vTagE)} bitop3:0x7e")
            if i in (2, 4, 6):
                A(f"v_or3_b32 {v(vT0)}, {v(vT0)}, {v(vT1)}, {v(vS0)}")
        A(f"v_bitop3_b32 {v(vT0)}, {v(vT0)}, {v(vT1)}, 1 bitop3:0xa8")
        A(f"v_cmp_ne_u32 vcc, 0, {v(vT0)}")
    for _ in range(opts.get('rdelay', 0)):
        A(f"s_sleep 1")
    rstamp(1)
    for i in range(8):
        ld(RS[0], i)
    A.L.extend(moved)
    if mode == 3:
        red3(A, opts, RS[0], RA, ld, st, Lar, rstamp, RBT)
        return_after_red = True
    else:
        return_after_red = False
    if not return_after_red:
        Lrfail = A.new_label("rfail")
        Lredok2 = A.new_label("redok2") if RBT else Lredok
        if mode == 2:
            for _ in range(opts.get('rspace', 1)):
                A(f"s_sleep 1")
            for i in range(8):
                ld(RS[1], i)
            chk(RS[0], None, lambda i: 15 - i, True)
        elif mode == 1:
            chk(RS[0], RS[1], lambda i: 7, True)
        else:
            chk(RS[0], None, lambda i: 7 - i, True)
        A(f"s_cbranch_vccnz {Lrfail}")
        A.label(Lredok)
        rstamp(4)
        RT_ = opts.get('cf') and opts.get('rtrim', 0) and mode != 1
        if RT_:
            A(f"s_cmp_eq_u32 {s(sS)}, 63")
            A(f"s_nop 2")
        else:
            A(f"s_nop {3 if mode == 1 else 4}")
        A(f"v_cvt_pk_bf16_f32 {v(RA+4)}, {v(RA)}, {v(RA+1)}")
        A(f"v_cvt_pk_bf16_f32 {v(RA+5)}, {v(RA+2)}, {v(RA+3)}")
        A(f"buffer_store_dwordx2 {v(RA+4,2)}, {v(vMst)}, {s(S_WS,4)}, {s(sSlotM)} offen{st}")
        if opts.get('cf'):
            if not RT_:
                A(f"s_cmp_eq_u32 {s(sS)}, 63")
            A(f"s_cbranch_scc1 L_cfq0_{tag}")
        A(f"s_branch {Lar}")
        iR2 = len(A.L)
        A.label(Lrfail)
        if opts.get('hist'):
            A(f"s_add_u32 {s(sCP0)}, {s(sCP0)}, 1")
        if mode == 0:
            for i in range(8):
                ld(RS[1], i)
        if mode == 2 and opts.get('rlazy'):
            chk(RS[1], None, lambda i: 7 - i)
            A(f"s_cbranch_vccz {Lredok}")
            if opts.get('hist'):
                A(f"s_add_u32 {s(sCP0)}, {s(sCP0)}, 0x1000")
            for i in range(8):
                ld(RS[0], i)
            for _ in range(opts.get('rspace', 1)):
                A(f"s_sleep 1")
            for i in range(8):
                ld(RS[1], i)
            chk(RS[0], None, lambda i: 15 - i)
            A(f"s_cbranch_vccz {Lredok}")
        A.label(Lred)
        chk(RS[1], RS[0], lambda i: 7)
        A(f"s_cbranch_vccz {Lredok2}")
        if opts.get('hist'):
            A(f"s_add_u32 {s(sCP0)}, {s(sCP0)}, {0x1000000 if opts.get('rlazy') else 0x1000}")
        chk(RS[0], RS[1], lambda i: 7)
        A(f"s_cbranch_vccz {Lredok2}")
        if opts.get('hist'):
            A(f"s_add_u32 {s(sCP0)}, {s(sCP0)}, 0x1000000")
        A(f"s_add_u32 {s(sRet)}, {s(sRet)}, 1")
        A(f"s_cmp_lg_u32 {s(sDEAD)}, 0")
        A(f"s_cbranch_scc1 {Lredok2}")
        A(f"s_cmp_lt_u32 {s(sRet)}, {RED_LIMIT}")
        A(f"s_cbranch_scc1 {Lred}")
        A(f"s_mov_b32 {s(sDEAD)}, 1")
        if RBT:
            A.label(Lredok2)
            A(f"s_waitcnt vmcnt(0)")
        A(f"s_branch {Lredok}")
        if fast and opts.get('iw'):
            from isz import add_hops
            k0 = IW['n']
            IW['n'] = add_hops(A, iR2, k0, lambda k: f"L_iwret_{k // IWG(opts)}")
            for _ in range((-(IW['n'] - k0)) % 16):
                A("s_nop 0")
    A.label(Lnr)
    Lfok = A.new_label("fok")
    Lfsp = A.new_label("fsp")
    A(f"s_mov_b32 {s(sRet)}, 0")
    A(f"s_waitcnt vmcnt({10 + (2 if KP == 0 else 0) + nw1 + (2 if VP == 0 and VAT > 12 else 0)})")
    A(f"v_readfirstlane_b32 {s(sT0)}, {v(vFlag)}")
    zero_acc()
    A(f"s_cmp_ge_u32 {s(sT0)}, {s(sNeed)}")
    A(f"s_cbranch_scc1 {Lfok}")
    A(f"s_cmp_lg_u32 {s(sDEAD)}, 0")
    A(f"s_cbranch_scc1 {Lfok}")
    A(f"s_mov_b32 {s(sRet)}, 0")
    A.label(Lfsp)
    A(f"buffer_load_dword {v(vFlag)}, off, {s(S_WS,4)}, {s(sFo)} sc1")
    A(f"s_waitcnt vmcnt(0)")
    A(f"v_readfirstlane_b32 {s(sT0)}, {v(vFlag)}")
    A(f"s_cmp_ge_u32 {s(sT0)}, {s(sNeed)}")
    A(f"s_cbranch_scc1 {Lfok}")
    A(f"s_sleep 1")
    A(f"s_add_u32 {s(sRet)}, {s(sRet)}, 1")
    A(f"s_cmp_lt_u32 {s(sRet)}, {SPIN_LIMIT}")
    A(f"s_cbranch_scc1 {Lfsp}")
    A(f"s_mov_b32 {s(sDEAD)}, 1")
    A.label(Lfok)
    if opts.get('cf'):
        A(f"s_sub_u32 {s(sT0)}, {s(sS)}, 57")
        A(f"s_cmp_lt_u32 {s(sT0)}, 6")
        A(f"s_cbranch_scc1 L_cfa_{tag}")
        A.label(f"L_cfar_{tag}")
    if TRACE[0]:
        Lsl = A.new_label("tr")
        A(f"s_cmp_lg_u32 {s(sWAVE)}, {opts.get('tw', 1)}")
        A(f"s_cbranch_scc1 {Lsl}")
        A(f"s_lshl_b32 {s(sT0)}, {s(sH)}, 6")
        A(f"s_add_u32 {s(sT0)}, {s(sT0)}, {s(sS)}")
        A(f"s_lshl_b32 {s(sT0)}, {s(sT0)}, 5")
        A(f"s_add_u32 {s(sT0)}, {s(sT0)}, {WS_T + 0x10000:#x}")
        A(f"s_waitcnt lgkmcnt(0)")
        A(f"v_mov_b32 {v(vT0)}, s16")
        for k in range(1, 8):
            A(f"v_writelane_b32 {v(vT0)}, s{16 + 2*k}, {k}")
        A(f"v_lshrrev_b32 {v(vT1)}, 2, {v(vL16)}")
        A(f"s_mov_b64 exec, 0xff")
        A(f"buffer_store_dword {v(vT0)}, {v(vT1)}, {s(S_WS,4)}, {s(sT0)} offen")
        A(f"s_mov_b64 exec, -1")
        A.label(Lsl)
    if opts.get('steplog'):
        Lsl = A.new_label("sl")
        A(f"s_cmp_lg_u32 {s(sWAVE)}, 1")
        A(f"s_cbranch_scc1 {Lsl}")
        A(f"s_memrealtime s[62:63]")
        A(f"s_memtime s[16:17]")
        A(f"s_lshl_b32 {s(sT0)}, {s(sH)}, 6")
        A(f"s_add_u32 {s(sT0)}, {s(sT0)}, {s(sS)}")
        A(f"s_lshl_b32 {s(sT0)}, {s(sT0)}, 3")
        A(f"s_add_u32 {s(sT0)}, {s(sT0)}, {WS_T + (0x30000 if opts.get('prof') else 0x8000):#x}")
        A(f"s_waitcnt lgkmcnt(0)")
        A(f"v_mov_b32 {v(vT0)}, s62")
        A(f"v_mov_b32 {v(vT1)}, s16")
        A(f"s_mov_b64 exec, 1")
        A(f"buffer_store_dwordx2 {v(vT0,2)}, off, {s(S_WS,4)}, {s(sT0)}")
        A(f"s_mov_b64 exec, -1")
        A.label(Lsl)
    bookkeeping()
    bookkeeping2()
    rearm(2, True)
    A(f"s_branch {Lar}")
    iR1 = len(A.L)
    A.label(Lretry0)
    if opts.get('hist'):
        A(f"s_add_u32 {s(sCP1)}, {s(sCP1)}, 1")
    GM = opts.get('gm', 0)

    def re_issue(R):
        if GM & 1:
            A(f"s_mov_b64 exec, vcc")
        con_issue(R)
        if GM & 1:
            A(f"s_mov_b64 exec, -1")
    if GM:
        re_issue(H0)
        A(f"s_nop {3 if GM & 1 else 5}")
    else:
        A(f"s_nop 7")
    for i in range(4):
        A(f"v_mov_b64 {v(AQ+2*i,2)}, 0")
    if not GM:
        con_issue(H0)
    A(f"s_waitcnt vmcnt({4 if G3 else 2})")
    A(f"ds_write_b128 {v(vMw)}, {v(H1,4)}")
    A(f"v_max3_u32 {v(Y)}, {v(H1)}, {v(H1+2)}, {v(H1+4)}")
    A(f"ds_write_b128 {v(vMw)}, {v(H1+4,4)} offset:1024")
    A(f"v_max_u32 {v(Y)}, {v(Y)}, {v(H1+6)}")
    A(f"v_cmp_eq_u32 vcc, -1, {v(Y)}")
    A(f"s_add_u32 {s(sRet)}, {s(sRet)}, 1")
    A(f"s_cbranch_vccz {Lown[1]}")
    if opts.get('hist'):
        A(f"s_add_u32 {s(sCP1)}, {s(sCP1)}, 0x10000")
    re_issue(H1)
    if G3:
        Lown2 = f"L_own2_{tag}"
        A(f"s_waitcnt vmcnt(4)")
        A(f"ds_write_b128 {v(vMw)}, {v(H2,4)}")
        A(f"v_max3_u32 {v(Y)}, {v(H2)}, {v(H2+2)}, {v(H2+4)}")
        A(f"ds_write_b128 {v(vMw)}, {v(H2+4,4)} offset:1024")
        A(f"v_max_u32 {v(Y)}, {v(Y)}, {v(H2+6)}")
        A(f"v_cmp_eq_u32 vcc, -1, {v(Y)}")
        A(f"s_add_u32 {s(sRet)}, {s(sRet)}, 1")
        A(f"s_cbranch_vccz {Lown2}")
        con_issue(H2)
    A(f"s_cmp_lg_u32 {s(sDEAD)}, 0")
    A(f"s_cbranch_scc1 {Lown[1]}")
    A(f"s_cmp_lt_u32 {s(sRet)}, {RED_LIMIT}")
    A(f"s_cbranch_scc1 {Lspec}")
    A(f"s_mov_b32 {s(sDEAD)}, 1")
    if fast and opts.get('iw'):
        from isz import add_hops
        IW['n'] = add_hops(A, iR1, IW['n'], lambda k: f"L_iwret_{k // IWG(opts)}")
    A.label(Lown[1])
    own(H1, False)
    A(f"s_branch {Lcommon}")
    if G3:
        A.label(Lown2)
        own(H2, False)
        A(f"s_branch {Lcommon}")
    icf = len(A.L)
    if opts.get('cf'):
        cf_side(A, fast, opts, tag, Lar)
    A.label(Llast)
    if opts.get('tprof') in (1, 2):
        stamp(A, 4)
    if opts.get('cf'):
        cf_tail(A, fast, opts)
        if fast and opts.get('walk'):
            from isz import add_stubs
            add_stubs(A, icf, "cf", "L_walk_cf", "L_walk_ret", opts.get('wstep', 64))
    A(f"s_waitcnt vmcnt(0) lgkmcnt(0)")
    if opts.get('hist'):
        A(f"s_lshl_b32 {s(sT0)}, {s(sH)}, 2")
        A(f"s_add_u32 {s(sT0)}, {s(sT0)}, {s(sWAVE)}")
        A(f"s_lshl_b32 {s(sT0)}, {s(sT0)}, 3")
        A(f"s_add_u32 {s(sT0)}, {s(sT0)}, {WS_T + 0x40000:#x}")
        A(f"v_mov_b32 {v(vT0)}, {s(sCP0)}")
        A(f"v_mov_b32 {v(vT1)}, {s(sCP1)}")
        A(f"s_mov_b64 exec, 1")
        A(f"buffer_store_dwordx2 {v(vT0,2)}, off, {s(S_WS,4)}, {s(sT0)}")
        A(f"s_mov_b64 exec, -1")
        A(f"s_waitcnt vmcnt(0)")
    if fast and opts.get('cwb'):
        Lwb = A.new_label("cwb")
        A(f"s_cmp_lg_u32 {s(sWAVE)}, 0")
        A(f"s_cbranch_scc1 {Lwb}")
        A(f"buffer_wbl2 sc1")
        A(f"s_waitcnt vmcnt(0)")
        A.label(Lwb)
    if cp and not TRACE[0]:
        for i in range(1, 10):
            A(f"s_mov_b32 s{92+i}, s{16+2*(i-1) if i < 9 else 62}")
        A(f"s_lshl_b32 {s(sCP1)}, {s(sCP1)}, 16")
        A(f"s_or_b32 s92, {s(sCP0)}, {s(sCP1)}")
        A("s_branch L_flush")
    A(f"s_branch L_role_end")


def cf_qload(A):
    A(f"s_lshl_b32 {s(sT0)}, {s(sH)}, 13")
    A(f"s_lshr_b32 {s(sT1)}, {s(sWAVE)}, 1")
    A(f"s_lshl_b32 {s(sT1)}, {s(sT1)}, 12")
    A(f"s_add_u32 {s(sT0)}, {s(sT0)}, {s(sT1)}")
    A(f"s_and_b32 {s(sT1)}, {s(sWAVE)}, 1")
    A(f"s_lshl_b32 {s(sT1)}, {s(sT1)}, 7")
    A(f"s_add_u32 {s(sT0)}, {s(sT0)}, {s(sT1)}")
    A(f"s_add_u32 {s(sT0)}, {s(sT0)}, {WS_QX + 63 * 32 * 8192:#x}")
    A(f"v_and_b32 {v(vT0)}, 0x370, {v(vL16)}")
    for ks in range(4):
        A(f"buffer_load_dwordx4 {a(4*ks,4)}, {v(vT0)}, {s(S_WS,4)}, {s(sT0)} offen offset:{ks*1024}")


def cf_side(A, fast, opts, tag, Lar):
    A.label(f"L_cfa_{tag}")
    Lq = A.new_label("cfq")
    A(f"s_cmp_eq_u32 {s(sS)}, 62")
    A(f"s_cbranch_scc1 {Lq}")
    if fast and opts.get('cfpf', 1):
        A(f"s_add_u32 {s(sT0)}, {s(sS)}, 3")
        A(f"s_and_b32 {s(sT0)}, {s(sT0)}, 3")
        A(f"s_lshl_b32 {s(sT0)}, {s(sT0)}, 18")
        A(f"s_add_u32 {s(sT0)}, {s(sT0)}, {WS_PF - 8192 - 0x80000:#x}")
        A(f"s_cmp_eq_u32 {s(sS)}, 61")
        A(f"s_cselect_b32 {s(sT0)}, {WS_QX + 63 * 32 * 8192 - 8192 - 0x80000:#x}, {s(sT0)}")
        A(f"s_lshl_b32 {s(sT1)}, {s(sH)}, 13")
        A(f"s_sub_u32 {s(sT0)}, {s(sT0)}, {s(sT1)}")
        A(f"s_cmp_eq_u32 {s(sWAVE)}, 1")
        A(f"s_cselect_b32 {s(sPf)}, {s(sT0)}, {s(sPf)}")
    A(f"s_branch L_cfar_{tag}")
    A.label(Lq)
    cf_qload(A)
    A(f"s_branch L_cfar_{tag}")
    A.label(f"L_cfq0_{tag}")
    cf_qload(A)
    A(f"s_branch {Lar}")


def cf_tail(A, fast, opts):
    st = "" if fast and not opts.get('cfsc') else " sc1"
    if fast and opts.get('cfwb'):
        Lwb = A.new_label("cfwb")
        A(f"s_cmp_lg_u32 {s(sWAVE)}, 3")
        A(f"s_cbranch_scc1 {Lwb}")
        A(f"s_cmp_lg_u32 {s(sH)}, {opts.get('cfwbh', 0)}")
        A(f"s_cbranch_scc1 {Lwb}")
        A(f"buffer_wbl2 sc1")
        A.label(Lwb)
    nst = [0]

    def cst():
        if opts.get('tprof') == 3:
            A(f"s_memtime s[{64 + 2*nst[0]}:{65 + 2*nst[0]}]")
            nst[0] += 1
    cst()
    KR = Y + 16
    KXR = {0: X + 16, 4: X + 20, 1: X + 24, 5: X + 28, 2: X, 6: X + 4, 3: X + 8, 7: X + 12}
    T0, T1, TM = PA, PA + 4, PA + 8
    m, t_ = vT0, vT1
    VMX, OA, LS, BX, SEL, PK = 64, 192, ACC + 8, ACC + 12, ACC + 4, PA
    WST, VXF = 96, 160
    WA = 128
    RF = 192
    sMask, sOut = 12, 28
    u0, u1, u2, u3 = ACC, ACC + 1, ACC + 2, ACC + 3
    lq = Q(A, "lgkmcnt", 15)
    A(f"s_lshl_b32 {s(sT0)}, {s(sWAVE)}, 9")
    A(f"v_lshrrev_b32 {v(u1)}, 2, {v(vL16)}")
    A(f"v_add_u32 {v(u0)}, {s(sT0)}, {v(u1)}")
    A(f"ds_write_b32 {v(u0)}, {v(vS0)} offset:{O_OFF}")
    A(f"ds_write_b32 {v(u0)}, {v(vVM1)} offset:{O_OFF + 256}")
    A(f"v_bfe_u32 {v(u2)}, {v(vL16)}, 4, 3")
    A(f"v_lshrrev_b32 {v(u3)}, 6, {v(vL16)}")
    A(f"v_and_b32 {v(u3)}, 12, {v(u3)}")
    A(f"v_sub_u32 {v(u2)}, {v(u2)}, {v(u3)}")
    A(f"s_lshl_b32 {s(sT0)}, {s(sWAVE)}, 3")
    A(f"v_add_u32 {v(u2)}, {s(sT0)}, {v(u2)}")
    A(f"s_mov_b32 {s(sOut+2)}, {2048*1024:#x}")
    A(f"s_mov_b32 {s(sOut+3)}, 0x00020000")
    cst()
    A(f"s_waitcnt vmcnt(4) lgkmcnt(0)")
    cst()
    A(f"s_barrier")
    fill = [f"v_cmp_le_i32 {s(sMask + 2*(4*t+r), 2)}, {16*t+r}, {v(u2)}" for t in range(2) for r in range(4)]
    fill += [f"v_mov_b32 {v(VMX + 2*j + 1)}, 0" for j in range(8)]
    fill += [f"v_mov_b64 {v(WA+2*i,2)}, 0" for i in range(32)]

    def fl(n):
        for _ in range(n):
            if fill:
                A(fill.pop(0))
    rd = [('vm', f"ds_read_b32 {v(VMX + 2*j)}, {v(u1)} offset:{O_OFF + j*256}") for j in range(8)]
    rd += [('vx', f"ds_read_b128 {a(VXF + 4*j, 4)}, {v(vL16)} offset:{VX_OFF + j*1024}") for j in range(8)]
    rw = [('w', f"ds_read_b128 {a(WST + 8*i + 4*hf, 4)}, {v(vWo)} offset:{(8 + i) * 2048 + 1024 * hf}") for i in range(8) for hf in range(2)]
    for ks in range(4):
        for t in range(2):
            T = (T0, T1)[t]
            c = "0" if ks == 0 else v(T, 4)
            A(f"v_mfma_f32_16x16x32_bf16 {v(T,4)}, {v(KXR[4*t+ks],4)}, {a(4*ks,4)}, {c}")
            lq.issue(*rd.pop(0))
            fl(1)
    for ks in range(4):
        cm = "0" if ks == 0 else v(TM, 4)
        A(f"v_mfma_f32_16x16x32_bf16 {v(TM,4)}, {v(KR+4*ks,4)}, {a(4*ks,4)}, {cm}")
        if ks == 0:
            lq.wait('vm')
        lq.issue(*rd.pop(0))
        lq.issue(*rd.pop(0))
        fl(2)
    A(f"v_mov_b32 {v(u0)}, 0xff800000")
    for t in range(2):
        for r in range(4):
            A(f"v_cndmask_b32 {v(PA+4*t+r)}, {v(u0)}, {v(PA+4*t+r)}, {s(sMask+2*(4*t+r),2)}")
    A(f"v_max3_f32 {v(m)}, {v(T0)}, {v(T0+1)}, {v(T0+2)}")
    A(f"v_max3_f32 {v(t_)}, {v(T0+3)}, {v(T1)}, {v(T1+1)}")
    A(f"v_max3_f32 {v(m)}, {v(m)}, {v(T1+2)}, {v(T1+3)}")
    A(f"v_max3_f32 {v(m)}, {v(m)}, {v(t_)}, {v(TM)}")
    A(f"v_max_f32 {v(u0)}, {v(m)}, {v(TM+1)}")
    A(f"v_max_f32 {v(u3)}, {v(m)}, {v(TM+1)}")
    fl(2)
    A(f"v_permlane16_swap_b32 {v(u0)}, {v(u3)}")
    A(f"v_max_f32 {v(m)}, {v(u0)}, {v(u3)}")
    A(f"v_max_f32 {v(t_)}, {v(u0)}, {v(u3)}")
    fl(2)
    A(f"v_permlane32_swap_b32 {v(m)}, {v(t_)}")
    A(f"v_max_f32 {v(m)}, {v(m)}, {v(t_)}")
    A(f"v_mul_f32 {v(m)}, {s(sNC)}, {v(m)}")
    xs = [T0 + i for i in range(8)] + [TM, TM + 1]
    lq.wait('vx')
    for r in range(0, 10, 2):
        A(f"v_pk_fma_f32 {v(xs[r],2)}, {v(xs[r],2)}, {s(sC,2)}, {v(m,2)} op_sel_hi:[1,0,0]")
        lq.issue(*rw.pop(0))
    for k, r in enumerate(xs):
        A(f"v_exp_f32 {v(r)}, {v(r)}")
        if k >= 2 and k % 2 == 0:
            q = (k - 2) // 2
            A(f"v_cvt_pk_bf16_f32 {v(BX+q)}, {v(xs[2*q])}, {v(xs[2*q+1])}")
        if k < 8:
            lq.issue(*rw.pop(0))
    cst()
    A(f"v_mfma_f32_16x16x32_bf16 {v(LS,4)}, {v(vONE,4)}, {v(BX,4)}, 0")
    A(f"v_cvt_pk_bf16_f32 {v(vBM)}, {v(TM)}, {v(TM+1)}")
    for j in range(8):
        A(f"v_mfma_f32_16x16x32_bf16 {v(OA+4*j,4)}, {a(VXF+4*j,4)}, {v(BX,4)}, 0")
        if j == 0:
            A(f"v_and_b32 {v(u0)}, 0x1ff, {v(vOw)}")
        elif j == 1:
            A(f"v_mfma_f32_16x16x32_bf16 {v(LS,4)}, {v(vONE,4)}, {v(vBM,4)}, {v(LS,4)}")
            A(f"s_lshl_b32 {s(sT0)}, {s(sWAVE)}, 11")
            A(f"v_add_u32 {v(u0)}, {s(sT0)}, {v(u0)}")
        elif j == 5:
            A(f"v_rcp_f32 {v(m)}, {v(LS)}")
        else:
            fl(1)
        if rw:
            lq.issue(*rw.pop(0))
    assert not rw

    def norm(j, k):
        if k < 2:
            A(f"v_pk_mul_f32 {v(OA+4*j+2*k,2)}, {v(OA+4*j+2*k,2)}, {v(m,2)} op_sel_hi:[1,0]")
        else:
            A(f"v_cvt_pk_bf16_f32 {v(PK+2*j+k-2)}, {v(OA+4*j+2*(k-2))}, {v(OA+4*j+2*(k-2)+1)}")
    todo = []
    for j in range(8):
        A(f"v_mfma_f32_16x16x32_bf16 {v(OA+4*j,4)}, {v(VMX+2*j,4)}, {v(vBM,4)}, {v(OA+4*j,4)}")
        if j >= 3:
            todo += [(j - 3, k) for k in range(4)]
        for _ in range(2):
            if todo:
                norm(*todo.pop(0))
            else:
                fl(1)
    todo += [(j, k) for j in range(5, 8) for k in range(4)]
    wrote = 0
    for q, (j, k) in enumerate(todo):
        if j == 7 and k == 0:
            fl(2)
        norm(j, k)
        if k == 3 and j % 2 == 1:
            while wrote <= j // 2:
                lq.issue('ow', f"ds_write_b128 {v(u0)}, {v(PK+4*wrote,4)} offset:{MEM_OFF + wrote*512}")
                wrote += 1
    assert wrote == 4
    vAo = [vOw, u2, u3, u1]
    for k in range(1, 4):
        A(f"v_xor_b32 {v(vAo[k])}, {k << 9:#x}, {v(vOw)}")
    fl(99)
    lq.wait_all()
    A(f"s_barrier")
    cst()
    wo_idx = [(cg, 0) for cg in range(4)] + [(cg, ks) for cg in range(4) for ks in range(1, 4)]
    WOR = [a(224, 8), a(232, 8), a(240, 8), a(248, 8), v(224, 8), v(232, 8), v(240, 8), v(248, 8)]
    order = [(cg, ks) for ks in range(4) for cg in range(4)]

    def rdA(gam, ks):
        lq.issue(('A', gam, ks), f"ds_read_b128 {v(32 + 16*gam + 4*ks, 4)}, {v(vAo[ks])} offset:{MEM_OFF - O_OFF + gam*2048}")
    for gam in range(2):
        for ks in range(4):
            rdA(gam, ks)
    soff = [sT0, sT1, sT2, sT3]
    vq = Q(A, "vmcnt", 63)

    def post(gam, i):
        cg, k = i // 4, i % 4
        R = WA + 16 * gam + 4 * cg
        if k == 0:
            A(f"s_mov_b32 {s(soff[cg])}, {WS_PF + gam * 0x40000 + cg * 16384:#x}")
            A(f"v_cvt_pk_bf16_f32 {v(R)}, {v(R)}, {v(R+1)}")
        elif k == 1:
            A(f"v_cvt_pk_bf16_f32 {v(R+1)}, {v(R+2)}, {v(R+3)}")
        elif k == 2:
            A(f"v_or_b32 {v(R)}, 1, {v(R)}")
        else:
            vq.issue('p', f"buffer_store_dwordx2 {v(R,2)}, {v(vPst)}, {s(S_WS,4)}, {s(soff[cg])} offen{st}")
    sPo, sPo4, sOo = sRa2, sCn, sNeed
    f0 = [f"v_bfe_u32 {v(t_)}, {v(vL16)}, 4, 4",
          f"v_and_b32 {v(m)}, 1, {v(t_)}",
          f"v_lshlrev_b32 {v(m)}, 4, {v(m)}",
          f"v_lshlrev_b32 {v(m)}, {v(m)}, {v(SEL)}",
          f"v_lshrrev_b32 {v(t_)}, 1, {v(t_)}"]
    for i in range(4):
        f0 += [f"v_cmp_eq_u32 vcc, {i}, {v(t_)}", f"v_cndmask_b32 {v(SEL+i)}, 0, {v(m)}, vcc"]
    A(f"v_mov_b32 {v(SEL)}, 0x3f80")
    f1 = [f"v_and_b32 {v(LS)}, 0x70, {v(vL16)}",
          f"v_lshrrev_b32 {v(LS+1)}, 2, {v(LS)}",
          f"v_lshlrev_b32 {v(LS)}, 7, {v(LS)}",
          f"v_lshrrev_b32 {v(LS+2)}, 8, {v(vL16)}",
          f"v_lshlrev_b32 {v(LS+2)}, 4, {v(LS+2)}",
          f"v_add_u32 {v(LS)}, {v(LS)}, {v(LS+2)}"]
    RS = [RF + 4 * i for i in range(8)]

    def ld(i):
        vq.issue(('r', i), f"buffer_load_dwordx4 {v(RS[i],4)}, {v(vRed)}, {s(S_WS,4)}, {s(sPo if i < 4 else sPo4)} offen offset:{(i%4)*1024} sc1")

    def group(gam, polls=False):
        for i, (cg, ks) in enumerate(order):
            lq.wait(('A', gam, ks))
            io = wo_idx.index((cg, ks))
            B = WOR[io] if io < 8 else a(WST + 8 * (io - 8), 8)
            A(f"v_smfmac_f32_16x16x64_bf16 {v(WA+16*gam+4*cg,4)}, {v(32 + 16*gam + 4*ks, 4)}, {B}, {v(vIdxW)}")
            if gam < 2 and i in (4, 6, 8, 10):
                rdA(gam + 2, (i - 4) // 2)
            if gam == 0:
                if f0:
                    A(f0.pop(0))
                elif f1:
                    A(f1.pop(0))
            else:
                if i >= 2:
                    post(gam - 1, i - 2)
                if i == 15:
                    post(gam - 1, 14)
                    post(gam - 1, 15)
            if gam == 1 and i == 0:
                while f1:
                    A(f1.pop(0)) if i == 0 else None
            if polls and i % 2 == 0:
                ld(i // 2)
    group(0)
    while f1:
        A(f1.pop(0))
    A(f"s_lshl_b32 {s(sPo)}, {s(sWAVE)}, 5")
    A(f"s_add_u32 {s(sPo)}, {s(sPo)}, {WS_G + 63 * 128:#x}")
    vq.issue('g', f"buffer_load_dword {a(84)}, {v(LS+1)}, {s(S_WS,4)}, {s(sPo)} offen")
    A(f"s_lshl_b32 {s(sPo)}, {s(sWAVE)}, 14")
    A(f"s_lshl_b32 {s(sPo4)}, {s(sH)}, 6")
    A(f"s_add_u32 {s(sPo)}, {s(sPo)}, {s(sPo4)}")
    A(f"s_add_u32 {s(sPo)}, {s(sPo)}, {WS_B63:#x}")
    vq.issue('g', f"buffer_load_dwordx4 {a(80,4)}, {v(LS,4 if False else 1)}, {s(S_WS,4)}, {s(sPo)} offen")
    group(1)
    A(f"s_lshl_b32 {s(sPo)}, {s(sWAVE)}, 18")
    A(f"s_add_u32 {s(sPo)}, {s(sPo)}, {WS_PF:#x}")
    A(f"s_add_u32 {s(sPo4)}, {s(sPo)}, 4096")
    group(2)
    A(f"v_bfe_u32 {v(u0)}, {v(vL16)}, 4, 4")
    A(f"v_lshlrev_b32 {v(u1)}, 10, {v(u0)}")
    A(f"v_lshrrev_b32 {v(u0)}, 3, {v(u0)}")
    A(f"v_lshlrev_b32 {v(u0)}, 30, {v(u0)}")
    A(f"v_add_u32 {v(u1)}, {v(u1)}, {v(u0)}")
    A(f"v_lshrrev_b32 {v(u0)}, 8, {v(vL16)}")
    A(f"v_lshlrev_b32 {v(u0)}, 3, {v(u0)}")
    A(f"v_add_u32 {v(u1)}, {v(u1)}, {v(u0)}")
    A(f"s_lshl_b32 {s(sOo)}, {s(sWAVE)}, 13")
    A(f"s_lshl_b32 {s(sRet)}, {s(sH)}, 5")
    A(f"s_add_u32 {s(sOo)}, {s(sOo)}, {s(sRet)}")
    A(f"s_add_u32 {s(sOo)}, {s(sOo)}, {63 * 32 * 1024:#x}")
    A(f"s_mov_b32 {s(sRet)}, 0")
    RA = PA
    Lb, Lp, Lok, Lchk, Lw3 = (A.new_label(x) for x in ("cfb", "cfp", "cfok", "cfchk", "cfw3"))

    def final_posts():
        cst()
        A.nop(4)
        for i in range(16):
            post(3, i)
            if i % 4 == 0:
                A.nop(1)
        cst()

    def chk(cnt):
        for i in range(8):
            A(f"s_waitcnt vmcnt({cnt(i)})")
            c = "0" if i == 0 else v(RA, 4)
            A(f"v_mfma_f32_16x16x32_bf16 {v(RA,4)}, {v(RS[i],4)}, {v(SEL,4)}, {c}")
            if i == 0:
                A(f"v_and_b32 {v(m)}, {v(RS[i])}, {v(RS[i]+2)}")
            else:
                A(f"v_bitop3_b32 {v(m)}, {v(m)}, {v(RS[i])}, {v(RS[i]+2)} bitop3:0x80")
        A(f"v_and_b32 {v(m)}, 1, {v(m)}")
        A(f"v_cmp_ne_u32 vcc, 1, {v(m)}")
    A(f"s_cmp_ge_u32 {s(sWAVE)}, 2")
    A(f"s_cbranch_scc1 {Lb}")
    save = (list(vq.ops), list(lq.ops), nst[0])
    group(3, True)
    final_posts()
    young = [len(vq.ops) - 1 - vq.ops.index(('r', i)) for i in range(8)]
    chk(lambda i: young[i])
    A(f"s_cbranch_vccz {Lok}")
    A(f"s_branch {Lp}")
    A.label(Lb)
    vq.ops, lq.ops, nst[0] = save
    group(3)
    final_posts()
    A(f"s_cmp_eq_u32 {s(sWAVE)}, 2")
    A(f"s_cbranch_scc1 {Lp}")
    for _ in range(opts.get('cfd', 3)):
        A(f"s_sleep 1")
    A.label(Lp)
    for i in range(8):
        ld(i)
    chk(lambda i: 7 - i)
    A(f"s_cbranch_vccz {Lok}")
    A(f"s_add_u32 {s(sRet)}, {s(sRet)}, 1")
    A(f"s_cmp_lg_u32 {s(sDEAD)}, 0")
    A(f"s_cbranch_scc1 {Lok}")
    A(f"s_cmp_lt_u32 {s(sRet)}, {RED_LIMIT}")
    A(f"s_cbranch_scc1 {Lp}")
    A(f"s_mov_b32 {s(sDEAD)}, 1")
    A.label(Lok)
    cst()
    BG = PA + 8
    for r in range(5):
        A(f"v_accvgpr_read_b32 {v(BG+r)}, {a(80+r)}")
    for r in range(4):
        A(f"v_sub_f32 {v(RA+r)}, {v(RA+r)}, {v(BG+r)}")
    for r in range(4):
        A(f"v_fma_f32 {v(RA+r)}, {v(RA+r)}, {v(BG+4)}, {v(BG+r)}")
    A(f"v_cvt_pk_bf16_f32 {v(RA+4)}, {v(RA)}, {v(RA+1)}")
    A(f"v_cvt_pk_bf16_f32 {v(RA+5)}, {v(RA+2)}, {v(RA+3)}")
    A(f"buffer_store_dwordx2 {v(RA+4,2)}, {v(u1)}, {s(sOut,4)}, {s(sOo)} offen")
    if opts.get('tprof') == 3:
        A(f"s_waitcnt vmcnt(0)")
        cst()
        A(f"s_waitcnt lgkmcnt(0)")
        for k in range(1, 10):
            A(f"s_sub_u32 s{92 + k - 1}, s{64 + 2*k}, s64")
        A(f"s_mov_b32 s101, {s(sRet)}")
        A(f"s_branch L_flush")


def kv_polls(A):
    for j in range(2):
        Lp = A.new_label("kvp")
        Ld = A.new_label("kvd")
        A(f"s_mov_b32 {s(sRet)}, 0")
        A(f"s_cmp_lg_u32 {s(sDEAD)}, 0")
        A(f"s_cbranch_scc1 {Ld}")
        A.label(Lp)
        A(f"buffer_load_dword {v(vFlag)}, off, {s(S_WS,4)}, {s(sT5)} offset:{4*j} sc1")
        A(f"s_waitcnt vmcnt(0)")
        A(f"v_readfirstlane_b32 {s(sT0)}, {v(vFlag)}")
        A(f"s_cmp_ge_u32 {s(sT0)}, 1")
        A(f"s_cbranch_scc1 {Ld}")
        A(f"s_sleep 1")
        A(f"s_add_u32 {s(sRet)}, {s(sRet)}, 1")
        A(f"s_cmp_lt_u32 {s(sRet)}, {SPIN_LIMIT}")
        A(f"s_cbranch_scc1 {Lp}")
        A(f"s_mov_b32 {s(sDEAD)}, 1")
        A.label(Ld)


def fb_consts(A):
    A(f"s_cmp_eq_u32 {s(sWAVE)}, 0")
    A(f"s_cselect_b32 {s(sFb)}, {OOB:#x}, {s(sT5)}")
    A(f"s_add_u32 {s(sFo)}, {s(sFb)}, 8")


def gen_late_start(A, opts, vL):
    mk_srd(A, S_A, P_MEM0, 8192)
    A(f"s_lshl_b32 {s(sT0)}, {s(sWAVE)}, 8")
    lane_expr(A, vT0, vL, [(2, 2, 2048), (0, 1, 1024), (1, 1, 64), (4, 2, 16)], sregs=[sT0])
    A(f"buffer_load_dwordx4 {v(X+24,4)}, {v(vT0)}, {s(S_A,4)}, 0 offen")
    A(f"buffer_load_dwordx4 {v(X+28,4)}, {v(vT0)}, {s(S_A,4)}, 0 offen offset:128")
    A(f"s_waitcnt vmcnt(0)")
    A(f"ds_write_b128 {v(vMw)}, {v(X+24,4)}")
    A(f"ds_write_b128 {v(vMw)}, {v(X+28,4)} offset:1024")
    for i in range(16):
        A(f"v_mov_b32 {v(ACC+i)}, 0")
    for i in range(8):
        A(f"v_mov_b32 {v(Y+24+i)}, 0")
    fb_consts(A)
    A(f"v_mov_b32 {v(vT1)}, 0")
    A(f"s_mov_b32 {s(sT2)}, {D_CHECKIN*4}")
    A(f"s_mov_b32 {s(sT3)}, 0")
    wait_byte(A, vFlag, vT1, sT2, sT3, 32, "ci", sleep=1)
    A(f"buffer_load_dword {v(vFlag)}, {v(vT1)}, {s(S_DBG,4)}, 0 offen offset:{D_CHECKIN*4} sc1")
    A(f"s_getreg_b32 {s(sT0)}, hwreg(HW_REG_XCC_ID, 0, 4)")
    A(f"s_mul_i32 {s(sT1)}, {s(sT0)}, {s(sT0)}")
    A(f"s_lshl_b32 {s(sT1)}, {s(sT1)}, 22")
    A(f"s_lshl_b32 {s(sT0)}, {s(sT0)}, 13")
    A(f"s_add_u32 {s(sT0)}, {s(sT0)}, {s(sT1)}")
    A(f"s_add_u32 {s(sT0)}, {s(sT0)}, 32")
    A(f"s_waitcnt vmcnt(0)")
    A(f"v_readfirstlane_b32 {s(sT1)}, {v(vFlag)}")
    A(f"s_cmp_eq_u32 {s(sT0)}, {s(sT1)}")
    A(f"s_cselect_b32 {s(sFastF)}, 1, 0")
    kv_polls(A)
    A(f"s_mov_b32 m0, {s(sM0K)}")
    A(f"s_nop 0")
    for i in range(2):
        A(f"buffer_load_dwordx4 {v(vL16)}, {s(S_WS,4)}, {s(sKn)} offen offset:{1024*i} lds")


def gen_chain(A, opts):
    global RT
    RT = bool(opts.get('rt'))
    CSTEP[0] = opts.get('cstep', 39)
    TRACE[0] = bool(opts.get('trace'))
    FTR[0] = opts.get('ftr', 0)
    vL = 13
    A(f"s_xor_b32 {s(sH)}, {s(sIDX)}, {opts.get('hperm', 0)}")
    A(f"v_and_b32 {v(vL)}, 63, v0")
    if not opts.get('kw'):
        mk_srd(A, S_A, P_WQ, 512 * 8192)
        mk_srd(A, S_B, P_WK, 512 * 8192)
        mk_srd(A, S_C, P_WV, 512 * 8192)
        mk_srd(A, S_D, P_WO, 4096 * 1024)
    A(f"v_lshlrev_b32 {v(vL16)}, 4, {v(vL)}")
    if opts.get('walk') == 1:
        A(f"s_mov_b64 exec, 0")
        A(f"s_branch L_walk_cf")
        A.label("L_walk_ret")
        A(f"s_mov_b64 exec, -1")
    vMre = 2
    vG, vGo, vSW, vSWo, vTRb, vTRo, vTA = 116, 117, 118, 122, 124, 125, 126
    POOL = [40, 72]
    TEMPS = [104, 32]
    sXo = sRo + 1
    A(f"s_lshl_b32 {s(sT0)}, {s(sH)}, 8")
    A(f"s_lshl_b32 {s(sT1)}, {s(sWAVE)}, 20")
    A(f"s_add_u32 {s(sT0)}, {s(sT0)}, {s(sT1)}")
    lane_expr(A, vG, vL, [(4, 2, 8192), (0, 4, 16)], sregs=[sT0])
    A(f"s_lshl_b32 {s(sT0)}, {s(sH)}, 17")
    A(f"s_lshl_b32 {s(sT1)}, {s(sWAVE)}, 8")
    A(f"s_add_u32 {s(sT0)}, {s(sT0)}, {s(sT1)}")
    lane_expr(A, vGo, vL, [(4, 2, 1024), (0, 4, 16)], sregs=[sT0])

    RIDX = {0: 0, 1: 1, 4: 2, 5: 3, 6: 4, 7: 5}
    wo_ops = [(cg, 0) for cg in range(4)] + [(cg, ks) for cg in range(4) for ks in range(1, 4)]
    WORR = [('a', 224), ('a', 232), ('a', 240), ('a', 248), ('v', 224), ('v', 232), ('v', 240), ('v', 248)]

    def arm(part=3):
        Z = 20
        if part & 1:
            for i in range(4):
                A(f"v_mov_b32 {v(vSEL+i)}, -1")
            A(f"v_bfe_u32 {v(vT0)}, {v(vL)}, 4, 1")
            for i in range(4):
                A(f"v_xor_b32 {v(ACC+i)}, -1, {v(vT0)}")
            A(f"s_lshl_b32 {s(sT2)}, {s(sH)}, 8")
            A(f"v_add_u32 {v(vT0)}, {s(sT2)}, {v(vL16)}")
            A(f"v_cmp_gt_u32 vcc, 16, {v(vL)}")
            A(f"v_mov_b32 {v(vT1)}, {OOB:#x}")
            A.nop(1)
            A(f"v_cndmask_b32 {v(vMre)}, {v(vT1)}, {v(vT0)}, vcc")
            for i in range(4):
                A(f"v_mov_b32 {v(Z+i)}, 0")
            A(f"v_cndmask_b32 {v(Z+4)}, {v(vT1)}, {v(vL16)}, vcc")
            A(f"v_cmp_gt_u32 vcc, 8, {v(vL)}")
            A.nop(2)
            A(f"v_cndmask_b32 {v(Z+5)}, {v(vT1)}, {v(vL16)}, vcc")
        if part & 2:
            A(f"s_lshl_b32 {s(sT0)}, {s(sH)}, 13")
            A(f"s_lshl_b32 {s(sT1)}, {s(sWAVE)}, 11")
            A(f"s_add_u32 {s(sT0)}, {s(sT0)}, {s(sT1)}")
            vq.issue('st', f"buffer_store_dwordx4 {v(ACC,4)}, {v(vL16)}, {s(S_WS,4)}, {s(sT0)} offen sc1")
            vq.issue('st', f"buffer_store_dwordx4 {v(ACC,4)}, {v(vL16)}, {s(S_WS,4)}, {s(sT0)} offen offset:1024 sc1")
            for sl in range(4):
                A(f"s_mov_b32 {s(sT1)}, {WS_M + sl*8192:#x}")
                vq.issue('st', f"buffer_store_dwordx4 {v(vSEL,4)}, {v(vMre)}, {s(S_WS,4)}, {s(sT1)} offen sc1")
            A(f"s_lshl_b32 {s(sT1)}, {s(sH)}, 8")
            A(f"s_add_u32 {s(sT1)}, {s(sT1)}, {WS_OF:#x}")
            vq.issue('st', f"buffer_store_dwordx4 {v(Z,4)}, {v(Z+4)}, {s(S_WS,4)}, {s(sT1)} offen sc1")
            A(f"s_lshl_b32 {s(sT1)}, {s(sH)}, 7")
            A(f"s_add_u32 {s(sT1)}, {s(sT1)}, {WS_KVF:#x}")
            vq.issue('st', f"buffer_store_dwordx4 {v(Z,4)}, {v(Z+5)}, {s(S_WS,4)}, {s(sT1)} offen sc1")
    KW = opts.get('kw', 0)
    if KW:
        assert not opts.get('armlate', 1)
        arm(1)
        G.karg_ready(A, opts, [(S_D, P_WO, 4096 * 1024), (S_A, P_WQ, 512 * 8192), (S_B, P_WK, 512 * 8192), (S_C, P_WV, 512 * 8192)])
    A(f"s_lshl_b32 {s(sXo)}, {s(sWAVE)}, 15")

    def qkv_unit(m, hp, x):
        u = dict(kind='qkv', m=m, hp=hp, x=x, srd={'q': S_A, 'k': S_B, 'v': S_C}[m], needs_temp=(m != 'q'))
        u['soff'] = [(64 * hp + 16 * x + 4 * (k & 3) + 32 * (k >> 2)) * 8192 for k in range(8)]
        return u

    def bind(u, temp):
        if u['kind'] == 'qkv':
            m, hp, x = u['m'], u['hp'], u['x']
            res = []
            for i in range(4):
                sl = hp + 2 * i
                for t_ in range(2):
                    if m == 'q':
                        res.append((('a', 16 * sl + 8 * t_ + 4 * x), None))
                    elif sl in (2, 3):
                        fi = (0 if m == 'k' else 4) + 2 * (sl - 2) + t_
                        res.append((('v', temp + 4 * t_), fi * 2048 + 1024 * x))
                    else:
                        res.append(((('a' if m == 'k' else 'v'), 128 + 16 * RIDX[sl] + 8 * t_ + 4 * x), None))
            u['raw'] = [r[0] for r in res]
            u['res'] = res
        else:
            u['raw'] = [('v', temp + 4 * k) for k in range(8)]

    def wo_unit(ks):
        return dict(kind='wo', ks=ks, srd=S_D, soff=[(32 * ks + 4 * k) * 1024 for k in range(8)])
    U = {f"O{k}": wo_unit(k) for k in range(4)}
    for m in 'qkv':
        for hp in range(2):
            for x in range(2):
                U[f"{m.upper()}{hp}{x}"] = qkv_unit(m, hp, x)
    order = {0: "O0 O1 Q00 Q01 Q10 Q11 O2 O3 K00 K01 K10 K11 V00 V01 V10 V11",
             1: "Q00 Q01 Q10 Q11 O0 O1 K00 K01 O2 O3 K10 K11 V00 V01 V10 V11",
             2: "K00 K01 Q00 Q01 Q10 Q11 O0 O1 K10 K11 O2 O3 V00 V01 V10 V11",
             3: "O0 O1 Q00 Q01 Q10 Q11 O2 O3 V00 V01 V10 V11 K00 K01 K10 K11",
             4: "K00 K01 K10 K11 V00 V01 V10 V11 Q00 Q01 Q10 Q11 O0 O1 O2 O3",
             5: "K00 K01 K10 K11 V00 V01 V10 V11 Q00 O0 Q01 O1 Q10 O2 Q11 O3",
             6: "O0 O1 K00 K01 K10 K11 V00 V01 V10 V11 Q00 O2 Q01 O3 Q10 Q11",
             8: "K00 K01 K10 K11 V00 V01 V10 V11 O0 O1 O2 O3 Q00 Q01 Q10 Q11",
             9: "O0 O1 O2 O3 K00 K01 K10 K11 V00 V01 V10 V11 Q00 Q01 Q10 Q11",
             10: "O0 O1 O2 O3 Q00 Q01 Q10 Q11 K00 K01 K10 K11 V00 V01 V10 V11",
             11: "O0 O1 O2 K00 K01 K10 K11 V00 V01 V10 V11 Q00 Q01 Q10 Q11 O3",
             12: "O0 O1 K00 K01 K10 K11 V00 V01 V10 V11 Q00 Q01 Q10 Q11 O2 O3",
             7: "K00 K01 K10 K11 O0 V00 V01 O1 V10 V11 Q00 O2 Q01 O3 Q10 Q11",
             13: "O0 O1 Q00 Q01 Q10 Q11 K00 K01 K10 K11 V00 V01 V10 V11 D2",
             14: "Q00 Q01 Q10 Q11 O0 O1 K00 K01 K10 K11 V00 V01 V10 V11 D2",
             15: "Q00 Q01 Q10 Q11 K00 K01 K10 K11 O0 O1 V00 V01 V10 V11 D2",
             16: "O0 O1 K00 K01 K10 K11 Q00 Q01 Q10 Q11 V00 V01 V10 V11 D2"}[opts.get('word', 0)].split()
    ES = opts.get('es', 0)
    assert bool(ES) == (order[-1] == 'D2')
    sDm = sRo + 2
    for k_ in (2, 3):
        U[f"D{k_}"] = dict(wo_unit(k_), kind='dma')
    PARK = {10: ('v', 232), 13: ('v', 240)} if ES else {}

    def dma_unit(u, vq):
        for k in range(8):
            A(f"s_add_u32 m0, {s(sDm)}, {(u['ks'] - 2) * 8192 + k * 1024:#x}")
            A(f"s_xor_b32 {s(sT0)}, {u['soff'][k]:#x}, {s(sXo)}")
            vq.issue(id(u), f"buffer_load_dwordx4 {v((vGo, vSWo + 1)[k >> 2])}, {s(u['srd'],4)}, {s(sT0)} offen lds" + WPOL[opts.get('wnto', 0)])
    units = [U[n] for n in order]
    for n_ in U:
        U[n_]['name'] = n_
    CPN = opts.get('cpx', 0)
    cpu_ = [n_ for n_ in order if n_[0] in 'QKV']
    cpu_ = (cpu_[:CPN] if opts.get('cpfirst') else cpu_[-CPN:]) if CPN else []
    WS_CP = opts.get('cpbase', G.WS_CP)
    vCp, sCpB = 127, sU
    sSlowH = sU + 1
    if opts.get('cwsm'):
        A(f"s_and_b32 {s(sT0)}, {s(sH)}, 3")
        A(f"s_cmp_eq_u32 {s(sT0)}, {opts.get('cph', 1)}")
        A(f"s_cselect_b32 {s(sSlowH)}, 1, 0")
    if CPN:
        A(f"s_and_b32 {s(sT0)}, {s(sH)}, 3")
        A(f"s_lshr_b32 {s(sT1)}, {s(sH)}, 2")
        A(f"s_mul_i32 {s(sT1)}, {s(sT1)}, {CPN * 32 * 2048}")
        A(f"s_lshl_b32 {s(sT2)}, {s(sWAVE)}, 14")
        A(f"s_add_u32 {s(sT1)}, {s(sT1)}, {s(sT2)}")
        A(f"s_add_u32 {s(sT1)}, {s(sT1)}, {WS_CP:#x}")
        A(f"s_cmp_eq_u32 {s(sT0)}, {opts.get('cph', 1)}")
        A(f"s_cselect_b32 {s(sCpB)}, {s(sT1)}, 0")
        lane_expr(A, vCp, vL, [(4, 2, 256), (0, 4, 16)])
        A(f"v_cmp_lt_u32 vcc, 15, {v(vL)}")
        A(f"v_add_u32 {v(vT0)}, 256, {v(vCp)}")
        A.nop(1)
        A(f"v_cndmask_b32 {v(vCp)}, {v(vCp)}, {v(vT0)}, vcc")
    vq = Q(A, "vmcnt", 63)
    nst = 8
    ARMLATE = opts.get('armlate', 1)
    if not ARMLATE:
        arm(2 if KW else 3)
    busy = set()
    TPREF = [40, 48, 56, 64, 104, 32, 72, 80, 88, 96]
    PPREF = [72, 40]

    def alloc_temp():
        for g in TPREF:
            if g not in busy:
                busy.add(g)
                return g
        return None

    def alloc_pool():
        for p in PPREF:
            gs = [p + 8 * j for j in range(4)]
            if not any(g in busy for g in gs):
                busy.update(gs)
                return p
        return None
    held = {}
    WIN = opts.get('cwin', 56)
    st_ = dict(issued=0)

    def inflight():
        return len(vq.ops)

    EARLY = opts.get('early', 1)
    vEK, vEM, vEF, vEC, vEA = 104, 32, 112, 114, 115
    vEV = 96
    DMI = opts.get('vpos', 0) != 0

    def early_issue():
        assert 104 not in busy and 32 not in busy
        busy.update((104, 32))
        if DMI:
            assert vEV not in busy
            busy.add(vEV)
        mk_srd(A, S_X, P_MEM0, 8192)
        A(f"s_lshl_b32 {s(sT0)}, {s(sWAVE)}, 8")
        lane_expr(A, vEA, vL, [(2, 2, 2048), (0, 1, 1024), (1, 1, 64), (4, 2, 16)], sregs=[sT0])
        vq.issue('fl', f"buffer_load_dwordx2 {v(vEF,2)}, off, {s(S_WS,4)}, {s(sT5)} sc1")
        vq.issue('ci', f"buffer_load_dword {v(vEC)}, off, {s(S_DBG,4)}, 0 offset:{D_CHECKIN*4} sc1")
        vq.issue('m0', f"buffer_load_dwordx4 {v(vEM,4)}, {v(vEA)}, {s(S_X,4)}, 0 offen")
        vq.issue('m0', f"buffer_load_dwordx4 {v(vEM+4,4)}, {v(vEA)}, {s(S_X,4)}, 0 offen offset:128")

    def early_k():
        vq.wait('fl')
        A(f"v_min_u32 {v(vEF)}, {v(vEF)}, {v(vEF+1)}")
        A.nop(1)
        A(f"v_readfirstlane_b32 {s(sT0)}, {v(vEF)}")
        A(f"s_cmp_ge_u32 {s(sT0)}, 1")
        A(f"s_cselect_b32 {s(sKok)}, 1, 0")
        A(f"s_cselect_b32 {s(sT1)}, {s(sKn)}, {OOB:#x}")
        vq.issue('kx', f"buffer_load_dwordx4 {v(vEK,4)}, {v(vL16)}, {s(S_WS,4)}, {s(sT1)} offen")
        vq.issue('kx', f"buffer_load_dwordx4 {v(vEK+4,4)}, {v(vL16)}, {s(S_WS,4)}, {s(sT1)} offen offset:1024")
        if DMI:
            A(f"s_add_u32 {s(sT1)}, {s(sT1)}, 8192")
            vq.issue('kx', f"buffer_load_dwordx4 {v(vEV,4)}, {v(vL16)}, {s(S_WS,4)}, {s(sT1)} offen")
            vq.issue('kx', f"buffer_load_dwordx4 {v(vEV+4,4)}, {v(vL16)}, {s(S_WS,4)}, {s(sT1)} offen offset:1024")

    def try_issue():
        while st_['issued'] < len(units):
            u = units[st_['issued']]
            limit = min(WIN + (nst if 'st' in vq.ops else 0), 62)
            if EARLY and st_['issued'] == len(units) - 1 - (opts.get('esfl', 1) if ES else 0) and not st_.get('early'):
                if inflight() + 8 > limit or 104 in busy or 32 in busy or (DMI and vEV in busy):
                    return
                early_issue()
                st_['early'] = True
                limit += 4
            elif EARLY and st_.get('early'):
                limit += 4
            if inflight() + 8 > limit:
                return
            if u['kind'] == 'wo':
                tmp = alloc_pool()
                if tmp is None:
                    return
                held[id(u)] = ('pool', tmp)
            elif u['kind'] == 'dma':
                assert st_.get('o1')
                tmp = None
            elif u['needs_temp']:
                tmp = alloc_temp()
                if tmp is None:
                    return
                held[id(u)] = ('temp', tmp)
            else:
                tmp = None
            if u['kind'] != 'dma':
                bind(u, tmp)
            if opts.get('cwsm') and inflight() + 8 > opts['cwsm']:
                Lsm = A.new_label("sm")
                A(f"s_cmp_eq_u32 {s(sSlowH)}, 1")
                A(f"s_cbranch_scc1 {Lsm}")
                A(f"s_waitcnt vmcnt({opts['cwsm'] - 8})")
                A.label(Lsm)
            if u['kind'] == 'dma':
                dma_unit(u, vq)
                st_['issued'] += 1
                continue
            Lcp = None
            if u['name'] in cpu_:
                Lcp, Lcq = A.new_label("cp"), A.new_label("cq")
                A(f"s_cmp_lg_u32 {s(sCpB)}, 0")
                A(f"s_cbranch_scc1 {Lcp}")
            for k in range(8):
                if u['kind'] == 'wo':
                    A(f"s_xor_b32 {s(sT0)}, {u['soff'][k]:#x}, {s(sXo)}")
                    vq.issue(id(u), f"buffer_load_dwordx4 {reg(u['raw'][k], 4)}, {v(vGo)}, {s(u['srd'],4)}, {s(sT0)} offen" + WPOL[opts.get('wnto', 0)])
                else:
                    A(f"s_mov_b32 {s(sT0)}, {u['soff'][k]:#x}")
                    vq.issue(id(u), f"buffer_load_dwordx4 {reg(u['raw'][k], 4)}, {v(vG)}, {s(u['srd'],4)}, {s(sT0)} offen" + WPOL[opts.get('wnt', 0)])
            if Lcp:
                A(f"s_branch {Lcq}")
                A.label(Lcp)
                for k in range(8):
                    A(f"s_add_u32 {s(sT0)}, {s(sCpB)}, {(cpu_.index(u['name']) * 32 + k) * 2048:#x}")
                    A(f"buffer_load_dwordx4 {reg(u['raw'][k], 4)}, {v(vCp)}, {s(S_WS,4)}, {s(sT0)} offen")
                A.label(Lcq)
            st_['issued'] += 1
    stamp(A, 1) if not opts.get('cprof') else None
    try_issue()
    if ARMLATE:
        arm()
    A(f"s_lshl_b32 {s(sT2)}, {s(sWAVE)}, 13")
    lane_expr(A, vSW, vL, [(4, 2, 256), (1, 3, 32), (0, 1, 16)], sregs=[sT2])
    A(f"v_mov_b32 {v(vSWo)}, {v(vSW)}")
    A(f"v_bfe_u32 {v(vTA)}, {v(vL)}, 4, 1")
    A(f"v_lshlrev_b32 {v(vT0)}, 5, {v(vTA)}")
    A(f"v_xor_b32 {v(vSW)}, {v(vSW)}, {v(vT0)}")
    A(f"v_lshlrev_b32 {v(vT0)}, 6, {v(vTA)}")
    A(f"v_xor_b32 {v(vSWo)}, {v(vSWo)}, {v(vT0)}")
    A(f"v_xor_b32 {v(vSW+1)}, 64, {v(vSW)}")
    A(f"v_xor_b32 {v(vSW+2)}, 0x80, {v(vSW)}")
    A(f"v_xor_b32 {v(vSW+3)}, 0xc0, {v(vSW)}")
    A(f"v_xor_b32 {v(vSWo+1)}, 0x80, {v(vSWo)}")
    A(f"s_lshl_b32 {s(sT3)}, {s(sWAVE)}, 6")
    lane_expr(A, vTRb, vL, [(2, 1, 256 + 32), (4, 1, 1024 + 64), (5, 1, 2048), (3, 1, 4096 + 128), (0, 2, 8)])
    A(f"v_xor_b32 {v(vTRb)}, {s(sT3)}, {v(vTRb)}")
    A(f"v_add_u32 {v(vTRb)}, {s(sT2)}, {v(vTRb)}")
    lane_expr(A, vTRo, vL, [(2, 1, 256 + 64), (4, 1, 4096 + 128), (5, 1, 1024), (3, 1, 32), (0, 2, 8)], sregs=[sT2])
    A(f"s_lshl_b32 {s(sT0)}, {s(sWAVE)}, 15")
    A(f"s_add_u32 {s(sT0)}, {s(sT0)}, {WO_OFF}")
    A(f"v_add_u32 {v(vWo)}, {s(sT0)}, {v(vL16)}")
    def checkin():
        vq.wait('st')
        A(f"s_barrier")
        Lci = A.new_label("ci")
        A(f"s_cmp_lg_u32 {s(sWAVE)}, 0")
        A(f"s_cbranch_scc1 {Lci}")
        A(f"s_getreg_b32 {s(sT0)}, hwreg(HW_REG_XCC_ID, 0, 4)")
        A(f"s_mul_i32 {s(sT1)}, {s(sT0)}, {s(sT0)}")
        A(f"s_lshl_b32 {s(sT1)}, {s(sT1)}, 17")
        A(f"s_lshl_b32 {s(sT0)}, {s(sT0)}, 8")
        A(f"s_add_u32 {s(sT0)}, {s(sT0)}, {s(sT1)}")
        A(f"s_add_u32 {s(sT0)}, {s(sT0)}, 1")
        A(f"v_mov_b32 {v(vT0)}, {s(sT0)}")
        A(f"v_mov_b32 {v(vT1)}, 0")
        A(f"s_mov_b64 exec, 1")
        A(f"buffer_atomic_add {v(vT0)}, {v(vT1)}, {s(S_DBG,4)}, 0 offen offset:{D_CHECKIN*4} sc1")
        A(f"s_mov_b64 exec, -1")
        A.label(Lci)

    if not ARMLATE:
        checkin()
        try_issue()
    A(f"s_lshr_b32 {s(sT3)}, {s(sH)}, 2")
    A(f"s_lshl_b32 {s(sT3)}, {s(sT3)}, 10")
    A(f"s_and_b32 {s(sT4)}, {s(sH)}, 1")
    A(f"s_lshl_b32 {s(sT4)}, {s(sT4)}, 9")
    A(f"s_add_u32 {s(sT3)}, {s(sT3)}, {s(sT4)}")
    A(f"s_and_b32 {s(sT4)}, {s(sH)}, 2")
    A(f"s_lshl_b32 {s(sT4)}, {s(sT4)}, 4")
    A(f"s_add_u32 {s(sT3)}, {s(sT3)}, {s(sT4)}")
    lane_expr(A, vMst, vL, [(5, 1, 256), (1, 2, 64), (0, 1, 16), (4, 1, 8)], sregs=[sT3])
    A(f"v_and_b32 {v(vT1)}, 8, {v(vL)}")
    A(f"v_lshlrev_b32 {v(vT1)}, 27, {v(vT1)}")
    A(f"v_add_u32 {v(vMst)}, {v(vMst)}, {v(vT1)}")
    A(f"s_cmp_eq_u32 {s(sWAVE)}, 0")
    Lw0 = A.new_label("w0")
    A(f"s_cbranch_scc1 {Lw0}")
    A(f"v_mov_b32 {v(vMst)}, {v(vMre)}")
    A(f"s_cmp_eq_u32 {s(sWAVE)}, 3")
    A(f"s_cbranch_scc1 {Lw0}")
    A(f"v_mov_b32 {v(vMst)}, {OOB:#x}")
    A.label(Lw0)
    for (dst, bit) in ((vIdx, 2), (vIdxW, 8)):
        A(f"v_mov_b32 {v(dst)}, 0x4444")
        A(f"v_mov_b32 {v(vT0)}, 0xeeee")
        A(f"v_and_b32 {v(vT1)}, {bit}, {v(vL)}")
        A(f"v_cmp_ne_u32 vcc, 0, {v(vT1)}")
        A.nop(2)
        A(f"v_cndmask_b32 {v(dst)}, {v(dst)}, {v(vT0)}, vcc")
    A(f"s_lshl_b32 {s(sT0)}, {s(sWAVE)}, 9")
    lane_expr(A, vQKw, vL, [(0, 4, 16), (4, 2, 4)], sregs=[sT0])
    A(f"s_lshl_b32 {s(sT0)}, {s(sWAVE)}, 10")
    A(f"s_lshr_b32 {s(sT1)}, {s(sWAVE)}, 1")
    A(f"s_lshl_b32 {s(sT1)}, {s(sT1)}, 11")
    A(f"s_add_u32 {s(sT0)}, {s(sT0)}, {s(sT1)}")
    lane_expr(A, vKw, vL, [(0, 4, 32), (4, 2, 8)], const=2048, sregs=[sT0])
    lane_expr(A, vKr, vL, [(5, 1, 512), (4, 1, 128), (2, 2, 32), (0, 2, 8)])
    lane_expr(A, vQKr, vL, [(5, 1, 256), (4, 1, 64), (2, 2, 16), (0, 1, 8)])
    A(f"s_lshl_b32 {s(sT0)}, {s(sWAVE)}, 9")
    lane_expr(A, vOw, vL, [(4, 2, 128), (0, 3, 16)], const=O_OFF, sregs=[sT0])
    A(f"s_lshl_b32 {s(sT0)}, {s(sWAVE)}, 11")
    A(f"s_add_u32 {s(sT0)}, {s(sT0)}, {MEM_OFF}")
    A(f"v_add_u32 {v(vMw)}, {s(sT0)}, {v(vL16)}")
    A(f"s_lshl_b32 {s(sT0)}, {s(sWAVE)}, 16")
    A(f"s_lshl_b32 {s(sT1)}, {s(sH)}, 8")
    lane_expr(A, vPst, vL, [(5, 1, 8192), (0, 4, 16), (4, 1, 8)], sregs=[sT0, sT1])
    A(f"s_lshl_b32 {s(sT0)}, {s(sH)}, 13")
    A(f"v_add_u32 {v(vRed)}, {s(sT0)}, {v(vL16)}")
    A(f"s_and_b32 {s(sT1)}, {s(sWAVE)}, 1")
    A(f"s_lshl_b32 {s(sT1)}, {s(sT1)}, 13")
    A(f"s_lshl_b32 {s(sT0)}, {s(sH)}, 14")
    A(f"s_add_u32 {s(sT0)}, {s(sT0)}, {s(sT1)}")
    A(f"v_lshlrev_b32 {v(vPf)}, 6, {v(vL)}")
    A(f"v_add_u32 {v(vPf)}, {s(sT0)}, {v(vPf)}")
    A(f"s_mov_b32 {s(sMLo)}, -1")
    A(f"s_mov_b32 {s(sMLo+1)}, 0")
    A(f"s_mov_b32 {s(sMHi)}, 0")
    A(f"s_mov_b32 {s(sMHi+1)}, -1")
    A(f"s_mov_b32 {s(sC)}, {f32_hex(SCALE_C):#x}")
    A(f"s_mov_b32 {s(sNC)}, {f32_hex(-SCALE_C):#x}")
    Lsel = A.new_label("sel")
    A(f"s_cmp_lg_u32 {s(sWAVE)}, 0")
    A(f"s_cbranch_scc1 {Lsel}")
    A(f"v_and_b32 {v(vT0)}, 15, {v(vL)}")
    A(f"v_mov_b32 {v(vS0)}, 0x3f80")
    A(f"v_mov_b32 {v(vT1)}, 0x3f800000")
    A(f"v_and_b32 v112, 1, {v(vT0)}")
    A(f"v_cmp_eq_u32 vcc, 1, v112")
    A.nop(2)
    A(f"v_cndmask_b32 {v(vS0)}, {v(vS0)}, {v(vT1)}, vcc")
    A(f"v_lshrrev_b32 {v(vT0)}, 1, {v(vT0)}")
    for i in range(4):
        A(f"v_cmp_eq_u32 vcc, {i}, {v(vT0)}")
        A.nop(2)
        A(f"v_cndmask_b32 {v(vSEL+i)}, 0, {v(vS0)}, vcc")
    A(f"v_bfe_u32 {v(vTagE)}, {v(vL)}, 4, 1")
    A(f"v_xor_b32 {v(vTagE)}, 1, {v(vTagE)}")
    A.label(Lsel)
    for i in range(4):
        A(f"v_mov_b32 {v(vONE+i)}, 0x3f803f80")
    for i in range(1, 4):
        A(f"v_mov_b32 {v(vBM+i)}, 0")

    A(f"s_lshl_b32 {s(sW2k)}, {s(sWAVE)}, 11")
    A(f"s_mov_b32 {s(sSlotP1)}, {WS_P + 16384}")
    A(f"s_mov_b32 {s(sPc2)}, {WS_P + 32768}")
    A(f"s_mov_b32 {s(sPc3)}, {WS_P + 49152}")
    A(f"s_mov_b32 {s(sSlotP4)}, {WS_P + 4096}")
    A(f"s_and_b32 {s(sTag)}, {s(sH)}, 1")
    A(f"s_xor_b32 {s(sTag)}, {s(sTag)}, 1")
    A(f"s_lshl_b32 {s(sT5)}, {s(sH)}, 7")
    A(f"s_add_u32 {s(sT5)}, {s(sT5)}, {WS_KVF:#x}")
    A(f"s_cmp_ge_u32 {s(sWAVE)}, 2")
    A(f"s_mov_b32 {s(sT0)}, {OOB:#x}")
    A(f"s_mov_b32 {s(sPf)}, {WS_KX + 0x80000:#x}")
    A(f"s_cselect_b32 {s(sPf)}, {s(sPf)}, {s(sT0)}")
    A(f"s_add_u32 {s(sM0K)}, {s(sW2k)}, {KX_OFF}")
    A(f"s_lshl_b32 {s(sKn)}, {s(sH)}, 14")
    A(f"s_add_u32 {s(sKn)}, {s(sKn)}, {s(sW2k)}")
    A(f"s_add_u32 {s(sKn)}, {s(sKn)}, {WS_KX:#x}")
    A(f"s_add_u32 {s(sM0V)}, {s(sW2k)}, {VX_OFF}")
    A(f"s_lshl_b32 {s(sKV)}, {s(sH)}, 14")
    A(f"s_add_u32 {s(sKV)}, {s(sKV)}, {s(sW2k)}")
    A(f"s_add_u32 {s(sKV)}, {s(sKV)}, {WS_KX:#x}")
    A(f"s_lshl_b32 {s(sKM)}, {s(sH)}, 12")
    A(f"s_add_u32 {s(sKM)}, {s(sKM)}, {WS_KM:#x}")
    A(f"s_mov_b32 {s(sJ4)}, 8")
    A(f"s_mov_b32 {s(sCn)}, 1")
    A(f"s_mov_b32 {s(sNeed)}, 1")
    for b, u in enumerate(units):
        assert st_['issued'] > b, "loader deadlock"
        if u['kind'] == 'dma':
            break
        if EARLY and b == len(units) - 1:
            assert st_.get('early')
            early_k()
        vq.wait(id(u))
        if opts.get('pst0') and b < 4:
            stamp(A, 4 + b)
        A(f"s_barrier")
        if u['kind'] == 'qkv':
            for k in range(8):
                A(f"ds_write_b128 {v(vSW + (k & 1) + 2 * (k >> 2))}, {reg(u['raw'][k], 4)} offset:{k * 1024}")
            A(f"s_waitcnt lgkmcnt(0)")
            A(f"s_barrier")
            x = u['x']
            for i in range(4):
                for t_ in range(2):
                    r_, fin = u['res'][2 * i + t_]
                    A(f"v_xor_b32 {v(vTA + (t_ & 1))}, {(i << 13) | (t_ << 5):#x}, {v(vTRb)}")
                    for q0 in range(2):
                        A(f"ds_read_b64_tr_b16 {reg(off(r_, 2 * q0), 2)}, {v(vTA + (t_ & 1))} offset:{512 * q0}")
            A(f"s_waitcnt lgkmcnt(0)")
            for (r_, fin) in u['res']:
                if fin is not None:
                    A(f"ds_write_b128 {v(vWo)}, {reg(r_, 4)} offset:{fin}")
        else:
            ks = u['ks']
            for k in range(8):
                A(f"ds_write_b128 {v(vSWo + (k >> 2))}, {reg(u['raw'][k], 4)} offset:{k * 1024}")
            base = u['raw'][0][1]
            fins = []
            for cg in range(4):
                io = wo_ops.index((cg, ks))
                dst = WORR[io] if io < 8 else PARK.get(io, ('v', base + 8 * cg))
                A(f"v_xor_b32 {v(vTA + (cg & 1))}, {cg << 6:#x}, {v(vTRo)}")
                for i in range(4):
                    A(f"ds_read_b64_tr_b16 {reg(off(dst, 2 * i), 2)}, {v(vTA + (cg & 1))} offset:{(8 * (i >> 1) + 2 * (i & 1)) * 256}")
                if io >= 8 and io not in PARK:
                    fins.append((dst, io * 2048))
            A(f"s_waitcnt lgkmcnt(0)")
            for (dst, o) in fins:
                A(f"ds_write_b128 {v(vWo)}, {reg(dst, 4)} offset:{o}")
                A(f"ds_write_b128 {v(vWo)}, {reg(off(dst, 4), 4)} offset:{o + 1024}")
        if id(u) in held:
            kind, tmp = held[id(u)]
            A(f"s_waitcnt lgkmcnt(0)")
            if kind == 'pool':
                busy.difference_update(tmp + 8 * j for j in range(4))
            else:
                busy.discard(tmp)
        if ES and u['name'] == 'O1':
            A(f"v_bfe_u32 {v(vTA)}, {v(vL)}, 4, 1")
            A(f"v_lshlrev_b32 {v(vTA)}, 6, {v(vTA)}")
            A(f"s_lshl_b32 {s(sDm)}, {s(sWAVE)}, 15")
            A(f"v_xor_b32 {v(vGo)}, {v(vTA)}, {v(vGo)}")
            A(f"s_add_u32 {s(sDm)}, {s(sDm)}, {WO_OFF + 16384:#x}")
            A(f"v_xor_b32 {v(vSWo + 1)}, 0x80, {v(vGo)}")
            st_['o1'] = True
        if ARMLATE and b == opts.get('cipos', 1):
            checkin()
        if opts.get('prof') and not opts.get('cprof') and not opts.get('pst0') and not opts.get('esprof') and b in (0, 3, 7, 11):
            stamp(A, {0: 4, 3: 5, 7: 6, 11: 7}[b])
        try_issue()
        if opts.get('iw'):
            j0 = opts.get('iwb', 2)
            g = IWG(opts)
            for j in range(8):
                if (g == 4 and b == j0 + j) or (g == 32 and b == j0 and j == 0):
                    A(f"s_mov_b64 exec, 0")
                    for w in range(g):
                        if g == 4:
                            A(f"s_cmp_eq_u32 {s(sWAVE)}, {w}")
                            A(f"s_cbranch_scc1 L_iw_{4 * j + w}")
                        else:
                            A(f"s_cbranch_execz L_iw_{w}")
                    A.label(f"L_iwret_{j}")
                    A(f"s_mov_b64 exec, -1")
    A("s_waitcnt lgkmcnt(0)")
    stamp(A, 2) if not opts.get('cprof') else None
    A(f"s_barrier")
    if ES:
        assert EARLY and st_['issued'] == len(units) and not DMI
        vq.wait('m0')
        A(f"v_min_u32 {v(vEF)}, {v(vEF)}, {v(vEF+1)}")
        A(f"ds_write_b128 {v(vMw)}, {v(vEM,4)}")
        A(f"v_readfirstlane_b32 {s(sT0)}, {v(vEF)}")
        A(f"ds_write_b128 {v(vMw)}, {v(vEM+4,4)} offset:1024")
        Lkok = A.new_label("kok")
        A(f"s_cmp_ge_u32 {s(sT0)}, 1")
        A(f"s_cbranch_scc1 {Lkok}")
        kv_polls(A)
        A.label(Lkok)
        if opts.get('esprof'):
            stamp(A, 8)
        A(f"s_mov_b32 m0, {s(sM0K)}")
        A(f"s_add_u32 {s(sT1)}, {s(sKn)}, 8192")
        A(f"buffer_load_dwordx4 {v(vL16)}, {s(S_WS,4)}, {s(sKn)} offen lds")
        A(f"buffer_load_dwordx4 {v(vL16)}, {s(S_WS,4)}, {s(sKn)} offen offset:1024 lds")
        A(f"s_mov_b32 m0, {s(sM0V)}")
        A(f"s_nop 0")
        A(f"buffer_load_dwordx4 {v(vL16)}, {s(S_WS,4)}, {s(sT1)} offen lds")
        A(f"buffer_load_dwordx4 {v(vL16)}, {s(S_WS,4)}, {s(sT1)} offen offset:1024 lds")
        D3Q.clear()
        if opts.get('esd3'):
            A(f"v_mov_b32 {v(X + 16)}, {v(vGo)}")
            A(f"v_mov_b32 {v(X + 17)}, {v(vSWo + 1)}")
            for k in range(8):
                D3Q.append([f"s_add_u32 m0, {s(sDm)}, {8192 + k * 1024:#x}",
                            f"s_xor_b32 {s(sT0)}, {U['D3']['soff'][k]:#x}, {s(sXo)}",
                            f"buffer_load_dwordx4 {v(X + 16 + (k >> 2))}, {s(S_D,4)}, {s(sT0)} offen lds" + WPOL[opts.get('wnto', 0)]])
        else:
            dma_unit(U['D3'], vq)
        for i in range(4):
            A(f"v_mov_b64 {v(X+24+2*i,2)}, {v(vEM+2*i,2)}")
        A(f"v_readfirstlane_b32 {s(sT4)}, {v(vEC)}")
    if not EARLY:
        gen_late_start(A, opts, vL)
    elif not ES:
        Lkok = A.new_label("kok")
        A(f"s_cmp_eq_u32 {s(sKok)}, 1")
        A(f"s_cbranch_scc1 {Lkok}")
        kv_polls(A)
        A(f"buffer_load_dwordx4 {v(vEK,4)}, {v(vL16)}, {s(S_WS,4)}, {s(sKn)} offen")
        A(f"buffer_load_dwordx4 {v(vEK+4,4)}, {v(vL16)}, {s(S_WS,4)}, {s(sKn)} offen offset:1024")
        if DMI:
            A(f"s_add_u32 {s(sT1)}, {s(sKn)}, 8192")
            A(f"buffer_load_dwordx4 {v(vEV,4)}, {v(vL16)}, {s(S_WS,4)}, {s(sT1)} offen")
            A(f"buffer_load_dwordx4 {v(vEV+4,4)}, {v(vL16)}, {s(S_WS,4)}, {s(sT1)} offen offset:1024")
        A.label(Lkok)
        A(f"s_waitcnt vmcnt(0)")
        A(f"ds_write_b128 {v(vMw)}, {v(vEM,4)}")
        A(f"ds_write_b128 {v(vMw)}, {v(vEM+4,4)} offset:1024")
        for i in range(4):
            A(f"v_mov_b64 {v(X+24+2*i,2)}, {v(vEM+2*i,2)}")
        A(f"v_readfirstlane_b32 {s(sT4)}, {v(vEC)}")
        A(f"ds_write_b128 {v(vMw)}, {v(vEK,4)} offset:{KX_OFF - MEM_OFF}")
        A(f"ds_write_b128 {v(vMw)}, {v(vEK+4,4)} offset:{KX_OFF - MEM_OFF + 1024}")
        if DMI:
            A(f"ds_write_b128 {v(vMw)}, {v(vEV,4)} offset:{VX_OFF - MEM_OFF}")
            A(f"ds_write_b128 {v(vMw)}, {v(vEV+4,4)} offset:{VX_OFF - MEM_OFF + 1024}")
    if EARLY:
        for i in range(16):
            A(f"v_mov_b32 {v(ACC+i)}, 0")
        for i in range(8):
            A(f"v_mov_b32 {v(Y+24+i)}, 0")
        fb_consts(A)
        Lcok = A.new_label("cok")
        A(f"s_and_b32 {s(sT0)}, {s(sT4)}, 0xff")
        A(f"s_cmp_ge_u32 {s(sT0)}, 32")
        A(f"s_cbranch_scc1 {Lcok}")
        A(f"v_mov_b32 {v(vT1)}, 0")
        A(f"s_mov_b32 {s(sT2)}, {D_CHECKIN*4}")
        A(f"s_mov_b32 {s(sT3)}, 0")
        wait_byte(A, vFlag, vT1, sT2, sT3, 32, "ci", sleep=1)
        A(f"buffer_load_dword {v(vFlag)}, {v(vT1)}, {s(S_DBG,4)}, 0 offen offset:{D_CHECKIN*4} sc1")
        A(f"s_waitcnt vmcnt(0)")
        A(f"v_readfirstlane_b32 {s(sT4)}, {v(vFlag)}")
        A.label(Lcok)
        A(f"s_getreg_b32 {s(sT0)}, hwreg(HW_REG_XCC_ID, 0, 4)")
        A(f"s_mul_i32 {s(sT1)}, {s(sT0)}, {s(sT0)}")
        A(f"s_lshl_b32 {s(sT1)}, {s(sT1)}, 22")
        A(f"s_lshl_b32 {s(sT0)}, {s(sT0)}, 13")
        A(f"s_add_u32 {s(sT0)}, {s(sT0)}, {s(sT1)}")
        A(f"s_add_u32 {s(sT0)}, {s(sT0)}, 32")
        A(f"s_cmp_eq_u32 {s(sT0)}, {s(sT4)}")
        A(f"s_cselect_b32 {s(sFastF)}, 1, 0")
        A(f"s_mov_b32 m0, {s(sM0V if opts.get('kpos', 0) else sM0K)}")
    A(f"s_mov_b32 {s(sS)}, 0")
    if opts.get('cf') and not opts.get('nosld') and not ES:
        A(f"s_load_dwordx2 s[28:29], s[0:1], 88")
    A(f"s_waitcnt lgkmcnt(0)" if ES else f"s_waitcnt vmcnt(0) lgkmcnt(0)")
    A(f"s_barrier")
    stamp(A, 3) if not opts.get('cprof') else None
    if opts.get('cprof') or opts.get('hist'):
        A(f"s_mov_b32 {s(sCP0)}, 0")
        A(f"s_mov_b32 {s(sCP1)}, 0")
    for k, r_ in ((1, vT0), (2, vT1), (3, vS0)):
        A(f"v_xor_b32 {v(r_)}, {k << 11:#x}, {v(vMw)}")
    for q in range(opts.get('rbtop', 0)):
        A(f"ds_read_b128 {v([X, X + 8, PA, PA + 8][q >> 1] + 4 * (q & 1), 4)}, {v(vWo)} offset:{(q >> 1) * 2048 + 1024 * (q & 1)}")
    if ES:
        gen_step(A, True, opts, first=True)
    else:
        A(f"s_cmp_eq_u32 {s(sFastF)}, 1")
        if opts.get('forceslow'):
            A(f"s_branch L_own1_s")
        A(f"s_cbranch_scc0 L_own1_s")
        A(f"s_branch L_own1_f")
    gen_step(A, True, opts)
    gen_step(A, False, opts)
    if opts.get('iw'):
        import re as _re
        nh = IW['n']
        assert nh <= 32, nh
        keep = []
        for l in A.L:
            m = _re.match(r"\s+s_cbranch_scc1 L_iw_(\d+)$", l)
            if m and int(m.group(1)) >= nh:
                continue
            keep.append(l)
        A.L[:] = keep
        print("iw hops", nh)


def G_tr(A, vD, vL, kind, base_sreg):
    tr_lane_addr(A, vD, vL, vT0, vS0, kind, base_sreg=base_sreg)
```

```python
from dsl import *
import gen as G
from gen import *
from gen_chain2 import f32_hex, LOG2E


def gen_out(A, opts):
    A.comment("==== role OUT ====")
    sPar, sSh, sC_, sSeg, sNext, sDelta, sOff, sShf, sBlk, sCnt, sSO = 44, 45, 46, 47, 48, 49, 50, 51, 52, 53, 54
    vWG, vST, vTR, vHst = 5, 6, 7, 8
    ACC = 64
    EP = 112
    xg = XG(A, sDelta)
    vL, vL16, vZero, vTmp, vT1, vT2 = xg.vL, xg.vL16, xg.vZero, xg.vTmp, xg.vT1, xg.vT2
    A(f"s_sub_u32 {s(sPar)}, {s(sXCD)}, 1")
    A(f"s_lshr_b32 {s(sSh)}, {s(sIDX)}, 4")
    A(f"s_and_b32 {s(sC_)}, {s(sIDX)}, 15")
    xg.setup()
    if opts.get('opf'):
        mats = {1: [P_WQ], 2: [P_WQ, P_WK], 3: [P_WQ, P_WK, P_WV], 4: [P_WK, P_WV, P_WQ], 5: [P_WQ, P_WV], 6: [P_WK, P_WV, P_WQ, P_WO], 7: [P_WK, P_WV], 8: [P_WV, P_WQ, P_WO], 9: [P_WK, P_WV, P_WO, P_WQ]}[opts['opf']]
        A(f"s_lshl_b32 {s(sT0)}, {s(sPar)}, 5")
        A(f"s_add_u32 {s(sT0)}, {s(sT0)}, {s(sIDX)}")
        A(f"s_lshl_b32 {s(sT0)}, {s(sT0)}, 2")
        A(f"s_add_u32 {s(sT0)}, {s(sT0)}, {s(sWAVE)}")
        A(f"s_lshl_b32 {s(sT0)}, {s(sT0)}, 14")
        for P in mats:
            mk_srd(A, S_D, P, 512 * 8192)
            for k in range(16):
                if k and k % 4 == 0:
                    A(f"s_add_u32 {s(sT0)}, {s(sT0)}, 4096")
                A(f"buffer_load_dwordx4 v[252:255], {v(vL16)}, {s(S_D,4)}, {s(sT0)} offen offset:{(k % 4) * 1024}")
            A(f"s_sub_u32 {s(sT0)}, {s(sT0)}, {3 * 4096}")
    if opts.get('opc'):
        mats = {1: [P_WQ, P_WK, P_WV], 2: [P_WK, P_WV, P_WQ], 3: [P_WQ, P_WK], 4: [P_WK, P_WV], 5: [P_WQ], 6: [P_WO, P_WQ, P_WK, P_WV], 7: [P_WO, P_WQ, P_WK], 8: [P_WQ, P_WO, P_WK, P_WV], 9: [P_WO, P_WK, P_WV, P_WQ]}[opts['opc']]
        A(f"s_lshl_b32 {s(sT0)}, {s(sPar)}, 5")
        A(f"s_add_u32 {s(sT0)}, {s(sT0)}, {s(sIDX)}")
        A(f"s_lshl_b32 {s(sT0)}, {s(sT0)}, 2")
        A(f"s_add_u32 {s(sT0)}, {s(sT0)}, {s(sWAVE)}")
        A(f"s_lshl_b32 {s(sT0)}, {s(sT0)}, 14")
        lane_expr(A, vT1, vL, [(4, 2, 1024), (0, 4, 16)], const=256)
        lane_expr(A, vT2, vL, [(4, 1, 8192), (0, 4, 16)], const=31 * 256)
        for P in mats:
            mk_srd(A, S_D, P, 512 * 8192)
            for k in range(4):
                A(f"s_add_u32 {s(sT1)}, {s(sT0)}, {k * 4096}")
                A(f"buffer_load_dwordx4 v[252:255], {v(vT1)}, {s(S_D,4)}, {s(sT1)} offen")
            if opts.get('opc31', 1) and P != P_WO:
                A(f"s_mov_b64 exec, 0xffffffff")
                A(f"buffer_load_dwordx4 v[252:255], {v(vT2)}, {s(S_D,4)}, {s(sT0)} offen")
                A(f"s_mov_b64 exec, -1")
    STG = 80 * 1024
    A(f"s_mul_i32 {s(sT2)}, {s(sWAVE)}, {2*STG_BUF}")
    A(f"s_add_u32 {s(sT2)}, {s(sT2)}, {STG}")
    stage_lane_addr(A, vST, vL, vT1, sT2)
    Lph2 = A.new_label("out_ph2")

    def wait_wdone(tag):
        L = A.new_label("wd" + tag)
        A(f"s_cmp_lg_u32 {s(sWAVE)}, 0")
        A(f"s_cbranch_scc1 {L}")
        A(f"s_mov_b32 {s(sOff)}, {D_WDONE*4}")
        A(f"s_mov_b32 {s(sShf)}, 0")
        wait_byte(A, vTmp, vZero, sOff, sShf, opts.get('wdn', 32), "wd" + tag, sleep=8)
        A.label(L)
        A(f"s_barrier")
    if opts.get('odelay') == 1:
        wait_wdone("a")
    if opts.get('odelay') == 3:
        Lod = A.new_label("od")
        A(f"s_cmp_lg_u32 {s(sWAVE)}, 0")
        A(f"s_cbranch_scc1 {Lod}")
        A(f"s_mov_b32 {s(sOff)}, {D_CHECKIN*4}")
        A(f"s_mov_b32 {s(sShf)}, 0")
        wait_byte(A, vTmp, vZero, sOff, sShf, 32, "od", sleep=4)
        A.label(Lod)
        A(f"s_barrier")
    A(f"s_cmp_gt_u32 {s(sC_)}, 10")
    A(f"s_cbranch_scc1 {Lph2}")
    mk_srd(A, S_A, P_W1, 512 * 2752)
    mk_srd(A, S_B, P_GATE, 1024)
    A(f"s_lshl_b32 {s(sBlk)}, {s(sC_)}, 2")
    A(f"s_add_u32 {s(sBlk)}, {s(sBlk)}, {s(sWAVE)}")
    A(f"s_lshl_b32 {s(sSeg)}, {s(sSh)}, 1")
    A(f"s_add_u32 {s(sSeg)}, {s(sSeg)}, {s(sPar)}")
    xg.issue_x(sSeg)
    A(f"s_waitcnt vmcnt(0)")
    xg.write_x()
    FPF = opts.get('fpf', 0)
    if FPF:
        A(f"s_add_u32 {s(sNext)}, {s(sSeg)}, 4")
        A(f"s_waitcnt lgkmcnt(0)")
        xg.issue_x(sNext)
        A(f"s_mul_i32 {s(sT2)}, {s(sWAVE)}, {2*STG_BUF}")
        A(f"s_add_u32 {s(sT2)}, {s(sT2)}, {STG}")
    tr_lane_addr(A, vTR, vL, vT1, vT2, 'k16', base_sreg=sT2)
    Lgate = A.new_label("gatew")
    Lwdone = A.new_label("wdone")
    A(f"s_cmp_eq_u32 {s(sBlk)}, 43")
    A(f"s_cbranch_scc1 {Lgate}")
    raw_lane_off(A, vWG, vL, vT1, 2752)
    A(f"s_lshl_b32 {s(sT0)}, {s(sBlk)}, 6")
    A(f"v_add_u32 {v(vWG)}, {s(sT0)}, {v(vWG)}")
    blocks = []
    for b in range(16):
        blocks.append(dict(srd=S_A, voff=vWG, soff=[(32 * b) * 2752, (32 * b + 16) * 2752], raw=('a', 8 * b), dst=('a', 8 * b),
                           vtr=vTR, imm=TR_IMM['k16']))
    load_blocks(A, blocks, vST, window=16)
    A(f"s_branch {Lwdone}")
    A.label(Lgate)
    A(f"v_lshrrev_b32 {v(vWG)}, 5, {v(vL)}")
    A(f"v_lshlrev_b32 {v(vWG)}, 4, {v(vWG)}")
    A(f"v_and_b32 {v(vT1)}, 31, {v(vL)}")
    A(f"v_lshlrev_b32 {v(vT1)}, 12, {v(vT1)}")
    A(f"v_add_u32 {v(vWG)}, {v(vWG)}, {v(vT1)}")
    for kk in range(32):
        A(f"buffer_load_dwordx4 {a(4*kk,4)}, {v(vWG)}, {s(S_B,4)}, 0 offen offset:{kk*32}")
    A(f"s_waitcnt vmcnt(0)")
    A.label(Lwdone)
    xg.after_weights()
    A(f"s_lshl_b32 {s(sT0)}, {s(sBlk)}, 10")
    lane_expr(A, vHst, vL, [(4, 1, 43 * 1024), (5, 1, 256), (0, 4, 16)], sregs=[sT0])
    Lloop = A.new_label("ffn_loop")
    A.label(Lloop)
    A(f"s_add_u32 {s(sNext)}, {s(sSeg)}, 4")
    if not FPF:
        xg.issue_x(sNext)

    def mf(kk, f):
        c = "0" if kk == 0 else v(ACC, 16)
        A(f"v_mfma_f32_32x32x16_bf16 {v(ACC,16)}, {a(4*kk,4)}, {f}, {c}")

    def nxt_x():
        A(f"s_add_u32 {s(sT5)}, {s(sSeg)}, 8")
        A(f"s_min_u32 {s(sT5)}, {s(sT5)}, 63")
        xg.issue_x(sT5)
    if FPF:
        xg.body(mf, wpos=opts.get('fwpos', 9), wcnt=2, after_write=nxt_x)
    else:
        xg.body(mf, wpos=opts.get('fwpos', 9))
    A.nop(12)
    Lge = A.new_label("gate_ep")
    Lepd = A.new_label("ep_done")
    A(f"s_cmp_eq_u32 {s(sBlk)}, 43")
    A(f"s_cbranch_scc1 {Lge}")
    A(f"s_mov_b32 {s(sT0)}, {f32_hex(-LOG2E):#x}")
    T = 80
    for i in range(16):
        A(f"v_mul_f32 {v(T+i)}, {s(sT0)}, {v(ACC+i)}")
    for i in range(16):
        A(f"v_exp_f32 {v(T+i)}, {v(T+i)}")
    for i in range(16):
        A(f"v_add_f32 {v(T+i)}, 1.0, {v(T+i)}")
    for i in range(16):
        A(f"v_rcp_f32 {v(T+i)}, {v(T+i)}")
    for i in range(16):
        A(f"v_mul_f32 {v(ACC+i)}, {v(ACC+i)}, {v(T+i)}")
    for i in range(8):
        A(f"v_cvt_pk_bf16_f32 {v(EP+i)}, {v(ACC+2*i)}, {v(ACC+2*i+1)}")
    A(f"s_mul_i32 {s(sT0)}, {s(sSeg)}, {HX_STRIDE}")
    A(f"s_add_u32 {s(sT0)}, {s(sT0)}, {WS_HX:#x}")
    for c in range(2):
        A(f"buffer_store_dwordx4 {v(EP+4*c,4)}, {v(vHst)}, {s(S_WS,4)}, {s(sT0)} offen offset:{c*512} sc1")
    A(f"s_branch {Lepd}")
    A.label(Lge)
    A(f"s_mov_b32 {s(sT0)}, {f32_hex(-LOG2E):#x}")
    A(f"v_mul_f32 {v(vT1)}, {s(sT0)}, {v(ACC)}")
    A(f"v_exp_f32 {v(vT1)}, {v(vT1)}")
    A.nop(1)
    A(f"v_add_f32 {v(vT1)}, 1.0, {v(vT1)}")
    A(f"v_rcp_f32 {v(vT1)}, {v(vT1)}")
    A(f"v_lshlrev_b32 {v(vT2)}, 2, {v(vL)}")
    A(f"s_lshl_b32 {s(sT0)}, {s(sSeg)}, 7")
    A(f"s_add_u32 {s(sT0)}, {s(sT0)}, {WS_G:#x}")
    A(f"s_mov_b64 exec, 0xffffffff")
    A(f"buffer_store_dword {v(vT1)}, {v(vT2)}, {s(S_WS,4)}, {s(sT0)} offen sc1")
    if FPF:
        A(f"buffer_store_dword {v(vT1)}, {v(vT2)}, {s(S_WS,4)}, {s(sT0)} offen sc1")
    A(f"s_mov_b64 exec, -1")
    A.label(Lepd)
    xg.toggle()
    A(f"s_waitcnt lgkmcnt(0)")
    A(f"s_barrier")
    A(f"s_mov_b32 {s(sSeg)}, {s(sNext)}")
    A(f"s_cmp_lt_u32 {s(sSeg)}, 64")
    A(f"s_cbranch_scc1 {Lloop}")
    A(f"s_waitcnt vmcnt(0)")
    A(f"s_barrier")
    Lnf = A.new_label("ffn_nf")
    A(f"s_cmp_lg_u32 {s(sWAVE)}, 0")
    A(f"s_cbranch_scc1 {Lnf}")
    A(f"s_lshl_b32 {s(sOff)}, {s(sPar)}, 2")
    A(f"s_add_u32 {s(sOff)}, {s(sOff)}, {D_FFN*4}")
    A(f"s_mov_b32 {s(sShf)}, 0")
    signal_byte(A, None, vZero, sOff, sShf, vTmp)
    A.label(Lnf)
    A.label(Lph2)
    if opts.get('odelay') == 2:
        wait_wdone("b")
    stamp(A, 1)
    mk_srd(A, S_A, P_WO, 4096 * 1024)
    mk_srd(A, S_B, P_W2, 1376 * 1024)
    mk_srd(A, S_C, P_OUT, 2048 * 1024)
    vWG2, vTR2 = 8, 9
    raw_lane_off(A, vWG, vL, vT1, 1024)
    A(f"s_lshl_b32 {s(sT0)}, {s(sC_)}, 6")
    A(f"v_add_u32 {v(vWG)}, {s(sT0)}, {v(vWG)}")
    A(f"s_mul_i32 {s(sT0)}, {s(sWAVE)}, {11*32*1024}")
    A(f"v_add_u32 {v(vWG2)}, {s(sT0)}, {v(vWG)}")
    A(f"s_lshl_b32 {s(sT0)}, {s(sWAVE)}, 20")
    A(f"v_add_u32 {v(vWG)}, {s(sT0)}, {v(vWG)}")
    A(f"s_mul_i32 {s(sT2)}, {s(sWAVE)}, {2*STG_BUF}")
    A(f"s_add_u32 {s(sT2)}, {s(sT2)}, {STG}")
    tr_lane_addr(A, vTR, vL, vT1, vT2, 'out_wo', base_sreg=sT2)
    tr_lane_addr(A, vTR2, vL, vT1, vT2, 'out_w2', base_sreg=sT2)
    blocks = []
    for b in range(11):
        blocks.append(dict(srd=S_B, voff=vWG2, soff=[(32 * b) * 1024, (32 * b + 16) * 1024], raw=('v', 128 + 8 * b), dst=('v', 128 + 8 * b),
                           vtr=vTR2, imm=TR_IMM['out_w2']))
    for b in range(32):
        blocks.append(dict(srd=S_A, voff=vWG, soff=[(32 * b) * 1024, (32 * b + 16) * 1024], raw=('a', 8 * b), dst=('a', 8 * b),
                           vtr=vTR, imm=TR_IMM['out_wo']))
    load_blocks(A, blocks, vST, window=31)
    stamp(A, 2)
    PFO = opts.get('pfo', 0)
    if PFO:
        Lpf = A.new_label("pfo")
        A(f"s_cmp_lt_u32 {s(sC_)}, 11")
        A(f"s_cbranch_scc1 {Lpf}")
        A(f"s_mul_i32 {s(sT2)}, {s(sSh)}, 5")
        A(f"s_add_u32 {s(sT2)}, {s(sT2)}, {s(sC_)}")
        A(f"s_sub_u32 {s(sT2)}, {s(sT2)}, 11")
        A(f"s_lshl_b32 {s(sT2)}, {s(sT2)}, 2")
        A(f"s_add_u32 {s(sT2)}, {s(sT2)}, {s(sWAVE)}")
        if PFO & 1:
            Lx = A.new_label("pfx")
            A(f"s_mov_b32 {s(sT3)}, {s(sT2)}")
            A.label(Lx)
            A(f"s_lshr_b32 {s(sT0)}, {s(sT3)}, 5")
            A(f"s_lshl_b32 {s(sT0)}, {s(sT0)}, 1")
            A(f"s_add_u32 {s(sT0)}, {s(sT0)}, {s(sPar)}")
            A(f"s_lshl_b32 {s(sT0)}, {s(sT0)}, 15")
            A(f"s_and_b32 {s(sT1)}, {s(sT3)}, 31")
            A(f"s_lshl_b32 {s(sT1)}, {s(sT1)}, 10")
            A(f"s_add_u32 {s(sT0)}, {s(sT0)}, {s(sT1)}")
            A(f"buffer_load_dwordx4 v[32:35], {v(vL16)}, {s(S_X,4)}, {s(sT0)} offen")
            A(f"s_waitcnt vmcnt({opts.get('pfw', 8)})")
            A(f"s_add_u32 {s(sT3)}, {s(sT3)}, 40")
            A(f"s_cmp_lt_u32 {s(sT3)}, 1024")
            A(f"s_cbranch_scc1 {Lx}")
        jobs = []
        if PFO & 2:
            jobs += [(S_B, 1376, 8), (S_A, 4096, 8)] if not PFO & 8 else [(S_A, 4096, 8)]
        if PFO & 8:
            jobs += [(S_B, 1376, 1)]
        if PFO & 16:
            jobs += [(S_A, 4096, 'q')]
        if PFO & 4 and not PFO & 2:
            jobs += [(S_B, 1376, 1), (S_A, 4096, 1)]
        for (srd, nrow, rows) in jobs:
            quarter = rows == 'q'
            if quarter:
                rows, nrow = 1, 4 * opts.get('pfq', 256)
            if rows == 8:
                lane_expr(A, vT1, vL, [(3, 3, 1024), (0, 3, 16)], const=384)
            else:
                A(f"v_mov_b32 {v(vT1)}, {v(vL16)}")
            Lr = A.new_label("pfr")
            A(f"s_mul_i32 {s(sT3)}, {s(sT2)}, {rows}")
            if rows == 1:
                A(f"s_bfm_b64 exec, {opts.get('pfl', 48)}, 0" if opts.get('pfl', 48) < 64 else "s_mov_b64 exec, -1")
            A.label(Lr)
            if quarter:
                A(f"s_and_b32 {s(sT0)}, {s(sT3)}, 3")
                A(f"s_lshl_b32 {s(sT0)}, {s(sT0)}, 10")
                A(f"s_lshr_b32 {s(sT1)}, {s(sT3)}, 2")
                A(f"s_add_u32 {s(sT0)}, {s(sT0)}, {s(sT1)}")
                A(f"s_lshl_b32 {s(sT0)}, {s(sT0)}, 10")
            else:
                A(f"s_lshl_b32 {s(sT0)}, {s(sT3)}, 10")
            A(f"buffer_load_dwordx4 v[32:35], {v(vT1)}, {s(srd,4)}, {s(sT0)} offen")
            A(f"s_waitcnt vmcnt({opts.get('pfw', 8)})")
            A(f"s_add_u32 {s(sT3)}, {s(sT3)}, {40 * rows}")
            A(f"s_cmp_lt_u32 {s(sT3)}, {nrow}")
            A(f"s_cbranch_scc1 {Lr}")
            if rows == 1:
                A(f"s_mov_b64 exec, -1")
        A(f"s_waitcnt vmcnt(0)")
        A.label(Lpf)
    A(f"s_lshl_b32 {s(sOff)}, {s(sPar)}, 2")
    A(f"s_add_u32 {s(sOff)}, {s(sOff)}, {D_FFN*4}")
    A(f"s_mov_b32 {s(sShf)}, 0")
    Lfw = A.new_label("ffw")
    if opts.get('fw0'):
        A(f"s_cmp_lg_u32 {s(sWAVE)}, 0")
        A(f"s_cbranch_scc1 {Lfw}")
    wait_byte(A, vTmp, vZero, sOff, sShf, 22, "ffn", sleep=4)
    A(f"s_mov_b32 {s(sOff)}, {D_CHECKIN*4}")
    wait_byte(A, vTmp, vZero, sOff, sShf, 32, "oci", sleep=4)
    A.label(Lfw)
    A(f"s_barrier")
    vOF = 11
    A(f"v_and_b32 {v(vOF)}, 31, {v(vL)}")
    A(f"v_lshlrev_b32 {v(vOF)}, 2, {v(vOF)}")
    for _ in range(opts.get('otestdelay', 0)):
        A("s_sleep 127")
    stamp(A, 3)
    aA, aB = 16, 24
    bufs = [32 + 4 * i for i in range(24)] + [216 + 4 * i for i in range(10)]
    vRw, vRr, vOut, vG = 5, 6, 7, 8
    RED = 0
    A(f"s_lshl_b32 {s(sT0)}, {s(sWAVE)}, 12")
    A(f"v_add_u32 {v(vRw)}, {s(sT0)}, {v(vL16)}")
    A(f"s_and_b32 {s(sT0)}, {s(sWAVE)}, 1")
    A(f"s_lshl_b32 {s(sT0)}, {s(sT0)}, 10")
    A(f"v_add_u32 {v(vRr)}, {s(sT0)}, {v(vL16)}")
    A(f"s_lshl_b32 {s(sT0)}, {s(sSh)}, 14")
    A(f"s_lshl_b32 {s(sT1)}, {s(sC_)}, 6")
    A(f"s_add_u32 {s(sT0)}, {s(sT0)}, {s(sT1)}")
    A(f"s_and_b32 {s(sT1)}, {s(sWAVE)}, 1")
    A(f"s_lshl_b32 {s(sT1)}, {s(sT1)}, 5")
    A(f"s_add_u32 {s(sT0)}, {s(sT0)}, {s(sT1)}")
    lane_expr(A, vOut, vL, [(0, 4, 1024), (4, 2, 8)], sregs=[sT0])
    A(f"s_lshl_b32 {s(sT0)}, {s(sSh)}, 6")
    lane_expr(A, vG, vL, [(0, 4, 4)], sregs=[sT0])
    if opts.get('cf'):
        Lnb = A.new_label("nob63")
        A(f"s_cmp_lg_u32 {s(sPar)}, 1")
        A(f"s_cbranch_scc1 {Lnb}")
        A(f"s_mul_i32 {s(sT3)}, {s(sSh)}, {43*1024}")
        A(f"s_mul_i32 {s(sT2)}, {s(sWAVE)}, {11*1024}")
        A(f"s_add_u32 {s(sT2)}, {s(sT2)}, {s(sT3)}")
        A(f"s_add_u32 {s(sT2)}, {s(sT2)}, {WS_HX + 63 * HX_STRIDE:#x}")
        for b in range(11):
            if b in (4, 8):
                A(f"s_add_u32 {s(sT2)}, {s(sT2)}, 4096")
            if b == 10:
                A(f"s_cmp_eq_u32 {s(sWAVE)}, 3")
                A(f"s_cselect_b32 {s(sT3)}, 1024, 0")
                A(f"s_sub_u32 {s(sT2)}, {s(sT2)}, {s(sT3)}")
            A(f"buffer_load_dwordx4 {v(bufs[b],4)}, {v(vL16)}, {s(S_WS,4)}, {s(sT2)} offen offset:{(b%4)*1024}")
        for b in range(11):
            A(f"s_waitcnt vmcnt({10 - b})")
            for ct in range(2):
                c = "0" if b == 0 else v(aB + 4 * ct, 4)
                A(f"v_mfma_f32_16x16x32_bf16 {v(aB+4*ct,4)}, {v(128+8*b+4*ct,4)}, {v(bufs[b],4)}, {c}")
        A.nop(8)
        A(f"ds_write_b128 {v(vRw)}, {v(aB,4)} offset:2048")
        A(f"ds_write_b128 {v(vRw)}, {v(aB+4,4)} offset:3072")
        A(f"s_waitcnt lgkmcnt(0)")
        A(f"s_barrier")
        Lb2 = A.new_label("b63s")
        A(f"s_cmp_gt_u32 {s(sWAVE)}, 1")
        A(f"s_cbranch_scc1 {Lb2}")
        for w in range(4):
            A(f"ds_read_b128 {v(32+4*w,4)}, {v(vRr)} offset:{w*4096+2048}")
        A(f"v_lshlrev_b32 {v(vT1)}, 1, {v(vOut)}")
        A(f"s_waitcnt lgkmcnt(0)")
        for r in range(4):
            A(f"v_add_f32 {v(32+r)}, {v(32+r)}, {v(36+r)}")
            A(f"v_add_f32 {v(40+r)}, {v(40+r)}, {v(44+r)}")
        for r in range(4):
            A(f"v_add_f32 {v(32+r)}, {v(32+r)}, {v(40+r)}")
        A(f"s_mov_b32 {s(sT2)}, {WS_B63:#x}")
        A(f"buffer_store_dwordx4 {v(32,4)}, {v(vT1)}, {s(S_WS,4)}, {s(sT2)} offen sc1")
        A(f"s_waitcnt vmcnt(0)")
        A.label(Lb2)
        A(f"s_barrier")
        Lb3 = A.new_label("b63f")
        A(f"s_cmp_lg_u32 {s(sWAVE)}, 0")
        A(f"s_cbranch_scc1 {Lb3}")
        A(f"v_mov_b32 {v(vT2)}, 1")
        A(f"s_mov_b32 {s(sT2)}, {WS_OF + 63 * 128:#x}")
        A(f"s_mov_b64 exec, 1")
        A(f"buffer_atomic_add {v(vT2)}, off, {s(S_WS,4)}, {s(sT2)} sc1")
        A(f"s_mov_b64 exec, -1")
        A.label(Lb3)
        A.label(Lnb)
    A(f"s_mov_b32 {s(sSeg)}, {s(sPar)}")
    A(f"v_mov_b32 v12, 0")
    LP = ["", " nt", " sc0", " sc0 nt"][opts.get('olp', 0)]
    Lm = A.new_label("out_loop")
    A.label(Lm)
    A(f"s_mul_i32 {s(sT2)}, {s(sSeg)}, {HX_STRIDE}")
    A(f"s_mul_i32 {s(sT3)}, {s(sSh)}, {43*1024}")
    A(f"s_add_u32 {s(sT2)}, {s(sT2)}, {s(sT3)}")
    A(f"s_mul_i32 {s(sT3)}, {s(sWAVE)}, {11*1024}")
    A(f"s_add_u32 {s(sT2)}, {s(sT2)}, {s(sT3)}")
    A(f"s_add_u32 {s(sT2)}, {s(sT2)}, {WS_HX:#x}")
    vq = Q(A, "vmcnt", 63)
    for b in range(11):
        if b in (4, 8):
            A(f"s_add_u32 {s(sT2)}, {s(sT2)}, 4096")
        if b == 10:
            A(f"s_cmp_eq_u32 {s(sWAVE)}, 3")
            A(f"s_cselect_b32 {s(sT3)}, 1024, 0")
            A(f"s_sub_u32 {s(sT2)}, {s(sT2)}, {s(sT3)}")
        vq.issue(('H', b), f"buffer_load_dwordx4 {v(bufs[b],4)}, {v(vL16)}, {s(S_WS,4)}, {s(sT2)} offen offset:{(b%4)*1024}" + LP)
    A(f"s_lshl_b32 {s(sT2)}, {s(sSeg)}, 7")
    A(f"s_add_u32 {s(sT2)}, {s(sT2)}, {WS_G:#x}")
    vq.issue('g', f"buffer_load_dword v9, {v(vG)}, {s(S_WS,4)}, {s(sT2)} offen")
    A(f"s_lshl_b32 {s(sOff)}, {s(sSeg)}, 7")
    A(f"s_add_u32 {s(sOff)}, {s(sOff)}, {WS_OF:#x}")
    Lw = A.new_label("ow")
    Lp = A.new_label("op")
    OFE = opts.get('ofe', 1)
    if OFE:
        A(f"v_cmp_ne_u32 vcc, 0, v12")
        A(f"s_nop 0")
        A(f"s_cmp_eq_u64 vcc, -1")
        A(f"s_cbranch_scc1 {Lw}")
    else:
        A(f"s_cmp_lg_u32 {s(sWAVE)}, 0")
        A(f"s_cbranch_scc1 {Lw}")
    A(f"s_cmp_lg_u32 {s(sDEAD)}, 0")
    A(f"s_cbranch_scc1 {Lw}")
    A(f"s_mov_b32 {s(sShf)}, 0")
    A.label(Lp)
    A(f"buffer_load_dword v10, {v(vOF)}, {s(S_WS,4)}, {s(sOff)} offen sc1")
    A(f"s_waitcnt vmcnt(0)")
    A(f"v_cmp_ne_u32 vcc, 0, v10")
    A(f"s_add_u32 {s(sShf)}, {s(sShf)}, 1")
    A(f"s_nop 0")
    A(f"s_cmp_eq_u64 vcc, -1")
    A(f"s_cbranch_scc1 {Lw}")
    A(f"s_sleep {opts.get('osleep', 4)}")
    A(f"s_cmp_lt_u32 {s(sShf)}, {SPIN_LIMIT}")
    A(f"s_cbranch_scc1 {Lp}")
    A(f"s_mov_b32 {s(sDEAD)}, 1")
    A.label(Lw)
    if opts.get('tprof'):
        stamp(A, 4)
    if OFE:
        A(f"s_add_u32 {s(sOff)}, {s(sOff)}, 256")
        vq.issue('fl', f"buffer_load_dword v12, {v(vOF)}, {s(S_WS,4)}, {s(sOff)} offen sc1")
    else:
        A(f"s_barrier")
    A(f"s_lshl_b32 {s(sSO)}, {s(sSeg)}, 5")
    A(f"s_lshl_b32 {s(sT3)}, {s(sWAVE)}, 3")
    A(f"s_add_u32 {s(sSO)}, {s(sSO)}, {s(sT3)}")
    A(f"s_lshl_b32 {s(sSO)}, {s(sSO)}, 13")
    A(f"s_lshl_b32 {s(sT3)}, {s(sSh)}, 12")
    A(f"s_add_u32 {s(sSO)}, {s(sSO)}, {s(sT3)}")
    A(f"s_add_u32 {s(sSO)}, {s(sSO)}, {WS_OX:#x}")

    obuf = {}
    def issue_o(b, buf):
        A(f"s_add_u32 {s(sT3)}, {s(sSO)}, {(b>>2)*8192}")
        vq.issue(('O', b), f"buffer_load_dwordx4 {v(buf,4)}, {v(vL16)}, {s(S_WS,4)}, {s(sT3)} offen offset:{(b&3)*1024}" + LP)
        obuf[b] = buf
    nfree = len(bufs) - 11
    for b in range(nfree):
        issue_o(b, bufs[11 + b])
    nxt = nfree
    for b in range(11):
        vq.wait(('H', b))
        for ct in range(2):
            c = "0" if b == 0 else v(aB + 4 * ct, 4)
            A(f"v_mfma_f32_16x16x32_bf16 {v(aB+4*ct,4)}, {v(128+8*b+4*ct,4)}, {v(bufs[b],4)}, {c}")
        if nxt < 32:
            issue_o(nxt, bufs[b])
            nxt += 1
    for b in range(32):
        vq.wait(('O', b))
        if opts.get('tprof') and b in (0, 31):
            stamp(A, 5 if b == 0 else 6)
        for ct in range(2):
            c = "0" if b == 0 else v(aA + 4 * ct, 4)
            A(f"v_mfma_f32_16x16x32_bf16 {v(aA+4*ct,4)}, {a(8*b+4*ct,4)}, {v(obuf[b],4)}, {c}")
    A.nop(8)
    A(f"ds_write_b128 {v(vRw)}, {v(aA,4)} offset:0")
    A(f"ds_write_b128 {v(vRw)}, {v(aA+4,4)} offset:1024")
    A(f"ds_write_b128 {v(vRw)}, {v(aB,4)} offset:2048")
    A(f"ds_write_b128 {v(vRw)}, {v(aB+4,4)} offset:3072")
    A(f"s_waitcnt lgkmcnt(0)")
    A(f"s_barrier")
    Lsk = A.new_label("osk")
    A(f"s_cmp_gt_u32 {s(sWAVE)}, 1")
    A(f"s_cbranch_scc1 {Lsk}")
    R = 32
    for w in range(4):
        A(f"ds_read_b128 {v(R+8*w,4)}, {v(vRr)} offset:{w*4096}")
        A(f"ds_read_b128 {v(R+8*w+4,4)}, {v(vRr)} offset:{w*4096+2048}")
    A(f"s_waitcnt lgkmcnt(0)")
    for r in range(4):
        A(f"v_add_f32 {v(R+r)}, {v(R+r)}, {v(R+8+r)}")
        A(f"v_add_f32 {v(R+16+r)}, {v(R+16+r)}, {v(R+24+r)}")
        A(f"v_add_f32 {v(R+4+r)}, {v(R+4+r)}, {v(R+12+r)}")
        A(f"v_add_f32 {v(R+20+r)}, {v(R+20+r)}, {v(R+28+r)}")
    for r in range(4):
        A(f"v_add_f32 {v(R+r)}, {v(R+r)}, {v(R+16+r)}")
        A(f"v_add_f32 {v(R+4+r)}, {v(R+4+r)}, {v(R+20+r)}")
    for r in range(4):
        A(f"v_sub_f32 {v(R+r)}, {v(R+r)}, {v(R+4+r)}")
    for r in range(4):
        A(f"v_fma_f32 {v(R+r)}, {v(R+r)}, v9, {v(R+4+r)}")
    A(f"v_cvt_pk_bf16_f32 {v(R+8)}, {v(R)}, {v(R+1)}")
    A(f"v_cvt_pk_bf16_f32 {v(R+9)}, {v(R+2)}, {v(R+3)}")
    A(f"s_lshl_b32 {s(sT2)}, {s(sSeg)}, 15")
    A(f"buffer_store_dwordx2 {v(R+8,2)}, {v(vOut)}, {s(S_C,4)}, {s(sT2)} offen" + ["", " sc1", " sc0 sc1", " nt", " sc1 nt"][opts.get('opol', 0)])
    A.label(Lsk)
    if opts.get('tprof'):
        stamp(A, 7)
    if opts.get('ofe', 1):
        A(f"v_xor_b32 {v(vRw)}, 0x4000, {v(vRw)}")
        A(f"v_xor_b32 {v(vRr)}, 0x4000, {v(vRr)}")
    A(f"s_add_u32 {s(sSeg)}, {s(sSeg)}, 2")
    A(f"s_cmp_lt_u32 {s(sSeg)}, {63 if opts.get('cf') else 64}")
    A(f"s_cbranch_scc1 {Lm}")
    A(f"s_waitcnt vmcnt(0)")
```

```python
from dsl import *
import gen as G
from gen import *

QK_OFF, O_OFF, MEM_OFF, KX_OFF, VX_OFF, WO_OFF = 0, 4096, 8192, 16384, 24576, 32768

vL16, vKw, vIdx, vQKw, vQKr, vOw, vMw, vWo, vPst, vRed, vMst, vPf, vFlag, vJunk = range(14)
vT0, vT1 = 14, 15
vSEL = 16
vVM1, vKr, vONE = 20, 21, 22
vBM = 26
vS0, vIdxW = 30, 31
KIMG = [2048, 3072, 6144, 7168]
X = 32
Y = 64
PA = 96
ACC = 112
sH, sS, sSlotP, sSlotP1, sSlotP4, sSlotM, sKM, sKV, sC, sNC, sRet = range(44, 55)
sRa0, sRa2, sFastF = 55, 56, 57
sMLo, sMHi = 58, 60
sU = 76
sFo, sNeed, sJ4, sCn, sPf, sGat, sKn, sM0K, sM0V = 78, 79, 80, 81, 84, 85, 86, 87, 88
sW1k, sRaM, sRaA, sFb, sPfb, sW2k = 64, 65, 66, 67, 68, 69
sPc2, sPc3 = 70, 71
sRo, sRm = 72, 89
sPc = [sSlotP, sSlotP1, sPc2, sPc3]
sTag = 55
IW = {'n': 0}
def IWG(opts):
    return 4

vTagE = vPf
sCP0, sCP1 = 82, 83
sB63 = 3
sKok = 57
OOB = 0x40000000
RED_LIMIT = 1 << 16

LOG2E = 1.4426950408889634
WPOL = ["", " nt", " sc1", " sc0 sc1", " sc1 nt", " sc0", " sc0 nt", " sc0 sc1 nt"]
SCALE_C = (128 ** -0.5) * LOG2E


def f32_hex(x):
    import struct
    return struct.unpack("<I", struct.pack("<f", x))[0]


RT = False
D3Q = []
LATE = [False]
CSTEP = [39]


TRACE = [False]


FTR = [0]


def fstamp(A, k):
    if TRACE[0] and FTR[0]:
        A(f"s_memtime s[{16 + 2 * (k - 1)}:{17 + 2 * (k - 1)}]")


def lstamp(A, i, late=None):
    if TRACE[0]:
        if FTR[0] == 1:
            m_ = {3: 1, 4: 5, 5: 8}.get(i)
        elif FTR[0] == 2:
            m_ = {5: 1, 6: 4, 7: 8}.get(i)
        elif FTR[0] == 3:
            m_ = {1: 1, 2: 5, 3: 8}.get(i)
        else:
            m_ = i if i <= 8 else None
        if m_:
            A(f"s_memtime s[{16 + 2 * (m_ - 1)}:{17 + 2 * (m_ - 1)}]")
        return
    L = A.new_label("ls")
    if late is None:
        late = i >= 8
    A(f"s_cmp_lg_u32 {s(sS)}, {CSTEP[0] + 1 if late else CSTEP[0]}")
    A(f"s_cbranch_scc1 {L}")
    r = 16 + 2 * (i - 1) if i < 9 else 62
    A(f"{'s_memrealtime' if RT else 's_memtime'} s[{r}:{r+1}]")
    A.label(L)


import re as _re


def _regs(tok):
    tok = tok.strip().rstrip(',')
    m = _re.match(r'^([va])\[(\d+):(\d+)\]$', tok)
    if m:
        return {(m.group(1), i) for i in range(int(m.group(2)), int(m.group(3)) + 1)}
    m = _re.match(r'^([va])(\d+)$', tok)
    if m:
        return {(m.group(1), int(m.group(2)))}
    return set()


def _all_regs(line):
    r = set()
    for tok in _re.findall(r'[va]\[\d+:\d+\]|\b[va]\d+\b', line):
        r |= _regs(tok)
    return r


def gap_reorder(lines, report=False):
    out = []
    i = 0
    n = len(lines)
    issm = lambda x: x.strip().startswith('v_smfmac')
    while i < n:
        out.append(lines[i])
        if issm(lines[i]):
            j = i + 1
            gap = []
            while j < n and not issm(lines[j]) and not lines[j].endswith(':') and not lines[j].strip().startswith(('s_cbranch', 's_branch', 'v_mfma', 's_nop', 's_memtime', 's_memrealtime', 's_cmp')):
                gap.append(lines[j])
                j += 1
            if j < n and issm(lines[j]):
                changed = True
                while changed:
                    changed = False
                    for k in range(len(gap) - 1):
                        a_, b_ = gap[k].strip(), gap[k + 1].strip()
                        if a_.startswith('v_') and not b_.startswith('v_') and 'vcc' not in a_ and 'exec' not in b_:
                            if not (_all_regs(a_) & _all_regs(b_)):
                                gap[k], gap[k + 1] = gap[k + 1], gap[k]
                                changed = True
                nv = sum(1 for g in gap if g.strip().startswith('v_'))
                no = len(gap) - nv
                lastv = all(not gap[k].strip().startswith('v_') or gap[k + 1].strip().startswith('v_') for k in range(len(gap) - 1))
                if report and (nv > 1 or (nv and no > 2) or no > 3 or not lastv):
                    print("gap over budget:", [g.strip()[:40] for g in gap])
            out.extend(gap)
            i = j
            continue
        i += 1
    return out


def red3(A, opts, R, RA, ld, st, Lar, rstamp, RBT):
    sSave = sU
    LfA, LfB, LfAB, Lgen, Lok = (A.new_label(x) for x in ("rfA", "rfB", "rfAB", "rgen", "rok"))
    hist = opts.get('hist')

    main = [True]

    def item(i, cnt, first):
        if cnt is not None:
            A(f"s_waitcnt vmcnt({cnt})")
        if main[0] and i in (0, 7):
            rstamp(2 if i == 0 else 3)
        c = "0" if first else v(RA, 4)
        A(f"v_mfma_f32_16x16x32_bf16 {v(RA,4)}, {v(R[i],4)}, {v(vSEL,4)}, {c}")

    def tagchk(i, y):
        A(f"v_bitop3_b32 {v(y)}, {v(R[i])}, {v(R[i]+2)}, {v(vTagE)} bitop3:0x7e")

    def half(base, cnts, first, k0=0, chk=True):
        for k in range(k0, 4):
            item(base + k, cnts[k], first and k == 0)
            if chk:
                tagchk(base + k, [vT0, vT1, vS0, vT1][k])
                if k == 2:
                    A(f"v_or3_b32 {v(vT0)}, {v(vT0)}, {v(vT1)}, {v(vS0)}")
        if chk:
            A(f"v_bitop3_b32 {v(vT0)}, {v(vT0)}, {v(vT1)}, 1 bitop3:0xa8")
            A(f"v_cmp_ne_u32 vcc, 0, {v(vT0)}")

    def repoll(lo, hi, d=0):
        for _ in range(d):
            A(f"s_sleep 1")
        A(f"s_mov_b64 exec, vcc")
        for i in range(lo, hi):
            ld(R, i)
        A(f"s_mov_b64 exec, -1")

    def both(first_cnts):
        half(0, first_cnts, True)
        A(f"s_mov_b64 {s(sSave,2)}, vcc")
        half(4, [3, 2, 1, 0], False)
        A(f"s_or_b64 vcc, vcc, {s(sSave,2)}")
    half(0, [7, 6, 5, 4], True)
    item(4, 3, False)
    tagchk(4, vT0)
    A(f"s_cbranch_vccnz {LfA}")
    half(4, [3, 2, 1, 0], False, k0=1)
    A(f"s_cbranch_vccnz {LfB}")
    main[0] = False
    A.label(Lok)
    rstamp(4)
    A(f"s_nop 4")
    A(f"v_cvt_pk_bf16_f32 {v(RA+4)}, {v(RA)}, {v(RA+1)}")
    A(f"v_cvt_pk_bf16_f32 {v(RA+5)}, {v(RA+2)}, {v(RA+3)}")
    A(f"buffer_store_dwordx2 {v(RA+4,2)}, {v(vMst)}, {s(S_WS,4)}, {s(sSlotM)} offen{st}")
    A(f"s_branch {Lar}")
    A.label(LfA)
    repoll(0, 4, opts.get('rda', 0))
    if hist or opts.get('rtrace'):
        A(f"s_add_u32 {s(sCP0)}, {s(sCP0)}, 1")
    half(4, [None, 6, 5, 4], True)
    A(f"s_cbranch_vccnz {LfAB}")
    half(0, [3, 2, 1, 0], False)
    A(f"s_cbranch_vccz {Lok}")
    A(f"s_branch {Lgen}")
    A.label(LfAB)
    repoll(4, 8)
    both([7, 6, 5, 4])
    A(f"s_cbranch_vccz {Lok}")
    A(f"s_branch {Lgen}")
    A.label(LfB)
    repoll(4, 8, opts.get('rdb', 0))
    if hist or opts.get('rtrace'):
        A(f"s_add_u32 {s(sCP0)}, {s(sCP0)}, {0x1000000 if opts.get('hist') == 2 else 1}")
    half(0, [None] * 4, True, chk=False)
    half(4, [3, 2, 1, 0], False)
    A(f"s_cbranch_vccz {Lok}")
    A.label(Lgen)
    repoll(0, 8, opts.get('rdg', 0))
    if hist:
        A(f"s_add_u32 {s(sCP0)}, {s(sCP0)}, 0x1000")
    if opts.get('rtrace'):
        A(f"s_add_u32 {s(sCP0)}, {s(sCP0)}, 2")
    both([7, 6, 5, 4])
    A(f"s_cbranch_vccz {Lok}")
    A(f"s_add_u32 {s(sRet)}, {s(sRet)}, 1")
    A(f"s_cmp_lg_u32 {s(sDEAD)}, 0")
    A(f"s_cbranch_scc1 {Lok}")
    A(f"s_cmp_lt_u32 {s(sRet)}, {RED_LIMIT}")
    A(f"s_cbranch_scc1 {Lgen}")
    A(f"s_mov_b32 {s(sDEAD)}, 1")
    A(f"s_branch {Lok}")


def gen_step(A, fast, opts, first=False):
    i0 = len(A.L)
    gen_step_raw(A, fast, opts, first)
    if opts.get('reord', 1):
        A.L[i0:] = gap_reorder(A.L[i0:], report=fast and opts.get('report'))
    if fast and not first and any(opts.get(f"sh{i}") for i in range(1, 13)):
        A.L[i0:] = widen(A.L[i0:], opts)


def widen(L, opts):
    from isz import sizes
    L = list(L)
    st_ = [l.strip() for l in L]
    smf = [i for i, l in enumerate(st_) if l.startswith('v_smfmac')]
    top = st_.index('L_top_f:')
    com = st_.index('L_common_f:')
    red = st_.index('L_red_f:')
    main = [i for i in smf if top < i < red]
    assert len(main) == 64, len(main)
    mf = [i for i, l in enumerate(st_) if l.startswith('v_mfma') and i > main[47]]
    ex = [i for i, l in enumerate(st_) if l.startswith('v_exp') and i > main[47]]
    pv = [i for i in mf if i > ex[0]]
    pol = [i for i, l in enumerate(st_) if l.startswith('buffer_load_dwordx4') and i > red]
    fin = [i for i, l in enumerate(st_) if l.startswith('buffer_store_dwordx2') and i > pol[0]]
    pts = [com, main[24], main[36], mf[0], ex[0], pv[0], main[48], main[56], red, pol[0], fin[0], None]
    OK = ('v_add_f32', 'v_max_f32', 'v_mul_f32', 'v_mov_b32', 'v_mov_b64', 'v_exp_f32', 'v_rcp_f32', 'v_xor_b32', 'v_and_b32', 'v_add_u32', 'v_lshlrev_b32')
    cand = [i for i, l in enumerate(st_) if l.split(' ')[0] in OK and '0x' not in l and 'vcc' not in l]
    sz = sizes([st_[i] for i in cand])
    cand = [i for i, z in zip(cand, sz) if z == 4]
    if opts.get('shrep'):
        lo = top
        for k, p in enumerate(pts[:-1]):
            print("point", k + 1, st_[p][:60], "candidates", len([i for i in cand if lo < i < p]))
            lo = p
    lo = top
    for k, p in enumerate(pts):
        n = opts.get(f"sh{k + 1}", 0)
        if p is None:
            break
        c = [i for i in cand if lo < i < p]
        assert len(c) >= n, (k + 1, len(c), n)
        for i in c[len(c) - n:] if n else []:
            m, rest = st_[i].split(' ', 1)
            L[i] = f"    {m}_e64 {rest}"
        lo = p
    return L


def gen_step_raw(A, fast, opts, first=False):
    KP, VP = opts.get('kpos', 0), opts.get('vpos', 0)
    RBT = opts.get('rbtop', 0)
    VAT = opts.get('vat', 12)
    M0TOP = KP in (1, 2) and VP == 0
    M0FIX = KP == 4 and VP == 0

    def vdma(n):
        if VP != 0 or first:
            return
        if n == VAT - 1:
            if not M0TOP and not M0FIX:
                A(f"s_mov_b32 m0, {s(sM0V)}")
            A(f"s_add_u32 {s(sT3)}, {s(sKV)}, 8192")
        elif n == VAT:
            A(f"buffer_load_dwordx4 {v(vL16)}, {s(S_WS,4)}, {s(sT3)} offen lds")
        elif n == VAT + opts.get('vsp', 1):
            A(f"buffer_load_dwordx4 {v(vL16)}, {s(S_WS,4)}, {s(sT3)} offen offset:1024 lds")
    st = "" if fast else " sc1"
    tag = "e" if first else "f" if fast else "s"
    Lown = [f"L_own0_{tag}", f"L_own1_{tag}"]
    Lcommon = f"L_common_{tag}"
    Llast = f"L_last_{tag}"
    lq = Q(A, "lgkmcnt", 15)
    cp = opts.get('cprof') or opts.get('trace')
    rp = opts.get('rprof')
    AQ, AV, AK = ACC, ACC + 8, Y + 24
    CQ, CK = AQ + 2, AK + 2
    H0, H1 = X + 16, X + 24
    H2 = PA + 8
    G3 = opts.get('gsets', 2) == 3
    AO = Y
    KXR = {0: X + 16, 4: X + 20, 1: X + 24, 5: X + 28, 2: X, 6: X + 4, 3: X + 8, 7: X + 12}
    RB = [X, X + 8, PA, PA + 8]
    RIDX = {0: 0, 1: 1, 4: 2, 5: 3, 6: 4, 7: 5}

    def WB(m, jj, t):
        if m == 'q':
            return a(16 * jj + 8 * t, 8)
        if jj in (2, 3):
            return v(RB[2 * (jj - 2) + t], 8)
        return (a if m == 'k' else v)(128 + 16 * RIDX[jj] + 8 * t, 8)

    def rdR(m, b, half, top=False):
        if m == 'k' and 2 * b + half < RBT and not top:
            return
        fi = (0 if m == 'k' else 4) + b
        lq.issue(('R', m, b), f"ds_read_b128 {v(RB[b] + 4*half, 4)}, {v(vWo)} offset:{fi * 2048 + 1024 * half}")
    AC = {'q': AQ, 'k': AK, 'v': AV}
    nsm = [0]
    keepL0 = A.L
    D3AT = {1: (1, 2, 3, 4, 5, 6, 7, 8), 2: (1, 3, 5, 7, 8, 9, 11, 13), 3: (1, 2, 3, 4, 9, 10, 12, 13)}.get(opts.get('esd3', 0), ())
    vA = [None, vT0, vT1, vS0]

    def smf(m, jj, t, areg):
        if m != 'q' and jj in (2, 3):
            lq.wait(('R', m, 2 * (jj - 2) + t))
        A(f"v_smfmac_f32_16x16x64_bf16 {v(AC[m] + 4*t, 4)}, {v(areg, 4)}, {WB(m, jj, t)}, {v(vIdx)}")
        if first and D3Q and A.L is keepL0:
            nsm[0] += 1
            if nsm[0] in D3AT:
                for l_ in D3Q.pop(0):
                    A(l_)

    def rdKX(j):
        lq.issue(('KX', j), f"ds_read_b128 {v(KXR[j],4)}, {v(vL16)} offset:{KX_OFF + j*1024}")

    salu = [
        f"s_and_b32 {s(sT4)}, {s(sS)}, 3",
        f"s_lshl_b32 {s(sSlotM)}, {s(sT4)}, 13",
        f"s_add_u32 {s(sSlotM)}, {s(sSlotM)}, {WS_M:#x}",
        f"s_add_u32 {s(sGat)}, {s(sSlotM)}, {s(sW2k)}",
        f"s_xor_b32 {s(sRa2)}, {s(sSlotM)}, 0x4000",
        f"s_xor_b32 {s(sTag)}, {s(sTag)}, 1",
    ]

    def su(n):
        for _ in range(n):
            if salu:
                A(salu.pop(0))

    Lar = f"L_top_{tag}"
    Lspec = f"L_spec_{tag}"
    Lretry0 = f"L_retry0_{tag}"
    rt = opts.get('rtrace')

    def rstamp(k):
        if rt:
            A(f"s_memtime s[{16 + 2*k}:{17 + 2*k}]")

    def con_issue(R):
        A(f"buffer_load_dwordx4 {v(R,4)}, {v(vL16)}, {s(S_WS,4)}, {s(sGat)} offen sc1")
        A(f"buffer_load_dwordx4 {v(R+4,4)}, {v(vL16)}, {s(S_WS,4)}, {s(sGat)} offen offset:1024 sc1")

    def own(H, spec):
        lq.ops = []
        n = 0
        c0 = Y
        for m in 'qkv':
            for jj in range(2):
                for t in range(2):
                    n += 1
                    smf(m, jj, t, H + 4 * jj)
                    if spec and n == 1:
                        A(f"v_max3_u32 {v(c0)}, {v(H)}, {v(H+2)}, {v(H+4)}")
                    elif spec and n == 2:
                        A(f"v_max_u32 {v(c0)}, {v(c0)}, {v(H+6)}")
                    elif spec and n == 3:
                        A(f"v_cmp_eq_u32 vcc, -1, {v(c0)}")
                        A(f"s_add_u32 {s(sRet)}, {s(sRet)}, 1")
                        A(f"s_cbranch_vccnz {Lretry0}")
                    elif n == 4:
                        if FTR[0] == 3:
                            fstamp(A, 2)
                        A(f"s_waitcnt lgkmcnt(0)")
                        A(f"s_barrier")
                        if FTR[0] == 3:
                            fstamp(A, 3)
                    elif 5 <= n <= 10:
                        vdma(n)
                        j2 = n - 5 + 2
                        lq.issue(('A', j2), f"ds_read_b128 {v(AO + 4*(j2-2), 4)}, {v(vA[j2 >> 1])} offset:{(j2 & 1) * 1024}")
                    elif n == 11:
                        vdma(n)
                        rdR('k', 0, 0)
                    elif n == 12:
                        vdma(n)
                        rdR('k', 0, 1)
    keepL = A.L
    if first:
        A.L = []
    if opts.get('lalign'):
        A.L.append(f".p2align {opts['lalign']}")
        for _ in range(opts.get('lpad', 0)):
            A("s_nop 0")
    A.label(Lar)
    A(f"s_barrier")
    if cp:
        lstamp(A, 8)
    rstamp(5)
    for k in range(1, 4):
        A(f"v_xor_b32 {v(vA[k])}, {k << 11:#x}, {v(vMw)}")
    A(f"s_mov_b32 {s(sRet)}, 0")

    def dma_pair(m0reg, soff):
        A(f"s_mov_b32 m0, {s(m0reg)}")
        A(f"s_nop 0")
        A(f"buffer_load_dwordx4 {v(vL16)}, {s(S_WS,4)}, {s(soff)} offen lds")
        A(f"buffer_load_dwordx4 {v(vL16)}, {s(S_WS,4)}, {s(soff)} offen offset:1024 lds")
    for _ in range(opts.get('tpre', 0)):
        A(f"s_sleep 1")
    if KP == 4:
        A(f"buffer_load_dwordx4 {v(X,4)}, {v(vL16)}, {s(S_WS,4)}, {s(sKV)} offen")
        A(f"buffer_load_dwordx4 {v(X+4,4)}, {v(vL16)}, {s(S_WS,4)}, {s(sKV)} offen offset:1024")
    if VP == 4:
        A(f"s_add_u32 {s(sT3)}, {s(sKV)}, 8192")
        A(f"buffer_load_dwordx4 {v(X+8,4)}, {v(vL16)}, {s(S_WS,4)}, {s(sT3)} offen")
        A(f"buffer_load_dwordx4 {v(X+12,4)}, {v(vL16)}, {s(S_WS,4)}, {s(sT3)} offen offset:1024")
    if KP == 1:
        dma_pair(sM0K, sKV)
        if M0TOP:
            A(f"s_mov_b32 m0, {s(sM0V)}")
    if VP == 1:
        A(f"s_add_u32 {s(sT3)}, {s(sKV)}, 8192")
        dma_pair(sM0V, sT3)
    if opts.get('rbpos', 0) == 0:
        for q in range(RBT):
            rdR('k', q >> 1, q & 1, True)
    for _ in range(opts.get('gdelay', 0)):
        A(f"s_sleep 1")
    con_issue(H0)
    for _ in range(opts.get('gspace', 1)):
        A(f"s_sleep 1")
    con_issue(H1)
    if G3:
        for _ in range(opts.get('gspace2', opts.get('gspace', 1))):
            A(f"s_sleep 1")
        con_issue(H2)
    if opts.get('rbpos', 0) == 1:
        for q in range(RBT):
            rdR('k', q >> 1, q & 1, True)
    if KP == 4 or VP == 4:
        assert not RBT and not G3
        A(f"s_waitcnt vmcnt(4)")
        if KP == 4:
            A(f"ds_write_b128 {v(vMw)}, {v(X,4)} offset:{KX_OFF - MEM_OFF}")
            A(f"ds_write_b128 {v(vMw)}, {v(X+4,4)} offset:{KX_OFF - MEM_OFF + 1024}")
        if VP == 4:
            A(f"ds_write_b128 {v(vMw)}, {v(X+8,4)} offset:{VX_OFF - MEM_OFF}")
            A(f"ds_write_b128 {v(vMw)}, {v(X+12,4)} offset:{VX_OFF - MEM_OFF + 1024}")
    A.label(Lspec)
    A(f"s_waitcnt vmcnt({4 if G3 else 2})")
    if rt:
        rstamp(6)
    A(f"ds_write_b128 {v(vMw)}, {v(H0,4)}")
    A(f"ds_write_b128 {v(vMw)}, {v(H0+4,4)} offset:1024")
    if cp:
        lstamp(A, 9)
        lstamp(A, 1)
    if rt:
        A("s_memtime s[30:31]")
    own(H0, True)
    if first:
        A.L = keepL
        own(H1, False)
    A.label(Lcommon)
    if FTR[0] == 3:
        fstamp(A, 4)
    n = 12
    for jj in range(2, 8):
        for t in range(2):
            n += 1
            if t == 0:
                lq.wait(('A', jj))
            smf('q', jj, t, AO + 4 * (jj - 2))
            if n == 13 or n >= 19:
                vdma(n)
            if n == 13:
                rdR('k', 1, 0)
            elif n == 14:
                A(f"buffer_load_dword {v(vFlag)}, off, {s(S_WS,4)}, {s(sFo)} sc1")
                rdR('k', 1, 1)
            elif n == 15:
                if not opts.get('nopf'):
                    A(f"buffer_load_dword {v(vJunk)}, {v(vPf)}, {s(S_WS,4)}, {s(sPf)} offen")
                rdR('k', 2, 0)
            elif n == 16:
                A(f"s_add_u32 {s(sT3)}, {s(sPf)}, 4096")
                rdR('k', 2, 1)
            elif n == 17:
                if not opts.get('nopf'):
                    A(f"buffer_load_dword {v(vJunk)}, {v(vPf)}, {s(S_WS,4)}, {s(sT3)} offen")
                if G3:
                    A(f"s_waitcnt vmcnt({5 if VP == 0 and VAT <= 12 else 3})")
                rdR('k', 3, 0)
                su(1)
            elif n == 18:
                if not G3 and not first:
                    A(f"s_waitcnt vmcnt({5 if VP == 0 and VAT <= 12 else 3})")
                rdR('k', 3, 1)
                su(1)
            elif 19 <= n <= 22:
                if not first:
                    rdKX((0, 4, 1, 5)[n - 19])
                su(1)
            else:
                su(3)
    if cp and not rp:
        lstamp(A, 2)

    def post(m, step):
        t, k = step // 3, step % 3
        T = AC[m] + 4 * t
        if k < 2:
            A(f"v_add_f32 {v(T + k)}, {v(T + k)}, {v(T + k + 2)}")
        else:
            d = {'q': CQ + t, 'k': CK + t, 'v': (vS0, vVM1)[t]}[m]
            A(f"v_cvt_pk_bf16_f32 {v(d)}, {v(T)}, {v(T + 1)}")
    for jj in range(2, 8):
        for t in range(2):
            n += 1
            smf('k', jj, t, AO + 4 * (jj - 2))
            vdma(n)
            if n == 31:
                lq.issue('wq', f"ds_write2st64_b32 {v(vQKw)}, {v(CQ)}, {v(CQ+1)} offset0:0 offset1:1")
            elif n == 33 and KP == 0:
                A(f"s_mov_b32 m0, {s(sM0K)}")
                A(f"s_add_u32 {s(sKn)}, {s(sKn)}, 0x80000")
            elif n == 35:
                if FTR[0] == 3:
                    fstamp(A, 6)
                lq.wait('wq')
                A(f"s_barrier")
                if FTR[0] == 3:
                    fstamp(A, 7)
            if 26 <= n <= 30:
                rdR('v', (n - 26) >> 1, (n - 26) & 1)
            elif n in (32, 33, 34):
                rdR('v', (n - 27) >> 1, (n - 27) & 1)
            if n in (31, 32):
                su(1)
            if n == opts.get('cfk', 36) and opts.get('cf') and not first:
                A(f"s_cmp_eq_u32 {s(sS)}, 63")
                A(f"s_cselect_b32 {s(sKM)}, {OOB:#x}, {s(sKM)}")
            if 25 <= n <= 30:
                post('q', n - 25)
            elif n >= 33:
                A(f"v_mov_b64 {v(ACC + 2*(n - 33), 2)}, 0")
    assert not salu
    if cp and not rp:
        lstamp(A, 3)
    QR, KR = Y, Y + 16

    def trq(i):
        ks, hf = i >> 1, i & 1
        lq.issue(('q', ks), f"ds_read_b64_tr_b16 {v(QR+4*ks+2*hf,2)}, {v(vQKr)} offset:{QK_OFF + (32*ks+8*hf)*16}")

    def trk(i):
        ks, hf = i >> 1, i & 1
        lq.issue(('k', ks), f"ds_read_b64_tr_b16 {v(KR+4*ks+2*hf,2)}, {v(vKr)} offset:{KIMG[ks] + hf*256}")
    trq_at = {38: 0, 39: 1, 40: 2, 41: 3, 42: 4, 44: 5, 45: 6, 46: 7}
    for jj in range(2, 8):
        for t in range(2):
            n += 1
            smf('v', jj, t, AO + 4 * (jj - 2))
            vdma(n)
            if n in trq_at:
                trq(trq_at[n])
            if 39 <= n <= 42 and not first:
                rdKX((2, 6, 3, 7)[n - 39])
            if n == 43:
                lq.issue('wk', f"ds_write2st64_b32 {v(vKw)}, {v(CK)}, {v(CK+1)} offset0:0 offset1:2")
            elif n == 44 and not opts.get('xnokm'):
                A(f"buffer_store_dword {v(CK)}, {v(vQKw)}, {s(S_WS,4)}, {s(sKM)} offen sc1")
            elif n == 45 and not opts.get('xnokm'):
                A(f"buffer_store_dword {v(CK+1)}, {v(vQKw)}, {s(S_WS,4)}, {s(sKM)} offen offset:256 sc1")
            elif n == 47:
                if FTR[0] == 1:
                    fstamp(A, 3)
                lq.wait('wk')
                if first:
                    if opts.get('esprof'):
                        stamp(A, 4)
                    A(f"s_waitcnt vmcnt(13)")
                    if opts.get('esprof'):
                        stamp(A, 5)
                A(f"s_barrier")
                if FTR[0] == 1:
                    fstamp(A, 4)
                trk(0)
                if first:
                    for j in (0, 4, 1, 5):
                        rdKX(j)
            elif n == 48:
                trk(1)
                if first:
                    for j in (2, 6, 3, 7):
                        rdKX(j)
                if KP == 0:
                    A(f"buffer_load_dwordx4 {v(vL16)}, {s(S_WS,4)}, {s(sKn)} offen lds")
            if 37 <= n <= 42:
                post('k', n - 37)
            if n == 42 and FTR[0] == 1:
                fstamp(A, 2)
    if cp and not rp:
        lstamp(A, 4)
    T0, T1, TM = PA, PA + 4, PA + 8
    m, t_ = vT0, vT1
    wo_ops = [(cg, 0) for cg in range(4)] + [(cg, ks) for cg in range(4) for ks in range(1, 4)]
    bufs = [X + 16, X + 24, X, X + 8, Y, Y + 8, Y + 16, Y + 24]

    WOR = [a(224, 8), a(232, 8), a(240, 8), a(248, 8), v(224, 8), v(232, 8), v(240, 8), v(248, 8)]

    AT = Y + 28
    TF = {2: X, 3: Y}
    atr = []
    trs = {u: [(cg, i) for cg in ((2, 3, 0, 1) if u == 2 else (0, 1, 2, 3)) for i in range(4)] for u in (2, 3)}

    def trW(u, cnt=1):
        for _ in range(cnt):
            if trs[u]:
                cg, i = trs[u].pop(0)
                lq.issue(('F', u, cg), f"ds_read_b64_tr_b16 {v(TF[u] + 8*cg + 2*i, 2)}, {v(AT + cg)} offset:{(u - 2) * 8192 + (8 * (i >> 1) + 2 * (i & 1)) * 256}")

    def rdW(i, half):
        if first:
            if atr:
                trW(2, 2)
            return
        o = (8 + i) * 2048 + 1024 * half
        lq.issue(('W', i), f"ds_read_b128 {v(bufs[i] + 4*half, 4)}, {v(vWo)} offset:{o}")
    for i in range(8):
        ks, t = i >> 1, i & 1
        if i in (0, 4):
            lq.wait(('q', ks + 1))
        if first:
            lq.wait(('KX', 4 * t + ks))
        T = (T0, T1)[t]
        c = "0" if ks == 0 else v(T, 4)
        A(f"v_mfma_f32_16x16x32_bf16 {v(T,4)}, {v(KXR[4*t+ks],4)}, {v(QR+4*ks,4)}, {c}")
        if i == 0 and KP == 0:
            A(f"buffer_load_dwordx4 {v(vL16)}, {s(S_WS,4)}, {s(sKn)} offen offset:1024 lds")
        if i <= 5:
            trk(i + 2)
            post('v', i)
        elif i == 6 and not opts.get('xnokm'):
            A(f"buffer_store_dword {v(vS0)}, {v(vQKw)}, {s(S_WS,4)}, {s(sKM)} offen offset:2048 sc1")
            A(f"buffer_store_dword {v(vVM1)}, {v(vQKw)}, {s(S_WS,4)}, {s(sKM)} offen offset:2304 sc1")
    if FTR[0] == 1:
        fstamp(A, 6)
    if not first:
        A(f"s_cmp_eq_u32 {s(sS)}, 63")
        A(f"s_cbranch_scc1 {Llast}")
    for ks in range(4):
        if ks in (0, 2):
            lq.wait(('k', ks + 1))
        cm = "0" if ks == 0 else v(TM, 4)
        A(f"v_mfma_f32_16x16x32_bf16 {v(TM,4)}, {v(KR+4*ks,4)}, {v(QR+4*ks,4)}, {cm}")
        rdW(ks >> 1, ks & 1)
        if ks == 1:
            A(f"v_max3_f32 {v(m)}, {v(T0)}, {v(T0+1)}, {v(T0+2)}")
        elif ks == 2:
            A(f"v_max3_f32 {v(t_)}, {v(T0+3)}, {v(T1)}, {v(T1+1)}")
        elif ks == 3:
            A(f"v_max3_f32 {v(m)}, {v(m)}, {v(T1+2)}, {v(T1+3)}")
    if first:
        A(f"s_lshl_b32 {s(sT2)}, {s(sWAVE)}, 15")
        A(f"s_add_u32 {s(sT2)}, {s(sT2)}, {WO_OFF + 16384:#x}")
        lane_expr(A, AT, vL16, [(6, 1, 256 + 64), (8, 1, 4096 + 128), (9, 1, 1024), (7, 1, 32), (4, 2, 8)], sregs=[sT2], tmp=AT + 1)
        for cg in range(1, 4):
            A(f"v_xor_b32 {v(AT + cg)}, {cg << 6:#x}, {v(AT)}")
        atr.append(1)
    if FTR[0] == 1:
        fstamp(A, 7)
    ralate = 1

    def rearm(k, now=False):
        if now and k == 2:
            A(f"buffer_store_dwordx4 {v(vSEL,4)}, {v(vMst)}, {s(S_WS,4)}, {s(sRa2)} offen{st}")
    VX0 = Y + 16
    u0, u1 = TM + 2, TM + 3
    if VP == 0:
        v2 = VAT + opts.get('vsp', 1)
        young = (3 if VAT <= 12 else 0) + (v2 <= 44) + (v2 <= 45) + 2 + (2 if KP == 0 else 0)
        assert v2 <= 47
        if not first:
            A(f"s_waitcnt vmcnt({young})")
    lq.issue('vx', f"ds_read_b128 {v(VX0,4)}, {v(vMw)} offset:{VX_OFF - MEM_OFF}")
    lq.issue('vx', f"ds_read_b128 {v(VX0+4,4)}, {v(vMw)} offset:{VX_OFF - MEM_OFF + 1024}")
    rdW(2, 0)
    rdW(2, 1)
    A(f"v_mov_b64 {v(ACC+10,2)}, 0")
    A(f"v_max3_f32 {v(m)}, {v(m)}, {v(t_)}, {v(TM)}")
    A(f"v_max_f32 {v(u0)}, {v(m)}, {v(TM+1)}")
    A(f"v_max_f32 {v(u1)}, {v(m)}, {v(TM+1)}")
    rdW(3, 0)
    A(f"v_mov_b64 {v(ACC+8,2)}, 0")
    A(f"v_permlane16_swap_b32 {v(u0)}, {v(u1)}")
    A(f"v_max_f32 {v(m)}, {v(u0)}, {v(u1)}")
    A(f"v_max_f32 {v(t_)}, {v(u0)}, {v(u1)}")
    rdW(3, 1)
    A(f"s_nop 0")
    A(f"v_permlane32_swap_b32 {v(m)}, {v(t_)}")
    A(f"v_max_f32 {v(m)}, {v(m)}, {v(t_)}")
    A(f"v_mul_f32 {v(m)}, {s(sNC)}, {v(m)}")
    BX = ACC + 12
    xs = [T0, T0 + 1, T0 + 2, T0 + 3, T1, T1 + 1, T1 + 2, T1 + 3]
    ms = [TM, TM + 1]
    if opts.get('pk', 1):
        def pkf(r):
            A(f"v_pk_fma_f32 {v(r,2)}, {v(r,2)}, {s(sC,2)}, {v(m,2)} op_sel_hi:[1,0,0]")
        pkf(T0)
        pkf(T0 + 2)
        for j in range(8):
            A(f"v_exp_f32 {v(xs[j])}, {v(xs[j])}")
            if j == 1:
                pkf(T1)
            elif j == 3:
                pkf(T1 + 2)
            elif j == 5:
                pkf(TM)
            if j >= 2 and j % 2 == 0:
                q = (j - 2) // 2
                A(f"v_cvt_pk_bf16_f32 {v(BX+q)}, {v(xs[2*q])}, {v(xs[2*q+1])}")
    else:
        for r in xs[:2]:
            A(f"v_fma_f32 {v(r)}, {v(r)}, {s(sC)}, {v(m)}")
        for j in range(8):
            A(f"v_exp_f32 {v(xs[j])}, {v(xs[j])}")
            nx = (xs + ms)[j + 2]
            A(f"v_fma_f32 {v(nx)}, {v(nx)}, {s(sC)}, {v(m)}")
            if j >= 2 and j % 2 == 0:
                q = (j - 2) // 2
                A(f"v_cvt_pk_bf16_f32 {v(BX+q)}, {v(xs[2*q])}, {v(xs[2*q+1])}")
    A(f"v_exp_f32 {v(ms[0])}, {v(ms[0])}")
    A(f"v_cvt_pk_bf16_f32 {v(BX+3)}, {v(xs[6])}, {v(xs[7])}")
    A(f"v_exp_f32 {v(ms[1])}, {v(ms[1])}")
    if cp and not rp:
        lstamp(A, 5)
    O0, O1, LS, PKO = PA, PA + 4, PA + 12, PA + 8
    lq.wait('vx')
    A(f"v_mfma_f32_16x16x32_bf16 {v(LS,4)}, {v(vONE,4)}, {v(BX,4)}, 0")
    A(f"v_cvt_pk_bf16_f32 {v(vBM)}, {v(ms[0])}, {v(ms[1])}")
    A(f"v_mfma_f32_16x16x32_bf16 {v(O0,4)}, {v(VX0,4)}, {v(BX,4)}, 0")
    rdW(4, 0)
    WE = opts.get('wearly', 0)
    A(f"v_mfma_f32_16x16x32_bf16 {v(O1,4)}, {v(VX0+4,4)}, {v(BX,4)}, 0")
    if WE:
        rdW(4, 1)
    A(f"v_mfma_f32_16x16x32_bf16 {v(LS,4)}, {v(vONE,4)}, {v(vBM,4)}, {v(LS,4)}")
    if WE:
        rdW(5, 0)
    A(f"v_mfma_f32_16x16x32_bf16 {v(O0,4)}, {v(vS0,4)}, {v(vBM,4)}, {v(O0,4)}")
    if WE:
        rdW(5, 1)
    A(f"v_mov_b64 {v(ACC+12,2)}, 0")
    A(f"v_mfma_f32_16x16x32_bf16 {v(O1,4)}, {v(vVM1,4)}, {v(vBM,4)}, {v(O1,4)}")
    if WE:
        rdW(7, 0)
    else:
        rdW(4, 1)
    if FTR[0] == 2:
        fstamp(A, 2)
    A(f"v_rcp_f32 {v(m)}, {v(LS)}")
    if WE:
        rdW(7, 1)
    else:
        rdW(5, 0)
    A(f"v_mov_b64 {v(ACC+14,2)}, 0")
    if WE == 2:
        rdW(6, 0)
        rdW(6, 1)
    if opts.get('pk', 1):
        def pkm(r):
            A(f"v_pk_mul_f32 {v(r,2)}, {v(r,2)}, {v(m,2)} op_sel_hi:[1,0]")
        pkm(O0)
        pkm(O0 + 2)
        pkm(O1)
        A(f"v_cvt_pk_bf16_f32 {v(PKO)}, {v(O0)}, {v(O0+1)}")
        pkm(O1 + 2)
        A(f"v_cvt_pk_bf16_f32 {v(PKO+1)}, {v(O0+2)}, {v(O0+3)}")
    else:
        for r in range(4):
            A(f"v_mul_f32 {v(O0+r)}, {v(O0+r)}, {v(m)}")
        A(f"v_cvt_pk_bf16_f32 {v(PKO)}, {v(O0)}, {v(O0+1)}")
        A(f"v_cvt_pk_bf16_f32 {v(PKO+1)}, {v(O0+2)}, {v(O0+3)}")
        for r in range(4):
            A(f"v_mul_f32 {v(O1+r)}, {v(O1+r)}, {v(m)}")
    A(f"v_cvt_pk_bf16_f32 {v(PKO+2)}, {v(O1)}, {v(O1+1)}")
    A(f"v_cvt_pk_bf16_f32 {v(PKO+3)}, {v(O1+2)}, {v(O1+3)}")
    if FTR[0] == 2:
        fstamp(A, 3)
    lq.issue('wo_', f"ds_write_b128 {v(vOw)}, {v(PKO,4)} offset:0")
    AOr = [PKO, PA, PA + 4, PA + 12]
    vAo = [None, vT0, vT1, vS0]
    for k in range(1, 4):
        A(f"v_xor_b32 {v(vAo[k])}, {k << 9:#x}, {v(vOw)}")
    if cp and not rp:
        lstamp(A, 6)

    def pack(cg, k):
        A(f"v_cvt_pk_bf16_f32 {v(ACC+4*cg+k)}, {v(ACC+4*cg+2*k)}, {v(ACC+4*cg+2*k+1)}")

    def tagp(cg):
        A(f"v_and_or_b32 {v(ACC+4*cg)}, {v(ACC+4*cg)}, -2, {s(sTag)}")

    def pstore(cg, st=st):
        A(f"buffer_store_dwordx2 {v(ACC+4*cg,2)}, {v(vPst)}, {s(S_WS,4)}, {s(sPc[cg]) if cg else 0} offen{st}")
    if first:
        trW(2, 16)

        def fin(r_, io):
            for hf in range(2):
                lq.issue(('fin', io), f"ds_write_b128 {v(vWo)}, {v(r_ + 4*hf, 4)} offset:{io * 2048 + 1024 * hf}")
        B1 = [224, 248, 232, 240]
        for ks in range(4):
            if ks == 3:
                A(f"s_waitcnt vmcnt(7)")
                if opts.get('esprof'):
                    stamp(A, 6)
                trW(3, 16)
            for cg in range(4):
                if ks and cg == 0:
                    lq.wait(('Ao', ks))
                if ks >= 2:
                    lq.wait(('F', ks, cg))
                B = a(224 + 8 * cg, 8) if ks == 0 else v(B1[cg], 8) if ks == 1 else v(TF[ks] + 8 * cg, 8)
                A(f"v_smfmac_f32_16x16x64_bf16 {v(ACC+4*cg,4)}, {v(AOr[ks],4)}, {B}, {v(vIdxW)}")
                if ks == 0 and cg == 1:
                    lq.wait('wo_')
                    A(f"s_barrier")
                    for k in range(1, 4):
                        lq.issue(('Ao', k), f"ds_read_b128 {v(AOr[k],4)}, {v(vAo[k])}")
                if ks == 2 and cg >= 1:
                    fin(*[(232, 10), (X + 8, 8), (X + 16, 11)][cg - 1])
        for (r_, io) in [(240, 13), (X + 24, 14), (Y + 8, 9), (Y + 16, 12), (Y + 24, 15)]:
            fin(r_, io)
            if io == 14:
                A.nop(4)
                for cg in range(4):
                    pack(cg, 0)
                    pack(cg, 1)
                    tagp(cg)
                Lsl, Lpd = A.new_label("esl"), A.new_label("epd")
                A(f"s_cmp_eq_u32 {s(sFastF)}, 1")
                if opts.get('forceslow'):
                    A(f"s_branch {Lsl}")
                A(f"s_cbranch_scc0 {Lsl}")
                for cg in range(4):
                    pstore(cg, "")
                A(f"s_branch {Lpd}")
                A.label(Lsl)
                for cg in range(4):
                    pstore(cg, " sc1")
                A.label(Lpd)
        lq.wait(('fin', 13))
        for i in range(4):
            A(f"v_mov_b64 {v(232 + 2*i, 2)}, {v(X + 2*i, 2)}")
            A(f"v_mov_b64 {v(240 + 2*i, 2)}, {v(Y + 2*i, 2)}")
        lq.wait_all()
        if opts.get('esprof'):
            stamp(A, 7)
        if opts.get('cf'):
            A(f"s_load_dwordx2 s[28:29], s[0:1], 88")
        A(f"s_cmp_eq_u32 {s(sFastF)}, 1")
        if opts.get('forceslow'):
            A(f"s_branch L_red_s")
        A(f"s_cbranch_scc0 L_red_s")
        A(f"s_branch L_red_f")
        return
    for i, (cg, ks) in enumerate(wo_ops):
        if ks:
            lq.wait(('Ao', ks))
        if i >= 8:
            lq.wait(('W', i - 8))
        A(f"v_smfmac_f32_16x16x64_bf16 {v(ACC+4*cg,4)}, {v(AOr[ks],4)}, {WOR[i] if i < 8 else v(bufs[i - 8],8)}, {v(vIdxW)}")
        if i == opts.get('obar', 1):
            lq.wait('wo_')
            A(f"s_barrier")
            if FTR[0] == 2:
                fstamp(A, 5)
            for k in range(1, 4):
                lq.issue(('Ao', k), f"ds_read_b128 {v(AOr[k],4)}, {v(vAo[k])}")
        if i == 4 and FTR[0] == 2:
            fstamp(A, 6)
        if i == 9 and FTR[0] == 2:
            fstamp(A, 7)
        if WE == 0:
            if i == 2:
                rdW(5, 1)
                rdW(6, 0)
            elif i == 3:
                rdW(6, 1)
                rdW(7, 0)
            elif i == 4:
                rdW(7, 1)
        elif WE == 1:
            if i == 2:
                rdW(6, 0)
            elif i == 3:
                rdW(6, 1)
        pst = opts.get('pst', 1)
        if pst == 1:
            if i in (11, 14):
                pstore((i - 11) // 3)
            if i in (8, 11, 14):
                pack((i - 8) // 3, 0)
            elif i in (9, 12, 15):
                pack((i - 9) // 3, 1)
            elif i in (10, 13):
                tagp((i - 10) // 3)
        elif pst == 2:
            if i in (8, 11, 14):
                pack((i - 8) // 3, 0)
                pack((i - 8) // 3, 1)
            elif i in (9, 12, 15):
                tagp((i - 9) // 3)
            elif i in (10, 13):
                pstore((i - 10) // 3)
        elif pst == 3:
            if i in (8, 11, 14):
                pack((i - 8) // 3, 0)
            elif i in (9, 12, 15):
                pack((i - 9) // 3, 1)
                tagp((i - 9) // 3)
            elif i in (10, 13):
                pstore((i - 10) // 3)
    if pst == 1:
        tagp(2)
        pstore(2)
        A(f"s_nop 5")
    else:
        pstore(2)
        A(f"s_nop 6")
    pack(3, 0)
    pack(3, 1)
    tagp(3)
    pstore(3)
    A.label(f"L_red_{tag}")
    if cp:
        lstamp(A, 7)
    Lnr = A.new_label("notred")

    def bookkeeping():
        A(f"s_add_u32 {s(sS)}, {s(sS)}, 1")
        A(f"s_add_u32 {s(sKM)}, {s(sKM)}, 0x20000")
        A(f"s_add_u32 {s(sKV)}, {s(sKV)}, 0x80000")
        A(f"s_add_u32 {s(sPf)}, {s(sPf)}, 0x80000")
        A(f"s_add_u32 {s(sJ4)}, {s(sJ4)}, 4")
        A(f"s_cmp_eq_u32 {s(sJ4)}, 20")
        A(f"s_cselect_b32 {s(sJ4)}, 0, {s(sJ4)}")
        A(f"s_addc_u32 {s(sCn)}, {s(sCn)}, 0")

    def bookkeeping2(w0=False):
        A(f"s_add_u32 {s(sFo)}, {s(sFb)}, {s(sJ4)}")
        A(f"s_cmp_lt_u32 {s(sS)}, 62")
        A(f"s_cselect_b32 {s(sNeed)}, {s(sCn)}, 0")
        if opts.get('cf') and not w0:
            A(f"s_cmp_eq_u32 {s(sS)}, 62")
            A(f"s_cselect_b32 {s(sFo)}, {WS_OF + 63 * 128:#x}, {s(sFo)}")
            A(f"s_cselect_b32 {s(sNeed)}, 32, {s(sNeed)}")
            bookkeeping3()

    def bookkeeping3():
        A(f"s_cmp_eq_u32 {s(sS)}, 63")
        A(f"s_cselect_b32 {s(sPf)}, {OOB:#x}, {s(sPf)}")
        A(f"s_cselect_b32 {s(sFo)}, {OOB:#x}, {s(sFo)}")

    def zero_acc():
        for i in range(8):
            A(f"v_mov_b64 {v(ACC+2*i,2)}, 0")
        for i in range(4):
            A(f"v_mov_b64 {v(AK+2*i,2)}, 0")

    def w1_dma():
        for _ in range(opts.get('w1d', 0)):
            A(f"s_sleep 1")
        if KP == 2:
            A(f"s_add_u32 {s(sT3)}, {s(sKV)}, 0x80000")
            dma_pair(sM0K, sT3)
            if M0TOP:
                A(f"s_mov_b32 m0, {s(sM0V)}")
        if VP == 2:
            A(f"s_add_u32 {s(sT3)}, {s(sKV)}, {0x80000 + 8192:#x}")
            dma_pair(sM0V, sT3)
    nw1 = 2 * ((KP == 2) + (VP == 2))
    if nw1 and opts.get('w1pre'):
        w1_dma()
    if opts.get('rbar', 1):
        A(f"s_barrier")
    if nw1 and not opts.get('w1pre'):
        w1_dma()
    A(f"s_cmp_lg_u32 {s(sWAVE)}, 0")
    A(f"s_cbranch_scc1 {Lnr}")
    Lred = A.new_label("red")
    Lredok = A.new_label("redok")
    RA = PA
    two = opts.get('rtwo', 0)

    if rt:
        A(f"s_memtime s[62:63]")
        A(f"s_lshl_b32 {s(sT0)}, {s(sH)}, 6")
        A(f"s_add_u32 {s(sT0)}, {s(sT0)}, {s(sS)}")
        A(f"s_lshl_b32 {s(sT0)}, {s(sT0)}, 6")
        A(f"s_add_u32 {s(sT0)}, {s(sT0)}, {WS_T + 0x10000:#x}")
        A(f"s_waitcnt lgkmcnt(0)")
        A(f"v_mov_b32 {v(vT0)}, s16")
        for k in range(1, 8):
            A(f"v_writelane_b32 {v(vT0)}, s{16 + 2*k}, {k}")
        A(f"v_writelane_b32 {v(vT0)}, s{sCP0}, 8")
        A(f"v_writelane_b32 {v(vT0)}, s{sRet}, 9")
        A(f"v_lshrrev_b32 {v(vT1)}, 2, {v(vL16)}")
        A(f"s_mov_b64 exec, 0x3ff")
        A(f"buffer_store_dword {v(vT0)}, {v(vT1)}, {s(S_WS,4)}, {s(sT0)} offen")
        A(f"s_mov_b64 exec, -1")
        A(f"s_mov_b32 s16, s62")
        A(f"s_mov_b32 {s(sCP0)}, 0")
    im0 = len(A.L)
    zero_acc()
    A(f"v_xor_b32 {v(vTagE)}, 1, {v(vTagE)}")
    bookkeeping()
    bookkeeping2(True)
    A(f"s_mov_b32 {s(sRet)}, 0")
    moved = []
    if opts.get('rmov'):
        moved = A.L[len(A.L) - opts['rmov']:]
        del A.L[len(A.L) - opts['rmov']:]
    RS = [[X + 4 * i for i in range(8)], [Y + 4 * i for i in range(6)] + [PA + 8, PA + 12]]
    mode = opts.get('rmode', 1)

    def ld(R, i):
        A(f"buffer_load_dwordx4 {v(R[i],4)}, {v(vRed)}, {s(S_WS,4)}, {0 if i < 4 else s(sSlotP4)} offen offset:{(i%4)*1024} sc1")

    def chk(R, other, cnt, first=False):
        ys = [vT0, vT1, vS0, vT1, vS0, vT1, vS0, vT1]
        if rt:
            A(f"s_add_u32 {s(sCP0)}, {s(sCP0)}, 1")
        for i in range(8):
            A(f"s_waitcnt vmcnt({cnt(i)})")
            if first and i == 0:
                rstamp(2)
            if first and i == 7:
                rstamp(3)
            c = "0" if i == 0 else v(RA, 4)
            A(f"v_mfma_f32_16x16x32_bf16 {v(RA,4)}, {v(R[i],4)}, {v(vSEL,4)}, {c}")
            if other is not None:
                ld(other, i)
            A(f"v_bitop3_b32 {v(ys[i])}, {v(R[i])}, {v(R[i]+2)}, {v(vTagE)} bitop3:0x7e")
            if i in (2, 4, 6):
                A(f"v_or3_b32 {v(vT0)}, {v(vT0)}, {v(vT1)}, {v(vS0)}")
        A(f"v_bitop3_b32 {v(vT0)}, {v(vT0)}, {v(vT1)}, 1 bitop3:0xa8")
        A(f"v_cmp_ne_u32 vcc, 0, {v(vT0)}")
    for _ in range(opts.get('rdelay', 0)):
        A(f"s_sleep 1")
    rstamp(1)
    for i in range(8):
        ld(RS[0], i)
    A.L.extend(moved)
    if mode == 3:
        red3(A, opts, RS[0], RA, ld, st, Lar, rstamp, RBT)
        return_after_red = True
    else:
        return_after_red = False
    if not return_after_red:
        Lrfail = A.new_label("rfail")
        Lredok2 = A.new_label("redok2") if RBT else Lredok
        if mode == 2:
            for _ in range(opts.get('rspace', 1)):
                A(f"s_sleep 1")
            for i in range(8):
                ld(RS[1], i)
            chk(RS[0], None, lambda i: 15 - i, True)
        elif mode == 1:
            chk(RS[0], RS[1], lambda i: 7, True)
        else:
            chk(RS[0], None, lambda i: 7 - i, True)
        A(f"s_cbranch_vccnz {Lrfail}")
        A.label(Lredok)
        rstamp(4)
        RT_ = opts.get('cf') and opts.get('rtrim', 0) and mode != 1
        if RT_:
            A(f"s_cmp_eq_u32 {s(sS)}, 63")
            A(f"s_nop 2")
        else:
            A(f"s_nop {3 if mode == 1 else 4}")
        A(f"v_cvt_pk_bf16_f32 {v(RA+4)}, {v(RA)}, {v(RA+1)}")
        A(f"v_cvt_pk_bf16_f32 {v(RA+5)}, {v(RA+2)}, {v(RA+3)}")
        A(f"buffer_store_dwordx2 {v(RA+4,2)}, {v(vMst)}, {s(S_WS,4)}, {s(sSlotM)} offen{st}")
        if opts.get('cf'):
            if not RT_:
                A(f"s_cmp_eq_u32 {s(sS)}, 63")
            A(f"s_cbranch_scc1 L_cfq0_{tag}")
        A(f"s_branch {Lar}")
        iR2 = len(A.L)
        A.label(Lrfail)
        if opts.get('hist'):
            A(f"s_add_u32 {s(sCP0)}, {s(sCP0)}, 1")
        if mode == 0:
            for i in range(8):
                ld(RS[1], i)
        if mode == 2 and opts.get('rlazy'):
            chk(RS[1], None, lambda i: 7 - i)
            A(f"s_cbranch_vccz {Lredok}")
            if opts.get('hist'):
                A(f"s_add_u32 {s(sCP0)}, {s(sCP0)}, 0x1000")
            for i in range(8):
                ld(RS[0], i)
            for _ in range(opts.get('rspace', 1)):
                A(f"s_sleep 1")
            for i in range(8):
                ld(RS[1], i)
            chk(RS[0], None, lambda i: 15 - i)
            A(f"s_cbranch_vccz {Lredok}")
        A.label(Lred)
        chk(RS[1], RS[0], lambda i: 7)
        A(f"s_cbranch_vccz {Lredok2}")
        if opts.get('hist'):
            A(f"s_add_u32 {s(sCP0)}, {s(sCP0)}, {0x1000000 if opts.get('rlazy') else 0x1000}")
        chk(RS[0], RS[1], lambda i: 7)
        A(f"s_cbranch_vccz {Lredok2}")
        if opts.get('hist'):
            A(f"s_add_u32 {s(sCP0)}, {s(sCP0)}, 0x1000000")
        A(f"s_add_u32 {s(sRet)}, {s(sRet)}, 1")
        A(f"s_cmp_lg_u32 {s(sDEAD)}, 0")
        A(f"s_cbranch_scc1 {Lredok2}")
        A(f"s_cmp_lt_u32 {s(sRet)}, {RED_LIMIT}")
        A(f"s_cbranch_scc1 {Lred}")
        A(f"s_mov_b32 {s(sDEAD)}, 1")
        if RBT:
            A.label(Lredok2)
            A(f"s_waitcnt vmcnt(0)")
        A(f"s_branch {Lredok}")
        if fast and opts.get('iw'):
            from isz import add_hops
            k0 = IW['n']
            IW['n'] = add_hops(A, iR2, k0, lambda k: f"L_iwret_{k // IWG(opts)}")
            for _ in range((-(IW['n'] - k0)) % 16):
                A("s_nop 0")
    A.label(Lnr)
    Lfok = A.new_label("fok")
    Lfsp = A.new_label("fsp")
    A(f"s_mov_b32 {s(sRet)}, 0")
    A(f"s_waitcnt vmcnt({10 + (2 if KP == 0 else 0) + nw1 + (2 if VP == 0 and VAT > 12 else 0)})")
    A(f"v_readfirstlane_b32 {s(sT0)}, {v(vFlag)}")
    zero_acc()
    A(f"s_cmp_ge_u32 {s(sT0)}, {s(sNeed)}")
    A(f"s_cbranch_scc1 {Lfok}")
    A(f"s_cmp_lg_u32 {s(sDEAD)}, 0")
    A(f"s_cbranch_scc1 {Lfok}")
    A(f"s_mov_b32 {s(sRet)}, 0")
    A.label(Lfsp)
    A(f"buffer_load_dword {v(vFlag)}, off, {s(S_WS,4)}, {s(sFo)} sc1")
    A(f"s_waitcnt vmcnt(0)")
    A(f"v_readfirstlane_b32 {s(sT0)}, {v(vFlag)}")
    A(f"s_cmp_ge_u32 {s(sT0)}, {s(sNeed)}")
    A(f"s_cbranch_scc1 {Lfok}")
    A(f"s_sleep 1")
    A(f"s_add_u32 {s(sRet)}, {s(sRet)}, 1")
    A(f"s_cmp_lt_u32 {s(sRet)}, {SPIN_LIMIT}")
    A(f"s_cbranch_scc1 {Lfsp}")
    A(f"s_mov_b32 {s(sDEAD)}, 1")
    A.label(Lfok)
    if fast and opts.get('tlbw'):
        A(f"s_cmp_lt_u32 {s(sS)}, {s(sPfb)}")
        A(f"s_cselect_b32 {s(sPf)}, {s(sPf)}, {OOB:#x}")
    if opts.get('cf'):
        A(f"s_sub_u32 {s(sT0)}, {s(sS)}, 57")
        A(f"s_cmp_lt_u32 {s(sT0)}, 6")
        A(f"s_cbranch_scc1 L_cfa_{tag}")
        A.label(f"L_cfar_{tag}")
    if TRACE[0]:
        Lsl = A.new_label("tr")
        A(f"s_cmp_lg_u32 {s(sWAVE)}, {opts.get('tw', 1)}")
        A(f"s_cbranch_scc1 {Lsl}")
        A(f"s_lshl_b32 {s(sT0)}, {s(sH)}, 6")
        A(f"s_add_u32 {s(sT0)}, {s(sT0)}, {s(sS)}")
        A(f"s_lshl_b32 {s(sT0)}, {s(sT0)}, 5")
        A(f"s_add_u32 {s(sT0)}, {s(sT0)}, {WS_T + 0x10000:#x}")
        A(f"s_waitcnt lgkmcnt(0)")
        A(f"v_mov_b32 {v(vT0)}, s16")
        for k in range(1, 8):
            A(f"v_writelane_b32 {v(vT0)}, s{16 + 2*k}, {k}")
        A(f"v_lshrrev_b32 {v(vT1)}, 2, {v(vL16)}")
        A(f"s_mov_b64 exec, 0xff")
        A(f"buffer_store_dword {v(vT0)}, {v(vT1)}, {s(S_WS,4)}, {s(sT0)} offen")
        A(f"s_mov_b64 exec, -1")
        A.label(Lsl)
    if opts.get('steplog'):
        Lsl = A.new_label("sl")
        A(f"s_cmp_lg_u32 {s(sWAVE)}, 1")
        A(f"s_cbranch_scc1 {Lsl}")
        A(f"s_memrealtime s[62:63]")
        A(f"s_memtime s[16:17]")
        A(f"s_lshl_b32 {s(sT0)}, {s(sH)}, 6")
        A(f"s_add_u32 {s(sT0)}, {s(sT0)}, {s(sS)}")
        A(f"s_lshl_b32 {s(sT0)}, {s(sT0)}, 3")
        A(f"s_add_u32 {s(sT0)}, {s(sT0)}, {WS_T + (0x30000 if opts.get('prof') else 0x8000):#x}")
        A(f"s_waitcnt lgkmcnt(0)")
        A(f"v_mov_b32 {v(vT0)}, s62")
        A(f"v_mov_b32 {v(vT1)}, s16")
        A(f"s_mov_b64 exec, 1")
        A(f"buffer_store_dwordx2 {v(vT0,2)}, off, {s(S_WS,4)}, {s(sT0)}")
        A(f"s_mov_b64 exec, -1")
        A.label(Lsl)
    bookkeeping()
    bookkeeping2()
    rearm(2, True)
    A(f"s_branch {Lar}")
    iR1 = len(A.L)
    A.label(Lretry0)
    if opts.get('hist'):
        A(f"s_add_u32 {s(sCP1)}, {s(sCP1)}, 1")
    GM = opts.get('gm', 0)

    def re_issue(R):
        if GM & 1:
            A(f"s_mov_b64 exec, vcc")
        con_issue(R)
        if GM & 1:
            A(f"s_mov_b64 exec, -1")
    if GM:
        re_issue(H0)
        A(f"s_nop {3 if GM & 1 else 5}")
    else:
        A(f"s_nop 7")
    for i in range(4):
        A(f"v_mov_b64 {v(AQ+2*i,2)}, 0")
    if not GM:
        con_issue(H0)
    A(f"s_waitcnt vmcnt({4 if G3 else 2})")
    A(f"ds_write_b128 {v(vMw)}, {v(H1,4)}")
    A(f"v_max3_u32 {v(Y)}, {v(H1)}, {v(H1+2)}, {v(H1+4)}")
    A(f"ds_write_b128 {v(vMw)}, {v(H1+4,4)} offset:1024")
    A(f"v_max_u32 {v(Y)}, {v(Y)}, {v(H1+6)}")
    A(f"v_cmp_eq_u32 vcc, -1, {v(Y)}")
    A(f"s_add_u32 {s(sRet)}, {s(sRet)}, 1")
    A(f"s_cbranch_vccz {Lown[1]}")
    if opts.get('hist'):
        A(f"s_add_u32 {s(sCP1)}, {s(sCP1)}, 0x10000")
    re_issue(H1)
    if G3:
        Lown2 = f"L_own2_{tag}"
        A(f"s_waitcnt vmcnt(4)")
        A(f"ds_write_b128 {v(vMw)}, {v(H2,4)}")
        A(f"v_max3_u32 {v(Y)}, {v(H2)}, {v(H2+2)}, {v(H2+4)}")
        A(f"ds_write_b128 {v(vMw)}, {v(H2+4,4)} offset:1024")
        A(f"v_max_u32 {v(Y)}, {v(Y)}, {v(H2+6)}")
        A(f"v_cmp_eq_u32 vcc, -1, {v(Y)}")
        A(f"s_add_u32 {s(sRet)}, {s(sRet)}, 1")
        A(f"s_cbranch_vccz {Lown2}")
        con_issue(H2)
    A(f"s_cmp_lg_u32 {s(sDEAD)}, 0")
    A(f"s_cbranch_scc1 {Lown[1]}")
    A(f"s_cmp_lt_u32 {s(sRet)}, {RED_LIMIT}")
    A(f"s_cbranch_scc1 {Lspec}")
    A(f"s_mov_b32 {s(sDEAD)}, 1")
    if fast and opts.get('iw'):
        from isz import add_hops
        IW['n'] = add_hops(A, iR1, IW['n'], lambda k: f"L_iwret_{k // IWG(opts)}")
    A.label(Lown[1])
    own(H1, False)
    A(f"s_branch {Lcommon}")
    if G3:
        A.label(Lown2)
        own(H2, False)
        A(f"s_branch {Lcommon}")
    icf = len(A.L)
    if opts.get('cf'):
        cf_side(A, fast, opts, tag, Lar)
    A.label(Llast)
    if opts.get('tprof') in (1, 2):
        stamp(A, 4)
    if opts.get('cf'):
        cf_tail(A, fast, opts)
        if fast and opts.get('walk'):
            from isz import add_stubs
            add_stubs(A, icf, "cf", "L_walk_cf", "L_walk_ret", opts.get('wstep', 64))
    A(f"s_waitcnt vmcnt(0) lgkmcnt(0)")
    if opts.get('hist'):
        A(f"s_lshl_b32 {s(sT0)}, {s(sH)}, 2")
        A(f"s_add_u32 {s(sT0)}, {s(sT0)}, {s(sWAVE)}")
        A(f"s_lshl_b32 {s(sT0)}, {s(sT0)}, 3")
        A(f"s_add_u32 {s(sT0)}, {s(sT0)}, {WS_T + 0x40000:#x}")
        A(f"v_mov_b32 {v(vT0)}, {s(sCP0)}")
        A(f"v_mov_b32 {v(vT1)}, {s(sCP1)}")
        A(f"s_mov_b64 exec, 1")
        A(f"buffer_store_dwordx2 {v(vT0,2)}, off, {s(S_WS,4)}, {s(sT0)}")
        A(f"s_mov_b64 exec, -1")
        A(f"s_waitcnt vmcnt(0)")
    if fast and opts.get('cwb'):
        Lwb = A.new_label("cwb")
        A(f"s_cmp_lg_u32 {s(sWAVE)}, 0")
        A(f"s_cbranch_scc1 {Lwb}")
        A(f"buffer_wbl2 sc1")
        A(f"s_waitcnt vmcnt(0)")
        A.label(Lwb)
    if cp and not TRACE[0]:
        for i in range(1, 10):
            A(f"s_mov_b32 s{92+i}, s{16+2*(i-1) if i < 9 else 62}")
        A(f"s_lshl_b32 {s(sCP1)}, {s(sCP1)}, 16")
        A(f"s_or_b32 s92, {s(sCP0)}, {s(sCP1)}")
        A("s_branch L_flush")
    A(f"s_branch L_role_end")


def cf_qload(A):
    A(f"s_lshl_b32 {s(sT0)}, {s(sH)}, 13")
    A(f"s_lshr_b32 {s(sT1)}, {s(sWAVE)}, 1")
    A(f"s_lshl_b32 {s(sT1)}, {s(sT1)}, 12")
    A(f"s_add_u32 {s(sT0)}, {s(sT0)}, {s(sT1)}")
    A(f"s_and_b32 {s(sT1)}, {s(sWAVE)}, 1")
    A(f"s_lshl_b32 {s(sT1)}, {s(sT1)}, 7")
    A(f"s_add_u32 {s(sT0)}, {s(sT0)}, {s(sT1)}")
    A(f"s_add_u32 {s(sT0)}, {s(sT0)}, {WS_QX + 63 * 32 * 8192:#x}")
    A(f"v_and_b32 {v(vT0)}, 0x370, {v(vL16)}")
    for ks in range(4):
        A(f"buffer_load_dwordx4 {a(4*ks,4)}, {v(vT0)}, {s(S_WS,4)}, {s(sT0)} offen offset:{ks*1024}")


def cf_side(A, fast, opts, tag, Lar):
    A.label(f"L_cfa_{tag}")
    Lq = A.new_label("cfq")
    A(f"s_cmp_eq_u32 {s(sS)}, 62")
    A(f"s_cbranch_scc1 {Lq}")
    if fast and opts.get('cfpf', 1):
        A(f"s_add_u32 {s(sT0)}, {s(sS)}, 3")
        A(f"s_and_b32 {s(sT0)}, {s(sT0)}, 3")
        A(f"s_lshl_b32 {s(sT0)}, {s(sT0)}, 18")
        A(f"s_add_u32 {s(sT0)}, {s(sT0)}, {WS_PF - 8192 - 0x80000:#x}")
        A(f"s_cmp_eq_u32 {s(sS)}, 61")
        A(f"s_cselect_b32 {s(sT0)}, {WS_QX + 63 * 32 * 8192 - 8192 - 0x80000:#x}, {s(sT0)}")
        A(f"s_lshl_b32 {s(sT1)}, {s(sH)}, 13")
        A(f"s_sub_u32 {s(sT0)}, {s(sT0)}, {s(sT1)}")
        A(f"s_cmp_eq_u32 {s(sWAVE)}, 1")
        A(f"s_cselect_b32 {s(sPf)}, {s(sT0)}, {s(sPf)}")
    A(f"s_branch L_cfar_{tag}")
    A.label(Lq)
    cf_qload(A)
    A(f"s_branch L_cfar_{tag}")
    A.label(f"L_cfq0_{tag}")
    cf_qload(A)
    A(f"s_branch {Lar}")


def cf_tail(A, fast, opts):
    st = "" if fast and not opts.get('cfsc') else " sc1"
    if fast and opts.get('cfwb'):
        Lwb = A.new_label("cfwb")
        A(f"s_cmp_lg_u32 {s(sWAVE)}, 3")
        A(f"s_cbranch_scc1 {Lwb}")
        A(f"s_cmp_lg_u32 {s(sH)}, {opts.get('cfwbh', 0)}")
        A(f"s_cbranch_scc1 {Lwb}")
        A(f"buffer_wbl2 sc1")
        A.label(Lwb)
    nst = [0]

    def cst():
        if opts.get('tprof') == 3:
            A(f"s_memtime s[{64 + 2*nst[0]}:{65 + 2*nst[0]}]")
            nst[0] += 1
    cst()
    KR = Y + 16
    KXR = {0: X + 16, 4: X + 20, 1: X + 24, 5: X + 28, 2: X, 6: X + 4, 3: X + 8, 7: X + 12}
    T0, T1, TM = PA, PA + 4, PA + 8
    m, t_ = vT0, vT1
    VMX, OA, LS, BX, SEL, PK = 64, 192, ACC + 8, ACC + 12, ACC + 4, PA
    WST, VXF = 96, 160
    WA = 128
    RF = 192
    sMask, sOut = 12, 28
    u0, u1, u2, u3 = ACC, ACC + 1, ACC + 2, ACC + 3
    lq = Q(A, "lgkmcnt", 15)
    A(f"s_lshl_b32 {s(sT0)}, {s(sWAVE)}, 9")
    A(f"v_lshrrev_b32 {v(u1)}, 2, {v(vL16)}")
    A(f"v_add_u32 {v(u0)}, {s(sT0)}, {v(u1)}")
    A(f"ds_write_b32 {v(u0)}, {v(vS0)} offset:{O_OFF}")
    A(f"ds_write_b32 {v(u0)}, {v(vVM1)} offset:{O_OFF + 256}")
    A(f"v_bfe_u32 {v(u2)}, {v(vL16)}, 4, 3")
    A(f"v_lshrrev_b32 {v(u3)}, 6, {v(vL16)}")
    A(f"v_and_b32 {v(u3)}, 12, {v(u3)}")
    A(f"v_sub_u32 {v(u2)}, {v(u2)}, {v(u3)}")
    A(f"s_lshl_b32 {s(sT0)}, {s(sWAVE)}, 3")
    A(f"v_add_u32 {v(u2)}, {s(sT0)}, {v(u2)}")
    A(f"s_mov_b32 {s(sOut+2)}, {2048*1024:#x}")
    A(f"s_mov_b32 {s(sOut+3)}, 0x00020000")
    cst()
    A(f"s_waitcnt vmcnt(4) lgkmcnt(0)")
    cst()
    A(f"s_barrier")
    fill = [f"v_cmp_le_i32 {s(sMask + 2*(4*t+r), 2)}, {16*t+r}, {v(u2)}" for t in range(2) for r in range(4)]
    fill += [f"v_mov_b32 {v(VMX + 2*j + 1)}, 0" for j in range(8)]
    fill += [f"v_mov_b64 {v(WA+2*i,2)}, 0" for i in range(32)]

    def fl(n):
        for _ in range(n):
            if fill:
                A(fill.pop(0))
    rd = [('vm', f"ds_read_b32 {v(VMX + 2*j)}, {v(u1)} offset:{O_OFF + j*256}") for j in range(8)]
    rd += [('vx', f"ds_read_b128 {a(VXF + 4*j, 4)}, {v(vL16)} offset:{VX_OFF + j*1024}") for j in range(8)]
    rw = [('w', f"ds_read_b128 {a(WST + 8*i + 4*hf, 4)}, {v(vWo)} offset:{(8 + i) * 2048 + 1024 * hf}") for i in range(8) for hf in range(2)]
    for ks in range(4):
        for t in range(2):
            T = (T0, T1)[t]
            c = "0" if ks == 0 else v(T, 4)
            A(f"v_mfma_f32_16x16x32_bf16 {v(T,4)}, {v(KXR[4*t+ks],4)}, {a(4*ks,4)}, {c}")
            lq.issue(*rd.pop(0))
            fl(1)
    for ks in range(4):
        cm = "0" if ks == 0 else v(TM, 4)
        A(f"v_mfma_f32_16x16x32_bf16 {v(TM,4)}, {v(KR+4*ks,4)}, {a(4*ks,4)}, {cm}")
        if ks == 0:
            lq.wait('vm')
        lq.issue(*rd.pop(0))
        lq.issue(*rd.pop(0))
        fl(2)
    A(f"v_mov_b32 {v(u0)}, 0xff800000")
    for t in range(2):
        for r in range(4):
            A(f"v_cndmask_b32 {v(PA+4*t+r)}, {v(u0)}, {v(PA+4*t+r)}, {s(sMask+2*(4*t+r),2)}")
    A(f"v_max3_f32 {v(m)}, {v(T0)}, {v(T0+1)}, {v(T0+2)}")
    A(f"v_max3_f32 {v(t_)}, {v(T0+3)}, {v(T1)}, {v(T1+1)}")
    A(f"v_max3_f32 {v(m)}, {v(m)}, {v(T1+2)}, {v(T1+3)}")
    A(f"v_max3_f32 {v(m)}, {v(m)}, {v(t_)}, {v(TM)}")
    A(f"v_max_f32 {v(u0)}, {v(m)}, {v(TM+1)}")
    A(f"v_max_f32 {v(u3)}, {v(m)}, {v(TM+1)}")
    fl(2)
    A(f"v_permlane16_swap_b32 {v(u0)}, {v(u3)}")
    A(f"v_max_f32 {v(m)}, {v(u0)}, {v(u3)}")
    A(f"v_max_f32 {v(t_)}, {v(u0)}, {v(u3)}")
    fl(2)
    A(f"v_permlane32_swap_b32 {v(m)}, {v(t_)}")
    A(f"v_max_f32 {v(m)}, {v(m)}, {v(t_)}")
    A(f"v_mul_f32 {v(m)}, {s(sNC)}, {v(m)}")
    xs = [T0 + i for i in range(8)] + [TM, TM + 1]
    lq.wait('vx')
    for r in range(0, 10, 2):
        A(f"v_pk_fma_f32 {v(xs[r],2)}, {v(xs[r],2)}, {s(sC,2)}, {v(m,2)} op_sel_hi:[1,0,0]")
        lq.issue(*rw.pop(0))
    for k, r in enumerate(xs):
        A(f"v_exp_f32 {v(r)}, {v(r)}")
        if k >= 2 and k % 2 == 0:
            q = (k - 2) // 2
            A(f"v_cvt_pk_bf16_f32 {v(BX+q)}, {v(xs[2*q])}, {v(xs[2*q+1])}")
        if k < 8:
            lq.issue(*rw.pop(0))
    cst()
    A(f"v_mfma_f32_16x16x32_bf16 {v(LS,4)}, {v(vONE,4)}, {v(BX,4)}, 0")
    A(f"v_cvt_pk_bf16_f32 {v(vBM)}, {v(TM)}, {v(TM+1)}")
    for j in range(8):
        A(f"v_mfma_f32_16x16x32_bf16 {v(OA+4*j,4)}, {a(VXF+4*j,4)}, {v(BX,4)}, 0")
        if j == 0:
            A(f"v_and_b32 {v(u0)}, 0x1ff, {v(vOw)}")
        elif j == 1:
            A(f"v_mfma_f32_16x16x32_bf16 {v(LS,4)}, {v(vONE,4)}, {v(vBM,4)}, {v(LS,4)}")
            A(f"s_lshl_b32 {s(sT0)}, {s(sWAVE)}, 11")
            A(f"v_add_u32 {v(u0)}, {s(sT0)}, {v(u0)}")
        elif j == 5:
            A(f"v_rcp_f32 {v(m)}, {v(LS)}")
        else:
            fl(1)
        if rw:
            lq.issue(*rw.pop(0))
    assert not rw

    def norm(j, k):
        if k < 2:
            A(f"v_pk_mul_f32 {v(OA+4*j+2*k,2)}, {v(OA+4*j+2*k,2)}, {v(m,2)} op_sel_hi:[1,0]")
        else:
            A(f"v_cvt_pk_bf16_f32 {v(PK+2*j+k-2)}, {v(OA+4*j+2*(k-2))}, {v(OA+4*j+2*(k-2)+1)}")
    todo = []
    for j in range(8):
        A(f"v_mfma_f32_16x16x32_bf16 {v(OA+4*j,4)}, {v(VMX+2*j,4)}, {v(vBM,4)}, {v(OA+4*j,4)}")
        if j >= 3:
            todo += [(j - 3, k) for k in range(4)]
        for _ in range(2):
            if todo:
                norm(*todo.pop(0))
            else:
                fl(1)
    todo += [(j, k) for j in range(5, 8) for k in range(4)]
    wrote = 0
    for q, (j, k) in enumerate(todo):
        if j == 7 and k == 0:
            fl(2)
        norm(j, k)
        if k == 3 and j % 2 == 1:
            while wrote <= j // 2:
                lq.issue('ow', f"ds_write_b128 {v(u0)}, {v(PK+4*wrote,4)} offset:{MEM_OFF + wrote*512}")
                wrote += 1
    assert wrote == 4
    vAo = [vOw, u2, u3, u1]
    for k in range(1, 4):
        A(f"v_xor_b32 {v(vAo[k])}, {k << 9:#x}, {v(vOw)}")
    fl(99)
    lq.wait_all()
    A(f"s_barrier")
    cst()
    wo_idx = [(cg, 0) for cg in range(4)] + [(cg, ks) for cg in range(4) for ks in range(1, 4)]
    WOR = [a(224, 8), a(232, 8), a(240, 8), a(248, 8), v(224, 8), v(232, 8), v(240, 8), v(248, 8)]
    order = [(cg, ks) for ks in range(4) for cg in range(4)]

    def rdA(gam, ks):
        lq.issue(('A', gam, ks), f"ds_read_b128 {v(32 + 16*gam + 4*ks, 4)}, {v(vAo[ks])} offset:{MEM_OFF - O_OFF + gam*2048}")
    for gam in range(2):
        for ks in range(4):
            rdA(gam, ks)
    soff = [sT0, sT1, sT2, sT3]
    vq = Q(A, "vmcnt", 63)

    def post(gam, i):
        cg, k = i // 4, i % 4
        R = WA + 16 * gam + 4 * cg
        if k == 0:
            A(f"s_mov_b32 {s(soff[cg])}, {WS_PF + gam * 0x40000 + cg * 16384:#x}")
            A(f"v_cvt_pk_bf16_f32 {v(R)}, {v(R)}, {v(R+1)}")
        elif k == 1:
            A(f"v_cvt_pk_bf16_f32 {v(R+1)}, {v(R+2)}, {v(R+3)}")
        elif k == 2:
            A(f"v_or_b32 {v(R)}, 1, {v(R)}")
        else:
            vq.issue('p', f"buffer_store_dwordx2 {v(R,2)}, {v(vPst)}, {s(S_WS,4)}, {s(soff[cg])} offen{st}")
    sPo, sPo4, sOo = sRa2, sCn, sNeed
    f0 = [f"v_bfe_u32 {v(t_)}, {v(vL16)}, 4, 4",
          f"v_and_b32 {v(m)}, 1, {v(t_)}",
          f"v_lshlrev_b32 {v(m)}, 4, {v(m)}",
          f"v_lshlrev_b32 {v(m)}, {v(m)}, {v(SEL)}",
          f"v_lshrrev_b32 {v(t_)}, 1, {v(t_)}"]
    for i in range(4):
        f0 += [f"v_cmp_eq_u32 vcc, {i}, {v(t_)}", f"v_cndmask_b32 {v(SEL+i)}, 0, {v(m)}, vcc"]
    A(f"v_mov_b32 {v(SEL)}, 0x3f80")
    f1 = [f"v_and_b32 {v(LS)}, 0x70, {v(vL16)}",
          f"v_lshrrev_b32 {v(LS+1)}, 2, {v(LS)}",
          f"v_lshlrev_b32 {v(LS)}, 7, {v(LS)}",
          f"v_lshrrev_b32 {v(LS+2)}, 8, {v(vL16)}",
          f"v_lshlrev_b32 {v(LS+2)}, 4, {v(LS+2)}",
          f"v_add_u32 {v(LS)}, {v(LS)}, {v(LS+2)}"]
    RS = [RF + 4 * i for i in range(8)]

    def ld(i):
        vq.issue(('r', i), f"buffer_load_dwordx4 {v(RS[i],4)}, {v(vRed)}, {s(S_WS,4)}, {s(sPo if i < 4 else sPo4)} offen offset:{(i%4)*1024} sc1")

    def group(gam, polls=False):
        for i, (cg, ks) in enumerate(order):
            lq.wait(('A', gam, ks))
            io = wo_idx.index((cg, ks))
            B = WOR[io] if io < 8 else a(WST + 8 * (io - 8), 8)
            A(f"v_smfmac_f32_16x16x64_bf16 {v(WA+16*gam+4*cg,4)}, {v(32 + 16*gam + 4*ks, 4)}, {B}, {v(vIdxW)}")
            if gam < 2 and i in (4, 6, 8, 10):
                rdA(gam + 2, (i - 4) // 2)
            if gam == 0:
                if f0:
                    A(f0.pop(0))
                elif f1:
                    A(f1.pop(0))
            else:
                if i >= 2:
                    post(gam - 1, i - 2)
                if i == 15:
                    post(gam - 1, 14)
                    post(gam - 1, 15)
            if gam == 1 and i == 0:
                while f1:
                    A(f1.pop(0)) if i == 0 else None
            if polls and i % 2 == 0:
                ld(i // 2)
    group(0)
    while f1:
        A(f1.pop(0))
    A(f"s_lshl_b32 {s(sPo)}, {s(sWAVE)}, 5")
    A(f"s_add_u32 {s(sPo)}, {s(sPo)}, {WS_G + 63 * 128:#x}")
    vq.issue('g', f"buffer_load_dword {a(84)}, {v(LS+1)}, {s(S_WS,4)}, {s(sPo)} offen")
    A(f"s_lshl_b32 {s(sPo)}, {s(sWAVE)}, 14")
    A(f"s_lshl_b32 {s(sPo4)}, {s(sH)}, 6")
    A(f"s_add_u32 {s(sPo)}, {s(sPo)}, {s(sPo4)}")
    A(f"s_add_u32 {s(sPo)}, {s(sPo)}, {WS_B63:#x}")
    vq.issue('g', f"buffer_load_dwordx4 {a(80,4)}, {v(LS,4 if False else 1)}, {s(S_WS,4)}, {s(sPo)} offen")
    group(1)
    A(f"s_lshl_b32 {s(sPo)}, {s(sWAVE)}, 18")
    A(f"s_add_u32 {s(sPo)}, {s(sPo)}, {WS_PF:#x}")
    A(f"s_add_u32 {s(sPo4)}, {s(sPo)}, 4096")
    group(2)
    A(f"v_bfe_u32 {v(u0)}, {v(vL16)}, 4, 4")
    A(f"v_lshlrev_b32 {v(u1)}, 10, {v(u0)}")
    A(f"v_lshrrev_b32 {v(u0)}, 3, {v(u0)}")
    A(f"v_lshlrev_b32 {v(u0)}, 30, {v(u0)}")
    A(f"v_add_u32 {v(u1)}, {v(u1)}, {v(u0)}")
    A(f"v_lshrrev_b32 {v(u0)}, 8, {v(vL16)}")
    A(f"v_lshlrev_b32 {v(u0)}, 3, {v(u0)}")
    A(f"v_add_u32 {v(u1)}, {v(u1)}, {v(u0)}")
    A(f"s_lshl_b32 {s(sOo)}, {s(sWAVE)}, 13")
    A(f"s_lshl_b32 {s(sRet)}, {s(sH)}, 5")
    A(f"s_add_u32 {s(sOo)}, {s(sOo)}, {s(sRet)}")
    A(f"s_add_u32 {s(sOo)}, {s(sOo)}, {63 * 32 * 1024:#x}")
    A(f"s_mov_b32 {s(sRet)}, 0")
    RA = PA
    Lb, Lp, Lok, Lchk, Lw3 = (A.new_label(x) for x in ("cfb", "cfp", "cfok", "cfchk", "cfw3"))

    def final_posts():
        cst()
        A.nop(4)
        for i in range(16):
            post(3, i)
            if i % 4 == 0:
                A.nop(1)
        cst()

    def chk(cnt):
        for i in range(8):
            A(f"s_waitcnt vmcnt({cnt(i)})")
            c = "0" if i == 0 else v(RA, 4)
            A(f"v_mfma_f32_16x16x32_bf16 {v(RA,4)}, {v(RS[i],4)}, {v(SEL,4)}, {c}")
            if i == 0:
                A(f"v_and_b32 {v(m)}, {v(RS[i])}, {v(RS[i]+2)}")
            else:
                A(f"v_bitop3_b32 {v(m)}, {v(m)}, {v(RS[i])}, {v(RS[i]+2)} bitop3:0x80")
        A(f"v_and_b32 {v(m)}, 1, {v(m)}")
        A(f"v_cmp_ne_u32 vcc, 1, {v(m)}")
    A(f"s_cmp_ge_u32 {s(sWAVE)}, 2")
    A(f"s_cbranch_scc1 {Lb}")
    save = (list(vq.ops), list(lq.ops), nst[0])
    group(3, True)
    final_posts()
    young = [len(vq.ops) - 1 - vq.ops.index(('r', i)) for i in range(8)]
    chk(lambda i: young[i])
    A(f"s_cbranch_vccz {Lok}")
    A(f"s_branch {Lp}")
    A.label(Lb)
    vq.ops, lq.ops, nst[0] = save
    group(3)
    final_posts()
    A(f"s_cmp_eq_u32 {s(sWAVE)}, 2")
    A(f"s_cbranch_scc1 {Lp}")
    for _ in range(opts.get('cfd', 3)):
        A(f"s_sleep 1")
    A.label(Lp)
    for i in range(8):
        ld(i)
    chk(lambda i: 7 - i)
    A(f"s_cbranch_vccz {Lok}")
    A(f"s_add_u32 {s(sRet)}, {s(sRet)}, 1")
    A(f"s_cmp_lg_u32 {s(sDEAD)}, 0")
    A(f"s_cbranch_scc1 {Lok}")
    A(f"s_cmp_lt_u32 {s(sRet)}, {RED_LIMIT}")
    A(f"s_cbranch_scc1 {Lp}")
    A(f"s_mov_b32 {s(sDEAD)}, 1")
    A.label(Lok)
    cst()
    BG = PA + 8
    for r in range(5):
        A(f"v_accvgpr_read_b32 {v(BG+r)}, {a(80+r)}")
    for r in range(4):
        A(f"v_sub_f32 {v(RA+r)}, {v(RA+r)}, {v(BG+r)}")
    for r in range(4):
        A(f"v_fma_f32 {v(RA+r)}, {v(RA+r)}, {v(BG+4)}, {v(BG+r)}")
    A(f"v_cvt_pk_bf16_f32 {v(RA+4)}, {v(RA)}, {v(RA+1)}")
    A(f"v_cvt_pk_bf16_f32 {v(RA+5)}, {v(RA+2)}, {v(RA+3)}")
    A(f"buffer_store_dwordx2 {v(RA+4,2)}, {v(u1)}, {s(sOut,4)}, {s(sOo)} offen")
    if opts.get('tprof') == 3:
        A(f"s_waitcnt vmcnt(0)")
        cst()
        A(f"s_waitcnt lgkmcnt(0)")
        for k in range(1, 10):
            A(f"s_sub_u32 s{92 + k - 1}, s{64 + 2*k}, s64")
        A(f"s_mov_b32 s101, {s(sRet)}")
        A(f"s_branch L_flush")


def kv_polls(A):
    for j in range(2):
        Lp = A.new_label("kvp")
        Ld = A.new_label("kvd")
        A(f"s_mov_b32 {s(sRet)}, 0")
        A(f"s_cmp_lg_u32 {s(sDEAD)}, 0")
        A(f"s_cbranch_scc1 {Ld}")
        A.label(Lp)
        A(f"buffer_load_dword {v(vFlag)}, off, {s(S_WS,4)}, {s(sT5)} offset:{4*j} sc1")
        A(f"s_waitcnt vmcnt(0)")
        A(f"v_readfirstlane_b32 {s(sT0)}, {v(vFlag)}")
        A(f"s_cmp_ge_u32 {s(sT0)}, 1")
        A(f"s_cbranch_scc1 {Ld}")
        A(f"s_sleep 1")
        A(f"s_add_u32 {s(sRet)}, {s(sRet)}, 1")
        A(f"s_cmp_lt_u32 {s(sRet)}, {SPIN_LIMIT}")
        A(f"s_cbranch_scc1 {Lp}")
        A(f"s_mov_b32 {s(sDEAD)}, 1")
        A.label(Ld)


def fb_consts(A):
    A(f"s_cmp_eq_u32 {s(sWAVE)}, 0")
    A(f"s_cselect_b32 {s(sFb)}, {OOB:#x}, {s(sT5)}")
    A(f"s_add_u32 {s(sFo)}, {s(sFb)}, 8")


def gen_late_start(A, opts, vL):
    mk_srd(A, S_A, P_MEM0, 8192)
    A(f"s_lshl_b32 {s(sT0)}, {s(sWAVE)}, 8")
    lane_expr(A, vT0, vL, [(2, 2, 2048), (0, 1, 1024), (1, 1, 64), (4, 2, 16)], sregs=[sT0])
    A(f"buffer_load_dwordx4 {v(X+24,4)}, {v(vT0)}, {s(S_A,4)}, 0 offen")
    A(f"buffer_load_dwordx4 {v(X+28,4)}, {v(vT0)}, {s(S_A,4)}, 0 offen offset:128")
    A(f"s_waitcnt vmcnt(0)")
    A(f"ds_write_b128 {v(vMw)}, {v(X+24,4)}")
    A(f"ds_write_b128 {v(vMw)}, {v(X+28,4)} offset:1024")
    for i in range(16):
        A(f"v_mov_b32 {v(ACC+i)}, 0")
    for i in range(8):
        A(f"v_mov_b32 {v(Y+24+i)}, 0")
    fb_consts(A)
    A(f"v_mov_b32 {v(vT1)}, 0")
    A(f"s_mov_b32 {s(sT2)}, {D_CHECKIN*4}")
    A(f"s_mov_b32 {s(sT3)}, 0")
    wait_byte(A, vFlag, vT1, sT2, sT3, 32, "ci", sleep=1)
    A(f"buffer_load_dword {v(vFlag)}, {v(vT1)}, {s(S_DBG,4)}, 0 offen offset:{D_CHECKIN*4} sc1")
    A(f"s_getreg_b32 {s(sT0)}, hwreg(HW_REG_XCC_ID, 0, 4)")
    A(f"s_mul_i32 {s(sT1)}, {s(sT0)}, {s(sT0)}")
    A(f"s_lshl_b32 {s(sT1)}, {s(sT1)}, 22")
    A(f"s_lshl_b32 {s(sT0)}, {s(sT0)}, 13")
    A(f"s_add_u32 {s(sT0)}, {s(sT0)}, {s(sT1)}")
    A(f"s_add_u32 {s(sT0)}, {s(sT0)}, 32")
    A(f"s_waitcnt vmcnt(0)")
    A(f"v_readfirstlane_b32 {s(sT1)}, {v(vFlag)}")
    A(f"s_cmp_eq_u32 {s(sT0)}, {s(sT1)}")
    A(f"s_cselect_b32 {s(sFastF)}, 1, 0")
    kv_polls(A)
    A(f"s_mov_b32 m0, {s(sM0K)}")
    A(f"s_nop 0")
    for i in range(2):
        A(f"buffer_load_dwordx4 {v(vL16)}, {s(S_WS,4)}, {s(sKn)} offen offset:{1024*i} lds")


def gen_chain(A, opts):
    global RT
    RT = bool(opts.get('rt'))
    CSTEP[0] = opts.get('cstep', 39)
    TRACE[0] = bool(opts.get('trace'))
    FTR[0] = opts.get('ftr', 0)
    vL = 13
    A(f"s_xor_b32 {s(sH)}, {s(sIDX)}, {opts.get('hperm', 0)}")
    A(f"v_and_b32 {v(vL)}, 63, v0")
    if not opts.get('kw'):
        mk_srd(A, S_A, P_WQ, 512 * 8192)
        mk_srd(A, S_B, P_WK, 512 * 8192)
        mk_srd(A, S_C, P_WV, 512 * 8192)
        mk_srd(A, S_D, P_WO, 4096 * 1024)
    A(f"v_lshlrev_b32 {v(vL16)}, 4, {v(vL)}")
    if opts.get('walk') == 1:
        A(f"s_mov_b64 exec, 0")
        A(f"s_branch L_walk_cf")
        A.label("L_walk_ret")
        A(f"s_mov_b64 exec, -1")
    vMre = 2
    vG, vGo, vSW, vSWo, vTRb, vTRo, vTA = 116, 117, 118, 122, 124, 125, 126
    POOL = [40, 72]
    TEMPS = [104, 32]
    sXo = sRo + 1
    A(f"s_lshl_b32 {s(sT0)}, {s(sH)}, 8")
    A(f"s_lshl_b32 {s(sT1)}, {s(sWAVE)}, 20")
    A(f"s_add_u32 {s(sT0)}, {s(sT0)}, {s(sT1)}")
    lane_expr(A, vG, vL, [(4, 2, 8192), (0, 4, 16)], sregs=[sT0])
    A(f"s_lshl_b32 {s(sT0)}, {s(sH)}, 17")
    A(f"s_lshl_b32 {s(sT1)}, {s(sWAVE)}, 8")
    A(f"s_add_u32 {s(sT0)}, {s(sT0)}, {s(sT1)}")
    lane_expr(A, vGo, vL, [(4, 2, 1024), (0, 4, 16)], sregs=[sT0])

    RIDX = {0: 0, 1: 1, 4: 2, 5: 3, 6: 4, 7: 5}
    wo_ops = [(cg, 0) for cg in range(4)] + [(cg, ks) for cg in range(4) for ks in range(1, 4)]
    WORR = [('a', 224), ('a', 232), ('a', 240), ('a', 248), ('v', 224), ('v', 232), ('v', 240), ('v', 248)]

    def arm(part=3):
        Z = 20
        if part & 1:
            for i in range(4):
                A(f"v_mov_b32 {v(vSEL+i)}, -1")
            A(f"v_bfe_u32 {v(vT0)}, {v(vL)}, 4, 1")
            for i in range(4):
                A(f"v_xor_b32 {v(ACC+i)}, -1, {v(vT0)}")
            A(f"s_lshl_b32 {s(sT2)}, {s(sH)}, 8")
            A(f"v_add_u32 {v(vT0)}, {s(sT2)}, {v(vL16)}")
            A(f"v_cmp_gt_u32 vcc, 16, {v(vL)}")
            A(f"v_mov_b32 {v(vT1)}, {OOB:#x}")
            A.nop(1)
            A(f"v_cndmask_b32 {v(vMre)}, {v(vT1)}, {v(vT0)}, vcc")
            for i in range(4):
                A(f"v_mov_b32 {v(Z+i)}, 0")
            A(f"v_cndmask_b32 {v(Z+4)}, {v(vT1)}, {v(vL16)}, vcc")
            A(f"v_cmp_gt_u32 vcc, 8, {v(vL)}")
            A.nop(2)
            A(f"v_cndmask_b32 {v(Z+5)}, {v(vT1)}, {v(vL16)}, vcc")
        if part & 2:
            A(f"s_lshl_b32 {s(sT0)}, {s(sH)}, 13")
            A(f"s_lshl_b32 {s(sT1)}, {s(sWAVE)}, 11")
            A(f"s_add_u32 {s(sT0)}, {s(sT0)}, {s(sT1)}")
            vq.issue('st', f"buffer_store_dwordx4 {v(ACC,4)}, {v(vL16)}, {s(S_WS,4)}, {s(sT0)} offen sc1")
            vq.issue('st', f"buffer_store_dwordx4 {v(ACC,4)}, {v(vL16)}, {s(S_WS,4)}, {s(sT0)} offen offset:1024 sc1")
            for sl in range(4):
                A(f"s_mov_b32 {s(sT1)}, {WS_M + sl*8192:#x}")
                vq.issue('st', f"buffer_store_dwordx4 {v(vSEL,4)}, {v(vMre)}, {s(S_WS,4)}, {s(sT1)} offen sc1")
            A(f"s_lshl_b32 {s(sT1)}, {s(sH)}, 8")
            A(f"s_add_u32 {s(sT1)}, {s(sT1)}, {WS_OF:#x}")
            vq.issue('st', f"buffer_store_dwordx4 {v(Z,4)}, {v(Z+4)}, {s(S_WS,4)}, {s(sT1)} offen sc1")
            A(f"s_lshl_b32 {s(sT1)}, {s(sH)}, 7")
            A(f"s_add_u32 {s(sT1)}, {s(sT1)}, {WS_KVF:#x}")
            vq.issue('st', f"buffer_store_dwordx4 {v(Z,4)}, {v(Z+5)}, {s(S_WS,4)}, {s(sT1)} offen sc1")
    KW = opts.get('kw', 0)
    if KW:
        assert not opts.get('armlate', 1)
        arm(1)
        G.karg_ready(A, opts, [(S_D, P_WO, 4096 * 1024), (S_A, P_WQ, 512 * 8192), (S_B, P_WK, 512 * 8192), (S_C, P_WV, 512 * 8192)])
    A(f"s_lshl_b32 {s(sXo)}, {s(sWAVE)}, 15")

    def qkv_unit(m, hp, x):
        u = dict(kind='qkv', m=m, hp=hp, x=x, srd={'q': S_A, 'k': S_B, 'v': S_C}[m], needs_temp=(m != 'q'))
        u['soff'] = [(64 * hp + 16 * x + 4 * (k & 3) + 32 * (k >> 2)) * 8192 for k in range(8)]
        return u

    def bind(u, temp):
        if u['kind'] == 'qkv':
            m, hp, x = u['m'], u['hp'], u['x']
            res = []
            for i in range(4):
                sl = hp + 2 * i
                for t_ in range(2):
                    if m == 'q':
                        res.append((('a', 16 * sl + 8 * t_ + 4 * x), None))
                    elif sl in (2, 3):
                        fi = (0 if m == 'k' else 4) + 2 * (sl - 2) + t_
                        res.append((('v', temp + 4 * t_), fi * 2048 + 1024 * x))
                    else:
                        res.append(((('a' if m == 'k' else 'v'), 128 + 16 * RIDX[sl] + 8 * t_ + 4 * x), None))
            u['raw'] = [r[0] for r in res]
            u['res'] = res
        else:
            u['raw'] = [('v', temp + 4 * k) for k in range(8)]

    def wo_unit(ks):
        return dict(kind='wo', ks=ks, srd=S_D, soff=[(32 * ks + 4 * k) * 1024 for k in range(8)])
    U = {f"O{k}": wo_unit(k) for k in range(4)}
    for m in 'qkv':
        for hp in range(2):
            for x in range(2):
                U[f"{m.upper()}{hp}{x}"] = qkv_unit(m, hp, x)
    order = {0: "O0 O1 Q00 Q01 Q10 Q11 O2 O3 K00 K01 K10 K11 V00 V01 V10 V11",
             1: "Q00 Q01 Q10 Q11 O0 O1 K00 K01 O2 O3 K10 K11 V00 V01 V10 V11",
             2: "K00 K01 Q00 Q01 Q10 Q11 O0 O1 K10 K11 O2 O3 V00 V01 V10 V11",
             3: "O0 O1 Q00 Q01 Q10 Q11 O2 O3 V00 V01 V10 V11 K00 K01 K10 K11",
             4: "K00 K01 K10 K11 V00 V01 V10 V11 Q00 Q01 Q10 Q11 O0 O1 O2 O3",
             5: "K00 K01 K10 K11 V00 V01 V10 V11 Q00 O0 Q01 O1 Q10 O2 Q11 O3",
             6: "O0 O1 K00 K01 K10 K11 V00 V01 V10 V11 Q00 O2 Q01 O3 Q10 Q11",
             8: "K00 K01 K10 K11 V00 V01 V10 V11 O0 O1 O2 O3 Q00 Q01 Q10 Q11",
             9: "O0 O1 O2 O3 K00 K01 K10 K11 V00 V01 V10 V11 Q00 Q01 Q10 Q11",
             10: "O0 O1 O2 O3 Q00 Q01 Q10 Q11 K00 K01 K10 K11 V00 V01 V10 V11",
             11: "O0 O1 O2 K00 K01 K10 K11 V00 V01 V10 V11 Q00 Q01 Q10 Q11 O3",
             12: "O0 O1 K00 K01 K10 K11 V00 V01 V10 V11 Q00 Q01 Q10 Q11 O2 O3",
             7: "K00 K01 K10 K11 O0 V00 V01 O1 V10 V11 Q00 O2 Q01 O3 Q10 Q11",
             13: "O0 O1 Q00 Q01 Q10 Q11 K00 K01 K10 K11 V00 V01 V10 V11 D2",
             14: "Q00 Q01 Q10 Q11 O0 O1 K00 K01 K10 K11 V00 V01 V10 V11 D2",
             15: "Q00 Q01 Q10 Q11 K00 K01 K10 K11 O0 O1 V00 V01 V10 V11 D2",
             16: "O0 O1 K00 K01 K10 K11 Q00 Q01 Q10 Q11 V00 V01 V10 V11 D2"}[opts.get('word', 0)].split()
    ES = opts.get('es', 0)
    assert bool(ES) == (order[-1] == 'D2')
    sDm = sRo + 2
    for k_ in (2, 3):
        U[f"D{k_}"] = dict(wo_unit(k_), kind='dma')
    PARK = {10: ('v', 232), 13: ('v', 240)} if ES else {}

    def dma_unit(u, vq):
        for k in range(8):
            A(f"s_add_u32 m0, {s(sDm)}, {(u['ks'] - 2) * 8192 + k * 1024:#x}")
            A(f"s_xor_b32 {s(sT0)}, {u['soff'][k]:#x}, {s(sXo)}")
            vq.issue(id(u), f"buffer_load_dwordx4 {v((vGo, vSWo + 1)[k >> 2])}, {s(u['srd'],4)}, {s(sT0)} offen lds" + WPOL[opts.get('wnto', 0)])
    units = [U[n] for n in order]
    for n_ in U:
        U[n_]['name'] = n_
    CPN = opts.get('cpx', 0)
    cpu_ = [n_ for n_ in order if n_[0] in 'QKV']
    cpu_ = (cpu_[:CPN] if opts.get('cpfirst') else cpu_[-CPN:]) if CPN else []
    WS_CP = opts.get('cpbase', G.WS_CP)
    vCp, sCpB = 127, sU
    sSlowH = sU + 1
    if opts.get('cwsm'):
        A(f"s_and_b32 {s(sT0)}, {s(sH)}, 3")
        A(f"s_cmp_eq_u32 {s(sT0)}, {opts.get('cph', 1)}")
        A(f"s_cselect_b32 {s(sSlowH)}, 1, 0")
    if CPN:
        A(f"s_and_b32 {s(sT0)}, {s(sH)}, 3")
        A(f"s_lshr_b32 {s(sT1)}, {s(sH)}, 2")
        A(f"s_mul_i32 {s(sT1)}, {s(sT1)}, {CPN * 32 * 2048}")
        A(f"s_lshl_b32 {s(sT2)}, {s(sWAVE)}, 14")
        A(f"s_add_u32 {s(sT1)}, {s(sT1)}, {s(sT2)}")
        A(f"s_add_u32 {s(sT1)}, {s(sT1)}, {WS_CP:#x}")
        A(f"s_cmp_eq_u32 {s(sT0)}, {opts.get('cph', 1)}")
        A(f"s_cselect_b32 {s(sCpB)}, {s(sT1)}, 0")
        lane_expr(A, vCp, vL, [(4, 2, 256), (0, 4, 16)])
        A(f"v_cmp_lt_u32 vcc, 15, {v(vL)}")
        A(f"v_add_u32 {v(vT0)}, 256, {v(vCp)}")
        A.nop(1)
        A(f"v_cndmask_b32 {v(vCp)}, {v(vCp)}, {v(vT0)}, vcc")
    vq = Q(A, "vmcnt", 63)
    nst = 8
    ARMLATE = opts.get('armlate', 1)
    if not ARMLATE:
        arm(2 if KW else 3)
    busy = set()
    TPREF = [40, 48, 56, 64, 104, 32, 72, 80, 88, 96]
    PPREF = [72, 40]

    def alloc_temp():
        for g in TPREF:
            if g not in busy:
                busy.add(g)
                return g
        return None

    def alloc_pool():
        for p in PPREF:
            gs = [p + 8 * j for j in range(4)]
            if not any(g in busy for g in gs):
                busy.update(gs)
                return p
        return None
    held = {}
    WIN = opts.get('cwin', 56)
    st_ = dict(issued=0)

    def inflight():
        return len(vq.ops)

    EARLY = opts.get('early', 1)
    vEK, vEM, vEF, vEC, vEA = 104, 32, 112, 114, 115
    vEV = 96
    DMI = opts.get('vpos', 0) != 0

    def early_issue():
        assert 104 not in busy and 32 not in busy
        busy.update((104, 32))
        if DMI:
            assert vEV not in busy
            busy.add(vEV)
        mk_srd(A, S_X, P_MEM0, 8192)
        A(f"s_lshl_b32 {s(sT0)}, {s(sWAVE)}, 8")
        lane_expr(A, vEA, vL, [(2, 2, 2048), (0, 1, 1024), (1, 1, 64), (4, 2, 16)], sregs=[sT0])
        vq.issue('fl', f"buffer_load_dwordx2 {v(vEF,2)}, off, {s(S_WS,4)}, {s(sT5)} sc1")
        vq.issue('ci', f"buffer_load_dword {v(vEC)}, off, {s(S_DBG,4)}, 0 offset:{D_CHECKIN*4} sc1")
        vq.issue('m0', f"buffer_load_dwordx4 {v(vEM,4)}, {v(vEA)}, {s(S_X,4)}, 0 offen")
        vq.issue('m0', f"buffer_load_dwordx4 {v(vEM+4,4)}, {v(vEA)}, {s(S_X,4)}, 0 offen offset:128")

    def early_k():
        vq.wait('fl')
        A(f"v_min_u32 {v(vEF)}, {v(vEF)}, {v(vEF+1)}")
        A.nop(1)
        A(f"v_readfirstlane_b32 {s(sT0)}, {v(vEF)}")
        A(f"s_cmp_ge_u32 {s(sT0)}, 1")
        A(f"s_cselect_b32 {s(sKok)}, 1, 0")
        A(f"s_cselect_b32 {s(sT1)}, {s(sKn)}, {OOB:#x}")
        vq.issue('kx', f"buffer_load_dwordx4 {v(vEK,4)}, {v(vL16)}, {s(S_WS,4)}, {s(sT1)} offen")
        vq.issue('kx', f"buffer_load_dwordx4 {v(vEK+4,4)}, {v(vL16)}, {s(S_WS,4)}, {s(sT1)} offen offset:1024")
        if DMI:
            A(f"s_add_u32 {s(sT1)}, {s(sT1)}, 8192")
            vq.issue('kx', f"buffer_load_dwordx4 {v(vEV,4)}, {v(vL16)}, {s(S_WS,4)}, {s(sT1)} offen")
            vq.issue('kx', f"buffer_load_dwordx4 {v(vEV+4,4)}, {v(vL16)}, {s(S_WS,4)}, {s(sT1)} offen offset:1024")

    def try_issue():
        while st_['issued'] < len(units):
            u = units[st_['issued']]
            limit = min(WIN + (nst if 'st' in vq.ops else 0), 62)
            if EARLY and st_['issued'] == len(units) - 1 - (opts.get('esfl', 1) if ES else 0) and not st_.get('early'):
                if inflight() + 8 > limit or 104 in busy or 32 in busy or (DMI and vEV in busy):
                    return
                early_issue()
                st_['early'] = True
                limit += 4
            elif EARLY and st_.get('early'):
                limit += 4
            if inflight() + 8 > limit:
                return
            if u['kind'] == 'wo':
                tmp = alloc_pool()
                if tmp is None:
                    return
                held[id(u)] = ('pool', tmp)
            elif u['kind'] == 'dma':
                assert st_.get('o1')
                tmp = None
            elif u['needs_temp']:
                tmp = alloc_temp()
                if tmp is None:
                    return
                held[id(u)] = ('temp', tmp)
            else:
                tmp = None
            if u['kind'] != 'dma':
                bind(u, tmp)
            if opts.get('cwsm') and inflight() + 8 > opts['cwsm']:
                Lsm = A.new_label("sm")
                A(f"s_cmp_eq_u32 {s(sSlowH)}, 1")
                A(f"s_cbranch_scc1 {Lsm}")
                A(f"s_waitcnt vmcnt({opts['cwsm'] - 8})")
                A.label(Lsm)
            if u['kind'] == 'dma':
                dma_unit(u, vq)
                st_['issued'] += 1
                continue
            Lcp = None
            if u['name'] in cpu_:
                Lcp, Lcq = A.new_label("cp"), A.new_label("cq")
                A(f"s_cmp_lg_u32 {s(sCpB)}, 0")
                A(f"s_cbranch_scc1 {Lcp}")
            for k in range(8):
                if u['kind'] == 'wo':
                    A(f"s_xor_b32 {s(sT0)}, {u['soff'][k]:#x}, {s(sXo)}")
                    vq.issue(id(u), f"buffer_load_dwordx4 {reg(u['raw'][k], 4)}, {v(vGo)}, {s(u['srd'],4)}, {s(sT0)} offen" + WPOL[opts.get('wnto', 0)])
                else:
                    A(f"s_mov_b32 {s(sT0)}, {u['soff'][k]:#x}")
                    vq.issue(id(u), f"buffer_load_dwordx4 {reg(u['raw'][k], 4)}, {v(vG)}, {s(u['srd'],4)}, {s(sT0)} offen" + WPOL[opts.get('wnt', 0)])
            if Lcp:
                A(f"s_branch {Lcq}")
                A.label(Lcp)
                for k in range(8):
                    A(f"s_add_u32 {s(sT0)}, {s(sCpB)}, {(cpu_.index(u['name']) * 32 + k) * 2048:#x}")
                    A(f"buffer_load_dwordx4 {reg(u['raw'][k], 4)}, {v(vCp)}, {s(S_WS,4)}, {s(sT0)} offen")
                A.label(Lcq)
            st_['issued'] += 1
    stamp(A, 1) if not opts.get('cprof') else None
    try_issue()
    if ARMLATE:
        arm()
    A(f"s_lshl_b32 {s(sT2)}, {s(sWAVE)}, 13")
    lane_expr(A, vSW, vL, [(4, 2, 256), (1, 3, 32), (0, 1, 16)], sregs=[sT2])
    A(f"v_mov_b32 {v(vSWo)}, {v(vSW)}")
    A(f"v_bfe_u32 {v(vTA)}, {v(vL)}, 4, 1")
    A(f"v_lshlrev_b32 {v(vT0)}, 5, {v(vTA)}")
    A(f"v_xor_b32 {v(vSW)}, {v(vSW)}, {v(vT0)}")
    A(f"v_lshlrev_b32 {v(vT0)}, 6, {v(vTA)}")
    A(f"v_xor_b32 {v(vSWo)}, {v(vSWo)}, {v(vT0)}")
    A(f"v_xor_b32 {v(vSW+1)}, 64, {v(vSW)}")
    A(f"v_xor_b32 {v(vSW+2)}, 0x80, {v(vSW)}")
    A(f"v_xor_b32 {v(vSW+3)}, 0xc0, {v(vSW)}")
    A(f"v_xor_b32 {v(vSWo+1)}, 0x80, {v(vSWo)}")
    A(f"s_lshl_b32 {s(sT3)}, {s(sWAVE)}, 6")
    lane_expr(A, vTRb, vL, [(2, 1, 256 + 32), (4, 1, 1024 + 64), (5, 1, 2048), (3, 1, 4096 + 128), (0, 2, 8)])
    A(f"v_xor_b32 {v(vTRb)}, {s(sT3)}, {v(vTRb)}")
    A(f"v_add_u32 {v(vTRb)}, {s(sT2)}, {v(vTRb)}")
    lane_expr(A, vTRo, vL, [(2, 1, 256 + 64), (4, 1, 4096 + 128), (5, 1, 1024), (3, 1, 32), (0, 2, 8)], sregs=[sT2])
    A(f"s_lshl_b32 {s(sT0)}, {s(sWAVE)}, 15")
    A(f"s_add_u32 {s(sT0)}, {s(sT0)}, {WO_OFF}")
    A(f"v_add_u32 {v(vWo)}, {s(sT0)}, {v(vL16)}")
    def checkin():
        vq.wait('st')
        A(f"s_barrier")
        Lci = A.new_label("ci")
        A(f"s_cmp_lg_u32 {s(sWAVE)}, 0")
        A(f"s_cbranch_scc1 {Lci}")
        A(f"s_getreg_b32 {s(sT0)}, hwreg(HW_REG_XCC_ID, 0, 4)")
        A(f"s_mul_i32 {s(sT1)}, {s(sT0)}, {s(sT0)}")
        A(f"s_lshl_b32 {s(sT1)}, {s(sT1)}, 17")
        A(f"s_lshl_b32 {s(sT0)}, {s(sT0)}, 8")
        A(f"s_add_u32 {s(sT0)}, {s(sT0)}, {s(sT1)}")
        A(f"s_add_u32 {s(sT0)}, {s(sT0)}, 1")
        A(f"v_mov_b32 {v(vT0)}, {s(sT0)}")
        A(f"v_mov_b32 {v(vT1)}, 0")
        A(f"s_mov_b64 exec, 1")
        A(f"buffer_atomic_add {v(vT0)}, {v(vT1)}, {s(S_DBG,4)}, 0 offen offset:{D_CHECKIN*4} sc1")
        A(f"s_mov_b64 exec, -1")
        A.label(Lci)

    if not ARMLATE:
        checkin()
        try_issue()
    A(f"s_lshr_b32 {s(sT3)}, {s(sH)}, 2")
    A(f"s_lshl_b32 {s(sT3)}, {s(sT3)}, 10")
    A(f"s_and_b32 {s(sT4)}, {s(sH)}, 1")
    A(f"s_lshl_b32 {s(sT4)}, {s(sT4)}, 9")
    A(f"s_add_u32 {s(sT3)}, {s(sT3)}, {s(sT4)}")
    A(f"s_and_b32 {s(sT4)}, {s(sH)}, 2")
    A(f"s_lshl_b32 {s(sT4)}, {s(sT4)}, 4")
    A(f"s_add_u32 {s(sT3)}, {s(sT3)}, {s(sT4)}")
    lane_expr(A, vMst, vL, [(5, 1, 256), (1, 2, 64), (0, 1, 16), (4, 1, 8)], sregs=[sT3])
    A(f"v_and_b32 {v(vT1)}, 8, {v(vL)}")
    A(f"v_lshlrev_b32 {v(vT1)}, 27, {v(vT1)}")
    A(f"v_add_u32 {v(vMst)}, {v(vMst)}, {v(vT1)}")
    A(f"s_cmp_eq_u32 {s(sWAVE)}, 0")
    Lw0 = A.new_label("w0")
    A(f"s_cbranch_scc1 {Lw0}")
    A(f"v_mov_b32 {v(vMst)}, {v(vMre)}")
    A(f"s_cmp_eq_u32 {s(sWAVE)}, 3")
    A(f"s_cbranch_scc1 {Lw0}")
    A(f"v_mov_b32 {v(vMst)}, {OOB:#x}")
    A.label(Lw0)
    for (dst, bit) in ((vIdx, 2), (vIdxW, 8)):
        A(f"v_mov_b32 {v(dst)}, 0x4444")
        A(f"v_mov_b32 {v(vT0)}, 0xeeee")
        A(f"v_and_b32 {v(vT1)}, {bit}, {v(vL)}")
        A(f"v_cmp_ne_u32 vcc, 0, {v(vT1)}")
        A.nop(2)
        A(f"v_cndmask_b32 {v(dst)}, {v(dst)}, {v(vT0)}, vcc")
    A(f"s_lshl_b32 {s(sT0)}, {s(sWAVE)}, 9")
    lane_expr(A, vQKw, vL, [(0, 4, 16), (4, 2, 4)], sregs=[sT0])
    A(f"s_lshl_b32 {s(sT0)}, {s(sWAVE)}, 10")
    A(f"s_lshr_b32 {s(sT1)}, {s(sWAVE)}, 1")
    A(f"s_lshl_b32 {s(sT1)}, {s(sT1)}, 11")
    A(f"s_add_u32 {s(sT0)}, {s(sT0)}, {s(sT1)}")
    lane_expr(A, vKw, vL, [(0, 4, 32), (4, 2, 8)], const=2048, sregs=[sT0])
    lane_expr(A, vKr, vL, [(5, 1, 512), (4, 1, 128), (2, 2, 32), (0, 2, 8)])
    lane_expr(A, vQKr, vL, [(5, 1, 256), (4, 1, 64), (2, 2, 16), (0, 1, 8)])
    A(f"s_lshl_b32 {s(sT0)}, {s(sWAVE)}, 9")
    lane_expr(A, vOw, vL, [(4, 2, 128), (0, 3, 16)], const=O_OFF, sregs=[sT0])
    A(f"s_lshl_b32 {s(sT0)}, {s(sWAVE)}, 11")
    A(f"s_add_u32 {s(sT0)}, {s(sT0)}, {MEM_OFF}")
    A(f"v_add_u32 {v(vMw)}, {s(sT0)}, {v(vL16)}")
    A(f"s_lshl_b32 {s(sT0)}, {s(sWAVE)}, 16")
    A(f"s_lshl_b32 {s(sT1)}, {s(sH)}, 8")
    lane_expr(A, vPst, vL, [(5, 1, 8192), (0, 4, 16), (4, 1, 8)], sregs=[sT0, sT1])
    A(f"s_lshl_b32 {s(sT0)}, {s(sH)}, 13")
    A(f"v_add_u32 {v(vRed)}, {s(sT0)}, {v(vL16)}")
    A(f"s_and_b32 {s(sT1)}, {s(sWAVE)}, 1")
    A(f"s_lshl_b32 {s(sT1)}, {s(sT1)}, 13")
    A(f"s_lshl_b32 {s(sT0)}, {s(sH)}, 14")
    A(f"s_add_u32 {s(sT0)}, {s(sT0)}, {s(sT1)}")
    A(f"v_lshlrev_b32 {v(vPf)}, 6, {v(vL)}")
    A(f"v_add_u32 {v(vPf)}, {s(sT0)}, {v(vPf)}")
    A(f"s_mov_b32 {s(sMLo)}, -1")
    A(f"s_mov_b32 {s(sMLo+1)}, 0")
    A(f"s_mov_b32 {s(sMHi)}, 0")
    A(f"s_mov_b32 {s(sMHi+1)}, -1")
    A(f"s_mov_b32 {s(sC)}, {f32_hex(SCALE_C):#x}")
    A(f"s_mov_b32 {s(sNC)}, {f32_hex(-SCALE_C):#x}")
    Lsel = A.new_label("sel")
    A(f"s_cmp_lg_u32 {s(sWAVE)}, 0")
    A(f"s_cbranch_scc1 {Lsel}")
    A(f"v_and_b32 {v(vT0)}, 15, {v(vL)}")
    A(f"v_mov_b32 {v(vS0)}, 0x3f80")
    A(f"v_mov_b32 {v(vT1)}, 0x3f800000")
    A(f"v_and_b32 v112, 1, {v(vT0)}")
    A(f"v_cmp_eq_u32 vcc, 1, v112")
    A.nop(2)
    A(f"v_cndmask_b32 {v(vS0)}, {v(vS0)}, {v(vT1)}, vcc")
    A(f"v_lshrrev_b32 {v(vT0)}, 1, {v(vT0)}")
    for i in range(4):
        A(f"v_cmp_eq_u32 vcc, {i}, {v(vT0)}")
        A.nop(2)
        A(f"v_cndmask_b32 {v(vSEL+i)}, 0, {v(vS0)}, vcc")
    A(f"v_bfe_u32 {v(vTagE)}, {v(vL)}, 4, 1")
    A(f"v_xor_b32 {v(vTagE)}, 1, {v(vTagE)}")
    A.label(Lsel)
    for i in range(4):
        A(f"v_mov_b32 {v(vONE+i)}, 0x3f803f80")
    for i in range(1, 4):
        A(f"v_mov_b32 {v(vBM+i)}, 0")

    A(f"s_lshl_b32 {s(sW2k)}, {s(sWAVE)}, 11")
    A(f"s_mov_b32 {s(sSlotP1)}, {WS_P + 16384}")
    A(f"s_mov_b32 {s(sPc2)}, {WS_P + 32768}")
    A(f"s_mov_b32 {s(sPc3)}, {WS_P + 49152}")
    A(f"s_mov_b32 {s(sSlotP4)}, {WS_P + 4096}")
    A(f"s_and_b32 {s(sTag)}, {s(sH)}, 1")
    A(f"s_xor_b32 {s(sTag)}, {s(sTag)}, 1")
    A(f"s_lshl_b32 {s(sT5)}, {s(sH)}, 7")
    A(f"s_add_u32 {s(sT5)}, {s(sT5)}, {WS_KVF:#x}")
    A(f"s_cmp_ge_u32 {s(sWAVE)}, 2")
    A(f"s_mov_b32 {s(sT0)}, {OOB:#x}")
    A(f"s_mov_b32 {s(sPf)}, {WS_KX + 0x80000:#x}")
    A(f"s_cselect_b32 {s(sPf)}, {s(sPf)}, {s(sT0)}")
    A(f"s_add_u32 {s(sM0K)}, {s(sW2k)}, {KX_OFF}")
    A(f"s_lshl_b32 {s(sKn)}, {s(sH)}, 14")
    A(f"s_add_u32 {s(sKn)}, {s(sKn)}, {s(sW2k)}")
    A(f"s_add_u32 {s(sKn)}, {s(sKn)}, {WS_KX:#x}")
    A(f"s_add_u32 {s(sM0V)}, {s(sW2k)}, {VX_OFF}")
    A(f"s_lshl_b32 {s(sKV)}, {s(sH)}, 14")
    A(f"s_add_u32 {s(sKV)}, {s(sKV)}, {s(sW2k)}")
    A(f"s_add_u32 {s(sKV)}, {s(sKV)}, {WS_KX:#x}")
    A(f"s_lshl_b32 {s(sKM)}, {s(sH)}, 12")
    A(f"s_add_u32 {s(sKM)}, {s(sKM)}, {WS_KM:#x}")
    A(f"s_mov_b32 {s(sJ4)}, 8")
    A(f"s_mov_b32 {s(sCn)}, 1")
    A(f"s_mov_b32 {s(sNeed)}, 1")
    for b, u in enumerate(units):
        assert st_['issued'] > b, "loader deadlock"
        if u['kind'] == 'dma':
            break
        if EARLY and b == len(units) - 1:
            assert st_.get('early')
            early_k()
        vq.wait(id(u))
        if opts.get('pst0') and b < 4:
            stamp(A, 4 + b)
        A(f"s_barrier")
        if u['kind'] == 'qkv':
            for k in range(8):
                A(f"ds_write_b128 {v(vSW + (k & 1) + 2 * (k >> 2))}, {reg(u['raw'][k], 4)} offset:{k * 1024}")
            A(f"s_waitcnt lgkmcnt(0)")
            A(f"s_barrier")
            x = u['x']
            for i in range(4):
                for t_ in range(2):
                    r_, fin = u['res'][2 * i + t_]
                    A(f"v_xor_b32 {v(vTA + (t_ & 1))}, {(i << 13) | (t_ << 5):#x}, {v(vTRb)}")
                    for q0 in range(2):
                        A(f"ds_read_b64_tr_b16 {reg(off(r_, 2 * q0), 2)}, {v(vTA + (t_ & 1))} offset:{512 * q0}")
            A(f"s_waitcnt lgkmcnt(0)")
            for (r_, fin) in u['res']:
                if fin is not None:
                    A(f"ds_write_b128 {v(vWo)}, {reg(r_, 4)} offset:{fin}")
        else:
            ks = u['ks']
            for k in range(8):
                A(f"ds_write_b128 {v(vSWo + (k >> 2))}, {reg(u['raw'][k], 4)} offset:{k * 1024}")
            base = u['raw'][0][1]
            fins = []
            for cg in range(4):
                io = wo_ops.index((cg, ks))
                dst = WORR[io] if io < 8 else PARK.get(io, ('v', base + 8 * cg))
                A(f"v_xor_b32 {v(vTA + (cg & 1))}, {cg << 6:#x}, {v(vTRo)}")
                for i in range(4):
                    A(f"ds_read_b64_tr_b16 {reg(off(dst, 2 * i), 2)}, {v(vTA + (cg & 1))} offset:{(8 * (i >> 1) + 2 * (i & 1)) * 256}")
                if io >= 8 and io not in PARK:
                    fins.append((dst, io * 2048))
            A(f"s_waitcnt lgkmcnt(0)")
            for (dst, o) in fins:
                A(f"ds_write_b128 {v(vWo)}, {reg(dst, 4)} offset:{o}")
                A(f"ds_write_b128 {v(vWo)}, {reg(off(dst, 4), 4)} offset:{o + 1024}")
        if id(u) in held:
            kind, tmp = held[id(u)]
            A(f"s_waitcnt lgkmcnt(0)")
            if kind == 'pool':
                busy.difference_update(tmp + 8 * j for j in range(4))
            else:
                busy.discard(tmp)
        if ES and u['name'] == 'O1':
            A(f"v_bfe_u32 {v(vTA)}, {v(vL)}, 4, 1")
            A(f"v_lshlrev_b32 {v(vTA)}, 6, {v(vTA)}")
            A(f"s_lshl_b32 {s(sDm)}, {s(sWAVE)}, 15")
            A(f"v_xor_b32 {v(vGo)}, {v(vTA)}, {v(vGo)}")
            A(f"s_add_u32 {s(sDm)}, {s(sDm)}, {WO_OFF + 16384:#x}")
            A(f"v_xor_b32 {v(vSWo + 1)}, 0x80, {v(vGo)}")
            st_['o1'] = True
        if ARMLATE and b == opts.get('cipos', 1):
            checkin()
        if opts.get('prof') and not opts.get('cprof') and not opts.get('pst0') and not opts.get('esprof') and b in (0, 3, 7, 11):
            stamp(A, {0: 4, 3: 5, 7: 6, 11: 7}[b])
        try_issue()
        if opts.get('tlbp') and b == opts.get('tlbb', 1):
            g = opts['tlbp']
            A(f"s_lshl_b32 {s(sT0)}, {s(sH)}, 2")
            A(f"s_add_u32 {s(sT0)}, {s(sT0)}, {s(sWAVE)}")
            A(f"s_lshl_b32 {s(sT0)}, {s(sT0)}, 16")
            A(f"s_add_u32 {s(sT0)}, {s(sT0)}, {WS_KM:#x}")
            assert b <= 5
            A(f"v_and_b32 {v(vT0)}, {(65536 // g) - 1}, {v(vL)}")
            A(f"v_mul_u32_u24 {v(vT0)}, {g:#x}, {v(vT0)}")
            vq.issue('tlb', f"buffer_load_dword {v(vT0)}, {v(vT0)}, {s(S_WS,4)}, {s(sT0)} offen")
        if opts.get('iw'):
            j0 = opts.get('iwb', 2)
            g = IWG(opts)
            for j in range(8):
                if (g == 4 and b == j0 + j) or (g == 32 and b == j0 and j == 0):
                    A(f"s_mov_b64 exec, 0")
                    for w in range(g):
                        if g == 4:
                            A(f"s_cmp_eq_u32 {s(sWAVE)}, {w}")
                            A(f"s_cbranch_scc1 L_iw_{4 * j + w}")
                        else:
                            A(f"s_cbranch_execz L_iw_{w}")
                    A.label(f"L_iwret_{j}")
                    A(f"s_mov_b64 exec, -1")
    A("s_waitcnt lgkmcnt(0)")
    stamp(A, 2) if not opts.get('cprof') else None
    A(f"s_barrier")
    if ES:
        assert EARLY and st_['issued'] == len(units) and not DMI
        vq.wait('m0')
        A(f"v_min_u32 {v(vEF)}, {v(vEF)}, {v(vEF+1)}")
        A(f"ds_write_b128 {v(vMw)}, {v(vEM,4)}")
        A(f"v_readfirstlane_b32 {s(sT0)}, {v(vEF)}")
        A(f"ds_write_b128 {v(vMw)}, {v(vEM+4,4)} offset:1024")
        Lkok = A.new_label("kok")
        A(f"s_cmp_ge_u32 {s(sT0)}, 1")
        A(f"s_cbranch_scc1 {Lkok}")
        kv_polls(A)
        A.label(Lkok)
        if opts.get('esprof'):
            stamp(A, 8)
        A(f"s_mov_b32 m0, {s(sM0K)}")
        A(f"s_add_u32 {s(sT1)}, {s(sKn)}, 8192")
        A(f"buffer_load_dwordx4 {v(vL16)}, {s(S_WS,4)}, {s(sKn)} offen lds")
        A(f"buffer_load_dwordx4 {v(vL16)}, {s(S_WS,4)}, {s(sKn)} offen offset:1024 lds")
        A(f"s_mov_b32 m0, {s(sM0V)}")
        A(f"s_nop 0")
        A(f"buffer_load_dwordx4 {v(vL16)}, {s(S_WS,4)}, {s(sT1)} offen lds")
        A(f"buffer_load_dwordx4 {v(vL16)}, {s(S_WS,4)}, {s(sT1)} offen offset:1024 lds")
        D3Q.clear()
        if opts.get('esd3'):
            A(f"v_mov_b32 {v(X + 16)}, {v(vGo)}")
            A(f"v_mov_b32 {v(X + 17)}, {v(vSWo + 1)}")
            for k in range(8):
                D3Q.append([f"s_add_u32 m0, {s(sDm)}, {8192 + k * 1024:#x}",
                            f"s_xor_b32 {s(sT0)}, {U['D3']['soff'][k]:#x}, {s(sXo)}",
                            f"buffer_load_dwordx4 {v(X + 16 + (k >> 2))}, {s(S_D,4)}, {s(sT0)} offen lds" + WPOL[opts.get('wnto', 0)]])
        else:
            dma_unit(U['D3'], vq)
        for i in range(4):
            A(f"v_mov_b64 {v(X+24+2*i,2)}, {v(vEM+2*i,2)}")
        A(f"v_readfirstlane_b32 {s(sT4)}, {v(vEC)}")
    if not EARLY:
        gen_late_start(A, opts, vL)
    elif not ES:
        Lkok = A.new_label("kok")
        A(f"s_cmp_eq_u32 {s(sKok)}, 1")
        A(f"s_cbranch_scc1 {Lkok}")
        kv_polls(A)
        A(f"buffer_load_dwordx4 {v(vEK,4)}, {v(vL16)}, {s(S_WS,4)}, {s(sKn)} offen")
        A(f"buffer_load_dwordx4 {v(vEK+4,4)}, {v(vL16)}, {s(S_WS,4)}, {s(sKn)} offen offset:1024")
        if DMI:
            A(f"s_add_u32 {s(sT1)}, {s(sKn)}, 8192")
            A(f"buffer_load_dwordx4 {v(vEV,4)}, {v(vL16)}, {s(S_WS,4)}, {s(sT1)} offen")
            A(f"buffer_load_dwordx4 {v(vEV+4,4)}, {v(vL16)}, {s(S_WS,4)}, {s(sT1)} offen offset:1024")
        A.label(Lkok)
        A(f"s_waitcnt vmcnt(0)")
        A(f"ds_write_b128 {v(vMw)}, {v(vEM,4)}")
        A(f"ds_write_b128 {v(vMw)}, {v(vEM+4,4)} offset:1024")
        for i in range(4):
            A(f"v_mov_b64 {v(X+24+2*i,2)}, {v(vEM+2*i,2)}")
        A(f"v_readfirstlane_b32 {s(sT4)}, {v(vEC)}")
        A(f"ds_write_b128 {v(vMw)}, {v(vEK,4)} offset:{KX_OFF - MEM_OFF}")
        A(f"ds_write_b128 {v(vMw)}, {v(vEK+4,4)} offset:{KX_OFF - MEM_OFF + 1024}")
        if DMI:
            A(f"ds_write_b128 {v(vMw)}, {v(vEV,4)} offset:{VX_OFF - MEM_OFF}")
            A(f"ds_write_b128 {v(vMw)}, {v(vEV+4,4)} offset:{VX_OFF - MEM_OFF + 1024}")
    if EARLY:
        for i in range(16):
            A(f"v_mov_b32 {v(ACC+i)}, 0")
        for i in range(8):
            A(f"v_mov_b32 {v(Y+24+i)}, 0")
        fb_consts(A)
        Lcok = A.new_label("cok")
        A(f"s_and_b32 {s(sT0)}, {s(sT4)}, 0xff")
        A(f"s_cmp_ge_u32 {s(sT0)}, 32")
        A(f"s_cbranch_scc1 {Lcok}")
        A(f"v_mov_b32 {v(vT1)}, 0")
        A(f"s_mov_b32 {s(sT2)}, {D_CHECKIN*4}")
        A(f"s_mov_b32 {s(sT3)}, 0")
        wait_byte(A, vFlag, vT1, sT2, sT3, 32, "ci", sleep=1)
        A(f"buffer_load_dword {v(vFlag)}, {v(vT1)}, {s(S_DBG,4)}, 0 offen offset:{D_CHECKIN*4} sc1")
        A(f"s_waitcnt vmcnt(0)")
        A(f"v_readfirstlane_b32 {s(sT4)}, {v(vFlag)}")
        A.label(Lcok)
        A(f"s_getreg_b32 {s(sT0)}, hwreg(HW_REG_XCC_ID, 0, 4)")
        A(f"s_mul_i32 {s(sT1)}, {s(sT0)}, {s(sT0)}")
        A(f"s_lshl_b32 {s(sT1)}, {s(sT1)}, 22")
        A(f"s_lshl_b32 {s(sT0)}, {s(sT0)}, 13")
        A(f"s_add_u32 {s(sT0)}, {s(sT0)}, {s(sT1)}")
        A(f"s_add_u32 {s(sT0)}, {s(sT0)}, 32")
        A(f"s_cmp_eq_u32 {s(sT0)}, {s(sT4)}")
        A(f"s_cselect_b32 {s(sFastF)}, 1, 0")
        A(f"s_mov_b32 m0, {s(sM0V if opts.get('kpos', 0) else sM0K)}")
    A(f"s_mov_b32 {s(sS)}, 0")
    if opts.get('cf') and not opts.get('nosld') and not ES:
        A(f"s_load_dwordx2 s[28:29], s[0:1], 88")
    A(f"s_waitcnt lgkmcnt(0)" if ES else f"s_waitcnt vmcnt(0) lgkmcnt(0)")
    A(f"s_barrier")
    stamp(A, 3) if not opts.get('cprof') else None
    if opts.get('cprof') or opts.get('hist'):
        A(f"s_mov_b32 {s(sCP0)}, 0")
        A(f"s_mov_b32 {s(sCP1)}, 0")
    for k, r_ in ((1, vT0), (2, vT1), (3, vS0)):
        A(f"v_xor_b32 {v(r_)}, {k << 11:#x}, {v(vMw)}")
    for q in range(opts.get('rbtop', 0)):
        A(f"ds_read_b128 {v([X, X + 8, PA, PA + 8][q >> 1] + 4 * (q & 1), 4)}, {v(vWo)} offset:{(q >> 1) * 2048 + 1024 * (q & 1)}")
    if ES:
        gen_step(A, True, opts, first=True)
    else:
        A(f"s_cmp_eq_u32 {s(sFastF)}, 1")
        if opts.get('forceslow'):
            A(f"s_branch L_own1_s")
        A(f"s_cbranch_scc0 L_own1_s")
        if opts.get('tlbw'):
            A(f"s_cmp_eq_u32 {s(sWAVE)}, 1")
            A(f"s_cselect_b32 {s(sPfb)}, {15 if opts['tlbw'] == 1 else opts.get('tlbn', 0)}, 64")
            if opts['tlbw'] == 1 or opts.get('tlbn'):
                A(f"s_cselect_b32 {s(sPf)}, {WS_KM - 8192 + opts.get('tlbo', 0) * 0x80000:#x}, {s(sPf)}")
        if opts.get('m01'):
            A(f"s_cmp_eq_u32 {s(sWAVE)}, 3")
            A(f"s_cbranch_scc0 L_own1_f")
            for sl in range(2):
                A(f"s_mov_b32 {s(sT0)}, {WS_M + sl * 8192:#x}")
                A(f"buffer_store_dwordx4 {v(vSEL,4)}, {v(vMst)}, {s(S_WS,4)}, {s(sT0)} offen")
        A(f"s_branch L_own1_f")
    gen_step(A, True, opts)
    gen_step(A, False, opts)
    if opts.get('iw'):
        import re as _re
        nh = IW['n']
        assert nh <= 32, nh
        keep = []
        for l in A.L:
            m = _re.match(r"\s+s_cbranch_scc1 L_iw_(\d+)$", l)
            if m and int(m.group(1)) >= nh:
                continue
            keep.append(l)
        A.L[:] = keep
        print("iw hops", nh)


def G_tr(A, vD, vL, kind, base_sreg):
    tr_lane_addr(A, vD, vL, vT0, vS0, kind, base_sreg=base_sreg)
```
